```python
import torch

def _softmax(x, axis=-1):
    return torch.softmax(x, dim=axis)
def _gelu(x):
    return torch.nn.functional.gelu(x, approximate="tanh")
def _silu(x):
    return torch.nn.functional.silu(x)
def _sigmoid(x):
    return torch.sigmoid(x)
def _layernorm(x, axis=-1, eps=1e-5):
    m = x.mean(dim=axis, keepdim=True)
    v = x.var(dim=axis, keepdim=True, unbiased=False)
    return (x - m) / torch.sqrt(v + eps)
def _scatter_add(tgt, idx, src, axis=0):
    return tgt.clone().index_add_(axis, idx, src)
def _segment_sum(src, seg, n):
    out = torch.zeros((n,) + src.shape[1:], dtype=src.dtype)
    return out.index_add_(0, seg, src)
def _pad(x, pw):
    flat = tuple(v for pair in reversed(pw) for v in pair)
    return torch.nn.functional.pad(x, flat)

kernel_name = 'gated_mix__sliding_block__dense_activation_relu__prompt'

def setup_inputs():

    _w = (lambda a: (lambda t: t.to(torch.bfloat16) if t.is_floating_point() else t)(torch.as_tensor(a)))
    def _A_setup():
        B, S, D = 1, 2048, 640
        return {
            "x": _w((lambda *s: torch.randn(*s, dtype=torch.bfloat16) * 0.05)(B, S, D)),
            "wqkv": _w((lambda *s: torch.randn(*s, dtype=torch.bfloat16) * 0.8)(D, 3 * D)),
            "wo": _w((lambda *s: torch.randn(*s, dtype=torch.bfloat16) * 0.05)(D, D)),
        }
    _A_in = _A_setup()

    def _B_setup():
        B, S, D, Dff = 1, 2048, 640, 1728
        return {
            "x": _w((lambda *s: torch.randn(*s, dtype=torch.bfloat16) * 0.05)(B, S, D)),
            "w1": _w((lambda *s: torch.randn(*s, dtype=torch.bfloat16) * 0.1)(D, Dff)),
            "w2": _w((lambda *s: torch.randn(*s, dtype=torch.bfloat16) * 0.1)(Dff, D)),
        }
    _B_in = _B_setup()

    return {
        "A_x": _A_in["x"],
        "A_wqkv": _A_in["wqkv"],
        "A_wo": _A_in["wo"],
        "B_x": _B_in["x"],
        "B_w1": _B_in["w1"],
        "B_w2": _B_in["w2"],
        "gate_w": _w((lambda *s: torch.randn(*s, dtype=torch.bfloat16) * 0.05)(640) * 16.0),
    }

def reference(A_x, A_wqkv, A_wo, B_x, B_w1, B_w2, gate_w):
    def _A_ref(x, wqkv, wo):
        B, S, D = x.shape
        H = 32; Dh = D // H; W = 256
        qkv = (lambda x, *d: x.permute(*d))((x @ wqkv).reshape(B, S, 3, H, Dh), 2, 0, 3, 1, 4)
        q, k, v = qkv[0], qkv[1], qkv[2]
        scores = torch.einsum("bhqd,bhkd->bhqk", q, k) * (Dh ** -0.5)
        idx = torch.arange(S)
        mask = (idx[:, None] - idx[None, :] >= 0) & (idx[:, None] - idx[None, :] < W)
        scores = torch.where(mask[None, None], scores, -1e9)
        p = _softmax(scores, axis=-1)
        o = torch.einsum("bhqk,bhkd->bhqd", p, v)
        return (lambda x, *d: x.permute(*d))(o, 0, 2, 1, 3).reshape(B, S, D) @ wo

    def _B_ref(x, w1, w2):
        h = torch.einsum("bsd,df->bsf", x, w1)
        zero = torch.zeros_like(h)
        h = torch.maximum(h, zero)
        return torch.einsum("bsf,fd->bsd", h, w2)

    x = A_x
    g = _sigmoid((x * gate_w).sum(-1, keepdims=True))
    a = _A_ref(x, A_wqkv, A_wo)
    b = _B_ref(x, B_w1, B_w2)
    return g * a + (1 - g) * b
```

```python
import re

def v(i, n=1): return f"v{i}" if n == 1 else f"v[{i}:{i+n-1}]"
def a(i, n=1): return f"a{i}" if n == 1 else f"a[{i}:{i+n-1}]"
def s(i, n=1): return f"s{i}" if n == 1 else f"s[{i}:{i+n-1}]"
def r(i, n=1):
    return v(i, n) if i < 256 else a(i - 256, n)

_REG = re.compile(r"^(-)?(\|)?(abs\()?([vas])(?:(\d+)|\[(\d+):(\d+)\])\)?\|?$")

def regs_of(opnd):
    opnd = opnd.strip()
    if opnd == "vcc": return {("s", 106), ("s", 107)}
    if opnd == "vcc_lo": return {("s", 106)}
    if opnd == "vcc_hi": return {("s", 107)}
    if opnd == "exec": return {("s", 126), ("s", 127)}
    if opnd == "exec_lo": return {("s", 126)}
    if opnd == "exec_hi": return {("s", 127)}
    if opnd == "m0": return {("s", 124)}
    m = _REG.match(opnd)
    if not m: return set()
    k = m.group(4)
    lo = int(m.group(5) if m.group(5) is not None else m.group(6))
    hi = int(m.group(5) if m.group(5) is not None else m.group(7))
    if k == "a": return {("v", 256 + i) for i in range(lo, hi + 1)}
    return {(k, i) for i in range(lo, hi + 1)}

TRANS = ("v_exp_f32", "v_log_f32", "v_rcp_f32", "v_rsq_f32", "v_sqrt_f32", "v_sin_f32", "v_cos_f32", "v_rcp_iflag_f32")

class Ins:
    __slots__ = ("text", "mn", "kind", "wr", "rd", "passes", "srcc", "srcab", "states", "stdata", "dma")
    def __init__(self, text):
        self.text = text
        t = text.split(";")[0].strip()
        parts = t.split(None, 1)
        self.mn = mn = parts[0]
        ops = []
        if len(parts) > 1:
            depth = 0; cur = ""
            for ch in parts[1]:
                if ch == "[": depth += 1
                if ch == "]": depth -= 1
                if ch == "," and depth == 0: ops.append(cur); cur = ""
                else: cur += ch
            ops.append(cur)
            last = ops[-1].strip().split()
            mods = last[1:]
            ops[-1] = last[0] if last else ""
        else:
            mods = []
        ops = [o.strip() for o in ops]
        self.passes = 0; self.srcc = set(); self.srcab = set(); self.states = 1; self.stdata = set(); self.dma = False
        R = [regs_of(o) for o in ops]
        U = lambda l: set().union(*l) if l else set()
        if mn.startswith("v_mfma"):
            self.kind = "mfma"; self.passes = 8 if "32x32" in mn else 4
            self.wr = R[0]; self.srcab = R[1] | R[2]; self.srcc = R[3]; self.rd = self.srcab | self.srcc
        elif mn.startswith("v_"):
            self.kind = "valu"
            if mn.startswith("v_cmp"):
                self.wr = R[0]; self.rd = U(R[1:])
            elif mn.startswith("v_permlane"):
                self.wr = R[0] | R[1]; self.rd = R[0] | R[1]
            elif "_co_" in mn or mn.startswith("v_mad_u64"):
                self.wr = R[0] | R[1]; self.rd = U(R[2:])
            else:
                self.wr = R[0]; self.rd = U(R[1:])
                if mn.startswith("v_fmac") or mn.startswith("v_writelane"): self.rd = self.rd | R[0]
        elif mn.startswith("ds_"):
            self.kind = "ds"
            if mn.startswith("ds_read") or mn.startswith("ds_bpermute") or mn.startswith("ds_swizzle"):
                self.wr = R[0]; self.rd = U(R[1:])
            else:
                self.wr = set(); self.rd = U(R)
        elif mn.startswith("buffer_") or mn.startswith("global_"):
            self.kind = "vmem"
            if "lds" in mods or mn.startswith("global_load_lds"):
                self.dma = True; self.wr = set(); self.rd = U(R) | {("s", 124)}
            elif "_load" in mn:
                self.wr = R[0]; self.rd = U(R[1:])
            else:
                self.wr = set(); self.rd = U(R)
                if mn.endswith("x4") or mn.endswith("x3"):
                    self.stdata = R[0] if mn.startswith("buffer_") else R[1]
        elif mn.startswith("s_"):
            self.kind = "salu"
            if mn == "s_nop":
                self.states = int(ops[0], 0) + 1; self.wr = set(); self.rd = set()
            elif mn.startswith("s_cmp") or mn.startswith("s_bitcmp") or mn.startswith("s_cbranch") or mn in ("s_waitcnt", "s_barrier", "s_branch", "s_sleep", "s_setprio", "s_endpgm"):
                self.wr = set(); self.rd = U(R)
            else:
                self.wr = R[0] if R else set(); self.rd = U(R[1:])
                if "saveexec" in mn: self.wr = self.wr | regs_of("exec")
        else:
            raise ValueError("unknown instruction: " + text)

def need_states(p, c):
    n = 0
    pv = {x for x in p.wr if x[0] == "v"}
    ps = {x for x in p.wr if x[0] == "s"}
    if p.kind == "valu":
        if c.kind == "mfma" and pv & c.rd: n = max(n, 2)
        if c.kind == "valu":
            if p.mn.replace("_e32", "").replace("_e64", "") in TRANS and pv & c.rd: n = max(n, 1)
            if ps & c.rd: n = max(n, 4 if c.mn.startswith(("v_readlane", "v_writelane")) else 2)
            if (ps & regs_of("vcc")) and (c.mn.startswith("v_cndmask") or "addc" in c.mn or "subb" in c.mn): n = max(n, 2)
            if c.mn.startswith(("v_readlane", "v_readfirstlane")) and pv & c.rd: n = max(n, 1)
            if c.mn.startswith("v_permlane") and pv & c.rd: n = max(n, 2)
            if ("dpp" in c.text or "row_" in c.text or "quad_perm" in c.text) and pv & c.rd: n = max(n, 2)
            if ("op_sel" in p.text and not p.mn.startswith("v_pk_")) and pv & c.rd: n = max(n, 1)
        if c.kind == "vmem" and ps & c.rd: n = max(n, 5)
        if c.kind == "salu" and ps & c.rd: n = max(n, 1)
        if c.mn.startswith("s_cbranch_vcc") and ps & regs_of("vcc"): n = max(n, 1)
    if p.kind == "mfma":
        P = p.passes
        if c.kind == "mfma":
            if p.wr & c.srcab: n = max(n, P + 4)
            if p.wr & c.srcc:
                if not (p.wr == c.srcc and p.passes == c.passes): n = max(n, P + 2)
            elif p.wr & c.wr: n = max(n, P + 2)
        elif c.kind in ("valu", "vmem", "ds"):
            if p.wr & (c.rd | c.wr): n = max(n, P + 4)
            if c.kind == "valu" and p.srcc & c.wr: n = max(n, P - 1)
    if p.kind == "salu" and ("s", 124) in p.wr and c.dma: n = max(n, 1)
    if p.kind == "vmem" and p.stdata:
        if p.stdata & c.wr: n = max(n, 2)
    return n

class Emit:
    def __init__(self):
        self.out = []
        self.hist = []
        self.vm = []
        self.lg = []
        self.nops = 0
        self.count = 0
        self.log_nops = []
        self.all_tags = set()
    def raw(self, text): self.out.append(text)
    def comment(self, t): self.out.append("    ; " + t)
    def label(self, name, reset=False):
        self.out.append(name + ":")
        if reset: self.hist = []
    def _push(self, ins):
        self.out.append("    " + ins.text)
        self.hist.append(ins)
        if len(self.hist) > 24: self.hist.pop(0)
        self.count += 1
    def op(self, text, tag=None):
        ins = Ins(text)
        need = 0; dist = 0
        for p in reversed(self.hist):
            k = need_states(p, ins) - dist
            if k > need: need = k
            dist += p.states
            if dist >= 20: break
        if need > 0:
            self.nops += need
            self.log_nops.append((need, text))
            while need > 0:
                k = min(need, 16)
                self._push(Ins(f"s_nop {k-1}")); need -= k
        self._push(ins)
        if ins.kind == "vmem":
            self.vm.append(tag); self.all_tags.add(tag)
            assert len(self.vm) <= 63, "too many vmem ops outstanding"
        elif ins.kind == "ds":
            self.lg.append(tag)
        elif ins.mn.startswith("s_load") or ins.mn.startswith("s_mem"):
            self.lg.append("SMEM")
        return ins
    def ops(self, text):
        for l in text.strip().split("\n"):
            l = l.strip()
            if l: self.op(l)
    @staticmethod
    def _left(q, tags):
        idx = -1
        for i, t in enumerate(q):
            if t in tags: idx = i
        return None if idx < 0 else len(q) - 1 - idx
    def wait(self, vm=None, lg=None):
        parts = []
        if vm is not None:
            tags = vm if isinstance(vm, (list, set)) else [vm]
            n = 0 if vm == "all" else self._left(self.vm, tags)
            if n is not None:
                parts.append(f"vmcnt({n})"); self.vm = self.vm[len(self.vm) - n:] if n else []
        if lg is not None:
            tags = lg if isinstance(lg, (list, set)) else [lg]
            n = 0 if lg == "all" else self._left(self.lg, tags)
            if n is not None:
                if "SMEM" in self.lg: n = 0
                if n > 15: n = 15
                parts.append(f"lgkmcnt({n})"); self.lg = self.lg[len(self.lg) - n:] if n else []
        if parts: self.op("s_waitcnt " + " ".join(parts))
    def snapshot(self): return (list(self.vm), list(self.lg), list(self.hist))
    def restore(self, snap): self.vm, self.lg, self.hist = list(snap[0]), list(snap[1]), list(snap[2])
    def text(self): return "\n".join(self.out) + "\n"
```

```python
import sys, math, struct
from asmlib import *

NAME = "gated_mix__sliding_block__dense_activation_relu__prompt"

WS_QK = 0
WS_VT = WS_QK + 80 * 64 * 1024
WS_H  = WS_VT + 16 * 64 * 2560
WS_O  = WS_H + 64 * 110592
WS_WT = WS_O + 64 * 40960
WS_G  = WS_WT + 8 * 74 * 5120
WS_FL = WS_G + 8192
WS_ST = WS_FL + 4 * 1024 * 128
WS_SIZE = WS_ST + 1024 * 128
OOB = 0x4000000
assert WS_SIZE < OOB
FL_A, FL_C, FL_B, FL_D = [WS_FL + p * 131072 for p in range(4)]

NW, NX = 5, 5
L_W = 0
L_X = NW * 16384
L_K = L_X
L_V = L_K + 36 * 1024
L_RED = 0
LDS_BYTES = 163840

S_X, S_WA, S_WB, S_WS, S_OUT, S_DBG, S_MISC = 4, 8, 12, 16, 20, 24, 28
S_WAVE, S_XCD, S_I, S_RB, S_CG, S_P, S_RBA, S_TB64, S_NG = 32, 33, 34, 35, 36, 37, 38, 39, 40
S_NONCE = 42
S_T0, S_T1, S_T2, S_T3, S_T4, S_T5 = 44, 45, 46, 47, 48, 49
S_XOFF, S_WOFF, S_XM0, S_WM0, S_W2OFF = 50, 51, 52, 53, 54
S_SCALE = 56
S_ST1, S_ST2, S_ST2B = 58, 59, 60
S_SPIN = 61
S_MASK = 62
S_PTR = 64
S_STAMP = 84
S_VM = 100

V_LANE = 255
V_T0, V_T1, V_T2, V_T3 = 248, 249, 250, 251
V_NONCE = 252
V_L16 = 254
V_XD = 0
V_WD = 4
V_WD2 = 8
V_XR = 12
V_WR = 16
V_ST1 = 24
V_PK = 32
ACC = (64, 128)
V_FR = 192
A_X = 256

def f32(x): return "0x%08x" % struct.unpack("<I", struct.pack("<f", x))[0]
QSCALE = math.log2(math.e) / math.sqrt(20.0)
NEGBIG = 0xff800000

class Gen:
    def __init__(self, stamps=False, opt=None):
        self.e = Emit()
        self.stamps = stamps
        self.nstamp = 0
        self.uid = 0
        self.opt = opt or {}
    def L(self, p):
        self.uid += 1
        return f"L_{p}_{self.uid}"
    def stamp(self, idx):
        if self.stamps:
            self.e.op(f"s_memrealtime {s(S_STAMP + 2 * idx, 2)}")

    def srd(self, d, ptr, nbytes):
        e = self.e
        e.op(f"s_mov_b32 {s(d)}, {s(ptr)}")
        e.op(f"s_and_b32 {s(d+1)}, {s(ptr+1)}, 0xffff")
        e.op(f"s_mov_b32 {s(d+2)}, {nbytes}")
        e.op(f"s_mov_b32 {s(d+3)}, 0x20000")

    def get_nonce(self):
        e = self.e
        lp, dn = self.L("nonce"), self.L("nonce_done")
        e.wait(vm="all")
        e.op(f"v_mov_b32 {v(V_T0)}, 0")
        e.op(f"s_mov_b32 {s(S_SPIN)}, 0")
        e.label(lp)
        e.op(f"buffer_load_dwordx2 {v(V_NONCE,2)}, {v(V_T0)}, {s(S_DBG,4)}, 0 offen sc1")
        e.op(f"s_add_u32 {s(S_SPIN)}, {s(S_SPIN)}, 1")
        e.wait(vm="all")
        e.op(f"v_readfirstlane_b32 {s(S_NONCE)}, {v(V_NONCE)}")
        e.op(f"v_readfirstlane_b32 {s(S_NONCE+1)}, {v(V_NONCE+1)}")
        e.op(f"s_cmp_gt_u32 {s(S_SPIN)}, 0x40000")
        e.op(f"s_cbranch_scc1 {dn}")
        e.op(f"s_cmp_eq_u32 {s(S_NONCE)}, 0")
        e.op(f"s_cbranch_scc1 {lp}")
        e.label(dn)

    def publish(self, soff):
        e = self.e
        e.op(f"v_mov_b32 {v(V_T0)}, 0")
        e.op("s_mov_b64 exec, 1")
        e.op(f"buffer_store_dwordx2 {v(V_NONCE,2)}, {v(V_T0)}, {s(S_WS,4)}, {s(soff)} offen sc1", tag="flag")
        e.op("s_mov_b64 exec, -1")

    def poll(self, vaddr):
        e = self.e
        lp, dn = self.L("poll"), self.L("poll_done")
        e.wait(vm="all")
        e.op(f"s_mov_b32 {s(S_SPIN)}, 0")
        e.label(lp)
        e.op(f"buffer_load_dwordx2 {v(V_T2,2)}, {v(vaddr)}, {s(S_WS,4)}, 0 offen sc1")
        e.op(f"s_add_u32 {s(S_SPIN)}, {s(S_SPIN)}, 1")
        e.wait(vm="all")
        e.op(f"v_cmp_ne_u64 vcc, {s(S_NONCE,2)}, {v(V_T2,2)}")
        e.op(f"s_cmp_gt_u32 {s(S_SPIN)}, 0x40000")
        e.op(f"s_cbranch_scc1 {dn}")
        e.op(f"s_cbranch_vccnz {lp}")
        e.label(dn)

    def prologue(self):
        e = self.e
        e.op("s_cmp_ge_u32 s2, 256")
        e.op("s_cbranch_scc1 L_end")
        e.op(f"s_load_dwordx16 {s(S_PTR,16)}, s[0:1], 0")
        e.op(f"s_load_dwordx4 {s(S_PTR+16,4)}, s[0:1], 64")
        self.stamp(0)
        e.op(f"v_lshrrev_b32 {v(V_T0)}, 6, v0")
        e.op(f"v_and_b32 {v(V_LANE)}, 63, v0")
        e.op(f"v_readfirstlane_b32 {s(S_WAVE)}, {v(V_T0)}")
        e.op(f"v_lshlrev_b32 {v(V_L16)}, 4, {v(V_LANE)}")
        e.op(f"s_and_b32 {s(S_XCD)}, s2, 7")
        e.op(f"s_lshr_b32 {s(S_I)}, s2, 3")
        e.op(f"s_lshr_b32 {s(S_T0)}, {s(S_XCD)}, 1")
        e.op(f"s_mul_i32 {s(S_T1)}, {s(S_T0)}, 30")
        e.op(f"s_add_u32 {s(S_T1)}, {s(S_T1)}, {s(S_I)}")
        e.op(f"s_and_b32 {s(S_T2)}, {s(S_XCD)}, 1")
        e.op(f"s_lshl_b32 {s(S_T3)}, {s(S_T2)}, 3")
        e.op(f"s_and_b32 {s(S_RB)}, {s(S_T1)}, 7")
        e.op(f"s_add_u32 {s(S_RB)}, {s(S_RB)}, {s(S_T3)}")
        e.op(f"s_lshr_b32 {s(S_CG)}, {s(S_T1)}, 3")
        e.op(f"s_lshr_b32 {s(S_P)}, {s(S_I)}, 4")
        e.op(f"s_lshl_b32 {s(S_T3)}, {s(S_XCD)}, 1")
        e.op(f"s_add_u32 {s(S_P)}, {s(S_P)}, {s(S_T3)}")
        e.op(f"s_and_b32 {s(S_RBA)}, {s(S_I)}, 15")
        e.op(f"s_lshl_b32 {s(S_TB64)}, {s(S_T0)}, 3")
        e.op(f"s_and_b32 {s(S_T3)}, {s(S_I)}, 7")
        e.op(f"s_add_u32 {s(S_TB64)}, {s(S_TB64)}, {s(S_T3)}")
        e.op(f"s_lshl_b32 {s(S_NG)}, {s(S_T2)}, 2")
        e.op(f"s_lshr_b32 {s(S_T3)}, {s(S_I)}, 3")
        e.op(f"s_add_u32 {s(S_NG)}, {s(S_NG)}, {s(S_T3)}")
        L = v(V_LANE); T0, T1, T2, T3 = v(V_T0), v(V_T1), v(V_T2), v(V_T3)
        e.op(f"v_lshrrev_b32 {T0}, 3, {L}")
        e.op(f"v_mul_u32_u24 {T0}, 1280, {T0}")
        e.op(f"v_lshrrev_b32 {T1}, 4, {L}")
        e.op(f"v_and_b32 {T2}, 7, {L}")
        e.op(f"v_xor_b32 {T2}, {T2}, {T1}")
        for n in range(4):
            if n & 1: e.op(f"v_xor_b32 {T3}, 4, {T2}")
            else: e.op(f"v_mov_b32 {T3}, {T2}")
            e.op(f"v_lshl_add_u32 {T3}, {T3}, 4, {T0}")
            e.op(f"v_add_u32 {v(V_XD+n)}, {n * (8 * 1280 - 1024)}, {T3}")
        e.op(f"v_lshlrev_b32 {T2}, 2, {T1}")
        e.op(f"v_and_b32 {T3}, 15, {L}")
        e.op(f"v_xor_b32 {T2}, {T2}, {T3}")
        e.op(f"v_lshlrev_b32 {T2}, 4, {T2}")
        for base, rs in ((V_WD, 3840), (V_WD2, 3456)):
            e.op(f"v_mul_u32_u24 {T0}, {rs}, {T1}")
            e.op(f"v_add_u32 {T0}, {T0}, {T2}")
            for n in range(4):
                e.op(f"v_add_u32 {v(base+n)}, {n * (4 * rs - 1024)}, {T0}")
        e.op(f"s_lshl_b32 {s(S_T0)}, {s(S_RB)}, 2")
        e.op(f"s_add_u32 {s(S_T0)}, {s(S_T0)}, {s(S_WAVE)}")
        e.op(f"s_mul_i32 {s(S_XOFF)}, {s(S_T0)}, {32 * 1280}")
        e.op(f"s_lshl_b32 {s(S_T1)}, {s(S_CG)}, 8")
        e.op(f"s_mul_i32 {s(S_WOFF)}, {s(S_WAVE)}, {16 * 3840}")
        e.op(f"s_add_u32 {s(S_WOFF)}, {s(S_WOFF)}, {s(S_T1)}")
        e.op(f"s_mul_i32 {s(S_W2OFF)}, {s(S_WAVE)}, {16 * 3456}")
        e.op(f"s_add_u32 {s(S_W2OFF)}, {s(S_W2OFF)}, {s(S_T1)}")
        e.op(f"s_mul_i32 {s(S_XM0)}, {s(S_WAVE)}, {NX * 4096}")
        e.op(f"s_add_u32 {s(S_XM0)}, {s(S_XM0)}, {L_X}")
        e.op(f"s_lshl_b32 {s(S_WM0)}, {s(S_WAVE)}, 12")
        e.wait(lg="all")
        self.srd(S_X, S_PTR + 0, 2048 * 1280)
        self.srd(S_WA, S_PTR + 2, 640 * 3840)
        self.srd(S_WB, S_PTR + 8, 640 * 3456)
        self.srd(S_WS, S_PTR + 18, WS_SIZE)
        self.srd(S_OUT, S_PTR + 14, 2048 * 1280)
        self.srd(S_DBG, S_PTR + 16, 256)
        self.srd(S_MISC, S_PTR + 12, 1280)
        e.op(f"s_cmp_ge_u32 {s(S_I)}, 30")
        e.op("s_cbranch_scc1 L_retile")

    def dma_x(self, st):
        e = self.e
        def mk(n):
            def f():
                if n == 0:
                    e.op(f"s_add_u32 m0, {s(S_XM0)}, {(st % NX) * 4096}")
                    e.op(f"s_add_u32 {s(S_T4)}, {s(S_XOFF)}, {st * 128}")
                e.op(f"buffer_load_dwordx4 {v(V_XD+n)}, {s(S_X,4)}, {s(S_T4)} offen offset:{n*1024} lds", tag=("d", st))
            return f
        return [mk(n) for n in range(4)]
    def dma_w(self, st):
        e = self.e
        srd, vd, so, rs, k = (S_WA, V_WD, S_WOFF, 3840, st) if st < 10 else (S_WB, V_WD2, S_W2OFF, 3456, st - 10)
        def mk(n):
            def f():
                if n == 0:
                    e.op(f"s_add_u32 m0, {s(S_WM0)}, {L_W + (st % NW) * 16384}")
                    e.op(f"s_add_u32 {s(S_T4)}, {s(so)}, {k * 64 * rs}")
                e.op(f"buffer_load_dwordx4 {v(vd+n)}, {s(srd,4)}, {s(S_T4)} offen offset:{n*1024} lds", tag=("d", st))
            return f
        return [mk(n) for n in range(4)]

    def stage1_setup(self):
        e = self.e
        for st in range(NW):
            for f in self.dma_x(st) + self.dma_w(st): f()
        L = v(V_LANE); T0, T1, T2, T3 = v(V_T0), v(V_T1), v(V_T2), v(V_T3)
        sk = self.L("nononce")
        e.op(f"s_or_b32 {s(S_T0)}, s2, {s(S_WAVE)}")
        e.op(f"s_cmp_lg_u32 {s(S_T0)}, 0")
        e.op(f"s_cbranch_scc1 {sk}")
        snap = e.snapshot()
        e.op(f"s_memrealtime {s(S_NONCE,2)}")
        e.op(f"v_mov_b32 {T0}, 0")
        e.op("s_waitcnt lgkmcnt(0)")
        e.op(f"s_or_b32 {s(S_NONCE)}, {s(S_NONCE)}, 1")
        e.op(f"v_mov_b32 {v(V_NONCE)}, {s(S_NONCE)}")
        e.op(f"v_mov_b32 {v(V_NONCE+1)}, {s(S_NONCE+1)}")
        e.op("s_mov_b64 exec, 1")
        e.op(f"buffer_store_dwordx2 {v(V_NONCE,2)}, {T0}, {s(S_DBG,4)}, 0 offen sc1")
        e.op("s_mov_b64 exec, -1")
        e.restore(snap)
        e.label(sk)
        e.op(f"v_and_b32 {T0}, 31, {L}")
        e.op(f"v_bfe_u32 {T1}, {L}, 1, 3")
        e.op(f"v_lshrrev_b32 {T2}, 5, {L}")
        e.op(f"v_xor_b32 {T1}, {T1}, {T2}")
        e.op(f"v_lshlrev_b32 {T1}, 4, {T1}")
        e.op(f"v_lshl_add_u32 {T1}, {T0}, 7, {T1}")
        for ks in range(4):
            e.op(f"v_xor_b32 {T3}, {ks * 32}, {T1}")
            e.op(f"v_add_u32 {v(V_XR+ks)}, {s(S_XM0)}, {T3}")
        e.op(f"v_bfe_u32 {T0}, {L}, 2, 2")
        e.op(f"v_lshl_add_u32 {T1}, {T2}, 3, {T0}")
        e.op(f"v_lshlrev_b32 {T1}, 8, {T1}")
        e.op(f"v_lshl_add_u32 {T1}, {T0}, 6, {T1}")
        e.op(f"v_bfe_u32 {T3}, {L}, 4, 1")
        e.op(f"v_lshl_add_u32 {T1}, {T3}, 5, {T1}")
        e.op(f"v_and_b32 {T3}, 3, {L}")
        e.op(f"v_lshl_add_u32 {T1}, {T3}, 3, {T1}")
        for j in range(4):
            e.op(f"v_xor_b32 {v(V_WR+j)}, {j * 64}, {T1}")
            e.op(f"v_add_u32 {v(V_WR+4+j)}, 0x10000, {v(V_WR+j)}")
        e.op(f"s_lshl_b32 {s(S_T0)}, {s(S_RB)}, 2")
        e.op(f"s_add_u32 {s(S_T0)}, {s(S_T0)}, {s(S_WAVE)}")
        lv, ld = self.L("st1v"), self.L("st1d")
        e.op(f"s_cmp_ge_u32 {s(S_CG)}, 10")
        e.op(f"s_cbranch_scc1 {lv}")
        for j in range(4):
            e.op(f"v_add_u32 {v(V_ST1+j)}, {j * 131072}, {v(V_L16)}")
        e.op(f"s_lshl_b32 {s(S_ST1)}, {s(S_CG)}, 19")
        e.op(f"s_lshl_b32 {s(S_T1)}, {s(S_T0)}, 10")
        e.op(f"s_add_u32 {s(S_ST1)}, {s(S_ST1)}, {s(S_T1)}")
        e.op(f"s_add_u32 {s(S_T5)}, {s(S_ST1)}, {WS_QK + 65536}")
        e.op(f"s_add_u32 {s(S_ST1)}, {s(S_ST1)}, {WS_QK}")
        e.op(f"s_branch {ld}")
        e.label(lv)
        e.op(f"s_sub_u32 {s(S_T1)}, {s(S_CG)}, 10")
        e.op(f"s_lshl_b32 {s(S_T1)}, {s(S_T1)}, 7")
        e.op(f"v_and_b32 {T0}, 31, {L}")
        e.op(f"v_add_u32 {T0}, {s(S_T1)}, {T0}")
        e.op(f"v_mul_u32_u24 {T2}, 640, {T2}")
        e.op(f"s_mov_b32 {s(S_T2)}, {64 * 2560 - 640}")
        for j in range(4):
            e.op(f"v_add_u32 {T1}, {32 * j}, {T0}")
            e.op(f"v_mul_u32_u24 {T3}, 1639, {T1}")
            e.op(f"v_lshrrev_b32 {T3}, 16, {T3}")
            e.op(f"v_lshl_add_u32 {T1}, {T1}, 4, {T2}")
            e.op(f"v_mad_u32_u24 {v(V_ST1+j)}, {T3}, {s(S_T2)}, {T1}")
        e.op(f"s_mul_i32 {s(S_ST1)}, {s(S_T0)}, 2560")
        e.op(f"s_add_u32 {s(S_T5)}, {s(S_ST1)}, {WS_VT + 1280}")
        e.op(f"s_add_u32 {s(S_ST1)}, {s(S_ST1)}, {WS_VT}")
        e.label(ld)
        e.op(f"s_cmp_lt_u32 {s(S_CG)}, 5")
        e.op(f"s_cselect_b32 {s(S_SCALE)}, {f32(QSCALE)}, 1.0")
        e.op(f"s_mov_b32 {s(S_SCALE+1)}, {s(S_SCALE)}")
        e.op(f"s_mul_i32 {s(S_ST2)}, {s(S_T0)}, 110592")
        e.op(f"s_lshl_b32 {s(S_T1)}, {s(S_CG)}, 13")
        e.op(f"s_add_u32 {s(S_ST2)}, {s(S_ST2)}, {s(S_T1)}")
        e.op(f"s_add_u32 {s(S_ST2)}, {s(S_ST2)}, {WS_H}")
        e.op(f"s_add_u32 {s(S_ST2B)}, {s(S_ST2)}, 4096")
        e.op(f"s_cmp_lt_u32 {s(S_CG)}, 13")
        e.op(f"s_cselect_b32 {s(S_ST2B)}, {s(S_ST2B)}, {OOB}")

    def w_read(self, st, f, u):
        ks, j = f >> 2, f & 3
        slot = st % NW
        off = L_W + slot * 16384 + ks * 4096 + u * 1024
        ad = V_WR + j
        if off >= 65536: off -= 65536; ad += 4
        m = 16 * st + f
        self.e.op(f"ds_read_b64_tr_b16 {v(V_FR + 4 * (m % 8) + 2 * u, 2)}, {v(ad)} offset:{off}", tag=("w", m))
    def x_read(self, st, ks):
        self.e.op(f"ds_read_b128 {r(A_X + 16 * st + 4 * ks, 4)}, {v(V_XR + ks)} offset:{(st % NX) * 4096}", tag=("x", st, ks))

    def stage1_fill(self):
        e = self.e
        fill = {m: [] for m in range(-1, 320)}
        def at(m, f): fill[max(m, -1)].append(f)
        for st in range(20):
            b = 16 * st - 4
            def bar(st=st):
                e.wait(vm=("d", st), lg="all")
                e.op("s_barrier")
            at(b, bar)
            if st < 10:
                for ks in range(4): at(b + 3 * ks, lambda st=st, ks=ks: self.x_read(st, ks))
            for rho in range(32):
                at(b + rho * 13 // 32, lambda st=st, rho=rho: self.w_read(st, rho >> 1, rho & 1))
            if st >= 1 and st + 4 < 20:
                d = (self.dma_x(st + 4) if st + 4 < 10 else []) + self.dma_w(st + 4)
                for i, f in enumerate(d): at(b + 1 + i * (2 if len(d) == 8 else 3) - (1 if i == 7 else 0), f)
        return fill

    def p1_epilogue_ops(self):
        e = self.e
        ops = []
        for j in range(4):
            A = ACC[0] + 16 * j
            for h in range(2):
                for q in range(4):
                    ops.append(lambda A=A, h=h, q=q: e.op(f"v_pk_mul_f32 {v(A+8*h+2*q,2)}, {v(A+8*h+2*q,2)}, {s(S_SCALE,2)}"))
                for q in range(4):
                    ops.append(lambda A=A, h=h, q=q, j=j: e.op(f"v_cvt_pk_bf16_f32 {v(V_PK+8*j+4*h+q)}, {v(A+8*h+2*q)}, {v(A+8*h+2*q+1)}"))
                ops.append(lambda h=h, j=j: e.op(f"buffer_store_dwordx4 {v(V_PK+8*j+4*h,4)}, {v(V_ST1+j)}, {s(S_WS,4)}, {s(S_T5 if h else S_ST1)} offen sc1", tag="st1"))
        return ops
    def p2_epilogue_ops(self):
        e = self.e
        ops = []
        for j in range(4):
            A = ACC[1] + 16 * j
            for h in range(2):
                for q in range(4):
                    ops.append(lambda A=A, h=h, q=q, j=j: e.op(f"v_cvt_pk_bf16_f32 {v(V_PK+8*j+4*h+q)}, {v(A+8*h+2*q)}, {v(A+8*h+2*q+1)}"))
                for q in range(4):
                    ops.append(lambda h=h, q=q, j=j: e.op(f"v_pk_max_i16 {v(V_PK+8*j+4*h+q)}, {v(V_PK+8*j+4*h+q)}, 0"))
                ops.append(lambda h=h, j=j: e.op(f"buffer_store_dwordx4 {v(V_PK+8*j+4*h,4)}, {v(V_L16)}, {s(S_WS,4)}, {s(S_ST2B if j >= 2 else S_ST2)} offen offset:{(j & 1) * 2048 + h * 1024} sc1", tag="st2"))
        return ops

    def stage1_stream(self, fill, m0, m1, swap):
        e = self.e
        for m in range(m0, m1):
            st, f = divmod(m, 16)
            ks, j = f >> 2, f & 3
            e.wait(lg=[("w", m), ("x", st, ks)])
            acc = v(ACC[st // 10] + 16 * j, 16)
            wf = v(V_FR + 4 * (m % 8), 4)
            xf = r(A_X + 16 * (st % 10) + 4 * ks, 4)
            c = "0" if (st % 10 == 0 and ks == 0) else acc
            if swap: e.op(f"v_mfma_f32_32x32x16_bf16 {acc}, {xf}, {wf}, {c}")
            else: e.op(f"v_mfma_f32_32x32x16_bf16 {acc}, {wf}, {xf}, {c}")
            for fn in fill[m]: fn()

    def flag_off(self, dst, base, tb, col):
        e = self.e
        e.op(f"s_lshl_b32 {s(dst)}, {s(tb)}, 4")
        e.op(f"s_add_u32 {s(dst)}, {s(dst)}, {s(col)}")
        e.op(f"s_lshl_b32 {s(dst)}, {s(dst)}, 7")
        e.op(f"s_add_u32 {s(dst)}, {s(dst)}, {base}")

    def stage1(self):
        e = self.e
        self.stage1_setup()
        fill = self.stage1_fill()
        epi = self.p1_epilogue_ops()
        for i, f in enumerate(epi): fill[161 + i // 3].append(f)
        for fn in fill[-1]: fn()
        self.stamp(1)
        e.op(f"s_cmp_ge_u32 {s(S_CG)}, 10")
        e.op("s_cbranch_scc1 L_p1v")
        snap = e.snapshot()
        self.stage1_stream(fill, 0, 160, False)
        e.op("s_branch L_p2")
        after = e.snapshot()
        e.restore(snap)
        e.label("L_p1v")
        self.stage1_stream(fill, 0, 160, True)
        e.op(f"s_cmp_eq_u32 {s(S_CG)}, 14")
        e.op("s_cbranch_scc1 L_gate")
        self.gate_snap = e.snapshot()
        assert after[0] == e.vm and after[1] == e.lg
        e.label("L_p2")
        self.stamp(2)
        self.stage1_stream(fill, 160, 320, False)
        self.stamp(3)
        self.get_nonce()
        e.op(f"s_lshl_b32 {s(S_T0)}, {s(S_RB)}, 2")
        e.op(f"s_add_u32 {s(S_T0)}, {s(S_T0)}, {s(S_WAVE)}")
        self.flag_off(S_T1, FL_A, S_T0, S_CG)
        self.publish(S_T1)
        for f in self.p2_epilogue_ops(): f()
        self.flag_off(S_T1, FL_C, S_T0, S_CG)
        e.wait(vm="all")
        self.publish(S_T1)

    def gate(self):
        e = self.e
        e.restore(self.gate_snap)
        e.label("L_gate")
        e.wait(vm="all", lg="all")
        for f in self.p1_epilogue_ops(): f()
        self.get_nonce()
        e.op(f"s_lshl_b32 {s(S_T0)}, {s(S_RB)}, 2")
        e.op(f"s_add_u32 {s(S_T0)}, {s(S_T0)}, {s(S_WAVE)}")
        self.flag_off(S_T1, FL_A, S_T0, S_CG)
        self.publish(S_T1)
        e.op(f"v_lshrrev_b32 {v(V_T1)}, 5, {v(V_LANE)}")
        e.op(f"v_lshlrev_b32 {v(V_T1)}, 4, {v(V_T1)}")
        G = 64
        for k in range(40):
            e.op(f"buffer_load_dwordx4 {v(G + 4 * k, 4)}, {v(V_T1)}, {s(S_MISC,4)}, 0 offen offset:{32 * k}", tag=("g", k))
        for k in range(40):
            e.wait(vm=("g", k))
            e.op(f"v_mfma_f32_32x32x16_bf16 {v(32,16)}, {v(G + 4 * k, 4)}, {r(A_X + 4 * k, 4)}, {'0' if k == 0 else v(32,16)}")
        e.op(f"v_mul_f32 {v(V_T1)}, {f32(-math.log2(math.e))}, v32")
        e.op(f"v_exp_f32 {v(V_T1)}, {v(V_T1)}")
        e.op(f"v_add_f32 {v(V_T1)}, 1.0, {v(V_T1)}")
        e.op(f"v_rcp_f32 {v(V_T1)}, {v(V_T1)}")
        e.op(f"v_and_b32 {v(V_T2)}, 31, {v(V_LANE)}")
        e.op(f"v_lshlrev_b32 {v(V_T2)}, 2, {v(V_T2)}")
        e.op(f"s_lshl_b32 {s(S_T1)}, {s(S_T0)}, 7")
        e.op(f"s_add_u32 {s(S_T1)}, {s(S_T1)}, {WS_G}")
        e.op("s_mov_b32 exec_hi, 0")
        e.op(f"buffer_store_dword {v(V_T1)}, {v(V_T2)}, {s(S_WS,4)}, {s(S_T1)} offen sc1")
        e.op("s_mov_b64 exec, -1")
        self.flag_off(S_T1, FL_C, S_T0, S_CG)
        e.wait(vm="all")
        self.publish(S_T1)
        e.wait(vm="all", lg="all")
        e.op("s_branch L_att")

    def retile(self):
        e = self.e
        e.vm, e.lg, e.hist = [], [], []
        e.label("L_retile")
        L = v(V_LANE); T0, T1, T2, T3 = v(V_T0), v(V_T1), v(V_T2), v(V_T3)
        e.op(f"s_getpc_b64 {s(S_MASK,2)}")
        e.label("L_pc")
        e.op(f"s_sub_u32 {s(S_MASK)}, {s(S_MASK)}, L_pc-{NAME}_kernel")
        e.op(f"s_subb_u32 {s(S_MASK+1)}, {s(S_MASK+1)}, 0")
        e.op(f"s_lshl_b32 {s(S_T0)}, {s(S_WAVE)}, 6")
        e.op(f"v_add_u32 {T0}, {s(S_T0)}, {L}")
        e.op(f"v_lshlrev_b32 {T0}, 7, {T0}")
        for n in range(2):
            e.op(f"v_min_u32 {T1}, L_end-{NAME}_kernel, {T0}")
            e.op(f"global_load_dword {v(240 + n)}, {T1}, {s(S_MASK,2)}")
            e.op(f"v_add_u32 {T0}, 32768, {T0}")
        for i in range(5):
            e.op(f"v_add_u32 {T0}, {64 * i}, {L}")
            e.op(f"v_mul_u32_u24 {T1}, 820, {T0}")
            e.op(f"v_lshrrev_b32 {T1}, 16, {T1}")
            e.op(f"v_mul_u32_u24 {T2}, 80, {T1}")
            e.op(f"v_sub_u32 {T0}, {T0}, {T2}")
            e.op(f"v_lshlrev_b32 {T1}, 2, {T1}")
            e.op(f"v_xor_b32 {T0}, {T0}, {T1}")
            e.op(f"v_add_u32 {T0}, {T0}, {T2}")
            e.op(f"v_lshlrev_b32 {v(i)}, 4, {T0}")
        VB, VC, VR4, VC2 = 8, 9, 10, 11
        e.op(f"v_bfe_u32 {T0}, {L}, 2, 2")
        e.op(f"v_lshlrev_b32 {v(VR4)}, 2, {T0}")
        e.op(f"v_mul_u32_u24 {T0}, 1280, {T0}")
        e.op(f"v_lshrrev_b32 {T1}, 4, {L}")
        e.op(f"v_mul_u32_u24 {T1}, 10240, {T1}")
        e.op(f"s_mul_i32 {s(S_XM0)}, {s(S_WAVE)}, 40960")
        e.op(f"v_add3_u32 {v(VB)}, {T0}, {T1}, {s(S_XM0)}")
        e.op(f"v_and_b32 {v(VC)}, 3, {L}")
        e.op(f"v_bfe_u32 {v(VC2)}, {L}, 1, 1")
        e.op(f"v_and_b32 {T0}, 1, {L}")
        e.op(f"v_lshl_add_u32 {v(12)}, {T0}, 3, {v(VB)}")
        e.op(f"v_add_u32 {v(13)}, 4096, {v(V_L16)}")
        S_KS = S_XOFF
        e.op(f"s_lshl_b32 {s(S_T0)}, {s(S_XCD)}, 1")
        e.op(f"s_add_u32 {s(S_T0)}, {s(S_T0)}, {s(S_I)}")
        e.op(f"s_sub_u32 {s(S_WOFF)}, {s(S_T0)}, 30")
        e.op(f"s_lshl_b32 {s(S_KS)}, {s(S_WOFF)}, 2")
        e.op(f"s_add_u32 {s(S_KS)}, {s(S_KS)}, {s(S_WAVE)}")
        e.label("L_rt_unit")
        SA, SB, SC, SR0 = S_T0, S_T1, S_T2, S_T3
        lo, lr, lg = self.L("rt_o"), self.L("rt_r"), self.L("rt_go")
        e.op(f"s_cmp_ge_u32 {s(S_KS)}, 54")
        e.op(f"s_cbranch_scc1 {lo}")
        self.srd(S_MISC, S_PTR + 10, 1728 * 1280)
        e.op(f"s_lshl_b32 {s(SR0)}, {s(S_KS)}, 5")
        e.op(f"s_mov_b32 {s(SA)}, {16 * 1280}")
        e.op(f"s_mov_b32 {s(SB)}, {4 * 1280}")
        e.op(f"s_mov_b32 {s(SC)}, {8 * 1280}")
        e.op(f"s_branch {lg}")
        e.label(lo)
        self.srd(S_MISC, S_PTR + 4, 640 * 1280)
        e.op(f"s_sub_u32 {s(S_T4)}, {s(S_KS)}, 54")
        e.op(f"s_mul_i32 {s(S_T5)}, {s(S_T4)}, 52")
        e.op(f"s_lshr_b32 {s(S_T5)}, {s(S_T5)}, 8")
        e.op(f"s_mul_i32 {s(SR0)}, {s(S_T5)}, 5")
        e.op(f"s_sub_u32 {s(S_T4)}, {s(S_T4)}, {s(SR0)}")
        e.op(f"s_mul_i32 {s(SR0)}, {s(S_T5)}, 160")
        e.op(f"s_cmp_eq_u32 {s(S_T4)}, 4")
        e.op(f"s_cbranch_scc1 {lr}")
        e.op(f"s_mul_i32 {s(S_T4)}, {s(S_T4)}, 40")
        e.op(f"s_add_u32 {s(SR0)}, {s(SR0)}, {s(S_T4)}")
        e.op(f"s_mov_b32 {s(SA)}, {20 * 1280}")
        e.op(f"s_mov_b32 {s(SB)}, {4 * 1280}")
        e.op(f"s_mov_b32 {s(SC)}, {8 * 1280}")
        e.op(f"s_branch {lg}")
        e.label(lr)
        e.op(f"s_add_u32 {s(SR0)}, {s(SR0)}, 16")
        e.op(f"s_mov_b32 {s(SA)}, {80 * 1280}")
        e.op(f"s_mov_b32 {s(SB)}, {40 * 1280}")
        e.op(f"s_mov_b32 {s(SC)}, {20 * 1280}")
        e.label(lg)
        e.op(f"s_mul_i32 {s(SR0)}, {s(SR0)}, 1280")
        for q in range(8):
            kg, u = q >> 1, q & 1
            e.op(f"s_mov_b32 {s(S_T4)}, {s(SR0)}")
            if kg >> 1: e.op(f"s_add_u32 {s(S_T4)}, {s(S_T4)}, {s(SA)}")
            if kg & 1: e.op(f"s_add_u32 {s(S_T4)}, {s(S_T4)}, {s(SB)}")
            if u: e.op(f"s_add_u32 {s(S_T4)}, {s(S_T4)}, {s(SC)}")
            for i in range(5):
                e.op(f"s_add_u32 m0, {s(S_XM0)}, {q * 5120 + i * 1024}")
                e.op(f"buffer_load_dwordx4 {v(i)}, {s(S_MISC,4)}, {s(S_T4)} offen lds")
        e.op(f"s_mul_i32 {s(S_T4)}, {s(S_KS)}, 5120")
        e.op(f"s_add_u32 {s(S_T4)}, {s(S_T4)}, {WS_WT}")
        e.wait(vm="all")
        D = 64
        for ng in range(8):
            for jj in range(3):
                if jj < 2:
                    e.op(f"v_add_u32 {T0}, {10 * ng + 4 * jj}, {v(VC)}")
                    base = VB
                else:
                    e.op(f"v_add_u32 {T0}, {10 * ng + 8}, {v(VC2)}")
                    base = 12
                e.op(f"v_xor_b32 {T0}, {T0}, {v(VR4)}")
                e.op(f"v_lshl_add_u32 {T0}, {T0}, 4, {v(base)}")
                for j1 in range(2 if jj < 2 else 1):
                    j = 2 * jj + j1
                    for u in range(2):
                        e.op(f"ds_read_b64_tr_b16 {v(D + 20 * ng + 4 * j + 2 * u, 2)}, {T0} offset:{u * 5120 + j1 * 8}", tag=("t", ng))
            e.wait(lg="all")
            for j in range(5):
                ad, off = (V_L16, j * 1024) if j < 4 else (13, 0)
                e.op(f"buffer_store_dwordx4 {v(D + 20 * ng + 4 * j, 4)}, {v(ad)}, {s(S_WS,4)}, {s(S_T4)} offen offset:{off} sc1")
            e.op(f"s_add_u32 {s(S_T4)}, {s(S_T4)}, {74 * 5120}")
        self.get_nonce()
        e.op(f"s_lshl_b32 {s(S_T1)}, {s(S_KS)}, 7")
        e.op(f"s_add_u32 {s(S_T1)}, {s(S_T1)}, {FL_D}")
        self.publish(S_T1)
        e.wait(vm="all", lg="all")
        e.op(f"s_cmp_ge_u32 {s(S_KS)}, 64")
        e.op("s_cbranch_scc1 L_att")
        e.op(f"s_cmp_lg_u32 {s(S_WAVE)}, 0")
        e.op("s_cbranch_scc1 L_att")
        e.op(f"s_cmp_ge_u32 {s(S_WOFF)}, 10")
        e.op("s_cbranch_scc1 L_att")
        e.op(f"s_add_u32 {s(S_KS)}, {s(S_WOFF)}, 64")
        e.op("s_branch L_rt_unit")

    def attention(self):
        e = self.e
        e.wait(vm="all", lg="all")
        e.label("L_att", reset=True)
        e.op("s_nop 7")
        e.op("s_barrier")
        L = v(V_LANE); T0, T1, T2, T3 = v(V_T0), v(V_T1), v(V_T2), v(V_T3)
        S_F0, S_TQ, S_TB0 = S_XOFF, S_WOFF, S_W2OFF
        e.op(f"s_mul_i32 {s(S_F0)}, {s(S_P)}, 10")
        e.op(f"s_lshr_b32 {s(S_F0)}, {s(S_F0)}, 2")
        e.op(f"s_lshl_b32 {s(S_TQ)}, {s(S_RBA)}, 2")
        e.op(f"s_mul_i32 {s(S_T0)}, {s(S_WAVE)}, 3")
        e.op(f"s_add_u32 {s(S_TB0)}, {s(S_TQ)}, {s(S_T0)}")
        e.op(f"s_sub_u32 {s(S_TB0)}, {s(S_TB0)}, 8")
        e.op(f"s_add_u32 {s(S_TQ)}, {s(S_TQ)}, {s(S_WAVE)}")
        e.op(f"v_and_b32 {T0}, 1, {L}")
        e.op(f"v_lshl_add_u32 {T1}, {T0}, 1, {s(S_F0)}")
        e.op(f"v_lshrrev_b32 {T1}, 3, {T1}")
        e.op(f"s_mul_i32 {s(S_T0)}, {s(S_P)}, 40")
        e.op(f"v_mul_u32_u24 {T0}, 39, {T0}")
        e.op(f"v_add_u32 {T0}, {s(S_T0)}, {T0}")
        e.op(f"v_lshrrev_b32 {T0}, 7, {T0}")
        e.op(f"v_add_u32 {T0}, 10, {T0}")
        e.op(f"v_bfe_u32 {T2}, {L}, 1, 3")
        e.op(f"v_add_u32 v0, 5, {T1}")
        e.op(f"v_cmp_lt_u32 vcc, 2, {T2}")
        e.op(f"v_cndmask_b32 v0, v0, {T0}, vcc")
        e.op(f"v_subrev_u32 v1, 3, {T2}")
        e.op(f"v_cndmask_b32 v1, {T2}, v1, vcc")
        e.op(f"v_add_u32 v1, {s(S_TB0)}, v1")
        e.op(f"v_max_i32 v1, 0, v1")
        e.op(f"v_cmp_lt_u32 vcc, 5, {T2}")
        e.op(f"v_cndmask_b32 v0, v0, {T1}, vcc")
        e.op(f"v_mov_b32 v2, {s(S_TQ)}")
        e.op(f"v_cndmask_b32 v1, v1, v2, vcc")
        e.op(f"v_lshl_add_u32 v1, v1, 4, v0")
        e.op(f"v_lshlrev_b32 v1, 7, v1")
        e.op(f"v_add_u32 v1, {FL_A}, v1")
        self.poll(1)
        self.stamp(4)
        VQ = 0
        e.op(f"s_lshl_b32 {s(S_T0)}, {s(S_F0)}, 16")
        e.op(f"s_lshl_b32 {s(S_T1)}, {s(S_TQ)}, 10")
        e.op(f"s_add_u32 {s(S_T1)}, {s(S_T1)}, {s(S_T0)}")
        for f in range(3):
            e.op(f"s_add_u32 {s(S_T2)}, {s(S_T1)}, {WS_QK + f * 65536}")
            e.op(f"buffer_load_dwordx4 {v(VQ + 4 * f, 4)}, {v(V_L16)}, {s(S_WS,4)}, {s(S_T2)} offen sc1", tag="q")
        e.op(f"s_mul_i32 {s(S_T3)}, {s(S_P)}, {64 * 2560}")
        e.op(f"s_mul_i32 {s(S_XM0)}, {s(S_WAVE)}, 3072")
        e.op(f"s_mul_i32 {s(S_WM0)}, {s(S_WAVE)}, 7680")
        for i in range(3):
            e.op(f"s_add_i32 {s(S_T1)}, {s(S_TB0)}, {i}")
            e.op(f"s_max_i32 {s(S_T1)}, {s(S_T1)}, 0")
            e.op(f"s_lshl_b32 {s(S_T2)}, {s(S_T1)}, 10")
            e.op(f"s_add_u32 {s(S_T2)}, {s(S_T2)}, {s(S_T0)}")
            for f in range(3):
                e.op(f"s_add_u32 m0, {s(S_XM0)}, {L_K + f * 12288 + i * 1024}")
                e.op(f"s_add_u32 {s(S_T4)}, {s(S_T2)}, {WS_QK + (40 + f) * 65536}")
                e.op(f"buffer_load_dwordx4 {v(V_L16)}, {s(S_WS,4)}, {s(S_T4)} offen sc1 lds", tag="kv")
            e.op(f"s_mul_i32 {s(S_T1)}, {s(S_T1)}, 2560")
            e.op(f"s_add_u32 {s(S_T1)}, {s(S_T1)}, {s(S_T3)}")
            e.op(f"s_add_u32 {s(S_T1)}, {s(S_T1)}, {WS_VT}")
            e.op(f"s_add_u32 m0, {s(S_WM0)}, {L_V + i * 2560}")
            for n in range(3):
                if n == 2: e.op("s_mov_b32 exec_hi, 0")
                e.op(f"buffer_load_dwordx4 {v(V_L16)}, {s(S_WS,4)}, {s(S_T1)} offen offset:{n * 1024} sc1 lds", tag="kv")
                if n == 2: e.op("s_mov_b64 exec, -1")
        CD, CE = 64, 80
        SS, OO = 96, (128, 144)
        KF, VF, PP = 160, 168, 176
        QM = 16
        VKA, VVA, VMX = 32, 33, 34
        e.op(f"v_and_b32 {T0}, 31, {L}")
        e.op(f"v_lshrrev_b32 {T1}, 5, {L}")
        e.op(f"v_lshlrev_b32 {T2}, 2, {T1}")
        e.op(f"v_sub_u32 {T2}, {T0}, {T2}")
        e.op(f"v_mov_b32 {T3}, {hex(NEGBIG)}")
        for rr in range(16):
            e.op(f"v_cmp_gt_i32 vcc, {8 * (rr >> 2) + (rr & 3)}, {T2}")
            e.op(f"v_cndmask_b32 {v(CD + rr)}, 0, {T3}, vcc")
            e.op(f"v_cndmask_b32 {v(CE + rr)}, {T3}, 0, vcc")
        e.op(f"s_lshl_b32 {s(S_T1)}, {s(S_WAVE)}, 10")
        e.op(f"s_add_u32 {s(S_T1)}, {s(S_T1)}, {L_K}")
        e.op(f"v_add_u32 {v(VKA)}, {s(S_T1)}, {v(V_L16)}")
        e.op(f"s_mul_i32 {s(S_T1)}, {s(S_WAVE)}, 2560")
        e.op(f"s_add_u32 {s(S_T1)}, {s(S_T1)}, {L_V}")
        e.op(f"v_mul_u32_u24 {T2}, 640, {T1}")
        e.op(f"v_lshl_add_u32 {T2}, {T0}, 4, {T2}")
        e.op(f"v_add_u32 {v(VVA)}, {s(S_T1)}, {T2}")
        e.op(f"s_mov_b32 {s(S_VM)}, 0xfffff")
        e.op(f"s_mov_b32 {s(S_VM+1)}, 0xfffff")
        for i in range(8): e.op(f"v_mov_b32 {v(VF + i)}, 0x3f803f80")
        e.op(f"s_and_b32 {s(S_T1)}, {s(S_P)}, 1")
        e.op(f"s_lshl_b32 {s(S_T1)}, {s(S_T1)}, 1")
        e.op(f"v_subrev_u32 {T2}, {s(S_T1)}, {T1}")
        e.wait(vm="q")
        for h in range(2):
            for ff in range(2):
                f = h + ff
                for slot in range(2):
                    e.op(f"v_add_u32 {T3}, {4 * f + 2 * slot - 5 * h}, {T2}")
                    e.op(f"v_cmp_gt_u32 vcc, 5, {T3}")
                    for d in range(2):
                        e.op(f"v_cndmask_b32 {v(QM + 8 * h + 4 * ff + 2 * slot + d)}, 0, {v(VQ + 4 * f + 2 * slot + d)}, vcc")
        e.wait(vm="all")
        e.op("s_barrier")
        def qk(h, j):
            for ff in range(2):
                e.op(f"ds_read_b128 {v(KF + 4 * ff, 4)}, {v(VKA)} offset:{(h + ff) * 12288 + j * 1024}")
            e.wait(lg="all")
            c = v(CE, 16) if j == 0 else v(CD, 16) if j == 8 else "0"
            e.op(f"v_mfma_f32_32x32x16_bf16 {v(SS,16)}, {v(KF,4)}, {v(QM + 8 * h, 4)}, {c}")
            e.op(f"v_mfma_f32_32x32x16_bf16 {v(SS,16)}, {v(KF+4,4)}, {v(QM + 8 * h + 4, 4)}, {v(SS,16)}")
        for h in range(2):
            O = OO[h]
            e.op(f"v_mov_b32 {v(VMX)}, {hex(NEGBIG)}")
            for i in range(16): e.op(f"v_mov_b32 {v(O + i)}, 0")
            for j in range(9):
                sk = self.L("sk")
                if j < 8:
                    e.op(f"s_cmp_lt_u32 {s(S_TQ)}, {8 - j}")
                    e.op(f"s_cbranch_scc1 {sk}")
                qk(h, j)
                for i in range(8):
                    e.op(f"v_max3_f32 {v(VMX)}, {v(VMX)}, {v(SS + 2 * i)}, {v(SS + 2 * i + 1)}")
                e.label(sk)
            e.op(f"v_mov_b32 {T0}, {v(VMX)}")
            e.op(f"v_permlane32_swap_b32 {T0}, {v(VMX)}")
            e.op(f"s_nop 1")
            e.op(f"v_max_f32 {v(VMX)}, {T0}, {v(VMX)}")
            for j in range(9):
                sk = self.L("sk")
                if j < 8:
                    e.op(f"s_cmp_lt_u32 {s(S_TQ)}, {8 - j}")
                    e.op(f"s_cbranch_scc1 {sk}")
                e.op(f"s_mov_b64 exec, {s(S_VM,2)}")
                for ss in range(2):
                    e.op(f"ds_read_b128 {v(VF + 4 * ss, 4)}, {v(VVA)} offset:{j * 2560 + ss * 1280 + h * 320}")
                e.op("s_mov_b64 exec, -1")
                qk(h, j)
                for i in range(16): e.op(f"v_sub_f32 {v(SS + i)}, {v(SS + i)}, {v(VMX)}")
                for i in range(16): e.op(f"v_exp_f32 {v(SS + i)}, {v(SS + i)}")
                for i in range(8): e.op(f"v_cvt_pk_bf16_f32 {v(PP + i)}, {v(SS + 2 * i)}, {v(SS + 2 * i + 1)}")
                for ss in range(2):
                    e.op(f"v_mfma_f32_32x32x16_bf16 {v(O,16)}, {v(VF + 4 * ss, 4)}, {v(PP + 4 * ss, 4)}, {v(O,16)}")
                e.op("s_nop 7")
                e.label(sk)
        OP = 184
        for h in range(2):
            O = OO[h]
            e.op(f"v_rcp_f32 {T0}, {v(O + 12)}")
            for i in range(12): e.op(f"v_mul_f32 {v(O + i)}, {v(O + i)}, {T0}")
            for i in range(4): e.op(f"v_cvt_pk_bf16_f32 {v(OP + 4 * h + i)}, {v(O + 2 * i)}, {v(O + 2 * i + 1)}")
            for i in range(2): e.op(f"v_cvt_pk_bf16_f32 {v(OP + 8 + 2 * h + i)}, {v(O + 8 + 2 * i)}, {v(O + 9 + 2 * i)}")
        e.op(f"s_lshr_b32 {s(S_T0)}, {s(S_P)}, 2")
        e.op(f"s_mul_i32 {s(S_T0)}, {s(S_T0)}, {20 * 512}")
        e.op(f"s_mul_i32 {s(S_T1)}, {s(S_TQ)}, 40960")
        e.op(f"s_add_u32 {s(S_T0)}, {s(S_T0)}, {s(S_T1)}")
        e.op(f"s_add_u32 {s(S_T0)}, {s(S_T0)}, {WS_O}")
        e.op(f"s_and_b32 {s(S_T1)}, {s(S_P)}, 3")
        e.op(f"s_lshl_b32 {s(S_T2)}, {s(S_T1)}, 11")
        e.op(f"s_add_u32 {s(S_T2)}, {s(S_T2)}, {s(S_T0)}")
        e.op(f"s_lshl_b32 {s(S_T1)}, {s(S_T1)}, 9")
        e.op(f"s_add_u32 {s(S_T1)}, {s(S_T1)}, {s(S_T0)}")
        e.op(f"s_add_u32 {s(S_T1)}, {s(S_T1)}, {16 * 512}")
        for h in range(2):
            e.op(f"buffer_store_dwordx4 {v(OP + 4 * h, 4)}, {v(V_L16)}, {s(S_WS,4)}, {s(S_T2)} offen offset:{h * 1024} sc1", tag="sto")
        e.op("s_mov_b32 exec_hi, 0")
        e.op(f"buffer_store_dwordx4 {v(OP + 8, 4)}, {v(V_L16)}, {s(S_WS,4)}, {s(S_T1)} offen sc1", tag="sto")
        e.op("s_mov_b64 exec, -1")
        self.flag_off(S_T1, FL_B, S_TQ, S_P)
        e.wait(vm="all")
        self.publish(S_T1)
        self.stamp(5)

    def stage3(self):
        e = self.e
        L = v(V_LANE); T0, T1, T2, T3 = v(V_T0), v(V_T1), v(V_T2), v(V_T3)
        BA = 0
        AA = 80
        HR = 120
        WR = 256
        VH, VO, VG, VG1 = 216, 220, 224, 228
        VL4K, VFC, VFB, VRW, VRR, VOUT = 232, 233, 234, 235, 238, 239
        NH, NWR = 6, 12
        S_HO, S_WO = S_XOFF, S_WOFF
        e.op(f"v_and_b32 {T0}, 15, {L}")
        e.op(f"v_lshrrev_b32 {T1}, 4, {L}")
        e.op(f"v_lshlrev_b32 {T2}, 9, {T1}")
        e.op(f"v_lshl_add_u32 {T2}, {T0}, 4, {T2}")
        for t in range(4):
            e.op(f"s_add_u32 {s(S_T0)}, {s(S_WAVE)}, {t + 1}")
            e.op(f"s_and_b32 {s(S_T0)}, {s(S_T0)}, 3")
            e.op(f"s_lshr_b32 {s(S_T1)}, {s(S_T0)}, 1")
            e.op(f"s_lshl_b32 {s(S_T2)}, {s(S_TB64)}, 1")
            e.op(f"s_add_u32 {s(S_T1)}, {s(S_T1)}, {s(S_T2)}")
            e.op(f"s_and_b32 {s(S_T2)}, {s(S_T0)}, 1")
            e.op(f"s_lshl_b32 {s(S_T2)}, {s(S_T2)}, 8")
            e.op(f"s_mul_i32 {s(S_T3)}, {s(S_T1)}, 110592")
            e.op(f"s_add_u32 {s(S_T3)}, {s(S_T3)}, {s(S_T2)}")
            e.op(f"v_add_u32 {v(VH + t)}, {s(S_T3)}, {T2}")
            e.op(f"s_mul_i32 {s(S_T3)}, {s(S_T1)}, 40960")
            e.op(f"s_add_u32 {s(S_T3)}, {s(S_T3)}, {s(S_T2)}")
            e.op(f"v_add_u32 {v(VO + t)}, {s(S_T3)}, {T2}")
            e.op(f"s_lshl_b32 {s(S_T3)}, {s(S_TB64)}, 2")
            e.op(f"s_add_u32 {s(S_T3)}, {s(S_T3)}, {s(S_T0)}")
            e.op(f"s_lshl_b32 {s(S_T3)}, {s(S_T3)}, 6")
            e.op(f"s_add_u32 {s(S_T3)}, {s(S_T3)}, {WS_G}")
            e.op(f"v_lshl_add_u32 {v(VG1 + t)}, {T0}, 2, {s(S_T3)}")
            if t < 3:
                e.op(f"s_mul_i32 {s(S_T3)}, {s(S_T0)}, 15360")
                e.op(f"s_add_u32 {s(S_T3)}, {s(S_T3)}, {L_RED + t * 5120}")
                e.op(f"v_add_u32 {v(VRW + t)}, {s(S_T3)}, {v(V_L16)}")
        e.op(f"s_mul_i32 {s(S_T3)}, {s(S_WAVE)}, 15360")
        e.op(f"s_add_u32 {s(S_T3)}, {s(S_T3)}, {L_RED}")
        e.op(f"v_add_u32 {v(VRR)}, {s(S_T3)}, {v(V_L16)}")
        e.op(f"v_add_u32 {v(VL4K)}, 4096, {v(V_L16)}")
        e.op(f"s_lshl_b32 {s(S_T0)}, {s(S_TB64)}, 2")
        e.op(f"s_add_u32 {s(S_T0)}, {s(S_T0)}, {s(S_WAVE)}")
        e.op(f"s_mul_i32 {s(S_T0)}, {s(S_T0)}, {16 * 1280}")
        e.op(f"s_mul_i32 {s(S_T1)}, {s(S_NG)}, 160")
        e.op(f"s_add_u32 {s(S_T0)}, {s(S_T0)}, {s(S_T1)}")
        e.op(f"v_mul_u32_u24 {T3}, 1280, {T0}")
        e.op(f"v_add_u32 {T3}, {s(S_T0)}, {T3}")
        e.op(f"v_lshl_add_u32 {v(VOUT)}, {T1}, 4, {T3}")
        e.op(f"v_lshl_add_u32 {v(VOUT + 1)}, {T1}, 3, {T3}")
        e.op(f"v_min_u32 {T0}, 14, {T0}")
        e.op(f"v_and_b32 {T1}, 1, {T1}")
        e.op(f"s_lshl_b32 {s(S_T0)}, {s(S_TB64)}, 1")
        e.op(f"v_add_u32 {T1}, {s(S_T0)}, {T1}")
        e.op(f"v_lshl_add_u32 {T0}, {T1}, 4, {T0}")
        e.op(f"v_lshlrev_b32 {T0}, 7, {T0}")
        e.op(f"v_add_u32 {T0}, {FL_C}, {T0}")
        e.op(f"v_and_b32 {T2}, 31, {L}")
        e.op(f"v_min_u32 {T2}, 18, {T2}")
        e.op(f"v_lshl_add_u32 {T3}, {T2}, 2, {s(S_WAVE)}")
        e.op(f"v_min_u32 {T3}, 53, {T3}")
        e.op(f"s_mul_i32 {s(S_T1)}, {s(S_WAVE)}, 5")
        e.op(f"s_add_u32 {s(S_T1)}, {s(S_T1)}, 40")
        e.op(f"v_cmp_lt_u32 vcc, 13, {T2}")
        e.op(f"v_add_u32 {T2}, {s(S_T1)}, {T2}")
        e.op(f"v_cndmask_b32 {T2}, {T3}, {T2}, vcc")
        e.op(f"v_lshlrev_b32 {T2}, 7, {T2}")
        e.op(f"v_add_u32 {T2}, {FL_D}, {T2}")
        e.op(f"v_cmp_lt_u32 vcc, 31, {L}")
        e.op(f"v_cndmask_b32 {v(VFC)}, {T0}, {T2}, vcc")
        e.op(f"v_and_b32 {T0}, 3, {L}")
        e.op(f"s_lshl_b32 {s(S_T1)}, {s(S_WAVE)}, 2")
        e.op(f"v_add_u32 {T0}, {s(S_T1)}, {T0}")
        e.op(f"v_lshl_add_u32 {T0}, {T1}, 4, {T0}")
        e.op(f"v_lshlrev_b32 {T0}, 7, {T0}")
        e.op(f"v_add_u32 {v(VFB)}, {FL_B}, {T0}")
        e.op(f"s_lshl_b32 {s(S_HO)}, {s(S_WAVE)}, 11")
        e.op(f"s_add_u32 {s(S_HO)}, {s(S_HO)}, {WS_H}")
        e.op(f"s_mul_i32 {s(S_WO)}, {s(S_NG)}, 74")
        e.op(f"s_add_u32 {s(S_T0)}, {s(S_WO)}, {s(S_WAVE)}")
        e.op(f"s_mul_i32 {s(S_T1)}, {s(S_WAVE)}, 5")
        e.op(f"s_add_u32 {s(S_T1)}, {s(S_T1)}, {s(S_WO)}")
        e.op(f"s_mul_i32 {s(S_WO)}, {s(S_T0)}, 5120")
        e.op(f"s_add_u32 {s(S_WO)}, {s(S_WO)}, {WS_WT}")
        S_WO2, S_OO = S_W2OFF, S_XM0
        e.op(f"s_mul_i32 {s(S_WO2)}, {s(S_T1)}, 5120")
        e.op(f"s_add_u32 {s(S_WO2)}, {s(S_WO2)}, {WS_WT + 54 * 5120}")
        e.op(f"s_mul_i32 {s(S_OO)}, {s(S_WAVE)}, {5 * 2048}")
        e.op(f"s_add_u32 {s(S_OO)}, {s(S_OO)}, {WS_O}")
        self.poll(VFC)
        self.stamp(6)
        for t in range(4):
            e.op(f"buffer_load_dword {v(VG + t)}, {v(VG1 + t)}, {s(S_WS,4)}, 0 offen sc1", tag="g")
        def w_loads(n):
            def mk(j):
                def f():
                    if j == 0:
                        if n < 14: e.op(f"s_add_u32 {s(S_T4)}, {s(S_WO)}, {n * 4 * 5120}")
                        else: e.op(f"s_add_u32 {s(S_T4)}, {s(S_WO2)}, {(n - 14) * 5120}")
                        if n == 13:
                            e.op(f"s_cmp_lt_u32 {s(S_WAVE)}, 2")
                            e.op(f"s_cselect_b32 {s(S_T4)}, {s(S_T4)}, {OOB}")
                    ad, off = (V_L16, j * 1024) if j < 4 else (VL4K, 0)
                    e.op(f"buffer_load_dwordx4 {r(WR + 20 * (n % NWR) + 4 * j, 4)}, {v(ad)}, {s(S_WS,4)}, {s(S_T4)} offen offset:{off} sc1", tag=("w", n, j))
                return f
            return [mk(j) for j in range(5)]
        def h_loads(n):
            def mk(t):
                def f():
                    if t == 0:
                        if n < 14: e.op(f"s_add_u32 {s(S_T5)}, {s(S_HO)}, {n * 8192}")
                        else: e.op(f"s_add_u32 {s(S_T5)}, {s(S_OO)}, {(n - 14) * 2048}")
                        if n == 13:
                            e.op(f"s_cmp_lt_u32 {s(S_WAVE)}, 2")
                            e.op(f"s_cselect_b32 {s(S_T5)}, {s(S_T5)}, {OOB}")
                    e.op(f"buffer_load_dwordx4 {v(HR + 16 * (n % NH) + 4 * t, 4)}, {v((VH if n < 14 else VO) + t)}, {s(S_WS,4)}, {s(S_T5)} offen sc1", tag=("h", n, t))
                return f
            return [mk(t) for t in range(4)]
        for n in range(NH):
            for f in w_loads(n) + h_loads(n): f()
        for n in range(14):
            nxt = []
            if n >= 1 and n - 1 + NH < 19:
                k = n - 1 + NH
                if k == 14: self.poll(VFB)
                nxt = w_loads(k) + h_loads(k)
            i = 0
            for t in range(4):
                for j in range(5):
                    e.wait(vm=[("w", n, j), ("h", n, t)])
                    acc = v(BA + 20 * t + 4 * j, 4)
                    e.op(f"v_mfma_f32_16x16x32_bf16 {acc}, {r(WR + 20 * (n % NWR) + 4 * j, 4)}, {v(HR + 16 * (n % NH) + 4 * t, 4)}, {'0' if n == 0 else acc}")
                    if i % 2 == 0 and nxt: nxt.pop(0)()
                    i += 1
        self.stamp(7)
        for t in range(4): e.op(f"v_sub_f32 {v(VG1 + t)}, 1.0, {v(VG + t)}")
        def combine(t):
            ops = []
            A = AA + 20 * (t & 1)
            for i in range(20):
                ops.append(lambda i=i: e.op(f"v_mul_f32 {v(BA + 20 * t + i)}, {v(BA + 20 * t + i)}, {v(VG1 + t)}"))
            pre = ops; ops = []
            for j in range(5):
                for i in range(4):
                    ops.append(lambda k=4 * j + i: e.op(f"v_fmac_f32 {v(BA + 20 * t + k)}, {v(A + k)}, {v(VG + t)}"))
                if t < 3:
                    ops.append(lambda j=j: e.op(f"ds_write_b128 {v(VRW + t)}, {v(BA + 20 * t + 4 * j, 4)} offset:{j * 1024}", tag="red"))
            return pre, ops
        post = []
        for t in range(4):
            pre, mine = combine(t)
            q = post + pre
            i = 0
            for n in range(14, 19):
                for j in range(5):
                    e.wait(vm=[("w", n, j), ("h", n, t)])
                    acc = v(AA + 20 * (t & 1) + 4 * j, 4)
                    e.op(f"v_mfma_f32_16x16x32_bf16 {acc}, {r(WR + 20 * (n % NWR) + 4 * j, 4)}, {v(HR + 16 * (n % NH) + 4 * t, 4)}, {'0' if n == 14 else acc}")
                    if i >= 2:
                        for _ in range(2):
                            if q: q.pop(0)()
                    i += 1
            while q: q.pop(0)()
            post = mine
        e.wait(lg="all")
        e.op("s_barrier")
        RD = HR
        for sl in range(3):
            for j in range(5):
                e.op(f"ds_read_b128 {v(RD + 20 * sl + 4 * j, 4)}, {v(VRR)} offset:{sl * 5120 + j * 1024}", tag=("rd", sl))
        for f in post: f()
        F = BA + 60
        for sl in range(3):
            e.wait(lg=("rd", sl))
            for i in range(10):
                e.op(f"v_pk_add_f32 {v(F + 2 * i, 2)}, {v(F + 2 * i, 2)}, {v(RD + 20 * sl + 2 * i, 2)}")
        for i in range(10):
            e.op(f"v_cvt_pk_bf16_f32 {v(AA + i)}, {v(F + 2 * i)}, {v(F + 2 * i + 1)}")
        e.op(f"buffer_store_dwordx4 {v(AA,4)}, {v(VOUT)}, {s(S_OUT,4)}, 0 offen")
        e.op(f"buffer_store_dwordx4 {v(AA+4,4)}, {v(VOUT)}, {s(S_OUT,4)}, 0 offen offset:64")
        e.op(f"buffer_store_dwordx2 {v(AA+8,2)}, {v(VOUT+1)}, {s(S_OUT,4)}, 0 offen offset:128")

    def finish(self):
        e = self.e
        if self.stamps:
            e.wait(vm="all")
            e.op(f"s_memrealtime {s(S_MASK,2)}")
            e.wait(lg="all")
            e.op(f"s_lshl_b32 {s(S_T0)}, s2, 2")
            e.op(f"s_add_u32 {s(S_T0)}, {s(S_T0)}, {s(S_WAVE)}")
            e.op(f"s_lshl_b32 {s(S_T0)}, {s(S_T0)}, 7")
            e.op(f"s_add_u32 {s(S_T0)}, {s(S_T0)}, {WS_ST}")
            e.op(f"v_mov_b32 {v(V_T0)}, 0")
            for i in range(9):
                src = S_STAMP + 2 * i if i < 8 else S_MASK
                e.op(f"v_mov_b32 {v(i)}, {s(src)}")
                e.op(f"buffer_store_dword {v(i)}, {v(V_T0)}, {s(S_WS,4)}, {s(S_T0)} offen offset:{4 * i}")
        e.op("s_endpgm")

    def build(self):
        e = self.e
        self.prologue()
        self.stage1()
        self.attention()
        self.stage3()
        self.finish()
        self.gate()
        self.retile()
        e.label("L_end")
        e.op("s_endpgm")
        head = open("cdna_kernels/" + NAME + ".s.ref").read().split("\n")
        head = [l for l in head if l.startswith(";") and "@launch" not in l]
        txt = "\n".join(head) + f"\n; @launch grid=(256,1,1) block=(256,1,1) lds={LDS_BYTES}\n"
        txt += f""".amdgcn_target "amdgcn-amd-amdhsa--gfx950"
.text
.globl {NAME}_kernel
.p2align 8
.type {NAME}_kernel,@function
{NAME}_kernel:
"""
        txt += e.text()
        txt += f""".section .rodata,"a"
.p2align 6
.amdhsa_kernel {NAME}_kernel
  .amdhsa_next_free_vgpr 512
  .amdhsa_next_free_sgpr 102
  .amdhsa_accum_offset 256
  .amdhsa_group_segment_fixed_size 0
  .amdhsa_kernarg_size 80
  .amdhsa_user_sgpr_count 2
  .amdhsa_user_sgpr_kernarg_segment_ptr 1
  .amdhsa_system_sgpr_workgroup_id_x 1
.end_amdhsa_kernel
"""
        return txt

if __name__ == "__main__":
    out = sys.argv[1] if len(sys.argv) > 1 else "cdna_kernels/" + NAME + ".s"
    g = Gen(stamps="--stamps" in sys.argv)
    txt = g.build()
    open(out, "w").write(txt)
    print("instructions", g.e.count, "pad states", g.e.nops, file=sys.stderr)
    if "--nops" in sys.argv:
        for n, t in g.e.log_nops: print(n, t, file=sys.stderr)
```

```python
import sys, math, struct
from asmlib import *

NAME = "gated_mix__sliding_block__dense_activation_relu__prompt"

WS_QK = 0
WS_VT = WS_QK + 80 * 64 * 1024
WS_H  = WS_VT + 16 * 64 * 2560
WS_O  = WS_H + 64 * 110592
WS_WT = WS_O + 64 * 40960
WS_G  = WS_WT + 8 * 74 * 5120
WS_FL = WS_G + 8192
WS_ST = WS_FL + 4 * 1024 * 128
WS_SIZE = WS_ST + 1024 * 128
OOB = 0x4000000
assert WS_SIZE < OOB
FL_A, FL_C, FL_B, FL_D = [WS_FL + p * 131072 for p in range(4)]

NW, NX = 5, 5
L_W = 0
L_X = NW * 16384
L_K = L_X
L_V = L_K + 36 * 1024
L_RED = 0
LDS_BYTES = 163840

S_X, S_WA, S_WB, S_WS, S_OUT, S_DBG, S_MISC = 4, 8, 12, 16, 20, 24, 28
S_WAVE, S_XCD, S_I, S_RB, S_CG, S_P, S_RBA, S_TB64, S_NG = 32, 33, 34, 35, 36, 37, 38, 39, 40
S_NONCE = 42
S_T0, S_T1, S_T2, S_T3, S_T4, S_T5 = 44, 45, 46, 47, 48, 49
S_XOFF, S_WOFF, S_XM0, S_WM0, S_W2OFF = 50, 51, 52, 53, 54
S_SCALE = 56
S_ST1, S_ST2, S_ST2B = 58, 59, 60
S_SPIN = 61
S_MASK = 62
S_PTR = 64
S_STAMP = 84
S_VM = 100

V_LANE = 255
V_T0, V_T1, V_T2, V_T3 = 248, 249, 250, 251
V_NONCE = 252
V_L16 = 254
V_XD = 0
V_WD = 4
V_WD2 = 8
V_XR = 12
V_WR = 16
V_ST1 = 24
V_PK = 32
ACC = (64, 128)
V_FR = 192
A_X = 256

def f32(x): return "0x%08x" % struct.unpack("<I", struct.pack("<f", x))[0]
QSCALE = math.log2(math.e) / math.sqrt(20.0)
NEGBIG = 0xff800000

class Gen:
    def __init__(self, stamps=False, opt=None):
        self.e = Emit()
        self.stamps = stamps
        self.nstamp = 0
        self.uid = 0
        self.opt = opt or {}
    def L(self, p):
        self.uid += 1
        return f"L_{p}_{self.uid}"
    def stamp(self, idx):
        if self.stamps:
            self.e.op(f"{'s_memtime' if self.opt.get('cyc') else 's_memrealtime'} {s(S_STAMP + 2 * idx, 2)}")

    def srd(self, d, ptr, nbytes):
        e = self.e
        e.op(f"s_mov_b32 {s(d)}, {s(ptr)}")
        e.op(f"s_and_b32 {s(d+1)}, {s(ptr+1)}, 0xffff")
        e.op(f"s_mov_b32 {s(d+2)}, {nbytes}")
        e.op(f"s_mov_b32 {s(d+3)}, 0x20000")

    def get_nonce(self):
        e = self.e
        lp, dn = self.L("nonce"), self.L("nonce_done")
        e.wait(vm="all")
        e.op(f"v_mov_b32 {v(V_T0)}, 0")
        e.op(f"s_mov_b32 {s(S_SPIN)}, 0")
        e.label(lp)
        e.op(f"buffer_load_dwordx2 {v(V_NONCE,2)}, {v(V_T0)}, {s(S_DBG,4)}, 0 offen sc1")
        e.op(f"s_add_u32 {s(S_SPIN)}, {s(S_SPIN)}, 1")
        e.wait(vm="all")
        e.op(f"v_readfirstlane_b32 {s(S_NONCE)}, {v(V_NONCE)}")
        e.op(f"v_readfirstlane_b32 {s(S_NONCE+1)}, {v(V_NONCE+1)}")
        e.op(f"s_cmp_gt_u32 {s(S_SPIN)}, 0x40000")
        e.op(f"s_cbranch_scc1 {dn}")
        e.op(f"s_cmp_eq_u32 {s(S_NONCE)}, 0")
        e.op(f"s_cbranch_scc1 {lp}")
        e.label(dn)

    def publish(self, soff):
        e = self.e
        e.op(f"v_mov_b32 {v(V_T0)}, 0")
        e.op("s_mov_b64 exec, 1")
        e.op(f"buffer_store_dwordx2 {v(V_NONCE,2)}, {v(V_T0)}, {s(S_WS,4)}, {s(soff)} offen sc1", tag="flag")
        e.op("s_mov_b64 exec, -1")

    def poll(self, vaddr):
        e = self.e
        lp, dn = self.L("poll"), self.L("poll_done")
        e.wait(vm="all")
        e.op(f"s_mov_b32 {s(S_SPIN)}, 0")
        e.label(lp)
        e.op(f"buffer_load_dwordx2 {v(V_T2,2)}, {v(vaddr)}, {s(S_WS,4)}, 0 offen sc1")
        e.op(f"s_add_u32 {s(S_SPIN)}, {s(S_SPIN)}, 1")
        e.wait(vm="all")
        e.op(f"v_cmp_ne_u64 vcc, {s(S_NONCE,2)}, {v(V_T2,2)}")
        e.op(f"s_cmp_gt_u32 {s(S_SPIN)}, 0x40000")
        e.op(f"s_cbranch_scc1 {dn}")
        e.op(f"s_cbranch_vccnz {lp}")
        e.label(dn)

    def prologue(self):
        e = self.e
        e.op("s_cmp_ge_u32 s2, 256")
        e.op("s_cbranch_scc1 L_end")
        e.op(f"s_load_dwordx16 {s(S_PTR,16)}, s[0:1], 0")
        e.op(f"s_load_dwordx4 {s(S_PTR+16,4)}, s[0:1], 64")
        self.stamp(0)
        if self.stamps: e.op(f"s_memtime {s(S_VM,2)}")
        e.op(f"v_lshrrev_b32 {v(V_T0)}, 6, v0")
        e.op(f"v_and_b32 {v(V_LANE)}, 63, v0")
        e.op(f"v_readfirstlane_b32 {s(S_WAVE)}, {v(V_T0)}")
        e.op(f"v_lshlrev_b32 {v(V_L16)}, 4, {v(V_LANE)}")
        e.op(f"s_and_b32 {s(S_XCD)}, s2, 7")
        e.op(f"s_lshr_b32 {s(S_I)}, s2, 3")
        e.op(f"s_lshr_b32 {s(S_T0)}, {s(S_XCD)}, 1")
        e.op(f"s_mul_i32 {s(S_T1)}, {s(S_T0)}, 30")
        e.op(f"s_add_u32 {s(S_T1)}, {s(S_T1)}, {s(S_I)}")
        e.op(f"s_and_b32 {s(S_T2)}, {s(S_XCD)}, 1")
        e.op(f"s_lshl_b32 {s(S_T3)}, {s(S_T2)}, 3")
        e.op(f"s_and_b32 {s(S_RB)}, {s(S_T1)}, 7")
        e.op(f"s_add_u32 {s(S_RB)}, {s(S_RB)}, {s(S_T3)}")
        e.op(f"s_lshr_b32 {s(S_CG)}, {s(S_T1)}, 3")
        e.op(f"s_lshr_b32 {s(S_P)}, {s(S_I)}, 4")
        e.op(f"s_lshl_b32 {s(S_T3)}, {s(S_XCD)}, 1")
        e.op(f"s_add_u32 {s(S_P)}, {s(S_P)}, {s(S_T3)}")
        e.op(f"s_and_b32 {s(S_RBA)}, {s(S_I)}, 15")
        e.op(f"s_lshl_b32 {s(S_TB64)}, {s(S_T0)}, 3")
        e.op(f"s_and_b32 {s(S_T3)}, {s(S_I)}, 7")
        e.op(f"s_add_u32 {s(S_TB64)}, {s(S_TB64)}, {s(S_T3)}")
        e.op(f"s_lshl_b32 {s(S_NG)}, {s(S_T2)}, 2")
        e.op(f"s_lshr_b32 {s(S_T3)}, {s(S_I)}, 3")
        e.op(f"s_add_u32 {s(S_NG)}, {s(S_NG)}, {s(S_T3)}")
        L = v(V_LANE); T0, T1, T2, T3 = v(V_T0), v(V_T1), v(V_T2), v(V_T3)
        e.op(f"v_lshrrev_b32 {T0}, 3, {L}")
        e.op(f"v_mul_u32_u24 {T0}, 1280, {T0}")
        e.op(f"v_lshrrev_b32 {T1}, 4, {L}")
        e.op(f"v_and_b32 {T2}, 7, {L}")
        e.op(f"v_xor_b32 {T2}, {T2}, {T1}")
        for n in range(4):
            if n & 1: e.op(f"v_xor_b32 {T3}, 4, {T2}")
            else: e.op(f"v_mov_b32 {T3}, {T2}")
            e.op(f"v_lshl_add_u32 {T3}, {T3}, 4, {T0}")
            e.op(f"v_add_u32 {v(V_XD+n)}, {n * (8 * 1280 - 1024)}, {T3}")
        e.op(f"v_lshlrev_b32 {T2}, 2, {T1}")
        e.op(f"v_and_b32 {T3}, 15, {L}")
        e.op(f"v_xor_b32 {T2}, {T2}, {T3}")
        e.op(f"v_lshlrev_b32 {T2}, 4, {T2}")
        for base, rs in ((V_WD, 3840), (V_WD2, 3456)):
            e.op(f"v_mul_u32_u24 {T0}, {rs}, {T1}")
            e.op(f"v_add_u32 {T0}, {T0}, {T2}")
            for n in range(4):
                e.op(f"v_add_u32 {v(base+n)}, {n * (4 * rs - 1024)}, {T0}")
        e.op(f"s_lshl_b32 {s(S_T0)}, {s(S_RB)}, 2")
        e.op(f"s_add_u32 {s(S_T0)}, {s(S_T0)}, {s(S_WAVE)}")
        e.op(f"s_mul_i32 {s(S_XOFF)}, {s(S_T0)}, {32 * 1280}")
        e.op(f"s_lshl_b32 {s(S_T1)}, {s(S_CG)}, 8")
        e.op(f"s_mul_i32 {s(S_WOFF)}, {s(S_WAVE)}, {16 * 3840}")
        e.op(f"s_add_u32 {s(S_WOFF)}, {s(S_WOFF)}, {s(S_T1)}")
        e.op(f"s_mul_i32 {s(S_W2OFF)}, {s(S_WAVE)}, {16 * 3456}")
        e.op(f"s_add_u32 {s(S_W2OFF)}, {s(S_W2OFF)}, {s(S_T1)}")
        e.op(f"s_mul_i32 {s(S_XM0)}, {s(S_WAVE)}, {NX * 4096}")
        e.op(f"s_add_u32 {s(S_XM0)}, {s(S_XM0)}, {L_X}")
        e.op(f"s_lshl_b32 {s(S_WM0)}, {s(S_WAVE)}, 12")
        e.wait(lg="all")
        if self.stamps: e.op(f"s_mov_b32 s41, {s(S_VM)}")
        self.srd(S_X, S_PTR + 0, 2048 * 1280)
        self.srd(S_WA, S_PTR + 2, 640 * 3840)
        self.srd(S_WB, S_PTR + 8, 640 * 3456)
        self.srd(S_WS, S_PTR + 18, WS_SIZE)
        self.srd(S_OUT, S_PTR + 14, 2048 * 1280)
        self.srd(S_DBG, S_PTR + 16, 256)
        self.srd(S_MISC, S_PTR + 12, 1280)
        if self.opt.get("touch"):
            e.op(f"s_lshl_b32 {s(S_T0)}, s2, 2")
            e.op(f"s_add_u32 {s(S_T0)}, {s(S_T0)}, {s(S_WAVE)}")
            for k, (srd, n) in enumerate(((S_X, 20), (S_WA, 19), (S_WB, 17))[:self.opt["touch"]]):
                e.op(f"s_mul_i32 {s(S_T1)}, {s(S_T0)}, {n * 128}")
                e.op(f"v_min_u32 {T0}, {n - 1}, {L}")
                e.op(f"v_lshlrev_b32 {T0}, 7, {T0}")
                e.op(f"buffer_load_dword {v(244 + k)}, {T0}, {s(srd,4)}, {s(S_T1)} offen")
        e.op(f"s_cmp_ge_u32 {s(S_I)}, 30")
        e.op("s_cbranch_scc1 L_retile")

    def dma_x(self, st):
        e = self.e
        def mk(n):
            def f():
                if n == 0:
                    e.op(f"s_add_u32 m0, {s(S_XM0)}, {(st % NX) * 4096}")
                    e.op(f"s_add_u32 {s(S_T4)}, {s(S_XOFF)}, {st * 128}")
                e.op(f"buffer_load_dwordx4 {v(V_XD+n)}, {s(S_X,4)}, {s(S_T4)} offen offset:{n*1024} lds", tag=("d", st))
            return f
        return [mk(n) for n in range(4)]
    def dma_w(self, st):
        e = self.e
        srd, vd, so, rs, k = (S_WA, V_WD, S_WOFF, 3840, st) if st < 10 else (S_WB, V_WD2, S_W2OFF, 3456, st - 10)
        def mk(n):
            def f():
                if n == 0:
                    e.op(f"s_add_u32 m0, {s(S_WM0)}, {L_W + (st % NW) * 16384}")
                    e.op(f"s_add_u32 {s(S_T4)}, {s(so)}, {k * 64 * rs}")
                e.op(f"buffer_load_dwordx4 {v(vd+n)}, {s(srd,4)}, {s(S_T4)} offen offset:{n*1024} lds", tag=("d", st))
            return f
        return [mk(n) for n in range(4)]

    def stage1_setup(self):
        e = self.e
        for st in range(NW):
            for f in self.dma_x(st) + self.dma_w(st): f()
        L = v(V_LANE); T0, T1, T2, T3 = v(V_T0), v(V_T1), v(V_T2), v(V_T3)
        sk = self.L("nononce")
        e.op(f"s_or_b32 {s(S_T0)}, s2, {s(S_WAVE)}")
        e.op(f"s_cmp_lg_u32 {s(S_T0)}, 0")
        e.op(f"s_cbranch_scc1 {sk}")
        snap = e.snapshot()
        e.op(f"s_memrealtime {s(S_NONCE,2)}")
        e.op(f"v_mov_b32 {T0}, 0")
        e.op("s_waitcnt lgkmcnt(0)")
        e.op(f"s_or_b32 {s(S_NONCE)}, {s(S_NONCE)}, 1")
        e.op(f"v_mov_b32 {v(V_NONCE)}, {s(S_NONCE)}")
        e.op(f"v_mov_b32 {v(V_NONCE+1)}, {s(S_NONCE+1)}")
        e.op("s_mov_b64 exec, 1")
        e.op(f"buffer_store_dwordx2 {v(V_NONCE,2)}, {T0}, {s(S_DBG,4)}, 0 offen sc1")
        e.op("s_mov_b64 exec, -1")
        e.restore(snap)
        e.label(sk)
        e.op(f"v_and_b32 {T0}, 31, {L}")
        e.op(f"v_bfe_u32 {T1}, {L}, 1, 3")
        e.op(f"v_lshrrev_b32 {T2}, 5, {L}")
        e.op(f"v_xor_b32 {T1}, {T1}, {T2}")
        e.op(f"v_lshlrev_b32 {T1}, 4, {T1}")
        e.op(f"v_lshl_add_u32 {T1}, {T0}, 7, {T1}")
        for ks in range(4):
            e.op(f"v_xor_b32 {T3}, {ks * 32}, {T1}")
            e.op(f"v_add_u32 {v(V_XR+ks)}, {s(S_XM0)}, {T3}")
        e.op(f"v_bfe_u32 {T0}, {L}, 2, 2")
        e.op(f"v_lshl_add_u32 {T1}, {T2}, 3, {T0}")
        e.op(f"v_lshlrev_b32 {T1}, 8, {T1}")
        e.op(f"v_lshl_add_u32 {T1}, {T0}, 6, {T1}")
        e.op(f"v_bfe_u32 {T3}, {L}, 4, 1")
        e.op(f"v_lshl_add_u32 {T1}, {T3}, 5, {T1}")
        e.op(f"v_and_b32 {T3}, 3, {L}")
        e.op(f"v_lshl_add_u32 {T1}, {T3}, 3, {T1}")
        for j in range(4):
            e.op(f"v_xor_b32 {v(V_WR+j)}, {j * 64}, {T1}")
            e.op(f"v_add_u32 {v(V_WR+4+j)}, 0x10000, {v(V_WR+j)}")
        e.op(f"s_lshl_b32 {s(S_T0)}, {s(S_RB)}, 2")
        e.op(f"s_add_u32 {s(S_T0)}, {s(S_T0)}, {s(S_WAVE)}")
        lv, ld = self.L("st1v"), self.L("st1d")
        e.op(f"s_cmp_ge_u32 {s(S_CG)}, 10")
        e.op(f"s_cbranch_scc1 {lv}")
        for j in range(4):
            e.op(f"v_add_u32 {v(V_ST1+j)}, {j * 131072}, {v(V_L16)}")
        e.op(f"s_lshl_b32 {s(S_ST1)}, {s(S_CG)}, 19")
        e.op(f"s_lshl_b32 {s(S_T1)}, {s(S_T0)}, 10")
        e.op(f"s_add_u32 {s(S_ST1)}, {s(S_ST1)}, {s(S_T1)}")
        e.op(f"s_add_u32 {s(S_T5)}, {s(S_ST1)}, {WS_QK + 65536}")
        e.op(f"s_add_u32 {s(S_ST1)}, {s(S_ST1)}, {WS_QK}")
        e.op(f"s_branch {ld}")
        e.label(lv)
        e.op(f"s_sub_u32 {s(S_T1)}, {s(S_CG)}, 10")
        e.op(f"s_lshl_b32 {s(S_T1)}, {s(S_T1)}, 7")
        e.op(f"v_and_b32 {T0}, 31, {L}")
        e.op(f"v_add_u32 {T0}, {s(S_T1)}, {T0}")
        e.op(f"v_mul_u32_u24 {T2}, 640, {T2}")
        e.op(f"s_mov_b32 {s(S_T2)}, {64 * 2560 - 640}")
        for j in range(4):
            e.op(f"v_add_u32 {T1}, {32 * j}, {T0}")
            e.op(f"v_mul_u32_u24 {T3}, 1639, {T1}")
            e.op(f"v_lshrrev_b32 {T3}, 16, {T3}")
            e.op(f"v_lshl_add_u32 {T1}, {T1}, 4, {T2}")
            e.op(f"v_mad_u32_u24 {v(V_ST1+j)}, {T3}, {s(S_T2)}, {T1}")
        e.op(f"s_mul_i32 {s(S_ST1)}, {s(S_T0)}, 2560")
        e.op(f"s_add_u32 {s(S_T5)}, {s(S_ST1)}, {WS_VT + 1280}")
        e.op(f"s_add_u32 {s(S_ST1)}, {s(S_ST1)}, {WS_VT}")
        e.label(ld)
        e.op(f"s_cmp_lt_u32 {s(S_CG)}, 5")
        e.op(f"s_cselect_b32 {s(S_SCALE)}, {f32(QSCALE)}, 1.0")
        e.op(f"s_mov_b32 {s(S_SCALE+1)}, {s(S_SCALE)}")
        e.op(f"s_mul_i32 {s(S_ST2)}, {s(S_T0)}, 110592")
        e.op(f"s_lshl_b32 {s(S_T1)}, {s(S_CG)}, 13")
        e.op(f"s_add_u32 {s(S_ST2)}, {s(S_ST2)}, {s(S_T1)}")
        e.op(f"s_add_u32 {s(S_ST2)}, {s(S_ST2)}, {WS_H}")
        e.op(f"s_add_u32 {s(S_ST2B)}, {s(S_ST2)}, 4096")
        e.op(f"s_cmp_lt_u32 {s(S_CG)}, 13")
        e.op(f"s_cselect_b32 {s(S_ST2B)}, {s(S_ST2B)}, {OOB}")

    def w_read(self, st, f, u):
        ks, j = f >> 2, f & 3
        slot = st % NW
        off = L_W + slot * 16384 + ks * 4096 + u * 1024
        ad = V_WR + j
        if off >= 65536: off -= 65536; ad += 4
        m = 16 * st + f
        self.e.op(f"ds_read_b64_tr_b16 {v(V_FR + 4 * (m % 8) + 2 * u, 2)}, {v(ad)} offset:{off}", tag=("w", m))
    def x_read(self, st, ks):
        self.e.op(f"ds_read_b128 {r(A_X + 16 * st + 4 * ks, 4)}, {v(V_XR + ks)} offset:{(st % NX) * 4096}", tag=("x", st, ks))

    def stage1_fill(self):
        e = self.e
        fill = {m: [] for m in range(-1, 320)}
        def at(m, f): fill[max(m, -1)].append(f)
        for st in range(20):
            b = 16 * st - 4
            def bar(st=st):
                e.wait(vm=("d", st), lg="all")
                if not (self.opt.get("nobar") and st > 0): e.op("s_barrier")
            at(b, bar)
            if st < 10:
                for ks in range(4): at(b + 3 * ks, lambda st=st, ks=ks: self.x_read(st, ks))
            for rho in range(32):
                if self.opt.get("noread") and (rho % self.opt["noread"]): continue
                at(b + rho * 13 // 32, lambda st=st, rho=rho: self.w_read(st, rho >> 1, rho & 1))
            if st >= 1 and st + 4 < 20 and not self.opt.get("nodma"):
                d = (self.dma_x(st + 4) if st + 4 < 10 else []) + self.dma_w(st + 4)
                for i, f in enumerate(d): at(b + 1 + i * (2 if len(d) == 8 else 3) - (1 if i == 7 else 0), f)
        return fill

    def p1_epilogue_ops(self):
        e = self.e
        ops = []
        for j in range(4):
            A = ACC[0] + 16 * j
            for h in range(2):
                for q in range(4):
                    ops.append(lambda A=A, h=h, q=q: e.op(f"v_pk_mul_f32 {v(A+8*h+2*q,2)}, {v(A+8*h+2*q,2)}, {s(S_SCALE,2)}"))
                for q in range(4):
                    ops.append(lambda A=A, h=h, q=q, j=j: e.op(f"v_cvt_pk_bf16_f32 {v(V_PK+8*j+4*h+q)}, {v(A+8*h+2*q)}, {v(A+8*h+2*q+1)}"))
                ops.append(lambda h=h, j=j: e.op(f"buffer_store_dwordx4 {v(V_PK+8*j+4*h,4)}, {v(V_ST1+j)}, {s(S_WS,4)}, {s(S_T5 if h else S_ST1)} offen sc1", tag="st1"))
        return ops
    def p2_epilogue_ops(self):
        e = self.e
        ops = []
        for j in range(4):
            A = ACC[1] + 16 * j
            for h in range(2):
                for q in range(4):
                    ops.append(lambda A=A, h=h, q=q, j=j: e.op(f"v_cvt_pk_bf16_f32 {v(V_PK+8*j+4*h+q)}, {v(A+8*h+2*q)}, {v(A+8*h+2*q+1)}"))
                for q in range(4):
                    ops.append(lambda h=h, q=q, j=j: e.op(f"v_pk_max_i16 {v(V_PK+8*j+4*h+q)}, {v(V_PK+8*j+4*h+q)}, 0"))
                ops.append(lambda h=h, j=j: e.op(f"buffer_store_dwordx4 {v(V_PK+8*j+4*h,4)}, {v(V_L16)}, {s(S_WS,4)}, {s(S_ST2B if j >= 2 else S_ST2)} offen offset:{(j & 1) * 2048 + h * 1024} sc1", tag="st2"))
        return ops

    def stage1_stream(self, fill, m0, m1, swap):
        e = self.e
        for m in range(m0, m1):
            st, f = divmod(m, 16)
            ks, j = f >> 2, f & 3
            e.wait(lg=[("w", m), ("x", st, ks)])
            acc = v(ACC[st // 10] + 16 * j, 16)
            wf = v(V_FR + 4 * (m % 8), 4)
            xf = r(A_X + 16 * (st % 10) + 4 * ks, 4)
            c = "0" if (st % 10 == 0 and ks == 0) else acc
            if swap: e.op(f"v_mfma_f32_32x32x16_bf16 {acc}, {xf}, {wf}, {c}")
            else: e.op(f"v_mfma_f32_32x32x16_bf16 {acc}, {wf}, {xf}, {c}")
            for fn in fill[m]: fn()

    def flag_off(self, dst, base, tb, col):
        e = self.e
        e.op(f"s_lshl_b32 {s(dst)}, {s(tb)}, 4")
        e.op(f"s_add_u32 {s(dst)}, {s(dst)}, {s(col)}")
        e.op(f"s_lshl_b32 {s(dst)}, {s(dst)}, 7")
        e.op(f"s_add_u32 {s(dst)}, {s(dst)}, {base}")

    def stage1(self):
        e = self.e
        self.stage1_setup()
        fill = self.stage1_fill()
        epi = self.p1_epilogue_ops()
        for i, f in enumerate(epi): fill[319 if self.opt.get("lateepi") else 161 + i // 3].append(f)
        for fn in fill[-1]: fn()
        self.stamp(1)
        e.op(f"s_cmp_ge_u32 {s(S_CG)}, 10")
        e.op("s_cbranch_scc1 L_p1v")
        snap = e.snapshot()
        self.stage1_stream(fill, 0, 160, False)
        e.op("s_branch L_p2")
        after = e.snapshot()
        e.restore(snap)
        e.label("L_p1v")
        self.stage1_stream(fill, 0, 160, True)
        e.op(f"s_cmp_eq_u32 {s(S_CG)}, 14")
        e.op("s_cbranch_scc1 L_gate")
        self.gate_snap = e.snapshot()
        assert after[0] == e.vm and after[1] == e.lg
        e.label("L_p2")
        self.stamp(2)
        self.stage1_stream(fill, 160, 320, False)
        self.stamp(3)
        self.get_nonce()
        e.op(f"s_lshl_b32 {s(S_T0)}, {s(S_RB)}, 2")
        e.op(f"s_add_u32 {s(S_T0)}, {s(S_T0)}, {s(S_WAVE)}")
        self.flag_off(S_T1, FL_A, S_T0, S_CG)
        self.publish(S_T1)
        for f in self.p2_epilogue_ops(): f()
        self.flag_off(S_T1, FL_C, S_T0, S_CG)
        e.wait(vm="all")
        self.publish(S_T1)

    def gate(self):
        e = self.e
        e.restore(self.gate_snap)
        e.label("L_gate")
        e.wait(vm="all", lg="all")
        for f in self.p1_epilogue_ops(): f()
        self.get_nonce()
        e.op(f"s_lshl_b32 {s(S_T0)}, {s(S_RB)}, 2")
        e.op(f"s_add_u32 {s(S_T0)}, {s(S_T0)}, {s(S_WAVE)}")
        self.flag_off(S_T1, FL_A, S_T0, S_CG)
        self.publish(S_T1)
        e.op(f"v_lshrrev_b32 {v(V_T1)}, 5, {v(V_LANE)}")
        e.op(f"v_lshlrev_b32 {v(V_T1)}, 4, {v(V_T1)}")
        G = 64
        for k in range(40):
            e.op(f"buffer_load_dwordx4 {v(G + 4 * k, 4)}, {v(V_T1)}, {s(S_MISC,4)}, 0 offen offset:{32 * k}", tag=("g", k))
        for k in range(40):
            e.wait(vm=("g", k))
            e.op(f"v_mfma_f32_32x32x16_bf16 {v(32,16)}, {v(G + 4 * k, 4)}, {r(A_X + 4 * k, 4)}, {'0' if k == 0 else v(32,16)}")
        e.op(f"v_mul_f32 {v(V_T1)}, {f32(-math.log2(math.e))}, v32")
        e.op(f"v_exp_f32 {v(V_T1)}, {v(V_T1)}")
        e.op(f"v_add_f32 {v(V_T1)}, 1.0, {v(V_T1)}")
        e.op(f"v_rcp_f32 {v(V_T1)}, {v(V_T1)}")
        e.op(f"v_and_b32 {v(V_T2)}, 31, {v(V_LANE)}")
        e.op(f"v_lshlrev_b32 {v(V_T2)}, 2, {v(V_T2)}")
        e.op(f"s_lshl_b32 {s(S_T1)}, {s(S_T0)}, 7")
        e.op(f"s_add_u32 {s(S_T1)}, {s(S_T1)}, {WS_G}")
        e.op("s_mov_b32 exec_hi, 0")
        e.op(f"buffer_store_dword {v(V_T1)}, {v(V_T2)}, {s(S_WS,4)}, {s(S_T1)} offen sc1")
        e.op("s_mov_b64 exec, -1")
        self.flag_off(S_T1, FL_C, S_T0, S_CG)
        e.wait(vm="all")
        self.publish(S_T1)
        e.wait(vm="all", lg="all")
        e.op("s_branch L_att")

    def retile(self):
        e = self.e
        e.vm, e.lg, e.hist = [], [], []
        e.label("L_retile")
        L = v(V_LANE); T0, T1, T2, T3 = v(V_T0), v(V_T1), v(V_T2), v(V_T3)
        e.op(f"s_getpc_b64 {s(S_MASK,2)}")
        e.label("L_pc")
        e.op(f"s_sub_u32 {s(S_MASK)}, {s(S_MASK)}, L_pc-{NAME}_kernel")
        e.op(f"s_subb_u32 {s(S_MASK+1)}, {s(S_MASK+1)}, 0")
        e.op(f"s_lshl_b32 {s(S_T0)}, {s(S_WAVE)}, 6")
        e.op(f"v_add_u32 {T0}, {s(S_T0)}, {L}")
        e.op(f"v_lshlrev_b32 {T0}, 7, {T0}")
        for n in range(2):
            e.op(f"v_min_u32 {T1}, L_end-{NAME}_kernel, {T0}")
            e.op(f"global_load_dword {v(240 + n)}, {T1}, {s(S_MASK,2)}")
            e.op(f"v_add_u32 {T0}, 32768, {T0}")
        for i in range(5):
            e.op(f"v_add_u32 {T0}, {64 * i}, {L}")
            e.op(f"v_mul_u32_u24 {T1}, 820, {T0}")
            e.op(f"v_lshrrev_b32 {T1}, 16, {T1}")
            e.op(f"v_mul_u32_u24 {T2}, 80, {T1}")
            e.op(f"v_sub_u32 {T0}, {T0}, {T2}")
            e.op(f"v_lshlrev_b32 {T1}, 2, {T1}")
            e.op(f"v_xor_b32 {T0}, {T0}, {T1}")
            e.op(f"v_add_u32 {T0}, {T0}, {T2}")
            e.op(f"v_lshlrev_b32 {v(i)}, 4, {T0}")
        VB, VC, VR4, VC2 = 8, 9, 10, 11
        e.op(f"v_bfe_u32 {T0}, {L}, 2, 2")
        e.op(f"v_lshlrev_b32 {v(VR4)}, 2, {T0}")
        e.op(f"v_mul_u32_u24 {T0}, 1280, {T0}")
        e.op(f"v_lshrrev_b32 {T1}, 4, {L}")
        e.op(f"v_mul_u32_u24 {T1}, 10240, {T1}")
        e.op(f"s_mul_i32 {s(S_XM0)}, {s(S_WAVE)}, 40960")
        e.op(f"v_add3_u32 {v(VB)}, {T0}, {T1}, {s(S_XM0)}")
        e.op(f"v_and_b32 {v(VC)}, 3, {L}")
        e.op(f"v_bfe_u32 {v(VC2)}, {L}, 1, 1")
        e.op(f"v_and_b32 {T0}, 1, {L}")
        e.op(f"v_lshl_add_u32 {v(12)}, {T0}, 3, {v(VB)}")
        e.op(f"v_add_u32 {v(13)}, 4096, {v(V_L16)}")
        S_KS = S_XOFF
        e.op(f"s_lshl_b32 {s(S_T0)}, {s(S_XCD)}, 1")
        e.op(f"s_add_u32 {s(S_T0)}, {s(S_T0)}, {s(S_I)}")
        e.op(f"s_sub_u32 {s(S_WOFF)}, {s(S_T0)}, 30")
        e.op(f"s_lshl_b32 {s(S_KS)}, {s(S_WOFF)}, 2")
        e.op(f"s_add_u32 {s(S_KS)}, {s(S_KS)}, {s(S_WAVE)}")
        e.label("L_rt_unit")
        SA, SB, SC, SR0 = S_T0, S_T1, S_T2, S_T3
        lo, lr, lg = self.L("rt_o"), self.L("rt_r"), self.L("rt_go")
        e.op(f"s_cmp_ge_u32 {s(S_KS)}, 54")
        e.op(f"s_cbranch_scc1 {lo}")
        self.srd(S_MISC, S_PTR + 10, 1728 * 1280)
        e.op(f"s_lshl_b32 {s(SR0)}, {s(S_KS)}, 5")
        e.op(f"s_mov_b32 {s(SA)}, {16 * 1280}")
        e.op(f"s_mov_b32 {s(SB)}, {4 * 1280}")
        e.op(f"s_mov_b32 {s(SC)}, {8 * 1280}")
        e.op(f"s_branch {lg}")
        e.label(lo)
        self.srd(S_MISC, S_PTR + 4, 640 * 1280)
        e.op(f"s_sub_u32 {s(S_T4)}, {s(S_KS)}, 54")
        e.op(f"s_mul_i32 {s(S_T5)}, {s(S_T4)}, 52")
        e.op(f"s_lshr_b32 {s(S_T5)}, {s(S_T5)}, 8")
        e.op(f"s_mul_i32 {s(SR0)}, {s(S_T5)}, 5")
        e.op(f"s_sub_u32 {s(S_T4)}, {s(S_T4)}, {s(SR0)}")
        e.op(f"s_mul_i32 {s(SR0)}, {s(S_T5)}, 160")
        e.op(f"s_cmp_eq_u32 {s(S_T4)}, 4")
        e.op(f"s_cbranch_scc1 {lr}")
        e.op(f"s_mul_i32 {s(S_T4)}, {s(S_T4)}, 40")
        e.op(f"s_add_u32 {s(SR0)}, {s(SR0)}, {s(S_T4)}")
        e.op(f"s_mov_b32 {s(SA)}, {20 * 1280}")
        e.op(f"s_mov_b32 {s(SB)}, {4 * 1280}")
        e.op(f"s_mov_b32 {s(SC)}, {8 * 1280}")
        e.op(f"s_branch {lg}")
        e.label(lr)
        e.op(f"s_add_u32 {s(SR0)}, {s(SR0)}, 16")
        e.op(f"s_mov_b32 {s(SA)}, {80 * 1280}")
        e.op(f"s_mov_b32 {s(SB)}, {40 * 1280}")
        e.op(f"s_mov_b32 {s(SC)}, {20 * 1280}")
        e.label(lg)
        e.op(f"s_mul_i32 {s(SR0)}, {s(SR0)}, 1280")
        for q in range(8):
            kg, u = q >> 1, q & 1
            e.op(f"s_mov_b32 {s(S_T4)}, {s(SR0)}")
            if kg >> 1: e.op(f"s_add_u32 {s(S_T4)}, {s(S_T4)}, {s(SA)}")
            if kg & 1: e.op(f"s_add_u32 {s(S_T4)}, {s(S_T4)}, {s(SB)}")
            if u: e.op(f"s_add_u32 {s(S_T4)}, {s(S_T4)}, {s(SC)}")
            for i in range(5):
                e.op(f"s_add_u32 m0, {s(S_XM0)}, {q * 5120 + i * 1024}")
                e.op(f"buffer_load_dwordx4 {v(i)}, {s(S_MISC,4)}, {s(S_T4)} offen lds")
        e.op(f"s_mul_i32 {s(S_T4)}, {s(S_KS)}, 5120")
        e.op(f"s_add_u32 {s(S_T4)}, {s(S_T4)}, {WS_WT}")
        e.wait(vm="all")
        D = 64
        for ng in range(8):
            for jj in range(3):
                if jj < 2:
                    e.op(f"v_add_u32 {T0}, {10 * ng + 4 * jj}, {v(VC)}")
                    base = VB
                else:
                    e.op(f"v_add_u32 {T0}, {10 * ng + 8}, {v(VC2)}")
                    base = 12
                e.op(f"v_xor_b32 {T0}, {T0}, {v(VR4)}")
                e.op(f"v_lshl_add_u32 {T0}, {T0}, 4, {v(base)}")
                for j1 in range(2 if jj < 2 else 1):
                    j = 2 * jj + j1
                    for u in range(2):
                        e.op(f"ds_read_b64_tr_b16 {v(D + 20 * ng + 4 * j + 2 * u, 2)}, {T0} offset:{u * 5120 + j1 * 8}", tag=("t", ng))
            e.wait(lg="all")
            for j in range(5):
                ad, off = (V_L16, j * 1024) if j < 4 else (13, 0)
                e.op(f"buffer_store_dwordx4 {v(D + 20 * ng + 4 * j, 4)}, {v(ad)}, {s(S_WS,4)}, {s(S_T4)} offen offset:{off} sc1")
            e.op(f"s_add_u32 {s(S_T4)}, {s(S_T4)}, {74 * 5120}")
        self.get_nonce()
        e.op(f"s_lshl_b32 {s(S_T1)}, {s(S_KS)}, 7")
        e.op(f"s_add_u32 {s(S_T1)}, {s(S_T1)}, {FL_D}")
        self.publish(S_T1)
        e.wait(vm="all", lg="all")
        e.op(f"s_cmp_ge_u32 {s(S_KS)}, 64")
        e.op("s_cbranch_scc1 L_att")
        e.op(f"s_cmp_lg_u32 {s(S_WAVE)}, 0")
        e.op("s_cbranch_scc1 L_att")
        e.op(f"s_cmp_ge_u32 {s(S_WOFF)}, 10")
        e.op("s_cbranch_scc1 L_att")
        e.op(f"s_add_u32 {s(S_KS)}, {s(S_WOFF)}, 64")
        e.op("s_branch L_rt_unit")

    def attention(self):
        e = self.e
        e.wait(vm="all", lg="all")
        e.label("L_att", reset=True)
        e.op("s_nop 7")
        e.op("s_barrier")
        L = v(V_LANE); T0, T1, T2, T3 = v(V_T0), v(V_T1), v(V_T2), v(V_T3)
        S_F0, S_TQ, S_TB0 = S_XOFF, S_WOFF, S_W2OFF
        e.op(f"s_mul_i32 {s(S_F0)}, {s(S_P)}, 10")
        e.op(f"s_lshr_b32 {s(S_F0)}, {s(S_F0)}, 2")
        e.op(f"s_lshl_b32 {s(S_TQ)}, {s(S_RBA)}, 2")
        e.op(f"s_mul_i32 {s(S_T0)}, {s(S_WAVE)}, 3")
        e.op(f"s_add_u32 {s(S_TB0)}, {s(S_TQ)}, {s(S_T0)}")
        e.op(f"s_sub_u32 {s(S_TB0)}, {s(S_TB0)}, 8")
        e.op(f"s_add_u32 {s(S_TQ)}, {s(S_TQ)}, {s(S_WAVE)}")
        e.op(f"v_and_b32 {T0}, 1, {L}")
        e.op(f"v_lshl_add_u32 {T1}, {T0}, 1, {s(S_F0)}")
        e.op(f"v_lshrrev_b32 {T1}, 3, {T1}")
        e.op(f"s_mul_i32 {s(S_T0)}, {s(S_P)}, 40")
        e.op(f"v_mul_u32_u24 {T0}, 39, {T0}")
        e.op(f"v_add_u32 {T0}, {s(S_T0)}, {T0}")
        e.op(f"v_lshrrev_b32 {T0}, 7, {T0}")
        e.op(f"v_add_u32 {T0}, 10, {T0}")
        e.op(f"v_bfe_u32 {T2}, {L}, 1, 3")
        e.op(f"v_add_u32 v0, 5, {T1}")
        e.op(f"v_cmp_lt_u32 vcc, 2, {T2}")
        e.op(f"v_cndmask_b32 v0, v0, {T0}, vcc")
        e.op(f"v_subrev_u32 v1, 3, {T2}")
        e.op(f"v_cndmask_b32 v1, {T2}, v1, vcc")
        e.op(f"v_add_u32 v1, {s(S_TB0)}, v1")
        e.op(f"v_max_i32 v1, 0, v1")
        e.op(f"v_cmp_lt_u32 vcc, 5, {T2}")
        e.op(f"v_cndmask_b32 v0, v0, {T1}, vcc")
        e.op(f"v_mov_b32 v2, {s(S_TQ)}")
        e.op(f"v_cndmask_b32 v1, v1, v2, vcc")
        e.op(f"v_lshl_add_u32 v1, v1, 4, v0")
        e.op(f"v_lshlrev_b32 v1, 7, v1")
        e.op(f"v_add_u32 v1, {FL_A}, v1")
        self.poll(1)
        self.stamp(4)
        VQ = 0
        e.op(f"s_lshl_b32 {s(S_T0)}, {s(S_F0)}, 16")
        e.op(f"s_lshl_b32 {s(S_T1)}, {s(S_TQ)}, 10")
        e.op(f"s_add_u32 {s(S_T1)}, {s(S_T1)}, {s(S_T0)}")
        for f in range(3):
            e.op(f"s_add_u32 {s(S_T2)}, {s(S_T1)}, {WS_QK + f * 65536}")
            e.op(f"buffer_load_dwordx4 {v(VQ + 4 * f, 4)}, {v(V_L16)}, {s(S_WS,4)}, {s(S_T2)} offen sc1", tag="q")
        e.op(f"s_mul_i32 {s(S_T3)}, {s(S_P)}, {64 * 2560}")
        e.op(f"s_mul_i32 {s(S_XM0)}, {s(S_WAVE)}, 3072")
        e.op(f"s_mul_i32 {s(S_WM0)}, {s(S_WAVE)}, 7680")
        for i in range(3):
            e.op(f"s_add_i32 {s(S_T1)}, {s(S_TB0)}, {i}")
            e.op(f"s_max_i32 {s(S_T1)}, {s(S_T1)}, 0")
            e.op(f"s_lshl_b32 {s(S_T2)}, {s(S_T1)}, 10")
            e.op(f"s_add_u32 {s(S_T2)}, {s(S_T2)}, {s(S_T0)}")
            for f in range(3):
                e.op(f"s_add_u32 m0, {s(S_XM0)}, {L_K + f * 12288 + i * 1024}")
                e.op(f"s_add_u32 {s(S_T4)}, {s(S_T2)}, {WS_QK + (40 + f) * 65536}")
                e.op(f"buffer_load_dwordx4 {v(V_L16)}, {s(S_WS,4)}, {s(S_T4)} offen sc1 lds", tag="kv")
            e.op(f"s_mul_i32 {s(S_T1)}, {s(S_T1)}, 2560")
            e.op(f"s_add_u32 {s(S_T1)}, {s(S_T1)}, {s(S_T3)}")
            e.op(f"s_add_u32 {s(S_T1)}, {s(S_T1)}, {WS_VT}")
            e.op(f"s_add_u32 m0, {s(S_WM0)}, {L_V + i * 2560}")
            for n in range(3):
                if n == 2: e.op("s_mov_b32 exec_hi, 0")
                e.op(f"buffer_load_dwordx4 {v(V_L16)}, {s(S_WS,4)}, {s(S_T1)} offen offset:{n * 1024} sc1 lds", tag="kv")
                if n == 2: e.op("s_mov_b64 exec, -1")
        CD, CE = 64, 80
        SS, OO = 96, (128, 144)
        KF, VF, PP = 160, 168, 176
        QM = 16
        VKA, VVA, VMX = 32, 33, 34
        e.op(f"v_and_b32 {T0}, 31, {L}")
        e.op(f"v_lshrrev_b32 {T1}, 5, {L}")
        e.op(f"v_lshlrev_b32 {T2}, 2, {T1}")
        e.op(f"v_sub_u32 {T2}, {T0}, {T2}")
        e.op(f"v_mov_b32 {T3}, {hex(NEGBIG)}")
        for rr in range(16):
            e.op(f"v_cmp_gt_i32 vcc, {8 * (rr >> 2) + (rr & 3)}, {T2}")
            e.op(f"v_cndmask_b32 {v(CD + rr)}, 0, {T3}, vcc")
            e.op(f"v_cndmask_b32 {v(CE + rr)}, {T3}, 0, vcc")
        e.op(f"s_lshl_b32 {s(S_T1)}, {s(S_WAVE)}, 10")
        e.op(f"s_add_u32 {s(S_T1)}, {s(S_T1)}, {L_K}")
        e.op(f"v_add_u32 {v(VKA)}, {s(S_T1)}, {v(V_L16)}")
        e.op(f"s_mul_i32 {s(S_T1)}, {s(S_WAVE)}, 2560")
        e.op(f"s_add_u32 {s(S_T1)}, {s(S_T1)}, {L_V}")
        e.op(f"v_mul_u32_u24 {T2}, 640, {T1}")
        e.op(f"v_lshl_add_u32 {T2}, {T0}, 4, {T2}")
        e.op(f"v_add_u32 {v(VVA)}, {s(S_T1)}, {T2}")
        e.op(f"s_mov_b32 {s(S_VM)}, 0xfffff")
        e.op(f"s_mov_b32 {s(S_VM+1)}, 0xfffff")
        for i in range(8): e.op(f"v_mov_b32 {v(VF + i)}, 0x3f803f80")
        e.op(f"s_and_b32 {s(S_T1)}, {s(S_P)}, 1")
        e.op(f"s_lshl_b32 {s(S_T1)}, {s(S_T1)}, 1")
        e.op(f"v_subrev_u32 {T2}, {s(S_T1)}, {T1}")
        e.wait(vm="q")
        for h in range(2):
            for ff in range(2):
                f = h + ff
                for slot in range(2):
                    e.op(f"v_add_u32 {T3}, {4 * f + 2 * slot - 5 * h}, {T2}")
                    e.op(f"v_cmp_gt_u32 vcc, 5, {T3}")
                    for d in range(2):
                        e.op(f"v_cndmask_b32 {v(QM + 8 * h + 4 * ff + 2 * slot + d)}, 0, {v(VQ + 4 * f + 2 * slot + d)}, vcc")
        e.wait(vm="all")
        e.op("s_barrier")
        def qk(h, j):
            for ff in range(2):
                e.op(f"ds_read_b128 {v(KF + 4 * ff, 4)}, {v(VKA)} offset:{(h + ff) * 12288 + j * 1024}")
            e.wait(lg="all")
            c = v(CE, 16) if j == 0 else v(CD, 16) if j == 8 else "0"
            e.op(f"v_mfma_f32_32x32x16_bf16 {v(SS,16)}, {v(KF,4)}, {v(QM + 8 * h, 4)}, {c}")
            e.op(f"v_mfma_f32_32x32x16_bf16 {v(SS,16)}, {v(KF+4,4)}, {v(QM + 8 * h + 4, 4)}, {v(SS,16)}")
        for h in range(2):
            O = OO[h]
            e.op(f"v_mov_b32 {v(VMX)}, {hex(NEGBIG)}")
            for i in range(16): e.op(f"v_mov_b32 {v(O + i)}, 0")
            for j in range(9):
                sk = self.L("sk")
                if j < 8:
                    e.op(f"s_cmp_lt_u32 {s(S_TQ)}, {8 - j}")
                    e.op(f"s_cbranch_scc1 {sk}")
                qk(h, j)
                for i in range(8):
                    e.op(f"v_max3_f32 {v(VMX)}, {v(VMX)}, {v(SS + 2 * i)}, {v(SS + 2 * i + 1)}")
                e.label(sk)
            e.op(f"v_mov_b32 {T0}, {v(VMX)}")
            e.op(f"v_permlane32_swap_b32 {T0}, {v(VMX)}")
            e.op(f"s_nop 1")
            e.op(f"v_max_f32 {v(VMX)}, {T0}, {v(VMX)}")
            for j in range(9):
                sk = self.L("sk")
                if j < 8:
                    e.op(f"s_cmp_lt_u32 {s(S_TQ)}, {8 - j}")
                    e.op(f"s_cbranch_scc1 {sk}")
                e.op(f"s_mov_b64 exec, {s(S_VM,2)}")
                for ss in range(2):
                    e.op(f"ds_read_b128 {v(VF + 4 * ss, 4)}, {v(VVA)} offset:{j * 2560 + ss * 1280 + h * 320}")
                e.op("s_mov_b64 exec, -1")
                qk(h, j)
                for i in range(16): e.op(f"v_sub_f32 {v(SS + i)}, {v(SS + i)}, {v(VMX)}")
                for i in range(16): e.op(f"v_exp_f32 {v(SS + i)}, {v(SS + i)}")
                for i in range(8): e.op(f"v_cvt_pk_bf16_f32 {v(PP + i)}, {v(SS + 2 * i)}, {v(SS + 2 * i + 1)}")
                for ss in range(2):
                    e.op(f"v_mfma_f32_32x32x16_bf16 {v(O,16)}, {v(VF + 4 * ss, 4)}, {v(PP + 4 * ss, 4)}, {v(O,16)}")
                e.op("s_nop 7")
                e.label(sk)
        OP = 184
        for h in range(2):
            O = OO[h]
            e.op(f"v_rcp_f32 {T0}, {v(O + 12)}")
            for i in range(12): e.op(f"v_mul_f32 {v(O + i)}, {v(O + i)}, {T0}")
            for i in range(4): e.op(f"v_cvt_pk_bf16_f32 {v(OP + 4 * h + i)}, {v(O + 2 * i)}, {v(O + 2 * i + 1)}")
            for i in range(2): e.op(f"v_cvt_pk_bf16_f32 {v(OP + 8 + 2 * h + i)}, {v(O + 8 + 2 * i)}, {v(O + 9 + 2 * i)}")
        e.op(f"s_lshr_b32 {s(S_T0)}, {s(S_P)}, 2")
        e.op(f"s_mul_i32 {s(S_T0)}, {s(S_T0)}, {20 * 512}")
        e.op(f"s_mul_i32 {s(S_T1)}, {s(S_TQ)}, 40960")
        e.op(f"s_add_u32 {s(S_T0)}, {s(S_T0)}, {s(S_T1)}")
        e.op(f"s_add_u32 {s(S_T0)}, {s(S_T0)}, {WS_O}")
        e.op(f"s_and_b32 {s(S_T1)}, {s(S_P)}, 3")
        e.op(f"s_lshl_b32 {s(S_T2)}, {s(S_T1)}, 11")
        e.op(f"s_add_u32 {s(S_T2)}, {s(S_T2)}, {s(S_T0)}")
        e.op(f"s_lshl_b32 {s(S_T1)}, {s(S_T1)}, 9")
        e.op(f"s_add_u32 {s(S_T1)}, {s(S_T1)}, {s(S_T0)}")
        e.op(f"s_add_u32 {s(S_T1)}, {s(S_T1)}, {16 * 512}")
        for h in range(2):
            e.op(f"buffer_store_dwordx4 {v(OP + 4 * h, 4)}, {v(V_L16)}, {s(S_WS,4)}, {s(S_T2)} offen offset:{h * 1024} sc1", tag="sto")
        e.op("s_mov_b32 exec_hi, 0")
        e.op(f"buffer_store_dwordx4 {v(OP + 8, 4)}, {v(V_L16)}, {s(S_WS,4)}, {s(S_T1)} offen sc1", tag="sto")
        e.op("s_mov_b64 exec, -1")
        self.flag_off(S_T1, FL_B, S_TQ, S_P)
        e.wait(vm="all")
        self.publish(S_T1)
        self.stamp(5)

    def stage3(self):
        e = self.e
        L = v(V_LANE); T0, T1, T2, T3 = v(V_T0), v(V_T1), v(V_T2), v(V_T3)
        BA = 0
        AA = 80
        HR = 120
        WR = 256
        VH, VO, VG, VG1 = 216, 220, 224, 228
        VL4K, VFC, VFB, VRW, VRR, VOUT = 232, 233, 234, 235, 238, 239
        NH, NWR = 6, 12
        S_HO, S_WO = S_XOFF, S_WOFF
        e.op(f"v_and_b32 {T0}, 15, {L}")
        e.op(f"v_lshrrev_b32 {T1}, 4, {L}")
        e.op(f"v_lshlrev_b32 {T2}, 9, {T1}")
        e.op(f"v_lshl_add_u32 {T2}, {T0}, 4, {T2}")
        for t in range(4):
            e.op(f"s_add_u32 {s(S_T0)}, {s(S_WAVE)}, {t + 1}")
            e.op(f"s_and_b32 {s(S_T0)}, {s(S_T0)}, 3")
            e.op(f"s_lshr_b32 {s(S_T1)}, {s(S_T0)}, 1")
            e.op(f"s_lshl_b32 {s(S_T2)}, {s(S_TB64)}, 1")
            e.op(f"s_add_u32 {s(S_T1)}, {s(S_T1)}, {s(S_T2)}")
            e.op(f"s_and_b32 {s(S_T2)}, {s(S_T0)}, 1")
            e.op(f"s_lshl_b32 {s(S_T2)}, {s(S_T2)}, 8")
            e.op(f"s_mul_i32 {s(S_T3)}, {s(S_T1)}, 110592")
            e.op(f"s_add_u32 {s(S_T3)}, {s(S_T3)}, {s(S_T2)}")
            e.op(f"v_add_u32 {v(VH + t)}, {s(S_T3)}, {T2}")
            e.op(f"s_mul_i32 {s(S_T3)}, {s(S_T1)}, 40960")
            e.op(f"s_add_u32 {s(S_T3)}, {s(S_T3)}, {s(S_T2)}")
            e.op(f"v_add_u32 {v(VO + t)}, {s(S_T3)}, {T2}")
            e.op(f"s_lshl_b32 {s(S_T3)}, {s(S_TB64)}, 2")
            e.op(f"s_add_u32 {s(S_T3)}, {s(S_T3)}, {s(S_T0)}")
            e.op(f"s_lshl_b32 {s(S_T3)}, {s(S_T3)}, 6")
            e.op(f"s_add_u32 {s(S_T3)}, {s(S_T3)}, {WS_G}")
            e.op(f"v_lshl_add_u32 {v(VG1 + t)}, {T0}, 2, {s(S_T3)}")
            if t < 3:
                e.op(f"s_mul_i32 {s(S_T3)}, {s(S_T0)}, 15360")
                e.op(f"s_add_u32 {s(S_T3)}, {s(S_T3)}, {L_RED + t * 5120}")
                e.op(f"v_add_u32 {v(VRW + t)}, {s(S_T3)}, {v(V_L16)}")
        e.op(f"s_mul_i32 {s(S_T3)}, {s(S_WAVE)}, 15360")
        e.op(f"s_add_u32 {s(S_T3)}, {s(S_T3)}, {L_RED}")
        e.op(f"v_add_u32 {v(VRR)}, {s(S_T3)}, {v(V_L16)}")
        e.op(f"v_add_u32 {v(VL4K)}, 4096, {v(V_L16)}")
        e.op(f"s_lshl_b32 {s(S_T0)}, {s(S_TB64)}, 2")
        e.op(f"s_add_u32 {s(S_T0)}, {s(S_T0)}, {s(S_WAVE)}")
        e.op(f"s_mul_i32 {s(S_T0)}, {s(S_T0)}, {16 * 1280}")
        e.op(f"s_mul_i32 {s(S_T1)}, {s(S_NG)}, 160")
        e.op(f"s_add_u32 {s(S_T0)}, {s(S_T0)}, {s(S_T1)}")
        e.op(f"v_mul_u32_u24 {T3}, 1280, {T0}")
        e.op(f"v_add_u32 {T3}, {s(S_T0)}, {T3}")
        e.op(f"v_lshl_add_u32 {v(VOUT)}, {T1}, 4, {T3}")
        e.op(f"v_lshl_add_u32 {v(VOUT + 1)}, {T1}, 3, {T3}")
        e.op(f"v_min_u32 {T0}, 14, {T0}")
        e.op(f"v_and_b32 {T1}, 1, {T1}")
        e.op(f"s_lshl_b32 {s(S_T0)}, {s(S_TB64)}, 1")
        e.op(f"v_add_u32 {T1}, {s(S_T0)}, {T1}")
        e.op(f"v_lshl_add_u32 {T0}, {T1}, 4, {T0}")
        e.op(f"v_lshlrev_b32 {T0}, 7, {T0}")
        e.op(f"v_add_u32 {T0}, {FL_C}, {T0}")
        e.op(f"v_and_b32 {T2}, 31, {L}")
        e.op(f"v_min_u32 {T2}, 18, {T2}")
        e.op(f"v_lshl_add_u32 {T3}, {T2}, 2, {s(S_WAVE)}")
        e.op(f"v_min_u32 {T3}, 53, {T3}")
        e.op(f"s_mul_i32 {s(S_T1)}, {s(S_WAVE)}, 5")
        e.op(f"s_add_u32 {s(S_T1)}, {s(S_T1)}, 40")
        e.op(f"v_cmp_lt_u32 vcc, 13, {T2}")
        e.op(f"v_add_u32 {T2}, {s(S_T1)}, {T2}")
        e.op(f"v_cndmask_b32 {T2}, {T3}, {T2}, vcc")
        e.op(f"v_lshlrev_b32 {T2}, 7, {T2}")
        e.op(f"v_add_u32 {T2}, {FL_D}, {T2}")
        e.op(f"v_cmp_lt_u32 vcc, 31, {L}")
        e.op(f"v_cndmask_b32 {v(VFC)}, {T0}, {T2}, vcc")
        e.op(f"v_and_b32 {T0}, 3, {L}")
        e.op(f"s_lshl_b32 {s(S_T1)}, {s(S_WAVE)}, 2")
        e.op(f"v_add_u32 {T0}, {s(S_T1)}, {T0}")
        e.op(f"v_lshl_add_u32 {T0}, {T1}, 4, {T0}")
        e.op(f"v_lshlrev_b32 {T0}, 7, {T0}")
        e.op(f"v_add_u32 {v(VFB)}, {FL_B}, {T0}")
        e.op(f"s_lshl_b32 {s(S_HO)}, {s(S_WAVE)}, 11")
        e.op(f"s_add_u32 {s(S_HO)}, {s(S_HO)}, {WS_H}")
        e.op(f"s_mul_i32 {s(S_WO)}, {s(S_NG)}, 74")
        e.op(f"s_add_u32 {s(S_T0)}, {s(S_WO)}, {s(S_WAVE)}")
        e.op(f"s_mul_i32 {s(S_T1)}, {s(S_WAVE)}, 5")
        e.op(f"s_add_u32 {s(S_T1)}, {s(S_T1)}, {s(S_WO)}")
        e.op(f"s_mul_i32 {s(S_WO)}, {s(S_T0)}, 5120")
        e.op(f"s_add_u32 {s(S_WO)}, {s(S_WO)}, {WS_WT}")
        S_WO2, S_OO = S_W2OFF, S_XM0
        e.op(f"s_mul_i32 {s(S_WO2)}, {s(S_T1)}, 5120")
        e.op(f"s_add_u32 {s(S_WO2)}, {s(S_WO2)}, {WS_WT + 54 * 5120}")
        e.op(f"s_mul_i32 {s(S_OO)}, {s(S_WAVE)}, {5 * 2048}")
        e.op(f"s_add_u32 {s(S_OO)}, {s(S_OO)}, {WS_O}")
        self.poll(VFC)
        self.stamp(6)
        for t in range(4):
            e.op(f"buffer_load_dword {v(VG + t)}, {v(VG1 + t)}, {s(S_WS,4)}, 0 offen sc1", tag="g")
        def w_loads(n):
            def mk(j):
                def f():
                    if j == 0:
                        if n < 14: e.op(f"s_add_u32 {s(S_T4)}, {s(S_WO)}, {n * 4 * 5120}")
                        else: e.op(f"s_add_u32 {s(S_T4)}, {s(S_WO2)}, {(n - 14) * 5120}")
                        if n == 13:
                            e.op(f"s_cmp_lt_u32 {s(S_WAVE)}, 2")
                            e.op(f"s_cselect_b32 {s(S_T4)}, {s(S_T4)}, {OOB}")
                    ad, off = (V_L16, j * 1024) if j < 4 else (VL4K, 0)
                    e.op(f"buffer_load_dwordx4 {r(WR + 20 * (n % NWR) + 4 * j, 4)}, {v(ad)}, {s(S_WS,4)}, {s(S_T4)} offen offset:{off} sc1", tag=("w", n, j))
                return f
            return [mk(j) for j in range(5)]
        def h_loads(n):
            def mk(t):
                def f():
                    if t == 0:
                        if n < 14: e.op(f"s_add_u32 {s(S_T5)}, {s(S_HO)}, {n * 8192}")
                        else: e.op(f"s_add_u32 {s(S_T5)}, {s(S_OO)}, {(n - 14) * 2048}")
                        if n == 13:
                            e.op(f"s_cmp_lt_u32 {s(S_WAVE)}, 2")
                            e.op(f"s_cselect_b32 {s(S_T5)}, {s(S_T5)}, {OOB}")
                    e.op(f"buffer_load_dwordx4 {v(HR + 16 * (n % NH) + 4 * t, 4)}, {v((VH if n < 14 else VO) + t)}, {s(S_WS,4)}, {s(S_T5)} offen sc1", tag=("h", n, t))
                return f
            return [mk(t) for t in range(4)]
        for n in range(NH):
            for f in w_loads(n) + h_loads(n): f()
        for n in range(14):
            nxt = []
            if n >= 1 and n - 1 + NH < 19:
                k = n - 1 + NH
                if k == 14: self.poll(VFB)
                nxt = w_loads(k) + h_loads(k)
            i = 0
            for t in range(4):
                for j in range(5):
                    e.wait(vm=[("w", n, j), ("h", n, t)])
                    acc = v(BA + 20 * t + 4 * j, 4)
                    e.op(f"v_mfma_f32_16x16x32_bf16 {acc}, {r(WR + 20 * (n % NWR) + 4 * j, 4)}, {v(HR + 16 * (n % NH) + 4 * t, 4)}, {'0' if n == 0 else acc}")
                    if i % 2 == 0 and nxt: nxt.pop(0)()
                    i += 1
        self.stamp(7)
        for t in range(4): e.op(f"v_sub_f32 {v(VG1 + t)}, 1.0, {v(VG + t)}")
        def combine(t):
            ops = []
            A = AA + 20 * (t & 1)
            for i in range(20):
                ops.append(lambda i=i: e.op(f"v_mul_f32 {v(BA + 20 * t + i)}, {v(BA + 20 * t + i)}, {v(VG1 + t)}"))
            pre = ops; ops = []
            for j in range(5):
                for i in range(4):
                    ops.append(lambda k=4 * j + i: e.op(f"v_fmac_f32 {v(BA + 20 * t + k)}, {v(A + k)}, {v(VG + t)}"))
                if t < 3:
                    ops.append(lambda j=j: e.op(f"ds_write_b128 {v(VRW + t)}, {v(BA + 20 * t + 4 * j, 4)} offset:{j * 1024}", tag="red"))
            return pre, ops
        post = []
        for t in range(4):
            pre, mine = combine(t)
            q = post + pre
            i = 0
            for n in range(14, 19):
                for j in range(5):
                    e.wait(vm=[("w", n, j), ("h", n, t)])
                    acc = v(AA + 20 * (t & 1) + 4 * j, 4)
                    e.op(f"v_mfma_f32_16x16x32_bf16 {acc}, {r(WR + 20 * (n % NWR) + 4 * j, 4)}, {v(HR + 16 * (n % NH) + 4 * t, 4)}, {'0' if n == 14 else acc}")
                    if i >= 2:
                        for _ in range(2):
                            if q: q.pop(0)()
                    i += 1
            while q: q.pop(0)()
            post = mine
        e.wait(lg="all")
        e.op("s_barrier")
        RD = HR
        for sl in range(3):
            for j in range(5):
                e.op(f"ds_read_b128 {v(RD + 20 * sl + 4 * j, 4)}, {v(VRR)} offset:{sl * 5120 + j * 1024}", tag=("rd", sl))
        for f in post: f()
        F = BA + 60
        for sl in range(3):
            e.wait(lg=("rd", sl))
            for i in range(10):
                e.op(f"v_pk_add_f32 {v(F + 2 * i, 2)}, {v(F + 2 * i, 2)}, {v(RD + 20 * sl + 2 * i, 2)}")
        for i in range(10):
            e.op(f"v_cvt_pk_bf16_f32 {v(AA + i)}, {v(F + 2 * i)}, {v(F + 2 * i + 1)}")
        e.op(f"buffer_store_dwordx4 {v(AA,4)}, {v(VOUT)}, {s(S_OUT,4)}, 0 offen")
        e.op(f"buffer_store_dwordx4 {v(AA+4,4)}, {v(VOUT)}, {s(S_OUT,4)}, 0 offen offset:64")
        e.op(f"buffer_store_dwordx2 {v(AA+8,2)}, {v(VOUT+1)}, {s(S_OUT,4)}, 0 offen offset:128")

    def finish(self):
        e = self.e
        if self.stamps:
            e.wait(vm="all")
            e.op(f"{'s_memtime' if self.opt.get('cyc') else 's_memrealtime'} {s(S_MASK,2)}")
            e.op(f"s_memtime {s(S_VM,2)}")
            e.wait(lg="all")
            e.op(f"s_sub_u32 {s(S_VM)}, {s(S_VM)}, s41")
            e.op(f"s_lshl_b32 {s(S_T0)}, s2, 2")
            e.op(f"s_add_u32 {s(S_T0)}, {s(S_T0)}, {s(S_WAVE)}")
            e.op(f"s_lshl_b32 {s(S_T0)}, {s(S_T0)}, 7")
            e.op(f"s_add_u32 {s(S_T0)}, {s(S_T0)}, {WS_ST}")
            e.op(f"v_mov_b32 {v(V_T0)}, 0")
            for i in range(10):
                src = S_STAMP + 2 * i if i < 8 else S_MASK if i == 8 else S_VM
                e.op(f"v_mov_b32 {v(i)}, {s(src)}")
                e.op(f"buffer_store_dword {v(i)}, {v(V_T0)}, {s(S_WS,4)}, {s(S_T0)} offen offset:{4 * i}")
        e.op("s_endpgm")

    def build(self):
        e = self.e
        self.prologue()
        self.stage1()
        self.attention()
        self.stage3()
        self.finish()
        self.gate()
        self.retile()
        e.label("L_end")
        e.op("s_endpgm")
        head = open("cdna_kernels/" + NAME + ".s.ref").read().split("\n")
        head = [l for l in head if l.startswith(";") and "@launch" not in l]
        txt = "\n".join(head) + f"\n; @launch grid=(256,1,1) block=(256,1,1) lds={LDS_BYTES}\n"
        txt += f""".amdgcn_target "amdgcn-amd-amdhsa--gfx950"
.text
.globl {NAME}_kernel
.p2align 8
.type {NAME}_kernel,@function
{NAME}_kernel:
"""
        txt += e.text()
        txt += f""".section .rodata,"a"
.p2align 6
.amdhsa_kernel {NAME}_kernel
  .amdhsa_next_free_vgpr 512
  .amdhsa_next_free_sgpr 102
  .amdhsa_accum_offset 256
  .amdhsa_group_segment_fixed_size 0
  .amdhsa_kernarg_size 80
  .amdhsa_user_sgpr_count 2
  .amdhsa_user_sgpr_kernarg_segment_ptr 1
  .amdhsa_system_sgpr_workgroup_id_x 1
.end_amdhsa_kernel
"""
        return txt

if __name__ == "__main__":
    out = sys.argv[1] if len(sys.argv) > 1 else "cdna_kernels/" + NAME + ".s"
    opt = {}
    for x in sys.argv[2:]:
        if "=" in x:
            k, val = x.split("="); opt[k] = int(val)
    g = Gen(stamps="--stamps" in sys.argv, opt=opt)
    txt = g.build()
    open(out, "w").write(txt)
    print("instructions", g.e.count, "pad states", g.e.nops, file=sys.stderr)
    if "--nops" in sys.argv:
        for n, t in g.e.log_nops: print(n, t, file=sys.stderr)
```

```python
import sys, math, struct
from asmlib import *

NAME = "gated_mix__sliding_block__dense_activation_relu__prompt"

WS_QK = 0
WS_VT = WS_QK + 80 * 64 * 1024
WS_H  = WS_VT + 16 * 64 * 2560
WS_O  = WS_H + 64 * 110592
WS_WT = WS_O + 64 * 40960
WS_G  = WS_WT + 8 * 74 * 5120
WS_FL = WS_G + 8192
WS_ST = WS_FL + 4 * 1024 * 128
WS_SIZE = WS_ST + 1024 * 128
OOB = 0x4000000
assert WS_SIZE < OOB
FL_A, FL_C, FL_B, FL_D = [WS_FL + p * 131072 for p in range(4)]

NW, NX = 5, 5
L_W = 0
L_X = NW * 16384
L_K = L_X
L_V = L_K + 36 * 1024
L_RED = 0
LDS_BYTES = 163840

S_X, S_WA, S_WB, S_WS, S_OUT, S_DBG, S_MISC = 4, 8, 12, 16, 20, 24, 28
S_WAVE, S_XCD, S_I, S_RB, S_CG, S_P, S_RBA, S_TB64, S_NG = 32, 33, 34, 35, 36, 37, 38, 39, 40
S_NONCE = 42
S_T0, S_T1, S_T2, S_T3, S_T4, S_T5 = 44, 45, 46, 47, 48, 49
S_XOFF, S_WOFF, S_XM0, S_WM0, S_W2OFF = 50, 51, 52, 53, 54
S_SCALE = 56
S_ST1, S_ST2, S_ST2B = 58, 59, 60
S_SPIN = 61
S_MASK = 62
S_PTR = 64
S_STAMP = 84
S_VM = 100

V_LANE = 255
V_T0, V_T1, V_T2, V_T3 = 248, 249, 250, 251
V_NONCE = 252
V_L16 = 254
V_XD = 0
V_WD = 4
V_WD2 = 8
V_XR = 12
V_WR = 16
V_ST1 = 24
V_PK = 32
ACC = (64, 128)
V_FR = 192
A_X = 256

def f32(x): return "0x%08x" % struct.unpack("<I", struct.pack("<f", x))[0]
QSCALE = math.log2(math.e) / math.sqrt(20.0)
NEGBIG = 0xff800000

class Gen:
    def __init__(self, stamps=False, opt=None):
        self.e = Emit()
        self.stamps = stamps
        self.nstamp = 0
        self.uid = 0
        self.opt = opt or {}
    def L(self, p):
        self.uid += 1
        return f"L_{p}_{self.uid}"
    def stamp(self, idx):
        if self.stamps:
            self.e.op(f"{'s_memtime' if self.opt.get('cyc') else 's_memrealtime'} {s(S_STAMP + 2 * idx, 2)}")

    def srd(self, d, ptr, nbytes):
        e = self.e
        e.op(f"s_mov_b32 {s(d)}, {s(ptr)}")
        e.op(f"s_and_b32 {s(d+1)}, {s(ptr+1)}, 0xffff")
        e.op(f"s_mov_b32 {s(d+2)}, {nbytes}")
        e.op(f"s_mov_b32 {s(d+3)}, 0x20000")

    def get_nonce(self):
        e = self.e
        lp, dn = self.L("nonce"), self.L("nonce_done")
        e.wait(vm="all")
        e.op(f"v_mov_b32 {v(V_T0)}, 0")
        e.op(f"s_mov_b32 {s(S_SPIN)}, 0")
        e.label(lp)
        e.op(f"buffer_load_dwordx2 {v(V_NONCE,2)}, {v(V_T0)}, {s(S_DBG,4)}, 0 offen sc1")
        e.op(f"s_add_u32 {s(S_SPIN)}, {s(S_SPIN)}, 1")
        e.wait(vm="all")
        e.op(f"v_readfirstlane_b32 {s(S_NONCE)}, {v(V_NONCE)}")
        e.op(f"v_readfirstlane_b32 {s(S_NONCE+1)}, {v(V_NONCE+1)}")
        e.op(f"s_cmp_gt_u32 {s(S_SPIN)}, 0x40000")
        e.op(f"s_cbranch_scc1 {dn}")
        e.op(f"s_cmp_eq_u32 {s(S_NONCE)}, 0")
        e.op(f"s_cbranch_scc1 {lp}")
        e.label(dn)

    def publish(self, soff):
        e = self.e
        e.op(f"v_mov_b32 {v(V_T0)}, 0")
        e.op("s_mov_b64 exec, 1")
        e.op(f"buffer_store_dwordx2 {v(V_NONCE,2)}, {v(V_T0)}, {s(S_WS,4)}, {s(soff)} offen sc1", tag="flag")
        e.op("s_mov_b64 exec, -1")

    def poll(self, vaddr):
        e = self.e
        lp, dn = self.L("poll"), self.L("poll_done")
        e.wait(vm="all")
        e.op(f"s_mov_b32 {s(S_SPIN)}, 0")
        e.label(lp)
        e.op(f"buffer_load_dwordx2 {v(V_T2,2)}, {v(vaddr)}, {s(S_WS,4)}, 0 offen sc1")
        e.op(f"s_add_u32 {s(S_SPIN)}, {s(S_SPIN)}, 1")
        e.wait(vm="all")
        e.op(f"v_cmp_ne_u64 vcc, {s(S_NONCE,2)}, {v(V_T2,2)}")
        e.op(f"s_cmp_gt_u32 {s(S_SPIN)}, 0x40000")
        e.op(f"s_cbranch_scc1 {dn}")
        e.op(f"s_cbranch_vccnz {lp}")
        e.label(dn)

    def prologue(self):
        e = self.e
        e.op("s_cmp_ge_u32 s2, 256")
        e.op("s_cbranch_scc1 L_end")
        e.op(f"s_load_dwordx16 {s(S_PTR,16)}, s[0:1], 0")
        e.op(f"s_load_dwordx4 {s(S_PTR+16,4)}, s[0:1], 64")
        self.stamp(0)
        if self.stamps: e.op(f"s_memtime {s(S_VM,2)}")
        e.op(f"v_lshrrev_b32 {v(V_T0)}, 6, v0")
        e.op(f"v_and_b32 {v(V_LANE)}, 63, v0")
        e.op(f"v_readfirstlane_b32 {s(S_WAVE)}, {v(V_T0)}")
        e.op(f"v_lshlrev_b32 {v(V_L16)}, 4, {v(V_LANE)}")
        e.op(f"s_and_b32 {s(S_XCD)}, s2, 7")
        e.op(f"s_lshr_b32 {s(S_I)}, s2, 3")
        e.op(f"s_lshr_b32 {s(S_T0)}, {s(S_XCD)}, 1")
        e.op(f"s_mul_i32 {s(S_T1)}, {s(S_T0)}, 30")
        e.op(f"s_add_u32 {s(S_T1)}, {s(S_T1)}, {s(S_I)}")
        e.op(f"s_and_b32 {s(S_T2)}, {s(S_XCD)}, 1")
        e.op(f"s_lshl_b32 {s(S_T3)}, {s(S_T2)}, 3")
        e.op(f"s_and_b32 {s(S_RB)}, {s(S_T1)}, 7")
        e.op(f"s_add_u32 {s(S_RB)}, {s(S_RB)}, {s(S_T3)}")
        e.op(f"s_lshr_b32 {s(S_CG)}, {s(S_T1)}, 3")
        e.op(f"s_lshr_b32 {s(S_P)}, {s(S_I)}, 4")
        e.op(f"s_lshl_b32 {s(S_T3)}, {s(S_XCD)}, 1")
        e.op(f"s_add_u32 {s(S_P)}, {s(S_P)}, {s(S_T3)}")
        e.op(f"s_and_b32 {s(S_RBA)}, {s(S_I)}, 15")
        e.op(f"s_lshl_b32 {s(S_TB64)}, {s(S_T0)}, 3")
        e.op(f"s_and_b32 {s(S_T3)}, {s(S_I)}, 7")
        e.op(f"s_add_u32 {s(S_TB64)}, {s(S_TB64)}, {s(S_T3)}")
        e.op(f"s_lshl_b32 {s(S_NG)}, {s(S_T2)}, 2")
        e.op(f"s_lshr_b32 {s(S_T3)}, {s(S_I)}, 3")
        e.op(f"s_add_u32 {s(S_NG)}, {s(S_NG)}, {s(S_T3)}")
        L = v(V_LANE); T0, T1, T2, T3 = v(V_T0), v(V_T1), v(V_T2), v(V_T3)
        e.op(f"v_lshrrev_b32 {T0}, 3, {L}")
        e.op(f"v_mul_u32_u24 {T0}, 1280, {T0}")
        e.op(f"v_lshrrev_b32 {T1}, 4, {L}")
        e.op(f"v_and_b32 {T2}, 7, {L}")
        e.op(f"v_xor_b32 {T2}, {T2}, {T1}")
        for n in range(4):
            if n & 1: e.op(f"v_xor_b32 {T3}, 4, {T2}")
            else: e.op(f"v_mov_b32 {T3}, {T2}")
            e.op(f"v_lshl_add_u32 {T3}, {T3}, 4, {T0}")
            e.op(f"v_add_u32 {v(V_XD+n)}, {n * (8 * 1280 - 1024)}, {T3}")
        e.op(f"v_lshlrev_b32 {T2}, 2, {T1}")
        e.op(f"v_and_b32 {T3}, 15, {L}")
        e.op(f"v_xor_b32 {T2}, {T2}, {T3}")
        e.op(f"v_lshlrev_b32 {T2}, 4, {T2}")
        for base, rs in ((V_WD, 3840), (V_WD2, 3456)):
            e.op(f"v_mul_u32_u24 {T0}, {rs}, {T1}")
            e.op(f"v_add_u32 {T0}, {T0}, {T2}")
            for n in range(4):
                e.op(f"v_add_u32 {v(base+n)}, {n * (4 * rs - 1024)}, {T0}")
        e.op(f"s_lshl_b32 {s(S_T0)}, {s(S_RB)}, 2")
        e.op(f"s_add_u32 {s(S_T0)}, {s(S_T0)}, {s(S_WAVE)}")
        e.op(f"s_mul_i32 {s(S_XOFF)}, {s(S_T0)}, {32 * 1280}")
        e.op(f"s_lshl_b32 {s(S_T1)}, {s(S_CG)}, 8")
        e.op(f"s_mul_i32 {s(S_WOFF)}, {s(S_WAVE)}, {16 * 3840}")
        e.op(f"s_add_u32 {s(S_WOFF)}, {s(S_WOFF)}, {s(S_T1)}")
        e.op(f"s_mul_i32 {s(S_W2OFF)}, {s(S_WAVE)}, {16 * 3456}")
        e.op(f"s_add_u32 {s(S_W2OFF)}, {s(S_W2OFF)}, {s(S_T1)}")
        e.op(f"s_mul_i32 {s(S_XM0)}, {s(S_WAVE)}, {NX * 4096}")
        e.op(f"s_add_u32 {s(S_XM0)}, {s(S_XM0)}, {L_X}")
        e.op(f"s_lshl_b32 {s(S_WM0)}, {s(S_WAVE)}, 12")
        e.wait(lg="all")
        if self.stamps: e.op(f"s_mov_b32 s41, {s(S_VM)}")
        self.srd(S_X, S_PTR + 0, 2048 * 1280)
        self.srd(S_WA, S_PTR + 2, 640 * 3840)
        self.srd(S_WB, S_PTR + 8, 640 * 3456)
        self.srd(S_WS, S_PTR + 18, WS_SIZE)
        self.srd(S_OUT, S_PTR + 14, 2048 * 1280)
        self.srd(S_DBG, S_PTR + 16, 256)
        self.srd(S_MISC, S_PTR + 12, 1280)
        if self.opt.get("touch"):
            e.op(f"s_lshl_b32 {s(S_T0)}, s2, 2")
            e.op(f"s_add_u32 {s(S_T0)}, {s(S_T0)}, {s(S_WAVE)}")
            for k, (srd, n) in enumerate(((S_X, 20), (S_WA, 19), (S_WB, 17))[:self.opt["touch"]]):
                e.op(f"s_mul_i32 {s(S_T1)}, {s(S_T0)}, {n * 128}")
                e.op(f"v_min_u32 {T0}, {n - 1}, {L}")
                e.op(f"v_lshlrev_b32 {T0}, 7, {T0}")
                e.op(f"buffer_load_dword {v(244 + k)}, {T0}, {s(srd,4)}, {s(S_T1)} offen")
        e.op(f"s_cmp_ge_u32 {s(S_I)}, 30")
        e.op("s_cbranch_scc1 L_retile")

    def dma_x(self, st):
        e = self.e
        def mk(n):
            def f():
                if n == 0:
                    e.op(f"s_add_u32 m0, {s(S_XM0)}, {(st % NX) * 4096}")
                    e.op(f"s_add_u32 {s(S_T4)}, {s(S_XOFF)}, {st * 128}")
                e.op(f"buffer_load_dwordx4 {v(V_XD+n)}, {s(S_X,4)}, {s(S_T4)} offen offset:{n*1024} lds", tag=("d", st))
            return f
        return [mk(n) for n in range(4)]
    def dma_w(self, st):
        e = self.e
        srd, vd, so, rs, k = (S_WA, V_WD, S_WOFF, 3840, st) if st < 10 else (S_WB, V_WD2, S_W2OFF, 3456, st - 10)
        def mk(n):
            def f():
                if n == 0:
                    e.op(f"s_add_u32 m0, {s(S_WM0)}, {L_W + (st % NW) * 16384}")
                    e.op(f"s_add_u32 {s(S_T4)}, {s(so)}, {k * 64 * rs}")
                e.op(f"buffer_load_dwordx4 {v(vd+n)}, {s(srd,4)}, {s(S_T4)} offen offset:{n*1024} lds", tag=("d", st))
            return f
        return [mk(n) for n in range(4)]

    def stage1_setup(self):
        e = self.e
        for st in range(NW):
            for f in self.dma_x(st) + self.dma_w(st): f()
        L = v(V_LANE); T0, T1, T2, T3 = v(V_T0), v(V_T1), v(V_T2), v(V_T3)
        sk = self.L("nononce")
        e.op(f"s_or_b32 {s(S_T0)}, s2, {s(S_WAVE)}")
        e.op(f"s_cmp_lg_u32 {s(S_T0)}, 0")
        e.op(f"s_cbranch_scc1 {sk}")
        snap = e.snapshot()
        e.op(f"s_memrealtime {s(S_NONCE,2)}")
        e.op(f"v_mov_b32 {T0}, 0")
        e.op("s_waitcnt lgkmcnt(0)")
        e.op(f"s_or_b32 {s(S_NONCE)}, {s(S_NONCE)}, 1")
        e.op(f"v_mov_b32 {v(V_NONCE)}, {s(S_NONCE)}")
        e.op(f"v_mov_b32 {v(V_NONCE+1)}, {s(S_NONCE+1)}")
        e.op("s_mov_b64 exec, 1")
        e.op(f"buffer_store_dwordx2 {v(V_NONCE,2)}, {T0}, {s(S_DBG,4)}, 0 offen sc1")
        e.op("s_mov_b64 exec, -1")
        e.restore(snap)
        e.label(sk)
        e.op(f"v_and_b32 {T0}, 31, {L}")
        e.op(f"v_bfe_u32 {T1}, {L}, 1, 3")
        e.op(f"v_lshrrev_b32 {T2}, 5, {L}")
        e.op(f"v_xor_b32 {T1}, {T1}, {T2}")
        e.op(f"v_lshlrev_b32 {T1}, 4, {T1}")
        e.op(f"v_lshl_add_u32 {T1}, {T0}, 7, {T1}")
        for ks in range(4):
            e.op(f"v_xor_b32 {T3}, {ks * 32}, {T1}")
            e.op(f"v_add_u32 {v(V_XR+ks)}, {s(S_XM0)}, {T3}")
        e.op(f"v_bfe_u32 {T0}, {L}, 2, 2")
        e.op(f"v_lshl_add_u32 {T1}, {T2}, 3, {T0}")
        e.op(f"v_lshlrev_b32 {T1}, 8, {T1}")
        e.op(f"v_lshl_add_u32 {T1}, {T0}, 6, {T1}")
        e.op(f"v_bfe_u32 {T3}, {L}, 4, 1")
        e.op(f"v_lshl_add_u32 {T1}, {T3}, 5, {T1}")
        e.op(f"v_and_b32 {T3}, 3, {L}")
        e.op(f"v_lshl_add_u32 {T1}, {T3}, 3, {T1}")
        for j in range(4):
            e.op(f"v_xor_b32 {v(V_WR+j)}, {j * 64}, {T1}")
            e.op(f"v_add_u32 {v(V_WR+4+j)}, 0x10000, {v(V_WR+j)}")
        e.op(f"s_lshl_b32 {s(S_T0)}, {s(S_RB)}, 2")
        e.op(f"s_add_u32 {s(S_T0)}, {s(S_T0)}, {s(S_WAVE)}")
        lv, ld = self.L("st1v"), self.L("st1d")
        e.op(f"s_cmp_ge_u32 {s(S_CG)}, 10")
        e.op(f"s_cbranch_scc1 {lv}")
        for j in range(4):
            e.op(f"v_add_u32 {v(V_ST1+j)}, {j * 131072}, {v(V_L16)}")
        e.op(f"s_lshl_b32 {s(S_ST1)}, {s(S_CG)}, 19")
        e.op(f"s_lshl_b32 {s(S_T1)}, {s(S_T0)}, 10")
        e.op(f"s_add_u32 {s(S_ST1)}, {s(S_ST1)}, {s(S_T1)}")
        e.op(f"s_add_u32 {s(S_T5)}, {s(S_ST1)}, {WS_QK + 65536}")
        e.op(f"s_add_u32 {s(S_ST1)}, {s(S_ST1)}, {WS_QK}")
        e.op(f"s_branch {ld}")
        e.label(lv)
        e.op(f"s_sub_u32 {s(S_T1)}, {s(S_CG)}, 10")
        e.op(f"s_lshl_b32 {s(S_T1)}, {s(S_T1)}, 7")
        e.op(f"v_and_b32 {T0}, 31, {L}")
        e.op(f"v_add_u32 {T0}, {s(S_T1)}, {T0}")
        e.op(f"v_mul_u32_u24 {T2}, 640, {T2}")
        e.op(f"s_mov_b32 {s(S_T2)}, {64 * 2560 - 640}")
        for j in range(4):
            e.op(f"v_add_u32 {T1}, {32 * j}, {T0}")
            e.op(f"v_mul_u32_u24 {T3}, 1639, {T1}")
            e.op(f"v_lshrrev_b32 {T3}, 16, {T3}")
            e.op(f"v_lshl_add_u32 {T1}, {T1}, 4, {T2}")
            e.op(f"v_mad_u32_u24 {v(V_ST1+j)}, {T3}, {s(S_T2)}, {T1}")
        e.op(f"s_mul_i32 {s(S_ST1)}, {s(S_T0)}, 2560")
        e.op(f"s_add_u32 {s(S_T5)}, {s(S_ST1)}, {WS_VT + 1280}")
        e.op(f"s_add_u32 {s(S_ST1)}, {s(S_ST1)}, {WS_VT}")
        e.label(ld)
        e.op(f"s_cmp_lt_u32 {s(S_CG)}, 5")
        e.op(f"s_cselect_b32 {s(S_SCALE)}, {f32(QSCALE)}, 1.0")
        e.op(f"s_mov_b32 {s(S_SCALE+1)}, {s(S_SCALE)}")
        e.op(f"s_mul_i32 {s(S_ST2)}, {s(S_T0)}, 110592")
        e.op(f"s_lshl_b32 {s(S_T1)}, {s(S_CG)}, 13")
        e.op(f"s_add_u32 {s(S_ST2)}, {s(S_ST2)}, {s(S_T1)}")
        e.op(f"s_add_u32 {s(S_ST2)}, {s(S_ST2)}, {WS_H}")
        e.op(f"s_add_u32 {s(S_ST2B)}, {s(S_ST2)}, 4096")
        e.op(f"s_cmp_lt_u32 {s(S_CG)}, 13")
        e.op(f"s_cselect_b32 {s(S_ST2B)}, {s(S_ST2B)}, {OOB}")

    def w_read(self, st, f, u):
        ks, j = f >> 2, f & 3
        slot = st % NW
        off = L_W + slot * 16384 + ks * 4096 + u * 1024
        ad = V_WR + j
        if off >= 65536: off -= 65536; ad += 4
        m = 16 * st + f
        self.e.op(f"ds_read_b64_tr_b16 {v(V_FR + 4 * (m % 8) + 2 * u, 2)}, {v(ad)} offset:{off}", tag=("w", m))
    def x_read(self, st, ks):
        self.e.op(f"ds_read_b128 {r(A_X + 16 * st + 4 * ks, 4)}, {v(V_XR + ks)} offset:{(st % NX) * 4096}", tag=("x", st, ks))

    def stage1_fill(self):
        e = self.e
        fill = {m: [] for m in range(-1, 320)}
        def at(m, f): fill[max(m, -1)].append(f)
        for st in range(20):
            b = 16 * st - 4
            def bar(st=st):
                e.wait(vm=("d", st), lg="all")
                if not (self.opt.get("nobar") and st > 0): e.op("s_barrier")
            at(b, bar)
            if st < 10:
                for ks in range(4): at(b + 3 * ks, lambda st=st, ks=ks: self.x_read(st, ks))
            for rho in range(32):
                if self.opt.get("noread") and (rho % self.opt["noread"]): continue
                at(b + rho * 13 // 32, lambda st=st, rho=rho: self.w_read(st, rho >> 1, rho & 1))
            if st >= 1 and st + 4 < 20 and not self.opt.get("nodma"):
                d = (self.dma_x(st + 4) if st + 4 < 10 else []) + self.dma_w(st + 4)
                for i, f in enumerate(d): at(b + 1 + i * (2 if len(d) == 8 else 3) - (1 if i == 7 else 0), f)
        return fill

    def p1_epilogue_ops(self):
        e = self.e
        ops = []
        for j in range(4):
            A = ACC[0] + 16 * j
            for h in range(2):
                for q in range(4):
                    ops.append(lambda A=A, h=h, q=q: e.op(f"v_pk_mul_f32 {v(A+8*h+2*q,2)}, {v(A+8*h+2*q,2)}, {s(S_SCALE,2)}"))
                for q in range(4):
                    ops.append(lambda A=A, h=h, q=q, j=j: e.op(f"v_cvt_pk_bf16_f32 {v(V_PK+8*j+4*h+q)}, {v(A+8*h+2*q)}, {v(A+8*h+2*q+1)}"))
                ops.append(lambda h=h, j=j: e.op(f"buffer_store_dwordx4 {v(V_PK+8*j+4*h,4)}, {v(V_ST1+j)}, {s(S_WS,4)}, {s(S_T5 if h else S_ST1)} offen sc1", tag="st1"))
        return ops
    def p2_epilogue_ops(self):
        e = self.e
        ops = []
        for j in range(4):
            A = ACC[1] + 16 * j
            for h in range(2):
                for q in range(4):
                    ops.append(lambda A=A, h=h, q=q, j=j: e.op(f"v_cvt_pk_bf16_f32 {v(V_PK+8*j+4*h+q)}, {v(A+8*h+2*q)}, {v(A+8*h+2*q+1)}"))
                for q in range(4):
                    ops.append(lambda h=h, q=q, j=j: e.op(f"v_pk_max_i16 {v(V_PK+8*j+4*h+q)}, {v(V_PK+8*j+4*h+q)}, 0"))
                ops.append(lambda h=h, j=j: e.op(f"buffer_store_dwordx4 {v(V_PK+8*j+4*h,4)}, {v(V_L16)}, {s(S_WS,4)}, {s(S_ST2B if j >= 2 else S_ST2)} offen offset:{(j & 1) * 2048 + h * 1024} sc1", tag="st2"))
        return ops

    def stage1_stream(self, fill, m0, m1, swap):
        e = self.e
        for m in range(m0, m1):
            st, f = divmod(m, 16)
            ks, j = f >> 2, f & 3
            e.wait(lg=[("w", m), ("x", st, ks)])
            acc = v(ACC[st // 10] + 16 * j, 16)
            wf = v(V_FR + 4 * (m % 8), 4)
            xf = r(A_X + 16 * (st % 10) + 4 * ks, 4)
            c = "0" if (st % 10 == 0 and ks == 0) else acc
            if swap: e.op(f"v_mfma_f32_32x32x16_bf16 {acc}, {xf}, {wf}, {c}")
            else: e.op(f"v_mfma_f32_32x32x16_bf16 {acc}, {wf}, {xf}, {c}")
            for fn in fill[m]: fn()

    def flag_off(self, dst, base, tb, col):
        e = self.e
        e.op(f"s_lshl_b32 {s(dst)}, {s(tb)}, 4")
        e.op(f"s_add_u32 {s(dst)}, {s(dst)}, {s(col)}")
        e.op(f"s_lshl_b32 {s(dst)}, {s(dst)}, 7")
        e.op(f"s_add_u32 {s(dst)}, {s(dst)}, {base}")

    def stage1(self):
        e = self.e
        self.stage1_setup()
        fill = self.stage1_fill()
        epi = self.p1_epilogue_ops()
        for i, f in enumerate(epi): fill[319 if self.opt.get("lateepi") else 161 + i // 3].append(f)
        for fn in fill[-1]: fn()
        self.stamp(1)
        e.op(f"s_cmp_ge_u32 {s(S_CG)}, 10")
        e.op("s_cbranch_scc1 L_p1v")
        snap = e.snapshot()
        self.stage1_stream(fill, 0, 160, False)
        e.op("s_branch L_p2")
        after = e.snapshot()
        e.restore(snap)
        e.label("L_p1v")
        self.stage1_stream(fill, 0, 160, True)
        e.op(f"s_cmp_eq_u32 {s(S_CG)}, 14")
        e.op("s_cbranch_scc1 L_gate")
        self.gate_snap = e.snapshot()
        assert after[0] == e.vm and after[1] == e.lg
        e.label("L_p2")
        self.stamp(2)
        self.stage1_stream(fill, 160, 320, False)
        self.stamp(3)
        self.get_nonce()
        e.op(f"s_lshl_b32 {s(S_T0)}, {s(S_RB)}, 2")
        e.op(f"s_add_u32 {s(S_T0)}, {s(S_T0)}, {s(S_WAVE)}")
        self.flag_off(S_T1, FL_A, S_T0, S_CG)
        self.publish(S_T1)
        for f in self.p2_epilogue_ops(): f()
        self.flag_off(S_T1, FL_C, S_T0, S_CG)
        e.wait(vm="all")
        self.publish(S_T1)

    def gate(self):
        e = self.e
        e.restore(self.gate_snap)
        e.label("L_gate")
        e.wait(vm="all", lg="all")
        for f in self.p1_epilogue_ops(): f()
        self.get_nonce()
        e.op(f"s_lshl_b32 {s(S_T0)}, {s(S_RB)}, 2")
        e.op(f"s_add_u32 {s(S_T0)}, {s(S_T0)}, {s(S_WAVE)}")
        self.flag_off(S_T1, FL_A, S_T0, S_CG)
        self.publish(S_T1)
        e.op(f"v_lshrrev_b32 {v(V_T1)}, 5, {v(V_LANE)}")
        e.op(f"v_lshlrev_b32 {v(V_T1)}, 4, {v(V_T1)}")
        G = 64
        for k in range(40):
            e.op(f"buffer_load_dwordx4 {v(G + 4 * k, 4)}, {v(V_T1)}, {s(S_MISC,4)}, 0 offen offset:{32 * k}", tag=("g", k))
        for k in range(40):
            e.wait(vm=("g", k))
            e.op(f"v_mfma_f32_32x32x16_bf16 {v(32,16)}, {v(G + 4 * k, 4)}, {r(A_X + 4 * k, 4)}, {'0' if k == 0 else v(32,16)}")
        e.op(f"v_mul_f32 {v(V_T1)}, {f32(-math.log2(math.e))}, v32")
        e.op(f"v_exp_f32 {v(V_T1)}, {v(V_T1)}")
        e.op(f"v_add_f32 {v(V_T1)}, 1.0, {v(V_T1)}")
        e.op(f"v_rcp_f32 {v(V_T1)}, {v(V_T1)}")
        e.op(f"v_and_b32 {v(V_T2)}, 31, {v(V_LANE)}")
        e.op(f"v_lshlrev_b32 {v(V_T2)}, 2, {v(V_T2)}")
        e.op(f"s_lshl_b32 {s(S_T1)}, {s(S_T0)}, 7")
        e.op(f"s_add_u32 {s(S_T1)}, {s(S_T1)}, {WS_G}")
        e.op("s_mov_b32 exec_hi, 0")
        e.op(f"buffer_store_dword {v(V_T1)}, {v(V_T2)}, {s(S_WS,4)}, {s(S_T1)} offen sc1")
        e.op("s_mov_b64 exec, -1")
        self.flag_off(S_T1, FL_C, S_T0, S_CG)
        e.wait(vm="all")
        self.publish(S_T1)
        e.wait(vm="all", lg="all")
        e.op("s_branch L_att")

    def retile(self):
        e = self.e
        e.vm, e.lg, e.hist = [], [], []
        e.label("L_retile")
        L = v(V_LANE); T0, T1, T2, T3 = v(V_T0), v(V_T1), v(V_T2), v(V_T3)
        e.op(f"s_getpc_b64 {s(S_MASK,2)}")
        e.label("L_pc")
        e.op(f"s_sub_u32 {s(S_MASK)}, {s(S_MASK)}, L_pc-{NAME}_kernel")
        e.op(f"s_subb_u32 {s(S_MASK+1)}, {s(S_MASK+1)}, 0")
        e.op(f"s_lshl_b32 {s(S_T0)}, {s(S_WAVE)}, 6")
        e.op(f"v_add_u32 {T0}, {s(S_T0)}, {L}")
        e.op(f"v_lshlrev_b32 {T0}, 7, {T0}")
        for n in range(2):
            e.op(f"v_min_u32 {T1}, L_end-{NAME}_kernel, {T0}")
            e.op(f"global_load_dword {v(240 + n)}, {T1}, {s(S_MASK,2)}")
            e.op(f"v_add_u32 {T0}, 32768, {T0}")
        if self.opt.get("tlb"):
            e.op(f"s_lshl_b32 {s(S_T0)}, {s(S_WAVE)}, 6")
            e.op(f"s_and_b32 {s(S_T1)}, {s(S_I)}, 1")
            e.op(f"s_lshl_b32 {s(S_T1)}, {s(S_T1)}, 8")
            e.op(f"s_add_u32 {s(S_T0)}, {s(S_T0)}, {s(S_T1)}")
            e.op(f"v_add_u32 {T0}, {s(S_T0)}, {L}")
            e.op(f"v_lshlrev_b32 {T0}, {self.opt['tlb']}, {T0}")
            e.op(f"buffer_load_dword {v(242)}, {T0}, {s(S_WS,4)}, 0 offen")
            e.op(f"buffer_load_dword {v(243)}, {T0}, {s(S_OUT,4)}, 0 offen")
        for i in range(5):
            e.op(f"v_add_u32 {T0}, {64 * i}, {L}")
            e.op(f"v_mul_u32_u24 {T1}, 820, {T0}")
            e.op(f"v_lshrrev_b32 {T1}, 16, {T1}")
            e.op(f"v_mul_u32_u24 {T2}, 80, {T1}")
            e.op(f"v_sub_u32 {T0}, {T0}, {T2}")
            e.op(f"v_lshlrev_b32 {T1}, 2, {T1}")
            e.op(f"v_xor_b32 {T0}, {T0}, {T1}")
            e.op(f"v_add_u32 {T0}, {T0}, {T2}")
            e.op(f"v_lshlrev_b32 {v(i)}, 4, {T0}")
        VB, VC, VR4, VC2 = 8, 9, 10, 11
        e.op(f"v_bfe_u32 {T0}, {L}, 2, 2")
        e.op(f"v_lshlrev_b32 {v(VR4)}, 2, {T0}")
        e.op(f"v_mul_u32_u24 {T0}, 1280, {T0}")
        e.op(f"v_lshrrev_b32 {T1}, 4, {L}")
        e.op(f"v_mul_u32_u24 {T1}, 10240, {T1}")
        e.op(f"s_mul_i32 {s(S_XM0)}, {s(S_WAVE)}, 40960")
        e.op(f"v_add3_u32 {v(VB)}, {T0}, {T1}, {s(S_XM0)}")
        e.op(f"v_and_b32 {v(VC)}, 3, {L}")
        e.op(f"v_bfe_u32 {v(VC2)}, {L}, 1, 1")
        e.op(f"v_and_b32 {T0}, 1, {L}")
        e.op(f"v_lshl_add_u32 {v(12)}, {T0}, 3, {v(VB)}")
        e.op(f"v_add_u32 {v(13)}, 4096, {v(V_L16)}")
        S_KS = S_XOFF
        e.op(f"s_lshl_b32 {s(S_T0)}, {s(S_XCD)}, 1")
        e.op(f"s_add_u32 {s(S_T0)}, {s(S_T0)}, {s(S_I)}")
        e.op(f"s_sub_u32 {s(S_WOFF)}, {s(S_T0)}, 30")
        e.op(f"s_lshl_b32 {s(S_KS)}, {s(S_WOFF)}, 2")
        e.op(f"s_add_u32 {s(S_KS)}, {s(S_KS)}, {s(S_WAVE)}")
        e.label("L_rt_unit")
        SA, SB, SC, SR0 = S_T0, S_T1, S_T2, S_T3
        lo, lr, lg = self.L("rt_o"), self.L("rt_r"), self.L("rt_go")
        e.op(f"s_cmp_ge_u32 {s(S_KS)}, 54")
        e.op(f"s_cbranch_scc1 {lo}")
        self.srd(S_MISC, S_PTR + 10, 1728 * 1280)
        e.op(f"s_lshl_b32 {s(SR0)}, {s(S_KS)}, 5")
        e.op(f"s_mov_b32 {s(SA)}, {16 * 1280}")
        e.op(f"s_mov_b32 {s(SB)}, {4 * 1280}")
        e.op(f"s_mov_b32 {s(SC)}, {8 * 1280}")
        e.op(f"s_branch {lg}")
        e.label(lo)
        self.srd(S_MISC, S_PTR + 4, 640 * 1280)
        e.op(f"s_sub_u32 {s(S_T4)}, {s(S_KS)}, 54")
        e.op(f"s_mul_i32 {s(S_T5)}, {s(S_T4)}, 52")
        e.op(f"s_lshr_b32 {s(S_T5)}, {s(S_T5)}, 8")
        e.op(f"s_mul_i32 {s(SR0)}, {s(S_T5)}, 5")
        e.op(f"s_sub_u32 {s(S_T4)}, {s(S_T4)}, {s(SR0)}")
        e.op(f"s_mul_i32 {s(SR0)}, {s(S_T5)}, 160")
        e.op(f"s_cmp_eq_u32 {s(S_T4)}, 4")
        e.op(f"s_cbranch_scc1 {lr}")
        e.op(f"s_mul_i32 {s(S_T4)}, {s(S_T4)}, 40")
        e.op(f"s_add_u32 {s(SR0)}, {s(SR0)}, {s(S_T4)}")
        e.op(f"s_mov_b32 {s(SA)}, {20 * 1280}")
        e.op(f"s_mov_b32 {s(SB)}, {4 * 1280}")
        e.op(f"s_mov_b32 {s(SC)}, {8 * 1280}")
        e.op(f"s_branch {lg}")
        e.label(lr)
        e.op(f"s_add_u32 {s(SR0)}, {s(SR0)}, 16")
        e.op(f"s_mov_b32 {s(SA)}, {80 * 1280}")
        e.op(f"s_mov_b32 {s(SB)}, {40 * 1280}")
        e.op(f"s_mov_b32 {s(SC)}, {20 * 1280}")
        e.label(lg)
        e.op(f"s_mul_i32 {s(SR0)}, {s(SR0)}, 1280")
        for q in range(8):
            kg, u = q >> 1, q & 1
            e.op(f"s_mov_b32 {s(S_T4)}, {s(SR0)}")
            if kg >> 1: e.op(f"s_add_u32 {s(S_T4)}, {s(S_T4)}, {s(SA)}")
            if kg & 1: e.op(f"s_add_u32 {s(S_T4)}, {s(S_T4)}, {s(SB)}")
            if u: e.op(f"s_add_u32 {s(S_T4)}, {s(S_T4)}, {s(SC)}")
            for i in range(5):
                e.op(f"s_add_u32 m0, {s(S_XM0)}, {q * 5120 + i * 1024}")
                e.op(f"buffer_load_dwordx4 {v(i)}, {s(S_MISC,4)}, {s(S_T4)} offen lds")
        e.op(f"s_mul_i32 {s(S_T4)}, {s(S_KS)}, 5120")
        e.op(f"s_add_u32 {s(S_T4)}, {s(S_T4)}, {WS_WT}")
        e.wait(vm="all")
        D = 64
        for ng in range(8):
            for jj in range(3):
                if jj < 2:
                    e.op(f"v_add_u32 {T0}, {10 * ng + 4 * jj}, {v(VC)}")
                    base = VB
                else:
                    e.op(f"v_add_u32 {T0}, {10 * ng + 8}, {v(VC2)}")
                    base = 12
                e.op(f"v_xor_b32 {T0}, {T0}, {v(VR4)}")
                e.op(f"v_lshl_add_u32 {T0}, {T0}, 4, {v(base)}")
                for j1 in range(2 if jj < 2 else 1):
                    j = 2 * jj + j1
                    for u in range(2):
                        e.op(f"ds_read_b64_tr_b16 {v(D + 20 * ng + 4 * j + 2 * u, 2)}, {T0} offset:{u * 5120 + j1 * 8}", tag=("t", ng))
            e.wait(lg="all")
            for j in range(5):
                ad, off = (V_L16, j * 1024) if j < 4 else (13, 0)
                e.op(f"buffer_store_dwordx4 {v(D + 20 * ng + 4 * j, 4)}, {v(ad)}, {s(S_WS,4)}, {s(S_T4)} offen offset:{off} sc1")
            e.op(f"s_add_u32 {s(S_T4)}, {s(S_T4)}, {74 * 5120}")
        self.get_nonce()
        e.op(f"s_lshl_b32 {s(S_T1)}, {s(S_KS)}, 7")
        e.op(f"s_add_u32 {s(S_T1)}, {s(S_T1)}, {FL_D}")
        self.publish(S_T1)
        e.wait(vm="all", lg="all")
        e.op(f"s_cmp_ge_u32 {s(S_KS)}, 64")
        e.op("s_cbranch_scc1 L_att")
        e.op(f"s_cmp_lg_u32 {s(S_WAVE)}, 0")
        e.op("s_cbranch_scc1 L_att")
        e.op(f"s_cmp_ge_u32 {s(S_WOFF)}, 10")
        e.op("s_cbranch_scc1 L_att")
        e.op(f"s_add_u32 {s(S_KS)}, {s(S_WOFF)}, 64")
        e.op("s_branch L_rt_unit")

    def attention(self):
        e = self.e
        e.wait(vm="all", lg="all")
        e.label("L_att", reset=True)
        e.op("s_nop 7")
        e.op("s_barrier")
        L = v(V_LANE); T0, T1, T2, T3 = v(V_T0), v(V_T1), v(V_T2), v(V_T3)
        S_F0, S_TQ, S_TB0 = S_XOFF, S_WOFF, S_W2OFF
        e.op(f"s_mul_i32 {s(S_F0)}, {s(S_P)}, 10")
        e.op(f"s_lshr_b32 {s(S_F0)}, {s(S_F0)}, 2")
        e.op(f"s_lshl_b32 {s(S_TQ)}, {s(S_RBA)}, 2")
        e.op(f"s_mul_i32 {s(S_T0)}, {s(S_WAVE)}, 3")
        e.op(f"s_add_u32 {s(S_TB0)}, {s(S_TQ)}, {s(S_T0)}")
        e.op(f"s_sub_u32 {s(S_TB0)}, {s(S_TB0)}, 8")
        e.op(f"s_add_u32 {s(S_TQ)}, {s(S_TQ)}, {s(S_WAVE)}")
        e.op(f"v_and_b32 {T0}, 1, {L}")
        e.op(f"v_lshl_add_u32 {T1}, {T0}, 1, {s(S_F0)}")
        e.op(f"v_lshrrev_b32 {T1}, 3, {T1}")
        e.op(f"s_mul_i32 {s(S_T0)}, {s(S_P)}, 40")
        e.op(f"v_mul_u32_u24 {T0}, 39, {T0}")
        e.op(f"v_add_u32 {T0}, {s(S_T0)}, {T0}")
        e.op(f"v_lshrrev_b32 {T0}, 7, {T0}")
        e.op(f"v_add_u32 {T0}, 10, {T0}")
        e.op(f"v_bfe_u32 {T2}, {L}, 1, 3")
        e.op(f"v_add_u32 v0, 5, {T1}")
        e.op(f"v_cmp_lt_u32 vcc, 2, {T2}")
        e.op(f"v_cndmask_b32 v0, v0, {T0}, vcc")
        e.op(f"v_subrev_u32 v1, 3, {T2}")
        e.op(f"v_cndmask_b32 v1, {T2}, v1, vcc")
        e.op(f"v_add_u32 v1, {s(S_TB0)}, v1")
        e.op(f"v_max_i32 v1, 0, v1")
        e.op(f"v_cmp_lt_u32 vcc, 5, {T2}")
        e.op(f"v_cndmask_b32 v0, v0, {T1}, vcc")
        e.op(f"v_mov_b32 v2, {s(S_TQ)}")
        e.op(f"v_cndmask_b32 v1, v1, v2, vcc")
        e.op(f"v_lshl_add_u32 v1, v1, 4, v0")
        e.op(f"v_lshlrev_b32 v1, 7, v1")
        e.op(f"v_add_u32 v1, {FL_A}, v1")
        self.poll(1)
        self.stamp(4)
        VQ = 0
        e.op(f"s_lshl_b32 {s(S_T0)}, {s(S_F0)}, 16")
        e.op(f"s_lshl_b32 {s(S_T1)}, {s(S_TQ)}, 10")
        e.op(f"s_add_u32 {s(S_T1)}, {s(S_T1)}, {s(S_T0)}")
        for f in range(3):
            e.op(f"s_add_u32 {s(S_T2)}, {s(S_T1)}, {WS_QK + f * 65536}")
            e.op(f"buffer_load_dwordx4 {v(VQ + 4 * f, 4)}, {v(V_L16)}, {s(S_WS,4)}, {s(S_T2)} offen sc1", tag="q")
        e.op(f"s_mul_i32 {s(S_T3)}, {s(S_P)}, {64 * 2560}")
        e.op(f"s_mul_i32 {s(S_XM0)}, {s(S_WAVE)}, 3072")
        e.op(f"s_mul_i32 {s(S_WM0)}, {s(S_WAVE)}, 7680")
        for i in range(3):
            e.op(f"s_add_i32 {s(S_T1)}, {s(S_TB0)}, {i}")
            e.op(f"s_max_i32 {s(S_T1)}, {s(S_T1)}, 0")
            e.op(f"s_lshl_b32 {s(S_T2)}, {s(S_T1)}, 10")
            e.op(f"s_add_u32 {s(S_T2)}, {s(S_T2)}, {s(S_T0)}")
            for f in range(3):
                e.op(f"s_add_u32 m0, {s(S_XM0)}, {L_K + f * 12288 + i * 1024}")
                e.op(f"s_add_u32 {s(S_T4)}, {s(S_T2)}, {WS_QK + (40 + f) * 65536}")
                e.op(f"buffer_load_dwordx4 {v(V_L16)}, {s(S_WS,4)}, {s(S_T4)} offen sc1 lds", tag="kv")
            e.op(f"s_mul_i32 {s(S_T1)}, {s(S_T1)}, 2560")
            e.op(f"s_add_u32 {s(S_T1)}, {s(S_T1)}, {s(S_T3)}")
            e.op(f"s_add_u32 {s(S_T1)}, {s(S_T1)}, {WS_VT}")
            e.op(f"s_add_u32 m0, {s(S_WM0)}, {L_V + i * 2560}")
            for n in range(3):
                if n == 2: e.op("s_mov_b32 exec_hi, 0")
                e.op(f"buffer_load_dwordx4 {v(V_L16)}, {s(S_WS,4)}, {s(S_T1)} offen offset:{n * 1024} sc1 lds", tag="kv")
                if n == 2: e.op("s_mov_b64 exec, -1")
        CD, CE = 64, 80
        SS, OO = 96, (128, 144)
        KF, VF, PP = 160, 168, 176
        QM = 16
        VKA, VVA, VMX = 32, 33, 34
        e.op(f"v_and_b32 {T0}, 31, {L}")
        e.op(f"v_lshrrev_b32 {T1}, 5, {L}")
        e.op(f"v_lshlrev_b32 {T2}, 2, {T1}")
        e.op(f"v_sub_u32 {T2}, {T0}, {T2}")
        e.op(f"v_mov_b32 {T3}, {hex(NEGBIG)}")
        for rr in range(16):
            e.op(f"v_cmp_gt_i32 vcc, {8 * (rr >> 2) + (rr & 3)}, {T2}")
            e.op(f"v_cndmask_b32 {v(CD + rr)}, 0, {T3}, vcc")
            e.op(f"v_cndmask_b32 {v(CE + rr)}, {T3}, 0, vcc")
        e.op(f"s_lshl_b32 {s(S_T1)}, {s(S_WAVE)}, 10")
        e.op(f"s_add_u32 {s(S_T1)}, {s(S_T1)}, {L_K}")
        e.op(f"v_add_u32 {v(VKA)}, {s(S_T1)}, {v(V_L16)}")
        e.op(f"s_mul_i32 {s(S_T1)}, {s(S_WAVE)}, 2560")
        e.op(f"s_add_u32 {s(S_T1)}, {s(S_T1)}, {L_V}")
        e.op(f"v_mul_u32_u24 {T2}, 640, {T1}")
        e.op(f"v_lshl_add_u32 {T2}, {T0}, 4, {T2}")
        e.op(f"v_add_u32 {v(VVA)}, {s(S_T1)}, {T2}")
        e.op(f"s_mov_b32 {s(S_VM)}, 0xfffff")
        e.op(f"s_mov_b32 {s(S_VM+1)}, 0xfffff")
        for i in range(8): e.op(f"v_mov_b32 {v(VF + i)}, 0x3f803f80")
        e.op(f"s_and_b32 {s(S_T1)}, {s(S_P)}, 1")
        e.op(f"s_lshl_b32 {s(S_T1)}, {s(S_T1)}, 1")
        e.op(f"v_subrev_u32 {T2}, {s(S_T1)}, {T1}")
        e.wait(vm="q")
        for h in range(2):
            for ff in range(2):
                f = h + ff
                for slot in range(2):
                    e.op(f"v_add_u32 {T3}, {4 * f + 2 * slot - 5 * h}, {T2}")
                    e.op(f"v_cmp_gt_u32 vcc, 5, {T3}")
                    for d in range(2):
                        e.op(f"v_cndmask_b32 {v(QM + 8 * h + 4 * ff + 2 * slot + d)}, 0, {v(VQ + 4 * f + 2 * slot + d)}, vcc")
        e.wait(vm="all")
        e.op("s_barrier")
        def qk(h, j):
            for ff in range(2):
                e.op(f"ds_read_b128 {v(KF + 4 * ff, 4)}, {v(VKA)} offset:{(h + ff) * 12288 + j * 1024}")
            e.wait(lg="all")
            c = v(CE, 16) if j == 0 else v(CD, 16) if j == 8 else "0"
            e.op(f"v_mfma_f32_32x32x16_bf16 {v(SS,16)}, {v(KF,4)}, {v(QM + 8 * h, 4)}, {c}")
            e.op(f"v_mfma_f32_32x32x16_bf16 {v(SS,16)}, {v(KF+4,4)}, {v(QM + 8 * h + 4, 4)}, {v(SS,16)}")
        for h in range(2):
            O = OO[h]
            e.op(f"v_mov_b32 {v(VMX)}, {hex(NEGBIG)}")
            for i in range(16): e.op(f"v_mov_b32 {v(O + i)}, 0")
            for j in range(9):
                sk = self.L("sk")
                if j < 8:
                    e.op(f"s_cmp_lt_u32 {s(S_TQ)}, {8 - j}")
                    e.op(f"s_cbranch_scc1 {sk}")
                qk(h, j)
                for i in range(8):
                    e.op(f"v_max3_f32 {v(VMX)}, {v(VMX)}, {v(SS + 2 * i)}, {v(SS + 2 * i + 1)}")
                e.label(sk)
            e.op(f"v_mov_b32 {T0}, {v(VMX)}")
            e.op(f"v_permlane32_swap_b32 {T0}, {v(VMX)}")
            e.op(f"s_nop 1")
            e.op(f"v_max_f32 {v(VMX)}, {T0}, {v(VMX)}")
            for j in range(9):
                sk = self.L("sk")
                if j < 8:
                    e.op(f"s_cmp_lt_u32 {s(S_TQ)}, {8 - j}")
                    e.op(f"s_cbranch_scc1 {sk}")
                e.op(f"s_mov_b64 exec, {s(S_VM,2)}")
                for ss in range(2):
                    e.op(f"ds_read_b128 {v(VF + 4 * ss, 4)}, {v(VVA)} offset:{j * 2560 + ss * 1280 + h * 320}")
                e.op("s_mov_b64 exec, -1")
                qk(h, j)
                for i in range(16): e.op(f"v_sub_f32 {v(SS + i)}, {v(SS + i)}, {v(VMX)}")
                for i in range(16): e.op(f"v_exp_f32 {v(SS + i)}, {v(SS + i)}")
                for i in range(8): e.op(f"v_cvt_pk_bf16_f32 {v(PP + i)}, {v(SS + 2 * i)}, {v(SS + 2 * i + 1)}")
                for ss in range(2):
                    e.op(f"v_mfma_f32_32x32x16_bf16 {v(O,16)}, {v(VF + 4 * ss, 4)}, {v(PP + 4 * ss, 4)}, {v(O,16)}")
                e.op("s_nop 7")
                e.label(sk)
        OP = 184
        for h in range(2):
            O = OO[h]
            e.op(f"v_rcp_f32 {T0}, {v(O + 12)}")
            for i in range(12): e.op(f"v_mul_f32 {v(O + i)}, {v(O + i)}, {T0}")
            for i in range(4): e.op(f"v_cvt_pk_bf16_f32 {v(OP + 4 * h + i)}, {v(O + 2 * i)}, {v(O + 2 * i + 1)}")
            for i in range(2): e.op(f"v_cvt_pk_bf16_f32 {v(OP + 8 + 2 * h + i)}, {v(O + 8 + 2 * i)}, {v(O + 9 + 2 * i)}")
        e.op(f"s_lshr_b32 {s(S_T0)}, {s(S_P)}, 2")
        e.op(f"s_mul_i32 {s(S_T0)}, {s(S_T0)}, {20 * 512}")
        e.op(f"s_mul_i32 {s(S_T1)}, {s(S_TQ)}, 40960")
        e.op(f"s_add_u32 {s(S_T0)}, {s(S_T0)}, {s(S_T1)}")
        e.op(f"s_add_u32 {s(S_T0)}, {s(S_T0)}, {WS_O}")
        e.op(f"s_and_b32 {s(S_T1)}, {s(S_P)}, 3")
        e.op(f"s_lshl_b32 {s(S_T2)}, {s(S_T1)}, 11")
        e.op(f"s_add_u32 {s(S_T2)}, {s(S_T2)}, {s(S_T0)}")
        e.op(f"s_lshl_b32 {s(S_T1)}, {s(S_T1)}, 9")
        e.op(f"s_add_u32 {s(S_T1)}, {s(S_T1)}, {s(S_T0)}")
        e.op(f"s_add_u32 {s(S_T1)}, {s(S_T1)}, {16 * 512}")
        for h in range(2):
            e.op(f"buffer_store_dwordx4 {v(OP + 4 * h, 4)}, {v(V_L16)}, {s(S_WS,4)}, {s(S_T2)} offen offset:{h * 1024} sc1", tag="sto")
        e.op("s_mov_b32 exec_hi, 0")
        e.op(f"buffer_store_dwordx4 {v(OP + 8, 4)}, {v(V_L16)}, {s(S_WS,4)}, {s(S_T1)} offen sc1", tag="sto")
        e.op("s_mov_b64 exec, -1")
        self.flag_off(S_T1, FL_B, S_TQ, S_P)
        e.wait(vm="all")
        self.publish(S_T1)
        self.stamp(5)

    def stage3(self):
        e = self.e
        L = v(V_LANE); T0, T1, T2, T3 = v(V_T0), v(V_T1), v(V_T2), v(V_T3)
        BA = 0
        AA = 80
        HR = 120
        WR = 256
        VH, VO, VG, VG1 = 216, 220, 224, 228
        VL4K, VFC, VFB, VRW, VRR, VOUT = 232, 233, 234, 235, 238, 239
        NH, NWR = 6, 12
        S_HO, S_WO = S_XOFF, S_WOFF
        e.op(f"v_and_b32 {T0}, 15, {L}")
        e.op(f"v_lshrrev_b32 {T1}, 4, {L}")
        e.op(f"v_lshlrev_b32 {T2}, 9, {T1}")
        e.op(f"v_lshl_add_u32 {T2}, {T0}, 4, {T2}")
        for t in range(4):
            e.op(f"s_add_u32 {s(S_T0)}, {s(S_WAVE)}, {t + 1}")
            e.op(f"s_and_b32 {s(S_T0)}, {s(S_T0)}, 3")
            e.op(f"s_lshr_b32 {s(S_T1)}, {s(S_T0)}, 1")
            e.op(f"s_lshl_b32 {s(S_T2)}, {s(S_TB64)}, 1")
            e.op(f"s_add_u32 {s(S_T1)}, {s(S_T1)}, {s(S_T2)}")
            e.op(f"s_and_b32 {s(S_T2)}, {s(S_T0)}, 1")
            e.op(f"s_lshl_b32 {s(S_T2)}, {s(S_T2)}, 8")
            e.op(f"s_mul_i32 {s(S_T3)}, {s(S_T1)}, 110592")
            e.op(f"s_add_u32 {s(S_T3)}, {s(S_T3)}, {s(S_T2)}")
            e.op(f"v_add_u32 {v(VH + t)}, {s(S_T3)}, {T2}")
            e.op(f"s_mul_i32 {s(S_T3)}, {s(S_T1)}, 40960")
            e.op(f"s_add_u32 {s(S_T3)}, {s(S_T3)}, {s(S_T2)}")
            e.op(f"v_add_u32 {v(VO + t)}, {s(S_T3)}, {T2}")
            e.op(f"s_lshl_b32 {s(S_T3)}, {s(S_TB64)}, 2")
            e.op(f"s_add_u32 {s(S_T3)}, {s(S_T3)}, {s(S_T0)}")
            e.op(f"s_lshl_b32 {s(S_T3)}, {s(S_T3)}, 6")
            e.op(f"s_add_u32 {s(S_T3)}, {s(S_T3)}, {WS_G}")
            e.op(f"v_lshl_add_u32 {v(VG1 + t)}, {T0}, 2, {s(S_T3)}")
            if t < 3:
                e.op(f"s_mul_i32 {s(S_T3)}, {s(S_T0)}, 15360")
                e.op(f"s_add_u32 {s(S_T3)}, {s(S_T3)}, {L_RED + t * 5120}")
                e.op(f"v_add_u32 {v(VRW + t)}, {s(S_T3)}, {v(V_L16)}")
        e.op(f"s_mul_i32 {s(S_T3)}, {s(S_WAVE)}, 15360")
        e.op(f"s_add_u32 {s(S_T3)}, {s(S_T3)}, {L_RED}")
        e.op(f"v_add_u32 {v(VRR)}, {s(S_T3)}, {v(V_L16)}")
        e.op(f"v_add_u32 {v(VL4K)}, 4096, {v(V_L16)}")
        e.op(f"s_lshl_b32 {s(S_T0)}, {s(S_TB64)}, 2")
        e.op(f"s_add_u32 {s(S_T0)}, {s(S_T0)}, {s(S_WAVE)}")
        e.op(f"s_mul_i32 {s(S_T0)}, {s(S_T0)}, {16 * 1280}")
        e.op(f"s_mul_i32 {s(S_T1)}, {s(S_NG)}, 160")
        e.op(f"s_add_u32 {s(S_T0)}, {s(S_T0)}, {s(S_T1)}")
        e.op(f"v_mul_u32_u24 {T3}, 1280, {T0}")
        e.op(f"v_add_u32 {T3}, {s(S_T0)}, {T3}")
        e.op(f"v_lshl_add_u32 {v(VOUT)}, {T1}, 4, {T3}")
        e.op(f"v_lshl_add_u32 {v(VOUT + 1)}, {T1}, 3, {T3}")
        e.op(f"v_min_u32 {T0}, 14, {T0}")
        e.op(f"v_and_b32 {T1}, 1, {T1}")
        e.op(f"s_lshl_b32 {s(S_T0)}, {s(S_TB64)}, 1")
        e.op(f"v_add_u32 {T1}, {s(S_T0)}, {T1}")
        e.op(f"v_lshl_add_u32 {T0}, {T1}, 4, {T0}")
        e.op(f"v_lshlrev_b32 {T0}, 7, {T0}")
        e.op(f"v_add_u32 {T0}, {FL_C}, {T0}")
        e.op(f"v_and_b32 {T2}, 31, {L}")
        e.op(f"v_min_u32 {T2}, 18, {T2}")
        e.op(f"v_lshl_add_u32 {T3}, {T2}, 2, {s(S_WAVE)}")
        e.op(f"v_min_u32 {T3}, 53, {T3}")
        e.op(f"s_mul_i32 {s(S_T1)}, {s(S_WAVE)}, 5")
        e.op(f"s_add_u32 {s(S_T1)}, {s(S_T1)}, 40")
        e.op(f"v_cmp_lt_u32 vcc, 13, {T2}")
        e.op(f"v_add_u32 {T2}, {s(S_T1)}, {T2}")
        e.op(f"v_cndmask_b32 {T2}, {T3}, {T2}, vcc")
        e.op(f"v_lshlrev_b32 {T2}, 7, {T2}")
        e.op(f"v_add_u32 {T2}, {FL_D}, {T2}")
        e.op(f"v_cmp_lt_u32 vcc, 31, {L}")
        e.op(f"v_cndmask_b32 {v(VFC)}, {T0}, {T2}, vcc")
        e.op(f"v_and_b32 {T0}, 3, {L}")
        e.op(f"s_lshl_b32 {s(S_T1)}, {s(S_WAVE)}, 2")
        e.op(f"v_add_u32 {T0}, {s(S_T1)}, {T0}")
        e.op(f"v_lshl_add_u32 {T0}, {T1}, 4, {T0}")
        e.op(f"v_lshlrev_b32 {T0}, 7, {T0}")
        e.op(f"v_add_u32 {v(VFB)}, {FL_B}, {T0}")
        e.op(f"s_lshl_b32 {s(S_HO)}, {s(S_WAVE)}, 11")
        e.op(f"s_add_u32 {s(S_HO)}, {s(S_HO)}, {WS_H}")
        e.op(f"s_mul_i32 {s(S_WO)}, {s(S_NG)}, 74")
        e.op(f"s_add_u32 {s(S_T0)}, {s(S_WO)}, {s(S_WAVE)}")
        e.op(f"s_mul_i32 {s(S_T1)}, {s(S_WAVE)}, 5")
        e.op(f"s_add_u32 {s(S_T1)}, {s(S_T1)}, {s(S_WO)}")
        e.op(f"s_mul_i32 {s(S_WO)}, {s(S_T0)}, 5120")
        e.op(f"s_add_u32 {s(S_WO)}, {s(S_WO)}, {WS_WT}")
        S_WO2, S_OO = S_W2OFF, S_XM0
        e.op(f"s_mul_i32 {s(S_WO2)}, {s(S_T1)}, 5120")
        e.op(f"s_add_u32 {s(S_WO2)}, {s(S_WO2)}, {WS_WT + 54 * 5120}")
        e.op(f"s_mul_i32 {s(S_OO)}, {s(S_WAVE)}, {5 * 2048}")
        e.op(f"s_add_u32 {s(S_OO)}, {s(S_OO)}, {WS_O}")
        self.poll(VFC)
        self.stamp(6)
        for t in range(4):
            e.op(f"buffer_load_dword {v(VG + t)}, {v(VG1 + t)}, {s(S_WS,4)}, 0 offen sc1", tag="g")
        def w_loads(n):
            def mk(j):
                def f():
                    if j == 0:
                        if n < 14: e.op(f"s_add_u32 {s(S_T4)}, {s(S_WO)}, {n * 4 * 5120}")
                        else: e.op(f"s_add_u32 {s(S_T4)}, {s(S_WO2)}, {(n - 14) * 5120}")
                        if n == 13:
                            e.op(f"s_cmp_lt_u32 {s(S_WAVE)}, 2")
                            e.op(f"s_cselect_b32 {s(S_T4)}, {s(S_T4)}, {OOB}")
                    ad, off = (V_L16, j * 1024) if j < 4 else (VL4K, 0)
                    e.op(f"buffer_load_dwordx4 {r(WR + 20 * (n % NWR) + 4 * j, 4)}, {v(ad)}, {s(S_WS,4)}, {s(S_T4)} offen offset:{off} sc1", tag=("w", n, j))
                return f
            return [mk(j) for j in range(5)]
        def h_loads(n):
            def mk(t):
                def f():
                    if t == 0:
                        if n < 14: e.op(f"s_add_u32 {s(S_T5)}, {s(S_HO)}, {n * 8192}")
                        else: e.op(f"s_add_u32 {s(S_T5)}, {s(S_OO)}, {(n - 14) * 2048}")
                        if n == 13:
                            e.op(f"s_cmp_lt_u32 {s(S_WAVE)}, 2")
                            e.op(f"s_cselect_b32 {s(S_T5)}, {s(S_T5)}, {OOB}")
                    e.op(f"buffer_load_dwordx4 {v(HR + 16 * (n % NH) + 4 * t, 4)}, {v((VH if n < 14 else VO) + t)}, {s(S_WS,4)}, {s(S_T5)} offen sc1", tag=("h", n, t))
                return f
            return [mk(t) for t in range(4)]
        for n in range(NH):
            for f in w_loads(n) + h_loads(n): f()
        for n in range(14):
            nxt = []
            if n >= 1 and n - 1 + NH < 19:
                k = n - 1 + NH
                if k == 14: self.poll(VFB)
                nxt = w_loads(k) + h_loads(k)
            i = 0
            for t in range(4):
                for j in range(5):
                    e.wait(vm=[("w", n, j), ("h", n, t)])
                    acc = v(BA + 20 * t + 4 * j, 4)
                    e.op(f"v_mfma_f32_16x16x32_bf16 {acc}, {r(WR + 20 * (n % NWR) + 4 * j, 4)}, {v(HR + 16 * (n % NH) + 4 * t, 4)}, {'0' if n == 0 else acc}")
                    if i % 2 == 0 and nxt: nxt.pop(0)()
                    i += 1
        self.stamp(7)
        for t in range(4): e.op(f"v_sub_f32 {v(VG1 + t)}, 1.0, {v(VG + t)}")
        def combine(t):
            ops = []
            A = AA + 20 * (t & 1)
            for i in range(20):
                ops.append(lambda i=i: e.op(f"v_mul_f32 {v(BA + 20 * t + i)}, {v(BA + 20 * t + i)}, {v(VG1 + t)}"))
            pre = ops; ops = []
            for j in range(5):
                for i in range(4):
                    ops.append(lambda k=4 * j + i: e.op(f"v_fmac_f32 {v(BA + 20 * t + k)}, {v(A + k)}, {v(VG + t)}"))
                if t < 3:
                    ops.append(lambda j=j: e.op(f"ds_write_b128 {v(VRW + t)}, {v(BA + 20 * t + 4 * j, 4)} offset:{j * 1024}", tag="red"))
            return pre, ops
        post = []
        for t in range(4):
            pre, mine = combine(t)
            q = post + pre
            i = 0
            for n in range(14, 19):
                for j in range(5):
                    e.wait(vm=[("w", n, j), ("h", n, t)])
                    acc = v(AA + 20 * (t & 1) + 4 * j, 4)
                    e.op(f"v_mfma_f32_16x16x32_bf16 {acc}, {r(WR + 20 * (n % NWR) + 4 * j, 4)}, {v(HR + 16 * (n % NH) + 4 * t, 4)}, {'0' if n == 14 else acc}")
                    if i >= 2:
                        for _ in range(2):
                            if q: q.pop(0)()
                    i += 1
            while q: q.pop(0)()
            post = mine
        e.wait(lg="all")
        e.op("s_barrier")
        RD = HR
        for sl in range(3):
            for j in range(5):
                e.op(f"ds_read_b128 {v(RD + 20 * sl + 4 * j, 4)}, {v(VRR)} offset:{sl * 5120 + j * 1024}", tag=("rd", sl))
        for f in post: f()
        F = BA + 60
        for sl in range(3):
            e.wait(lg=("rd", sl))
            for i in range(10):
                e.op(f"v_pk_add_f32 {v(F + 2 * i, 2)}, {v(F + 2 * i, 2)}, {v(RD + 20 * sl + 2 * i, 2)}")
        for i in range(10):
            e.op(f"v_cvt_pk_bf16_f32 {v(AA + i)}, {v(F + 2 * i)}, {v(F + 2 * i + 1)}")
        e.op(f"buffer_store_dwordx4 {v(AA,4)}, {v(VOUT)}, {s(S_OUT,4)}, 0 offen")
        e.op(f"buffer_store_dwordx4 {v(AA+4,4)}, {v(VOUT)}, {s(S_OUT,4)}, 0 offen offset:64")
        e.op(f"buffer_store_dwordx2 {v(AA+8,2)}, {v(VOUT+1)}, {s(S_OUT,4)}, 0 offen offset:128")

    def finish(self):
        e = self.e
        if self.stamps:
            e.wait(vm="all")
            e.op(f"{'s_memtime' if self.opt.get('cyc') else 's_memrealtime'} {s(S_MASK,2)}")
            e.op(f"s_memtime {s(S_VM,2)}")
            e.wait(lg="all")
            e.op(f"s_sub_u32 {s(S_VM)}, {s(S_VM)}, s41")
            e.op(f"s_lshl_b32 {s(S_T0)}, s2, 2")
            e.op(f"s_add_u32 {s(S_T0)}, {s(S_T0)}, {s(S_WAVE)}")
            e.op(f"s_lshl_b32 {s(S_T0)}, {s(S_T0)}, 7")
            e.op(f"s_add_u32 {s(S_T0)}, {s(S_T0)}, {WS_ST}")
            e.op(f"v_mov_b32 {v(V_T0)}, 0")
            for i in range(10):
                src = S_STAMP + 2 * i if i < 8 else S_MASK if i == 8 else S_VM
                e.op(f"v_mov_b32 {v(i)}, {s(src)}")
                e.op(f"buffer_store_dword {v(i)}, {v(V_T0)}, {s(S_WS,4)}, {s(S_T0)} offen offset:{4 * i}")
        e.op("s_endpgm")

    def build(self):
        e = self.e
        self.prologue()
        self.stage1()
        self.attention()
        self.stage3()
        self.finish()
        self.gate()
        self.retile()
        e.label("L_end")
        e.op("s_endpgm")
        head = open("cdna_kernels/" + NAME + ".s.ref").read().split("\n")
        head = [l for l in head if l.startswith(";") and "@launch" not in l]
        txt = "\n".join(head) + f"\n; @launch grid=(256,1,1) block=(256,1,1) lds={LDS_BYTES}\n"
        txt += f""".amdgcn_target "amdgcn-amd-amdhsa--gfx950"
.text
.globl {NAME}_kernel
.p2align 8
.type {NAME}_kernel,@function
{NAME}_kernel:
"""
        txt += e.text()
        txt += f""".section .rodata,"a"
.p2align 6
.amdhsa_kernel {NAME}_kernel
  .amdhsa_next_free_vgpr 512
  .amdhsa_next_free_sgpr 102
  .amdhsa_accum_offset 256
  .amdhsa_group_segment_fixed_size 0
  .amdhsa_kernarg_size 80
  .amdhsa_user_sgpr_count 2
  .amdhsa_user_sgpr_kernarg_segment_ptr 1
  .amdhsa_system_sgpr_workgroup_id_x 1
.end_amdhsa_kernel
"""
        return txt

if __name__ == "__main__":
    out = sys.argv[1] if len(sys.argv) > 1 else "cdna_kernels/" + NAME + ".s"
    opt = {}
    for x in sys.argv[2:]:
        if "=" in x:
            k, val = x.split("="); opt[k] = int(val)
    g = Gen(stamps="--stamps" in sys.argv, opt=opt)
    txt = g.build()
    open(out, "w").write(txt)
    print("instructions", g.e.count, "pad states", g.e.nops, file=sys.stderr)
    if "--nops" in sys.argv:
        for n, t in g.e.log_nops: print(n, t, file=sys.stderr)
```

```python
import sys, math, struct
from asmlib import *

NAME = "gated_mix__sliding_block__dense_activation_relu__prompt"

WS_QK = 0
WS_VT = WS_QK + 80 * 64 * 1024
WS_H  = WS_VT + 16 * 64 * 2560
WS_O  = WS_H + 64 * 110592
WS_WT = WS_O + 64 * 40960
WS_G  = WS_WT + 8 * 74 * 5120
WS_FL = WS_G + 8192
WS_ST = WS_FL + 4 * 1024 * 128
WS_SIZE = WS_ST + 1024 * 128
OOB = 0x4000000
assert WS_SIZE < OOB
FL_A, FL_C, FL_B, FL_D = [WS_FL + p * 131072 for p in range(4)]

NW, NX = 5, 5
L_W = 0
L_X = NW * 16384
L_K = L_X
L_V = L_K + 36 * 1024
L_RED = 0
LDS_BYTES = 163840

S_X, S_WA, S_WB, S_WS, S_OUT, S_DBG, S_MISC = 4, 8, 12, 16, 20, 24, 28
S_WAVE, S_XCD, S_I, S_RB, S_CG, S_P, S_RBA, S_TB64, S_NG = 32, 33, 34, 35, 36, 37, 38, 39, 40
S_CYC0 = 41
S_NONCE = 42
S_T0, S_T1, S_T2, S_T3, S_T4, S_T5 = 44, 45, 46, 47, 48, 49
S_XOFF, S_WOFF, S_XM0, S_WM0, S_W2OFF = 50, 51, 52, 53, 54
S_ST1B = 55
S_SCALE = 56
S_ST1, S_ST2, S_ST2B = 58, 59, 60
S_SPIN = 61
S_MASK = 62
S_PTR = 64
S_TQ, S_QOFF, S_FLA, S_FLC, S_FLB = 84, 85, 86, 87, 88
S_KOFF = 89
S_VOFF = 92
S_WT0 = 95
S_STMP = 96
S_WB64 = 98
S_VM = 100
S_HT = 64
S_OT = 68
S_WT1 = 72
S_OST, S_OST2 = 73, 74

V_LANE = 255
V_L16 = 254
V_NONCE = 252
V_T0, V_T1, V_T2, V_T3 = 248, 249, 250, 251
V_POLL = 246
V_FA, V_FD, V_FC, V_FB = 245, 244, 243, 242
V_KA, V_VA, V_HL, V_STAMP, V_ZERO, V_QP = 241, 240, 239, 238, 237, 236
V_XD = 0
V_WD = 4
V_WD2 = 8
V_XR = 12
V_WR = 16
V_ST1 = 24
V_FR = 32
ACC = (128, 64)
A_X = 256
SB = (0, 16, 32)
OO = (176, 48)
VQ, QM, VF, KF, CD, CE = 128, 144, 160, 168, 192, 208
BA, AA = 144, 0
HSLOT = (64, 80, 96, 112, 128, 48)
WR = 256
NH, NWR = 6, 12
NSTAMP = 14

def f32(x): return "0x%08x" % struct.unpack("<I", struct.pack("<f", x))[0]
QSCALE = math.log2(math.e) / math.sqrt(20.0)
NEGBIG = 0xff800000
SPIN_MAX = 0x40000

class Gen:
    def __init__(self, stamps=False, opt=None):
        self.e = Emit()
        self.stamps = stamps
        self.uid = 0
        self.opt = opt or {}
        self.stubs = []
        self.pending_stamp = None
        self.nt = "nt " if self.o("nt", 1) else ""
    def o(self, k, d): return self.opt.get(k, d)
    def L(self, p):
        self.uid += 1
        return f"L_{p}_{self.uid}"
    def stamp(self, idx):
        if not self.stamps: return
        e = self.e
        self.flush_stamp()
        e.op(f"{'s_memtime' if self.o('cyc', 0) else 's_memrealtime'} {s(S_STMP, 2)}")
        self.pending_stamp = idx
    def flush_stamp(self):
        if self.pending_stamp is None: return
        e = self.e
        if "SMEM" in e.lg: e.wait(lg="all")
        e.op(f"v_writelane_b32 {v(V_STAMP)}, {s(S_STMP)}, {self.pending_stamp}")
        self.pending_stamp = None

    def srd(self, d, ptr, nbytes):
        e = self.e
        e.op(f"s_mov_b32 {s(d)}, {s(ptr)}")
        e.op(f"s_and_b32 {s(d+1)}, {s(ptr+1)}, 0xffff")
        e.op(f"s_mov_b32 {s(d+2)}, {nbytes}")
        e.op(f"s_mov_b32 {s(d+3)}, 0x20000")

    def nonce_issue(self):
        self.e.op(f"buffer_load_dwordx2 {v(V_NONCE,2)}, {v(V_ZERO)}, {s(S_DBG,4)}, 0 offen sc1", tag="nonce")
    def nonce_check(self):
        e = self.e
        st, bk = self.L("nonce"), self.L("nonce_ok")
        e.wait(vm="nonce")
        e.op(f"v_readfirstlane_b32 {s(S_NONCE)}, {v(V_NONCE)}")
        e.op(f"v_readfirstlane_b32 {s(S_NONCE+1)}, {v(V_NONCE+1)}")
        e.op(f"s_cmp_eq_u32 {s(S_NONCE)}, 0")
        e.op(f"s_cbranch_scc1 {st}")
        e.label(bk)
        def stub():
            e.label(st, reset=True)
            e.op(f"s_mov_b32 {s(S_SPIN)}, 0")
            e.label(st + "_l")
            e.op(f"buffer_load_dwordx2 {v(V_NONCE,2)}, {v(V_ZERO)}, {s(S_DBG,4)}, 0 offen sc1")
            e.op(f"s_add_u32 {s(S_SPIN)}, {s(S_SPIN)}, 1")
            e.wait(vm="all")
            e.op(f"v_readfirstlane_b32 {s(S_NONCE)}, {v(V_NONCE)}")
            e.op(f"v_readfirstlane_b32 {s(S_NONCE+1)}, {v(V_NONCE+1)}")
            e.op(f"s_cmp_gt_u32 {s(S_SPIN)}, {SPIN_MAX}")
            e.op(f"s_cbranch_scc1 {bk}")
            e.op(f"s_cmp_eq_u32 {s(S_NONCE)}, 0")
            e.op(f"s_cbranch_scc1 {st}_l")
            e.op(f"s_branch {bk}")
        self.stubs.append(stub)

    def publish(self, soff):
        e = self.e
        e.op("s_mov_b64 exec, 1")
        e.op(f"buffer_store_dwordx2 {v(V_NONCE,2)}, {v(V_ZERO)}, {s(S_WS,4)}, {s(soff)} offen sc1", tag="flag")
        e.op("s_mov_b64 exec, -1")

    def poll_issue(self, vaddr):
        self.e.op(f"buffer_load_dwordx2 {v(V_POLL,2)}, {v(vaddr)}, {s(S_WS,4)}, 0 offen sc1", tag="poll")
    def poll_check(self, vaddr):
        e = self.e
        st, bk = self.L("poll"), self.L("poll_ok")
        e.wait(vm="poll")
        e.op(f"v_cmp_ne_u64 {s(S_MASK,2)}, {s(S_NONCE,2)}, {v(V_POLL,2)}")
        e.op(f"s_cmp_lg_u64 {s(S_MASK,2)}, 0")
        e.op(f"s_cbranch_scc1 {st}")
        e.label(bk)
        def stub():
            e.label(st, reset=True)
            e.op(f"s_mov_b32 {s(S_SPIN)}, 0")
            e.label(st + "_l")
            e.op(f"buffer_load_dwordx2 {v(V_POLL,2)}, {v(vaddr)}, {s(S_WS,4)}, 0 offen sc1")
            e.op(f"s_add_u32 {s(S_SPIN)}, {s(S_SPIN)}, 1")
            e.wait(vm="all")
            e.op(f"v_cmp_ne_u64 {s(S_MASK,2)}, {s(S_NONCE,2)}, {v(V_POLL,2)}")
            e.op(f"s_cmp_gt_u32 {s(S_SPIN)}, {SPIN_MAX}")
            e.op(f"s_cbranch_scc1 {bk}")
            e.op(f"s_cmp_lg_u64 {s(S_MASK,2)}, 0")
            e.op(f"s_cbranch_scc1 {st}_l")
            e.op(f"s_branch {bk}")
        self.stubs.append(stub)

    def flag_off(self, dst, base, tb, col):
        e = self.e
        e.op(f"s_lshl_b32 {s(dst)}, {s(tb)}, 4")
        e.op(f"s_add_u32 {s(dst)}, {s(dst)}, {s(col)}")
        e.op(f"s_lshl_b32 {s(dst)}, {s(dst)}, 7")
        e.op(f"s_add_u32 {s(dst)}, {s(dst)}, {base}")

    def prologue(self):
        e = self.e
        e.op("s_cmp_ge_u32 s2, 256")
        e.op("s_cbranch_scc1 L_end")
        e.op(f"s_load_dwordx16 {s(S_PTR,16)}, s[0:1], 0")
        e.op(f"s_load_dwordx4 {s(S_PTR+16,4)}, s[0:1], 64")
        if self.stamps:
            e.op(f"v_mov_b32 {v(V_STAMP)}, 0")
            e.op(f"s_memtime {s(S_VM,2)}")
        self.stamp(0)
        e.op(f"v_lshrrev_b32 {v(V_T0)}, 6, v0")
        e.op(f"v_and_b32 {v(V_LANE)}, 63, v0")
        e.op(f"v_readfirstlane_b32 {s(S_WAVE)}, {v(V_T0)}")
        e.op(f"v_lshlrev_b32 {v(V_L16)}, 4, {v(V_LANE)}")
        e.op(f"v_mov_b32 {v(V_ZERO)}, 0")
        e.op(f"s_and_b32 {s(S_XCD)}, s2, 7")
        e.op(f"s_lshr_b32 {s(S_I)}, s2, 3")
        e.op(f"s_lshr_b32 {s(S_T0)}, {s(S_XCD)}, 1")
        e.op(f"s_mul_i32 {s(S_T1)}, {s(S_T0)}, 30")
        e.op(f"s_add_u32 {s(S_T1)}, {s(S_T1)}, {s(S_I)}")
        e.op(f"s_and_b32 {s(S_T2)}, {s(S_XCD)}, 1")
        e.op(f"s_lshl_b32 {s(S_T3)}, {s(S_T2)}, 3")
        e.op(f"s_and_b32 {s(S_RB)}, {s(S_T1)}, 7")
        e.op(f"s_add_u32 {s(S_RB)}, {s(S_RB)}, {s(S_T3)}")
        e.op(f"s_lshr_b32 {s(S_CG)}, {s(S_T1)}, 3")
        L = v(V_LANE); T0, T1, T2, T3 = v(V_T0), v(V_T1), v(V_T2), v(V_T3)
        e.op(f"v_lshrrev_b32 {T0}, 3, {L}")
        e.op(f"v_mul_u32_u24 {T0}, 1280, {T0}")
        e.op(f"v_lshrrev_b32 {T1}, 4, {L}")
        e.op(f"v_and_b32 {T2}, 7, {L}")
        e.op(f"v_xor_b32 {T2}, {T2}, {T1}")
        for n in range(4):
            if n & 1: e.op(f"v_xor_b32 {T3}, 4, {T2}")
            else: e.op(f"v_mov_b32 {T3}, {T2}")
            e.op(f"v_lshl_add_u32 {T3}, {T3}, 4, {T0}")
            e.op(f"v_add_u32 {v(V_XD+n)}, {n * (8 * 1280 - 1024)}, {T3}")
        e.op(f"v_lshlrev_b32 {T2}, 2, {T1}")
        e.op(f"v_and_b32 {T3}, 15, {L}")
        e.op(f"v_xor_b32 {T2}, {T2}, {T3}")
        e.op(f"v_lshlrev_b32 {T2}, 4, {T2}")
        for base, rs in ((V_WD, 3840), (V_WD2, 3456)):
            e.op(f"v_mul_u32_u24 {T0}, {rs}, {T1}")
            e.op(f"v_add_u32 {T0}, {T0}, {T2}")
            for n in range(4):
                e.op(f"v_add_u32 {v(base+n)}, {n * (4 * rs - 1024)}, {T0}")
        e.op(f"s_lshl_b32 {s(S_T0)}, {s(S_RB)}, 2")
        e.op(f"s_add_u32 {s(S_T0)}, {s(S_T0)}, {s(S_WAVE)}")
        e.op(f"s_mul_i32 {s(S_XOFF)}, {s(S_T0)}, {32 * 1280}")
        e.op(f"s_lshl_b32 {s(S_T1)}, {s(S_CG)}, 8")
        e.op(f"s_mul_i32 {s(S_WOFF)}, {s(S_WAVE)}, {16 * 3840}")
        e.op(f"s_add_u32 {s(S_WOFF)}, {s(S_WOFF)}, {s(S_T1)}")
        e.op(f"s_mul_i32 {s(S_W2OFF)}, {s(S_WAVE)}, {16 * 3456}")
        e.op(f"s_add_u32 {s(S_W2OFF)}, {s(S_W2OFF)}, {s(S_T1)}")
        e.op(f"s_mul_i32 {s(S_XM0)}, {s(S_WAVE)}, {NX * 4096}")
        e.op(f"s_add_u32 {s(S_XM0)}, {s(S_XM0)}, {L_X}")
        e.op(f"s_lshl_b32 {s(S_WM0)}, {s(S_WAVE)}, 12")
        e.wait(lg="all")
        if self.stamps: e.op(f"s_mov_b32 {s(S_CYC0)}, {s(S_VM)}")
        self.flush_stamp()
        self.srd(S_X, S_PTR + 0, 2048 * 1280)
        self.srd(S_WA, S_PTR + 2, 640 * 3840)
        self.srd(S_WB, S_PTR + 8, 640 * 3456)
        if self.o("touch", 0):
            e.op(f"s_lshl_b32 {s(S_T0)}, s2, 2")
            e.op(f"s_add_u32 {s(S_T0)}, {s(S_T0)}, {s(S_WAVE)}")
            for k, (srd, n) in enumerate(((S_X, 20), (S_WA, 19), (S_WB, 17))[:self.o("touch", 0)]):
                e.op(f"s_mul_i32 {s(S_T1)}, {s(S_T0)}, {n * 128}")
                e.op(f"v_min_u32 {T0}, {n - 1}, {L}")
                e.op(f"v_lshlrev_b32 {T0}, 7, {T0}")
                e.op(f"buffer_load_dword {v(224 + k)}, {T0}, {s(srd,4)}, {s(S_T1)} offen")
        e.op(f"s_cmp_ge_u32 {s(S_I)}, 30")
        e.op("s_cbranch_scc1 L_retile")

    def other_srds(self):
        self.srd(S_WS, S_PTR + 18, WS_SIZE)
        self.srd(S_OUT, S_PTR + 14, 2048 * 1280)
        self.srd(S_DBG, S_PTR + 16, 256)
        self.srd(S_MISC, S_PTR + 12, 1280)

    def dma_x(self, st):
        e = self.e
        def mk(n):
            def f():
                if n == 0:
                    e.op(f"s_add_u32 m0, {s(S_XM0)}, {(st % NX) * 4096}")
                    e.op(f"s_add_u32 {s(S_T4)}, {s(S_XOFF)}, {st * 128}")
                e.op(f"buffer_load_dwordx4 {v(V_XD+n)}, {s(S_X,4)}, {s(S_T4)} offen offset:{n*1024} {self.nt}lds", tag=("d", st))
            return f
        return [mk(n) for n in range(4)]
    def dma_w(self, st):
        e = self.e
        srd, vd, so, rs, k = (S_WA, V_WD, S_WOFF, 3840, st) if st < 10 else (S_WB, V_WD2, S_W2OFF, 3456, st - 10)
        def mk(n):
            def f():
                if n == 0:
                    e.op(f"s_add_u32 m0, {s(S_WM0)}, {L_W + (st % NW) * 16384}")
                    e.op(f"s_add_u32 {s(S_T4)}, {s(so)}, {k * 64 * rs}")
                e.op(f"buffer_load_dwordx4 {v(vd+n)}, {s(srd,4)}, {s(S_T4)} offen offset:{n*1024} {self.nt}lds", tag=("d", st))
            return f
        return [mk(n) for n in range(4)]

    def stage1_setup(self):
        e = self.e
        L = v(V_LANE); T0, T1, T2, T3 = v(V_T0), v(V_T1), v(V_T2), v(V_T3)
        sk = self.L("nononce")
        e.op(f"s_or_b32 {s(S_T0)}, s2, {s(S_WAVE)}")
        e.op(f"s_cmp_lg_u32 {s(S_T0)}, 0")
        e.op(f"s_cbranch_scc1 {sk}")
        snap = e.snapshot()
        e.op(f"s_memrealtime {s(S_NONCE,2)}")
        e.op("s_waitcnt lgkmcnt(0)")
        e.op(f"s_or_b32 {s(S_NONCE)}, {s(S_NONCE)}, 1")
        e.op(f"v_mov_b32 {v(V_NONCE)}, {s(S_NONCE)}")
        e.op(f"v_mov_b32 {v(V_NONCE+1)}, {s(S_NONCE+1)}")
        e.op("s_mov_b64 exec, 1")
        e.op(f"buffer_store_dwordx2 {v(V_NONCE,2)}, {v(V_ZERO)}, {s(S_DBG,4)}, 0 offen sc1")
        e.op("s_mov_b64 exec, -1")
        e.restore(snap)
        e.label(sk)
        e.op(f"v_and_b32 {T0}, 31, {L}")
        e.op(f"v_bfe_u32 {T1}, {L}, 1, 3")
        e.op(f"v_lshrrev_b32 {T2}, 5, {L}")
        e.op(f"v_xor_b32 {T1}, {T1}, {T2}")
        e.op(f"v_lshlrev_b32 {T1}, 4, {T1}")
        e.op(f"v_lshl_add_u32 {T1}, {T0}, 7, {T1}")
        for ks in range(4):
            e.op(f"v_xor_b32 {T3}, {ks * 32}, {T1}")
            e.op(f"v_add_u32 {v(V_XR+ks)}, {s(S_XM0)}, {T3}")
        e.op(f"v_bfe_u32 {T0}, {L}, 2, 2")
        e.op(f"v_lshl_add_u32 {T1}, {T2}, 3, {T0}")
        e.op(f"v_lshlrev_b32 {T1}, 8, {T1}")
        e.op(f"v_lshl_add_u32 {T1}, {T0}, 6, {T1}")
        e.op(f"v_bfe_u32 {T3}, {L}, 4, 1")
        e.op(f"v_lshl_add_u32 {T1}, {T3}, 5, {T1}")
        e.op(f"v_and_b32 {T3}, 3, {L}")
        e.op(f"v_lshl_add_u32 {T1}, {T3}, 3, {T1}")
        for j in range(4):
            e.op(f"v_xor_b32 {v(V_WR+j)}, {j * 64}, {T1}")
            e.op(f"v_add_u32 {v(V_WR+4+j)}, 0x10000, {v(V_WR+j)}")
        e.op(f"s_lshl_b32 {s(S_T0)}, {s(S_RB)}, 2")
        e.op(f"s_add_u32 {s(S_T0)}, {s(S_T0)}, {s(S_WAVE)}")
        self.flag_off(S_FLA, FL_A, S_T0, S_CG)
        e.op(f"s_add_u32 {s(S_FLC)}, {s(S_FLA)}, {FL_C - FL_A}")
        lv, ld = self.L("st1v"), self.L("st1d")
        e.op(f"s_cmp_ge_u32 {s(S_CG)}, 10")
        e.op(f"s_cbranch_scc1 {lv}")
        for j in range(4):
            e.op(f"v_add_u32 {v(V_ST1+j)}, {j * 131072}, {v(V_L16)}")
        e.op(f"s_lshl_b32 {s(S_ST1)}, {s(S_CG)}, 19")
        e.op(f"s_lshl_b32 {s(S_T1)}, {s(S_T0)}, 10")
        e.op(f"s_add_u32 {s(S_ST1)}, {s(S_ST1)}, {s(S_T1)}")
        e.op(f"s_add_u32 {s(S_ST1B)}, {s(S_ST1)}, {WS_QK + 65536}")
        e.op(f"s_add_u32 {s(S_ST1)}, {s(S_ST1)}, {WS_QK}")
        e.op(f"s_branch {ld}")
        e.label(lv)
        e.op(f"s_sub_u32 {s(S_T1)}, {s(S_CG)}, 10")
        e.op(f"s_lshl_b32 {s(S_T1)}, {s(S_T1)}, 7")
        e.op(f"v_and_b32 {T0}, 31, {L}")
        e.op(f"v_add_u32 {T0}, {s(S_T1)}, {T0}")
        e.op(f"v_mul_u32_u24 {T2}, 640, {T2}")
        e.op(f"s_mov_b32 {s(S_T2)}, {64 * 2560 - 640}")
        for j in range(4):
            e.op(f"v_add_u32 {T1}, {32 * j}, {T0}")
            e.op(f"v_mul_u32_u24 {T3}, 1639, {T1}")
            e.op(f"v_lshrrev_b32 {T3}, 16, {T3}")
            e.op(f"v_lshl_add_u32 {T1}, {T1}, 4, {T2}")
            e.op(f"v_mad_u32_u24 {v(V_ST1+j)}, {T3}, {s(S_T2)}, {T1}")
        e.op(f"s_mul_i32 {s(S_ST1)}, {s(S_T0)}, 2560")
        e.op(f"s_add_u32 {s(S_ST1B)}, {s(S_ST1)}, {WS_VT + 1280}")
        e.op(f"s_add_u32 {s(S_ST1)}, {s(S_ST1)}, {WS_VT}")
        e.label(ld)
        e.op(f"s_cmp_lt_u32 {s(S_CG)}, 5")
        e.op(f"s_cselect_b32 {s(S_SCALE)}, {f32(QSCALE)}, 1.0")
        e.op(f"s_mov_b32 {s(S_SCALE+1)}, {s(S_SCALE)}")
        e.op(f"s_mul_i32 {s(S_ST2)}, {s(S_T0)}, 110592")
        e.op(f"s_lshl_b32 {s(S_T1)}, {s(S_CG)}, 13")
        e.op(f"s_add_u32 {s(S_ST2)}, {s(S_ST2)}, {s(S_T1)}")
        e.op(f"s_add_u32 {s(S_ST2)}, {s(S_ST2)}, {WS_H}")
        e.op(f"s_add_u32 {s(S_ST2B)}, {s(S_ST2)}, 4096")
        e.op(f"s_cmp_lt_u32 {s(S_CG)}, 13")
        e.op(f"s_cselect_b32 {s(S_ST2B)}, {s(S_ST2B)}, {OOB}")
        e.op(f"s_cmp_lt_u32 {s(S_CG)}, 14")
        e.op(f"s_cselect_b32 {s(S_ST2)}, {s(S_ST2)}, {OOB}")

    def late_setup(self):
        e = self.e
        L = v(V_LANE); T0, T1, T2, T3 = v(V_T0), v(V_T1), v(V_T2), v(V_T3)
        P0, P1 = v(V_POLL), v(V_POLL + 1)
        e.op(f"s_lshr_b32 {s(S_P)}, {s(S_I)}, 4")
        e.op(f"s_lshl_b32 {s(S_T3)}, {s(S_XCD)}, 1")
        e.op(f"s_add_u32 {s(S_P)}, {s(S_P)}, {s(S_T3)}")
        e.op(f"s_and_b32 {s(S_RBA)}, {s(S_I)}, 15")
        if self.o("map3", 0) == 0:
            e.op(f"s_lshr_b32 {s(S_T0)}, {s(S_XCD)}, 1")
            e.op(f"s_lshl_b32 {s(S_TB64)}, {s(S_T0)}, 3")
            e.op(f"s_and_b32 {s(S_T3)}, {s(S_I)}, 7")
            e.op(f"s_add_u32 {s(S_TB64)}, {s(S_TB64)}, {s(S_T3)}")
            e.op(f"s_and_b32 {s(S_T2)}, {s(S_XCD)}, 1")
            e.op(f"s_lshl_b32 {s(S_NG)}, {s(S_T2)}, 2")
            e.op(f"s_lshr_b32 {s(S_T3)}, {s(S_I)}, 3")
            e.op(f"s_add_u32 {s(S_NG)}, {s(S_NG)}, {s(S_T3)}")
        else:
            e.op(f"s_lshl_b32 {s(S_TB64)}, {s(S_XCD)}, 2")
            e.op(f"s_and_b32 {s(S_T3)}, {s(S_I)}, 3")
            e.op(f"s_add_u32 {s(S_TB64)}, {s(S_TB64)}, {s(S_T3)}")
            e.op(f"s_lshr_b32 {s(S_NG)}, {s(S_I)}, 2")
        S_F0, S_TB0 = S_T4, S_T5
        e.op(f"s_mul_i32 {s(S_F0)}, {s(S_P)}, 10")
        e.op(f"s_lshr_b32 {s(S_F0)}, {s(S_F0)}, 2")
        e.op(f"s_lshl_b32 {s(S_TQ)}, {s(S_RBA)}, 2")
        e.op(f"s_mul_i32 {s(S_T0)}, {s(S_WAVE)}, 3")
        e.op(f"s_add_u32 {s(S_TB0)}, {s(S_TQ)}, {s(S_T0)}")
        e.op(f"s_sub_u32 {s(S_TB0)}, {s(S_TB0)}, 8")
        e.op(f"s_add_u32 {s(S_TQ)}, {s(S_TQ)}, {s(S_WAVE)}")
        e.op(f"v_and_b32 {T0}, 1, {L}")
        e.op(f"v_lshl_add_u32 {T1}, {T0}, 1, {s(S_F0)}")
        e.op(f"v_lshrrev_b32 {T1}, 3, {T1}")
        e.op(f"s_mul_i32 {s(S_T0)}, {s(S_P)}, 40")
        e.op(f"v_mul_u32_u24 {T0}, 39, {T0}")
        e.op(f"v_add_u32 {T0}, {s(S_T0)}, {T0}")
        e.op(f"v_lshrrev_b32 {T0}, 7, {T0}")
        e.op(f"v_add_u32 {T0}, 10, {T0}")
        e.op(f"v_bfe_u32 {T2}, {L}, 1, 3")
        e.op(f"v_cmp_lt_u32 vcc, 2, {T2}")
        e.op(f"v_add_u32 {P0}, 5, {T1}")
        e.op(f"v_subrev_u32 {P1}, 3, {T2}")
        e.op(f"v_cndmask_b32 {P0}, {P0}, {T0}, vcc")
        e.op(f"v_cndmask_b32 {P1}, {T2}, {P1}, vcc")
        e.op(f"v_cmp_lt_u32 vcc, 5, {T2}")
        e.op(f"v_add_u32 {P1}, {s(S_TB0)}, {P1}")
        e.op(f"v_max_i32 {P1}, 0, {P1}")
        e.op(f"v_mov_b32 {T3}, {s(S_TQ)}")
        e.op(f"v_cndmask_b32 {P0}, {P0}, {T1}, vcc")
        e.op(f"v_cndmask_b32 {P1}, {P1}, {T3}, vcc")
        e.op(f"v_lshl_add_u32 {P1}, {P1}, 4, {P0}")
        e.op(f"v_lshlrev_b32 {P1}, 7, {P1}")
        e.op(f"v_add_u32 {v(V_FA)}, {FL_A}, {P1}")
        e.op(f"s_lshl_b32 {s(S_T0)}, {s(S_F0)}, 16")
        e.op(f"s_lshl_b32 {s(S_QOFF)}, {s(S_TQ)}, 10")
        e.op(f"s_add_u32 {s(S_QOFF)}, {s(S_QOFF)}, {s(S_T0)}")
        e.op(f"s_mul_i32 {s(S_T3)}, {s(S_P)}, {64 * 2560}")
        for i in range(3):
            e.op(f"s_add_i32 {s(S_T1)}, {s(S_TB0)}, {i}")
            e.op(f"s_max_i32 {s(S_T1)}, {s(S_T1)}, 0")
            e.op(f"s_lshl_b32 {s(S_KOFF + i)}, {s(S_T1)}, 10")
            e.op(f"s_add_u32 {s(S_KOFF + i)}, {s(S_KOFF + i)}, {s(S_T0)}")
            e.op(f"s_mul_i32 {s(S_VOFF + i)}, {s(S_T1)}, 2560")
            e.op(f"s_add_u32 {s(S_VOFF + i)}, {s(S_VOFF + i)}, {s(S_T3)}")
            e.op(f"s_add_u32 {s(S_VOFF + i)}, {s(S_VOFF + i)}, {WS_VT}")
        e.op(f"v_and_b32 {T0}, 31, {L}")
        e.op(f"v_lshrrev_b32 {T1}, 5, {L}")
        e.op(f"v_lshlrev_b32 {T2}, 2, {T1}")
        e.op(f"v_sub_u32 {T2}, {T0}, {T2}")
        e.op(f"v_mov_b32 {T3}, {hex(NEGBIG)}")
        for rr in range(0, 16, 2):
            e.op(f"v_cmp_gt_i32 vcc, {8 * (rr >> 2) + (rr & 3)}, {T2}")
            e.op(f"v_cmp_gt_i32 {s(S_MASK,2)}, {8 * (rr >> 2) + (rr & 3) + 1}, {T2}")
            e.op("s_nop 0")
            e.op(f"v_cndmask_b32 {v(CD + rr)}, 0, {T3}, vcc")
            e.op(f"v_cndmask_b32 {v(CE + rr)}, {T3}, 0, vcc")
            e.op(f"v_cndmask_b32 {v(CD + rr + 1)}, 0, {T3}, {s(S_MASK,2)}")
            e.op(f"v_cndmask_b32 {v(CE + rr + 1)}, {T3}, 0, {s(S_MASK,2)}")
        e.op(f"s_lshl_b32 {s(S_T1)}, {s(S_WAVE)}, 10")
        e.op(f"s_add_u32 {s(S_T1)}, {s(S_T1)}, {L_K}")
        e.op(f"v_add_u32 {v(V_KA)}, {s(S_T1)}, {v(V_L16)}")
        e.op(f"s_mul_i32 {s(S_T1)}, {s(S_WAVE)}, 2560")
        e.op(f"s_add_u32 {s(S_T1)}, {s(S_T1)}, {L_V}")
        e.op(f"v_mul_u32_u24 {T2}, 640, {T1}")
        e.op(f"v_lshl_add_u32 {T2}, {T0}, 4, {T2}")
        e.op(f"v_add_u32 {v(V_VA)}, {s(S_T1)}, {T2}")
        e.op(f"s_mov_b32 {s(S_VM)}, 0xfffff")
        e.op(f"s_mov_b32 {s(S_VM+1)}, 0xfffff")
        e.op(f"s_lshr_b32 {s(S_T0)}, {s(S_P)}, 2")
        e.op(f"s_mul_i32 {s(S_T0)}, {s(S_T0)}, {20 * 512}")
        e.op(f"s_mul_i32 {s(S_T1)}, {s(S_TQ)}, 40960")
        e.op(f"s_add_u32 {s(S_T0)}, {s(S_T0)}, {s(S_T1)}")
        e.op(f"s_add_u32 {s(S_T0)}, {s(S_T0)}, {WS_O}")
        e.op(f"s_and_b32 {s(S_T1)}, {s(S_P)}, 3")
        e.op(f"s_lshl_b32 {s(S_OST)}, {s(S_T1)}, 11")
        e.op(f"s_add_u32 {s(S_OST)}, {s(S_OST)}, {s(S_T0)}")
        e.op(f"s_lshl_b32 {s(S_T1)}, {s(S_T1)}, 9")
        e.op(f"s_add_u32 {s(S_T1)}, {s(S_T1)}, {s(S_T0)}")
        e.op(f"s_add_u32 {s(S_OST2)}, {s(S_T1)}, {16 * 512}")
        self.flag_off(S_FLB, FL_B, S_TQ, S_P)
        e.op(f"v_and_b32 {T0}, 15, {L}")
        e.op(f"v_lshrrev_b32 {T1}, 4, {L}")
        e.op(f"v_lshlrev_b32 {T2}, 9, {T1}")
        e.op(f"v_lshl_add_u32 {v(V_HL)}, {T0}, 4, {T2}")
        e.op(f"s_lshl_b32 {s(S_T4)}, {s(S_WAVE)}, 11")
        e.op(f"s_add_u32 {s(S_T4)}, {s(S_T4)}, {WS_H}")
        e.op(f"s_mul_i32 {s(S_T5)}, {s(S_WAVE)}, {5 * 2048}")
        e.op(f"s_add_u32 {s(S_T5)}, {s(S_T5)}, {WS_O}")
        for t in range(4):
            e.op(f"s_add_u32 {s(S_T0)}, {s(S_WAVE)}, {t + 1}")
            e.op(f"s_and_b32 {s(S_T0)}, {s(S_T0)}, 3")
            e.op(f"s_lshr_b32 {s(S_T1)}, {s(S_T0)}, 1")
            e.op(f"s_lshl_b32 {s(S_T2)}, {s(S_TB64)}, 1")
            e.op(f"s_add_u32 {s(S_T1)}, {s(S_T1)}, {s(S_T2)}")
            e.op(f"s_and_b32 {s(S_T2)}, {s(S_T0)}, 1")
            e.op(f"s_lshl_b32 {s(S_T2)}, {s(S_T2)}, 8")
            e.op(f"s_mul_i32 {s(S_T3)}, {s(S_T1)}, 110592")
            e.op(f"s_add_u32 {s(S_T3)}, {s(S_T3)}, {s(S_T2)}")
            e.op(f"s_add_u32 {s(S_HT + t)}, {s(S_T3)}, {s(S_T4)}")
            e.op(f"s_mul_i32 {s(S_T3)}, {s(S_T1)}, 40960")
            e.op(f"s_add_u32 {s(S_T3)}, {s(S_T3)}, {s(S_T2)}")
            e.op(f"s_add_u32 {s(S_OT + t)}, {s(S_T3)}, {s(S_T5)}")
        e.op(f"s_mul_i32 {s(S_T2)}, {s(S_NG)}, 74")
        e.op(f"s_add_u32 {s(S_T0)}, {s(S_T2)}, {s(S_WAVE)}")
        e.op(f"s_mul_i32 {s(S_WT0)}, {s(S_T0)}, 5120")
        e.op(f"s_add_u32 {s(S_WT0)}, {s(S_WT0)}, {WS_WT + 2048}")
        e.op(f"s_mul_i32 {s(S_T1)}, {s(S_WAVE)}, 5")
        e.op(f"s_add_u32 {s(S_T1)}, {s(S_T1)}, {s(S_T2)}")
        e.op(f"s_mul_i32 {s(S_WT1)}, {s(S_T1)}, 5120")
        e.op(f"s_add_u32 {s(S_WT1)}, {s(S_WT1)}, {WS_WT + 54 * 5120 + 2048}")
        e.op(f"v_min_u32 {T0}, 14, {T0}")
        e.op(f"v_and_b32 {T1}, 1, {T1}")
        e.op(f"s_lshl_b32 {s(S_T0)}, {s(S_TB64)}, 1")
        e.op(f"v_add_u32 {T1}, {s(S_T0)}, {T1}")
        e.op(f"v_lshl_add_u32 {T0}, {T1}, 4, {T0}")
        e.op(f"v_lshlrev_b32 {T0}, 7, {T0}")
        e.op(f"v_add_u32 {T0}, {FL_C}, {T0}")
        e.op(f"v_and_b32 {T2}, 7, {L}")
        e.op(f"v_min_u32 {T2}, 6, {T2}")
        e.op(f"v_add_u32 {T2}, 12, {T2}")
        e.op(f"v_lshl_add_u32 {T3}, {T2}, 2, {s(S_WAVE)}")
        e.op(f"v_min_u32 {T3}, 53, {T3}")
        e.op(f"s_mul_i32 {s(S_T1)}, {s(S_WAVE)}, 5")
        e.op(f"s_add_u32 {s(S_T1)}, {s(S_T1)}, 40")
        e.op(f"v_cmp_lt_u32 vcc, 13, {T2}")
        e.op(f"v_add_u32 {T2}, {s(S_T1)}, {T2}")
        e.op(f"v_cndmask_b32 {T2}, {T3}, {T2}, vcc")
        e.op(f"v_cmp_lt_u32 vcc, 31, {L}")
        e.op(f"v_lshlrev_b32 {T2}, 7, {T2}")
        e.op(f"v_add_u32 {T2}, {FL_D}, {T2}")
        e.op(f"v_cndmask_b32 {v(V_FC)}, {T0}, {T2}, vcc")
        e.op(f"v_min_u32 {T2}, 11, {L}")
        e.op(f"v_lshl_add_u32 {T2}, {T2}, 2, {s(S_WAVE)}")
        e.op(f"v_lshlrev_b32 {T2}, 7, {T2}")
        e.op(f"v_add_u32 {v(V_FD)}, {FL_D}, {T2}")
        e.op(f"v_and_b32 {T0}, 3, {L}")
        e.op(f"s_lshl_b32 {s(S_T1)}, {s(S_WAVE)}, 2")
        e.op(f"v_add_u32 {T0}, {s(S_T1)}, {T0}")
        e.op(f"v_lshl_add_u32 {T0}, {T1}, 4, {T0}")
        e.op(f"v_lshlrev_b32 {T0}, 7, {T0}")
        e.op(f"v_add_u32 {v(V_FB)}, {FL_B}, {T0}")

    def w_loads(self, n):
        e = self.e
        def mk(j):
            def f():
                dst = r(WR + 20 * (n % NWR) + 4 * j, 4)
                if n == 13:
                    if j in (0, 4):
                        e.op(f"s_add_u32 {s(S_T2)}, {s(S_WT0)}, {n * 4 * 5120 - 2048 + (4096 if j else 0)}")
                        e.op(f"s_cmp_lt_u32 {s(S_WAVE)}, 2")
                        e.op(f"s_cselect_b32 {s(S_T2)}, {s(S_T2)}, {OOB}")
                    e.op(f"buffer_load_dwordx4 {dst}, {v(V_L16)}, {s(S_WS,4)}, {s(S_T2)} offen offset:{(j & 3) * 1024} sc1", tag=("w", n, j))
                    return
                if j == 0:
                    if n < 14: e.op(f"s_add_u32 {s(S_T2)}, {s(S_WT0)}, {n * 4 * 5120}")
                    else: e.op(f"s_add_u32 {s(S_T2)}, {s(S_WT1)}, {(n - 14) * 5120}")
                    e.op(f"s_add_u32 {s(S_WB64)}, {s(S_PTR + 18)}, {s(S_T2)}")
                    e.op(f"s_addc_u32 {s(S_WB64 + 1)}, {s(S_PTR + 19)}, 0")
                e.op(f"global_load_dwordx4 {dst}, {v(V_L16)}, {s(S_WB64,2)} offset:{j * 1024 - 2048} sc1", tag=("w", n, j))
            return f
        return [mk(j) for j in range(5)]
    def hreg(self, n, t):
        if n < 14: return HSLOT[n % NH] + 4 * t
        i = 5 * t + (n - 14)
        return HSLOT[(14 + i // 4) % NH] + 4 * (i % 4)
    def h_load(self, n, t):
        e = self.e
        if n < 14: e.op(f"s_add_u32 {s(S_T5)}, {s(S_HT + t)}, {n * 8192}")
        else: e.op(f"s_add_u32 {s(S_T5)}, {s(S_OT + t)}, {(n - 14) * 2048}")
        if n == 13:
            e.op(f"s_cmp_lt_u32 {s(S_WAVE)}, 2")
            e.op(f"s_cselect_b32 {s(S_T5)}, {s(S_T5)}, {OOB}")
        e.op(f"buffer_load_dwordx4 {v(self.hreg(n, t), 4)}, {v(V_HL)}, {s(S_WS,4)}, {s(S_T5)} offen sc1", tag=("h", n, t))
    def kvq_loads(self):
        e = self.e
        ops = []
        def q(f):
            e.op(f"s_add_u32 {s(S_T4)}, {s(S_QOFF)}, {WS_QK + f * 65536}")
            e.op(f"buffer_load_dwordx4 {v(VQ + 4 * f, 4)}, {v(V_L16)}, {s(S_WS,4)}, {s(S_T4)} offen sc1", tag="q")
        def k(i, f):
            if i == 0 and f == 0: e.op(f"s_mul_i32 {s(S_T5)}, {s(S_WAVE)}, 3072")
            e.op(f"s_add_u32 m0, {s(S_T5)}, {L_K + f * 12288 + i * 1024}")
            e.op(f"s_add_u32 {s(S_T4)}, {s(S_KOFF + i)}, {WS_QK + (40 + f) * 65536}")
            e.op(f"buffer_load_dwordx4 {v(V_L16)}, {s(S_WS,4)}, {s(S_T4)} offen sc1 lds", tag="kv")
        def vv(i, n):
            if i == 0 and n == 0: e.op(f"s_mul_i32 {s(S_T5)}, {s(S_WAVE)}, 7680")
            if n == 0: e.op(f"s_add_u32 m0, {s(S_T5)}, {L_V + i * 2560}")
            if n == 2: e.op("s_mov_b32 exec_hi, 0")
            e.op(f"buffer_load_dwordx4 {v(V_L16)}, {s(S_WS,4)}, {s(S_VOFF + i)} offen offset:{n * 1024} sc1 lds", tag="kv")
            if n == 2: e.op("s_mov_b32 exec_hi, -1")
        for f in range(3): ops.append(lambda f=f: q(f))
        for i in range(3):
            for f in range(3): ops.append(lambda i=i, f=f: k(i, f))
        for i in range(3):
            for n in range(3): ops.append(lambda i=i, n=n: vv(i, n))
        return ops
    EARLY_W = (8, 9, 10, 11)

    def w_read(self, st, f, u):
        ks, j = f >> 2, f & 3
        slot = st % NW
        off = L_W + slot * 16384 + ks * 4096 + u * 1024
        ad = V_WR + j
        if off >= 65536: off -= 65536; ad += 4
        m = 16 * st + f
        self.e.op(f"ds_read_b64_tr_b16 {v(V_FR + 4 * (m % 8) + 2 * u, 2)}, {v(ad)} offset:{off}", tag=("w", m))
    def x_read(self, st, ks):
        self.e.op(f"ds_read_b128 {r(A_X + 16 * st + 4 * ks, 4)}, {v(V_XR + ks)} offset:{(st % NX) * 4096}", tag=("x", st, ks))

    def stage1_fill(self, pre):
        e = self.e
        fill = {m: [] for m in range(-1, 320)}
        def at(m, f): fill[max(m, -1)].append(f)
        nxt = pre
        for st in range(20):
            b = 16 * st - 4
            def bar(st=st):
                e.wait(vm=("d", st), lg="all")
                e.op("s_barrier")
            at(b, bar)
            if st < 10:
                for ks in range(4): at(b + 3 * ks, lambda st=st, ks=ks: self.x_read(st, ks))
            for rho in range(32):
                at(b + rho * 13 // 32, lambda st=st, rho=rho: self.w_read(st, rho >> 1, rho & 1))
            d = []
            while nxt < 20 and nxt <= st + 4 and len(d) < 12:
                d += (self.dma_x(nxt) if nxt < 10 else []) + self.dma_w(nxt)
                nxt += 1
            g0 = 4 if st == 0 else 1
            for i, f in enumerate(d): at(b + g0 + i * (15 - g0) // len(d), f)
        return fill

    def p1_epilogue_ops(self):
        e = self.e
        groups = []
        for j in range(4):
            for h in range(2):
                A = ACC[0] + 16 * j + 8 * h
                ops = []
                for q in range(4):
                    ops.append(lambda A=A, q=q: e.op(f"v_pk_mul_f32 {v(A+2*q,2)}, {v(A+2*q,2)}, {s(S_SCALE,2)}"))
                for q in range(4):
                    ops.append(lambda A=A, q=q: e.op(f"v_cvt_pk_bf16_f32 {v(A+q)}, {v(A+2*q)}, {v(A+2*q+1)}"))
                ops.append(lambda A=A, h=h, j=j: e.op(f"buffer_store_dwordx4 {v(A,4)}, {v(V_ST1+j)}, {s(S_WS,4)}, {s(S_ST1B if h else S_ST1)} offen sc1", tag="st1"))
                groups.append(ops)
        return groups
    def p2_epilogue_ops(self):
        e = self.e
        groups = []
        for j in range(4):
            for h in range(2):
                A = ACC[1] + 16 * j + 8 * h
                ops = []
                for q in range(4):
                    ops.append(lambda A=A, q=q: e.op(f"v_cvt_pk_bf16_f32 {v(A+q)}, {v(A+2*q)}, {v(A+2*q+1)}"))
                for q in range(4):
                    ops.append(lambda A=A, q=q: e.op(f"v_pk_max_i16 {v(A+q)}, {v(A+q)}, 0"))
                ops.append(lambda A=A, h=h, j=j: e.op(f"buffer_store_dwordx4 {v(A,4)}, {v(V_L16)}, {s(S_WS,4)}, {s(S_ST2B if j >= 2 else S_ST2)} offen offset:{(j & 1) * 2048 + h * 1024} sc1", tag="st2"))
                groups.append(ops)
        return groups

    def stage1_stream(self, fill, m0, m1, swap):
        e = self.e
        for m in range(m0, m1):
            st, f = divmod(m, 16)
            ks, j = f >> 2, f & 3
            e.wait(lg=[("w", m), ("x", st, ks)])
            acc = v(ACC[st // 10] + 16 * j, 16)
            wf = v(V_FR + 4 * (m % 8), 4)
            xf = r(A_X + 16 * (st % 10) + 4 * ks, 4)
            c = "0" if (st % 10 == 0 and ks == 0) else acc
            if swap: e.op(f"v_mfma_f32_32x32x16_bf16 {acc}, {xf}, {wf}, {c}")
            else: e.op(f"v_mfma_f32_32x32x16_bf16 {acc}, {wf}, {xf}, {c}")
            for fn in fill[m]: fn()

    def ones_init(self):
        return [lambda i=i: self.e.op(f"v_mov_b32 {v(VF + i)}, 0x3f803f80") for i in range(8)]

    def stage1(self):
        e = self.e
        pre = self.o("pre", 2)
        for st in range(min(pre, 1)):
            for f in self.dma_x(st) + self.dma_w(st): f()
        self.other_srds()
        self.stage1_setup()
        self.late_setup()
        for st in range(1, pre):
            for f in self.dma_x(st) + self.dma_w(st): f()
        fill = self.stage1_fill(pre)
        sp = self.o("epi", 5)
        for g, ops in enumerate(self.p1_epilogue_ops()):
            for i, f in enumerate(ops): fill[161 + sp * g + i * sp // 9].append(f)
        fill[130].append(self.nonce_issue)
        fill[self.o("pubA", 226) - 1].append(self.nonce_check)
        def pub_a():
            e.wait(vm="st1")
            self.publish(S_FLA)
        fill[self.o("pubA", 226)].append(pub_a)
        for i, f in enumerate(self.ones_init()): fill[210 + i].append(f)
        fill[self.o("pollD", 230)].append(lambda: self.poll_issue(V_FD))
        cD = self.o("chkD", 250)
        fill[cD].append(lambda: self.poll_check(V_FD))
        pA, cA = self.o("pollA", 262), self.o("chkA", 280)
        ew = sum([self.w_loads(n) for n in self.EARLY_W], [])
        for i, f in enumerate(ew): fill[cD + 1 + i * (cA - cD - 1) // len(ew)].append(f)
        fill[pA].append(lambda: self.poll_issue(V_FA))
        fill[cA].append(lambda: self.poll_check(V_FA))
        if self.stamps: fill[cA].append(lambda: self.stamp(3))
        kv = self.kvq_loads()
        for i, f in enumerate(kv): fill[cA + 1 + i * (318 - cA) // len(kv)].append(f)
        for fn in fill[-1]: fn()
        self.stamp(1)
        e.op(f"s_cmp_ge_u32 {s(S_CG)}, 10")
        e.op("s_cbranch_scc1 L_p1v")
        snap = e.snapshot(); ps = self.pending_stamp
        self.stage1_stream(fill, 0, 160, False)
        e.op("s_branch L_p2")
        after = e.snapshot()
        e.restore(snap)
        e.label("L_p1v")
        self.stage1_stream(fill, 0, 160, True)
        e.op(f"s_cmp_eq_u32 {s(S_CG)}, 14")
        e.op("s_cbranch_scc1 L_gate")
        self.gate_snap = e.snapshot()
        assert after[0] == e.vm and after[1] == e.lg
        e.label("L_p2")
        self.stamp(2)
        self.stage1_stream(fill, 160, 320, False)
        self.flush_stamp()

    def side_tail(self):
        e = self.e
        for f in self.ones_init(): f()
        self.poll_issue(V_FD); self.poll_check(V_FD)
        for n in self.EARLY_W:
            for f in self.w_loads(n): f()
        self.poll_issue(V_FA); self.poll_check(V_FA)
        for f in self.kvq_loads(): f()
        e.wait(vm="all", lg="all")
        e.op("s_branch L_att")

    def gate(self):
        e = self.e
        e.restore(self.gate_snap)
        e.label("L_gate")
        e.wait(vm="all", lg="all")
        e.op("s_nop 7")
        for g in self.p1_epilogue_ops():
            for f in g: f()
        e.op(f"v_lshrrev_b32 {v(V_T1)}, 5, {v(V_LANE)}")
        e.op(f"v_lshlrev_b32 {v(V_T1)}, 4, {v(V_T1)}")
        G = 16
        for k in range(20):
            e.op(f"buffer_load_dwordx4 {v(G + 4 * k, 4)}, {v(V_T1)}, {s(S_MISC,4)}, 0 offen offset:{32 * k}", tag=("g", k))
        self.nonce_check()
        e.wait(vm="st1")
        self.publish(S_FLA)
        for k in range(40):
            e.wait(vm=("g", k))
            e.op(f"v_mfma_f32_32x32x16_bf16 {v(0,16)}, {v(G + 4 * (k % 20), 4)}, {r(A_X + 4 * k, 4)}, {'0' if k == 0 else v(0,16)}")
            if k < 20:
                e.op(f"buffer_load_dwordx4 {v(G + 4 * k, 4)}, {v(V_T1)}, {s(S_MISC,4)}, 0 offen offset:{32 * (k + 20)}", tag=("g", k + 20))
        e.op(f"v_mul_f32 {v(V_T1)}, {f32(-math.log2(math.e))}, v0")
        e.op(f"v_exp_f32 {v(V_T1)}, {v(V_T1)}")
        e.op(f"v_add_f32 {v(V_T1)}, 1.0, {v(V_T1)}")
        e.op(f"v_rcp_f32 {v(V_T1)}, {v(V_T1)}")
        e.op(f"v_and_b32 {v(V_T2)}, 31, {v(V_LANE)}")
        e.op(f"v_lshlrev_b32 {v(V_T2)}, 2, {v(V_T2)}")
        e.op(f"s_lshl_b32 {s(S_T0)}, {s(S_RB)}, 2")
        e.op(f"s_add_u32 {s(S_T0)}, {s(S_T0)}, {s(S_WAVE)}")
        e.op(f"s_lshl_b32 {s(S_T1)}, {s(S_T0)}, 7")
        e.op(f"s_add_u32 {s(S_T1)}, {s(S_T1)}, {WS_G}")
        e.op("s_mov_b32 exec_hi, 0")
        e.op(f"buffer_store_dword {v(V_T1)}, {v(V_T2)}, {s(S_WS,4)}, {s(S_T1)} offen sc1")
        e.op("s_mov_b32 exec_hi, -1")
        self.side_tail()

    def retile(self):
        e = self.e
        e.vm, e.lg, e.hist = [], [], []
        e.label("L_retile")
        L = v(V_LANE); T0, T1, T2, T3 = v(V_T0), v(V_T1), v(V_T2), v(V_T3)
        e.op(f"s_getpc_b64 {s(S_MASK,2)}")
        e.label("L_pc")
        e.op(f"s_sub_u32 {s(S_MASK)}, {s(S_MASK)}, L_pc-{NAME}_kernel")
        e.op(f"s_subb_u32 {s(S_MASK+1)}, {s(S_MASK+1)}, 0")
        e.op(f"s_and_b32 {s(S_T0)}, {s(S_I)}, 1")
        e.op(f"s_lshl_b32 {s(S_T0)}, {s(S_T0)}, 2")
        e.op(f"s_add_u32 {s(S_T0)}, {s(S_T0)}, {s(S_WAVE)}")
        e.op(f"v_lshl_add_u32 {T0}, {L}, 3, {s(S_T0)}")
        e.op(f"v_lshlrev_b32 {T0}, 7, {T0}")
        e.op(f"v_min_u32 {T1}, L_cold-{NAME}_kernel, {T0}")
        e.op(f"global_load_dword {v(228)}, {T1}, {s(S_MASK,2)} {self.nt}")
        self.other_srds()
        for i in range(5):
            e.op(f"v_add_u32 {T0}, {64 * i}, {L}")
            e.op(f"v_mul_u32_u24 {T1}, 820, {T0}")
            e.op(f"v_lshrrev_b32 {T1}, 16, {T1}")
            e.op(f"v_mul_u32_u24 {T2}, 80, {T1}")
            e.op(f"v_sub_u32 {T0}, {T0}, {T2}")
            e.op(f"v_lshlrev_b32 {T1}, 2, {T1}")
            e.op(f"v_xor_b32 {T0}, {T0}, {T1}")
            e.op(f"v_add_u32 {T0}, {T0}, {T2}")
            e.op(f"v_lshlrev_b32 {v(i)}, 4, {T0}")
        VB, VC, VR4, VC2 = 8, 9, 10, 11
        e.op(f"v_bfe_u32 {T0}, {L}, 2, 2")
        e.op(f"v_lshlrev_b32 {v(VR4)}, 2, {T0}")
        e.op(f"v_mul_u32_u24 {T0}, 1280, {T0}")
        e.op(f"v_lshrrev_b32 {T1}, 4, {L}")
        e.op(f"v_mul_u32_u24 {T1}, 10240, {T1}")
        e.op(f"s_mul_i32 {s(S_XM0)}, {s(S_WAVE)}, 40960")
        e.op(f"v_add3_u32 {v(VB)}, {T0}, {T1}, {s(S_XM0)}")
        e.op(f"v_and_b32 {v(VC)}, 3, {L}")
        e.op(f"v_bfe_u32 {v(VC2)}, {L}, 1, 1")
        e.op(f"v_and_b32 {T0}, 1, {L}")
        e.op(f"v_lshl_add_u32 {v(12)}, {T0}, 3, {v(VB)}")
        e.op(f"v_add_u32 {v(13)}, 4096, {v(V_L16)}")
        S_KS = S_XOFF
        e.op(f"s_lshl_b32 {s(S_T0)}, {s(S_XCD)}, 1")
        e.op(f"s_add_u32 {s(S_T0)}, {s(S_T0)}, {s(S_I)}")
        e.op(f"s_sub_u32 {s(S_WOFF)}, {s(S_T0)}, 30")
        e.op(f"s_lshl_b32 {s(S_KS)}, {s(S_WOFF)}, 2")
        e.op(f"s_add_u32 {s(S_KS)}, {s(S_KS)}, {s(S_WAVE)}")
        e.label("L_rt_unit")
        SA, SB_, SC, SR0 = S_T0, S_T1, S_T2, S_T3
        lo, lr, lg = self.L("rt_o"), self.L("rt_r"), self.L("rt_go")
        e.op(f"s_cmp_ge_u32 {s(S_KS)}, 54")
        e.op(f"s_cbranch_scc1 {lo}")
        self.srd(S_MISC, S_PTR + 10, 1728 * 1280)
        e.op(f"s_lshl_b32 {s(SR0)}, {s(S_KS)}, 5")
        e.op(f"s_mov_b32 {s(SA)}, {16 * 1280}")
        e.op(f"s_mov_b32 {s(SB_)}, {4 * 1280}")
        e.op(f"s_mov_b32 {s(SC)}, {8 * 1280}")
        e.op(f"s_branch {lg}")
        e.label(lo)
        self.srd(S_MISC, S_PTR + 4, 640 * 1280)
        e.op(f"s_sub_u32 {s(S_T4)}, {s(S_KS)}, 54")
        e.op(f"s_mul_i32 {s(S_T5)}, {s(S_T4)}, 52")
        e.op(f"s_lshr_b32 {s(S_T5)}, {s(S_T5)}, 8")
        e.op(f"s_mul_i32 {s(SR0)}, {s(S_T5)}, 5")
        e.op(f"s_sub_u32 {s(S_T4)}, {s(S_T4)}, {s(SR0)}")
        e.op(f"s_mul_i32 {s(SR0)}, {s(S_T5)}, 160")
        e.op(f"s_cmp_eq_u32 {s(S_T4)}, 4")
        e.op(f"s_cbranch_scc1 {lr}")
        e.op(f"s_mul_i32 {s(S_T4)}, {s(S_T4)}, 40")
        e.op(f"s_add_u32 {s(SR0)}, {s(SR0)}, {s(S_T4)}")
        e.op(f"s_mov_b32 {s(SA)}, {20 * 1280}")
        e.op(f"s_mov_b32 {s(SB_)}, {4 * 1280}")
        e.op(f"s_mov_b32 {s(SC)}, {8 * 1280}")
        e.op(f"s_branch {lg}")
        e.label(lr)
        e.op(f"s_add_u32 {s(SR0)}, {s(SR0)}, 16")
        e.op(f"s_mov_b32 {s(SA)}, {80 * 1280}")
        e.op(f"s_mov_b32 {s(SB_)}, {40 * 1280}")
        e.op(f"s_mov_b32 {s(SC)}, {20 * 1280}")
        e.label(lg)
        e.op(f"s_mul_i32 {s(SR0)}, {s(SR0)}, 1280")
        for q in range(8):
            kg, u = q >> 1, q & 1
            e.op(f"s_mov_b32 {s(S_T4)}, {s(SR0)}")
            if kg >> 1: e.op(f"s_add_u32 {s(S_T4)}, {s(S_T4)}, {s(SA)}")
            if kg & 1: e.op(f"s_add_u32 {s(S_T4)}, {s(S_T4)}, {s(SB_)}")
            if u: e.op(f"s_add_u32 {s(S_T4)}, {s(S_T4)}, {s(SC)}")
            for i in range(5):
                e.op(f"s_add_u32 m0, {s(S_XM0)}, {q * 5120 + i * 1024}")
                e.op(f"buffer_load_dwordx4 {v(i)}, {s(S_MISC,4)}, {s(S_T4)} offen {self.nt}lds")
        self.nonce_issue()
        e.op(f"s_mul_i32 {s(S_T4)}, {s(S_KS)}, 5120")
        e.op(f"s_add_u32 {s(S_T4)}, {s(S_T4)}, {WS_WT}")
        self.nonce_check()
        self.stamp(1)
        D = 64
        for ng in range(8):
            for jj in range(3):
                if jj < 2:
                    e.op(f"v_add_u32 {T0}, {10 * ng + 4 * jj}, {v(VC)}")
                    base = VB
                else:
                    e.op(f"v_add_u32 {T0}, {10 * ng + 8}, {v(VC2)}")
                    base = 12
                e.op(f"v_xor_b32 {T0}, {T0}, {v(VR4)}")
                e.op(f"v_lshl_add_u32 {T0}, {T0}, 4, {v(base)}")
                for j1 in range(2 if jj < 2 else 1):
                    j = 2 * jj + j1
                    for u in range(2):
                        e.op(f"ds_read_b64_tr_b16 {v(D + 20 * ng + 4 * j + 2 * u, 2)}, {T0} offset:{u * 5120 + j1 * 8}", tag=("t", ng))
            e.wait(lg="all")
            for j in range(5):
                ad, off = (V_L16, j * 1024) if j < 4 else (13, 0)
                e.op(f"buffer_store_dwordx4 {v(D + 20 * ng + 4 * j, 4)}, {v(ad)}, {s(S_WS,4)}, {s(S_T4)} offen offset:{off} sc1")
            e.op(f"s_add_u32 {s(S_T4)}, {s(S_T4)}, {74 * 5120}")
        e.op(f"s_lshl_b32 {s(S_T1)}, {s(S_KS)}, 7")
        e.op(f"s_add_u32 {s(S_T1)}, {s(S_T1)}, {FL_D}")
        e.wait(vm="all")
        self.publish(S_T1)
        self.stamp(2)
        self.flush_stamp()
        e.op(f"s_cmp_ge_u32 {s(S_KS)}, 64")
        e.op("s_cbranch_scc1 L_rt_done")
        e.op(f"s_cmp_lg_u32 {s(S_WAVE)}, 0")
        e.op("s_cbranch_scc1 L_rt_done")
        e.op(f"s_cmp_ge_u32 {s(S_WOFF)}, 10")
        e.op("s_cbranch_scc1 L_rt_done")
        e.op(f"s_add_u32 {s(S_KS)}, {s(S_WOFF)}, 64")
        e.op("s_branch L_rt_unit")
        e.label("L_rt_done")
        self.late_setup()
        e.op(f"s_mov_b32 {s(S_ST2)}, {OOB}")
        e.op(f"s_mov_b32 {s(S_ST2B)}, {OOB}")
        e.op(f"s_mov_b32 {s(S_FLC)}, {OOB}")
        e.op("s_barrier")
        self.side_tail()

    def k_reads(self, u):
        h, j = divmod(u, 9)
        for ff in range(2):
            self.e.op(f"ds_read_b128 {v(KF + 4 * ff, 4)}, {v(V_KA)} offset:{(h + ff) * 12288 + j * 1024}", tag="k")
    def v_reads(self, u):
        h, j = divmod(u, 9)
        e = self.e
        e.op(f"s_mov_b64 exec, {s(S_VM,2)}")
        for ss in range(2):
            e.op(f"ds_read_b128 {v(VF + 4 * ss, 4)}, {v(V_VA)} offset:{j * 2560 + ss * 1280 + h * 320}", tag="v")
        e.op("s_mov_b64 exec, -1")
    def qk(self, u, part, S):
        h, j = divmod(u, 9)
        c = v(S, 16) if part else v(CE, 16) if j == 0 else v(CD, 16) if j == 8 else "0"
        self.e.op(f"v_mfma_f32_32x32x16_bf16 {v(S,16)}, {v(KF + 4 * part, 4)}, {v(QM + 8 * h + 4 * part, 4)}, {c}")
    def pv(self, u, part, S, first):
        O = v(OO[u // 9], 16)
        self.e.op(f"v_mfma_f32_32x32x16_bf16 {O}, {v(VF + 4 * part, 4)}, {v(S + 4 * part, 4)}, {'0' if first else O}")

    def q_mask(self):
        e = self.e
        lo, dn = self.L("qodd"), self.L("qdone")
        e.op(f"s_mov_b32 {s(S_MASK)}, -1")
        e.op(f"s_mov_b32 {s(S_MASK+1)}, 0")
        e.op(f"s_bitcmp1_b32 {s(S_P)}, 0")
        e.wait(vm="q")
        e.op(f"s_cbranch_scc1 {lo}")
        for par in range(2):
            if par: e.label(lo)
            for h in range(2):
                for ff in range(2):
                    for slot in range(2):
                        p0 = 4 * (h + ff) + 2 * slot - 2 * par - 5 * h
                        k0, k1 = 0 <= p0 < 5, 0 <= p0 + 1 < 5
                        for d in range(2):
                            dst, src = v(QM + 8 * h + 4 * ff + 2 * slot + d), v(VQ + 4 * (h + ff) + 2 * slot + d)
                            if k0 and k1: e.op(f"v_mov_b32 {dst}, {src}")
                            elif k0: e.op(f"v_cndmask_b32 {dst}, 0, {src}, {s(S_MASK,2)}")
                            elif k1: e.op(f"v_cndmask_b32 {dst}, {src}, 0, {s(S_MASK,2)}")
                            else: e.op(f"v_mov_b32 {dst}, 0")
            if not par: e.op(f"s_branch {dn}")
        e.label(dn)

    def attention(self):
        e = self.e
        e.label("L_att")
        self.stamp(4)
        T0 = v(V_T0)
        epi = self.p2_epilogue_ops()
        stores = [g[-1] for g in epi]
        for g in epi[:2]:
            for f in g: f()
        stores = stores[2:]
        for g in epi[2:]:
            for f in g[:-1]: f()
        self.q_mask()
        e.op(f"s_cmp_lt_u32 {s(S_TQ)}, 8")
        e.op(f"s_cselect_b64 vcc, -1, 0")
        e.wait(vm="kv")
        e.op("s_barrier")
        self.stamp(5)
        self.k_reads(0)
        e.wait(lg="k")
        self.qk(0, 0, SB[0]); self.qk(0, 1, SB[0])
        self.k_reads(1)
        side = {(u, k): [] for u in range(18) for k in range(4)}
        wl = sum([self.w_loads(n) for n in range(NWR) if n not in self.EARLY_W], [])
        wstep = self.o("wsteps", 14)
        q = []
        for i in range(max(len(wl), 1)):
            q.append(wl[i])
        slots = [(u, k) for u in range(wstep) for k in (0, 1, 2)]
        for i, f in enumerate(q): side[slots[i * len(slots) // len(q)]].append(f)
        for i, f in enumerate(stores): side[(i, 3)].append(f)
        def pub_c():
            e.wait(vm="st2")
            self.publish(S_FLC)
        side[(self.o("pubC", 9), 3)].append(pub_c)
        side[(self.o("pollC", 13), 3)].append(lambda: self.poll_issue(V_FC))
        cC = self.o("chkC", 16)
        side[(cC, 0)].append(lambda: self.poll_check(V_FC))
        if self.stamps: side[(cC, 0)].append(lambda: self.stamp(6))
        hl = [(n, t) for n in range(5) for t in range(4)]
        for (u, k) in [(u, k) for u in range(cC, 18) for k in range(4)][1:]:
            if hl:
                n, t = hl.pop(0)
                side[(u, k)].append(lambda n=n, t=t: self.h_load(n, t))
        self.h_left = hl
        for u in range(18):
            h, j = divmod(u, 9)
            S, Sn, Sp = SB[u % 3], SB[(u + 1) % 3], SB[(u - 1) % 3]
            ex = lambda i: e.op(f"v_exp_f32 {v(S + i)}, {v(S + i)}")
            cv = lambda i: e.op(f"v_cvt_pk_bf16_f32 {v(S + i)}, {v(S + 2 * i)}, {v(S + 2 * i + 1)}")
            if u < 17:
                e.wait(lg="k")
                self.qk(u + 1, 0, Sn)
            if j < 8:
                st, bk = self.L("inv"), self.L("inv_ok")
                e.op(f"s_cbranch_vccnz {st}")
                e.label(bk)
                def stub(st=st, bk=bk, j=j, S=S):
                    e.label(st, reset=True)
                    e.op(f"s_cmp_lt_u32 {s(S_TQ)}, {8 - j}")
                    e.op(f"s_cbranch_scc0 {bk}")
                    e.op("s_nop 7")
                    e.op("s_nop 3")
                    for i in range(16): e.op(f"v_mov_b32 {v(S + i)}, {hex(NEGBIG)}")
                    e.op(f"s_branch {bk}")
                self.stubs.append(stub)
            for f in side[(u, 0)]: f()
            for i in range(0, 4): ex(i)
            if u < 17: self.qk(u + 1, 1, Sn)
            e.wait(lg="v")
            if u < 16: self.k_reads(u + 2)
            for f in side[(u, 1)]: f()
            for i in range(4, 8): ex(i)
            cv(0); cv(1)
            if u > 0: self.pv(u - 1, 0, Sp, (u - 1) % 9 == 0)
            for f in side[(u, 2)]: f()
            for i in range(8, 12): ex(i)
            cv(2); cv(3)
            if u > 0: self.pv(u - 1, 1, Sp, False)
            self.v_reads(u)
            for f in side[(u, 3)]: f()
            for i in range(12, 16): ex(i)
            for i in range(4, 8): cv(i)
        e.wait(lg="v")
        self.pv(17, 0, SB[17 % 3], False); self.pv(17, 1, SB[17 % 3], False)
        self.stamp(7)
        OP = 0
        for h in range(2):
            O = OO[h]
            st, bk = self.L("slow"), self.L("slow_ok")
            e.op(f"v_subrev_u32 {T0}, 0x2f800000, {v(O + 12)}")
            e.op(f"v_cmp_le_u32 vcc, 0x20000000, {T0}")
            if self.o("forceslow", 0): e.op("s_mov_b64 vcc, -1")
            for _ in range(2):
                if self.h_left:
                    n, t = self.h_left.pop(0); self.h_load(n, t)
            e.op(f"s_cbranch_vccnz {st}")
            e.label(bk)
            self.stubs.append(lambda st=st, bk=bk, h=h: self.slow_head(h, st, bk))
        for h in range(2):
            O = OO[h]
            e.op(f"v_rcp_f32 {T0}, {v(O + 12)}")
            if self.h_left:
                n, t = self.h_left.pop(0); self.h_load(n, t)
            for i in range(12): e.op(f"v_mul_f32 {v(O + i)}, {v(O + i)}, {T0}")
            for i in range(4): e.op(f"v_cvt_pk_bf16_f32 {v(OP + 4 * h + i)}, {v(O + 2 * i)}, {v(O + 2 * i + 1)}")
            for i in range(2): e.op(f"v_cvt_pk_bf16_f32 {v(OP + 8 + 2 * h + i)}, {v(O + 8 + 2 * i)}, {v(O + 9 + 2 * i)}")
            e.op(f"buffer_store_dwordx4 {v(OP + 4 * h, 4)}, {v(V_L16)}, {s(S_WS,4)}, {s(S_OST)} offen offset:{h * 1024} sc1", tag="sto")
        e.op("s_mov_b32 exec_hi, 0")
        e.op(f"buffer_store_dwordx4 {v(OP + 8, 4)}, {v(V_L16)}, {s(S_WS,4)}, {s(S_OST2)} offen sc1", tag="sto")
        e.op("s_mov_b32 exec_hi, -1")

    def slow_head(self, h, st, bk):
        e = self.e
        e.label(st, reset=True)
        e.vm, e.lg = [], []
        T0, MX = v(V_T0), v(V_T1)
        O, S = OO[h], SB[0]
        e.op("s_nop 15")
        e.op(f"v_mov_b32 {MX}, {hex(NEGBIG)}")
        for i in range(16): e.op(f"v_mov_b32 {v(O + i)}, 0")
        for ps in range(2):
            for j in range(9):
                u = 9 * h + j
                sk = self.L("sk")
                if j < 8:
                    e.op(f"s_cmp_lt_u32 {s(S_TQ)}, {8 - j}")
                    e.op(f"s_cbranch_scc1 {sk}")
                if ps: self.v_reads(u)
                self.k_reads(u)
                e.wait(lg="all")
                self.qk(u, 0, S); self.qk(u, 1, S)
                if ps == 0:
                    for i in range(8): e.op(f"v_max3_f32 {MX}, {MX}, {v(S + 2 * i)}, {v(S + 2 * i + 1)}")
                else:
                    for i in range(16): e.op(f"v_sub_f32 {v(S + i)}, {v(S + i)}, {MX}")
                    for i in range(16): e.op(f"v_exp_f32 {v(S + i)}, {v(S + i)}")
                    for i in range(8): e.op(f"v_cvt_pk_bf16_f32 {v(S + i)}, {v(S + 2 * i)}, {v(S + 2 * i + 1)}")
                    self.pv(u, 0, S, False); self.pv(u, 1, S, False)
                    e.op("s_nop 7")
                e.label(sk)
            if ps == 0:
                e.op(f"v_mov_b32 {T0}, {MX}")
                e.op(f"v_permlane32_swap_b32 {T0}, {MX}")
                e.op("s_nop 1")
                e.op(f"v_max_f32 {MX}, {T0}, {MX}")
        e.op("s_nop 15")
        e.op(f"s_branch {bk}")

    def stage3(self):
        e = self.e
        L = v(V_LANE); T0, T1, T2, T3 = v(V_T0), v(V_T1), v(V_T2), v(V_T3)
        VG, VG1, VRW, VRR = 224, 228, 232, 235
        VOUT = V_VA
        self.stamp(8)
        setup = []
        A = lambda t: setup.append(lambda: e.op(t))
        A(f"v_and_b32 {T0}, 15, {L}")
        A(f"v_lshrrev_b32 {T1}, 4, {L}")
        for t in range(4):
            A(f"s_add_u32 {s(S_T0)}, {s(S_WAVE)}, {t + 1}")
            A(f"s_and_b32 {s(S_T0)}, {s(S_T0)}, 3")
            A(f"s_lshl_b32 {s(S_T3)}, {s(S_TB64)}, 2")
            A(f"s_add_u32 {s(S_T3)}, {s(S_T3)}, {s(S_T0)}")
            A(f"s_lshl_b32 {s(S_T3)}, {s(S_T3)}, 6")
            A(f"s_add_u32 {s(S_T3)}, {s(S_T3)}, {WS_G}")
            A(f"v_lshl_add_u32 {v(VG1 + t)}, {T0}, 2, {s(S_T3)}")
            setup.append(lambda t=t: e.op(f"buffer_load_dword {v(VG + t)}, {v(VG1 + t)}, {s(S_WS,4)}, 0 offen sc1", tag="g"))
            if t < 3:
                A(f"s_mul_i32 {s(S_T3)}, {s(S_T0)}, 15360")
                A(f"s_add_u32 {s(S_T3)}, {s(S_T3)}, {L_RED + t * 5120}")
                A(f"v_add_u32 {v(VRW + t)}, {s(S_T3)}, {v(V_L16)}")
        A(f"s_mul_i32 {s(S_T3)}, {s(S_WAVE)}, 15360")
        A(f"s_add_u32 {s(S_T3)}, {s(S_T3)}, {L_RED}")
        A(f"v_add_u32 {v(VRR)}, {s(S_T3)}, {v(V_L16)}")
        A(f"s_lshl_b32 {s(S_T0)}, {s(S_TB64)}, 2")
        A(f"s_add_u32 {s(S_T0)}, {s(S_T0)}, {s(S_WAVE)}")
        A(f"s_mul_i32 {s(S_T0)}, {s(S_T0)}, {16 * 1280}")
        A(f"s_mul_i32 {s(S_T1)}, {s(S_NG)}, 160")
        A(f"s_add_u32 {s(S_T0)}, {s(S_T0)}, {s(S_T1)}")
        A(f"v_mul_u32_u24 {T3}, 1280, {T0}")
        A(f"v_add_u32 {T3}, {s(S_T0)}, {T3}")
        A(f"v_lshl_add_u32 {v(VOUT)}, {T1}, 4, {T3}")
        A(f"v_lshl_add_u32 {v(VOUT + 1)}, {T1}, 3, {T3}")
        cB = self.o("chkB", 9)
        Q = [(0, lambda n=n, t=t: self.h_load(n, t)) for n, t in self.h_left]
        wq = {n: self.w_loads(n) for n in range(12, 19)}
        for n in range(5, 14):
            if n >= 12: Q += [(n - 11, f) for f in wq[n]]
            Q += [(max(n - 5, 0), lambda n=n, t=t: self.h_load(n, t)) for t in range(4)]
        for n in range(14, 19): Q += [(n - 11, f) for f in wq[n]]
        for t in range(4):
            for n in range(14, 19):
                i = 5 * t + n - 14
                Q.append((max(9 + i // 4, cB), lambda n=n, t=t: self.h_load(n, t)))
        def issue(step):
            for i, (fr, f) in enumerate(Q):
                if fr <= step:
                    Q.pop(i); f(); return
        per = self.o("per", 3)
        cnt = 0
        for n in range(14):
            if n == self.o("pubB", 2):
                e.wait(vm="sto"); self.publish(S_FLB)
            if n == self.o("pollB", 7): self.poll_issue(V_FB)
            if n == cB:
                self.poll_check(V_FB); self.stamp(9)
            for t in range(4):
                for j in range(5):
                    while any(tag not in self.issued_tags() for tag in (("w", n, j), ("h", n, t))): issue(n)
                    e.wait(vm=[("w", n, j), ("h", n, t)])
                    acc = v(BA + 20 * t + 4 * j, 4)
                    e.op(f"v_mfma_f32_16x16x32_bf16 {acc}, {r(WR + 20 * (n % NWR) + 4 * j, 4)}, {v(self.hreg(n, t), 4)}, {'0' if n == 0 else acc}")
                    cnt += 1
                    if cnt % per == 0 or (n == 0 and cnt % 2 == 0): issue(n)
                    elif setup and n >= 1: setup.pop(0)()
        assert not setup
        self.stamp(10)
        e.wait(vm="g")
        for t in range(4): e.op(f"v_sub_f32 {v(VG1 + t)}, 1.0, {v(VG + t)}")
        def combine(t):
            A_ = AA + 20 * (t & 1)
            pre = [lambda i=i: e.op(f"v_mul_f32 {v(BA + 20 * t + i)}, {v(BA + 20 * t + i)}, {v(VG1 + t)}") for i in range(20)]
            ops = []
            for j in range(5):
                for i in range(4):
                    ops.append(lambda k=4 * j + i: e.op(f"v_fmac_f32 {v(BA + 20 * t + k)}, {v(A_ + k)}, {v(VG + t)}"))
                if t < 3:
                    ops.append(lambda j=j: e.op(f"ds_write_b128 {v(VRW + t)}, {v(BA + 20 * t + 4 * j, 4)} offset:{j * 1024}", tag="red"))
            return pre, ops
        post = []
        for t in range(4):
            pre, mine = combine(t)
            q = post + pre
            i = 0
            need = [x for x in range(len(Q))]
            for n in range(14, 19):
                for j in range(5):
                    while any(tag not in self.issued_tags() for tag in (("w", n, j), ("h", n, t))): issue(99)
                    e.wait(vm=[("w", n, j), ("h", n, t)])
                    acc = v(AA + 20 * (t & 1) + 4 * j, 4)
                    e.op(f"v_mfma_f32_16x16x32_bf16 {acc}, {r(WR + 20 * (n % NWR) + 4 * j, 4)}, {v(self.hreg(n, t), 4)}, {'0' if n == 14 else acc}")
                    if Q and i % per == 0: issue(99)
                    if i >= 2:
                        for _ in range(2):
                            if q: q.pop(0)()
                    i += 1
            while q: q.pop(0)()
            post = mine
        assert not Q
        self.stamp(11)
        e.wait(lg="all")
        e.op("s_barrier")
        RD = 64
        for sl in range(3):
            for j in range(5):
                e.op(f"ds_read_b128 {v(RD + 20 * sl + 4 * j, 4)}, {v(VRR)} offset:{sl * 5120 + j * 1024}", tag=("rd", sl))
        for f in post: f()
        F = BA + 60
        for sl in range(3):
            e.wait(lg=("rd", sl))
            for i in range(10):
                e.op(f"v_pk_add_f32 {v(F + 2 * i, 2)}, {v(F + 2 * i, 2)}, {v(RD + 20 * sl + 2 * i, 2)}")
        for i in range(10):
            e.op(f"v_cvt_pk_bf16_f32 {v(AA + i)}, {v(F + 2 * i)}, {v(F + 2 * i + 1)}")
        e.op(f"buffer_store_dwordx4 {v(AA,4)}, {v(VOUT)}, {s(S_OUT,4)}, 0 offen")
        e.op(f"buffer_store_dwordx4 {v(AA+4,4)}, {v(VOUT)}, {s(S_OUT,4)}, 0 offen offset:64")
        e.op(f"buffer_store_dwordx2 {v(AA+8,2)}, {v(VOUT+1)}, {s(S_OUT,4)}, 0 offen offset:128")
        self.stamp(12)
    def issued_tags(self): return self.e.all_tags

    def finish(self):
        e = self.e
        if self.stamps:
            e.wait(vm="all")
            self.stamp(13)
            e.op(f"s_memtime {s(S_VM,2)}")
            self.flush_stamp()
            e.op(f"s_sub_u32 {s(S_VM)}, {s(S_VM)}, {s(S_CYC0)}")
            e.op(f"v_writelane_b32 {v(V_STAMP)}, {s(S_VM)}, {NSTAMP}")
            e.op(f"s_lshl_b32 {s(S_T0)}, s2, 2")
            e.op(f"s_add_u32 {s(S_T0)}, {s(S_T0)}, {s(S_WAVE)}")
            e.op(f"s_lshl_b32 {s(S_T0)}, {s(S_T0)}, 7")
            e.op(f"s_add_u32 {s(S_T0)}, {s(S_T0)}, {WS_ST}")
            e.op(f"v_lshlrev_b32 {v(V_T0)}, 2, {v(V_LANE)}")
            e.op("s_mov_b32 exec_hi, 0")
            e.op(f"buffer_store_dword {v(V_STAMP)}, {v(V_T0)}, {s(S_WS,4)}, {s(S_T0)} offen")
        e.op("s_endpgm")

    def build(self):
        e = self.e
        self.prologue()
        self.stage1()
        self.attention()
        self.stage3()
        self.finish()
        self.gate()
        self.retile()
        slow = [f for f in self.stubs if f.__name__ == "<lambda>"]
        for f in self.stubs:
            if f not in slow:
                e.vm, e.lg = [], []
                f()
        e.label("L_cold")
        for f in slow: f()
        e.label("L_end")
        e.op("s_endpgm")
        head = open("cdna_kernels/" + NAME + ".s.ref").read().split("\n")
        head = [l for l in head if l.startswith(";") and "@launch" not in l]
        txt = "\n".join(head) + f"\n; @launch grid=(256,1,1) block=(256,1,1) lds={LDS_BYTES}\n"
        txt += f""".amdgcn_target "amdgcn-amd-amdhsa--gfx950"
.text
.globl {NAME}_kernel
.p2align 8
.type {NAME}_kernel,@function
{NAME}_kernel:
"""
        txt += e.text()
        txt += f""".section .rodata,"a"
.p2align 6
.amdhsa_kernel {NAME}_kernel
  .amdhsa_next_free_vgpr 512
  .amdhsa_next_free_sgpr 102
  .amdhsa_accum_offset 256
  .amdhsa_group_segment_fixed_size 0
  .amdhsa_kernarg_size 80
  .amdhsa_user_sgpr_count 2
  .amdhsa_user_sgpr_kernarg_segment_ptr 1
  .amdhsa_system_sgpr_workgroup_id_x 1
.end_amdhsa_kernel
"""
        return txt

if __name__ == "__main__":
    out = sys.argv[1] if len(sys.argv) > 1 else "cdna_kernels/" + NAME + ".s"
    opt = {}
    for x in sys.argv[2:]:
        if "=" in x:
            k, val = x.split("="); opt[k] = int(val)
    g = Gen(stamps="--stamps" in sys.argv, opt=opt)
    txt = g.build()
    open(out, "w").write(txt)
    print("instructions", g.e.count, "pad states", g.e.nops, file=sys.stderr)
    if "--nops" in sys.argv:
        for n, t in g.e.log_nops: print(n, t, file=sys.stderr)
```

```python
import re

def v(i, n=1): return f"v{i}" if n == 1 else f"v[{i}:{i+n-1}]"
def a(i, n=1): return f"a{i}" if n == 1 else f"a[{i}:{i+n-1}]"
def s(i, n=1): return f"s{i}" if n == 1 else f"s[{i}:{i+n-1}]"
def r(i, n=1):
    return v(i, n) if i < 256 else a(i - 256, n)

_REG = re.compile(r"^(-)?(\|)?(abs\()?([vas])(?:(\d+)|\[(\d+):(\d+)\])\)?\|?$")

def regs_of(opnd):
    opnd = opnd.strip()
    if opnd == "vcc": return {("s", 106), ("s", 107)}
    if opnd == "vcc_lo": return {("s", 106)}
    if opnd == "vcc_hi": return {("s", 107)}
    if opnd == "exec": return {("s", 126), ("s", 127)}
    if opnd == "exec_lo": return {("s", 126)}
    if opnd == "exec_hi": return {("s", 127)}
    if opnd == "m0": return {("s", 124)}
    m = _REG.match(opnd)
    if not m: return set()
    k = m.group(4)
    lo = int(m.group(5) if m.group(5) is not None else m.group(6))
    hi = int(m.group(5) if m.group(5) is not None else m.group(7))
    if k == "a": return {("v", 256 + i) for i in range(lo, hi + 1)}
    return {(k, i) for i in range(lo, hi + 1)}

TRANS = ("v_exp_f32", "v_log_f32", "v_rcp_f32", "v_rsq_f32", "v_sqrt_f32", "v_sin_f32", "v_cos_f32", "v_rcp_iflag_f32")

class Ins:
    __slots__ = ("text", "mn", "kind", "wr", "rd", "passes", "srcc", "srcab", "states", "stdata", "dma")
    def __init__(self, text):
        self.text = text
        t = text.split(";")[0].strip()
        parts = t.split(None, 1)
        self.mn = mn = parts[0]
        ops = []
        if len(parts) > 1:
            depth = 0; cur = ""
            for ch in parts[1]:
                if ch == "[": depth += 1
                if ch == "]": depth -= 1
                if ch == "," and depth == 0: ops.append(cur); cur = ""
                else: cur += ch
            ops.append(cur)
            last = ops[-1].strip().split()
            mods = last[1:]
            ops[-1] = last[0] if last else ""
        else:
            mods = []
        ops = [o.strip() for o in ops]
        self.passes = 0; self.srcc = set(); self.srcab = set(); self.states = 1; self.stdata = set(); self.dma = False
        R = [regs_of(o) for o in ops]
        U = lambda l: set().union(*l) if l else set()
        if mn.startswith("v_mfma"):
            self.kind = "mfma"; self.passes = 8 if "32x32" in mn else 4
            self.wr = R[0]; self.srcab = R[1] | R[2]; self.srcc = R[3]; self.rd = self.srcab | self.srcc
        elif mn.startswith("v_"):
            self.kind = "valu"
            if mn.startswith("v_cmp"):
                self.wr = R[0]; self.rd = U(R[1:])
            elif mn.startswith("v_permlane"):
                self.wr = R[0] | R[1]; self.rd = R[0] | R[1]
            elif "_co_" in mn or mn.startswith("v_mad_u64"):
                self.wr = R[0] | R[1]; self.rd = U(R[2:])
            else:
                self.wr = R[0]; self.rd = U(R[1:])
                if mn.startswith("v_fmac") or mn.startswith("v_writelane"): self.rd = self.rd | R[0]
        elif mn.startswith("ds_"):
            self.kind = "ds"
            if mn.startswith("ds_read") or mn.startswith("ds_bpermute") or mn.startswith("ds_swizzle"):
                self.wr = R[0]; self.rd = U(R[1:])
            else:
                self.wr = set(); self.rd = U(R)
        elif mn.startswith("buffer_") or mn.startswith("global_"):
            self.kind = "vmem"
            if "lds" in mods or mn.startswith("global_load_lds"):
                self.dma = True; self.wr = set(); self.rd = U(R) | {("s", 124)}
            elif "_load" in mn:
                self.wr = R[0]; self.rd = U(R[1:])
            else:
                self.wr = set(); self.rd = U(R)
                if mn.endswith("x4") or mn.endswith("x3"):
                    self.stdata = R[0] if mn.startswith("buffer_") else R[1]
        elif mn.startswith("s_"):
            self.kind = "salu"
            if mn == "s_nop":
                self.states = int(ops[0], 0) + 1; self.wr = set(); self.rd = set()
            elif mn.startswith("s_cmp") or mn.startswith("s_bitcmp") or mn.startswith("s_cbranch") or mn in ("s_waitcnt", "s_barrier", "s_branch", "s_sleep", "s_setprio", "s_endpgm"):
                self.wr = set(); self.rd = U(R)
            else:
                self.wr = R[0] if R else set(); self.rd = U(R[1:])
                if "saveexec" in mn: self.wr = self.wr | regs_of("exec")
        else:
            raise ValueError("unknown instruction: " + text)

def need_states(p, c):
    n = 0
    pv = {x for x in p.wr if x[0] == "v"}
    ps = {x for x in p.wr if x[0] == "s"}
    if p.kind == "valu":
        if c.kind == "mfma" and pv & c.rd: n = max(n, 2)
        if c.kind == "valu":
            if p.mn.replace("_e32", "").replace("_e64", "") in TRANS and pv & c.rd: n = max(n, 1)
            if ps & c.rd: n = max(n, 4 if c.mn.startswith(("v_readlane", "v_writelane")) else 2)
            if (ps & regs_of("vcc")) and (c.mn.startswith("v_cndmask") or "addc" in c.mn or "subb" in c.mn): n = max(n, 2)
            if c.mn.startswith(("v_readlane", "v_readfirstlane")) and pv & c.rd: n = max(n, 1)
            if c.mn.startswith("v_permlane") and pv & c.rd: n = max(n, 2)
            if ("dpp" in c.text or "row_" in c.text or "quad_perm" in c.text) and pv & c.rd: n = max(n, 2)
            if ("op_sel" in p.text and not p.mn.startswith("v_pk_")) and pv & c.rd: n = max(n, 1)
        if c.kind == "vmem" and ps & c.rd: n = max(n, 5)
        if c.kind == "salu" and ps & c.rd: n = max(n, 1)
        if c.mn.startswith("s_cbranch_vcc") and ps & regs_of("vcc"): n = max(n, 1)
    if p.kind == "mfma":
        P = p.passes
        if c.kind == "mfma":
            if p.wr & c.srcab: n = max(n, P + 4)
            if p.wr & c.srcc:
                if not (p.wr == c.srcc and p.passes == c.passes): n = max(n, P + 2)
            elif p.wr & c.wr: n = max(n, P + 2)
        elif c.kind in ("valu", "vmem", "ds"):
            if p.wr & (c.rd | c.wr): n = max(n, P + 4)
            if c.kind == "valu" and p.srcc & c.wr: n = max(n, P - 1)
    if p.kind == "salu" and ("s", 124) in p.wr and c.dma: n = max(n, 1)
    if p.kind == "vmem" and p.stdata:
        if p.stdata & c.wr: n = max(n, 2)
    return n

class Emit:
    def __init__(self):
        self.out = []
        self.hist = []
        self.vm = []
        self.lg = []
        self.nops = 0
        self.count = 0
        self.log_nops = []
        self.autowaits = 0
        self.all_tags = set()
    def raw(self, text): self.out.append(text)
    def comment(self, t): self.out.append("    ; " + t)
    def label(self, name, reset=False):
        self.out.append(name + ":")
        if reset: self.hist = []
    def _push(self, ins):
        self.out.append("    " + ins.text)
        self.hist.append(ins)
        if len(self.hist) > 24: self.hist.pop(0)
        self.count += 1
    def op(self, text, tag=None):
        ins = Ins(text)
        if ins.kind == "ds" and len(self.lg) + self.lg.count("SMEM") >= 15:
            self.autowaits += 1
            self.wait(lg=[self.lg[0]]) if self.lg.count(self.lg[0]) == 1 or "SMEM" in self.lg else self._drop_one()
        need = 0; dist = 0
        for p in reversed(self.hist):
            k = need_states(p, ins) - dist
            if k > need: need = k
            dist += p.states
            if dist >= 20: break
        if need > 0:
            self.nops += need
            self.log_nops.append((need, text))
            while need > 0:
                k = min(need, 16)
                self._push(Ins(f"s_nop {k-1}")); need -= k
        self._push(ins)
        if ins.kind == "vmem":
            self.vm.append(tag); self.all_tags.add(tag)
            assert len(self.vm) <= 63, "too many vmem ops outstanding"
        elif ins.kind == "ds":
            self.lg.append(tag)
        elif ins.mn.startswith("s_load") or ins.mn.startswith("s_mem"):
            self.lg.append("SMEM")
        return ins
    def _drop_one(self):
        n = len(self.lg) - 1
        self.lg = self.lg[1:]
        self.op(f"s_waitcnt lgkmcnt({n})")
    def ops(self, text):
        for l in text.strip().split("\n"):
            l = l.strip()
            if l: self.op(l)
    @staticmethod
    def _left(q, tags):
        idx = -1
        for i, t in enumerate(q):
            if t in tags: idx = i
        return None if idx < 0 else len(q) - 1 - idx
    def wait(self, vm=None, lg=None):
        parts = []
        if vm is not None:
            tags = vm if isinstance(vm, (list, set)) else [vm]
            n = 0 if vm == "all" else self._left(self.vm, tags)
            if n is not None:
                parts.append(f"vmcnt({n})"); self.vm = self.vm[len(self.vm) - n:] if n else []
        if lg is not None:
            tags = lg if isinstance(lg, (list, set)) else [lg]
            n = 0 if lg == "all" else self._left(self.lg, tags)
            if n is not None:
                if "SMEM" in self.lg: n = 0
                if n > 15: n = 15
                parts.append(f"lgkmcnt({n})"); self.lg = self.lg[len(self.lg) - n:] if n else []
        if parts: self.op("s_waitcnt " + " ".join(parts))
    def snapshot(self): return (list(self.vm), list(self.lg), list(self.hist))
    def restore(self, snap): self.vm, self.lg, self.hist = list(snap[0]), list(snap[1]), list(snap[2])
    def text(self): return "\n".join(self.out) + "\n"
```

```python
import sys, math, struct
from asmlib import *

NAME = "gated_mix__sliding_block__dense_activation_relu__prompt"

WS_QK = 0
WS_VT = WS_QK + 80 * 64 * 1024
WS_H  = WS_VT + 16 * 64 * 2560
WS_O  = WS_H + 64 * 110592
WS_WT = WS_O + 64 * 40960
WS_G  = WS_WT + 8 * 74 * 5120
WS_FL = WS_G + 8192
WS_ST = WS_FL + 5 * 1024 * 128
WS_SIZE = WS_ST + 1024 * 128
OOB = 0x4000000
assert WS_SIZE < OOB
FL_A, FL_C, FL_B, FL_D, FL_DD = [WS_FL + p * 131072 for p in range(5)]

NW, NX = 5, 5
L_W = 0
L_X = NW * 16384
L_K = L_X
L_V = L_K + 36 * 1024
L_RED = 0
LDS_BYTES = 163840

S_X, S_WA, S_WB, S_WS, S_OUT, S_DBG, S_MISC = 4, 8, 12, 16, 20, 24, 28
S_WAVE, S_XCD, S_I, S_RB, S_CG, S_P, S_RBA, S_TB64, S_NG = 32, 33, 34, 35, 36, 37, 38, 39, 40
S_CYC0 = 75
S_DM = 0
S_NONCE = 42
S_T0, S_T1, S_T2, S_T3, S_T4, S_T5 = 44, 45, 46, 47, 48, 49
S_XOFF, S_WOFF, S_XM0, S_WM0, S_W2OFF = 50, 51, 52, 53, 54
S_ST1B = 55
S_SCALE = 56
S_ST1, S_ST2, S_ST2B = 58, 59, 60
S_SPIN = 61
S_MASK = 62
S_PTR = 64
S_TQ, S_QOFF, S_FLA, S_FLC, S_FLB = 84, 85, 86, 87, 88
S_KOFF = 89
S_VOFF = 92
S_WT0 = 95
S_STMP = 96
S_WB64 = 98
S_VM = 100
S_HT = 64
S_OT = 76
S_WT1 = 72
S_RTS, S_RTF = 70, 71
S_OST, S_OST2 = 73, 74
S_PILO, S_PIHI = 3, 41

V_LANE = 255
V_L16 = 254
V_NONCE = 252
V_T0, V_T1, V_T2, V_T3 = 248, 249, 250, 251
V_POLL = 246
V_FA, V_FD, V_FC, V_FB = 245, 244, 243, 242
V_KA, V_VA, V_HL, V_STAMP, V_ZERO, V_QP = 241, 240, 239, 238, 237, 236
V_XD = 0
V_WD = 4
V_WD2 = 8
V_XR = 12
V_WR = 16
V_ST1 = 24
V_FR = 32
ACC = (128, 64)
A_X = 256
RT_D, RT_LD, RT_RD, RT_ST = 64, 76, 79, 82
L_RT = L_W + 4 * 16384
SB = (0, 16, 32)
OO = (176, 48)
VQ, QM, VF, KF, CD, CE = 128, 144, 160, 168, 192, 208
BA, AA = 144, 0
HSLOT = (64, 80, 96, 112, 128, 48)
WR = 256
NH, NWR = 6, 12
NSTAMP = 14

def f32(x): return "0x%08x" % struct.unpack("<I", struct.pack("<f", x))[0]
QSCALE = math.log2(math.e) / math.sqrt(20.0)
NEGBIG = 0xff800000
SPIN_MAX = 0x40000

class Gen:
    def __init__(self, stamps=False, opt=None):
        self.e = Emit()
        self.stamps = stamps
        self.uid = 0
        self.opt = opt or {}
        self.stubs = []
        self.pending_stamp = None
        self.open_poll = None; self.open_nonce = False
        self.nt = "nt " if self.o("nt", 1) else ""
        self.ntx = "nt " if self.o("ntx", 0) else ""
        self.ntw = "nt " if self.o("ntw", 0) else ""
    def o(self, k, d): return self.opt.get(k, d)
    def L(self, p):
        self.uid += 1
        return f"L_{p}_{self.uid}"
    def stamp(self, idx, rt=False):
        if not self.stamps: return
        if (self.o("rtdbg", 0) or self.o("zoom", 0)) and not rt and 0 < idx < 13: return
        e = self.e
        self.flush_stamp()
        e.op(f"{'s_memtime' if self.o('cyc', 0) else 's_memrealtime'} {s(S_STMP, 2)}")
        self.pending_stamp = idx
    def flush_stamp(self):
        if self.pending_stamp is None: return
        e = self.e
        if "SMEM" in e.lg: e.wait(lg="all")
        e.op(f"v_writelane_b32 {v(V_STAMP)}, {s(S_STMP)}, {self.pending_stamp}")
        self.pending_stamp = None

    def srd(self, d, ptr, nbytes):
        e = self.e
        e.op(f"s_mov_b32 {s(d)}, {s(ptr)}")
        e.op(f"s_and_b32 {s(d+1)}, {s(ptr+1)}, 0xffff")
        e.op(f"s_mov_b32 {s(d+2)}, {nbytes}")
        e.op(f"s_mov_b32 {s(d+3)}, 0x20000")

    def nonce_issue(self):
        self.e.op(f"buffer_load_dwordx2 {v(V_NONCE,2)}, {v(V_ZERO)}, {s(S_DBG,4)}, 0 offen sc1", tag="nonce")
        self.open_nonce = True
    def nonce_check(self):
        e = self.e
        st, bk = self.L("nonce"), self.L("nonce_ok")
        assert self.open_nonce
        e.wait(vm="nonce")
        e.op(f"v_readfirstlane_b32 {s(S_NONCE)}, {v(V_NONCE)}")
        e.op(f"v_readfirstlane_b32 {s(S_NONCE+1)}, {v(V_NONCE+1)}")
        e.op(f"s_cmp_eq_u32 {s(S_NONCE)}, 0")
        e.op(f"s_cbranch_scc1 {st}")
        e.label(bk)
        def stub():
            e.label(st, reset=True)
            e.op(f"s_mov_b32 {s(S_SPIN)}, 0")
            e.label(st + "_l")
            e.op(f"s_sleep {self.o('sleep', 4)}")
            e.op(f"buffer_load_dwordx2 {v(V_NONCE,2)}, {v(V_ZERO)}, {s(S_DBG,4)}, 0 offen sc1")
            e.op(f"s_add_u32 {s(S_SPIN)}, {s(S_SPIN)}, 1")
            e.wait(vm="all")
            e.op(f"v_readfirstlane_b32 {s(S_NONCE)}, {v(V_NONCE)}")
            e.op(f"v_readfirstlane_b32 {s(S_NONCE+1)}, {v(V_NONCE+1)}")
            e.op(f"s_cmp_gt_u32 {s(S_SPIN)}, {SPIN_MAX}")
            e.op(f"s_cbranch_scc1 {bk}")
            e.op(f"s_cmp_eq_u32 {s(S_NONCE)}, 0")
            e.op(f"s_cbranch_scc1 {st}_l")
            e.op(f"s_branch {bk}")
        self.stubs.append(stub)

    def publish(self, soff):
        e = self.e
        e.op("s_mov_b64 exec, 1")
        e.op(f"buffer_store_dwordx2 {v(V_NONCE,2)}, {v(V_ZERO)}, {s(S_WS,4)}, {s(soff)} offen sc1", tag="flag")
        e.op("s_mov_b64 exec, -1")

    def poll_issue(self, vaddr):
        self.e.op(f"buffer_load_dwordx2 {v(V_POLL,2)}, {v(vaddr)}, {s(S_WS,4)}, 0 offen sc1", tag="poll")
        self.open_poll = vaddr
    def poll_check(self, vaddr):
        e = self.e
        st, bk = self.L("poll"), self.L("poll_ok")
        assert self.open_poll == vaddr; self.open_poll = None
        e.wait(vm="poll")
        e.op(f"v_cmp_ne_u64 {s(S_MASK,2)}, {s(S_NONCE,2)}, {v(V_POLL,2)}")
        e.op(f"s_cmp_lg_u64 {s(S_MASK,2)}, 0")
        e.op(f"s_cbranch_scc1 {st}")
        e.label(bk)
        def stub():
            e.label(st, reset=True)
            e.op(f"s_mov_b32 {s(S_SPIN)}, 0")
            e.op(f"s_branch {st}_f")
            e.label(st + "_l")
            e.op(f"s_sleep {self.o('sleep', 4)}")
            e.label(st + "_f")
            e.op(f"buffer_load_dwordx2 {v(V_POLL,2)}, {v(vaddr)}, {s(S_WS,4)}, 0 offen sc1")
            e.op(f"s_add_u32 {s(S_SPIN)}, {s(S_SPIN)}, 1")
            e.wait(vm="all")
            e.op(f"v_cmp_ne_u64 {s(S_MASK,2)}, {s(S_NONCE,2)}, {v(V_POLL,2)}")
            e.op(f"s_cmp_gt_u32 {s(S_SPIN)}, {SPIN_MAX}")
            e.op(f"s_cbranch_scc1 {bk}")
            e.op(f"s_cmp_lg_u64 {s(S_MASK,2)}, 0")
            e.op(f"s_cbranch_scc1 {st}_l")
            if self.stamps: e.op(f"v_writelane_b32 {v(V_STAMP)}, {s(S_SPIN)}, {16 + V_FA - vaddr}")
            e.op(f"s_branch {bk}")
        self.stubs.append(stub)

    def flag_off(self, dst, base, tb, col):
        e = self.e
        e.op(f"s_lshl_b32 {s(dst)}, {s(tb)}, 4")
        e.op(f"s_add_u32 {s(dst)}, {s(dst)}, {s(col)}")
        e.op(f"s_lshl_b32 {s(dst)}, {s(dst)}, 4")
        e.op(f"s_add_u32 {s(dst)}, {s(dst)}, {s(S_WAVE)}")
        e.op(f"s_lshl_b32 {s(dst)}, {s(dst)}, 3")
        e.op(f"s_add_u32 {s(dst)}, {s(dst)}, {base}")
    def vflag(self, dst, base, tb, col, tmp):
        e = self.e
        e.op(f"v_lshrrev_b32 {tmp}, 2, {tb}")
        e.op(f"v_lshl_add_u32 {tmp}, {tmp}, 4, {col}")
        e.op(f"v_lshlrev_b32 {tmp}, 4, {tmp}")
        e.op(f"v_and_or_b32 {tmp}, {tb}, 3, {tmp}")
        e.op(f"v_lshlrev_b32 {tmp}, 3, {tmp}")
        e.op(f"v_add_u32 {dst}, {base}, {tmp}")
    def capture(self, *fns):
        e = self.e
        rec = []
        real = e.op
        e.op = lambda text, tag=None: rec.append(text)
        try:
            for f in fns: f()
        finally:
            e.op = real
        atoms = []
        for t in rec:
            if t == "s_nop 0": continue
            if t.startswith(("s_cselect", "s_addc")): atoms[-1].append(t)
            else: atoms.append([t])
        return [lambda a=a_: [e.op(t) for t in a] and None for a_ in atoms]

    def prologue(self):
        e = self.e
        e.op("s_cmp_ge_u32 s2, 256")
        e.op("s_cbranch_scc1 L_end")
        e.op(f"s_load_dwordx16 {s(S_PTR,16)}, s[0:1], 0")
        e.op(f"s_load_dwordx4 {s(S_PTR+16,4)}, s[0:1], 64")
        e.op("s_cmp_lt_u32 s2, 240")
        e.op("s_cbranch_scc1 L_nopf")
        e.op(f"s_getpc_b64 {s(S_MASK,2)}")
        e.label("L_pc")
        e.op(f"s_bfe_u32 {s(S_T0)}, s2, 0x10003")
        e.op(f"v_lshl_add_u32 {v(V_T0)}, v0, 1, {s(S_T0)}")
        e.op(f"v_lshlrev_b32 {v(V_T0)}, 7, {v(V_T0)}")
        e.op(f"v_min_u32 {v(V_T0)}, L_cold-L_pc, {v(V_T0)}")
        e.op(f"global_load_dword {v(228)}, {v(V_T0)}, {s(S_MASK,2)}")
        e.vm = []
        e.label("L_nopf")
        if self.stamps:
            e.op(f"v_mov_b32 {v(V_STAMP)}, 0")
            e.op(f"s_memtime {s(S_VM,2)}")
        self.stamp(0)
        e.op(f"v_lshrrev_b32 {v(V_T0)}, 6, v0")
        e.op(f"v_and_b32 {v(V_LANE)}, 63, v0")
        e.op(f"v_readfirstlane_b32 {s(S_WAVE)}, {v(V_T0)}")
        e.op(f"v_lshlrev_b32 {v(V_L16)}, 4, {v(V_LANE)}")
        e.op(f"v_mov_b32 {v(V_ZERO)}, 0")
        if self.o("badmap", 0):
            e.op(f"s_lshr_b32 {s(S_XCD)}, s2, 5")
            e.op(f"s_and_b32 {s(S_I)}, s2, 31")
        else:
            e.op(f"s_and_b32 {s(S_XCD)}, s2, 7")
            e.op(f"s_lshr_b32 {s(S_I)}, s2, 3")
        e.op(f"s_lshr_b32 {s(S_T0)}, {s(S_XCD)}, 1")
        e.op(f"s_mul_i32 {s(S_T1)}, {s(S_T0)}, 30")
        e.op(f"s_add_u32 {s(S_T1)}, {s(S_T1)}, {s(S_I)}")
        e.op(f"s_and_b32 {s(S_T2)}, {s(S_XCD)}, 1")
        e.op(f"s_lshl_b32 {s(S_T3)}, {s(S_T2)}, 3")
        e.op(f"s_and_b32 {s(S_RB)}, {s(S_T1)}, 7")
        e.op(f"s_add_u32 {s(S_RB)}, {s(S_RB)}, {s(S_T3)}")
        e.op(f"s_lshr_b32 {s(S_CG)}, {s(S_T1)}, 3")
        tabs, ca, cb, cx = self.pi_tables()
        e.op(f"s_mul_i32 {s(S_T4)}, {s(S_RB)}, {ca}")
        e.op(f"s_mul_i32 {s(S_T5)}, {s(S_CG)}, {cb}")
        e.op(f"s_add_u32 {s(S_T4)}, {s(S_T4)}, {s(S_T5)}")
        e.op(f"s_mul_i32 {s(S_T5)}, {s(S_XCD)}, {cx}")
        e.op(f"s_add_u32 {s(S_T4)}, {s(S_T4)}, {s(S_T5)}")
        e.op(f"s_and_b32 {s(S_T4)}, {s(S_T4)}, {len(tabs) - 1}")
        for i, tb in enumerate(tabs):
            assert sorted(tb) == list(range(10))
            lo = sum(k << (4 * n) for n, k in enumerate(tb[:8])); hi = tb[8] | (tb[9] << 4)
            if i == 0:
                e.op(f"s_mov_b32 {s(S_PILO)}, {hex(lo)}")
                e.op(f"s_mov_b32 {s(S_PIHI)}, {hex(hi)}")
            else:
                e.op(f"s_cmp_eq_u32 {s(S_T4)}, {i}")
                e.op(f"s_cselect_b32 {s(S_PILO)}, {hex(lo)}, {s(S_PILO)}")
                e.op(f"s_cselect_b32 {s(S_PIHI)}, {hex(hi)}, {s(S_PIHI)}")
        L = v(V_LANE); T0, T1, T2, T3 = v(V_T0), v(V_T1), v(V_T2), v(V_T3)
        e.op(f"v_lshrrev_b32 {T0}, 3, {L}")
        e.op(f"v_mul_u32_u24 {T0}, 1280, {T0}")
        e.op(f"v_lshrrev_b32 {T1}, 4, {L}")
        e.op(f"v_and_b32 {T2}, 7, {L}")
        e.op(f"v_xor_b32 {T2}, {T2}, {T1}")
        for n in range(4):
            if n & 1: e.op(f"v_xor_b32 {T3}, 4, {T2}")
            else: e.op(f"v_mov_b32 {T3}, {T2}")
            e.op(f"v_lshl_add_u32 {T3}, {T3}, 4, {T0}")
            e.op(f"v_add_u32 {v(V_XD+n)}, {n * (8 * 1280 - 1024)}, {T3}")
        e.op(f"v_lshlrev_b32 {T2}, 2, {T1}")
        e.op(f"v_and_b32 {T3}, 15, {L}")
        e.op(f"v_xor_b32 {T2}, {T2}, {T3}")
        e.op(f"v_lshlrev_b32 {T2}, 4, {T2}")
        for base, rs in ((V_WD, 3840), (V_WD2, 3456)):
            e.op(f"v_mul_u32_u24 {T0}, {rs}, {T1}")
            e.op(f"v_add_u32 {T0}, {T0}, {T2}")
            for n in range(4):
                e.op(f"v_add_u32 {v(base+n)}, {n * (4 * rs - 1024)}, {T0}")
        e.op(f"s_lshl_b32 {s(S_T0)}, {s(S_RB)}, 2")
        e.op(f"s_add_u32 {s(S_T0)}, {s(S_T0)}, {s(S_WAVE)}")
        e.op(f"s_mul_i32 {s(S_XOFF)}, {s(S_T0)}, {32 * 1280}")
        e.op(f"s_lshl_b32 {s(S_T1)}, {s(S_CG)}, 8")
        e.op(f"s_mul_i32 {s(S_WOFF)}, {s(S_WAVE)}, {16 * 3840}")
        e.op(f"s_add_u32 {s(S_WOFF)}, {s(S_WOFF)}, {s(S_T1)}")
        e.op(f"s_mul_i32 {s(S_W2OFF)}, {s(S_WAVE)}, {16 * 3456}")
        e.op(f"s_add_u32 {s(S_W2OFF)}, {s(S_W2OFF)}, {s(S_T1)}")
        e.op(f"s_mul_i32 {s(S_XM0)}, {s(S_WAVE)}, {NX * 4096}")
        e.op(f"s_add_u32 {s(S_XM0)}, {s(S_XM0)}, {L_X}")
        e.op(f"s_lshl_b32 {s(S_WM0)}, {s(S_WAVE)}, 12")
        e.wait(lg="all")
        if self.stamps: e.op(f"v_writelane_b32 {v(V_STAMP)}, {s(S_VM)}, {NSTAMP + 1}")
        self.flush_stamp()
        self.srd(S_X, S_PTR + 0, 2048 * 1280)
        self.srd(S_WA, S_PTR + 2, 640 * 3840)
        self.srd(S_WB, S_PTR + 8, 640 * 3456)
        if self.o("touch", 0):
            e.op(f"s_lshl_b32 {s(S_T0)}, s2, 2")
            e.op(f"s_add_u32 {s(S_T0)}, {s(S_T0)}, {s(S_WAVE)}")
            for k, (srd, n) in enumerate(((S_X, 20), (S_WA, 19), (S_WB, 17))[:self.o("touch", 0)]):
                e.op(f"s_mul_i32 {s(S_T1)}, {s(S_T0)}, {n * 128}")
                e.op(f"v_min_u32 {T0}, {n - 1}, {L}")
                e.op(f"v_lshlrev_b32 {T0}, 7, {T0}")
                e.op(f"buffer_load_dword {v(224 + k)}, {T0}, {s(srd,4)}, {s(S_T1)} offen")
        e.op(f"s_cmp_ge_u32 {s(S_I)}, 30")
        e.op("s_cbranch_scc1 L_spare")

    def pi_tables(self):
        mode = self.o("pi", 1)
        if mode == 0: return [list(range(10))], 0, 0, 0
        if mode == 1:
            return [[0,4,1,2,3,8,5,6,7,9], [1,0,5,2,3,4,9,6,7,8], [2,0,1,6,3,4,5,7,8,9], [3,0,1,2,7,4,5,6,8,9]], 1, 1, 0
        if mode == 2:
            return [[(n + (5 * i) // 4) % 10 for n in range(10)] for i in range(8)], 1, 2, 0
        if mode == 3:
            return [[(n + (5 * i) // 4) % 10 for n in range(10)] for i in range(8)], 0, 0, 1
        if mode == 4:
            return [[(n + i) % 5 for n in range(5)] + [5 + (n + i) % 5 for n in range(5)] for i in range(4)], 1, 1, 0
        if mode == 5:
            return [[0,2,1,4,3,6,5,8,7,9], [1,0,3,2,5,4,7,6,9,8]], 1, 1, 0
    def pi_get(self, dst, st):
        self.e.op(f"s_bfe_u32 {s(dst)}, {s(S_PILO if st < 8 else S_PIHI)}, {hex((4 << 16) | (4 * (st % 8)))}")

    def other_srds(self):
        self.srd(S_WS, S_PTR + 18, WS_SIZE)
        self.srd(S_OUT, S_PTR + 14, 2048 * 1280)
        self.srd(S_DBG, S_PTR + 16, 256)
        self.srd(S_MISC, S_PTR + 12, 1280)

    def dma_x(self, st):
        e = self.e
        def mk(n):
            def f():
                if n == 0:
                    e.op(f"s_add_u32 m0, {s(S_XM0)}, {(st % NX) * 4096}")
                    self.pi_get(S_DM, st)
                    e.op(f"s_lshl_b32 {s(S_DM)}, {s(S_DM)}, 7")
                    e.op(f"s_add_u32 {s(S_DM)}, {s(S_DM)}, {s(S_XOFF)}")
                e.op(f"buffer_load_dwordx4 {v(V_XD+n)}, {s(S_X,4)}, {s(S_DM)} offen offset:{n*1024} {self.ntx}lds", tag=("d", st))
            return f
        return [mk(n) for n in range(4)]
    def dma_w(self, st):
        e = self.e
        srd, vd, so, rs, k = (S_WA, V_WD, S_WOFF, 3840, st) if st < 10 else (S_WB, V_WD2, S_W2OFF, 3456, st - 10)
        def mk(n):
            def f():
                if n == 0:
                    e.op(f"s_add_u32 m0, {s(S_WM0)}, {L_W + (st % NW) * 16384}")
                    self.pi_get(S_DM, k)
                    e.op(f"s_mul_i32 {s(S_DM)}, {s(S_DM)}, {64 * rs}")
                    e.op(f"s_add_u32 {s(S_DM)}, {s(S_DM)}, {s(so)}")
                e.op(f"buffer_load_dwordx4 {v(vd+n)}, {s(srd,4)}, {s(S_DM)} offen offset:{n*1024} {self.ntw}lds", tag=("d", st))
            return f
        return [mk(n) for n in range(4)]

    def stage1_setup(self):
        e = self.e
        L = v(V_LANE); T0, T1, T2, T3 = v(V_T0), v(V_T1), v(V_T2), v(V_T3)
        e.op(f"v_and_b32 {T0}, 31, {L}")
        e.op(f"v_bfe_u32 {T1}, {L}, 1, 3")
        e.op(f"v_lshrrev_b32 {T2}, 5, {L}")
        e.op(f"v_xor_b32 {T1}, {T1}, {T2}")
        e.op(f"v_lshlrev_b32 {T1}, 4, {T1}")
        e.op(f"v_lshl_add_u32 {T1}, {T0}, 7, {T1}")
        for ks in range(4):
            e.op(f"v_xor_b32 {T3}, {ks * 32}, {T1}")
            e.op(f"v_add_u32 {v(V_XR+ks)}, {s(S_XM0)}, {T3}")
        e.op(f"v_bfe_u32 {T0}, {L}, 2, 2")
        e.op(f"v_lshl_add_u32 {T1}, {T2}, 3, {T0}")
        e.op(f"v_lshlrev_b32 {T1}, 8, {T1}")
        e.op(f"v_lshl_add_u32 {T1}, {T0}, 6, {T1}")
        e.op(f"v_bfe_u32 {T3}, {L}, 4, 1")
        e.op(f"v_lshl_add_u32 {T1}, {T3}, 5, {T1}")
        e.op(f"v_and_b32 {T3}, 3, {L}")
        e.op(f"v_lshl_add_u32 {T1}, {T3}, 3, {T1}")
        for j in range(4):
            e.op(f"v_xor_b32 {v(V_WR+j)}, {j * 64}, {T1}")
            e.op(f"v_add_u32 {v(V_WR+4+j)}, 0x10000, {v(V_WR+j)}")
    def store_setup(self, isv):
        e = self.e
        L = v(V_LANE); T0, T1, T2, T3 = v(V_T0), v(V_T1), v(V_T2), v(V_T3)
        e.op(f"s_lshl_b32 {s(S_T0)}, {s(S_RB)}, 2")
        e.op(f"s_add_u32 {s(S_T0)}, {s(S_T0)}, {s(S_WAVE)}")
        self.flag_off(S_FLA, FL_A, S_RB, S_CG)
        e.op(f"s_add_u32 {s(S_FLC)}, {s(S_FLA)}, {FL_C - FL_A}")
        if not isv:
            for j in range(4):
                e.op(f"v_add_u32 {v(V_ST1+j)}, {j * 131072}, {v(V_L16)}")
            e.op(f"s_lshl_b32 {s(S_ST1)}, {s(S_CG)}, 19")
            e.op(f"s_lshl_b32 {s(S_T1)}, {s(S_T0)}, 10")
            e.op(f"s_add_u32 {s(S_ST1)}, {s(S_ST1)}, {s(S_T1)}")
            e.op(f"s_add_u32 {s(S_ST1B)}, {s(S_ST1)}, {WS_QK + 65536}")
            e.op(f"s_add_u32 {s(S_ST1)}, {s(S_ST1)}, {WS_QK}")
        else:
            e.op(f"s_sub_u32 {s(S_T1)}, {s(S_CG)}, 10")
            e.op(f"s_lshl_b32 {s(S_T1)}, {s(S_T1)}, 7")
            e.op(f"v_and_b32 {T0}, 31, {L}")
            e.op(f"v_add_u32 {T0}, {s(S_T1)}, {T0}")
            e.op(f"v_lshrrev_b32 {T2}, 5, {L}")
            e.op(f"v_mul_u32_u24 {T2}, 640, {T2}")
            e.op(f"s_mov_b32 {s(S_T2)}, {64 * 2560 - 640}")
            for j in range(4):
                e.op(f"v_add_u32 {T1}, {32 * j}, {T0}")
                e.op(f"v_mul_u32_u24 {T3}, 1639, {T1}")
                e.op(f"v_lshrrev_b32 {T3}, 16, {T3}")
                e.op(f"v_lshl_add_u32 {T1}, {T1}, 4, {T2}")
                e.op(f"v_mad_u32_u24 {v(V_ST1+j)}, {T3}, {s(S_T2)}, {T1}")
            e.op(f"s_mul_i32 {s(S_ST1)}, {s(S_T0)}, 2560")
            e.op(f"s_add_u32 {s(S_ST1B)}, {s(S_ST1)}, {WS_VT + 1280}")
            e.op(f"s_add_u32 {s(S_ST1)}, {s(S_ST1)}, {WS_VT}")
        e.op(f"s_cmp_lt_u32 {s(S_CG)}, 5")
        e.op(f"s_cselect_b32 {s(S_SCALE)}, {f32(QSCALE)}, 1.0")
        e.op(f"s_mov_b32 {s(S_SCALE+1)}, {s(S_SCALE)}")
        e.op(f"s_mul_i32 {s(S_ST2)}, {s(S_T0)}, 110592")
        e.op(f"s_lshl_b32 {s(S_T1)}, {s(S_CG)}, 13")
        e.op(f"s_add_u32 {s(S_ST2)}, {s(S_ST2)}, {s(S_T1)}")
        e.op(f"s_add_u32 {s(S_ST2)}, {s(S_ST2)}, {WS_H}")
        e.op(f"s_add_u32 {s(S_ST2B)}, {s(S_ST2)}, 4096")
        e.op(f"s_cmp_lt_u32 {s(S_CG)}, 13")
        e.op(f"s_cselect_b32 {s(S_ST2B)}, {s(S_ST2B)}, {OOB}")
        e.op(f"s_cmp_lt_u32 {s(S_CG)}, 14")
        e.op(f"s_cselect_b32 {s(S_ST2)}, {s(S_ST2)}, {OOB}")

    def late_setup(self):
        e = self.e
        L = v(V_LANE); T0, T1, T2, T3 = v(V_T0), v(V_T1), v(V_T2), v(V_T3)
        P0, P1 = v(V_POLL), v(V_POLL + 1)
        e.op(f"s_lshr_b32 {s(S_P)}, {s(S_I)}, 4")
        e.op(f"s_lshl_b32 {s(S_T3)}, {s(S_XCD)}, 1")
        e.op(f"s_add_u32 {s(S_P)}, {s(S_P)}, {s(S_T3)}")
        e.op(f"s_and_b32 {s(S_RBA)}, {s(S_I)}, 15")
        if self.o("map3", 0) == 0:
            e.op(f"s_lshr_b32 {s(S_T0)}, {s(S_XCD)}, 1")
            e.op(f"s_lshl_b32 {s(S_TB64)}, {s(S_T0)}, 3")
            e.op(f"s_and_b32 {s(S_T3)}, {s(S_I)}, 7")
            e.op(f"s_add_u32 {s(S_TB64)}, {s(S_TB64)}, {s(S_T3)}")
            e.op(f"s_and_b32 {s(S_T2)}, {s(S_XCD)}, 1")
            e.op(f"s_lshl_b32 {s(S_NG)}, {s(S_T2)}, 2")
            e.op(f"s_lshr_b32 {s(S_T3)}, {s(S_I)}, 3")
            e.op(f"s_add_u32 {s(S_NG)}, {s(S_NG)}, {s(S_T3)}")
        else:
            e.op(f"s_lshl_b32 {s(S_TB64)}, {s(S_XCD)}, 2")
            e.op(f"s_and_b32 {s(S_T3)}, {s(S_I)}, 3")
            e.op(f"s_add_u32 {s(S_TB64)}, {s(S_TB64)}, {s(S_T3)}")
            e.op(f"s_lshr_b32 {s(S_NG)}, {s(S_I)}, 2")
        S_F0, S_TB0 = S_T4, S_T5
        e.op(f"s_mul_i32 {s(S_F0)}, {s(S_P)}, 10")
        e.op(f"s_lshr_b32 {s(S_F0)}, {s(S_F0)}, 2")
        e.op(f"s_lshl_b32 {s(S_TQ)}, {s(S_RBA)}, 2")
        e.op(f"s_mul_i32 {s(S_T0)}, {s(S_WAVE)}, 3")
        e.op(f"s_add_u32 {s(S_TB0)}, {s(S_TQ)}, {s(S_T0)}")
        e.op(f"s_sub_u32 {s(S_TB0)}, {s(S_TB0)}, 8")
        e.op(f"s_add_u32 {s(S_TQ)}, {s(S_TQ)}, {s(S_WAVE)}")
        e.op(f"v_and_b32 {T0}, 1, {L}")
        e.op(f"v_lshl_add_u32 {T1}, {T0}, 1, {s(S_F0)}")
        e.op(f"v_lshrrev_b32 {T1}, 3, {T1}")
        e.op(f"s_mul_i32 {s(S_T0)}, {s(S_P)}, 40")
        e.op(f"v_mul_u32_u24 {T0}, 39, {T0}")
        e.op(f"v_add_u32 {T0}, {s(S_T0)}, {T0}")
        e.op(f"v_lshrrev_b32 {T0}, 7, {T0}")
        e.op(f"v_add_u32 {T0}, 10, {T0}")
        e.op(f"v_lshrrev_b32 {T2}, 1, {L}")
        e.op(f"v_min_u32 {T2}, 6, {T2}")
        e.op(f"v_cmp_lt_u32 vcc, 2, {T2}")
        e.op(f"v_add_u32 {P0}, 5, {T1}")
        e.op(f"v_subrev_u32 {P1}, 3, {T2}")
        e.op(f"v_cndmask_b32 {P0}, {P0}, {T0}, vcc")
        e.op(f"v_cndmask_b32 {P1}, {T2}, {P1}, vcc")
        e.op(f"v_cmp_lt_u32 vcc, 5, {T2}")
        e.op(f"v_add_u32 {P1}, {s(S_TB0)}, {P1}")
        e.op(f"v_max_i32 {P1}, 0, {P1}")
        e.op(f"v_mov_b32 {T3}, {s(S_TQ)}")
        e.op(f"v_cndmask_b32 {P0}, {P0}, {T1}, vcc")
        e.op(f"v_cndmask_b32 {P1}, {P1}, {T3}, vcc")
        self.vflag(v(V_FA), FL_A, P1, P0, T0)
        e.op(f"s_lshl_b32 {s(S_T0)}, {s(S_F0)}, 16")
        e.op(f"s_lshl_b32 {s(S_QOFF)}, {s(S_TQ)}, 10")
        e.op(f"s_add_u32 {s(S_QOFF)}, {s(S_QOFF)}, {s(S_T0)}")
        e.op(f"s_mul_i32 {s(S_T3)}, {s(S_P)}, {64 * 2560}")
        for i in range(3):
            e.op(f"s_add_i32 {s(S_T1)}, {s(S_TB0)}, {i}")
            e.op(f"s_max_i32 {s(S_T1)}, {s(S_T1)}, 0")
            e.op(f"s_lshl_b32 {s(S_KOFF + i)}, {s(S_T1)}, 10")
            e.op(f"s_add_u32 {s(S_KOFF + i)}, {s(S_KOFF + i)}, {s(S_T0)}")
            e.op(f"s_mul_i32 {s(S_VOFF + i)}, {s(S_T1)}, 2560")
            e.op(f"s_add_u32 {s(S_VOFF + i)}, {s(S_VOFF + i)}, {s(S_T3)}")
            e.op(f"s_add_u32 {s(S_VOFF + i)}, {s(S_VOFF + i)}, {WS_VT}")
        e.op(f"v_and_b32 {T0}, 31, {L}")
        e.op(f"v_lshrrev_b32 {T1}, 5, {L}")
        e.op(f"v_lshlrev_b32 {T2}, 2, {T1}")
        e.op(f"v_sub_u32 {T2}, {T0}, {T2}")
        e.op(f"v_mov_b32 {T3}, {hex(NEGBIG)}")
        for rr in range(0, 16, 2):
            e.op(f"v_cmp_gt_i32 vcc, {8 * (rr >> 2) + (rr & 3)}, {T2}")
            e.op(f"v_cmp_gt_i32 {s(S_MASK,2)}, {8 * (rr >> 2) + (rr & 3) + 1}, {T2}")
            e.op("s_nop 0")
            e.op(f"v_cndmask_b32 {v(CD + rr)}, 0, {T3}, vcc")
            e.op(f"v_cndmask_b32 {v(CE + rr)}, {T3}, 0, vcc")
            e.op(f"v_cndmask_b32 {v(CD + rr + 1)}, 0, {T3}, {s(S_MASK,2)}")
            e.op(f"v_cndmask_b32 {v(CE + rr + 1)}, {T3}, 0, {s(S_MASK,2)}")
        e.op(f"s_lshl_b32 {s(S_T1)}, {s(S_WAVE)}, 10")
        e.op(f"s_add_u32 {s(S_T1)}, {s(S_T1)}, {L_K}")
        e.op(f"v_add_u32 {v(V_KA)}, {s(S_T1)}, {v(V_L16)}")
        e.op(f"s_mul_i32 {s(S_T1)}, {s(S_WAVE)}, 2560")
        e.op(f"s_add_u32 {s(S_T1)}, {s(S_T1)}, {L_V}")
        e.op(f"v_mul_u32_u24 {T2}, 640, {T1}")
        e.op(f"v_lshl_add_u32 {T2}, {T0}, 4, {T2}")
        e.op(f"v_add_u32 {v(V_VA)}, {s(S_T1)}, {T2}")
        e.op(f"s_mov_b32 {s(S_VM)}, 0xfffff")
        e.op(f"s_mov_b32 {s(S_VM+1)}, 0xfffff")
        e.op(f"s_lshr_b32 {s(S_T0)}, {s(S_P)}, 2")
        e.op(f"s_mul_i32 {s(S_T0)}, {s(S_T0)}, {20 * 512}")
        e.op(f"s_mul_i32 {s(S_T1)}, {s(S_TQ)}, 40960")
        e.op(f"s_add_u32 {s(S_T0)}, {s(S_T0)}, {s(S_T1)}")
        e.op(f"s_add_u32 {s(S_T0)}, {s(S_T0)}, {WS_O}")
        e.op(f"s_and_b32 {s(S_T1)}, {s(S_P)}, 3")
        e.op(f"s_lshl_b32 {s(S_OST)}, {s(S_T1)}, 11")
        e.op(f"s_add_u32 {s(S_OST)}, {s(S_OST)}, {s(S_T0)}")
        e.op(f"s_lshl_b32 {s(S_T1)}, {s(S_T1)}, 9")
        e.op(f"s_add_u32 {s(S_T1)}, {s(S_T1)}, {s(S_T0)}")
        e.op(f"s_add_u32 {s(S_OST2)}, {s(S_T1)}, {16 * 512}")
        self.flag_off(S_FLB, FL_B, S_RBA, S_P)
        e.op(f"v_and_b32 {T0}, 15, {L}")
        e.op(f"v_lshrrev_b32 {T1}, 4, {L}")
        e.op(f"v_lshlrev_b32 {T2}, 9, {T1}")
        e.op(f"v_lshl_add_u32 {v(V_HL)}, {T0}, 4, {T2}")
        e.op(f"s_lshl_b32 {s(S_T4)}, {s(S_WAVE)}, 11")
        e.op(f"s_add_u32 {s(S_T4)}, {s(S_T4)}, {WS_H}")
        e.op(f"s_mul_i32 {s(S_T5)}, {s(S_WAVE)}, {5 * 2048}")
        e.op(f"s_add_u32 {s(S_T5)}, {s(S_T5)}, {WS_O}")
        for t in range(4):
            e.op(f"s_add_u32 {s(S_T0)}, {s(S_WAVE)}, {t + 1}")
            e.op(f"s_and_b32 {s(S_T0)}, {s(S_T0)}, 3")
            e.op(f"s_lshr_b32 {s(S_T1)}, {s(S_T0)}, 1")
            e.op(f"s_lshl_b32 {s(S_T2)}, {s(S_TB64)}, 1")
            e.op(f"s_add_u32 {s(S_T1)}, {s(S_T1)}, {s(S_T2)}")
            e.op(f"s_and_b32 {s(S_T2)}, {s(S_T0)}, 1")
            e.op(f"s_lshl_b32 {s(S_T2)}, {s(S_T2)}, 8")
            e.op(f"s_mul_i32 {s(S_T3)}, {s(S_T1)}, 110592")
            e.op(f"s_add_u32 {s(S_T3)}, {s(S_T3)}, {s(S_T2)}")
            e.op(f"s_add_u32 {s(S_HT + t)}, {s(S_T3)}, {s(S_T4)}")
            e.op(f"s_mul_i32 {s(S_T3)}, {s(S_T1)}, 40960")
            e.op(f"s_add_u32 {s(S_T3)}, {s(S_T3)}, {s(S_T2)}")
            e.op(f"s_add_u32 {s(S_OT + t)}, {s(S_T3)}, {s(S_T5)}")
        e.op(f"s_mul_i32 {s(S_T2)}, {s(S_NG)}, 74")
        e.op(f"s_add_u32 {s(S_T0)}, {s(S_T2)}, {s(S_WAVE)}")
        e.op(f"s_mul_i32 {s(S_WT0)}, {s(S_T0)}, 5120")
        e.op(f"s_add_u32 {s(S_WT0)}, {s(S_WT0)}, {WS_WT + 2048}")
        e.op(f"s_mul_i32 {s(S_T1)}, {s(S_WAVE)}, 5")
        e.op(f"s_add_u32 {s(S_T1)}, {s(S_T1)}, {s(S_T2)}")
        e.op(f"s_mul_i32 {s(S_WT1)}, {s(S_T1)}, 5120")
        e.op(f"s_add_u32 {s(S_WT1)}, {s(S_WT1)}, {WS_WT + 54 * 5120 + 2048}")
        e.op(f"v_and_b32 {T1}, 1, {L}")
        e.op(f"s_lshl_b32 {s(S_T0)}, {s(S_TB64)}, 1")
        e.op(f"v_add_u32 {T1}, {s(S_T0)}, {T1}")
        e.op(f"v_lshrrev_b32 {T0}, 1, {L}")
        e.op(f"v_min_u32 {T0}, 14, {T0}")
        self.vflag(v(V_FC), FL_C, T1, T0, T2)
        e.op(f"v_lshrrev_b32 {T0}, 1, {L}")
        e.op(f"v_min_u32 {T0}, 3, {T0}")
        e.op(f"s_lshl_b32 {s(S_T1)}, {s(S_WAVE)}, 2")
        e.op(f"v_add_u32 {T0}, {s(S_T1)}, {T0}")
        self.vflag(v(V_FB), FL_B, T1, T0, T2)
        e.op(f"s_lshl_b32 {s(S_T1)}, {s(S_XCD)}, 7")
        e.op(f"s_add_u32 {s(S_T1)}, {s(S_T1)}, {FL_DD}")
        e.op(f"v_mov_b32 {v(V_FD)}, {s(S_T1)}")

    def w_loads(self, n):
        e = self.e
        def mk(j):
            def f():
                dst = r(WR + 20 * (n % NWR) + 4 * j, 4)
                if n == 13:
                    if j in (0, 4):
                        e.op(f"s_add_u32 {s(S_T2)}, {s(S_WT0)}, {n * 4 * 5120 - 2048 + (4096 if j else 0)}")
                        e.op(f"s_cmp_lt_u32 {s(S_WAVE)}, 2")
                        e.op(f"s_cselect_b32 {s(S_T2)}, {s(S_T2)}, {OOB}")
                    e.op(f"buffer_load_dwordx4 {dst}, {v(V_L16)}, {s(S_WS,4)}, {s(S_T2)} offen offset:{(j & 3) * 1024} sc1", tag=("w", n, j))
                    return
                if j == 0:
                    if n < 14: e.op(f"s_add_u32 {s(S_T2)}, {s(S_WT0)}, {n * 4 * 5120}")
                    else: e.op(f"s_add_u32 {s(S_T2)}, {s(S_WT1)}, {(n - 14) * 5120}")
                    e.op(f"s_add_u32 {s(S_WB64)}, {s(S_PTR + 18)}, {s(S_T2)}")
                    e.op(f"s_addc_u32 {s(S_WB64 + 1)}, {s(S_PTR + 19)}, 0")
                e.op(f"global_load_dwordx4 {dst}, {v(V_L16)}, {s(S_WB64,2)} offset:{j * 1024 - 2048} sc1", tag=("w", n, j))
            return f
        return [mk(j) for j in range(5)]
    LDS_W = (14, 15, 16, 17)
    def wl_dmas(self):
        e = self.e
        def f(i):
            if i % 4 == 0:
                e.op(f"s_mul_i32 {s(S_T2)}, {s(S_WAVE)}, 20480")
                e.op(f"s_add_u32 m0, {s(S_T2)}, {L_W + i * 1024}")
                e.op(f"s_add_u32 {s(S_DM)}, {s(S_WT1)}, {i * 1024 - 2048}")
            e.op(f"buffer_load_dwordx4 {v(V_L16)}, {s(S_WS,4)}, {s(S_DM)} offen offset:{(i % 4) * 1024} sc1 lds", tag="wl")
        return [lambda i=i: f(i) for i in range(5 * len(self.LDS_W))]
    def hreg(self, n, t):
        if n < 14: return HSLOT[n % NH] + 4 * t
        i = 5 * t + (n - 14)
        return HSLOT[(14 + i // 4) % NH] + 4 * (i % 4)
    def h_load(self, n, t):
        e = self.e
        if n < 14: e.op(f"s_add_u32 {s(S_T5)}, {s(S_HT + t)}, {n * 8192}")
        else: e.op(f"s_add_u32 {s(S_T5)}, {s(S_OT + t)}, {(n - 14) * 2048}")
        if n == 13:
            e.op(f"s_cmp_lt_u32 {s(S_WAVE)}, 2")
            e.op(f"s_cselect_b32 {s(S_T5)}, {s(S_T5)}, {OOB}")
        e.op(f"buffer_load_dwordx4 {v(self.hreg(n, t), 4)}, {v(V_HL)}, {s(S_WS,4)}, {s(S_T5)} offen sc1", tag=("h", n, t))
    def kvq_loads(self):
        e = self.e
        ops = []
        def q(f):
            e.op(f"s_add_u32 {s(S_T4)}, {s(S_QOFF)}, {WS_QK + f * 65536}")
            e.op(f"buffer_load_dwordx4 {v(VQ + 4 * f, 4)}, {v(V_L16)}, {s(S_WS,4)}, {s(S_T4)} offen sc1", tag="q")
        def k(i, f):
            if i == 0 and f == 0: e.op(f"s_mul_i32 {s(S_T5)}, {s(S_WAVE)}, 3072")
            e.op(f"s_add_u32 m0, {s(S_T5)}, {L_K + f * 12288 + i * 1024}")
            e.op(f"s_add_u32 {s(S_T4)}, {s(S_KOFF + i)}, {WS_QK + (40 + f) * 65536}")
            e.op(f"buffer_load_dwordx4 {v(V_L16)}, {s(S_WS,4)}, {s(S_T4)} offen sc1 lds", tag="kv")
        def vv(i, n):
            if i == 0 and n == 0: e.op(f"s_mul_i32 {s(S_T5)}, {s(S_WAVE)}, 7680")
            if n == 0: e.op(f"s_add_u32 m0, {s(S_T5)}, {L_V + i * 2560}")
            if n == 2: e.op("s_mov_b32 exec_hi, 0")
            e.op(f"buffer_load_dwordx4 {v(V_L16)}, {s(S_WS,4)}, {s(S_VOFF + i)} offen offset:{n * 1024} sc1 lds", tag="kv")
            if n == 2: e.op("s_mov_b32 exec_hi, -1")
        for f in range(3): ops.append(lambda f=f: q(f))
        for i in range(3):
            for f in range(3): ops.append(lambda i=i, f=f: k(i, f))
        for i in range(3):
            for n in range(3): ops.append(lambda i=i, n=n: vv(i, n))
        return ops
    EARLY_W = (8, 9, 10, 11)

    def w_read(self, st, f, u):
        ks, j = f >> 2, f & 3
        slot = st % NW
        off = L_W + slot * 16384 + ks * 4096 + u * 1024
        ad = V_WR + j
        if off >= 65536: off -= 65536; ad += 4
        m = 16 * st + f
        self.e.op(f"ds_read_b64_tr_b16 {v(V_FR + 4 * (m % 8) + 2 * u, 2)}, {v(ad)} offset:{off}", tag=("w", m))
    def x_read(self, st, ks):
        self.e.op(f"ds_read_b128 {r(A_X + 16 * st + 4 * ks, 4)}, {v(V_XR + ks)} offset:{(st % NX) * 4096}", tag=("x", st, ks))

    def stage1_fill(self):
        e = self.e
        fill = {m: [] for m in range(-1, 320)}
        def at(m, f): fill[max(m, -1)].append(f)
        for st in range(20):
            b = 16 * st - 4
            def bar(st=st):
                assert ("d", st) in e.all_tags
                e.wait(vm=("d", st), lg="all")
                e.op("s_barrier")
            at(b, bar)
            if st < 10:
                for ks in range(4): at(b + 3 * ks, lambda st=st, ks=ks: self.x_read(st, ks))
            for rho in range(32):
                at(b + rho * 13 // 32, lambda st=st, rho=rho: self.w_read(st, rho >> 1, rho & 1))
        return fill

    def vm_schedule(self, fill, queues, m0, m1, thr):
        lag = 0
        where = {}
        for m in range(m0, m1):
            lag = max(0, lag - 32)
            heads = [q for q in queues if q and q[0][0] <= m]
            if not heads: continue
            q = min(heads, key=lambda q: q[0][1])
            if q[0][1] <= m or lag <= thr:
                rel, dl, cost, f = q.pop(0)
                fill[m].append(f); where[f] = m
                lag = min(lag, 3 * 72) + cost
        assert not any(queues), [len(q) for q in queues]
        return where

    def p1_epilogue_ops(self):
        e = self.e
        groups = []
        for j in range(4):
            for h in range(2):
                A = ACC[0] + 16 * j + 8 * h
                ops = []
                if self.o("pkmul", 0):
                    for q in range(4):
                        ops.append(lambda A=A, q=q: e.op(f"v_pk_mul_f32 {v(A+2*q,2)}, {v(A+2*q,2)}, {s(S_SCALE,2)}"))
                else:
                    for q in range(8):
                        ops.append(lambda A=A, q=q: e.op(f"v_mul_f32 {v(A+q)}, {s(S_SCALE)}, {v(A+q)}"))
                for q in range(4):
                    ops.append(lambda A=A, q=q: e.op(f"v_cvt_pk_bf16_f32 {v(A+q)}, {v(A+2*q)}, {v(A+2*q+1)}"))
                ops.append(lambda A=A, h=h, j=j: e.op(f"buffer_store_dwordx4 {v(A,4)}, {v(V_ST1+j)}, {s(S_WS,4)}, {s(S_ST1B if h else S_ST1)} offen sc1", tag="st1"))
                groups.append(ops)
        return groups
    def p2_epilogue_ops(self):
        e = self.e
        groups = []
        for j in range(4):
            for h in range(2):
                A = ACC[1] + 16 * j + 8 * h
                ops = []
                for q in range(4):
                    ops.append(lambda A=A, q=q: e.op(f"v_cvt_pk_bf16_f32 {v(A+q)}, {v(A+2*q)}, {v(A+2*q+1)}"))
                for q in range(4):
                    ops.append(lambda A=A, q=q: e.op(f"v_pk_max_i16 {v(A+q)}, {v(A+q)}, 0"))
                ops.append(lambda A=A, h=h, j=j: e.op(f"buffer_store_dwordx4 {v(A,4)}, {v(V_L16)}, {s(S_WS,4)}, {s(S_ST2B if j >= 2 else S_ST2)} offen offset:{(j & 1) * 2048 + h * 1024} sc1", tag="st2"))
                groups.append(ops)
        return groups

    def stage1_stream(self, fill, m0, m1, swap, extra=()):
        e = self.e
        extra = list(extra)
        for m in range(m0, m1):
            st, f = divmod(m, 16)
            ks, j = f >> 2, f & 3
            e.wait(lg=[("w", m), ("x", st, ks)])
            acc = v(ACC[st // 10] + 16 * j, 16)
            wf = v(V_FR + 4 * (m % 8), 4)
            xf = r(A_X + 16 * (st % 10) + 4 * ks, 4)
            c = "0" if (st % 10 == 0 and ks == 0) else acc
            if swap: e.op(f"v_mfma_f32_32x32x16_bf16 {acc}, {xf}, {wf}, {c}")
            else: e.op(f"v_mfma_f32_32x32x16_bf16 {acc}, {wf}, {xf}, {c}")
            for fn in fill[m]: fn()
            for _ in range(2):
                if extra and m >= 2: extra.pop(0)()
        assert not extra

    def ones_init(self):
        return [lambda i=i: self.e.op(f"v_mov_b32 {v(VF + i)}, 0x3f803f80") for i in range(8)]

    def stage1(self):
        e = self.e
        for f in self.dma_x(0) + self.dma_w(0): f()
        self.stamp(1, True) if self.o("rtdbg", 0) else None
        self.rt_tables_load()
        self.rt_loads(2)
        self.other_srds()
        self.stage1_setup()
        self.stamp(2, True) if self.o("rtdbg", 0) else None
        for f in self.dma_x(1) + self.dma_w(1): f()
        self.rt_tables_rest()
        self.stamp(3, True) if self.o("rtdbg", 0) else None
        fill = self.stage1_fill()
        dq = []
        for st in range(2, 20):
            d = (self.dma_x(st) if st < 10 else []) + self.dma_w(st)
            rel = max(16 * (st - 4) - 3, 29 if st == 4 else 0)
            if st < 10: rel = max(rel, 16 * (st - 2) - 3)
            g0 = max(16 * (st - 2) - 3, 0); g1 = 16 * (st - 1) - 5
            dq += [(rel, g0 + i * (g1 - g0) // len(d), 72, f) for i, f in enumerate(d)]
        pA, cA = self.o("pollA", 258), self.o("chkA", 278)
        kv = self.kvq_loads()
        dq += [(cA + 1, cA + 1 + i * (318 - cA) // len(kv), 72, f) for i, f in enumerate(kv)]
        for i, f in enumerate(self.rt_reads()): fill[22 + i // 2].append(f)
        rs0 = self.o("rs0", 30)
        sq = [(rs0 + 6 * i, rs0 + 6 * i, 128, f) for i, f in enumerate(self.rt_stores())]
        sq.append((rs0 + 14, rs0 + 14, 20, self.nonce_issue))
        pd = (rs0 + 14 + 24 + 4 + 15) // 16 * 16 - 4
        fill[pd].insert(0, self.nonce_check)
        sq.append((pd + 1, pd + 1, 20, lambda: self.publish(S_RTF)))
        sp = self.o("epi", 5)
        for g, ops in enumerate(self.p1_epilogue_ops()):
            for i, f in enumerate(ops[:-1]): fill[161 + sp * g + i * sp // (len(ops) - 1)].append(f)
            sq.append((161 + sp * (g + 1), 161 + sp * (g + 1), self.o("stc", 160), ops[-1]))
        def pub_a():
            e.wait(vm="st1")
            self.publish(S_FLA)
        pD, cD = self.o("pollD", 204), self.o("chkD", 224)
        sq.append((pD, pD, 20, lambda: self.poll_issue(V_FD)))
        fill[cD].append(lambda: self.poll_check(V_FD))
        sq.append((self.o("pubA", 224), self.o("pubA", 224), 20, pub_a))
        sq.append((pA, pA, 30, lambda: self.poll_issue(V_FA)))
        fill[cA].append(lambda: self.poll_check(V_FA))
        if self.stamps: fill[cA].append(lambda: self.stamp(3))
        ew = sum([self.w_loads(n) for n in self.EARLY_W], [])
        wq = [(cD + 1, cA - 2 * (len(ew) - i), 72, f) for i, f in enumerate(ew)]
        self.vm_schedule(fill, [dq, sq, wq], 0, 320, self.o("thr", 40))
        for i, f in enumerate(self.ones_init()): fill[210 + i].append(f)
        extra = [self.capture(lambda: self.store_setup(isv), self.late_setup) for isv in (False, True)]
        z = self.o("zoom", 0)
        if z in (1, 2):
            for k in range(11):
                m = min(160 * (z - 1) + 16 * k - 1, 319 if z == 2 else 158)
                if z == 2 and k == 0: m = 160
                fill[m].append(lambda k=k: self.stamp(1 + k, True))
            fill[159].append(self.flush_stamp)
        for fn in fill[-1]: fn()
        if z == 1: self.flush_stamp()
        self.stamp(1)
        e.op(f"s_cmp_ge_u32 {s(S_CG)}, 10")
        e.op("s_cbranch_scc1 L_p1v")
        snap = e.snapshot(); ps = self.pending_stamp
        self.stage1_stream(fill, 0, 160, False, extra[0])
        e.op("s_branch L_p2")
        after = e.snapshot()
        e.restore(snap)
        e.label("L_p1v")
        self.stage1_stream(fill, 0, 160, True, extra[1])
        e.op(f"s_cmp_eq_u32 {s(S_CG)}, 14")
        e.op("s_cbranch_scc1 L_gate")
        self.gate_snap = e.snapshot()
        assert after[0] == e.vm and after[1] == e.lg
        e.label("L_p2")
        self.stamp(2)
        self.stage1_stream(fill, 160, 320, False)
        self.flush_stamp()

    def side_tail(self):
        e = self.e
        for f in self.ones_init(): f()
        self.poll_issue(V_FD); self.poll_check(V_FD)
        for n in self.EARLY_W:
            for f in self.w_loads(n): f()
        self.poll_issue(V_FA); self.poll_check(V_FA)
        for f in self.kvq_loads(): f()
        e.wait(vm="all", lg="all")
        e.op("s_branch L_att")

    def gate(self):
        e = self.e
        e.restore(self.gate_snap)
        e.label("L_gate")
        e.wait(vm="all", lg="all")
        e.op("s_nop 7")
        for g in self.p1_epilogue_ops():
            for f in g: f()
        e.op(f"v_lshrrev_b32 {v(V_T1)}, 5, {v(V_LANE)}")
        e.op(f"v_lshlrev_b32 {v(V_T1)}, 4, {v(V_T1)}")
        G = 16
        def gload(k):
            if k % 4 == 0:
                self.pi_get(S_T4, k // 4)
                e.op(f"s_lshl_b32 {s(S_T4)}, {s(S_T4)}, 7")
            e.op(f"buffer_load_dwordx4 {v(G + 4 * (k % 20), 4)}, {v(V_T1)}, {s(S_MISC,4)}, {s(S_T4)} offen offset:{32 * (k % 4)}", tag=("g", k))
        for k in range(20): gload(k)
        e.wait(vm="st1")
        self.publish(S_FLA)
        for k in range(40):
            e.wait(vm=("g", k))
            e.op(f"v_mfma_f32_32x32x16_bf16 {v(0,16)}, {v(G + 4 * (k % 20), 4)}, {r(A_X + 4 * k, 4)}, {'0' if k == 0 else v(0,16)}")
            if k < 20: gload(k + 20)
        e.op(f"v_mul_f32 {v(V_T1)}, {f32(-math.log2(math.e))}, v0")
        e.op(f"v_exp_f32 {v(V_T1)}, {v(V_T1)}")
        e.op(f"v_add_f32 {v(V_T1)}, 1.0, {v(V_T1)}")
        e.op(f"v_rcp_f32 {v(V_T1)}, {v(V_T1)}")
        e.op(f"v_and_b32 {v(V_T2)}, 31, {v(V_LANE)}")
        e.op(f"v_lshlrev_b32 {v(V_T2)}, 2, {v(V_T2)}")
        e.op(f"s_lshl_b32 {s(S_T0)}, {s(S_RB)}, 2")
        e.op(f"s_add_u32 {s(S_T0)}, {s(S_T0)}, {s(S_WAVE)}")
        e.op(f"s_lshl_b32 {s(S_T1)}, {s(S_T0)}, 7")
        e.op(f"s_add_u32 {s(S_T1)}, {s(S_T1)}, {WS_G}")
        e.op("s_mov_b32 exec_hi, 0")
        e.op(f"buffer_store_dword {v(V_T1)}, {v(V_T2)}, {s(S_WS,4)}, {s(S_T1)} offen sc1")
        e.op("s_mov_b32 exec_hi, -1")
        self.side_tail()

    def rt_tables_load(self):
        e = self.e
        L = v(V_LANE); T0, T1, T2 = v(V_T0), v(V_T1), v(V_T2)
        e.op(f"s_and_b32 {s(S_T0)}, {s(S_WAVE)}, 1")
        e.op(f"s_mul_i32 {s(S_T0)}, {s(S_T0)}, 160")
        for i in range(3):
            e.op(f"v_add_u32 {T0}, {s(S_T0)}, {L}")
            if i: e.op(f"v_add_u32 {T0}, {64 * i}, {T0}")
            e.op(f"v_mul_u32_u24 {T1}, 820, {T0}")
            e.op(f"v_lshrrev_b32 {T1}, 16, {T1}")
            e.op(f"v_lshlrev_b32 {T1}, 2, {T1}")
            e.op(f"v_xor_b32 {T0}, {T0}, {T1}")
            e.op(f"v_lshlrev_b32 {v(RT_LD + i)}, 4, {T0}")
    def rt_tables_rest(self):
        e = self.e
        L = v(V_LANE); T0, T1, T2, T3 = v(V_T0), v(V_T1), v(V_T2), v(V_T3)
        P0, P1 = v(V_POLL), v(V_POLL + 1)
        e.op(f"s_mul_i32 {s(S_T0)}, {s(S_WAVE)}, 20")
        e.op(f"s_mov_b32 {s(S_T1)}, {74 * 5120 - 5 * 1024}")
        for i in range(3):
            e.op(f"v_lshrrev_b32 {T0}, 4, {L}")
            e.op(f"v_add_u32 {T0}, {4 * i}, {T0}")
            e.op(f"v_min_u32 {T0}, 9, {T0}")
            e.op(f"v_mul_u32_u24 {T1}, 52, {T0}")
            e.op(f"v_lshrrev_b32 {T1}, 8, {T1}")
            e.op(f"v_and_b32 {T2}, 15, {L}")
            e.op(f"v_lshlrev_b32 {T2}, 4, {T2}")
            e.op(f"v_lshl_add_u32 {T2}, {T0}, 10, {T2}")
            e.op(f"v_mad_u32_u24 {v(RT_ST + i)}, {T1}, {s(S_T1)}, {T2}")
            e.op(f"v_mul_u32_u24 {T2}, 5, {T1}")
            e.op(f"v_sub_u32 {T0}, {T0}, {T2}")
            e.op(f"v_cmp_eq_u32 vcc, 4, {T0}")
            e.op(f"v_and_b32 {T3}, 3, {L}")
            e.op(f"v_lshlrev_b32 {P0}, 1, {T3}")
            e.op(f"v_and_or_b32 {P0}, {T0}, 1, {P0}")
            e.op(f"v_cndmask_b32 {P0}, {P0}, {T3}, vcc")
            e.op(f"v_and_b32 {T0}, 6, {T0}")
            e.op(f"v_add_u32 {T0}, {T0}, {T2}")
            e.op(f"v_lshl_add_u32 {T0}, {T0}, 1, {s(S_T0)}")
            e.op(f"v_lshl_add_u32 {T0}, {T0}, 1, {P0}")
            e.op(f"v_bfe_u32 {P1}, {L}, 2, 2")
            e.op(f"v_lshlrev_b32 {T1}, 3, {P1}")
            e.op(f"v_xor_b32 {T0}, {T0}, {T1}")
            e.op(f"v_mul_u32_u24 {P1}, 1280, {P1}")
            e.op(f"v_lshl_add_u32 {T0}, {T0}, 3, {P1}")
            e.op(f"v_add_u32 {v(RT_RD + i)}, {L_RT}, {T0}")
    def rt_loads(self, su, lo_=0, S_RTS=S_RTS, S_RTF=S_RTF):
        e = self.e
        KS, SA, SB_, SC, SR0, Q = S_T5, S_T0, S_T1, S_T2, S_T3, S_T4
        lo, lr, lg = self.L("rt_o"), self.L("rt_r"), self.L("rt_go")
        e.op(f"s_lshr_b32 {s(KS)}, {s(su)}, 2")
        e.op(f"s_mul_i32 {s(S_RTS)}, {s(S_WAVE)}, 148")
        e.op(f"s_add_u32 {s(S_RTS)}, {s(S_RTS)}, {s(KS)}")
        e.op(f"s_mul_i32 {s(S_RTS)}, {s(S_RTS)}, 20")
        e.op(f"s_and_b32 {s(SA)}, {s(su)}, 3")
        e.op(f"s_add_u32 {s(S_RTS)}, {s(S_RTS)}, {s(SA)}")
        e.op(f"s_lshl_b32 {s(S_RTS)}, {s(S_RTS)}, 8")
        e.op(f"s_add_u32 {s(S_RTS)}, {s(S_RTS)}, {WS_WT}")
        e.op(f"s_lshl_b32 {s(S_RTF)}, {s(su)}, 7")
        e.op(f"s_add_u32 {s(S_RTF)}, {s(S_RTF)}, {FL_D}")
        e.op(f"s_cmp_eq_u32 {s(S_WAVE)}, 0")
        e.op(f"s_cselect_b32 {s(S_RTF)}, {s(S_RTF)}, {OOB}")
        e.op(f"s_cmp_ge_u32 {s(KS)}, 54")
        e.op(f"s_cbranch_scc1 {lo}")
        self.srd(S_MISC, S_PTR + 10, 1728 * 1280)
        e.op(f"s_lshl_b32 {s(SR0)}, {s(KS)}, 5")
        e.op(f"s_mov_b32 {s(SA)}, 16")
        e.op(f"s_mov_b32 {s(SB_)}, 4")
        e.op(f"s_mov_b32 {s(SC)}, 8")
        e.op(f"s_branch {lg}")
        e.label(lo)
        self.srd(S_MISC, S_PTR + 4, 640 * 1280)
        e.op(f"s_sub_u32 {s(Q)}, {s(KS)}, 54")
        e.op(f"s_mul_i32 {s(KS)}, {s(Q)}, 52")
        e.op(f"s_lshr_b32 {s(KS)}, {s(KS)}, 8")
        e.op(f"s_mul_i32 {s(SR0)}, {s(KS)}, 5")
        e.op(f"s_sub_u32 {s(Q)}, {s(Q)}, {s(SR0)}")
        e.op(f"s_mul_i32 {s(SR0)}, {s(KS)}, 160")
        e.op(f"s_cmp_eq_u32 {s(Q)}, 4")
        e.op(f"s_cbranch_scc1 {lr}")
        e.op(f"s_mul_i32 {s(Q)}, {s(Q)}, 40")
        e.op(f"s_add_u32 {s(SR0)}, {s(SR0)}, {s(Q)}")
        e.op(f"s_mov_b32 {s(SA)}, 20")
        e.op(f"s_mov_b32 {s(SB_)}, 4")
        e.op(f"s_mov_b32 {s(SC)}, 8")
        e.op(f"s_branch {lg}")
        e.label(lr)
        e.op(f"s_add_u32 {s(SR0)}, {s(SR0)}, 16")
        e.op(f"s_mov_b32 {s(SA)}, 80")
        e.op(f"s_mov_b32 {s(SB_)}, 40")
        e.op(f"s_mov_b32 {s(SC)}, 20")
        e.label(lg)
        e.op(f"s_bitcmp1_b32 {s(su)}, 1")
        e.op(f"s_cselect_b32 {s(SA)}, {s(SA)}, 0")
        e.op(f"s_bitcmp1_b32 {s(su)}, 0")
        e.op(f"s_cselect_b32 {s(SB_)}, {s(SB_)}, 0")
        e.op(f"s_bitcmp1_b32 {s(S_WAVE)}, 1")
        e.op(f"s_cselect_b32 {s(SC)}, {s(SC)}, 0")
        e.op(f"s_add_u32 {s(SR0)}, {s(SR0)}, {s(SA)}")
        e.op(f"s_add_u32 {s(SR0)}, {s(SR0)}, {s(SB_)}")
        e.op(f"s_add_u32 {s(SR0)}, {s(SR0)}, {s(SC)}")
        e.op(f"s_mul_i32 {s(SR0)}, {s(SR0)}, 1280")
        e.op(f"s_mul_i32 {s(SA)}, {s(S_WAVE)}, 2560")
        for i in range(3):
            e.op(f"s_add_u32 m0, {s(SA)}, {L_RT + lo_ + i * 1024}")
            if i == 2: e.op("s_mov_b32 exec_hi, 0")
            e.op(f"buffer_load_dwordx4 {v(RT_LD + i)}, {s(S_MISC,4)}, {s(SR0)} offen {self.nt}lds", tag="rl")
            if i == 2: e.op("s_mov_b32 exec_hi, -1")
    def rt_reads(self, lo_=0, RT_D=RT_D):
        return [lambda i=i, u=u: self.e.op(f"ds_read_b64_tr_b16 {v(RT_D + 4 * i + 2 * u, 2)}, {v(RT_RD + i)} offset:{lo_ + u * 5120}", tag=("rt", i))
                for i in range(3) for u in range(2)]
    def rt_stores(self, RT_D=RT_D, S_RTS=S_RTS):
        e = self.e
        def st(i):
            e.wait(lg=("rt", i))
            if i == 2: e.op("s_mov_b32 exec_hi, 0")
            e.op(f"buffer_store_dwordx4 {v(RT_D + 4 * i, 4)}, {v(RT_ST + i)}, {s(S_WS,4)}, {s(S_RTS)} offen sc1", tag="rs")
            if i == 2: e.op("s_mov_b32 exec_hi, -1")
        return [lambda i=i: st(i) for i in range(3)]

    def spare(self):
        e = self.e
        e.vm, e.lg, e.hist = [], [], []
        e.label("L_spare")
        L = v(V_LANE); T0, T1, T2, T3 = v(V_T0), v(V_T1), v(V_T2), v(V_T3)
        self.other_srds()
        sk = self.L("nononce")
        e.op(f"s_sub_u32 {s(S_WOFF)}, s2, 240")
        e.op(f"s_or_b32 {s(S_T0)}, {s(S_WOFF)}, {s(S_WAVE)}")
        e.op(f"s_cmp_lg_u32 {s(S_T0)}, 0")
        e.op(f"s_cbranch_scc1 {sk}")
        e.op(f"s_memrealtime {s(S_NONCE,2)}")
        e.wait(lg="all")
        e.op(f"s_or_b32 {s(S_NONCE)}, {s(S_NONCE)}, 1")
        e.op(f"v_mov_b32 {v(V_NONCE)}, {s(S_NONCE)}")
        e.op(f"v_mov_b32 {v(V_NONCE+1)}, {s(S_NONCE+1)}")
        e.op("s_mov_b64 exec, 1")
        e.op(f"buffer_store_dwordx2 {v(V_NONCE,2)}, {v(V_ZERO)}, {s(S_DBG,4)}, 0 offen sc1")
        e.op("s_mov_b64 exec, -1")
        e.label(sk)
        e.op(f"s_lshl_b32 {s(S_T0)}, {s(S_WOFF)}, 2")
        e.op(f"s_add_u32 {s(S_T0)}, {s(S_T0)}, {s(S_WAVE)}")
        e.op(f"s_lshl_b32 {s(S_T0)}, {s(S_T0)}, 6")
        e.op(f"v_add_u32 {T0}, {s(S_T0)}, {L}")
        e.op(f"v_lshlrev_b32 {T1}, 7, {T0}")
        for c in range(10 - 2 * self.o("pf1", 0), 10, 2):
            e.op(f"v_lshrrev_b32 {T2}, 1, {T0}")
            e.op(f"v_mul_u32_u24 {T2}, {1280 - 256}, {T2}")
            e.op(f"v_add_u32 {T2}, {T2}, {T1}")
            e.op(f"buffer_load_dword {v(229)}, {T2}, {s(S_X,4)}, 0 offen offset:{c * 128}")
            e.op(f"v_min_u32 {T2}, {3839 * 128}, {T1}")
            e.op(f"s_mov_b32 {s(S_T0)}, {c * 64 * 3840}")
            e.op(f"buffer_load_dword {v(229)}, {T2}, {s(S_WA,4)}, {s(S_T0)} offen")
        e.op(f"v_mov_b32 {v(230)}, {T1}")
        self.rt_tables_load()
        RS, RF = (84, 85, 86, 87), (88, 89, 90, 91)
        for m in range(4):
            e.op(f"s_add_u32 {s(S_XOFF)}, s2, {16 * m}")
            self.rt_loads(S_XOFF, m * 10240, RS[m], RF[m])
        e.op(f"s_cmp_lt_u32 {s(S_XOFF)}, 296")
        e.op(f"s_cselect_b32 {s(RS[3])}, {s(RS[3])}, {OOB}")
        def touch(m):
            if self.o("pf2", 1):
                e.op(f"s_mov_b32 {s(S_T0)}, {m * 4096 * 128}")
                e.op(f"buffer_load_dword {v(229)}, {v(230)}, {s(S_WB,4)}, {s(S_T0)} offen")
        touch(0)
        self.rt_tables_rest()
        e.wait(vm="rl")
        e.op("s_barrier")
        self.stamp(1)
        touch(1)
        for m in range(4):
            for f in self.rt_reads(m * 10240, 96 + 12 * m) + self.rt_stores(96 + 12 * m, RS[m]): f()
        self.nonce_issue()
        touch(2)
        self.nonce_check()
        e.op("s_barrier")
        for m in range(4): self.publish(RF[m])
        self.stamp(3)
        touch(3); touch(4)
        self.flush_stamp()
        e.op(f"s_cmp_lg_u32 {s(S_I)}, 30")
        e.op("s_cbranch_scc1 L_noagg")
        snap = e.snapshot()
        e.op(f"s_lshl_b32 {s(S_T0)}, {s(S_WAVE)}, 6")
        e.op(f"v_add_u32 {T0}, {s(S_T0)}, {L}")
        e.op(f"v_lshlrev_b32 {T1}, 7, {T0}")
        e.op(f"v_add_u32 {v(V_FD)}, {FL_D}, {T1}")
        e.op(f"v_min_u32 {T0}, 39, {T0}")
        e.op(f"v_lshlrev_b32 {T1}, 7, {T0}")
        e.op(f"v_add_u32 {v(V_FB)}, {FL_D + 256 * 128}, {T1}")
        e.op(f"buffer_load_dwordx2 {v(V_T2,2)}, {v(V_FB)}, {s(S_WS,4)}, 0 offen sc1")
        self.poll_issue(V_FD); self.poll_check(V_FD)
        e.op(f"v_mov_b32 {v(V_POLL)}, {T2}")
        e.op(f"v_mov_b32 {v(V_POLL + 1)}, {T3}")
        self.open_poll = V_FB; self.poll_check(V_FB)
        e.op("s_barrier")
        e.op(f"s_lshl_b32 {s(S_T1)}, {s(S_XCD)}, 7")
        e.op(f"s_add_u32 {s(S_T1)}, {s(S_T1)}, {FL_DD}")
        e.op(f"s_cmp_eq_u32 {s(S_WAVE)}, 0")
        e.op(f"s_cselect_b32 {s(S_T1)}, {s(S_T1)}, {OOB}")
        self.publish(S_T1)
        e.wait(vm="all")
        e.restore(snap)
        e.label("L_noagg")
        self.stamp(2)
        self.flush_stamp()
        self.late_setup()
        e.op(f"s_mov_b32 {s(S_ST2)}, {OOB}")
        e.op(f"s_mov_b32 {s(S_ST2B)}, {OOB}")
        e.op(f"s_mov_b32 {s(S_FLC)}, {OOB}")
        self.side_tail()

    def k_reads(self, u):
        h, j = divmod(u, 9)
        for ff in range(2):
            self.e.op(f"ds_read_b128 {v(KF + 4 * ff, 4)}, {v(V_KA)} offset:{(h + ff) * 12288 + j * 1024}", tag="k")
    def v_reads(self, u):
        h, j = divmod(u, 9)
        e = self.e
        e.op(f"s_mov_b64 exec, {s(S_VM,2)}")
        for ss in range(2):
            e.op(f"ds_read_b128 {v(VF + 4 * ss, 4)}, {v(V_VA)} offset:{j * 2560 + ss * 1280 + h * 320}", tag="v")
        e.op("s_mov_b64 exec, -1")
    def qk(self, u, part, S):
        h, j = divmod(u, 9)
        c = v(S, 16) if part else v(CE, 16) if j == 0 else v(CD, 16) if j == 8 else "0"
        self.e.op(f"v_mfma_f32_32x32x16_bf16 {v(S,16)}, {v(KF + 4 * part, 4)}, {v(QM + 8 * h + 4 * part, 4)}, {c}")
    def pv(self, u, part, S, first):
        O = v(OO[u // 9], 16)
        self.e.op(f"v_mfma_f32_32x32x16_bf16 {O}, {v(VF + 4 * part, 4)}, {v(S + 4 * part, 4)}, {'0' if first else O}")

    def q_mask(self):
        e = self.e
        lo, dn = self.L("qodd"), self.L("qdone")
        e.op(f"s_mov_b32 {s(S_MASK)}, -1")
        e.op(f"s_mov_b32 {s(S_MASK+1)}, 0")
        e.op(f"s_bitcmp1_b32 {s(S_P)}, 0")
        e.wait(vm="q")
        e.op(f"s_cbranch_scc1 {lo}")
        for par in range(2):
            if par: e.label(lo)
            for h in range(2):
                for ff in range(2):
                    for slot in range(2):
                        p0 = 4 * (h + ff) + 2 * slot - 2 * par - 5 * h
                        k0, k1 = 0 <= p0 < 5, 0 <= p0 + 1 < 5
                        for d in range(2):
                            dst, src = v(QM + 8 * h + 4 * ff + 2 * slot + d), v(VQ + 4 * (h + ff) + 2 * slot + d)
                            if k0 and k1: e.op(f"v_mov_b32 {dst}, {src}")
                            elif k0: e.op(f"v_cndmask_b32 {dst}, 0, {src}, {s(S_MASK,2)}")
                            elif k1: e.op(f"v_cndmask_b32 {dst}, {src}, 0, {s(S_MASK,2)}")
                            else: e.op(f"v_mov_b32 {dst}, 0")
            if not par: e.op(f"s_branch {dn}")
        e.label(dn)

    def attention(self):
        e = self.e
        e.label("L_att")
        self.stamp(4)
        T0 = v(V_T0)
        epi = self.p2_epilogue_ops()
        stores = [g[-1] for g in epi]
        ns0 = self.o("ns0", 4)
        for gi, g in enumerate(epi):
            for f in g[:-1]: f()
            if gi % 2 == 0 and gi // 2 < ns0: stores.pop(0)()
        self.q_mask()
        if self.o("ns1", 1): stores.pop(0)()
        e.op(f"s_cmp_lt_u32 {s(S_TQ)}, 8")
        e.op(f"s_cselect_b64 vcc, -1, 0")
        e.wait(vm="kv")
        e.op("s_barrier")
        self.stamp(5)
        self.k_reads(0)
        e.wait(lg="k")
        self.qk(0, 0, SB[0]); self.qk(0, 1, SB[0])
        self.k_reads(1)
        side = {(u, k): [] for u in range(18) for k in range(4)}
        wl = sum([self.w_loads(n) for n in range(NWR) if n not in self.EARLY_W], [])
        wl += self.wl_dmas()
        slots = [(u, k) for u in range(18) for k in range(4)]
        for i, f in enumerate(stores):
            side[slots[2 * i]].append(f)
        def pub_c():
            e.wait(vm="st2")
            self.publish(S_FLC)
        pubC, pC, cC = self.o("pubC", 12), self.o("pollC", 44), self.o("chkC", 56)
        side[slots[pubC]].append(pub_c)
        side[slots[pC]].append(lambda: self.poll_issue(V_FC))
        def chk_c():
            self.poll_check(V_FC); self.stamp(6)
        hl = [(n, t) for n in range(5) for t in range(4)]
        taken = {pubC, pC, cC} | {2 * i for i in range(len(stores))}
        skip = self.o("wskip", 3)
        for i, x in enumerate(slots):
            if i == cC: side[x].append(chk_c)
            if i in taken: continue
            if i > cC and hl:
                n, t = hl.pop(0)
                side[x].append(lambda n=n, t=t: self.h_load(n, t))
            elif wl and skip <= 0: side[x].append(wl.pop(0))
            skip -= 1
        self.wl_left = wl
        self.h_left = hl
        for u in range(18):
            h, j = divmod(u, 9)
            if self.o("zoom", 0) == 3 and u % 2 == 0: self.stamp(1 + u // 2, True)
            S, Sn, Sp = SB[u % 3], SB[(u + 1) % 3], SB[(u - 1) % 3]
            ex = lambda i: e.op(f"v_exp_f32 {v(S + i)}, {v(S + i)}")
            cv = lambda i: e.op(f"v_cvt_pk_bf16_f32 {v(S + i)}, {v(S + 2 * i)}, {v(S + 2 * i + 1)}")
            if u < 17:
                e.wait(lg="k")
                self.qk(u + 1, 0, Sn)
            if j < 8:
                st, bk = self.L("inv"), self.L("inv_ok")
                e.op(f"s_cbranch_vccnz {st}")
                e.label(bk)
                def stub(st=st, bk=bk, j=j, S=S):
                    e.label(st, reset=True)
                    e.op(f"s_cmp_lt_u32 {s(S_TQ)}, {8 - j}")
                    e.op(f"s_cbranch_scc0 {bk}")
                    e.op("s_nop 7")
                    e.op("s_nop 3")
                    for i in range(16): e.op(f"v_mov_b32 {v(S + i)}, {hex(NEGBIG)}")
                    e.op(f"s_branch {bk}")
                self.stubs.append(stub)
            for f in side[(u, 0)]: f()
            for i in range(0, 4): ex(i)
            if u < 17: self.qk(u + 1, 1, Sn)
            e.wait(lg="v")
            if u < 16: self.k_reads(u + 2)
            for f in side[(u, 1)]: f()
            for i in range(4, 8): ex(i)
            cv(0); cv(1)
            if u > 0: self.pv(u - 1, 0, Sp, (u - 1) % 9 == 0)
            for f in side[(u, 2)]: f()
            for i in range(8, 12): ex(i)
            cv(2); cv(3)
            if u > 0: self.pv(u - 1, 1, Sp, False)
            self.v_reads(u)
            for f in side[(u, 3)]: f()
            for i in range(12, 16): ex(i)
            for i in range(4, 8): cv(i)
        e.wait(lg="v")
        self.pv(17, 0, SB[17 % 3], False); self.pv(17, 1, SB[17 % 3], False)
        if cC >= 72: chk_c()
        self.stamp(7)
        OP = 0
        for h in range(2):
            O = OO[h]
            st, bk = self.L("slow"), self.L("slow_ok")
            e.op(f"v_subrev_u32 {T0}, 0x2f800000, {v(O + 12)}")
            e.op(f"v_cmp_le_u32 vcc, 0x20000000, {T0}")
            if self.o("forceslow", 0): e.op("s_mov_b64 vcc, -1")
            for _ in range(2):
                if self.h_left:
                    n, t = self.h_left.pop(0); self.h_load(n, t)
            e.op(f"s_cbranch_vccnz {st}")
            e.label(bk)
            self.stubs.append(lambda st=st, bk=bk, h=h: self.slow_head(h, st, bk))
        for h in range(2):
            O = OO[h]
            e.op(f"v_rcp_f32 {T0}, {v(O + 12)}")
            if self.h_left:
                n, t = self.h_left.pop(0); self.h_load(n, t)
            for i in range(12): e.op(f"v_mul_f32 {v(O + i)}, {v(O + i)}, {T0}")
            for i in range(4): e.op(f"v_cvt_pk_bf16_f32 {v(OP + 4 * h + i)}, {v(O + 2 * i)}, {v(O + 2 * i + 1)}")
            for i in range(2): e.op(f"v_cvt_pk_bf16_f32 {v(OP + 8 + 2 * h + i)}, {v(O + 8 + 2 * i)}, {v(O + 9 + 2 * i)}")
            e.op(f"buffer_store_dwordx4 {v(OP + 4 * h, 4)}, {v(V_L16)}, {s(S_WS,4)}, {s(S_OST)} offen offset:{h * 1024} sc1", tag="sto")
        e.op("s_mov_b32 exec_hi, 0")
        e.op(f"buffer_store_dwordx4 {v(OP + 8, 4)}, {v(V_L16)}, {s(S_WS,4)}, {s(S_OST2)} offen sc1", tag="sto")
        e.op("s_mov_b32 exec_hi, -1")

    def slow_head(self, h, st, bk):
        e = self.e
        e.label(st, reset=True)
        e.vm, e.lg = [], []
        T0, MX = v(V_T0), v(V_T1)
        O, S = OO[h], SB[0]
        e.op("s_nop 15")
        e.op(f"v_mov_b32 {MX}, {hex(NEGBIG)}")
        for i in range(16): e.op(f"v_mov_b32 {v(O + i)}, 0")
        for ps in range(2):
            for j in range(9):
                u = 9 * h + j
                sk = self.L("sk")
                if j < 8:
                    e.op(f"s_cmp_lt_u32 {s(S_TQ)}, {8 - j}")
                    e.op(f"s_cbranch_scc1 {sk}")
                if ps: self.v_reads(u)
                self.k_reads(u)
                e.wait(lg="all")
                self.qk(u, 0, S); self.qk(u, 1, S)
                if ps == 0:
                    for i in range(8): e.op(f"v_max3_f32 {MX}, {MX}, {v(S + 2 * i)}, {v(S + 2 * i + 1)}")
                else:
                    for i in range(16): e.op(f"v_sub_f32 {v(S + i)}, {v(S + i)}, {MX}")
                    for i in range(16): e.op(f"v_exp_f32 {v(S + i)}, {v(S + i)}")
                    for i in range(8): e.op(f"v_cvt_pk_bf16_f32 {v(S + i)}, {v(S + 2 * i)}, {v(S + 2 * i + 1)}")
                    self.pv(u, 0, S, False); self.pv(u, 1, S, False)
                    e.op("s_nop 7")
                e.label(sk)
            if ps == 0:
                e.op(f"v_mov_b32 {T0}, {MX}")
                e.op(f"v_permlane32_swap_b32 {T0}, {MX}")
                e.op("s_nop 1")
                e.op(f"v_max_f32 {MX}, {T0}, {MX}")
        e.op("s_nop 15")
        e.op(f"s_branch {bk}")

    def stage3(self):
        e = self.e
        L = v(V_LANE); T0, T1, T2, T3 = v(V_T0), v(V_T1), v(V_T2), v(V_T3)
        VG, VG1, VRR, VRW = 224, 228, 232, 235
        VOUT = V_VA
        self.stamp(8)
        setup = []
        A = lambda t: setup.append(lambda: e.op(t))
        A(f"s_mul_i32 {s(S_T3)}, {s(S_WAVE)}, 20480")
        A(f"v_add_u32 {v(VRW)}, {s(S_T3)}, {v(V_L16)}")
        A(f"v_and_b32 {T0}, 15, {L}")
        A(f"v_lshrrev_b32 {T1}, 4, {L}")
        for t in range(4):
            A(f"s_add_u32 {s(S_T0)}, {s(S_WAVE)}, {t + 1}")
            A(f"s_and_b32 {s(S_T0)}, {s(S_T0)}, 3")
            A(f"s_lshl_b32 {s(S_T3)}, {s(S_TB64)}, 2")
            A(f"s_add_u32 {s(S_T3)}, {s(S_T3)}, {s(S_T0)}")
            A(f"s_lshl_b32 {s(S_T3)}, {s(S_T3)}, 6")
            A(f"s_add_u32 {s(S_T3)}, {s(S_T3)}, {WS_G}")
            A(f"v_lshl_add_u32 {v(VG1 + t)}, {T0}, 2, {s(S_T3)}")
            setup.append(lambda t=t: e.op(f"buffer_load_dword {v(VG + t)}, {v(VG1 + t)}, {s(S_WS,4)}, 0 offen sc1", tag="g"))
            if t < 3:
                A(f"s_add_u32 {s(S_T3)}, {s(S_WAVE)}, {3 - t}")
                A(f"s_and_b32 {s(S_T3)}, {s(S_T3)}, 3")
                A(f"s_mul_i32 {s(S_T3)}, {s(S_T3)}, 20480")
                A(f"v_add_u32 {v(VRR + t)}, {s(S_T3)}, {v(V_L16)}")
        A(f"s_lshl_b32 {s(S_T0)}, {s(S_TB64)}, 2")
        A(f"s_add_u32 {s(S_T0)}, {s(S_T0)}, {s(S_WAVE)}")
        A(f"s_mul_i32 {s(S_T0)}, {s(S_T0)}, {16 * 1280}")
        A(f"s_mul_i32 {s(S_T1)}, {s(S_NG)}, 160")
        A(f"s_add_u32 {s(S_T0)}, {s(S_T0)}, {s(S_T1)}")
        A(f"v_mul_u32_u24 {T3}, 1280, {T0}")
        A(f"v_add_u32 {T3}, {s(S_T0)}, {T3}")
        A(f"v_lshl_add_u32 {v(VOUT)}, {T1}, 4, {T3}")
        A(f"v_lshl_add_u32 {v(VOUT + 1)}, {T1}, 3, {T3}")
        cB = self.o("chkB", 9)
        Q = [(0, lambda n=n, t=t: self.h_load(n, t)) for n, t in self.h_left]
        wq = {n: self.w_loads(n) for n in range(12, 19)}
        for n in range(5, 14):
            if n >= 12: Q += [(n - 11, f) for f in wq[n]]
            Q += [(max(n - 5, 0), lambda n=n, t=t: self.h_load(n, t)) for t in range(4)]
        wl_left = list(self.wl_left)
        def wl_issue(f):
            f(); wl_left.remove(f)
        Q += [(0, lambda f=f: wl_issue(f)) for f in self.wl_left]
        for n in range(14, 19):
            if n not in self.LDS_W: Q += [(n - 11, f) for f in wq[n]]
        def wl_read(n, j):
            e.wait(vm="wl")
            e.op(f"ds_read_b128 {r(WR + 20 * (n % NWR) + 4 * j, 4)}, {v(VRW)} offset:{L_W + (5 * self.LDS_W.index(n) + j) * 1024}", tag="wlr")
            e.all_tags.add(("w", n, j))
        R = [(n - 11, lambda n=n, j=j: wl_read(n, j)) for n in self.LDS_W for j in range(5)]
        for t in range(4):
            for n in range(14, 19):
                i = 5 * t + n - 14
                Q.append((max(9 + i // 4, cB), lambda n=n, t=t: self.h_load(n, t)))
        def issue(step):
            for i, (fr, f) in enumerate(Q):
                if fr <= step:
                    Q.pop(i); f(); return
        per = self.o("per", 4)
        cnt = 0
        for n in range(14):
            if self.o("zoom", 0) == 4 and n < 12: self.stamp(1 + n, True)
            if n == self.o("pubB", 2):
                e.wait(vm="sto"); self.publish(S_FLB)
            if n == self.o("pollB", 7): self.poll_issue(V_FB)
            if n == cB:
                self.poll_check(V_FB); self.stamp(9)
            for t in range(4):
                for j in range(5):
                    while any(tag not in self.issued_tags() for tag in (("w", n, j), ("h", n, t))): issue(n)
                    e.wait(vm=[("w", n, j), ("h", n, t)])
                    acc = v(BA + 20 * t + 4 * j, 4)
                    e.op(f"v_mfma_f32_16x16x32_bf16 {acc}, {r(WR + 20 * (n % NWR) + 4 * j, 4)}, {v(self.hreg(n, t), 4)}, {'0' if n == 0 else acc}")
                    cnt += 1
                    if cnt % per == 0 or (n == 0 and cnt % 2 == 0): issue(n)
                    elif setup and n >= 1: setup.pop(0)()
                    elif R and R[0][0] <= n and not wl_left and n >= self.o("wlr", 11): R.pop(0)[1]()
        assert not setup and not R
        e.wait(lg="wlr")
        self.stamp(10)
        e.wait(vm="g")
        for t in range(4): e.op(f"v_sub_f32 {v(VG1 + t)}, 1.0, {v(VG + t)}")
        def combine(t):
            A_ = AA + 20 * (t & 1)
            pre = [lambda i=i: e.op(f"v_mul_f32 {v(BA + 20 * t + i)}, {v(BA + 20 * t + i)}, {v(VG1 + t)}") for i in range(20)]
            ops = []
            for j in range(5):
                for i in range(4):
                    ops.append(lambda k=4 * j + i: e.op(f"v_fmac_f32 {v(BA + 20 * t + k)}, {v(A_ + k)}, {v(VG + t)}"))
                if t < 3:
                    ops.append(lambda j=j: e.op(f"ds_write_b128 {v(VRW)}, {v(BA + 20 * t + 4 * j, 4)} offset:{L_W + t * 5120 + j * 1024}", tag="red"))
            return pre, ops
        post = []
        for t in range(4):
            pre, mine = combine(t)
            q = post + pre
            i = 0
            need = [x for x in range(len(Q))]
            for n in range(14, 19):
                for j in range(5):
                    while any(tag not in self.issued_tags() for tag in (("w", n, j), ("h", n, t))): issue(99)
                    e.wait(vm=[("w", n, j), ("h", n, t)])
                    acc = v(AA + 20 * (t & 1) + 4 * j, 4)
                    e.op(f"v_mfma_f32_16x16x32_bf16 {acc}, {r(WR + 20 * (n % NWR) + 4 * j, 4)}, {v(self.hreg(n, t), 4)}, {'0' if n == 14 else acc}")
                    if Q and i % per == 0: issue(99)
                    if i >= 2:
                        for _ in range(2):
                            if q: q.pop(0)()
                    i += 1
            while q: q.pop(0)()
            post = mine
        assert not Q
        self.stamp(11)
        e.wait(lg="all")
        e.op("s_barrier")
        RD = 64
        of = ("", "sc1", "nt", "sc0 sc1")[self.o("outf", 0)]
        for sl in range(3):
            for j in range(5):
                e.op(f"ds_read_b128 {v(RD + 20 * sl + 4 * j, 4)}, {v(VRR + sl)} offset:{L_W + sl * 5120 + j * 1024}", tag=("rd", sl))
        for f in post: f()
        F = BA + 60
        for sl in range(3):
            e.wait(lg=("rd", sl))
            for i in range(10):
                e.op(f"v_pk_add_f32 {v(F + 2 * i, 2)}, {v(F + 2 * i, 2)}, {v(RD + 20 * sl + 2 * i, 2)}")
        for i in range(10):
            e.op(f"v_cvt_pk_bf16_f32 {v(AA + i)}, {v(F + 2 * i)}, {v(F + 2 * i + 1)}")
        e.op(f"buffer_store_dwordx4 {v(AA,4)}, {v(VOUT)}, {s(S_OUT,4)}, 0 offen {of}")
        e.op(f"buffer_store_dwordx4 {v(AA+4,4)}, {v(VOUT)}, {s(S_OUT,4)}, 0 offen offset:64 {of}")
        e.op(f"buffer_store_dwordx2 {v(AA+8,2)}, {v(VOUT+1)}, {s(S_OUT,4)}, 0 offen offset:128 {of}")
        self.stamp(12)
    def issued_tags(self): return self.e.all_tags

    def finish(self):
        e = self.e
        if self.stamps:
            e.wait(vm="all")
            self.stamp(13)
            e.op(f"s_memtime {s(S_VM,2)}")
            self.flush_stamp()
            e.op(f"v_writelane_b32 {v(V_STAMP)}, {s(S_VM)}, {NSTAMP}")
            e.op(f"s_lshl_b32 {s(S_T0)}, s2, 2")
            e.op(f"s_add_u32 {s(S_T0)}, {s(S_T0)}, {s(S_WAVE)}")
            e.op(f"s_lshl_b32 {s(S_T0)}, {s(S_T0)}, 7")
            e.op(f"s_add_u32 {s(S_T0)}, {s(S_T0)}, {WS_ST}")
            e.op(f"v_lshlrev_b32 {v(V_T0)}, 2, {v(V_LANE)}")
            e.op("s_mov_b32 exec_hi, 0")
            e.op(f"buffer_store_dword {v(V_STAMP)}, {v(V_T0)}, {s(S_WS,4)}, {s(S_T0)} offen")
        e.op("s_endpgm")

    def build(self):
        e = self.e
        self.prologue()
        self.stage1()
        self.attention()
        self.stage3()
        self.finish()
        self.gate()
        self.spare()
        slow = [f for f in self.stubs if f.__name__ == "<lambda>"]
        for f in self.stubs:
            if f not in slow:
                e.vm, e.lg = [], []
                f()
        e.label("L_cold")
        for f in slow: f()
        e.label("L_end")
        e.op("s_endpgm")
        head = open("cdna_kernels/" + NAME + ".s.ref").read().split("\n")
        head = [l for l in head if l.startswith(";") and "@launch" not in l]
        txt = "\n".join(head) + f"\n; @launch grid=(256,1,1) block=(256,1,1) lds={LDS_BYTES}\n"
        txt += f""".amdgcn_target "amdgcn-amd-amdhsa--gfx950"
.text
.globl {NAME}_kernel
.p2align 8
.type {NAME}_kernel,@function
{NAME}_kernel:
"""
        txt += e.text()
        txt += f""".section .rodata,"a"
.p2align 6
.amdhsa_kernel {NAME}_kernel
  .amdhsa_next_free_vgpr 512
  .amdhsa_next_free_sgpr 102
  .amdhsa_accum_offset 256
  .amdhsa_group_segment_fixed_size 0
  .amdhsa_kernarg_size 80
  .amdhsa_user_sgpr_count 2
  .amdhsa_user_sgpr_kernarg_segment_ptr 1
  .amdhsa_system_sgpr_workgroup_id_x 1
.end_amdhsa_kernel
"""
        return txt

if __name__ == "__main__":
    out = sys.argv[1] if len(sys.argv) > 1 else "cdna_kernels/" + NAME + ".s"
    opt = {}
    for x in sys.argv[2:]:
        if "=" in x:
            k, val = x.split("="); opt[k] = int(val)
    g = Gen(stamps="--stamps" in sys.argv, opt=opt)
    txt = g.build()
    open(out, "w").write(txt)
    print("instructions", g.e.count, "pad states", g.e.nops, "autowaits", g.e.autowaits, file=sys.stderr)
    if "--nops" in sys.argv:
        for n, t in g.e.log_nops: print(n, t, file=sys.stderr)
```

```python
import sys, math, struct
from asmlib import *

NAME = "gated_mix__sliding_block__dense_activation_relu__prompt"

WS_QK = 0
WS_VT = WS_QK + 80 * 64 * 1024
WS_H  = WS_VT + 16 * 64 * 2560
WS_O  = WS_H + 64 * 110592
WS_WT = WS_O + 64 * 40960
WS_G  = WS_WT + 8 * 74 * 5120
WS_FL = WS_G + 8192
WS_ST = WS_FL + 5 * 1024 * 128
WS_SIZE = WS_ST + 1024 * 128
OOB = 0x4000000
assert WS_SIZE < OOB
FL_A, FL_C, FL_B, FL_D, FL_DD = [WS_FL + p * 131072 for p in range(5)]

NW, NX = 5, 5
L_W = 0
L_X = NW * 16384
L_K = L_X
L_V = L_K + 36 * 1024
L_RED = 0
LDS_BYTES = 163840

S_X, S_WA, S_WB, S_WS, S_OUT, S_DBG, S_MISC = 4, 8, 12, 16, 20, 24, 28
S_WAVE, S_XCD, S_I, S_RB, S_CG, S_P, S_RBA, S_TB64, S_NG = 32, 33, 34, 35, 36, 37, 38, 39, 40
S_CYC0 = 75
S_DM = 0
S_NONCE = 42
S_T0, S_T1, S_T2, S_T3, S_T4, S_T5 = 44, 45, 46, 47, 48, 49
S_XOFF, S_WOFF, S_XM0, S_WM0, S_W2OFF = 50, 51, 52, 53, 54
S_ST1B = 55
S_SCALE = 56
S_ST1, S_ST2, S_ST2B = 58, 59, 60
S_SPIN = 61
S_MASK = 62
S_PTR = 64
S_TQ, S_QOFF, S_FLA, S_FLC, S_FLB = 84, 85, 86, 87, 88
S_KOFF = 89
S_VOFF = 92
S_WT0 = 95
S_STMP = 96
S_WB64 = 98
S_VM = 100
S_HT = 64
S_OT = 76
S_WT1 = 72
S_RTS, S_RTF = 70, 71
S_OST, S_OST2 = 73, 74
S_P3LO, S_P3HI, S_HK = 80, 81, 1
S_PILO, S_PIHI = 3, 41

V_LANE = 255
V_L16 = 254
V_NONCE = 252
V_T0, V_T1, V_T2, V_T3 = 248, 249, 250, 251
V_POLL = 246
V_FA, V_FD, V_FC, V_FB = 245, 244, 243, 242
V_KA, V_VA, V_HL, V_STAMP, V_ZERO, V_QP = 241, 240, 239, 238, 237, 236
V_XD = 0
V_WD = 4
V_WD2 = 8
V_XR = 12
V_WR = 16
V_ST1 = 24
V_FR = 32
ACC = (128, 64)
A_X = 256
RT_D, RT_LD, RT_RD, RT_ST = 64, 76, 79, 82
L_RT = L_W + 4 * 16384
SB = (0, 16, 176)
OO = (32, 48)
VQ, QM, VF, KF, CD, CE = 128, 144, 160, 168, 192, 208
BA, AA = 144, 0
HSLOT = (64, 80, 96, 112, 128, 48)
WR = 256
NH, NWR = 6, 12
NSTAMP = 14

def f32(x): return "0x%08x" % struct.unpack("<I", struct.pack("<f", x))[0]
QSCALE = math.log2(math.e) / math.sqrt(20.0)
NEGBIG = 0xff800000
SPIN_MAX = 0x40000

class Gen:
    def __init__(self, stamps=False, opt=None):
        self.e = Emit()
        self.stamps = stamps
        self.uid = 0
        self.opt = opt or {}
        self.stubs = []
        self.pending_stamp = None
        self.open_poll = None; self.open_nonce = False
        self.nt = "nt " if self.o("nt", 1) else ""
        self.ntx = "nt " if self.o("ntx", 0) else ""
        self.ntw = "nt " if self.o("ntw", 0) else ""
    def o(self, k, d): return self.opt.get(k, d)
    def L(self, p):
        self.uid += 1
        return f"L_{p}_{self.uid}"
    def stamp(self, idx, rt=False):
        if not self.stamps: return
        if (self.o("rtdbg", 0) or self.o("zoom", 0)) and not rt and 0 < idx < 13: return
        e = self.e
        self.flush_stamp()
        e.op(f"{'s_memtime' if self.o('cyc', 0) else 's_memrealtime'} {s(S_STMP, 2)}")
        self.pending_stamp = idx
    def flush_stamp(self):
        if self.pending_stamp is None: return
        e = self.e
        if "SMEM" in e.lg: e.wait(lg="all")
        e.op(f"v_writelane_b32 {v(V_STAMP)}, {s(S_STMP)}, {self.pending_stamp}")
        self.pending_stamp = None

    def srd(self, d, ptr, nbytes):
        e = self.e
        e.op(f"s_mov_b32 {s(d)}, {s(ptr)}")
        e.op(f"s_and_b32 {s(d+1)}, {s(ptr+1)}, 0xffff")
        e.op(f"s_mov_b32 {s(d+2)}, {nbytes}")
        e.op(f"s_mov_b32 {s(d+3)}, 0x20000")

    def nonce_issue(self):
        self.e.op(f"buffer_load_dwordx2 {v(V_NONCE,2)}, {v(V_ZERO)}, {s(S_DBG,4)}, 0 offen sc1", tag="nonce")
        self.open_nonce = True
    def nonce_check(self):
        e = self.e
        st, bk = self.L("nonce"), self.L("nonce_ok")
        assert self.open_nonce
        e.wait(vm="nonce")
        e.op(f"v_readfirstlane_b32 {s(S_NONCE)}, {v(V_NONCE)}")
        e.op(f"v_readfirstlane_b32 {s(S_NONCE+1)}, {v(V_NONCE+1)}")
        e.op(f"s_cmp_eq_u32 {s(S_NONCE)}, 0")
        e.op(f"s_cbranch_scc1 {st}")
        e.label(bk)
        def stub():
            e.label(st, reset=True)
            e.op(f"s_mov_b32 {s(S_SPIN)}, 0")
            e.label(st + "_l")
            e.op(f"s_sleep {self.o('sleep', 4)}")
            e.op(f"buffer_load_dwordx2 {v(V_NONCE,2)}, {v(V_ZERO)}, {s(S_DBG,4)}, 0 offen sc1")
            e.op(f"s_add_u32 {s(S_SPIN)}, {s(S_SPIN)}, 1")
            e.wait(vm="all")
            e.op(f"v_readfirstlane_b32 {s(S_NONCE)}, {v(V_NONCE)}")
            e.op(f"v_readfirstlane_b32 {s(S_NONCE+1)}, {v(V_NONCE+1)}")
            e.op(f"s_cmp_gt_u32 {s(S_SPIN)}, {SPIN_MAX}")
            e.op(f"s_cbranch_scc1 {bk}")
            e.op(f"s_cmp_eq_u32 {s(S_NONCE)}, 0")
            e.op(f"s_cbranch_scc1 {st}_l")
            e.op(f"s_branch {bk}")
        self.stubs.append(stub)

    def publish(self, soff):
        e = self.e
        e.op("s_mov_b64 exec, 1")
        e.op(f"buffer_store_dwordx2 {v(V_NONCE,2)}, {v(V_ZERO)}, {s(S_WS,4)}, {s(soff)} offen sc1", tag="flag")
        e.op("s_mov_b64 exec, -1")

    def poll_issue(self, vaddr):
        self.e.op(f"buffer_load_dwordx2 {v(V_POLL,2)}, {v(vaddr)}, {s(S_WS,4)}, 0 offen sc1", tag="poll")
        self.open_poll = vaddr
    def poll_check(self, vaddr):
        e = self.e
        st, bk = self.L("poll"), self.L("poll_ok")
        assert self.open_poll == vaddr; self.open_poll = None
        e.wait(vm="poll")
        e.op(f"v_cmp_ne_u64 {s(S_MASK,2)}, {s(S_NONCE,2)}, {v(V_POLL,2)}")
        e.op(f"s_cmp_lg_u64 {s(S_MASK,2)}, 0")
        e.op(f"s_cbranch_scc1 {st}")
        e.label(bk)
        def stub():
            e.label(st, reset=True)
            e.op(f"s_mov_b32 {s(S_SPIN)}, 0")
            e.op(f"s_branch {st}_f")
            e.label(st + "_l")
            e.op(f"s_sleep {self.o('sleep', 4)}")
            e.label(st + "_f")
            e.op(f"buffer_load_dwordx2 {v(V_POLL,2)}, {v(vaddr)}, {s(S_WS,4)}, 0 offen sc1")
            e.op(f"s_add_u32 {s(S_SPIN)}, {s(S_SPIN)}, 1")
            e.wait(vm="all")
            e.op(f"v_cmp_ne_u64 {s(S_MASK,2)}, {s(S_NONCE,2)}, {v(V_POLL,2)}")
            e.op(f"s_cmp_gt_u32 {s(S_SPIN)}, {SPIN_MAX}")
            e.op(f"s_cbranch_scc1 {bk}")
            e.op(f"s_cmp_lg_u64 {s(S_MASK,2)}, 0")
            e.op(f"s_cbranch_scc1 {st}_l")
            if self.stamps: e.op(f"v_writelane_b32 {v(V_STAMP)}, {s(S_SPIN)}, {16 + V_FA - vaddr}")
            e.op(f"s_branch {bk}")
        self.stubs.append(stub)

    def flag_off(self, dst, base, tb, col):
        e = self.e
        e.op(f"s_lshl_b32 {s(dst)}, {s(tb)}, 4")
        e.op(f"s_add_u32 {s(dst)}, {s(dst)}, {s(col)}")
        e.op(f"s_lshl_b32 {s(dst)}, {s(dst)}, 4")
        e.op(f"s_add_u32 {s(dst)}, {s(dst)}, {s(S_WAVE)}")
        e.op(f"s_lshl_b32 {s(dst)}, {s(dst)}, 3")
        e.op(f"s_add_u32 {s(dst)}, {s(dst)}, {base}")
    def vflag(self, dst, base, tb, col, tmp):
        e = self.e
        e.op(f"v_lshrrev_b32 {tmp}, 2, {tb}")
        e.op(f"v_lshl_add_u32 {tmp}, {tmp}, 4, {col}")
        e.op(f"v_lshlrev_b32 {tmp}, 4, {tmp}")
        e.op(f"v_and_or_b32 {tmp}, {tb}, 3, {tmp}")
        e.op(f"v_lshlrev_b32 {tmp}, 3, {tmp}")
        e.op(f"v_add_u32 {dst}, {base}, {tmp}")
    def capture(self, *fns):
        e = self.e
        rec = []
        real = e.op
        e.op = lambda text, tag=None: rec.append(text)
        try:
            for f in fns: f()
        finally:
            e.op = real
        atoms = []
        for t in rec:
            if t == "s_nop 0": continue
            if t.startswith(("s_cselect", "s_addc")): atoms[-1].append(t)
            else: atoms.append([t])
        return [lambda a=a_: [e.op(t) for t in a] and None for a_ in atoms]

    def prologue(self):
        e = self.e
        e.op("s_cmp_ge_u32 s2, 256")
        e.op("s_cbranch_scc1 L_end")
        e.op(f"s_load_dwordx16 {s(S_PTR,16)}, s[0:1], 0")
        e.op(f"s_load_dwordx4 {s(S_PTR+16,4)}, s[0:1], 64")
        e.op("s_cmp_lt_u32 s2, 240")
        e.op("s_cbranch_scc1 L_nopf")
        e.op(f"s_getpc_b64 {s(S_MASK,2)}")
        e.label("L_pc")
        e.op(f"s_bfe_u32 {s(S_T0)}, s2, 0x10003")
        e.op(f"v_lshl_add_u32 {v(V_T0)}, v0, 1, {s(S_T0)}")
        e.op(f"v_lshlrev_b32 {v(V_T0)}, 7, {v(V_T0)}")
        e.op(f"v_min_u32 {v(V_T0)}, L_cold-L_pc, {v(V_T0)}")
        e.op(f"global_load_dword {v(228)}, {v(V_T0)}, {s(S_MASK,2)}")
        e.vm = []
        e.label("L_nopf")
        if self.stamps:
            e.op(f"v_mov_b32 {v(V_STAMP)}, 0")
            e.op(f"s_memtime {s(S_VM,2)}")
        self.stamp(0)
        e.op(f"v_lshrrev_b32 {v(V_T0)}, 6, v0")
        e.op(f"v_and_b32 {v(V_LANE)}, 63, v0")
        e.op(f"v_readfirstlane_b32 {s(S_WAVE)}, {v(V_T0)}")
        e.op(f"v_lshlrev_b32 {v(V_L16)}, 4, {v(V_LANE)}")
        e.op(f"v_mov_b32 {v(V_ZERO)}, 0")
        if self.o("badmap", 0):
            e.op(f"s_lshr_b32 {s(S_XCD)}, s2, 5")
            e.op(f"s_and_b32 {s(S_I)}, s2, 31")
        else:
            e.op(f"s_and_b32 {s(S_XCD)}, s2, 7")
            e.op(f"s_lshr_b32 {s(S_I)}, s2, 3")
        e.op(f"s_lshr_b32 {s(S_T0)}, {s(S_XCD)}, 1")
        e.op(f"s_mul_i32 {s(S_T1)}, {s(S_T0)}, 30")
        e.op(f"s_add_u32 {s(S_T1)}, {s(S_T1)}, {s(S_I)}")
        e.op(f"s_and_b32 {s(S_T2)}, {s(S_XCD)}, 1")
        e.op(f"s_lshl_b32 {s(S_T3)}, {s(S_T2)}, 3")
        e.op(f"s_and_b32 {s(S_RB)}, {s(S_T1)}, 7")
        e.op(f"s_add_u32 {s(S_RB)}, {s(S_RB)}, {s(S_T3)}")
        e.op(f"s_lshr_b32 {s(S_CG)}, {s(S_T1)}, 3")
        tabs, ca, cb, cx = self.pi_tables()
        e.op(f"s_mul_i32 {s(S_T4)}, {s(S_RB)}, {ca}")
        e.op(f"s_mul_i32 {s(S_T5)}, {s(S_CG)}, {cb}")
        e.op(f"s_add_u32 {s(S_T4)}, {s(S_T4)}, {s(S_T5)}")
        e.op(f"s_mul_i32 {s(S_T5)}, {s(S_XCD)}, {cx}")
        e.op(f"s_add_u32 {s(S_T4)}, {s(S_T4)}, {s(S_T5)}")
        e.op(f"s_and_b32 {s(S_T4)}, {s(S_T4)}, {len(tabs) - 1}")
        for i, tb in enumerate(tabs):
            assert sorted(tb) == list(range(10))
            lo = sum(k << (4 * n) for n, k in enumerate(tb[:8])); hi = tb[8] | (tb[9] << 4)
            if i == 0:
                e.op(f"s_mov_b32 {s(S_PILO)}, {hex(lo)}")
                e.op(f"s_mov_b32 {s(S_PIHI)}, {hex(hi)}")
            else:
                e.op(f"s_cmp_eq_u32 {s(S_T4)}, {i}")
                e.op(f"s_cselect_b32 {s(S_PILO)}, {hex(lo)}, {s(S_PILO)}")
                e.op(f"s_cselect_b32 {s(S_PIHI)}, {hex(hi)}, {s(S_PIHI)}")
        L = v(V_LANE); T0, T1, T2, T3 = v(V_T0), v(V_T1), v(V_T2), v(V_T3)
        e.op(f"v_lshrrev_b32 {T0}, 3, {L}")
        e.op(f"v_mul_u32_u24 {T0}, 1280, {T0}")
        e.op(f"v_lshrrev_b32 {T1}, 4, {L}")
        e.op(f"v_and_b32 {T2}, 7, {L}")
        e.op(f"v_xor_b32 {T2}, {T2}, {T1}")
        for n in range(4):
            if n & 1: e.op(f"v_xor_b32 {T3}, 4, {T2}")
            else: e.op(f"v_mov_b32 {T3}, {T2}")
            e.op(f"v_lshl_add_u32 {T3}, {T3}, 4, {T0}")
            e.op(f"v_add_u32 {v(V_XD+n)}, {n * (8 * 1280 - 1024)}, {T3}")
        e.op(f"v_lshlrev_b32 {T2}, 2, {T1}")
        e.op(f"v_and_b32 {T3}, 15, {L}")
        e.op(f"v_xor_b32 {T2}, {T2}, {T3}")
        e.op(f"v_lshlrev_b32 {T2}, 4, {T2}")
        for base, rs in ((V_WD, 3840), (V_WD2, 3456)):
            e.op(f"v_mul_u32_u24 {T0}, {rs}, {T1}")
            e.op(f"v_add_u32 {T0}, {T0}, {T2}")
            for n in range(4):
                e.op(f"v_add_u32 {v(base+n)}, {n * (4 * rs - 1024)}, {T0}")
        e.op(f"s_lshl_b32 {s(S_T0)}, {s(S_RB)}, 2")
        e.op(f"s_add_u32 {s(S_T0)}, {s(S_T0)}, {s(S_WAVE)}")
        e.op(f"s_mul_i32 {s(S_XOFF)}, {s(S_T0)}, {32 * 1280}")
        e.op(f"s_lshl_b32 {s(S_T1)}, {s(S_CG)}, 8")
        e.op(f"s_mul_i32 {s(S_WOFF)}, {s(S_WAVE)}, {16 * 3840}")
        e.op(f"s_add_u32 {s(S_WOFF)}, {s(S_WOFF)}, {s(S_T1)}")
        e.op(f"s_mul_i32 {s(S_W2OFF)}, {s(S_WAVE)}, {16 * 3456}")
        e.op(f"s_add_u32 {s(S_W2OFF)}, {s(S_W2OFF)}, {s(S_T1)}")
        e.op(f"s_mul_i32 {s(S_XM0)}, {s(S_WAVE)}, {NX * 4096}")
        e.op(f"s_add_u32 {s(S_XM0)}, {s(S_XM0)}, {L_X}")
        e.op(f"s_lshl_b32 {s(S_WM0)}, {s(S_WAVE)}, 12")
        e.wait(lg="all")
        if self.stamps: e.op(f"v_writelane_b32 {v(V_STAMP)}, {s(S_VM)}, {NSTAMP + 1}")
        self.flush_stamp()
        self.srd(S_X, S_PTR + 0, 2048 * 1280)
        self.srd(S_WA, S_PTR + 2, 640 * 3840)
        self.srd(S_WB, S_PTR + 8, 640 * 3456)
        if self.o("touch", 0):
            e.op(f"s_lshl_b32 {s(S_T0)}, s2, 2")
            e.op(f"s_add_u32 {s(S_T0)}, {s(S_T0)}, {s(S_WAVE)}")
            for k, (srd, n) in enumerate(((S_X, 20), (S_WA, 19), (S_WB, 17))[:self.o("touch", 0)]):
                e.op(f"s_mul_i32 {s(S_T1)}, {s(S_T0)}, {n * 128}")
                e.op(f"v_min_u32 {T0}, {n - 1}, {L}")
                e.op(f"v_lshlrev_b32 {T0}, 7, {T0}")
                e.op(f"buffer_load_dword {v(224 + k)}, {T0}, {s(srd,4)}, {s(S_T1)} offen")
        e.op(f"s_cmp_ge_u32 {s(S_I)}, 30")
        e.op("s_cbranch_scc1 L_spare")

    def pi_tables(self):
        mode = self.o("pi", 5)
        if mode == 0: return [list(range(10))], 0, 0, 0
        if mode == 1:
            return [[0,4,1,2,3,8,5,6,7,9], [1,0,5,2,3,4,9,6,7,8], [2,0,1,6,3,4,5,7,8,9], [3,0,1,2,7,4,5,6,8,9]], 1, 1, 0
        if mode == 2:
            return [[(n + (5 * i) // 4) % 10 for n in range(10)] for i in range(8)], 1, 2, 0
        if mode == 3:
            return [[(n + (5 * i) // 4) % 10 for n in range(10)] for i in range(8)], 0, 0, 1
        if mode == 4:
            return [[(n + i) % 5 for n in range(5)] + [5 + (n + i) % 5 for n in range(5)] for i in range(4)], 1, 1, 0
        if mode == 5:
            return [[0,2,1,4,3,6,5,8,7,9], [1,0,3,2,5,4,7,6,9,8]], 1, 1, 0
    def pi_get(self, dst, st):
        self.e.op(f"s_bfe_u32 {s(dst)}, {s(S_PILO if st < 8 else S_PIHI)}, {hex((4 << 16) | (4 * (st % 8)))}")

    def pi3_tables(self):
        mode = self.o("pi3", 0)
        ex = lambda ch: sum([[2 * c, 2 * c + 1] for c in ch], []) + [12]
        if mode == 0: return [list(range(13))]
        if mode == 1: return [ex([0,2,1,4,3,5]), ex([1,0,3,2,5,4])]
        if mode == 2: return [[0,2,1,4,3,6,5,8,7,10,9,12,11], [1,0,3,2,5,4,7,6,9,8,11,10,12]]
        if mode == 3: return [ex([0,4,1,2,3,5]), ex([1,0,5,2,3,4]), ex([2,0,1,3,4,5]), ex([3,0,1,2,4,5])]
        if mode == 4: return [[0,4,1,2,3,8,5,6,7,12,9,10,11], [1,0,5,2,3,4,9,6,7,8,10,11,12], [2,0,1,6,3,4,5,10,7,8,9,11,12], [3,0,1,2,7,4,5,6,11,8,9,10,12]]
        if mode == 5: return [list(range(13)), list(range(6, 13)) + list(range(6))]
    def pi3_get(self, dst, n):
        self.e.op(f"s_bfe_u32 {s(dst)}, {s(S_P3LO if n < 8 else S_P3HI)}, {hex((4 << 16) | (4 * (n % 8)))}")

    def other_srds(self):
        self.srd(S_WS, S_PTR + 18, WS_SIZE)
        self.srd(S_OUT, S_PTR + 14, 2048 * 1280)
        self.srd(S_DBG, S_PTR + 16, 256)
        self.srd(S_MISC, S_PTR + 12, 1280)

    def dma_x(self, st):
        e = self.e
        def mk(n):
            def f():
                if n == 0:
                    e.op(f"s_add_u32 m0, {s(S_XM0)}, {(st % NX) * 4096}")
                    self.pi_get(S_DM, st)
                    e.op(f"s_lshl_b32 {s(S_DM)}, {s(S_DM)}, 7")
                    e.op(f"s_add_u32 {s(S_DM)}, {s(S_DM)}, {s(S_XOFF)}")
                e.op(f"buffer_load_dwordx4 {v(V_XD+n)}, {s(S_X,4)}, {s(S_DM)} offen offset:{n*1024} {self.ntx}lds", tag=("d", st))
            return f
        return [mk(n) for n in range(4)]
    def dma_w(self, st):
        e = self.e
        srd, vd, so, rs, k = (S_WA, V_WD, S_WOFF, 3840, st) if st < 10 else (S_WB, V_WD2, S_W2OFF, 3456, st - 10)
        def mk(n):
            def f():
                if n == 0:
                    e.op(f"s_add_u32 m0, {s(S_WM0)}, {L_W + (st % NW) * 16384}")
                    self.pi_get(S_DM, k)
                    e.op(f"s_mul_i32 {s(S_DM)}, {s(S_DM)}, {64 * rs}")
                    e.op(f"s_add_u32 {s(S_DM)}, {s(S_DM)}, {s(so)}")
                e.op(f"buffer_load_dwordx4 {v(vd+n)}, {s(srd,4)}, {s(S_DM)} offen offset:{n*1024} {self.ntw}lds", tag=("d", st))
            return f
        return [mk(n) for n in range(4)]

    def stage1_setup(self):
        e = self.e
        L = v(V_LANE); T0, T1, T2, T3 = v(V_T0), v(V_T1), v(V_T2), v(V_T3)
        e.op(f"v_and_b32 {T0}, 31, {L}")
        e.op(f"v_bfe_u32 {T1}, {L}, 1, 3")
        e.op(f"v_lshrrev_b32 {T2}, 5, {L}")
        e.op(f"v_xor_b32 {T1}, {T1}, {T2}")
        e.op(f"v_lshlrev_b32 {T1}, 4, {T1}")
        e.op(f"v_lshl_add_u32 {T1}, {T0}, 7, {T1}")
        for ks in range(4):
            e.op(f"v_xor_b32 {T3}, {ks * 32}, {T1}")
            e.op(f"v_add_u32 {v(V_XR+ks)}, {s(S_XM0)}, {T3}")
        e.op(f"v_bfe_u32 {T0}, {L}, 2, 2")
        e.op(f"v_lshl_add_u32 {T1}, {T2}, 3, {T0}")
        e.op(f"v_lshlrev_b32 {T1}, 8, {T1}")
        e.op(f"v_lshl_add_u32 {T1}, {T0}, 6, {T1}")
        e.op(f"v_bfe_u32 {T3}, {L}, 4, 1")
        e.op(f"v_lshl_add_u32 {T1}, {T3}, 5, {T1}")
        e.op(f"v_and_b32 {T3}, 3, {L}")
        e.op(f"v_lshl_add_u32 {T1}, {T3}, 3, {T1}")
        for j in range(4):
            e.op(f"v_xor_b32 {v(V_WR+j)}, {j * 64}, {T1}")
            e.op(f"v_add_u32 {v(V_WR+4+j)}, 0x10000, {v(V_WR+j)}")
    def store_setup(self, isv):
        e = self.e
        L = v(V_LANE); T0, T1, T2, T3 = v(V_T0), v(V_T1), v(V_T2), v(V_T3)
        e.op(f"s_lshl_b32 {s(S_T0)}, {s(S_RB)}, 2")
        e.op(f"s_add_u32 {s(S_T0)}, {s(S_T0)}, {s(S_WAVE)}")
        self.flag_off(S_FLA, FL_A, S_RB, S_CG)
        e.op(f"s_add_u32 {s(S_FLC)}, {s(S_FLA)}, {FL_C - FL_A}")
        if not isv:
            for j in range(4):
                e.op(f"v_add_u32 {v(V_ST1+j)}, {j * 131072}, {v(V_L16)}")
            e.op(f"s_lshl_b32 {s(S_ST1)}, {s(S_CG)}, 19")
            e.op(f"s_lshl_b32 {s(S_T1)}, {s(S_T0)}, 10")
            e.op(f"s_add_u32 {s(S_ST1)}, {s(S_ST1)}, {s(S_T1)}")
            e.op(f"s_add_u32 {s(S_ST1B)}, {s(S_ST1)}, {WS_QK + 65536}")
            e.op(f"s_add_u32 {s(S_ST1)}, {s(S_ST1)}, {WS_QK}")
        else:
            e.op(f"s_sub_u32 {s(S_T1)}, {s(S_CG)}, 10")
            e.op(f"s_lshl_b32 {s(S_T1)}, {s(S_T1)}, 7")
            e.op(f"v_and_b32 {T0}, 31, {L}")
            e.op(f"v_add_u32 {T0}, {s(S_T1)}, {T0}")
            e.op(f"v_lshrrev_b32 {T2}, 5, {L}")
            e.op(f"v_mul_u32_u24 {T2}, 640, {T2}")
            e.op(f"s_mov_b32 {s(S_T2)}, {64 * 2560 - 640}")
            for j in range(4):
                e.op(f"v_add_u32 {T1}, {32 * j}, {T0}")
                e.op(f"v_mul_u32_u24 {T3}, 1639, {T1}")
                e.op(f"v_lshrrev_b32 {T3}, 16, {T3}")
                e.op(f"v_lshl_add_u32 {T1}, {T1}, 4, {T2}")
                e.op(f"v_mad_u32_u24 {v(V_ST1+j)}, {T3}, {s(S_T2)}, {T1}")
            e.op(f"s_mul_i32 {s(S_ST1)}, {s(S_T0)}, 2560")
            e.op(f"s_add_u32 {s(S_ST1B)}, {s(S_ST1)}, {WS_VT + 1280}")
            e.op(f"s_add_u32 {s(S_ST1)}, {s(S_ST1)}, {WS_VT}")
        e.op(f"s_cmp_lt_u32 {s(S_CG)}, 5")
        e.op(f"s_cselect_b32 {s(S_SCALE)}, {f32(QSCALE)}, 1.0")
        e.op(f"s_mov_b32 {s(S_SCALE+1)}, {s(S_SCALE)}")
        e.op(f"s_mul_i32 {s(S_ST2)}, {s(S_T0)}, 110592")
        e.op(f"s_lshl_b32 {s(S_T1)}, {s(S_CG)}, 13")
        e.op(f"s_add_u32 {s(S_ST2)}, {s(S_ST2)}, {s(S_T1)}")
        e.op(f"s_add_u32 {s(S_ST2)}, {s(S_ST2)}, {WS_H}")
        e.op(f"s_add_u32 {s(S_ST2B)}, {s(S_ST2)}, 4096")
        e.op(f"s_cmp_lt_u32 {s(S_CG)}, 13")
        e.op(f"s_cselect_b32 {s(S_ST2B)}, {s(S_ST2B)}, {OOB}")
        e.op(f"s_cmp_lt_u32 {s(S_CG)}, 14")
        e.op(f"s_cselect_b32 {s(S_ST2)}, {s(S_ST2)}, {OOB}")

    def late_setup(self):
        e = self.e
        L = v(V_LANE); T0, T1, T2, T3 = v(V_T0), v(V_T1), v(V_T2), v(V_T3)
        P0, P1 = v(V_POLL), v(V_POLL + 1)
        e.op(f"s_lshr_b32 {s(S_P)}, {s(S_I)}, 4")
        e.op(f"s_lshl_b32 {s(S_T3)}, {s(S_XCD)}, 1")
        e.op(f"s_add_u32 {s(S_P)}, {s(S_P)}, {s(S_T3)}")
        e.op(f"s_and_b32 {s(S_RBA)}, {s(S_I)}, 15")
        if self.o("map3", 0) == 0:
            e.op(f"s_lshr_b32 {s(S_T0)}, {s(S_XCD)}, 1")
            e.op(f"s_lshl_b32 {s(S_TB64)}, {s(S_T0)}, 3")
            e.op(f"s_and_b32 {s(S_T3)}, {s(S_I)}, 7")
            e.op(f"s_add_u32 {s(S_TB64)}, {s(S_TB64)}, {s(S_T3)}")
            e.op(f"s_and_b32 {s(S_T2)}, {s(S_XCD)}, 1")
            e.op(f"s_lshl_b32 {s(S_NG)}, {s(S_T2)}, 2")
            e.op(f"s_lshr_b32 {s(S_T3)}, {s(S_I)}, 3")
            e.op(f"s_add_u32 {s(S_NG)}, {s(S_NG)}, {s(S_T3)}")
        else:
            e.op(f"s_lshl_b32 {s(S_TB64)}, {s(S_XCD)}, 2")
            e.op(f"s_and_b32 {s(S_T3)}, {s(S_I)}, 3")
            e.op(f"s_add_u32 {s(S_TB64)}, {s(S_TB64)}, {s(S_T3)}")
            e.op(f"s_lshr_b32 {s(S_NG)}, {s(S_I)}, 2")
        tabs = self.pi3_tables()
        if len(tabs) > 1:
            e.op(f"s_add_u32 {s(S_T4)}, {s(S_TB64)}, {s(S_NG)}")
            e.op(f"s_and_b32 {s(S_T4)}, {s(S_T4)}, {len(tabs) - 1}")
            for i, tb in enumerate(tabs):
                assert sorted(tb) == list(range(13))
                lo = sum(k << (4 * n) for n, k in enumerate(tb[:8])); hi = sum(k << (4 * n) for n, k in enumerate(tb[8:]))
                if i == 0:
                    e.op(f"s_mov_b32 {s(S_P3LO)}, {hex(lo)}")
                    e.op(f"s_mov_b32 {s(S_P3HI)}, {hex(hi)}")
                else:
                    e.op(f"s_cmp_eq_u32 {s(S_T4)}, {i}")
                    e.op(f"s_cselect_b32 {s(S_P3LO)}, {hex(lo)}, {s(S_P3LO)}")
                    e.op(f"s_cselect_b32 {s(S_P3HI)}, {hex(hi)}, {s(S_P3HI)}")
        S_F0, S_TB0 = S_T4, S_T5
        e.op(f"s_mul_i32 {s(S_F0)}, {s(S_P)}, 10")
        e.op(f"s_lshr_b32 {s(S_F0)}, {s(S_F0)}, 2")
        e.op(f"s_lshl_b32 {s(S_TQ)}, {s(S_RBA)}, 2")
        e.op(f"s_mul_i32 {s(S_T0)}, {s(S_WAVE)}, 3")
        e.op(f"s_add_u32 {s(S_TB0)}, {s(S_TQ)}, {s(S_T0)}")
        e.op(f"s_sub_u32 {s(S_TB0)}, {s(S_TB0)}, 8")
        e.op(f"s_add_u32 {s(S_TQ)}, {s(S_TQ)}, {s(S_WAVE)}")
        e.op(f"v_and_b32 {T0}, 1, {L}")
        e.op(f"v_lshl_add_u32 {T1}, {T0}, 1, {s(S_F0)}")
        e.op(f"v_lshrrev_b32 {T1}, 3, {T1}")
        e.op(f"s_mul_i32 {s(S_T0)}, {s(S_P)}, 40")
        e.op(f"v_mul_u32_u24 {T0}, 39, {T0}")
        e.op(f"v_add_u32 {T0}, {s(S_T0)}, {T0}")
        e.op(f"v_lshrrev_b32 {T0}, 7, {T0}")
        e.op(f"v_add_u32 {T0}, 10, {T0}")
        e.op(f"v_lshrrev_b32 {T2}, 1, {L}")
        e.op(f"v_min_u32 {T2}, 6, {T2}")
        e.op(f"v_cmp_lt_u32 vcc, 2, {T2}")
        e.op(f"v_add_u32 {P0}, 5, {T1}")
        e.op(f"v_subrev_u32 {P1}, 3, {T2}")
        e.op(f"v_cndmask_b32 {P0}, {P0}, {T0}, vcc")
        e.op(f"v_cndmask_b32 {P1}, {T2}, {P1}, vcc")
        e.op(f"v_cmp_lt_u32 vcc, 5, {T2}")
        e.op(f"v_add_u32 {P1}, {s(S_TB0)}, {P1}")
        e.op(f"v_max_i32 {P1}, 0, {P1}")
        e.op(f"v_mov_b32 {T3}, {s(S_TQ)}")
        e.op(f"v_cndmask_b32 {P0}, {P0}, {T1}, vcc")
        e.op(f"v_cndmask_b32 {P1}, {P1}, {T3}, vcc")
        self.vflag(v(V_FA), FL_A, P1, P0, T0)
        e.op(f"s_lshl_b32 {s(S_T0)}, {s(S_F0)}, 16")
        e.op(f"s_lshl_b32 {s(S_QOFF)}, {s(S_TQ)}, 10")
        e.op(f"s_add_u32 {s(S_QOFF)}, {s(S_QOFF)}, {s(S_T0)}")
        e.op(f"s_mul_i32 {s(S_T3)}, {s(S_P)}, {64 * 2560}")
        for i in range(3):
            e.op(f"s_add_i32 {s(S_T1)}, {s(S_TB0)}, {i}")
            e.op(f"s_max_i32 {s(S_T1)}, {s(S_T1)}, 0")
            e.op(f"s_lshl_b32 {s(S_KOFF + i)}, {s(S_T1)}, 10")
            e.op(f"s_add_u32 {s(S_KOFF + i)}, {s(S_KOFF + i)}, {s(S_T0)}")
            e.op(f"s_mul_i32 {s(S_VOFF + i)}, {s(S_T1)}, 2560")
            e.op(f"s_add_u32 {s(S_VOFF + i)}, {s(S_VOFF + i)}, {s(S_T3)}")
            e.op(f"s_add_u32 {s(S_VOFF + i)}, {s(S_VOFF + i)}, {WS_VT}")
        e.op(f"v_and_b32 {T0}, 31, {L}")
        e.op(f"v_lshrrev_b32 {T1}, 5, {L}")
        e.op(f"v_lshlrev_b32 {T2}, 2, {T1}")
        e.op(f"v_sub_u32 {T2}, {T0}, {T2}")
        e.op(f"v_mov_b32 {T3}, {hex(NEGBIG)}")
        for rr in range(0, 16, 2):
            e.op(f"v_cmp_gt_i32 vcc, {8 * (rr >> 2) + (rr & 3)}, {T2}")
            e.op(f"v_cmp_gt_i32 {s(S_MASK,2)}, {8 * (rr >> 2) + (rr & 3) + 1}, {T2}")
            e.op("s_nop 0")
            e.op(f"v_cndmask_b32 {v(CD + rr)}, 0, {T3}, vcc")
            e.op(f"v_cndmask_b32 {v(CE + rr)}, {T3}, 0, vcc")
            e.op(f"v_cndmask_b32 {v(CD + rr + 1)}, 0, {T3}, {s(S_MASK,2)}")
            e.op(f"v_cndmask_b32 {v(CE + rr + 1)}, {T3}, 0, {s(S_MASK,2)}")
        e.op(f"s_lshl_b32 {s(S_T1)}, {s(S_WAVE)}, 10")
        e.op(f"s_add_u32 {s(S_T1)}, {s(S_T1)}, {L_K}")
        e.op(f"v_add_u32 {v(V_KA)}, {s(S_T1)}, {v(V_L16)}")
        e.op(f"s_mul_i32 {s(S_T1)}, {s(S_WAVE)}, 2560")
        e.op(f"s_add_u32 {s(S_T1)}, {s(S_T1)}, {L_V}")
        e.op(f"v_mul_u32_u24 {T2}, 640, {T1}")
        e.op(f"v_lshl_add_u32 {T2}, {T0}, 4, {T2}")
        e.op(f"v_add_u32 {v(V_VA)}, {s(S_T1)}, {T2}")
        e.op(f"s_mov_b32 {s(S_VM)}, 0xfffff")
        e.op(f"s_mov_b32 {s(S_VM+1)}, 0xfffff")
        e.op(f"s_lshr_b32 {s(S_T0)}, {s(S_P)}, 2")
        e.op(f"s_mul_i32 {s(S_T0)}, {s(S_T0)}, {20 * 512}")
        e.op(f"s_mul_i32 {s(S_T1)}, {s(S_TQ)}, 40960")
        e.op(f"s_add_u32 {s(S_T0)}, {s(S_T0)}, {s(S_T1)}")
        e.op(f"s_add_u32 {s(S_T0)}, {s(S_T0)}, {WS_O}")
        e.op(f"s_and_b32 {s(S_T1)}, {s(S_P)}, 3")
        e.op(f"s_lshl_b32 {s(S_OST)}, {s(S_T1)}, 11")
        e.op(f"s_add_u32 {s(S_OST)}, {s(S_OST)}, {s(S_T0)}")
        e.op(f"s_lshl_b32 {s(S_T1)}, {s(S_T1)}, 9")
        e.op(f"s_add_u32 {s(S_T1)}, {s(S_T1)}, {s(S_T0)}")
        e.op(f"s_add_u32 {s(S_OST2)}, {s(S_T1)}, {16 * 512}")
        self.flag_off(S_FLB, FL_B, S_RBA, S_P)
        e.op(f"v_and_b32 {T0}, 15, {L}")
        e.op(f"v_lshrrev_b32 {T1}, 4, {L}")
        e.op(f"v_lshlrev_b32 {T2}, 9, {T1}")
        e.op(f"v_lshl_add_u32 {v(V_HL)}, {T0}, 4, {T2}")
        e.op(f"s_lshl_b32 {s(S_T4)}, {s(S_WAVE)}, 11")
        e.op(f"s_add_u32 {s(S_T4)}, {s(S_T4)}, {WS_H}")
        e.op(f"s_mul_i32 {s(S_T5)}, {s(S_WAVE)}, {5 * 2048}")
        e.op(f"s_add_u32 {s(S_T5)}, {s(S_T5)}, {WS_O}")
        for t in range(4):
            e.op(f"s_add_u32 {s(S_T0)}, {s(S_WAVE)}, {t + 1}")
            e.op(f"s_and_b32 {s(S_T0)}, {s(S_T0)}, 3")
            e.op(f"s_lshr_b32 {s(S_T1)}, {s(S_T0)}, 1")
            e.op(f"s_lshl_b32 {s(S_T2)}, {s(S_TB64)}, 1")
            e.op(f"s_add_u32 {s(S_T1)}, {s(S_T1)}, {s(S_T2)}")
            e.op(f"s_and_b32 {s(S_T2)}, {s(S_T0)}, 1")
            e.op(f"s_lshl_b32 {s(S_T2)}, {s(S_T2)}, 8")
            e.op(f"s_mul_i32 {s(S_T3)}, {s(S_T1)}, 110592")
            e.op(f"s_add_u32 {s(S_T3)}, {s(S_T3)}, {s(S_T2)}")
            e.op(f"s_add_u32 {s(S_HT + t)}, {s(S_T3)}, {s(S_T4)}")
            e.op(f"s_mul_i32 {s(S_T3)}, {s(S_T1)}, 40960")
            e.op(f"s_add_u32 {s(S_T3)}, {s(S_T3)}, {s(S_T2)}")
            e.op(f"s_add_u32 {s(S_OT + t)}, {s(S_T3)}, {s(S_T5)}")
        e.op(f"s_mul_i32 {s(S_T2)}, {s(S_NG)}, 74")
        e.op(f"s_add_u32 {s(S_T0)}, {s(S_T2)}, {s(S_WAVE)}")
        e.op(f"s_mul_i32 {s(S_WT0)}, {s(S_T0)}, 5120")
        e.op(f"s_add_u32 {s(S_WT0)}, {s(S_WT0)}, {WS_WT + 2048}")
        e.op(f"s_mul_i32 {s(S_T1)}, {s(S_WAVE)}, 5")
        e.op(f"s_add_u32 {s(S_T1)}, {s(S_T1)}, {s(S_T2)}")
        e.op(f"s_mul_i32 {s(S_WT1)}, {s(S_T1)}, 5120")
        e.op(f"s_add_u32 {s(S_WT1)}, {s(S_WT1)}, {WS_WT + 54 * 5120 + 2048}")
        e.op(f"v_and_b32 {T1}, 1, {L}")
        e.op(f"s_lshl_b32 {s(S_T0)}, {s(S_TB64)}, 1")
        e.op(f"v_add_u32 {T1}, {s(S_T0)}, {T1}")
        e.op(f"v_lshrrev_b32 {T0}, 1, {L}")
        e.op(f"v_min_u32 {T0}, 14, {T0}")
        self.vflag(v(V_FC), FL_C, T1, T0, T2)
        e.op(f"v_lshrrev_b32 {T0}, 1, {L}")
        e.op(f"v_min_u32 {T0}, 3, {T0}")
        e.op(f"s_lshl_b32 {s(S_T1)}, {s(S_WAVE)}, 2")
        e.op(f"v_add_u32 {T0}, {s(S_T1)}, {T0}")
        self.vflag(v(V_FB), FL_B, T1, T0, T2)
        e.op(f"s_lshl_b32 {s(S_T1)}, {s(S_XCD)}, 7")
        e.op(f"s_add_u32 {s(S_T1)}, {s(S_T1)}, {FL_DD}")
        e.op(f"v_mov_b32 {v(V_FD)}, {s(S_T1)}")

    def w_loads(self, n):
        e = self.e
        def mk(j):
            def f():
                dst = r(WR + 20 * (n % NWR) + 4 * j, 4)
                if n == 13:
                    if j in (0, 4):
                        e.op(f"s_add_u32 {s(S_T2)}, {s(S_WT0)}, {n * 4 * 5120 - 2048 + (4096 if j else 0)}")
                        e.op(f"s_cmp_lt_u32 {s(S_WAVE)}, 2")
                        e.op(f"s_cselect_b32 {s(S_T2)}, {s(S_T2)}, {OOB}")
                    e.op(f"buffer_load_dwordx4 {dst}, {v(V_L16)}, {s(S_WS,4)}, {s(S_T2)} offen offset:{(j & 3) * 1024} sc1", tag=("w", n, j))
                    return
                if j == 0:
                    if n < 13 and self.o("pi3", 0):
                        self.pi3_get(S_T2, n)
                        e.op(f"s_mul_i32 {s(S_T2)}, {s(S_T2)}, {4 * 5120}")
                        e.op(f"s_add_u32 {s(S_T2)}, {s(S_T2)}, {s(S_WT0)}")
                    elif n < 14: e.op(f"s_add_u32 {s(S_T2)}, {s(S_WT0)}, {n * 4 * 5120 * (1 - self.o('wsame', 0))}")
                    else: e.op(f"s_add_u32 {s(S_T2)}, {s(S_WT1)}, {(n - 14) * 5120 * (1 - self.o('wsame', 0))}")
                    e.op(f"s_add_u32 {s(S_WB64)}, {s(S_PTR + 18)}, {s(S_T2)}")
                    e.op(f"s_addc_u32 {s(S_WB64 + 1)}, {s(S_PTR + 19)}, 0")
                e.op(f"global_load_dwordx4 {dst}, {v(V_L16)}, {s(S_WB64,2)} offset:{j * 1024 - 2048} sc1", tag=("w", n, j))
            return f
        return [mk(j) for j in range(5)]
    @property
    def LDS_W(self):
        return (14, 15, 16, 17)[:self.o("nlds", 1)]
    def wl_dmas(self):
        e = self.e
        def f(i):
            if i % 4 == 0:
                e.op(f"s_mul_i32 {s(S_T2)}, {s(S_WAVE)}, 20480")
                e.op(f"s_add_u32 m0, {s(S_T2)}, {L_W + i * 1024}")
                e.op(f"s_add_u32 {s(S_DM)}, {s(S_WT1)}, {i * 1024 - 2048}")
            e.op(f"buffer_load_dwordx4 {v(V_L16)}, {s(S_WS,4)}, {s(S_DM)} offen offset:{(i % 4) * 1024} sc1 lds", tag="wl")
        return [lambda i=i: f(i) for i in range(5 * len(self.LDS_W))]
    def hreg(self, n, t):
        if n < 14: return HSLOT[n % NH] + 4 * t
        i = 5 * t + (n - 14)
        return HSLOT[(14 + i // 4) % NH] + 4 * (i % 4)
    def h_load(self, n, t):
        e = self.e
        if n < 13 and self.o("pi3", 0):
            if t == 0:
                self.pi3_get(S_HK, n)
                e.op(f"s_lshl_b32 {s(S_HK)}, {s(S_HK)}, 13")
                self.hk = n
            assert self.hk == n
            e.op(f"s_add_u32 {s(S_T5)}, {s(S_HT + t)}, {s(S_HK)}")
        elif n < 14: e.op(f"s_add_u32 {s(S_T5)}, {s(S_HT + t)}, {n * 8192 * (1 - self.o('hsame', 0))}")
        else: e.op(f"s_add_u32 {s(S_T5)}, {s(S_OT + t)}, {(n - 14) * 2048 * (1 - self.o('hsame', 0))}")
        if n == 13:
            e.op(f"s_cmp_lt_u32 {s(S_WAVE)}, 2")
            e.op(f"s_cselect_b32 {s(S_T5)}, {s(S_T5)}, {OOB}")
        e.op(f"buffer_load_dwordx4 {v(self.hreg(n, t), 4)}, {v(V_HL)}, {s(S_WS,4)}, {s(S_T5)} offen sc1", tag=("h", n, t))
    def kvq_loads(self):
        e = self.e
        ops = []
        def q(f):
            e.op(f"s_add_u32 {s(S_T4)}, {s(S_QOFF)}, {WS_QK + f * 65536}")
            e.op(f"buffer_load_dwordx4 {v(VQ + 4 * f, 4)}, {v(V_L16)}, {s(S_WS,4)}, {s(S_T4)} offen sc1", tag="q")
        def k(i, f):
            if i == 0 and f == 0: e.op(f"s_mul_i32 {s(S_T5)}, {s(S_WAVE)}, 3072")
            e.op(f"s_add_u32 m0, {s(S_T5)}, {L_K + f * 12288 + i * 1024}")
            e.op(f"s_add_u32 {s(S_T4)}, {s(S_KOFF + i)}, {WS_QK + (40 + f) * 65536}")
            e.op(f"buffer_load_dwordx4 {v(V_L16)}, {s(S_WS,4)}, {s(S_T4)} offen sc1 lds", tag="kd")
        def vv(i, n):
            if i == 0 and n == 0: e.op(f"s_mul_i32 {s(S_T5)}, {s(S_WAVE)}, 7680")
            if n == 0: e.op(f"s_add_u32 m0, {s(S_T5)}, {L_V + i * 2560}")
            if n == 2: e.op("s_mov_b32 exec_hi, 0")
            e.op(f"buffer_load_dwordx4 {v(V_L16)}, {s(S_WS,4)}, {s(S_VOFF + i)} offen offset:{n * 1024} sc1 lds", tag="vd")
            if n == 2: e.op("s_mov_b32 exec_hi, -1")
        for f in range(3): ops.append(lambda f=f: q(f))
        for i in range(3):
            for f in range(3): ops.append(lambda i=i, f=f: k(i, f))
        for i in range(3):
            for n in range(3): ops.append(lambda i=i, n=n: vv(i, n))
        return ops
    EARLY_W = (8, 9, 10, 11)

    def ksj(self, st, f):
        return (f & 3, f >> 2) if (st == 19 or (st == 9 and self.o("jm9", 1))) else (f >> 2, f & 3)
    def w_read(self, st, f, u):
        ks, j = self.ksj(st, f)
        slot = st % NW
        off = L_W + slot * 16384 + ks * 4096 + u * 1024
        ad = V_WR + j
        if off >= 65536: off -= 65536; ad += 4
        m = 16 * st + f
        self.e.op(f"ds_read_b64_tr_b16 {v(V_FR + 4 * (m % 8) + 2 * u, 2)}, {v(ad)} offset:{off}", tag=("w", m))
    def x_read(self, st, ks):
        self.e.op(f"ds_read_b128 {r(A_X + 16 * st + 4 * ks, 4)}, {v(V_XR + ks)} offset:{(st % NX) * 4096}", tag=("x", st, ks))

    def stage1_fill(self):
        e = self.e
        fill = {m: [] for m in range(-1, 320)}
        def at(m, f): fill[max(m, -1)].append(f)
        for st in range(20):
            b = 16 * st - 4
            def bar(st=st):
                assert ("d", st) in e.all_tags
                e.wait(vm=("d", st), lg="all")
                e.op("s_barrier")
            at(b, bar)
            if st < 10:
                for ks in range(4): at(b + (ks if self.ksj(st, 1)[0] else 3 * ks), lambda st=st, ks=ks: self.x_read(st, ks))
            for rho in range(32):
                at(b + rho * 13 // 32, lambda st=st, rho=rho: self.w_read(st, rho >> 1, rho & 1))
        return fill

    def vm_schedule(self, fill, queues, m0, m1, thr):
        lag = 0
        where = {}
        for m in range(m0, m1):
            lag = max(0, lag - 32)
            heads = [q for q in queues if q and q[0][0] <= m]
            if not heads: continue
            q = min(heads, key=lambda q: q[0][1])
            if q[0][1] <= m or lag <= thr:
                rel, dl, cost, f = q.pop(0)
                fill[m].append(f); where[f] = m
                lag = min(lag, 3 * 72) + cost
        assert not any(queues), [len(q) for q in queues]
        return where

    def p1_epilogue_ops(self):
        e = self.e
        groups = []
        for j in range(4):
            for h in range(2):
                A = ACC[0] + 16 * j + 8 * h
                ops = []
                if self.o("pkmul", 0):
                    for q in range(4):
                        ops.append(lambda A=A, q=q: e.op(f"v_pk_mul_f32 {v(A+2*q,2)}, {v(A+2*q,2)}, {s(S_SCALE,2)}"))
                else:
                    for q in range(8):
                        ops.append(lambda A=A, q=q: e.op(f"v_mul_f32 {v(A+q)}, {s(S_SCALE)}, {v(A+q)}"))
                for q in range(4):
                    ops.append(lambda A=A, q=q: e.op(f"v_cvt_pk_bf16_f32 {v(A+q)}, {v(A+2*q)}, {v(A+2*q+1)}"))
                ops.append(lambda A=A, h=h, j=j: e.op(f"buffer_store_dwordx4 {v(A,4)}, {v(V_ST1+j)}, {s(S_WS,4)}, {s(S_ST1B if h else S_ST1)} offen sc1", tag="st1"))
                groups.append(ops)
        return groups
    def p2_epilogue_ops(self):
        e = self.e
        groups = []
        for j in range(4):
            for h in range(2):
                A = ACC[1] + 16 * j + 8 * h
                ops = []
                for q in range(4):
                    ops.append(lambda A=A, q=q: e.op(f"v_cvt_pk_bf16_f32 {v(A+q)}, {v(A+2*q)}, {v(A+2*q+1)}"))
                for q in range(4):
                    ops.append(lambda A=A, q=q: e.op(f"v_pk_max_i16 {v(A+q)}, {v(A+q)}, 0"))
                ops.append(lambda A=A, h=h, j=j: e.op(f"buffer_store_dwordx4 {v(A,4)}, {v(V_L16)}, {s(S_WS,4)}, {s(S_ST2B if j >= 2 else S_ST2)} offen offset:{(j & 1) * 2048 + h * 1024} sc1", tag="st2"))
                groups.append(ops)
        return groups

    def stage1_stream(self, fill, m0, m1, swap, extra=()):
        e = self.e
        extra = list(extra)
        for m in range(m0, m1):
            st, f = divmod(m, 16)
            ks, j = self.ksj(st, f)
            e.wait(lg=[("w", m), ("x", st, ks)])
            acc = v(ACC[st // 10] + 16 * j, 16)
            wf = v(V_FR + 4 * (m % 8), 4)
            xf = r(A_X + 16 * (st % 10) + 4 * ks, 4)
            c = "0" if (st % 10 == 0 and ks == 0) else acc
            if swap: e.op(f"v_mfma_f32_32x32x16_bf16 {acc}, {xf}, {wf}, {c}")
            else: e.op(f"v_mfma_f32_32x32x16_bf16 {acc}, {wf}, {xf}, {c}")
            for fn in fill[m]: fn()
            for _ in range(2):
                if extra and m >= 2: extra.pop(0)()
        assert not extra

    def ones_init(self):
        return [lambda i=i: self.e.op(f"v_mov_b32 {v(VF + i)}, 0x3f803f80") for i in range(8)]

    def stage1(self):
        e = self.e
        for f in self.dma_x(0) + self.dma_w(0): f()
        self.stamp(1, True) if self.o("rtdbg", 0) else None
        self.rt_tables_load()
        if self.o("nort", 0) & 1:
            real = e.op
            e.op = lambda t, tag=None: None if t.startswith("buffer_load") else real(t, tag)
        self.rt_loads(2)
        if self.o("nort", 0) & 1: e.op = real
        self.other_srds()
        self.stage1_setup()
        self.stamp(2, True) if self.o("rtdbg", 0) else None
        for f in self.dma_x(1) + self.dma_w(1): f()
        self.rt_tables_rest()
        self.stamp(3, True) if self.o("rtdbg", 0) else None
        fill = self.stage1_fill()
        dq = []
        for st in range(2, 20):
            d = (self.dma_x(st) if st < 10 else []) + self.dma_w(st)
            rel = max(16 * (st - 4) - 3, 29 if st == 4 else 0)
            if st < 10: rel = max(rel, 16 * (st - 2) - 3)
            g0 = max(16 * (st - 2) - 3, 0); g1 = 16 * (st - 1) - 5
            dq += [(rel, g0 + i * (g1 - g0) // len(d), 72, f) for i, f in enumerate(d)]
        pA, cA = self.o("pollA", 258), self.o("chkA", 278)
        kv = self.kvq_loads()
        dq += [(cA + 1, cA + 1 + i * (318 - cA) // len(kv), 72, f) for i, f in enumerate(kv)]
        for i, f in enumerate(self.rt_reads()): fill[22 + i // 2].append(f)
        rs0 = self.o("rs0", 30)
        sq = [(rs0 + 6 * i, rs0 + 6 * i, 128, f) for i, f in enumerate(self.rt_stores())]
        if self.o("nort", 0) & 2: sq = []
        sq.append((rs0 + 14, rs0 + 14, 20, self.nonce_issue))
        pd = (rs0 + 14 + 24 + 4 + 15) // 16 * 16 - 4
        fill[pd].insert(0, self.nonce_check)
        sq.append((pd + 1, pd + 1, 20, lambda: self.publish(S_RTF)))
        sp = self.o("epi", 5)
        e0 = 160
        for g, ops in enumerate(self.p1_epilogue_ops()):
            for i, f in enumerate(ops[:-1]): fill[e0 + sp * g + i * sp // (len(ops) - 1)].append(f)
            sq.append((e0 + sp * (g + 1), e0 + sp * (g + 1), self.o("stc", 160), ops[-1]))
        def pub_a():
            e.wait(vm="st1")
            self.publish(S_FLA)
        pD, cD = self.o("pollD", 222), self.o("chkD", 240)
        sq.append((pD, pD, 20, lambda: self.poll_issue(V_FD)))
        fill[cD].append(lambda: self.poll_check(V_FD))
        sq.append((self.o("pubA", 224), self.o("pubA", 224), 20, pub_a))
        sq.append((pA, pA, 30, lambda: self.poll_issue(V_FA)))
        fill[cA].append(lambda: self.poll_check(V_FA))
        if self.stamps: fill[cA].append(lambda: self.stamp(3))
        ew = sum([self.w_loads(n) for n in self.EARLY_W], [])
        wq = [(cD + 1, cA - 2 * (len(ew) - i), 72, f) for i, f in enumerate(ew)]
        self.vm_schedule(fill, [dq, sq, wq], 0, 320, self.o("thr", 40))
        epi2 = self.p2_epilogue_ops()
        self.p2_stores_left = [g[-1] for g in epi2]
        va = sum([g[:-1] for g in epi2], [])
        for m, cnt in ((310, 2), (311, 2), (312, 3), (313, 5), (314, 4), (315, 5), (316, 5), (317, 5), (318, 1)):
            for _ in range(cnt): fill[m].append(va.pop(0))
        self.p2_valu_left = va
        for i, f in enumerate(self.ones_init()): fill[210 + i].append(f)
        extra = [self.capture(lambda: self.store_setup(isv), self.late_setup) for isv in (False, True)]
        z = self.o("zoom", 0)
        if z in (1, 2):
            for k in range(11):
                m = min(160 * (z - 1) + 16 * k - 1, 319 if z == 2 else 158)
                if z == 2 and k == 0: m = 160
                fill[m].append(lambda k=k: self.stamp(1 + k, True))
            fill[159].append(self.flush_stamp)
        for fn in fill[-1]: fn()
        if z == 1: self.flush_stamp()
        self.stamp(1)
        e.op(f"s_cmp_ge_u32 {s(S_CG)}, 10")
        e.op("s_cbranch_scc1 L_p1v")
        snap = e.snapshot(); ps = self.pending_stamp
        self.stage1_stream(fill, 0, 160, False, extra[0])
        e.op("s_branch L_p2")
        after = e.snapshot()
        e.restore(snap)
        e.label("L_p1v")
        self.stage1_stream(fill, 0, 160, True, extra[1])
        e.op(f"s_cmp_eq_u32 {s(S_CG)}, 14")
        e.op("s_cbranch_scc1 L_gate")
        self.gate_snap = e.snapshot()
        assert after[0] == e.vm and after[1] == e.lg
        e.label("L_p2")
        self.stamp(2)
        self.stage1_stream(fill, 160, 320, False)
        self.flush_stamp()

    def side_tail(self):
        e = self.e
        for f in self.ones_init(): f()
        self.poll_issue(V_FD); self.poll_check(V_FD)
        for n in self.EARLY_W:
            for f in self.w_loads(n): f()
        self.poll_issue(V_FA); self.poll_check(V_FA)
        for f in self.kvq_loads(): f()
        e.wait(vm="all", lg="all")
        e.op("s_branch L_att")

    def gate(self):
        e = self.e
        e.restore(self.gate_snap)
        e.label("L_gate")
        e.wait(vm="all", lg="all")
        e.op("s_nop 7")
        for g in self.p1_epilogue_ops():
            for f in g: f()
        e.op(f"v_lshrrev_b32 {v(V_T1)}, 5, {v(V_LANE)}")
        e.op(f"v_lshlrev_b32 {v(V_T1)}, 4, {v(V_T1)}")
        G = 16
        def gload(k):
            if k % 4 == 0:
                self.pi_get(S_T4, k // 4)
                e.op(f"s_lshl_b32 {s(S_T4)}, {s(S_T4)}, 7")
            e.op(f"buffer_load_dwordx4 {v(G + 4 * (k % 20), 4)}, {v(V_T1)}, {s(S_MISC,4)}, {s(S_T4)} offen offset:{32 * (k % 4)}", tag=("g", k))
        for k in range(20): gload(k)
        e.wait(vm="st1")
        self.publish(S_FLA)
        for k in range(40):
            e.wait(vm=("g", k))
            e.op(f"v_mfma_f32_32x32x16_bf16 {v(0,16)}, {v(G + 4 * (k % 20), 4)}, {r(A_X + 4 * k, 4)}, {'0' if k == 0 else v(0,16)}")
            if k < 20: gload(k + 20)
        e.op(f"v_mul_f32 {v(V_T1)}, {f32(-math.log2(math.e))}, v0")
        e.op(f"v_exp_f32 {v(V_T1)}, {v(V_T1)}")
        e.op(f"v_add_f32 {v(V_T1)}, 1.0, {v(V_T1)}")
        e.op(f"v_rcp_f32 {v(V_T1)}, {v(V_T1)}")
        e.op(f"v_and_b32 {v(V_T2)}, 31, {v(V_LANE)}")
        e.op(f"v_lshlrev_b32 {v(V_T2)}, 2, {v(V_T2)}")
        e.op(f"s_lshl_b32 {s(S_T0)}, {s(S_RB)}, 2")
        e.op(f"s_add_u32 {s(S_T0)}, {s(S_T0)}, {s(S_WAVE)}")
        e.op(f"s_lshl_b32 {s(S_T1)}, {s(S_T0)}, 7")
        e.op(f"s_add_u32 {s(S_T1)}, {s(S_T1)}, {WS_G}")
        e.op("s_mov_b32 exec_hi, 0")
        e.op(f"buffer_store_dword {v(V_T1)}, {v(V_T2)}, {s(S_WS,4)}, {s(S_T1)} offen sc1")
        e.op("s_mov_b32 exec_hi, -1")
        self.side_tail()

    def rt_tables_load(self):
        e = self.e
        L = v(V_LANE); T0, T1, T2 = v(V_T0), v(V_T1), v(V_T2)
        e.op(f"s_and_b32 {s(S_T0)}, {s(S_WAVE)}, 1")
        e.op(f"s_mul_i32 {s(S_T0)}, {s(S_T0)}, 160")
        for i in range(3):
            e.op(f"v_add_u32 {T0}, {s(S_T0)}, {L}")
            if i: e.op(f"v_add_u32 {T0}, {64 * i}, {T0}")
            e.op(f"v_mul_u32_u24 {T1}, 820, {T0}")
            e.op(f"v_lshrrev_b32 {T1}, 16, {T1}")
            e.op(f"v_lshlrev_b32 {T1}, 2, {T1}")
            e.op(f"v_xor_b32 {T0}, {T0}, {T1}")
            e.op(f"v_lshlrev_b32 {v(RT_LD + i)}, 4, {T0}")
    def rt_tables_rest(self):
        e = self.e
        L = v(V_LANE); T0, T1, T2, T3 = v(V_T0), v(V_T1), v(V_T2), v(V_T3)
        P0, P1 = v(V_POLL), v(V_POLL + 1)
        e.op(f"s_mul_i32 {s(S_T0)}, {s(S_WAVE)}, 20")
        e.op(f"s_mov_b32 {s(S_T1)}, {74 * 5120 - 5 * 1024}")
        for i in range(3):
            e.op(f"v_lshrrev_b32 {T0}, 4, {L}")
            e.op(f"v_add_u32 {T0}, {4 * i}, {T0}")
            e.op(f"v_min_u32 {T0}, 9, {T0}")
            e.op(f"v_mul_u32_u24 {T1}, 52, {T0}")
            e.op(f"v_lshrrev_b32 {T1}, 8, {T1}")
            e.op(f"v_and_b32 {T2}, 15, {L}")
            e.op(f"v_lshlrev_b32 {T2}, 4, {T2}")
            e.op(f"v_lshl_add_u32 {T2}, {T0}, 10, {T2}")
            e.op(f"v_mad_u32_u24 {v(RT_ST + i)}, {T1}, {s(S_T1)}, {T2}")
            e.op(f"v_mul_u32_u24 {T2}, 5, {T1}")
            e.op(f"v_sub_u32 {T0}, {T0}, {T2}")
            e.op(f"v_cmp_eq_u32 vcc, 4, {T0}")
            e.op(f"v_and_b32 {T3}, 3, {L}")
            e.op(f"v_lshlrev_b32 {P0}, 1, {T3}")
            e.op(f"v_and_or_b32 {P0}, {T0}, 1, {P0}")
            e.op(f"v_cndmask_b32 {P0}, {P0}, {T3}, vcc")
            e.op(f"v_and_b32 {T0}, 6, {T0}")
            e.op(f"v_add_u32 {T0}, {T0}, {T2}")
            e.op(f"v_lshl_add_u32 {T0}, {T0}, 1, {s(S_T0)}")
            e.op(f"v_lshl_add_u32 {T0}, {T0}, 1, {P0}")
            e.op(f"v_bfe_u32 {P1}, {L}, 2, 2")
            e.op(f"v_lshlrev_b32 {T1}, 3, {P1}")
            e.op(f"v_xor_b32 {T0}, {T0}, {T1}")
            e.op(f"v_mul_u32_u24 {P1}, 1280, {P1}")
            e.op(f"v_lshl_add_u32 {T0}, {T0}, 3, {P1}")
            e.op(f"v_add_u32 {v(RT_RD + i)}, {L_RT}, {T0}")
    def rt_loads(self, su, lo_=0, S_RTS=S_RTS, S_RTF=S_RTF):
        e = self.e
        KS, SA, SB_, SC, SR0, Q = S_T5, S_T0, S_T1, S_T2, S_T3, S_T4
        lo, lr, lg = self.L("rt_o"), self.L("rt_r"), self.L("rt_go")
        e.op(f"s_lshr_b32 {s(KS)}, {s(su)}, 2")
        e.op(f"s_mul_i32 {s(S_RTS)}, {s(S_WAVE)}, 148")
        e.op(f"s_add_u32 {s(S_RTS)}, {s(S_RTS)}, {s(KS)}")
        e.op(f"s_mul_i32 {s(S_RTS)}, {s(S_RTS)}, 20")
        e.op(f"s_and_b32 {s(SA)}, {s(su)}, 3")
        e.op(f"s_add_u32 {s(S_RTS)}, {s(S_RTS)}, {s(SA)}")
        e.op(f"s_lshl_b32 {s(S_RTS)}, {s(S_RTS)}, 8")
        e.op(f"s_add_u32 {s(S_RTS)}, {s(S_RTS)}, {WS_WT}")
        e.op(f"s_lshl_b32 {s(S_RTF)}, {s(su)}, 7")
        e.op(f"s_add_u32 {s(S_RTF)}, {s(S_RTF)}, {FL_D}")
        e.op(f"s_cmp_eq_u32 {s(S_WAVE)}, 0")
        e.op(f"s_cselect_b32 {s(S_RTF)}, {s(S_RTF)}, {OOB}")
        e.op(f"s_cmp_ge_u32 {s(KS)}, 54")
        e.op(f"s_cbranch_scc1 {lo}")
        self.srd(S_MISC, S_PTR + 10, 1728 * 1280)
        e.op(f"s_lshl_b32 {s(SR0)}, {s(KS)}, 5")
        e.op(f"s_mov_b32 {s(SA)}, 16")
        e.op(f"s_mov_b32 {s(SB_)}, 4")
        e.op(f"s_mov_b32 {s(SC)}, 8")
        e.op(f"s_branch {lg}")
        e.label(lo)
        self.srd(S_MISC, S_PTR + 4, 640 * 1280)
        e.op(f"s_sub_u32 {s(Q)}, {s(KS)}, 54")
        e.op(f"s_mul_i32 {s(KS)}, {s(Q)}, 52")
        e.op(f"s_lshr_b32 {s(KS)}, {s(KS)}, 8")
        e.op(f"s_mul_i32 {s(SR0)}, {s(KS)}, 5")
        e.op(f"s_sub_u32 {s(Q)}, {s(Q)}, {s(SR0)}")
        e.op(f"s_mul_i32 {s(SR0)}, {s(KS)}, 160")
        e.op(f"s_cmp_eq_u32 {s(Q)}, 4")
        e.op(f"s_cbranch_scc1 {lr}")
        e.op(f"s_mul_i32 {s(Q)}, {s(Q)}, 40")
        e.op(f"s_add_u32 {s(SR0)}, {s(SR0)}, {s(Q)}")
        e.op(f"s_mov_b32 {s(SA)}, 20")
        e.op(f"s_mov_b32 {s(SB_)}, 4")
        e.op(f"s_mov_b32 {s(SC)}, 8")
        e.op(f"s_branch {lg}")
        e.label(lr)
        e.op(f"s_add_u32 {s(SR0)}, {s(SR0)}, 16")
        e.op(f"s_mov_b32 {s(SA)}, 80")
        e.op(f"s_mov_b32 {s(SB_)}, 40")
        e.op(f"s_mov_b32 {s(SC)}, 20")
        e.label(lg)
        e.op(f"s_bitcmp1_b32 {s(su)}, 1")
        e.op(f"s_cselect_b32 {s(SA)}, {s(SA)}, 0")
        e.op(f"s_bitcmp1_b32 {s(su)}, 0")
        e.op(f"s_cselect_b32 {s(SB_)}, {s(SB_)}, 0")
        e.op(f"s_bitcmp1_b32 {s(S_WAVE)}, 1")
        e.op(f"s_cselect_b32 {s(SC)}, {s(SC)}, 0")
        e.op(f"s_add_u32 {s(SR0)}, {s(SR0)}, {s(SA)}")
        e.op(f"s_add_u32 {s(SR0)}, {s(SR0)}, {s(SB_)}")
        e.op(f"s_add_u32 {s(SR0)}, {s(SR0)}, {s(SC)}")
        e.op(f"s_mul_i32 {s(SR0)}, {s(SR0)}, 1280")
        e.op(f"s_mul_i32 {s(SA)}, {s(S_WAVE)}, 2560")
        for i in range(3):
            e.op(f"s_add_u32 m0, {s(SA)}, {L_RT + lo_ + i * 1024}")
            if i == 2: e.op("s_mov_b32 exec_hi, 0")
            e.op(f"buffer_load_dwordx4 {v(RT_LD + i)}, {s(S_MISC,4)}, {s(SR0)} offen {self.nt}lds", tag="rl")
            if i == 2: e.op("s_mov_b32 exec_hi, -1")
    def rt_reads(self, lo_=0, RT_D=RT_D):
        return [lambda i=i, u=u: self.e.op(f"ds_read_b64_tr_b16 {v(RT_D + 4 * i + 2 * u, 2)}, {v(RT_RD + i)} offset:{lo_ + u * 5120}", tag=("rt", i))
                for i in range(3) for u in range(2)]
    def rt_stores(self, RT_D=RT_D, S_RTS=S_RTS):
        e = self.e
        def st(i):
            e.wait(lg=("rt", i))
            if i == 2: e.op("s_mov_b32 exec_hi, 0")
            e.op(f"buffer_store_dwordx4 {v(RT_D + 4 * i, 4)}, {v(RT_ST + i)}, {s(S_WS,4)}, {s(S_RTS)} offen sc1", tag="rs")
            if i == 2: e.op("s_mov_b32 exec_hi, -1")
        return [lambda i=i: st(i) for i in range(3)]

    def spare(self):
        e = self.e
        e.vm, e.lg, e.hist = [], [], []
        e.label("L_spare")
        L = v(V_LANE); T0, T1, T2, T3 = v(V_T0), v(V_T1), v(V_T2), v(V_T3)
        self.other_srds()
        sk = self.L("nononce")
        e.op(f"s_sub_u32 {s(S_WOFF)}, s2, 240")
        e.op(f"s_or_b32 {s(S_T0)}, {s(S_WOFF)}, {s(S_WAVE)}")
        e.op(f"s_cmp_lg_u32 {s(S_T0)}, 0")
        e.op(f"s_cbranch_scc1 {sk}")
        e.op(f"s_memrealtime {s(S_NONCE,2)}")
        e.wait(lg="all")
        e.op(f"s_or_b32 {s(S_NONCE)}, {s(S_NONCE)}, 1")
        e.op(f"v_mov_b32 {v(V_NONCE)}, {s(S_NONCE)}")
        e.op(f"v_mov_b32 {v(V_NONCE+1)}, {s(S_NONCE+1)}")
        e.op("s_mov_b64 exec, 1")
        e.op(f"buffer_store_dwordx2 {v(V_NONCE,2)}, {v(V_ZERO)}, {s(S_DBG,4)}, 0 offen sc1")
        e.op("s_mov_b64 exec, -1")
        e.label(sk)
        e.op(f"s_lshl_b32 {s(S_T0)}, {s(S_WOFF)}, 2")
        e.op(f"s_add_u32 {s(S_T0)}, {s(S_T0)}, {s(S_WAVE)}")
        e.op(f"s_lshl_b32 {s(S_T0)}, {s(S_T0)}, 6")
        e.op(f"v_add_u32 {T0}, {s(S_T0)}, {L}")
        e.op(f"v_lshlrev_b32 {T1}, 7, {T0}")
        for c in range(10 - 2 * self.o("pf1", 0), 10, 2):
            e.op(f"v_lshrrev_b32 {T2}, 1, {T0}")
            e.op(f"v_mul_u32_u24 {T2}, {1280 - 256}, {T2}")
            e.op(f"v_add_u32 {T2}, {T2}, {T1}")
            e.op(f"buffer_load_dword {v(229)}, {T2}, {s(S_X,4)}, 0 offen offset:{c * 128}")
            e.op(f"v_min_u32 {T2}, {3839 * 128}, {T1}")
            e.op(f"s_mov_b32 {s(S_T0)}, {c * 64 * 3840}")
            e.op(f"buffer_load_dword {v(229)}, {T2}, {s(S_WA,4)}, {s(S_T0)} offen")
        e.op(f"v_mov_b32 {v(230)}, {T1}")
        self.rt_tables_load()
        RS, RF = (84, 85, 86, 87), (88, 89, 90, 91)
        for m in range(4):
            e.op(f"s_add_u32 {s(S_XOFF)}, s2, {16 * m}")
            self.rt_loads(S_XOFF, m * 10240, RS[m], RF[m])
        e.op(f"s_cmp_lt_u32 {s(S_XOFF)}, 296")
        e.op(f"s_cselect_b32 {s(RS[3])}, {s(RS[3])}, {OOB}")
        def touch(m):
            if self.o("pf2", 1):
                e.op(f"s_mov_b32 {s(S_T0)}, {m * 4096 * 128}")
                e.op(f"buffer_load_dword {v(229)}, {v(230)}, {s(S_WB,4)}, {s(S_T0)} offen")
        touch(0)
        self.rt_tables_rest()
        e.wait(vm="rl")
        e.op("s_barrier")
        self.stamp(1)
        touch(1)
        for m in range(4):
            for f in self.rt_reads(m * 10240, 96 + 12 * m) + self.rt_stores(96 + 12 * m, RS[m]): f()
        self.nonce_issue()
        touch(2)
        self.nonce_check()
        e.op("s_barrier")
        for m in range(4): self.publish(RF[m])
        self.stamp(3)
        touch(3); touch(4)
        self.flush_stamp()
        e.op(f"s_cmp_lg_u32 {s(S_I)}, 30")
        e.op("s_cbranch_scc1 L_noagg")
        snap = e.snapshot()
        e.op(f"s_lshl_b32 {s(S_T0)}, {s(S_WAVE)}, 6")
        e.op(f"v_add_u32 {T0}, {s(S_T0)}, {L}")
        e.op(f"v_lshlrev_b32 {T1}, 7, {T0}")
        e.op(f"v_add_u32 {v(V_FD)}, {FL_D}, {T1}")
        e.op(f"v_min_u32 {T0}, 39, {T0}")
        e.op(f"v_lshlrev_b32 {T1}, 7, {T0}")
        e.op(f"v_add_u32 {v(V_FB)}, {FL_D + 256 * 128}, {T1}")
        e.op(f"buffer_load_dwordx2 {v(V_T2,2)}, {v(V_FB)}, {s(S_WS,4)}, 0 offen sc1")
        self.poll_issue(V_FD); self.poll_check(V_FD)
        e.op(f"v_mov_b32 {v(V_POLL)}, {T2}")
        e.op(f"v_mov_b32 {v(V_POLL + 1)}, {T3}")
        self.open_poll = V_FB; self.poll_check(V_FB)
        e.op("s_barrier")
        e.op(f"s_lshl_b32 {s(S_T1)}, {s(S_XCD)}, 7")
        e.op(f"s_add_u32 {s(S_T1)}, {s(S_T1)}, {FL_DD}")
        e.op(f"s_cmp_eq_u32 {s(S_WAVE)}, 0")
        e.op(f"s_cselect_b32 {s(S_T1)}, {s(S_T1)}, {OOB}")
        self.publish(S_T1)
        e.wait(vm="all")
        e.restore(snap)
        e.label("L_noagg")
        self.stamp(2)
        self.flush_stamp()
        self.late_setup()
        e.op(f"s_mov_b32 {s(S_ST2)}, {OOB}")
        e.op(f"s_mov_b32 {s(S_ST2B)}, {OOB}")
        e.op(f"s_mov_b32 {s(S_FLC)}, {OOB}")
        self.side_tail()

    def k_reads(self, u):
        h, j = divmod(u, 9)
        for ff in range(2):
            self.e.op(f"ds_read_b128 {v(KF + 4 * ff, 4)}, {v(V_KA)} offset:{(h + ff) * 12288 + j * 1024}", tag="k")
    def v_reads(self, u):
        h, j = divmod(u, 9)
        e = self.e
        e.op(f"s_mov_b64 exec, {s(S_VM,2)}")
        for ss in range(2):
            e.op(f"ds_read_b128 {v(VF + 4 * ss, 4)}, {v(V_VA)} offset:{j * 2560 + ss * 1280 + h * 320}", tag="v")
        e.op("s_mov_b64 exec, -1")
    def qk(self, u, part, S, lo=False):
        h, j = divmod(u, 9)
        c = v(S, 16) if part else v(CD, 16) if j == 8 else v(CE, 16) if (j == 0 or lo) else "0"
        self.e.op(f"v_mfma_f32_32x32x16_bf16 {v(S,16)}, {v(KF + 4 * part, 4)}, {v(QM + 8 * h + 4 * part, 4)}, {c}")
    def pv(self, u, part, S, first):
        O = v(OO[u // 9], 16)
        self.e.op(f"v_mfma_f32_32x32x16_bf16 {O}, {v(VF + 4 * part, 4)}, {v(S + 4 * part, 4)}, {'0' if first else O}")

    def q_mask(self):
        e = self.e
        lo, dn = self.L("qodd"), self.L("qdone")
        e.op(f"s_mov_b32 {s(S_MASK)}, -1")
        e.op(f"s_mov_b32 {s(S_MASK+1)}, 0")
        e.op(f"s_bitcmp1_b32 {s(S_P)}, 0")
        e.wait(vm="q")
        e.op(f"s_cbranch_scc1 {lo}")
        for par in range(2):
            if par: e.label(lo)
            for h in range(2):
                for ff in range(2):
                    for slot in range(2):
                        p0 = 4 * (h + ff) + 2 * slot - 2 * par - 5 * h
                        k0, k1 = 0 <= p0 < 5, 0 <= p0 + 1 < 5
                        for d in range(2):
                            dst, src = v(QM + 8 * h + 4 * ff + 2 * slot + d), v(VQ + 4 * (h + ff) + 2 * slot + d)
                            if k0 and k1: e.op(f"v_mov_b32 {dst}, {src}")
                            elif k0: e.op(f"v_cndmask_b32 {dst}, 0, {src}, {s(S_MASK,2)}")
                            elif k1: e.op(f"v_cndmask_b32 {dst}, {src}, 0, {s(S_MASK,2)}")
                            else: e.op(f"v_mov_b32 {dst}, 0")
            if not par: e.op(f"s_branch {dn}")
        e.label(dn)

    def attention(self):
        e = self.e
        e.label("L_att")
        self.stamp(4)
        T0 = v(V_T0)
        stores = list(self.p2_stores_left)
        self.q_mask()
        e.wait(vm="kd")
        e.op("s_barrier")
        self.k_reads(0)
        for f in self.p2_valu_left: f()
        for _ in range(self.o("ns1", 1)): stores.pop(0)()
        self.stamp(5)
        side = {(u, k): [] for u in range(18) for k in range(4)}
        wl = sum([self.w_loads(n) for n in range(NWR) if n not in self.EARLY_W], [])
        wl += self.wl_dmas()
        slots = [(u, k) for u in range(18) for k in range(4)]
        for i, f in enumerate(stores):
            side[slots[2 * i]].append(f)
        def pub_c():
            e.wait(vm="st2")
            self.publish(S_FLC)
        pubC, pC, cC = self.o("pubC", 18), self.o("pollC", 44), self.o("chkC", 56)
        side[slots[pubC]].append(pub_c)
        side[slots[pC]].append(lambda: self.poll_issue(V_FC))
        def chk_c():
            self.poll_check(V_FC); self.stamp(6)
        hl = [(n, t) for n in range(5) for t in range(4)]
        taken = {pubC, pC, cC} | {2 * i for i in range(len(stores))}
        skip = self.o("wskip", len(stores))
        acc, rate = 0, self.o("wrate", 16)
        for i, x in enumerate(slots):
            if i == cC: side[x].append(chk_c)
            if i in taken: continue
            skip -= 1
            if skip >= 0: continue
            acc += rate
            if acc < 16: continue
            acc -= 16
            nw = len(wl) - 5 * len(self.LDS_W)
            if i > cC and hl and nw <= 0:
                n, t = hl.pop(0)
                side[x].append(lambda n=n, t=t: self.h_load(n, t))
            elif wl: side[x].append(wl.pop(0))
        assert len(wl) <= 5 * len(self.LDS_W)
        self.wl_left = wl
        self.h_left = hl
        def fill_ce(val):
            for i in range(16): e.op(f"v_mov_b32 {v(CE + i)}, {val}")
        def steps(lo):
            def open_at(jn):
                st, bk = self.L("open"), self.L("open_ok")
                e.op(f"s_cmp_eq_u32 {s(S_TQ)}, {8 - jn}")
                e.op(f"s_cbranch_scc1 {st}")
                e.label(bk)
                def stub():
                    e.label(st, reset=True)
                    e.op("s_nop 7")
                    fill_ce(0)
                    e.op("s_nop 0")
                    e.op(f"s_branch {bk}")
                self.stubs.append(stub)
            if lo: fill_ce(hex(NEGBIG))
            e.wait(lg="k")
            self.qk(0, 0, SB[0], lo); self.qk(0, 1, SB[0], lo)
            self.k_reads(1)
            if lo: open_at(1)
            for u in range(18):
                if self.o("zoom", 0) == 3 and u % 2 == 0: self.stamp(1 + u // 2, True)
                S, Sn, Sp = SB[u % 3], SB[(u + 1) % 3], SB[(u - 1) % 3]
                ex = lambda i: e.op(f"v_exp_f32 {v(S + i)}, {v(S + i)}")
                cv = lambda i: e.op(f"v_cvt_pk_bf16_f32 {v(S + i)}, {v(S + 2 * i)}, {v(S + 2 * i + 1)}")
                if u < 17:
                    e.wait(lg="k")
                    self.qk(u + 1, 0, Sn, lo)
                for f in side[(u, 0)]: f()
                for i in range(0, 4): ex(i)
                if u < 17: self.qk(u + 1, 1, Sn, lo)
                e.wait(lg="v")
                if u < 16: self.k_reads(u + 2)
                for f in side[(u, 1)]: f()
                for i in range(4, 8): ex(i)
                cv(0); cv(1)
                if u > 0: self.pv(u - 1, 0, Sp, (u - 1) % 9 == 0)
                if lo and u + 2 == 9: fill_ce(hex(NEGBIG))
                if lo and u + 2 < 18 and 1 <= (u + 2) % 9 <= 7: open_at((u + 2) % 9)
                for f in side[(u, 2)]: f()
                for i in range(8, 12): ex(i)
                cv(2); cv(3)
                if u > 0:
                    self.pv(u - 1, 1, Sp, False)
                    self.v_reads(u)
                for f in side[(u, 3)]: f()
                for i in range(12, 16): ex(i)
                for i in range(4, 8): cv(i)
                if u == 0:
                    e.wait(vm="vd")
                    e.op("s_barrier")
                    self.v_reads(0)
            e.wait(lg="v")
            self.pv(17, 0, SB[17 % 3], False); self.pv(17, 1, SB[17 % 3], False)
            self.flush_stamp()
        self.flush_stamp()
        e.op(f"s_cmp_lt_u32 {s(S_RBA)}, 2")
        e.op("s_cbranch_scc1 L_att_lo")
        snap0 = e.snapshot()
        steps(False)
        snap1 = e.snapshot()
        def att_lo():
            e.restore(snap0)
            e.label("L_att_lo")
            steps(True)
            assert e.vm == snap1[0] and e.lg == snap1[1]
            e.op("s_branch L_att_join")
        self.att_lo = att_lo
        e.label("L_att_join")
        if cC >= 72: chk_c()
        self.stamp(7)
        for h in range(2):
            O = OO[h]
            st, bk = self.L("slow"), self.L("slow_ok")
            e.op(f"v_subrev_u32 {T0}, 0x2f800000, {v(O + 12)}")
            e.op(f"v_cmp_le_u32 vcc, 0x20000000, {T0}")
            if self.o("forceslow", 0): e.op("s_mov_b64 vcc, -1")
            for _ in range(2 - h):
                if self.h_left:
                    n, t = self.h_left.pop(0); self.h_load(n, t)
            e.op(f"s_cbranch_vccnz {st}")
            e.label(bk)
            self.stubs.append(lambda st=st, bk=bk, h=h: self.slow_head(h, st, bk))
        OP = 0
        ep = []
        A = lambda t, tag=None: ep.append(lambda: e.op(t, tag=tag))
        for h in range(2): A(f"v_rcp_f32 {v(V_T2 + h)}, {v(OO[h] + 12)}")
        for h in range(2):
            O = OO[h]
            for i in range(8): A(f"v_mul_f32 {v(O + i)}, {v(O + i)}, {v(V_T2 + h)}")
            for i in range(4): A(f"v_cvt_pk_bf16_f32 {v(OP + 4 * h + i)}, {v(O + 2 * i)}, {v(O + 2 * i + 1)}")
            A(f"buffer_store_dwordx4 {v(OP + 4 * h, 4)}, {v(V_L16)}, {s(S_WS,4)}, {s(S_OST)} offen offset:{h * 1024} sc1", "sto")
        for h in range(2):
            O = OO[h]
            for i in range(8, 12): A(f"v_mul_f32 {v(O + i)}, {v(O + i)}, {v(V_T2 + h)}")
            for i in range(2): A(f"v_cvt_pk_bf16_f32 {v(OP + 8 + 2 * h + i)}, {v(O + 8 + 2 * i)}, {v(O + 9 + 2 * i)}")
        def last():
            e.op("s_mov_b32 exec_hi, 0")
            e.op(f"buffer_store_dwordx4 {v(OP + 8, 4)}, {v(V_L16)}, {s(S_WS,4)}, {s(S_OST2)} offen sc1", tag="sto")
            e.op("s_mov_b32 exec_hi, -1")
        ep.append(last)
        self.o_epilogue = ep

    def slow_head(self, h, st, bk):
        e = self.e
        e.label(st, reset=True)
        e.vm, e.lg = [], []
        T0, MX = v(V_T0), v(V_T1)
        O, S = OO[h], SB[0]
        e.op("s_nop 15")
        e.op(f"v_mov_b32 {MX}, {hex(NEGBIG)}")
        for i in range(16): e.op(f"v_mov_b32 {v(O + i)}, 0")
        for ps in range(2):
            for j in range(9):
                u = 9 * h + j
                sk = self.L("sk")
                if j < 8:
                    e.op(f"s_cmp_lt_u32 {s(S_TQ)}, {8 - j}")
                    e.op(f"s_cbranch_scc1 {sk}")
                if ps: self.v_reads(u)
                self.k_reads(u)
                e.wait(lg="all")
                self.qk(u, 0, S); self.qk(u, 1, S)
                if ps == 0:
                    for i in range(8): e.op(f"v_max3_f32 {MX}, {MX}, {v(S + 2 * i)}, {v(S + 2 * i + 1)}")
                else:
                    for i in range(16): e.op(f"v_sub_f32 {v(S + i)}, {v(S + i)}, {MX}")
                    for i in range(16): e.op(f"v_exp_f32 {v(S + i)}, {v(S + i)}")
                    for i in range(8): e.op(f"v_cvt_pk_bf16_f32 {v(S + i)}, {v(S + 2 * i)}, {v(S + 2 * i + 1)}")
                    self.pv(u, 0, S, False); self.pv(u, 1, S, False)
                    e.op("s_nop 7")
                e.label(sk)
            if ps == 0:
                e.op(f"v_mov_b32 {T0}, {MX}")
                e.op(f"v_permlane32_swap_b32 {T0}, {MX}")
                e.op("s_nop 1")
                e.op(f"v_max_f32 {MX}, {T0}, {MX}")
        e.op("s_nop 15")
        e.op(f"s_branch {bk}")

    def stage3(self):
        e = self.e
        L = v(V_LANE); T0, T1, T2, T3 = v(V_T0), v(V_T1), v(V_T2), v(V_T3)
        VG, VG1, VRR, VRW = 224, 228, 232, 235
        VOUT = V_VA
        self.stamp(8)
        setup = []
        A = lambda t: setup.append(lambda: e.op(t))
        A(f"s_mul_i32 {s(S_T3)}, {s(S_WAVE)}, 20480")
        A(f"v_add_u32 {v(VRW)}, {s(S_T3)}, {v(V_L16)}")
        A(f"v_and_b32 {T0}, 15, {L}")
        A(f"v_lshrrev_b32 {T1}, 4, {L}")
        for t in range(4):
            A(f"s_add_u32 {s(S_T0)}, {s(S_WAVE)}, {t + 1}")
            A(f"s_and_b32 {s(S_T0)}, {s(S_T0)}, 3")
            A(f"s_lshl_b32 {s(S_T3)}, {s(S_TB64)}, 2")
            A(f"s_add_u32 {s(S_T3)}, {s(S_T3)}, {s(S_T0)}")
            A(f"s_lshl_b32 {s(S_T3)}, {s(S_T3)}, 6")
            A(f"s_add_u32 {s(S_T3)}, {s(S_T3)}, {WS_G}")
            A(f"v_lshl_add_u32 {v(VG1 + t)}, {T0}, 2, {s(S_T3)}")
            setup.append(lambda t=t: e.op(f"buffer_load_dword {v(VG + t)}, {v(VG1 + t)}, {s(S_WS,4)}, 0 offen sc1", tag="g"))
            if t < 3:
                A(f"s_add_u32 {s(S_T3)}, {s(S_WAVE)}, {3 - t}")
                A(f"s_and_b32 {s(S_T3)}, {s(S_T3)}, 3")
                A(f"s_mul_i32 {s(S_T3)}, {s(S_T3)}, 20480")
                A(f"v_add_u32 {v(VRR + t)}, {s(S_T3)}, {v(V_L16)}")
        A(f"s_lshl_b32 {s(S_T0)}, {s(S_TB64)}, 2")
        A(f"s_add_u32 {s(S_T0)}, {s(S_T0)}, {s(S_WAVE)}")
        A(f"s_mul_i32 {s(S_T0)}, {s(S_T0)}, {16 * 1280}")
        A(f"s_mul_i32 {s(S_T1)}, {s(S_NG)}, 160")
        A(f"s_add_u32 {s(S_T0)}, {s(S_T0)}, {s(S_T1)}")
        A(f"v_mul_u32_u24 {T3}, 1280, {T0}")
        A(f"v_add_u32 {T3}, {s(S_T0)}, {T3}")
        A(f"v_lshl_add_u32 {v(VOUT)}, {T1}, 4, {T3}")
        A(f"v_lshl_add_u32 {v(VOUT + 1)}, {T1}, 3, {T3}")
        cB = self.o("chkB", 10)
        Q = [(0, lambda n=n, t=t: self.h_load(n, t)) for n, t in self.h_left]
        wq = {n: self.w_loads(n) for n in range(12, 19)}
        if self.o("skipw", 0):
            for n in range(12, 19):
                for j in range(5): e.all_tags.add(("w", n, j))
                if n != 12: wq[n] = []
            def dst(i):
                e.op(f"s_lshl_b32 {s(S_T2)}, s2, 2")
                e.op(f"s_add_u32 {s(S_T2)}, {s(S_T2)}, {s(S_WAVE)}")
                e.op(f"s_mul_i32 {s(S_T2)}, {s(S_T2)}, 5120")
                e.op(f"s_add_u32 {s(S_T2)}, {s(S_T2)}, {i * 1024}")
                e.op(f"buffer_store_dwordx4 {v(16,4)}, {v(V_L16)}, {s(S_WS,4)}, {s(S_T2)} offen sc1")
            wq[18] = [lambda i=i: dst(i) for i in range(5)]
        for n in range(5, 14):
            if n >= 12: Q += [(n - 11, f) for f in wq[n]]
            Q += [(max(n - 5, 2), lambda n=n, t=t: self.h_load(n, t)) for t in range(4)]
        wl_left = list(self.wl_left)
        def wl_issue(f):
            f(); wl_left.remove(f)
        Q += [(0, lambda f=f: wl_issue(f)) for f in self.wl_left]
        for n in range(14, 19):
            if n not in self.LDS_W: Q += [(n - 11, f) for f in wq[n]]
        def wl_read(n, j):
            e.wait(vm="wl")
            e.op(f"ds_read_b128 {r(WR + 20 * (n % NWR) + 4 * j, 4)}, {v(VRW)} offset:{L_W + (5 * self.LDS_W.index(n) + j) * 1024}", tag="wlr")
            e.all_tags.add(("w", n, j))
        R = [(n - 11, lambda n=n, j=j: wl_read(n, j)) for n in self.LDS_W for j in range(5)]
        for t in range(4):
            for n in range(14, 19):
                i = 5 * t + n - 14
                Q.append((max(9 + i // 4, cB), lambda n=n, t=t: self.h_load(n, t)))
        def issue(step):
            for i, (fr, f) in enumerate(Q):
                if fr <= step:
                    Q.pop(i); f(); return
        per = self.o("per", 4)
        lrate = self.o("lrate", 6)
        cnt = 0
        oep = list(self.o_epilogue)
        for n in range(14):
            if n == 2: assert not oep
            if self.o("zoom", 0) == 4 and n < 12: self.stamp(1 + n, True)
            if n == self.o("pubB", 4):
                e.wait(vm="sto"); self.publish(S_FLB)
            if n == self.o("pollB", 8): self.poll_issue(V_FB)
            if n == cB:
                self.poll_check(V_FB); self.stamp(9)
            for t in range(4):
                for j in range(5):
                    while any(tag not in self.issued_tags() for tag in (("w", n, j), ("h", n, t))): issue(n)
                    e.wait(vm=[("w", n, j), ("h", n, t)])
                    acc = v(BA + 20 * t + 4 * j, 4)
                    e.op(f"v_mfma_f32_16x16x32_bf16 {acc}, {r(WR + 20 * (n % NWR) + 4 * j, 4)}, {v(self.hreg(n, t), 4)}, {'0' if n == 0 else acc}")
                    cnt += lrate
                    if cnt >= 20:
                        cnt -= 20; issue(n)
                    elif oep:
                        oep.pop(0)()
                        if oep: oep.pop(0)()
                    elif setup: setup.pop(0)()
                    elif R and R[0][0] <= n and not wl_left and n >= self.o("wlr", 11): R.pop(0)[1]()
        assert not setup and not R
        e.wait(lg="wlr")
        self.stamp(10)
        e.wait(vm="g")
        for t in range(4): e.op(f"v_sub_f32 {v(VG1 + t)}, 1.0, {v(VG + t)}")
        def combine(t):
            A_ = AA + 20 * (t & 1)
            pre = [lambda i=i: e.op(f"v_mul_f32 {v(BA + 20 * t + i)}, {v(BA + 20 * t + i)}, {v(VG1 + t)}") for i in range(20)]
            ops = []
            for j in range(5):
                for i in range(4):
                    ops.append(lambda k=4 * j + i: e.op(f"v_fmac_f32 {v(BA + 20 * t + k)}, {v(A_ + k)}, {v(VG + t)}"))
                if t < 3:
                    ops.append(lambda j=j: e.op(f"ds_write_b128 {v(VRW)}, {v(BA + 20 * t + 4 * j, 4)} offset:{L_W + t * 5120 + j * 1024}", tag="red"))
            return pre, ops
        post = []
        for t in range(4):
            pre, mine = combine(t)
            q = post + pre
            i = 0
            need = [x for x in range(len(Q))]
            for n in range(14, 19):
                for j in range(5):
                    while any(tag not in self.issued_tags() for tag in (("w", n, j), ("h", n, t))): issue(99)
                    e.wait(vm=[("w", n, j), ("h", n, t)])
                    acc = v(AA + 20 * (t & 1) + 4 * j, 4)
                    e.op(f"v_mfma_f32_16x16x32_bf16 {acc}, {r(WR + 20 * (n % NWR) + 4 * j, 4)}, {v(self.hreg(n, t), 4)}, {'0' if n == 14 else acc}")
                    if Q and i % per == 0: issue(99)
                    if i >= 2:
                        for _ in range(2):
                            if q: q.pop(0)()
                    i += 1
            while q: q.pop(0)()
            post = mine
        assert not Q
        self.stamp(11)
        e.wait(lg="all")
        e.op("s_barrier")
        RD = 64
        of = ("", "sc1", "nt", "sc0 sc1")[self.o("outf", 0)]
        for sl in range(3):
            for j in range(5):
                e.op(f"ds_read_b128 {v(RD + 20 * sl + 4 * j, 4)}, {v(VRR + sl)} offset:{L_W + sl * 5120 + j * 1024}", tag=("rd", sl))
        for f in post: f()
        F = BA + 60
        for sl in range(3):
            e.wait(lg=("rd", sl))
            for i in range(10):
                e.op(f"v_pk_add_f32 {v(F + 2 * i, 2)}, {v(F + 2 * i, 2)}, {v(RD + 20 * sl + 2 * i, 2)}")
        for i in range(10):
            e.op(f"v_cvt_pk_bf16_f32 {v(AA + i)}, {v(F + 2 * i)}, {v(F + 2 * i + 1)}")
        e.op(f"buffer_store_dwordx4 {v(AA,4)}, {v(VOUT)}, {s(S_OUT,4)}, 0 offen {of}")
        e.op(f"buffer_store_dwordx4 {v(AA+4,4)}, {v(VOUT)}, {s(S_OUT,4)}, 0 offen offset:64 {of}")
        e.op(f"buffer_store_dwordx2 {v(AA+8,2)}, {v(VOUT+1)}, {s(S_OUT,4)}, 0 offen offset:128 {of}")
        self.stamp(12)
    def issued_tags(self): return self.e.all_tags

    def finish(self):
        e = self.e
        if self.stamps:
            e.wait(vm="all")
            self.stamp(13)
            e.op(f"s_memtime {s(S_VM,2)}")
            self.flush_stamp()
            e.op(f"v_writelane_b32 {v(V_STAMP)}, {s(S_VM)}, {NSTAMP}")
            e.op(f"s_getreg_b32 {s(S_T0)}, hwreg(HW_REG_XCC_ID)")
            e.op(f"v_writelane_b32 {v(V_STAMP)}, {s(S_T0)}, 20")
            e.op(f"s_getreg_b32 {s(S_T0)}, hwreg(HW_REG_HW_ID)")
            e.op(f"v_writelane_b32 {v(V_STAMP)}, {s(S_T0)}, 21")
            e.op(f"s_lshl_b32 {s(S_T0)}, s2, 2")
            e.op(f"s_add_u32 {s(S_T0)}, {s(S_T0)}, {s(S_WAVE)}")
            e.op(f"s_lshl_b32 {s(S_T0)}, {s(S_T0)}, 7")
            e.op(f"s_add_u32 {s(S_T0)}, {s(S_T0)}, {WS_ST}")
            e.op(f"v_lshlrev_b32 {v(V_T0)}, 2, {v(V_LANE)}")
            e.op("s_mov_b32 exec_hi, 0")
            e.op(f"buffer_store_dword {v(V_STAMP)}, {v(V_T0)}, {s(S_WS,4)}, {s(S_T0)} offen")
        e.op("s_endpgm")

    def build(self):
        e = self.e
        self.prologue()
        self.stage1()
        self.attention()
        self.stage3()
        self.finish()
        self.att_lo()
        self.gate()
        self.spare()
        slow = [f for f in self.stubs if f.__name__ == "<lambda>"]
        for f in self.stubs:
            if f not in slow:
                e.vm, e.lg = [], []
                f()
        e.label("L_cold")
        for f in slow: f()
        e.label("L_end")
        e.op("s_endpgm")
        head = open("head.txt").read().split("\n")
        head = [l for l in head if l.startswith(";") and "@launch" not in l]
        txt = "\n".join(head) + f"\n; @launch grid=(256,1,1) block=(256,1,1) lds={LDS_BYTES}\n"
        txt += f""".amdgcn_target "amdgcn-amd-amdhsa--gfx950"
.text
.globl {NAME}_kernel
.p2align 8
.type {NAME}_kernel,@function
{NAME}_kernel:
"""
        txt += e.text()
        txt += f""".section .rodata,"a"
.p2align 6
.amdhsa_kernel {NAME}_kernel
  .amdhsa_next_free_vgpr 512
  .amdhsa_next_free_sgpr 102
  .amdhsa_accum_offset 256
  .amdhsa_group_segment_fixed_size 0
  .amdhsa_kernarg_size 80
  .amdhsa_user_sgpr_count 2
  .amdhsa_user_sgpr_kernarg_segment_ptr 1
  .amdhsa_system_sgpr_workgroup_id_x 1
.end_amdhsa_kernel
"""
        return txt

if __name__ == "__main__":
    out = sys.argv[1] if len(sys.argv) > 1 else "cdna_kernels/" + NAME + ".s"
    opt = {}
    for x in sys.argv[2:]:
        if "=" in x:
            k, val = x.split("="); opt[k] = int(val)
    g = Gen(stamps="--stamps" in sys.argv, opt=opt)
    txt = g.build()
    open(out, "w").write(txt)
    print("instructions", g.e.count, "pad states", g.e.nops, "autowaits", g.e.autowaits, file=sys.stderr)
    if "--nops" in sys.argv:
        for n, t in g.e.log_nops: print(n, t, file=sys.stderr)
```

```python
import sys, math, struct
from asmlib import *

NAME = "gated_mix__sliding_block__dense_activation_relu__prompt"

WS_QK = 0
WS_VT = WS_QK + 80 * 64 * 1024
WS_H  = WS_VT + 16 * 64 * 2560
WS_O  = WS_H + 64 * 110592
WS_WT = WS_O + 64 * 40960
WS_G  = WS_WT + 8 * 74 * 5120
WS_FL = WS_G + 8192
WS_ST = WS_FL + 5 * 1024 * 128
WS_SIZE = WS_ST + 1024 * 128
OOB = 0x4000000
assert WS_SIZE < OOB
FL_A, FL_C, FL_B, FL_D, FL_DD = [WS_FL + p * 131072 for p in range(5)]

NW, NX = 5, 5
L_W = 0
L_X = NW * 16384
L_K = L_X
L_V = L_K + 36 * 1024
L_RED = 0
LDS_BYTES = 163840

S_X, S_WA, S_WB, S_WS, S_OUT, S_DBG, S_MISC = 4, 8, 12, 16, 20, 24, 28
S_WAVE, S_XCD, S_I, S_RB, S_CG, S_P, S_RBA, S_TB64, S_NG = 32, 33, 34, 35, 36, 37, 38, 39, 40
S_CYC0 = 75
S_DM = 0
S_NONCE = 42
S_T0, S_T1, S_T2, S_T3, S_T4, S_T5 = 44, 45, 46, 47, 48, 49
S_XOFF, S_WOFF, S_XM0, S_WM0, S_W2OFF = 50, 51, 52, 53, 54
S_ST1B = 55
S_SCALE = 56
S_ST1, S_ST2, S_ST2B = 58, 59, 60
S_SPIN = 61
S_MASK = 62
S_PTR = 64
S_TQ, S_QOFF, S_FLA, S_FLC, S_FLB = 84, 85, 86, 87, 88
S_KOFF = 89
S_VOFF = 92
S_WT0 = 95
S_STMP = 96
S_WB64 = 98
S_VM = 100
S_HT = 64
S_OT = 76
S_WT1 = 72
S_RTS, S_RTF = 70, 71
S_OST, S_OST2 = 73, 74
S_P3LO, S_P3HI, S_HK = 80, 81, 1
S_PILO, S_PIHI = 3, 41

V_LANE = 255
V_L16 = 254
V_NONCE = 252
V_T0, V_T1, V_T2, V_T3 = 248, 249, 250, 251
V_POLL = 246
V_FA, V_FD, V_FC, V_FB = 245, 244, 243, 242
V_KA, V_VA, V_HL, V_STAMP, V_ZERO, V_QP = 241, 240, 239, 238, 237, 236
V_XD = 0
V_WD = 4
V_WD2 = 8
V_XR = 12
V_WR = 16
V_ST1 = 24
V_FR = 32
ACC = (128, 64)
A_X = 256
RT_D, RT_LD, RT_RD, RT_ST = 64, 76, 79, 82
L_RT = L_W + 4 * 16384
SB = (0, 16, 176)
OO = (32, 48)
VQ, QM, VF, KF, CD, CE = 128, 144, 160, 168, 192, 208
BA, AA = 144, 0
HSLOT = (64, 80, 96, 112, 128, 48)
WR = 256
NH, NWR = 6, 12
NSTAMP = 14

def f32(x): return "0x%08x" % struct.unpack("<I", struct.pack("<f", x))[0]
QSCALE = math.log2(math.e) / math.sqrt(20.0)
NEGBIG = 0xff800000
SPIN_MAX = 0x40000

class Gen:
    def __init__(self, stamps=False, opt=None):
        self.e = Emit()
        self.stamps = stamps
        self.uid = 0
        self.opt = opt or {}
        self.stubs = []
        self.pending_stamp = None
        self.open_poll = None; self.open_nonce = False
        self.nt = "nt " if self.o("nt", 1) else ""
        self.ntx = "nt " if self.o("ntx", 0) else ""
        self.ntw = "nt " if self.o("ntw", 0) else ""
    def o(self, k, d): return self.opt.get(k, d)
    def L(self, p):
        self.uid += 1
        return f"L_{p}_{self.uid}"
    def stamp(self, idx, rt=False):
        lk = self.o("leak", -1)
        if lk >= 0 and not rt and idx in (self.o("leak0", 0), lk):
            self.flush_stamp()
            self.e.op(f"s_memrealtime {s(S_STMP, 2)}")
            self.pending_stamp = idx
            return
        if not self.stamps: return
        if (self.o("rtdbg", 0) or self.o("zoom", 0)) and not rt and 0 < idx < 13: return
        e = self.e
        self.flush_stamp()
        e.op(f"{'s_memtime' if self.o('cyc', 0) else 's_memrealtime'} {s(S_STMP, 2)}")
        self.pending_stamp = idx
    def flush_stamp(self):
        if self.pending_stamp is None: return
        e = self.e
        if "SMEM" in e.lg: e.wait(lg="all")
        e.op(f"v_writelane_b32 {v(V_STAMP)}, {s(S_STMP)}, {self.pending_stamp}")
        self.pending_stamp = None

    def srd(self, d, ptr, nbytes):
        e = self.e
        e.op(f"s_mov_b32 {s(d)}, {s(ptr)}")
        e.op(f"s_and_b32 {s(d+1)}, {s(ptr+1)}, 0xffff")
        e.op(f"s_mov_b32 {s(d+2)}, {nbytes}")
        e.op(f"s_mov_b32 {s(d+3)}, 0x20000")

    def nonce_issue(self):
        self.e.op(f"buffer_load_dwordx2 {v(V_NONCE,2)}, {v(V_ZERO)}, {s(S_DBG,4)}, 0 offen sc1", tag="nonce")
        self.open_nonce = True
    def nonce_check(self):
        e = self.e
        st, bk = self.L("nonce"), self.L("nonce_ok")
        assert self.open_nonce
        e.wait(vm="nonce")
        e.op(f"v_readfirstlane_b32 {s(S_NONCE)}, {v(V_NONCE)}")
        e.op(f"v_readfirstlane_b32 {s(S_NONCE+1)}, {v(V_NONCE+1)}")
        e.op(f"s_cmp_eq_u32 {s(S_NONCE)}, 0")
        e.op(f"s_cbranch_scc1 {st}")
        e.label(bk)
        def stub():
            e.label(st, reset=True)
            e.op(f"s_mov_b32 {s(S_SPIN)}, 0")
            e.label(st + "_l")
            e.op(f"s_sleep {self.o('sleep', 4)}")
            e.op(f"buffer_load_dwordx2 {v(V_NONCE,2)}, {v(V_ZERO)}, {s(S_DBG,4)}, 0 offen sc1")
            e.op(f"s_add_u32 {s(S_SPIN)}, {s(S_SPIN)}, 1")
            e.wait(vm="all")
            e.op(f"v_readfirstlane_b32 {s(S_NONCE)}, {v(V_NONCE)}")
            e.op(f"v_readfirstlane_b32 {s(S_NONCE+1)}, {v(V_NONCE+1)}")
            e.op(f"s_cmp_gt_u32 {s(S_SPIN)}, {SPIN_MAX}")
            e.op(f"s_cbranch_scc1 {bk}")
            e.op(f"s_cmp_eq_u32 {s(S_NONCE)}, 0")
            e.op(f"s_cbranch_scc1 {st}_l")
            e.op(f"s_branch {bk}")
        self.stubs.append(stub)

    def publish(self, soff):
        e = self.e
        e.op("s_mov_b64 exec, 1")
        e.op(f"buffer_store_dwordx2 {v(V_NONCE,2)}, {v(V_ZERO)}, {s(S_WS,4)}, {s(soff)} offen sc1", tag="flag")
        e.op("s_mov_b64 exec, -1")

    def poll_issue(self, vaddr):
        self.e.op(f"buffer_load_dwordx2 {v(V_POLL,2)}, {v(vaddr)}, {s(S_WS,4)}, 0 offen sc1", tag="poll")
        self.open_poll = vaddr
    def poll_check(self, vaddr):
        e = self.e
        st, bk = self.L("poll"), self.L("poll_ok")
        assert self.open_poll == vaddr; self.open_poll = None
        e.wait(vm="poll")
        e.op(f"v_cmp_ne_u64 {s(S_MASK,2)}, {s(S_NONCE,2)}, {v(V_POLL,2)}")
        e.op(f"s_cmp_lg_u64 {s(S_MASK,2)}, 0")
        e.op(f"s_cbranch_scc1 {st}")
        e.label(bk)
        def stub():
            e.label(st, reset=True)
            e.op(f"s_mov_b32 {s(S_SPIN)}, 0")
            e.op(f"s_branch {st}_f")
            e.label(st + "_l")
            e.op(f"s_sleep {self.o('sleep', 4)}")
            e.label(st + "_f")
            e.op(f"buffer_load_dwordx2 {v(V_POLL,2)}, {v(vaddr)}, {s(S_WS,4)}, 0 offen sc1")
            e.op(f"s_add_u32 {s(S_SPIN)}, {s(S_SPIN)}, 1")
            e.wait(vm="all")
            e.op(f"v_cmp_ne_u64 {s(S_MASK,2)}, {s(S_NONCE,2)}, {v(V_POLL,2)}")
            e.op(f"s_cmp_gt_u32 {s(S_SPIN)}, {SPIN_MAX}")
            e.op(f"s_cbranch_scc1 {bk}")
            e.op(f"s_cmp_lg_u64 {s(S_MASK,2)}, 0")
            e.op(f"s_cbranch_scc1 {st}_l")
            if self.stamps: e.op(f"v_writelane_b32 {v(V_STAMP)}, {s(S_SPIN)}, {16 + V_FA - vaddr}")
            e.op(f"s_branch {bk}")
        self.stubs.append(stub)

    def flag_off(self, dst, base, tb, col):
        e = self.e
        e.op(f"s_lshl_b32 {s(dst)}, {s(tb)}, 4")
        e.op(f"s_add_u32 {s(dst)}, {s(dst)}, {s(col)}")
        e.op(f"s_lshl_b32 {s(dst)}, {s(dst)}, 4")
        e.op(f"s_add_u32 {s(dst)}, {s(dst)}, {s(S_WAVE)}")
        e.op(f"s_lshl_b32 {s(dst)}, {s(dst)}, 3")
        e.op(f"s_add_u32 {s(dst)}, {s(dst)}, {base}")
    def vflag(self, dst, base, tb, col, tmp):
        e = self.e
        e.op(f"v_lshrrev_b32 {tmp}, 2, {tb}")
        e.op(f"v_lshl_add_u32 {tmp}, {tmp}, 4, {col}")
        e.op(f"v_lshlrev_b32 {tmp}, 4, {tmp}")
        e.op(f"v_and_or_b32 {tmp}, {tb}, 3, {tmp}")
        e.op(f"v_lshlrev_b32 {tmp}, 3, {tmp}")
        e.op(f"v_add_u32 {dst}, {base}, {tmp}")
    def capture(self, *fns):
        e = self.e
        rec = []
        real = e.op
        e.op = lambda text, tag=None: rec.append(text)
        try:
            for f in fns: f()
        finally:
            e.op = real
        atoms = []
        for t in rec:
            if t == "s_nop 0": continue
            if t.startswith(("s_cselect", "s_addc")): atoms[-1].append(t)
            else: atoms.append([t])
        return [lambda a=a_: [e.op(t) for t in a] and None for a_ in atoms]

    def prologue(self):
        e = self.e
        e.op("s_cmp_ge_u32 s2, 256")
        e.op("s_cbranch_scc1 L_end")
        e.op(f"s_load_dwordx16 {s(S_PTR,16)}, s[0:1], 0")
        e.op(f"s_load_dwordx4 {s(S_PTR+16,4)}, s[0:1], 64")
        e.op("s_cmp_lt_u32 s2, 240")
        e.op("s_cbranch_scc1 L_nopf")
        e.op(f"s_getpc_b64 {s(S_MASK,2)}")
        e.label("L_pc")
        e.op(f"s_bfe_u32 {s(S_T0)}, s2, 0x10003")
        e.op(f"v_lshl_add_u32 {v(V_T0)}, v0, 1, {s(S_T0)}")
        e.op(f"v_lshlrev_b32 {v(V_T0)}, 7, {v(V_T0)}")
        e.op(f"v_min_u32 {v(V_T0)}, L_cold-L_pc, {v(V_T0)}")
        e.op(f"global_load_dword {v(228)}, {v(V_T0)}, {s(S_MASK,2)}")
        e.vm = []
        e.label("L_nopf")
        if self.o("leak", -1) >= 0: e.op(f"v_mov_b32 {v(V_STAMP)}, 0")
        if self.stamps:
            e.op(f"v_mov_b32 {v(V_STAMP)}, 0")
            e.op(f"s_memtime {s(S_VM,2)}")
        self.stamp(0)
        e.op(f"v_lshrrev_b32 {v(V_T0)}, 6, v0")
        e.op(f"v_and_b32 {v(V_LANE)}, 63, v0")
        e.op(f"v_readfirstlane_b32 {s(S_WAVE)}, {v(V_T0)}")
        e.op(f"v_lshlrev_b32 {v(V_L16)}, 4, {v(V_LANE)}")
        e.op(f"v_mov_b32 {v(V_ZERO)}, 0")
        if self.o("badmap", 0):
            e.op(f"s_lshr_b32 {s(S_XCD)}, s2, 5")
            e.op(f"s_and_b32 {s(S_I)}, s2, 31")
        else:
            e.op(f"s_and_b32 {s(S_XCD)}, s2, 7")
            e.op(f"s_lshr_b32 {s(S_I)}, s2, 3")
        e.op(f"s_lshr_b32 {s(S_T0)}, {s(S_XCD)}, 1")
        e.op(f"s_mul_i32 {s(S_T1)}, {s(S_T0)}, 30")
        e.op(f"s_add_u32 {s(S_T1)}, {s(S_T1)}, {s(S_I)}")
        e.op(f"s_and_b32 {s(S_T2)}, {s(S_XCD)}, 1")
        e.op(f"s_lshl_b32 {s(S_T3)}, {s(S_T2)}, 3")
        e.op(f"s_and_b32 {s(S_RB)}, {s(S_T1)}, 7")
        e.op(f"s_add_u32 {s(S_RB)}, {s(S_RB)}, {s(S_T3)}")
        e.op(f"s_lshr_b32 {s(S_CG)}, {s(S_T1)}, 3")
        tabs, ca, cb, cx = self.pi_tables()
        e.op(f"s_mul_i32 {s(S_T4)}, {s(S_RB)}, {ca}")
        e.op(f"s_mul_i32 {s(S_T5)}, {s(S_CG)}, {cb}")
        e.op(f"s_add_u32 {s(S_T4)}, {s(S_T4)}, {s(S_T5)}")
        e.op(f"s_mul_i32 {s(S_T5)}, {s(S_XCD)}, {cx}")
        e.op(f"s_add_u32 {s(S_T4)}, {s(S_T4)}, {s(S_T5)}")
        e.op(f"s_and_b32 {s(S_T4)}, {s(S_T4)}, {len(tabs) - 1}")
        for i, tb in enumerate(tabs):
            assert sorted(tb) == list(range(10))
            lo = sum(k << (4 * n) for n, k in enumerate(tb[:8])); hi = tb[8] | (tb[9] << 4)
            if i == 0:
                e.op(f"s_mov_b32 {s(S_PILO)}, {hex(lo)}")
                e.op(f"s_mov_b32 {s(S_PIHI)}, {hex(hi)}")
            else:
                e.op(f"s_cmp_eq_u32 {s(S_T4)}, {i}")
                e.op(f"s_cselect_b32 {s(S_PILO)}, {hex(lo)}, {s(S_PILO)}")
                e.op(f"s_cselect_b32 {s(S_PIHI)}, {hex(hi)}, {s(S_PIHI)}")
        L = v(V_LANE); T0, T1, T2, T3 = v(V_T0), v(V_T1), v(V_T2), v(V_T3)
        e.op(f"v_lshrrev_b32 {T0}, 3, {L}")
        e.op(f"v_mul_u32_u24 {T0}, 1280, {T0}")
        e.op(f"v_lshrrev_b32 {T1}, 4, {L}")
        e.op(f"v_and_b32 {T2}, 7, {L}")
        e.op(f"v_xor_b32 {T2}, {T2}, {T1}")
        for n in range(4):
            if n & 1: e.op(f"v_xor_b32 {T3}, 4, {T2}")
            else: e.op(f"v_mov_b32 {T3}, {T2}")
            e.op(f"v_lshl_add_u32 {T3}, {T3}, 4, {T0}")
            e.op(f"v_add_u32 {v(V_XD+n)}, {n * (8 * 1280 - 1024)}, {T3}")
        e.op(f"v_lshlrev_b32 {T2}, 2, {T1}")
        e.op(f"v_and_b32 {T3}, 15, {L}")
        e.op(f"v_xor_b32 {T2}, {T2}, {T3}")
        e.op(f"v_lshlrev_b32 {T2}, 4, {T2}")
        for base, rs in ((V_WD, 3840), (V_WD2, 3456)):
            e.op(f"v_mul_u32_u24 {T0}, {rs}, {T1}")
            e.op(f"v_add_u32 {T0}, {T0}, {T2}")
            for n in range(4):
                e.op(f"v_add_u32 {v(base+n)}, {n * (4 * rs - 1024)}, {T0}")
        e.op(f"s_lshl_b32 {s(S_T0)}, {s(S_RB)}, 2")
        e.op(f"s_add_u32 {s(S_T0)}, {s(S_T0)}, {s(S_WAVE)}")
        e.op(f"s_mul_i32 {s(S_XOFF)}, {s(S_T0)}, {32 * 1280}")
        e.op(f"s_lshl_b32 {s(S_T1)}, {s(S_CG)}, 8")
        e.op(f"s_mul_i32 {s(S_WOFF)}, {s(S_WAVE)}, {16 * 3840}")
        e.op(f"s_add_u32 {s(S_WOFF)}, {s(S_WOFF)}, {s(S_T1)}")
        e.op(f"s_mul_i32 {s(S_W2OFF)}, {s(S_WAVE)}, {16 * 3456}")
        e.op(f"s_add_u32 {s(S_W2OFF)}, {s(S_W2OFF)}, {s(S_T1)}")
        e.op(f"s_mul_i32 {s(S_XM0)}, {s(S_WAVE)}, {NX * 4096}")
        e.op(f"s_add_u32 {s(S_XM0)}, {s(S_XM0)}, {L_X}")
        e.op(f"s_lshl_b32 {s(S_WM0)}, {s(S_WAVE)}, 12")
        e.wait(lg="all")
        if self.stamps: e.op(f"v_writelane_b32 {v(V_STAMP)}, {s(S_VM)}, {NSTAMP + 1}")
        self.flush_stamp()
        self.srd(S_X, S_PTR + 0, 2048 * 1280)
        self.srd(S_WA, S_PTR + 2, 640 * 3840)
        self.srd(S_WB, S_PTR + 8, 640 * 3456)
        if self.o("touch", 0):
            e.op(f"s_lshl_b32 {s(S_T0)}, s2, 2")
            e.op(f"s_add_u32 {s(S_T0)}, {s(S_T0)}, {s(S_WAVE)}")
            for k, (srd, n) in enumerate(((S_X, 20), (S_WA, 19), (S_WB, 17))[:self.o("touch", 0)]):
                e.op(f"s_mul_i32 {s(S_T1)}, {s(S_T0)}, {n * 128}")
                e.op(f"v_min_u32 {T0}, {n - 1}, {L}")
                e.op(f"v_lshlrev_b32 {T0}, 7, {T0}")
                e.op(f"buffer_load_dword {v(224 + k)}, {T0}, {s(srd,4)}, {s(S_T1)} offen")
        e.op(f"s_cmp_ge_u32 {s(S_I)}, 30")
        e.op("s_cbranch_scc1 L_spare")

    def pi_tables(self):
        mode = self.o("pi", 5)
        if mode == 0: return [list(range(10))], 0, 0, 0
        if mode == 1:
            return [[0,4,1,2,3,8,5,6,7,9], [1,0,5,2,3,4,9,6,7,8], [2,0,1,6,3,4,5,7,8,9], [3,0,1,2,7,4,5,6,8,9]], 1, 1, 0
        if mode == 2:
            return [[(n + (5 * i) // 4) % 10 for n in range(10)] for i in range(8)], 1, 2, 0
        if mode == 3:
            return [[(n + (5 * i) // 4) % 10 for n in range(10)] for i in range(8)], 0, 0, 1
        if mode == 4:
            return [[(n + i) % 5 for n in range(5)] + [5 + (n + i) % 5 for n in range(5)] for i in range(4)], 1, 1, 0
        if mode == 5:
            return [[0,2,1,4,3,6,5,8,7,9], [1,0,3,2,5,4,7,6,9,8]], 1, 1, 0
    def pi_get(self, dst, st):
        self.e.op(f"s_bfe_u32 {s(dst)}, {s(S_PILO if st < 8 else S_PIHI)}, {hex((4 << 16) | (4 * (st % 8)))}")

    def pi3_tables(self):
        mode = self.o("pi3", 0)
        ex = lambda ch: sum([[2 * c, 2 * c + 1] for c in ch], []) + [12]
        if mode == 0: return [list(range(13))]
        if mode == 1: return [ex([0,2,1,4,3,5]), ex([1,0,3,2,5,4])]
        if mode == 2: return [[0,2,1,4,3,6,5,8,7,10,9,12,11], [1,0,3,2,5,4,7,6,9,8,11,10,12]]
        if mode == 3: return [ex([0,4,1,2,3,5]), ex([1,0,5,2,3,4]), ex([2,0,1,3,4,5]), ex([3,0,1,2,4,5])]
        if mode == 4: return [[0,4,1,2,3,8,5,6,7,12,9,10,11], [1,0,5,2,3,4,9,6,7,8,10,11,12], [2,0,1,6,3,4,5,10,7,8,9,11,12], [3,0,1,2,7,4,5,6,11,8,9,10,12]]
        if mode == 5: return [list(range(13)), list(range(6, 13)) + list(range(6))]
    def pi3_get(self, dst, n):
        self.e.op(f"s_bfe_u32 {s(dst)}, {s(S_P3LO if n < 8 else S_P3HI)}, {hex((4 << 16) | (4 * (n % 8)))}")

    def other_srds(self):
        self.srd(S_WS, S_PTR + 18, WS_SIZE)
        self.srd(S_OUT, S_PTR + 14, 2048 * 1280)
        self.srd(S_DBG, S_PTR + 16, 256)
        self.srd(S_MISC, S_PTR + 12, 1280)

    def dma_x(self, st):
        e = self.e
        def mk(n):
            def f():
                if n == 0:
                    e.op(f"s_add_u32 m0, {s(S_XM0)}, {(st % NX) * 4096}")
                    self.pi_get(S_DM, st)
                    e.op(f"s_lshl_b32 {s(S_DM)}, {s(S_DM)}, 7")
                    e.op(f"s_add_u32 {s(S_DM)}, {s(S_DM)}, {s(S_XOFF)}")
                e.op(f"buffer_load_dwordx4 {v(V_XD+n)}, {s(S_X,4)}, {s(S_DM)} offen offset:{n*1024} {self.ntx}lds", tag=("d", st))
            return f
        return [mk(n) for n in range(4)]
    def dma_w(self, st):
        e = self.e
        srd, vd, so, rs, k = (S_WA, V_WD, S_WOFF, 3840, st) if st < 10 else (S_WB, V_WD2, S_W2OFF, 3456, st - 10)
        def mk(n):
            def f():
                if n == 0:
                    e.op(f"s_add_u32 m0, {s(S_WM0)}, {L_W + (st % NW) * 16384}")
                    self.pi_get(S_DM, k)
                    e.op(f"s_mul_i32 {s(S_DM)}, {s(S_DM)}, {64 * rs}")
                    e.op(f"s_add_u32 {s(S_DM)}, {s(S_DM)}, {s(so)}")
                e.op(f"buffer_load_dwordx4 {v(vd+n)}, {s(srd,4)}, {s(S_DM)} offen offset:{n*1024} {self.ntw}lds", tag=("d", st))
            return f
        return [mk(n) for n in range(4)]

    def stage1_setup(self):
        e = self.e
        L = v(V_LANE); T0, T1, T2, T3 = v(V_T0), v(V_T1), v(V_T2), v(V_T3)
        e.op(f"v_and_b32 {T0}, 31, {L}")
        e.op(f"v_bfe_u32 {T1}, {L}, 1, 3")
        e.op(f"v_lshrrev_b32 {T2}, 5, {L}")
        e.op(f"v_xor_b32 {T1}, {T1}, {T2}")
        e.op(f"v_lshlrev_b32 {T1}, 4, {T1}")
        e.op(f"v_lshl_add_u32 {T1}, {T0}, 7, {T1}")
        for ks in range(4):
            e.op(f"v_xor_b32 {T3}, {ks * 32}, {T1}")
            e.op(f"v_add_u32 {v(V_XR+ks)}, {s(S_XM0)}, {T3}")
        e.op(f"v_bfe_u32 {T0}, {L}, 2, 2")
        e.op(f"v_lshl_add_u32 {T1}, {T2}, 3, {T0}")
        e.op(f"v_lshlrev_b32 {T1}, 8, {T1}")
        e.op(f"v_lshl_add_u32 {T1}, {T0}, 6, {T1}")
        e.op(f"v_bfe_u32 {T3}, {L}, 4, 1")
        e.op(f"v_lshl_add_u32 {T1}, {T3}, 5, {T1}")
        e.op(f"v_and_b32 {T3}, 3, {L}")
        e.op(f"v_lshl_add_u32 {T1}, {T3}, 3, {T1}")
        for j in range(4):
            e.op(f"v_xor_b32 {v(V_WR+j)}, {j * 64}, {T1}")
            e.op(f"v_add_u32 {v(V_WR+4+j)}, 0x10000, {v(V_WR+j)}")
    def store_setup(self, isv):
        e = self.e
        L = v(V_LANE); T0, T1, T2, T3 = v(V_T0), v(V_T1), v(V_T2), v(V_T3)
        e.op(f"s_lshl_b32 {s(S_T0)}, {s(S_RB)}, 2")
        e.op(f"s_add_u32 {s(S_T0)}, {s(S_T0)}, {s(S_WAVE)}")
        self.flag_off(S_FLA, FL_A, S_RB, S_CG)
        e.op(f"s_add_u32 {s(S_FLC)}, {s(S_FLA)}, {FL_C - FL_A}")
        if not isv:
            for j in range(4):
                e.op(f"v_add_u32 {v(V_ST1+j)}, {j * 131072}, {v(V_L16)}")
            e.op(f"s_lshl_b32 {s(S_ST1)}, {s(S_CG)}, 19")
            e.op(f"s_lshl_b32 {s(S_T1)}, {s(S_T0)}, 10")
            e.op(f"s_add_u32 {s(S_ST1)}, {s(S_ST1)}, {s(S_T1)}")
            e.op(f"s_add_u32 {s(S_ST1B)}, {s(S_ST1)}, {WS_QK + 65536}")
            e.op(f"s_add_u32 {s(S_ST1)}, {s(S_ST1)}, {WS_QK}")
        else:
            e.op(f"s_sub_u32 {s(S_T1)}, {s(S_CG)}, 10")
            e.op(f"s_lshl_b32 {s(S_T1)}, {s(S_T1)}, 7")
            e.op(f"v_and_b32 {T0}, 31, {L}")
            e.op(f"v_add_u32 {T0}, {s(S_T1)}, {T0}")
            e.op(f"v_lshrrev_b32 {T2}, 5, {L}")
            e.op(f"v_mul_u32_u24 {T2}, 640, {T2}")
            e.op(f"s_mov_b32 {s(S_T2)}, {64 * 2560 - 640}")
            for j in range(4):
                e.op(f"v_add_u32 {T1}, {32 * j}, {T0}")
                e.op(f"v_mul_u32_u24 {T3}, 1639, {T1}")
                e.op(f"v_lshrrev_b32 {T3}, 16, {T3}")
                e.op(f"v_lshl_add_u32 {T1}, {T1}, 4, {T2}")
                e.op(f"v_mad_u32_u24 {v(V_ST1+j)}, {T3}, {s(S_T2)}, {T1}")
            e.op(f"s_mul_i32 {s(S_ST1)}, {s(S_T0)}, 2560")
            e.op(f"s_add_u32 {s(S_ST1B)}, {s(S_ST1)}, {WS_VT + 1280}")
            e.op(f"s_add_u32 {s(S_ST1)}, {s(S_ST1)}, {WS_VT}")
        e.op(f"s_cmp_lt_u32 {s(S_CG)}, 5")
        e.op(f"s_cselect_b32 {s(S_SCALE)}, {f32(QSCALE)}, 1.0")
        e.op(f"s_mov_b32 {s(S_SCALE+1)}, {s(S_SCALE)}")
        e.op(f"s_mul_i32 {s(S_ST2)}, {s(S_T0)}, 110592")
        e.op(f"s_lshl_b32 {s(S_T1)}, {s(S_CG)}, 13")
        e.op(f"s_add_u32 {s(S_ST2)}, {s(S_ST2)}, {s(S_T1)}")
        e.op(f"s_add_u32 {s(S_ST2)}, {s(S_ST2)}, {WS_H}")
        e.op(f"s_add_u32 {s(S_ST2B)}, {s(S_ST2)}, 4096")
        e.op(f"s_cmp_lt_u32 {s(S_CG)}, 13")
        e.op(f"s_cselect_b32 {s(S_ST2B)}, {s(S_ST2B)}, {OOB}")
        e.op(f"s_cmp_lt_u32 {s(S_CG)}, 14")
        e.op(f"s_cselect_b32 {s(S_ST2)}, {s(S_ST2)}, {OOB}")

    def late_setup(self):
        e = self.e
        L = v(V_LANE); T0, T1, T2, T3 = v(V_T0), v(V_T1), v(V_T2), v(V_T3)
        P0, P1 = v(V_POLL), v(V_POLL + 1)
        e.op(f"s_lshr_b32 {s(S_P)}, {s(S_I)}, 4")
        e.op(f"s_lshl_b32 {s(S_T3)}, {s(S_XCD)}, 1")
        e.op(f"s_add_u32 {s(S_P)}, {s(S_P)}, {s(S_T3)}")
        e.op(f"s_and_b32 {s(S_RBA)}, {s(S_I)}, 15")
        if self.o("map3", 0) == 0:
            e.op(f"s_lshr_b32 {s(S_T0)}, {s(S_XCD)}, 1")
            e.op(f"s_lshl_b32 {s(S_TB64)}, {s(S_T0)}, 3")
            e.op(f"s_and_b32 {s(S_T3)}, {s(S_I)}, 7")
            e.op(f"s_add_u32 {s(S_TB64)}, {s(S_TB64)}, {s(S_T3)}")
            e.op(f"s_and_b32 {s(S_T2)}, {s(S_XCD)}, 1")
            e.op(f"s_lshl_b32 {s(S_NG)}, {s(S_T2)}, 2")
            e.op(f"s_lshr_b32 {s(S_T3)}, {s(S_I)}, 3")
            e.op(f"s_add_u32 {s(S_NG)}, {s(S_NG)}, {s(S_T3)}")
        else:
            e.op(f"s_lshl_b32 {s(S_TB64)}, {s(S_XCD)}, 2")
            e.op(f"s_and_b32 {s(S_T3)}, {s(S_I)}, 3")
            e.op(f"s_add_u32 {s(S_TB64)}, {s(S_TB64)}, {s(S_T3)}")
            e.op(f"s_lshr_b32 {s(S_NG)}, {s(S_I)}, 2")
        tabs = self.pi3_tables()
        if len(tabs) > 1:
            e.op(f"s_add_u32 {s(S_T4)}, {s(S_TB64)}, {s(S_NG)}")
            e.op(f"s_and_b32 {s(S_T4)}, {s(S_T4)}, {len(tabs) - 1}")
            for i, tb in enumerate(tabs):
                assert sorted(tb) == list(range(13))
                lo = sum(k << (4 * n) for n, k in enumerate(tb[:8])); hi = sum(k << (4 * n) for n, k in enumerate(tb[8:]))
                if i == 0:
                    e.op(f"s_mov_b32 {s(S_P3LO)}, {hex(lo)}")
                    e.op(f"s_mov_b32 {s(S_P3HI)}, {hex(hi)}")
                else:
                    e.op(f"s_cmp_eq_u32 {s(S_T4)}, {i}")
                    e.op(f"s_cselect_b32 {s(S_P3LO)}, {hex(lo)}, {s(S_P3LO)}")
                    e.op(f"s_cselect_b32 {s(S_P3HI)}, {hex(hi)}, {s(S_P3HI)}")
        S_F0, S_TB0 = S_T4, S_T5
        e.op(f"s_mul_i32 {s(S_F0)}, {s(S_P)}, 10")
        e.op(f"s_lshr_b32 {s(S_F0)}, {s(S_F0)}, 2")
        e.op(f"s_lshl_b32 {s(S_TQ)}, {s(S_RBA)}, 2")
        e.op(f"s_mul_i32 {s(S_T0)}, {s(S_WAVE)}, 3")
        e.op(f"s_add_u32 {s(S_TB0)}, {s(S_TQ)}, {s(S_T0)}")
        e.op(f"s_sub_u32 {s(S_TB0)}, {s(S_TB0)}, 8")
        e.op(f"s_add_u32 {s(S_TQ)}, {s(S_TQ)}, {s(S_WAVE)}")
        e.op(f"v_and_b32 {T0}, 1, {L}")
        e.op(f"v_lshl_add_u32 {T1}, {T0}, 1, {s(S_F0)}")
        e.op(f"v_lshrrev_b32 {T1}, 3, {T1}")
        e.op(f"s_mul_i32 {s(S_T0)}, {s(S_P)}, 40")
        e.op(f"v_mul_u32_u24 {T0}, 39, {T0}")
        e.op(f"v_add_u32 {T0}, {s(S_T0)}, {T0}")
        e.op(f"v_lshrrev_b32 {T0}, 7, {T0}")
        e.op(f"v_add_u32 {T0}, 10, {T0}")
        e.op(f"v_lshrrev_b32 {T2}, 1, {L}")
        e.op(f"v_min_u32 {T2}, 6, {T2}")
        e.op(f"v_cmp_lt_u32 vcc, 2, {T2}")
        e.op(f"v_add_u32 {P0}, 5, {T1}")
        e.op(f"v_subrev_u32 {P1}, 3, {T2}")
        e.op(f"v_cndmask_b32 {P0}, {P0}, {T0}, vcc")
        e.op(f"v_cndmask_b32 {P1}, {T2}, {P1}, vcc")
        e.op(f"v_cmp_lt_u32 vcc, 5, {T2}")
        e.op(f"v_add_u32 {P1}, {s(S_TB0)}, {P1}")
        e.op(f"v_max_i32 {P1}, 0, {P1}")
        e.op(f"v_mov_b32 {T3}, {s(S_TQ)}")
        e.op(f"v_cndmask_b32 {P0}, {P0}, {T1}, vcc")
        e.op(f"v_cndmask_b32 {P1}, {P1}, {T3}, vcc")
        self.vflag(v(V_FA), FL_A, P1, P0, T0)
        e.op(f"s_lshl_b32 {s(S_T0)}, {s(S_F0)}, 16")
        e.op(f"s_lshl_b32 {s(S_QOFF)}, {s(S_TQ)}, 10")
        e.op(f"s_add_u32 {s(S_QOFF)}, {s(S_QOFF)}, {s(S_T0)}")
        e.op(f"s_mul_i32 {s(S_T3)}, {s(S_P)}, {64 * 2560}")
        for i in range(3):
            e.op(f"s_add_i32 {s(S_T1)}, {s(S_TB0)}, {i}")
            e.op(f"s_max_i32 {s(S_T1)}, {s(S_T1)}, 0")
            e.op(f"s_lshl_b32 {s(S_KOFF + i)}, {s(S_T1)}, 10")
            e.op(f"s_add_u32 {s(S_KOFF + i)}, {s(S_KOFF + i)}, {s(S_T0)}")
            e.op(f"s_mul_i32 {s(S_VOFF + i)}, {s(S_T1)}, 2560")
            e.op(f"s_add_u32 {s(S_VOFF + i)}, {s(S_VOFF + i)}, {s(S_T3)}")
            e.op(f"s_add_u32 {s(S_VOFF + i)}, {s(S_VOFF + i)}, {WS_VT}")
        e.op(f"v_and_b32 {T0}, 31, {L}")
        e.op(f"v_lshrrev_b32 {T1}, 5, {L}")
        e.op(f"v_lshlrev_b32 {T2}, 2, {T1}")
        e.op(f"v_sub_u32 {T2}, {T0}, {T2}")
        e.op(f"v_mov_b32 {T3}, {hex(NEGBIG)}")
        for rr in range(0, 16, 2):
            e.op(f"v_cmp_gt_i32 vcc, {8 * (rr >> 2) + (rr & 3)}, {T2}")
            e.op(f"v_cmp_gt_i32 {s(S_MASK,2)}, {8 * (rr >> 2) + (rr & 3) + 1}, {T2}")
            e.op("s_nop 0")
            e.op(f"v_cndmask_b32 {v(CD + rr)}, 0, {T3}, vcc")
            e.op(f"v_cndmask_b32 {v(CE + rr)}, {T3}, 0, vcc")
            e.op(f"v_cndmask_b32 {v(CD + rr + 1)}, 0, {T3}, {s(S_MASK,2)}")
            e.op(f"v_cndmask_b32 {v(CE + rr + 1)}, {T3}, 0, {s(S_MASK,2)}")
        e.op(f"s_lshl_b32 {s(S_T1)}, {s(S_WAVE)}, 10")
        e.op(f"s_add_u32 {s(S_T1)}, {s(S_T1)}, {L_K}")
        e.op(f"v_add_u32 {v(V_KA)}, {s(S_T1)}, {v(V_L16)}")
        e.op(f"s_mul_i32 {s(S_T1)}, {s(S_WAVE)}, 2560")
        e.op(f"s_add_u32 {s(S_T1)}, {s(S_T1)}, {L_V}")
        e.op(f"v_mul_u32_u24 {T2}, 640, {T1}")
        e.op(f"v_lshl_add_u32 {T2}, {T0}, 4, {T2}")
        e.op(f"v_add_u32 {v(V_VA)}, {s(S_T1)}, {T2}")
        e.op(f"s_mov_b32 {s(S_VM)}, 0xfffff")
        e.op(f"s_mov_b32 {s(S_VM+1)}, 0xfffff")
        e.op(f"s_lshr_b32 {s(S_T0)}, {s(S_P)}, 2")
        e.op(f"s_mul_i32 {s(S_T0)}, {s(S_T0)}, {20 * 512}")
        e.op(f"s_mul_i32 {s(S_T1)}, {s(S_TQ)}, 40960")
        e.op(f"s_add_u32 {s(S_T0)}, {s(S_T0)}, {s(S_T1)}")
        e.op(f"s_add_u32 {s(S_T0)}, {s(S_T0)}, {WS_O}")
        e.op(f"s_and_b32 {s(S_T1)}, {s(S_P)}, 3")
        e.op(f"s_lshl_b32 {s(S_OST)}, {s(S_T1)}, 11")
        e.op(f"s_add_u32 {s(S_OST)}, {s(S_OST)}, {s(S_T0)}")
        e.op(f"s_lshl_b32 {s(S_T1)}, {s(S_T1)}, 9")
        e.op(f"s_add_u32 {s(S_T1)}, {s(S_T1)}, {s(S_T0)}")
        e.op(f"s_add_u32 {s(S_OST2)}, {s(S_T1)}, {16 * 512}")
        self.flag_off(S_FLB, FL_B, S_RBA, S_P)
        e.op(f"v_and_b32 {T0}, 15, {L}")
        e.op(f"v_lshrrev_b32 {T1}, 4, {L}")
        e.op(f"v_lshlrev_b32 {T2}, 9, {T1}")
        e.op(f"v_lshl_add_u32 {v(V_HL)}, {T0}, 4, {T2}")
        e.op(f"s_lshl_b32 {s(S_T4)}, {s(S_WAVE)}, 11")
        e.op(f"s_add_u32 {s(S_T4)}, {s(S_T4)}, {WS_H}")
        e.op(f"s_mul_i32 {s(S_T5)}, {s(S_WAVE)}, {5 * 2048}")
        e.op(f"s_add_u32 {s(S_T5)}, {s(S_T5)}, {WS_O}")
        for t in range(4):
            e.op(f"s_add_u32 {s(S_T0)}, {s(S_WAVE)}, {t + 1}")
            e.op(f"s_and_b32 {s(S_T0)}, {s(S_T0)}, 3")
            e.op(f"s_lshr_b32 {s(S_T1)}, {s(S_T0)}, 1")
            e.op(f"s_lshl_b32 {s(S_T2)}, {s(S_TB64)}, 1")
            e.op(f"s_add_u32 {s(S_T1)}, {s(S_T1)}, {s(S_T2)}")
            e.op(f"s_and_b32 {s(S_T2)}, {s(S_T0)}, 1")
            e.op(f"s_lshl_b32 {s(S_T2)}, {s(S_T2)}, 8")
            e.op(f"s_mul_i32 {s(S_T3)}, {s(S_T1)}, 110592")
            e.op(f"s_add_u32 {s(S_T3)}, {s(S_T3)}, {s(S_T2)}")
            e.op(f"s_add_u32 {s(S_HT + t)}, {s(S_T3)}, {s(S_T4)}")
            e.op(f"s_mul_i32 {s(S_T3)}, {s(S_T1)}, 40960")
            e.op(f"s_add_u32 {s(S_T3)}, {s(S_T3)}, {s(S_T2)}")
            e.op(f"s_add_u32 {s(S_OT + t)}, {s(S_T3)}, {s(S_T5)}")
        e.op(f"s_mul_i32 {s(S_T2)}, {s(S_NG)}, 74")
        e.op(f"s_add_u32 {s(S_T0)}, {s(S_T2)}, {s(S_WAVE)}")
        e.op(f"s_mul_i32 {s(S_WT0)}, {s(S_T0)}, 5120")
        e.op(f"s_add_u32 {s(S_WT0)}, {s(S_WT0)}, {WS_WT + 2048}")
        e.op(f"s_mul_i32 {s(S_T1)}, {s(S_WAVE)}, 5")
        e.op(f"s_add_u32 {s(S_T1)}, {s(S_T1)}, {s(S_T2)}")
        e.op(f"s_mul_i32 {s(S_WT1)}, {s(S_T1)}, 5120")
        e.op(f"s_add_u32 {s(S_WT1)}, {s(S_WT1)}, {WS_WT + 54 * 5120 + 2048}")
        e.op(f"v_and_b32 {T1}, 1, {L}")
        e.op(f"s_lshl_b32 {s(S_T0)}, {s(S_TB64)}, 1")
        e.op(f"v_add_u32 {T1}, {s(S_T0)}, {T1}")
        e.op(f"v_lshrrev_b32 {T0}, 1, {L}")
        e.op(f"v_min_u32 {T0}, 14, {T0}")
        self.vflag(v(V_FC), FL_C, T1, T0, T2)
        e.op(f"v_lshrrev_b32 {T0}, 1, {L}")
        e.op(f"v_min_u32 {T0}, 3, {T0}")
        e.op(f"s_lshl_b32 {s(S_T1)}, {s(S_WAVE)}, 2")
        e.op(f"v_add_u32 {T0}, {s(S_T1)}, {T0}")
        self.vflag(v(V_FB), FL_B, T1, T0, T2)
        e.op(f"s_lshl_b32 {s(S_T1)}, {s(S_XCD)}, 7")
        e.op(f"s_add_u32 {s(S_T1)}, {s(S_T1)}, {FL_DD}")
        e.op(f"v_mov_b32 {v(V_FD)}, {s(S_T1)}")

    def w_loads(self, n):
        e = self.e
        def mk(j):
            def f():
                dst = r(WR + 20 * (n % NWR) + 4 * j, 4)
                if n == 13:
                    if j in (0, 4):
                        e.op(f"s_add_u32 {s(S_T2)}, {s(S_WT0)}, {n * 4 * 5120 - 2048 + (4096 if j else 0)}")
                        e.op(f"s_cmp_lt_u32 {s(S_WAVE)}, 2")
                        e.op(f"s_cselect_b32 {s(S_T2)}, {s(S_T2)}, {OOB}")
                    e.op(f"buffer_load_dwordx4 {dst}, {v(V_L16)}, {s(S_WS,4)}, {s(S_T2)} offen offset:{(j & 3) * 1024} sc1", tag=("w", n, j))
                    return
                if j == 0:
                    if n < 13 and self.o("pi3", 0):
                        self.pi3_get(S_T2, n)
                        e.op(f"s_mul_i32 {s(S_T2)}, {s(S_T2)}, {4 * 5120}")
                        e.op(f"s_add_u32 {s(S_T2)}, {s(S_T2)}, {s(S_WT0)}")
                    elif n < 14: e.op(f"s_add_u32 {s(S_T2)}, {s(S_WT0)}, {n * 4 * 5120 * (1 - self.o('wsame', 0))}")
                    else: e.op(f"s_add_u32 {s(S_T2)}, {s(S_WT1)}, {(n - 14) * 5120 * (1 - self.o('wsame', 0))}")
                    e.op(f"s_add_u32 {s(S_WB64)}, {s(S_PTR + 18)}, {s(S_T2)}")
                    e.op(f"s_addc_u32 {s(S_WB64 + 1)}, {s(S_PTR + 19)}, 0")
                e.op(f"global_load_dwordx4 {dst}, {v(V_L16)}, {s(S_WB64,2)} offset:{j * 1024 - 2048} sc1", tag=("w", n, j))
            return f
        return [mk(j) for j in range(5)]
    @property
    def LDS_W(self):
        return (14, 15, 16, 17)[:self.o("nlds", 1)]
    def wl_dmas(self):
        e = self.e
        def f(i):
            if i % 4 == 0:
                e.op(f"s_mul_i32 {s(S_T2)}, {s(S_WAVE)}, 20480")
                e.op(f"s_add_u32 m0, {s(S_T2)}, {L_W + i * 1024}")
                e.op(f"s_add_u32 {s(S_DM)}, {s(S_WT1)}, {i * 1024 - 2048}")
            e.op(f"buffer_load_dwordx4 {v(V_L16)}, {s(S_WS,4)}, {s(S_DM)} offen offset:{(i % 4) * 1024} sc1 lds", tag="wl")
        return [lambda i=i: f(i) for i in range(5 * len(self.LDS_W))]
    def hreg(self, n, t):
        if n < 14: return HSLOT[n % NH] + 4 * t
        i = 5 * t + (n - 14)
        return HSLOT[(14 + i // 4) % NH] + 4 * (i % 4)
    def h_load(self, n, t):
        e = self.e
        if n < 13 and self.o("pi3", 0):
            if t == 0:
                self.pi3_get(S_HK, n)
                e.op(f"s_lshl_b32 {s(S_HK)}, {s(S_HK)}, 13")
                self.hk = n
            assert self.hk == n
            e.op(f"s_add_u32 {s(S_T5)}, {s(S_HT + t)}, {s(S_HK)}")
        elif n < 14: e.op(f"s_add_u32 {s(S_T5)}, {s(S_HT + t)}, {n * 8192 * (1 - self.o('hsame', 0))}")
        else: e.op(f"s_add_u32 {s(S_T5)}, {s(S_OT + t)}, {(n - 14) * 2048 * (1 - self.o('hsame', 0))}")
        if n == 13:
            e.op(f"s_cmp_lt_u32 {s(S_WAVE)}, 2")
            e.op(f"s_cselect_b32 {s(S_T5)}, {s(S_T5)}, {OOB}")
        e.op(f"buffer_load_dwordx4 {v(self.hreg(n, t), 4)}, {v(V_HL)}, {s(S_WS,4)}, {s(S_T5)} offen sc1", tag=("h", n, t))
    def kvq_loads(self):
        e = self.e
        ops = []
        def q(f):
            e.op(f"s_add_u32 {s(S_T4)}, {s(S_QOFF)}, {WS_QK + f * 65536}")
            e.op(f"buffer_load_dwordx4 {v(VQ + 4 * f, 4)}, {v(V_L16)}, {s(S_WS,4)}, {s(S_T4)} offen sc1", tag="q")
        def k(i, f):
            if i == 0 and f == 0: e.op(f"s_mul_i32 {s(S_T5)}, {s(S_WAVE)}, 3072")
            e.op(f"s_add_u32 m0, {s(S_T5)}, {L_K + f * 12288 + i * 1024}")
            e.op(f"s_add_u32 {s(S_T4)}, {s(S_KOFF + i)}, {WS_QK + (40 + f) * 65536}")
            e.op(f"buffer_load_dwordx4 {v(V_L16)}, {s(S_WS,4)}, {s(S_T4)} offen sc1 lds", tag="kd")
        def vv(i, n):
            if i == 0 and n == 0: e.op(f"s_mul_i32 {s(S_T5)}, {s(S_WAVE)}, 7680")
            if n == 0: e.op(f"s_add_u32 m0, {s(S_T5)}, {L_V + i * 2560}")
            if n == 2: e.op("s_mov_b32 exec_hi, 0")
            e.op(f"buffer_load_dwordx4 {v(V_L16)}, {s(S_WS,4)}, {s(S_VOFF + i)} offen offset:{n * 1024} sc1 lds", tag="vd")
            if n == 2: e.op("s_mov_b32 exec_hi, -1")
        for f in range(3): ops.append(lambda f=f: q(f))
        for i in range(3):
            for f in range(3): ops.append(lambda i=i, f=f: k(i, f))
        for i in range(3):
            for n in range(3): ops.append(lambda i=i, n=n: vv(i, n))
        return ops
    EARLY_W = (8, 9, 10, 11)

    def ksj(self, st, f):
        return (f & 3, f >> 2) if (st == 19 or (st == 9 and self.o("jm9", 1))) else (f >> 2, f & 3)
    def w_read(self, st, f, u):
        ks, j = self.ksj(st, f)
        slot = st % NW
        off = L_W + slot * 16384 + ks * 4096 + u * 1024
        ad = V_WR + j
        if off >= 65536: off -= 65536; ad += 4
        m = 16 * st + f
        self.e.op(f"ds_read_b64_tr_b16 {v(V_FR + 4 * (m % 8) + 2 * u, 2)}, {v(ad)} offset:{off}", tag=("w", m))
    def x_read(self, st, ks):
        self.e.op(f"ds_read_b128 {r(A_X + 16 * st + 4 * ks, 4)}, {v(V_XR + ks)} offset:{(st % NX) * 4096}", tag=("x", st, ks))

    def stage1_fill(self):
        e = self.e
        fill = {m: [] for m in range(-1, 320)}
        def at(m, f): fill[max(m, -1)].append(f)
        for st in range(20):
            b = 16 * st - 4
            def bar(st=st):
                assert ("d", st) in e.all_tags
                e.wait(vm=("d", st), lg="all")
                e.op("s_barrier")
            at(b, bar)
            if st < 10:
                for ks in range(4): at(b + (ks if self.ksj(st, 1)[0] else 3 * ks), lambda st=st, ks=ks: self.x_read(st, ks))
            for rho in range(32):
                at(b + rho * 13 // 32, lambda st=st, rho=rho: self.w_read(st, rho >> 1, rho & 1))
        return fill

    def vm_schedule(self, fill, queues, m0, m1, thr):
        lag = 0
        where = {}
        for m in range(m0, m1):
            lag = max(0, lag - 32)
            heads = [q for q in queues if q and q[0][0] <= m]
            if not heads: continue
            q = min(heads, key=lambda q: q[0][1])
            if q[0][1] <= m or lag <= thr:
                rel, dl, cost, f = q.pop(0)
                fill[m].append(f); where[f] = m
                lag = min(lag, 3 * 72) + cost
        assert not any(queues), [len(q) for q in queues]
        return where

    def p1_epilogue_ops(self):
        e = self.e
        groups = []
        for j in range(4):
            for h in range(2):
                A = ACC[0] + 16 * j + 8 * h
                ops = []
                if self.o("pkmul", 0):
                    for q in range(4):
                        ops.append(lambda A=A, q=q: e.op(f"v_pk_mul_f32 {v(A+2*q,2)}, {v(A+2*q,2)}, {s(S_SCALE,2)}"))
                else:
                    for q in range(8):
                        ops.append(lambda A=A, q=q: e.op(f"v_mul_f32 {v(A+q)}, {s(S_SCALE)}, {v(A+q)}"))
                for q in range(4):
                    ops.append(lambda A=A, q=q: e.op(f"v_cvt_pk_bf16_f32 {v(A+q)}, {v(A+2*q)}, {v(A+2*q+1)}"))
                ops.append(lambda A=A, h=h, j=j: e.op(f"buffer_store_dwordx4 {v(A,4)}, {v(V_ST1+j)}, {s(S_WS,4)}, {s(S_ST1B if h else S_ST1)} offen sc1", tag="st1"))
                groups.append(ops)
        return groups
    def p2_epilogue_ops(self):
        e = self.e
        groups = []
        for j in range(4):
            for h in range(2):
                A = ACC[1] + 16 * j + 8 * h
                ops = []
                for q in range(4):
                    ops.append(lambda A=A, q=q: e.op(f"v_cvt_pk_bf16_f32 {v(A+q)}, {v(A+2*q)}, {v(A+2*q+1)}"))
                for q in range(4):
                    ops.append(lambda A=A, q=q: e.op(f"v_pk_max_i16 {v(A+q)}, {v(A+q)}, 0"))
                ops.append(lambda A=A, h=h, j=j: e.op(f"buffer_store_dwordx4 {v(A,4)}, {v(V_L16)}, {s(S_WS,4)}, {s(S_ST2B if j >= 2 else S_ST2)} offen offset:{(j & 1) * 2048 + h * 1024} sc1", tag="st2"))
                groups.append(ops)
        return groups

    def stage1_stream(self, fill, m0, m1, swap, extra=()):
        e = self.e
        extra = list(extra)
        for m in range(m0, m1):
            st, f = divmod(m, 16)
            ks, j = self.ksj(st, f)
            e.wait(lg=[("w", m), ("x", st, ks)])
            acc = v(ACC[st // 10] + 16 * j, 16)
            wf = v(V_FR + 4 * (m % 8), 4)
            xf = r(A_X + 16 * (st % 10) + 4 * ks, 4)
            c = "0" if (st % 10 == 0 and ks == 0) else acc
            if swap: e.op(f"v_mfma_f32_32x32x16_bf16 {acc}, {xf}, {wf}, {c}")
            else: e.op(f"v_mfma_f32_32x32x16_bf16 {acc}, {wf}, {xf}, {c}")
            for fn in fill[m]: fn()
            for _ in range(2):
                if extra and m >= 2: extra.pop(0)()
        assert not extra

    def ones_init(self):
        return [lambda i=i: self.e.op(f"v_mov_b32 {v(VF + i)}, 0x3f803f80") for i in range(8)]

    def stage1(self):
        e = self.e
        for f in self.dma_x(0) + self.dma_w(0): f()
        self.stamp(1, True) if self.o("rtdbg", 0) else None
        self.rt_tables_load()
        if self.o("nort", 0) & 1:
            real = e.op
            e.op = lambda t, tag=None: None if t.startswith("buffer_load") else real(t, tag)
        self.rt_loads(2)
        if self.o("nort", 0) & 1: e.op = real
        self.other_srds()
        self.stage1_setup()
        self.stamp(2, True) if self.o("rtdbg", 0) else None
        for f in self.dma_x(1) + self.dma_w(1): f()
        self.rt_tables_rest()
        self.stamp(3, True) if self.o("rtdbg", 0) else None
        fill = self.stage1_fill()
        dq = []
        for st in range(2, 20):
            d = (self.dma_x(st) if st < 10 else []) + self.dma_w(st)
            rel = max(16 * (st - 4) - 3, 29 if st == 4 else 0)
            if st < 10: rel = max(rel, 16 * (st - 2) - 3)
            g0 = max(16 * (st - 2) - 3, 0); g1 = 16 * (st - 1) - 5
            dq += [(rel, g0 + i * (g1 - g0) // len(d), 72, f) for i, f in enumerate(d)]
        pA, cA = self.o("pollA", 258), self.o("chkA", 278)
        kv = self.kvq_loads()
        dq += [(cA + 1, cA + 1 + i * (318 - cA) // len(kv), 72, f) for i, f in enumerate(kv)]
        for i, f in enumerate(self.rt_reads()): fill[22 + i // 2].append(f)
        rs0 = self.o("rs0", 30)
        sq = [(rs0 + 6 * i, rs0 + 6 * i, 128, f) for i, f in enumerate(self.rt_stores())]
        if self.o("nort", 0) & 2: sq = []
        sq.append((rs0 + 14, rs0 + 14, 20, self.nonce_issue))
        pd = (rs0 + 14 + 24 + 4 + 15) // 16 * 16 - 4
        fill[pd].insert(0, self.nonce_check)
        sq.append((pd + 1, pd + 1, 20, lambda: self.publish(S_RTF)))
        sp = self.o("epi", 5)
        e0 = 160
        for g, ops in enumerate(self.p1_epilogue_ops()):
            for i, f in enumerate(ops[:-1]): fill[e0 + sp * g + i * sp // (len(ops) - 1)].append(f)
            sq.append((e0 + sp * (g + 1), e0 + sp * (g + 1), self.o("stc", 160), ops[-1]))
        def pub_a():
            e.wait(vm="st1")
            self.publish(S_FLA)
        pD, cD = self.o("pollD", 222), self.o("chkD", 240)
        sq.append((pD, pD, 20, lambda: self.poll_issue(V_FD)))
        fill[cD].append(lambda: self.poll_check(V_FD))
        sq.append((self.o("pubA", 224), self.o("pubA", 224), 20, pub_a))
        sq.append((pA, pA, 30, lambda: self.poll_issue(V_FA)))
        fill[cA].append(lambda: self.poll_check(V_FA))
        fill[cA].append(lambda: self.stamp(3))
        ew = sum([self.w_loads(n) for n in self.EARLY_W], [])
        wq = [(cD + 1, cA - 2 * (len(ew) - i), 72, f) for i, f in enumerate(ew)]
        self.vm_schedule(fill, [dq, sq, wq], 0, 320, self.o("thr", 40))
        epi2 = self.p2_epilogue_ops()
        self.p2_stores_left = [g[-1] for g in epi2]
        va = sum([g[:-1] for g in epi2], [])
        for m, cnt in ((310, 2), (311, 2), (312, 3), (313, 5), (314, 4), (315, 5), (316, 5), (317, 5), (318, 1)):
            for _ in range(cnt): fill[m].append(va.pop(0))
        self.p2_valu_left = va
        for i, f in enumerate(self.ones_init()): fill[210 + i].append(f)
        extra = [self.capture(lambda: self.store_setup(isv), self.late_setup) for isv in (False, True)]
        z = self.o("zoom", 0)
        if z in (1, 2):
            for k in range(11):
                m = min(160 * (z - 1) + 16 * k - 1, 319 if z == 2 else 158)
                if z == 2 and k == 0: m = 160
                fill[m].append(lambda k=k: self.stamp(1 + k, True))
            fill[159].append(self.flush_stamp)
        for fn in fill[-1]: fn()
        if z == 1: self.flush_stamp()
        self.stamp(1)
        e.op(f"s_cmp_ge_u32 {s(S_CG)}, 10")
        e.op("s_cbranch_scc1 L_p1v")
        snap = e.snapshot(); ps = self.pending_stamp
        self.stage1_stream(fill, 0, 160, False, extra[0])
        e.op("s_branch L_p2")
        after = e.snapshot()
        e.restore(snap)
        e.label("L_p1v")
        self.stage1_stream(fill, 0, 160, True, extra[1])
        e.op(f"s_cmp_eq_u32 {s(S_CG)}, 14")
        e.op("s_cbranch_scc1 L_gate")
        self.gate_snap = e.snapshot()
        assert after[0] == e.vm and after[1] == e.lg
        e.label("L_p2")
        self.stamp(2)
        self.stage1_stream(fill, 160, 320, False)
        self.flush_stamp()

    def side_tail(self):
        e = self.e
        for f in self.ones_init(): f()
        self.poll_issue(V_FD); self.poll_check(V_FD)
        for n in self.EARLY_W:
            for f in self.w_loads(n): f()
        self.poll_issue(V_FA); self.poll_check(V_FA)
        for f in self.kvq_loads(): f()
        e.wait(vm="all", lg="all")
        e.op("s_branch L_att")

    def gate(self):
        e = self.e
        e.restore(self.gate_snap)
        e.label("L_gate")
        e.wait(vm="all", lg="all")
        e.op("s_nop 7")
        for g in self.p1_epilogue_ops():
            for f in g: f()
        e.op(f"v_lshrrev_b32 {v(V_T1)}, 5, {v(V_LANE)}")
        e.op(f"v_lshlrev_b32 {v(V_T1)}, 4, {v(V_T1)}")
        G = 16
        def gload(k):
            if k % 4 == 0:
                self.pi_get(S_T4, k // 4)
                e.op(f"s_lshl_b32 {s(S_T4)}, {s(S_T4)}, 7")
            e.op(f"buffer_load_dwordx4 {v(G + 4 * (k % 20), 4)}, {v(V_T1)}, {s(S_MISC,4)}, {s(S_T4)} offen offset:{32 * (k % 4)}", tag=("g", k))
        for k in range(20): gload(k)
        e.wait(vm="st1")
        self.publish(S_FLA)
        for k in range(40):
            e.wait(vm=("g", k))
            e.op(f"v_mfma_f32_32x32x16_bf16 {v(0,16)}, {v(G + 4 * (k % 20), 4)}, {r(A_X + 4 * k, 4)}, {'0' if k == 0 else v(0,16)}")
            if k < 20: gload(k + 20)
        e.op(f"v_mul_f32 {v(V_T1)}, {f32(-math.log2(math.e))}, v0")
        e.op(f"v_exp_f32 {v(V_T1)}, {v(V_T1)}")
        e.op(f"v_add_f32 {v(V_T1)}, 1.0, {v(V_T1)}")
        e.op(f"v_rcp_f32 {v(V_T1)}, {v(V_T1)}")
        e.op(f"v_and_b32 {v(V_T2)}, 31, {v(V_LANE)}")
        e.op(f"v_lshlrev_b32 {v(V_T2)}, 2, {v(V_T2)}")
        e.op(f"s_lshl_b32 {s(S_T0)}, {s(S_RB)}, 2")
        e.op(f"s_add_u32 {s(S_T0)}, {s(S_T0)}, {s(S_WAVE)}")
        e.op(f"s_lshl_b32 {s(S_T1)}, {s(S_T0)}, 7")
        e.op(f"s_add_u32 {s(S_T1)}, {s(S_T1)}, {WS_G}")
        e.op("s_mov_b32 exec_hi, 0")
        e.op(f"buffer_store_dword {v(V_T1)}, {v(V_T2)}, {s(S_WS,4)}, {s(S_T1)} offen sc1")
        e.op("s_mov_b32 exec_hi, -1")
        self.side_tail()

    def rt_tables_load(self):
        e = self.e
        L = v(V_LANE); T0, T1, T2 = v(V_T0), v(V_T1), v(V_T2)
        e.op(f"s_and_b32 {s(S_T0)}, {s(S_WAVE)}, 1")
        e.op(f"s_mul_i32 {s(S_T0)}, {s(S_T0)}, 160")
        for i in range(3):
            e.op(f"v_add_u32 {T0}, {s(S_T0)}, {L}")
            if i: e.op(f"v_add_u32 {T0}, {64 * i}, {T0}")
            e.op(f"v_mul_u32_u24 {T1}, 820, {T0}")
            e.op(f"v_lshrrev_b32 {T1}, 16, {T1}")
            e.op(f"v_lshlrev_b32 {T1}, 2, {T1}")
            e.op(f"v_xor_b32 {T0}, {T0}, {T1}")
            e.op(f"v_lshlrev_b32 {v(RT_LD + i)}, 4, {T0}")
    def rt_tables_rest(self):
        e = self.e
        L = v(V_LANE); T0, T1, T2, T3 = v(V_T0), v(V_T1), v(V_T2), v(V_T3)
        P0, P1 = v(V_POLL), v(V_POLL + 1)
        e.op(f"s_mul_i32 {s(S_T0)}, {s(S_WAVE)}, 20")
        e.op(f"s_mov_b32 {s(S_T1)}, {74 * 5120 - 5 * 1024}")
        for i in range(3):
            e.op(f"v_lshrrev_b32 {T0}, 4, {L}")
            e.op(f"v_add_u32 {T0}, {4 * i}, {T0}")
            e.op(f"v_min_u32 {T0}, 9, {T0}")
            e.op(f"v_mul_u32_u24 {T1}, 52, {T0}")
            e.op(f"v_lshrrev_b32 {T1}, 8, {T1}")
            e.op(f"v_and_b32 {T2}, 15, {L}")
            e.op(f"v_lshlrev_b32 {T2}, 4, {T2}")
            e.op(f"v_lshl_add_u32 {T2}, {T0}, 10, {T2}")
            e.op(f"v_mad_u32_u24 {v(RT_ST + i)}, {T1}, {s(S_T1)}, {T2}")
            e.op(f"v_mul_u32_u24 {T2}, 5, {T1}")
            e.op(f"v_sub_u32 {T0}, {T0}, {T2}")
            e.op(f"v_cmp_eq_u32 vcc, 4, {T0}")
            e.op(f"v_and_b32 {T3}, 3, {L}")
            e.op(f"v_lshlrev_b32 {P0}, 1, {T3}")
            e.op(f"v_and_or_b32 {P0}, {T0}, 1, {P0}")
            e.op(f"v_cndmask_b32 {P0}, {P0}, {T3}, vcc")
            e.op(f"v_and_b32 {T0}, 6, {T0}")
            e.op(f"v_add_u32 {T0}, {T0}, {T2}")
            e.op(f"v_lshl_add_u32 {T0}, {T0}, 1, {s(S_T0)}")
            e.op(f"v_lshl_add_u32 {T0}, {T0}, 1, {P0}")
            e.op(f"v_bfe_u32 {P1}, {L}, 2, 2")
            e.op(f"v_lshlrev_b32 {T1}, 3, {P1}")
            e.op(f"v_xor_b32 {T0}, {T0}, {T1}")
            e.op(f"v_mul_u32_u24 {P1}, 1280, {P1}")
            e.op(f"v_lshl_add_u32 {T0}, {T0}, 3, {P1}")
            e.op(f"v_add_u32 {v(RT_RD + i)}, {L_RT}, {T0}")
    def rt_loads(self, su, lo_=0, S_RTS=S_RTS, S_RTF=S_RTF):
        e = self.e
        KS, SA, SB_, SC, SR0, Q = S_T5, S_T0, S_T1, S_T2, S_T3, S_T4
        lo, lr, lg = self.L("rt_o"), self.L("rt_r"), self.L("rt_go")
        e.op(f"s_lshr_b32 {s(KS)}, {s(su)}, 2")
        e.op(f"s_mul_i32 {s(S_RTS)}, {s(S_WAVE)}, 148")
        e.op(f"s_add_u32 {s(S_RTS)}, {s(S_RTS)}, {s(KS)}")
        e.op(f"s_mul_i32 {s(S_RTS)}, {s(S_RTS)}, 20")
        e.op(f"s_and_b32 {s(SA)}, {s(su)}, 3")
        e.op(f"s_add_u32 {s(S_RTS)}, {s(S_RTS)}, {s(SA)}")
        e.op(f"s_lshl_b32 {s(S_RTS)}, {s(S_RTS)}, 8")
        e.op(f"s_add_u32 {s(S_RTS)}, {s(S_RTS)}, {WS_WT}")
        e.op(f"s_lshl_b32 {s(S_RTF)}, {s(su)}, 7")
        e.op(f"s_add_u32 {s(S_RTF)}, {s(S_RTF)}, {FL_D}")
        e.op(f"s_cmp_eq_u32 {s(S_WAVE)}, 0")
        e.op(f"s_cselect_b32 {s(S_RTF)}, {s(S_RTF)}, {OOB}")
        e.op(f"s_cmp_ge_u32 {s(KS)}, 54")
        e.op(f"s_cbranch_scc1 {lo}")
        self.srd(S_MISC, S_PTR + 10, 1728 * 1280)
        e.op(f"s_lshl_b32 {s(SR0)}, {s(KS)}, 5")
        e.op(f"s_mov_b32 {s(SA)}, 16")
        e.op(f"s_mov_b32 {s(SB_)}, 4")
        e.op(f"s_mov_b32 {s(SC)}, 8")
        e.op(f"s_branch {lg}")
        e.label(lo)
        self.srd(S_MISC, S_PTR + 4, 640 * 1280)
        e.op(f"s_sub_u32 {s(Q)}, {s(KS)}, 54")
        e.op(f"s_mul_i32 {s(KS)}, {s(Q)}, 52")
        e.op(f"s_lshr_b32 {s(KS)}, {s(KS)}, 8")
        e.op(f"s_mul_i32 {s(SR0)}, {s(KS)}, 5")
        e.op(f"s_sub_u32 {s(Q)}, {s(Q)}, {s(SR0)}")
        e.op(f"s_mul_i32 {s(SR0)}, {s(KS)}, 160")
        e.op(f"s_cmp_eq_u32 {s(Q)}, 4")
        e.op(f"s_cbranch_scc1 {lr}")
        e.op(f"s_mul_i32 {s(Q)}, {s(Q)}, 40")
        e.op(f"s_add_u32 {s(SR0)}, {s(SR0)}, {s(Q)}")
        e.op(f"s_mov_b32 {s(SA)}, 20")
        e.op(f"s_mov_b32 {s(SB_)}, 4")
        e.op(f"s_mov_b32 {s(SC)}, 8")
        e.op(f"s_branch {lg}")
        e.label(lr)
        e.op(f"s_add_u32 {s(SR0)}, {s(SR0)}, 16")
        e.op(f"s_mov_b32 {s(SA)}, 80")
        e.op(f"s_mov_b32 {s(SB_)}, 40")
        e.op(f"s_mov_b32 {s(SC)}, 20")
        e.label(lg)
        e.op(f"s_bitcmp1_b32 {s(su)}, 1")
        e.op(f"s_cselect_b32 {s(SA)}, {s(SA)}, 0")
        e.op(f"s_bitcmp1_b32 {s(su)}, 0")
        e.op(f"s_cselect_b32 {s(SB_)}, {s(SB_)}, 0")
        e.op(f"s_bitcmp1_b32 {s(S_WAVE)}, 1")
        e.op(f"s_cselect_b32 {s(SC)}, {s(SC)}, 0")
        e.op(f"s_add_u32 {s(SR0)}, {s(SR0)}, {s(SA)}")
        e.op(f"s_add_u32 {s(SR0)}, {s(SR0)}, {s(SB_)}")
        e.op(f"s_add_u32 {s(SR0)}, {s(SR0)}, {s(SC)}")
        e.op(f"s_mul_i32 {s(SR0)}, {s(SR0)}, 1280")
        e.op(f"s_mul_i32 {s(SA)}, {s(S_WAVE)}, 2560")
        for i in range(3):
            e.op(f"s_add_u32 m0, {s(SA)}, {L_RT + lo_ + i * 1024}")
            if i == 2: e.op("s_mov_b32 exec_hi, 0")
            e.op(f"buffer_load_dwordx4 {v(RT_LD + i)}, {s(S_MISC,4)}, {s(SR0)} offen {self.nt}lds", tag="rl")
            if i == 2: e.op("s_mov_b32 exec_hi, -1")
    def rt_reads(self, lo_=0, RT_D=RT_D):
        return [lambda i=i, u=u: self.e.op(f"ds_read_b64_tr_b16 {v(RT_D + 4 * i + 2 * u, 2)}, {v(RT_RD + i)} offset:{lo_ + u * 5120}", tag=("rt", i))
                for i in range(3) for u in range(2)]
    def rt_stores(self, RT_D=RT_D, S_RTS=S_RTS):
        e = self.e
        def st(i):
            e.wait(lg=("rt", i))
            if i == 2: e.op("s_mov_b32 exec_hi, 0")
            e.op(f"buffer_store_dwordx4 {v(RT_D + 4 * i, 4)}, {v(RT_ST + i)}, {s(S_WS,4)}, {s(S_RTS)} offen sc1", tag="rs")
            if i == 2: e.op("s_mov_b32 exec_hi, -1")
        return [lambda i=i: st(i) for i in range(3)]

    def spare(self):
        e = self.e
        e.vm, e.lg, e.hist = [], [], []
        e.label("L_spare")
        L = v(V_LANE); T0, T1, T2, T3 = v(V_T0), v(V_T1), v(V_T2), v(V_T3)
        self.other_srds()
        sk = self.L("nononce")
        e.op(f"s_sub_u32 {s(S_WOFF)}, s2, 240")
        e.op(f"s_or_b32 {s(S_T0)}, {s(S_WOFF)}, {s(S_WAVE)}")
        e.op(f"s_cmp_lg_u32 {s(S_T0)}, 0")
        e.op(f"s_cbranch_scc1 {sk}")
        e.op(f"s_memrealtime {s(S_NONCE,2)}")
        e.wait(lg="all")
        e.op(f"s_or_b32 {s(S_NONCE)}, {s(S_NONCE)}, 1")
        e.op(f"v_mov_b32 {v(V_NONCE)}, {s(S_NONCE)}")
        e.op(f"v_mov_b32 {v(V_NONCE+1)}, {s(S_NONCE+1)}")
        e.op("s_mov_b64 exec, 1")
        e.op(f"buffer_store_dwordx2 {v(V_NONCE,2)}, {v(V_ZERO)}, {s(S_DBG,4)}, 0 offen sc1")
        e.op("s_mov_b64 exec, -1")
        e.label(sk)
        e.op(f"s_lshl_b32 {s(S_T0)}, {s(S_WOFF)}, 2")
        e.op(f"s_add_u32 {s(S_T0)}, {s(S_T0)}, {s(S_WAVE)}")
        e.op(f"s_lshl_b32 {s(S_T0)}, {s(S_T0)}, 6")
        e.op(f"v_add_u32 {T0}, {s(S_T0)}, {L}")
        e.op(f"v_lshlrev_b32 {T1}, 7, {T0}")
        for c in range(10 - 2 * self.o("pf1", 0), 10, 2):
            e.op(f"v_lshrrev_b32 {T2}, 1, {T0}")
            e.op(f"v_mul_u32_u24 {T2}, {1280 - 256}, {T2}")
            e.op(f"v_add_u32 {T2}, {T2}, {T1}")
            e.op(f"buffer_load_dword {v(229)}, {T2}, {s(S_X,4)}, 0 offen offset:{c * 128}")
            e.op(f"v_min_u32 {T2}, {3839 * 128}, {T1}")
            e.op(f"s_mov_b32 {s(S_T0)}, {c * 64 * 3840}")
            e.op(f"buffer_load_dword {v(229)}, {T2}, {s(S_WA,4)}, {s(S_T0)} offen")
        e.op(f"v_mov_b32 {v(230)}, {T1}")
        self.rt_tables_load()
        RS, RF = (84, 85, 86, 87), (88, 89, 90, 91)
        for m in range(4):
            e.op(f"s_add_u32 {s(S_XOFF)}, s2, {16 * m}")
            self.rt_loads(S_XOFF, m * 10240, RS[m], RF[m])
        e.op(f"s_cmp_lt_u32 {s(S_XOFF)}, 296")
        e.op(f"s_cselect_b32 {s(RS[3])}, {s(RS[3])}, {OOB}")
        def touch(m):
            if self.o("pf2", 1):
                e.op(f"s_mov_b32 {s(S_T0)}, {m * 4096 * 128}")
                e.op(f"buffer_load_dword {v(229)}, {v(230)}, {s(S_WB,4)}, {s(S_T0)} offen")
        touch(0)
        self.rt_tables_rest()
        e.wait(vm="rl")
        e.op("s_barrier")
        self.stamp(1)
        touch(1)
        for m in range(4):
            for f in self.rt_reads(m * 10240, 96 + 12 * m) + self.rt_stores(96 + 12 * m, RS[m]): f()
        self.nonce_issue()
        touch(2)
        self.nonce_check()
        e.op("s_barrier")
        for m in range(4): self.publish(RF[m])
        self.stamp(3)
        touch(3); touch(4)
        self.flush_stamp()
        e.op(f"s_cmp_lg_u32 {s(S_I)}, 30")
        e.op("s_cbranch_scc1 L_noagg")
        snap = e.snapshot()
        e.op(f"s_lshl_b32 {s(S_T0)}, {s(S_WAVE)}, 6")
        e.op(f"v_add_u32 {T0}, {s(S_T0)}, {L}")
        e.op(f"v_lshlrev_b32 {T1}, 7, {T0}")
        e.op(f"v_add_u32 {v(V_FD)}, {FL_D}, {T1}")
        e.op(f"v_min_u32 {T0}, 39, {T0}")
        e.op(f"v_lshlrev_b32 {T1}, 7, {T0}")
        e.op(f"v_add_u32 {v(V_FB)}, {FL_D + 256 * 128}, {T1}")
        e.op(f"buffer_load_dwordx2 {v(V_T2,2)}, {v(V_FB)}, {s(S_WS,4)}, 0 offen sc1")
        self.poll_issue(V_FD); self.poll_check(V_FD)
        e.op(f"v_mov_b32 {v(V_POLL)}, {T2}")
        e.op(f"v_mov_b32 {v(V_POLL + 1)}, {T3}")
        self.open_poll = V_FB; self.poll_check(V_FB)
        e.op("s_barrier")
        e.op(f"s_lshl_b32 {s(S_T1)}, {s(S_XCD)}, 7")
        e.op(f"s_add_u32 {s(S_T1)}, {s(S_T1)}, {FL_DD}")
        e.op(f"s_cmp_eq_u32 {s(S_WAVE)}, 0")
        e.op(f"s_cselect_b32 {s(S_T1)}, {s(S_T1)}, {OOB}")
        self.publish(S_T1)
        e.wait(vm="all")
        e.restore(snap)
        e.label("L_noagg")
        self.stamp(2)
        self.flush_stamp()
        self.late_setup()
        e.op(f"s_mov_b32 {s(S_ST2)}, {OOB}")
        e.op(f"s_mov_b32 {s(S_ST2B)}, {OOB}")
        e.op(f"s_mov_b32 {s(S_FLC)}, {OOB}")
        self.side_tail()

    def k_reads(self, u):
        h, j = divmod(u, 9)
        for ff in range(2):
            self.e.op(f"ds_read_b128 {v(KF + 4 * ff, 4)}, {v(V_KA)} offset:{(h + ff) * 12288 + j * 1024}", tag="k")
    def v_reads(self, u):
        h, j = divmod(u, 9)
        e = self.e
        e.op(f"s_mov_b64 exec, {s(S_VM,2)}")
        for ss in range(2):
            e.op(f"ds_read_b128 {v(VF + 4 * ss, 4)}, {v(V_VA)} offset:{j * 2560 + ss * 1280 + h * 320}", tag="v")
        e.op("s_mov_b64 exec, -1")
    def qk(self, u, part, S, lo=False):
        h, j = divmod(u, 9)
        c = v(S, 16) if part else v(CD, 16) if j == 8 else v(CE, 16) if (j == 0 or lo) else "0"
        self.e.op(f"v_mfma_f32_32x32x16_bf16 {v(S,16)}, {v(KF + 4 * part, 4)}, {v(QM + 8 * h + 4 * part, 4)}, {c}")
    def pv(self, u, part, S, first):
        O = v(OO[u // 9], 16)
        self.e.op(f"v_mfma_f32_32x32x16_bf16 {O}, {v(VF + 4 * part, 4)}, {v(S + 4 * part, 4)}, {'0' if first else O}")

    def q_mask(self):
        e = self.e
        lo, dn = self.L("qodd"), self.L("qdone")
        e.op(f"s_mov_b32 {s(S_MASK)}, -1")
        e.op(f"s_mov_b32 {s(S_MASK+1)}, 0")
        e.op(f"s_bitcmp1_b32 {s(S_P)}, 0")
        e.wait(vm="q")
        e.op(f"s_cbranch_scc1 {lo}")
        for par in range(2):
            if par: e.label(lo)
            for h in range(2):
                for ff in range(2):
                    for slot in range(2):
                        p0 = 4 * (h + ff) + 2 * slot - 2 * par - 5 * h
                        k0, k1 = 0 <= p0 < 5, 0 <= p0 + 1 < 5
                        for d in range(2):
                            dst, src = v(QM + 8 * h + 4 * ff + 2 * slot + d), v(VQ + 4 * (h + ff) + 2 * slot + d)
                            if k0 and k1: e.op(f"v_mov_b32 {dst}, {src}")
                            elif k0: e.op(f"v_cndmask_b32 {dst}, 0, {src}, {s(S_MASK,2)}")
                            elif k1: e.op(f"v_cndmask_b32 {dst}, {src}, 0, {s(S_MASK,2)}")
                            else: e.op(f"v_mov_b32 {dst}, 0")
            if not par: e.op(f"s_branch {dn}")
        e.label(dn)

    def attention(self):
        e = self.e
        e.label("L_att")
        self.stamp(4)
        T0 = v(V_T0)
        stores = list(self.p2_stores_left)
        self.q_mask()
        e.wait(vm="kd")
        e.op("s_barrier")
        self.k_reads(0)
        for f in self.p2_valu_left: f()
        for _ in range(self.o("ns1", 1)): stores.pop(0)()
        self.stamp(5)
        side = {(u, k): [] for u in range(18) for k in range(4)}
        wl = sum([self.w_loads(n) for n in range(NWR) if n not in self.EARLY_W], [])
        wl += self.wl_dmas()
        slots = [(u, k) for u in range(18) for k in range(4)]
        for i, f in enumerate(stores):
            side[slots[2 * i]].append(f)
        def pub_c():
            e.wait(vm="st2")
            self.publish(S_FLC)
        pubC, pC, cC = self.o("pubC", 18), self.o("pollC", 44), self.o("chkC", 56)
        side[slots[pubC]].append(pub_c)
        side[slots[pC]].append(lambda: self.poll_issue(V_FC))
        def chk_c():
            self.poll_check(V_FC); self.stamp(6)
        hl = [(n, t) for n in range(5) for t in range(4)]
        taken = {pubC, pC, cC} | {2 * i for i in range(len(stores))}
        skip = self.o("wskip", len(stores))
        acc, rate = 0, self.o("wrate", 16)
        for i, x in enumerate(slots):
            if i == cC: side[x].append(chk_c)
            if i in taken: continue
            skip -= 1
            if skip >= 0: continue
            acc += rate
            if acc < 16: continue
            acc -= 16
            nw = len(wl) - 5 * len(self.LDS_W)
            if i > cC and hl and nw <= 0:
                n, t = hl.pop(0)
                side[x].append(lambda n=n, t=t: self.h_load(n, t))
            elif wl: side[x].append(wl.pop(0))
        assert len(wl) <= 5 * len(self.LDS_W)
        self.wl_left = wl
        self.h_left = hl
        def fill_ce(val):
            for i in range(16): e.op(f"v_mov_b32 {v(CE + i)}, {val}")
        def steps(lo):
            def open_at(jn):
                st, bk = self.L("open"), self.L("open_ok")
                e.op(f"s_cmp_eq_u32 {s(S_TQ)}, {8 - jn}")
                e.op(f"s_cbranch_scc1 {st}")
                e.label(bk)
                def stub():
                    e.label(st, reset=True)
                    e.op("s_nop 7")
                    fill_ce(0)
                    e.op("s_nop 0")
                    e.op(f"s_branch {bk}")
                self.stubs.append(stub)
            if lo: fill_ce(hex(NEGBIG))
            e.wait(lg="k")
            self.qk(0, 0, SB[0], lo); self.qk(0, 1, SB[0], lo)
            self.k_reads(1)
            if lo: open_at(1)
            for u in range(18):
                if self.o("zoom", 0) == 3 and u % 2 == 0: self.stamp(1 + u // 2, True)
                S, Sn, Sp = SB[u % 3], SB[(u + 1) % 3], SB[(u - 1) % 3]
                ex = lambda i: e.op(f"v_exp_f32 {v(S + i)}, {v(S + i)}")
                cv = lambda i: e.op(f"v_cvt_pk_bf16_f32 {v(S + i)}, {v(S + 2 * i)}, {v(S + 2 * i + 1)}")
                if u < 17:
                    e.wait(lg="k")
                    self.qk(u + 1, 0, Sn, lo)
                for f in side[(u, 0)]: f()
                for i in range(0, 4): ex(i)
                if u < 17: self.qk(u + 1, 1, Sn, lo)
                e.wait(lg="v")
                if u < 16: self.k_reads(u + 2)
                for f in side[(u, 1)]: f()
                for i in range(4, 8): ex(i)
                cv(0); cv(1)
                if u > 0: self.pv(u - 1, 0, Sp, (u - 1) % 9 == 0)
                if lo and u + 2 == 9: fill_ce(hex(NEGBIG))
                if lo and u + 2 < 18 and 1 <= (u + 2) % 9 <= 7: open_at((u + 2) % 9)
                for f in side[(u, 2)]: f()
                for i in range(8, 12): ex(i)
                cv(2); cv(3)
                if u > 0:
                    self.pv(u - 1, 1, Sp, False)
                    self.v_reads(u)
                for f in side[(u, 3)]: f()
                for i in range(12, 16): ex(i)
                for i in range(4, 8): cv(i)
                if u == 0:
                    e.wait(vm="vd")
                    e.op("s_barrier")
                    self.v_reads(0)
            e.wait(lg="v")
            self.pv(17, 0, SB[17 % 3], False); self.pv(17, 1, SB[17 % 3], False)
            self.flush_stamp()
        self.flush_stamp()
        e.op(f"s_cmp_lt_u32 {s(S_RBA)}, 2")
        e.op("s_cbranch_scc1 L_att_lo")
        snap0 = e.snapshot()
        steps(False)
        snap1 = e.snapshot()
        def att_lo():
            e.restore(snap0)
            e.label("L_att_lo")
            steps(True)
            assert e.vm == snap1[0] and e.lg == snap1[1]
            e.op("s_branch L_att_join")
        self.att_lo = att_lo
        e.label("L_att_join")
        if cC >= 72: chk_c()
        self.stamp(7)
        for h in range(2):
            O = OO[h]
            st, bk = self.L("slow"), self.L("slow_ok")
            e.op(f"v_subrev_u32 {T0}, 0x2f800000, {v(O + 12)}")
            e.op(f"v_cmp_le_u32 vcc, 0x20000000, {T0}")
            if self.o("forceslow", 0): e.op("s_mov_b64 vcc, -1")
            for _ in range(2 - h):
                if self.h_left:
                    n, t = self.h_left.pop(0); self.h_load(n, t)
            e.op(f"s_cbranch_vccnz {st}")
            e.label(bk)
            self.stubs.append(lambda st=st, bk=bk, h=h: self.slow_head(h, st, bk))
        OP = 0
        ep = []
        A = lambda t, tag=None: ep.append(lambda: e.op(t, tag=tag))
        for h in range(2): A(f"v_rcp_f32 {v(V_T2 + h)}, {v(OO[h] + 12)}")
        for h in range(2):
            O = OO[h]
            for i in range(8): A(f"v_mul_f32 {v(O + i)}, {v(O + i)}, {v(V_T2 + h)}")
            for i in range(4): A(f"v_cvt_pk_bf16_f32 {v(OP + 4 * h + i)}, {v(O + 2 * i)}, {v(O + 2 * i + 1)}")
            A(f"buffer_store_dwordx4 {v(OP + 4 * h, 4)}, {v(V_L16)}, {s(S_WS,4)}, {s(S_OST)} offen offset:{h * 1024} sc1", "sto")
        for h in range(2):
            O = OO[h]
            for i in range(8, 12): A(f"v_mul_f32 {v(O + i)}, {v(O + i)}, {v(V_T2 + h)}")
            for i in range(2): A(f"v_cvt_pk_bf16_f32 {v(OP + 8 + 2 * h + i)}, {v(O + 8 + 2 * i)}, {v(O + 9 + 2 * i)}")
        def last():
            e.op("s_mov_b32 exec_hi, 0")
            e.op(f"buffer_store_dwordx4 {v(OP + 8, 4)}, {v(V_L16)}, {s(S_WS,4)}, {s(S_OST2)} offen sc1", tag="sto")
            e.op("s_mov_b32 exec_hi, -1")
        ep.append(last)
        self.o_epilogue = ep

    def slow_head(self, h, st, bk):
        e = self.e
        e.label(st, reset=True)
        e.vm, e.lg = [], []
        T0, MX = v(V_T0), v(V_T1)
        O, S = OO[h], SB[0]
        e.op("s_nop 15")
        e.op(f"v_mov_b32 {MX}, {hex(NEGBIG)}")
        for i in range(16): e.op(f"v_mov_b32 {v(O + i)}, 0")
        for ps in range(2):
            for j in range(9):
                u = 9 * h + j
                sk = self.L("sk")
                if j < 8:
                    e.op(f"s_cmp_lt_u32 {s(S_TQ)}, {8 - j}")
                    e.op(f"s_cbranch_scc1 {sk}")
                if ps: self.v_reads(u)
                self.k_reads(u)
                e.wait(lg="all")
                self.qk(u, 0, S); self.qk(u, 1, S)
                if ps == 0:
                    for i in range(8): e.op(f"v_max3_f32 {MX}, {MX}, {v(S + 2 * i)}, {v(S + 2 * i + 1)}")
                else:
                    for i in range(16): e.op(f"v_sub_f32 {v(S + i)}, {v(S + i)}, {MX}")
                    for i in range(16): e.op(f"v_exp_f32 {v(S + i)}, {v(S + i)}")
                    for i in range(8): e.op(f"v_cvt_pk_bf16_f32 {v(S + i)}, {v(S + 2 * i)}, {v(S + 2 * i + 1)}")
                    self.pv(u, 0, S, False); self.pv(u, 1, S, False)
                    e.op("s_nop 7")
                e.label(sk)
            if ps == 0:
                e.op(f"v_mov_b32 {T0}, {MX}")
                e.op(f"v_permlane32_swap_b32 {T0}, {MX}")
                e.op("s_nop 1")
                e.op(f"v_max_f32 {MX}, {T0}, {MX}")
        e.op("s_nop 15")
        e.op(f"s_branch {bk}")

    def stage3(self):
        e = self.e
        L = v(V_LANE); T0, T1, T2, T3 = v(V_T0), v(V_T1), v(V_T2), v(V_T3)
        VG, VG1, VRR, VRW = 224, 228, 232, 235
        VOUT = V_VA
        self.stamp(8)
        setup = []
        A = lambda t: setup.append(lambda: e.op(t))
        A(f"s_mul_i32 {s(S_T3)}, {s(S_WAVE)}, 20480")
        A(f"v_add_u32 {v(VRW)}, {s(S_T3)}, {v(V_L16)}")
        A(f"v_and_b32 {T0}, 15, {L}")
        A(f"v_lshrrev_b32 {T1}, 4, {L}")
        for t in range(4):
            A(f"s_add_u32 {s(S_T0)}, {s(S_WAVE)}, {t + 1}")
            A(f"s_and_b32 {s(S_T0)}, {s(S_T0)}, 3")
            A(f"s_lshl_b32 {s(S_T3)}, {s(S_TB64)}, 2")
            A(f"s_add_u32 {s(S_T3)}, {s(S_T3)}, {s(S_T0)}")
            A(f"s_lshl_b32 {s(S_T3)}, {s(S_T3)}, 6")
            A(f"s_add_u32 {s(S_T3)}, {s(S_T3)}, {WS_G}")
            A(f"v_lshl_add_u32 {v(VG1 + t)}, {T0}, 2, {s(S_T3)}")
            setup.append(lambda t=t: e.op(f"buffer_load_dword {v(VG + t)}, {v(VG1 + t)}, {s(S_WS,4)}, 0 offen sc1", tag="g"))
            if t < 3:
                A(f"s_add_u32 {s(S_T3)}, {s(S_WAVE)}, {3 - t}")
                A(f"s_and_b32 {s(S_T3)}, {s(S_T3)}, 3")
                A(f"s_mul_i32 {s(S_T3)}, {s(S_T3)}, 20480")
                A(f"v_add_u32 {v(VRR + t)}, {s(S_T3)}, {v(V_L16)}")
        A(f"s_lshl_b32 {s(S_T0)}, {s(S_TB64)}, 2")
        A(f"s_add_u32 {s(S_T0)}, {s(S_T0)}, {s(S_WAVE)}")
        A(f"s_mul_i32 {s(S_T0)}, {s(S_T0)}, {16 * 1280}")
        A(f"s_mul_i32 {s(S_T1)}, {s(S_NG)}, 160")
        A(f"s_add_u32 {s(S_T0)}, {s(S_T0)}, {s(S_T1)}")
        A(f"v_mul_u32_u24 {T3}, 1280, {T0}")
        A(f"v_add_u32 {T3}, {s(S_T0)}, {T3}")
        A(f"v_lshl_add_u32 {v(VOUT)}, {T1}, 4, {T3}")
        A(f"v_lshl_add_u32 {v(VOUT + 1)}, {T1}, 3, {T3}")
        cB = self.o("chkB", 10)
        Q = [(0, lambda n=n, t=t: self.h_load(n, t)) for n, t in self.h_left]
        wq = {n: self.w_loads(n) for n in range(12, 19)}
        if self.o("skipw", 0):
            for n in range(12, 19):
                for j in range(5): e.all_tags.add(("w", n, j))
                if n != 12: wq[n] = []
            def dst(i):
                e.op(f"s_lshl_b32 {s(S_T2)}, s2, 2")
                e.op(f"s_add_u32 {s(S_T2)}, {s(S_T2)}, {s(S_WAVE)}")
                e.op(f"s_mul_i32 {s(S_T2)}, {s(S_T2)}, 5120")
                e.op(f"s_add_u32 {s(S_T2)}, {s(S_T2)}, {i * 1024}")
                e.op(f"buffer_store_dwordx4 {v(16,4)}, {v(V_L16)}, {s(S_WS,4)}, {s(S_T2)} offen sc1")
            wq[18] = [lambda i=i: dst(i) for i in range(5)]
        for n in range(5, 14):
            if n >= 12: Q += [(n - 11, f) for f in wq[n]]
            Q += [(max(n - 5, 2), lambda n=n, t=t: self.h_load(n, t)) for t in range(4)]
        wl_left = list(self.wl_left)
        def wl_issue(f):
            f(); wl_left.remove(f)
        Q += [(0, lambda f=f: wl_issue(f)) for f in self.wl_left]
        for n in range(14, 19):
            if n not in self.LDS_W: Q += [(n - 11, f) for f in wq[n]]
        def wl_read(n, j):
            e.wait(vm="wl")
            e.op(f"ds_read_b128 {r(WR + 20 * (n % NWR) + 4 * j, 4)}, {v(VRW)} offset:{L_W + (5 * self.LDS_W.index(n) + j) * 1024}", tag="wlr")
            e.all_tags.add(("w", n, j))
        R = [(n - 11, lambda n=n, j=j: wl_read(n, j)) for n in self.LDS_W for j in range(5)]
        for t in range(4):
            for n in range(14, 19):
                i = 5 * t + n - 14
                Q.append((max(9 + i // 4, cB), lambda n=n, t=t: self.h_load(n, t)))
        def issue(step):
            for i, (fr, f) in enumerate(Q):
                if fr <= step:
                    Q.pop(i); f(); return
        per = self.o("per", 4)
        lrate = self.o("lrate", 6)
        cnt = 0
        oep = list(self.o_epilogue)
        for n in range(14):
            if n == 2: assert not oep
            if self.o("zoom", 0) == 4 and n < 12: self.stamp(1 + n, True)
            if n == self.o("pubB", 4):
                e.wait(vm="sto"); self.publish(S_FLB)
            if n == self.o("pollB", 8): self.poll_issue(V_FB)
            if n == cB:
                self.poll_check(V_FB); self.stamp(9)
            for t in range(4):
                for j in range(5):
                    while any(tag not in self.issued_tags() for tag in (("w", n, j), ("h", n, t))): issue(n)
                    e.wait(vm=[("w", n, j), ("h", n, t)])
                    acc = v(BA + 20 * t + 4 * j, 4)
                    e.op(f"v_mfma_f32_16x16x32_bf16 {acc}, {r(WR + 20 * (n % NWR) + 4 * j, 4)}, {v(self.hreg(n, t), 4)}, {'0' if n == 0 else acc}")
                    cnt += lrate
                    if cnt >= 20:
                        cnt -= 20; issue(n)
                    elif oep:
                        oep.pop(0)()
                        if oep: oep.pop(0)()
                    elif setup: setup.pop(0)()
                    elif R and R[0][0] <= n and not wl_left and n >= self.o("wlr", 11): R.pop(0)[1]()
        assert not setup and not R
        e.wait(lg="wlr")
        self.stamp(10)
        e.wait(vm="g")
        for t in range(4): e.op(f"v_sub_f32 {v(VG1 + t)}, 1.0, {v(VG + t)}")
        def combine(t):
            A_ = AA + 20 * (t & 1)
            pre = [lambda i=i: e.op(f"v_mul_f32 {v(BA + 20 * t + i)}, {v(BA + 20 * t + i)}, {v(VG1 + t)}") for i in range(20)]
            ops = []
            for j in range(5):
                for i in range(4):
                    ops.append(lambda k=4 * j + i: e.op(f"v_fmac_f32 {v(BA + 20 * t + k)}, {v(A_ + k)}, {v(VG + t)}"))
                if t < 3:
                    ops.append(lambda j=j: e.op(f"ds_write_b128 {v(VRW)}, {v(BA + 20 * t + 4 * j, 4)} offset:{L_W + t * 5120 + j * 1024}", tag="red"))
            return pre, ops
        post = []
        for t in range(4):
            pre, mine = combine(t)
            q = post + pre
            i = 0
            need = [x for x in range(len(Q))]
            for n in range(14, 19):
                for j in range(5):
                    while any(tag not in self.issued_tags() for tag in (("w", n, j), ("h", n, t))): issue(99)
                    e.wait(vm=[("w", n, j), ("h", n, t)])
                    acc = v(AA + 20 * (t & 1) + 4 * j, 4)
                    e.op(f"v_mfma_f32_16x16x32_bf16 {acc}, {r(WR + 20 * (n % NWR) + 4 * j, 4)}, {v(self.hreg(n, t), 4)}, {'0' if n == 14 else acc}")
                    if Q and i % per == 0: issue(99)
                    if i >= 2:
                        for _ in range(2):
                            if q: q.pop(0)()
                    i += 1
            while q: q.pop(0)()
            post = mine
        assert not Q
        self.stamp(11)
        e.wait(lg="all")
        e.op("s_barrier")
        RD = 64
        of = ("", "sc1", "nt", "sc0 sc1")[self.o("outf", 0)]
        for sl in range(3):
            for j in range(5):
                e.op(f"ds_read_b128 {v(RD + 20 * sl + 4 * j, 4)}, {v(VRR + sl)} offset:{L_W + sl * 5120 + j * 1024}", tag=("rd", sl))
        for f in post: f()
        F = BA + 60
        for sl in range(3):
            e.wait(lg=("rd", sl))
            for i in range(10):
                e.op(f"v_pk_add_f32 {v(F + 2 * i, 2)}, {v(F + 2 * i, 2)}, {v(RD + 20 * sl + 2 * i, 2)}")
        for i in range(10):
            e.op(f"v_cvt_pk_bf16_f32 {v(AA + i)}, {v(F + 2 * i)}, {v(F + 2 * i + 1)}")
        e.op(f"buffer_store_dwordx4 {v(AA,4)}, {v(VOUT)}, {s(S_OUT,4)}, 0 offen {of}")
        e.op(f"buffer_store_dwordx4 {v(AA+4,4)}, {v(VOUT)}, {s(S_OUT,4)}, 0 offen offset:64 {of}")
        e.op(f"buffer_store_dwordx2 {v(AA+8,2)}, {v(VOUT+1)}, {s(S_OUT,4)}, 0 offen offset:128 {of}")
        self.stamp(12)
    def issued_tags(self): return self.e.all_tags

    def finish(self):
        e = self.e
        if self.o("leak", -1) >= 0:
            e.wait(vm="all")
            self.stamp(13)
            self.flush_stamp()
            e.op(f"s_memrealtime {s(S_MASK,2)}")
            e.op(f"v_readlane_b32 {s(S_T0)}, {v(V_STAMP)}, {self.o('leak0', 0)}")
            e.op(f"v_readlane_b32 {s(S_T1)}, {v(V_STAMP)}, {self.o('leak', 0)}")
            e.wait(lg="all")
            e.op(f"s_sub_u32 {s(S_T0)}, {s(S_T1)}, {s(S_T0)}")
            e.op(f"s_cmp_gt_u32 {s(S_T0)}, 10000")
            e.op(f"s_cselect_b32 {s(S_T0)}, 0, {s(S_T0)}")
            e.label("L_leak")
            e.op(f"s_memrealtime {s(S_VM,2)}")
            e.wait(lg="all")
            e.op(f"s_sub_u32 {s(S_T1)}, {s(S_VM)}, {s(S_MASK)}")
            e.op(f"s_cmp_lt_u32 {s(S_T1)}, {s(S_T0)}")
            e.op("s_cbranch_scc1 L_leak")
        if self.stamps:
            e.wait(vm="all")
            self.stamp(13)
            e.op(f"s_memtime {s(S_VM,2)}")
            self.flush_stamp()
            e.op(f"v_writelane_b32 {v(V_STAMP)}, {s(S_VM)}, {NSTAMP}")
            e.op(f"s_getreg_b32 {s(S_T0)}, hwreg(HW_REG_XCC_ID)")
            e.op(f"v_writelane_b32 {v(V_STAMP)}, {s(S_T0)}, 20")
            e.op(f"s_getreg_b32 {s(S_T0)}, hwreg(HW_REG_HW_ID)")
            e.op(f"v_writelane_b32 {v(V_STAMP)}, {s(S_T0)}, 21")
            e.op(f"s_lshl_b32 {s(S_T0)}, s2, 2")
            e.op(f"s_add_u32 {s(S_T0)}, {s(S_T0)}, {s(S_WAVE)}")
            e.op(f"s_lshl_b32 {s(S_T0)}, {s(S_T0)}, 7")
            e.op(f"s_add_u32 {s(S_T0)}, {s(S_T0)}, {WS_ST}")
            e.op(f"v_lshlrev_b32 {v(V_T0)}, 2, {v(V_LANE)}")
            e.op("s_mov_b32 exec_hi, 0")
            e.op(f"buffer_store_dword {v(V_STAMP)}, {v(V_T0)}, {s(S_WS,4)}, {s(S_T0)} offen")
        e.op("s_endpgm")

    def build(self):
        e = self.e
        self.prologue()
        self.stage1()
        self.attention()
        self.stage3()
        self.finish()
        self.att_lo()
        self.gate()
        self.spare()
        slow = [f for f in self.stubs if f.__name__ == "<lambda>"]
        for f in self.stubs:
            if f not in slow:
                e.vm, e.lg = [], []
                f()
        e.label("L_cold")
        for f in slow: f()
        e.label("L_end")
        e.op("s_endpgm")
        head = open("head.txt").read().split("\n")
        head = [l for l in head if l.startswith(";") and "@launch" not in l]
        txt = "\n".join(head) + f"\n; @launch grid=(256,1,1) block=(256,1,1) lds={LDS_BYTES}\n"
        txt += f""".amdgcn_target "amdgcn-amd-amdhsa--gfx950"
.text
.globl {NAME}_kernel
.p2align 8
.type {NAME}_kernel,@function
{NAME}_kernel:
"""
        txt += e.text()
        txt += f""".section .rodata,"a"
.p2align 6
.amdhsa_kernel {NAME}_kernel
  .amdhsa_next_free_vgpr 512
  .amdhsa_next_free_sgpr 102
  .amdhsa_accum_offset 256
  .amdhsa_group_segment_fixed_size 0
  .amdhsa_kernarg_size 80
  .amdhsa_user_sgpr_count 2
  .amdhsa_user_sgpr_kernarg_segment_ptr 1
  .amdhsa_system_sgpr_workgroup_id_x 1
.end_amdhsa_kernel
"""
        return txt

if __name__ == "__main__":
    out = sys.argv[1] if len(sys.argv) > 1 else "cdna_kernels/" + NAME + ".s"
    opt = {}
    for x in sys.argv[2:]:
        if "=" in x:
            k, val = x.split("="); opt[k] = int(val)
    g = Gen(stamps="--stamps" in sys.argv, opt=opt)
    txt = g.build()
    open(out, "w").write(txt)
    print("instructions", g.e.count, "pad states", g.e.nops, "autowaits", g.e.autowaits, file=sys.stderr)
    if "--nops" in sys.argv:
        for n, t in g.e.log_nops: print(n, t, file=sys.stderr)
```

```python
import sys, math, struct
from asmlib import *

NAME = "gated_mix__sliding_block__dense_activation_relu__prompt"

WS_QK = 0
WS_VT = WS_QK + 80 * 64 * 1024
WS_H  = WS_VT + 16 * 64 * 2560
WS_O  = WS_H + 64 * 110592
WS_WT = WS_O + 64 * 40960
WS_G  = WS_WT + 8 * 74 * 5120
WS_FL = WS_G + 16384
FL_A  = WS_FL
FL_B  = FL_A + 256 * 128
FL_D  = FL_B + 256 * 128
FL_DD = FL_D + 304 * 128
WS_ST = FL_DD + 8 * 128
WS_SIZE = WS_ST + 1024 * 128
OOB = 0x4000000
assert WS_SIZE < OOB

NW, NX = 5, 4
L_W = 0
L_X = NW * 16384
L_RT = L_X + 65536
L_K = L_X
L_V = L_K + 36 * 1024
LDS_BYTES = 163840

S_DM, S_HK = 0, 1
S_WAVE = 3
S_X, S_WA, S_WB, S_WS, S_OUT, S_DBG, S_MISC = 4, 8, 12, 16, 20, 24, 28
S_PWO, S_CG, S_XM0, S_PW2, S_PG = 32, 34, 35, 36, 38
S_T0, S_T1, S_T2, S_T3, S_T4, S_T5 = 40, 41, 42, 43, 44, 45
S_TAB = 46
TA = 48
(S_ST1, S_ST1B, S_ST2, S_ST2B, S_SCALE, S_FLA, S_FLB, S_RTS, S_RTF, S_RTSRC, S_BITS, S_TQ, S_QOFF) = range(TA, TA + 13)
S_KADJ, S_VOFF = TA + 13, TA + 16
S_OST, S_OST2 = TA + 19, TA + 20
S_HT = TA + 21
S_WT0, S_PFC, S_PFG, S_PFD, S_PFA, S_ASTEP, S_TB1 = range(TA + 25, TA + 32)
TB = 4
S_OT = TB
S_WT1, S_PFB, S_GW, S_OUTO = TB + 4, TB + 5, TB + 6, TB + 7
S_RED = TB + 8
S_PHI = 80
S_WM0, S_SPIN = 86, 87
S_STMP, S_NONCE, S_MASK, S_VM = 88, 90, 92, 94
S_C1, S_C2 = 96, 97
S_PILO, S_PIHI = 80, 81

V_LANE = 255
V_L16 = 254
V_NONCE = 252
V_T0, V_T1, V_T2, V_T3 = 248, 249, 250, 251
V_POLL = 246
V_FA, V_FD, V_FC, V_WV = 245, 244, 243, 242
V_KA, V_VA, V_HL, V_STAMP, V_ZERO, V_L16H = 241, 240, 239, 238, 237, 236
V_H, V_KT, V_Q, V_R = 232, 228, 231, 227
V_XD = 0
V_WD = 4
V_WD2 = 8
V_XR = 12
V_WR = 16
V_ST1 = 24
V_FR = 32
ACC = (128, 64)
A_X = 256
RT_D, RT_LD, RT_RD, RT_ST = 64, 76, 79, 82
SB = (0, 16, 176)
OO = (32, 48)
VQ, QM, VF, KF, CD, CE = 128, 144, 160, 168, 192, 208
BA = 144
HSLOT = (64, 80, 96, 112, 128, 48)
WR = 256
NH, NWR = 6, 12
V_O, V_FB, V_GW, V_RR, V_RW, V_OUT = 228, 245, 244, 224, 243, 240
NSTAMP = 14

def f32(x): return "0x%08x" % struct.unpack("<I", struct.pack("<f", x))[0]
LOG2E = math.log2(math.e)
QSCALE = LOG2E / math.sqrt(20.0)
NEGBIG = 0xff800000
SPIN_MAX = 0x40000

def rt_unit(U, w):
    ks, kg, u = U >> 2, U & 3, w >> 1
    if ks < 54: row, wo = 32 * ks + 16 * (kg >> 1) + 4 * (kg & 1) + 8 * u, 0
    else:
        a_, p = divmod(ks - 54, 5); wo = 1
        row = 40 * (4 * a_ + p) + 20 * (kg >> 1) + 4 * (kg & 1) + 8 * u if p < 4 else 40 * (4 * a_ + kg) + 16 + 20 * u
    return WS_WT + (148 * w + ks) * 5120 + kg * 256, (FL_D + U * 128 if w == 0 else OOB), row * 1280, wo

def table_entry(wg, w, map3):
    xcd, i = wg & 7, wg >> 3
    A = [0] * 32; B = [0] * 16
    def a(reg, val): A[reg - TA] = val & 0xffffffff
    def b(reg, val): B[reg - TB] = val & 0xffffffff
    rts, rtf, rtsrc, wo = rt_unit(wg, w)
    a(S_RTS, rts); a(S_RTF, rtf); a(S_RTSRC, rtsrc)
    if i < 30:
        u = 30 * (xcd >> 1) + i
        rb, cg = 8 * (xcd & 1) + (u & 7), u >> 3
        tb = 4 * rb + w
        if cg < 10:
            a(S_ST1, WS_QK + (8 * cg * 64 + tb) * 1024); a(S_ST1B, WS_QK + ((8 * cg + 1) * 64 + tb) * 1024)
        else:
            a(S_ST1, WS_VT + tb * 2560); a(S_ST1B, WS_VT + tb * 2560 + 1280)
        h0 = WS_H + tb * 110592 + cg * 8192
        a(S_ST2, h0 if cg < 14 else OOB); a(S_ST2B, h0 + 4096 if cg < 13 else OOB)
        a(S_SCALE, int(f32(QSCALE if cg < 5 else 1.0), 16))
        a(S_FLA, FL_A + (rb * 16 + cg) * 128 + 8 * w)
        a(S_TB1, tb)
    else:
        for m, reg in ((1, S_ST1), (2, S_ST1B), (3, S_SCALE)): a(reg, rt_unit(wg + 16 * m, w)[2])
        a(S_ST2, OOB); a(S_ST2B, OOB); a(S_FLA, OOB)
    P, rba = 2 * xcd + (i >> 4), i & 15
    F0, tq = (10 * P) >> 2, 4 * rba + w
    a(S_BITS, (P & 1) | (wo << 1)); a(S_TQ, tq)
    a(S_QOFF, WS_QK + (F0 * 64 + tq) * 1024)
    for k in range(3):
        t = max(4 * rba + 3 * w - 8 + k, 0)
        a(S_KADJ + k, WS_QK + ((40 + F0) * 64 + t - k) * 1024)
        a(S_VOFF + k, WS_VT + (P * 64 + t) * 2560)
    o0 = WS_O + tq * 40960 + (P >> 2) * 20 * 512
    a(S_OST, o0 + (P & 3) * 2048); a(S_OST2, o0 + (16 + (P & 3)) * 512)
    a(S_FLB, FL_B + (rba * 16 + P) * 128 + 8 * w)
    cq = F0 >> 3
    a(S_PFA, FL_A + cq * 128); a(S_ASTEP, 128 if ((F0 + 2) >> 3) > cq else 0)
    a(S_PFG, FL_A + (rba * 16 + 14) * 128 + 32 + 8 * w)
    a(S_PFD, FL_DD + xcd * 128)
    tb64, ng = (8 * (xcd >> 1) + (i & 7), 4 * (xcd & 1) + (i >> 3)) if not map3 else (4 * xcd + (i & 3), i >> 2)
    for t in range(4):
        T = (w + 1 + t) & 3
        tb = 2 * tb64 + (T >> 1)
        a(S_HT + t, WS_H + tb * 110592 + (T & 1) * 256 + w * 2048)
        b(S_OT + t, WS_O + tb * 40960 + (T & 1) * 256 + w * 5 * 2048)
    a(S_WT0, WS_WT + (ng * 74 + w) * 5120 + 2048)
    b(S_WT1, WS_WT + (ng * 74 + 54 + 5 * w) * 5120 + 2048)
    a(S_PFC, FL_A + (tb64 >> 1) * 2048 + 32 + 16 * (tb64 & 1))
    b(S_PFB, FL_B + ((tb64 >> 1) * 16 + 4 * w) * 128 + 16 * (tb64 & 1))
    b(S_GW, WS_G + (2 * tb64 + (w >> 1)) * 256 + 128 + (w & 1) * 64)
    b(S_OUTO, (64 * tb64 + 16 * w) * 1280 + ng * 160)
    for t in range(3): b(S_RED + t, L_W + ((w - 1 - t) & 3) * 20480 + t * 5120)
    b(S_RED + 3, L_W + w * 20480)
    return A + B

class Gen:
    def __init__(self, stamps=False, opt=None):
        self.e = Emit()
        self.stamps = stamps
        self.uid = 0
        self.opt = opt or {}
        self.stubs = []
        self.cold = []
        self.pending_stamp = None
        self.open_poll = None; self.open_nonce = False
        self.nt = "nt " if self.o("nt", 1) else ""
        self.in_side = False
    def o(self, k, d): return self.opt.get(k, d)
    def L(self, p):
        self.uid += 1
        return f"L_{p}_{self.uid}"
    def stamp(self, idx, z=False):
        if not self.stamps: return
        if self.o("zoom", 0) and not z and 0 < idx < 13: return
        self.flush_stamp()
        self.e.op(f"{'s_memtime' if self.o('cyc', 0) else 's_memrealtime'} {s(S_STMP, 2)}")
        self.pending_stamp = idx
    def flush_stamp(self):
        if self.pending_stamp is None: return
        e = self.e
        if "SMEM" in e.lg: e.wait(lg="all")
        e.op(f"v_writelane_b32 {v(V_STAMP)}, {s(S_STMP)}, {self.pending_stamp}")
        self.pending_stamp = None

    def srd_tail(self, d, nbytes):
        self.e.op(f"s_mov_b32 {s(d+2)}, {nbytes}")
        self.e.op(f"s_mov_b32 {s(d+3)}, 0x20000")
    def nonce_issue(self):
        self.e.op(f"buffer_load_dwordx2 {v(V_NONCE,2)}, {v(V_ZERO)}, {s(S_DBG,4)}, 0 offen sc1", tag="nonce")
        self.open_nonce = True
    def nonce_check(self):
        e = self.e
        st, bk = self.L("nonce"), self.L("nonce_ok")
        assert self.open_nonce
        e.wait(vm="nonce")
        e.op(f"v_readfirstlane_b32 {s(S_NONCE)}, {v(V_NONCE)}")
        e.op(f"v_readfirstlane_b32 {s(S_NONCE+1)}, {v(V_NONCE+1)}")
        e.op(f"s_cmp_eq_u32 {s(S_NONCE)}, 0")
        e.op(f"s_cbranch_scc1 {st}")
        e.label(bk)
        def stub():
            e.label(st, reset=True)
            e.op(f"s_mov_b32 {s(S_SPIN)}, 0")
            e.label(st + "_l")
            e.op("s_sleep 4")
            e.op(f"buffer_load_dwordx2 {v(V_NONCE,2)}, {v(V_ZERO)}, {s(S_DBG,4)}, 0 offen sc1")
            e.op(f"s_add_u32 {s(S_SPIN)}, {s(S_SPIN)}, 1")
            e.wait(vm="all")
            e.op(f"v_readfirstlane_b32 {s(S_NONCE)}, {v(V_NONCE)}")
            e.op(f"v_readfirstlane_b32 {s(S_NONCE+1)}, {v(V_NONCE+1)}")
            e.op(f"s_cmp_gt_u32 {s(S_SPIN)}, {SPIN_MAX}")
            e.op(f"s_cbranch_scc1 {bk}")
            e.op(f"s_cmp_eq_u32 {s(S_NONCE)}, 0")
            e.op(f"s_cbranch_scc1 {st}_l")
            e.op(f"s_branch {bk}")
        self.stubs.append(stub)
    def publish(self, soff, imm=0):
        e = self.e
        e.op("s_mov_b64 exec, 1")
        e.op(f"buffer_store_dwordx2 {v(V_NONCE,2)}, {v(V_ZERO)}, {s(S_WS,4)}, {s(soff)} offen offset:{imm} sc1", tag="flag")
        e.op("s_mov_b64 exec, -1")
    def poll_issue(self, vaddr):
        self.e.op(f"buffer_load_dwordx2 {v(V_POLL,2)}, {v(vaddr)}, {s(S_WS,4)}, 0 offen sc1", tag="poll")
        self.open_poll = vaddr
    def poll_check(self, vaddr, sid=0):
        e = self.e
        st, bk = self.L("poll"), self.L("poll_ok")
        assert self.open_poll == vaddr; self.open_poll = None
        e.wait(vm="poll")
        e.op(f"v_cmp_ne_u64 vcc, {s(S_NONCE,2)}, {v(V_POLL,2)}")
        e.op(f"s_cbranch_vccnz {st}")
        e.label(bk)
        def stub():
            e.label(st, reset=True)
            e.op(f"s_mov_b32 {s(S_SPIN)}, 0")
            e.op(f"s_branch {st}_f")
            e.label(st + "_l")
            e.op("s_sleep 4")
            e.label(st + "_f")
            e.op(f"buffer_load_dwordx2 {v(V_POLL,2)}, {v(vaddr)}, {s(S_WS,4)}, 0 offen sc1")
            e.op(f"s_add_u32 {s(S_SPIN)}, {s(S_SPIN)}, 1")
            e.wait(vm="all")
            e.op(f"v_cmp_ne_u64 vcc, {s(S_NONCE,2)}, {v(V_POLL,2)}")
            e.op(f"s_cmp_gt_u32 {s(S_SPIN)}, {SPIN_MAX}")
            e.op(f"s_cbranch_scc1 {bk}")
            e.op(f"s_cbranch_vccnz {st}_l")
            if self.stamps: e.op(f"v_writelane_b32 {v(V_STAMP)}, {s(S_SPIN)}, {16 + sid}")
            e.op(f"s_branch {bk}")
        self.stubs.append(stub)

    PI_A = [0, 2, 1, 4, 3, 6, 5, 8, 7, 9]
    PI_B = [1, -2, 2, -2, 2, -2, 2, -2, 2, -1]
    PI4 = [[0,4,1,2,3,8,5,6,7,9], [1,0,5,2,3,4,9,6,7,8], [2,0,1,6,3,4,5,7,8,9], [3,0,1,2,7,4,5,6,8,9]]
    UNIT = (128, 64 * 3840, 64 * 3456)
    def pi_setup(self, sphi, late):
        e = self.e
        mode = self.o("pi", 2)
        if mode == 2:
            if not late:
                e.op(f"s_and_b32 {s(sphi)}, {s(sphi)}, 1")
                for m in range(2): e.op(f"s_mul_i32 {s(S_PHI + 2 * m)}, {s(sphi)}, {self.UNIT[m]}")
            else:
                e.op(f"s_mul_i32 {s(S_PHI + 4)}, {s(S_PHI)}, {self.UNIT[2] // 128}")
                for m in range(3): e.op(f"s_lshl_b32 {s(S_PHI + 2 * m + 1)}, {s(S_PHI + 2 * m)}, 1")
        elif mode == 4 and not late:
            e.op(f"s_and_b32 {s(sphi)}, {s(sphi)}, 3")
            for i, tb in enumerate(self.PI4):
                lo = sum(k << (4 * n) for n, k in enumerate(tb[:8])); hi = tb[8] | (tb[9] << 4)
                if i == 0:
                    e.op(f"s_mov_b32 {s(S_PILO)}, {hex(lo)}")
                    e.op(f"s_mov_b32 {s(S_PIHI)}, {hex(hi)}")
                else:
                    e.op(f"s_cmp_eq_u32 {s(sphi)}, {i}")
                    e.op(f"s_cselect_b32 {s(S_PILO)}, {hex(lo)}, {s(S_PILO)}")
                    e.op(f"s_cselect_b32 {s(S_PIHI)}, {hex(hi)}, {s(S_PIHI)}")
    def pi_off(self, dst, st, m):
        e = self.e
        mode = self.o("pi", 2)
        if mode == 1: e.op(f"s_mov_b32 {s(dst)}, {st * self.UNIT[m]}")
        elif mode == 2:
            A, B = self.PI_A[st] * self.UNIT[m], self.PI_B[st]
            e.op(f"s_{'add' if B > 0 else 'sub'}_u32 {s(dst)}, {A}, {s(S_PHI + 2 * m + abs(B) - 1)}")
        else:
            e.op(f"s_bfe_u32 {s(dst)}, {s(S_PILO if st < 8 else S_PIHI)}, {hex((4 << 16) | (4 * (st % 8)))}")
            e.op(f"s_mul_i32 {s(dst)}, {s(dst)}, {self.UNIT[m]}")

    def prologue(self):
        e = self.e
        L = v(V_LANE); T0, T1, T2, T3 = v(V_T0), v(V_T1), v(V_T2), v(V_T3)
        e.op("s_cmp_ge_u32 s2, 256")
        e.op("s_cbranch_scc1 L_end")
        self.stamp(0)
        for d, off in ((S_X, 0), (S_WA, 8), (S_WB, 32), (S_WS, 72), (S_OUT, 56), (S_DBG, 64)):
            e.op(f"s_load_dwordx2 {s(d,2)}, s[0:1], {off}")
        e.op(f"s_getpc_b64 {s(S_TAB,2)}")
        e.label("L_pc")
        e.op("s_cmp_lt_u32 s2, 240")
        e.op("s_cbranch_scc1 L_nopf")
        e.op(f"s_bfe_u32 {s(S_T0)}, s2, 0x10003")
        e.op(f"v_lshl_add_u32 {T0}, v0, 1, {s(S_T0)}")
        e.op(f"v_lshlrev_b32 {T0}, 7, {T0}")
        e.op(f"v_min_u32 {T0}, L_cold-L_pc, {T0}")
        e.op(f"global_load_dword {v(224)}, {T0}, {s(S_TAB,2)}")
        e.vm = []
        e.label("L_nopf")
        if self.stamps: e.op(f"v_mov_b32 {v(V_STAMP)}, 0")
        e.op(f"v_lshrrev_b32 {T0}, 6, v0")
        e.op(f"v_and_b32 {L}, 63, v0")
        e.op(f"v_readfirstlane_b32 {s(S_WAVE)}, {T0}")
        e.op(f"s_bfe_u32 {s(S_T0)}, s2, 0x20001")
        e.op(f"s_mul_i32 {s(S_T0)}, {s(S_T0)}, 30")
        e.op(f"s_lshr_b32 {s(S_T1)}, s2, 3")
        e.op(f"s_add_u32 {s(S_T0)}, {s(S_T0)}, {s(S_T1)}")
        e.op(f"s_lshr_b32 {s(S_CG)}, {s(S_T0)}, 3")
        e.op(f"s_and_b32 {s(S_T0)}, {s(S_T0)}, 7")
        e.op(f"s_and_b32 {s(S_T1)}, s2, 1")
        e.op(f"s_lshl3_add_u32 {s(S_T0)}, {s(S_T1)}, {s(S_T0)}")
        e.op(f"s_add_u32 {s(S_T5)}, {s(S_T0)}, {s(S_CG)}")
        self.pi_setup(S_T5, False)
        e.op(f"s_lshl2_add_u32 {s(S_T0)}, {s(S_T0)}, {s(S_WAVE)}")
        e.op(f"s_mul_i32 {s(S_T0)}, {s(S_T0)}, {32 * 1280}")
        e.op(f"s_lshl_b32 {s(S_T4)}, {s(S_CG)}, 8")
        e.op(f"s_movk_i32 {s(S_T2)}, 1280")
        e.op(f"s_movk_i32 {s(S_T3)}, {8 * 1280 - 1024}")
        e.op(f"v_lshrrev_b32 {T1}, 4, {L}")
        e.op(f"v_and_b32 {T2}, 7, {L}")
        e.op(f"v_xor_b32 {T2}, {T2}, {T1}")
        e.op(f"v_lshl_add_u32 {T2}, {T2}, 4, {s(S_T0)}")
        e.op(f"v_lshrrev_b32 {T0}, 3, {L}")
        e.op(f"v_mad_u32_u24 {v(V_XD)}, {T0}, {s(S_T2)}, {T2}")
        e.op(f"v_xad_u32 {v(V_XD+1)}, {v(V_XD)}, 64, {s(S_T3)}")
        e.op(f"v_add_u32 {v(V_XD+2)}, {2 * (8 * 1280 - 1024)}, {v(V_XD)}")
        e.op(f"v_add_u32 {v(V_XD+3)}, {2 * (8 * 1280 - 1024)}, {v(V_XD+1)}")
        e.op(f"v_lshlrev_b32 {T2}, 2, {T1}")
        e.op(f"v_and_b32 {T3}, 15, {L}")
        e.op(f"v_xor_b32 {T2}, {T2}, {T3}")
        e.op(f"v_lshl_add_u32 {T2}, {T2}, 4, {s(S_T4)}")
        e.op(f"v_lshl_add_u32 {T1}, {s(S_WAVE)}, 4, {T1}")
        e.op(f"s_movk_i32 {s(S_T2)}, 3840")
        e.op(f"v_mad_u32_u24 {v(V_WD)}, {T1}, {s(S_T2)}, {T2}")
        for n in range(1, 4): e.op(f"v_add_u32 {v(V_WD+n)}, {n * (4 * 3840 - 1024)}, {v(V_WD)}")
        e.op(f"s_lshl_b32 {s(S_WM0)}, {s(S_WAVE)}, 12")
        e.op(f"s_lshl2_add_u32 {s(S_XM0)}, {s(S_WM0)}, {L_X}")
        self.srd_tail(S_X, 2048 * 1280)
        self.srd_tail(S_WA, 640 * 3840)
        e.op(f"s_lshl2_add_u32 {s(S_T0)}, s2, {s(S_WAVE)}")
        e.op(f"s_mul_i32 {s(S_T0)}, {s(S_T0)}, 192")
        e.label("L_pc2")
        e.op(f"s_add_u32 {s(S_TAB)}, {s(S_TAB)}, wave_table@rel32@lo+(L_pc2+4-L_pc)")
        e.op(f"s_addc_u32 {s(S_TAB+1)}, {s(S_TAB+1)}, wave_table@rel32@hi+(L_pc2+12-L_pc)")
        e.op(f"s_add_u32 {s(S_TAB)}, {s(S_TAB)}, {s(S_T0)}")
        e.op(f"s_addc_u32 {s(S_TAB+1)}, {s(S_TAB+1)}, 0")
        e.wait(lg="all")
        self.flush_stamp()
        e.op(f"s_load_dwordx2 {s(S_PWO,2)}, s[0:1], 16")
        e.op(f"s_load_dwordx4 {s(S_PW2,4)}, s[0:1], 40")
        e.op(f"s_load_dwordx16 {s(TA,16)}, {s(S_TAB,2)}, 0")
        e.op(f"s_load_dwordx16 {s(TA+16,16)}, {s(S_TAB,2)}, 64")
        e.op("s_cmp_ge_u32 s2, 240")
        e.op("s_cbranch_scc1 L_spare")
        self.spare_snap = e.snapshot()

    def common_setup(self):
        e = self.e
        L = v(V_LANE)
        self.srd_tail(S_WB, 640 * 3456)
        self.srd_tail(S_WS, WS_SIZE)
        self.srd_tail(S_OUT, 2048 * 1280)
        self.srd_tail(S_DBG, 256)
        e.op(f"s_mov_b32 {s(S_MISC+3)}, 0x20000")
        e.op(f"v_lshlrev_b32 {v(V_L16)}, 4, {L}")
        e.op(f"v_mov_b32 {v(V_ZERO)}, 0")
        e.op(f"v_lshrrev_b32 {v(V_L16H)}, 5, {L}")
        e.op(f"v_lshl_add_u32 {v(V_L16H)}, {v(V_L16H)}, 26, {v(V_L16)}")
        e.op(f"s_mov_b32 {s(S_VM)}, 0xfffff")
        e.op(f"s_mov_b32 {s(S_VM+1)}, 0xfffff")
        e.op(f"s_mov_b32 {s(S_C1)}, 0x10000")
        e.op(f"s_mov_b32 {s(S_C2)}, 0x20000")

    def dma(self, st, m):
        e = self.e
        dm = S_T5 if st < 2 else S_DM
        if m == 0: srd, vd, k, base, lo = S_X, V_XD, st, S_XM0, (st % NX) * 4096
        elif st < 10: srd, vd, k, base, lo = S_WA, V_WD, st, S_WM0, L_W + (st % NW) * 16384
        else: srd, vd, k, base, lo, m = S_WB, V_WD2, st - 10, S_WM0, L_W + (st % NW) * 16384, 2
        def f(n):
            if n == 0:
                e.op(f"s_add_u32 m0, {s(base)}, {lo}")
                self.pi_off(dm, k, m)
            e.op(f"buffer_load_dwordx4 {v(vd+n)}, {s(srd,4)}, {s(dm)} offen offset:{n*1024} lds", tag=("d", st))
        return [lambda n=n: f(n) for n in range(4)]
    def dmas(self, st): return (self.dma(st, 0) if st < 10 else []) + self.dma(st, 1)

    def stage1_tables(self):
        e = self.e
        L = v(V_LANE); T0, T1, T2, T3 = v(V_T0), v(V_T1), v(V_T2), v(V_T3)
        e.op(f"s_movk_i32 {s(S_T2)}, 3456")
        e.op(f"v_mad_u32_u24 {v(V_WD2)}, {T1}, {s(S_T2)}, {T2}")
        for n in range(1, 4): e.op(f"v_add_u32 {v(V_WD2+n)}, {n * (4 * 3456 - 1024)}, {v(V_WD2)}")
        e.op(f"v_and_b32 {T0}, 31, {L}")
        e.op(f"v_bfe_u32 {T1}, {L}, 1, 3")
        e.op(f"v_lshrrev_b32 {T2}, 5, {L}")
        e.op(f"v_xor_b32 {T1}, {T1}, {T2}")
        e.op(f"v_lshl_add_u32 {T1}, {T1}, 4, {s(S_XM0)}")
        e.op(f"v_lshl_add_u32 {v(V_XR)}, {T0}, 7, {T1}")
        for ks in range(1, 4): e.op(f"v_xor_b32 {v(V_XR+ks)}, {ks * 32}, {v(V_XR)}")
        e.op(f"v_bfe_u32 {T0}, {L}, 2, 2")
        e.op(f"v_mul_u32_u24 {T0}, 320, {T0}")
        e.op(f"v_lshl_add_u32 {T0}, {T2}, 11, {T0}")
        e.op(f"v_bfe_u32 {T3}, {L}, 4, 1")
        e.op(f"v_lshl_add_u32 {T0}, {T3}, 5, {T0}")
        e.op(f"v_and_b32 {T3}, 3, {L}")
        e.op(f"v_lshl_add_u32 {v(V_WR)}, {T3}, 3, {T0}")
        for j in range(1, 4): e.op(f"v_xor_b32 {v(V_WR+j)}, {j * 64}, {v(V_WR)}")
        for j in range(4): e.op(f"v_add_u32 {v(V_WR+4+j)}, 0x10000, {v(V_WR+j)}")
        lv, ld = self.L("st1v"), self.L("st1d")
        e.op(f"s_cmp_ge_u32 {s(S_CG)}, 10")
        e.op(f"s_cbranch_scc1 {lv}")
        for j in range(4): e.op(f"v_add_u32 {v(V_ST1+j)}, {j * 131072}, {v(V_L16)}")
        e.op(f"s_branch {ld}")
        e.label(lv)
        e.op(f"s_lshl_b32 {s(S_T1)}, {s(S_CG)}, 7")
        e.op(f"s_sub_u32 {s(S_T1)}, {s(S_T1)}, 1280")
        e.op(f"v_and_or_b32 {T0}, {L}, 31, {s(S_T1)}")
        e.op(f"v_mul_u32_u24 {T2}, 640, {T2}")
        e.op(f"s_mov_b32 {s(S_T2)}, {64 * 2560 - 640}")
        for j in range(4):
            e.op(f"v_mul_u32_u24 {T3}, 1639, {T0}")
            e.op(f"v_lshrrev_b32 {T3}, 16, {T3}")
            e.op(f"v_lshl_add_u32 {T1}, {T0}, 4, {T2}")
            e.op(f"v_mad_u32_u24 {v(V_ST1+j)}, {T3}, {s(S_T2)}, {T1}")
            if j < 3: e.op(f"v_add_u32 {T0}, 32, {T0}")
        e.label(ld)

    def late_lane_tables(self):
        e = self.e
        L = v(V_LANE); T0, T1, T2, T3 = v(V_T0), v(V_T1), v(V_T2), v(V_T3)
        e.op(f"v_and_b32 {T0}, 31, {L}")
        e.op(f"v_lshrrev_b32 {T1}, 5, {L}")
        e.op(f"v_lshlrev_b32 {v(V_R)}, 2, {T0}")
        e.op(f"s_lshl_b32 {s(S_T1)}, {s(S_WAVE)}, 10")
        e.op(f"s_add_u32 {s(S_T2)}, {s(S_T1)}, {L_K}")
        e.op(f"v_add_u32 {v(V_KA)}, {s(S_T2)}, {v(V_L16)}")
        e.op(f"s_mul_i32 {s(S_T1)}, {s(S_T1)}, 3")
        e.op(f"s_add_u32 {s(S_T1)}, {s(S_T1)}, {L_V}")
        e.op(f"v_lshl_add_u32 {T2}, {T1}, 7, {v(V_L16)}")
        e.op(f"v_add_u32 {v(V_VA)}, {s(S_T1)}, {T2}")
        e.op(f"v_lshlrev_b32 {T2}, 2, {T1}")
        e.op(f"v_sub_u32 {T2}, {T0}, {T2}")
        e.op(f"v_cvt_f32_i32 {T2}, {T2}")
        e.op(f"v_mov_b32 {T3}, {f32(2.0 ** 100)}")
        for rr in range(16):
            key = 8 * (rr >> 2) + (rr & 3)
            e.op(f"v_fmaak_f32 {v(CE + rr)}, {T2}, {T3}, {f32((0.5 - key) * 2.0 ** 100)}")
            e.op(f"v_min_f32 {v(CD + rr)}, 0, {v(CE + rr)}")
            e.op(f"v_min_f32 {v(CE + rr)}, -{v(CE + rr)}, 0")
        e.op(f"v_lshrrev_b32 {T1}, 4, {L}")
        e.op(f"v_lshl_add_u32 {v(V_HL)}, {T1}, 8, {v(V_L16)}")
    def late_table_use(self):
        e = self.e
        L = v(V_LANE); T0, T1, T2, T3 = v(V_T0), v(V_T1), v(V_T2), v(V_T3)
        for t in range(4): e.op(f"v_add_u32 {v(V_H + t)}, {s(S_HT + t)}, {v(V_HL)}")
        for k in range(3): e.op(f"v_add_u32 {v(V_KT + k)}, {s(S_KADJ + k)}, {v(V_L16)}")
        e.op(f"v_add_u32 {v(V_Q)}, {s(S_QOFF)}, {v(V_L16)}")
        e.op(f"v_lshl_add_u32 {v(V_R)}, {s(S_TQ)}, 8, {v(V_R)}")
        e.op(f"v_add_u32 {v(V_R)}, {WS_G}, {v(V_R)}")
        e.op(f"v_mov_b32 {v(V_FD)}, {s(S_PFD)}")
        e.op(f"v_lshrrev_b32 {T0}, 1, {L}")
        e.op(f"v_min_u32 {T0}, 14, {T0}")
        e.op(f"v_and_b32 {T1}, 1, {L}")
        e.op(f"v_lshl_add_u32 {T1}, {T1}, 3, {s(S_PFC)}")
        e.op(f"v_lshl_add_u32 {v(V_FC)}, {T0}, 7, {T1}")
        e.op(f"v_writelane_b32 {v(V_FC)}, {s(S_PFG)}, 63")
        e.op(f"s_lshr_b32 {s(S_T0)}, {s(S_TQ)}, 2")
        e.op(f"s_sub_u32 {s(S_T0)}, {s(S_T0)}, 2")
        e.op(f"v_lshrrev_b32 {T0}, 4, {L}")
        e.op(f"v_min_u32 {T0}, 2, {T0}")
        e.op(f"v_add_u32 {T0}, {s(S_T0)}, {T0}")
        e.op(f"v_max_i32 {T0}, 0, {T0}")
        e.op(f"v_and_b32 {T1}, 3, {L}")
        e.op(f"v_lshl_add_u32 {T1}, {T1}, 3, {s(S_PFA)}")
        e.op(f"v_lshl_add_u32 {T0}, {T0}, 11, {T1}")
        e.op(f"v_bfe_u32 {T1}, {L}, 2, 1")
        e.op(f"v_mad_u32_u24 {T0}, {T1}, {s(S_ASTEP)}, {T0}")
        e.op(f"v_cmp_gt_u32 vcc, 48, {L}")
        e.op(f"v_bfe_u32 {T1}, {L}, 3, 1")
        e.op(f"v_add_u32 {T1}, 1, {T1}")
        e.op(f"v_mul_u32_u24 {T1}, 640, {T1}")
        e.op(f"v_cndmask_b32 {T1}, 0, {T1}, vcc")
        e.op(f"v_add_u32 {v(V_FA)}, {T0}, {T1}")

    def rt_tables(self, base):
        e = self.e
        L = v(V_LANE); T0, T1, T2, T3 = v(V_T0), v(V_T1), v(V_T2), v(V_T3)
        P0, P1 = v(V_POLL), v(V_POLL + 1)
        e.op(f"s_and_b32 {s(S_T0)}, {s(S_WAVE)}, 1")
        e.op(f"s_mul_i32 {s(S_T0)}, {s(S_T0)}, 160")
        e.op(f"v_add_u32 {T0}, {s(S_T0)}, {L}")
        for i in range(3):
            e.op(f"v_mul_u32_u24 {T1}, 820, {T0}")
            e.op(f"v_lshrrev_b32 {T1}, 16, {T1}")
            e.op(f"v_lshlrev_b32 {T1}, 2, {T1}")
            e.op(f"v_xor_b32 {T1}, {T0}, {T1}")
            e.op(f"v_lshlrev_b32 {v(RT_LD + i)}, 4, {T1}")
            if i < 2: e.op(f"v_add_u32 {T0}, 64, {T0}")
        e.op(f"v_lshrrev_b32 {T0}, 4, {L}")
        e.op(f"v_and_b32 {T1}, 3, {L}")
        e.op(f"v_bfe_u32 {P1}, {L}, 2, 2")
        e.op(f"v_lshlrev_b32 {T3}, 3, {P1}")
        e.op(f"v_mul_u32_u24 {P1}, 1280, {P1}")
        e.op(f"v_add_u32 {P1}, {base}, {P1}")
        e.op(f"s_mul_i32 {s(S_T0)}, {s(S_WAVE)}, 40")
        e.op(f"v_and_b32 {P0}, 1, {T0}")
        e.op(f"v_lshl_add_u32 {T2}, {T1}, 1, {P0}")
        e.op(f"v_lshrrev_b32 {v(RT_D)}, 5, {L}")
        e.op(f"v_lshl_add_u32 {T2}, {v(RT_D)}, 3, {T2}")
        e.op(f"v_add_u32 {T2}, {s(S_T0)}, {T2}")
        for i in range(2):
            if i: e.op(f"v_add_u32 {T2}, 20, {T2}")
            e.op(f"v_xor_b32 {v(RT_D)}, {T2}, {T3}")
            e.op(f"v_lshl_add_u32 {v(RT_RD + i)}, {v(RT_D)}, 3, {P1}")
        e.op(f"v_mad_u32_u24 {T2}, {P0}, 20, {T1}")
        e.op(f"v_add3_u32 {T2}, {T2}, {s(S_T0)}, 16")
        e.op(f"v_xor_b32 {T2}, {T2}, {T3}")
        e.op(f"v_lshl_add_u32 {v(RT_RD + 2)}, {T2}, 3, {P1}")
        e.op(f"v_mul_u32_u24 {T0}, {1024 - 256}, {T0}")
        e.op(f"v_add_u32 {v(RT_ST)}, {T0}, {v(V_L16)}")
        e.op(f"v_add_u32 {v(RT_ST + 1)}, {74 * 5120}, {v(RT_ST)}")
        e.op(f"s_mov_b32 {s(S_T0)}, {74 * 5120 - 256}")
        e.op(f"v_mad_u32_u24 {T0}, {P0}, {s(S_T0)}, {v(V_L16H)}")
        e.op(f"v_add_u32 {v(RT_ST + 2)}, 4096, {T0}")
    def rt_srd(self):
        e = self.e
        e.op(f"s_bitcmp1_b32 {s(S_BITS)}, 1")
        e.op(f"s_cselect_b64 {s(S_MISC,2)}, {s(S_PWO,2)}, {s(S_PW2,2)}")
        e.op(f"s_mov_b32 {s(S_MISC+2)}, {640 * 1280}")
        e.op(f"s_cselect_b32 {s(S_MISC+2)}, {s(S_MISC+2)}, {1728 * 1280}")
        e.op(f"s_mul_i32 {s(S_T0)}, {s(S_WAVE)}, 2560")
    def rt_loads(self, base, src):
        e = self.e
        for i in range(3):
            e.op(f"s_add_u32 m0, {s(S_T0)}, {base + i * 1024}")
            if i == 2: e.op("s_mov_b32 exec_hi, 0")
            e.op(f"buffer_load_dwordx4 {v(RT_LD + i)}, {s(S_MISC,4)}, {s(src)} offen {self.nt}lds", tag="rl")
            if i == 2: e.op("s_mov_b32 exec_hi, -1")
    def rt_reads(self, lo_=0, D=RT_D):
        return [lambda i=i, u=u: self.e.op(f"ds_read_b64_tr_b16 {v(D + 4 * i + 2 * u, 2)}, {v(RT_RD + i)} offset:{lo_ + u * 5120}", tag=("rt", i))
                for i in range(3) for u in range(2)]
    def rt_stores(self, D=RT_D, so=S_RTS):
        e = self.e
        def st(i):
            e.wait(lg=("rt", i))
            e.op(f"buffer_store_dwordx4 {v(D + 4 * i, 4)}, {v(RT_ST + i)}, {s(S_WS,4)}, {s(so)} offen sc1", tag="rs")
        return [lambda i=i: st(i) for i in range(3)]

    EARLY_W = (8, 9, 10, 11)
    def w_loads(self, n):
        e = self.e
        def f(j):
            dst = r(WR + 20 * (n % NWR) + 4 * j, 4)
            if n == 13:
                if j in (0, 4):
                    e.op(f"s_add_u32 {s(S_T2)}, {s(S_WT0)}, {n * 4 * 5120 - 2048 + (4096 if j else 0)}")
                    e.op(f"s_cmp_lt_u32 {s(S_WAVE)}, 2")
                    e.op(f"s_cselect_b32 {s(S_T2)}, {s(S_T2)}, {OOB}")
                e.op(f"buffer_load_dwordx4 {dst}, {v(V_L16)}, {s(S_WS,4)}, {s(S_T2)} offen offset:{(j & 3) * 1024} sc1", tag=("w", n, j))
                return
            if j == 0:
                base, off = (S_WT0, n * 4 * 5120) if n < 14 else (S_WT1, (n - 14) * 5120)
                if self.wv is None or self.wv[0] != base:
                    e.op(f"v_add_u32 {v(V_WV)}, {s(base)}, {v(V_L16)}")
                    self.wv = (base, 0)
                if off != self.wv[1]: e.op(f"v_add_u32 {v(V_WV)}, {off - self.wv[1]}, {v(V_WV)}")
                self.wv = (base, off)
            e.op(f"global_load_dwordx4 {dst}, {v(V_WV)}, {s(S_WS,2)} offset:{j * 1024 - 2048} sc1", tag=("w", n, j))
        return [lambda j=j: f(j) for j in range(5)]
    @property
    def TM(self): return self.o("tm", 3)
    def hreg(self, n, t):
        n0 = 19 - self.TM
        if n < n0: return HSLOT[n % NH] + 4 * t
        i = self.TM * t + (n - n0)
        return HSLOT[(n0 + i // 4) % NH] + 4 * (i % 4)
    def h_load(self, n, t):
        e = self.e
        dst = v(self.hreg(n, t), 4)
        if n >= 14:
            q = n - 14
            so = ("0", s(S_C1), s(S_C2))[q >> 1]
            e.op(f"buffer_load_dwordx4 {dst}, {v(V_O + t)}, {s(S_WS,4)}, {so} offen offset:{(q & 1) * 2048} sc1", tag=("h", n, t))
            return
        if t == 0 and n > 0:
            e.op(f"s_mov_b32 {s(S_HK)}, {n * 8192}")
            if n == 13:
                e.op(f"s_cmp_lt_u32 {s(S_WAVE)}, 2")
                e.op(f"s_cselect_b32 {s(S_HK)}, {s(S_HK)}, {OOB}")
            self.hk = n
        assert n == 0 or self.hk == n
        e.op(f"buffer_load_dwordx4 {dst}, {v(V_H + t)}, {s(S_WS,4)}, {s(S_HK) if n else 0} offen sc1", tag=("h", n, t))
    def kvq_loads(self):
        e = self.e
        so = ("0", s(S_C1), s(S_C2))
        def q(f): e.op(f"buffer_load_dwordx4 {v(VQ + 4 * f, 4)}, {v(V_Q)}, {s(S_WS,4)}, {so[f]} offen sc1", tag="q")
        def k(f, i):
            if f == 0 and i == 0: e.op(f"s_mul_i32 {s(S_T5)}, {s(S_WAVE)}, 3072")
            if i == 0: e.op(f"s_add_u32 m0, {s(S_T5)}, {L_K + f * 12288}")
            e.op(f"buffer_load_dwordx4 {v(V_KT + i)}, {s(S_WS,4)}, {so[f]} offen offset:{i * 1024} sc1 lds", tag="kd")
        def vv(i, n):
            if i == 0 and n == 0: e.op(f"s_mul_i32 {s(S_T5)}, {s(S_WAVE)}, 9216")
            if n == 0: e.op(f"s_add_u32 m0, {s(S_T5)}, {L_V + i * 3072}")
            e.op(f"buffer_load_dwordx4 {v(V_L16H if n == 2 else V_L16)}, {s(S_WS,4)}, {s(S_VOFF + i)} offen offset:{n * 1024} sc1 lds", tag="vd")
        return [lambda f=f: q(f) for f in range(3)] + [lambda f=f, i=i: k(f, i) for f in range(3) for i in range(3)] + \
               [lambda i=i, n=n: vv(i, n) for i in range(3) for n in range(3)]

    def ksj(self, st, f):
        return (f & 3, f >> 2) if st % 10 == 9 else (f >> 2, f & 3)
    def w_read(self, st, f, u):
        ks, j = self.ksj(st, f)
        off = L_W + (st % NW) * 16384 + ks * 4096 + u * 1024
        ad = V_WR + j
        if off >= 65536: off -= 65536; ad += 4
        m = 16 * st + f
        self.e.op(f"ds_read_b64_tr_b16 {v(V_FR + 4 * (m % 8) + 2 * u, 2)}, {v(ad)} offset:{off}", tag=("w", m))
    def x_read(self, st, ks):
        self.e.op(f"ds_read_b128 {r(A_X + 16 * st + 4 * ks, 4)}, {v(V_XR + ks)} offset:{(st % NX) * 4096}", tag=("x", st, ks))

    def stage1_fill(self):
        e = self.e
        fill = {m: [] for m in range(-1, 320)}
        def at(m, f): fill[max(m, -1)].append(f)
        span = self.o("rspan", 13)
        for st in range(20):
            b = 16 * st - self.o("lead", 4)
            def bar(st=st):
                assert ("d", st) in e.all_tags
                e.wait(vm=("d", st), lg="all")
                e.op("s_barrier")
            at(b, bar)
            if st < 10:
                for ks in range(4): at(b + (ks if st == 9 else 3 * ks), lambda st=st, ks=ks: self.x_read(st, ks))
            for rho in range(32):
                g = b + rho * span // 32
                assert g >= 16 * st + (rho >> 1) - 8
                at(g, lambda st=st, rho=rho: self.w_read(st, rho >> 1, rho & 1))
        return fill

    def vm_schedule(self, fill, queues, m0, m1, thr):
        lag = 0
        for m in range(m0, m1):
            lag = max(0, lag - 32)
            heads = [q for q in queues if q and q[0][0] <= m]
            if not heads: continue
            q = min(heads, key=lambda q: q[0][1])
            if q[0][1] <= m or lag <= thr:
                rel, dl, cost, f = q.pop(0)
                fill[m].append(f)
                lag = min(lag, 3 * 72) + cost
        assert not any(queues), [len(q) for q in queues]

    def p1_epilogue_ops(self):
        e = self.e
        groups = []
        for j in range(4):
            for h in range(2):
                A = ACC[0] + 16 * j + 8 * h
                ops = [lambda A=A, q=q: e.op(f"v_mul_f32 {v(A+q)}, {s(S_SCALE)}, {v(A+q)}") for q in range(8)]
                ops += [lambda A=A, q=q: e.op(f"v_cvt_pk_bf16_f32 {v(A+q)}, {v(A+2*q)}, {v(A+2*q+1)}") for q in range(4)]
                ops.append(lambda A=A, h=h, j=j: e.op(f"buffer_store_dwordx4 {v(A,4)}, {v(V_ST1+j)}, {s(S_WS,4)}, {s(S_ST1B if h else S_ST1)} offen sc1", tag="st1"))
                groups.append(ops)
        return groups
    def p2_epilogue_ops(self):
        e = self.e
        groups = []
        for j in range(4):
            for h in range(2):
                A = ACC[1] + 16 * j + 8 * h
                ops = [lambda A=A, q=q: e.op(f"v_cvt_pk_bf16_f32 {v(A+q)}, {v(A+2*q)}, {v(A+2*q+1)}") for q in range(4)]
                ops += [lambda A=A, q=q: e.op(f"v_pk_max_i16 {v(A+q)}, {v(A+q)}, 0") for q in range(4)]
                ops.append(lambda A=A, h=h, j=j: e.op(f"buffer_store_dwordx4 {v(A,4)}, {v(V_L16)}, {s(S_WS,4)}, {s(S_ST2B if j >= 2 else S_ST2)} offen offset:{(j & 1) * 2048 + h * 1024} sc1", tag="st2"))
                groups.append(ops)
        return groups

    def stage1_stream(self, fill, m0, m1, swap):
        e = self.e
        def tags(m):
            st, f = divmod(m, 16)
            return [("w", m), ("x", st, self.ksj(st, f)[0])]
        for m in range(m0, m1):
            st, f = divmod(m, 16)
            ks, j = self.ksj(st, f)
            if any(t in e.lg for t in tags(m)):
                e.wait(lg=sum([tags(m + d) for d in range(self.o("wgrp", 2))], []))
            acc = v(ACC[st // 10] + 16 * j, 16)
            wf = v(V_FR + 4 * (m % 8), 4)
            xf = r(A_X + 16 * (st % 10) + 4 * ks, 4)
            c = "0" if (st % 10 == 0 and ks == 0) else acc
            if swap: e.op(f"v_mfma_f32_32x32x16_bf16 {acc}, {xf}, {wf}, {c}")
            else: e.op(f"v_mfma_f32_32x32x16_bf16 {acc}, {wf}, {xf}, {c}")
            for fn in fill[m]: fn()
            if m < 160 and self.o("p1nop", 0) and m % 2 == 1: e.op(f"s_nop {self.o('p1nop', 0) - 1}")

    def ones_init(self):
        return [lambda i=i: self.e.op(f"v_mov_b32 {v(VF + i)}, 0x3f803f80") for i in range(8)]

    def stage1(self):
        e = self.e
        lead = self.o("lead", 4)
        for f in self.dmas(0): f()
        self.pi_setup(None, True)
        self.common_setup()
        self.stage1_tables()
        d1 = self.dmas(1)
        for f in d1[:4]: f()
        self.rt_tables(L_RT)
        self.late_lane_tables()
        for f in d1[4:]: f()
        e.wait(lg="all")
        self.flush_stamp()
        self.rt_srd()
        self.rt_loads(L_RT, S_RTSRC)
        self.late_table_use()
        fill = self.stage1_fill()
        vfill = {m: [] for m in range(-1, 320)}
        dq = []
        for st in range(2, 20):
            d = self.dmas(st)
            rel = 16 * (st - (2 if st < 10 else 4)) - lead + 1
            g0 = max(16 * (st - 2) - lead + 1, 0); g1 = 16 * (st - 1) - lead - 1
            dq += [(rel, g0 + i * (g1 - g0) // len(d), 72, f) for i, f in enumerate(d)]
        pA, cA = self.o("pollA", 258), self.o("chkA", 278)
        kv = self.kvq_loads()
        dq += [(cA + 1, cA + 1 + i * (318 - cA) // len(kv), 72, f) for i, f in enumerate(kv)]
        rs0 = self.o("rs0", 46)
        for i, f in enumerate(self.rt_reads()): fill[48 - lead - 4 + i // 2].append(f)
        sq = [(rs0 + 6 * i, rs0 + 6 * i, 128, f) for i, f in enumerate(self.rt_stores())]
        sq.append((rs0 + 14, rs0 + 14, 20, self.nonce_issue))
        pd = (rs0 + 14 + 24 + lead + 15) // 16 * 16 - lead
        fill[pd].insert(0, self.nonce_check)
        sq.append((pd + 1, pd + 1, 20, lambda: self.publish(S_RTF)))
        sp, e0 = self.o("epi", 5), 160
        for g, ops in enumerate(self.p1_epilogue_ops()):
            for i, f in enumerate(ops[:-1]): vfill[e0 + sp * g + i * sp // (len(ops) - 1)].append(f)
            sq.append((e0 + sp * (g + 1), e0 + sp * (g + 1), self.o("stc", 160), ops[-1]))
        def pub_a():
            e.wait(vm="st1")
            self.publish(S_FLA)
        pD, cD = self.o("pollD", 222), self.o("chkD", 240)
        sq += sorted([(pD, pD, 20, lambda: self.poll_issue(V_FD)), (self.o("pubA", 224), self.o("pubA", 224), 20, pub_a)], key=lambda x: x[0])
        vfill[cD].append(lambda: self.poll_check(V_FD, 1))
        sq.append((pA, pA, 30, lambda: self.poll_issue(V_FA)))
        vfill[cA].append(lambda: self.poll_check(V_FA, 0))
        vfill[cA].append(lambda: self.stamp(3))
        ew = sum([self.w_loads(n) for n in self.EARLY_W], [])
        wq = [(cD + 1, cA - 2 * (len(ew) - i), 72, f) for i, f in enumerate(ew)]
        self.vm_schedule(fill, [dq, sq, wq], 0, 320, self.o("thr", 40))
        for i, f in enumerate(self.ones_init()): vfill[210 + i].append(f)
        epi2 = self.p2_epilogue_ops()
        self.p2_stores_left = [g[-1] for g in epi2]
        va = sum([g[:-1] for g in epi2], [])
        for m, cnt in ((310, 2), (311, 2), (312, 3), (313, 5), (314, 4), (315, 5), (316, 5), (317, 5), (318, 1)):
            for _ in range(cnt): vfill[m].append(va.pop(0))
        self.p2_valu_left = va
        z = self.o("zoom", 0)
        if z in (1, 2):
            for k in range(11):
                m = min(160 * (z - 1) + 16 * k - 1, 319 if z == 2 else 158)
                if z == 2 and k == 0: m = 160
                vfill[m].append(lambda k=k: self.stamp(1 + k, True))
            vfill[159].append(self.flush_stamp)
        for m in fill: fill[m] += vfill[m]
        for fn in fill[-1]: fn()
        if z == 1: self.flush_stamp()
        self.stamp(1)
        e.op(f"s_cmp_ge_u32 {s(S_CG)}, 10")
        e.op("s_cbranch_scc1 L_p1v")
        snap = e.snapshot()
        self.stage1_stream(fill, 0, 160, False)
        e.op("s_branch L_p2")
        after = e.snapshot()
        e.restore(snap)
        e.label("L_p1v")
        self.stage1_stream(fill, 0, 160, True)
        e.op(f"s_cmp_eq_u32 {s(S_CG)}, 14")
        e.op("s_cbranch_scc1 L_gate")
        self.gate_snap = e.snapshot()
        assert after[0] == e.vm and after[1] == e.lg
        e.label("L_p2")
        self.stamp(2)
        self.wv = None
        self.stage1_stream(fill, 160, 320, False)
        self.flush_stamp()

    def side_tail(self, early=True):
        e = self.e
        if early:
            self.poll_issue(V_FD)
            for f in self.ones_init(): f()
            self.poll_check(V_FD, 1)
            self.wv = None
            ew = sum([self.w_loads(n) for n in self.EARLY_W], [])
            for f in ew[:12]: f()
            self.poll_issue(V_FA)
            for f in ew[12:]: f()
        self.poll_check(V_FA, 0)
        for f in self.kvq_loads(): f()
        e.wait(lg="all")
        n = len(self.att_vm)
        assert e.vm[-21:] == self.att_vm[-21:] and all(t[0] == "w" for t in self.att_vm[:-21])
        e.op("s_branch L_att")

    def gate(self):
        e = self.e
        T1, T2, T3 = v(V_T1), v(V_T2), v(V_T3)
        e.restore(self.gate_snap)
        e.label("L_gate")
        e.op(f"s_mov_b64 {s(S_MISC,2)}, {s(S_PG,2)}")
        e.op(f"s_movk_i32 {s(S_MISC+2)}, 1280")
        e.op(f"s_lshr_b32 {s(S_T3)}, {s(S_WM0)}, 1")
        e.op(f"s_add_u32 {s(S_T3)}, {s(S_T3)}, {L_V + 12 * 3072}")
        e.op(f"s_mov_b32 m0, {s(S_T3)}")
        e.op(f"v_lshrrev_b32 {T1}, 5, {v(V_LANE)}")
        for n in range(2):
            e.op(f"buffer_load_dwordx4 {v(V_L16)}, {s(S_MISC,4)}, 0 offen offset:{n * 1024} lds", tag="gw")
        e.op(f"v_lshl_add_u32 {T1}, {T1}, 4, {s(S_T3)}")
        e.wait(lg="all")
        epi = self.p1_epilogue_ops()
        for g in epi:
            for f in g[:-1]: f()
        side = [g[-1] for g in epi]
        self.wv = None
        ew = sum([self.w_loads(n) for n in self.EARLY_W], [])
        side[0](); side[1]()
        side = side[2:]
        e.wait(vm="gw")
        G = 32
        def gread(k):
            if k % 4 == 0:
                self.pi_off(S_T4, k // 4, 0)
                e.op(f"v_add_u32 {T2}, {s(S_T4)}, {T1}")
            e.op(f"ds_read_b128 {v(G + 4 * (k % 8), 4)}, {T2} offset:{32 * (k % 4)}", tag=("g", k))
        for k in range(8): gread(k)
        for k in range(40):
            e.wait(lg=("g", k))
            e.op(f"v_mfma_f32_32x32x16_bf16 {v(0,16)}, {v(G + 4 * (k % 8), 4)}, {r(A_X + 4 * k, 4)}, {'0' if k == 0 else v(0,16)}")
            if k + 8 < 40: gread(k + 8)
            if k % 5 == 0 and side: side.pop(0)()
            if k == 34: self.poll_issue(V_FD)
        for f in self.ones_init(): f()
        e.op(f"v_min_f32 {T1}, {f32(30.0)}, v0")
        e.op(f"v_mul_f32 {T1}, {f32(LOG2E)}, {T1}")
        e.op(f"v_exp_f32 {T1}, {T1}")
        e.op(f"v_add_f32 {T2}, 1.0, {T1}")
        e.op(f"v_rcp_f32 {T2}, {T2}")
        e.op(f"v_cmp_gt_u32 vcc, 32, {v(V_LANE)}")
        e.op(f"v_lshlrev_b32 {T3}, 2, {v(V_LANE)}")
        e.op(f"s_lshl_b32 {s(S_T1)}, {s(S_TB1)}, 8")
        e.op(f"s_add_u32 {s(S_T1)}, {s(S_T1)}, {WS_G}")
        e.op(f"v_cndmask_b32 {T1}, {T2}, {T1}, vcc")
        e.op(f"buffer_store_dword {T1}, {T3}, {s(S_WS,4)}, {s(S_T1)} offen sc1", tag="gs")
        e.wait(vm="st1")
        self.publish(S_FLA)
        self.poll_check(V_FD, 1)
        for f in ew[:12]: f()
        e.wait(vm="gs")
        self.publish(S_FLA, 32)
        for f in ew[12:16]: f()
        self.poll_issue(V_FA)
        for f in ew[16:]: f()
        self.side_tail(False)

    def spare(self):
        e = self.e
        e.restore(self.spare_snap)
        e.label("L_spare")
        L = v(V_LANE); T0, T1, T2, T3 = v(V_T0), v(V_T1), v(V_T2), v(V_T3)
        self.common_setup()
        e.op(f"s_memrealtime {s(S_NONCE,2)}")
        self.rt_tables(0)
        e.op(f"s_sub_u32 {s(S_T1)}, s2, 240")
        e.op(f"s_lshl2_add_u32 {s(S_T1)}, {s(S_T1)}, {s(S_WAVE)}")
        e.op(f"s_lshl_b32 {s(S_T2)}, {s(S_T1)}, 13")
        e.op(f"v_lshl_add_u32 {v(225)}, {L}, 7, {s(S_T2)}")
        def touch(m):
            if self.o("pf2", 1):
                e.op(f"s_mov_b32 {s(S_T2)}, {m * 4096 * 128}")
                e.op(f"buffer_load_dword {v(224)}, {v(225)}, {s(S_WB,4)}, {s(S_T2)} offen")
        e.wait(lg="all")
        self.flush_stamp()
        e.op(f"s_or_b32 {s(S_T2)}, {s(S_NONCE)}, 1")
        e.op(f"v_mov_b32 {v(V_NONCE)}, {s(S_T2)}")
        e.op(f"v_mov_b32 {v(V_NONCE+1)}, {s(S_NONCE+1)}")
        e.op(f"s_cmp_lg_u32 {s(S_T1)}, 0")
        e.op("s_cbranch_scc1 L_nononce")
        e.op("s_mov_b64 exec, 1")
        e.op(f"buffer_store_dwordx2 {v(V_NONCE,2)}, {v(V_ZERO)}, {s(S_DBG,4)}, 0 offen sc1")
        e.op("s_mov_b64 exec, -1")
        e.label("L_nononce")
        self.rt_srd()
        for m, src in enumerate((S_RTSRC, S_ST1, S_ST1B, S_SCALE)): self.rt_loads(m * 10240, src)
        touch(0)
        self.late_lane_tables()
        self.late_table_use()
        e.wait(vm="rl")
        e.op("s_barrier")
        self.stamp(1)
        touch(1)
        for m in range(4):
            if m: e.op(f"s_add_u32 {s(S_RTS)}, {s(S_RTS)}, {4 * 5120}")
            if m == 3:
                e.op("s_cmp_lt_u32 s2, 248")
                e.op(f"s_cselect_b32 {s(S_RTS)}, {s(S_RTS)}, {OOB}")
            for f in self.rt_reads(m * 10240, 96 + 12 * m) + self.rt_stores(96 + 12 * m): f()
        self.nonce_issue()
        touch(2)
        self.nonce_check()
        e.op("s_barrier")
        for m in range(4):
            if m == 2: e.op(f"s_add_u32 {s(S_RTF)}, {s(S_RTF)}, 4096")
            self.publish(S_RTF, (m & 1) * 2048)
        self.stamp(3)
        touch(3); touch(4)
        self.flush_stamp()
        e.op("s_cmp_ge_u32 s2, 248")
        e.op("s_cbranch_scc1 L_noagg")
        snap = e.snapshot()
        e.op(f"v_lshl_add_u32 {T0}, {s(S_WAVE)}, 6, {L}")
        e.op(f"v_lshlrev_b32 {T1}, 7, {T0}")
        e.op(f"v_add_u32 {v(225)}, {FL_D}, {T1}")
        e.op(f"v_min_u32 {T0}, 39, {T0}")
        e.op(f"v_lshlrev_b32 {T1}, 7, {T0}")
        e.op(f"v_add_u32 {v(226)}, {FL_D + 256 * 128}, {T1}")
        e.op(f"buffer_load_dwordx2 {v(V_T2,2)}, {v(226)}, {s(S_WS,4)}, 0 offen sc1")
        self.poll_issue(225); self.poll_check(225, 4)
        e.op(f"v_mov_b32 {v(V_POLL)}, {T2}")
        e.op(f"v_mov_b32 {v(V_POLL + 1)}, {T3}")
        self.open_poll = 226; self.poll_check(226, 4)
        e.op("s_barrier")
        e.op(f"s_cmp_eq_u32 {s(S_WAVE)}, 0")
        e.op(f"s_cselect_b32 {s(S_T1)}, {s(S_PFD)}, {OOB}")
        self.publish(S_T1)
        e.wait(vm="all")
        e.restore(snap)
        e.label("L_noagg")
        self.stamp(2)
        self.flush_stamp()
        self.side_tail()

    def k_reads(self, u):
        h, j = divmod(u, 9)
        for ff in range(2):
            self.e.op(f"ds_read_b128 {v(KF + 4 * ff, 4)}, {v(V_KA)} offset:{(h + ff) * 12288 + j * 1024}", tag="k")
    def v_reads(self, u):
        h, j = divmod(u, 9)
        e = self.e
        e.op(f"s_mov_b64 exec, {s(S_VM,2)}")
        for ss in range(2):
            e.op(f"ds_read_b128 {v(VF + 4 * ss, 4)}, {v(V_VA)} offset:{j * 3072 + ss * 1280 + h * 320}", tag="v")
        e.op("s_mov_b64 exec, -1")
    def qk(self, u, part, S, lo=False):
        h, j = divmod(u, 9)
        c = v(S, 16) if part else v(CD, 16) if j == 8 else v(CE, 16) if (j == 0 or lo) else "0"
        self.e.op(f"v_mfma_f32_32x32x16_bf16 {v(S,16)}, {v(KF + 4 * part, 4)}, {v(QM + 8 * h + 4 * part, 4)}, {c}")
    def pv(self, u, part, S, first):
        O = v(OO[u // 9], 16)
        self.e.op(f"v_mfma_f32_32x32x16_bf16 {O}, {v(VF + 4 * part, 4)}, {v(S + 4 * part, 4)}, {'0' if first else O}")

    def q_mask(self):
        e = self.e
        lo, dn = self.L("qodd"), self.L("qdone")
        e.op(f"s_mov_b32 {s(S_MASK)}, -1")
        e.op(f"s_mov_b32 {s(S_MASK+1)}, 0")
        e.op(f"s_bitcmp1_b32 {s(S_BITS)}, 0")
        e.wait(vm="q")
        e.op(f"s_cbranch_scc1 {lo}")
        for par in range(2):
            if par: e.label(lo)
            for h in range(2):
                for ff in range(2):
                    for slot in range(2):
                        p0 = 4 * (h + ff) + 2 * slot - 2 * par - 5 * h
                        k0, k1 = 0 <= p0 < 5, 0 <= p0 + 1 < 5
                        for d in range(2):
                            dst, src = v(QM + 8 * h + 4 * ff + 2 * slot + d), v(VQ + 4 * (h + ff) + 2 * slot + d)
                            if k0 and k1: e.op(f"v_mov_b32 {dst}, {src}")
                            elif k0: e.op(f"v_cndmask_b32 {dst}, 0, {src}, {s(S_MASK,2)}")
                            elif k1: e.op(f"v_cndmask_b32 {dst}, {src}, 0, {s(S_MASK,2)}")
                            else: e.op(f"v_mov_b32 {dst}, 0")
            if not par: e.op(f"s_branch {dn}")
        e.label(dn)

    def attention(self):
        e = self.e
        e.label("L_att")
        self.att_vm = list(e.vm)
        self.stamp(4)
        T0 = v(V_T0)
        stores = list(self.p2_stores_left)
        self.q_mask()
        e.wait(vm="kd")
        e.op("s_barrier")
        self.k_reads(0)
        for f in self.p2_valu_left: f()
        for _ in range(self.o("ns1", 1)): stores.pop(0)()
        self.stamp(5)
        side = {(u, k): [] for u in range(18) for k in range(4)}
        wl = sum([self.w_loads(n) for n in range(NWR) if n not in self.EARLY_W], [])
        slots = [(u, k) for u in range(18) for k in range(4)]
        sst = self.o("sst", 2)
        for i, f in enumerate(stores): side[slots[sst * i]].append(f)
        def pub_c():
            e.wait(vm="st2")
            self.publish(S_FLA, 32)
        pubC, pC, cC = self.o("pubC", 18), self.o("pollC", 44), self.o("chkC", 56)
        side[slots[pubC]].append(pub_c)
        side[slots[pC]].append(lambda: self.poll_issue(V_FC))
        def chk_c():
            self.poll_check(V_FC, 2); self.stamp(6)
            e.op(f"buffer_load_dword {v(V_R)}, {v(V_R)}, {s(S_WS,4)}, 0 offen sc1", tag="r")
        hl = [(n, t) for n in range(5) for t in range(4)]
        taken = {pubC, pC, cC} | {sst * i for i in range(len(stores))}
        skip = self.o("wskip", len(stores))
        acc, rate = 0, self.o("wrate", 16)
        for i, x in enumerate(slots):
            if i == cC: side[x].append(chk_c)
            if i in taken: continue
            skip -= 1
            if skip >= 0: continue
            acc += rate
            if acc < 16: continue
            acc -= 16
            if wl: side[x].append(wl.pop(0))
            elif i > cC and hl:
                n, t = hl.pop(0)
                side[x].append(lambda n=n, t=t: self.h_load(n, t))
        assert not wl
        self.h_left = hl
        def fill_ce(val):
            for i in range(16): e.op(f"v_mov_b32 {v(CE + i)}, {val}")
        def steps(lo):
            def open_at(jn):
                st, bk = self.L("open"), self.L("open_ok")
                e.op(f"s_cmp_eq_u32 {s(S_TQ)}, {8 - jn}")
                e.op(f"s_cbranch_scc1 {st}")
                e.label(bk)
                def stub():
                    e.label(st, reset=True)
                    e.op("s_nop 7")
                    fill_ce(0)
                    e.op("s_nop 0")
                    e.op(f"s_branch {bk}")
                self.stubs.append(stub)
            if lo: fill_ce(hex(NEGBIG))
            e.wait(lg="k")
            self.qk(0, 0, SB[0], lo); self.qk(0, 1, SB[0], lo)
            self.k_reads(1)
            if lo: open_at(1)
            for u in range(18):
                if self.o("zoom", 0) == 3 and u % 2 == 0: self.stamp(1 + u // 2, True)
                S, Sn, Sp = SB[u % 3], SB[(u + 1) % 3], SB[(u - 1) % 3]
                ex = lambda i: e.op(f"v_exp_f32 {v(S + i)}, {v(S + i)}")
                cv = lambda i: e.op(f"v_cvt_pk_bf16_f32 {v(S + i)}, {v(S + 2 * i)}, {v(S + 2 * i + 1)}")
                if u < 17:
                    e.wait(lg="k")
                    self.qk(u + 1, 0, Sn, lo)
                for f in side[(u, 0)]: f()
                for i in range(0, 4): ex(i)
                if u < 17: self.qk(u + 1, 1, Sn, lo)
                e.wait(lg="v")
                if u < 16: self.k_reads(u + 2)
                for f in side[(u, 1)]: f()
                for i in range(4, 8): ex(i)
                cv(0); cv(1)
                if u > 0: self.pv(u - 1, 0, Sp, (u - 1) % 9 == 0)
                if lo and u + 2 == 9: fill_ce(hex(NEGBIG))
                if lo and u + 2 < 18 and 1 <= (u + 2) % 9 <= 7: open_at((u + 2) % 9)
                for f in side[(u, 2)]: f()
                for i in range(8, 12): ex(i)
                cv(2); cv(3)
                if u > 0:
                    self.pv(u - 1, 1, Sp, False)
                    self.v_reads(u)
                for f in side[(u, 3)]: f()
                for i in range(12, 16): ex(i)
                for i in range(4, 8): cv(i)
                if u == 0:
                    e.wait(vm="vd")
                    e.op("s_barrier")
                    self.v_reads(0)
            e.wait(lg="v")
            self.pv(17, 0, SB[17 % 3], False); self.pv(17, 1, SB[17 % 3], False)
            self.flush_stamp()
        self.flush_stamp()
        e.op(f"s_cmp_lt_u32 {s(S_TQ)}, 8")
        e.op("s_cbranch_scc1 L_att_lo")
        snap0, wv0 = e.snapshot(), self.wv
        steps(False)
        snap1 = e.snapshot()
        def att_lo():
            e.restore(snap0); self.wv = wv0
            e.label("L_att_lo")
            steps(True)
            assert e.vm == snap1[0] and e.lg == snap1[1]
            e.op("s_branch L_att_join")
        self.att_lo = att_lo
        e.label("L_att_join")
        self.stamp(7)
        for h in range(2):
            O = OO[h]
            st, bk = self.L("slow"), self.L("slow_ok")
            e.op(f"v_subrev_u32 {T0}, 0x2f800000, {v(O + 12)}")
            e.op(f"v_cmp_le_u32 vcc, 0x20000000, {T0}")
            if self.o("forceslow", 0): e.op("s_mov_b64 vcc, -1")
            for _ in range(2 - h):
                if self.h_left:
                    n, t = self.h_left.pop(0); self.h_load(n, t)
            e.op(f"s_cbranch_vccnz {st}")
            e.label(bk)
            self.cold.append(lambda st=st, bk=bk, h=h: self.slow_head(h, st, bk))
        OP = 0
        ep = []
        A = lambda t, tag=None: ep.append(lambda: e.op(t, tag=tag))
        for h in range(2): A(f"v_rcp_f32 {v(V_T2 + h)}, {v(OO[h] + 12)}")
        ep.append(lambda: e.wait(vm="r"))
        for h in range(2): A(f"v_mul_f32 {v(V_T2 + h)}, {v(V_T2 + h)}, {v(V_R)}")
        for h in range(2):
            O = OO[h]
            for i in range(8): A(f"v_mul_f32 {v(O + i)}, {v(O + i)}, {v(V_T2 + h)}")
            for i in range(4): A(f"v_cvt_pk_bf16_f32 {v(OP + 4 * h + i)}, {v(O + 2 * i)}, {v(O + 2 * i + 1)}")
            A(f"buffer_store_dwordx4 {v(OP + 4 * h, 4)}, {v(V_L16)}, {s(S_WS,4)}, {s(S_OST)} offen offset:{h * 1024} sc1", "sto")
        for h in range(2):
            O = OO[h]
            for i in range(8, 12): A(f"v_mul_f32 {v(O + i)}, {v(O + i)}, {v(V_T2 + h)}")
            for i in range(2): A(f"v_cvt_pk_bf16_f32 {v(OP + 8 + 2 * h + i)}, {v(O + 8 + 2 * i)}, {v(O + 9 + 2 * i)}")
        A(f"buffer_store_dwordx4 {v(OP + 8, 4)}, {v(V_L16H)}, {s(S_WS,4)}, {s(S_OST2)} offen sc1", "sto")
        self.o_epilogue = ep

    def slow_head(self, h, st, bk):
        e = self.e
        e.label(st, reset=True)
        e.vm, e.lg = [], []
        T0, MX = v(V_T0), v(V_T1)
        O, S = OO[h], SB[0]
        e.op("s_nop 15")
        e.op(f"v_mov_b32 {MX}, {hex(NEGBIG)}")
        for i in range(16): e.op(f"v_mov_b32 {v(O + i)}, 0")
        for ps in range(2):
            for j in range(9):
                u = 9 * h + j
                sk = self.L("sk")
                if j < 8:
                    e.op(f"s_cmp_lt_u32 {s(S_TQ)}, {8 - j}")
                    e.op(f"s_cbranch_scc1 {sk}")
                if ps: self.v_reads(u)
                self.k_reads(u)
                e.wait(lg="all")
                self.qk(u, 0, S); self.qk(u, 1, S)
                if ps == 0:
                    for i in range(8): e.op(f"v_max3_f32 {MX}, {MX}, {v(S + 2 * i)}, {v(S + 2 * i + 1)}")
                else:
                    for i in range(16): e.op(f"v_sub_f32 {v(S + i)}, {v(S + i)}, {MX}")
                    for i in range(16): e.op(f"v_exp_f32 {v(S + i)}, {v(S + i)}")
                    for i in range(8): e.op(f"v_cvt_pk_bf16_f32 {v(S + i)}, {v(S + 2 * i)}, {v(S + 2 * i + 1)}")
                    self.pv(u, 0, S, False); self.pv(u, 1, S, False)
                    e.op("s_nop 7")
                e.label(sk)
            if ps == 0:
                e.op(f"v_mov_b32 {T0}, {MX}")
                e.op(f"v_permlane32_swap_b32 {T0}, {MX}")
                e.op("s_nop 1")
                e.op(f"v_max_f32 {MX}, {T0}, {MX}")
        e.op("s_nop 15")
        e.op(f"s_branch {bk}")

    def stage3(self):
        e = self.e
        L = v(V_LANE); T0, T1, T2, T3 = v(V_T0), v(V_T1), v(V_T2), v(V_T3)
        self.stamp(8)
        e.op(f"s_load_dwordx8 {s(TB,8)}, {s(S_TAB,2)}, 128")
        e.op(f"s_load_dwordx4 {s(TB+8,4)}, {s(S_TAB,2)}, 160")
        TM = self.TM; n0 = 19 - TM
        setup = []
        A = lambda t, tag=None: setup.append(lambda: e.op(t, tag=tag))
        setup.append(lambda: e.wait(lg="all"))
        A(f"s_movk_i32 {s(S_C1)}, 4096")
        A(f"s_movk_i32 {s(S_C2)}, 8192")
        for t in range(4): A(f"v_add_u32 {v(V_O + t)}, {s(S_OT + t)}, {v(V_HL)}")
        A(f"v_and_b32 {T0}, 15, {L}")
        A(f"v_lshl_add_u32 {v(V_GW)}, {T0}, 2, {s(S_GW)}")
        A(f"buffer_load_dword {v(V_GW)}, {v(V_GW)}, {s(S_WS,4)}, 0 offen sc1", "g")
        for t in range(3): A(f"v_add_u32 {v(V_RR + t)}, {s(S_RED + t)}, {v(V_L16)}")
        A(f"v_add_u32 {v(V_RW)}, {s(S_RED + 3)}, {v(V_L16)}")
        A(f"v_lshrrev_b32 {T1}, 4, {L}")
        A(f"v_mul_u32_u24 {T0}, 1280, {T0}")
        A(f"v_add_u32 {T0}, {s(S_OUTO)}, {T0}")
        A(f"v_lshl_add_u32 {v(V_OUT)}, {T1}, 4, {T0}")
        A(f"v_lshl_add_u32 {v(V_OUT + 1)}, {T1}, 3, {T0}")
        A(f"v_lshrrev_b32 {T0}, 1, {L}")
        A(f"v_min_u32 {T0}, 3, {T0}")
        A(f"v_and_b32 {T1}, 1, {L}")
        A(f"v_lshl_add_u32 {T1}, {T1}, 3, {s(S_PFB)}")
        A(f"v_lshl_add_u32 {v(V_FB)}, {T0}, 7, {T1}")
        cB = self.o("chkB", 10)
        Q = [(0, lambda n=n, t=t: self.h_load(n, t)) for n, t in self.h_left]
        for n in range(5, n0):
            if n >= 12: Q += [(max(n - 11, 4 if n >= 14 else 0), f) for f in self.w_loads(n)]
            Q += [(max(n - 5, 2, cB if n >= 14 else 0), lambda n=n, t=t: self.h_load(n, t)) for t in range(4)]
        for n in range(n0, 19): Q += [(max(n - 11, 4), f) for f in self.w_loads(n)]
        for t in range(4):
            for n in range(n0, 19):
                i = TM * t + n - n0
                Q.append((max(n0 - 5 + i // 4, cB), lambda n=n, t=t: self.h_load(n, t)))
        def issue(step):
            for i, (fr, f) in enumerate(Q):
                if fr <= step:
                    Q.pop(i); f(); return True
            return False
        def need(tags, step, also=()):
            while any(t not in e.all_tags for t in tags): assert issue(step)
            if any(t in e.vm for t in tags): e.wait(vm=list(tags) + [t for t in also if t in e.vm])
        def mfma(n, t, j):
            acc = v(BA + 20 * t + 4 * j, 4)
            e.op(f"v_mfma_f32_16x16x32_bf16 {acc}, {r(WR + 20 * (n % NWR) + 4 * j, 4)}, {v(self.hreg(n, t), 4)}, {'0' if n == 0 else acc}")
        lrate = self.o("lrate", 6)
        cnt = 0
        oep = list(self.o_epilogue)
        for n in range(n0):
            if n == 2: assert not oep
            if n == 4: assert not setup
            if self.o("zoom", 0) == 4 and n < 12: self.stamp(1 + n, True)
            if n == self.o("pubB", 4):
                e.wait(vm="sto"); self.publish(S_FLB)
            if n == self.o("pollB", 8): self.poll_issue(V_FB)
            if n == cB:
                self.poll_check(V_FB, 3); self.stamp(9)
            for t in range(4):
                for j in range(5):
                    need([("w", n, j), ("h", n, t)], n, [("w", n, 4), ("h", n, t | 1)])
                    mfma(n, t, j)
                    cnt += lrate
                    if cnt >= 20 and Q:
                        cnt -= 20; issue(n)
                    elif oep:
                        oep.pop(0)()
                        if oep: oep.pop(0)()
                    elif setup:
                        setup.pop(0)()
        self.stamp(10)
        RD = (0, 20, BA)
        def wr(t, j): e.op(f"ds_write_b128 {v(V_RW)}, {v(BA + 20 * t + 4 * j, 4)} offset:{t * 5120 + j * 1024}", tag=("red", t))
        def rd(sl, j): e.op(f"ds_read_b128 {v(RD[sl] + 4 * j, 4)}, {v(V_RR + sl)} offset:{j * 1024}", tag=("rd", sl, j))
        def add01(k):
            if k % 4 == 0: e.wait(lg=("rd", 1, k // 4))
            e.op(f"v_add_f32 {v(RD[0] + k)}, {v(RD[0] + k)}, {v(RD[1] + k)}")
        def bar01():
            e.wait(lg=("red", 1))
            e.op("s_barrier")
        F = BA + 60
        for t in range(4):
            q = [None] * 3 + [lambda j=j: wr(t - 1, j) for j in range(5)] if t else []
            if t == 3:
                q = [bar01] + [lambda j=j, sl=sl: rd(sl, j) for j in range(2) for sl in range(2)] + q[3:] + \
                    [lambda j=j, sl=sl: rd(sl, j) for j in range(2, 5) for sl in range(2)]
                adds = [lambda k=k: add01(k) for k in range(20)]
            i = 0
            for n in range(n0, 19):
                for j in range(5):
                    need([("w", n, j), ("h", n, t)], 99)
                    mfma(n, t, j)
                    if Q and i % 4 == 0: issue(99)
                    elif q:
                        f = q.pop(0)
                        if f: f()
                    elif t == 3:
                        for _ in range(2):
                            if adds: adds.pop(0)()
                    i += 1
            for f in q:
                if f: f()
        assert not Q
        self.stamp(11)
        e.wait(lg=("red", 2))
        e.op("s_barrier")
        for j in range(5): rd(2, j)
        for f in adds: f()
        e.wait(vm="g")
        W2 = v(V_GW, 2)
        of = ("", "sc1", "nt", "sc0 sc1")[self.o("outf", 0)]
        for i in range(10): e.op(f"v_pk_add_f32 {v(F + 2 * i, 2)}, {v(F + 2 * i, 2)}, {v(RD[0] + 2 * i, 2)}")
        for i in range(10): e.op(f"v_pk_mul_f32 {v(F + 2 * i, 2)}, {v(F + 2 * i, 2)}, {W2} op_sel_hi:[1,0]")
        for grp in ((0, 4), (4, 8), (8, 10)):
            e.wait(lg=("rd", 2, (grp[1] - 1) // 2))
            for i in range(*grp): e.op(f"v_pk_fma_f32 {v(F + 2 * i, 2)}, {v(RD[2] + 2 * i, 2)}, {W2}, {v(F + 2 * i, 2)} op_sel_hi:[1,0,1]")
            for i in range(*grp): e.op(f"v_cvt_pk_bf16_f32 {v(i)}, {v(F + 2 * i)}, {v(F + 2 * i + 1)}")
            if grp[0] < 8: e.op(f"buffer_store_dwordx4 {v(grp[0],4)}, {v(V_OUT)}, {s(S_OUT,4)}, 0 offen offset:{grp[0] * 16} {of}")
            else: e.op(f"buffer_store_dwordx2 {v(8,2)}, {v(V_OUT+1)}, {s(S_OUT,4)}, 0 offen offset:128 {of}")
        self.stamp(12)

    def finish(self):
        e = self.e
        if self.stamps:
            e.wait(vm="all")
            self.stamp(13)
            e.op(f"s_memtime {s(S_VM,2)}")
            self.flush_stamp()
            e.op(f"v_writelane_b32 {v(V_STAMP)}, {s(S_VM)}, {NSTAMP}")
            e.op(f"s_lshl2_add_u32 {s(S_T0)}, s2, {s(S_WAVE)}")
            e.op(f"s_lshl_b32 {s(S_T0)}, {s(S_T0)}, 7")
            e.op(f"s_add_u32 {s(S_T0)}, {s(S_T0)}, {WS_ST}")
            e.op(f"v_lshlrev_b32 {v(V_T0)}, 2, {v(V_LANE)}")
            e.op("s_mov_b32 exec_hi, 0")
            e.op(f"buffer_store_dword {v(V_STAMP)}, {v(V_T0)}, {s(S_WS,4)}, {s(S_T0)} offen")
        e.op("s_endpgm")

    def build(self):
        e = self.e
        self.prologue()
        self.stage1()
        self.attention()
        self.stage3()
        self.finish()
        self.att_lo()
        self.gate()
        self.spare()
        for f in self.stubs:
            e.vm, e.lg = [], []
            f()
        e.label("L_cold")
        for f in self.cold: f()
        e.label("L_end")
        e.op("s_endpgm")
        head = open("head.txt").read().split("\n")
        head = [l for l in head if l.startswith(";") and "@launch" not in l]
        txt = "\n".join(head) + f"\n; @launch grid=(256,1,1) block=(256,1,1) lds={LDS_BYTES}\n"
        txt += f""".amdgcn_target "amdgcn-amd-amdhsa--gfx950"
.text
.globl {NAME}_kernel
.p2align 8
.type {NAME}_kernel,@function
{NAME}_kernel:
"""
        txt += e.text().replace("\n    ", "\n ")
        txt += f""".section .rodata,"a"
.p2align 6
.amdhsa_kernel {NAME}_kernel
  .amdhsa_next_free_vgpr 512
  .amdhsa_next_free_sgpr 102
  .amdhsa_accum_offset 256
  .amdhsa_group_segment_fixed_size 0
  .amdhsa_kernarg_size 80
  .amdhsa_user_sgpr_count 2
  .amdhsa_user_sgpr_kernarg_segment_ptr 1
  .amdhsa_system_sgpr_workgroup_id_x 1
.end_amdhsa_kernel
.p2align 8
.type wave_table,@object
wave_table:
"""
        for wg in range(256):
            for w in range(4):
                txt += ".long " + ",".join(str(x) for x in table_entry(wg, w, self.o("map3", 0))) + "\n"
        return txt

if __name__ == "__main__":
    out = sys.argv[1] if len(sys.argv) > 1 else "cdna_kernels/" + NAME + ".s"
    opt = {}
    for x in sys.argv[2:]:
        if "=" in x:
            k, val = x.split("="); opt[k] = int(val)
    g = Gen(stamps="--stamps" in sys.argv, opt=opt)
    txt = g.build()
    open(out, "w").write(txt)
    print("instructions", g.e.count, "pad states", g.e.nops, "autowaits", g.e.autowaits, "bytes", len(txt), file=sys.stderr)
    if "--nops" in sys.argv:
        for n, t in g.e.log_nops: print(n, t, file=sys.stderr)
```

```python
import sys, math, struct
from asmlib import *

NAME = "gated_mix__sliding_block__dense_activation_relu__prompt"

WS_QK = 0
WS_VT = WS_QK + 80 * 64 * 1024
WS_H  = WS_VT + 16 * 64 * 2560
WS_O  = WS_H + 64 * 110592
WS_WT = WS_O + 64 * 40960
WS_G  = WS_WT + 8 * 74 * 5120
WS_FL = WS_G + 16384
FL_A  = WS_FL
FL_B  = FL_A + 256 * 128
FL_D  = FL_B + 256 * 128
FL_DD = FL_D + 304 * 128
WS_ST = FL_DD + 8 * 128
WS_SIZE = WS_ST + 1024 * 128
OOB = 0x4000000
assert WS_SIZE < OOB

NW, NX = 5, 4
L_W = 0
L_X = NW * 16384
L_RT = L_X + 65536
L_K = L_X
L_V = L_K + 36 * 1024
LDS_BYTES = 163840

S_DM, S_HK = 0, 1
S_WAVE = 3
S_X, S_WA, S_WB, S_WS, S_OUT, S_DBG, S_MISC = 4, 8, 12, 16, 20, 24, 28
S_PWO, S_CG, S_XM0, S_PW2, S_PG = 32, 34, 35, 36, 38
S_T0, S_T1, S_T2, S_T3, S_T4, S_T5 = 40, 41, 42, 43, 44, 45
S_TAB = 46
TA = 48
(S_ST1, S_ST1B, S_ST2, S_ST2B, S_SCALE, S_FLA, S_FLB, S_RTS, S_RTF, S_RTSRC, S_BITS, S_TQ, S_QOFF) = range(TA, TA + 13)
S_KADJ, S_VOFF = TA + 13, TA + 16
S_OST, S_OST2 = TA + 19, TA + 20
S_HT = TA + 21
S_WT0, S_PFC, S_PFG, S_PFD, S_PFA, S_ASTEP, S_TB1 = range(TA + 25, TA + 32)
TB = 4
S_OT = TB
S_WT1, S_PFB, S_GW, S_OUTO = TB + 4, TB + 5, TB + 6, TB + 7
S_RED = TB + 8
S_PHI = 80
S_WM0, S_SPIN = 86, 87
S_STMP, S_NONCE, S_MASK, S_VM = 88, 90, 92, 94
S_C1, S_C2 = 96, 97
S_PILO, S_PIHI = 80, 81

V_LANE = 255
V_L16 = 254
V_NONCE = 252
V_T0, V_T1, V_T2, V_T3 = 248, 249, 250, 251
V_POLL = 246
V_FA, V_FD, V_FC, V_WV = 245, 244, 243, 242
V_KA, V_VA, V_HL, V_STAMP, V_ZERO, V_L16H = 241, 240, 239, 238, 237, 236
V_H, V_KT, V_Q, V_R = 232, 228, 231, 227
V_XD = 0
V_WD = 4
V_WD2 = 8
V_XR = 12
V_WR = 16
V_ST1 = 24
V_FR = 32
ACC = (128, 64)
A_X = 256
NXR = 7
V_LH = 226
RT_D, RT_LD, RT_RD, RT_ST = 64, 76, 79, 82
SB = (0, 16, 176)
OO = (32, 48)
VQ, QM, VF, KF, CD, CE = 128, 144, 160, 168, 192, 208
BA = 144
HSLOT = (64, 80, 96, 112, 128, 48)
WR = 256
NH, NWR = 6, 12
V_O, V_FB, V_GW, V_RR, V_RW, V_OUT = 228, 245, 244, 224, 243, 240
NSTAMP = 14

def f32(x): return "0x%08x" % struct.unpack("<I", struct.pack("<f", x))[0]
LOG2E = math.log2(math.e)
QSCALE = LOG2E / math.sqrt(20.0)
NEGBIG = 0xff800000
SPIN_MAX = 0x40000

def rt_unit(U, w):
    ks, kg, u = U >> 2, U & 3, w >> 1
    if ks < 54: row, wo = 32 * ks + 16 * (kg >> 1) + 4 * (kg & 1) + 8 * u, 0
    else:
        a_, p = divmod(ks - 54, 5); wo = 1
        row = 40 * (4 * a_ + p) + 20 * (kg >> 1) + 4 * (kg & 1) + 8 * u if p < 4 else 40 * (4 * a_ + kg) + 16 + 20 * u
    return WS_WT + (148 * w + ks) * 5120 + kg * 256, (FL_D + U * 128 if w == 0 else OOB), row * 1280, wo

def table_entry(wg, w, map3):
    xcd, i = wg & 7, wg >> 3
    A = [0] * 32; B = [0] * 16
    def a(reg, val): A[reg - TA] = val & 0xffffffff
    def b(reg, val): B[reg - TB] = val & 0xffffffff
    rts, rtf, rtsrc, wo = rt_unit(wg, w)
    a(S_RTS, rts); a(S_RTF, rtf); a(S_RTSRC, rtsrc)
    if i < 30:
        u = 30 * (xcd >> 1) + i
        rb, cg = 8 * (xcd & 1) + (u & 7), u >> 3
        tb, tb0, wc = 4 * rb + w, 4 * rb + (w & 2), w & 1
        if cg < 10:
            q0 = WS_QK + ((8 * cg + 4 * wc) * 64 + tb0) * 1024
            a(S_ST1, q0); a(S_ST1B, q0 + 1024)
        else:
            a(S_ST1, WS_VT + tb0 * 2560); a(S_ST1B, WS_VT + (tb0 + 1) * 2560)
        h0 = WS_H + tb0 * 110592 + cg * 8192 + wc * 4096
        a(S_ST2, h0 if 2 * cg + wc < 27 else OOB); a(S_ST2B, h0 + 110592 if 2 * cg + wc < 27 else OOB)
        a(S_SCALE, int(f32(QSCALE if cg < 5 else 1.0), 16))
        a(S_FLA, FL_A + (rb * 16 + cg) * 128 + 8 * w)
        a(S_TB1, tb)
    else:
        for m, reg in ((1, S_ST1), (2, S_ST1B), (3, S_SCALE)): a(reg, rt_unit(wg + 16 * m, w)[2])
        a(S_ST2, OOB); a(S_ST2B, OOB); a(S_FLA, OOB)
    P, rba = 2 * xcd + (i >> 4), i & 15
    F0, tq = (10 * P) >> 2, 4 * rba + w
    a(S_BITS, (P & 1) | (wo << 1)); a(S_TQ, tq)
    a(S_QOFF, WS_QK + (F0 * 64 + tq) * 1024)
    for k in range(3):
        t = max(4 * rba + 3 * w - 8 + k, 0)
        a(S_KADJ + k, WS_QK + ((40 + F0) * 64 + t - k) * 1024)
        a(S_VOFF + k, WS_VT + (P * 64 + t) * 2560)
    o0 = WS_O + tq * 40960 + (P >> 2) * 20 * 512
    a(S_OST, o0 + (P & 3) * 2048); a(S_OST2, o0 + (16 + (P & 3)) * 512)
    a(S_FLB, FL_B + (rba * 16 + P) * 128 + 8 * w)
    cq = F0 >> 3
    a(S_PFA, FL_A + cq * 128); a(S_ASTEP, 128 if ((F0 + 2) >> 3) > cq else 0)
    a(S_PFG, FL_A + (rba * 16 + 14) * 128 + 32 + 8 * w)
    a(S_PFD, FL_DD + xcd * 128)
    tb64, ng = (8 * (xcd >> 1) + (i & 7), 4 * (xcd & 1) + (i >> 3)) if not map3 else (4 * xcd + (i & 3), i >> 2)
    for t in range(4):
        T = (w + 1 + t) & 3
        tb = 2 * tb64 + (T >> 1)
        a(S_HT + t, WS_H + tb * 110592 + (T & 1) * 256 + w * 2048)
        b(S_OT + t, WS_O + tb * 40960 + (T & 1) * 256 + w * 5 * 2048)
    a(S_WT0, WS_WT + (ng * 74 + w) * 5120 + 2048)
    b(S_WT1, WS_WT + (ng * 74 + 54 + 5 * w) * 5120 + 2048)
    a(S_PFC, FL_A + (tb64 >> 1) * 2048 + 32 + 16 * (tb64 & 1))
    b(S_PFB, FL_B + ((tb64 >> 1) * 16 + 4 * w) * 128 + 16 * (tb64 & 1))
    b(S_GW, WS_G + (2 * tb64 + (w >> 1)) * 256 + 128 + (w & 1) * 64)
    b(S_OUTO, (64 * tb64 + 16 * w) * 1280 + ng * 160)
    for t in range(3): b(S_RED + t, L_W + ((w - 1 - t) & 3) * 20480 + t * 5120)
    b(S_RED + 3, L_W + w * 20480)
    return A + B

class Gen:
    def __init__(self, stamps=False, opt=None):
        self.e = Emit()
        self.stamps = stamps
        self.uid = 0
        self.opt = opt or {}
        self.stubs = []
        self.cold = []
        self.pending_stamp = None
        self.open_poll = None; self.open_nonce = False
        self.nt = "nt " if self.o("nt", 1) else ""
        self.in_side = False
    def o(self, k, d): return self.opt.get(k, d)
    def L(self, p):
        self.uid += 1
        return f"L_{p}_{self.uid}"
    def stamp(self, idx, z=False):
        if not self.stamps: return
        if self.o("zoom", 0) and not z and 0 < idx < 13: return
        self.flush_stamp()
        self.e.op(f"{'s_memtime' if self.o('cyc', 0) else 's_memrealtime'} {s(S_STMP, 2)}")
        self.pending_stamp = idx
    def flush_stamp(self):
        if self.pending_stamp is None: return
        e = self.e
        if "SMEM" in e.lg: e.wait(lg="all")
        e.op(f"v_writelane_b32 {v(V_STAMP)}, {s(S_STMP)}, {self.pending_stamp}")
        self.pending_stamp = None

    def srd_tail(self, d, nbytes):
        self.e.op(f"s_mov_b32 {s(d+2)}, {nbytes}")
        self.e.op(f"s_mov_b32 {s(d+3)}, 0x20000")
    def nonce_issue(self):
        self.e.op(f"buffer_load_dwordx2 {v(V_NONCE,2)}, {v(V_ZERO)}, {s(S_DBG,4)}, 0 offen sc1", tag="nonce")
        self.open_nonce = True
    def nonce_check(self):
        e = self.e
        st, bk = self.L("nonce"), self.L("nonce_ok")
        assert self.open_nonce
        e.wait(vm="nonce")
        e.op(f"v_readfirstlane_b32 {s(S_NONCE)}, {v(V_NONCE)}")
        e.op(f"v_readfirstlane_b32 {s(S_NONCE+1)}, {v(V_NONCE+1)}")
        e.op(f"s_cmp_eq_u32 {s(S_NONCE)}, 0")
        e.op(f"s_cbranch_scc1 {st}")
        e.label(bk)
        def stub():
            e.label(st, reset=True)
            e.op(f"s_mov_b32 {s(S_SPIN)}, 0")
            e.label(st + "_l")
            e.op("s_sleep 4")
            e.op(f"buffer_load_dwordx2 {v(V_NONCE,2)}, {v(V_ZERO)}, {s(S_DBG,4)}, 0 offen sc1")
            e.op(f"s_add_u32 {s(S_SPIN)}, {s(S_SPIN)}, 1")
            e.wait(vm="all")
            e.op(f"v_readfirstlane_b32 {s(S_NONCE)}, {v(V_NONCE)}")
            e.op(f"v_readfirstlane_b32 {s(S_NONCE+1)}, {v(V_NONCE+1)}")
            e.op(f"s_cmp_gt_u32 {s(S_SPIN)}, {SPIN_MAX}")
            e.op(f"s_cbranch_scc1 {bk}")
            e.op(f"s_cmp_eq_u32 {s(S_NONCE)}, 0")
            e.op(f"s_cbranch_scc1 {st}_l")
            e.op(f"s_branch {bk}")
        self.stubs.append(stub)
    def publish(self, soff, imm=0):
        e = self.e
        e.op("s_mov_b64 exec, 1")
        e.op(f"buffer_store_dwordx2 {v(V_NONCE,2)}, {v(V_ZERO)}, {s(S_WS,4)}, {s(soff)} offen offset:{imm} sc1", tag="flag")
        e.op("s_mov_b64 exec, -1")
    def poll_issue(self, vaddr):
        self.e.op(f"buffer_load_dwordx2 {v(V_POLL,2)}, {v(vaddr)}, {s(S_WS,4)}, 0 offen sc1", tag="poll")
        self.open_poll = vaddr
    def poll_check(self, vaddr, sid=0):
        e = self.e
        st, bk = self.L("poll"), self.L("poll_ok")
        assert self.open_poll == vaddr; self.open_poll = None
        e.wait(vm="poll")
        e.op(f"v_cmp_ne_u64 vcc, {s(S_NONCE,2)}, {v(V_POLL,2)}")
        e.op(f"s_cbranch_vccnz {st}")
        e.label(bk)
        def stub():
            e.label(st, reset=True)
            e.op(f"s_mov_b32 {s(S_SPIN)}, 0")
            e.op(f"s_branch {st}_f")
            e.label(st + "_l")
            e.op("s_sleep 4")
            e.label(st + "_f")
            e.op(f"buffer_load_dwordx2 {v(V_POLL,2)}, {v(vaddr)}, {s(S_WS,4)}, 0 offen sc1")
            e.op(f"s_add_u32 {s(S_SPIN)}, {s(S_SPIN)}, 1")
            e.wait(vm="all")
            e.op(f"v_cmp_ne_u64 vcc, {s(S_NONCE,2)}, {v(V_POLL,2)}")
            e.op(f"s_cmp_gt_u32 {s(S_SPIN)}, {SPIN_MAX}")
            e.op(f"s_cbranch_scc1 {bk}")
            e.op(f"s_cbranch_vccnz {st}_l")
            if self.stamps: e.op(f"v_writelane_b32 {v(V_STAMP)}, {s(S_SPIN)}, {16 + sid}")
            e.op(f"s_branch {bk}")
        self.stubs.append(stub)

    PI_A = [0, 2, 1, 4, 3, 6, 5, 8, 7, 9]
    PI_B = [1, -2, 2, -2, 2, -2, 2, -2, 2, -1]
    PI4 = [[0,4,1,2,3,8,5,6,7,9], [1,0,5,2,3,4,9,6,7,8], [2,0,1,6,3,4,5,7,8,9], [3,0,1,2,7,4,5,6,8,9]]
    UNIT = (128, 64 * 3840, 64 * 3456)
    def pi_setup(self, sphi, late):
        e = self.e
        mode = self.o("pi", 2)
        if mode == 2:
            if not late:
                e.op(f"s_and_b32 {s(sphi)}, {s(sphi)}, 1")
                for m in range(2): e.op(f"s_mul_i32 {s(S_PHI + 2 * m)}, {s(sphi)}, {self.UNIT[m]}")
            else:
                e.op(f"s_mul_i32 {s(S_PHI + 4)}, {s(S_PHI)}, {self.UNIT[2] // 128}")
                for m in range(3): e.op(f"s_lshl_b32 {s(S_PHI + 2 * m + 1)}, {s(S_PHI + 2 * m)}, 1")
        elif mode == 4 and not late:
            e.op(f"s_and_b32 {s(sphi)}, {s(sphi)}, 3")
            for i, tb in enumerate(self.PI4):
                lo = sum(k << (4 * n) for n, k in enumerate(tb[:8])); hi = tb[8] | (tb[9] << 4)
                if i == 0:
                    e.op(f"s_mov_b32 {s(S_PILO)}, {hex(lo)}")
                    e.op(f"s_mov_b32 {s(S_PIHI)}, {hex(hi)}")
                else:
                    e.op(f"s_cmp_eq_u32 {s(sphi)}, {i}")
                    e.op(f"s_cselect_b32 {s(S_PILO)}, {hex(lo)}, {s(S_PILO)}")
                    e.op(f"s_cselect_b32 {s(S_PIHI)}, {hex(hi)}, {s(S_PIHI)}")
    def pi_off(self, dst, st, m):
        e = self.e
        mode = self.o("pi", 2)
        if mode == 1: e.op(f"s_mov_b32 {s(dst)}, {st * self.UNIT[m]}")
        elif mode == 2:
            A, B = self.PI_A[st] * self.UNIT[m], self.PI_B[st]
            e.op(f"s_{'add' if B > 0 else 'sub'}_u32 {s(dst)}, {A}, {s(S_PHI + 2 * m + abs(B) - 1)}")
        else:
            e.op(f"s_bfe_u32 {s(dst)}, {s(S_PILO if st < 8 else S_PIHI)}, {hex((4 << 16) | (4 * (st % 8)))}")
            e.op(f"s_mul_i32 {s(dst)}, {s(dst)}, {self.UNIT[m]}")

    def prologue(self):
        e = self.e
        L = v(V_LANE); T0, T1, T2, T3 = v(V_T0), v(V_T1), v(V_T2), v(V_T3)
        e.op("s_cmp_ge_u32 s2, 256")
        e.op("s_cbranch_scc1 L_end")
        self.stamp(0)
        for d, off in ((S_X, 0), (S_WA, 8), (S_WB, 32), (S_WS, 72), (S_OUT, 56), (S_DBG, 64)):
            e.op(f"s_load_dwordx2 {s(d,2)}, s[0:1], {off}")
        e.op(f"s_getpc_b64 {s(S_TAB,2)}")
        e.label("L_pc")
        e.op("s_cmp_lt_u32 s2, 240")
        e.op("s_cbranch_scc1 L_nopf")
        e.op(f"s_bfe_u32 {s(S_T0)}, s2, 0x10003")
        e.op(f"v_lshl_add_u32 {T0}, v0, 1, {s(S_T0)}")
        e.op(f"v_lshlrev_b32 {T0}, 7, {T0}")
        e.op(f"v_min_u32 {T0}, L_cold-L_pc, {T0}")
        e.op(f"global_load_dword {v(224)}, {T0}, {s(S_TAB,2)}")
        e.vm = []
        e.label("L_nopf")
        if self.stamps: e.op(f"v_mov_b32 {v(V_STAMP)}, 0")
        e.op(f"v_lshrrev_b32 {T0}, 6, v0")
        e.op(f"v_and_b32 {L}, 63, v0")
        e.op(f"v_readfirstlane_b32 {s(S_WAVE)}, {T0}")
        e.op(f"s_bfe_u32 {s(S_T0)}, s2, 0x20001")
        e.op(f"s_mul_i32 {s(S_T0)}, {s(S_T0)}, 30")
        e.op(f"s_lshr_b32 {s(S_T1)}, s2, 3")
        e.op(f"s_add_u32 {s(S_T0)}, {s(S_T0)}, {s(S_T1)}")
        e.op(f"s_lshr_b32 {s(S_CG)}, {s(S_T0)}, 3")
        e.op(f"s_and_b32 {s(S_T0)}, {s(S_T0)}, 7")
        e.op(f"s_and_b32 {s(S_T1)}, s2, 1")
        e.op(f"s_lshl3_add_u32 {s(S_T0)}, {s(S_T1)}, {s(S_T0)}")
        e.op(f"s_add_u32 {s(S_T5)}, {s(S_T0)}, {s(S_CG)}")
        self.pi_setup(S_T5, False)
        e.op(f"s_lshl2_add_u32 {s(S_T0)}, {s(S_T0)}, {s(S_WAVE)}")
        e.op(f"s_mul_i32 {s(S_T0)}, {s(S_T0)}, {32 * 1280}")
        e.op(f"s_lshl_b32 {s(S_T4)}, {s(S_CG)}, 8")
        e.op(f"s_movk_i32 {s(S_T2)}, 1280")
        e.op(f"s_movk_i32 {s(S_T3)}, {2 * (8 * 1280 - 1024)}")
        e.op(f"v_lshrrev_b32 {T1}, 4, {L}")
        e.op(f"v_and_b32 {T2}, 7, {L}")
        e.op(f"v_xor_b32 {T2}, {T2}, {T1}")
        e.op(f"v_lshl_add_u32 {T2}, {T2}, 4, {s(S_T0)}")
        e.op(f"v_lshrrev_b32 {T0}, 3, {L}")
        e.op(f"v_mad_u32_u24 {v(V_XD)}, {T0}, {s(S_T2)}, {T2}")
        e.op(f"v_xad_u32 {v(V_XD+2)}, {v(V_XD)}, 64, {s(S_T3)}")
        e.op(f"v_add_u32 {v(V_XD+1)}, {8 * 1280 - 1024}, {v(V_XD)}")
        e.op(f"v_add_u32 {v(V_XD+3)}, {8 * 1280 - 1024}, {v(V_XD+2)}")
        e.op(f"v_lshlrev_b32 {T2}, 2, {T1}")
        e.op(f"v_and_b32 {T3}, 15, {L}")
        e.op(f"v_xor_b32 {T2}, {T2}, {T3}")
        e.op(f"v_lshl_add_u32 {T2}, {T2}, 4, {s(S_T4)}")
        e.op(f"v_lshl_add_u32 {T1}, {s(S_WAVE)}, 4, {T1}")
        e.op(f"s_movk_i32 {s(S_T2)}, 3840")
        e.op(f"v_mad_u32_u24 {v(V_WD)}, {T1}, {s(S_T2)}, {T2}")
        e.op(f"s_movk_i32 {s(S_T3)}, {2 * (4 * 3840 - 1024)}")
        e.op(f"v_xad_u32 {v(V_WD+2)}, {v(V_WD)}, 16, {s(S_T3)}")
        for n in (1, 3): e.op(f"v_add_u32 {v(V_WD+n)}, {4 * 3840 - 1024}, {v(V_WD+n-1)}")
        e.op(f"s_lshl_b32 {s(S_WM0)}, {s(S_WAVE)}, 12")
        e.op(f"s_lshl2_add_u32 {s(S_XM0)}, {s(S_WM0)}, {L_X}")
        self.srd_tail(S_X, 2048 * 1280)
        self.srd_tail(S_WA, 640 * 3840)
        e.op(f"s_lshl2_add_u32 {s(S_T0)}, s2, {s(S_WAVE)}")
        e.op(f"s_mul_i32 {s(S_T0)}, {s(S_T0)}, 192")
        e.label("L_pc2")
        e.op(f"s_add_u32 {s(S_TAB)}, {s(S_TAB)}, wave_table@rel32@lo+(L_pc2+4-L_pc)")
        e.op(f"s_addc_u32 {s(S_TAB+1)}, {s(S_TAB+1)}, wave_table@rel32@hi+(L_pc2+12-L_pc)")
        e.op(f"s_add_u32 {s(S_TAB)}, {s(S_TAB)}, {s(S_T0)}")
        e.op(f"s_addc_u32 {s(S_TAB+1)}, {s(S_TAB+1)}, 0")
        e.wait(lg="all")
        self.flush_stamp()
        e.op(f"s_load_dwordx2 {s(S_PWO,2)}, s[0:1], 16")
        e.op(f"s_load_dwordx4 {s(S_PW2,4)}, s[0:1], 40")
        e.op(f"s_load_dwordx16 {s(TA,16)}, {s(S_TAB,2)}, 0")
        e.op(f"s_load_dwordx16 {s(TA+16,16)}, {s(S_TAB,2)}, 64")
        e.op("s_cmp_ge_u32 s2, 240")
        e.op("s_cbranch_scc1 L_spare")
        self.spare_snap = e.snapshot()

    def common_setup(self):
        e = self.e
        L = v(V_LANE)
        self.srd_tail(S_WB, 640 * 3456)
        self.srd_tail(S_WS, WS_SIZE)
        self.srd_tail(S_OUT, 2048 * 1280)
        self.srd_tail(S_DBG, 256)
        e.op(f"s_mov_b32 {s(S_MISC+3)}, 0x20000")
        e.op(f"v_lshlrev_b32 {v(V_L16)}, 4, {L}")
        e.op(f"v_mov_b32 {v(V_ZERO)}, 0")
        e.op(f"v_lshrrev_b32 {v(V_L16H)}, 5, {L}")
        e.op(f"v_lshl_add_u32 {v(V_L16H)}, {v(V_L16H)}, 26, {v(V_L16)}")
        e.op(f"s_mov_b32 {s(S_VM)}, 0xfffff")
        e.op(f"s_mov_b32 {s(S_VM+1)}, 0xfffff")
        e.op(f"s_mov_b32 {s(S_C1)}, 0x10000")
        e.op(f"s_mov_b32 {s(S_C2)}, 0x20000")

    def dma(self, st, m):
        e = self.e
        dm = S_T5 if st < 2 else S_DM
        if m == 0: srd, vd, k, base, lo = S_X, V_XD, st, S_XM0, (st % NX) * 4096
        elif st < 10: srd, vd, k, base, lo = S_WA, V_WD, st, S_WM0, L_W + (st % NW) * 16384
        else: srd, vd, k, base, lo, m = S_WB, V_WD2, self.xst(st), S_WM0, L_W + (st % NW) * 16384, 2
        def f(n):
            if n == 0:
                e.op(f"s_add_u32 m0, {s(base)}, {lo}")
                self.pi_off(dm, k, m)
            e.op(f"buffer_load_dwordx4 {v(vd+n)}, {s(srd,4)}, {s(dm)} offen offset:{n*1024} lds", tag=("d", st))
        return [lambda n=n: f(n) for n in range(4)]
    def dmas(self, st): return (self.dma(st, 0) if st < 10 else []) + self.dma(st, 1)

    P2X = (0, 1, 2, 7, 8, 9, 3, 4, 5, 6)
    def xst(self, st):
        return st if st < 10 else self.P2X[st - 10]

    def stage1_tables(self):
        e = self.e
        L = v(V_LANE); T0, T1, T2, T3 = v(V_T0), v(V_T1), v(V_T2), v(V_T3)
        P0, P1 = v(V_POLL), v(V_POLL + 1)
        e.op(f"s_movk_i32 {s(S_T2)}, 3456")
        e.op(f"v_mad_u32_u24 {v(V_WD2)}, {T1}, {s(S_T2)}, {T2}")
        e.op(f"s_movk_i32 {s(S_T3)}, {2 * (4 * 3456 - 1024)}")
        e.op(f"v_xad_u32 {v(V_WD2+2)}, {v(V_WD2)}, 16, {s(S_T3)}")
        for n in (1, 3): e.op(f"v_add_u32 {v(V_WD2+n)}, {4 * 3456 - 1024}, {v(V_WD2+n-1)}")
        e.op(f"v_and_b32 {P0}, 8, {L}")
        e.op(f"v_and_b32 {T0}, 15, {L}")
        e.op(f"v_add_u32 {P0}, {P0}, {T0}")
        e.op(f"v_lshrrev_b32 {P1}, 4, {L}")
        e.op(f"s_and_b32 {s(S_T0)}, {s(S_WAVE)}, 2")
        e.op(f"s_lshl_b32 {s(S_T0)}, {s(S_T0)}, 14")
        e.op(f"s_add_u32 {s(S_T0)}, {s(S_T0)}, {L_X}")
        e.op(f"v_bfe_u32 {T1}, {L}, 1, 3")
        e.op(f"v_xor_b32 {T1}, {T1}, {P1}")
        e.op(f"v_lshl_add_u32 {T1}, {T1}, 4, {s(S_T0)}")
        e.op(f"v_lshl_add_u32 {v(V_XR)}, {P0}, 7, {T1}")
        e.op(f"v_xor_b32 {v(V_XR+1)}, 64, {v(V_XR)}")
        e.op(f"s_and_b32 {s(S_T1)}, {s(S_WAVE)}, 1")
        e.op(f"s_lshl_b32 {s(S_T0)}, {s(S_T1)}, 3")
        e.op(f"v_and_b32 {T0}, 14, {L}")
        e.op(f"v_and_or_b32 {T0}, {P1}, 1, {T0}")
        e.op(f"v_xor_b32 {T0}, {s(S_T0)}, {T0}")
        e.op(f"v_and_b32 {T1}, 1, {L}")
        e.op(f"v_lshl_add_u32 {T0}, {T0}, 1, {T1}")
        e.op(f"v_bfe_u32 {T1}, {L}, 2, 2")
        e.op(f"v_lshl_add_u32 {T1}, {P1}, 3, {T1}")
        e.op(f"v_lshlrev_b32 {T1}, 8, {T1}")
        e.op(f"v_lshl_add_u32 {v(V_WR)}, {T0}, 3, {T1}")
        for j in range(1, 4): e.op(f"v_xor_b32 {v(V_WR+j)}, {(j >> 1) * 64 + (j & 1) * 16}, {v(V_WR)}")
        for j in range(4): e.op(f"v_add_u32 {v(V_WR+4+j)}, 0x10000, {v(V_WR+j)}")
        e.op(f"v_lshlrev_b32 {T0}, 4, {P0}")
        e.op(f"v_lshl_add_u32 {v(V_LH)}, {P1}, 9, {T0}")
        lv, ld = self.L("st1v"), self.L("st1d")
        e.op(f"s_cmp_ge_u32 {s(S_CG)}, 10")
        e.op(f"s_cbranch_scc1 {lv}")
        e.op(f"v_lshrrev_b32 {T0}, 5, {L}")
        e.op(f"v_mul_u32_u24 {T0}, {65536 - 1024}, {T0}")
        e.op(f"v_add_u32 {v(V_ST1)}, {T0}, {v(V_LH)}")
        for j in range(1, 4): e.op(f"v_add_u32 {v(V_ST1+j)}, {(j >> 1) * 131072 + (j & 1) * 128}, {v(V_ST1)}")
        e.op(f"s_branch {ld}")
        e.label(lv)
        e.op(f"s_lshl1_add_u32 {s(S_T1)}, {s(S_CG)}, {s(S_T1)}")
        e.op(f"s_lshl_b32 {s(S_T1)}, {s(S_T1)}, 6")
        e.op(f"s_sub_u32 {s(S_T1)}, {s(S_T1)}, 1280")
        e.op(f"v_add_u32 {T0}, {s(S_T1)}, {P0}")
        e.op(f"v_mul_u32_u24 {T2}, 640, {P1}")
        e.op(f"s_mov_b32 {s(S_T2)}, {64 * 2560 - 640}")
        for j in range(4):
            e.op(f"v_mul_u32_u24 {T3}, 1639, {T0}")
            e.op(f"v_lshrrev_b32 {T3}, 16, {T3}")
            e.op(f"v_lshl_add_u32 {T1}, {T0}, 4, {T2}")
            e.op(f"v_mad_u32_u24 {v(V_ST1+j)}, {T3}, {s(S_T2)}, {T1}")
            if j < 3: e.op(f"v_add_u32 {T0}, {24 if j & 1 else 8}, {T0}")
        e.label(ld)

    def late_lane_tables(self):
        e = self.e
        L = v(V_LANE); T0, T1, T2, T3 = v(V_T0), v(V_T1), v(V_T2), v(V_T3)
        e.op(f"v_and_b32 {T0}, 31, {L}")
        e.op(f"v_lshrrev_b32 {T1}, 5, {L}")
        e.op(f"v_lshlrev_b32 {v(V_R)}, 2, {T0}")
        e.op(f"s_lshl_b32 {s(S_T1)}, {s(S_WAVE)}, 10")
        e.op(f"s_add_u32 {s(S_T2)}, {s(S_T1)}, {L_K}")
        e.op(f"v_add_u32 {v(V_KA)}, {s(S_T2)}, {v(V_L16)}")
        e.op(f"s_mul_i32 {s(S_T1)}, {s(S_T1)}, 3")
        e.op(f"s_add_u32 {s(S_T1)}, {s(S_T1)}, {L_V}")
        e.op(f"v_lshl_add_u32 {T2}, {T1}, 7, {v(V_L16)}")
        e.op(f"v_add_u32 {v(V_VA)}, {s(S_T1)}, {T2}")
        e.op(f"v_lshlrev_b32 {T2}, 2, {T1}")
        e.op(f"v_sub_u32 {T2}, {T0}, {T2}")
        e.op(f"v_cvt_f32_i32 {T2}, {T2}")
        e.op(f"v_mov_b32 {T3}, {f32(2.0 ** 100)}")
        for rr in range(16):
            key = 8 * (rr >> 2) + (rr & 3)
            e.op(f"v_fmaak_f32 {v(CE + rr)}, {T2}, {T3}, {f32((0.5 - key) * 2.0 ** 100)}")
            e.op(f"v_min_f32 {v(CD + rr)}, 0, {v(CE + rr)}")
            e.op(f"v_min_f32 {v(CE + rr)}, -{v(CE + rr)}, 0")
        e.op(f"v_lshrrev_b32 {T1}, 4, {L}")
        e.op(f"v_lshl_add_u32 {v(V_HL)}, {T1}, 8, {v(V_L16)}")
    def late_table_use(self):
        e = self.e
        L = v(V_LANE); T0, T1, T2, T3 = v(V_T0), v(V_T1), v(V_T2), v(V_T3)
        for t in range(4): e.op(f"v_add_u32 {v(V_H + t)}, {s(S_HT + t)}, {v(V_HL)}")
        for k in range(3): e.op(f"v_add_u32 {v(V_KT + k)}, {s(S_KADJ + k)}, {v(V_L16)}")
        e.op(f"v_add_u32 {v(V_Q)}, {s(S_QOFF)}, {v(V_L16)}")
        e.op(f"v_lshl_add_u32 {v(V_R)}, {s(S_TQ)}, 8, {v(V_R)}")
        e.op(f"v_add_u32 {v(V_R)}, {WS_G}, {v(V_R)}")
        e.op(f"v_mov_b32 {v(V_FD)}, {s(S_PFD)}")
        e.op(f"v_lshrrev_b32 {T0}, 1, {L}")
        e.op(f"v_min_u32 {T0}, 14, {T0}")
        e.op(f"v_and_b32 {T1}, 1, {L}")
        e.op(f"v_lshl_add_u32 {T1}, {T1}, 3, {s(S_PFC)}")
        e.op(f"v_lshl_add_u32 {v(V_FC)}, {T0}, 7, {T1}")
        e.op(f"v_writelane_b32 {v(V_FC)}, {s(S_PFG)}, 63")
        e.op(f"s_lshr_b32 {s(S_T0)}, {s(S_TQ)}, 2")
        e.op(f"s_sub_u32 {s(S_T0)}, {s(S_T0)}, 2")
        e.op(f"v_lshrrev_b32 {T0}, 4, {L}")
        e.op(f"v_min_u32 {T0}, 2, {T0}")
        e.op(f"v_add_u32 {T0}, {s(S_T0)}, {T0}")
        e.op(f"v_max_i32 {T0}, 0, {T0}")
        e.op(f"v_and_b32 {T1}, 3, {L}")
        e.op(f"v_lshl_add_u32 {T1}, {T1}, 3, {s(S_PFA)}")
        e.op(f"v_lshl_add_u32 {T0}, {T0}, 11, {T1}")
        e.op(f"v_bfe_u32 {T1}, {L}, 2, 1")
        e.op(f"v_mad_u32_u24 {T0}, {T1}, {s(S_ASTEP)}, {T0}")
        e.op(f"v_cmp_gt_u32 vcc, 48, {L}")
        e.op(f"v_bfe_u32 {T1}, {L}, 3, 1")
        e.op(f"v_add_u32 {T1}, 1, {T1}")
        e.op(f"v_mul_u32_u24 {T1}, 640, {T1}")
        e.op(f"v_cndmask_b32 {T1}, 0, {T1}, vcc")
        e.op(f"v_add_u32 {v(V_FA)}, {T0}, {T1}")

    def rt_tables(self, base):
        e = self.e
        L = v(V_LANE); T0, T1, T2, T3 = v(V_T0), v(V_T1), v(V_T2), v(V_T3)
        P0, P1 = v(V_POLL), v(V_POLL + 1)
        e.op(f"s_and_b32 {s(S_T0)}, {s(S_WAVE)}, 1")
        e.op(f"s_mul_i32 {s(S_T0)}, {s(S_T0)}, 160")
        e.op(f"v_add_u32 {T0}, {s(S_T0)}, {L}")
        for i in range(3):
            e.op(f"v_mul_u32_u24 {T1}, 820, {T0}")
            e.op(f"v_lshrrev_b32 {T1}, 16, {T1}")
            e.op(f"v_lshlrev_b32 {T1}, 2, {T1}")
            e.op(f"v_xor_b32 {T1}, {T0}, {T1}")
            e.op(f"v_lshlrev_b32 {v(RT_LD + i)}, 4, {T1}")
            if i < 2: e.op(f"v_add_u32 {T0}, 64, {T0}")
        e.op(f"v_lshrrev_b32 {T0}, 4, {L}")
        e.op(f"v_and_b32 {T1}, 3, {L}")
        e.op(f"v_bfe_u32 {P1}, {L}, 2, 2")
        e.op(f"v_lshlrev_b32 {T3}, 3, {P1}")
        e.op(f"v_mul_u32_u24 {P1}, 1280, {P1}")
        e.op(f"v_add_u32 {P1}, {base}, {P1}")
        e.op(f"s_mul_i32 {s(S_T0)}, {s(S_WAVE)}, 40")
        e.op(f"v_and_b32 {P0}, 1, {T0}")
        e.op(f"v_lshl_add_u32 {T2}, {T1}, 1, {P0}")
        e.op(f"v_lshrrev_b32 {v(RT_D)}, 5, {L}")
        e.op(f"v_lshl_add_u32 {T2}, {v(RT_D)}, 3, {T2}")
        e.op(f"v_add_u32 {T2}, {s(S_T0)}, {T2}")
        for i in range(2):
            if i: e.op(f"v_add_u32 {T2}, 20, {T2}")
            e.op(f"v_xor_b32 {v(RT_D)}, {T2}, {T3}")
            e.op(f"v_lshl_add_u32 {v(RT_RD + i)}, {v(RT_D)}, 3, {P1}")
        e.op(f"v_mad_u32_u24 {T2}, {P0}, 20, {T1}")
        e.op(f"v_add3_u32 {T2}, {T2}, {s(S_T0)}, 16")
        e.op(f"v_xor_b32 {T2}, {T2}, {T3}")
        e.op(f"v_lshl_add_u32 {v(RT_RD + 2)}, {T2}, 3, {P1}")
        e.op(f"v_mul_u32_u24 {T0}, {1024 - 256}, {T0}")
        e.op(f"v_add_u32 {v(RT_ST)}, {T0}, {v(V_L16)}")
        e.op(f"v_add_u32 {v(RT_ST + 1)}, {74 * 5120}, {v(RT_ST)}")
        e.op(f"s_mov_b32 {s(S_T0)}, {74 * 5120 - 256}")
        e.op(f"v_mad_u32_u24 {T0}, {P0}, {s(S_T0)}, {v(V_L16H)}")
        e.op(f"v_add_u32 {v(RT_ST + 2)}, 4096, {T0}")
    def rt_srd(self):
        e = self.e
        e.op(f"s_bitcmp1_b32 {s(S_BITS)}, 1")
        e.op(f"s_cselect_b64 {s(S_MISC,2)}, {s(S_PWO,2)}, {s(S_PW2,2)}")
        e.op(f"s_mov_b32 {s(S_MISC+2)}, {640 * 1280}")
        e.op(f"s_cselect_b32 {s(S_MISC+2)}, {s(S_MISC+2)}, {1728 * 1280}")
        e.op(f"s_mul_i32 {s(S_T0)}, {s(S_WAVE)}, 2560")
    def rt_loads(self, base, src):
        e = self.e
        for i in range(3):
            e.op(f"s_add_u32 m0, {s(S_T0)}, {base + i * 1024}")
            if i == 2: e.op("s_mov_b32 exec_hi, 0")
            e.op(f"buffer_load_dwordx4 {v(RT_LD + i)}, {s(S_MISC,4)}, {s(src)} offen {self.nt}lds", tag="rl")
            if i == 2: e.op("s_mov_b32 exec_hi, -1")
    def rt_reads(self, lo_=0, D=RT_D):
        return [lambda i=i, u=u: self.e.op(f"ds_read_b64_tr_b16 {v(D + 4 * i + 2 * u, 2)}, {v(RT_RD + i)} offset:{lo_ + u * 5120}", tag=("rt", i))
                for i in range(3) for u in range(2)]
    def rt_stores(self, D=RT_D, so=S_RTS):
        e = self.e
        def st(i):
            e.wait(lg=("rt", i))
            e.op(f"buffer_store_dwordx4 {v(D + 4 * i, 4)}, {v(RT_ST + i)}, {s(S_WS,4)}, {s(so)} offen sc1", tag="rs")
        return [lambda i=i: st(i) for i in range(3)]

    EARLY_W = (0, 1, 2, 3)
    def w_loads(self, n):
        e = self.e
        def f(j):
            dst = r(WR + 20 * (n % NWR) + 4 * j, 4)
            if n == 13:
                if j in (0, 4):
                    e.op(f"s_add_u32 {s(S_T2)}, {s(S_WT0)}, {n * 4 * 5120 - 2048 + (4096 if j else 0)}")
                    e.op(f"s_cmp_lt_u32 {s(S_WAVE)}, 2")
                    e.op(f"s_cselect_b32 {s(S_T2)}, {s(S_T2)}, {OOB}")
                e.op(f"buffer_load_dwordx4 {dst}, {v(V_L16)}, {s(S_WS,4)}, {s(S_T2)} offen offset:{(j & 3) * 1024} sc1", tag=("w", n, j))
                return
            if j == 0:
                base, off = (S_WT0, n * 4 * 5120) if n < 14 else (S_WT1, (n - 14) * 5120)
                if self.wv is None or self.wv[0] != base:
                    e.op(f"v_add_u32 {v(V_WV)}, {s(base)}, {v(V_L16)}")
                    self.wv = (base, 0)
                if off != self.wv[1]: e.op(f"v_add_u32 {v(V_WV)}, {off - self.wv[1]}, {v(V_WV)}")
                self.wv = (base, off)
            e.op(f"global_load_dwordx4 {dst}, {v(V_WV)}, {s(S_WS,2)} offset:{j * 1024 - 2048} sc1", tag=("w", n, j))
        return [lambda j=j: f(j) for j in range(5)]
    @property
    def TM(self): return self.o("tm", 3)
    def hreg(self, n, t):
        n0 = 19 - self.TM
        if n < n0: return HSLOT[n % NH] + 4 * t
        i = self.TM * t + (n - n0)
        return HSLOT[(n0 + i // 4) % NH] + 4 * (i % 4)
    def h_load(self, n, t):
        e = self.e
        dst = v(self.hreg(n, t), 4)
        if n >= 14:
            q = n - 14
            so = ("0", s(S_C1), s(S_C2))[q >> 1]
            e.op(f"buffer_load_dwordx4 {dst}, {v(V_O + t)}, {s(S_WS,4)}, {so} offen offset:{(q & 1) * 2048} sc1", tag=("h", n, t))
            return
        if t == 0 and n > 0:
            e.op(f"s_mov_b32 {s(S_HK)}, {n * 8192}")
            if n == 13:
                e.op(f"s_cmp_lt_u32 {s(S_WAVE)}, 2")
                e.op(f"s_cselect_b32 {s(S_HK)}, {s(S_HK)}, {OOB}")
            self.hk = n
        assert n == 0 or self.hk == n
        e.op(f"buffer_load_dwordx4 {dst}, {v(V_H + t)}, {s(S_WS,4)}, {s(S_HK) if n else 0} offen sc1", tag=("h", n, t))
    def kvq_loads(self):
        e = self.e
        so = ("0", s(S_C1), s(S_C2))
        def q(f): e.op(f"buffer_load_dwordx4 {v(VQ + 4 * f, 4)}, {v(V_Q)}, {s(S_WS,4)}, {so[f]} offen sc1", tag="q")
        def k(f, i):
            if f == 0 and i == 0: e.op(f"s_mul_i32 {s(S_T5)}, {s(S_WAVE)}, 3072")
            if i == 0: e.op(f"s_add_u32 m0, {s(S_T5)}, {L_K + f * 12288}")
            e.op(f"buffer_load_dwordx4 {v(V_KT + i)}, {s(S_WS,4)}, {so[f]} offen offset:{i * 1024} sc1 lds", tag="kd")
        def vv(i, n):
            if i == 0 and n == 0: e.op(f"s_mul_i32 {s(S_T5)}, {s(S_WAVE)}, 9216")
            if n == 0: e.op(f"s_add_u32 m0, {s(S_T5)}, {L_V + i * 3072}")
            e.op(f"buffer_load_dwordx4 {v(V_L16H if n == 2 else V_L16)}, {s(S_WS,4)}, {s(S_VOFF + i)} offen offset:{n * 1024} sc1 lds", tag="vd")
        return [lambda f=f: q(f) for f in range(3)] + [lambda f=f, i=i: k(f, i) for f in range(3) for i in range(3)] + \
               [lambda i=i, n=n: vv(i, n) for i in range(3) for n in range(3)]

    def frag(self, st, f):
        return ((f >> 1) & 1, (f >> 2) * 2 + (f & 1)) if st == 19 else (f >> 2, f & 3)
    def w_read(self, st, f, u):
        ks, j = self.frag(st, f)
        off = L_W + (st % NW) * 16384 + ks * 8192 + u * 1024
        ad = V_WR + j
        if off >= 65536: off -= 65536; ad += 4
        self.e.op(f"ds_read_b64_tr_b16 {v(V_FR + 4 * f + 2 * u, 2)}, {v(ad)} offset:{off}", tag=("w", st, f))
    def xreg(self, xs, ks, tt): return A_X + 32 * min(xs, NXR) + 16 * ks + 4 * tt
    def x_read(self, st, ks, tt):
        xs = self.xst(st)
        self.e.op(f"ds_read_b128 {r(self.xreg(xs, ks, tt), 4)}, {v(V_XR + ks)} offset:{(tt >> 1) * 16384 + (xs % NX) * 4096 + (tt & 1) * 1024}", tag=("x", st, ks, tt))
    def accreg(self, ps, tt, j, swap):
        b, p, G, q = tt >> 1, tt & 1, j >> 1, j & 1
        return ACC[ps] + 32 * G + (16 * q + 8 * b + 4 * p if swap else 16 * p + 8 * b + 4 * q)

    LEAD = 10
    def stage1_fill(self):
        e = self.e
        fill = {m: [] for m in range(-1, 640)}
        used = {m: 0 for m in range(-1, 640)}
        def at(m, f, n=1):
            fill[max(m, -1)].append(f); used[max(m, -1)] += n
        WG = (1, 5, 8, 11, 14, 18, 21, 24)
        XG = (2, 2, 3, 3, 12, 15, 16, 19)
        for st in range(20):
            b = 32 * st - self.LEAD
            def bar(st=st):
                assert ("d", st) in e.all_tags
                e.wait(vm=("d", st), lg="all")
                e.op("s_barrier")
            at(b, bar, 2)
            for f in range(8):
                for u in range(2): at(b + WG[f], lambda st=st, f=f, u=u: self.w_read(st, f, u))
                if st < 10 or self.xst(st) >= NXR:
                    at(b + XG[f], lambda st=st, f=f: self.x_read(st, f >> 2, f & 3))
            for g in (9, 13, 17, 25): used[max(b + g, -1)] += 1
        return fill, used

    def vm_schedule(self, fill, used, queues, m0, m1, thr):
        lag = 0
        for m in range(m0, m1):
            lag = max(0, lag - 16)
            heads = [q for q in queues if q and q[0][0] <= m]
            if not heads: continue
            q = min(heads, key=lambda q: q[0][1])
            if used[m] and q[0][1] + 3 > m: continue
            if q[0][1] <= m or lag <= thr:
                rel, dl, cost, f = q.pop(0)
                fill[m].append(f); used[m] += 2
                lag = min(lag, 3 * 72) + cost
        assert not any(queues), [len(q) for q in queues]
    def va_place(self, fill, used, ops, m0, m1):
        cap = 2
        while sum(max(0, cap - used[m]) for m in range(m0, m1)) < len(ops): cap += 1
        over = len(ops) - sum(max(0, cap - 1 - used[m]) for m in range(m0, m1)) if cap > 2 else len(ops)
        ops = list(ops)
        for m in range(m0, m1):
            n = max(0, cap - 1 - used[m]) if cap > 2 else 0
            ex = max(0, cap - used[m]) - n
            ex = min(ex, over); over -= ex
            for _ in range(n + ex):
                if ops: fill[m].append(ops.pop(0)); used[m] += 1
        assert not ops

    def p1_epilogue_ops(self):
        e = self.e
        groups = []
        for g in range(8):
            A = ACC[0] + 8 * g
            ops = [lambda A=A, q=q: e.op(f"v_mul_f32 {v(A+q)}, {s(S_SCALE)}, {v(A+q)}") for q in range(8)]
            ops += [lambda A=A, q=q: e.op(f"v_cvt_pk_bf16_f32 {v(A+q)}, {v(A+2*q)}, {v(A+2*q+1)}") for q in range(4)]
            ops.append(lambda A=A, g=g: e.op(f"buffer_store_dwordx4 {v(A,4)}, {v(V_ST1 + (g >> 1))}, {s(S_WS,4)}, {s(S_ST1B if g & 1 else S_ST1)} offen sc1", tag="st1"))
            groups.append(ops)
        return groups
    def p2_epilogue_ops(self):
        e = self.e
        groups = []
        for g in range(8):
            A = ACC[1] + 8 * g
            ops = [lambda A=A, q=q: e.op(f"v_cvt_pk_bf16_f32 {v(A+q)}, {v(A+2*q)}, {v(A+2*q+1)}") for q in range(4)]
            ops += [lambda A=A, q=q: e.op(f"v_pk_max_i16 {v(A+q)}, {v(A+q)}, 0") for q in range(4)]
            ops.append(lambda A=A, g=g: e.op(f"buffer_store_dwordx4 {v(A,4)}, {v(V_LH)}, {s(S_WS,4)}, {s(S_ST2B if g & 1 else S_ST2)} offen offset:{(g >> 2) * 2048 + ((g >> 1) & 1) * 128} sc1", tag="st2"))
            groups.append(ops)
        return groups

    def stage1_stream(self, fill, m0, m1, swap):
        e = self.e
        for m in range(m0, m1):
            st, i = divmod(m, 32)
            f, tt = i >> 2, i & 3
            ks, j = self.frag(st, f)
            if ("w", st, f) in e.lg or ("x", st, ks, tt) in e.lg:
                e.wait(lg=[("w", st, f), ("x", st, ks, 3)] + ([("w", st, f + 1)] if f in (2, 4) else []))
            acc = v(self.accreg(st // 10, tt, j, swap), 4)
            wf = v(V_FR + 4 * f, 4)
            xf = r(self.xreg(self.xst(st), ks, tt), 4)
            c = "0" if (st % 10 == 0 and ks == 0) else acc
            if swap: e.op(f"v_mfma_f32_16x16x32_bf16 {acc}, {xf}, {wf}, {c}")
            else: e.op(f"v_mfma_f32_16x16x32_bf16 {acc}, {wf}, {xf}, {c}")
            for fn in fill[m]: fn()

    def ones_init(self):
        return [lambda i=i: self.e.op(f"v_mov_b32 {v(VF + i)}, 0x3f803f80") for i in range(8)]

    def stage1(self):
        e = self.e
        lead = self.LEAD
        for f in self.dmas(0): f()
        self.pi_setup(None, True)
        self.common_setup()
        self.stage1_tables()
        d1 = self.dmas(1)
        for f in d1[:4]: f()
        self.rt_tables(L_RT)
        self.late_lane_tables()
        for f in d1[4:]: f()
        e.wait(lg="all")
        self.flush_stamp()
        self.rt_srd()
        self.rt_loads(L_RT, S_RTSRC)
        self.late_table_use()
        fill, used = self.stage1_fill()
        vfill = {m: [] for m in range(-1, 640)}
        G2 = lambda k, d: 2 * self.o(k, d)
        dq = []
        for st in range(2, 20):
            d = self.dmas(st)
            rel = 32 * (st - (2 if st < 10 else 4)) - lead + 1
            g0 = max(32 * (st - 2) - lead + 1, 0); g1 = 32 * (st - 1) - lead - 2
            dq += [(rel, g0 + i * (g1 - g0) // len(d), 72, f) for i, f in enumerate(d)]
        pA, cA = G2("pollA", 260), G2("chkA", 279)
        assert cA > 32 * 16 - lead
        kv = self.kvq_loads()
        dq += [(cA + 1, cA + 1 + i * (634 - cA) // len(kv), 72, f) for i, f in enumerate(kv)]
        rs0 = G2("rs0", 46)
        for i, f in enumerate(self.rt_reads()):
            fill[96 - lead - 6 + i // 2].append(f); used[96 - lead - 6 + i // 2] += 1
        sq = [(rs0 + 12 * i, rs0 + 12 * i, 128, f) for i, f in enumerate(self.rt_stores())]
        sq.append((rs0 + 28, rs0 + 28, 20, self.nonce_issue))
        pd = (rs0 + 28 + 48 + lead + 31) // 32 * 32 - lead
        fill[pd].insert(0, self.nonce_check)
        sq.append((pd + 1, pd + 1, 20, lambda: self.publish(S_RTF)))
        sp, e0 = G2("epi", 5), 321
        epi1 = self.p1_epilogue_ops()
        for g, ops in enumerate(epi1): sq.append((e0 + sp * (g + 1), e0 + sp * (g + 1), self.o("stc", 160), ops[-1]))
        def pub_a():
            e.wait(vm="st1")
            self.publish(S_FLA)
        pD, cD = G2("pollD", 222), G2("chkD", 240)
        assert cD >= 32 * 13
        sq += sorted([(pD, pD, 20, lambda: self.poll_issue(V_FD)), (G2("pubA", 224), G2("pubA", 224), 20, pub_a)], key=lambda x: x[0])
        vfill[cD].append(lambda: self.poll_check(V_FD, 1)); used[cD] += 3
        sq.append((pA, pA, 30, lambda: self.poll_issue(V_FA)))
        vfill[cA].append(lambda: self.poll_check(V_FA, 0)); used[cA] += 3
        vfill[cA].append(lambda: self.stamp(3))
        ew = sum([self.w_loads(n) for n in self.EARLY_W], [])
        wq = [(cD + 1, cA - 4 * (len(ew) - i), 72, f) for i, f in enumerate(ew)]
        self.vm_schedule(fill, used, [dq, sq, wq], 0, 640, self.o("thr", 40))
        for g, ops in enumerate(epi1): self.va_place(vfill, used, ops[:-1], e0 + sp * g, e0 + sp * (g + 1))
        self.va_place(vfill, used, self.ones_init(), e0 + sp * 8 + 8, e0 + sp * 8 + 40)
        epi2 = self.p2_epilogue_ops()
        self.p2_stores_left = [g[-1] for g in epi2]
        va = sum([g[:-1] for g in epi2], [])
        nh = self.o("p2h", 24)
        self.va_place(vfill, used, va[:nh], 626, 640)
        self.p2_valu_left = va[nh:]
        z = self.o("zoom", 0)
        if z in (1, 2):
            for k in range(11):
                m = min(320 * (z - 1) + 32 * k - 1, 639 if z == 2 else 318)
                if z == 2 and k == 0: m = 320
                vfill[m].append(lambda k=k: self.stamp(1 + k, True))
            vfill[319].append(self.flush_stamp)
        for m in fill: fill[m] += vfill[m]
        for fn in fill[-1]: fn()
        if z == 1: self.flush_stamp()
        self.stamp(1)
        e.op(f"s_cmp_ge_u32 {s(S_CG)}, 10")
        e.op("s_cbranch_scc1 L_p1v")
        snap = e.snapshot()
        self.stage1_stream(fill, 0, 320, False)
        e.op("s_branch L_p2")
        after = e.snapshot()
        e.restore(snap)
        e.label("L_p1v")
        self.stage1_stream(fill, 0, 320, True)
        e.op(f"s_cmp_eq_u32 {s(S_CG)}, 14")
        e.op("s_cbranch_scc1 L_gate")
        self.gate_snap = e.snapshot()
        assert after[0] == e.vm and after[1] == e.lg
        e.label("L_p2")
        self.stamp(2)
        self.wv = None
        self.stage1_stream(fill, 320, 640, False)
        self.flush_stamp()

    def side_tail(self, early=True):
        e = self.e
        if early:
            self.poll_issue(V_FD)
            for f in self.ones_init(): f()
            self.poll_check(V_FD, 1)
            self.wv = None
            ew = sum([self.w_loads(n) for n in self.EARLY_W], [])
            for f in ew[:12]: f()
            self.poll_issue(V_FA)
            for f in ew[12:]: f()
        self.poll_check(V_FA, 0)
        for f in self.kvq_loads(): f()
        e.wait(lg="all")
        n = len(self.att_vm)
        assert e.vm[-21:] == self.att_vm[-21:] and all(t[0] == "w" for t in self.att_vm[:-21])
        e.op("s_branch L_att")

    def gate(self):
        e = self.e
        T1, T2, T3 = v(V_T1), v(V_T2), v(V_T3)
        e.restore(self.gate_snap)
        e.label("L_gate")
        e.op(f"s_mov_b64 {s(S_MISC,2)}, {s(S_PG,2)}")
        e.op(f"s_movk_i32 {s(S_MISC+2)}, 1280")
        e.op(f"s_lshr_b32 {s(S_T3)}, {s(S_WM0)}, 1")
        e.op(f"s_add_u32 {s(S_T3)}, {s(S_T3)}, {L_V + 12 * 3072}")
        e.op(f"s_mov_b32 m0, {s(S_T3)}")
        e.op(f"v_lshrrev_b32 {T1}, 4, {v(V_LANE)}")
        for n in range(2):
            e.op(f"buffer_load_dwordx4 {v(V_L16)}, {s(S_MISC,4)}, 0 offen offset:{n * 1024} lds", tag="gw")
        e.op(f"v_lshl_add_u32 {T1}, {T1}, 4, {s(S_T3)}")
        e.wait(lg="all")
        epi = self.p1_epilogue_ops()
        for g in epi:
            for f in g[:-1]: f()
        side = [g[-1] for g in epi]
        self.wv = None
        ew = sum([self.w_loads(n) for n in self.EARLY_W], [])
        side[0](); side[1]()
        side = side[2:]
        e.wait(vm="gw")
        G = 32
        order = [9, 0, 1, 8, 2, 3, 7, 4, 5, 6]
        def gread(k):
            if k % 2 == 0:
                self.pi_off(S_T4, order[k // 2], 0)
                e.op(f"v_add_u32 {T2}, {s(S_T4)}, {T1}")
            e.op(f"ds_read_b128 {v(G + 4 * (k % 4), 4)}, {T2} offset:{64 * (k % 2)}", tag=("g", k))
        for k in range(4): gread(k)
        for k in range(20):
            xs, ks = order[k // 2], k % 2
            e.wait(lg=[("g", k), ("x", xs, ks, 3)])
            for tt in range(4):
                e.op(f"v_mfma_f32_16x16x32_bf16 {v(48 + 4 * tt, 4)}, {v(G + 4 * (k % 4), 4)}, {r(self.xreg(xs, ks, tt), 4)}, {'0' if k == 0 else v(48 + 4 * tt, 4)}")
                if k in (2, 3, 8, 9): self.x_read(8 if k < 8 else 7, ks, tt)
            if k + 4 < 20: gread(k + 4)
            if k % 2 == 0 and side: side.pop(0)()
            if k == 17: self.poll_issue(V_FD)
        e.op("s_barrier")
        for f in self.ones_init(): f()
        e.op(f"s_bitcmp1_b32 {s(S_WAVE)}, 0")
        e.op(f"s_cselect_b64 {s(S_MASK,2)}, -1, 0")
        e.op("s_mov_b32 vcc_lo, 0xffff0000")
        e.op("s_mov_b32 vcc_hi, 0xffff0000")
        e.op(f"v_cndmask_b32 v0, v48, v56, {s(S_MASK,2)}")
        e.op(f"v_cndmask_b32 v4, v52, v60, {s(S_MASK,2)}")
        e.op("v_cndmask_b32 v0, v0, v4, vcc")
        e.op(f"v_min_f32 {T1}, {f32(30.0)}, v0")
        e.op(f"v_mul_f32 {T1}, {f32(LOG2E)}, {T1}")
        e.op(f"v_exp_f32 {T1}, {T1}")
        e.op(f"v_add_f32 {T2}, 1.0, {T1}")
        e.op(f"v_rcp_f32 {T2}, {T2}")
        e.op(f"v_cmp_gt_u32 vcc, 32, {v(V_LANE)}")
        e.op(f"v_and_b32 {T3}, 39, {v(V_LANE)}")
        e.op(f"v_bfe_u32 v1, {v(V_LANE)}, 3, 1")
        e.op(f"v_lshl_add_u32 {T3}, v1, 4, {T3}")
        e.op(f"v_bfe_u32 v1, {v(V_LANE)}, 4, 1")
        e.op(f"v_lshl_add_u32 {T3}, v1, 3, {T3}")
        e.op(f"v_lshlrev_b32 {T3}, 2, {T3}")
        e.op(f"s_lshl_b32 {s(S_T1)}, {s(S_TB1)}, 8")
        e.op(f"s_add_u32 {s(S_T1)}, {s(S_T1)}, {WS_G}")
        e.op(f"v_cndmask_b32 {T1}, {T2}, {T1}, vcc")
        e.op(f"buffer_store_dword {T1}, {T3}, {s(S_WS,4)}, {s(S_T1)} offen sc1", tag="gs")
        e.wait(vm="st1")
        self.publish(S_FLA)
        self.poll_check(V_FD, 1)
        for f in ew[:12]: f()
        e.wait(vm="gs")
        self.publish(S_FLA, 32)
        for f in ew[12:16]: f()
        self.poll_issue(V_FA)
        for f in ew[16:]: f()
        self.side_tail(False)

    def spare(self):
        e = self.e
        e.restore(self.spare_snap)
        e.label("L_spare")
        L = v(V_LANE); T0, T1, T2, T3 = v(V_T0), v(V_T1), v(V_T2), v(V_T3)
        self.common_setup()
        e.op(f"v_mov_b32 {v(V_LH)}, 0")
        e.op(f"s_memrealtime {s(S_NONCE,2)}")
        self.rt_tables(0)
        e.op(f"s_sub_u32 {s(S_T1)}, s2, 240")
        e.op(f"s_lshl2_add_u32 {s(S_T1)}, {s(S_T1)}, {s(S_WAVE)}")
        e.op(f"s_lshl_b32 {s(S_T2)}, {s(S_T1)}, 13")
        e.op(f"v_lshl_add_u32 {v(225)}, {L}, 7, {s(S_T2)}")
        def touch(m):
            if self.o("pf2", 1):
                e.op(f"s_mov_b32 {s(S_T2)}, {m * 4096 * 128}")
                e.op(f"buffer_load_dword {v(224)}, {v(225)}, {s(S_WB,4)}, {s(S_T2)} offen")
        e.wait(lg="all")
        self.flush_stamp()
        e.op(f"s_or_b32 {s(S_T2)}, {s(S_NONCE)}, 1")
        e.op(f"v_mov_b32 {v(V_NONCE)}, {s(S_T2)}")
        e.op(f"v_mov_b32 {v(V_NONCE+1)}, {s(S_NONCE+1)}")
        e.op(f"s_cmp_lg_u32 {s(S_T1)}, 0")
        e.op("s_cbranch_scc1 L_nononce")
        e.op("s_mov_b64 exec, 1")
        e.op(f"buffer_store_dwordx2 {v(V_NONCE,2)}, {v(V_ZERO)}, {s(S_DBG,4)}, 0 offen sc1")
        e.op("s_mov_b64 exec, -1")
        e.label("L_nononce")
        self.rt_srd()
        for m, src in enumerate((S_RTSRC, S_ST1, S_ST1B, S_SCALE)): self.rt_loads(m * 10240, src)
        touch(0)
        self.late_lane_tables()
        self.late_table_use()
        e.wait(vm="rl")
        e.op("s_barrier")
        self.stamp(1)
        touch(1)
        for m in range(4):
            if m: e.op(f"s_add_u32 {s(S_RTS)}, {s(S_RTS)}, {4 * 5120}")
            if m == 3:
                e.op("s_cmp_lt_u32 s2, 248")
                e.op(f"s_cselect_b32 {s(S_RTS)}, {s(S_RTS)}, {OOB}")
            for f in self.rt_reads(m * 10240, 96 + 12 * m) + self.rt_stores(96 + 12 * m): f()
        self.nonce_issue()
        touch(2)
        self.nonce_check()
        e.op("s_barrier")
        for m in range(4):
            if m == 2: e.op(f"s_add_u32 {s(S_RTF)}, {s(S_RTF)}, 4096")
            self.publish(S_RTF, (m & 1) * 2048)
        self.stamp(3)
        touch(3); touch(4)
        self.flush_stamp()
        e.op("s_cmp_ge_u32 s2, 248")
        e.op("s_cbranch_scc1 L_noagg")
        snap = e.snapshot()
        e.op(f"v_lshl_add_u32 {T0}, {s(S_WAVE)}, 6, {L}")
        e.op(f"v_lshlrev_b32 {T1}, 7, {T0}")
        e.op(f"v_add_u32 {v(225)}, {FL_D}, {T1}")
        e.op(f"v_min_u32 {T0}, 39, {T0}")
        e.op(f"v_lshlrev_b32 {T1}, 7, {T0}")
        e.op(f"v_add_u32 {v(226)}, {FL_D + 256 * 128}, {T1}")
        e.op(f"buffer_load_dwordx2 {v(V_T2,2)}, {v(226)}, {s(S_WS,4)}, 0 offen sc1")
        self.poll_issue(225); self.poll_check(225, 4)
        e.op(f"v_mov_b32 {v(V_POLL)}, {T2}")
        e.op(f"v_mov_b32 {v(V_POLL + 1)}, {T3}")
        self.open_poll = 226; self.poll_check(226, 4)
        e.op("s_barrier")
        e.op(f"s_cmp_eq_u32 {s(S_WAVE)}, 0")
        e.op(f"s_cselect_b32 {s(S_T1)}, {s(S_PFD)}, {OOB}")
        self.publish(S_T1)
        e.wait(vm="all")
        e.restore(snap)
        e.label("L_noagg")
        self.stamp(2)
        self.flush_stamp()
        self.side_tail()

    def k_reads(self, u):
        h, j = divmod(u, 9)
        for ff in range(2):
            self.e.op(f"ds_read_b128 {v(KF + 4 * ff, 4)}, {v(V_KA)} offset:{(h + ff) * 12288 + j * 1024}", tag="k")
    def v_reads(self, u):
        h, j = divmod(u, 9)
        e = self.e
        e.op(f"s_mov_b64 exec, {s(S_VM,2)}")
        for ss in range(2):
            e.op(f"ds_read_b128 {v(VF + 4 * ss, 4)}, {v(V_VA)} offset:{j * 3072 + ss * 1280 + h * 320}", tag="v")
        e.op("s_mov_b64 exec, -1")
    def qk(self, u, part, S, lo=False):
        h, j = divmod(u, 9)
        c = v(S, 16) if part else v(CD, 16) if j == 8 else v(CE, 16) if (j == 0 or lo) else "0"
        self.e.op(f"v_mfma_f32_32x32x16_bf16 {v(S,16)}, {v(KF + 4 * part, 4)}, {v(QM + 8 * h + 4 * part, 4)}, {c}")
    def pv(self, u, part, S, first):
        O = v(OO[u // 9], 16)
        self.e.op(f"v_mfma_f32_32x32x16_bf16 {O}, {v(VF + 4 * part, 4)}, {v(S + 4 * part, 4)}, {'0' if first else O}")

    def q_mask(self):
        e = self.e
        lo, dn = self.L("qodd"), self.L("qdone")
        e.op(f"s_mov_b32 {s(S_MASK)}, -1")
        e.op(f"s_mov_b32 {s(S_MASK+1)}, 0")
        e.op(f"s_bitcmp1_b32 {s(S_BITS)}, 0")
        e.wait(vm="q")
        e.op(f"s_cbranch_scc1 {lo}")
        for par in range(2):
            if par: e.label(lo)
            for h in range(2):
                for ff in range(2):
                    for slot in range(2):
                        p0 = 4 * (h + ff) + 2 * slot - 2 * par - 5 * h
                        k0, k1 = 0 <= p0 < 5, 0 <= p0 + 1 < 5
                        for d in range(2):
                            dst, src = v(QM + 8 * h + 4 * ff + 2 * slot + d), v(VQ + 4 * (h + ff) + 2 * slot + d)
                            if k0 and k1: e.op(f"v_mov_b32 {dst}, {src}")
                            elif k0: e.op(f"v_cndmask_b32 {dst}, 0, {src}, {s(S_MASK,2)}")
                            elif k1: e.op(f"v_cndmask_b32 {dst}, {src}, 0, {s(S_MASK,2)}")
                            else: e.op(f"v_mov_b32 {dst}, 0")
            if not par: e.op(f"s_branch {dn}")
        e.label(dn)

    def attention(self):
        e = self.e
        e.label("L_att")
        self.att_vm = list(e.vm)
        self.stamp(4)
        T0 = v(V_T0)
        stores = list(self.p2_stores_left)
        self.q_mask()
        e.wait(vm="kd")
        e.op("s_barrier")
        self.k_reads(0)
        for f in self.p2_valu_left: f()
        for _ in range(self.o("ns1", 1)): stores.pop(0)()
        self.stamp(5)
        side = {(u, k): [] for u in range(18) for k in range(4)}
        wl = sum([self.w_loads(n) for n in range(NWR) if n not in self.EARLY_W], [])
        slots = [(u, k) for u in range(18) for k in range(4)]
        sst = self.o("sst", 2)
        for i, f in enumerate(stores): side[slots[sst * i]].append(f)
        def pub_c():
            e.wait(vm="st2")
            self.publish(S_FLA, 32)
        pubC, pC, cC = self.o("pubC", 18), self.o("pollC", 44), self.o("chkC", 56)
        side[slots[pubC]].append(pub_c)
        side[slots[pC]].append(lambda: self.poll_issue(V_FC))
        def chk_c():
            self.poll_check(V_FC, 2); self.stamp(6)
            e.op(f"buffer_load_dword {v(V_R)}, {v(V_R)}, {s(S_WS,4)}, 0 offen sc1", tag="r")
        hl = [(n, t) for n in range(5) for t in range(4)]
        taken = {pubC, pC, cC} | {sst * i for i in range(len(stores))}
        skip = self.o("wskip", len(stores))
        acc, rate = 0, self.o("wrate", 16)
        for i, x in enumerate(slots):
            if i == cC: side[x].append(chk_c)
            if i in taken: continue
            skip -= 1
            if skip >= 0: continue
            acc += rate
            if acc < 16: continue
            acc -= 16
            if wl: side[x].append(wl.pop(0))
            elif i > cC and hl:
                n, t = hl.pop(0)
                side[x].append(lambda n=n, t=t: self.h_load(n, t))
        assert not wl
        self.h_left = hl
        def fill_ce(val):
            for i in range(16): e.op(f"v_mov_b32 {v(CE + i)}, {val}")
        def steps(lo):
            def open_at(jn):
                st, bk = self.L("open"), self.L("open_ok")
                e.op(f"s_cmp_eq_u32 {s(S_TQ)}, {8 - jn}")
                e.op(f"s_cbranch_scc1 {st}")
                e.label(bk)
                def stub():
                    e.label(st, reset=True)
                    e.op("s_nop 7")
                    fill_ce(0)
                    e.op("s_nop 0")
                    e.op(f"s_branch {bk}")
                self.stubs.append(stub)
            if lo: fill_ce(hex(NEGBIG))
            e.wait(lg="k")
            self.qk(0, 0, SB[0], lo); self.qk(0, 1, SB[0], lo)
            self.k_reads(1)
            if lo: open_at(1)
            for u in range(18):
                if self.o("zoom", 0) == 3 and u % 2 == 0: self.stamp(1 + u // 2, True)
                S, Sn, Sp = SB[u % 3], SB[(u + 1) % 3], SB[(u - 1) % 3]
                ex = lambda i: e.op(f"v_exp_f32 {v(S + i)}, {v(S + i)}")
                cv = lambda i: e.op(f"v_cvt_pk_bf16_f32 {v(S + i)}, {v(S + 2 * i)}, {v(S + 2 * i + 1)}")
                if u < 17:
                    e.wait(lg="k")
                    self.qk(u + 1, 0, Sn, lo)
                for f in side[(u, 0)]: f()
                for i in range(0, 4): ex(i)
                if u < 17: self.qk(u + 1, 1, Sn, lo)
                e.wait(lg="v")
                if u < 16: self.k_reads(u + 2)
                for f in side[(u, 1)]: f()
                for i in range(4, 8): ex(i)
                cv(0); cv(1)
                if u > 0: self.pv(u - 1, 0, Sp, (u - 1) % 9 == 0)
                if lo and u + 2 == 9: fill_ce(hex(NEGBIG))
                if lo and u + 2 < 18 and 1 <= (u + 2) % 9 <= 7: open_at((u + 2) % 9)
                for f in side[(u, 2)]: f()
                for i in range(8, 12): ex(i)
                cv(2); cv(3)
                if u > 0:
                    self.pv(u - 1, 1, Sp, False)
                    self.v_reads(u)
                for f in side[(u, 3)]: f()
                for i in range(12, 16): ex(i)
                for i in range(4, 8): cv(i)
                if u == 0:
                    e.wait(vm="vd")
                    e.op("s_barrier")
                    self.v_reads(0)
            e.wait(lg="v")
            self.pv(17, 0, SB[17 % 3], False); self.pv(17, 1, SB[17 % 3], False)
            self.flush_stamp()
        self.flush_stamp()
        e.op(f"s_cmp_lt_u32 {s(S_TQ)}, 8")
        e.op("s_cbranch_scc1 L_att_lo")
        snap0, wv0 = e.snapshot(), self.wv
        steps(False)
        snap1 = e.snapshot()
        def att_lo():
            e.restore(snap0); self.wv = wv0
            e.label("L_att_lo")
            steps(True)
            assert e.vm == snap1[0] and e.lg == snap1[1]
            e.op("s_branch L_att_join")
        self.att_lo = att_lo
        e.label("L_att_join")
        self.stamp(7)
        for h in range(2):
            O = OO[h]
            st, bk = self.L("slow"), self.L("slow_ok")
            e.op(f"v_subrev_u32 {T0}, 0x2f800000, {v(O + 12)}")
            e.op(f"v_cmp_le_u32 vcc, 0x20000000, {T0}")
            if self.o("forceslow", 0): e.op("s_mov_b64 vcc, -1")
            for _ in range(2 - h):
                if self.h_left:
                    n, t = self.h_left.pop(0); self.h_load(n, t)
            e.op(f"s_cbranch_vccnz {st}")
            e.label(bk)
            self.cold.append(lambda st=st, bk=bk, h=h: self.slow_head(h, st, bk))
        OP = 0
        ep = []
        A = lambda t, tag=None: ep.append(lambda: e.op(t, tag=tag))
        for h in range(2): A(f"v_rcp_f32 {v(V_T2 + h)}, {v(OO[h] + 12)}")
        ep.append(lambda: e.wait(vm="r"))
        for h in range(2): A(f"v_mul_f32 {v(V_T2 + h)}, {v(V_T2 + h)}, {v(V_R)}")
        for h in range(2):
            O = OO[h]
            for i in range(8): A(f"v_mul_f32 {v(O + i)}, {v(O + i)}, {v(V_T2 + h)}")
            for i in range(4): A(f"v_cvt_pk_bf16_f32 {v(OP + 4 * h + i)}, {v(O + 2 * i)}, {v(O + 2 * i + 1)}")
            A(f"buffer_store_dwordx4 {v(OP + 4 * h, 4)}, {v(V_L16)}, {s(S_WS,4)}, {s(S_OST)} offen offset:{h * 1024} sc1", "sto")
        for h in range(2):
            O = OO[h]
            for i in range(8, 12): A(f"v_mul_f32 {v(O + i)}, {v(O + i)}, {v(V_T2 + h)}")
            for i in range(2): A(f"v_cvt_pk_bf16_f32 {v(OP + 8 + 2 * h + i)}, {v(O + 8 + 2 * i)}, {v(O + 9 + 2 * i)}")
        A(f"buffer_store_dwordx4 {v(OP + 8, 4)}, {v(V_L16H)}, {s(S_WS,4)}, {s(S_OST2)} offen sc1", "sto")
        self.o_epilogue = ep

    def slow_head(self, h, st, bk):
        e = self.e
        e.label(st, reset=True)
        e.vm, e.lg = [], []
        T0, MX = v(V_T0), v(V_T1)
        O, S = OO[h], SB[0]
        e.op("s_nop 15")
        e.op(f"v_mov_b32 {MX}, {hex(NEGBIG)}")
        for i in range(16): e.op(f"v_mov_b32 {v(O + i)}, 0")
        for ps in range(2):
            for j in range(9):
                u = 9 * h + j
                sk = self.L("sk")
                if j < 8:
                    e.op(f"s_cmp_lt_u32 {s(S_TQ)}, {8 - j}")
                    e.op(f"s_cbranch_scc1 {sk}")
                if ps: self.v_reads(u)
                self.k_reads(u)
                e.wait(lg="all")
                self.qk(u, 0, S); self.qk(u, 1, S)
                if ps == 0:
                    for i in range(8): e.op(f"v_max3_f32 {MX}, {MX}, {v(S + 2 * i)}, {v(S + 2 * i + 1)}")
                else:
                    for i in range(16): e.op(f"v_sub_f32 {v(S + i)}, {v(S + i)}, {MX}")
                    for i in range(16): e.op(f"v_exp_f32 {v(S + i)}, {v(S + i)}")
                    for i in range(8): e.op(f"v_cvt_pk_bf16_f32 {v(S + i)}, {v(S + 2 * i)}, {v(S + 2 * i + 1)}")
                    self.pv(u, 0, S, False); self.pv(u, 1, S, False)
                    e.op("s_nop 7")
                e.label(sk)
            if ps == 0:
                e.op(f"v_mov_b32 {T0}, {MX}")
                e.op(f"v_permlane32_swap_b32 {T0}, {MX}")
                e.op("s_nop 1")
                e.op(f"v_max_f32 {MX}, {T0}, {MX}")
        e.op("s_nop 15")
        e.op(f"s_branch {bk}")

    def stage3(self):
        e = self.e
        L = v(V_LANE); T0, T1, T2, T3 = v(V_T0), v(V_T1), v(V_T2), v(V_T3)
        self.stamp(8)
        e.op(f"s_load_dwordx8 {s(TB,8)}, {s(S_TAB,2)}, 128")
        e.op(f"s_load_dwordx4 {s(TB+8,4)}, {s(S_TAB,2)}, 160")
        TM = self.TM; n0 = 19 - TM
        setup = []
        A = lambda t, tag=None: setup.append(lambda: e.op(t, tag=tag))
        setup.append(lambda: e.wait(lg="all"))
        A(f"s_movk_i32 {s(S_C1)}, 4096")
        A(f"s_movk_i32 {s(S_C2)}, 8192")
        for t in range(4): A(f"v_add_u32 {v(V_O + t)}, {s(S_OT + t)}, {v(V_HL)}")
        A(f"v_and_b32 {T0}, 15, {L}")
        A(f"v_lshl_add_u32 {v(V_GW)}, {T0}, 2, {s(S_GW)}")
        A(f"buffer_load_dword {v(V_GW)}, {v(V_GW)}, {s(S_WS,4)}, 0 offen sc1", "g")
        for t in range(3): A(f"v_add_u32 {v(V_RR + t)}, {s(S_RED + t)}, {v(V_L16)}")
        A(f"v_add_u32 {v(V_RW)}, {s(S_RED + 3)}, {v(V_L16)}")
        A(f"v_lshrrev_b32 {T1}, 4, {L}")
        A(f"v_mul_u32_u24 {T0}, 1280, {T0}")
        A(f"v_add_u32 {T0}, {s(S_OUTO)}, {T0}")
        A(f"v_lshl_add_u32 {v(V_OUT)}, {T1}, 4, {T0}")
        A(f"v_lshl_add_u32 {v(V_OUT + 1)}, {T1}, 3, {T0}")
        A(f"v_lshrrev_b32 {T0}, 1, {L}")
        A(f"v_min_u32 {T0}, 3, {T0}")
        A(f"v_and_b32 {T1}, 1, {L}")
        A(f"v_lshl_add_u32 {T1}, {T1}, 3, {s(S_PFB)}")
        A(f"v_lshl_add_u32 {v(V_FB)}, {T0}, 7, {T1}")
        cB = self.o("chkB", 11)
        Q = [(0, lambda n=n, t=t: self.h_load(n, t)) for n, t in self.h_left]
        for n in range(5, n0):
            if n >= 12: Q += [(max(n - 11, 4 if n >= 14 else 0), f) for f in self.w_loads(n)]
            Q += [(max(n - 5, 2, cB if n >= 14 else 0), lambda n=n, t=t: self.h_load(n, t)) for t in range(4)]
        for n in range(n0, 19): Q += [(max(n - 11, 4), f) for f in self.w_loads(n)]
        for t in range(4):
            for n in range(n0, 19):
                i = TM * t + n - n0
                Q.append((max(n0 - 5 + i // 4, cB), lambda n=n, t=t: self.h_load(n, t)))
        def issue(step):
            for i, (fr, f) in enumerate(Q):
                if fr <= step:
                    Q.pop(i); f(); return True
            return False
        def need(tags, step, also=()):
            while any(t not in e.all_tags for t in tags): assert issue(step)
            if any(t in e.vm for t in tags): e.wait(vm=list(tags) + [t for t in also if t in e.vm])
        def mfma(n, t, j):
            acc = v(BA + 20 * t + 4 * j, 4)
            e.op(f"v_mfma_f32_16x16x32_bf16 {acc}, {r(WR + 20 * (n % NWR) + 4 * j, 4)}, {v(self.hreg(n, t), 4)}, {'0' if n == 0 else acc}")
        lrate = self.o("lrate", 6)
        cnt = 0
        oep = list(self.o_epilogue)
        for n in range(n0):
            if n == 2: assert not oep
            if n == 4: assert not setup
            if self.o("zoom", 0) == 4 and n < 12: self.stamp(1 + n, True)
            if n == self.o("pubB", 4):
                e.wait(vm="sto"); self.publish(S_FLB)
            if n == self.o("pollB", 9): self.poll_issue(V_FB)
            if n == cB:
                self.poll_check(V_FB, 3); self.stamp(9)
            for t in range(4):
                for j in range(5):
                    need([("w", n, j), ("h", n, t)], n, [("w", n, 4), ("h", n, t | 1)])
                    mfma(n, t, j)
                    cnt += lrate
                    if cnt >= 20 and Q:
                        cnt -= 20; issue(n)
                    elif oep:
                        oep.pop(0)()
                        if oep: oep.pop(0)()
                    elif setup:
                        setup.pop(0)()
        self.stamp(10)
        RD = (0, 20, BA)
        def wr(t, j): e.op(f"ds_write_b128 {v(V_RW)}, {v(BA + 20 * t + 4 * j, 4)} offset:{t * 5120 + j * 1024}", tag=("red", t))
        def rd(sl, j): e.op(f"ds_read_b128 {v(RD[sl] + 4 * j, 4)}, {v(V_RR + sl)} offset:{j * 1024}", tag=("rd", sl, j))
        def add01(k):
            if k % 4 == 0: e.wait(lg=("rd", 1, k // 4))
            e.op(f"v_add_f32 {v(RD[0] + k)}, {v(RD[0] + k)}, {v(RD[1] + k)}")
        def bar01():
            e.wait(lg=("red", 1))
            e.op("s_barrier")
        F = BA + 60
        for t in range(4):
            q = [None] * 3 + [lambda j=j: wr(t - 1, j) for j in range(5)] if t else []
            if t == 3:
                q = [bar01] + [lambda j=j, sl=sl: rd(sl, j) for j in range(2) for sl in range(2)] + q[3:] + \
                    [lambda j=j, sl=sl: rd(sl, j) for j in range(2, 5) for sl in range(2)]
                adds = [lambda k=k: add01(k) for k in range(20)]
            i = 0
            for n in range(n0, 19):
                for j in range(5):
                    need([("w", n, j), ("h", n, t)], 99)
                    mfma(n, t, j)
                    if Q and i % 4 == 0: issue(99)
                    elif q:
                        f = q.pop(0)
                        if f: f()
                    elif t == 3:
                        for _ in range(2):
                            if adds: adds.pop(0)()
                    i += 1
            for f in q:
                if f: f()
        assert not Q
        self.stamp(11)
        e.wait(lg=("red", 2))
        e.op("s_barrier")
        for j in range(5): rd(2, j)
        for f in adds: f()
        e.wait(vm="g")
        W2 = v(V_GW, 2)
        of = ("", "sc1", "nt", "sc0 sc1")[self.o("outf", 0)]
        for i in range(10): e.op(f"v_pk_add_f32 {v(F + 2 * i, 2)}, {v(F + 2 * i, 2)}, {v(RD[0] + 2 * i, 2)}")
        for i in range(10): e.op(f"v_pk_mul_f32 {v(F + 2 * i, 2)}, {v(F + 2 * i, 2)}, {W2} op_sel_hi:[1,0]")
        for grp in ((0, 4), (4, 8), (8, 10)):
            e.wait(lg=("rd", 2, (grp[1] - 1) // 2))
            for i in range(*grp): e.op(f"v_pk_fma_f32 {v(F + 2 * i, 2)}, {v(RD[2] + 2 * i, 2)}, {W2}, {v(F + 2 * i, 2)} op_sel_hi:[1,0,1]")
            for i in range(*grp): e.op(f"v_cvt_pk_bf16_f32 {v(i)}, {v(F + 2 * i)}, {v(F + 2 * i + 1)}")
            if grp[0] < 8: e.op(f"buffer_store_dwordx4 {v(grp[0],4)}, {v(V_OUT)}, {s(S_OUT,4)}, 0 offen offset:{grp[0] * 16} {of}")
            else: e.op(f"buffer_store_dwordx2 {v(8,2)}, {v(V_OUT+1)}, {s(S_OUT,4)}, 0 offen offset:128 {of}")
        self.stamp(12)

    def finish(self):
        e = self.e
        if self.stamps:
            e.wait(vm="all")
            self.stamp(13)
            e.op(f"s_memtime {s(S_VM,2)}")
            self.flush_stamp()
            e.op(f"v_writelane_b32 {v(V_STAMP)}, {s(S_VM)}, {NSTAMP}")
            e.op(f"s_lshl2_add_u32 {s(S_T0)}, s2, {s(S_WAVE)}")
            e.op(f"s_lshl_b32 {s(S_T0)}, {s(S_T0)}, 7")
            e.op(f"s_add_u32 {s(S_T0)}, {s(S_T0)}, {WS_ST}")
            e.op(f"v_lshlrev_b32 {v(V_T0)}, 2, {v(V_LANE)}")
            e.op("s_mov_b32 exec_hi, 0")
            e.op(f"buffer_store_dword {v(V_STAMP)}, {v(V_T0)}, {s(S_WS,4)}, {s(S_T0)} offen")
        e.op("s_endpgm")

    def build(self):
        e = self.e
        self.prologue()
        self.stage1()
        self.attention()
        self.stage3()
        self.finish()
        self.att_lo()
        self.gate()
        self.spare()
        for f in self.stubs:
            e.vm, e.lg = [], []
            f()
        e.label("L_cold")
        for f in self.cold: f()
        e.label("L_end")
        e.op("s_endpgm")
        head = open("head.txt").read().split("\n")
        head = [l for l in head if l.startswith(";") and "@launch" not in l]
        txt = "\n".join(head) + f"\n; @launch grid=(256,1,1) block=(256,1,1) lds={LDS_BYTES}\n"
        txt += f""".amdgcn_target "amdgcn-amd-amdhsa--gfx950"
.text
.globl {NAME}_kernel
.p2align 8
.type {NAME}_kernel,@function
{NAME}_kernel:
"""
        txt += e.text().replace("\n    ", "\n ")
        txt += f""".section .rodata,"a"
.p2align 6
.amdhsa_kernel {NAME}_kernel
  .amdhsa_next_free_vgpr 512
  .amdhsa_next_free_sgpr 102
  .amdhsa_accum_offset 256
  .amdhsa_group_segment_fixed_size 0
  .amdhsa_kernarg_size 80
  .amdhsa_user_sgpr_count 2
  .amdhsa_user_sgpr_kernarg_segment_ptr 1
  .amdhsa_system_sgpr_workgroup_id_x 1
.end_amdhsa_kernel
.p2align 8
.type wave_table,@object
wave_table:
"""
        for wg in range(256):
            for w in range(4):
                txt += ".long " + ",".join(str(x) for x in table_entry(wg, w, self.o("map3", 0))) + "\n"
        return txt

if __name__ == "__main__":
    out = sys.argv[1] if len(sys.argv) > 1 else "cdna_kernels/" + NAME + ".s"
    opt = {}
    for x in sys.argv[2:]:
        if "=" in x:
            k, val = x.split("="); opt[k] = int(val)
    g = Gen(stamps="--stamps" in sys.argv, opt=opt)
    txt = g.build()
    open(out, "w").write(txt)
    print("instructions", g.e.count, "pad states", g.e.nops, "autowaits", g.e.autowaits, "bytes", len(txt), file=sys.stderr)
    if "--nops" in sys.argv:
        for n, t in g.e.log_nops: print(n, t, file=sys.stderr)
```

```python
import sys, math, struct
from asmlib import *

NAME = "gated_mix__sliding_block__dense_activation_relu__prompt"

WS_QK = 0
WS_VT = WS_QK + 80 * 64 * 1024
WS_H  = WS_VT + 16 * 64 * 2560
WS_O  = WS_H + 64 * 110592
WS_WT = WS_O + 64 * 40960
WS_G  = WS_WT + 8 * 74 * 5120
WS_FL = WS_G + 16384
FL_A  = WS_FL
FL_B  = FL_A + 256 * 128
FL_D  = FL_B + 256 * 128
FL_DD = FL_D + 304 * 128
WS_ST = FL_DD + 8 * 128
WS_SIZE = WS_ST + 1024 * 128
OOB = 0x4000000
assert WS_SIZE < OOB

NW, NX = 5, 4
L_W = 0
L_X = NW * 16384
L_RT = L_X + 65536
L_K = L_X
L_V = L_K + 36 * 1024
LDS_BYTES = 163840

S_DM, S_HK = 0, 1
S_WAVE = 3
S_X, S_WA, S_WB, S_WS, S_OUT, S_DBG, S_MISC = 4, 8, 12, 16, 20, 24, 28
S_PWO, S_CG, S_XM0, S_PW2, S_PG = 32, 34, 35, 36, 38
S_T0, S_T1, S_T2, S_T3, S_T4, S_T5 = 40, 41, 42, 43, 44, 45
S_TAB = 46
TA = 48
(S_ST1, S_ST1B, S_ST2, S_ST2B, S_SCALE, S_FLA, S_FLB, S_RTS, S_RTF, S_RTSRC, S_BITS, S_TQ, S_QOFF) = range(TA, TA + 13)
S_KADJ, S_VOFF = TA + 13, TA + 16
S_OST, S_OST2 = TA + 19, TA + 20
S_HT = TA + 21
S_WT0, S_PFC, S_PFG, S_PFD, S_PFA, S_ASTEP, S_TB1 = range(TA + 25, TA + 32)
TB = 4
S_OT = TB
S_WT1, S_PFB, S_GW, S_OUTO = TB + 4, TB + 5, TB + 6, TB + 7
S_RED = TB + 8
S_PHI = 80
S_WM0, S_SPIN = 86, 87
S_STMP, S_NONCE, S_MASK, S_VM = 88, 90, 92, 94
S_C1, S_C2 = 96, 97
S_PILO, S_PIHI = 80, 81

V_LANE = 255
V_L16 = 254
V_NONCE = 252
V_T0, V_T1, V_T2, V_T3 = 248, 249, 250, 251
V_POLL = 246
V_FA, V_FD, V_FC, V_WV = 245, 244, 243, 242
V_KA, V_VA, V_HL, V_STAMP, V_ZERO, V_L16H = 241, 240, 239, 238, 237, 236
V_H, V_KT, V_Q, V_R = 232, 228, 231, 227
V_XD = 0
V_WD = 4
V_WD2 = 8
V_XR = 12
V_WR = 16
V_ST1 = 24
V_FR = 32
ACC = (128, 64)
A_X = 256
NXR = 7
V_LH = 226
RT_D, RT_LD, RT_RD, RT_ST = 64, 76, 79, 82
SB = (0, 16, 176)
OO = (32, 48)
VQ, QM, VF, KF, CD, CE = 128, 144, 160, 168, 192, 208
BA = 144
HSLOT = (64, 80, 96, 112, 128, 48)
WR = 256
NH, NWR = 6, 12
V_O, V_FB, V_GW, V_RR, V_RW, V_OUT = 228, 245, 244, 224, 243, 240
NSTAMP = 14

def f32(x): return "0x%08x" % struct.unpack("<I", struct.pack("<f", x))[0]
LOG2E = math.log2(math.e)
QSCALE = LOG2E / math.sqrt(20.0)
NEGBIG = 0xff800000
SPIN_MAX = 0x40000

def rt_unit(U, w):
    ks, kg, u = U >> 2, U & 3, w >> 1
    if ks < 54: row, wo = 32 * ks + 16 * (kg >> 1) + 4 * (kg & 1) + 8 * u, 0
    else:
        a_, p = divmod(ks - 54, 5); wo = 1
        row = 40 * (4 * a_ + p) + 20 * (kg >> 1) + 4 * (kg & 1) + 8 * u if p < 4 else 40 * (4 * a_ + kg) + 16 + 20 * u
    return WS_WT + (148 * w + ks) * 5120 + kg * 256, (FL_D + U * 128 if w == 0 else OOB), row * 1280, wo

def table_entry(wg, w, map3):
    xcd, i = wg & 7, wg >> 3
    A = [0] * 32; B = [0] * 16
    def a(reg, val): A[reg - TA] = val & 0xffffffff
    def b(reg, val): B[reg - TB] = val & 0xffffffff
    rts, rtf, rtsrc, wo = rt_unit(wg, w)
    a(S_RTS, rts); a(S_RTF, rtf); a(S_RTSRC, rtsrc)
    if i < 30:
        u = 30 * (xcd >> 1) + i
        rb, cg = 8 * (xcd & 1) + (u & 7), u >> 3
        tb, tb0, wc = 4 * rb + w, 4 * rb + (w & 2), w & 1
        if cg < 10:
            q0 = WS_QK + ((8 * cg + 4 * wc) * 64 + tb0) * 1024
            a(S_ST1, q0); a(S_ST1B, q0 + 1024)
        else:
            a(S_ST1, WS_VT + tb0 * 2560); a(S_ST1B, WS_VT + (tb0 + 1) * 2560)
        h0 = WS_H + tb0 * 110592 + cg * 8192 + wc * 4096
        a(S_ST2, h0 if 2 * cg + wc < 27 else OOB); a(S_ST2B, h0 + 110592 if 2 * cg + wc < 27 else OOB)
        a(S_SCALE, int(f32(QSCALE if cg < 5 else 1.0), 16))
        a(S_FLA, FL_A + (rb * 16 + cg) * 128 + 8 * w)
        a(S_TB1, tb)
    else:
        for m, reg in ((1, S_ST1), (2, S_ST1B), (3, S_SCALE)): a(reg, rt_unit(wg + 16 * m, w)[2])
        a(S_ST2, OOB); a(S_ST2B, OOB); a(S_FLA, OOB)
    P, rba = 2 * xcd + (i >> 4), i & 15
    F0, tq = (10 * P) >> 2, 4 * rba + w
    a(S_BITS, (P & 1) | (wo << 1)); a(S_TQ, tq)
    a(S_QOFF, WS_QK + (F0 * 64 + tq) * 1024)
    for k in range(3):
        t = max(4 * rba + 3 * w - 8 + k, 0)
        a(S_KADJ + k, WS_QK + ((40 + F0) * 64 + t - k) * 1024)
        a(S_VOFF + k, WS_VT + (P * 64 + t) * 2560)
    o0 = WS_O + tq * 40960 + (P >> 2) * 20 * 512
    a(S_OST, o0 + (P & 3) * 2048); a(S_OST2, o0 + (16 + (P & 3)) * 512)
    a(S_FLB, FL_B + (rba * 16 + P) * 128 + 8 * w)
    cq = F0 >> 3
    a(S_PFA, FL_A + cq * 128); a(S_ASTEP, 128 if ((F0 + 2) >> 3) > cq else 0)
    a(S_PFG, FL_A + (rba * 16 + 14) * 128 + 32 + 8 * w)
    a(S_PFD, FL_DD + xcd * 128)
    tb64, ng = (8 * (xcd >> 1) + (i & 7), 4 * (xcd & 1) + (i >> 3)) if not map3 else (4 * xcd + (i & 3), i >> 2)
    for t in range(4):
        T = (w + 1 + t) & 3
        tb = 2 * tb64 + (T >> 1)
        a(S_HT + t, WS_H + tb * 110592 + (T & 1) * 256 + w * 2048)
        b(S_OT + t, WS_O + tb * 40960 + (T & 1) * 256 + w * 5 * 2048)
    a(S_WT0, WS_WT + (ng * 74 + w) * 5120 + 2048)
    b(S_WT1, WS_WT + (ng * 74 + 54 + 5 * w) * 5120 + 2048)
    a(S_PFC, FL_A + (tb64 >> 1) * 2048 + 32 + 16 * (tb64 & 1))
    b(S_PFB, FL_B + ((tb64 >> 1) * 16 + 4 * w) * 128 + 16 * (tb64 & 1))
    b(S_GW, WS_G + (2 * tb64 + (w >> 1)) * 256 + 128 + (w & 1) * 64)
    b(S_OUTO, (64 * tb64 + 16 * w) * 1280 + ng * 160)
    for t in range(3): b(S_RED + t, L_W + ((w - 1 - t) & 3) * 20480 + t * 5120)
    b(S_RED + 3, L_W + w * 20480)
    return A + B

class Gen:
    def __init__(self, stamps=False, opt=None):
        self.e = Emit()
        self.stamps = stamps
        self.uid = 0
        self.opt = opt or {}
        self.stubs = []
        self.cold = []
        self.pending_stamp = None
        self.open_poll = None; self.open_nonce = False
        self.nt = "nt " if self.o("nt", 1) else ""
        self.in_side = False
    def o(self, k, d): return self.opt.get(k, d)
    def L(self, p):
        self.uid += 1
        return f"L_{p}_{self.uid}"
    def stamp(self, idx, z=False):
        if not self.stamps: return
        if self.o("zoom", 0) and not z and 0 < idx < 13: return
        self.flush_stamp()
        self.e.op(f"{'s_memtime' if self.o('cyc', 0) else 's_memrealtime'} {s(S_STMP, 2)}")
        self.pending_stamp = idx
    def flush_stamp(self):
        if self.pending_stamp is None: return
        e = self.e
        if "SMEM" in e.lg: e.wait(lg="all")
        e.op(f"v_writelane_b32 {v(V_STAMP)}, {s(S_STMP)}, {self.pending_stamp}")
        self.pending_stamp = None

    def srd_tail(self, d, nbytes):
        self.e.op(f"s_mov_b32 {s(d+2)}, {nbytes}")
        self.e.op(f"s_mov_b32 {s(d+3)}, 0x20000")
    def nonce_issue(self):
        self.e.op(f"buffer_load_dwordx2 {v(V_NONCE,2)}, {v(V_ZERO)}, {s(S_DBG,4)}, 0 offen sc1", tag="nonce")
        self.open_nonce = True
    def nonce_check(self):
        e = self.e
        st, bk = self.L("nonce"), self.L("nonce_ok")
        assert self.open_nonce
        e.wait(vm="nonce")
        e.op(f"v_readfirstlane_b32 {s(S_NONCE)}, {v(V_NONCE)}")
        e.op(f"v_readfirstlane_b32 {s(S_NONCE+1)}, {v(V_NONCE+1)}")
        e.op(f"s_cmp_eq_u32 {s(S_NONCE)}, 0")
        e.op(f"s_cbranch_scc1 {st}")
        e.label(bk)
        def stub():
            e.label(st, reset=True)
            e.op(f"s_mov_b32 {s(S_SPIN)}, 0")
            e.label(st + "_l")
            e.op("s_sleep 4")
            e.op(f"buffer_load_dwordx2 {v(V_NONCE,2)}, {v(V_ZERO)}, {s(S_DBG,4)}, 0 offen sc1")
            e.op(f"s_add_u32 {s(S_SPIN)}, {s(S_SPIN)}, 1")
            e.wait(vm="all")
            e.op(f"v_readfirstlane_b32 {s(S_NONCE)}, {v(V_NONCE)}")
            e.op(f"v_readfirstlane_b32 {s(S_NONCE+1)}, {v(V_NONCE+1)}")
            e.op(f"s_cmp_gt_u32 {s(S_SPIN)}, {SPIN_MAX}")
            e.op(f"s_cbranch_scc1 {bk}")
            e.op(f"s_cmp_eq_u32 {s(S_NONCE)}, 0")
            e.op(f"s_cbranch_scc1 {st}_l")
            e.op(f"s_branch {bk}")
        self.stubs.append(stub)
    def publish(self, soff, imm=0):
        e = self.e
        e.op("s_mov_b64 exec, 1")
        e.op(f"buffer_store_dwordx2 {v(V_NONCE,2)}, {v(V_ZERO)}, {s(S_WS,4)}, {s(soff)} offen offset:{imm} sc1", tag="flag")
        e.op("s_mov_b64 exec, -1")
    def poll_issue(self, vaddr):
        self.e.op(f"buffer_load_dwordx2 {v(V_POLL,2)}, {v(vaddr)}, {s(S_WS,4)}, 0 offen sc1", tag="poll")
        self.open_poll = vaddr
    def poll_check(self, vaddr, sid=0):
        e = self.e
        st, bk = self.L("poll"), self.L("poll_ok")
        assert self.open_poll == vaddr; self.open_poll = None
        e.wait(vm="poll")
        e.op(f"v_cmp_ne_u64 vcc, {s(S_NONCE,2)}, {v(V_POLL,2)}")
        e.op(f"s_cbranch_vccnz {st}")
        e.label(bk)
        def stub():
            e.label(st, reset=True)
            e.op(f"s_mov_b32 {s(S_SPIN)}, 0")
            e.op(f"s_branch {st}_f")
            e.label(st + "_l")
            e.op("s_sleep 4")
            e.label(st + "_f")
            e.op(f"buffer_load_dwordx2 {v(V_POLL,2)}, {v(vaddr)}, {s(S_WS,4)}, 0 offen sc1")
            e.op(f"s_add_u32 {s(S_SPIN)}, {s(S_SPIN)}, 1")
            e.wait(vm="all")
            e.op(f"v_cmp_ne_u64 vcc, {s(S_NONCE,2)}, {v(V_POLL,2)}")
            e.op(f"s_cmp_gt_u32 {s(S_SPIN)}, {SPIN_MAX}")
            e.op(f"s_cbranch_scc1 {bk}")
            e.op(f"s_cbranch_vccnz {st}_l")
            if self.stamps: e.op(f"v_writelane_b32 {v(V_STAMP)}, {s(S_SPIN)}, {16 + sid}")
            e.op(f"s_branch {bk}")
        self.stubs.append(stub)

    def capture(self, *fns):
        e = self.e
        rec = []
        real = e.op
        e.op = lambda text, tag=None: rec.append(text)
        try:
            for f in fns: f()
        finally:
            e.op = real
        atoms = []
        for t in rec:
            if t.startswith(("s_cselect", "s_addc")): atoms[-1].append(t)
            else: atoms.append([t])
        return [lambda a=a_: [e.op(t) for t in a] and None for a_ in atoms]

    PI_A = [0, 2, 1, 4, 3, 6, 5, 8, 7, 9]
    PI_B = [1, -2, 2, -2, 2, -2, 2, -2, 2, -1]
    PI4S = [
        [[0,4,1,2,3,8,5,6,7,9], [1,0,5,2,3,4,9,6,7,8], [2,0,1,6,3,4,5,7,8,9], [3,0,1,2,7,4,5,6,8,9]],
        [[0,2,1,6,3,4,5,7,8,9], [1,3,0,2,7,4,5,6,8,9], [0,4,1,2,3,8,5,6,7,9], [1,5,0,2,3,4,9,6,7,8]],
        [[0,2,6,1,3,4,5,7,8,9], [1,3,7,0,2,4,5,6,8,9], [0,4,8,1,2,3,5,6,7,9], [1,5,9,0,2,3,4,6,7,8]],
        [[0,2,1,6,3,4,5,7,8,9], [1,3,0,7,2,4,5,6,8,9], [0,4,1,8,2,3,5,6,7,9], [1,5,0,9,2,3,4,6,7,8]],
        [[0,1,5,2,3,4,9,6,7,8], [0,2,1,6,3,4,5,7,8,9], [0,3,1,2,7,4,5,6,8,9], [0,4,1,2,3,8,5,6,7,9]],
        [[0,4,8,1,2,3,5,6,7,9], [1,5,9,0,2,3,4,6,7,8], [2,6,0,1,3,4,5,7,8,9], [3,7,0,1,2,4,5,6,8,9]],
    ]
    @property
    def PI4(self): return self.PI4S[self.o("pt", 0)]
    UNIT = (128, 64 * 3840, 64 * 3456)
    def pi_setup(self, sphi, late):
        e = self.e
        mode = self.o("pi", 2)
        if mode == 2:
            if not late:
                e.op(f"s_and_b32 {s(sphi)}, {s(sphi)}, 1")
                for m in range(2): e.op(f"s_mul_i32 {s(S_PHI + 2 * m)}, {s(sphi)}, {self.UNIT[m]}")
            else:
                e.op(f"s_mul_i32 {s(S_PHI + 4)}, {s(S_PHI)}, {self.UNIT[2] // 128}")
                for m in range(3): e.op(f"s_lshl_b32 {s(S_PHI + 2 * m + 1)}, {s(S_PHI + 2 * m)}, 1")
        elif mode == 4 and not late:
            e.op(f"s_and_b32 {s(sphi)}, {s(sphi)}, 3")
            for i, tb in enumerate(self.PI4):
                assert sorted(tb) == list(range(10))
                lo = sum(k << (4 * n) for n, k in enumerate(tb[:8])); hi = tb[8] | (tb[9] << 4)
                if i == 0:
                    e.op(f"s_mov_b32 {s(S_PILO)}, {hex(lo)}")
                    e.op(f"s_mov_b32 {s(S_PIHI)}, {hex(hi)}")
                else:
                    e.op(f"s_cmp_eq_u32 {s(sphi)}, {i}")
                    e.op(f"s_cselect_b32 {s(S_PILO)}, {hex(lo)}, {s(S_PILO)}")
                    e.op(f"s_cselect_b32 {s(S_PIHI)}, {hex(hi)}, {s(S_PIHI)}")
    def pi_off(self, dst, st, m):
        e = self.e
        mode = self.o("pi", 2)
        if mode == 1: e.op(f"s_mov_b32 {s(dst)}, {st * self.UNIT[m]}")
        elif mode == 2:
            A, B = self.PI_A[st] * self.UNIT[m], self.PI_B[st]
            e.op(f"s_{'add' if B > 0 else 'sub'}_u32 {s(dst)}, {A}, {s(S_PHI + 2 * m + abs(B) - 1)}")
        else:
            e.op(f"s_bfe_u32 {s(dst)}, {s(S_PILO if st < 8 else S_PIHI)}, {hex((4 << 16) | (4 * (st % 8)))}")
            e.op(f"s_mul_i32 {s(dst)}, {s(dst)}, {self.UNIT[m]}")

    def prologue(self):
        e = self.e
        L = v(V_LANE); T0, T1, T2, T3 = v(V_T0), v(V_T1), v(V_T2), v(V_T3)
        e.op("s_cmp_ge_u32 s2, 256")
        e.op("s_cbranch_scc1 L_end")
        self.stamp(0)
        for d, off in ((S_X, 0), (S_WA, 8), (S_WB, 32), (S_WS, 72), (S_OUT, 56), (S_DBG, 64)):
            e.op(f"s_load_dwordx2 {s(d,2)}, s[0:1], {off}")
        e.op(f"s_getpc_b64 {s(S_TAB,2)}")
        e.label("L_pc")
        e.op("s_cmp_lt_u32 s2, 240")
        e.op("s_cbranch_scc1 L_nopf")
        e.op(f"s_bfe_u32 {s(S_T0)}, s2, 0x10003")
        e.op(f"v_lshl_add_u32 {T0}, v0, 1, {s(S_T0)}")
        e.op(f"v_lshlrev_b32 {T0}, 7, {T0}")
        e.op(f"v_min_u32 {T0}, L_cold-L_pc, {T0}")
        e.op(f"global_load_dword {v(224)}, {T0}, {s(S_TAB,2)}")
        e.vm = []
        e.label("L_nopf")
        if self.stamps: e.op(f"v_mov_b32 {v(V_STAMP)}, 0")
        e.op(f"v_lshrrev_b32 {T0}, 6, v0")
        e.op(f"v_and_b32 {L}, 63, v0")
        e.op(f"v_readfirstlane_b32 {s(S_WAVE)}, {T0}")
        e.op(f"s_bfe_u32 {s(S_T0)}, s2, 0x20001")
        e.op(f"s_mul_i32 {s(S_T0)}, {s(S_T0)}, 30")
        e.op(f"s_lshr_b32 {s(S_T1)}, s2, 3")
        e.op(f"s_add_u32 {s(S_T0)}, {s(S_T0)}, {s(S_T1)}")
        e.op(f"s_lshr_b32 {s(S_CG)}, {s(S_T0)}, 3")
        e.op(f"s_and_b32 {s(S_T0)}, {s(S_T0)}, 7")
        e.op(f"s_and_b32 {s(S_T1)}, s2, 1")
        e.op(f"s_lshl3_add_u32 {s(S_T0)}, {s(S_T1)}, {s(S_T0)}")
        e.op(f"s_add_u32 {s(S_T5)}, {s(S_T0)}, {s(S_CG)}")
        self.pi_setup(S_T5, False)
        e.op(f"s_lshl2_add_u32 {s(S_T0)}, {s(S_T0)}, {s(S_WAVE)}")
        e.op(f"s_mul_i32 {s(S_T0)}, {s(S_T0)}, {32 * 1280}")
        e.op(f"s_lshl_b32 {s(S_T4)}, {s(S_CG)}, 8")
        e.op(f"s_movk_i32 {s(S_T2)}, 1280")
        e.op(f"s_movk_i32 {s(S_T3)}, {2 * (8 * 1280 - 1024)}")
        e.op(f"v_lshrrev_b32 {T1}, 4, {L}")
        e.op(f"v_and_b32 {T2}, 7, {L}")
        e.op(f"v_xor_b32 {T2}, {T2}, {T1}")
        e.op(f"v_lshl_add_u32 {T2}, {T2}, 4, {s(S_T0)}")
        e.op(f"v_lshrrev_b32 {T0}, 3, {L}")
        e.op(f"v_mad_u32_u24 {v(V_XD)}, {T0}, {s(S_T2)}, {T2}")
        e.op(f"v_xad_u32 {v(V_XD+2)}, {v(V_XD)}, 64, {s(S_T3)}")
        e.op(f"v_add_u32 {v(V_XD+1)}, {8 * 1280 - 1024}, {v(V_XD)}")
        e.op(f"v_add_u32 {v(V_XD+3)}, {8 * 1280 - 1024}, {v(V_XD+2)}")
        e.op(f"v_lshlrev_b32 {T2}, 2, {T1}")
        e.op(f"v_and_b32 {T3}, 15, {L}")
        e.op(f"v_xor_b32 {T2}, {T2}, {T3}")
        e.op(f"v_lshl_add_u32 {T2}, {T2}, 4, {s(S_T4)}")
        e.op(f"v_lshl_add_u32 {T1}, {s(S_WAVE)}, 4, {T1}")
        e.op(f"s_movk_i32 {s(S_T2)}, 3840")
        e.op(f"v_mad_u32_u24 {v(V_WD)}, {T1}, {s(S_T2)}, {T2}")
        e.op(f"s_movk_i32 {s(S_T3)}, {2 * (4 * 3840 - 1024)}")
        e.op(f"v_xad_u32 {v(V_WD+2)}, {v(V_WD)}, 16, {s(S_T3)}")
        for n in (1, 3): e.op(f"v_add_u32 {v(V_WD+n)}, {4 * 3840 - 1024}, {v(V_WD+n-1)}")
        e.op(f"s_lshl_b32 {s(S_WM0)}, {s(S_WAVE)}, 12")
        e.op(f"s_lshl2_add_u32 {s(S_XM0)}, {s(S_WM0)}, {L_X}")
        self.srd_tail(S_X, 2048 * 1280)
        self.srd_tail(S_WA, 640 * 3840)
        e.op(f"s_lshl2_add_u32 {s(S_T0)}, s2, {s(S_WAVE)}")
        e.op(f"s_mul_i32 {s(S_T0)}, {s(S_T0)}, 192")
        e.label("L_pc2")
        e.op(f"s_add_u32 {s(S_TAB)}, {s(S_TAB)}, wave_table@rel32@lo+(L_pc2+4-L_pc)")
        e.op(f"s_addc_u32 {s(S_TAB+1)}, {s(S_TAB+1)}, wave_table@rel32@hi+(L_pc2+12-L_pc)")
        e.op(f"s_add_u32 {s(S_TAB)}, {s(S_TAB)}, {s(S_T0)}")
        e.op(f"s_addc_u32 {s(S_TAB+1)}, {s(S_TAB+1)}, 0")
        e.wait(lg="all")
        self.flush_stamp()
        e.op(f"s_load_dwordx2 {s(S_PWO,2)}, s[0:1], 16")
        e.op(f"s_load_dwordx4 {s(S_PW2,4)}, s[0:1], 40")
        e.op(f"s_load_dwordx16 {s(TA,16)}, {s(S_TAB,2)}, 0")
        e.op(f"s_load_dwordx16 {s(TA+16,16)}, {s(S_TAB,2)}, 64")
        e.op(f"s_load_dword {s(S_SPIN)}, {s(S_TAB,2)}, 128")
        e.op("s_cmp_ge_u32 s2, 240")
        e.op("s_cbranch_scc1 L_spare")
        self.spare_snap = e.snapshot()

    def common_setup(self):
        e = self.e
        L = v(V_LANE)
        self.srd_tail(S_WB, 640 * 3456)
        self.srd_tail(S_WS, WS_SIZE)
        self.srd_tail(S_OUT, 2048 * 1280)
        self.srd_tail(S_DBG, 256)
        e.op(f"s_mov_b32 {s(S_MISC+3)}, 0x20000")
        e.op(f"v_lshlrev_b32 {v(V_L16)}, 4, {L}")
        e.op(f"v_mov_b32 {v(V_ZERO)}, 0")
        e.op(f"v_lshrrev_b32 {v(V_L16H)}, 5, {L}")
        e.op(f"v_lshl_add_u32 {v(V_L16H)}, {v(V_L16H)}, 26, {v(V_L16)}")
        e.op(f"s_mov_b32 {s(S_VM)}, 0xfffff")
        e.op(f"s_mov_b32 {s(S_VM+1)}, 0xfffff")
        e.op(f"s_mov_b32 {s(S_C1)}, 0x10000")
        e.op(f"s_mov_b32 {s(S_C2)}, 0x20000")

    def dma(self, st, m):
        e = self.e
        dm = S_T5 if st < 2 else S_DM
        if m == 0: srd, vd, k, base, lo = S_X, V_XD, st, S_XM0, (st % NX) * 4096
        elif st < 10: srd, vd, k, base, lo = S_WA, V_WD, st, S_WM0, L_W + (st % NW) * 16384
        else: srd, vd, k, base, lo, m = S_WB, V_WD2, self.xst(st), S_WM0, L_W + (st % NW) * 16384, 2
        def f(n):
            if n == 0:
                e.op(f"s_add_u32 m0, {s(base)}, {lo}")
                self.pi_off(dm, k, m)
            e.op(f"buffer_load_dwordx4 {v(vd+n)}, {s(srd,4)}, {s(dm)} offen offset:{n*1024} {'nt ' if (self.o('ntm', 0) >> m) & 1 else ''}lds", tag=("d", st))
        return [lambda n=n: f(n) for n in range(4)]
    def dmas(self, st): return (self.dma(st, 0) if st < 10 else []) + self.dma(st, 1)

    P2X = (0, 1, 2, 7, 8, 9, 3, 4, 5, 6)
    def xst(self, st):
        return st if st < 10 else self.P2X[st - 10]

    def stage1_tables(self):
        e = self.e
        L = v(V_LANE); T0, T1, T2, T3 = v(V_T0), v(V_T1), v(V_T2), v(V_T3)
        P0, P1 = v(V_POLL), v(V_POLL + 1)
        e.op(f"s_movk_i32 {s(S_T2)}, 3456")
        e.op(f"v_mad_u32_u24 {v(V_WD2)}, {T1}, {s(S_T2)}, {T2}")
        e.op(f"s_movk_i32 {s(S_T3)}, {2 * (4 * 3456 - 1024)}")
        e.op(f"v_xad_u32 {v(V_WD2+2)}, {v(V_WD2)}, 16, {s(S_T3)}")
        for n in (1, 3): e.op(f"v_add_u32 {v(V_WD2+n)}, {4 * 3456 - 1024}, {v(V_WD2+n-1)}")
        e.op(f"v_and_b32 {P0}, 8, {L}")
        e.op(f"v_and_b32 {T0}, 15, {L}")
        e.op(f"v_add_u32 {P0}, {P0}, {T0}")
        e.op(f"v_lshrrev_b32 {P1}, 4, {L}")
        e.op(f"s_and_b32 {s(S_T0)}, {s(S_WAVE)}, 2")
        e.op(f"s_lshl_b32 {s(S_T0)}, {s(S_T0)}, 14")
        e.op(f"s_add_u32 {s(S_T0)}, {s(S_T0)}, {L_X}")
        e.op(f"v_bfe_u32 {T1}, {L}, 1, 3")
        e.op(f"v_xor_b32 {T1}, {T1}, {P1}")
        e.op(f"v_lshl_add_u32 {T1}, {T1}, 4, {s(S_T0)}")
        e.op(f"v_lshl_add_u32 {v(V_XR)}, {P0}, 7, {T1}")
        e.op(f"v_xor_b32 {v(V_XR+1)}, 64, {v(V_XR)}")
        e.op(f"s_and_b32 {s(S_T1)}, {s(S_WAVE)}, 1")
        e.op(f"s_lshl_b32 {s(S_T0)}, {s(S_T1)}, 3")
        e.op(f"v_and_b32 {T0}, 14, {L}")
        e.op(f"v_and_or_b32 {T0}, {P1}, 1, {T0}")
        e.op(f"v_xor_b32 {T0}, {s(S_T0)}, {T0}")
        e.op(f"v_and_b32 {T1}, 1, {L}")
        e.op(f"v_lshl_add_u32 {T0}, {T0}, 1, {T1}")
        e.op(f"v_bfe_u32 {T1}, {L}, 2, 2")
        e.op(f"v_lshl_add_u32 {T1}, {P1}, 3, {T1}")
        e.op(f"v_lshlrev_b32 {T1}, 8, {T1}")
        e.op(f"v_lshl_add_u32 {v(V_WR)}, {T0}, 3, {T1}")
        for j in range(1, 4): e.op(f"v_xor_b32 {v(V_WR+j)}, {(j >> 1) * 64 + (j & 1) * 16}, {v(V_WR)}")
        for j in range(4): e.op(f"v_add_u32 {v(V_WR+4+j)}, 0x10000, {v(V_WR+j)}")
        e.op(f"v_lshlrev_b32 {T0}, 4, {P0}")
        e.op(f"v_lshl_add_u32 {v(V_LH)}, {P1}, 9, {T0}")
        lv, ld = self.L("st1v"), self.L("st1d")
        e.op(f"s_cmp_ge_u32 {s(S_CG)}, 10")
        e.op(f"s_cbranch_scc1 {lv}")
        e.op(f"v_lshrrev_b32 {T0}, 5, {L}")
        e.op(f"v_mul_u32_u24 {T0}, {65536 - 1024}, {T0}")
        e.op(f"v_add_u32 {v(V_ST1)}, {T0}, {v(V_LH)}")
        for j in range(1, 4): e.op(f"v_add_u32 {v(V_ST1+j)}, {(j >> 1) * 131072 + (j & 1) * 128}, {v(V_ST1)}")
        e.op(f"s_branch {ld}")
        e.label(lv)
        e.op(f"s_lshl1_add_u32 {s(S_T1)}, {s(S_CG)}, {s(S_T1)}")
        e.op(f"s_lshl_b32 {s(S_T1)}, {s(S_T1)}, 6")
        e.op(f"s_sub_u32 {s(S_T1)}, {s(S_T1)}, 1280")
        e.op(f"v_add_u32 {T0}, {s(S_T1)}, {P0}")
        e.op(f"v_mul_u32_u24 {T2}, 640, {P1}")
        e.op(f"s_mov_b32 {s(S_T2)}, {64 * 2560 - 640}")
        for j in range(4):
            e.op(f"v_mul_u32_u24 {T3}, 1639, {T0}")
            e.op(f"v_lshrrev_b32 {T3}, 16, {T3}")
            e.op(f"v_lshl_add_u32 {T1}, {T0}, 4, {T2}")
            e.op(f"v_mad_u32_u24 {v(V_ST1+j)}, {T3}, {s(S_T2)}, {T1}")
            if j < 3: e.op(f"v_add_u32 {T0}, {24 if j & 1 else 8}, {T0}")
        e.label(ld)

    def late_lane_tables(self):
        e = self.e
        L = v(V_LANE); T0, T1, T2, T3 = v(V_T0), v(V_T1), v(V_T2), v(V_T3)
        e.op(f"v_and_b32 {T0}, 31, {L}")
        e.op(f"v_lshrrev_b32 {T1}, 5, {L}")
        e.op(f"v_lshlrev_b32 {v(V_R)}, 2, {T0}")
        e.op(f"s_lshl_b32 {s(S_T1)}, {s(S_WAVE)}, 10")
        e.op(f"s_add_u32 {s(S_T2)}, {s(S_T1)}, {L_K}")
        e.op(f"v_add_u32 {v(V_KA)}, {s(S_T2)}, {v(V_L16)}")
        e.op(f"s_mul_i32 {s(S_T1)}, {s(S_T1)}, 3")
        e.op(f"s_add_u32 {s(S_T1)}, {s(S_T1)}, {L_V}")
        e.op(f"v_lshl_add_u32 {T2}, {T1}, 7, {v(V_L16)}")
        e.op(f"v_add_u32 {v(V_VA)}, {s(S_T1)}, {T2}")
        e.op(f"v_lshlrev_b32 {T2}, 2, {T1}")
        e.op(f"v_sub_u32 {T2}, {T0}, {T2}")
        e.op(f"v_cvt_f32_i32 {T2}, {T2}")
        e.op(f"v_mov_b32 {T3}, {f32(2.0 ** 100)}")
        for rr in range(16):
            key = 8 * (rr >> 2) + (rr & 3)
            e.op(f"v_fmaak_f32 {v(CE + rr)}, {T2}, {T3}, {f32((0.5 - key) * 2.0 ** 100)}")
            e.op(f"v_min_f32 {v(CD + rr)}, 0, {v(CE + rr)}")
            e.op(f"v_min_f32 {v(CE + rr)}, -{v(CE + rr)}, 0")
        e.op(f"v_lshrrev_b32 {T1}, 4, {L}")
        e.op(f"v_lshl_add_u32 {v(V_HL)}, {T1}, 8, {v(V_L16)}")
    def late_table_use(self):
        e = self.e
        L = v(V_LANE); T0, T1, T2, T3 = v(V_T0), v(V_T1), v(V_T2), v(V_T3)
        for t in range(4): e.op(f"v_add_u32 {v(V_H + t)}, {s(S_HT + t)}, {v(V_HL)}")
        for k in range(3): e.op(f"v_add_u32 {v(V_KT + k)}, {s(S_KADJ + k)}, {v(V_L16)}")
        e.op(f"v_add_u32 {v(V_Q)}, {s(S_QOFF)}, {v(V_L16)}")
        e.op(f"v_lshl_add_u32 {v(V_R)}, {s(S_TQ)}, 8, {v(V_R)}")
        e.op(f"v_add_u32 {v(V_R)}, {WS_G}, {v(V_R)}")
        e.op(f"v_mov_b32 {v(V_FD)}, {s(S_PFD)}")
        e.op(f"v_lshrrev_b32 {T0}, 1, {L}")
        e.op(f"v_min_u32 {T0}, 14, {T0}")
        e.op(f"v_and_b32 {T1}, 1, {L}")
        e.op(f"v_lshl_add_u32 {T1}, {T1}, 3, {s(S_PFC)}")
        e.op(f"v_lshl_add_u32 {v(V_FC)}, {T0}, 7, {T1}")
        e.op(f"v_min_u32 {T0}, 47, {L}")
        e.op(f"v_lshlrev_b32 {T0}, 7, {T0}")
        e.op(f"v_cmp_lt_u32 vcc, 31, {L}")
        e.op(f"v_add_u32 {T0}, {FL_D + (240 - 32) * 128}, {T0}")
        e.op(f"v_cndmask_b32 {v(V_FC)}, {v(V_FC)}, {T0}, vcc")
        e.op(f"v_writelane_b32 {v(V_FC)}, {s(S_PFG)}, 63")
        e.op(f"s_lshr_b32 {s(S_T0)}, {s(S_TQ)}, 2")
        e.op(f"s_sub_u32 {s(S_T0)}, {s(S_T0)}, 2")
        e.op(f"v_lshrrev_b32 {T0}, 4, {L}")
        e.op(f"v_min_u32 {T0}, 2, {T0}")
        e.op(f"v_add_u32 {T0}, {s(S_T0)}, {T0}")
        e.op(f"v_max_i32 {T0}, 0, {T0}")
        e.op(f"v_and_b32 {T1}, 3, {L}")
        e.op(f"v_lshl_add_u32 {T1}, {T1}, 3, {s(S_PFA)}")
        e.op(f"v_lshl_add_u32 {T0}, {T0}, 11, {T1}")
        e.op(f"v_bfe_u32 {T1}, {L}, 2, 1")
        e.op(f"v_mad_u32_u24 {T0}, {T1}, {s(S_ASTEP)}, {T0}")
        e.op(f"v_cmp_gt_u32 vcc, 48, {L}")
        e.op(f"v_bfe_u32 {T1}, {L}, 3, 1")
        e.op(f"v_add_u32 {T1}, 1, {T1}")
        e.op(f"v_mul_u32_u24 {T1}, 640, {T1}")
        e.op(f"v_cndmask_b32 {T1}, 0, {T1}, vcc")
        e.op(f"v_add_u32 {v(V_FA)}, {T0}, {T1}")

    def rt_tables(self, base):
        e = self.e
        L = v(V_LANE); T0, T1, T2, T3 = v(V_T0), v(V_T1), v(V_T2), v(V_T3)
        P0, P1 = v(V_POLL), v(V_POLL + 1)
        e.op(f"s_and_b32 {s(S_T0)}, {s(S_WAVE)}, 1")
        e.op(f"s_mul_i32 {s(S_T0)}, {s(S_T0)}, 160")
        e.op(f"v_add_u32 {T0}, {s(S_T0)}, {L}")
        for i in range(3):
            e.op(f"v_mul_u32_u24 {T1}, 820, {T0}")
            e.op(f"v_lshrrev_b32 {T1}, 16, {T1}")
            e.op(f"v_lshlrev_b32 {T1}, 2, {T1}")
            e.op(f"v_xor_b32 {T1}, {T0}, {T1}")
            e.op(f"v_lshlrev_b32 {v(RT_LD + i)}, 4, {T1}")
            if i < 2: e.op(f"v_add_u32 {T0}, 64, {T0}")
        e.op(f"v_lshrrev_b32 {T0}, 4, {L}")
        e.op(f"v_and_b32 {T1}, 3, {L}")
        e.op(f"v_bfe_u32 {P1}, {L}, 2, 2")
        e.op(f"v_lshlrev_b32 {T3}, 3, {P1}")
        e.op(f"v_mul_u32_u24 {P1}, 1280, {P1}")
        e.op(f"v_add_u32 {P1}, {base}, {P1}")
        e.op(f"s_mul_i32 {s(S_T0)}, {s(S_WAVE)}, 40")
        e.op(f"v_and_b32 {P0}, 1, {T0}")
        e.op(f"v_lshl_add_u32 {T2}, {T1}, 1, {P0}")
        e.op(f"v_lshrrev_b32 {v(RT_D)}, 5, {L}")
        e.op(f"v_lshl_add_u32 {T2}, {v(RT_D)}, 3, {T2}")
        e.op(f"v_add_u32 {T2}, {s(S_T0)}, {T2}")
        for i in range(2):
            if i: e.op(f"v_add_u32 {T2}, 20, {T2}")
            e.op(f"v_xor_b32 {v(RT_D)}, {T2}, {T3}")
            e.op(f"v_lshl_add_u32 {v(RT_RD + i)}, {v(RT_D)}, 3, {P1}")
        e.op(f"v_mad_u32_u24 {T2}, {P0}, 20, {T1}")
        e.op(f"v_add3_u32 {T2}, {T2}, {s(S_T0)}, 16")
        e.op(f"v_xor_b32 {T2}, {T2}, {T3}")
        e.op(f"v_lshl_add_u32 {v(RT_RD + 2)}, {T2}, 3, {P1}")
        e.op(f"v_mul_u32_u24 {T0}, {1024 - 256}, {T0}")
        e.op(f"v_add_u32 {v(RT_ST)}, {T0}, {v(V_L16)}")
        e.op(f"v_add_u32 {v(RT_ST + 1)}, {74 * 5120}, {v(RT_ST)}")
        e.op(f"s_mov_b32 {s(S_T0)}, {74 * 5120 - 256}")
        e.op(f"v_mad_u32_u24 {T0}, {P0}, {s(S_T0)}, {v(V_L16H)}")
        e.op(f"v_add_u32 {v(RT_ST + 2)}, 4096, {T0}")
    def rt_srd(self):
        e = self.e
        e.op(f"s_bitcmp1_b32 {s(S_BITS)}, 1")
        e.op(f"s_cselect_b64 {s(S_MISC,2)}, {s(S_PWO,2)}, {s(S_PW2,2)}")
        e.op(f"s_mov_b32 {s(S_MISC+2)}, {640 * 1280}")
        e.op(f"s_cselect_b32 {s(S_MISC+2)}, {s(S_MISC+2)}, {1728 * 1280}")
        e.op(f"s_mul_i32 {s(S_T0)}, {s(S_WAVE)}, 2560")
    def rt_loads(self, base, src):
        e = self.e
        for i in range(3):
            e.op(f"s_add_u32 m0, {s(S_T0)}, {base + i * 1024}")
            if i == 2: e.op("s_mov_b32 exec_hi, 0")
            e.op(f"buffer_load_dwordx4 {v(RT_LD + i)}, {s(S_MISC,4)}, {s(src)} offen {self.nt}lds", tag="rl")
            if i == 2: e.op("s_mov_b32 exec_hi, -1")
    def rt_reads(self, lo_=0, D=RT_D):
        return [lambda i=i, u=u: self.e.op(f"ds_read_b64_tr_b16 {v(D + 4 * i + 2 * u, 2)}, {v(RT_RD + i)} offset:{lo_ + u * 5120}", tag=("rt", i))
                for i in range(3) for u in range(2)]
    def rt_stores(self, D=RT_D, so=S_RTS):
        e = self.e
        def st(i):
            e.wait(lg=("rt", i))
            e.op(f"buffer_store_dwordx4 {v(D + 4 * i, 4)}, {v(RT_ST + i)}, {s(S_WS,4)}, {s(so)} offen sc1", tag="rs")
        return [lambda i=i: st(i) for i in range(3)]

    EARLY_W = (0, 1, 2, 3)
    def w_loads(self, n):
        e = self.e
        def f(j):
            dst = r(WR + 20 * (n % NWR) + 4 * j, 4)
            if n == 13:
                if j in (0, 4):
                    e.op(f"s_add_u32 {s(S_T2)}, {s(S_WT0)}, {n * 4 * 5120 - 2048 + (4096 if j else 0)}")
                    e.op(f"s_cmp_lt_u32 {s(S_WAVE)}, 2")
                    e.op(f"s_cselect_b32 {s(S_T2)}, {s(S_T2)}, {OOB}")
                e.op(f"buffer_load_dwordx4 {dst}, {v(V_L16)}, {s(S_WS,4)}, {s(S_T2)} offen offset:{(j & 3) * 1024} sc1", tag=("w", n, j))
                return
            if j == 0:
                base, off = (S_WT0, n * 4 * 5120) if n < 14 else (S_WT1, (n - 14) * 5120)
                if self.wv is None or self.wv[0] != base:
                    e.op(f"v_add_u32 {v(V_WV)}, {s(base)}, {v(V_L16)}")
                    self.wv = (base, 0)
                if off != self.wv[1]: e.op(f"v_add_u32 {v(V_WV)}, {off - self.wv[1]}, {v(V_WV)}")
                self.wv = (base, off)
            e.op(f"global_load_dwordx4 {dst}, {v(V_WV)}, {s(S_WS,2)} offset:{j * 1024 - 2048} sc1", tag=("w", n, j))
        return [lambda j=j: f(j) for j in range(5)]
    @property
    def TM(self): return self.o("tm", 3)
    def hreg(self, n, t):
        n0 = 19 - self.TM
        if n < n0: return HSLOT[n % NH] + 4 * t
        i = self.TM * t + (n - n0)
        return HSLOT[(n0 + i // 4) % NH] + 4 * (i % 4)
    def h_load(self, n, t):
        e = self.e
        dst = v(self.hreg(n, t), 4)
        if n >= 14:
            q = n - 14
            so = ("0", s(S_C1), s(S_C2))[q >> 1]
            e.op(f"buffer_load_dwordx4 {dst}, {v(V_O + t)}, {s(S_WS,4)}, {so} offen offset:{(q & 1) * 2048} sc1", tag=("h", n, t))
            return
        if t == 0 and n > 0:
            e.op(f"s_mov_b32 {s(S_HK)}, {n * 8192}")
            if n == 13:
                e.op(f"s_cmp_lt_u32 {s(S_WAVE)}, 2")
                e.op(f"s_cselect_b32 {s(S_HK)}, {s(S_HK)}, {OOB}")
            self.hk = n
        assert n == 0 or self.hk == n
        e.op(f"buffer_load_dwordx4 {dst}, {v(V_H + t)}, {s(S_WS,4)}, {s(S_HK) if n else 0} offen sc1", tag=("h", n, t))
    def kvq_loads(self):
        e = self.e
        so = ("0", s(S_C1), s(S_C2))
        def q(f): e.op(f"buffer_load_dwordx4 {v(VQ + 4 * f, 4)}, {v(V_Q)}, {s(S_WS,4)}, {so[f]} offen sc1", tag="q")
        def k(f, i):
            if f == 0 and i == 0: e.op(f"s_mul_i32 {s(S_T5)}, {s(S_WAVE)}, 3072")
            if i == 0: e.op(f"s_add_u32 m0, {s(S_T5)}, {L_K + f * 12288}")
            e.op(f"buffer_load_dwordx4 {v(V_KT + i)}, {s(S_WS,4)}, {so[f]} offen offset:{i * 1024} sc1 lds", tag="kd")
        def vv(i, n):
            if i == 0 and n == 0: e.op(f"s_mul_i32 {s(S_T5)}, {s(S_WAVE)}, 9216")
            if n == 0: e.op(f"s_add_u32 m0, {s(S_T5)}, {L_V + i * 3072}")
            e.op(f"buffer_load_dwordx4 {v(V_L16H if n == 2 else V_L16)}, {s(S_WS,4)}, {s(S_VOFF + i)} offen offset:{n * 1024} sc1 lds", tag="vd")
        return [lambda f=f: q(f) for f in range(3)] + [lambda f=f, i=i: k(f, i) for f in range(3) for i in range(3)] + \
               [lambda i=i, n=n: vv(i, n) for i in range(3) for n in range(3)]

    def frag(self, st, f):
        return ((f >> 1) & 1, (f >> 2) * 2 + (f & 1)) if st == 19 else (f >> 2, f & 3)
    def w_read(self, st, f, u):
        ks, j = self.frag(st, f)
        off = L_W + (st % NW) * 16384 + ks * 8192 + u * 1024
        ad = V_WR + j
        if off >= 65536: off -= 65536; ad += 4
        self.e.op(f"ds_read_b64_tr_b16 {v(V_FR + 4 * f + 2 * u, 2)}, {v(ad)} offset:{off}", tag=("w", st, f))
    def xreg(self, xs, ks, tt): return A_X + 32 * min(xs, NXR) + 16 * ks + 4 * tt
    def x_read(self, st, ks, tt):
        xs = self.xst(st)
        self.e.op(f"ds_read_b128 {r(self.xreg(xs, ks, tt), 4)}, {v(V_XR + ks)} offset:{(tt >> 1) * 16384 + (xs % NX) * 4096 + (tt & 1) * 1024}", tag=("x", st, ks, tt))
    def accreg(self, ps, tt, j, swap):
        b, p, G, q = tt >> 1, tt & 1, j >> 1, j & 1
        return ACC[ps] + 32 * G + (16 * q + 8 * b + 4 * p if swap else 16 * p + 8 * b + 4 * q)

    LEAD = 10
    def stage1_fill(self):
        e = self.e
        fill = {m: [] for m in range(-1, 640)}
        used = {m: 0 for m in range(-1, 640)}
        def at(m, f, n=1):
            fill[max(m, -1)].append(f); used[max(m, -1)] += n
        WG = (1, 5, 8, 11, 14, 18, 21, 24)
        XG = (2, 2, 3, 3, 12, 15, 16, 19)
        for st in range(20):
            b = 32 * st - self.LEAD
            def bar(st=st):
                assert ("d", st) in e.all_tags
                e.wait(vm=("d", st), lg="all")
                e.op("s_barrier")
            at(b, bar, 2)
            for f in range(8):
                for u in range(2): at(b + WG[f], lambda st=st, f=f, u=u: self.w_read(st, f, u))
                if st < 10 or self.xst(st) >= NXR:
                    at(b + XG[f], lambda st=st, f=f: self.x_read(st, f >> 2, f & 3))
            for g in (9, 13, 17, 25): used[max(b + g, -1)] += 1
        return fill, used

    def vm_schedule(self, fill, used, queues, m0, m1, thr):
        lag = 0
        for m in range(m0, m1):
            lag = max(0, lag - 16)
            heads = [q for q in queues if q and q[0][0] <= m]
            if not heads: continue
            q = min(heads, key=lambda q: q[0][1])
            if used[m] and q[0][1] + 3 > m: continue
            if q[0][1] <= m or lag <= thr:
                rel, dl, cost, f = q.pop(0)
                fill[m].append(f); used[m] += 2
                lag = min(lag, 3 * 72) + cost
        assert not any(queues), [len(q) for q in queues]
    def va_place(self, fill, used, ops, m0, m1):
        cap = 2
        while sum(max(0, cap - used[m]) for m in range(m0, m1)) < len(ops): cap += 1
        over = len(ops) - sum(max(0, cap - 1 - used[m]) for m in range(m0, m1)) if cap > 2 else len(ops)
        ops = list(ops)
        for m in range(m0, m1):
            n = max(0, cap - 1 - used[m]) if cap > 2 else 0
            ex = max(0, cap - used[m]) - n
            ex = min(ex, over); over -= ex
            for _ in range(n + ex):
                if ops: fill[m].append(ops.pop(0)); used[m] += 1
        assert not ops

    def p1_epilogue_ops(self):
        e = self.e
        groups = []
        for g in range(8):
            A = ACC[0] + 8 * g
            ops = [lambda A=A, q=q: e.op(f"v_mul_f32 {v(A+q)}, {s(S_SCALE)}, {v(A+q)}") for q in range(8)]
            ops += [lambda A=A, q=q: e.op(f"v_cvt_pk_bf16_f32 {v(A+q)}, {v(A+2*q)}, {v(A+2*q+1)}") for q in range(4)]
            ops.append(lambda A=A, g=g: e.op(f"buffer_store_dwordx4 {v(A,4)}, {v(V_ST1 + (g >> 1))}, {s(S_WS,4)}, {s(S_ST1B if g & 1 else S_ST1)} offen sc1", tag="st1"))
            groups.append(ops)
        return groups
    def p2_epilogue_ops(self):
        e = self.e
        groups = []
        for g in range(8):
            A = ACC[1] + 8 * g
            ops = [lambda A=A, q=q: e.op(f"v_cvt_pk_bf16_f32 {v(A+q)}, {v(A+2*q)}, {v(A+2*q+1)}") for q in range(4)]
            ops += [lambda A=A, q=q: e.op(f"v_pk_max_i16 {v(A+q)}, {v(A+q)}, 0") for q in range(4)]
            ops.append(lambda A=A, g=g: e.op(f"buffer_store_dwordx4 {v(A,4)}, {v(V_LH)}, {s(S_WS,4)}, {s(S_ST2B if g & 1 else S_ST2)} offen offset:{(g >> 2) * 2048 + ((g >> 1) & 1) * 128} sc1", tag="st2"))
            groups.append(ops)
        return groups

    def stage1_stream(self, fill, m0, m1, swap):
        e = self.e
        for m in range(m0, m1):
            st, i = divmod(m, 32)
            f, tt = i >> 2, i & 3
            ks, j = self.frag(st, f)
            if ("w", st, f) in e.lg or ("x", st, ks, tt) in e.lg:
                e.wait(lg=[("w", st, f), ("x", st, ks, 3)] + ([("w", st, f + 1)] if f in (2, 4) else []))
            acc = v(self.accreg(st // 10, tt, j, swap), 4)
            wf = v(V_FR + 4 * f, 4)
            xf = r(self.xreg(self.xst(st), ks, tt), 4)
            c = "0" if (st % 10 == 0 and ks == 0) else acc
            if swap: e.op(f"v_mfma_f32_16x16x32_bf16 {acc}, {xf}, {wf}, {c}")
            else: e.op(f"v_mfma_f32_16x16x32_bf16 {acc}, {wf}, {xf}, {c}")
            for fn in fill[m]: fn()

    def ones_init(self):
        return [lambda i=i: self.e.op(f"v_mov_b32 {v(VF + i)}, 0x3f803f80") for i in range(8)]

    def stage1(self):
        e = self.e
        lead = self.LEAD
        nc, c0, ne = self.o("tnc", 0), self.o("tch0", 2), self.o("tne", 1)
        S_TX, S_TW = 98, 99
        def touch_setup():
            e.op(f"s_lshl2_add_u32 {s(S_T0)}, s2, {s(S_WAVE)}")
            nx, nw_ = -(-2048 // 960), 2 * nc
            e.op(f"v_min_u32 {v(30)}, {nx * nc - 1}, {v(V_LANE)}")
            e.op(f"v_mul_u32_u24 {v(31)}, {-(-65536 // nc)}, {v(30)}")
            e.op(f"v_lshrrev_b32 {v(31)}, 16, {v(31)}")
            e.op(f"v_mul_u32_u24 {v(31)}, {10 - nc}, {v(31)}")
            e.op(f"v_add_lshl_u32 {v(30)}, {v(30)}, {v(31)}, 7")
            e.op(f"s_mul_i32 {s(S_TX)}, {s(S_T0)}, {nx * 1280}")
            e.op(f"v_min_u32 {v(31)}, {nw_ - 1}, {v(V_LANE)}")
            e.op(f"v_lshlrev_b32 {v(31)}, 7, {v(31)}")
            e.op(f"s_mul_i32 {s(S_TW)}, {s(S_T0)}, {nw_ * 128}")
            e.op(f"s_add_u32 {s(S_TW)}, {s(S_TW)}, {c0 * 64 * 3840}")
        def touch(k):
            if k == 0: touch_setup()
            e.op(f"buffer_load_dword {v(28)}, {v(30)}, {s(S_X,4)}, {s(S_TX)} offen offset:{(c0 + k * nc) * 128}")
            if k: e.op(f"s_add_u32 {s(S_TW)}, {s(S_TW)}, {nc * 64 * 3840}")
            e.op(f"buffer_load_dword {v(29)}, {v(31)}, {s(S_WA,4)}, {s(S_TW)} offen")
        tpos = [self.o("tpos", 0) + k * self.o("tstep", 1) for k in range(ne)] if nc else []
        if -1 in tpos: touch(tpos.index(-1))
        for f in self.dmas(0): f()
        if 0 in tpos: touch(tpos.index(0))
        self.pi_setup(None, True)
        self.common_setup()
        self.stage1_tables()
        d1 = self.dmas(1)
        for f in d1[:4]: f()
        self.rt_tables(L_RT)
        lsu = self.o("lsu", 0)
        if not lsu: self.late_lane_tables()
        for f in d1[4:]: f()
        if 1 in tpos: touch(tpos.index(1))
        e.wait(lg="all")
        self.flush_stamp()
        self.rt_srd()
        self.rt_loads(L_RT, S_RTSRC)
        def agg_addr():
            e.op(f"s_mov_b32 {s(S_T0)}, {OOB}")
            e.op(f"s_cmp_eq_u32 {s(S_CG)}, 14")
            e.op(f"s_cselect_b32 {s(S_T0)}, {FL_D}, {s(S_T0)}")
            e.op(f"v_lshl_add_u32 {v(225)}, {s(S_WAVE)}, 6, {v(V_LANE)}")
            e.op(f"v_min_u32 {v(225)}, 239, {v(225)}")
            e.op(f"v_lshl_add_u32 {v(225)}, {v(225)}, 7, {s(S_T0)}")
        if not lsu:
            self.late_table_use(); agg_addr()
        fill, used = self.stage1_fill()
        vfill = {m: [] for m in range(-1, 640)}
        G2 = lambda k, d: 2 * self.o(k, d)
        dq = []
        for st in range(2, 20):
            d = self.dmas(st)
            rel = 32 * (st - (2 if st < 10 else 4)) - lead + 1
            g0 = max(32 * (st - 2) - lead + 1, 0); g1 = 32 * (st - 1) - lead - 2
            dq += [(rel, g0 + i * (g1 - g0) // len(d), 72, f) for i, f in enumerate(d)]
            if st in tpos: dq.append((rel, g1 - 1, 40, lambda k=tpos.index(st): touch(k)))
        pA, cA = G2("pollA", 260), G2("chkA", 279)
        assert cA > 32 * 16 - lead
        kv = self.kvq_loads()
        dq += [(cA + 1, cA + 1 + i * (634 - cA) // len(kv), 72, f) for i, f in enumerate(kv)]
        rs0 = G2("rs0", 46)
        for i, f in enumerate(self.rt_reads()):
            fill[96 - lead - 6 + i // 2].append(f); used[96 - lead - 6 + i // 2] += 1
        sq = [(rs0 + 12 * i, rs0 + 12 * i, 128, f) for i, f in enumerate(self.rt_stores())]
        sq.append((rs0 + 28, rs0 + 28, 20, self.nonce_issue))
        pd = (rs0 + 28 + 48 + lead + 31) // 32 * 32 - lead
        fill[pd].insert(0, self.nonce_check)
        sq.append((pd + 1, pd + 1, 20, lambda: self.publish(S_RTF)))
        sq.append((G2("pollG", 140), G2("pollG", 140), 20, lambda: self.poll_issue(225)))
        sp, e0 = G2("epi", 5), 321
        epi1 = self.p1_epilogue_ops()
        for g, ops in enumerate(epi1): sq.append((e0 + sp * (g + 1), e0 + sp * (g + 1), self.o("stc", 160), ops[-1]))
        def pub_a():
            e.wait(vm="st1")
            self.publish(S_FLA)
        pD, cD = G2("pollD", 222), G2("chkD", 240)
        assert cD >= 32 * 13
        sq += sorted([(pD, pD, 20, lambda: self.poll_issue(V_FD)), (G2("pubA", 224), G2("pubA", 224), 20, pub_a)], key=lambda x: x[0])
        vfill[cD].append(lambda: self.poll_check(V_FD, 1)); used[cD] += 3
        sq.append((pA, pA, 30, lambda: self.poll_issue(V_FA)))
        vfill[cA].append(lambda: self.poll_check(V_FA, 0)); used[cA] += 3
        vfill[cA].append(lambda: self.stamp(3))
        ew = sum([self.w_loads(n) for n in self.EARLY_W], [])
        wq = [(cD + 1, cA - 4 * (len(ew) - i), 72, f) for i, f in enumerate(ew)]
        self.vm_schedule(fill, used, [dq, sq, wq], 0, 640, self.o("thr", 40))
        if lsu: self.va_place(vfill, used, self.capture(self.late_lane_tables, self.late_table_use, agg_addr), self.o("lsu0", 0) * 32, 32 * lsu)
        for g, ops in enumerate(epi1): self.va_place(vfill, used, ops[:-1], e0 + sp * g, e0 + sp * (g + 1))
        self.va_place(vfill, used, self.ones_init(), e0 + sp * 8 + 8, e0 + sp * 8 + 40)
        epi2 = self.p2_epilogue_ops()
        self.p2_stores_left = [g[-1] for g in epi2]
        va = sum([g[:-1] for g in epi2], [])
        nh = self.o("p2h", 24)
        self.va_place(vfill, used, va[:nh], 626, 640)
        self.p2_valu_left = va[nh:]
        z = self.o("zoom", 0)
        if z in (1, 2):
            for k in range(11):
                m = min(320 * (z - 1) + 32 * k - 1, 639 if z == 2 else 318)
                if z == 2 and k == 0: m = 320
                vfill[m].append(lambda k=k: self.stamp(1 + k, True))
            vfill[319].append(self.flush_stamp)
        for m in fill: fill[m] += vfill[m]
        for fn in fill[-1]: fn()
        if z == 1: self.flush_stamp()
        self.stamp(1)
        e.op(f"s_cmp_ge_u32 {s(S_CG)}, 10")
        e.op("s_cbranch_scc1 L_p1v")
        snap = e.snapshot()
        self.stage1_stream(fill, 0, 320, False)
        e.op("s_branch L_p2")
        after = e.snapshot()
        e.restore(snap)
        e.label("L_p1v")
        self.stage1_stream(fill, 0, 320, True)
        e.op(f"s_cmp_eq_u32 {s(S_CG)}, 14")
        e.op("s_cbranch_scc1 L_gate")
        self.gate_snap = e.snapshot()
        assert after[0] == e.vm and after[1] == e.lg
        e.label("L_p2")
        self.stamp(2)
        self.wv = None
        self.stage1_stream(fill, 320, 640, False)
        self.flush_stamp()

    def side_tail(self, early=True):
        e = self.e
        if early:
            self.poll_issue(V_FD)
            for f in self.ones_init(): f()
            self.poll_check(V_FD, 1)
            self.wv = None
            ew = sum([self.w_loads(n) for n in self.EARLY_W], [])
            for f in ew[:12]: f()
            self.poll_issue(V_FA)
            for f in ew[12:]: f()
        self.poll_check(V_FA, 0)
        for f in self.kvq_loads(): f()
        e.wait(lg="all")
        n = len(self.att_vm)
        assert e.vm[-21:] == self.att_vm[-21:] and all(t[0] == "w" for t in self.att_vm[:-21])
        e.op("s_branch L_att")

    def gate(self):
        e = self.e
        T1, T2, T3 = v(V_T1), v(V_T2), v(V_T3)
        e.restore(self.gate_snap)
        e.label("L_gate")
        e.op(f"s_mov_b64 {s(S_MISC,2)}, {s(S_PG,2)}")
        e.op(f"s_movk_i32 {s(S_MISC+2)}, 1280")
        e.op(f"s_lshr_b32 {s(S_T3)}, {s(S_WM0)}, 1")
        e.op(f"s_add_u32 {s(S_T3)}, {s(S_T3)}, {L_V + 12 * 3072}")
        e.op(f"s_mov_b32 m0, {s(S_T3)}")
        e.op(f"v_lshrrev_b32 {T1}, 4, {v(V_LANE)}")
        for n in range(2):
            e.op(f"buffer_load_dwordx4 {v(V_L16)}, {s(S_MISC,4)}, 0 offen offset:{n * 1024} lds", tag="gw")
        e.op(f"v_lshl_add_u32 {T1}, {T1}, 4, {s(S_T3)}")
        e.wait(lg="all")
        epi = self.p1_epilogue_ops()
        for g in epi[:2]:
            for f in g: f()
        self.open_poll = 225
        self.poll_check(225, 4)
        e.op("s_barrier")
        e.op(f"s_bfe_u32 {s(S_T1)}, {s(S_TB1)}, 0x30002")
        e.op(f"s_lshl_b32 {s(S_T1)}, {s(S_T1)}, 7")
        e.op(f"s_add_u32 {s(S_T1)}, {s(S_T1)}, {FL_DD}")
        e.op(f"s_cmp_eq_u32 {s(S_WAVE)}, 0")
        e.op(f"s_cselect_b32 {s(S_T1)}, {s(S_T1)}, {OOB}")
        self.publish(S_T1)
        for g in epi[2:]:
            for f in g: f()
        self.wv = None
        ew = sum([self.w_loads(n) for n in self.EARLY_W], [])
        e.wait(vm="gw")
        G = 32
        order = [9, 0, 1, 8, 2, 3, 7, 4, 5, 6]
        def gread(k):
            if k % 2 == 0:
                self.pi_off(S_T4, order[k // 2], 0)
                e.op(f"v_add_u32 {T2}, {s(S_T4)}, {T1}")
            e.op(f"ds_read_b128 {v(G + 4 * (k % 4), 4)}, {T2} offset:{64 * (k % 2)}", tag=("g", k))
        for k in range(4): gread(k)
        for k in range(20):
            xs, ks = order[k // 2], k % 2
            e.wait(lg=[("g", k), ("x", xs, ks, 3)])
            for tt in range(4):
                e.op(f"v_mfma_f32_16x16x32_bf16 {v(48 + 4 * tt, 4)}, {v(G + 4 * (k % 4), 4)}, {r(self.xreg(xs, ks, tt), 4)}, {'0' if k == 0 else v(48 + 4 * tt, 4)}")
                if k in (2, 3, 8, 9): self.x_read(8 if k < 8 else 7, ks, tt)
            if k + 4 < 20: gread(k + 4)
            if k == 11:
                e.wait(vm="st1")
                self.publish(S_FLA)
        e.op("s_barrier")
        for f in self.ones_init(): f()
        e.op(f"s_bitcmp1_b32 {s(S_WAVE)}, 0")
        e.op(f"s_cselect_b64 {s(S_MASK,2)}, -1, 0")
        e.op("s_mov_b32 vcc_lo, 0xffff0000")
        e.op("s_mov_b32 vcc_hi, 0xffff0000")
        e.op(f"v_cndmask_b32 v0, v48, v56, {s(S_MASK,2)}")
        e.op(f"v_cndmask_b32 v4, v52, v60, {s(S_MASK,2)}")
        e.op("v_cndmask_b32 v0, v0, v4, vcc")
        e.op(f"v_min_f32 {T1}, {f32(30.0)}, v0")
        e.op(f"v_mul_f32 {T1}, {f32(LOG2E)}, {T1}")
        e.op(f"v_exp_f32 {T1}, {T1}")
        e.op(f"v_add_f32 {T2}, 1.0, {T1}")
        e.op(f"v_rcp_f32 {T2}, {T2}")
        e.op(f"v_cmp_gt_u32 vcc, 32, {v(V_LANE)}")
        e.op(f"v_and_b32 {T3}, 39, {v(V_LANE)}")
        e.op(f"v_bfe_u32 v1, {v(V_LANE)}, 3, 1")
        e.op(f"v_lshl_add_u32 {T3}, v1, 4, {T3}")
        e.op(f"v_bfe_u32 v1, {v(V_LANE)}, 4, 1")
        e.op(f"v_lshl_add_u32 {T3}, v1, 3, {T3}")
        e.op(f"v_lshlrev_b32 {T3}, 2, {T3}")
        e.op(f"s_lshl_b32 {s(S_T1)}, {s(S_TB1)}, 8")
        e.op(f"s_add_u32 {s(S_T1)}, {s(S_T1)}, {WS_G}")
        e.op(f"v_cndmask_b32 {T1}, {T2}, {T1}, vcc")
        e.op(f"buffer_store_dword {T1}, {T3}, {s(S_WS,4)}, {s(S_T1)} offen sc1", tag="gs")
        for f in ew[:12]: f()
        e.wait(vm="gs")
        self.publish(S_FLA, 32)
        for f in ew[12:16]: f()
        self.poll_issue(V_FA)
        for f in ew[16:]: f()
        self.side_tail(False)

    def spare(self):
        e = self.e
        e.restore(self.spare_snap)
        e.label("L_spare")
        L = v(V_LANE); T0, T1, T2, T3 = v(V_T0), v(V_T1), v(V_T2), v(V_T3)
        self.common_setup()
        e.op(f"v_mov_b32 {v(V_LH)}, 0")
        e.op(f"s_memrealtime {s(S_NONCE,2)}")
        self.rt_tables(0)
        e.op(f"s_sub_u32 {s(S_T1)}, s2, 240")
        e.op(f"s_lshl2_add_u32 {s(S_T1)}, {s(S_T1)}, {s(S_WAVE)}")
        e.op(f"s_lshl_b32 {s(S_T2)}, {s(S_T1)}, 13")
        e.op(f"v_lshl_add_u32 {v(225)}, {L}, 7, {s(S_T2)}")
        def touch(m):
            if self.o("pf2", 1):
                e.op(f"s_mov_b32 {s(S_T2)}, {m * 4096 * 128}")
                e.op(f"buffer_load_dword {v(224)}, {v(225)}, {s(S_WB,4)}, {s(S_T2)} offen")
        for c in range(10 - 2 * self.o("pf1", 0), 10, 2):
            e.op(f"v_lshrrev_b32 {T2}, 8, {v(225)}")
            e.op(f"v_lshl_add_u32 {T2}, {T2}, 10, {v(225)}")
            e.op(f"buffer_load_dword {v(224)}, {T2}, {s(S_X,4)}, 0 offen offset:{c * 128}")
            e.op(f"v_min_u32 {T2}, {3839 * 128}, {v(225)}")
            e.op(f"s_mov_b32 {s(S_T2)}, {c * 64 * 3840}")
            e.op(f"buffer_load_dword {v(224)}, {T2}, {s(S_WA,4)}, {s(S_T2)} offen")
        e.wait(lg="all")
        self.flush_stamp()
        e.op(f"s_or_b32 {s(S_T2)}, {s(S_NONCE)}, 1")
        e.op(f"v_mov_b32 {v(V_NONCE)}, {s(S_T2)}")
        e.op(f"v_mov_b32 {v(V_NONCE+1)}, {s(S_NONCE+1)}")
        e.op(f"s_cmp_lg_u32 {s(S_T1)}, 0")
        e.op("s_cbranch_scc1 L_nononce")
        e.op("s_mov_b64 exec, 1")
        e.op(f"buffer_store_dwordx2 {v(V_NONCE,2)}, {v(V_ZERO)}, {s(S_DBG,4)}, 0 offen sc1")
        e.op("s_mov_b64 exec, -1")
        e.label("L_nononce")
        self.rt_srd()
        for m, src in enumerate((S_RTSRC, S_ST1, S_ST1B, S_SCALE)): self.rt_loads(m * 10240, src)
        touch(0)
        self.late_lane_tables()
        self.late_table_use()
        e.wait(vm="rl")
        e.op("s_barrier")
        self.stamp(1)
        touch(1)
        for m in range(4):
            if m: e.op(f"s_add_u32 {s(S_RTS)}, {s(S_RTS)}, {4 * 5120}")
            if m == 3:
                e.op("s_cmp_lt_u32 s2, 248")
                e.op(f"s_cselect_b32 {s(S_RTS)}, {s(S_RTS)}, {OOB}")
            for f in self.rt_reads(m * 10240, 96 + 12 * m) + self.rt_stores(96 + 12 * m): f()
        self.nonce_issue()
        touch(2)
        self.nonce_check()
        e.op("s_barrier")
        self.publish(S_RTF)
        self.stamp(3)
        touch(3); touch(4)
        self.stamp(2)
        self.flush_stamp()
        self.side_tail()

    def k_reads(self, u):
        h, j = divmod(u, 9)
        for ff in range(2):
            self.e.op(f"ds_read_b128 {v(KF + 4 * ff, 4)}, {v(V_KA)} offset:{(h + ff) * 12288 + j * 1024}", tag="k")
    def v_reads(self, u):
        h, j = divmod(u, 9)
        e = self.e
        e.op(f"s_mov_b64 exec, {s(S_VM,2)}")
        for ss in range(2):
            e.op(f"ds_read_b128 {v(VF + 4 * ss, 4)}, {v(V_VA)} offset:{j * 3072 + ss * 1280 + h * 320}", tag="v")
        e.op("s_mov_b64 exec, -1")
    def qk(self, u, part, S, lo=False):
        h, j = divmod(u, 9)
        c = v(S, 16) if part else v(CD, 16) if j == 8 else v(CE, 16) if (j == 0 or lo) else "0"
        self.e.op(f"v_mfma_f32_32x32x16_bf16 {v(S,16)}, {v(KF + 4 * part, 4)}, {v(QM + 8 * h + 4 * part, 4)}, {c}")
    def pv(self, u, part, S, first):
        O = v(OO[u // 9], 16)
        self.e.op(f"v_mfma_f32_32x32x16_bf16 {O}, {v(VF + 4 * part, 4)}, {v(S + 4 * part, 4)}, {'0' if first else O}")

    def q_mask(self):
        e = self.e
        lo, dn = self.L("qodd"), self.L("qdone")
        e.op(f"s_mov_b32 {s(S_MASK)}, -1")
        e.op(f"s_mov_b32 {s(S_MASK+1)}, 0")
        e.op(f"s_bitcmp1_b32 {s(S_BITS)}, 0")
        e.wait(vm="q")
        e.op(f"s_cbranch_scc1 {lo}")
        for par in range(2):
            if par: e.label(lo)
            for h in range(2):
                for ff in range(2):
                    for slot in range(2):
                        p0 = 4 * (h + ff) + 2 * slot - 2 * par - 5 * h
                        k0, k1 = 0 <= p0 < 5, 0 <= p0 + 1 < 5
                        for d in range(2):
                            dst, src = v(QM + 8 * h + 4 * ff + 2 * slot + d), v(VQ + 4 * (h + ff) + 2 * slot + d)
                            if k0 and k1: e.op(f"v_mov_b32 {dst}, {src}")
                            elif k0: e.op(f"v_cndmask_b32 {dst}, 0, {src}, {s(S_MASK,2)}")
                            elif k1: e.op(f"v_cndmask_b32 {dst}, {src}, 0, {s(S_MASK,2)}")
                            else: e.op(f"v_mov_b32 {dst}, 0")
            if not par: e.op(f"s_branch {dn}")
        e.label(dn)

    def attention(self):
        e = self.e
        e.label("L_att")
        self.att_vm = list(e.vm)
        self.stamp(4)
        T0 = v(V_T0)
        stores = list(self.p2_stores_left)
        self.q_mask()
        e.wait(vm="kd")
        e.op("s_barrier")
        self.k_reads(0)
        for f in self.p2_valu_left: f()
        for _ in range(self.o("ns1", 1)): stores.pop(0)()
        self.stamp(5)
        side = {(u, k): [] for u in range(18) for k in range(4)}
        wl = sum([self.w_loads(n) for n in range(NWR) if n not in self.EARLY_W], [])
        slots = [(u, k) for u in range(18) for k in range(4)]
        sst = self.o("sst", 2)
        for i, f in enumerate(stores): side[slots[sst * i]].append(f)
        def pub_c():
            e.wait(vm="st2")
            self.publish(S_FLA, 32)
        pubC, pC, cC = self.o("pubC", 18), self.o("pollC", 44), self.o("chkC", 56)
        side[slots[pubC]].append(pub_c)
        side[slots[pC]].append(lambda: self.poll_issue(V_FC))
        def chk_c():
            self.poll_check(V_FC, 2); self.stamp(6)
            e.op(f"buffer_load_dword {v(V_R)}, {v(V_R)}, {s(S_WS,4)}, 0 offen sc1", tag="r")
        hl = [(n, t) for n in range(5) for t in range(4)]
        taken = {pubC, pC, cC} | {sst * i for i in range(len(stores))}
        skip = self.o("wskip", len(stores))
        acc, rate = 0, self.o("wrate", 16)
        for i, x in enumerate(slots):
            if i == cC: side[x].append(chk_c)
            if i in taken: continue
            skip -= 1
            if skip >= 0: continue
            acc += rate
            if acc < 16: continue
            acc -= 16
            if wl: side[x].append(wl.pop(0))
            elif i > cC and hl:
                n, t = hl.pop(0)
                side[x].append(lambda n=n, t=t: self.h_load(n, t))
        assert not wl
        self.h_left = hl
        def fill_ce(val):
            for i in range(16): e.op(f"v_mov_b32 {v(CE + i)}, {val}")
        def steps(lo):
            def open_at(jn):
                st, bk = self.L("open"), self.L("open_ok")
                e.op(f"s_cmp_eq_u32 {s(S_TQ)}, {8 - jn}")
                e.op(f"s_cbranch_scc1 {st}")
                e.label(bk)
                def stub():
                    e.label(st, reset=True)
                    e.op("s_nop 7")
                    fill_ce(0)
                    e.op("s_nop 0")
                    e.op(f"s_branch {bk}")
                self.stubs.append(stub)
            if lo: fill_ce(hex(NEGBIG))
            e.wait(lg="k")
            self.qk(0, 0, SB[0], lo); self.qk(0, 1, SB[0], lo)
            self.k_reads(1)
            if lo: open_at(1)
            for u in range(18):
                if self.o("zoom", 0) == 3 and u % 2 == 0: self.stamp(1 + u // 2, True)
                S, Sn, Sp = SB[u % 3], SB[(u + 1) % 3], SB[(u - 1) % 3]
                ex = lambda i: e.op(f"v_exp_f32 {v(S + i)}, {v(S + i)}")
                cv = lambda i: e.op(f"v_cvt_pk_bf16_f32 {v(S + i)}, {v(S + 2 * i)}, {v(S + 2 * i + 1)}")
                if u < 17:
                    e.wait(lg="k")
                    self.qk(u + 1, 0, Sn, lo)
                for f in side[(u, 0)]: f()
                for i in range(0, 4): ex(i)
                if u < 17: self.qk(u + 1, 1, Sn, lo)
                e.wait(lg="v")
                if u < 16: self.k_reads(u + 2)
                for f in side[(u, 1)]: f()
                for i in range(4, 8): ex(i)
                cv(0); cv(1)
                if u > 0: self.pv(u - 1, 0, Sp, (u - 1) % 9 == 0)
                if lo and u + 2 == 9: fill_ce(hex(NEGBIG))
                if lo and u + 2 < 18 and 1 <= (u + 2) % 9 <= 7: open_at((u + 2) % 9)
                for f in side[(u, 2)]: f()
                for i in range(8, 12): ex(i)
                cv(2); cv(3)
                if u > 0:
                    self.pv(u - 1, 1, Sp, False)
                    self.v_reads(u)
                for f in side[(u, 3)]: f()
                for i in range(12, 16): ex(i)
                for i in range(4, 8): cv(i)
                if u == 0:
                    e.wait(vm="vd")
                    e.op("s_barrier")
                    self.v_reads(0)
            e.wait(lg="v")
            self.pv(17, 0, SB[17 % 3], False); self.pv(17, 1, SB[17 % 3], False)
            self.flush_stamp()
        self.flush_stamp()
        e.op(f"s_cmp_lt_u32 {s(S_TQ)}, 8")
        e.op("s_cbranch_scc1 L_att_lo")
        snap0, wv0 = e.snapshot(), self.wv
        steps(False)
        snap1 = e.snapshot()
        def att_lo():
            e.restore(snap0); self.wv = wv0
            e.label("L_att_lo")
            steps(True)
            assert e.vm == snap1[0] and e.lg == snap1[1]
            e.op("s_branch L_att_join")
        self.att_lo = att_lo
        e.label("L_att_join")
        self.stamp(7)
        for h in range(2):
            O = OO[h]
            st, bk = self.L("slow"), self.L("slow_ok")
            e.op(f"v_subrev_u32 {T0}, 0x2f800000, {v(O + 12)}")
            e.op(f"v_cmp_le_u32 vcc, 0x20000000, {T0}")
            if self.o("forceslow", 0): e.op("s_mov_b64 vcc, -1")
            for _ in range(2 - h):
                if self.h_left:
                    n, t = self.h_left.pop(0); self.h_load(n, t)
            e.op(f"s_cbranch_vccnz {st}")
            e.label(bk)
            self.cold.append(lambda st=st, bk=bk, h=h: self.slow_head(h, st, bk))
        OP = 0
        ep = []
        A = lambda t, tag=None: ep.append(lambda: e.op(t, tag=tag))
        for h in range(2): A(f"v_rcp_f32 {v(V_T2 + h)}, {v(OO[h] + 12)}")
        ep.append(lambda: e.wait(vm="r"))
        for h in range(2): A(f"v_mul_f32 {v(V_T2 + h)}, {v(V_T2 + h)}, {v(V_R)}")
        for h in range(2):
            O = OO[h]
            for i in range(8): A(f"v_mul_f32 {v(O + i)}, {v(O + i)}, {v(V_T2 + h)}")
            for i in range(4): A(f"v_cvt_pk_bf16_f32 {v(OP + 4 * h + i)}, {v(O + 2 * i)}, {v(O + 2 * i + 1)}")
            A(f"buffer_store_dwordx4 {v(OP + 4 * h, 4)}, {v(V_L16)}, {s(S_WS,4)}, {s(S_OST)} offen offset:{h * 1024} sc1", "sto")
        for h in range(2):
            O = OO[h]
            for i in range(8, 12): A(f"v_mul_f32 {v(O + i)}, {v(O + i)}, {v(V_T2 + h)}")
            for i in range(2): A(f"v_cvt_pk_bf16_f32 {v(OP + 8 + 2 * h + i)}, {v(O + 8 + 2 * i)}, {v(O + 9 + 2 * i)}")
        A(f"buffer_store_dwordx4 {v(OP + 8, 4)}, {v(V_L16H)}, {s(S_WS,4)}, {s(S_OST2)} offen sc1", "sto")
        self.o_epilogue = ep

    def slow_head(self, h, st, bk):
        e = self.e
        e.label(st, reset=True)
        e.vm, e.lg = [], []
        T0, MX = v(V_T0), v(V_T1)
        O, S = OO[h], SB[0]
        e.op("s_nop 15")
        e.op(f"v_mov_b32 {MX}, {hex(NEGBIG)}")
        for i in range(16): e.op(f"v_mov_b32 {v(O + i)}, 0")
        for ps in range(2):
            for j in range(9):
                u = 9 * h + j
                sk = self.L("sk")
                if j < 8:
                    e.op(f"s_cmp_lt_u32 {s(S_TQ)}, {8 - j}")
                    e.op(f"s_cbranch_scc1 {sk}")
                if ps: self.v_reads(u)
                self.k_reads(u)
                e.wait(lg="all")
                self.qk(u, 0, S); self.qk(u, 1, S)
                if ps == 0:
                    for i in range(8): e.op(f"v_max3_f32 {MX}, {MX}, {v(S + 2 * i)}, {v(S + 2 * i + 1)}")
                else:
                    for i in range(16): e.op(f"v_sub_f32 {v(S + i)}, {v(S + i)}, {MX}")
                    for i in range(16): e.op(f"v_exp_f32 {v(S + i)}, {v(S + i)}")
                    for i in range(8): e.op(f"v_cvt_pk_bf16_f32 {v(S + i)}, {v(S + 2 * i)}, {v(S + 2 * i + 1)}")
                    self.pv(u, 0, S, False); self.pv(u, 1, S, False)
                    e.op("s_nop 7")
                e.label(sk)
            if ps == 0:
                e.op(f"v_mov_b32 {T0}, {MX}")
                e.op(f"v_permlane32_swap_b32 {T0}, {MX}")
                e.op("s_nop 1")
                e.op(f"v_max_f32 {MX}, {T0}, {MX}")
        e.op("s_nop 15")
        e.op(f"s_branch {bk}")

    def stage3(self):
        e = self.e
        L = v(V_LANE); T0, T1, T2, T3 = v(V_T0), v(V_T1), v(V_T2), v(V_T3)
        self.stamp(8)
        e.op(f"s_load_dwordx8 {s(TB,8)}, {s(S_TAB,2)}, 128")
        e.op(f"s_load_dwordx4 {s(TB+8,4)}, {s(S_TAB,2)}, 160")
        TM = self.TM; n0 = 19 - TM
        setup = []
        A = lambda t, tag=None: setup.append(lambda: e.op(t, tag=tag))
        setup.append(lambda: e.wait(lg="all"))
        A(f"s_movk_i32 {s(S_C1)}, 4096")
        A(f"s_movk_i32 {s(S_C2)}, 8192")
        for t in range(4): A(f"v_add_u32 {v(V_O + t)}, {s(S_OT + t)}, {v(V_HL)}")
        A(f"v_and_b32 {T0}, 15, {L}")
        A(f"v_lshl_add_u32 {v(V_GW)}, {T0}, 2, {s(S_GW)}")
        A(f"buffer_load_dword {v(V_GW)}, {v(V_GW)}, {s(S_WS,4)}, 0 offen sc1", "g")
        for t in range(3): A(f"v_add_u32 {v(V_RR + t)}, {s(S_RED + t)}, {v(V_L16)}")
        A(f"v_add_u32 {v(V_RW)}, {s(S_RED + 3)}, {v(V_L16)}")
        A(f"v_lshrrev_b32 {T1}, 4, {L}")
        A(f"v_mul_u32_u24 {T0}, 1280, {T0}")
        A(f"v_add_u32 {T0}, {s(S_OUTO)}, {T0}")
        A(f"v_lshl_add_u32 {v(V_OUT)}, {T1}, 4, {T0}")
        A(f"v_lshl_add_u32 {v(V_OUT + 1)}, {T1}, 3, {T0}")
        A(f"v_lshrrev_b32 {T0}, 1, {L}")
        A(f"v_min_u32 {T0}, 3, {T0}")
        A(f"v_and_b32 {T1}, 1, {L}")
        A(f"v_lshl_add_u32 {T1}, {T1}, 3, {s(S_PFB)}")
        A(f"v_lshl_add_u32 {v(V_FB)}, {T0}, 7, {T1}")
        cB = self.o("chkB", 11)
        Q = [(0, lambda n=n, t=t: self.h_load(n, t)) for n, t in self.h_left]
        for n in range(5, n0):
            if n >= 12: Q += [(max(n - 11, 4 if n >= 14 else 0), f) for f in self.w_loads(n)]
            Q += [(max(n - 5, 2, cB if n >= 14 else 0), lambda n=n, t=t: self.h_load(n, t)) for t in range(4)]
        for n in range(n0, 19): Q += [(max(n - 11, 4), f) for f in self.w_loads(n)]
        for t in range(4):
            for n in range(n0, 19):
                i = TM * t + n - n0
                Q.append((max(n0 - 5 + i // 4, cB), lambda n=n, t=t: self.h_load(n, t)))
        def issue(step):
            for i, (fr, f) in enumerate(Q):
                if fr <= step:
                    Q.pop(i); f(); return True
            return False
        def need(tags, step, also=()):
            while any(t not in e.all_tags for t in tags): assert issue(step)
            if any(t in e.vm for t in tags): e.wait(vm=list(tags) + [t for t in also if t in e.vm])
        def mfma(n, t, j):
            acc = v(BA + 20 * t + 4 * j, 4)
            e.op(f"v_mfma_f32_16x16x32_bf16 {acc}, {r(WR + 20 * (n % NWR) + 4 * j, 4)}, {v(self.hreg(n, t), 4)}, {'0' if n == 0 else acc}")
        lrate = self.o("lrate", 6)
        cnt = 0
        oep = list(self.o_epilogue)
        for n in range(n0):
            if n == 2: assert not oep
            if n == 4: assert not setup
            if self.o("zoom", 0) == 4 and n < 12: self.stamp(1 + n, True)
            if n == self.o("pubB", 4):
                e.wait(vm="sto"); self.publish(S_FLB)
            if n == self.o("pollB", 9): self.poll_issue(V_FB)
            if n == cB:
                self.poll_check(V_FB, 3); self.stamp(9)
            for t in range(4):
                for j in range(5):
                    need([("w", n, j), ("h", n, t)], n, [("w", n, 4), ("h", n, t | 1)])
                    mfma(n, t, j)
                    cnt += lrate
                    if cnt >= 20 and Q:
                        cnt -= 20; issue(n)
                    elif oep:
                        oep.pop(0)()
                        if oep: oep.pop(0)()
                    elif setup:
                        setup.pop(0)()
        self.stamp(10)
        RD = (0, 20, BA)
        def wr(t, j): e.op(f"ds_write_b128 {v(V_RW)}, {v(BA + 20 * t + 4 * j, 4)} offset:{t * 5120 + j * 1024}", tag=("red", t))
        def rd(sl, j): e.op(f"ds_read_b128 {v(RD[sl] + 4 * j, 4)}, {v(V_RR + sl)} offset:{j * 1024}", tag=("rd", sl, j))
        def add01(k):
            if k % 4 == 0: e.wait(lg=("rd", 1, k // 4))
            e.op(f"v_add_f32 {v(RD[0] + k)}, {v(RD[0] + k)}, {v(RD[1] + k)}")
        def bar01():
            e.wait(lg=("red", 1))
            e.op("s_barrier")
        F = BA + 60
        for t in range(4):
            q = [None] * 3 + [lambda j=j: wr(t - 1, j) for j in range(5)] if t else []
            if t == 3:
                q = [bar01] + [lambda j=j, sl=sl: rd(sl, j) for j in range(2) for sl in range(2)] + q[3:] + \
                    [lambda j=j, sl=sl: rd(sl, j) for j in range(2, 5) for sl in range(2)]
                adds = [lambda k=k: add01(k) for k in range(20)]
            i = 0
            for n in range(n0, 19):
                for j in range(5):
                    need([("w", n, j), ("h", n, t)], 99)
                    mfma(n, t, j)
                    if Q and i % 4 == 0: issue(99)
                    elif q:
                        f = q.pop(0)
                        if f: f()
                    elif t == 3:
                        for _ in range(2):
                            if adds: adds.pop(0)()
                    i += 1
            for f in q:
                if f: f()
        assert not Q
        self.stamp(11)
        e.wait(lg=("red", 2))
        e.op("s_barrier")
        for j in range(5): rd(2, j)
        for f in adds: f()
        e.wait(vm="g")
        W2 = v(V_GW, 2)
        of = ("", "sc1", "nt", "sc0 sc1")[self.o("outf", 0)]
        for i in range(10): e.op(f"v_pk_add_f32 {v(F + 2 * i, 2)}, {v(F + 2 * i, 2)}, {v(RD[0] + 2 * i, 2)}")
        for i in range(10): e.op(f"v_pk_mul_f32 {v(F + 2 * i, 2)}, {v(F + 2 * i, 2)}, {W2} op_sel_hi:[1,0]")
        for grp in ((0, 4), (4, 8), (8, 10)):
            e.wait(lg=("rd", 2, (grp[1] - 1) // 2))
            for i in range(*grp): e.op(f"v_pk_fma_f32 {v(F + 2 * i, 2)}, {v(RD[2] + 2 * i, 2)}, {W2}, {v(F + 2 * i, 2)} op_sel_hi:[1,0,1]")
            for i in range(*grp): e.op(f"v_cvt_pk_bf16_f32 {v(i)}, {v(F + 2 * i)}, {v(F + 2 * i + 1)}")
            if grp[0] < 8: e.op(f"buffer_store_dwordx4 {v(grp[0],4)}, {v(V_OUT)}, {s(S_OUT,4)}, 0 offen offset:{grp[0] * 16} {of}")
            else: e.op(f"buffer_store_dwordx2 {v(8,2)}, {v(V_OUT+1)}, {s(S_OUT,4)}, 0 offen offset:128 {of}")
        self.stamp(12)

    def finish(self):
        e = self.e
        if self.stamps:
            e.wait(vm="all")
            self.stamp(13)
            e.op(f"s_memtime {s(S_VM,2)}")
            self.flush_stamp()
            e.op(f"v_writelane_b32 {v(V_STAMP)}, {s(S_VM)}, {NSTAMP}")
            e.op(f"s_lshl2_add_u32 {s(S_T0)}, s2, {s(S_WAVE)}")
            e.op(f"s_lshl_b32 {s(S_T0)}, {s(S_T0)}, 7")
            e.op(f"s_add_u32 {s(S_T0)}, {s(S_T0)}, {WS_ST}")
            e.op(f"v_lshlrev_b32 {v(V_T0)}, 2, {v(V_LANE)}")
            e.op("s_mov_b32 exec_hi, 0")
            e.op(f"buffer_store_dword {v(V_STAMP)}, {v(V_T0)}, {s(S_WS,4)}, {s(S_T0)} offen")
        e.op("s_endpgm")

    def build(self):
        e = self.e
        self.prologue()
        self.stage1()
        self.attention()
        self.stage3()
        self.finish()
        self.att_lo()
        self.gate()
        self.spare()
        for f in self.stubs:
            e.vm, e.lg = [], []
            f()
        e.label("L_cold")
        for f in self.cold: f()
        e.label("L_end")
        e.op("s_endpgm")
        head = open("head.txt").read().split("\n")
        head = [l for l in head if l.startswith(";") and "@launch" not in l]
        txt = "\n".join(head) + f"\n; @launch grid=(256,1,1) block=(256,1,1) lds={LDS_BYTES}\n"
        txt += f""".amdgcn_target "amdgcn-amd-amdhsa--gfx950"
.text
.globl {NAME}_kernel
.p2align 8
.type {NAME}_kernel,@function
{NAME}_kernel:
"""
        txt += e.text().replace("\n    ", "\n ")
        txt += f""".section .rodata,"a"
.p2align 6
.amdhsa_kernel {NAME}_kernel
  .amdhsa_next_free_vgpr 512
  .amdhsa_next_free_sgpr 102
  .amdhsa_accum_offset 256
  .amdhsa_group_segment_fixed_size 0
  .amdhsa_kernarg_size 80
  .amdhsa_user_sgpr_count 2
  .amdhsa_user_sgpr_kernarg_segment_ptr 1
  .amdhsa_system_sgpr_workgroup_id_x 1
.end_amdhsa_kernel
.p2align 8
.type wave_table,@object
wave_table:
"""
        for wg in range(256):
            for w in range(4):
                txt += ".long " + ",".join(str(x) for x in table_entry(wg, w, self.o("map3", 0))) + "\n"
        return txt

if __name__ == "__main__":
    out = sys.argv[1] if len(sys.argv) > 1 else "cdna_kernels/" + NAME + ".s"
    opt = {}
    for x in sys.argv[2:]:
        if "=" in x:
            k, val = x.split("="); opt[k] = int(val)
    g = Gen(stamps="--stamps" in sys.argv, opt=opt)
    txt = g.build()
    open(out, "w").write(txt)
    print("instructions", g.e.count, "pad states", g.e.nops, "autowaits", g.e.autowaits, "bytes", len(txt), file=sys.stderr)
    if "--nops" in sys.argv:
        for n, t in g.e.log_nops: print(n, t, file=sys.stderr)
```

```python
import sys, math, struct
from asmlib import *

NAME = "gated_mix__sliding_block__dense_activation_relu__prompt"

WS_QK = 0
WS_VT = WS_QK + 80 * 64 * 1024
WS_H  = WS_VT + 16 * 64 * 2560
WS_O  = WS_H + 64 * 110592
WS_WT = WS_O + 64 * 40960
WS_G  = WS_WT + 8 * 74 * 5120
WS_FL = WS_G + 16384
FL_A  = WS_FL
FL_B  = FL_A + 256 * 128
FL_D  = FL_B + 256 * 128
FL_DD = FL_D + 304 * 128
WS_ST = FL_DD + 8 * 128
WS_X = WS_ST + 1024 * 128
WS_SIZE = WS_X + 1024 * 5120
OOB = 0x4000000
assert WS_SIZE < OOB

NW, NX = 5, 4
L_W = 0
L_X = NW * 16384
L_RT = L_X + 65536
L_K = L_X
L_V = L_K + 36 * 1024
LDS_BYTES = 163840

S_DM, S_HK = 0, 1
S_WAVE = 3
S_X, S_WA, S_WB, S_WS, S_OUT, S_DBG, S_MISC = 4, 8, 12, 16, 20, 24, 28
S_PWO, S_CG, S_XM0, S_PW2, S_PG = 32, 34, 35, 36, 38
S_T0, S_T1, S_T2, S_T3, S_T4, S_T5 = 40, 41, 42, 43, 44, 45
S_TAB = 46
TA = 48
(S_ST1, S_ST1B, S_ST2, S_ST2B, S_SCALE, S_FLA, S_FLB, S_RTS, S_RTF, S_RTSRC, S_BITS, S_TQ, S_QOFF) = range(TA, TA + 13)
S_KADJ, S_VOFF = TA + 13, TA + 16
S_OST, S_OST2 = TA + 19, TA + 20
S_HT = TA + 21
S_WT0, S_PFC, S_PFG, S_PFD, S_PFA, S_ASTEP, S_TB1 = range(TA + 25, TA + 32)
TB = 4
S_OT = TB
S_WT1, S_PFB, S_GW, S_OUTO = TB + 4, TB + 5, TB + 6, TB + 7
S_RED = TB + 8
S_PHI = 80
S_WM0, S_SPIN = 86, 87
S_STMP, S_NONCE, S_MASK, S_VM = 88, 90, 92, 94
S_C1, S_C2 = 96, 97
S_PILO, S_PIHI = 80, 81

V_LANE = 255
V_L16 = 254
V_NONCE = 252
V_T0, V_T1, V_T2, V_T3 = 248, 249, 250, 251
V_POLL = 246
V_FA, V_FD, V_FC, V_WV = 245, 244, 243, 242
V_KA, V_VA, V_HL, V_STAMP, V_ZERO, V_L16H = 241, 240, 239, 238, 237, 236
V_H, V_KT, V_Q, V_R = 232, 228, 231, 227
V_XD = 0
V_WD = 4
V_WD2 = 8
V_XR = 12
V_WR = 16
V_ST1 = 24
V_FR = 32
ACC = (128, 64)
A_X = 256
NXR = 7
V_LH = 226
RT_D, RT_LD, RT_RD, RT_ST = 64, 76, 79, 82
SB = (0, 16, 176)
OO = (32, 48)
VQ, QM, VF, KF, CD, CE = 128, 144, 160, 168, 192, 208
BA = 144
HSLOT = (64, 80, 96, 112, 128, 48)
WR = 256
NH, NWR = 6, 12
V_O, V_FB, V_GW, V_RR, V_RW, V_OUT = 228, 245, 244, 224, 243, 240
NSTAMP = 14

def f32(x): return "0x%08x" % struct.unpack("<I", struct.pack("<f", x))[0]
LOG2E = math.log2(math.e)
QSCALE = LOG2E / math.sqrt(20.0)
NEGBIG = 0xff800000
SPIN_MAX = 0x40000

KS0 = (0, 14, 28, 41)

def rt_unit(U, w):
    ks, kg, u = U >> 2, U & 3, w >> 1
    if ks < 54: row, wo = 32 * ks + 16 * (kg >> 1) + 4 * (kg & 1) + 8 * u, 0
    else:
        a_, p = divmod(ks - 54, 5); wo = 1
        row = 40 * (4 * a_ + p) + 20 * (kg >> 1) + 4 * (kg & 1) + 8 * u if p < 4 else 40 * (4 * a_ + kg) + 16 + 20 * u
    return WS_WT + (148 * w + ks) * 5120 + kg * 256, (FL_D + U * 128 if w == 0 else OOB), row * 1280, wo

def table_entry(wg, w, map3):
    xcd, i = wg & 7, wg >> 3
    A = [0] * 32; B = [0] * 16
    def a(reg, val): A[reg - TA] = val & 0xffffffff
    def b(reg, val): B[reg - TB] = val & 0xffffffff
    rts, rtf, rtsrc, wo = rt_unit(wg, w)
    a(S_RTS, rts); a(S_RTF, rtf); a(S_RTSRC, rtsrc)
    if i < 30:
        u = 30 * (xcd >> 1) + i
        rb, cg = 8 * (xcd & 1) + (u & 7), u >> 3
        tb, tb0, wc = 4 * rb + w, 4 * rb + (w & 2), w & 1
        if cg < 10:
            q0 = WS_QK + ((8 * cg + 4 * wc) * 64 + tb0) * 1024
            a(S_ST1, q0); a(S_ST1B, q0 + 1024)
        else:
            a(S_ST1, WS_VT + tb0 * 2560); a(S_ST1B, WS_VT + (tb0 + 1) * 2560)
        h0 = WS_H + tb0 * 110592 + cg * 8192 + wc * 4096
        a(S_ST2, h0 if 2 * cg + wc < 27 else OOB); a(S_ST2B, h0 + 110592 if 2 * cg + wc < 27 else OOB)
        a(S_SCALE, int(f32(QSCALE if cg < 5 else 1.0), 16))
        a(S_FLA, FL_A + (rb * 16 + cg) * 128 + 8 * w)
        a(S_TB1, tb)
    else:
        for m, reg in ((1, S_ST1), (2, S_ST1B), (3, S_SCALE)): a(reg, rt_unit(wg + 16 * m, w)[2])
        a(S_ST2, OOB); a(S_ST2B, OOB); a(S_FLA, OOB)
    P, rba = 2 * xcd + (i >> 4), i & 15
    F0, tq = (10 * P) >> 2, 4 * rba + w
    a(S_BITS, (P & 1) | (wo << 1)); a(S_TQ, tq)
    a(S_QOFF, WS_QK + (F0 * 64 + tq) * 1024)
    for k in range(3):
        t = max(4 * rba + 3 * w - 8 + k, 0)
        a(S_KADJ + k, WS_QK + ((40 + F0) * 64 + t - k) * 1024)
        a(S_VOFF + k, WS_VT + (P * 64 + t) * 2560)
    o0 = WS_O + tq * 40960 + (P >> 2) * 20 * 512
    a(S_OST, o0 + (P & 3) * 2048); a(S_OST2, o0 + (16 + (P & 3)) * 512)
    a(S_FLB, FL_B + (rba * 16 + P) * 128 + 8 * w)
    cq = F0 >> 3
    a(S_PFA, FL_A + cq * 128); a(S_ASTEP, 128 if ((F0 + 2) >> 3) > cq else 0)
    a(S_PFG, FL_A + (rba * 16 + 14) * 128 + 32 + 8 * w)
    a(S_PFD, FL_DD + xcd * 128)
    tb64, ng = (8 * (xcd >> 1) + (i & 7), 4 * (xcd & 1) + (i >> 3)) if not map3 else (4 * xcd + (i & 3), i >> 2)
    for t in range(4):
        T = (w + 1 + t) & 3
        tb = 2 * tb64 + (T >> 1)
        a(S_HT + t, WS_H + tb * 110592 + (T & 1) * 256 + KS0[w] * 2048)
        b(S_OT + t, WS_O + tb * 40960 + (T & 1) * 256 + w * 5 * 2048)
    a(S_WT0, WS_WT + (ng * 74 + KS0[w]) * 5120 + 2048)
    b(S_WT1, WS_WT + (ng * 74 + 54 + 5 * w) * 5120 + 2048)
    a(S_PFC, FL_A + (tb64 >> 1) * 2048 + 32 + 16 * (tb64 & 1) + (KS0[w] >> 2) * 128)
    b(S_PFB, FL_B + ((tb64 >> 1) * 16 + 4 * w) * 128 + 16 * (tb64 & 1))
    A[S_BITS - TA] |= (FL_A + ((tb64 >> 1) * 16 + 14) * 128 + 32 + 8 * (2 * (tb64 & 1) + (w >> 1))) << 2
    b(S_GW, WS_G + (2 * tb64 + (w >> 1)) * 256 + 128 + (w & 1) * 64)
    b(S_OUTO, (64 * tb64 + 16 * w) * 1280 + ng * 160)
    for t in range(3): b(S_RED + t, L_W + ((w - 1 - t) & 3) * 20480 + t * 5120)
    b(S_RED + 3, L_W + w * 20480)
    return A + B

class Gen:
    def __init__(self, stamps=False, opt=None):
        self.e = Emit()
        self.stamps = stamps
        self.uid = 0
        self.opt = opt or {}
        self.stubs = []
        self.cold = []
        self.pending_stamp = None
        self.open_poll = None; self.open_nonce = False
        self.nt = "nt " if self.o("nt", 1) else ""
        self.in_side = False
    def o(self, k, d): return self.opt.get(k, d)
    def L(self, p):
        self.uid += 1
        return f"L_{p}_{self.uid}"
    def stamp(self, idx, z=False):
        if not self.stamps: return
        if self.o("zoom", 0) and not z and 0 < idx < 13: return
        self.flush_stamp()
        self.e.op(f"{'s_memtime' if self.o('cyc', 0) else 's_memrealtime'} {s(S_STMP, 2)}")
        self.pending_stamp = idx
    def flush_stamp(self):
        if self.pending_stamp is None: return
        e = self.e
        if "SMEM" in e.lg: e.wait(lg="all")
        e.op(f"v_writelane_b32 {v(V_STAMP)}, {s(S_STMP)}, {self.pending_stamp}")
        self.pending_stamp = None

    def srd_tail(self, d, nbytes):
        self.e.op(f"s_mov_b32 {s(d+2)}, {nbytes}")
        self.e.op(f"s_mov_b32 {s(d+3)}, 0x20000")
    def nonce_issue(self):
        self.e.op(f"buffer_load_dwordx2 {v(V_NONCE,2)}, {v(V_ZERO)}, {s(S_DBG,4)}, 0 offen sc1", tag="nonce")
        self.open_nonce = True
    def nonce_check(self):
        e = self.e
        st, bk = self.L("nonce"), self.L("nonce_ok")
        assert self.open_nonce
        e.wait(vm="nonce")
        e.op(f"v_readfirstlane_b32 {s(S_NONCE)}, {v(V_NONCE)}")
        e.op(f"v_readfirstlane_b32 {s(S_NONCE+1)}, {v(V_NONCE+1)}")
        e.op(f"s_cmp_eq_u32 {s(S_NONCE)}, 0")
        e.op(f"s_cbranch_scc1 {st}")
        e.label(bk)
        def stub():
            e.label(st, reset=True)
            e.op(f"s_mov_b32 {s(S_SPIN)}, 0")
            e.label(st + "_l")
            e.op("s_sleep 4")
            e.op(f"buffer_load_dwordx2 {v(V_NONCE,2)}, {v(V_ZERO)}, {s(S_DBG,4)}, 0 offen sc1")
            e.op(f"s_add_u32 {s(S_SPIN)}, {s(S_SPIN)}, 1")
            e.wait(vm="all")
            e.op(f"v_readfirstlane_b32 {s(S_NONCE)}, {v(V_NONCE)}")
            e.op(f"v_readfirstlane_b32 {s(S_NONCE+1)}, {v(V_NONCE+1)}")
            e.op(f"s_cmp_gt_u32 {s(S_SPIN)}, {SPIN_MAX}")
            e.op(f"s_cbranch_scc1 {bk}")
            e.op(f"s_cmp_eq_u32 {s(S_NONCE)}, 0")
            e.op(f"s_cbranch_scc1 {st}_l")
            e.op(f"s_branch {bk}")
        self.stubs.append(stub)
    def publish(self, soff, imm=0):
        e = self.e
        e.op("s_mov_b64 exec, 1")
        e.op(f"buffer_store_dwordx2 {v(V_NONCE,2)}, {v(V_ZERO)}, {s(S_WS,4)}, {s(soff)} offen offset:{imm} sc1", tag="flag")
        e.op("s_mov_b64 exec, -1")
    def poll_issue(self, vaddr):
        self.e.op(f"buffer_load_dwordx2 {v(V_POLL,2)}, {v(vaddr)}, {s(S_WS,4)}, 0 offen sc1", tag="poll")
        self.open_poll = vaddr
    def poll_check(self, vaddr, sid=0):
        e = self.e
        st, bk = self.L("poll"), self.L("poll_ok")
        assert self.open_poll == vaddr; self.open_poll = None
        e.wait(vm="poll")
        e.op(f"v_cmp_ne_u64 vcc, {s(S_NONCE,2)}, {v(V_POLL,2)}")
        e.op(f"s_cbranch_vccnz {st}")
        e.label(bk)
        def stub():
            e.label(st, reset=True)
            e.op(f"s_mov_b32 {s(S_SPIN)}, 0")
            e.op(f"s_branch {st}_f")
            e.label(st + "_l")
            e.op("s_sleep 4")
            e.label(st + "_f")
            e.op(f"buffer_load_dwordx2 {v(V_POLL,2)}, {v(vaddr)}, {s(S_WS,4)}, 0 offen sc1")
            e.op(f"s_add_u32 {s(S_SPIN)}, {s(S_SPIN)}, 1")
            e.wait(vm="all")
            e.op(f"v_cmp_ne_u64 vcc, {s(S_NONCE,2)}, {v(V_POLL,2)}")
            e.op(f"s_cmp_gt_u32 {s(S_SPIN)}, {SPIN_MAX}")
            e.op(f"s_cbranch_scc1 {bk}")
            e.op(f"s_cbranch_vccnz {st}_l")
            if self.stamps: e.op(f"v_writelane_b32 {v(V_STAMP)}, {s(S_SPIN)}, {16 + sid}")
            e.op(f"s_branch {bk}")
        self.stubs.append(stub)

    def capture(self, *fns):
        e = self.e
        rec = []
        real = e.op
        e.op = lambda text, tag=None: rec.append(text)
        try:
            for f in fns: f()
        finally:
            e.op = real
        atoms = []
        for t in rec:
            if t.startswith(("s_cselect", "s_addc")): atoms[-1].append(t)
            else: atoms.append([t])
        return [lambda a=a_: [e.op(t) for t in a] and None for a_ in atoms]

    PI_A = [0, 2, 1, 4, 3, 6, 5, 8, 7, 9]
    PI_B = [1, -2, 2, -2, 2, -2, 2, -2, 2, -1]
    PI4S = [
        [[0,4,1,2,3,8,5,6,7,9], [1,0,5,2,3,4,9,6,7,8], [2,0,1,6,3,4,5,7,8,9], [3,0,1,2,7,4,5,6,8,9]],
        [[0,2,1,6,3,4,5,7,8,9], [1,3,0,2,7,4,5,6,8,9], [0,4,1,2,3,8,5,6,7,9], [1,5,0,2,3,4,9,6,7,8]],
        [[0,2,6,1,3,4,5,7,8,9], [1,3,7,0,2,4,5,6,8,9], [0,4,8,1,2,3,5,6,7,9], [1,5,9,0,2,3,4,6,7,8]],
        [[0,2,1,6,3,4,5,7,8,9], [1,3,0,7,2,4,5,6,8,9], [0,4,1,8,2,3,5,6,7,9], [1,5,0,9,2,3,4,6,7,8]],
        [[0,1,5,2,3,4,9,6,7,8], [0,2,1,6,3,4,5,7,8,9], [0,3,1,2,7,4,5,6,8,9], [0,4,1,2,3,8,5,6,7,9]],
        [[0,4,8,1,2,3,5,6,7,9], [1,5,9,0,2,3,4,6,7,8], [2,6,0,1,3,4,5,7,8,9], [3,7,0,1,2,4,5,6,8,9]],
    ]
    @property
    def PI4(self): return self.PI4S[self.o("pt", 0)]
    UNIT = (128, 64 * 3840, 64 * 3456)
    def pi_setup(self, sphi, late):
        e = self.e
        mode = self.o("pi", 8)
        if mode == 2:
            if not late:
                e.op(f"s_and_b32 {s(sphi)}, {s(sphi)}, 1")
                for m in range(2): e.op(f"s_mul_i32 {s(S_PHI + 2 * m)}, {s(sphi)}, {self.UNIT[m]}")
            else:
                e.op(f"s_mul_i32 {s(S_PHI + 4)}, {s(S_PHI)}, {self.UNIT[2] // 128}")
                for m in range(3): e.op(f"s_lshl_b32 {s(S_PHI + 2 * m + 1)}, {s(S_PHI + 2 * m)}, 1")
        elif mode >= 4 and not late:
            if mode == 4:
                tabs = self.PI4
                e.op(f"s_and_b32 {s(sphi)}, {s(sphi)}, 3")
            else:
                nph = {5: 1, 8: 2, 16: 4}[mode]
                base = {1: [list(range(10))], 2: [self.PI_A, [a_ + b_ for a_, b_ in zip(self.PI_A, self.PI_B)]], 4: self.PI4}[nph]
                rots = ((0, 2, 5, 7), (0, 0, 5, 5), (0, 1, 5, 6), (0, 3, 5, 8))[self.o("rot", 1)]
                tabs = [[(k + ro) % 10 for k in tb] for ro in rots for tb in base]
                e.op(f"s_and_b32 {s(sphi)}, {s(sphi)}, {nph - 1}")
                e.op(f"s_lshr_b32 {s(S_T3)}, s2, 1")
                e.op(f"s_lshl1_add_u32 {s(S_T3)}, s2, {s(S_T3)}")
                e.op(f"s_and_b32 {s(S_T3)}, {s(S_T3)}, 3")
                e.op(f"s_mul_i32 {s(S_T3)}, {s(S_T3)}, {nph}")
                e.op(f"s_add_u32 {s(sphi)}, {s(sphi)}, {s(S_T3)}")
            for i, tb in enumerate(tabs):
                assert sorted(tb) == list(range(10))
                lo = sum(k << (4 * n) for n, k in enumerate(tb[:8])); hi = tb[8] | (tb[9] << 4)
                if i == 0:
                    e.op(f"s_mov_b32 {s(S_PILO)}, {hex(lo)}")
                    e.op(f"s_mov_b32 {s(S_PIHI)}, {hex(hi)}")
                else:
                    e.op(f"s_cmp_eq_u32 {s(sphi)}, {i}")
                    e.op(f"s_cselect_b32 {s(S_PILO)}, {hex(lo)}, {s(S_PILO)}")
                    e.op(f"s_cselect_b32 {s(S_PIHI)}, {hex(hi)}, {s(S_PIHI)}")
    def pi_off(self, dst, st, m):
        e = self.e
        mode = self.o("pi", 8)
        if mode == 1: e.op(f"s_mov_b32 {s(dst)}, {st * self.UNIT[m]}")
        elif mode == 2:
            A, B = self.PI_A[st] * self.UNIT[m], self.PI_B[st]
            e.op(f"s_{'add' if B > 0 else 'sub'}_u32 {s(dst)}, {A}, {s(S_PHI + 2 * m + abs(B) - 1)}")
        else:
            e.op(f"s_bfe_u32 {s(dst)}, {s(S_PILO if st < 8 else S_PIHI)}, {hex((4 << 16) | (4 * (st % 8)))}")
            e.op(f"s_mul_i32 {s(dst)}, {s(dst)}, {self.UNIT[m]}")

    def prologue(self):
        e = self.e
        L = v(V_LANE); T0, T1, T2, T3 = v(V_T0), v(V_T1), v(V_T2), v(V_T3)
        e.op("s_cmp_ge_u32 s2, 256")
        e.op("s_cbranch_scc1 L_end")
        self.stamp(0)
        for d, off in ((S_X, 0), (S_WA, 8), (S_WB, 32), (S_WS, 72), (S_OUT, 56), (S_DBG, 64)):
            e.op(f"s_load_dwordx2 {s(d,2)}, s[0:1], {off}")
        e.op(f"s_getpc_b64 {s(S_TAB,2)}")
        e.label("L_pc")
        e.op("s_cmp_lt_u32 s2, 240")
        e.op("s_cbranch_scc1 L_nopf")
        e.op(f"s_bfe_u32 {s(S_T0)}, s2, 0x10003")
        e.op(f"v_lshl_add_u32 {T0}, v0, 1, {s(S_T0)}")
        e.op(f"v_lshlrev_b32 {T0}, 7, {T0}")
        e.op(f"v_min_u32 {T0}, L_cold-L_pc, {T0}")
        e.op(f"global_load_dword {v(224)}, {T0}, {s(S_TAB,2)}")
        e.vm = []
        e.label("L_nopf")
        if self.stamps: e.op(f"v_mov_b32 {v(V_STAMP)}, 0")
        e.op(f"v_lshrrev_b32 {T0}, 6, v0")
        e.op(f"v_and_b32 {L}, 63, v0")
        e.op(f"v_readfirstlane_b32 {s(S_WAVE)}, {T0}")
        e.op(f"s_bfe_u32 {s(S_T0)}, s2, 0x20001")
        e.op(f"s_mul_i32 {s(S_T0)}, {s(S_T0)}, 30")
        e.op(f"s_lshr_b32 {s(S_T1)}, s2, 3")
        e.op(f"s_add_u32 {s(S_T0)}, {s(S_T0)}, {s(S_T1)}")
        e.op(f"s_lshr_b32 {s(S_CG)}, {s(S_T0)}, 3")
        e.op(f"s_and_b32 {s(S_T0)}, {s(S_T0)}, 7")
        e.op(f"s_and_b32 {s(S_T1)}, s2, 1")
        e.op(f"s_lshl3_add_u32 {s(S_T0)}, {s(S_T1)}, {s(S_T0)}")
        e.op(f"s_add_u32 {s(S_T5)}, {s(S_T0)}, {s(S_CG)}")
        self.pi_setup(S_T5, False)
        e.op(f"s_lshl2_add_u32 {s(S_T0)}, {s(S_T0)}, {s(S_WAVE)}")
        e.op(f"s_mul_i32 {s(S_T0)}, {s(S_T0)}, {32 * 1280}")
        e.op(f"s_lshl_b32 {s(S_T4)}, {s(S_CG)}, 8")
        e.op(f"s_movk_i32 {s(S_T2)}, 1280")
        e.op(f"s_movk_i32 {s(S_T3)}, {2 * (8 * 1280 - 1024)}")
        e.op(f"v_lshrrev_b32 {T1}, 4, {L}")
        e.op(f"v_and_b32 {T2}, 7, {L}")
        e.op(f"v_xor_b32 {T2}, {T2}, {T1}")
        e.op(f"v_lshl_add_u32 {T2}, {T2}, 4, {s(S_T0)}")
        e.op(f"v_lshrrev_b32 {T0}, 3, {L}")
        e.op(f"v_mad_u32_u24 {v(V_XD)}, {T0}, {s(S_T2)}, {T2}")
        e.op(f"v_xad_u32 {v(V_XD+2)}, {v(V_XD)}, 64, {s(S_T3)}")
        e.op(f"v_add_u32 {v(V_XD+1)}, {8 * 1280 - 1024}, {v(V_XD)}")
        e.op(f"v_add_u32 {v(V_XD+3)}, {8 * 1280 - 1024}, {v(V_XD+2)}")
        e.op(f"v_lshlrev_b32 {T2}, 2, {T1}")
        e.op(f"v_and_b32 {T3}, 15, {L}")
        e.op(f"v_xor_b32 {T2}, {T2}, {T3}")
        e.op(f"v_lshl_add_u32 {T2}, {T2}, 4, {s(S_T4)}")
        e.op(f"v_lshl_add_u32 {T1}, {s(S_WAVE)}, 4, {T1}")
        e.op(f"s_movk_i32 {s(S_T2)}, 3840")
        e.op(f"v_mad_u32_u24 {v(V_WD)}, {T1}, {s(S_T2)}, {T2}")
        e.op(f"s_movk_i32 {s(S_T3)}, {2 * (4 * 3840 - 1024)}")
        e.op(f"v_xad_u32 {v(V_WD+2)}, {v(V_WD)}, 16, {s(S_T3)}")
        for n in (1, 3): e.op(f"v_add_u32 {v(V_WD+n)}, {4 * 3840 - 1024}, {v(V_WD+n-1)}")
        e.op(f"s_lshl_b32 {s(S_WM0)}, {s(S_WAVE)}, 12")
        e.op(f"s_lshl2_add_u32 {s(S_XM0)}, {s(S_WM0)}, {L_X}")
        self.srd_tail(S_X, 2048 * 1280)
        self.srd_tail(S_WA, 640 * 3840)
        e.op(f"s_lshl2_add_u32 {s(S_T0)}, s2, {s(S_WAVE)}")
        e.op(f"s_mul_i32 {s(S_T0)}, {s(S_T0)}, 192")
        e.label("L_pc2")
        e.op(f"s_add_u32 {s(S_TAB)}, {s(S_TAB)}, wave_table@rel32@lo+(L_pc2+4-L_pc)")
        e.op(f"s_addc_u32 {s(S_TAB+1)}, {s(S_TAB+1)}, wave_table@rel32@hi+(L_pc2+12-L_pc)")
        e.op(f"s_add_u32 {s(S_TAB)}, {s(S_TAB)}, {s(S_T0)}")
        e.op(f"s_addc_u32 {s(S_TAB+1)}, {s(S_TAB+1)}, 0")
        e.wait(lg="all")
        self.flush_stamp()
        e.op(f"s_load_dwordx2 {s(S_PWO,2)}, s[0:1], 16")
        e.op(f"s_load_dwordx4 {s(S_PW2,4)}, s[0:1], 40")
        e.op(f"s_load_dwordx16 {s(TA,16)}, {s(S_TAB,2)}, 0")
        e.op(f"s_load_dwordx16 {s(TA+16,16)}, {s(S_TAB,2)}, 64")
        e.op(f"s_load_dword {s(S_SPIN)}, {s(S_TAB,2)}, 128")
        e.op("s_cmp_ge_u32 s2, 240")
        e.op("s_cbranch_scc1 L_spare")
        self.spare_snap = e.snapshot()

    def common_setup(self):
        e = self.e
        L = v(V_LANE)
        self.srd_tail(S_WB, 640 * 3456)
        self.srd_tail(S_WS, WS_SIZE)
        self.srd_tail(S_OUT, 2048 * 1280)
        self.srd_tail(S_DBG, 256)
        e.op(f"s_mov_b32 {s(S_MISC+3)}, 0x20000")
        e.op(f"v_lshlrev_b32 {v(V_L16)}, 4, {L}")
        e.op(f"v_mov_b32 {v(V_ZERO)}, 0")
        e.op(f"v_lshrrev_b32 {v(V_L16H)}, 5, {L}")
        e.op(f"v_lshl_add_u32 {v(V_L16H)}, {v(V_L16H)}, 26, {v(V_L16)}")
        e.op(f"s_mov_b32 {s(S_VM)}, 0xfffff")
        e.op(f"s_mov_b32 {s(S_VM+1)}, 0xfffff")
        e.op(f"s_mov_b32 {s(S_C1)}, 0x10000")
        e.op(f"s_mov_b32 {s(S_C2)}, 0x20000")

    def dma(self, st, m):
        e = self.e
        dm = S_T5 if st < 2 else S_DM
        if m == 0: srd, vd, k, base, lo = S_X, V_XD, st, S_XM0, (st % NX) * 4096
        elif st < 10: srd, vd, k, base, lo = S_WA, V_WD, st, S_WM0, L_W + (st % NW) * 16384
        else: srd, vd, k, base, lo, m = S_WB, V_WD2, self.xst(st), S_WM0, L_W + (st % NW) * 16384, 2
        def f(n):
            if n == 0:
                e.op(f"s_add_u32 m0, {s(base)}, {lo}")
                self.pi_off(dm, k, m)
            e.op(f"buffer_load_dwordx4 {v(vd+n)}, {s(srd,4)}, {s(dm)} offen offset:{n*1024} {'nt ' if (self.o('ntm', 0) >> m) & 1 else ''}lds", tag=("d", st))
        return [lambda n=n: f(n) for n in range(4)]
    def dmas(self, st): return (self.dma(st, 0) if st < 10 else []) + self.dma(st, 1)

    P2X = (0, 1, 2, 7, 8, 9, 3, 4, 5, 6)
    def xst(self, st):
        return st if st < 10 else self.P2X[st - 10]

    def stage1_tables(self):
        e = self.e
        L = v(V_LANE); T0, T1, T2, T3 = v(V_T0), v(V_T1), v(V_T2), v(V_T3)
        P0, P1 = v(V_POLL), v(V_POLL + 1)
        e.op(f"s_movk_i32 {s(S_T2)}, 3456")
        e.op(f"v_cmp_le_u32 vcc, 3456, {T2}")
        e.op(f"v_mad_u32_u24 {v(V_WD2)}, {T1}, {s(S_T2)}, {T2}")
        e.op(f"v_mov_b32 {T0}, 0x1000000")
        e.op(f"v_cndmask_b32 {v(V_WD2)}, {v(V_WD2)}, {T0}, vcc")
        e.op(f"s_movk_i32 {s(S_T3)}, {2 * (4 * 3456 - 1024)}")
        e.op(f"v_xad_u32 {v(V_WD2+2)}, {v(V_WD2)}, 16, {s(S_T3)}")
        for n in (1, 3): e.op(f"v_add_u32 {v(V_WD2+n)}, {4 * 3456 - 1024}, {v(V_WD2+n-1)}")
        e.op(f"v_and_b32 {P0}, 8, {L}")
        e.op(f"v_and_b32 {T0}, 15, {L}")
        e.op(f"v_add_u32 {P0}, {P0}, {T0}")
        e.op(f"v_lshrrev_b32 {P1}, 4, {L}")
        e.op(f"s_and_b32 {s(S_T0)}, {s(S_WAVE)}, 2")
        e.op(f"s_lshl_b32 {s(S_T0)}, {s(S_T0)}, 14")
        e.op(f"s_add_u32 {s(S_T0)}, {s(S_T0)}, {L_X}")
        e.op(f"v_bfe_u32 {T1}, {L}, 1, 3")
        e.op(f"v_xor_b32 {T1}, {T1}, {P1}")
        e.op(f"v_lshl_add_u32 {T1}, {T1}, 4, {s(S_T0)}")
        e.op(f"v_lshl_add_u32 {v(V_XR)}, {P0}, 7, {T1}")
        e.op(f"v_xor_b32 {v(V_XR+1)}, 64, {v(V_XR)}")
        e.op(f"s_and_b32 {s(S_T1)}, {s(S_WAVE)}, 1")
        e.op(f"s_lshl_b32 {s(S_T0)}, {s(S_T1)}, 3")
        e.op(f"v_and_b32 {T0}, 14, {L}")
        e.op(f"v_and_or_b32 {T0}, {P1}, 1, {T0}")
        e.op(f"v_xor_b32 {T0}, {s(S_T0)}, {T0}")
        e.op(f"v_and_b32 {T1}, 1, {L}")
        e.op(f"v_lshl_add_u32 {T0}, {T0}, 1, {T1}")
        e.op(f"v_bfe_u32 {T1}, {L}, 2, 2")
        e.op(f"v_lshl_add_u32 {T1}, {P1}, 3, {T1}")
        e.op(f"v_lshlrev_b32 {T1}, 8, {T1}")
        e.op(f"v_lshl_add_u32 {v(V_WR)}, {T0}, 3, {T1}")
        for j in range(1, 4): e.op(f"v_xor_b32 {v(V_WR+j)}, {(j >> 1) * 64 + (j & 1) * 16}, {v(V_WR)}")
        for j in range(4): e.op(f"v_add_u32 {v(V_WR+4+j)}, 0x10000, {v(V_WR+j)}")
        e.op(f"v_lshlrev_b32 {T0}, 4, {P0}")
        e.op(f"v_lshl_add_u32 {v(V_LH)}, {P1}, 9, {T0}")
        lv, ld = self.L("st1v"), self.L("st1d")
        e.op(f"s_cmp_ge_u32 {s(S_CG)}, 10")
        e.op(f"s_cbranch_scc1 {lv}")
        e.op(f"v_lshrrev_b32 {T0}, 5, {L}")
        e.op(f"v_mul_u32_u24 {T0}, {65536 - 1024}, {T0}")
        e.op(f"v_add_u32 {v(V_ST1)}, {T0}, {v(V_LH)}")
        for j in range(1, 4): e.op(f"v_add_u32 {v(V_ST1+j)}, {(j >> 1) * 131072 + (j & 1) * 128}, {v(V_ST1)}")
        e.op(f"s_branch {ld}")
        e.label(lv)
        e.op(f"s_lshl1_add_u32 {s(S_T1)}, {s(S_CG)}, {s(S_T1)}")
        e.op(f"s_lshl_b32 {s(S_T1)}, {s(S_T1)}, 6")
        e.op(f"s_sub_u32 {s(S_T1)}, {s(S_T1)}, 1280")
        e.op(f"v_add_u32 {T0}, {s(S_T1)}, {P0}")
        e.op(f"v_mul_u32_u24 {T2}, 640, {P1}")
        e.op(f"s_mov_b32 {s(S_T2)}, {64 * 2560 - 640}")
        for j in range(4):
            e.op(f"v_mul_u32_u24 {T3}, 1639, {T0}")
            e.op(f"v_lshrrev_b32 {T3}, 16, {T3}")
            e.op(f"v_lshl_add_u32 {T1}, {T0}, 4, {T2}")
            e.op(f"v_mad_u32_u24 {v(V_ST1+j)}, {T3}, {s(S_T2)}, {T1}")
            if j < 3: e.op(f"v_add_u32 {T0}, {24 if j & 1 else 8}, {T0}")
        e.label(ld)

    def late_lane_tables(self):
        e = self.e
        L = v(V_LANE); T0, T1, T2, T3 = v(V_T0), v(V_T1), v(V_T2), v(V_T3)
        e.op(f"v_and_b32 {T0}, 31, {L}")
        e.op(f"v_lshrrev_b32 {T1}, 5, {L}")
        e.op(f"v_lshlrev_b32 {v(V_R)}, 2, {T0}")
        e.op(f"s_lshl_b32 {s(S_T1)}, {s(S_WAVE)}, 10")
        e.op(f"s_add_u32 {s(S_T2)}, {s(S_T1)}, {L_K}")
        e.op(f"v_add_u32 {v(V_KA)}, {s(S_T2)}, {v(V_L16)}")
        e.op(f"s_mul_i32 {s(S_T1)}, {s(S_T1)}, 3")
        e.op(f"s_add_u32 {s(S_T1)}, {s(S_T1)}, {L_V}")
        e.op(f"v_lshl_add_u32 {T2}, {T1}, 7, {v(V_L16)}")
        e.op(f"v_add_u32 {v(V_VA)}, {s(S_T1)}, {T2}")
        e.op(f"v_lshlrev_b32 {T2}, 2, {T1}")
        e.op(f"v_sub_u32 {T2}, {T0}, {T2}")
        e.op(f"v_cvt_f32_i32 {T2}, {T2}")
        e.op(f"v_mov_b32 {T3}, {f32(2.0 ** 100)}")
        for rr in range(16):
            key = 8 * (rr >> 2) + (rr & 3)
            e.op(f"v_fmaak_f32 {v(CE + rr)}, {T2}, {T3}, {f32((0.5 - key) * 2.0 ** 100)}")
            e.op(f"v_min_f32 {v(CD + rr)}, 0, {v(CE + rr)}")
            e.op(f"v_min_f32 {v(CE + rr)}, -{v(CE + rr)}, 0")
        e.op(f"v_lshrrev_b32 {T1}, 4, {L}")
        e.op(f"v_lshl_add_u32 {v(V_HL)}, {T1}, 8, {v(V_L16)}")
    def late_table_use(self):
        e = self.e
        L = v(V_LANE); T0, T1, T2, T3 = v(V_T0), v(V_T1), v(V_T2), v(V_T3)
        for t in range(4): e.op(f"v_add_u32 {v(V_H + t)}, {s(S_HT + t)}, {v(V_HL)}")
        for k in range(3): e.op(f"v_add_u32 {v(V_KT + k)}, {s(S_KADJ + k)}, {v(V_L16)}")
        e.op(f"v_add_u32 {v(V_Q)}, {s(S_QOFF)}, {v(V_L16)}")
        e.op(f"v_lshl_add_u32 {v(V_R)}, {s(S_TQ)}, 8, {v(V_R)}")
        e.op(f"v_add_u32 {v(V_R)}, {WS_G}, {v(V_R)}")
        e.op(f"v_mov_b32 {v(V_FD)}, {s(S_PFD)}")
        e.op(f"v_lshrrev_b32 {T0}, 1, {L}")
        e.op(f"v_min_u32 {T0}, 3, {T0}")
        e.op(f"v_and_b32 {T1}, 1, {L}")
        e.op(f"v_lshl_add_u32 {T1}, {T1}, 3, {s(S_PFC)}")
        e.op(f"v_lshl_add_u32 {v(V_FC)}, {T0}, 7, {T1}")
        e.op(f"v_writelane_b32 {v(V_FC)}, {s(S_PFG)}, 63")
        e.op(f"s_lshr_b32 {s(S_T0)}, {s(S_BITS)}, 2")
        e.op(f"v_writelane_b32 {v(V_FC)}, {s(S_T0)}, 62")
        e.op(f"s_lshr_b32 {s(S_T0)}, {s(S_TQ)}, 2")
        e.op(f"s_sub_u32 {s(S_T0)}, {s(S_T0)}, 2")
        e.op(f"v_lshrrev_b32 {T0}, 4, {L}")
        e.op(f"v_min_u32 {T0}, 2, {T0}")
        e.op(f"v_add_u32 {T0}, {s(S_T0)}, {T0}")
        e.op(f"v_max_i32 {T0}, 0, {T0}")
        e.op(f"v_and_b32 {T1}, 3, {L}")
        e.op(f"v_lshl_add_u32 {T1}, {T1}, 3, {s(S_PFA)}")
        e.op(f"v_lshl_add_u32 {T0}, {T0}, 11, {T1}")
        e.op(f"v_bfe_u32 {T1}, {L}, 2, 1")
        e.op(f"v_mad_u32_u24 {T0}, {T1}, {s(S_ASTEP)}, {T0}")
        e.op(f"v_cmp_gt_u32 vcc, 48, {L}")
        e.op(f"v_bfe_u32 {T1}, {L}, 3, 1")
        e.op(f"v_add_u32 {T1}, 1, {T1}")
        e.op(f"v_mul_u32_u24 {T1}, 640, {T1}")
        e.op(f"v_cndmask_b32 {T1}, 0, {T1}, vcc")
        e.op(f"v_add_u32 {v(V_FA)}, {T0}, {T1}")

    def rt_tables(self, base):
        e = self.e
        L = v(V_LANE); T0, T1, T2, T3 = v(V_T0), v(V_T1), v(V_T2), v(V_T3)
        P0, P1 = v(V_POLL), v(V_POLL + 1)
        e.op(f"s_and_b32 {s(S_T0)}, {s(S_WAVE)}, 1")
        e.op(f"s_mul_i32 {s(S_T0)}, {s(S_T0)}, 160")
        e.op(f"v_add_u32 {T0}, {s(S_T0)}, {L}")
        for i in range(3):
            e.op(f"v_mul_u32_u24 {T1}, 820, {T0}")
            e.op(f"v_lshrrev_b32 {T1}, 16, {T1}")
            e.op(f"v_lshlrev_b32 {T1}, 2, {T1}")
            e.op(f"v_xor_b32 {T1}, {T0}, {T1}")
            e.op(f"v_lshlrev_b32 {v(RT_LD + i)}, 4, {T1}")
            if i < 2: e.op(f"v_add_u32 {T0}, 64, {T0}")
        e.op(f"v_lshrrev_b32 {T0}, 4, {L}")
        e.op(f"v_and_b32 {T1}, 3, {L}")
        e.op(f"v_bfe_u32 {P1}, {L}, 2, 2")
        e.op(f"v_lshlrev_b32 {T3}, 3, {P1}")
        e.op(f"v_mul_u32_u24 {P1}, 1280, {P1}")
        e.op(f"v_add_u32 {P1}, {base}, {P1}")
        e.op(f"s_mul_i32 {s(S_T0)}, {s(S_WAVE)}, 40")
        e.op(f"v_and_b32 {P0}, 1, {T0}")
        e.op(f"v_lshl_add_u32 {T2}, {T1}, 1, {P0}")
        e.op(f"v_lshrrev_b32 {v(RT_D)}, 5, {L}")
        e.op(f"v_lshl_add_u32 {T2}, {v(RT_D)}, 3, {T2}")
        e.op(f"v_add_u32 {T2}, {s(S_T0)}, {T2}")
        for i in range(2):
            if i: e.op(f"v_add_u32 {T2}, 20, {T2}")
            e.op(f"v_xor_b32 {v(RT_D)}, {T2}, {T3}")
            e.op(f"v_lshl_add_u32 {v(RT_RD + i)}, {v(RT_D)}, 3, {P1}")
        e.op(f"v_mad_u32_u24 {T2}, {P0}, 20, {T1}")
        e.op(f"v_add3_u32 {T2}, {T2}, {s(S_T0)}, 16")
        e.op(f"v_xor_b32 {T2}, {T2}, {T3}")
        e.op(f"v_lshl_add_u32 {v(RT_RD + 2)}, {T2}, 3, {P1}")
        e.op(f"v_mul_u32_u24 {T0}, {1024 - 256}, {T0}")
        e.op(f"v_add_u32 {v(RT_ST)}, {T0}, {v(V_L16)}")
        e.op(f"v_add_u32 {v(RT_ST + 1)}, {74 * 5120}, {v(RT_ST)}")
        e.op(f"s_mov_b32 {s(S_T0)}, {74 * 5120 - 256}")
        e.op(f"v_mad_u32_u24 {T0}, {P0}, {s(S_T0)}, {v(V_L16H)}")
        e.op(f"v_add_u32 {v(RT_ST + 2)}, 4096, {T0}")
    def rt_srd(self):
        e = self.e
        e.op(f"s_bitcmp1_b32 {s(S_BITS)}, 1")
        e.op(f"s_cselect_b64 {s(S_MISC,2)}, {s(S_PWO,2)}, {s(S_PW2,2)}")
        e.op(f"s_mov_b32 {s(S_MISC+2)}, {640 * 1280}")
        e.op(f"s_cselect_b32 {s(S_MISC+2)}, {s(S_MISC+2)}, {1728 * 1280}")
    def rt_loads(self, base, src, sw):
        e = self.e
        for i in range(3):
            e.op(f"s_add_u32 m0, {s(sw)}, {base + i * 1024}")
            if i == 2: e.op("s_mov_b32 exec_hi, 0")
            e.op(f"buffer_load_dwordx4 {v(RT_LD + i)}, {s(S_MISC,4)}, {s(src)} offen {self.nt}lds", tag="rl")
            if i == 2: e.op("s_mov_b32 exec_hi, -1")
    def rt_reads(self, lo_=0, D=RT_D):
        return [lambda i=i, u=u: self.e.op(f"ds_read_b64_tr_b16 {v(D + 4 * i + 2 * u, 2)}, {v(RT_RD + i)} offset:{lo_ + u * 5120}", tag=("rt", i))
                for i in range(3) for u in range(2)]
    def rt_stores(self, D=RT_D, so=S_RTS):
        e = self.e
        def st(i):
            e.wait(lg=("rt", i))
            e.op(f"buffer_store_dwordx4 {v(D + 4 * i, 4)}, {v(RT_ST + i)}, {s(S_WS,4)}, {s(so)} offen sc1", tag="rs")
        return [lambda i=i: st(i) for i in range(3)]

    EARLY_W = (0, 1, 2, 3)
    def w_loads(self, n):
        e = self.e
        def f(j):
            dst = r(WR + 20 * (n % NWR) + 4 * j, 4)
            if n == 13:
                if j in (0, 4):
                    e.op(f"s_add_u32 {s(S_T2)}, {s(S_WT0)}, {n * 5120 - 2048 + (4096 if j else 0)}")
                    e.op(f"s_cmp_lt_u32 {s(S_WAVE)}, 2")
                    e.op(f"s_cselect_b32 {s(S_T2)}, {s(S_T2)}, {OOB}")
                e.op(f"buffer_load_dwordx4 {dst}, {v(V_L16)}, {s(S_WS,4)}, {s(S_T2)} offen offset:{(j & 3) * 1024} sc1", tag=("w", n, j))
                return
            if j == 0:
                base, off = (S_WT0, n * 5120) if n < 14 else (S_WT1, (n - 14) * 5120)
                if self.wv is None or self.wv[0] != base:
                    e.op(f"v_add_u32 {v(V_WV)}, {s(base)}, {v(V_L16)}")
                    self.wv = (base, 0)
                if off != self.wv[1]: e.op(f"v_add_u32 {v(V_WV)}, {off - self.wv[1]}, {v(V_WV)}")
                self.wv = (base, off)
            e.op(f"global_load_dwordx4 {dst}, {v(V_WV)}, {s(S_WS,2)} offset:{j * 1024 - 2048} sc1", tag=("w", n, j))
        return [lambda j=j: f(j) for j in range(5)]
    @property
    def TM(self): return self.o("tm", 3)
    def hreg(self, n, t):
        n0 = 19 - self.TM
        if n < n0: return HSLOT[n % NH] + 4 * t
        i = self.TM * t + (n - n0)
        return HSLOT[(n0 + i // 4) % NH] + 4 * (i % 4)
    def h_load(self, n, t):
        e = self.e
        dst = v(self.hreg(n, t), 4)
        if n >= 14:
            q = n - 14
            so = ("0", s(S_C1), s(S_C2))[q >> 1]
            e.op(f"buffer_load_dwordx4 {dst}, {v(V_O + t)}, {s(S_WS,4)}, {so} offen offset:{(q & 1) * 2048} sc1", tag=("h", n, t))
            return
        if t == 0 and n > 1:
            if n % 2 == 0: e.op(f"s_movk_i32 {s(S_HK)}, {n * 2048}")
            if n == 13:
                e.op(f"s_cmp_lt_u32 {s(S_WAVE)}, 2")
                e.op(f"s_cselect_b32 {s(S_HK)}, {s(S_HK)}, {OOB}")
            assert n % 2 == 0 or self.hk == n - 1
            self.hk = n
        assert n < 2 or self.hk == n
        e.op(f"buffer_load_dwordx4 {dst}, {v(V_H + t)}, {s(S_WS,4)}, {s(S_HK) if n > 1 else 0} offen offset:{(n & 1) * 2048} sc1", tag=("h", n, t))
    def kvq_loads(self):
        e = self.e
        so = ("0", s(S_C1), s(S_C2))
        def q(f): e.op(f"buffer_load_dwordx4 {v(VQ + 4 * f, 4)}, {v(V_Q)}, {s(S_WS,4)}, {so[f]} offen sc1", tag="q")
        def k(f, i):
            if f == 0 and i == 0: e.op(f"s_mul_i32 {s(S_T5)}, {s(S_WAVE)}, 3072")
            if i == 0: e.op(f"s_add_u32 m0, {s(S_T5)}, {L_K + f * 12288}")
            e.op(f"buffer_load_dwordx4 {v(V_KT + i)}, {s(S_WS,4)}, {so[f]} offen offset:{i * 1024} sc1 lds", tag="kd")
        def vv(i, n):
            if i == 0 and n == 0: e.op(f"s_mul_i32 {s(S_T5)}, {s(S_WAVE)}, 9216")
            if n == 0: e.op(f"s_add_u32 m0, {s(S_T5)}, {L_V + i * 3072}")
            e.op(f"buffer_load_dwordx4 {v(V_L16H if n == 2 else V_L16)}, {s(S_WS,4)}, {s(S_VOFF + i)} offen offset:{n * 1024} sc1 lds", tag="vd")
        return [lambda f=f: q(f) for f in range(3)] + [lambda f=f, i=i: k(f, i) for f in range(3) for i in range(3)] + \
               [lambda i=i, n=n: vv(i, n) for i in range(3) for n in range(3)]

    def frag(self, st, f):
        return ((f >> 1) & 1, (f >> 2) * 2 + (f & 1)) if st == 19 else (f >> 2, f & 3)
    def w_read(self, st, f, u):
        ks, j = self.frag(st, f)
        off = L_W + (st % NW) * 16384 + ks * 8192 + u * 1024
        ad = V_WR + j
        if off >= 65536: off -= 65536; ad += 4
        self.e.op(f"ds_read_b64_tr_b16 {v(V_FR + 4 * f + 2 * u, 2)}, {v(ad)} offset:{off}", tag=("w", st, f))
    def xreg(self, xs, ks, tt): return A_X + 32 * min(xs, NXR) + 16 * ks + 4 * tt
    def x_read(self, st, ks, tt):
        xs = self.xst(st)
        self.e.op(f"ds_read_b128 {r(self.xreg(xs, ks, tt), 4)}, {v(V_XR + ks)} offset:{(tt >> 1) * 16384 + (xs % NX) * 4096 + (tt & 1) * 1024}", tag=("x", st, ks, tt))
    def accreg(self, ps, tt, j, swap):
        b, p, G, q = tt >> 1, tt & 1, j >> 1, j & 1
        return ACC[ps] + 32 * G + (16 * q + 8 * b + 4 * p if swap else 16 * p + 8 * b + 4 * q)

    LEAD = 10
    def stage1_fill(self):
        e = self.e
        fill = {m: [] for m in range(-1, 640)}
        used = {m: 0 for m in range(-1, 640)}
        def at(m, f, n=1):
            fill[max(m, -1)].append(f); used[max(m, -1)] += n
        WG = (1, 5, 8, 11, 14, 18, 21, 24)
        XG = (2, 2, 3, 3, 12, 15, 16, 19)
        for st in range(20):
            b = 32 * st - self.LEAD
            def bar(st=st):
                assert ("d", st) in e.all_tags
                e.wait(vm=("d", st), lg="all")
                e.op("s_barrier")
            at(b, bar, 2)
            for f in range(8):
                for u in range(2): at(b + WG[f], lambda st=st, f=f, u=u: self.w_read(st, f, u))
                if st < 10 or self.xst(st) >= NXR:
                    at(b + XG[f], lambda st=st, f=f: self.x_read(st, f >> 2, f & 3))
            for g in (9, 13, 17, 25): used[max(b + g, -1)] += 1
        return fill, used

    def vm_schedule(self, fill, used, queues, m0, m1, thr):
        lag = 0
        for m in range(m0, m1):
            lag = max(0, lag - 16)
            heads = [q for q in queues if q and q[0][0] <= m]
            if not heads: continue
            q = min(heads, key=lambda q: q[0][1])
            if used[m] and q[0][1] + 3 > m: continue
            if q[0][1] <= m or lag <= thr:
                rel, dl, cost, f = q.pop(0)
                fill[m].append(f); used[m] += 2
                lag = min(lag, 3 * 72) + cost
        assert not any(queues), [len(q) for q in queues]
    def va_place(self, fill, used, ops, m0, m1):
        cap = 2
        while sum(max(0, cap - used[m]) for m in range(m0, m1)) < len(ops): cap += 1
        over = len(ops) - sum(max(0, cap - 1 - used[m]) for m in range(m0, m1)) if cap > 2 else len(ops)
        ops = list(ops)
        for m in range(m0, m1):
            n = max(0, cap - 1 - used[m]) if cap > 2 else 0
            ex = max(0, cap - used[m]) - n
            ex = min(ex, over); over -= ex
            for _ in range(n + ex):
                if ops: fill[m].append(ops.pop(0)); used[m] += 1
        assert not ops

    def p1_epilogue_ops(self):
        e = self.e
        groups = []
        for g in range(8):
            A = ACC[0] + 8 * g
            ops = [lambda A=A, q=q: e.op(f"v_mul_f32 {v(A+q)}, {s(S_SCALE)}, {v(A+q)}") for q in range(8)]
            ops += [lambda A=A, q=q: e.op(f"v_cvt_pk_bf16_f32 {v(A+q)}, {v(A+2*q)}, {v(A+2*q+1)}") for q in range(4)]
            ops.append(lambda A=A, g=g: e.op(f"buffer_store_dwordx4 {v(A,4)}, {v(V_ST1 + (g >> 1))}, {s(S_WS,4)}, {s(S_ST1B if g & 1 else S_ST1)} offen sc1", tag="st1"))
            groups.append(ops)
        return groups
    def p2_epilogue_ops(self):
        e = self.e
        groups = []
        for g in range(8):
            A = ACC[1] + 8 * g
            ops = [lambda A=A, q=q: e.op(f"v_cvt_pk_bf16_f32 {v(A+q)}, {v(A+2*q)}, {v(A+2*q+1)}") for q in range(4)]
            ops += [lambda A=A, q=q: e.op(f"v_pk_max_i16 {v(A+q)}, {v(A+q)}, 0") for q in range(4)]
            ops.append(lambda A=A, g=g: e.op(f"buffer_store_dwordx4 {v(A,4)}, {v(V_LH)}, {s(S_WS,4)}, {s(S_ST2B if g & 1 else S_ST2)} offen offset:{(g >> 2) * 2048 + ((g >> 1) & 1) * 128} sc1", tag="st2"))
            groups.append(ops)
        return groups

    def stage1_stream(self, fill, m0, m1, swap):
        e = self.e
        for m in range(m0, m1):
            st, i = divmod(m, 32)
            f, tt = i >> 2, i & 3
            ks, j = self.frag(st, f)
            if ("w", st, f) in e.lg or ("x", st, ks, tt) in e.lg:
                e.wait(lg=[("w", st, f), ("x", st, ks, 3)] + ([("w", st, f + 1)] if f in (2, 4) else []))
            acc = v(self.accreg(st // 10, tt, j, swap), 4)
            wf = v(V_FR + 4 * f, 4)
            xf = r(self.xreg(self.xst(st), ks, tt), 4)
            c = "0" if (st % 10 == 0 and ks == 0) else acc
            if swap: e.op(f"v_mfma_f32_16x16x32_bf16 {acc}, {xf}, {wf}, {c}")
            else: e.op(f"v_mfma_f32_16x16x32_bf16 {acc}, {wf}, {xf}, {c}")
            for fn in fill[m]: fn()

    def ones_init(self):
        e = self.e
        def first():
            e.op(f"s_mov_b32 {s(S_MASK)}, 0x11000000")
            e.op(f"s_mov_b32 {s(S_MASK+1)}, 0x11000000")
            e.op(f"v_mov_b32 {v(VF)}, 0x3f803f80")
        return [first, lambda: e.op(f"v_cndmask_b32 {v(VF)}, 0, {v(VF)}, {s(S_MASK,2)}")] + \
               [lambda i=i: e.op(f"v_mov_b32 {v(VF + i)}, {v(VF)}") for i in range(1, 8)]

    def stage1(self):
        e = self.e
        lead = self.LEAD
        nc, c0, ne = self.o("tnc", 0), self.o("tch0", 2), self.o("tne", 1)
        S_TX, S_TW = 98, 99
        def touch_setup():
            e.op(f"s_lshl2_add_u32 {s(S_T0)}, s2, {s(S_WAVE)}")
            nx, nw_ = -(-2048 // 960), 2 * nc
            e.op(f"v_min_u32 {v(30)}, {nx * nc - 1}, {v(V_LANE)}")
            e.op(f"v_mul_u32_u24 {v(31)}, {-(-65536 // nc)}, {v(30)}")
            e.op(f"v_lshrrev_b32 {v(31)}, 16, {v(31)}")
            e.op(f"v_mul_u32_u24 {v(31)}, {10 - nc}, {v(31)}")
            e.op(f"v_add_lshl_u32 {v(30)}, {v(30)}, {v(31)}, 7")
            e.op(f"s_mul_i32 {s(S_TX)}, {s(S_T0)}, {nx * 1280}")
            e.op(f"v_min_u32 {v(31)}, {nw_ - 1}, {v(V_LANE)}")
            e.op(f"v_lshlrev_b32 {v(31)}, 7, {v(31)}")
            e.op(f"s_mul_i32 {s(S_TW)}, {s(S_T0)}, {nw_ * 128}")
            e.op(f"s_add_u32 {s(S_TW)}, {s(S_TW)}, {c0 * 64 * 3840}")
        def touch(k):
            if k == 0: touch_setup()
            e.op(f"buffer_load_dword {v(28)}, {v(30)}, {s(S_X,4)}, {s(S_TX)} offen offset:{(c0 + k * nc) * 128}")
            if k: e.op(f"s_add_u32 {s(S_TW)}, {s(S_TW)}, {nc * 64 * 3840}")
            e.op(f"buffer_load_dword {v(29)}, {v(31)}, {s(S_WA,4)}, {s(S_TW)} offen")
        tpos = [self.o("tpos", 0) + k * self.o("tstep", 1) for k in range(ne)] if nc else []
        if -1 in tpos: touch(tpos.index(-1))
        for f in self.dmas(0): f()
        if 0 in tpos: touch(tpos.index(0))
        self.pi_setup(None, True)
        self.common_setup()
        self.stage1_tables()
        d1 = self.dmas(1)
        for f in d1[:4]: f()
        self.rt_tables(L_RT)
        lsu = self.o("lsu", 0)
        if not lsu: self.late_lane_tables()
        for f in d1[4:]: f()
        if 1 in tpos: touch(tpos.index(1))
        e.wait(lg="all")
        self.flush_stamp()
        rtp = self.o("rtpos", 1)
        def rt_go():
            e.op(f"s_mul_i32 {s(S_T5)}, {s(S_WAVE)}, 2560")
            self.rt_loads(L_RT, S_RTSRC, S_T5)
        self.rt_srd()
        if rtp == 1: rt_go()
        def agg_addr():
            e.op(f"s_mov_b32 {s(S_T0)}, {OOB}")
            e.op(f"s_cmp_eq_u32 {s(S_CG)}, 14")
            e.op(f"s_cselect_b32 {s(S_T0)}, {FL_D}, {s(S_T0)}")
            e.op(f"v_lshl_add_u32 {v(225)}, {s(S_WAVE)}, 6, {v(V_LANE)}")
            e.op(f"v_min_u32 {v(225)}, 239, {v(225)}")
            e.op(f"v_lshl_add_u32 {v(225)}, {v(225)}, 7, {s(S_T0)}")
        if not lsu:
            self.late_table_use(); agg_addr()
        fill, used = self.stage1_fill()
        vfill = {m: [] for m in range(-1, 640)}
        G2 = lambda k, d: 2 * self.o(k, d)
        dq = []
        for st in range(2, 20):
            d = self.dmas(st)
            rel = 32 * (st - (2 if st < 10 else 4)) - lead + 1
            g0 = max(32 * (st - 2) - lead + 1, 0); g1 = 32 * (st - 1) - lead - 2
            dq += [(rel, g0 + i * (g1 - g0) // len(d), 72, f) for i, f in enumerate(d)]
            if st == rtp: dq.append((rel, g1 - 1, 180, rt_go))
            if st in tpos: dq.append((rel, g1 - 1, 40, lambda k=tpos.index(st): touch(k)))
        pA, cA = G2("pollA", 260), G2("chkA", 279)
        assert cA > 32 * 16 - lead
        kv = self.kvq_loads()
        dq += [(cA + 1, cA + 1 + i * (634 - cA) // len(kv), 72, f) for i, f in enumerate(kv)]
        rs0 = G2("rs0", 16 * rtp + 30)
        rr0 = 32 * (rtp + 2) - lead - 6 if rs0 >= 32 * (rtp + 2) - lead else 32 * (rtp + 1) - lead + 4
        assert rs0 > rr0 + 4
        for i, f in enumerate(self.rt_reads()):
            fill[rr0 + i // 2].append(f); used[rr0 + i // 2] += 1
        sq = [(rs0 + 12 * i, rs0 + 12 * i, 128, f) for i, f in enumerate(self.rt_stores())]
        sq.append((rs0 + 28, rs0 + 28, 20, self.nonce_issue))
        pd = (rs0 + 28 + 48 + lead + 31) // 32 * 32 - lead
        fill[pd].insert(0, self.nonce_check)
        sq.append((pd + 1, pd + 1, 20, lambda: self.publish(S_RTF)))
        sq.append((G2("pollG", 140), G2("pollG", 140), 20, lambda: self.poll_issue(225)))
        sp, e0 = G2("epi", 5), 321
        epi1 = self.p1_epilogue_ops()
        for g, ops in enumerate(epi1): sq.append((e0 + sp * (g + 1), e0 + sp * (g + 1), self.o("stc", 160), ops[-1]))
        def pub_a():
            e.wait(vm="st1")
            self.publish(S_FLA)
        pD, cD = G2("pollD", 222), G2("chkD", 240)
        assert cD >= 32 * 13
        sq += sorted([(pD, pD, 20, lambda: self.poll_issue(V_FD)), (G2("pubA", 224), G2("pubA", 224), 20, pub_a)], key=lambda x: x[0])
        vfill[cD].append(lambda: self.poll_check(V_FD, 1)); used[cD] += 3
        sq.append((pA, pA, 30, lambda: self.poll_issue(V_FA)))
        vfill[cA].append(lambda: self.poll_check(V_FA, 0)); used[cA] += 3
        vfill[cA].append(lambda: self.stamp(3))
        ew = sum([self.w_loads(n) for n in self.EARLY_W], [])
        wq = [(cD + 1, cA - 4 * (len(ew) - i), 72, f) for i, f in enumerate(ew)]
        self.vm_schedule(fill, used, [dq, sq, wq], 0, 640, self.o("thr", 40))
        if lsu: self.va_place(vfill, used, self.capture(self.late_lane_tables, self.late_table_use, agg_addr), self.o("lsu0", 0) * 32, 32 * lsu)
        for g, ops in enumerate(epi1): self.va_place(vfill, used, ops[:-1], e0 + sp * g, e0 + sp * (g + 1))
        self.va_place(vfill, used, self.ones_init(), e0 + sp * 8 + 8, e0 + sp * 8 + 40)
        epi2 = self.p2_epilogue_ops()
        self.p2_stores_left = [g[-1] for g in epi2]
        va = sum([g[:-1] for g in epi2], [])
        nh = self.o("p2h", 24)
        self.va_place(vfill, used, va[:nh], 626, 640)
        self.p2_valu_left = va[nh:]
        z = self.o("zoom", 0)
        if z in (1, 2):
            for k in range(11):
                m = min(320 * (z - 1) + 32 * k - 1, 639 if z == 2 else 318)
                if z == 2 and k == 0: m = 320
                vfill[m].append(lambda k=k: self.stamp(1 + k, True))
            vfill[319].append(self.flush_stamp)
        for m in fill: fill[m] += vfill[m]
        for fn in fill[-1]: fn()
        if z == 1: self.flush_stamp()
        self.stamp(1)
        e.op(f"s_cmp_ge_u32 {s(S_CG)}, 10")
        e.op("s_cbranch_scc1 L_p1v")
        snap = e.snapshot()
        self.stage1_stream(fill, 0, 320, False)
        e.op("s_branch L_p2")
        after = e.snapshot()
        e.restore(snap)
        e.label("L_p1v")
        self.stage1_stream(fill, 0, 320, True)
        e.op(f"s_cmp_eq_u32 {s(S_CG)}, 14")
        e.op("s_cbranch_scc1 L_gate")
        self.gate_snap = e.snapshot()
        assert after[0] == e.vm and after[1] == e.lg
        e.label("L_p2")
        self.stamp(2)
        self.wv = None
        self.stage1_stream(fill, 320, 640, False)
        self.flush_stamp()

    def side_tail(self, early=True):
        e = self.e
        if early:
            self.poll_issue(V_FD)
            for f in self.ones_init(): f()
            self.poll_check(V_FD, 1)
            self.wv = None
            ew = sum([self.w_loads(n) for n in self.EARLY_W], [])
            for f in ew[:12]: f()
            self.poll_issue(V_FA)
            for f in ew[12:]: f()
        self.poll_check(V_FA, 0)
        for f in self.kvq_loads(): f()
        e.wait(lg="all")
        n = len(self.att_vm)
        assert e.vm[-21:] == self.att_vm[-21:] and all(t[0] == "w" for t in self.att_vm[:-21])
        e.op("s_branch L_att")

    def gate(self):
        e = self.e
        T1, T2, T3 = v(V_T1), v(V_T2), v(V_T3)
        e.restore(self.gate_snap)
        e.label("L_gate")
        e.op(f"s_mov_b64 {s(S_MISC,2)}, {s(S_PG,2)}")
        e.op(f"s_movk_i32 {s(S_MISC+2)}, 1280")
        e.op(f"s_lshr_b32 {s(S_T3)}, {s(S_WM0)}, 1")
        e.op(f"s_add_u32 {s(S_T3)}, {s(S_T3)}, {L_V + 12 * 3072}")
        e.op(f"s_mov_b32 m0, {s(S_T3)}")
        e.op(f"v_lshrrev_b32 {T1}, 4, {v(V_LANE)}")
        for n in range(2):
            e.op(f"buffer_load_dwordx4 {v(V_L16)}, {s(S_MISC,4)}, 0 offen offset:{n * 1024} lds", tag="gw")
        e.op(f"v_lshl_add_u32 {T1}, {T1}, 4, {s(S_T3)}")
        e.wait(lg="all")
        epi = self.p1_epilogue_ops()
        for g in epi[:2]:
            for f in g: f()
        self.open_poll = 225
        self.poll_check(225, 4)
        e.op("s_barrier")
        e.op(f"s_bfe_u32 {s(S_T1)}, {s(S_TB1)}, 0x30002")
        e.op(f"s_lshl_b32 {s(S_T1)}, {s(S_T1)}, 7")
        e.op(f"s_add_u32 {s(S_T1)}, {s(S_T1)}, {FL_DD}")
        e.op(f"s_cmp_eq_u32 {s(S_WAVE)}, 0")
        e.op(f"s_cselect_b32 {s(S_T1)}, {s(S_T1)}, {OOB}")
        self.publish(S_T1)
        for g in epi[2:]:
            for f in g: f()
        self.wv = None
        ew = sum([self.w_loads(n) for n in self.EARLY_W], [])
        e.wait(vm="gw")
        G = 32
        order = [9, 0, 1, 8, 2, 3, 7, 4, 5, 6]
        def gread(k):
            if k % 2 == 0:
                self.pi_off(S_T4, order[k // 2], 0)
                e.op(f"v_add_u32 {T2}, {s(S_T4)}, {T1}")
            e.op(f"ds_read_b128 {v(G + 4 * (k % 4), 4)}, {T2} offset:{64 * (k % 2)}", tag=("g", k))
        for k in range(4): gread(k)
        for k in range(20):
            xs, ks = order[k // 2], k % 2
            e.wait(lg=[("g", k), ("x", xs, ks, 3)])
            for tt in range(4):
                e.op(f"v_mfma_f32_16x16x32_bf16 {v(48 + 4 * tt, 4)}, {v(G + 4 * (k % 4), 4)}, {r(self.xreg(xs, ks, tt), 4)}, {'0' if k == 0 else v(48 + 4 * tt, 4)}")
                if k in (2, 3, 8, 9): self.x_read(8 if k < 8 else 7, ks, tt)
            if k + 4 < 20: gread(k + 4)
            if k == 11:
                e.wait(vm="st1")
                self.publish(S_FLA)
        e.op("s_barrier")
        for f in self.ones_init(): f()
        e.op(f"s_bitcmp1_b32 {s(S_WAVE)}, 0")
        e.op(f"s_cselect_b64 {s(S_MASK,2)}, -1, 0")
        e.op("s_mov_b32 vcc_lo, 0xffff0000")
        e.op("s_mov_b32 vcc_hi, 0xffff0000")
        e.op(f"v_cndmask_b32 v0, v48, v56, {s(S_MASK,2)}")
        e.op(f"v_cndmask_b32 v4, v52, v60, {s(S_MASK,2)}")
        e.op("v_cndmask_b32 v0, v0, v4, vcc")
        e.op(f"v_min_f32 {T1}, {f32(30.0)}, v0")
        e.op(f"v_mul_f32 {T1}, {f32(LOG2E)}, {T1}")
        e.op(f"v_exp_f32 {T1}, {T1}")
        e.op(f"v_add_f32 {T2}, 1.0, {T1}")
        e.op(f"v_rcp_f32 {T2}, {T2}")
        e.op(f"v_cmp_gt_u32 vcc, 32, {v(V_LANE)}")
        e.op(f"v_and_b32 {T3}, 39, {v(V_LANE)}")
        e.op(f"v_bfe_u32 v1, {v(V_LANE)}, 3, 1")
        e.op(f"v_lshl_add_u32 {T3}, v1, 4, {T3}")
        e.op(f"v_bfe_u32 v1, {v(V_LANE)}, 4, 1")
        e.op(f"v_lshl_add_u32 {T3}, v1, 3, {T3}")
        e.op(f"v_lshlrev_b32 {T3}, 2, {T3}")
        e.op(f"s_lshl_b32 {s(S_T1)}, {s(S_TB1)}, 8")
        e.op(f"s_add_u32 {s(S_T1)}, {s(S_T1)}, {WS_G}")
        e.op(f"v_cndmask_b32 {T1}, {T2}, {T1}, vcc")
        e.op(f"buffer_store_dword {T1}, {T3}, {s(S_WS,4)}, {s(S_T1)} offen sc1", tag="gs")
        e.op(f"v_min_u32 {T2}, 15, {v(V_LANE)}")
        e.op(f"v_lshlrev_b32 {T2}, 7, {T2}")
        e.op(f"v_add_u32 {v(225)}, {FL_D + 240 * 128}, {T2}")
        self.poll_issue(225)
        for f in ew[:12]: f()
        self.poll_check(225, 4)
        self.publish(S_FLA, 32)
        for f in ew[12:16]: f()
        self.poll_issue(V_FA)
        for f in ew[16:]: f()
        self.side_tail(False)

    def spare(self):
        e = self.e
        e.restore(self.spare_snap)
        e.label("L_spare")
        L = v(V_LANE); T0, T1, T2, T3 = v(V_T0), v(V_T1), v(V_T2), v(V_T3)
        self.common_setup()
        e.op(f"v_mov_b32 {v(V_LH)}, 0")
        e.op(f"s_memrealtime {s(S_NONCE,2)}")
        self.rt_tables(0)
        e.op(f"s_sub_u32 {s(S_T1)}, s2, 240")
        e.op(f"s_lshl2_add_u32 {s(S_T1)}, {s(S_T1)}, {s(S_WAVE)}")
        e.op(f"s_lshl_b32 {s(S_T2)}, {s(S_T1)}, 13")
        e.op(f"v_lshl_add_u32 {v(225)}, {L}, 7, {s(S_T2)}")
        def touch(m):
            if self.o("pf2", 1):
                e.op(f"s_mov_b32 {s(S_T2)}, {m * 4096 * 128}")
                e.op(f"buffer_load_dword {v(224)}, {v(225)}, {s(S_WB,4)}, {s(S_T2)} offen")
        for c in range(10 - 2 * self.o("pf1", 0), 10, 2):
            e.op(f"v_lshrrev_b32 {T2}, 8, {v(225)}")
            e.op(f"v_lshl_add_u32 {T2}, {T2}, 10, {v(225)}")
            e.op(f"buffer_load_dword {v(224)}, {T2}, {s(S_X,4)}, 0 offen offset:{c * 128}")
            e.op(f"v_min_u32 {T2}, {3839 * 128}, {v(225)}")
            e.op(f"s_mov_b32 {s(S_T2)}, {c * 64 * 3840}")
            e.op(f"buffer_load_dword {v(224)}, {T2}, {s(S_WA,4)}, {s(S_T2)} offen")
        e.wait(lg="all")
        self.flush_stamp()
        e.op(f"s_or_b32 {s(S_T2)}, {s(S_NONCE)}, 1")
        e.op(f"v_mov_b32 {v(V_NONCE)}, {s(S_T2)}")
        e.op(f"v_mov_b32 {v(V_NONCE+1)}, {s(S_NONCE+1)}")
        e.op(f"s_cmp_lg_u32 {s(S_T1)}, 0")
        e.op("s_cbranch_scc1 L_nononce")
        e.op("s_mov_b64 exec, 1")
        e.op(f"buffer_store_dwordx2 {v(V_NONCE,2)}, {v(V_ZERO)}, {s(S_DBG,4)}, 0 offen sc1")
        e.op("s_mov_b64 exec, -1")
        e.label("L_nononce")
        self.rt_srd()
        e.op(f"s_mul_i32 {s(S_T0)}, {s(S_WAVE)}, 2560")
        for m, src in enumerate((S_RTSRC, S_ST1, S_ST1B, S_SCALE)): self.rt_loads(m * 10240, src, S_T0)
        touch(0)
        self.late_lane_tables()
        self.late_table_use()
        e.wait(vm="rl")
        e.op("s_barrier")
        self.stamp(1)
        touch(1)
        for m in range(4):
            if m: e.op(f"s_add_u32 {s(S_RTS)}, {s(S_RTS)}, {4 * 5120}")
            if m == 3:
                e.op("s_cmp_lt_u32 s2, 248")
                e.op(f"s_cselect_b32 {s(S_RTS)}, {s(S_RTS)}, {OOB}")
            for f in self.rt_reads(m * 10240, 96 + 12 * m) + self.rt_stores(96 + 12 * m): f()
        self.nonce_issue()
        touch(2)
        self.nonce_check()
        e.op("s_barrier")
        self.publish(S_RTF)
        self.stamp(3)
        touch(3); touch(4)
        self.stamp(2)
        self.flush_stamp()
        self.side_tail()

    def k_reads(self, u):
        h, j = divmod(u, 9)
        for ff in range(2):
            self.e.op(f"ds_read_b128 {v(KF + 4 * ff, 4)}, {v(V_KA)} offset:{(h + ff) * 12288 + j * 1024}", tag="k")
    def v_reads(self, u):
        h, j = divmod(u, 9)
        e = self.e
        e.op(f"s_mov_b64 exec, {s(S_VM,2)}")
        for ss in range(2):
            e.op(f"ds_read_b128 {v(VF + 4 * ss, 4)}, {v(V_VA)} offset:{j * 3072 + ss * 1280 + h * 320}", tag="v")
        e.op("s_mov_b64 exec, -1")
    def qk(self, u, part, S, lo=False):
        h, j = divmod(u, 9)
        c = v(S, 16) if part else v(CD, 16) if j == 8 else v(CE, 16) if (j == 0 or lo) else "0"
        self.e.op(f"v_mfma_f32_32x32x16_bf16 {v(S,16)}, {v(KF + 4 * part, 4)}, {v(QM + 8 * h + 4 * part, 4)}, {c}")
    def pv(self, u, part, S, first):
        O = v(OO[u // 9], 16)
        self.e.op(f"v_mfma_f32_32x32x16_bf16 {O}, {v(VF + 4 * part, 4)}, {v(S + 4 * part, 4)}, {'0' if first else O}")

    def q_mask(self):
        e = self.e
        lo, dn = self.L("qodd"), self.L("qdone")
        e.op(f"s_mov_b32 {s(S_MASK)}, -1")
        e.op(f"s_mov_b32 {s(S_MASK+1)}, 0")
        e.op(f"s_bitcmp1_b32 {s(S_BITS)}, 0")
        e.wait(vm="q")
        e.op(f"s_cbranch_scc1 {lo}")
        for par in range(2):
            if par: e.label(lo)
            for h in range(2):
                for ff in range(2):
                    for slot in range(2):
                        p0 = 4 * (h + ff) + 2 * slot - 2 * par - 5 * h
                        k0, k1 = 0 <= p0 < 5, 0 <= p0 + 1 < 5
                        for d in range(2):
                            dst, src = v(QM + 8 * h + 4 * ff + 2 * slot + d), v(VQ + 4 * (h + ff) + 2 * slot + d)
                            if k0 and k1: e.op(f"v_mov_b32 {dst}, {src}")
                            elif k0: e.op(f"v_cndmask_b32 {dst}, 0, {src}, {s(S_MASK,2)}")
                            elif k1: e.op(f"v_cndmask_b32 {dst}, {src}, 0, {s(S_MASK,2)}")
                            else: e.op(f"v_mov_b32 {dst}, 0")
            if not par: e.op(f"s_branch {dn}")
        e.label(dn)

    def attention(self):
        e = self.e
        e.label("L_att")
        self.att_vm = list(e.vm)
        self.stamp(4)
        T0 = v(V_T0)
        stores = list(self.p2_stores_left)
        self.q_mask()
        e.wait(vm="kd")
        e.op("s_barrier")
        self.k_reads(0)
        for f in self.p2_valu_left: f()
        for _ in range(self.o("ns1", 1)): stores.pop(0)()
        self.stamp(5)
        side = {(u, k): [] for u in range(18) for k in range(4)}
        wl = sum([self.w_loads(n) for n in range(NWR) if n not in self.EARLY_W], [])
        slots = [(u, k) for u in range(18) for k in range(4)]
        sst = self.o("sst", 2)
        for i, f in enumerate(stores): side[slots[sst * i]].append(f)
        def pub_c():
            e.wait(vm="st2")
            self.publish(S_FLA, 32)
        pubC, pC, cC = self.o("pubC", 18), self.o("pollC", 44), self.o("chkC", 56)
        side[slots[pubC]].append(pub_c)
        side[slots[pC]].append(lambda: self.poll_issue(V_FC))
        def chk_c():
            self.poll_check(V_FC, 2); self.stamp(6)
            e.op(f"buffer_load_dword {v(V_R)}, {v(V_R)}, {s(S_WS,4)}, 0 offen sc1", tag="r")
        hl = [(n, t) for n in range(5) for t in range(4)]
        taken = {pubC, pC, cC} | {sst * i for i in range(len(stores))}
        skip = self.o("wskip", len(stores))
        acc, rate = 0, self.o("wrate", 16)
        for i, x in enumerate(slots):
            if i == cC: side[x].append(chk_c)
            if i in taken: continue
            skip -= 1
            if skip >= 0: continue
            acc += rate
            if acc < 16: continue
            acc -= 16
            if wl: side[x].append(wl.pop(0))
            elif i > cC and hl:
                n, t = hl.pop(0)
                side[x].append(lambda n=n, t=t: self.h_load(n, t))
        assert not wl
        self.h_left = hl
        def fill_ce(val):
            for i in range(16): e.op(f"v_mov_b32 {v(CE + i)}, {val}")
        def steps(lo):
            def open_at(jn):
                st, bk = self.L("open"), self.L("open_ok")
                e.op(f"s_cmp_eq_u32 {s(S_TQ)}, {8 - jn}")
                e.op(f"s_cbranch_scc1 {st}")
                e.label(bk)
                def stub():
                    e.label(st, reset=True)
                    e.op("s_nop 7")
                    fill_ce(0)
                    e.op("s_nop 0")
                    e.op(f"s_branch {bk}")
                self.stubs.append(stub)
            if lo: fill_ce(hex(NEGBIG))
            e.wait(lg="k")
            self.qk(0, 0, SB[0], lo); self.qk(0, 1, SB[0], lo)
            self.k_reads(1)
            if lo: open_at(1)
            for u in range(18):
                if self.o("zoom", 0) == 3 and u % 2 == 0: self.stamp(1 + u // 2, True)
                S, Sn, Sp = SB[u % 3], SB[(u + 1) % 3], SB[(u - 1) % 3]
                ex = lambda i: e.op(f"v_exp_f32 {v(S + i)}, {v(S + i)}")
                cv = lambda i: e.op(f"v_cvt_pk_bf16_f32 {v(S + i)}, {v(S + 2 * i)}, {v(S + 2 * i + 1)}")
                if u < 17:
                    e.wait(lg="k")
                    self.qk(u + 1, 0, Sn, lo)
                for f in side[(u, 0)]: f()
                for i in range(0, 4): ex(i)
                if u < 17: self.qk(u + 1, 1, Sn, lo)
                e.wait(lg="v")
                if u < 16: self.k_reads(u + 2)
                for f in side[(u, 1)]: f()
                for i in range(4, 8): ex(i)
                cv(0); cv(1)
                if u > 0: self.pv(u - 1, 0, Sp, (u - 1) % 9 == 0)
                if lo and u + 2 == 9: fill_ce(hex(NEGBIG))
                if lo and u + 2 < 18 and 1 <= (u + 2) % 9 <= 7: open_at((u + 2) % 9)
                for f in side[(u, 2)]: f()
                for i in range(8, 12): ex(i)
                cv(2); cv(3)
                if u > 0:
                    self.pv(u - 1, 1, Sp, False)
                    self.v_reads(u)
                for f in side[(u, 3)]: f()
                for i in range(12, 16): ex(i)
                for i in range(4, 8): cv(i)
                if u == 0:
                    e.wait(vm="vd")
                    e.op("s_barrier")
                    self.v_reads(0)
            e.wait(lg="v")
            self.pv(17, 0, SB[17 % 3], False); self.pv(17, 1, SB[17 % 3], False)
            self.flush_stamp()
        self.flush_stamp()
        e.op(f"s_cmp_lt_u32 {s(S_TQ)}, 8")
        e.op("s_cbranch_scc1 L_att_lo")
        snap0, wv0 = e.snapshot(), self.wv
        steps(False)
        snap1 = e.snapshot()
        def att_lo():
            e.restore(snap0); self.wv = wv0
            e.label("L_att_lo")
            steps(True)
            assert e.vm == snap1[0] and e.lg == snap1[1]
            e.op("s_branch L_att_join")
        self.att_lo = att_lo
        e.label("L_att_join")
        self.stamp(7)
        for h in range(2):
            O = OO[h]
            st, bk = self.L("slow"), self.L("slow_ok")
            e.op(f"v_subrev_u32 {T0}, 0x2f800000, {v(O + 12)}")
            e.op(f"v_cmp_le_u32 vcc, 0x20000000, {T0}")
            if self.o("forceslow", 0): e.op("s_mov_b64 vcc, -1")
            for _ in range(2 - h):
                if self.h_left:
                    n, t = self.h_left.pop(0); self.h_load(n, t)
            e.op(f"s_cbranch_vccnz {st}")
            e.label(bk)
            self.cold.append(lambda st=st, bk=bk, h=h: self.slow_head(h, st, bk))
        OP = 0
        ep = []
        A = lambda t, tag=None: ep.append(lambda: e.op(t, tag=tag))
        for h in range(2): A(f"v_rcp_f32 {v(V_T2 + h)}, {v(OO[h] + 12)}")
        ep.append(lambda: e.wait(vm="r"))
        for h in range(2): A(f"v_mul_f32 {v(V_T2 + h)}, {v(V_T2 + h)}, {v(V_R)}")
        for h in range(2):
            O = OO[h]
            for i in range(8): A(f"v_mul_f32 {v(O + i)}, {v(O + i)}, {v(V_T2 + h)}")
            for i in range(4): A(f"v_cvt_pk_bf16_f32 {v(OP + 4 * h + i)}, {v(O + 2 * i)}, {v(O + 2 * i + 1)}")
            A(f"buffer_store_dwordx4 {v(OP + 4 * h, 4)}, {v(V_L16)}, {s(S_WS,4)}, {s(S_OST)} offen offset:{h * 1024} sc1", "sto")
        for h in range(2):
            O = OO[h]
            for i in range(8, 12): A(f"v_mul_f32 {v(O + i)}, {v(O + i)}, {v(V_T2 + h)}")
            for i in range(2): A(f"v_cvt_pk_bf16_f32 {v(OP + 8 + 2 * h + i)}, {v(O + 8 + 2 * i)}, {v(O + 9 + 2 * i)}")
        A(f"buffer_store_dwordx4 {v(OP + 8, 4)}, {v(V_L16H)}, {s(S_WS,4)}, {s(S_OST2)} offen sc1", "sto")
        self.o_epilogue = ep

    def slow_head(self, h, st, bk):
        e = self.e
        e.label(st, reset=True)
        e.vm, e.lg = [], []
        T0, MX = v(V_T0), v(V_T1)
        O, S = OO[h], SB[0]
        e.op("s_nop 15")
        e.op(f"v_mov_b32 {MX}, {hex(NEGBIG)}")
        for i in range(16): e.op(f"v_mov_b32 {v(O + i)}, 0")
        for ps in range(2):
            for j in range(9):
                u = 9 * h + j
                sk = self.L("sk")
                if j < 8:
                    e.op(f"s_cmp_lt_u32 {s(S_TQ)}, {8 - j}")
                    e.op(f"s_cbranch_scc1 {sk}")
                if ps: self.v_reads(u)
                self.k_reads(u)
                e.wait(lg="all")
                self.qk(u, 0, S); self.qk(u, 1, S)
                if ps == 0:
                    for i in range(8): e.op(f"v_max3_f32 {MX}, {MX}, {v(S + 2 * i)}, {v(S + 2 * i + 1)}")
                else:
                    for i in range(16): e.op(f"v_sub_f32 {v(S + i)}, {v(S + i)}, {MX}")
                    for i in range(16): e.op(f"v_exp_f32 {v(S + i)}, {v(S + i)}")
                    for i in range(8): e.op(f"v_cvt_pk_bf16_f32 {v(S + i)}, {v(S + 2 * i)}, {v(S + 2 * i + 1)}")
                    self.pv(u, 0, S, False); self.pv(u, 1, S, False)
                    e.op("s_nop 7")
                e.label(sk)
            if ps == 0:
                e.op(f"v_mov_b32 {T0}, {MX}")
                e.op(f"v_permlane32_swap_b32 {T0}, {MX}")
                e.op("s_nop 1")
                e.op(f"v_max_f32 {MX}, {T0}, {MX}")
        e.op("s_nop 15")
        e.op(f"s_branch {bk}")

    def stage3(self):
        e = self.e
        L = v(V_LANE); T0, T1, T2, T3 = v(V_T0), v(V_T1), v(V_T2), v(V_T3)
        self.stamp(8)
        e.op(f"s_load_dwordx8 {s(TB,8)}, {s(S_TAB,2)}, 128")
        e.op(f"s_load_dwordx4 {s(TB+8,4)}, {s(S_TAB,2)}, 160")
        TM = self.TM; n0 = 19 - TM
        setup = []
        A = lambda t, tag=None: setup.append(lambda: e.op(t, tag=tag))
        setup.append(lambda: e.wait(lg="all"))
        A(f"s_movk_i32 {s(S_C1)}, 4096")
        A(f"s_movk_i32 {s(S_C2)}, 8192")
        for t in range(4): A(f"v_add_u32 {v(V_O + t)}, {s(S_OT + t)}, {v(V_HL)}")
        A(f"v_and_b32 {T0}, 15, {L}")
        A(f"v_lshl_add_u32 {v(V_GW)}, {T0}, 2, {s(S_GW)}")
        A(f"buffer_load_dword {v(V_GW)}, {v(V_GW)}, {s(S_WS,4)}, 0 offen sc1", "g")
        for t in range(3): A(f"v_add_u32 {v(V_RR + t)}, {s(S_RED + t)}, {v(V_L16)}")
        A(f"v_add_u32 {v(V_RW)}, {s(S_RED + 3)}, {v(V_L16)}")
        A(f"v_lshrrev_b32 {T1}, 4, {L}")
        A(f"v_mul_u32_u24 {T0}, 1280, {T0}")
        A(f"v_add_u32 {T0}, {s(S_OUTO)}, {T0}")
        A(f"v_lshl_add_u32 {v(V_OUT)}, {T1}, 4, {T0}")
        A(f"v_lshl_add_u32 {v(V_OUT + 1)}, {T1}, 3, {T0}")
        A(f"v_lshrrev_b32 {T0}, 1, {L}")
        A(f"v_min_u32 {T0}, 3, {T0}")
        A(f"v_and_b32 {T1}, 1, {L}")
        A(f"v_lshl_add_u32 {T1}, {T1}, 3, {s(S_PFB)}")
        A(f"v_lshl_add_u32 {v(V_FB)}, {T0}, 7, {T1}")
        cB = self.o("chkB", 11)
        Q = [(0, lambda n=n, t=t: self.h_load(n, t)) for n, t in self.h_left]
        if self.o("skipw", 0):
            wl0 = self.w_loads
            def dst(i):
                if i == 0:
                    e.op(f"s_lshl2_add_u32 {s(S_T2)}, s2, {s(S_WAVE)}")
                    e.op(f"s_mul_i32 {s(S_T2)}, {s(S_T2)}, 5120")
                    e.op(f"s_add_u32 {s(S_T2)}, {s(S_T2)}, {WS_X}")
                if i == 4: e.op(f"s_add_u32 {s(S_T2)}, {s(S_T2)}, 4096")
                e.op(f"buffer_store_dwordx4 {v(16,4)}, {v(V_L16)}, {s(S_WS,4)}, {s(S_T2)} offen offset:{(i & 3) * 1024} sc1")
            def wl1(n):
                for j in range(5): e.all_tags.add(("w", n, j))
                if n == 18: return wl0(n)
                if n == 17 and self.o("skipw", 0) == 1: return [lambda i=i: dst(i) for i in range(5)]
                return []
            self.w_loads = wl1
        for n in range(5, n0):
            if n >= 12: Q += [(max(n - 11, 4 if n >= 14 else 0), f) for f in self.w_loads(n)]
            Q += [(max(n - 5, 2, cB if n >= 14 else 0), lambda n=n, t=t: self.h_load(n, t)) for t in range(4)]
        for n in range(n0, 19): Q += [(max(n - 11, 4), f) for f in self.w_loads(n)]
        for t in range(4):
            for n in range(n0, 19):
                i = TM * t + n - n0
                Q.append((max(n0 - 5 + i // 4, cB), lambda n=n, t=t: self.h_load(n, t)))
        def issue(step):
            for i, (fr, f) in enumerate(Q):
                if fr <= step:
                    Q.pop(i); f(); return True
            return False
        def need(tags, step, also=()):
            while any(t not in e.all_tags for t in tags): assert issue(step)
            if any(t in e.vm for t in tags): e.wait(vm=list(tags) + [t for t in also if t in e.vm])
        def mfma(n, t, j):
            acc = v(BA + 20 * t + 4 * j, 4)
            e.op(f"v_mfma_f32_16x16x32_bf16 {acc}, {r(WR + 20 * (n % NWR) + 4 * j, 4)}, {v(self.hreg(n, t), 4)}, {'0' if n == 0 else acc}")
        lrate = self.o("lrate", 6)
        cnt = 0
        oep = list(self.o_epilogue)
        for n in range(n0):
            if n == 2: assert not oep
            if n == 4: assert not setup
            if self.o("zoom", 0) == 4 and n < 12: self.stamp(1 + n, True)
            if n == self.o("pubB", 4):
                e.wait(vm="sto"); self.publish(S_FLB)
            if n == self.o("pollB", 9): self.poll_issue(V_FB)
            if n == cB:
                self.poll_check(V_FB, 3); self.stamp(9)
            for t in range(4):
                for j in range(5):
                    need([("w", n, j), ("h", n, t)], n, [("w", n, 4), ("h", n, t | 1)])
                    mfma(n, t, j)
                    cnt += lrate
                    if cnt >= 20 and Q:
                        cnt -= 20; issue(n)
                    elif oep:
                        oep.pop(0)()
                        if oep: oep.pop(0)()
                    elif setup:
                        setup.pop(0)()
        self.stamp(10)
        RD = (0, 20, BA)
        def wr(t, j): e.op(f"ds_write_b128 {v(V_RW)}, {v(BA + 20 * t + 4 * j, 4)} offset:{t * 5120 + j * 1024}", tag=("red", t))
        def rd(sl, j): e.op(f"ds_read_b128 {v(RD[sl] + 4 * j, 4)}, {v(V_RR + sl)} offset:{j * 1024}", tag=("rd", sl, j))
        def add01(k):
            if k % 4 == 0: e.wait(lg=("rd", 1, k // 4))
            e.op(f"v_add_f32 {v(RD[0] + k)}, {v(RD[0] + k)}, {v(RD[1] + k)}")
        def bar01():
            e.wait(lg=("red", 1))
            e.op("s_barrier")
        F = BA + 60
        for t in range(4):
            q = [None] * 3 + [lambda j=j: wr(t - 1, j) for j in range(5)] if t else []
            if t == 3:
                q = [bar01] + [lambda j=j, sl=sl: rd(sl, j) for j in range(2) for sl in range(2)] + q[3:] + \
                    [lambda j=j, sl=sl: rd(sl, j) for j in range(2, 5) for sl in range(2)]
                adds = [lambda k=k: add01(k) for k in range(20)]
            i = 0
            for n in range(n0, 19):
                for j in range(5):
                    need([("w", n, j), ("h", n, t)], 99)
                    mfma(n, t, j)
                    if Q and i % 4 == 0: issue(99)
                    elif q:
                        f = q.pop(0)
                        if f: f()
                    elif t == 3:
                        for _ in range(2):
                            if adds: adds.pop(0)()
                    i += 1
            for f in q:
                if f: f()
        assert not Q
        self.stamp(11)
        e.wait(lg=("red", 2))
        e.op("s_barrier")
        for j in range(5): rd(2, j)
        for f in adds: f()
        e.wait(vm="g")
        W2 = v(V_GW, 2)
        of = ("", "sc1", "nt", "sc0 sc1")[self.o("outf", 0)]
        for i in range(10): e.op(f"v_pk_add_f32 {v(F + 2 * i, 2)}, {v(F + 2 * i, 2)}, {v(RD[0] + 2 * i, 2)}")
        for i in range(10): e.op(f"v_pk_mul_f32 {v(F + 2 * i, 2)}, {v(F + 2 * i, 2)}, {W2} op_sel_hi:[1,0]")
        for grp in ((0, 4), (4, 8), (8, 10)):
            e.wait(lg=("rd", 2, (grp[1] - 1) // 2))
            for i in range(*grp): e.op(f"v_pk_fma_f32 {v(F + 2 * i, 2)}, {v(RD[2] + 2 * i, 2)}, {W2}, {v(F + 2 * i, 2)} op_sel_hi:[1,0,1]")
            for i in range(*grp): e.op(f"v_cvt_pk_bf16_f32 {v(i)}, {v(F + 2 * i)}, {v(F + 2 * i + 1)}")
            if grp[0] < 8: e.op(f"buffer_store_dwordx4 {v(grp[0],4)}, {v(V_OUT)}, {s(S_OUT,4)}, 0 offen offset:{grp[0] * 16} {of}")
            else: e.op(f"buffer_store_dwordx2 {v(8,2)}, {v(V_OUT+1)}, {s(S_OUT,4)}, 0 offen offset:128 {of}")
        self.stamp(12)
        if self.o("skipw", 0): self.w_loads = wl0

    def finish(self):
        e = self.e
        if self.stamps:
            e.wait(vm="all")
            self.stamp(13)
            e.op(f"s_memtime {s(S_VM,2)}")
            self.flush_stamp()
            e.op(f"v_writelane_b32 {v(V_STAMP)}, {s(S_VM)}, {NSTAMP}")
            e.op(f"s_lshl2_add_u32 {s(S_T0)}, s2, {s(S_WAVE)}")
            e.op(f"s_lshl_b32 {s(S_T0)}, {s(S_T0)}, 7")
            e.op(f"s_add_u32 {s(S_T0)}, {s(S_T0)}, {WS_ST}")
            e.op(f"v_lshlrev_b32 {v(V_T0)}, 2, {v(V_LANE)}")
            e.op("s_mov_b32 exec_hi, 0")
            e.op(f"buffer_store_dword {v(V_STAMP)}, {v(V_T0)}, {s(S_WS,4)}, {s(S_T0)} offen")
        e.op("s_endpgm")

    def build(self):
        e = self.e
        self.prologue()
        self.stage1()
        self.attention()
        self.stage3()
        self.finish()
        self.att_lo()
        self.gate()
        self.spare()
        for f in self.stubs:
            e.vm, e.lg = [], []
            f()
        e.label("L_cold")
        for f in self.cold: f()
        e.label("L_end")
        e.op("s_endpgm")
        head = open("head.txt").read().split("\n")
        head = [l for l in head if l.startswith(";") and "@launch" not in l]
        txt = "\n".join(head) + f"\n; @launch grid=(256,1,1) block=(256,1,1) lds={LDS_BYTES}\n"
        txt += f""".amdgcn_target "amdgcn-amd-amdhsa--gfx950"
.text
.globl {NAME}_kernel
.p2align 8
.type {NAME}_kernel,@function
{NAME}_kernel:
"""
        txt += e.text().replace("\n    ", "\n ")
        txt += f""".section .rodata,"a"
.p2align 6
.amdhsa_kernel {NAME}_kernel
  .amdhsa_next_free_vgpr 512
  .amdhsa_next_free_sgpr 102
  .amdhsa_accum_offset 256
  .amdhsa_group_segment_fixed_size 0
  .amdhsa_kernarg_size 80
  .amdhsa_user_sgpr_count 2
  .amdhsa_user_sgpr_kernarg_segment_ptr 1
  .amdhsa_system_sgpr_workgroup_id_x 1
.end_amdhsa_kernel
.p2align 8
.type wave_table,@object
wave_table:
"""
        for wg in range(256):
            for w in range(4):
                txt += ".long " + ",".join(str(x) for x in table_entry(wg, w, self.o("map3", 0))) + "\n"
        return txt

if __name__ == "__main__":
    out = sys.argv[1] if len(sys.argv) > 1 else "cdna_kernels/" + NAME + ".s"
    opt = {}
    for x in sys.argv[2:]:
        if "=" in x:
            k, val = x.split("="); opt[k] = int(val)
    g = Gen(stamps="--stamps" in sys.argv, opt=opt)
    txt = g.build()
    open(out, "w").write(txt)
    print("instructions", g.e.count, "pad states", g.e.nops, "autowaits", g.e.autowaits, "bytes", len(txt), file=sys.stderr)
    if "--nops" in sys.argv:
        for n, t in g.e.log_nops: print(n, t, file=sys.stderr)
```

```python
import sys, math, struct
from asmlib import *

NAME = "gated_mix__sliding_block__dense_activation_relu__prompt"

WS_QK = 0
WS_VT = WS_QK + 80 * 64 * 1024
WS_H  = WS_VT + 16 * 64 * 2560
WS_O  = WS_H + 64 * 110592
WS_WT = WS_O + 64 * 40960
WS_G  = WS_WT + 8 * 74 * 5120
WS_FL = WS_G + 16384
FL_A  = WS_FL
FL_B  = FL_A + 256 * 128
FL_D  = FL_B + 256 * 128
FL_DD = FL_D + 304 * 128
WS_ST = FL_DD + 8 * 128
WS_X = WS_ST + 1024 * 128
WS_SIZE = WS_X + 1024 * 5120
OOB = 0x4000000
assert WS_SIZE < OOB

NW, NX = 5, 4
L_W = 0
L_X = NW * 16384
L_RT = L_X + 65536
L_K = L_X
L_V = L_K + 36 * 1024
LDS_BYTES = 163840

S_DM, S_HK = 0, 1
S_WAVE = 3
S_X, S_WA, S_WB, S_WS, S_OUT, S_DBG, S_MISC = 4, 8, 12, 16, 20, 24, 28
S_PWO, S_CG, S_XM0, S_PW2, S_PG = 32, 34, 35, 36, 38
S_T0, S_T1, S_T2, S_T3, S_T4, S_T5 = 40, 41, 42, 43, 44, 45
S_TAB = 46
TA = 48
(S_ST1, S_ST1B, S_ST2, S_ST2B, S_SCALE, S_FLA, S_FLB, S_RTS, S_RTF, S_RTSRC, S_BITS, S_TQ, S_QOFF) = range(TA, TA + 13)
S_KADJ, S_VOFF = TA + 13, TA + 16
S_OST, S_OST2 = TA + 19, TA + 20
S_HT = TA + 21
S_WT0, S_PFC, S_PFG, S_PFD, S_PFA, S_ASTEP, S_TB1 = range(TA + 25, TA + 32)
TB = 4
S_OT = TB
S_WT1, S_PFB, S_GW, S_OUTO = TB + 4, TB + 5, TB + 6, TB + 7
S_RED = TB + 8
S_PHI = 80
S_WM0, S_SPIN = 86, 87
S_STMP, S_NONCE, S_MASK, S_VM = 88, 90, 92, 94
S_C1, S_C2 = 96, 97
S_PILO, S_PIHI = 80, 81

V_LANE = 255
V_L16 = 254
V_NONCE = 252
V_T0, V_T1, V_T2, V_T3 = 248, 249, 250, 251
V_POLL = 246
V_FA, V_FD, V_FC, V_WV = 245, 244, 243, 242
V_KA, V_VA, V_HL, V_STAMP, V_ZERO, V_L16H = 241, 240, 239, 238, 237, 236
V_H, V_KT, V_Q, V_R = 232, 228, 231, 227
V_XD = 0
V_WD = 4
V_WD2 = 8
V_XR = 12
V_WR = 16
V_ST1 = 24
V_FR = 32
ACC = (128, 64)
A_X = 256
NXR = 7
V_LH = 226
RT_D, RT_LD, RT_RD, RT_ST = 64, 76, 79, 82
SB = (0, 16, 176)
OO = (32, 48)
VQ, QM, VF, KF, CD, CE = 128, 144, 160, 168, 192, 208
BA = 144
HSLOT = (64, 80, 96, 112, 128, 48)
WR = 256
NH, NWR = 6, 12
V_O, V_FB, V_GW, V_RR, V_RW, V_OUT = 228, 245, 244, 224, 243, 240
NSTAMP = 14

def f32(x): return "0x%08x" % struct.unpack("<I", struct.pack("<f", x))[0]
LOG2E = math.log2(math.e)
QSCALE = LOG2E / math.sqrt(20.0)
NEGBIG = 0xff800000
SPIN_MAX = 0x40000

KS0 = (0, 14, 28, 41)

def rt_unit(U, w):
    ks, kg, u = U >> 2, U & 3, w >> 1
    if ks < 54: row, wo = 32 * ks + 16 * (kg >> 1) + 4 * (kg & 1) + 8 * u, 0
    else:
        a_, p = divmod(ks - 54, 5); wo = 1
        row = 40 * (4 * a_ + p) + 20 * (kg >> 1) + 4 * (kg & 1) + 8 * u if p < 4 else 40 * (4 * a_ + kg) + 16 + 20 * u
    return WS_WT + (148 * w + ks) * 5120 + kg * 256, (FL_D + U * 128 if w == 0 else OOB), row * 1280, wo

def table_entry(wg, w, map3):
    xcd, i = wg & 7, wg >> 3
    A = [0] * 32; B = [0] * 16
    def a(reg, val): A[reg - TA] = val & 0xffffffff
    def b(reg, val): B[reg - TB] = val & 0xffffffff
    rts, rtf, rtsrc, wo = rt_unit(wg, w)
    a(S_RTS, rts); a(S_RTF, rtf); a(S_RTSRC, rtsrc)
    if i < 30:
        u = 30 * (xcd >> 1) + i
        rb, cg = 8 * (xcd & 1) + (u & 7), u >> 3
        tb, tb0, wc = 4 * rb + w, 4 * rb + (w & 2), w & 1
        if cg < 10:
            q0 = WS_QK + ((8 * cg + 4 * wc) * 64 + tb0) * 1024
            a(S_ST1, q0); a(S_ST1B, q0 + 1024)
        else:
            a(S_ST1, WS_VT + tb0 * 2560); a(S_ST1B, WS_VT + (tb0 + 1) * 2560)
        h0 = WS_H + tb0 * 110592 + cg * 8192 + wc * 4096
        a(S_ST2, h0 if 2 * cg + wc < 27 else OOB); a(S_ST2B, h0 + 110592 if 2 * cg + wc < 27 else OOB)
        a(S_SCALE, int(f32(QSCALE if cg < 5 else 1.0), 16))
        a(S_FLA, FL_A + (rb * 16 + cg) * 128 + 8 * w)
        a(S_TB1, tb)
    else:
        for m, reg in ((1, S_ST1), (2, S_ST1B), (3, S_SCALE)): a(reg, rt_unit(wg + 16 * m, w)[2])
        a(S_ST2, OOB); a(S_ST2B, OOB); a(S_FLA, OOB)
    P, rba = 2 * xcd + (i >> 4), i & 15
    F0, tq = (10 * P) >> 2, 4 * rba + w
    a(S_BITS, (P & 1) | (wo << 1)); a(S_TQ, tq)
    a(S_QOFF, WS_QK + (F0 * 64 + tq) * 1024)
    for k in range(3):
        t = max(4 * rba + 3 * w - 8 + k, 0)
        a(S_KADJ + k, WS_QK + ((40 + F0) * 64 + t - k) * 1024)
        a(S_VOFF + k, WS_VT + (P * 64 + t) * 2560)
    o0 = WS_O + tq * 40960 + (P >> 2) * 20 * 512
    a(S_OST, o0 + (P & 3) * 2048); a(S_OST2, o0 + (16 + (P & 3)) * 512)
    a(S_FLB, FL_B + (rba * 16 + P) * 128 + 8 * w)
    cq = F0 >> 3
    a(S_PFA, FL_A + cq * 128); a(S_ASTEP, 128 if ((F0 + 2) >> 3) > cq else 0)
    a(S_PFG, FL_A + (rba * 16 + 14) * 128 + 32 + 8 * w)
    a(S_PFD, FL_DD + xcd * 128)
    tb64, ng = (8 * (xcd >> 1) + (i & 7), 4 * (xcd & 1) + (i >> 3)) if not map3 else (4 * xcd + (i & 3), i >> 2)
    for t in range(4):
        T = (w + 1 + t) & 3
        tb = 2 * tb64 + (T >> 1)
        a(S_HT + t, WS_H + tb * 110592 + (T & 1) * 256 + KS0[w] * 2048)
        b(S_OT + t, WS_O + tb * 40960 + (T & 1) * 256 + w * 5 * 2048)
    a(S_WT0, WS_WT + (ng * 74 + KS0[w]) * 5120 + 2048)
    b(S_WT1, WS_WT + (ng * 74 + 54 + 5 * w) * 5120 + 2048)
    a(S_PFC, FL_A + (tb64 >> 1) * 2048 + 32 + 16 * (tb64 & 1) + (KS0[w] >> 2) * 128)
    b(S_PFB, FL_B + ((tb64 >> 1) * 16 + 4 * w) * 128 + 16 * (tb64 & 1))
    A[S_BITS - TA] |= (FL_A + ((tb64 >> 1) * 16 + 14) * 128 + 32 + 8 * (2 * (tb64 & 1) + (w >> 1))) << 2
    b(S_GW, WS_G + (2 * tb64 + (w >> 1)) * 256 + 128 + (w & 1) * 64)
    b(S_OUTO, (64 * tb64 + 16 * w) * 1280 + ng * 160)
    for t in range(3): b(S_RED + t, L_W + ((w - 1 - t) & 3) * 20480 + t * 5120)
    b(S_RED + 3, L_W + w * 20480)
    return A + B

class Gen:
    def __init__(self, stamps=False, opt=None):
        self.e = Emit()
        self.stamps = stamps
        self.uid = 0
        self.opt = opt or {}
        self.stubs = []
        self.cold = []
        self.pending_stamp = None
        self.open_poll = None; self.open_nonce = False
        self.nt = "nt " if self.o("nt", 1) else ""
        self.in_side = False
    def o(self, k, d): return self.opt.get(k, d)
    def L(self, p):
        self.uid += 1
        return f"L_{p}_{self.uid}"
    def stamp(self, idx, z=False):
        if not self.stamps: return
        if self.o("zoom", 0) and not z and 0 < idx < 13: return
        self.flush_stamp()
        self.e.op(f"{'s_memtime' if self.o('cyc', 0) else 's_memrealtime'} {s(S_STMP, 2)}")
        self.pending_stamp = idx
    def flush_stamp(self):
        if self.pending_stamp is None: return
        e = self.e
        if "SMEM" in e.lg: e.wait(lg="all")
        e.op(f"v_writelane_b32 {v(V_STAMP)}, {s(S_STMP)}, {self.pending_stamp}")
        self.pending_stamp = None

    def srd_tail(self, d, nbytes):
        self.e.op(f"s_mov_b32 {s(d+2)}, {nbytes}")
        self.e.op(f"s_mov_b32 {s(d+3)}, 0x20000")
    def nonce_issue(self):
        self.e.op(f"buffer_load_dwordx2 {v(V_NONCE,2)}, {v(V_ZERO)}, {s(S_DBG,4)}, 0 offen sc1", tag="nonce")
        self.open_nonce = True
    def nonce_check(self):
        e = self.e
        st, bk = self.L("nonce"), self.L("nonce_ok")
        assert self.open_nonce
        e.wait(vm="nonce")
        e.op(f"v_readfirstlane_b32 {s(S_NONCE)}, {v(V_NONCE)}")
        e.op(f"v_readfirstlane_b32 {s(S_NONCE+1)}, {v(V_NONCE+1)}")
        e.op(f"s_cmp_eq_u32 {s(S_NONCE)}, 0")
        e.op(f"s_cbranch_scc1 {st}")
        e.label(bk)
        def stub():
            e.label(st, reset=True)
            e.op(f"s_mov_b32 {s(S_SPIN)}, 0")
            e.label(st + "_l")
            e.op("s_sleep 4")
            e.op(f"buffer_load_dwordx2 {v(V_NONCE,2)}, {v(V_ZERO)}, {s(S_DBG,4)}, 0 offen sc1")
            e.op(f"s_add_u32 {s(S_SPIN)}, {s(S_SPIN)}, 1")
            e.wait(vm="all")
            e.op(f"v_readfirstlane_b32 {s(S_NONCE)}, {v(V_NONCE)}")
            e.op(f"v_readfirstlane_b32 {s(S_NONCE+1)}, {v(V_NONCE+1)}")
            e.op(f"s_cmp_gt_u32 {s(S_SPIN)}, {SPIN_MAX}")
            e.op(f"s_cbranch_scc1 {bk}")
            e.op(f"s_cmp_eq_u32 {s(S_NONCE)}, 0")
            e.op(f"s_cbranch_scc1 {st}_l")
            e.op(f"s_branch {bk}")
        self.stubs.append(stub)
    def publish(self, soff, imm=0):
        e = self.e
        e.op("s_mov_b64 exec, 1")
        e.op(f"buffer_store_dwordx2 {v(V_NONCE,2)}, {v(V_ZERO)}, {s(S_WS,4)}, {s(soff)} offen offset:{imm} sc1", tag="flag")
        e.op("s_mov_b64 exec, -1")
    def poll_issue(self, vaddr):
        self.e.op(f"buffer_load_dwordx2 {v(V_POLL,2)}, {v(vaddr)}, {s(S_WS,4)}, 0 offen sc1", tag="poll")
        self.open_poll = vaddr
    def poll_check(self, vaddr, sid=0):
        e = self.e
        st, bk = self.L("poll"), self.L("poll_ok")
        assert self.open_poll == vaddr; self.open_poll = None
        e.wait(vm="poll")
        e.op(f"v_cmp_ne_u64 vcc, {s(S_NONCE,2)}, {v(V_POLL,2)}")
        e.op(f"s_cbranch_vccnz {st}")
        e.label(bk)
        def stub():
            e.label(st, reset=True)
            e.op(f"s_mov_b32 {s(S_SPIN)}, 0")
            e.op(f"s_branch {st}_f")
            e.label(st + "_l")
            e.op("s_sleep 4")
            e.label(st + "_f")
            e.op(f"buffer_load_dwordx2 {v(V_POLL,2)}, {v(vaddr)}, {s(S_WS,4)}, 0 offen sc1")
            e.op(f"s_add_u32 {s(S_SPIN)}, {s(S_SPIN)}, 1")
            e.wait(vm="all")
            e.op(f"v_cmp_ne_u64 vcc, {s(S_NONCE,2)}, {v(V_POLL,2)}")
            e.op(f"s_cmp_gt_u32 {s(S_SPIN)}, {SPIN_MAX}")
            e.op(f"s_cbranch_scc1 {bk}")
            e.op(f"s_cbranch_vccnz {st}_l")
            if self.stamps: e.op(f"v_writelane_b32 {v(V_STAMP)}, {s(S_SPIN)}, {16 + sid}")
            e.op(f"s_branch {bk}")
        self.stubs.append(stub)

    def capture(self, *fns):
        e = self.e
        rec = []
        real = e.op
        e.op = lambda text, tag=None: rec.append(text)
        try:
            for f in fns: f()
        finally:
            e.op = real
        atoms = []
        for t in rec:
            if t.startswith(("s_cselect", "s_addc")): atoms[-1].append(t)
            else: atoms.append([t])
        return [lambda a=a_: [e.op(t) for t in a] and None for a_ in atoms]

    PI_A = [0, 2, 1, 4, 3, 6, 5, 8, 7, 9]
    PI_B = [1, -2, 2, -2, 2, -2, 2, -2, 2, -1]
    PI4S = [
        [[0,4,1,2,3,8,5,6,7,9], [1,0,5,2,3,4,9,6,7,8], [2,0,1,6,3,4,5,7,8,9], [3,0,1,2,7,4,5,6,8,9]],
        [[0,2,1,6,3,4,5,7,8,9], [1,3,0,2,7,4,5,6,8,9], [0,4,1,2,3,8,5,6,7,9], [1,5,0,2,3,4,9,6,7,8]],
        [[0,2,6,1,3,4,5,7,8,9], [1,3,7,0,2,4,5,6,8,9], [0,4,8,1,2,3,5,6,7,9], [1,5,9,0,2,3,4,6,7,8]],
        [[0,2,1,6,3,4,5,7,8,9], [1,3,0,7,2,4,5,6,8,9], [0,4,1,8,2,3,5,6,7,9], [1,5,0,9,2,3,4,6,7,8]],
        [[0,1,5,2,3,4,9,6,7,8], [0,2,1,6,3,4,5,7,8,9], [0,3,1,2,7,4,5,6,8,9], [0,4,1,2,3,8,5,6,7,9]],
        [[0,4,8,1,2,3,5,6,7,9], [1,5,9,0,2,3,4,6,7,8], [2,6,0,1,3,4,5,7,8,9], [3,7,0,1,2,4,5,6,8,9]],
    ]
    @property
    def PI4(self): return self.PI4S[self.o("pt", 0)]
    UNIT = (128, 64 * 3840, 64 * 3456)
    def pi_setup(self, sphi, late):
        e = self.e
        mode = self.o("pi", 8)
        if mode == 2:
            if not late:
                e.op(f"s_and_b32 {s(sphi)}, {s(sphi)}, 1")
                for m in range(2): e.op(f"s_mul_i32 {s(S_PHI + 2 * m)}, {s(sphi)}, {self.UNIT[m]}")
            else:
                e.op(f"s_mul_i32 {s(S_PHI + 4)}, {s(S_PHI)}, {self.UNIT[2] // 128}")
                for m in range(3): e.op(f"s_lshl_b32 {s(S_PHI + 2 * m + 1)}, {s(S_PHI + 2 * m)}, 1")
        elif mode >= 4 and not late:
            if mode == 4:
                tabs = self.PI4
                e.op(f"s_and_b32 {s(sphi)}, {s(sphi)}, 3")
            else:
                nph = {5: 1, 8: 2, 16: 4}[mode]
                base = {1: [list(range(10))], 2: [self.PI_A, [a_ + b_ for a_, b_ in zip(self.PI_A, self.PI_B)]], 4: self.PI4}[nph]
                rots = ((0, 2, 5, 7), (0, 0, 5, 5), (0, 1, 5, 6), (0, 3, 5, 8))[self.o("rot", 1)]
                tabs = [[(k + ro) % 10 for k in tb] for ro in rots for tb in base]
                e.op(f"s_and_b32 {s(sphi)}, {s(sphi)}, {nph - 1}")
                e.op(f"s_lshr_b32 {s(S_T3)}, s2, 1")
                e.op(f"s_lshl1_add_u32 {s(S_T3)}, s2, {s(S_T3)}")
                e.op(f"s_and_b32 {s(S_T3)}, {s(S_T3)}, 3")
                e.op(f"s_mul_i32 {s(S_T3)}, {s(S_T3)}, {nph}")
                e.op(f"s_add_u32 {s(sphi)}, {s(sphi)}, {s(S_T3)}")
            for i, tb in enumerate(tabs):
                assert sorted(tb) == list(range(10))
                lo = sum(k << (4 * n) for n, k in enumerate(tb[:8])); hi = tb[8] | (tb[9] << 4)
                if i == 0:
                    e.op(f"s_mov_b32 {s(S_PILO)}, {hex(lo)}")
                    e.op(f"s_mov_b32 {s(S_PIHI)}, {hex(hi)}")
                else:
                    e.op(f"s_cmp_eq_u32 {s(sphi)}, {i}")
                    e.op(f"s_cselect_b32 {s(S_PILO)}, {hex(lo)}, {s(S_PILO)}")
                    e.op(f"s_cselect_b32 {s(S_PIHI)}, {hex(hi)}, {s(S_PIHI)}")
    def pi_off(self, dst, st, m):
        e = self.e
        mode = self.o("pi", 8)
        if mode == 1: e.op(f"s_mov_b32 {s(dst)}, {st * self.UNIT[m]}")
        elif mode == 2:
            A, B = self.PI_A[st] * self.UNIT[m], self.PI_B[st]
            e.op(f"s_{'add' if B > 0 else 'sub'}_u32 {s(dst)}, {A}, {s(S_PHI + 2 * m + abs(B) - 1)}")
        else:
            e.op(f"s_bfe_u32 {s(dst)}, {s(S_PILO if st < 8 else S_PIHI)}, {hex((4 << 16) | (4 * (st % 8)))}")
            e.op(f"s_mul_i32 {s(dst)}, {s(dst)}, {self.UNIT[m]}")

    def prologue(self):
        e = self.e
        L = v(V_LANE); T0, T1, T2, T3 = v(V_T0), v(V_T1), v(V_T2), v(V_T3)
        e.op("s_cmp_ge_u32 s2, 256")
        e.op("s_cbranch_scc1 L_end")
        self.stamp(0)
        for d, off in ((S_X, 0), (S_WA, 8), (S_WB, 32), (S_WS, 72), (S_OUT, 56), (S_DBG, 64)):
            e.op(f"s_load_dwordx2 {s(d,2)}, s[0:1], {off}")
        e.op(f"s_getpc_b64 {s(S_TAB,2)}")
        e.label("L_pc")
        e.op("s_cmp_lt_u32 s2, 240")
        e.op("s_cbranch_scc1 L_nopf")
        e.op(f"s_bfe_u32 {s(S_T0)}, s2, 0x10003")
        e.op(f"v_lshl_add_u32 {T0}, v0, 1, {s(S_T0)}")
        e.op(f"v_lshlrev_b32 {T0}, 7, {T0}")
        e.op(f"v_min_u32 {T0}, L_cold-L_pc, {T0}")
        e.op(f"global_load_dword {v(224)}, {T0}, {s(S_TAB,2)}")
        e.vm = []
        e.label("L_nopf")
        if self.stamps: e.op(f"v_mov_b32 {v(V_STAMP)}, 0")
        e.op(f"v_lshrrev_b32 {T0}, 6, v0")
        e.op(f"v_and_b32 {L}, 63, v0")
        e.op(f"v_readfirstlane_b32 {s(S_WAVE)}, {T0}")
        e.op(f"s_bfe_u32 {s(S_T0)}, s2, 0x20001")
        e.op(f"s_mul_i32 {s(S_T0)}, {s(S_T0)}, 30")
        e.op(f"s_lshr_b32 {s(S_T1)}, s2, 3")
        e.op(f"s_add_u32 {s(S_T0)}, {s(S_T0)}, {s(S_T1)}")
        e.op(f"s_lshr_b32 {s(S_CG)}, {s(S_T0)}, 3")
        e.op(f"s_and_b32 {s(S_T0)}, {s(S_T0)}, 7")
        e.op(f"s_and_b32 {s(S_T1)}, s2, 1")
        e.op(f"s_lshl3_add_u32 {s(S_T0)}, {s(S_T1)}, {s(S_T0)}")
        e.op(f"s_add_u32 {s(S_T5)}, {s(S_T0)}, {s(S_CG)}")
        self.pi_setup(S_T5, False)
        e.op(f"s_lshl2_add_u32 {s(S_T0)}, {s(S_T0)}, {s(S_WAVE)}")
        e.op(f"s_mul_i32 {s(S_T0)}, {s(S_T0)}, {32 * 1280}")
        e.op(f"s_lshl_b32 {s(S_T4)}, {s(S_CG)}, 8")
        e.op(f"s_movk_i32 {s(S_T2)}, 1280")
        e.op(f"s_movk_i32 {s(S_T3)}, {2 * (8 * 1280 - 1024)}")
        e.op(f"v_lshrrev_b32 {T1}, 4, {L}")
        e.op(f"v_and_b32 {T2}, 7, {L}")
        e.op(f"v_xor_b32 {T2}, {T2}, {T1}")
        e.op(f"v_lshl_add_u32 {T2}, {T2}, 4, {s(S_T0)}")
        e.op(f"v_lshrrev_b32 {T0}, 3, {L}")
        e.op(f"v_mad_u32_u24 {v(V_XD)}, {T0}, {s(S_T2)}, {T2}")
        e.op(f"v_xad_u32 {v(V_XD+2)}, {v(V_XD)}, 64, {s(S_T3)}")
        e.op(f"v_add_u32 {v(V_XD+1)}, {8 * 1280 - 1024}, {v(V_XD)}")
        e.op(f"v_add_u32 {v(V_XD+3)}, {8 * 1280 - 1024}, {v(V_XD+2)}")
        e.op(f"v_lshlrev_b32 {T2}, 2, {T1}")
        e.op(f"v_and_b32 {T3}, 15, {L}")
        e.op(f"v_xor_b32 {T2}, {T2}, {T3}")
        e.op(f"v_lshl_add_u32 {T2}, {T2}, 4, {s(S_T4)}")
        e.op(f"v_lshl_add_u32 {T1}, {s(S_WAVE)}, 4, {T1}")
        e.op(f"s_movk_i32 {s(S_T2)}, 3840")
        e.op(f"v_mad_u32_u24 {v(V_WD)}, {T1}, {s(S_T2)}, {T2}")
        e.op(f"s_movk_i32 {s(S_T3)}, {2 * (4 * 3840 - 1024)}")
        e.op(f"v_xad_u32 {v(V_WD+2)}, {v(V_WD)}, 16, {s(S_T3)}")
        for n in (1, 3): e.op(f"v_add_u32 {v(V_WD+n)}, {4 * 3840 - 1024}, {v(V_WD+n-1)}")
        e.op(f"s_lshl_b32 {s(S_WM0)}, {s(S_WAVE)}, 12")
        e.op(f"s_lshl2_add_u32 {s(S_XM0)}, {s(S_WM0)}, {L_X}")
        self.srd_tail(S_X, 2048 * 1280)
        self.srd_tail(S_WA, 640 * 3840)
        e.op(f"s_lshl2_add_u32 {s(S_T0)}, s2, {s(S_WAVE)}")
        e.op(f"s_mul_i32 {s(S_T0)}, {s(S_T0)}, 192")
        e.label("L_pc2")
        e.op(f"s_add_u32 {s(S_TAB)}, {s(S_TAB)}, wave_table@rel32@lo+(L_pc2+4-L_pc)")
        e.op(f"s_addc_u32 {s(S_TAB+1)}, {s(S_TAB+1)}, wave_table@rel32@hi+(L_pc2+12-L_pc)")
        e.op(f"s_add_u32 {s(S_TAB)}, {s(S_TAB)}, {s(S_T0)}")
        e.op(f"s_addc_u32 {s(S_TAB+1)}, {s(S_TAB+1)}, 0")
        e.wait(lg="all")
        self.flush_stamp()
        if not self.o("tlbw", 0): self.table_loads()
        e.op("s_cmp_ge_u32 s2, 240")
        e.op("s_cbranch_scc1 L_spare")
        self.spare_snap = e.snapshot()
        if self.o("tlbw", 0): self.table_loads()

    def table_loads(self):
        e = self.e
        e.op(f"s_load_dwordx2 {s(S_PWO,2)}, s[0:1], 16")
        e.op(f"s_load_dwordx4 {s(S_PW2,4)}, s[0:1], 40")
        e.op(f"s_load_dwordx16 {s(TA,16)}, {s(S_TAB,2)}, 0")
        e.op(f"s_load_dwordx16 {s(TA+16,16)}, {s(S_TAB,2)}, 64")
        e.op(f"s_load_dword {s(S_SPIN)}, {s(S_TAB,2)}, 128")

    def common_setup(self):
        e = self.e
        L = v(V_LANE)
        self.srd_tail(S_WB, 640 * 3456)
        self.srd_tail(S_WS, WS_SIZE)
        self.srd_tail(S_OUT, 2048 * 1280)
        self.srd_tail(S_DBG, 256)
        e.op(f"s_mov_b32 {s(S_MISC+3)}, 0x20000")
        e.op(f"v_lshlrev_b32 {v(V_L16)}, 4, {L}")
        e.op(f"v_mov_b32 {v(V_ZERO)}, 0")
        e.op(f"v_lshrrev_b32 {v(V_L16H)}, 5, {L}")
        e.op(f"v_lshl_add_u32 {v(V_L16H)}, {v(V_L16H)}, 26, {v(V_L16)}")
        e.op(f"s_mov_b32 {s(S_VM)}, 0xfffff")
        e.op(f"s_mov_b32 {s(S_VM+1)}, 0xfffff")
        e.op(f"s_mov_b32 {s(S_C1)}, 0x10000")
        e.op(f"s_mov_b32 {s(S_C2)}, 0x20000")

    def dma(self, st, m):
        e = self.e
        dm = S_T5 if st < 2 else S_DM
        if m == 0: srd, vd, k, base, lo = S_X, V_XD, st, S_XM0, (st % NX) * 4096
        elif st < 10: srd, vd, k, base, lo = S_WA, V_WD, st, S_WM0, L_W + (st % NW) * 16384
        else: srd, vd, k, base, lo, m = S_WB, V_WD2, self.xst(st), S_WM0, L_W + (st % NW) * 16384, 2
        def f(n):
            if n == 0:
                e.op(f"s_add_u32 m0, {s(base)}, {lo}")
                self.pi_off(dm, k, m)
            e.op(f"buffer_load_dwordx4 {v(vd+n)}, {s(srd,4)}, {s(dm)} offen offset:{n*1024} {'nt ' if (self.o('ntm', 0) >> m) & 1 else ''}lds", tag=("d", st))
        return [lambda n=n: f(n) for n in range(4)]
    def dmas(self, st): return (self.dma(st, 0) if st < 10 else []) + self.dma(st, 1)

    P2X = (0, 1, 2, 7, 8, 9, 3, 4, 5, 6)
    def xst(self, st):
        return st if st < 10 else self.P2X[st - 10]

    def stage1_tables(self):
        e = self.e
        L = v(V_LANE); T0, T1, T2, T3 = v(V_T0), v(V_T1), v(V_T2), v(V_T3)
        P0, P1 = v(V_POLL), v(V_POLL + 1)
        e.op(f"s_movk_i32 {s(S_T2)}, 3456")
        e.op(f"v_cmp_le_u32 vcc, 3456, {T2}")
        e.op(f"v_mad_u32_u24 {v(V_WD2)}, {T1}, {s(S_T2)}, {T2}")
        e.op(f"v_mov_b32 {T0}, 0x1000000")
        e.op(f"v_cndmask_b32 {v(V_WD2)}, {v(V_WD2)}, {T0}, vcc")
        e.op(f"s_movk_i32 {s(S_T3)}, {2 * (4 * 3456 - 1024)}")
        e.op(f"v_xad_u32 {v(V_WD2+2)}, {v(V_WD2)}, 16, {s(S_T3)}")
        for n in (1, 3): e.op(f"v_add_u32 {v(V_WD2+n)}, {4 * 3456 - 1024}, {v(V_WD2+n-1)}")
        e.op(f"v_and_b32 {P0}, 8, {L}")
        e.op(f"v_and_b32 {T0}, 15, {L}")
        e.op(f"v_add_u32 {P0}, {P0}, {T0}")
        e.op(f"v_lshrrev_b32 {P1}, 4, {L}")
        e.op(f"s_and_b32 {s(S_T0)}, {s(S_WAVE)}, 2")
        e.op(f"s_lshl_b32 {s(S_T0)}, {s(S_T0)}, 14")
        e.op(f"s_add_u32 {s(S_T0)}, {s(S_T0)}, {L_X}")
        e.op(f"v_bfe_u32 {T1}, {L}, 1, 3")
        e.op(f"v_xor_b32 {T1}, {T1}, {P1}")
        e.op(f"v_lshl_add_u32 {T1}, {T1}, 4, {s(S_T0)}")
        e.op(f"v_lshl_add_u32 {v(V_XR)}, {P0}, 7, {T1}")
        e.op(f"v_xor_b32 {v(V_XR+1)}, 64, {v(V_XR)}")
        e.op(f"s_and_b32 {s(S_T1)}, {s(S_WAVE)}, 1")
        e.op(f"s_lshl_b32 {s(S_T0)}, {s(S_T1)}, 3")
        e.op(f"v_and_b32 {T0}, 14, {L}")
        e.op(f"v_and_or_b32 {T0}, {P1}, 1, {T0}")
        e.op(f"v_xor_b32 {T0}, {s(S_T0)}, {T0}")
        e.op(f"v_and_b32 {T1}, 1, {L}")
        e.op(f"v_lshl_add_u32 {T0}, {T0}, 1, {T1}")
        e.op(f"v_bfe_u32 {T1}, {L}, 2, 2")
        e.op(f"v_lshl_add_u32 {T1}, {P1}, 3, {T1}")
        e.op(f"v_lshlrev_b32 {T1}, 8, {T1}")
        e.op(f"v_lshl_add_u32 {v(V_WR)}, {T0}, 3, {T1}")
        for j in range(1, 4): e.op(f"v_xor_b32 {v(V_WR+j)}, {(j >> 1) * 64 + (j & 1) * 16}, {v(V_WR)}")
        for j in range(4): e.op(f"v_add_u32 {v(V_WR+4+j)}, 0x10000, {v(V_WR+j)}")
        e.op(f"v_lshlrev_b32 {T0}, 4, {P0}")
        e.op(f"v_lshl_add_u32 {v(V_LH)}, {P1}, 9, {T0}")
        lv, ld = self.L("st1v"), self.L("st1d")
        e.op(f"s_cmp_ge_u32 {s(S_CG)}, 10")
        e.op(f"s_cbranch_scc1 {lv}")
        e.op(f"v_lshrrev_b32 {T0}, 5, {L}")
        e.op(f"v_mul_u32_u24 {T0}, {65536 - 1024}, {T0}")
        e.op(f"v_add_u32 {v(V_ST1)}, {T0}, {v(V_LH)}")
        for j in range(1, 4): e.op(f"v_add_u32 {v(V_ST1+j)}, {(j >> 1) * 131072 + (j & 1) * 128}, {v(V_ST1)}")
        e.op(f"s_branch {ld}")
        e.label(lv)
        e.op(f"s_lshl1_add_u32 {s(S_T1)}, {s(S_CG)}, {s(S_T1)}")
        e.op(f"s_lshl_b32 {s(S_T1)}, {s(S_T1)}, 6")
        e.op(f"s_sub_u32 {s(S_T1)}, {s(S_T1)}, 1280")
        e.op(f"v_add_u32 {T0}, {s(S_T1)}, {P0}")
        e.op(f"v_mul_u32_u24 {T2}, 640, {P1}")
        e.op(f"s_mov_b32 {s(S_T2)}, {64 * 2560 - 640}")
        for j in range(4):
            e.op(f"v_mul_u32_u24 {T3}, 1639, {T0}")
            e.op(f"v_lshrrev_b32 {T3}, 16, {T3}")
            e.op(f"v_lshl_add_u32 {T1}, {T0}, 4, {T2}")
            e.op(f"v_mad_u32_u24 {v(V_ST1+j)}, {T3}, {s(S_T2)}, {T1}")
            if j < 3: e.op(f"v_add_u32 {T0}, {24 if j & 1 else 8}, {T0}")
        e.label(ld)

    def late_lane_tables(self):
        e = self.e
        L = v(V_LANE); T0, T1, T2, T3 = v(V_T0), v(V_T1), v(V_T2), v(V_T3)
        e.op(f"v_and_b32 {T0}, 31, {L}")
        e.op(f"v_lshrrev_b32 {T1}, 5, {L}")
        e.op(f"v_lshlrev_b32 {v(V_R)}, 2, {T0}")
        e.op(f"s_lshl_b32 {s(S_T1)}, {s(S_WAVE)}, 10")
        e.op(f"s_add_u32 {s(S_T2)}, {s(S_T1)}, {L_K}")
        e.op(f"v_add_u32 {v(V_KA)}, {s(S_T2)}, {v(V_L16)}")
        e.op(f"s_mul_i32 {s(S_T1)}, {s(S_T1)}, 3")
        e.op(f"s_add_u32 {s(S_T1)}, {s(S_T1)}, {L_V}")
        e.op(f"v_lshl_add_u32 {T2}, {T1}, 7, {v(V_L16)}")
        e.op(f"v_add_u32 {v(V_VA)}, {s(S_T1)}, {T2}")
        e.op(f"v_lshlrev_b32 {T2}, 2, {T1}")
        e.op(f"v_sub_u32 {T2}, {T0}, {T2}")
        e.op(f"v_cvt_f32_i32 {T2}, {T2}")
        e.op(f"v_mov_b32 {T3}, {f32(2.0 ** 100)}")
        for rr in range(16):
            key = 8 * (rr >> 2) + (rr & 3)
            e.op(f"v_fmaak_f32 {v(CE + rr)}, {T2}, {T3}, {f32((0.5 - key) * 2.0 ** 100)}")
            e.op(f"v_min_f32 {v(CD + rr)}, 0, {v(CE + rr)}")
            e.op(f"v_min_f32 {v(CE + rr)}, -{v(CE + rr)}, 0")
        e.op(f"v_lshrrev_b32 {T1}, 4, {L}")
        e.op(f"v_lshl_add_u32 {v(V_HL)}, {T1}, 8, {v(V_L16)}")
    def late_table_use(self):
        e = self.e
        L = v(V_LANE); T0, T1, T2, T3 = v(V_T0), v(V_T1), v(V_T2), v(V_T3)
        for t in range(4): e.op(f"v_add_u32 {v(V_H + t)}, {s(S_HT + t)}, {v(V_HL)}")
        for k in range(3): e.op(f"v_add_u32 {v(V_KT + k)}, {s(S_KADJ + k)}, {v(V_L16)}")
        e.op(f"v_add_u32 {v(V_Q)}, {s(S_QOFF)}, {v(V_L16)}")
        e.op(f"v_lshl_add_u32 {v(V_R)}, {s(S_TQ)}, 8, {v(V_R)}")
        e.op(f"v_add_u32 {v(V_R)}, {WS_G}, {v(V_R)}")
        e.op(f"v_mov_b32 {v(V_FD)}, {s(S_PFD)}")
        e.op(f"v_lshrrev_b32 {T0}, 1, {L}")
        e.op(f"v_min_u32 {T0}, 3, {T0}")
        e.op(f"v_and_b32 {T1}, 1, {L}")
        e.op(f"v_lshl_add_u32 {T1}, {T1}, 3, {s(S_PFC)}")
        e.op(f"v_lshl_add_u32 {v(V_FC)}, {T0}, 7, {T1}")
        e.op(f"v_writelane_b32 {v(V_FC)}, {s(S_PFG)}, 63")
        e.op(f"s_lshr_b32 {s(S_T0)}, {s(S_BITS)}, 2")
        e.op(f"v_writelane_b32 {v(V_FC)}, {s(S_T0)}, 62")
        e.op(f"s_lshr_b32 {s(S_T0)}, {s(S_TQ)}, 2")
        e.op(f"s_sub_u32 {s(S_T0)}, {s(S_T0)}, 2")
        e.op(f"v_lshrrev_b32 {T0}, 4, {L}")
        e.op(f"v_min_u32 {T0}, 2, {T0}")
        e.op(f"v_add_u32 {T0}, {s(S_T0)}, {T0}")
        e.op(f"v_max_i32 {T0}, 0, {T0}")
        e.op(f"v_and_b32 {T1}, 3, {L}")
        e.op(f"v_lshl_add_u32 {T1}, {T1}, 3, {s(S_PFA)}")
        e.op(f"v_lshl_add_u32 {T0}, {T0}, 11, {T1}")
        e.op(f"v_bfe_u32 {T1}, {L}, 2, 1")
        e.op(f"v_mad_u32_u24 {T0}, {T1}, {s(S_ASTEP)}, {T0}")
        e.op(f"v_cmp_gt_u32 vcc, 48, {L}")
        e.op(f"v_bfe_u32 {T1}, {L}, 3, 1")
        e.op(f"v_add_u32 {T1}, 1, {T1}")
        e.op(f"v_mul_u32_u24 {T1}, 640, {T1}")
        e.op(f"v_cndmask_b32 {T1}, 0, {T1}, vcc")
        e.op(f"v_add_u32 {v(V_FA)}, {T0}, {T1}")

    def rt_tables(self, base):
        e = self.e
        L = v(V_LANE); T0, T1, T2, T3 = v(V_T0), v(V_T1), v(V_T2), v(V_T3)
        P0, P1 = v(V_POLL), v(V_POLL + 1)
        e.op(f"s_and_b32 {s(S_T0)}, {s(S_WAVE)}, 1")
        e.op(f"s_mul_i32 {s(S_T0)}, {s(S_T0)}, 160")
        e.op(f"v_add_u32 {T0}, {s(S_T0)}, {L}")
        for i in range(3):
            e.op(f"v_mul_u32_u24 {T1}, 820, {T0}")
            e.op(f"v_lshrrev_b32 {T1}, 16, {T1}")
            e.op(f"v_lshlrev_b32 {T1}, 2, {T1}")
            e.op(f"v_xor_b32 {T1}, {T0}, {T1}")
            e.op(f"v_lshlrev_b32 {v(RT_LD + i)}, 4, {T1}")
            if i < 2: e.op(f"v_add_u32 {T0}, 64, {T0}")
        e.op(f"v_lshrrev_b32 {T0}, 4, {L}")
        e.op(f"v_and_b32 {T1}, 3, {L}")
        e.op(f"v_bfe_u32 {P1}, {L}, 2, 2")
        e.op(f"v_lshlrev_b32 {T3}, 3, {P1}")
        e.op(f"v_mul_u32_u24 {P1}, 1280, {P1}")
        e.op(f"v_add_u32 {P1}, {base}, {P1}")
        e.op(f"s_mul_i32 {s(S_T0)}, {s(S_WAVE)}, 40")
        e.op(f"v_and_b32 {P0}, 1, {T0}")
        e.op(f"v_lshl_add_u32 {T2}, {T1}, 1, {P0}")
        e.op(f"v_lshrrev_b32 {v(RT_D)}, 5, {L}")
        e.op(f"v_lshl_add_u32 {T2}, {v(RT_D)}, 3, {T2}")
        e.op(f"v_add_u32 {T2}, {s(S_T0)}, {T2}")
        for i in range(2):
            if i: e.op(f"v_add_u32 {T2}, 20, {T2}")
            e.op(f"v_xor_b32 {v(RT_D)}, {T2}, {T3}")
            e.op(f"v_lshl_add_u32 {v(RT_RD + i)}, {v(RT_D)}, 3, {P1}")
        e.op(f"v_mad_u32_u24 {T2}, {P0}, 20, {T1}")
        e.op(f"v_add3_u32 {T2}, {T2}, {s(S_T0)}, 16")
        e.op(f"v_xor_b32 {T2}, {T2}, {T3}")
        e.op(f"v_lshl_add_u32 {v(RT_RD + 2)}, {T2}, 3, {P1}")
        e.op(f"v_mul_u32_u24 {T0}, {1024 - 256}, {T0}")
        e.op(f"v_add_u32 {v(RT_ST)}, {T0}, {v(V_L16)}")
        e.op(f"v_add_u32 {v(RT_ST + 1)}, {74 * 5120}, {v(RT_ST)}")
        e.op(f"s_mov_b32 {s(S_T0)}, {74 * 5120 - 256}")
        e.op(f"v_mad_u32_u24 {T0}, {P0}, {s(S_T0)}, {v(V_L16H)}")
        e.op(f"v_add_u32 {v(RT_ST + 2)}, 4096, {T0}")
    def rt_srd(self):
        e = self.e
        e.op(f"s_bitcmp1_b32 {s(S_BITS)}, 1")
        e.op(f"s_cselect_b64 {s(S_MISC,2)}, {s(S_PWO,2)}, {s(S_PW2,2)}")
        e.op(f"s_mov_b32 {s(S_MISC+2)}, {640 * 1280}")
        e.op(f"s_cselect_b32 {s(S_MISC+2)}, {s(S_MISC+2)}, {1728 * 1280}")
    def rt_loads(self, base, src, sw):
        e = self.e
        for i in range(3):
            e.op(f"s_add_u32 m0, {s(sw)}, {base + i * 1024}")
            if i == 2: e.op("s_mov_b32 exec_hi, 0")
            e.op(f"buffer_load_dwordx4 {v(RT_LD + i)}, {s(S_MISC,4)}, {s(src)} offen {self.nt}lds", tag="rl")
            if i == 2: e.op("s_mov_b32 exec_hi, -1")
    def rt_reads(self, lo_=0, D=RT_D):
        return [lambda i=i, u=u: self.e.op(f"ds_read_b64_tr_b16 {v(D + 4 * i + 2 * u, 2)}, {v(RT_RD + i)} offset:{lo_ + u * 5120}", tag=("rt", i))
                for i in range(3) for u in range(2)]
    def rt_stores(self, D=RT_D, so=S_RTS):
        e = self.e
        def st(i):
            e.wait(lg=("rt", i))
            e.op(f"buffer_store_dwordx4 {v(D + 4 * i, 4)}, {v(RT_ST + i)}, {s(S_WS,4)}, {s(so)} offen sc1", tag="rs")
        return [lambda i=i: st(i) for i in range(3)]

    EARLY_W = (0, 1, 2, 3)
    def w_loads(self, n):
        e = self.e
        def f(j):
            dst = r(WR + 20 * (n % NWR) + 4 * j, 4)
            if n == 13:
                if j in (0, 4):
                    e.op(f"s_add_u32 {s(S_T2)}, {s(S_WT0)}, {n * 5120 - 2048 + (4096 if j else 0)}")
                    e.op(f"s_cmp_lt_u32 {s(S_WAVE)}, 2")
                    e.op(f"s_cselect_b32 {s(S_T2)}, {s(S_T2)}, {OOB}")
                e.op(f"buffer_load_dwordx4 {dst}, {v(V_L16)}, {s(S_WS,4)}, {s(S_T2)} offen offset:{(j & 3) * 1024} sc1", tag=("w", n, j))
                return
            if j == 0:
                base, off = (S_WT0, n * 5120) if n < 14 else (S_WT1, (n - 14) * 5120)
                if self.wv is None or self.wv[0] != base:
                    e.op(f"v_add_u32 {v(V_WV)}, {s(base)}, {v(V_L16)}")
                    self.wv = (base, 0)
                if off != self.wv[1]: e.op(f"v_add_u32 {v(V_WV)}, {off - self.wv[1]}, {v(V_WV)}")
                self.wv = (base, off)
            e.op(f"global_load_dwordx4 {dst}, {v(V_WV)}, {s(S_WS,2)} offset:{j * 1024 - 2048} sc1", tag=("w", n, j))
        return [lambda j=j: f(j) for j in range(5)]
    @property
    def TM(self): return self.o("tm", 3)
    def hreg(self, n, t):
        n0 = 19 - self.TM
        if n < n0: return HSLOT[n % NH] + 4 * t
        i = self.TM * t + (n - n0)
        return HSLOT[(n0 + i // 4) % NH] + 4 * (i % 4)
    def h_load(self, n, t):
        e = self.e
        dst = v(self.hreg(n, t), 4)
        if n >= 14:
            q = n - 14
            so = ("0", s(S_C1), s(S_C2))[q >> 1]
            e.op(f"buffer_load_dwordx4 {dst}, {v(V_O + t)}, {s(S_WS,4)}, {so} offen offset:{(q & 1) * 2048} sc1", tag=("h", n, t))
            return
        if t == 0 and n > 1:
            if n % 2 == 0: e.op(f"s_movk_i32 {s(S_HK)}, {n * 2048}")
            if n == 13:
                e.op(f"s_cmp_lt_u32 {s(S_WAVE)}, 2")
                e.op(f"s_cselect_b32 {s(S_HK)}, {s(S_HK)}, {OOB}")
            assert n % 2 == 0 or self.hk == n - 1
            self.hk = n
        assert n < 2 or self.hk == n
        e.op(f"buffer_load_dwordx4 {dst}, {v(V_H + t)}, {s(S_WS,4)}, {s(S_HK) if n > 1 else 0} offen offset:{(n & 1) * 2048} sc1", tag=("h", n, t))
    def kvq_loads(self):
        e = self.e
        so = ("0", s(S_C1), s(S_C2))
        def q(f): e.op(f"buffer_load_dwordx4 {v(VQ + 4 * f, 4)}, {v(V_Q)}, {s(S_WS,4)}, {so[f]} offen sc1", tag="q")
        def k(f, i):
            if f == 0 and i == 0: e.op(f"s_mul_i32 {s(S_T5)}, {s(S_WAVE)}, 3072")
            if i == 0: e.op(f"s_add_u32 m0, {s(S_T5)}, {L_K + f * 12288}")
            e.op(f"buffer_load_dwordx4 {v(V_KT + i)}, {s(S_WS,4)}, {so[f]} offen offset:{i * 1024} sc1 lds", tag="kd")
        def vv(i, n):
            if i == 0 and n == 0: e.op(f"s_mul_i32 {s(S_T5)}, {s(S_WAVE)}, 9216")
            if n == 0: e.op(f"s_add_u32 m0, {s(S_T5)}, {L_V + i * 3072}")
            e.op(f"buffer_load_dwordx4 {v(V_L16H if n == 2 else V_L16)}, {s(S_WS,4)}, {s(S_VOFF + i)} offen offset:{n * 1024} sc1 lds", tag="vd")
        return [lambda f=f: q(f) for f in range(3)] + [lambda f=f, i=i: k(f, i) for f in range(3) for i in range(3)] + \
               [lambda i=i, n=n: vv(i, n) for i in range(3) for n in range(3)]

    def frag(self, st, f):
        return ((f >> 1) & 1, (f >> 2) * 2 + (f & 1)) if st == 19 else (f >> 2, f & 3)
    def w_read(self, st, f, u):
        ks, j = self.frag(st, f)
        off = L_W + (st % NW) * 16384 + ks * 8192 + u * 1024
        ad = V_WR + j
        if off >= 65536: off -= 65536; ad += 4
        self.e.op(f"ds_read_b64_tr_b16 {v(V_FR + 4 * f + 2 * u, 2)}, {v(ad)} offset:{off}", tag=("w", st, f))
    def xreg(self, xs, ks, tt): return A_X + 32 * min(xs, NXR) + 16 * ks + 4 * tt
    def x_read(self, st, ks, tt):
        xs = self.xst(st)
        self.e.op(f"ds_read_b128 {r(self.xreg(xs, ks, tt), 4)}, {v(V_XR + ks)} offset:{(tt >> 1) * 16384 + (xs % NX) * 4096 + (tt & 1) * 1024}", tag=("x", st, ks, tt))
    def accreg(self, ps, tt, j, swap):
        b, p, G, q = tt >> 1, tt & 1, j >> 1, j & 1
        return ACC[ps] + 32 * G + (16 * q + 8 * b + 4 * p if swap else 16 * p + 8 * b + 4 * q)

    LEAD = 10
    def stage1_fill(self):
        e = self.e
        fill = {m: [] for m in range(-1, 640)}
        used = {m: 0 for m in range(-1, 640)}
        def at(m, f, n=1):
            fill[max(m, -1)].append(f); used[max(m, -1)] += n
        WG = (1, 5, 8, 11, 14, 18, 21, 24)
        XG = (2, 2, 3, 3, 12, 15, 16, 19)
        for st in range(20):
            b = 32 * st - self.LEAD
            def bar(st=st):
                assert ("d", st) in e.all_tags
                e.wait(vm=("d", st), lg="all")
                e.op("s_barrier")
            at(b, bar, 2)
            for f in range(8):
                for u in range(2): at(b + WG[f], lambda st=st, f=f, u=u: self.w_read(st, f, u))
                if st < 10 or self.xst(st) >= NXR:
                    at(b + XG[f], lambda st=st, f=f: self.x_read(st, f >> 2, f & 3))
            for g in (9, 13, 17, 25): used[max(b + g, -1)] += 1
        return fill, used

    def vm_schedule(self, fill, used, queues, m0, m1, thr):
        lag = 0
        for m in range(m0, m1):
            lag = max(0, lag - 16)
            heads = [q for q in queues if q and q[0][0] <= m]
            if not heads: continue
            q = min(heads, key=lambda q: q[0][1])
            if used[m] and q[0][1] + 3 > m: continue
            if q[0][1] <= m or lag <= thr:
                rel, dl, cost, f = q.pop(0)
                fill[m].append(f); used[m] += 2
                lag = min(lag, 3 * 72) + cost
        assert not any(queues), [len(q) for q in queues]
    def va_place(self, fill, used, ops, m0, m1):
        cap = 2
        while sum(max(0, cap - used[m]) for m in range(m0, m1)) < len(ops): cap += 1
        over = len(ops) - sum(max(0, cap - 1 - used[m]) for m in range(m0, m1)) if cap > 2 else len(ops)
        ops = list(ops)
        for m in range(m0, m1):
            n = max(0, cap - 1 - used[m]) if cap > 2 else 0
            ex = max(0, cap - used[m]) - n
            ex = min(ex, over); over -= ex
            for _ in range(n + ex):
                if ops: fill[m].append(ops.pop(0)); used[m] += 1
        assert not ops

    def p1_epilogue_ops(self):
        e = self.e
        groups = []
        for g in range(8):
            A = ACC[0] + 8 * g
            ops = [lambda A=A, q=q: e.op(f"v_mul_f32 {v(A+q)}, {s(S_SCALE)}, {v(A+q)}") for q in range(8)]
            ops += [lambda A=A, q=q: e.op(f"v_cvt_pk_bf16_f32 {v(A+q)}, {v(A+2*q)}, {v(A+2*q+1)}") for q in range(4)]
            ops.append(lambda A=A, g=g: e.op(f"buffer_store_dwordx4 {v(A,4)}, {v(V_ST1 + (g >> 1))}, {s(S_WS,4)}, {s(S_ST1B if g & 1 else S_ST1)} offen sc1", tag="st1"))
            groups.append(ops)
        return groups
    def p2_epilogue_ops(self):
        e = self.e
        groups = []
        for g in range(8):
            A = ACC[1] + 8 * g
            ops = [lambda A=A, q=q: e.op(f"v_cvt_pk_bf16_f32 {v(A+q)}, {v(A+2*q)}, {v(A+2*q+1)}") for q in range(4)]
            ops += [lambda A=A, q=q: e.op(f"v_pk_max_i16 {v(A+q)}, {v(A+q)}, 0") for q in range(4)]
            ops.append(lambda A=A, g=g: e.op(f"buffer_store_dwordx4 {v(A,4)}, {v(V_LH)}, {s(S_WS,4)}, {s(S_ST2B if g & 1 else S_ST2)} offen offset:{(g >> 2) * 2048 + ((g >> 1) & 1) * 128} sc1", tag="st2"))
            groups.append(ops)
        return groups

    def stage1_stream(self, fill, m0, m1, swap):
        e = self.e
        for m in range(m0, m1):
            st, i = divmod(m, 32)
            f, tt = i >> 2, i & 3
            ks, j = self.frag(st, f)
            if ("w", st, f) in e.lg or ("x", st, ks, tt) in e.lg:
                e.wait(lg=[("w", st, f), ("x", st, ks, 3)] + ([("w", st, f + 1)] if f in (2, 4) else []))
            acc = v(self.accreg(st // 10, tt, j, swap), 4)
            wf = v(V_FR + 4 * f, 4)
            xf = r(self.xreg(self.xst(st), ks, tt), 4)
            c = "0" if (st % 10 == 0 and ks == 0) else acc
            if swap: e.op(f"v_mfma_f32_16x16x32_bf16 {acc}, {xf}, {wf}, {c}")
            else: e.op(f"v_mfma_f32_16x16x32_bf16 {acc}, {wf}, {xf}, {c}")
            for fn in fill[m]: fn()

    def ones_init(self):
        e = self.e
        def first():
            e.op(f"s_mov_b32 {s(S_MASK)}, 0x11000000")
            e.op(f"s_mov_b32 {s(S_MASK+1)}, 0x11000000")
            e.op(f"v_mov_b32 {v(VF)}, 0x3f803f80")
        return [first, lambda: e.op(f"v_cndmask_b32 {v(VF)}, 0, {v(VF)}, {s(S_MASK,2)}")] + \
               [lambda i=i: e.op(f"v_mov_b32 {v(VF + i)}, {v(VF)}") for i in range(1, 8)]

    def stage1(self):
        e = self.e
        lead = self.LEAD
        nc, c0, ne = self.o("tnc", 0), self.o("tch0", 2), self.o("tne", 1)
        S_TX, S_TW = 98, 99
        def touch_setup():
            e.op(f"s_lshl2_add_u32 {s(S_T0)}, s2, {s(S_WAVE)}")
            nx, nw_ = -(-2048 // 960), 2 * nc
            e.op(f"v_min_u32 {v(30)}, {nx * nc - 1}, {v(V_LANE)}")
            e.op(f"v_mul_u32_u24 {v(31)}, {-(-65536 // nc)}, {v(30)}")
            e.op(f"v_lshrrev_b32 {v(31)}, 16, {v(31)}")
            e.op(f"v_mul_u32_u24 {v(31)}, {10 - nc}, {v(31)}")
            e.op(f"v_add_lshl_u32 {v(30)}, {v(30)}, {v(31)}, 7")
            e.op(f"s_mul_i32 {s(S_TX)}, {s(S_T0)}, {nx * 1280}")
            e.op(f"v_min_u32 {v(31)}, {nw_ - 1}, {v(V_LANE)}")
            e.op(f"v_lshlrev_b32 {v(31)}, 7, {v(31)}")
            e.op(f"s_mul_i32 {s(S_TW)}, {s(S_T0)}, {nw_ * 128}")
            e.op(f"s_add_u32 {s(S_TW)}, {s(S_TW)}, {c0 * 64 * 3840}")
        def touch(k):
            if k == 0: touch_setup()
            e.op(f"buffer_load_dword {v(28)}, {v(30)}, {s(S_X,4)}, {s(S_TX)} offen offset:{(c0 + k * nc) * 128}")
            if k: e.op(f"s_add_u32 {s(S_TW)}, {s(S_TW)}, {nc * 64 * 3840}")
            e.op(f"buffer_load_dword {v(29)}, {v(31)}, {s(S_WA,4)}, {s(S_TW)} offen")
        tpos = [self.o("tpos", 0) + k * self.o("tstep", 1) for k in range(ne)] if nc else []
        if -1 in tpos: touch(tpos.index(-1))
        for f in self.dmas(0): f()
        if 0 in tpos: touch(tpos.index(0))
        self.pi_setup(None, True)
        self.common_setup()
        self.stage1_tables()
        d1 = self.dmas(1)
        for f in d1[:4]: f()
        self.rt_tables(L_RT)
        lsu = self.o("lsu", 0)
        if not lsu: self.late_lane_tables()
        for f in d1[4:]: f()
        if 1 in tpos: touch(tpos.index(1))
        e.wait(lg="all")
        self.flush_stamp()
        rtp = self.o("rtpos", 1)
        def rt_go():
            e.op(f"s_mul_i32 {s(S_T5)}, {s(S_WAVE)}, 2560")
            self.rt_loads(L_RT, S_RTSRC, S_T5)
        self.rt_srd()
        if rtp == 1: rt_go()
        def agg_addr():
            e.op(f"s_mov_b32 {s(S_T0)}, {OOB}")
            e.op(f"s_cmp_eq_u32 {s(S_CG)}, 14")
            e.op(f"s_cselect_b32 {s(S_T0)}, {FL_D}, {s(S_T0)}")
            e.op(f"v_lshl_add_u32 {v(225)}, {s(S_WAVE)}, 6, {v(V_LANE)}")
            e.op(f"v_min_u32 {v(225)}, 239, {v(225)}")
            e.op(f"v_lshl_add_u32 {v(225)}, {v(225)}, 7, {s(S_T0)}")
        if not lsu:
            self.late_table_use(); agg_addr()
        fill, used = self.stage1_fill()
        vfill = {m: [] for m in range(-1, 640)}
        G2 = lambda k, d: 2 * self.o(k, d)
        dq = []
        for st in range(2, 20):
            d = self.dmas(st)
            rel = 32 * (st - (2 if st < 10 else 4)) - lead + 1
            g0 = max(32 * (st - 2) - lead + 1, 0); g1 = 32 * (st - 1) - lead - 2
            dq += [(rel, g0 + i * (g1 - g0) // len(d), 72, f) for i, f in enumerate(d)]
            if st == rtp: dq.append((rel, g1 - 1, 180, rt_go))
            if st in tpos: dq.append((rel, g1 - 1, 40, lambda k=tpos.index(st): touch(k)))
        pA, cA = G2("pollA", 260), G2("chkA", 279)
        assert cA > 32 * 16 - lead
        kv = self.kvq_loads()
        dq += [(cA + 1, cA + 1 + i * (634 - cA) // len(kv), 72, f) for i, f in enumerate(kv)]
        rs0 = G2("rs0", 16 * rtp + 30)
        rr0 = 32 * (rtp + 2) - lead - 6 if rs0 >= 32 * (rtp + 2) - lead else 32 * (rtp + 1) - lead + 4
        assert rs0 > rr0 + 4
        for i, f in enumerate(self.rt_reads()):
            fill[rr0 + i // 2].append(f); used[rr0 + i // 2] += 1
        sq = [(rs0 + 12 * i, rs0 + 12 * i, 128, f) for i, f in enumerate(self.rt_stores())]
        sq.append((rs0 + 28, rs0 + 28, 20, self.nonce_issue))
        pd = (rs0 + 28 + 48 + lead + 31) // 32 * 32 - lead
        fill[pd].insert(0, self.nonce_check)
        sq.append((pd + 1, pd + 1, 20, lambda: self.publish(S_RTF)))
        sq.append((G2("pollG", 140), G2("pollG", 140), 20, lambda: self.poll_issue(225)))
        sp, e0 = G2("epi", 5), 321
        epi1 = self.p1_epilogue_ops()
        for g, ops in enumerate(epi1): sq.append((e0 + sp * (g + 1), e0 + sp * (g + 1), self.o("stc", 160), ops[-1]))
        def pub_a():
            e.wait(vm="st1")
            self.publish(S_FLA)
        pD, cD = G2("pollD", 222), G2("chkD", 240)
        assert cD >= 32 * 13
        sq += sorted([(pD, pD, 20, lambda: self.poll_issue(V_FD)), (G2("pubA", 224), G2("pubA", 224), 20, pub_a)], key=lambda x: x[0])
        vfill[cD].append(lambda: self.poll_check(V_FD, 1)); used[cD] += 3
        sq.append((pA, pA, 30, lambda: self.poll_issue(V_FA)))
        vfill[cA].append(lambda: self.poll_check(V_FA, 0)); used[cA] += 3
        vfill[cA].append(lambda: self.stamp(3))
        ew = sum([self.w_loads(n) for n in self.EARLY_W], [])
        wq = [(cD + 1, cA - 4 * (len(ew) - i), 72, f) for i, f in enumerate(ew)]
        self.vm_schedule(fill, used, [dq, sq, wq], 0, 640, self.o("thr", 40))
        if lsu: self.va_place(vfill, used, self.capture(self.late_lane_tables, self.late_table_use, agg_addr), self.o("lsu0", 0) * 32, 32 * lsu)
        for g, ops in enumerate(epi1): self.va_place(vfill, used, ops[:-1], e0 + sp * g, e0 + sp * (g + 1))
        self.va_place(vfill, used, self.ones_init(), e0 + sp * 8 + 8, e0 + sp * 8 + 40)
        epi2 = self.p2_epilogue_ops()
        self.p2_stores_left = [g[-1] for g in epi2]
        va = sum([g[:-1] for g in epi2], [])
        nh = self.o("p2h", 24)
        self.va_place(vfill, used, va[:nh], 626, 640)
        self.p2_valu_left = va[nh:]
        z = self.o("zoom", 0)
        if z in (1, 2):
            for k in range(11):
                m = min(320 * (z - 1) + 32 * k - 1, 639 if z == 2 else 318)
                if z == 2 and k == 0: m = 320
                vfill[m].append(lambda k=k: self.stamp(1 + k, True))
            vfill[319].append(self.flush_stamp)
        for m in fill: fill[m] += vfill[m]
        for fn in fill[-1]: fn()
        if z == 1: self.flush_stamp()
        self.stamp(1)
        e.op(f"s_cmp_ge_u32 {s(S_CG)}, 10")
        e.op("s_cbranch_scc1 L_p1v")
        snap = e.snapshot()
        self.stage1_stream(fill, 0, 320, False)
        e.op("s_branch L_p2")
        after = e.snapshot()
        e.restore(snap)
        e.label("L_p1v")
        self.stage1_stream(fill, 0, 320, True)
        e.op(f"s_cmp_eq_u32 {s(S_CG)}, 14")
        e.op("s_cbranch_scc1 L_gate")
        self.gate_snap = e.snapshot()
        assert after[0] == e.vm and after[1] == e.lg
        e.label("L_p2")
        self.stamp(2)
        self.wv = None
        self.stage1_stream(fill, 320, 640, False)
        self.flush_stamp()

    def side_tail(self, early=True):
        e = self.e
        if early:
            self.poll_issue(V_FD)
            for f in self.ones_init(): f()
            self.poll_check(V_FD, 1)
            self.wv = None
            ew = sum([self.w_loads(n) for n in self.EARLY_W], [])
            for f in ew[:12]: f()
            self.poll_issue(V_FA)
            for f in ew[12:]: f()
        self.poll_check(V_FA, 0)
        for f in self.kvq_loads(): f()
        e.wait(lg="all")
        n = len(self.att_vm)
        assert e.vm[-21:] == self.att_vm[-21:] and all(t[0] == "w" for t in self.att_vm[:-21])
        e.op("s_branch L_att")

    def gate(self):
        e = self.e
        T1, T2, T3 = v(V_T1), v(V_T2), v(V_T3)
        e.restore(self.gate_snap)
        e.label("L_gate")
        e.op(f"s_mov_b64 {s(S_MISC,2)}, {s(S_PG,2)}")
        e.op(f"s_movk_i32 {s(S_MISC+2)}, 1280")
        e.op(f"s_lshr_b32 {s(S_T3)}, {s(S_WM0)}, 1")
        e.op(f"s_add_u32 {s(S_T3)}, {s(S_T3)}, {L_V + 12 * 3072}")
        e.op(f"s_mov_b32 m0, {s(S_T3)}")
        e.op(f"v_lshrrev_b32 {T1}, 4, {v(V_LANE)}")
        for n in range(2):
            e.op(f"buffer_load_dwordx4 {v(V_L16)}, {s(S_MISC,4)}, 0 offen offset:{n * 1024} lds", tag="gw")
        e.op(f"v_lshl_add_u32 {T1}, {T1}, 4, {s(S_T3)}")
        e.wait(lg="all")
        epi = self.p1_epilogue_ops()
        for g in epi[:2]:
            for f in g: f()
        self.open_poll = 225
        self.poll_check(225, 4)
        e.op("s_barrier")
        e.op(f"s_bfe_u32 {s(S_T1)}, {s(S_TB1)}, 0x30002")
        e.op(f"s_lshl_b32 {s(S_T1)}, {s(S_T1)}, 7")
        e.op(f"s_add_u32 {s(S_T1)}, {s(S_T1)}, {FL_DD}")
        e.op(f"s_cmp_eq_u32 {s(S_WAVE)}, 0")
        e.op(f"s_cselect_b32 {s(S_T1)}, {s(S_T1)}, {OOB}")
        self.publish(S_T1)
        for g in epi[2:]:
            for f in g: f()
        self.wv = None
        ew = sum([self.w_loads(n) for n in self.EARLY_W], [])
        e.wait(vm="gw")
        G = 32
        order = [9, 0, 1, 8, 2, 3, 7, 4, 5, 6]
        def gread(k):
            if k % 2 == 0:
                self.pi_off(S_T4, order[k // 2], 0)
                e.op(f"v_add_u32 {T2}, {s(S_T4)}, {T1}")
            e.op(f"ds_read_b128 {v(G + 4 * (k % 4), 4)}, {T2} offset:{64 * (k % 2)}", tag=("g", k))
        for k in range(4): gread(k)
        for k in range(20):
            xs, ks = order[k // 2], k % 2
            e.wait(lg=[("g", k), ("x", xs, ks, 3)])
            for tt in range(4):
                e.op(f"v_mfma_f32_16x16x32_bf16 {v(48 + 4 * tt, 4)}, {v(G + 4 * (k % 4), 4)}, {r(self.xreg(xs, ks, tt), 4)}, {'0' if k == 0 else v(48 + 4 * tt, 4)}")
                if k in (2, 3, 8, 9): self.x_read(8 if k < 8 else 7, ks, tt)
            if k + 4 < 20: gread(k + 4)
            if k == 11:
                e.wait(vm="st1")
                self.publish(S_FLA)
        e.op("s_barrier")
        for f in self.ones_init(): f()
        e.op(f"s_bitcmp1_b32 {s(S_WAVE)}, 0")
        e.op(f"s_cselect_b64 {s(S_MASK,2)}, -1, 0")
        e.op("s_mov_b32 vcc_lo, 0xffff0000")
        e.op("s_mov_b32 vcc_hi, 0xffff0000")
        e.op(f"v_cndmask_b32 v0, v48, v56, {s(S_MASK,2)}")
        e.op(f"v_cndmask_b32 v4, v52, v60, {s(S_MASK,2)}")
        e.op("v_cndmask_b32 v0, v0, v4, vcc")
        e.op(f"v_min_f32 {T1}, {f32(30.0)}, v0")
        e.op(f"v_mul_f32 {T1}, {f32(LOG2E)}, {T1}")
        e.op(f"v_exp_f32 {T1}, {T1}")
        e.op(f"v_add_f32 {T2}, 1.0, {T1}")
        e.op(f"v_rcp_f32 {T2}, {T2}")
        e.op(f"v_cmp_gt_u32 vcc, 32, {v(V_LANE)}")
        e.op(f"v_and_b32 {T3}, 39, {v(V_LANE)}")
        e.op(f"v_bfe_u32 v1, {v(V_LANE)}, 3, 1")
        e.op(f"v_lshl_add_u32 {T3}, v1, 4, {T3}")
        e.op(f"v_bfe_u32 v1, {v(V_LANE)}, 4, 1")
        e.op(f"v_lshl_add_u32 {T3}, v1, 3, {T3}")
        e.op(f"v_lshlrev_b32 {T3}, 2, {T3}")
        e.op(f"s_lshl_b32 {s(S_T1)}, {s(S_TB1)}, 8")
        e.op(f"s_add_u32 {s(S_T1)}, {s(S_T1)}, {WS_G}")
        e.op(f"v_cndmask_b32 {T1}, {T2}, {T1}, vcc")
        e.op(f"buffer_store_dword {T1}, {T3}, {s(S_WS,4)}, {s(S_T1)} offen sc1", tag="gs")
        e.op(f"v_min_u32 {T2}, 15, {v(V_LANE)}")
        e.op(f"v_lshlrev_b32 {T2}, 7, {T2}")
        e.op(f"v_add_u32 {v(225)}, {FL_D + 240 * 128}, {T2}")
        self.poll_issue(225)
        for f in ew[:12]: f()
        self.poll_check(225, 4)
        self.publish(S_FLA, 32)
        for f in ew[12:16]: f()
        self.poll_issue(V_FA)
        for f in ew[16:]: f()
        self.side_tail(False)

    def spare(self):
        e = self.e
        e.restore(self.spare_snap)
        e.label("L_spare")
        L = v(V_LANE); T0, T1, T2, T3 = v(V_T0), v(V_T1), v(V_T2), v(V_T3)
        if self.o("tlbw", 0):
            e.op(f"s_lshl_b32 {s(S_T0)}, {s(S_WAVE)}, 3")
            e.op(f"s_lshr_b32 {s(S_T0)}, {hex(32 | (40 << 8) | (16 << 16) | (48 << 24))}, {s(S_T0)}")
            e.op(f"s_and_b32 {s(S_T0)}, {s(S_T0)}, 0xff")
            e.op(f"s_load_dwordx2 {s(S_MISC,2)}, s[0:1], {s(S_T0)}")
            e.op(f"s_mov_b32 {s(S_MISC+2)}, {640 * 3456}")
            e.op(f"s_cmp_eq_u32 {s(S_WAVE)}, 2")
            e.op(f"s_cselect_b32 {s(S_MISC+2)}, {640 * 1280}, {s(S_MISC+2)}")
            e.op(f"s_cmp_eq_u32 {s(S_WAVE)}, 3")
            e.op(f"s_cselect_b32 {s(S_MISC+2)}, 1280, {s(S_MISC+2)}")
            e.op(f"s_mov_b32 {s(S_MISC+3)}, 0x20000")
            e.op(f"v_lshlrev_b32 {T0}, 16, {L}")
            e.wait(lg="all")
            e.op(f"buffer_load_dword {v(224)}, {T0}, {s(S_MISC,4)}, 0 offen")
            self.table_loads()
        self.common_setup()
        e.op(f"v_mov_b32 {v(V_LH)}, 0")
        e.op(f"s_memrealtime {s(S_NONCE,2)}")
        self.rt_tables(0)
        e.op(f"s_sub_u32 {s(S_T1)}, s2, 240")
        e.op(f"s_lshl2_add_u32 {s(S_T1)}, {s(S_T1)}, {s(S_WAVE)}")
        e.op(f"s_lshl_b32 {s(S_T2)}, {s(S_T1)}, 13")
        e.op(f"v_lshl_add_u32 {v(225)}, {L}, 7, {s(S_T2)}")
        def touch(m):
            if self.o("pf2", 1):
                e.op(f"s_mov_b32 {s(S_T2)}, {m * 4096 * 128}")
                e.op(f"buffer_load_dword {v(224)}, {v(225)}, {s(S_WB,4)}, {s(S_T2)} offen")
        for c in range(10 - 2 * self.o("pf1", 0), 10, 2):
            e.op(f"v_lshrrev_b32 {T2}, 8, {v(225)}")
            e.op(f"v_lshl_add_u32 {T2}, {T2}, 10, {v(225)}")
            e.op(f"buffer_load_dword {v(224)}, {T2}, {s(S_X,4)}, 0 offen offset:{c * 128}")
            e.op(f"v_min_u32 {T2}, {3839 * 128}, {v(225)}")
            e.op(f"s_mov_b32 {s(S_T2)}, {c * 64 * 3840}")
            e.op(f"buffer_load_dword {v(224)}, {T2}, {s(S_WA,4)}, {s(S_T2)} offen")
        e.wait(lg="all")
        self.flush_stamp()
        e.op(f"s_or_b32 {s(S_T2)}, {s(S_NONCE)}, 1")
        e.op(f"v_mov_b32 {v(V_NONCE)}, {s(S_T2)}")
        e.op(f"v_mov_b32 {v(V_NONCE+1)}, {s(S_NONCE+1)}")
        e.op(f"s_cmp_lg_u32 {s(S_T1)}, 0")
        e.op("s_cbranch_scc1 L_nononce")
        e.op("s_mov_b64 exec, 1")
        e.op(f"buffer_store_dwordx2 {v(V_NONCE,2)}, {v(V_ZERO)}, {s(S_DBG,4)}, 0 offen sc1")
        e.op("s_mov_b64 exec, -1")
        e.label("L_nononce")
        self.rt_srd()
        e.op(f"s_mul_i32 {s(S_T0)}, {s(S_WAVE)}, 2560")
        for m, src in enumerate((S_RTSRC, S_ST1, S_ST1B, S_SCALE)): self.rt_loads(m * 10240, src, S_T0)
        touch(0)
        self.late_lane_tables()
        self.late_table_use()
        e.wait(vm="rl")
        e.op("s_barrier")
        self.stamp(1)
        touch(1)
        for m in range(4):
            if m: e.op(f"s_add_u32 {s(S_RTS)}, {s(S_RTS)}, {4 * 5120}")
            if m == 3:
                e.op("s_cmp_lt_u32 s2, 248")
                e.op(f"s_cselect_b32 {s(S_RTS)}, {s(S_RTS)}, {OOB}")
            for f in self.rt_reads(m * 10240, 96 + 12 * m) + self.rt_stores(96 + 12 * m): f()
        self.nonce_issue()
        touch(2)
        self.nonce_check()
        e.op("s_barrier")
        self.publish(S_RTF)
        self.stamp(3)
        touch(3); touch(4)
        self.stamp(2)
        self.flush_stamp()
        self.side_tail()

    def k_reads(self, u):
        h, j = divmod(u, 9)
        for ff in range(2):
            self.e.op(f"ds_read_b128 {v(KF + 4 * ff, 4)}, {v(V_KA)} offset:{(h + ff) * 12288 + j * 1024}", tag="k")
    def v_reads(self, u):
        h, j = divmod(u, 9)
        e = self.e
        e.op(f"s_mov_b64 exec, {s(S_VM,2)}")
        for ss in range(2):
            e.op(f"ds_read_b128 {v(VF + 4 * ss, 4)}, {v(V_VA)} offset:{j * 3072 + ss * 1280 + h * 320}", tag="v")
        e.op("s_mov_b64 exec, -1")
    def qk(self, u, part, S, lo=False):
        h, j = divmod(u, 9)
        c = v(S, 16) if part else v(CD, 16) if j == 8 else v(CE, 16) if (j == 0 or lo) else "0"
        self.e.op(f"v_mfma_f32_32x32x16_bf16 {v(S,16)}, {v(KF + 4 * part, 4)}, {v(QM + 8 * h + 4 * part, 4)}, {c}")
    def pv(self, u, part, S, first):
        O = v(OO[u // 9], 16)
        self.e.op(f"v_mfma_f32_32x32x16_bf16 {O}, {v(VF + 4 * part, 4)}, {v(S + 4 * part, 4)}, {'0' if first else O}")

    def q_mask(self):
        e = self.e
        lo, dn = self.L("qodd"), self.L("qdone")
        e.op(f"s_mov_b32 {s(S_MASK)}, -1")
        e.op(f"s_mov_b32 {s(S_MASK+1)}, 0")
        e.op(f"s_bitcmp1_b32 {s(S_BITS)}, 0")
        e.wait(vm="q")
        e.op(f"s_cbranch_scc1 {lo}")
        for par in range(2):
            if par: e.label(lo)
            for h in range(2):
                for ff in range(2):
                    for slot in range(2):
                        p0 = 4 * (h + ff) + 2 * slot - 2 * par - 5 * h
                        k0, k1 = 0 <= p0 < 5, 0 <= p0 + 1 < 5
                        for d in range(2):
                            dst, src = v(QM + 8 * h + 4 * ff + 2 * slot + d), v(VQ + 4 * (h + ff) + 2 * slot + d)
                            if k0 and k1: e.op(f"v_mov_b32 {dst}, {src}")
                            elif k0: e.op(f"v_cndmask_b32 {dst}, 0, {src}, {s(S_MASK,2)}")
                            elif k1: e.op(f"v_cndmask_b32 {dst}, {src}, 0, {s(S_MASK,2)}")
                            else: e.op(f"v_mov_b32 {dst}, 0")
            if not par: e.op(f"s_branch {dn}")
        e.label(dn)

    def attention(self):
        e = self.e
        e.label("L_att")
        self.att_vm = list(e.vm)
        self.stamp(4)
        T0 = v(V_T0)
        stores = list(self.p2_stores_left)
        self.q_mask()
        e.wait(vm="kd")
        e.op("s_barrier")
        self.k_reads(0)
        for f in self.p2_valu_left: f()
        for _ in range(self.o("ns1", 1)): stores.pop(0)()
        self.stamp(5)
        side = {(u, k): [] for u in range(18) for k in range(4)}
        wl = sum([self.w_loads(n) for n in range(NWR) if n not in self.EARLY_W], [])
        slots = [(u, k) for u in range(18) for k in range(4)]
        sst = self.o("sst", 2)
        for i, f in enumerate(stores): side[slots[sst * i]].append(f)
        def pub_c():
            e.wait(vm="st2")
            self.publish(S_FLA, 32)
        pubC, pC, cC = self.o("pubC", 18), self.o("pollC", 44), self.o("chkC", 56)
        side[slots[pubC]].append(pub_c)
        side[slots[pC]].append(lambda: self.poll_issue(V_FC))
        def chk_c():
            self.poll_check(V_FC, 2); self.stamp(6)
            e.op(f"buffer_load_dword {v(V_R)}, {v(V_R)}, {s(S_WS,4)}, 0 offen sc1", tag="r")
        hl = [(n, t) for n in range(5) for t in range(4)]
        taken = {pubC, pC, cC} | {sst * i for i in range(len(stores))}
        skip = self.o("wskip", len(stores))
        acc, rate = 0, self.o("wrate", 16)
        for i, x in enumerate(slots):
            if i == cC: side[x].append(chk_c)
            if i in taken: continue
            skip -= 1
            if skip >= 0: continue
            acc += rate
            if acc < 16: continue
            acc -= 16
            if wl: side[x].append(wl.pop(0))
            elif i > cC and hl:
                n, t = hl.pop(0)
                side[x].append(lambda n=n, t=t: self.h_load(n, t))
        assert not wl
        self.h_left = hl
        def fill_ce(val):
            for i in range(16): e.op(f"v_mov_b32 {v(CE + i)}, {val}")
        def steps(lo):
            def open_at(jn):
                st, bk = self.L("open"), self.L("open_ok")
                e.op(f"s_cmp_eq_u32 {s(S_TQ)}, {8 - jn}")
                e.op(f"s_cbranch_scc1 {st}")
                e.label(bk)
                def stub():
                    e.label(st, reset=True)
                    e.op("s_nop 7")
                    fill_ce(0)
                    e.op("s_nop 0")
                    e.op(f"s_branch {bk}")
                self.stubs.append(stub)
            if lo: fill_ce(hex(NEGBIG))
            e.wait(lg="k")
            self.qk(0, 0, SB[0], lo); self.qk(0, 1, SB[0], lo)
            self.k_reads(1)
            if lo: open_at(1)
            for u in range(18):
                if self.o("zoom", 0) == 3 and u % 2 == 0: self.stamp(1 + u // 2, True)
                S, Sn, Sp = SB[u % 3], SB[(u + 1) % 3], SB[(u - 1) % 3]
                ex = lambda i: e.op(f"v_exp_f32 {v(S + i)}, {v(S + i)}")
                cv = lambda i: e.op(f"v_cvt_pk_bf16_f32 {v(S + i)}, {v(S + 2 * i)}, {v(S + 2 * i + 1)}")
                if u < 17:
                    e.wait(lg="k")
                    self.qk(u + 1, 0, Sn, lo)
                for f in side[(u, 0)]: f()
                for i in range(0, 4): ex(i)
                if u < 17: self.qk(u + 1, 1, Sn, lo)
                e.wait(lg="v")
                if u < 16: self.k_reads(u + 2)
                for f in side[(u, 1)]: f()
                for i in range(4, 8): ex(i)
                cv(0); cv(1)
                if u > 0: self.pv(u - 1, 0, Sp, (u - 1) % 9 == 0)
                if lo and u + 2 == 9: fill_ce(hex(NEGBIG))
                if lo and u + 2 < 18 and 1 <= (u + 2) % 9 <= 7: open_at((u + 2) % 9)
                for f in side[(u, 2)]: f()
                for i in range(8, 12): ex(i)
                cv(2); cv(3)
                if u > 0:
                    self.pv(u - 1, 1, Sp, False)
                    self.v_reads(u)
                for f in side[(u, 3)]: f()
                for i in range(12, 16): ex(i)
                for i in range(4, 8): cv(i)
                if u == 0:
                    e.wait(vm="vd")
                    e.op("s_barrier")
                    self.v_reads(0)
            e.wait(lg="v")
            self.pv(17, 0, SB[17 % 3], False); self.pv(17, 1, SB[17 % 3], False)
            self.flush_stamp()
        self.flush_stamp()
        e.op(f"s_cmp_lt_u32 {s(S_TQ)}, 8")
        e.op("s_cbranch_scc1 L_att_lo")
        snap0, wv0 = e.snapshot(), self.wv
        steps(False)
        snap1 = e.snapshot()
        def att_lo():
            e.restore(snap0); self.wv = wv0
            e.label("L_att_lo")
            steps(True)
            assert e.vm == snap1[0] and e.lg == snap1[1]
            e.op("s_branch L_att_join")
        self.att_lo = att_lo
        e.label("L_att_join")
        self.stamp(7)
        for h in range(2):
            O = OO[h]
            st, bk = self.L("slow"), self.L("slow_ok")
            e.op(f"v_subrev_u32 {T0}, 0x2f800000, {v(O + 12)}")
            e.op(f"v_cmp_le_u32 vcc, 0x20000000, {T0}")
            if self.o("forceslow", 0): e.op("s_mov_b64 vcc, -1")
            for _ in range(2 - h):
                if self.h_left:
                    n, t = self.h_left.pop(0); self.h_load(n, t)
            e.op(f"s_cbranch_vccnz {st}")
            e.label(bk)
            self.cold.append(lambda st=st, bk=bk, h=h: self.slow_head(h, st, bk))
        OP = 0
        ep = []
        A = lambda t, tag=None: ep.append(lambda: e.op(t, tag=tag))
        for h in range(2): A(f"v_rcp_f32 {v(V_T2 + h)}, {v(OO[h] + 12)}")
        ep.append(lambda: e.wait(vm="r"))
        for h in range(2): A(f"v_mul_f32 {v(V_T2 + h)}, {v(V_T2 + h)}, {v(V_R)}")
        for h in range(2):
            O = OO[h]
            for i in range(8): A(f"v_mul_f32 {v(O + i)}, {v(O + i)}, {v(V_T2 + h)}")
            for i in range(4): A(f"v_cvt_pk_bf16_f32 {v(OP + 4 * h + i)}, {v(O + 2 * i)}, {v(O + 2 * i + 1)}")
            A(f"buffer_store_dwordx4 {v(OP + 4 * h, 4)}, {v(V_L16)}, {s(S_WS,4)}, {s(S_OST)} offen offset:{h * 1024} sc1", "sto")
        for h in range(2):
            O = OO[h]
            for i in range(8, 12): A(f"v_mul_f32 {v(O + i)}, {v(O + i)}, {v(V_T2 + h)}")
            for i in range(2): A(f"v_cvt_pk_bf16_f32 {v(OP + 8 + 2 * h + i)}, {v(O + 8 + 2 * i)}, {v(O + 9 + 2 * i)}")
        A(f"buffer_store_dwordx4 {v(OP + 8, 4)}, {v(V_L16H)}, {s(S_WS,4)}, {s(S_OST2)} offen sc1", "sto")
        self.o_epilogue = ep

    def slow_head(self, h, st, bk):
        e = self.e
        e.label(st, reset=True)
        e.vm, e.lg = [], []
        T0, MX = v(V_T0), v(V_T1)
        O, S = OO[h], SB[0]
        e.op("s_nop 15")
        e.op(f"v_mov_b32 {MX}, {hex(NEGBIG)}")
        for i in range(16): e.op(f"v_mov_b32 {v(O + i)}, 0")
        for ps in range(2):
            for j in range(9):
                u = 9 * h + j
                sk = self.L("sk")
                if j < 8:
                    e.op(f"s_cmp_lt_u32 {s(S_TQ)}, {8 - j}")
                    e.op(f"s_cbranch_scc1 {sk}")
                if ps: self.v_reads(u)
                self.k_reads(u)
                e.wait(lg="all")
                self.qk(u, 0, S); self.qk(u, 1, S)
                if ps == 0:
                    for i in range(8): e.op(f"v_max3_f32 {MX}, {MX}, {v(S + 2 * i)}, {v(S + 2 * i + 1)}")
                else:
                    for i in range(16): e.op(f"v_sub_f32 {v(S + i)}, {v(S + i)}, {MX}")
                    for i in range(16): e.op(f"v_exp_f32 {v(S + i)}, {v(S + i)}")
                    for i in range(8): e.op(f"v_cvt_pk_bf16_f32 {v(S + i)}, {v(S + 2 * i)}, {v(S + 2 * i + 1)}")
                    self.pv(u, 0, S, False); self.pv(u, 1, S, False)
                    e.op("s_nop 7")
                e.label(sk)
            if ps == 0:
                e.op(f"v_mov_b32 {T0}, {MX}")
                e.op(f"v_permlane32_swap_b32 {T0}, {MX}")
                e.op("s_nop 1")
                e.op(f"v_max_f32 {MX}, {T0}, {MX}")
        e.op("s_nop 15")
        e.op(f"s_branch {bk}")

    def stage3(self):
        e = self.e
        L = v(V_LANE); T0, T1, T2, T3 = v(V_T0), v(V_T1), v(V_T2), v(V_T3)
        self.stamp(8)
        e.op(f"s_load_dwordx8 {s(TB,8)}, {s(S_TAB,2)}, 128")
        e.op(f"s_load_dwordx4 {s(TB+8,4)}, {s(S_TAB,2)}, 160")
        TM = self.TM; n0 = 19 - TM
        setup = []
        A = lambda t, tag=None: setup.append(lambda: e.op(t, tag=tag))
        setup.append(lambda: e.wait(lg="all"))
        A(f"s_movk_i32 {s(S_C1)}, 4096")
        A(f"s_movk_i32 {s(S_C2)}, 8192")
        for t in range(4): A(f"v_add_u32 {v(V_O + t)}, {s(S_OT + t)}, {v(V_HL)}")
        A(f"v_and_b32 {T0}, 15, {L}")
        A(f"v_lshl_add_u32 {v(V_GW)}, {T0}, 2, {s(S_GW)}")
        A(f"buffer_load_dword {v(V_GW)}, {v(V_GW)}, {s(S_WS,4)}, 0 offen sc1", "g")
        for t in range(3): A(f"v_add_u32 {v(V_RR + t)}, {s(S_RED + t)}, {v(V_L16)}")
        A(f"v_add_u32 {v(V_RW)}, {s(S_RED + 3)}, {v(V_L16)}")
        A(f"v_lshrrev_b32 {T1}, 4, {L}")
        A(f"v_mul_u32_u24 {T0}, 1280, {T0}")
        A(f"v_add_u32 {T0}, {s(S_OUTO)}, {T0}")
        A(f"v_lshl_add_u32 {v(V_OUT)}, {T1}, 4, {T0}")
        A(f"v_lshl_add_u32 {v(V_OUT + 1)}, {T1}, 3, {T0}")
        A(f"v_lshrrev_b32 {T0}, 1, {L}")
        A(f"v_min_u32 {T0}, 3, {T0}")
        A(f"v_and_b32 {T1}, 1, {L}")
        A(f"v_lshl_add_u32 {T1}, {T1}, 3, {s(S_PFB)}")
        A(f"v_lshl_add_u32 {v(V_FB)}, {T0}, 7, {T1}")
        cB = self.o("chkB", 11)
        Q = [(0, lambda n=n, t=t: self.h_load(n, t)) for n, t in self.h_left]
        if self.o("skipw", 0):
            wl0 = self.w_loads
            def dst(i):
                if i == 0:
                    e.op(f"s_lshl2_add_u32 {s(S_T2)}, s2, {s(S_WAVE)}")
                    e.op(f"s_mul_i32 {s(S_T2)}, {s(S_T2)}, 5120")
                    e.op(f"s_add_u32 {s(S_T2)}, {s(S_T2)}, {WS_X}")
                if i == 4: e.op(f"s_add_u32 {s(S_T2)}, {s(S_T2)}, 4096")
                e.op(f"buffer_store_dwordx4 {v(16,4)}, {v(V_L16)}, {s(S_WS,4)}, {s(S_T2)} offen offset:{(i & 3) * 1024} sc1")
            def wl1(n):
                for j in range(5): e.all_tags.add(("w", n, j))
                if n == 18: return wl0(n)
                if n == 17 and self.o("skipw", 0) == 1: return [lambda i=i: dst(i) for i in range(5)]
                return []
            self.w_loads = wl1
        for n in range(5, n0):
            if n >= 12: Q += [(max(n - 11, 4 if n >= 14 else 0), f) for f in self.w_loads(n)]
            Q += [(max(n - 5, 2, cB if n >= 14 else 0), lambda n=n, t=t: self.h_load(n, t)) for t in range(4)]
        for n in range(n0, 19): Q += [(max(n - 11, 4), f) for f in self.w_loads(n)]
        for t in range(4):
            for n in range(n0, 19):
                i = TM * t + n - n0
                Q.append((max(n0 - 5 + i // 4, cB), lambda n=n, t=t: self.h_load(n, t)))
        def issue(step):
            for i, (fr, f) in enumerate(Q):
                if fr <= step:
                    Q.pop(i); f(); return True
            return False
        def need(tags, step, also=()):
            while any(t not in e.all_tags for t in tags): assert issue(step)
            if any(t in e.vm for t in tags): e.wait(vm=list(tags) + [t for t in also if t in e.vm])
        def mfma(n, t, j):
            acc = v(BA + 20 * t + 4 * j, 4)
            e.op(f"v_mfma_f32_16x16x32_bf16 {acc}, {r(WR + 20 * (n % NWR) + 4 * j, 4)}, {v(self.hreg(n, t), 4)}, {'0' if n == 0 else acc}")
        lrate = self.o("lrate", 6)
        cnt = 0
        oep = list(self.o_epilogue)
        for n in range(n0):
            if n == 2: assert not oep
            if n == 4: assert not setup
            if self.o("zoom", 0) == 4 and n < 12: self.stamp(1 + n, True)
            if n == self.o("pubB", 4):
                e.wait(vm="sto"); self.publish(S_FLB)
            if n == self.o("pollB", 9): self.poll_issue(V_FB)
            if n == cB:
                self.poll_check(V_FB, 3); self.stamp(9)
            for t in range(4):
                for j in range(5):
                    need([("w", n, j), ("h", n, t)], n, [("w", n, 4), ("h", n, t | 1)])
                    mfma(n, t, j)
                    cnt += lrate
                    if cnt >= 20 and Q:
                        cnt -= 20; issue(n)
                    elif oep:
                        oep.pop(0)()
                        if oep: oep.pop(0)()
                    elif setup:
                        setup.pop(0)()
        self.stamp(10)
        RD = (0, 20, BA)
        def wr(t, j): e.op(f"ds_write_b128 {v(V_RW)}, {v(BA + 20 * t + 4 * j, 4)} offset:{t * 5120 + j * 1024}", tag=("red", t))
        def rd(sl, j): e.op(f"ds_read_b128 {v(RD[sl] + 4 * j, 4)}, {v(V_RR + sl)} offset:{j * 1024}", tag=("rd", sl, j))
        def add01(k):
            if k % 4 == 0: e.wait(lg=("rd", 1, k // 4))
            e.op(f"v_add_f32 {v(RD[0] + k)}, {v(RD[0] + k)}, {v(RD[1] + k)}")
        def bar01():
            e.wait(lg=("red", 1))
            e.op("s_barrier")
        F = BA + 60
        for t in range(4):
            q = [None] * 3 + [lambda j=j: wr(t - 1, j) for j in range(5)] if t else []
            if t == 3:
                q = [bar01] + [lambda j=j, sl=sl: rd(sl, j) for j in range(2) for sl in range(2)] + q[3:] + \
                    [lambda j=j, sl=sl: rd(sl, j) for j in range(2, 5) for sl in range(2)]
                adds = [lambda k=k: add01(k) for k in range(20)]
            i = 0
            for n in range(n0, 19):
                for j in range(5):
                    need([("w", n, j), ("h", n, t)], 99)
                    mfma(n, t, j)
                    if Q and i % 4 == 0: issue(99)
                    elif q:
                        f = q.pop(0)
                        if f: f()
                    elif t == 3:
                        for _ in range(2):
                            if adds: adds.pop(0)()
                    i += 1
            for f in q:
                if f: f()
        assert not Q
        self.stamp(11)
        e.wait(lg=("red", 2))
        e.op("s_barrier")
        for j in range(5): rd(2, j)
        for f in adds: f()
        e.wait(vm="g")
        W2 = v(V_GW, 2)
        of = ("", "sc1", "nt", "sc0 sc1")[self.o("outf", 0)]
        for i in range(10): e.op(f"v_pk_add_f32 {v(F + 2 * i, 2)}, {v(F + 2 * i, 2)}, {v(RD[0] + 2 * i, 2)}")
        for i in range(10): e.op(f"v_pk_mul_f32 {v(F + 2 * i, 2)}, {v(F + 2 * i, 2)}, {W2} op_sel_hi:[1,0]")
        for grp in ((0, 4), (4, 8), (8, 10)):
            e.wait(lg=("rd", 2, (grp[1] - 1) // 2))
            for i in range(*grp): e.op(f"v_pk_fma_f32 {v(F + 2 * i, 2)}, {v(RD[2] + 2 * i, 2)}, {W2}, {v(F + 2 * i, 2)} op_sel_hi:[1,0,1]")
            for i in range(*grp): e.op(f"v_cvt_pk_bf16_f32 {v(i)}, {v(F + 2 * i)}, {v(F + 2 * i + 1)}")
            if grp[0] < 8: e.op(f"buffer_store_dwordx4 {v(grp[0],4)}, {v(V_OUT)}, {s(S_OUT,4)}, 0 offen offset:{grp[0] * 16} {of}")
            else: e.op(f"buffer_store_dwordx2 {v(8,2)}, {v(V_OUT+1)}, {s(S_OUT,4)}, 0 offen offset:128 {of}")
        self.stamp(12)
        if self.o("skipw", 0): self.w_loads = wl0

    def finish(self):
        e = self.e
        if self.stamps:
            e.wait(vm="all")
            self.stamp(13)
            e.op(f"s_memtime {s(S_VM,2)}")
            self.flush_stamp()
            e.op(f"v_writelane_b32 {v(V_STAMP)}, {s(S_VM)}, {NSTAMP}")
            e.op(f"s_lshl2_add_u32 {s(S_T0)}, s2, {s(S_WAVE)}")
            e.op(f"s_lshl_b32 {s(S_T0)}, {s(S_T0)}, 7")
            e.op(f"s_add_u32 {s(S_T0)}, {s(S_T0)}, {WS_ST}")
            e.op(f"v_lshlrev_b32 {v(V_T0)}, 2, {v(V_LANE)}")
            e.op("s_mov_b32 exec_hi, 0")
            e.op(f"buffer_store_dword {v(V_STAMP)}, {v(V_T0)}, {s(S_WS,4)}, {s(S_T0)} offen")
        e.op("s_endpgm")

    def build(self):
        e = self.e
        self.prologue()
        self.stage1()
        self.attention()
        self.stage3()
        self.finish()
        self.att_lo()
        self.gate()
        self.spare()
        for f in self.stubs:
            e.vm, e.lg = [], []
            f()
        e.label("L_cold")
        for f in self.cold: f()
        e.label("L_end")
        e.op("s_endpgm")
        head = open("head.txt").read().split("\n")
        head = [l for l in head if l.startswith(";") and "@launch" not in l]
        txt = "\n".join(head) + f"\n; @launch grid=(256,1,1) block=(256,1,1) lds={LDS_BYTES}\n"
        txt += f""".amdgcn_target "amdgcn-amd-amdhsa--gfx950"
.text
.globl {NAME}_kernel
.p2align 8
.type {NAME}_kernel,@function
{NAME}_kernel:
"""
        txt += e.text().replace("\n    ", "\n ")
        txt += f""".section .rodata,"a"
.p2align 6
.amdhsa_kernel {NAME}_kernel
  .amdhsa_next_free_vgpr 512
  .amdhsa_next_free_sgpr 102
  .amdhsa_accum_offset 256
  .amdhsa_group_segment_fixed_size 0
  .amdhsa_kernarg_size 80
  .amdhsa_user_sgpr_count 2
  .amdhsa_user_sgpr_kernarg_segment_ptr 1
  .amdhsa_system_sgpr_workgroup_id_x 1
.end_amdhsa_kernel
.p2align 8
.type wave_table,@object
wave_table:
"""
        for wg in range(256):
            for w in range(4):
                txt += ".long " + ",".join(str(x) for x in table_entry(wg, w, self.o("map3", 0))) + "\n"
        return txt

if __name__ == "__main__":
    out = sys.argv[1] if len(sys.argv) > 1 else "cdna_kernels/" + NAME + ".s"
    opt = {}
    for x in sys.argv[2:]:
        if "=" in x:
            k, val = x.split("="); opt[k] = int(val)
    g = Gen(stamps="--stamps" in sys.argv, opt=opt)
    txt = g.build()
    open(out, "w").write(txt)
    print("instructions", g.e.count, "pad states", g.e.nops, "autowaits", g.e.autowaits, "bytes", len(txt), file=sys.stderr)
    if "--nops" in sys.argv:
        for n, t in g.e.log_nops: print(n, t, file=sys.stderr)
```

```python
import sys, math, struct
from asmlib import *

NAME = "gated_mix__sliding_block__dense_activation_relu__prompt"

WS_QK = 0
WS_VT = WS_QK + 80 * 64 * 1024
WS_H  = WS_VT + 16 * 64 * 2560
WS_O  = WS_H + 64 * 110592
WS_WT = WS_O + 64 * 40960
WS_G  = WS_WT + 8 * 74 * 5120
WS_FL = WS_G + 16384
FL_A  = WS_FL
FL_B  = FL_A + 256 * 128
FL_D  = FL_B + 256 * 128
FL_DD = FL_D + 304 * 128
WS_ST = FL_DD + 8 * 128
WS_X = WS_ST + 1024 * 128
WS_SIZE = WS_X + 1024 * 5120
OOB = 0x4000000
assert WS_SIZE < OOB

NW, NX = 5, 4
L_W = 0
L_X = NW * 16384
L_RT = L_X + 65536
L_K = L_X
L_V = L_K + 36 * 1024
LDS_BYTES = 163840

S_DM, S_HK = 0, 1
S_WAVE = 3
S_X, S_WA, S_WB, S_WS, S_OUT, S_DBG, S_MISC = 4, 8, 12, 16, 20, 24, 28
S_PWO, S_CG, S_XM0, S_PW2, S_PG = 32, 34, 35, 36, 38
S_T0, S_T1, S_T2, S_T3, S_T4, S_T5 = 40, 41, 42, 43, 44, 45
S_TAB = 46
TA = 48
(S_ST1, S_ST1B, S_ST2, S_ST2B, S_SCALE, S_FLA, S_FLB, S_RTS, S_RTF, S_RTSRC, S_BITS, S_TQ, S_QOFF) = range(TA, TA + 13)
S_KADJ, S_VOFF = TA + 13, TA + 16
S_OST, S_OST2 = TA + 19, TA + 20
S_HT = TA + 21
S_WT0, S_PFC, S_PFG, S_PFD, S_PFA, S_ASTEP, S_TB1 = range(TA + 25, TA + 32)
TB = 4
S_OT = TB
S_WT1, S_PFB, S_GW, S_OUTO = TB + 4, TB + 5, TB + 6, TB + 7
S_RED = TB + 8
S_PHI = 80
S_WM0, S_SPIN = 86, 87
S_STMP, S_NONCE, S_MASK, S_VM = 88, 90, 92, 94
S_C1, S_C2 = 96, 97
S_PILO, S_PIHI = 80, 81

V_LANE = 255
V_L16 = 254
V_NONCE = 252
V_T0, V_T1, V_T2, V_T3 = 248, 249, 250, 251
V_POLL = 246
V_FA, V_FD, V_FC, V_WV = 245, 244, 243, 242
V_KA, V_VA, V_HL, V_STAMP, V_ZERO, V_L16H = 241, 240, 239, 238, 237, 236
V_H, V_KT, V_Q, V_R = 232, 228, 231, 227
V_XD = 0
V_WD = 4
V_WD2 = 8
V_XR = 12
V_WR = 16
V_ST1 = 24
V_FR = 32
ACC = (128, 64)
A_X = 256
NXR = 7
V_LH = 226
RT_D, RT_LD, RT_RD, RT_ST = 64, 76, 79, 82
SB = (0, 16, 176)
OO = (32, 48)
VQ, QM, VF, KF, CD, CE = 128, 144, 160, 168, 192, 208
BA = 144
HSLOT = (64, 80, 96, 112, 128, 48)
WR = 256
NH, NWR = 6, 12
V_O, V_FB, V_GW, V_RR, V_RW, V_OUT = 228, 245, 244, 224, 243, 240
NSTAMP = 14

def f32(x): return "0x%08x" % struct.unpack("<I", struct.pack("<f", x))[0]
LOG2E = math.log2(math.e)
QSCALE = LOG2E / math.sqrt(20.0)
NEGBIG = 0xff800000
SPIN_MAX = 0x40000

KS0 = (0, 14, 28, 41)

LATE_KS = sorted({KS0[w] + n for w in range(4) for n in (12, 13) if n < (14, 14, 13, 13)[w]} | {54 + 5 * w + q for w in range(4) for q in (3, 4)})
RT_KS = [k for k in range(74) if k not in LATE_KS] + LATE_KS
assert len(LATE_KS) == 14

def rt_unit(U, w):
    if U >= 296: return OOB, OOB, 0, 0
    ks, kg, u = RT_KS[U >> 2], U & 3, w >> 1
    if ks < 54: row, wo = 32 * ks + 16 * (kg >> 1) + 4 * (kg & 1) + 8 * u, 0
    else:
        a_, p = divmod(ks - 54, 5); wo = 1
        row = 40 * (4 * a_ + p) + 20 * (kg >> 1) + 4 * (kg & 1) + 8 * u if p < 4 else 40 * (4 * a_ + kg) + 16 + 20 * u
    return WS_WT + (148 * w + ks) * 5120 + kg * 256, (FL_D + U * 128 if w == 0 else OOB), row * 1280, wo

def table_entry(wg, w, map3):
    xcd, i = wg & 7, wg >> 3
    A = [0] * 32; B = [0] * 16
    def a(reg, val): A[reg - TA] = val & 0xffffffff
    def b(reg, val): B[reg - TB] = val & 0xffffffff
    rts, rtf, rtsrc, wo = rt_unit(wg, w)
    a(S_RTS, rts); a(S_RTF, rtf); a(S_RTSRC, rtsrc)
    if i < 30:
        u = 30 * (xcd >> 1) + i
        rb, cg = 8 * (xcd & 1) + (u & 7), u >> 3
        tb, tb0, wc = 4 * rb + w, 4 * rb + (w & 2), w & 1
        if cg < 10:
            q0 = WS_QK + ((8 * cg + 4 * wc) * 64 + tb0) * 1024
            a(S_ST1, q0); a(S_ST1B, q0 + 1024)
        else:
            a(S_ST1, WS_VT + tb0 * 2560); a(S_ST1B, WS_VT + (tb0 + 1) * 2560)
        h0 = WS_H + tb0 * 110592 + cg * 8192 + wc * 4096
        a(S_ST2, h0 if 2 * cg + wc < 27 else OOB); a(S_ST2B, h0 + 110592 if 2 * cg + wc < 27 else OOB)
        a(S_SCALE, int(f32(QSCALE if cg < 5 else 1.0), 16))
        a(S_FLA, FL_A + (rb * 16 + cg) * 128 + 8 * w)
        a(S_TB1, tb)
    else:
        for m, reg in ((1, S_ST1), (2, S_ST1B), (3, S_SCALE)): a(reg, rt_unit(wg + 16 * m, w)[2])
        for m, reg in ((1, S_ST2), (2, S_ST2B), (3, S_FLA)): a(reg, rt_unit(wg + 16 * m, w)[0])
        a(S_TB1, sum(rt_unit(wg + 16 * m, w)[3] << m for m in range(4)))
    P, rba = 2 * xcd + (i >> 4), i & 15
    F0, tq = (10 * P) >> 2, 4 * rba + w
    a(S_BITS, (P & 1) | (wo << 1)); a(S_TQ, tq)
    a(S_QOFF, WS_QK + (F0 * 64 + tq) * 1024)
    for k in range(3):
        t = max(4 * rba + 3 * w - 8 + k, 0)
        a(S_KADJ + k, WS_QK + ((40 + F0) * 64 + t - k) * 1024)
        a(S_VOFF + k, WS_VT + (P * 64 + t) * 2560)
    o0 = WS_O + tq * 40960 + (P >> 2) * 20 * 512
    a(S_OST, o0 + (P & 3) * 2048); a(S_OST2, o0 + (16 + (P & 3)) * 512)
    a(S_FLB, FL_B + (rba * 16 + P) * 128 + 8 * w)
    cq = F0 >> 3
    a(S_PFA, FL_A + cq * 128); a(S_ASTEP, 128 if ((F0 + 2) >> 3) > cq else 0)
    a(S_PFG, FL_A + (rba * 16 + 14) * 128 + 32 + 8 * w)
    assert [RT_KS.index(KS0[w] + n) - RT_KS.index(KS0[w]) for n in range(4)] == [0, 1, 2, 3]
    a(S_PFD, FL_D + 4 * RT_KS.index(KS0[w]) * 128)
    tb64, ng = (8 * (xcd >> 1) + (i & 7), 4 * (xcd & 1) + (i >> 3)) if not map3 else (4 * xcd + (i & 3), i >> 2)
    for t in range(4):
        T = (w + 1 + t) & 3
        tb = 2 * tb64 + (T >> 1)
        a(S_HT + t, WS_H + tb * 110592 + (T & 1) * 256 + KS0[w] * 2048)
        b(S_OT + t, WS_O + tb * 40960 + (T & 1) * 256 + w * 5 * 2048)
    a(S_WT0, WS_WT + (ng * 74 + KS0[w]) * 5120 + 2048)
    b(S_WT1, WS_WT + (ng * 74 + 54 + 5 * w) * 5120 + 2048)
    a(S_PFC, FL_A + (tb64 >> 1) * 2048 + 32 + 16 * (tb64 & 1) + (KS0[w] >> 2) * 128)
    b(S_PFB, FL_B + ((tb64 >> 1) * 16 + 4 * w) * 128 + 16 * (tb64 & 1))
    A[S_BITS - TA] |= (FL_A + ((tb64 >> 1) * 16 + 14) * 128 + 32 + 8 * (2 * (tb64 & 1) + (w >> 1))) << 2
    b(S_GW, WS_G + (2 * tb64 + (w >> 1)) * 256 + 128 + (w & 1) * 64)
    b(S_OUTO, (64 * tb64 + 16 * w) * 1280 + ng * 128)
    B[12] = 1024 - 96 * ng
    for t in range(3): b(S_RED + t, L_W + ((w - 1 - t) & 3) * 20480 + t * 5120)
    b(S_RED + 3, L_W + w * 20480)
    return A + B


DOC = """;
"""

class Gen:
    def __init__(self, stamps=False, opt=None):
        self.e = Emit()
        self.stamps = stamps
        self.uid = 0
        self.opt = opt or {}
        self.stubs = []
        self.cold = []
        self.pending_stamp = None
        self.open_poll = None; self.open_nonce = False
        self.nt = "nt " if self.o("nt", 1) else ""
        self.in_side = False
    def o(self, k, d): return self.opt.get(k, d)
    def L(self, p):
        self.uid += 1
        return f"L_{p}_{self.uid}"
    def stamp(self, idx, z=False):
        if not self.stamps: return
        if self.o("zoom", 0) and not z and 0 < idx < 13: return
        self.flush_stamp()
        self.e.op(f"{'s_memtime' if self.o('cyc', 0) else 's_memrealtime'} {s(S_STMP, 2)}")
        self.pending_stamp = idx
    def flush_stamp(self):
        if self.pending_stamp is None: return
        e = self.e
        if "SMEM" in e.lg: e.wait(lg="all")
        e.op(f"v_writelane_b32 {v(V_STAMP)}, {s(S_STMP)}, {self.pending_stamp}")
        self.pending_stamp = None

    def srd_tail(self, d, nbytes):
        self.e.op(f"s_mov_b32 {s(d+2)}, {nbytes}")
        self.e.op(f"s_mov_b32 {s(d+3)}, 0x20000")
    def nonce_issue(self):
        self.e.op(f"buffer_load_dwordx2 {v(V_NONCE,2)}, {v(V_ZERO)}, {s(S_DBG,4)}, 0 offen sc1", tag="nonce")
        self.open_nonce = True
    def nonce_check(self):
        e = self.e
        st, bk = self.L("nonce"), self.L("nonce_ok")
        assert self.open_nonce
        e.wait(vm="nonce")
        e.op(f"v_readfirstlane_b32 {s(S_NONCE)}, {v(V_NONCE)}")
        e.op(f"v_readfirstlane_b32 {s(S_NONCE+1)}, {v(V_NONCE+1)}")
        e.op(f"s_cmp_eq_u32 {s(S_NONCE)}, 0")
        e.op(f"s_cbranch_scc1 {st}")
        e.label(bk)
        def stub():
            e.label(st, reset=True)
            e.op(f"s_mov_b32 {s(S_SPIN)}, 0")
            e.label(st + "_l")
            e.op("s_sleep 4")
            e.op(f"buffer_load_dwordx2 {v(V_NONCE,2)}, {v(V_ZERO)}, {s(S_DBG,4)}, 0 offen sc1")
            e.op(f"s_add_u32 {s(S_SPIN)}, {s(S_SPIN)}, 1")
            e.wait(vm="all")
            e.op(f"v_readfirstlane_b32 {s(S_NONCE)}, {v(V_NONCE)}")
            e.op(f"v_readfirstlane_b32 {s(S_NONCE+1)}, {v(V_NONCE+1)}")
            e.op(f"s_cmp_gt_u32 {s(S_SPIN)}, {SPIN_MAX}")
            e.op(f"s_cbranch_scc1 {bk}")
            e.op(f"s_cmp_eq_u32 {s(S_NONCE)}, 0")
            e.op(f"s_cbranch_scc1 {st}_l")
            e.op(f"s_branch {bk}")
        self.stubs.append(stub)
    def publish(self, soff, imm=0):
        e = self.e
        e.op("s_mov_b64 exec, 1")
        e.op(f"buffer_store_dwordx2 {v(V_NONCE,2)}, {v(V_ZERO)}, {s(S_WS,4)}, {s(soff)} offen offset:{imm} sc1", tag="flag")
        e.op("s_mov_b64 exec, -1")
    def poll_issue(self, vaddr):
        self.e.op(f"buffer_load_dwordx2 {v(V_POLL,2)}, {v(vaddr)}, {s(S_WS,4)}, 0 offen sc1", tag="poll")
        self.open_poll = vaddr
    def poll_again(self, vaddr):
        self.e.op(f"buffer_load_dwordx2 {v(224,2)}, {v(vaddr)}, {s(S_WS,4)}, 0 offen sc1", tag="poll2")
    def poll_check(self, vaddr, sid=0):
        e = self.e
        n2 = e._left(e.vm, ["poll2"])
        st, bk = self.L("poll"), self.L("poll_ok")
        assert self.open_poll == vaddr; self.open_poll = None
        e.wait(vm="poll")
        e.op(f"v_cmp_ne_u64 vcc, {s(S_NONCE,2)}, {v(V_POLL,2)}")
        e.op(f"s_cbranch_vccnz {st}")
        e.label(bk)
        def stub():
            e.label(st, reset=True)
            if n2 is not None:
                e.op(f"s_waitcnt vmcnt({n2})")
                e.op(f"v_cmp_ne_u64 vcc, {s(S_NONCE,2)}, {v(224,2)}")
                e.op(f"s_cbranch_vccz {bk}")
            e.op(f"s_mov_b32 {s(S_SPIN)}, 0")
            e.op(f"s_branch {st}_f")
            e.label(st + "_l")
            e.op("s_sleep 4")
            e.label(st + "_f")
            e.op(f"buffer_load_dwordx2 {v(V_POLL,2)}, {v(vaddr)}, {s(S_WS,4)}, 0 offen sc1")
            e.op(f"s_add_u32 {s(S_SPIN)}, {s(S_SPIN)}, 1")
            e.wait(vm="all")
            e.op(f"v_cmp_ne_u64 vcc, {s(S_NONCE,2)}, {v(V_POLL,2)}")
            e.op(f"s_cmp_gt_u32 {s(S_SPIN)}, {SPIN_MAX}")
            e.op(f"s_cbranch_scc1 {bk}")
            e.op(f"s_cbranch_vccnz {st}_l")
            if self.stamps: e.op(f"v_writelane_b32 {v(V_STAMP)}, {s(S_SPIN)}, {16 + sid}")
            e.op(f"s_branch {bk}")
        self.stubs.append(stub)

    def capture(self, *fns):
        e = self.e
        rec = []
        real = e.op
        e.op = lambda text, tag=None: rec.append(text)
        try:
            for f in fns: f()
        finally:
            e.op = real
        atoms = []
        for t in rec:
            if t.startswith(("s_cselect", "s_addc")): atoms[-1].append(t)
            else: atoms.append([t])
        return [lambda a=a_: [e.op(t) for t in a] and None for a_ in atoms]

    PI_A = [0, 2, 1, 4, 3, 6, 5, 8, 7, 9]
    PI_B = [1, -2, 2, -2, 2, -2, 2, -2, 2, -1]
    PI4S = [
        [[0,4,1,2,3,8,5,6,7,9], [1,0,5,2,3,4,9,6,7,8], [2,0,1,6,3,4,5,7,8,9], [3,0,1,2,7,4,5,6,8,9]],
        [[0,2,1,6,3,4,5,7,8,9], [1,3,0,2,7,4,5,6,8,9], [0,4,1,2,3,8,5,6,7,9], [1,5,0,2,3,4,9,6,7,8]],
        [[0,2,6,1,3,4,5,7,8,9], [1,3,7,0,2,4,5,6,8,9], [0,4,8,1,2,3,5,6,7,9], [1,5,9,0,2,3,4,6,7,8]],
        [[0,2,1,6,3,4,5,7,8,9], [1,3,0,7,2,4,5,6,8,9], [0,4,1,8,2,3,5,6,7,9], [1,5,0,9,2,3,4,6,7,8]],
        [[0,1,5,2,3,4,9,6,7,8], [0,2,1,6,3,4,5,7,8,9], [0,3,1,2,7,4,5,6,8,9], [0,4,1,2,3,8,5,6,7,9]],
        [[0,4,8,1,2,3,5,6,7,9], [1,5,9,0,2,3,4,6,7,8], [2,6,0,1,3,4,5,7,8,9], [3,7,0,1,2,4,5,6,8,9]],
    ]
    @property
    def PI4(self): return self.PI4S[self.o("pt", 0)]
    UNIT = (128, 64 * 3840, 64 * 3456)
    def pi_setup(self, sphi, late):
        e = self.e
        mode = self.o("pi", 8)
        if mode == 2:
            if not late:
                e.op(f"s_and_b32 {s(sphi)}, {s(sphi)}, 1")
                for m in range(2): e.op(f"s_mul_i32 {s(S_PHI + 2 * m)}, {s(sphi)}, {self.UNIT[m]}")
            else:
                e.op(f"s_mul_i32 {s(S_PHI + 4)}, {s(S_PHI)}, {self.UNIT[2] // 128}")
                for m in range(3): e.op(f"s_lshl_b32 {s(S_PHI + 2 * m + 1)}, {s(S_PHI + 2 * m)}, 1")
        elif mode >= 4 and not late:
            if mode == 4:
                tabs = self.PI4
                e.op(f"s_and_b32 {s(sphi)}, {s(sphi)}, 3")
            else:
                nph = {5: 1, 8: 2, 16: 4}[mode]
                two = ([self.PI_A, [a_ + b_ for a_, b_ in zip(self.PI_A, self.PI_B)]],
                       [[0,1,2,3,4,5,6,7,8,9], [1,0,3,2,5,4,7,6,9,8]],
                       [[0,2,1,3,4,5,7,6,8,9], [1,3,0,2,4,6,8,5,7,9]],
                       [[0,2,4,1,3,5,7,6,8,9], [1,3,4,0,2,6,8,5,7,9]],
                       [[0,1,3,2,4,5,6,8,7,9], [0,2,4,1,3,5,7,9,6,8]])[self.o("p2", 0)]
                base = {1: [list(range(10))], 2: two, 4: self.PI4}[nph]
                rots = ((0, 2, 5, 7), (0, 0, 5, 5), (0, 1, 5, 6), (0, 3, 5, 8))[self.o("rot", 1)]
                tabs = [[(k + ro) % 10 for k in tb] for ro in rots for tb in base]
                e.op(f"s_and_b32 {s(sphi)}, {s(sphi)}, {nph - 1}")
                e.op(f"s_lshr_b32 {s(S_T3)}, s2, 1")
                e.op(f"s_lshl1_add_u32 {s(S_T3)}, s2, {s(S_T3)}")
                e.op(f"s_and_b32 {s(S_T3)}, {s(S_T3)}, 3")
                e.op(f"s_mul_i32 {s(S_T3)}, {s(S_T3)}, {nph}")
                e.op(f"s_add_u32 {s(sphi)}, {s(sphi)}, {s(S_T3)}")
            for i, tb in enumerate(tabs):
                assert sorted(tb) == list(range(10))
                lo = sum(k << (4 * n) for n, k in enumerate(tb[:8])); hi = tb[8] | (tb[9] << 4)
                if i == 0:
                    e.op(f"s_mov_b32 {s(S_PILO)}, {hex(lo)}")
                    e.op(f"s_mov_b32 {s(S_PIHI)}, {hex(hi)}")
                else:
                    e.op(f"s_cmp_eq_u32 {s(sphi)}, {i}")
                    e.op(f"s_cselect_b32 {s(S_PILO)}, {hex(lo)}, {s(S_PILO)}")
                    e.op(f"s_cselect_b32 {s(S_PIHI)}, {hex(hi)}, {s(S_PIHI)}")
    def pi_off(self, dst, st, m):
        e = self.e
        mode = self.o("pi", 8)
        if mode == 1: e.op(f"s_mov_b32 {s(dst)}, {st * self.UNIT[m]}")
        elif mode == 2:
            A, B = self.PI_A[st] * self.UNIT[m], self.PI_B[st]
            e.op(f"s_{'add' if B > 0 else 'sub'}_u32 {s(dst)}, {A}, {s(S_PHI + 2 * m + abs(B) - 1)}")
        else:
            e.op(f"s_bfe_u32 {s(dst)}, {s(S_PILO if st < 8 else S_PIHI)}, {hex((4 << 16) | (4 * (st % 8)))}")
            e.op(f"s_mul_i32 {s(dst)}, {s(dst)}, {self.UNIT[m]}")

    def prologue(self):
        e = self.e
        L = v(V_LANE); T0, T1, T2, T3 = v(V_T0), v(V_T1), v(V_T2), v(V_T3)
        e.op("s_cmp_ge_u32 s2, 256")
        e.op("s_cbranch_scc1 L_end")
        self.stamp(0)
        for d, off in ((S_X, 0), (S_WA, 8), (S_WB, 32), (S_WS, 72), (S_OUT, 56), (S_DBG, 64)):
            e.op(f"s_load_dwordx2 {s(d,2)}, s[0:1], {off}")
        e.op(f"s_getpc_b64 {s(S_TAB,2)}")
        e.label("L_pc")
        e.op("s_cmp_lt_u32 s2, 240")
        e.op("s_cbranch_scc1 L_nopf")
        e.op(f"s_bfe_u32 {s(S_T0)}, s2, 0x10003")
        e.op(f"v_lshl_add_u32 {T0}, v0, 1, {s(S_T0)}")
        e.op(f"v_lshlrev_b32 {T0}, 7, {T0}")
        e.op(f"v_min_u32 {T0}, L_cold-L_pc, {T0}")
        e.op(f"global_load_dword {v(224)}, {T0}, {s(S_TAB,2)}")
        e.vm = []
        e.label("L_nopf")
        if self.stamps: e.op(f"v_mov_b32 {v(V_STAMP)}, 0")
        e.op(f"v_lshrrev_b32 {T0}, 6, v0")
        e.op(f"v_and_b32 {L}, 63, v0")
        e.op(f"v_readfirstlane_b32 {s(S_WAVE)}, {T0}")
        e.op(f"s_bfe_u32 {s(S_T0)}, s2, 0x20001")
        e.op(f"s_mul_i32 {s(S_T0)}, {s(S_T0)}, 30")
        e.op(f"s_lshr_b32 {s(S_T1)}, s2, 3")
        e.op(f"s_add_u32 {s(S_T0)}, {s(S_T0)}, {s(S_T1)}")
        e.op(f"s_lshr_b32 {s(S_CG)}, {s(S_T0)}, 3")
        e.op(f"s_and_b32 {s(S_T0)}, {s(S_T0)}, 7")
        e.op(f"s_and_b32 {s(S_T1)}, s2, 1")
        e.op(f"s_lshl3_add_u32 {s(S_T0)}, {s(S_T1)}, {s(S_T0)}")
        e.op(f"s_add_u32 {s(S_T5)}, {s(S_T0)}, {s(S_CG)}")
        self.pi_setup(S_T5, False)
        e.op(f"s_lshl2_add_u32 {s(S_T0)}, {s(S_T0)}, {s(S_WAVE)}")
        e.op(f"s_mul_i32 {s(S_T0)}, {s(S_T0)}, {32 * 1280}")
        e.op(f"s_lshl_b32 {s(S_T4)}, {s(S_CG)}, 8")
        e.op(f"s_movk_i32 {s(S_T2)}, 1280")
        e.op(f"s_movk_i32 {s(S_T3)}, {2 * (8 * 1280 - 1024)}")
        e.op(f"v_lshrrev_b32 {T1}, 4, {L}")
        e.op(f"v_and_b32 {T2}, 7, {L}")
        e.op(f"v_xor_b32 {T2}, {T2}, {T1}")
        e.op(f"v_lshl_add_u32 {T2}, {T2}, 4, {s(S_T0)}")
        e.op(f"v_lshrrev_b32 {T0}, 3, {L}")
        e.op(f"v_mad_u32_u24 {v(V_XD)}, {T0}, {s(S_T2)}, {T2}")
        e.op(f"v_xad_u32 {v(V_XD+2)}, {v(V_XD)}, 64, {s(S_T3)}")
        e.op(f"v_add_u32 {v(V_XD+1)}, {8 * 1280 - 1024}, {v(V_XD)}")
        e.op(f"v_add_u32 {v(V_XD+3)}, {8 * 1280 - 1024}, {v(V_XD+2)}")
        e.op(f"v_lshlrev_b32 {T2}, 2, {T1}")
        e.op(f"v_and_b32 {T3}, 15, {L}")
        e.op(f"v_xor_b32 {T2}, {T2}, {T3}")
        e.op(f"v_lshl_add_u32 {T2}, {T2}, 4, {s(S_T4)}")
        e.op(f"v_lshl_add_u32 {T1}, {s(S_WAVE)}, 4, {T1}")
        e.op(f"s_movk_i32 {s(S_T2)}, 3840")
        e.op(f"v_mad_u32_u24 {v(V_WD)}, {T1}, {s(S_T2)}, {T2}")
        e.op(f"s_movk_i32 {s(S_T3)}, {2 * (4 * 3840 - 1024)}")
        e.op(f"v_xad_u32 {v(V_WD+2)}, {v(V_WD)}, 16, {s(S_T3)}")
        for n in (1, 3): e.op(f"v_add_u32 {v(V_WD+n)}, {4 * 3840 - 1024}, {v(V_WD+n-1)}")
        e.op(f"s_lshl_b32 {s(S_WM0)}, {s(S_WAVE)}, 12")
        e.op(f"s_lshl2_add_u32 {s(S_XM0)}, {s(S_WM0)}, {L_X}")
        self.srd_tail(S_X, 2048 * 1280)
        self.srd_tail(S_WA, 640 * 3840)
        e.op(f"s_lshl2_add_u32 {s(S_T0)}, s2, {s(S_WAVE)}")
        e.op(f"s_mul_i32 {s(S_T0)}, {s(S_T0)}, 192")
        e.label("L_pc2")
        e.op(f"s_add_u32 {s(S_TAB)}, {s(S_TAB)}, wave_table@rel32@lo+(L_pc2+4-L_pc)")
        e.op(f"s_addc_u32 {s(S_TAB+1)}, {s(S_TAB+1)}, wave_table@rel32@hi+(L_pc2+12-L_pc)")
        e.op(f"s_add_u32 {s(S_TAB)}, {s(S_TAB)}, {s(S_T0)}")
        e.op(f"s_addc_u32 {s(S_TAB+1)}, {s(S_TAB+1)}, 0")
        e.wait(lg="all")
        self.flush_stamp()
        if not self.o("tlbw", 1): self.table_loads()
        e.op("s_cmp_ge_u32 s2, 240")
        e.op("s_cbranch_scc1 L_spare")
        self.spare_snap = e.snapshot()
        if self.o("tlbw", 1): self.table_loads()

    def table_loads(self):
        e = self.e
        e.op(f"s_load_dwordx2 {s(S_PWO,2)}, s[0:1], 16")
        e.op(f"s_load_dwordx4 {s(S_PW2,4)}, s[0:1], 40")
        e.op(f"s_load_dwordx16 {s(TA,16)}, {s(S_TAB,2)}, 0")
        e.op(f"s_load_dwordx16 {s(TA+16,16)}, {s(S_TAB,2)}, 64")
        e.op(f"s_load_dword {s(S_SPIN)}, {s(S_TAB,2)}, 128")

    def common_setup(self):
        e = self.e
        L = v(V_LANE)
        self.srd_tail(S_WB, 640 * 3456)
        self.srd_tail(S_WS, WS_SIZE)
        self.srd_tail(S_OUT, 2048 * 1280)
        self.srd_tail(S_DBG, 256)
        e.op(f"s_mov_b32 {s(S_MISC+3)}, 0x20000")
        e.op(f"v_lshlrev_b32 {v(V_L16)}, 4, {L}")
        e.op(f"v_mov_b32 {v(V_ZERO)}, 0")
        e.op(f"v_lshrrev_b32 {v(V_L16H)}, 5, {L}")
        e.op(f"v_lshl_add_u32 {v(V_L16H)}, {v(V_L16H)}, 26, {v(V_L16)}")
        e.op(f"s_mov_b32 {s(S_VM)}, 0xfffff")
        e.op(f"s_mov_b32 {s(S_VM+1)}, 0xfffff")
        e.op(f"s_mov_b32 {s(S_C1)}, 0x10000")
        e.op(f"s_mov_b32 {s(S_C2)}, 0x20000")

    def dma(self, st, m):
        e = self.e
        dm = S_T5 if st < 2 else S_DM
        if m == 0: srd, vd, k, base, lo = S_X, V_XD, st, S_XM0, (st % NX) * 4096
        elif st < 10: srd, vd, k, base, lo = S_WA, V_WD, st, S_WM0, L_W + (st % NW) * 16384
        else: srd, vd, k, base, lo, m = S_WB, V_WD2, self.xst(st), S_WM0, L_W + (st % NW) * 16384, 2
        def f(n):
            if n == 0:
                e.op(f"s_add_u32 m0, {s(base)}, {lo}")
                self.pi_off(dm, k, m)
            e.op(f"buffer_load_dwordx4 {v(vd+n)}, {s(srd,4)}, {s(dm)} offen offset:{n*1024} {'nt ' if (self.o('ntm', 0) >> m) & 1 else ''}lds", tag=("d", st))
        return [lambda n=n: f(n) for n in range(4)]
    def dmas(self, st): return (self.dma(st, 0) if st < 10 else []) + self.dma(st, 1)

    P2X = (0, 1, 2, 7, 8, 9, 3, 4, 5, 6)
    def xst(self, st):
        return st if st < 10 else self.P2X[st - 10]

    def stage1_tables(self):
        e = self.e
        L = v(V_LANE); T0, T1, T2, T3 = v(V_T0), v(V_T1), v(V_T2), v(V_T3)
        P0, P1 = v(V_POLL), v(V_POLL + 1)
        e.op(f"s_movk_i32 {s(S_T2)}, 3456")
        e.op(f"v_cmp_le_u32 vcc, 3456, {T2}")
        e.op(f"v_mad_u32_u24 {v(V_WD2)}, {T1}, {s(S_T2)}, {T2}")
        e.op(f"v_mov_b32 {T0}, 0x1000000")
        e.op(f"v_cndmask_b32 {v(V_WD2)}, {v(V_WD2)}, {T0}, vcc")
        e.op(f"s_movk_i32 {s(S_T3)}, {2 * (4 * 3456 - 1024)}")
        e.op(f"v_xad_u32 {v(V_WD2+2)}, {v(V_WD2)}, 16, {s(S_T3)}")
        for n in (1, 3): e.op(f"v_add_u32 {v(V_WD2+n)}, {4 * 3456 - 1024}, {v(V_WD2+n-1)}")
        e.op(f"v_and_b32 {P0}, 8, {L}")
        e.op(f"v_and_b32 {T0}, 15, {L}")
        e.op(f"v_add_u32 {P0}, {P0}, {T0}")
        e.op(f"v_lshrrev_b32 {P1}, 4, {L}")
        e.op(f"s_and_b32 {s(S_T0)}, {s(S_WAVE)}, 2")
        e.op(f"s_lshl_b32 {s(S_T0)}, {s(S_T0)}, 14")
        e.op(f"s_add_u32 {s(S_T0)}, {s(S_T0)}, {L_X}")
        e.op(f"v_bfe_u32 {T1}, {L}, 1, 3")
        e.op(f"v_xor_b32 {T1}, {T1}, {P1}")
        e.op(f"v_lshl_add_u32 {T1}, {T1}, 4, {s(S_T0)}")
        e.op(f"v_lshl_add_u32 {v(V_XR)}, {P0}, 7, {T1}")
        e.op(f"v_xor_b32 {v(V_XR+1)}, 64, {v(V_XR)}")
        e.op(f"s_and_b32 {s(S_T1)}, {s(S_WAVE)}, 1")
        e.op(f"s_lshl_b32 {s(S_T0)}, {s(S_T1)}, 3")
        e.op(f"v_and_b32 {T0}, 14, {L}")
        e.op(f"v_and_or_b32 {T0}, {P1}, 1, {T0}")
        e.op(f"v_xor_b32 {T0}, {s(S_T0)}, {T0}")
        e.op(f"v_and_b32 {T1}, 1, {L}")
        e.op(f"v_lshl_add_u32 {T0}, {T0}, 1, {T1}")
        e.op(f"v_bfe_u32 {T1}, {L}, 2, 2")
        e.op(f"v_lshl_add_u32 {T1}, {P1}, 3, {T1}")
        e.op(f"v_lshlrev_b32 {T1}, 8, {T1}")
        e.op(f"v_lshl_add_u32 {v(V_WR)}, {T0}, 3, {T1}")
        for j in range(1, 4): e.op(f"v_xor_b32 {v(V_WR+j)}, {(j >> 1) * 64 + (j & 1) * 16}, {v(V_WR)}")
        for j in range(4): e.op(f"v_add_u32 {v(V_WR+4+j)}, 0x10000, {v(V_WR+j)}")
        e.op(f"v_lshlrev_b32 {T0}, 4, {P0}")
        e.op(f"v_lshl_add_u32 {v(V_LH)}, {P1}, 9, {T0}")
        lv, ld = self.L("st1v"), self.L("st1d")
        e.op(f"s_cmp_ge_u32 {s(S_CG)}, 10")
        e.op(f"s_cbranch_scc1 {lv}")
        e.op(f"v_lshrrev_b32 {T0}, 5, {L}")
        e.op(f"v_mul_u32_u24 {T0}, {65536 - 1024}, {T0}")
        e.op(f"v_add_u32 {v(V_ST1)}, {T0}, {v(V_LH)}")
        for j in range(1, 4): e.op(f"v_add_u32 {v(V_ST1+j)}, {(j >> 1) * 131072 + (j & 1) * 128}, {v(V_ST1)}")
        e.op(f"s_branch {ld}")
        e.label(lv)
        e.op(f"s_lshl1_add_u32 {s(S_T1)}, {s(S_CG)}, {s(S_T1)}")
        e.op(f"s_lshl_b32 {s(S_T1)}, {s(S_T1)}, 6")
        e.op(f"s_sub_u32 {s(S_T1)}, {s(S_T1)}, 1280")
        e.op(f"v_add_u32 {T0}, {s(S_T1)}, {P0}")
        e.op(f"v_mul_u32_u24 {T2}, 640, {P1}")
        e.op(f"s_mov_b32 {s(S_T2)}, {64 * 2560 - 640}")
        for j in range(4):
            e.op(f"v_mul_u32_u24 {T3}, 1639, {T0}")
            e.op(f"v_lshrrev_b32 {T3}, 16, {T3}")
            e.op(f"v_lshl_add_u32 {T1}, {T0}, 4, {T2}")
            e.op(f"v_mad_u32_u24 {v(V_ST1+j)}, {T3}, {s(S_T2)}, {T1}")
            if j < 3: e.op(f"v_add_u32 {T0}, {24 if j & 1 else 8}, {T0}")
        e.label(ld)

    def late_lane_tables(self):
        e = self.e
        L = v(V_LANE); T0, T1, T2, T3 = v(V_T0), v(V_T1), v(V_T2), v(V_T3)
        e.op(f"v_and_b32 {T0}, 31, {L}")
        e.op(f"v_lshrrev_b32 {T1}, 5, {L}")
        e.op(f"v_lshlrev_b32 {v(V_R)}, 2, {T0}")
        e.op(f"s_lshl_b32 {s(S_T1)}, {s(S_WAVE)}, 10")
        e.op(f"s_add_u32 {s(S_T2)}, {s(S_T1)}, {L_K}")
        e.op(f"v_add_u32 {v(V_KA)}, {s(S_T2)}, {v(V_L16)}")
        e.op(f"s_mul_i32 {s(S_T1)}, {s(S_T1)}, 3")
        e.op(f"s_add_u32 {s(S_T1)}, {s(S_T1)}, {L_V}")
        e.op(f"v_lshl_add_u32 {T2}, {T1}, 7, {v(V_L16)}")
        e.op(f"v_add_u32 {v(V_VA)}, {s(S_T1)}, {T2}")
        e.op(f"v_lshlrev_b32 {T2}, 2, {T1}")
        e.op(f"v_sub_u32 {T2}, {T0}, {T2}")
        e.op(f"v_cvt_f32_i32 {T2}, {T2}")
        e.op(f"v_mov_b32 {T3}, {f32(2.0 ** 100)}")
        for rr in range(16):
            key = 8 * (rr >> 2) + (rr & 3)
            e.op(f"v_fmaak_f32 {v(CE + rr)}, {T2}, {T3}, {f32((0.5 - key) * 2.0 ** 100)}")
            e.op(f"v_min_f32 {v(CD + rr)}, 0, {v(CE + rr)}")
            e.op(f"v_min_f32 {v(CE + rr)}, -{v(CE + rr)}, 0")
        e.op(f"v_lshrrev_b32 {T1}, 4, {L}")
        e.op(f"v_lshl_add_u32 {v(V_HL)}, {T1}, 8, {v(V_L16)}")
    def late_table_use(self):
        e = self.e
        L = v(V_LANE); T0, T1, T2, T3 = v(V_T0), v(V_T1), v(V_T2), v(V_T3)
        for t in range(4): e.op(f"v_add_u32 {v(V_H + t)}, {s(S_HT + t)}, {v(V_HL)}")
        for k in range(3): e.op(f"v_add_u32 {v(V_KT + k)}, {s(S_KADJ + k)}, {v(V_L16)}")
        e.op(f"v_add_u32 {v(V_Q)}, {s(S_QOFF)}, {v(V_L16)}")
        e.op(f"v_lshl_add_u32 {v(V_R)}, {s(S_TQ)}, 8, {v(V_R)}")
        e.op(f"v_add_u32 {v(V_R)}, {WS_G}, {v(V_R)}")
        e.op(f"v_min_u32 {T0}, 15, {L}")
        e.op(f"v_lshl_add_u32 {v(V_FD)}, {T0}, 7, {s(S_PFD)}")
        e.op(f"v_lshrrev_b32 {T0}, 1, {L}")
        e.op(f"v_min_u32 {T0}, 3, {T0}")
        e.op(f"v_and_b32 {T1}, 1, {L}")
        e.op(f"v_lshl_add_u32 {T1}, {T1}, 3, {s(S_PFC)}")
        e.op(f"v_lshl_add_u32 {v(V_FC)}, {T0}, 7, {T1}")
        e.op(f"v_writelane_b32 {v(V_FC)}, {s(S_PFG)}, 63")
        e.op(f"s_lshr_b32 {s(S_T0)}, {s(S_BITS)}, 2")
        e.op(f"v_writelane_b32 {v(V_FC)}, {s(S_T0)}, 62")
        e.op(f"s_lshr_b32 {s(S_T0)}, {s(S_TQ)}, 2")
        e.op(f"s_sub_u32 {s(S_T0)}, {s(S_T0)}, 2")
        e.op(f"v_lshrrev_b32 {T0}, 4, {L}")
        e.op(f"v_min_u32 {T0}, 2, {T0}")
        e.op(f"v_add_u32 {T0}, {s(S_T0)}, {T0}")
        e.op(f"v_max_i32 {T0}, 0, {T0}")
        e.op(f"v_and_b32 {T1}, 3, {L}")
        e.op(f"v_lshl_add_u32 {T1}, {T1}, 3, {s(S_PFA)}")
        e.op(f"v_lshl_add_u32 {T0}, {T0}, 11, {T1}")
        e.op(f"v_bfe_u32 {T1}, {L}, 2, 1")
        e.op(f"v_mad_u32_u24 {T0}, {T1}, {s(S_ASTEP)}, {T0}")
        e.op(f"v_cmp_gt_u32 vcc, 48, {L}")
        e.op(f"v_bfe_u32 {T1}, {L}, 3, 1")
        e.op(f"v_add_u32 {T1}, 1, {T1}")
        e.op(f"v_mul_u32_u24 {T1}, 640, {T1}")
        e.op(f"v_cndmask_b32 {T1}, 0, {T1}, vcc")
        e.op(f"v_add_u32 {v(V_FA)}, {T0}, {T1}")
        e.op(f"s_and_b32 {s(S_PFD)}, s2, 7")
        e.op(f"s_lshl_b32 {s(S_PFD)}, {s(S_PFD)}, 7")
        e.op(f"s_add_u32 {s(S_PFD)}, {s(S_PFD)}, {FL_DD}")
        if self.o("dd", 0): e.op(f"v_mov_b32 {v(V_FD)}, {s(S_PFD)}")
        else: e.op(f"v_writelane_b32 {v(V_FA)}, {s(S_PFD)}, 63")

    def rt_tables(self, base):
        e = self.e
        L = v(V_LANE); T0, T1, T2, T3 = v(V_T0), v(V_T1), v(V_T2), v(V_T3)
        P0, P1 = v(V_POLL), v(V_POLL + 1)
        e.op(f"s_and_b32 {s(S_T0)}, {s(S_WAVE)}, 1")
        e.op(f"s_mul_i32 {s(S_T0)}, {s(S_T0)}, 160")
        e.op(f"v_add_u32 {T0}, {s(S_T0)}, {L}")
        for i in range(3):
            e.op(f"v_mul_u32_u24 {T1}, 820, {T0}")
            e.op(f"v_lshrrev_b32 {T1}, 16, {T1}")
            e.op(f"v_lshlrev_b32 {T1}, 2, {T1}")
            e.op(f"v_xor_b32 {T1}, {T0}, {T1}")
            e.op(f"v_lshlrev_b32 {v(RT_LD + i)}, 4, {T1}")
            if i < 2: e.op(f"v_add_u32 {T0}, 64, {T0}")
        e.op(f"v_lshrrev_b32 {T0}, 4, {L}")
        e.op(f"v_and_b32 {T1}, 3, {L}")
        e.op(f"v_bfe_u32 {P1}, {L}, 2, 2")
        e.op(f"v_lshlrev_b32 {T3}, 3, {P1}")
        e.op(f"v_mul_u32_u24 {P1}, 1280, {P1}")
        e.op(f"v_add_u32 {P1}, {base}, {P1}")
        e.op(f"s_lshl_b32 {s(S_T0)}, {s(S_WAVE)}, 5")
        e.op(f"v_and_b32 {P0}, 1, {T0}")
        e.op(f"v_lshl_add_u32 {T2}, {T1}, 1, {P0}")
        e.op(f"v_lshrrev_b32 {v(RT_D)}, 5, {L}")
        e.op(f"v_lshl_add_u32 {T2}, {v(RT_D)}, 3, {T2}")
        e.op(f"v_add_u32 {T2}, {s(S_T0)}, {T2}")
        for i in range(2):
            if i: e.op(f"v_add_u32 {T2}, 16, {T2}")
            e.op(f"v_xor_b32 {v(RT_D)}, {T2}, {T3}")
            e.op(f"v_lshl_add_u32 {v(RT_RD + i)}, {v(RT_D)}, 3, {P1}")
        e.op(f"v_lshl_add_u32 {T2}, {P0}, 2, {T1}")
        e.op(f"s_lshl3_add_u32 {s(S_T0)}, {s(S_WAVE)}, 0x80")
        e.op(f"v_add_u32 {T2}, {s(S_T0)}, {T2}")
        e.op(f"v_xor_b32 {T2}, {T2}, {T3}")
        e.op(f"v_lshl_add_u32 {v(RT_RD + 2)}, {T2}, 3, {P1}")
        e.op(f"v_mul_u32_u24 {T0}, {1024 - 256}, {T0}")
        e.op(f"v_add_u32 {v(RT_ST)}, {T0}, {v(V_L16)}")
        e.op(f"v_add_u32 {v(RT_ST + 1)}, {74 * 5120}, {v(RT_ST)}")
        e.op(f"s_mov_b32 {s(S_T0)}, {74 * 5120 - 256}")
        e.op(f"v_mad_u32_u24 {T0}, {P0}, {s(S_T0)}, {v(V_L16H)}")
        e.op(f"v_add_u32 {v(RT_ST + 2)}, 4096, {T0}")
    def rt_srd(self, reg=S_BITS, bit=1):
        e = self.e
        e.op(f"s_bitcmp1_b32 {s(reg)}, {bit}")
        e.op(f"s_cselect_b64 {s(S_MISC,2)}, {s(S_PWO,2)}, {s(S_PW2,2)}")
        e.op(f"s_mov_b32 {s(S_MISC+2)}, {640 * 1280}")
        e.op(f"s_cselect_b32 {s(S_MISC+2)}, {s(S_MISC+2)}, {1728 * 1280}")
    def rt_loads(self, base, src, sw):
        e = self.e
        for i in range(3):
            e.op(f"s_add_u32 m0, {s(sw)}, {base + i * 1024}")
            if i == 2: e.op("s_mov_b32 exec_hi, 0")
            e.op(f"buffer_load_dwordx4 {v(RT_LD + i)}, {s(S_MISC,4)}, {s(src)} offen {self.nt}lds", tag="rl")
            if i == 2: e.op("s_mov_b32 exec_hi, -1")
    def rt_reads(self, lo_=0, D=RT_D):
        return [lambda i=i, u=u: self.e.op(f"ds_read_b64_tr_b16 {v(D + 4 * i + 2 * u, 2)}, {v(RT_RD + i)} offset:{lo_ + u * 5120}", tag=("rt", i))
                for i in range(3) for u in range(2)]
    def rt_stores(self, D=RT_D, so=S_RTS):
        e = self.e
        def st(i):
            e.wait(lg=("rt", i))
            e.op(f"buffer_store_dwordx4 {v(D + 4 * i, 4)}, {v(RT_ST + i)}, {s(S_WS,4)}, {s(so)} offen sc1", tag="rs")
        return [lambda i=i: st(i) for i in range(3)]

    EARLY_W = (0, 1, 2, 3)
    def w_loads(self, n):
        e = self.e
        def f(j):
            dst = r(WR + 20 * (n % NWR) + 4 * j, 4)
            if n == 13:
                if j in (0, 4):
                    e.op(f"s_add_u32 {s(S_T2)}, {s(S_WT0)}, {n * 5120 - 2048 + (4096 if j else 0)}")
                    e.op(f"s_cmp_lt_u32 {s(S_WAVE)}, 2")
                    e.op(f"s_cselect_b32 {s(S_T2)}, {s(S_T2)}, {OOB}")
                e.op(f"buffer_load_dwordx4 {dst}, {v(V_L16)}, {s(S_WS,4)}, {s(S_T2)} offen offset:{(j & 3) * 1024} sc1", tag=("w", n, j))
                return
            if j == 0:
                base, off = (S_WT0, n * 5120) if n < 14 else (S_WT1, (n - 14) * 5120)
                if self.wv is None or self.wv[0] != base:
                    e.op(f"v_add_u32 {v(V_WV)}, {s(base)}, {v(V_L16)}")
                    self.wv = (base, 0)
                if off != self.wv[1]: e.op(f"v_add_u32 {v(V_WV)}, {off - self.wv[1]}, {v(V_WV)}")
                self.wv = (base, off)
            e.op(f"global_load_dwordx4 {dst}, {v(V_WV)}, {s(S_WS,2)} offset:{j * 1024 - 2048} sc1", tag=("w", n, j))
        return [lambda j=j: f(j) for j in range(5)]
    @property
    def LDS_W(self):
        return (14, 15, 16)[:self.o("nlds", 2)]
    def wl_dmas(self):
        e = self.e
        def f(i):
            if i == 0:
                e.op(f"s_mul_i32 {s(S_T4)}, {s(S_WAVE)}, 20480")
                e.op(f"s_lshl_b32 {s(S_T2)}, {s(S_WAVE)}, 3")
                e.op(f"s_lshr_b32 {s(S_T2)}, {hex(sum((54 + 5 * w - KS0[w]) << (8 * w) for w in range(4)))}, {s(S_T2)}")
                e.op(f"s_and_b32 {s(S_T2)}, {s(S_T2)}, 0xff")
                e.op(f"s_mul_i32 {s(S_T2)}, {s(S_T2)}, 5120")
                e.op(f"s_add_u32 {s(S_DM)}, {s(S_T2)}, {s(S_WT0)}")
            if i % 4 == 0:
                e.op(f"s_add_u32 m0, {s(S_T4)}, {L_W + i * 1024}")
                e.op(f"s_add_u32 {s(S_DM)}, {s(S_DM)}, {4096 if i else -2048}")
            e.op(f"buffer_load_dwordx4 {v(V_L16)}, {s(S_WS,4)}, {s(S_DM)} offen offset:{(i % 4) * 1024} sc1 lds", tag="wl")
        return [lambda i=i: f(i) for i in range(5 * len(self.LDS_W))]
    @property
    def TM(self): return self.o("tm", 3)
    def hreg(self, n, t):
        n0 = 19 - self.TM
        if n < n0: return HSLOT[n % NH] + 4 * t
        i = self.TM * t + (n - n0)
        return HSLOT[(n0 + i // 4) % NH] + 4 * (i % 4)
    def h_load(self, n, t):
        e = self.e
        dst = v(self.hreg(n, t), 4)
        if n >= 14:
            q = n - 14
            so = ("0", s(S_C1), s(S_C2))[q >> 1]
            e.op(f"buffer_load_dwordx4 {dst}, {v(V_O + t)}, {s(S_WS,4)}, {so} offen offset:{(q & 1) * 2048} sc1", tag=("h", n, t))
            return
        if t == 0 and n > 1:
            if n % 2 == 0: e.op(f"s_movk_i32 {s(S_HK)}, {n * 2048}")
            if n == 13:
                e.op(f"s_cmp_lt_u32 {s(S_WAVE)}, 2")
                e.op(f"s_cselect_b32 {s(S_HK)}, {s(S_HK)}, {OOB}")
            assert n % 2 == 0 or self.hk == n - 1
            self.hk = n
        assert n < 2 or self.hk == n
        e.op(f"buffer_load_dwordx4 {dst}, {v(V_H + t)}, {s(S_WS,4)}, {s(S_HK) if n > 1 else 0} offen offset:{(n & 1) * 2048} sc1", tag=("h", n, t))
    def kvq_loads(self):
        e = self.e
        so = ("0", s(S_C1), s(S_C2))
        def q(f): e.op(f"buffer_load_dwordx4 {v(VQ + 4 * f, 4)}, {v(V_Q)}, {s(S_WS,4)}, {so[f]} offen sc1", tag="q")
        def k(f, i):
            if f == 0 and i == 0: e.op(f"s_mul_i32 {s(S_T5)}, {s(S_WAVE)}, 3072")
            if i == 0: e.op(f"s_add_u32 m0, {s(S_T5)}, {L_K + f * 12288}")
            e.op(f"buffer_load_dwordx4 {v(V_KT + i)}, {s(S_WS,4)}, {so[f]} offen offset:{i * 1024} sc1 lds", tag="kd")
        def vv(i, n):
            if i == 0 and n == 0: e.op(f"s_mul_i32 {s(S_T5)}, {s(S_WAVE)}, 9216")
            if n == 0: e.op(f"s_add_u32 m0, {s(S_T5)}, {L_V + i * 3072}")
            e.op(f"buffer_load_dwordx4 {v(V_L16H if n == 2 else V_L16)}, {s(S_WS,4)}, {s(S_VOFF + i)} offen offset:{n * 1024} sc1 lds", tag="vd")
        return [lambda f=f: q(f) for f in range(3)] + [lambda f=f, i=i: k(f, i) for f in range(3) for i in range(3)] + \
               [lambda i=i, n=n: vv(i, n) for i in range(3) for n in range(3)]

    def frag(self, st, f):
        return ((f >> 1) & 1, (f >> 2) * 2 + (f & 1)) if st == 19 else (f >> 2, f & 3)
    def w_read(self, st, f, u):
        ks, j = self.frag(st, f)
        off = L_W + (st % NW) * 16384 + ks * 8192 + u * 1024
        ad = V_WR + j
        if off >= 65536: off -= 65536; ad += 4
        self.e.op(f"ds_read_b64_tr_b16 {v(V_FR + 4 * f + 2 * u, 2)}, {v(ad)} offset:{off}", tag=("w", st, f))
    def xreg(self, xs, ks, tt): return A_X + 32 * min(xs, NXR) + 16 * ks + 4 * tt
    def x_read(self, st, ks, tt):
        xs = self.xst(st)
        self.e.op(f"ds_read_b128 {r(self.xreg(xs, ks, tt), 4)}, {v(V_XR + ks)} offset:{(tt >> 1) * 16384 + (xs % NX) * 4096 + (tt & 1) * 1024}", tag=("x", st, ks, tt))
    def accreg(self, ps, tt, j, swap):
        b, p, G, q = tt >> 1, tt & 1, j >> 1, j & 1
        return ACC[ps] + 32 * G + (16 * q + 8 * b + 4 * p if swap else 16 * p + 8 * b + 4 * q)

    LEAD = 10
    def stage1_fill(self):
        e = self.e
        fill = {m: [] for m in range(-1, 640)}
        used = {m: 0 for m in range(-1, 640)}
        def at(m, f, n=1):
            fill[max(m, -1)].append(f); used[max(m, -1)] += n
        WG = (1, 5, 8, 11, 14, 18, 21, 24)
        XG = (2, 2, 3, 3, 12, 15, 16, 19)
        for st in range(20):
            b = 32 * st - self.LEAD
            def bar(st=st):
                assert ("d", st) in e.all_tags
                e.wait(vm=("d", st), lg="all")
                e.op("s_barrier")
            at(b, bar, 2)
            for f in range(8):
                for u in range(2): at(b + WG[f], lambda st=st, f=f, u=u: self.w_read(st, f, u))
                if st < 10 or self.xst(st) >= NXR:
                    at(b + XG[f], lambda st=st, f=f: self.x_read(st, f >> 2, f & 3))
            for g in (9, 13, 17, 25): used[max(b + g, -1)] += 1
        return fill, used

    def vm_schedule(self, fill, used, queues, m0, m1, thr):
        lag = 0
        for m in range(m0, m1):
            lag = max(0, lag - 16)
            heads = [q for q in queues if q and q[0][0] <= m]
            if not heads: continue
            q = min(heads, key=lambda q: q[0][1])
            if used[m] and q[0][1] + 3 > m: continue
            if q[0][1] <= m or lag <= thr:
                rel, dl, cost, f = q.pop(0)
                fill[m].append(f); used[m] += 2
                lag = min(lag, 3 * 72) + cost
        assert not any(queues), [len(q) for q in queues]
    def va_place(self, fill, used, ops, m0, m1):
        cap = 2
        while sum(max(0, cap - used[m]) for m in range(m0, m1)) < len(ops): cap += 1
        over = len(ops) - sum(max(0, cap - 1 - used[m]) for m in range(m0, m1)) if cap > 2 else len(ops)
        ops = list(ops)
        for m in range(m0, m1):
            n = max(0, cap - 1 - used[m]) if cap > 2 else 0
            ex = max(0, cap - used[m]) - n
            ex = min(ex, over); over -= ex
            for _ in range(n + ex):
                if ops: fill[m].append(ops.pop(0)); used[m] += 1
        assert not ops

    def p1_epilogue_ops(self):
        e = self.e
        groups = []
        for g in range(8):
            A = ACC[0] + 8 * g
            ops = [lambda A=A, q=q: e.op(f"v_mul_f32 {v(A+q)}, {s(S_SCALE)}, {v(A+q)}") for q in range(8)]
            ops += [lambda A=A, q=q: e.op(f"v_cvt_pk_bf16_f32 {v(A+q)}, {v(A+2*q)}, {v(A+2*q+1)}") for q in range(4)]
            ops.append(lambda A=A, g=g: e.op(f"buffer_store_dwordx4 {v(A,4)}, {v(V_ST1 + (g >> 1))}, {s(S_WS,4)}, {s(S_ST1B if g & 1 else S_ST1)} offen sc1", tag="st1"))
            groups.append(ops)
        return groups
    def p2_epilogue_ops(self):
        e = self.e
        groups = []
        for g in range(8):
            A = ACC[1] + 8 * g
            ops = [lambda A=A, q=q: e.op(f"v_cvt_pk_bf16_f32 {v(A+q)}, {v(A+2*q)}, {v(A+2*q+1)}") for q in range(4)]
            ops += [lambda A=A, q=q: e.op(f"v_pk_max_i16 {v(A+q)}, {v(A+q)}, 0") for q in range(4)]
            ops.append(lambda A=A, g=g: e.op(f"buffer_store_dwordx4 {v(A,4)}, {v(V_LH)}, {s(S_WS,4)}, {s(S_ST2B if g & 1 else S_ST2)} offen offset:{(g >> 2) * 2048 + ((g >> 1) & 1) * 128} sc1", tag="st2"))
            groups.append(ops)
        return groups

    def stage1_stream(self, fill, m0, m1, swap):
        e = self.e
        for m in range(m0, m1):
            st, i = divmod(m, 32)
            f, tt = i >> 2, i & 3
            ks, j = self.frag(st, f)
            if ("w", st, f) in e.lg or ("x", st, ks, tt) in e.lg:
                e.wait(lg=[("w", st, f), ("x", st, ks, 3)] + ([("w", st, f + 1)] if f in (2, 4) else []))
            acc = v(self.accreg(st // 10, tt, j, swap), 4)
            wf = v(V_FR + 4 * f, 4)
            xf = r(self.xreg(self.xst(st), ks, tt), 4)
            c = "0" if (st % 10 == 0 and ks == 0) else acc
            if swap: e.op(f"v_mfma_f32_16x16x32_bf16 {acc}, {xf}, {wf}, {c}")
            else: e.op(f"v_mfma_f32_16x16x32_bf16 {acc}, {wf}, {xf}, {c}")
            for fn in fill[m]: fn()

    def ones_init(self):
        e = self.e
        def first():
            e.op(f"s_mov_b32 {s(S_MASK)}, 0x11000000")
            e.op(f"s_mov_b32 {s(S_MASK+1)}, 0x11000000")
            e.op(f"v_mov_b32 {v(VF)}, 0x3f803f80")
        return [first, lambda: e.op(f"v_cndmask_b32 {v(VF)}, 0, {v(VF)}, {s(S_MASK,2)}")] + \
               [lambda i=i: e.op(f"v_mov_b32 {v(VF + i)}, {v(VF)}") for i in range(1, 8)]

    def stage1(self):
        e = self.e
        lead = self.LEAD
        nc, c0, ne = self.o("tnc", 0), self.o("tch0", 2), self.o("tne", 1)
        S_TX, S_TW = 98, 99
        def touch_setup():
            e.op(f"s_lshl2_add_u32 {s(S_T0)}, s2, {s(S_WAVE)}")
            nx, nw_ = -(-2048 // 960), 2 * nc
            e.op(f"v_min_u32 {v(30)}, {nx * nc - 1}, {v(V_LANE)}")
            e.op(f"v_mul_u32_u24 {v(31)}, {-(-65536 // nc)}, {v(30)}")
            e.op(f"v_lshrrev_b32 {v(31)}, 16, {v(31)}")
            e.op(f"v_mul_u32_u24 {v(31)}, {10 - nc}, {v(31)}")
            e.op(f"v_add_lshl_u32 {v(30)}, {v(30)}, {v(31)}, 7")
            e.op(f"s_mul_i32 {s(S_TX)}, {s(S_T0)}, {nx * 1280}")
            e.op(f"v_min_u32 {v(31)}, {nw_ - 1}, {v(V_LANE)}")
            e.op(f"v_lshlrev_b32 {v(31)}, 7, {v(31)}")
            e.op(f"s_mul_i32 {s(S_TW)}, {s(S_T0)}, {nw_ * 128}")
            e.op(f"s_add_u32 {s(S_TW)}, {s(S_TW)}, {c0 * 64 * 3840}")
        def touch(k):
            if k == 0: touch_setup()
            e.op(f"buffer_load_dword {v(28)}, {v(30)}, {s(S_X,4)}, {s(S_TX)} offen offset:{(c0 + k * nc) * 128}")
            if k: e.op(f"s_add_u32 {s(S_TW)}, {s(S_TW)}, {nc * 64 * 3840}")
            e.op(f"buffer_load_dword {v(29)}, {v(31)}, {s(S_WA,4)}, {s(S_TW)} offen")
        tpos = [self.o("tpos", 0) + k * self.o("tstep", 1) for k in range(ne)] if nc else []
        if -1 in tpos: touch(tpos.index(-1))
        for f in self.dmas(0): f()
        if 0 in tpos: touch(tpos.index(0))
        self.pi_setup(None, True)
        self.common_setup()
        self.stage1_tables()
        d1 = self.dmas(1)
        for f in d1[:4]: f()
        self.rt_tables(L_RT)
        lsu = self.o("lsu", 0)
        if not lsu: self.late_lane_tables()
        for f in d1[4:]: f()
        if 1 in tpos: touch(tpos.index(1))
        e.wait(lg="all")
        self.flush_stamp()
        rtp = self.o("rtpos", 1)
        def rt_go():
            e.op(f"s_mul_i32 {s(S_T5)}, {s(S_WAVE)}, 2560")
            self.rt_loads(L_RT, S_RTSRC, S_T5)
        self.rt_srd()
        if rtp == 1: rt_go()
        if not lsu: self.late_table_use()
        fill, used = self.stage1_fill()
        vfill = {m: [] for m in range(-1, 640)}
        G2 = lambda k, d: 2 * self.o(k, d)
        dq = []
        for st in range(2, 20):
            d = self.dmas(st)
            rel = 32 * (st - (2 if st < 10 else 4)) - lead + 1
            g0 = max(32 * (st - 2) - lead + 1, 0); g1 = 32 * (st - 1) - lead - 2
            dq += [(rel, g0 + i * (g1 - g0) // len(d), 72, f) for i, f in enumerate(d)]
            if st == rtp: dq.append((rel, g1 - 1, 180, rt_go))
            if st in tpos: dq.append((rel, g1 - 1, 40, lambda k=tpos.index(st): touch(k)))
        pA, cA = G2("pollA", 260), G2("chkA", 279)
        assert cA > 32 * 16 - lead
        kv = self.kvq_loads()
        dq += [(cA + 1, cA + 1 + i * (634 - cA) // len(kv), 72, f) for i, f in enumerate(kv)]
        rs0 = G2("rs0", 16 * rtp + 30)
        rr0 = 32 * (rtp + 2) - lead - 6 if rs0 >= 32 * (rtp + 2) - lead else 32 * (rtp + 1) - lead + 4
        assert rs0 > rr0 + 4
        for i, f in enumerate(self.rt_reads()):
            fill[rr0 + i // 2].append(f); used[rr0 + i // 2] += 1
        sq = [(rs0 + 12 * i, rs0 + 12 * i, 128, f) for i, f in enumerate(self.rt_stores())]
        sq.append((rs0 + 28, rs0 + 28, 20, self.nonce_issue))
        pd = (rs0 + 28 + 48 + lead + 31) // 32 * 32 - lead
        fill[pd].insert(0, self.nonce_check)
        sq.append((pd + 1, pd + 1, 20, lambda: self.publish(S_RTF)))
        sp, e0 = G2("epi", 4), 321
        epi1 = self.p1_epilogue_ops()
        for g, ops in enumerate(epi1): sq.append((e0 + sp * (g + 1), e0 + sp * (g + 1), self.o("stc", 160), ops[-1]))
        def pub_a():
            e.wait(vm="st1")
            self.publish(S_FLA)
        pD, cD = G2("pollD", 222), G2("chkD", 240)
        assert cD >= 32 * 13
        sq += sorted([(pD, pD, 20, lambda: self.poll_issue(V_FD)), (G2("pubA", 216), G2("pubA", 216), 20, pub_a)], key=lambda x: x[0])
        vfill[cD].append(lambda: self.poll_check(V_FD, 1)); used[cD] += 3
        sq.append((pA, pA, 30, lambda: self.poll_issue(V_FA)))
        if self.o("pollA2", 0): sq.append((G2("pollA2", 0), G2("pollA2", 0), 30, lambda: self.poll_again(V_FA)))
        vfill[cA].append(lambda: self.poll_check(V_FA, 0)); used[cA] += 3
        vfill[cA].append(lambda: self.stamp(3))
        ew = sum([self.w_loads(n) for n in self.EARLY_W], [])
        wq = [(cD + 1, cA - 4 * (len(ew) - i), 72, f) for i, f in enumerate(ew)]
        self.vm_schedule(fill, used, [dq, sq, wq], 0, 640, self.o("thr", 40))
        if lsu: self.va_place(vfill, used, self.capture(self.late_lane_tables, self.late_table_use), self.o("lsu0", 0) * 32, 32 * lsu)
        for g, ops in enumerate(epi1): self.va_place(vfill, used, ops[:-1], e0 + sp * g, e0 + sp * (g + 1))
        self.va_place(vfill, used, self.ones_init(), e0 + sp * 8 + 8, e0 + sp * 8 + 40)
        epi2 = self.p2_epilogue_ops()
        self.p2_stores_left = [g[-1] for g in epi2]
        va = sum([g[:-1] for g in epi2], [])
        nh = self.o("p2h", 24)
        self.va_place(vfill, used, va[:nh], 626, 640)
        self.p2_valu_left = va[nh:]
        z = self.o("zoom", 0)
        if z in (1, 2):
            for k in range(11):
                m = min(320 * (z - 1) + 32 * k - 1, 639 if z == 2 else 318)
                if z == 2 and k == 0: m = 320
                vfill[m].append(lambda k=k: self.stamp(1 + k, True))
            vfill[319].append(self.flush_stamp)
        for m in fill: fill[m] += vfill[m]
        for fn in fill[-1]: fn()
        if z == 1: self.flush_stamp()
        self.stamp(1)
        e.op(f"s_cmp_ge_u32 {s(S_CG)}, 10")
        e.op("s_cbranch_scc1 L_p1v")
        snap = e.snapshot()
        self.stage1_stream(fill, 0, 320, False)
        e.op("s_branch L_p2")
        after = e.snapshot()
        e.restore(snap)
        e.label("L_p1v")
        self.stage1_stream(fill, 0, 320, True)
        e.op(f"s_cmp_eq_u32 {s(S_CG)}, 14")
        e.op("s_cbranch_scc1 L_gate")
        self.gate_snap = e.snapshot()
        assert after[0] == e.vm and after[1] == e.lg
        e.label("L_p2")
        self.stamp(2)
        self.wv = None
        self.stage1_stream(fill, 320, 640, False)
        self.flush_stamp()

    def side_tail(self, early=True):
        e = self.e
        if early:
            self.poll_issue(V_FD)
            for f in self.ones_init(): f()
            self.poll_check(V_FD, 1)
            self.wv = None
            ew = sum([self.w_loads(n) for n in self.EARLY_W], [])
            for f in ew[:12]: f()
            self.poll_issue(V_FA)
            for f in ew[12:]: f()
        self.poll_check(V_FA, 0)
        for f in self.kvq_loads(): f()
        e.wait(lg="all")
        n = len(self.att_vm)
        assert e.vm[-21:] == self.att_vm[-21:] and all(t[0] == "w" or t == "poll2" for t in self.att_vm[:-21])
        e.op("s_branch L_att")

    def gate(self):
        e = self.e
        T1, T2, T3 = v(V_T1), v(V_T2), v(V_T3)
        e.restore(self.gate_snap)
        e.label("L_gate")
        e.op(f"s_mov_b64 {s(S_MISC,2)}, {s(S_PG,2)}")
        e.op(f"s_movk_i32 {s(S_MISC+2)}, 1280")
        e.op(f"s_lshr_b32 {s(S_T3)}, {s(S_WM0)}, 1")
        e.op(f"s_add_u32 {s(S_T3)}, {s(S_T3)}, {L_V + 12 * 3072}")
        e.op(f"s_mov_b32 m0, {s(S_T3)}")
        e.op(f"v_lshrrev_b32 {T1}, 4, {v(V_LANE)}")
        for n in range(2):
            e.op(f"buffer_load_dwordx4 {v(V_L16)}, {s(S_MISC,4)}, 0 offen offset:{n * 1024} lds", tag="gw")
        e.op(f"v_lshl_add_u32 {T2}, {s(S_WAVE)}, 6, {v(V_LANE)}")
        e.op(f"v_min_u32 {T2}, 239, {T2}")
        e.op(f"v_lshlrev_b32 {T2}, 7, {T2}")
        e.op(f"v_add_u32 {v(225)}, {FL_D}, {T2}")
        self.poll_issue(225)
        e.op(f"v_lshl_add_u32 {T1}, {T1}, 4, {s(S_T3)}")
        e.wait(lg="all")
        for g in self.p1_epilogue_ops():
            for f in g: f()
        self.poll_check(225, 4)
        e.op("s_barrier")
        e.op(f"s_bfe_u32 {s(S_T1)}, {s(S_TB1)}, 0x30002")
        e.op(f"s_lshl_b32 {s(S_T1)}, {s(S_T1)}, 7")
        e.op(f"s_add_u32 {s(S_T1)}, {s(S_T1)}, {FL_DD}")
        e.op(f"s_cmp_eq_u32 {s(S_WAVE)}, 0")
        e.op(f"s_cselect_b32 {s(S_T1)}, {s(S_T1)}, {OOB}")
        self.publish(S_T1)
        self.wv = None
        ew = sum([self.w_loads(n) for n in self.EARLY_W], [])
        e.wait(vm="gw")
        G = 32
        order = [9, 0, 1, 2, 8, 3, 4, 7, 5, 6]
        def gread(k):
            if k % 2 == 0:
                self.pi_off(S_T4, order[k // 2], 0)
                e.op(f"v_add_u32 {T2}, {s(S_T4)}, {T1}")
            e.op(f"ds_read_b128 {v(G + 4 * (k % 4), 4)}, {T2} offset:{64 * (k % 2)}", tag=("g", k))
        for k in range(4): gread(k)
        for k in range(20):
            xs, ks = order[k // 2], k % 2
            e.wait(lg=[("g", k), ("x", xs, ks, 3)])
            for tt in range(4):
                e.op(f"v_mfma_f32_16x16x32_bf16 {v(48 + 4 * tt, 4)}, {v(G + 4 * (k % 4), 4)}, {r(self.xreg(xs, ks, tt), 4)}, {'0' if k == 0 else v(48 + 4 * tt, 4)}")
                if k in (2, 3, 10, 11): self.x_read(8 if k < 8 else 7, ks, tt)
            if k + 4 < 20: gread(k + 4)
            if k == 8:
                e.wait(vm="st1")
                self.publish(S_FLA)
            if k > 8: ew.pop(0)()
        e.op("s_barrier")
        for f in self.ones_init(): f()
        e.op(f"s_bitcmp1_b32 {s(S_WAVE)}, 0")
        e.op(f"s_cselect_b64 {s(S_MASK,2)}, -1, 0")
        e.op("s_mov_b32 vcc_lo, 0xffff0000")
        e.op("s_mov_b32 vcc_hi, 0xffff0000")
        e.op(f"v_cndmask_b32 v0, v48, v56, {s(S_MASK,2)}")
        e.op(f"v_cndmask_b32 v4, v52, v60, {s(S_MASK,2)}")
        e.op("v_cndmask_b32 v0, v0, v4, vcc")
        e.op(f"v_min_f32 {T1}, {f32(30.0)}, v0")
        e.op(f"v_mul_f32 {T1}, {f32(LOG2E)}, {T1}")
        e.op(f"v_exp_f32 {T1}, {T1}")
        e.op(f"v_add_f32 {T2}, 1.0, {T1}")
        e.op(f"v_rcp_f32 {T2}, {T2}")
        e.op(f"v_cmp_gt_u32 vcc, 32, {v(V_LANE)}")
        e.op(f"v_and_b32 {T3}, 39, {v(V_LANE)}")
        e.op(f"v_bfe_u32 v1, {v(V_LANE)}, 3, 1")
        e.op(f"v_lshl_add_u32 {T3}, v1, 4, {T3}")
        e.op(f"v_bfe_u32 v1, {v(V_LANE)}, 4, 1")
        e.op(f"v_lshl_add_u32 {T3}, v1, 3, {T3}")
        e.op(f"v_lshlrev_b32 {T3}, 2, {T3}")
        e.op(f"s_lshl_b32 {s(S_T1)}, {s(S_TB1)}, 8")
        e.op(f"s_add_u32 {s(S_T1)}, {s(S_T1)}, {WS_G}")
        e.op(f"v_cndmask_b32 {T1}, {T2}, {T1}, vcc")
        e.op(f"buffer_store_dword {T1}, {T3}, {s(S_WS,4)}, {s(S_T1)} offen sc1", tag="gs")
        e.op(f"v_min_u32 {T2}, 15, {v(V_LANE)}")
        e.op(f"v_lshlrev_b32 {T2}, 7, {T2}")
        e.op(f"v_add_u32 {v(225)}, {FL_D + 240 * 128}, {T2}")
        self.poll_issue(225)
        for f in ew: f()
        self.poll_check(225, 4)
        self.poll_issue(V_FA)
        self.publish(S_FLA, 32)
        self.side_tail(False)

    def spare(self):
        e = self.e
        e.restore(self.spare_snap)
        e.label("L_spare")
        L = v(V_LANE); T0, T1, T2, T3 = v(V_T0), v(V_T1), v(V_T2), v(V_T3)
        if self.o("tlbw", 1):
            e.op(f"s_lshl_b32 {s(S_T0)}, {s(S_WAVE)}, 3")
            e.op(f"s_lshr_b32 {s(S_T0)}, {hex(32 | (40 << 8) | (16 << 16) | (48 << 24))}, {s(S_T0)}")
            e.op(f"s_and_b32 {s(S_T0)}, {s(S_T0)}, 0xff")
            e.op(f"s_load_dwordx2 {s(S_MISC,2)}, s[0:1], {s(S_T0)}")
            e.op(f"s_mov_b32 {s(S_MISC+2)}, {640 * 3456}")
            e.op(f"s_cmp_eq_u32 {s(S_WAVE)}, 2")
            e.op(f"s_cselect_b32 {s(S_MISC+2)}, {640 * 1280}, {s(S_MISC+2)}")
            e.op(f"s_cmp_eq_u32 {s(S_WAVE)}, 3")
            e.op(f"s_cselect_b32 {s(S_MISC+2)}, 1280, {s(S_MISC+2)}")
            e.op(f"s_mov_b32 {s(S_MISC+3)}, 0x20000")
            e.op(f"s_cselect_b32 {s(S_T0)}, 7, 16")
            e.op(f"v_lshlrev_b32 {T0}, {s(S_T0)}, {L}")
            e.wait(lg="all")
            e.op(f"buffer_load_dword {v(224)}, {T0}, {s(S_MISC,4)}, 0 offen")
            self.table_loads()
        self.common_setup()
        e.op(f"v_mov_b32 {v(V_LH)}, 0")
        e.op(f"s_memrealtime {s(S_NONCE,2)}")
        self.rt_tables(0)
        e.op(f"s_sub_u32 {s(S_T1)}, s2, 240")
        e.op(f"s_lshl2_add_u32 {s(S_T1)}, {s(S_T1)}, {s(S_WAVE)}")
        e.op(f"s_lshl_b32 {s(S_T2)}, {s(S_T1)}, 13")
        e.op(f"v_lshl_add_u32 {v(225)}, {L}, 7, {s(S_T2)}")
        def touch(m):
            m = m + self.o("tb4", 1) if m >= 0 else -1 - m
            if self.o("pf2", 1) and m < 5:
                e.op(f"s_mov_b32 {s(S_T2)}, {m * 4096 * 128}")
                e.op(f"buffer_load_dword {v(224)}, {v(225)}, {s(S_WB,4)}, {s(S_T2)} offen")
        for c in range(10 - 2 * self.o("pf1", 0), 10, 2):
            e.op(f"v_lshrrev_b32 {T2}, 8, {v(225)}")
            e.op(f"v_lshl_add_u32 {T2}, {T2}, 10, {v(225)}")
            e.op(f"buffer_load_dword {v(224)}, {T2}, {s(S_X,4)}, 0 offen offset:{c * 128}")
            e.op(f"v_min_u32 {T2}, {3839 * 128}, {v(225)}")
            e.op(f"s_mov_b32 {s(S_T2)}, {c * 64 * 3840}")
            e.op(f"buffer_load_dword {v(224)}, {T2}, {s(S_WA,4)}, {s(S_T2)} offen")
        for m in range(self.o("tb4", 1)): touch(-1 - m)
        e.wait(lg="all")
        self.flush_stamp()
        e.op(f"s_or_b32 {s(S_T2)}, {s(S_NONCE)}, 1")
        e.op(f"v_mov_b32 {v(V_NONCE)}, {s(S_T2)}")
        e.op(f"v_mov_b32 {v(V_NONCE+1)}, {s(S_NONCE+1)}")
        e.op(f"s_cmp_lg_u32 {s(S_T1)}, 0")
        e.op("s_cbranch_scc1 L_nononce")
        e.op("s_mov_b64 exec, 1")
        e.op(f"buffer_store_dwordx2 {v(V_NONCE,2)}, {v(V_ZERO)}, {s(S_DBG,4)}, 0 offen sc1")
        e.op("s_mov_b64 exec, -1")
        e.label("L_nononce")
        e.op(f"s_mul_i32 {s(S_T0)}, {s(S_WAVE)}, 2560")
        for m, src in enumerate((S_RTSRC, S_ST1, S_ST1B, S_SCALE)):
            self.rt_srd(S_TB1, m)
            self.rt_loads(m * 10240, src, S_T0)
        touch(0)
        self.late_lane_tables()
        self.late_table_use()
        e.wait(vm="rl")
        e.op("s_barrier")
        self.stamp(1)
        touch(1)
        for m, so in enumerate((S_RTS, S_ST2, S_ST2B, S_FLA)):
            for f in self.rt_reads(m * 10240, 96 + 12 * m) + self.rt_stores(96 + 12 * m, so): f()
        for so in (S_ST2, S_ST2B, S_FLA): e.op(f"s_mov_b32 {s(so)}, {OOB}")
        self.nonce_issue()
        touch(2)
        self.nonce_check()
        e.op("s_barrier")
        self.publish(S_RTF)
        self.stamp(3)
        touch(3)
        touch(4)
        self.stamp(2)
        self.flush_stamp()
        self.side_tail()

    def k_reads(self, u):
        h, j = divmod(u, 9)
        for ff in range(2):
            self.e.op(f"ds_read_b128 {v(KF + 4 * ff, 4)}, {v(V_KA)} offset:{(h + ff) * 12288 + j * 1024}", tag="k")
    def v_reads(self, u):
        h, j = divmod(u, 9)
        e = self.e
        e.op(f"s_mov_b64 exec, {s(S_VM,2)}")
        for ss in range(2):
            e.op(f"ds_read_b128 {v(VF + 4 * ss, 4)}, {v(V_VA)} offset:{j * 3072 + ss * 1280 + h * 320}", tag="v")
        e.op("s_mov_b64 exec, -1")
    def qk(self, u, part, S, lo=False):
        h, j = divmod(u, 9)
        c = v(S, 16) if part else v(CD, 16) if j == 8 else v(CE, 16) if (j == 0 or lo) else "0"
        self.e.op(f"v_mfma_f32_32x32x16_bf16 {v(S,16)}, {v(KF + 4 * part, 4)}, {v(QM + 8 * h + 4 * part, 4)}, {c}")
    def pv(self, u, part, S, first):
        O = v(OO[u // 9], 16)
        self.e.op(f"v_mfma_f32_32x32x16_bf16 {O}, {v(VF + 4 * part, 4)}, {v(S + 4 * part, 4)}, {'0' if first else O}")

    def q_mask(self):
        e = self.e
        lo, dn = self.L("qodd"), self.L("qdone")
        e.op(f"s_mov_b32 {s(S_MASK)}, -1")
        e.op(f"s_mov_b32 {s(S_MASK+1)}, 0")
        e.op(f"s_bitcmp1_b32 {s(S_BITS)}, 0")
        e.wait(vm="q")
        e.op(f"s_cbranch_scc1 {lo}")
        for par in range(2):
            if par: e.label(lo)
            for h in range(2):
                for ff in range(2):
                    for slot in range(2):
                        p0 = 4 * (h + ff) + 2 * slot - 2 * par - 5 * h
                        k0, k1 = 0 <= p0 < 5, 0 <= p0 + 1 < 5
                        for d in range(2):
                            dst, src = v(QM + 8 * h + 4 * ff + 2 * slot + d), v(VQ + 4 * (h + ff) + 2 * slot + d)
                            if k0 and k1: e.op(f"v_mov_b32 {dst}, {src}")
                            elif k0: e.op(f"v_cndmask_b32 {dst}, 0, {src}, {s(S_MASK,2)}")
                            elif k1: e.op(f"v_cndmask_b32 {dst}, {src}, 0, {s(S_MASK,2)}")
                            else: e.op(f"v_mov_b32 {dst}, 0")
            if not par: e.op(f"s_branch {dn}")
        e.label(dn)

    def attention(self):
        e = self.e
        e.label("L_att")
        self.att_vm = list(e.vm)
        self.stamp(4)
        T0 = v(V_T0)
        stores = list(self.p2_stores_left)
        self.q_mask()
        e.wait(vm="kd")
        e.op("s_barrier")
        self.k_reads(0)
        for f in self.p2_valu_left: f()
        for _ in range(self.o("ns1", 1)): stores.pop(0)()
        self.stamp(5)
        side = {(u, k): [] for u in range(18) for k in range(4)}
        wl = sum([self.w_loads(n) for n in range(NWR) if n not in self.EARLY_W], []) + self.wl_dmas()
        slots = [(u, k) for u in range(18) for k in range(4)]
        sst = self.o("sst", 1)
        for i, f in enumerate(stores): side[slots[sst * i]].append(f)
        def pub_c():
            e.wait(vm="st2")
            self.publish(S_FLA, 32)
        pubC, pC, cC = self.o("pubC", 20), self.o("pollC", 50), self.o("chkC", 61)
        side[slots[pubC]].append(pub_c)
        side[slots[pC]].append(lambda: self.poll_issue(V_FC))
        if self.o("pollC2", 0): side[slots[self.o("pollC2", 0)]].append(lambda: self.poll_again(V_FC))
        def chk_c():
            self.poll_check(V_FC, 2); self.stamp(6)
            e.op(f"buffer_load_dword {v(V_R)}, {v(V_R)}, {s(S_WS,4)}, 0 offen sc1", tag="r")
        hl = [(n, t) for n in range(5) for t in range(4)]
        taken = {pubC, pC, cC} | {sst * i for i in range(len(stores))}
        skip = self.o("wskip", 0)
        acc, rate = 0, self.o("wrate", 16)
        for i, x in enumerate(slots):
            if i == cC: side[x].append(chk_c)
            if i in taken: continue
            skip -= 1
            if skip >= 0: continue
            acc += rate
            if acc < 16: continue
            acc -= 16
            if wl: side[x].append(wl.pop(0))
            elif i > cC and hl:
                n, t = hl.pop(0)
                side[x].append(lambda n=n, t=t: self.h_load(n, t))
        assert not wl
        self.h_left = hl
        def fill_ce(val):
            for i in range(16): e.op(f"v_mov_b32 {v(CE + i)}, {val}")
        def steps(lo):
            def open_at(jn):
                st, bk = self.L("open"), self.L("open_ok")
                e.op(f"s_cmp_eq_u32 {s(S_TQ)}, {8 - jn}")
                e.op(f"s_cbranch_scc1 {st}")
                e.label(bk)
                def stub():
                    e.label(st, reset=True)
                    e.op("s_nop 7")
                    fill_ce(0)
                    e.op("s_nop 0")
                    e.op(f"s_branch {bk}")
                self.stubs.append(stub)
            if lo: fill_ce(hex(NEGBIG))
            e.wait(lg="k")
            self.qk(0, 0, SB[0], lo); self.qk(0, 1, SB[0], lo)
            self.k_reads(1)
            if lo: open_at(1)
            for u in range(18):
                if self.o("zoom", 0) == 3 and u % 2 == 0: self.stamp(1 + u // 2, True)
                S, Sn, Sp = SB[u % 3], SB[(u + 1) % 3], SB[(u - 1) % 3]
                ex = lambda i: e.op(f"v_exp_f32 {v(S + i)}, {v(S + i)}")
                cv = lambda i: e.op(f"v_cvt_pk_bf16_f32 {v(S + i)}, {v(S + 2 * i)}, {v(S + 2 * i + 1)}")
                if u < 17:
                    e.wait(lg="k")
                    self.qk(u + 1, 0, Sn, lo)
                for f in side[(u, 0)]: f()
                for i in range(0, 4): ex(i)
                if u < 17: self.qk(u + 1, 1, Sn, lo)
                e.wait(lg="v")
                if u < 16: self.k_reads(u + 2)
                for f in side[(u, 1)]: f()
                for i in range(4, 8): ex(i)
                cv(0); cv(1)
                if u > 0: self.pv(u - 1, 0, Sp, (u - 1) % 9 == 0)
                if lo and u + 2 == 9: fill_ce(hex(NEGBIG))
                if lo and u + 2 < 18 and 1 <= (u + 2) % 9 <= 7: open_at((u + 2) % 9)
                for f in side[(u, 2)]: f()
                for i in range(8, 12): ex(i)
                cv(2); cv(3)
                if u > 0:
                    self.pv(u - 1, 1, Sp, False)
                    self.v_reads(u)
                for f in side[(u, 3)]: f()
                for i in range(12, 16): ex(i)
                for i in range(4, 8): cv(i)
                if u == 0:
                    e.wait(vm="vd")
                    e.op("s_barrier")
                    self.v_reads(0)
            e.wait(lg="v")
            self.pv(17, 0, SB[17 % 3], False); self.pv(17, 1, SB[17 % 3], False)
            self.flush_stamp()
        self.flush_stamp()
        e.op(f"s_cmp_lt_u32 {s(S_TQ)}, 8")
        e.op("s_cbranch_scc1 L_att_lo")
        snap0, wv0 = e.snapshot(), self.wv
        steps(False)
        snap1 = e.snapshot()
        def att_lo():
            e.restore(snap0); self.wv = wv0
            e.label("L_att_lo")
            steps(True)
            assert e.vm == snap1[0] and e.lg == snap1[1]
            e.op("s_branch L_att_join")
        self.att_lo = att_lo
        e.label("L_att_join")
        self.stamp(7)
        for h in range(2):
            O = OO[h]
            st, bk = self.L("slow"), self.L("slow_ok")
            e.op(f"v_subrev_u32 {T0}, 0x2f800000, {v(O + 12)}")
            e.op(f"v_cmp_le_u32 vcc, 0x20000000, {T0}")
            if self.o("forceslow", 0): e.op("s_mov_b64 vcc, -1")
            for _ in range(2 - h):
                if self.h_left:
                    n, t = self.h_left.pop(0); self.h_load(n, t)
            e.op(f"s_cbranch_vccnz {st}")
            e.label(bk)
            self.cold.append(lambda st=st, bk=bk, h=h: self.slow_head(h, st, bk))
        OP = 0
        ep = []
        A = lambda t, tag=None: ep.append(lambda: e.op(t, tag=tag))
        for h in range(2): A(f"v_rcp_f32 {v(V_T2 + h)}, {v(OO[h] + 12)}")
        ep.append(lambda: e.wait(vm="r"))
        for h in range(2): A(f"v_mul_f32 {v(V_T2 + h)}, {v(V_T2 + h)}, {v(V_R)}")
        for h in range(2):
            O = OO[h]
            for i in range(8): A(f"v_mul_f32 {v(O + i)}, {v(O + i)}, {v(V_T2 + h)}")
            for i in range(4): A(f"v_cvt_pk_bf16_f32 {v(OP + 4 * h + i)}, {v(O + 2 * i)}, {v(O + 2 * i + 1)}")
            A(f"buffer_store_dwordx4 {v(OP + 4 * h, 4)}, {v(V_L16)}, {s(S_WS,4)}, {s(S_OST)} offen offset:{h * 1024} sc1", "sto")
        for h in range(2):
            O = OO[h]
            for i in range(8, 12): A(f"v_mul_f32 {v(O + i)}, {v(O + i)}, {v(V_T2 + h)}")
            for i in range(2): A(f"v_cvt_pk_bf16_f32 {v(OP + 8 + 2 * h + i)}, {v(O + 8 + 2 * i)}, {v(O + 9 + 2 * i)}")
        A(f"buffer_store_dwordx4 {v(OP + 8, 4)}, {v(V_L16H)}, {s(S_WS,4)}, {s(S_OST2)} offen sc1", "sto")
        self.o_epilogue = ep

    def slow_head(self, h, st, bk):
        e = self.e
        e.label(st, reset=True)
        e.vm, e.lg = [], []
        T0, MX = v(V_T0), v(V_T1)
        O, S = OO[h], SB[0]
        e.op("s_nop 15")
        e.op(f"v_mov_b32 {MX}, {hex(NEGBIG)}")
        for i in range(16): e.op(f"v_mov_b32 {v(O + i)}, 0")
        for ps in range(2):
            for j in range(9):
                u = 9 * h + j
                sk = self.L("sk")
                if j < 8:
                    e.op(f"s_cmp_lt_u32 {s(S_TQ)}, {8 - j}")
                    e.op(f"s_cbranch_scc1 {sk}")
                if ps: self.v_reads(u)
                self.k_reads(u)
                e.wait(lg="all")
                self.qk(u, 0, S); self.qk(u, 1, S)
                if ps == 0:
                    for i in range(8): e.op(f"v_max3_f32 {MX}, {MX}, {v(S + 2 * i)}, {v(S + 2 * i + 1)}")
                else:
                    for i in range(16): e.op(f"v_sub_f32 {v(S + i)}, {v(S + i)}, {MX}")
                    for i in range(16): e.op(f"v_exp_f32 {v(S + i)}, {v(S + i)}")
                    for i in range(8): e.op(f"v_cvt_pk_bf16_f32 {v(S + i)}, {v(S + 2 * i)}, {v(S + 2 * i + 1)}")
                    self.pv(u, 0, S, False); self.pv(u, 1, S, False)
                    e.op("s_nop 7")
                e.label(sk)
            if ps == 0:
                e.op(f"v_mov_b32 {T0}, {MX}")
                e.op(f"v_permlane32_swap_b32 {T0}, {MX}")
                e.op("s_nop 1")
                e.op(f"v_max_f32 {MX}, {T0}, {MX}")
        e.op("s_nop 15")
        e.op(f"s_branch {bk}")

    def stage3(self):
        e = self.e
        L = v(V_LANE); T0, T1, T2, T3 = v(V_T0), v(V_T1), v(V_T2), v(V_T3)
        self.stamp(8)
        e.op(f"s_load_dwordx8 {s(TB,8)}, {s(S_TAB,2)}, 128")
        e.op(f"s_load_dwordx4 {s(TB+8,4)}, {s(S_TAB,2)}, 160")
        e.op(f"s_load_dword {s(S_XM0)}, {s(S_TAB,2)}, 176")
        TM = self.TM; n0 = 19 - TM
        setup = []
        A = lambda t, tag=None: setup.append(lambda: e.op(t, tag=tag))
        setup.append(lambda: e.wait(lg="all"))
        A(f"s_movk_i32 {s(S_C1)}, 4096")
        A(f"s_movk_i32 {s(S_C2)}, 8192")
        for t in range(4): A(f"v_add_u32 {v(V_O + t)}, {s(S_OT + t)}, {v(V_HL)}")
        A(f"v_and_b32 {T0}, 15, {L}")
        A(f"v_lshl_add_u32 {v(V_GW)}, {T0}, 2, {s(S_GW)}")
        A(f"buffer_load_dword {v(V_GW)}, {v(V_GW)}, {s(S_WS,4)}, 0 offen sc1", "g")
        for t in range(3): A(f"v_add_u32 {v(V_RR + t)}, {s(S_RED + t)}, {v(V_L16)}")
        A(f"v_add_u32 {v(V_RW)}, {s(S_RED + 3)}, {v(V_L16)}")
        A(f"v_lshrrev_b32 {T1}, 4, {L}")
        A(f"v_mul_u32_u24 {T0}, 1280, {T0}")
        A(f"v_add_u32 {T0}, {s(S_OUTO)}, {T0}")
        A(f"v_lshl_add_u32 {v(V_OUT)}, {T1}, 4, {T0}")
        A(f"v_lshl_add_u32 {v(V_OUT + 1)}, {T1}, 3, {T0}")
        A(f"v_lshrrev_b32 {T0}, 1, {L}")
        A(f"v_min_u32 {T0}, 3, {T0}")
        A(f"v_and_b32 {T1}, 1, {L}")
        A(f"v_lshl_add_u32 {T1}, {T1}, 3, {s(S_PFB)}")
        A(f"v_lshl_add_u32 {v(V_FB)}, {T0}, 7, {T1}")
        cB = self.o("chkB", 11)
        Q = [(0, lambda n=n, t=t: self.h_load(n, t)) for n, t in self.h_left]
        if self.o("skipw", 0):
            wl0 = self.w_loads
            def dst(i):
                if i == 0:
                    e.op(f"s_lshl2_add_u32 {s(S_T2)}, s2, {s(S_WAVE)}")
                    e.op(f"s_mul_i32 {s(S_T2)}, {s(S_T2)}, 5120")
                    e.op(f"s_add_u32 {s(S_T2)}, {s(S_T2)}, {WS_X}")
                if i == 4: e.op(f"s_add_u32 {s(S_T2)}, {s(S_T2)}, 4096")
                e.op(f"buffer_store_dwordx4 {v(16,4)}, {v(V_L16)}, {s(S_WS,4)}, {s(S_T2)} offen offset:{(i & 3) * 1024} sc1")
            def wl1(n):
                for j in range(5): e.all_tags.add(("w", n, j))
                if n == 18: return wl0(n)
                if n == 17 and self.o("skipw", 0) == 1: return [lambda i=i: dst(i) for i in range(5)]
                return []
            self.w_loads = wl1
        def wl_read(n, j):
            e.wait(vm="wl")
            e.op(f"ds_read_b128 {r(WR + 20 * (n % NWR) + 4 * j, 4)}, {v(V_RW)} offset:{(5 * self.LDS_W.index(n) + j) * 1024}", tag="wlr")
            e.all_tags.add(("w", n, j))
        R = [(max(n - 11, 4), lambda n=n, j=j: wl_read(n, j)) for n in self.LDS_W for j in range(5)]
        for n in range(5, n0):
            if n >= 12 and n not in self.LDS_W: Q += [(max(n - 11, 4 if n >= 14 else 0), f) for f in self.w_loads(n)]
            Q += [(max(n - 5, 2, cB if n >= 14 else 0), lambda n=n, t=t: self.h_load(n, t)) for t in range(4)]
        for n in range(n0, 19):
            if n not in self.LDS_W: Q += [(max(n - 11, 4), f) for f in self.w_loads(n)]
        for t in range(4):
            for n in range(n0, 19):
                i = TM * t + n - n0
                Q.append((max(n0 - 5 + i // 4, cB), lambda n=n, t=t: self.h_load(n, t)))
        def issue(step):
            for i, (fr, f) in enumerate(Q):
                if fr <= step:
                    Q.pop(i); f(); return True
            return False
        def need(tags, step, also=()):
            while any(t not in e.all_tags for t in tags): assert issue(step)
            if any(t in e.vm for t in tags): e.wait(vm=list(tags) + [t for t in also if t in e.vm])
        def mfma(n, t, j):
            acc = v(BA + 20 * t + 4 * j, 4)
            e.op(f"v_mfma_f32_16x16x32_bf16 {acc}, {r(WR + 20 * (n % NWR) + 4 * j, 4)}, {v(self.hreg(n, t), 4)}, {'0' if n == 0 else acc}")
        lrate = self.o("lrate", 5)
        cnt = 0
        oep = list(self.o_epilogue)
        for n in range(n0):
            if n == 2: assert not oep
            if n == 4: assert not setup
            if n == 13:
                assert not R
                e.wait(lg="wlr")
            if self.o("zoom", 0) == 4 and n < 12: self.stamp(1 + n, True)
            if n == self.o("pubB", 4):
                e.wait(vm="sto"); self.publish(S_FLB)
            if n == self.o("pollB", 9): self.poll_issue(V_FB)
            if n == cB:
                self.poll_check(V_FB, 3); self.stamp(9)
            for t in range(4):
                for j in range(5):
                    need([("w", n, j), ("h", n, t)], n, [("w", n, 4), ("h", n, t | 1)])
                    mfma(n, t, j)
                    cnt += lrate
                    if cnt >= 20 and Q:
                        cnt -= 20; issue(n)
                    elif oep:
                        oep.pop(0)()
                        if oep: oep.pop(0)()
                    elif setup:
                        setup.pop(0)()
                    elif R and R[0][0] <= n and j % 2: R.pop(0)[1]()
        self.stamp(10)
        RD = (0, 20, BA)
        def wr(t, j): e.op(f"ds_write_b128 {v(V_RW)}, {v(BA + 20 * t + 4 * j, 4)} offset:{t * 5120 + j * 1024}", tag=("red", t))
        def rd(sl, j): e.op(f"ds_read_b128 {v(RD[sl] + 4 * j, 4)}, {v(V_RR + sl)} offset:{j * 1024}", tag=("rd", sl, j))
        def add01(k):
            if k % 4 == 0: e.wait(lg=("rd", 1, k // 4))
            e.op(f"v_add_f32 {v(RD[0] + k)}, {v(RD[0] + k)}, {v(RD[1] + k)}")
        def bar01():
            e.wait(lg=("red", 1))
            e.op("s_barrier")
        F = BA + 60
        for t in range(4):
            q = [None] * 3 + [lambda j=j: wr(t - 1, j) for j in range(5)] if t else []
            if t == 3:
                q = [bar01] + [lambda j=j, sl=sl: rd(sl, j) for j in range(2) for sl in range(2)] + q[3:] + \
                    [lambda j=j, sl=sl: rd(sl, j) for j in range(2, 5) for sl in range(2)]
                adds = [lambda k=k: add01(k) for k in range(20)]
            i = 0
            for n in range(n0, 19):
                for j in range(5):
                    need([("w", n, j), ("h", n, t)], 99)
                    mfma(n, t, j)
                    if Q and i % 4 == 0: issue(99)
                    elif q:
                        f = q.pop(0)
                        if f: f()
                    elif t == 3:
                        for _ in range(2):
                            if adds: adds.pop(0)()
                    i += 1
            for f in q:
                if f: f()
        assert not Q
        self.stamp(11)
        e.wait(lg=("red", 2))
        e.op("s_barrier")
        for j in range(5): rd(2, j)
        for f in adds: f()
        e.wait(vm="g")
        W2 = v(V_GW, 2)
        of = ("", "sc1", "nt", "sc1 nt")[self.o("outf", 1)]
        of2 = ("", "sc1", "nt", "sc1 nt")[self.o("outf2", 0)]
        for i in range(10): e.op(f"v_pk_add_f32 {v(F + 2 * i, 2)}, {v(F + 2 * i, 2)}, {v(RD[0] + 2 * i, 2)}")
        for i in range(10): e.op(f"v_pk_mul_f32 {v(F + 2 * i, 2)}, {v(F + 2 * i, 2)}, {W2} op_sel_hi:[1,0]")
        for grp in ((0, 4), (4, 8), (8, 10)):
            e.wait(lg=("rd", 2, (grp[1] - 1) // 2))
            for i in range(*grp): e.op(f"v_pk_fma_f32 {v(F + 2 * i, 2)}, {v(RD[2] + 2 * i, 2)}, {W2}, {v(F + 2 * i, 2)} op_sel_hi:[1,0,1]")
            for i in range(*grp): e.op(f"v_cvt_pk_bf16_f32 {v(i)}, {v(F + 2 * i)}, {v(F + 2 * i + 1)}")
            if grp[0] < 8: e.op(f"buffer_store_dwordx4 {v(grp[0],4)}, {v(V_OUT)}, {s(S_OUT,4)}, 0 offen offset:{grp[0] * 16} {of}")
            else: e.op(f"buffer_store_dwordx2 {v(8,2)}, {v(V_OUT+1)}, {s(S_OUT,4)}, {s(S_XM0)} offen {of2}")
        self.stamp(12)
        if self.o("skipw", 0): self.w_loads = wl0

    def finish(self):
        e = self.e
        if self.stamps:
            e.wait(vm="all")
            self.stamp(13)
            e.op(f"s_memtime {s(S_VM,2)}")
            self.flush_stamp()
            e.op(f"v_writelane_b32 {v(V_STAMP)}, {s(S_VM)}, {NSTAMP}")
            e.op(f"s_lshl2_add_u32 {s(S_T0)}, s2, {s(S_WAVE)}")
            e.op(f"s_lshl_b32 {s(S_T0)}, {s(S_T0)}, 7")
            e.op(f"s_add_u32 {s(S_T0)}, {s(S_T0)}, {WS_ST}")
            e.op(f"v_lshlrev_b32 {v(V_T0)}, 2, {v(V_LANE)}")
            e.op("s_mov_b32 exec_hi, 0")
            e.op(f"buffer_store_dword {v(V_STAMP)}, {v(V_T0)}, {s(S_WS,4)}, {s(S_T0)} offen")
        e.op("s_endpgm")

    def build(self):
        e = self.e
        self.prologue()
        self.stage1()
        self.attention()
        self.stage3()
        self.finish()
        self.att_lo()
        self.gate()
        self.spare()
        for f in self.stubs:
            e.vm, e.lg = [], []
            f()
        e.label("L_cold")
        for f in self.cold: f()
        e.label("L_end")
        e.op("s_endpgm")
        head = open("head.txt").read().split("\n")
        head = [l for l in head if l.startswith(";") and "@launch" not in l]
        txt = "\n".join(head) + f"\n; @launch grid=(256,1,1) block=(256,1,1) lds={LDS_BYTES}\n" + DOC
        txt += f""".amdgcn_target "amdgcn-amd-amdhsa--gfx950"
.text
.globl {NAME}_kernel
.p2align 8
.type {NAME}_kernel,@function
{NAME}_kernel:
"""
        txt += e.text().replace("\n    ", "\n ")
        txt += f""".section .rodata,"a"
.p2align 6
.amdhsa_kernel {NAME}_kernel
  .amdhsa_next_free_vgpr 512
  .amdhsa_next_free_sgpr 102
  .amdhsa_accum_offset 256
  .amdhsa_group_segment_fixed_size 0
  .amdhsa_kernarg_size 80
  .amdhsa_user_sgpr_count 2
  .amdhsa_user_sgpr_kernarg_segment_ptr 1
  .amdhsa_system_sgpr_workgroup_id_x 1
.end_amdhsa_kernel
.p2align 8
.type wave_table,@object
wave_table:
"""
        for wg in range(256):
            for w in range(4):
                txt += ".long " + ",".join(str(x) for x in table_entry(wg, w, self.o("map3", 0))) + "\n"
        return txt

if __name__ == "__main__":
    out = sys.argv[1] if len(sys.argv) > 1 else "cdna_kernels/" + NAME + ".s"
    opt = {}
    for x in sys.argv[2:]:
        if "=" in x:
            k, val = x.split("="); opt[k] = int(val)
    g = Gen(stamps="--stamps" in sys.argv, opt=opt)
    txt = g.build()
    open(out, "w").write(txt)
    print("instructions", g.e.count, "pad states", g.e.nops, "autowaits", g.e.autowaits, "bytes", len(txt), file=sys.stderr)
    if "--nops" in sys.argv:
        for n, t in g.e.log_nops: print(n, t, file=sys.stderr)
```

```python
import sys, math, struct
from asmlib import *

NAME = "gated_mix__sliding_block__dense_activation_relu__prompt"

WS_QK = 0
WS_VT = WS_QK + 80 * 64 * 1024
WS_H  = WS_VT + 16 * 64 * 2560
WS_O  = WS_H + 64 * 110592
WS_WT = WS_O + 64 * 40960
WS_G  = WS_WT + 8 * 74 * 5120
WS_FL = WS_G + 16384
FL_A  = WS_FL
FL_B  = FL_A + 256 * 128
FL_D  = FL_B + 256 * 128
FL_GO = FL_D + 64 * 128
WS_ST = FL_GO + 16 * 128
WS_X = WS_ST + 1024 * 128
WS_SIZE = WS_X + 1024 * 5120
OOB = 0x4000000
assert WS_SIZE < OOB

NW, NX = 5, 4
L_W = 0
L_X = NW * 16384
L_RT = L_X + 65536
L_K = L_X
L_V = L_K + 36 * 1024
L_GW = L_V + 12 * 3072
LDS_BYTES = 163840

S_DM, S_HK = 0, 1
S_WAVE = 3
S_X, S_WA, S_WB, S_WS, S_OUT, S_DBG, S_MISC = 4, 8, 12, 16, 20, 24, 28
S_PWO, S_CG, S_XM0, S_PW2, S_PG = 32, 34, 35, 36, 38
S_T0, S_T1, S_T2, S_T3, S_T4, S_T5 = 40, 41, 42, 43, 44, 45
S_TAB = 46
TA = 48
(S_ST1, S_ST1B, S_ST2, S_ST2B, S_SCALE, S_FLA, S_FLB, S_RTS, S_RTF, S_RTSRC, S_BITS, S_TQ, S_QOFF) = range(TA, TA + 13)
S_KADJ, S_VOFF = TA + 13, TA + 16
S_OST, S_OST2 = TA + 19, TA + 20
S_HT = TA + 21
S_WT0, S_PFC, S_PFG, S_PFD, S_PFA, S_ASTEP, S_TB1 = range(TA + 25, TA + 32)
TB = 4
S_OT = TB
S_WT1, S_PFB, S_GW, S_OUTO = TB + 4, TB + 5, TB + 6, TB + 7
S_RED = TB + 8
S_PHI = 80
S_WM0, S_SPIN = 86, 87
S_STMP, S_NONCE, S_MASK, S_VM = 88, 90, 92, 94
S_C1, S_C2 = 96, 97
S_PILO, S_PIHI = 80, 81

V_LANE = 255
V_L16 = 254
V_NONCE = 252
V_T0, V_T1, V_T2, V_T3 = 248, 249, 250, 251
V_POLL = 246
V_FA, V_FD, V_FC, V_WV = 245, 244, 243, 242
V_KA, V_VA, V_HL, V_STAMP, V_ZERO, V_L16H = 241, 240, 239, 238, 237, 236
V_H, V_KT, V_Q, V_R = 232, 228, 231, 227
V_XD = 0
V_WD = 4
V_WD2 = 8
V_XR = 12
V_WR = 16
V_ST1 = 24
V_FR = 32
ACC = (128, 64)
A_X = 256
NXR = 7
V_LH = 226
RT_D, RT_LD, RT_RD, RT_ST = 64, 76, 79, 82
SB = (0, 16, 176)
OO = (32, 48)
VQ, QM, VF, KF, CD, CE = 128, 144, 160, 168, 192, 208
BA = 144
HSLOT = (64, 80, 96, 112, 128, 16, 48, 32)
WR = 256
NH, NWR = 8, 12
V_O, V_FB, V_GW, V_RR, V_RW, V_OUT = 228, 245, 244, 224, 243, 240
NSTAMP = 14

def f32(x): return "0x%08x" % struct.unpack("<I", struct.pack("<f", x))[0]
LOG2E = math.log2(math.e)
QSCALE = LOG2E / math.sqrt(20.0)
NEGBIG = 0xff800000
SPIN_MAX = 0x40000

KS0 = (0, 14, 28, 41)

LATE_KS = sorted({KS0[w] + n for w in range(4) for n in (12, 13) if n < (14, 14, 13, 13)[w]} | {54 + 5 * w + q for w in range(4) for q in (3, 4)})
RT_KS = [k for k in range(74) if k not in LATE_KS] + LATE_KS
assert len(LATE_KS) == 14

def rt_unit(U, w):
    if U >= 296: return OOB, OOB, 0, 0
    ks, kg, u = RT_KS[U >> 2], U & 3, w >> 1
    if ks < 54: row, wo = 32 * ks + 16 * (kg >> 1) + 4 * (kg & 1) + 8 * u, 0
    else:
        a_, p = divmod(ks - 54, 5); wo = 1
        row = 40 * (4 * a_ + p) + 20 * (kg >> 1) + 4 * (kg & 1) + 8 * u if p < 4 else 40 * (4 * a_ + kg) + 16 + 20 * u
    return WS_WT + (148 * w + ks) * 5120 + kg * 256, (FL_D + (U >> 2) * 128 + (U & 3) * 8 if w == 0 else OOB), row * 1280, wo

def table_entry(wg, w, map3, umap):
    xcd, i = wg & 7, wg >> 3
    A = [0] * 32; B = [0] * 16
    def a(reg, val): A[reg - TA] = val & 0xffffffff
    def b(reg, val): B[reg - TB] = val & 0xffffffff
    U = wg if (i >= 30 or not umap) else ((i >> 2) * 8 + xcd) * 4 + (i & 3) if i < 28 else 224 + 2 * xcd + i - 28
    rts, rtf, rtsrc, wo = rt_unit(U, w)
    a(S_RTS, rts); a(S_RTF, rtf); a(S_RTSRC, rtsrc)
    if i < 30:
        u = 30 * (xcd >> 1) + i
        rb, cg = 8 * (xcd & 1) + (u & 7), u >> 3
        tb, tb0, wc = 4 * rb + w, 4 * rb + (w & 2), w & 1
        if cg < 10:
            q0 = WS_QK + ((8 * cg + 4 * wc) * 64 + tb0) * 1024
            a(S_ST1, q0); a(S_ST1B, q0 + 1024)
        else:
            a(S_ST1, WS_VT + tb0 * 2560); a(S_ST1B, WS_VT + (tb0 + 1) * 2560)
        h0 = WS_H + tb0 * 110592 + cg * 8192 + wc * 4096
        a(S_ST2, h0 if 2 * cg + wc < 27 else OOB); a(S_ST2B, h0 + 110592 if 2 * cg + wc < 27 else OOB)
        a(S_SCALE, int(f32(QSCALE if cg < 5 else 1.0), 16))
        a(S_FLA, FL_A + (rb * 16 + cg) * 128 + 8 * w)
        a(S_TB1, tb)
    else:
        for m, reg in ((1, S_ST1), (2, S_ST1B), (3, S_SCALE)): a(reg, rt_unit(wg + 16 * m, w)[2])
        for m, reg in ((1, S_ST2), (2, S_ST2B), (3, S_FLA)): a(reg, rt_unit(wg + 16 * m, w)[0])
        a(S_TB1, sum(rt_unit(wg + 16 * m, w)[3] << m for m in range(4)))
    P, rba = 2 * xcd + (i >> 4), i & 15
    F0, tq = (10 * P) >> 2, 4 * rba + w
    a(S_BITS, (P & 1) | (wo << 1)); a(S_TQ, tq)
    a(S_QOFF, WS_QK + (F0 * 64 + tq) * 1024)
    for k in range(3):
        t = max(4 * rba + 3 * w - 8 + k, 0)
        a(S_KADJ + k, WS_QK + ((40 + F0) * 64 + t - k) * 1024)
        a(S_VOFF + k, WS_VT + (P * 64 + t) * 2560)
    o0 = WS_O + tq * 40960 + (P >> 2) * 20 * 512
    a(S_OST, o0 + (P & 3) * 2048); a(S_OST2, o0 + (16 + (P & 3)) * 512)
    a(S_FLB, FL_B + (rba * 16 + P) * 128 + 8 * w)
    cq = F0 >> 3
    a(S_PFA, FL_A + cq * 128); a(S_ASTEP, 128 if ((F0 + 2) >> 3) > cq else 0)
    a(S_PFG, FL_A + (rba * 16 + 15) * 128 + 8 * w)
    assert [RT_KS.index(KS0[w] + n) for n in range(12)] == list(range(12 * w, 12 * w + 12))
    assert [RT_KS.index(54 + 5 * w + q) for q in range(3)] == list(range(48 + 3 * w, 51 + 3 * w))
    a(S_PFD, FL_D + 12 * w * 128)
    tb64, ng = (8 * (xcd >> 1) + (i & 7), 4 * (xcd & 1) + (i >> 3)) if not map3 else (4 * xcd + (i & 3), i >> 2)
    for t in range(4):
        T = (w + 1 + t) & 3
        tb = 2 * tb64 + (T >> 1)
        a(S_HT + t, WS_H + tb * 110592 + (T & 1) * 256 + KS0[w] * 2048)
        b(S_OT + t, WS_O + tb * 40960 + (T & 1) * 256 + w * 5 * 2048)
    a(S_WT0, WS_WT + (ng * 74 + KS0[w]) * 5120 + 2048)
    b(S_WT1, WS_WT + (ng * 74 + 54 + 5 * w) * 5120 + 2048)
    a(S_PFC, FL_A + (tb64 >> 1) * 2048 + 32 + 16 * (tb64 & 1) + (KS0[w] >> 2) * 128)
    b(S_PFB, FL_B + ((tb64 >> 1) * 16 + 4 * w) * 128 + 16 * (tb64 & 1))
    A[S_BITS - TA] |= (FL_A + ((tb64 >> 1) * 16 + 15) * 128 + 8 * (2 * (tb64 & 1) + (w >> 1))) << 2
    b(S_GW, WS_G + (2 * tb64 + (w >> 1)) * 256 + 128 + (w & 1) * 64)
    b(S_OUTO, (64 * tb64 + 16 * w) * 1280 + ng * 128)
    B[12] = 1024 - 96 * ng
    for t in range(3): b(S_RED + t, L_W + ((w - 1 - t) & 3) * 20480 + t * 5120)
    b(S_RED + 3, L_W + w * 20480)
    return A + B


DOC = """;
"""

class Gen:
    def __init__(self, stamps=False, opt=None):
        self.e = Emit()
        self.stamps = stamps
        self.uid = 0
        self.opt = opt or {}
        self.stubs = []
        self.cold = []
        self.pending_stamp = None
        self.open_poll = None; self.open_nonce = False
        self.nt = "nt " if self.o("nt", 1) else ""
        self.in_side = False
    def o(self, k, d): return self.opt.get(k, d)
    def L(self, p):
        self.uid += 1
        return f"L_{p}_{self.uid}"
    def stamp(self, idx, z=False):
        if not self.stamps: return
        if self.o("zoom", 0) and not z and 0 < idx < 13: return
        self.flush_stamp()
        self.e.op(f"{'s_memtime' if self.o('cyc', 0) else 's_memrealtime'} {s(S_STMP, 2)}")
        self.pending_stamp = idx
    def flush_stamp(self):
        if self.pending_stamp is None: return
        e = self.e
        if "SMEM" in e.lg: e.wait(lg="all")
        e.op(f"v_writelane_b32 {v(V_STAMP)}, {s(S_STMP)}, {self.pending_stamp}")
        self.pending_stamp = None

    def srd_tail(self, d, nbytes):
        self.e.op(f"s_mov_b32 {s(d+2)}, {nbytes}")
        self.e.op(f"s_mov_b32 {s(d+3)}, 0x20000")
    def nonce_issue(self):
        self.e.op(f"buffer_load_dwordx2 {v(V_NONCE,2)}, {v(V_ZERO)}, {s(S_DBG,4)}, 0 offen sc1", tag="nonce")
        self.open_nonce = True
    def nonce_check(self):
        e = self.e
        st, bk = self.L("nonce"), self.L("nonce_ok")
        assert self.open_nonce
        e.wait(vm="nonce")
        e.op(f"v_readfirstlane_b32 {s(S_NONCE)}, {v(V_NONCE)}")
        e.op(f"v_readfirstlane_b32 {s(S_NONCE+1)}, {v(V_NONCE+1)}")
        e.op(f"s_cmp_eq_u32 {s(S_NONCE)}, 0")
        e.op(f"s_cbranch_scc1 {st}")
        e.label(bk)
        def stub():
            e.label(st, reset=True)
            e.op(f"s_mov_b32 {s(S_SPIN)}, 0")
            e.label(st + "_l")
            e.op("s_sleep 4")
            e.op(f"buffer_load_dwordx2 {v(V_NONCE,2)}, {v(V_ZERO)}, {s(S_DBG,4)}, 0 offen sc1")
            e.op(f"s_add_u32 {s(S_SPIN)}, {s(S_SPIN)}, 1")
            e.wait(vm="all")
            e.op(f"v_readfirstlane_b32 {s(S_NONCE)}, {v(V_NONCE)}")
            e.op(f"v_readfirstlane_b32 {s(S_NONCE+1)}, {v(V_NONCE+1)}")
            e.op(f"s_cmp_gt_u32 {s(S_SPIN)}, {SPIN_MAX}")
            e.op(f"s_cbranch_scc1 {bk}")
            e.op(f"s_cmp_eq_u32 {s(S_NONCE)}, 0")
            e.op(f"s_cbranch_scc1 {st}_l")
            e.op(f"s_branch {bk}")
        self.stubs.append(stub)
    def publish(self, soff, imm=0):
        e = self.e
        e.op("s_mov_b64 exec, 1")
        e.op(f"buffer_store_dwordx2 {v(V_NONCE,2)}, {v(V_ZERO)}, {s(S_WS,4)}, {s(soff)} offen offset:{imm} sc1", tag="flag")
        e.op("s_mov_b64 exec, -1")
    def poll_issue(self, vaddr):
        self.e.op(f"buffer_load_dwordx2 {v(V_POLL,2)}, {v(vaddr)}, {s(S_WS,4)}, 0 offen sc1", tag="poll")
        self.open_poll = vaddr
    def poll_again(self, vaddr):
        self.e.op(f"buffer_load_dwordx2 {v(224,2)}, {v(vaddr)}, {s(S_WS,4)}, 0 offen sc1", tag="poll2")
    def poll_check(self, vaddr, sid=0):
        e = self.e
        n2 = e._left(e.vm, ["poll2"])
        st, bk = self.L("poll"), self.L("poll_ok")
        assert self.open_poll == vaddr; self.open_poll = None
        e.wait(vm="poll")
        e.op(f"v_cmp_ne_u64 vcc, {s(S_NONCE,2)}, {v(V_POLL,2)}")
        e.op(f"s_cbranch_vccnz {st}")
        e.label(bk)
        def stub():
            e.label(st, reset=True)
            if n2 is not None:
                e.op(f"s_waitcnt vmcnt({n2})")
                e.op(f"v_cmp_ne_u64 vcc, {s(S_NONCE,2)}, {v(224,2)}")
                e.op(f"s_cbranch_vccz {bk}")
            e.op(f"s_mov_b32 {s(S_SPIN)}, 0")
            e.op(f"s_branch {st}_f")
            e.label(st + "_l")
            e.op("s_sleep 4")
            e.label(st + "_f")
            e.op(f"buffer_load_dwordx2 {v(V_POLL,2)}, {v(vaddr)}, {s(S_WS,4)}, 0 offen sc1")
            e.op(f"s_add_u32 {s(S_SPIN)}, {s(S_SPIN)}, 1")
            e.wait(vm="all")
            e.op(f"v_cmp_ne_u64 vcc, {s(S_NONCE,2)}, {v(V_POLL,2)}")
            e.op(f"s_cmp_gt_u32 {s(S_SPIN)}, {SPIN_MAX}")
            e.op(f"s_cbranch_scc1 {bk}")
            e.op(f"s_cbranch_vccnz {st}_l")
            if self.stamps: e.op(f"v_writelane_b32 {v(V_STAMP)}, {s(S_SPIN)}, {16 + sid}")
            e.op(f"s_branch {bk}")
        self.stubs.append(stub)

    def capture(self, *fns):
        e = self.e
        rec = []
        real = e.op
        e.op = lambda text, tag=None: rec.append(text)
        try:
            for f in fns: f()
        finally:
            e.op = real
        atoms = []
        for t in rec:
            if t.startswith(("s_cselect", "s_addc")): atoms[-1].append(t)
            else: atoms.append([t])
        return [lambda a=a_: [e.op(t) for t in a] and None for a_ in atoms]

    PI_A = [0, 2, 1, 4, 3, 6, 5, 8, 7, 9]
    PI_B = [1, -2, 2, -2, 2, -2, 2, -2, 2, -1]
    PI4S = [
        [[0,4,1,2,3,8,5,6,7,9], [1,0,5,2,3,4,9,6,7,8], [2,0,1,6,3,4,5,7,8,9], [3,0,1,2,7,4,5,6,8,9]],
        [[0,2,1,6,3,4,5,7,8,9], [1,3,0,2,7,4,5,6,8,9], [0,4,1,2,3,8,5,6,7,9], [1,5,0,2,3,4,9,6,7,8]],
        [[0,2,6,1,3,4,5,7,8,9], [1,3,7,0,2,4,5,6,8,9], [0,4,8,1,2,3,5,6,7,9], [1,5,9,0,2,3,4,6,7,8]],
        [[0,2,1,6,3,4,5,7,8,9], [1,3,0,7,2,4,5,6,8,9], [0,4,1,8,2,3,5,6,7,9], [1,5,0,9,2,3,4,6,7,8]],
        [[0,1,5,2,3,4,9,6,7,8], [0,2,1,6,3,4,5,7,8,9], [0,3,1,2,7,4,5,6,8,9], [0,4,1,2,3,8,5,6,7,9]],
        [[0,4,8,1,2,3,5,6,7,9], [1,5,9,0,2,3,4,6,7,8], [2,6,0,1,3,4,5,7,8,9], [3,7,0,1,2,4,5,6,8,9]],
    ]
    @property
    def PI4(self): return self.PI4S[self.o("pt", 0)]
    UNIT = (128, 64 * 3840, 64 * 3456)
    def pi_setup(self, sphi, late):
        e = self.e
        mode = self.o("pi", 8)
        if mode == 2:
            if not late:
                e.op(f"s_and_b32 {s(sphi)}, {s(sphi)}, 1")
                for m in range(2): e.op(f"s_mul_i32 {s(S_PHI + 2 * m)}, {s(sphi)}, {self.UNIT[m]}")
            else:
                e.op(f"s_mul_i32 {s(S_PHI + 4)}, {s(S_PHI)}, {self.UNIT[2] // 128}")
                for m in range(3): e.op(f"s_lshl_b32 {s(S_PHI + 2 * m + 1)}, {s(S_PHI + 2 * m)}, 1")
        elif mode >= 4 and not late:
            if mode == 4:
                tabs = self.PI4
                e.op(f"s_and_b32 {s(sphi)}, {s(sphi)}, 3")
            else:
                nph = {5: 1, 8: 2, 16: 4}[mode]
                two = ([self.PI_A, [a_ + b_ for a_, b_ in zip(self.PI_A, self.PI_B)]],
                       [[0,1,2,3,4,5,6,7,8,9], [1,0,3,2,5,4,7,6,9,8]],
                       [[0,2,1,3,4,5,7,6,8,9], [1,3,0,2,4,6,8,5,7,9]],
                       [[0,2,4,1,3,5,7,6,8,9], [1,3,4,0,2,6,8,5,7,9]],
                       [[0,1,3,2,4,5,6,8,7,9], [0,2,4,1,3,5,7,9,6,8]],
                       [[0,2,1,3,4,6,5,8,7,9], [1,3,0,2,5,4,7,6,9,8]])[self.o("p2", 0)]
                base = {1: [list(range(10))], 2: two, 4: self.PI4}[nph]
                rots = ((0, 2, 5, 7), (0, 0, 5, 5), (0, 1, 5, 6), (0, 3, 5, 8))[self.o("rot", 1)]
                tabs = [[(k + ro) % 10 for k in tb] for ro in rots for tb in base]
                e.op(f"s_and_b32 {s(sphi)}, {s(sphi)}, {nph - 1}")
                e.op(f"s_lshr_b32 {s(S_T3)}, s2, 1")
                e.op(f"s_lshl1_add_u32 {s(S_T3)}, s2, {s(S_T3)}")
                e.op(f"s_and_b32 {s(S_T3)}, {s(S_T3)}, 3")
                e.op(f"s_mul_i32 {s(S_T3)}, {s(S_T3)}, {nph}")
                e.op(f"s_add_u32 {s(sphi)}, {s(sphi)}, {s(S_T3)}")
            for i, tb in enumerate(tabs):
                assert sorted(tb) == list(range(10))
                lo = sum(k << (4 * n) for n, k in enumerate(tb[:8])); hi = tb[8] | (tb[9] << 4)
                if i == 0:
                    e.op(f"s_mov_b32 {s(S_PILO)}, {hex(lo)}")
                    e.op(f"s_mov_b32 {s(S_PIHI)}, {hex(hi)}")
                else:
                    e.op(f"s_cmp_eq_u32 {s(sphi)}, {i}")
                    e.op(f"s_cselect_b32 {s(S_PILO)}, {hex(lo)}, {s(S_PILO)}")
                    e.op(f"s_cselect_b32 {s(S_PIHI)}, {hex(hi)}, {s(S_PIHI)}")
    def pi_off(self, dst, st, m):
        e = self.e
        mode = self.o("pi", 8)
        if mode == 1: e.op(f"s_mov_b32 {s(dst)}, {st * self.UNIT[m]}")
        elif mode == 2:
            A, B = self.PI_A[st] * self.UNIT[m], self.PI_B[st]
            e.op(f"s_{'add' if B > 0 else 'sub'}_u32 {s(dst)}, {A}, {s(S_PHI + 2 * m + abs(B) - 1)}")
        else:
            e.op(f"s_bfe_u32 {s(dst)}, {s(S_PILO if st < 8 else S_PIHI)}, {hex((4 << 16) | (4 * (st % 8)))}")
            e.op(f"s_mul_i32 {s(dst)}, {s(dst)}, {self.UNIT[m]}")

    def prologue(self):
        e = self.e
        L = v(V_LANE); T0, T1, T2, T3 = v(V_T0), v(V_T1), v(V_T2), v(V_T3)
        e.op("s_cmp_ge_u32 s2, 256")
        e.op("s_cbranch_scc1 L_end")
        self.stamp(0)
        for d, off in ((S_X, 0), (S_WA, 8), (S_WB, 32), (S_WS, 72), (S_OUT, 56), (S_DBG, 64)):
            e.op(f"s_load_dwordx2 {s(d,2)}, s[0:1], {off}")
        e.op(f"s_getpc_b64 {s(S_TAB,2)}")
        e.label("L_pc")
        e.op("s_cmp_lt_u32 s2, 240")
        e.op("s_cbranch_scc1 L_nopf")
        e.op(f"s_bfe_u32 {s(S_T0)}, s2, 0x10003")
        e.op(f"v_lshl_add_u32 {T0}, v0, 1, {s(S_T0)}")
        e.op(f"v_lshlrev_b32 {T0}, 7, {T0}")
        e.op(f"v_min_u32 {T0}, L_cold-L_pc, {T0}")
        e.op(f"global_load_dword {v(224)}, {T0}, {s(S_TAB,2)}")
        e.vm = []
        e.label("L_nopf")
        if self.stamps: e.op(f"v_mov_b32 {v(V_STAMP)}, 0")
        e.op(f"v_lshrrev_b32 {T0}, 6, v0")
        e.op(f"v_and_b32 {L}, 63, v0")
        e.op(f"v_readfirstlane_b32 {s(S_WAVE)}, {T0}")
        e.op(f"s_bfe_u32 {s(S_T0)}, s2, 0x20001")
        e.op(f"s_mul_i32 {s(S_T0)}, {s(S_T0)}, 30")
        e.op(f"s_lshr_b32 {s(S_T1)}, s2, 3")
        e.op(f"s_add_u32 {s(S_T0)}, {s(S_T0)}, {s(S_T1)}")
        e.op(f"s_lshr_b32 {s(S_CG)}, {s(S_T0)}, 3")
        e.op(f"s_and_b32 {s(S_T0)}, {s(S_T0)}, 7")
        e.op(f"s_and_b32 {s(S_T1)}, s2, 1")
        e.op(f"s_lshl3_add_u32 {s(S_T0)}, {s(S_T1)}, {s(S_T0)}")
        e.op(f"s_add_u32 {s(S_T5)}, {s(S_T0)}, {s(S_CG)}")
        self.pi_setup(S_T5, False)
        e.op(f"s_lshl2_add_u32 {s(S_T0)}, {s(S_T0)}, {s(S_WAVE)}")
        e.op(f"s_mul_i32 {s(S_T0)}, {s(S_T0)}, {32 * 1280}")
        e.op(f"s_lshl_b32 {s(S_T4)}, {s(S_CG)}, 8")
        e.op(f"s_movk_i32 {s(S_T2)}, 1280")
        e.op(f"s_movk_i32 {s(S_T3)}, {2 * (8 * 1280 - 1024)}")
        e.op(f"v_lshrrev_b32 {T1}, 4, {L}")
        e.op(f"v_and_b32 {T2}, 7, {L}")
        e.op(f"v_xor_b32 {T2}, {T2}, {T1}")
        e.op(f"v_lshl_add_u32 {T2}, {T2}, 4, {s(S_T0)}")
        e.op(f"v_lshrrev_b32 {T0}, 3, {L}")
        e.op(f"v_mad_u32_u24 {v(V_XD)}, {T0}, {s(S_T2)}, {T2}")
        e.op(f"v_xad_u32 {v(V_XD+2)}, {v(V_XD)}, 64, {s(S_T3)}")
        e.op(f"v_add_u32 {v(V_XD+1)}, {8 * 1280 - 1024}, {v(V_XD)}")
        e.op(f"v_add_u32 {v(V_XD+3)}, {8 * 1280 - 1024}, {v(V_XD+2)}")
        e.op(f"v_lshlrev_b32 {T2}, 2, {T1}")
        e.op(f"v_and_b32 {T3}, 15, {L}")
        e.op(f"v_xor_b32 {T2}, {T2}, {T3}")
        e.op(f"v_lshl_add_u32 {T2}, {T2}, 4, {s(S_T4)}")
        e.op(f"v_lshl_add_u32 {T1}, {s(S_WAVE)}, 4, {T1}")
        e.op(f"s_movk_i32 {s(S_T2)}, 3840")
        e.op(f"v_mad_u32_u24 {v(V_WD)}, {T1}, {s(S_T2)}, {T2}")
        e.op(f"s_movk_i32 {s(S_T3)}, {2 * (4 * 3840 - 1024)}")
        e.op(f"v_xad_u32 {v(V_WD+2)}, {v(V_WD)}, 16, {s(S_T3)}")
        for n in (1, 3): e.op(f"v_add_u32 {v(V_WD+n)}, {4 * 3840 - 1024}, {v(V_WD+n-1)}")
        e.op(f"s_lshl_b32 {s(S_WM0)}, {s(S_WAVE)}, 12")
        e.op(f"s_lshl2_add_u32 {s(S_XM0)}, {s(S_WM0)}, {L_X}")
        self.srd_tail(S_X, 2048 * 1280)
        self.srd_tail(S_WA, 640 * 3840)
        e.op(f"s_lshl2_add_u32 {s(S_T0)}, s2, {s(S_WAVE)}")
        e.op(f"s_mul_i32 {s(S_T0)}, {s(S_T0)}, 192")
        e.label("L_pc2")
        e.op(f"s_add_u32 {s(S_TAB)}, {s(S_TAB)}, wave_table@rel32@lo+(L_pc2+4-L_pc)")
        e.op(f"s_addc_u32 {s(S_TAB+1)}, {s(S_TAB+1)}, wave_table@rel32@hi+(L_pc2+12-L_pc)")
        e.op(f"s_add_u32 {s(S_TAB)}, {s(S_TAB)}, {s(S_T0)}")
        e.op(f"s_addc_u32 {s(S_TAB+1)}, {s(S_TAB+1)}, 0")
        e.wait(lg="all")
        self.flush_stamp()
        if not self.o("tlbw", 1): self.table_loads()
        e.op("s_cmp_ge_u32 s2, 240")
        e.op("s_cbranch_scc1 L_spare")
        self.spare_snap = e.snapshot()
        if self.o("tlbw", 1): self.table_loads()

    def table_loads(self):
        e = self.e
        e.op(f"s_load_dwordx2 {s(S_PWO,2)}, s[0:1], 16")
        e.op(f"s_load_dwordx4 {s(S_PW2,4)}, s[0:1], 40")
        e.op(f"s_load_dwordx16 {s(TA,16)}, {s(S_TAB,2)}, 0")
        e.op(f"s_load_dwordx16 {s(TA+16,16)}, {s(S_TAB,2)}, 64")
        e.op(f"s_load_dword {s(S_SPIN)}, {s(S_TAB,2)}, 128")

    def common_setup(self):
        e = self.e
        L = v(V_LANE)
        self.srd_tail(S_WB, 640 * 3456)
        self.srd_tail(S_WS, WS_SIZE)
        self.srd_tail(S_OUT, 2048 * 1280)
        self.srd_tail(S_DBG, 256)
        e.op(f"s_mov_b32 {s(S_MISC+3)}, 0x20000")
        e.op(f"v_lshlrev_b32 {v(V_L16)}, 4, {L}")
        e.op(f"v_mov_b32 {v(V_ZERO)}, 0")
        e.op(f"v_lshrrev_b32 {v(V_L16H)}, 5, {L}")
        e.op(f"v_lshl_add_u32 {v(V_L16H)}, {v(V_L16H)}, 26, {v(V_L16)}")
        e.op(f"s_mov_b32 {s(S_VM)}, 0xfffff")
        e.op(f"s_mov_b32 {s(S_VM+1)}, 0xfffff")
        e.op(f"s_mov_b32 {s(S_C1)}, 0x10000")
        e.op(f"s_mov_b32 {s(S_C2)}, 0x20000")

    def dma(self, st, m):
        e = self.e
        dm = S_T5 if st < 2 else S_DM
        if m == 0: srd, vd, k, base, lo = S_X, V_XD, st, S_XM0, self.XSLOT[st] * 4096
        elif st < 10: srd, vd, k, base, lo = S_WA, V_WD, st, S_WM0, L_W + (st % NW) * 16384
        else: srd, vd, k, base, lo, m = S_WB, V_WD2, self.xst(st), S_WM0, L_W + (st % NW) * 16384, 2
        def f(n):
            if n == 0:
                e.op(f"s_add_u32 m0, {s(base)}, {lo}")
                self.pi_off(dm, k, m)
            e.op(f"buffer_load_dwordx4 {v(vd+n)}, {s(srd,4)}, {s(dm)} offen offset:{n*1024} {'nt ' if (self.o('ntm', 0) >> m) & 1 else ''}lds", tag=("d", st))
        return [lambda n=n: f(n) for n in range(4)]
    def dmas(self, st): return (self.dma(st, 0) if st < 10 else []) + self.dma(st, 1)

    P2X = (9, 0, 1, 5, 2, 7, 3, 4, 6, 8)
    XREG = {0: 0, 1: 1, 2: 2, 3: 3, 4: 4, 6: 5, 8: 6}
    XSLOT = (0, 1, 2, 3, 0, 1, 2, 3, 0, 2)
    def xst(self, st):
        return st if st < 10 else self.P2X[st - 10]

    def stage1_tables(self):
        e = self.e
        L = v(V_LANE); T0, T1, T2, T3 = v(V_T0), v(V_T1), v(V_T2), v(V_T3)
        P0, P1 = v(V_POLL), v(V_POLL + 1)
        e.op(f"s_movk_i32 {s(S_T2)}, 3456")
        e.op(f"v_cmp_le_u32 vcc, 3456, {T2}")
        e.op(f"v_mad_u32_u24 {v(V_WD2)}, {T1}, {s(S_T2)}, {T2}")
        e.op(f"v_mov_b32 {T0}, 0x1000000")
        e.op(f"v_cndmask_b32 {v(V_WD2)}, {v(V_WD2)}, {T0}, vcc")
        e.op(f"s_movk_i32 {s(S_T3)}, {2 * (4 * 3456 - 1024)}")
        e.op(f"v_xad_u32 {v(V_WD2+2)}, {v(V_WD2)}, 16, {s(S_T3)}")
        for n in (1, 3): e.op(f"v_add_u32 {v(V_WD2+n)}, {4 * 3456 - 1024}, {v(V_WD2+n-1)}")
        e.op(f"v_and_b32 {P0}, 8, {L}")
        e.op(f"v_and_b32 {T0}, 15, {L}")
        e.op(f"v_add_u32 {P0}, {P0}, {T0}")
        e.op(f"v_lshrrev_b32 {P1}, 4, {L}")
        e.op(f"s_and_b32 {s(S_T0)}, {s(S_WAVE)}, 2")
        e.op(f"s_lshl_b32 {s(S_T0)}, {s(S_T0)}, 14")
        e.op(f"s_add_u32 {s(S_T0)}, {s(S_T0)}, {L_X}")
        e.op(f"v_bfe_u32 {T1}, {L}, 1, 3")
        e.op(f"v_xor_b32 {T1}, {T1}, {P1}")
        e.op(f"v_lshl_add_u32 {T1}, {T1}, 4, {s(S_T0)}")
        e.op(f"v_lshl_add_u32 {v(V_XR)}, {P0}, 7, {T1}")
        e.op(f"v_xor_b32 {v(V_XR+1)}, 64, {v(V_XR)}")
        e.op(f"s_and_b32 {s(S_T1)}, {s(S_WAVE)}, 1")
        e.op(f"s_lshl_b32 {s(S_T0)}, {s(S_T1)}, 3")
        e.op(f"v_and_b32 {T0}, 14, {L}")
        e.op(f"v_and_or_b32 {T0}, {P1}, 1, {T0}")
        e.op(f"v_xor_b32 {T0}, {s(S_T0)}, {T0}")
        e.op(f"v_and_b32 {T1}, 1, {L}")
        e.op(f"v_lshl_add_u32 {T0}, {T0}, 1, {T1}")
        e.op(f"v_bfe_u32 {T1}, {L}, 2, 2")
        e.op(f"v_lshl_add_u32 {T1}, {P1}, 3, {T1}")
        e.op(f"v_lshlrev_b32 {T1}, 8, {T1}")
        e.op(f"v_lshl_add_u32 {v(V_WR)}, {T0}, 3, {T1}")
        for j in range(1, 4): e.op(f"v_xor_b32 {v(V_WR+j)}, {(j >> 1) * 64 + (j & 1) * 16}, {v(V_WR)}")
        for j in range(4): e.op(f"v_add_u32 {v(V_WR+4+j)}, 0x10000, {v(V_WR+j)}")
        e.op(f"v_lshlrev_b32 {T0}, 4, {P0}")
        e.op(f"v_lshl_add_u32 {v(V_LH)}, {P1}, 9, {T0}")
        lv, ld = self.L("st1v"), self.L("st1d")
        e.op(f"s_cmp_ge_u32 {s(S_CG)}, 10")
        e.op(f"s_cbranch_scc1 {lv}")
        e.op(f"v_lshrrev_b32 {T0}, 5, {L}")
        e.op(f"v_mul_u32_u24 {T0}, {65536 - 1024}, {T0}")
        e.op(f"v_add_u32 {v(V_ST1)}, {T0}, {v(V_LH)}")
        for j in range(1, 4): e.op(f"v_add_u32 {v(V_ST1+j)}, {(j >> 1) * 131072 + (j & 1) * 128}, {v(V_ST1)}")
        e.op(f"s_branch {ld}")
        e.label(lv)
        e.op(f"s_lshl1_add_u32 {s(S_T1)}, {s(S_CG)}, {s(S_T1)}")
        e.op(f"s_lshl_b32 {s(S_T1)}, {s(S_T1)}, 6")
        e.op(f"s_sub_u32 {s(S_T1)}, {s(S_T1)}, 1280")
        e.op(f"v_add_u32 {T0}, {s(S_T1)}, {P0}")
        e.op(f"v_mul_u32_u24 {T2}, 640, {P1}")
        e.op(f"s_mov_b32 {s(S_T2)}, {64 * 2560 - 640}")
        for j in range(4):
            e.op(f"v_mul_u32_u24 {T3}, 1639, {T0}")
            e.op(f"v_lshrrev_b32 {T3}, 16, {T3}")
            e.op(f"v_lshl_add_u32 {T1}, {T0}, 4, {T2}")
            e.op(f"v_mad_u32_u24 {v(V_ST1+j)}, {T3}, {s(S_T2)}, {T1}")
            if j < 3: e.op(f"v_add_u32 {T0}, {24 if j & 1 else 8}, {T0}")
        e.label(ld)

    def late_lane_tables(self):
        e = self.e
        L = v(V_LANE); T0, T1, T2, T3 = v(V_T0), v(V_T1), v(V_T2), v(V_T3)
        e.op(f"v_and_b32 {T0}, 31, {L}")
        e.op(f"v_lshrrev_b32 {T1}, 5, {L}")
        e.op(f"v_lshlrev_b32 {v(V_R)}, 2, {T0}")
        e.op(f"s_lshl_b32 {s(S_T1)}, {s(S_WAVE)}, 10")
        e.op(f"s_add_u32 {s(S_T2)}, {s(S_T1)}, {L_K}")
        e.op(f"v_add_u32 {v(V_KA)}, {s(S_T2)}, {v(V_L16)}")
        e.op(f"s_mul_i32 {s(S_T1)}, {s(S_T1)}, 3")
        e.op(f"s_add_u32 {s(S_T1)}, {s(S_T1)}, {L_V}")
        e.op(f"v_lshl_add_u32 {T2}, {T1}, 7, {v(V_L16)}")
        e.op(f"v_add_u32 {v(V_VA)}, {s(S_T1)}, {T2}")
        e.op(f"v_lshlrev_b32 {T2}, 2, {T1}")
        e.op(f"v_sub_u32 {T2}, {T0}, {T2}")
        e.op(f"v_cvt_f32_i32 {T2}, {T2}")
        e.op(f"v_mov_b32 {T3}, {f32(2.0 ** 100)}")
        for rr in range(16):
            key = 8 * (rr >> 2) + (rr & 3)
            e.op(f"v_fmaak_f32 {v(CE + rr)}, {T2}, {T3}, {f32((0.5 - key) * 2.0 ** 100)}")
            e.op(f"v_min_f32 {v(CD + rr)}, 0, {v(CE + rr)}")
            e.op(f"v_min_f32 {v(CE + rr)}, -{v(CE + rr)}, 0")
        e.op(f"v_lshrrev_b32 {T1}, 4, {L}")
        e.op(f"v_lshl_add_u32 {v(V_HL)}, {T1}, 8, {v(V_L16)}")
    def late_table_use(self):
        e = self.e
        L = v(V_LANE); T0, T1, T2, T3 = v(V_T0), v(V_T1), v(V_T2), v(V_T3)
        for t in range(4): e.op(f"v_add_u32 {v(V_H + t)}, {s(S_HT + t)}, {v(V_HL)}")
        for k in range(3): e.op(f"v_add_u32 {v(V_KT + k)}, {s(S_KADJ + k)}, {v(V_L16)}")
        e.op(f"v_add_u32 {v(V_Q)}, {s(S_QOFF)}, {v(V_L16)}")
        e.op(f"v_lshl_add_u32 {v(V_R)}, {s(S_TQ)}, 8, {v(V_R)}")
        e.op(f"v_add_u32 {v(V_R)}, {WS_G}, {v(V_R)}")
        e.op(f"v_min_u32 {T0}, 59, {L}")
        e.op(f"v_and_b32 {T1}, 3, {T0}")
        e.op(f"v_lshl_add_u32 {T1}, {T1}, 3, {s(S_PFD)}")
        e.op(f"v_lshrrev_b32 {T0}, 2, {T0}")
        e.op(f"v_lshl_add_u32 {T1}, {T0}, 7, {T1}")
        e.op(f"s_mul_i32 {s(S_T0)}, {s(S_WAVE)}, {-9 * 128}")
        e.op(f"s_add_u32 {s(S_T0)}, {s(S_T0)}, {36 * 128}")
        e.op(f"v_cmp_lt_u32 vcc, 47, {L}")
        e.op(f"v_add_u32 {T0}, {s(S_T0)}, {T1}")
        e.op(f"v_cndmask_b32 {v(V_FD)}, {T1}, {T0}, vcc")
        e.op(f"v_lshrrev_b32 {T0}, 1, {L}")
        e.op(f"v_min_u32 {T0}, 3, {T0}")
        e.op(f"v_and_b32 {T1}, 1, {L}")
        e.op(f"v_lshl_add_u32 {T1}, {T1}, 3, {s(S_PFC)}")
        e.op(f"v_lshl_add_u32 {v(V_FC)}, {T0}, 7, {T1}")
        e.op(f"v_writelane_b32 {v(V_FC)}, {s(S_PFG)}, 63")
        e.op(f"s_lshr_b32 {s(S_T0)}, {s(S_BITS)}, 2")
        e.op(f"v_writelane_b32 {v(V_FC)}, {s(S_T0)}, 62")
        e.op(f"s_lshr_b32 {s(S_T0)}, {s(S_TQ)}, 2")
        e.op(f"s_sub_u32 {s(S_T0)}, {s(S_T0)}, 2")
        e.op(f"v_lshrrev_b32 {T0}, 4, {L}")
        e.op(f"v_min_u32 {T0}, 2, {T0}")
        e.op(f"v_add_u32 {T0}, {s(S_T0)}, {T0}")
        e.op(f"v_max_i32 {T0}, 0, {T0}")
        e.op(f"v_and_b32 {T1}, 3, {L}")
        e.op(f"v_lshl_add_u32 {T1}, {T1}, 3, {s(S_PFA)}")
        e.op(f"v_lshl_add_u32 {T0}, {T0}, 11, {T1}")
        e.op(f"v_bfe_u32 {T1}, {L}, 2, 1")
        e.op(f"v_mad_u32_u24 {T0}, {T1}, {s(S_ASTEP)}, {T0}")
        e.op(f"v_cmp_gt_u32 vcc, 48, {L}")
        e.op(f"v_bfe_u32 {T1}, {L}, 3, 1")
        e.op(f"v_add_u32 {T1}, 1, {T1}")
        e.op(f"v_mul_u32_u24 {T1}, 640, {T1}")
        e.op(f"v_cndmask_b32 {T1}, 0, {T1}, vcc")
        e.op(f"v_add_u32 {v(V_FA)}, {T0}, {T1}")

    def rt_tables(self, base):
        e = self.e
        L = v(V_LANE); T0, T1, T2, T3 = v(V_T0), v(V_T1), v(V_T2), v(V_T3)
        P0, P1 = v(V_POLL), v(V_POLL + 1)
        e.op(f"s_and_b32 {s(S_T0)}, {s(S_WAVE)}, 1")
        e.op(f"s_mul_i32 {s(S_T0)}, {s(S_T0)}, 160")
        e.op(f"v_add_u32 {T0}, {s(S_T0)}, {L}")
        for i in range(3):
            e.op(f"v_mul_u32_u24 {T1}, 820, {T0}")
            e.op(f"v_lshrrev_b32 {T1}, 16, {T1}")
            e.op(f"v_lshlrev_b32 {T1}, 2, {T1}")
            e.op(f"v_xor_b32 {T1}, {T0}, {T1}")
            e.op(f"v_lshlrev_b32 {v(RT_LD + i)}, 4, {T1}")
            if i < 2: e.op(f"v_add_u32 {T0}, 64, {T0}")
        e.op(f"v_lshrrev_b32 {T0}, 4, {L}")
        e.op(f"v_and_b32 {T1}, 3, {L}")
        e.op(f"v_bfe_u32 {P1}, {L}, 2, 2")
        e.op(f"v_lshlrev_b32 {T3}, 3, {P1}")
        e.op(f"v_mul_u32_u24 {P1}, 1280, {P1}")
        e.op(f"v_add_u32 {P1}, {base}, {P1}")
        e.op(f"s_lshl_b32 {s(S_T0)}, {s(S_WAVE)}, 5")
        e.op(f"v_and_b32 {P0}, 1, {T0}")
        e.op(f"v_lshl_add_u32 {T2}, {T1}, 1, {P0}")
        e.op(f"v_lshrrev_b32 {v(RT_D)}, 5, {L}")
        e.op(f"v_lshl_add_u32 {T2}, {v(RT_D)}, 3, {T2}")
        e.op(f"v_add_u32 {T2}, {s(S_T0)}, {T2}")
        for i in range(2):
            if i: e.op(f"v_add_u32 {T2}, 16, {T2}")
            e.op(f"v_xor_b32 {v(RT_D)}, {T2}, {T3}")
            e.op(f"v_lshl_add_u32 {v(RT_RD + i)}, {v(RT_D)}, 3, {P1}")
        e.op(f"v_lshl_add_u32 {T2}, {P0}, 2, {T1}")
        e.op(f"s_lshl3_add_u32 {s(S_T0)}, {s(S_WAVE)}, 0x80")
        e.op(f"v_add_u32 {T2}, {s(S_T0)}, {T2}")
        e.op(f"v_xor_b32 {T2}, {T2}, {T3}")
        e.op(f"v_lshl_add_u32 {v(RT_RD + 2)}, {T2}, 3, {P1}")
        e.op(f"v_mul_u32_u24 {T0}, {1024 - 256}, {T0}")
        e.op(f"v_add_u32 {v(RT_ST)}, {T0}, {v(V_L16)}")
        e.op(f"v_add_u32 {v(RT_ST + 1)}, {74 * 5120}, {v(RT_ST)}")
        e.op(f"s_mov_b32 {s(S_T0)}, {74 * 5120 - 256}")
        e.op(f"v_mad_u32_u24 {T0}, {P0}, {s(S_T0)}, {v(V_L16H)}")
        e.op(f"v_add_u32 {v(RT_ST + 2)}, 4096, {T0}")
    def rt_srd(self, reg=S_BITS, bit=1):
        e = self.e
        e.op(f"s_bitcmp1_b32 {s(reg)}, {bit}")
        e.op(f"s_cselect_b64 {s(S_MISC,2)}, {s(S_PWO,2)}, {s(S_PW2,2)}")
        e.op(f"s_mov_b32 {s(S_MISC+2)}, {640 * 1280}")
        e.op(f"s_cselect_b32 {s(S_MISC+2)}, {s(S_MISC+2)}, {1728 * 1280}")
    def rt_loads(self, base, src, sw):
        e = self.e
        for i in range(3):
            e.op(f"s_add_u32 m0, {s(sw)}, {base + i * 1024}")
            if i == 2: e.op("s_mov_b32 exec_hi, 0")
            e.op(f"buffer_load_dwordx4 {v(RT_LD + i)}, {s(S_MISC,4)}, {s(src)} offen {self.nt}lds", tag="rl")
            if i == 2: e.op("s_mov_b32 exec_hi, -1")
    def rt_reads(self, lo_=0, D=RT_D):
        return [lambda i=i, u=u: self.e.op(f"ds_read_b64_tr_b16 {v(D + 4 * i + 2 * u, 2)}, {v(RT_RD + i)} offset:{lo_ + u * 5120}", tag=("rt", i))
                for i in range(3) for u in range(2)]
    def rt_stores(self, D=RT_D, so=S_RTS):
        e = self.e
        def st(i):
            e.wait(lg=("rt", i))
            e.op(f"buffer_store_dwordx4 {v(D + 4 * i, 4)}, {v(RT_ST + i)}, {s(S_WS,4)}, {s(so)} offen sc1", tag="rs")
        return [lambda i=i: st(i) for i in range(3)]

    EARLY_W = (0, 1, 2, 3)
    def w_loads(self, n):
        e = self.e
        def f(j):
            dst = r(WR + 20 * (n % NWR) + 4 * j, 4)
            if n == 13:
                if j in (0, 4):
                    e.op(f"s_add_u32 {s(S_T2)}, {s(S_WT0)}, {n * 5120 - 2048 + (4096 if j else 0)}")
                    e.op(f"s_cmp_lt_u32 {s(S_WAVE)}, 2")
                    e.op(f"s_cselect_b32 {s(S_T2)}, {s(S_T2)}, {OOB}")
                e.op(f"buffer_load_dwordx4 {dst}, {v(V_L16)}, {s(S_WS,4)}, {s(S_T2)} offen offset:{(j & 3) * 1024} sc1", tag=("w", n, j))
                return
            if j == 0:
                base, off = (S_WT0, n * 5120) if n < 14 else (S_WT1, (n - 14) * 5120)
                if self.wv is None or self.wv[0] != base:
                    e.op(f"v_add_u32 {v(V_WV)}, {s(base)}, {v(V_L16)}")
                    self.wv = (base, 0)
                if off != self.wv[1]: e.op(f"v_add_u32 {v(V_WV)}, {off - self.wv[1]}, {v(V_WV)}")
                self.wv = (base, off)
            e.op(f"global_load_dwordx4 {dst}, {v(V_WV)}, {s(S_WS,2)} offset:{j * 1024 - 2048} sc1", tag=("w", n, j))
        return [lambda j=j: f(j) for j in range(5)]
    @property
    def LDS_W(self):
        return (14, 15, 16)[:self.o("nlds", 2)]
    def wl_dmas(self):
        e = self.e
        def f(i):
            if i == 0:
                e.op(f"s_mul_i32 {s(S_T4)}, {s(S_WAVE)}, 20480")
                e.op(f"s_lshl_b32 {s(S_T2)}, {s(S_WAVE)}, 3")
                e.op(f"s_lshr_b32 {s(S_T2)}, {hex(sum((54 + 5 * w - KS0[w]) << (8 * w) for w in range(4)))}, {s(S_T2)}")
                e.op(f"s_and_b32 {s(S_T2)}, {s(S_T2)}, 0xff")
                e.op(f"s_mul_i32 {s(S_T2)}, {s(S_T2)}, 5120")
                e.op(f"s_add_u32 {s(S_DM)}, {s(S_T2)}, {s(S_WT0)}")
            if i % 4 == 0:
                e.op(f"s_add_u32 m0, {s(S_T4)}, {L_W + i * 1024}")
                e.op(f"s_add_u32 {s(S_DM)}, {s(S_DM)}, {4096 if i else -2048}")
            e.op(f"buffer_load_dwordx4 {v(V_L16)}, {s(S_WS,4)}, {s(S_DM)} offen offset:{(i % 4) * 1024} sc1 lds", tag="wl")
        return [lambda i=i: f(i) for i in range(5 * len(self.LDS_W))]
    @property
    def TM(self): return self.o("tm", 3)
    def hreg(self, n, t):
        n0 = 19 - self.TM
        if n < n0: return HSLOT[n % NH] + 4 * t
        i = self.TM * t + (n - n0)
        return HSLOT[(n0 + i // 4) % NH] + 4 * (i % 4)
    def h_load(self, n, t):
        e = self.e
        dst = v(self.hreg(n, t), 4)
        if n >= 14:
            q = n - 14
            so = ("0", s(S_C1), s(S_C2))[q >> 1]
            e.op(f"buffer_load_dwordx4 {dst}, {v(V_O + t)}, {s(S_WS,4)}, {so} offen offset:{(q & 1) * 2048} sc1", tag=("h", n, t))
            return
        if t == 0 and n > 1 and n % 2 == 0:
            e.op(f"s_movk_i32 {s(S_HK)}, {n * 2048}")
            self.hk = n
        if t == 0 and n == 13:
            e.op(f"s_cmp_lt_u32 {s(S_WAVE)}, 2")
            e.op(f"s_cselect_b32 {s(S_T5)}, {s(S_HK)}, {OOB}")
        assert n < 2 or self.hk == n & ~1
        e.op(f"buffer_load_dwordx4 {dst}, {v(V_H + t)}, {s(S_WS,4)}, {s(S_T5) if n == 13 else s(S_HK) if n > 1 else 0} offen offset:{(n & 1) * 2048} sc1", tag=("h", n, t))
    def kvq_loads(self):
        e = self.e
        so = ("0", s(S_C1), s(S_C2))
        def q(f): e.op(f"buffer_load_dwordx4 {v(VQ + 4 * f, 4)}, {v(V_Q)}, {s(S_WS,4)}, {so[f]} offen sc1", tag="q")
        def k(f, i):
            if f == 0 and i == 0: e.op(f"s_mul_i32 {s(S_T5)}, {s(S_WAVE)}, 3072")
            if i == 0: e.op(f"s_add_u32 m0, {s(S_T5)}, {L_K + f * 12288}")
            e.op(f"buffer_load_dwordx4 {v(V_KT + i)}, {s(S_WS,4)}, {so[f]} offen offset:{i * 1024} sc1 lds", tag="kd")
        def vv(i, n):
            if i == 0 and n == 0: e.op(f"s_mul_i32 {s(S_T5)}, {s(S_WAVE)}, 9216")
            if n == 0: e.op(f"s_add_u32 m0, {s(S_T5)}, {L_V + i * 3072}")
            e.op(f"buffer_load_dwordx4 {v(V_L16H if n == 2 else V_L16)}, {s(S_WS,4)}, {s(S_VOFF + i)} offen offset:{n * 1024} sc1 lds", tag="vd")
        return [lambda f=f: q(f) for f in range(3)] + [lambda f=f, i=i: k(f, i) for f in range(3) for i in range(3)] + \
               [lambda i=i, n=n: vv(i, n) for i in range(3) for n in range(3)]

    @staticmethod
    def tile_of(i):
        j, t0, k0 = i >> 3, (i >> 1) & 3, i & 1
        return j, (3 - t0 if j & 1 else t0), k0 ^ (t0 & 1)
    def w_read(self, st, f, u):
        j, ks = f >> 1, f & 1
        off = L_W + (st % NW) * 16384 + ks * 8192 + u * 1024
        ad = V_WR + j
        if off >= 65536: off -= 65536; ad += 4
        self.e.op(f"ds_read_b64_tr_b16 {v(V_FR + 4 * f + 2 * u, 2)}, {v(ad)} offset:{off}", tag=("w", st, f))
    def xreg(self, xs, ks, tt): return A_X + 32 * self.XREG.get(xs, NXR) + 16 * ks + 4 * tt
    def x_read(self, st, ks, tt):
        xs = self.xst(st)
        self.e.op(f"ds_read_b128 {r(self.xreg(xs, ks, tt), 4)}, {v(V_XR + ks)} offset:{(tt >> 1) * 16384 + self.XSLOT[xs] * 4096 + (tt & 1) * 1024}", tag=("x", st, ks, tt))
    def accreg(self, ps, tt, j, swap):
        b, p, G, q = tt >> 1, tt & 1, j >> 1, j & 1
        return ACC[ps] + 32 * G + (16 * q + 8 * b + 4 * p if swap else 16 * p + 8 * b + 4 * q)

    @property
    def LEAD(self): return self.o('lead', 11)
    def stage1_fill(self):
        e = self.e
        fill = {m: [] for m in range(-1, 640)}
        used = {m: 0 for m in range(-1, 640)}
        def at(m, f, n=1):
            fill[max(m, -1)].append(f); used[max(m, -1)] += n
        WG = (1, 2, 9, 11, 15, 17, 21, 23)
        for st in range(20):
            b = 32 * st - self.LEAD
            def bar(st=st):
                assert ("d", st) in e.all_tags
                e.wait(vm=("d", st), lg="all")
                e.op("s_barrier")
            at(b, bar, 2)
            for f in range(8):
                for u in range(2): at(b + WG[f], lambda st=st, f=f, u=u: self.w_read(st, f, u))
            for f in range(8):
                rd = lambda st=st, f=f: self.x_read(st, f & 1, f >> 1)
                if st < 10: at(b + 3 + (f >> 1), rd)
                elif st > 10 and self.xst(st) not in self.XREG: at(b - 32 + (13, 13, 19, 19, 25, 25, 27, 27)[f], rd)
            for g in (-1, 3, 7, 15): used[max(32 * st + g, -1)] += 1
        return fill, used

    def vm_schedule(self, fill, used, queues, m0, m1, thr):
        lag = 0
        for m in range(m0, m1):
            lag = max(0, lag - 16)
            heads = [q for q in queues if q and q[0][0] <= m]
            if not heads: continue
            q = min(heads, key=lambda q: q[0][1])
            if (used[m] or m % 2 == 0) and q[0][1] + 3 > m: continue
            if q[0][1] <= m or lag <= thr:
                rel, dl, cost, f = q.pop(0)
                fill[m].append(f); used[m] += 2
                lag = min(lag, 3 * 72) + cost
        assert not any(queues), [len(q) for q in queues]
    def va_place(self, fill, used, ops, m0, m1):
        cap = 2
        while sum(max(0, cap - used[m]) for m in range(m0, m1)) < len(ops): cap += 1
        over = len(ops) - sum(max(0, cap - 1 - used[m]) for m in range(m0, m1)) if cap > 2 else len(ops)
        ops = list(ops)
        for m in range(m0, m1):
            n = max(0, cap - 1 - used[m]) if cap > 2 else 0
            ex = max(0, cap - used[m]) - n
            ex = min(ex, over); over -= ex
            for _ in range(n + ex):
                if ops: fill[m].append(ops.pop(0)); used[m] += 1
        assert not ops

    def p1_epilogue_ops(self):
        e = self.e
        groups = []
        for g in range(8):
            A = ACC[0] + 8 * g
            ops = [lambda A=A, q=q: e.op(f"v_mul_f32 {v(A+q)}, {s(S_SCALE)}, {v(A+q)}") for q in range(8)]
            ops += [lambda A=A, q=q: e.op(f"v_cvt_pk_bf16_f32 {v(A+q)}, {v(A+2*q)}, {v(A+2*q+1)}") for q in range(4)]
            ops.append(lambda A=A, g=g: e.op(f"buffer_store_dwordx4 {v(A,4)}, {v(V_ST1 + (g >> 1))}, {s(S_WS,4)}, {s(S_ST1B if g & 1 else S_ST1)} offen sc1", tag="st1"))
            groups.append(ops)
        return groups
    def p2_epilogue_ops(self):
        e = self.e
        groups = []
        for g in range(8):
            A = ACC[1] + 8 * g
            ops = [lambda A=A, q=q: e.op(f"v_cvt_pk_bf16_f32 {v(A+q)}, {v(A+2*q)}, {v(A+2*q+1)}") for q in range(4)]
            ops += [lambda A=A, q=q: e.op(f"v_pk_max_i16 {v(A+q)}, {v(A+q)}, 0") for q in range(4)]
            ops.append(lambda A=A, g=g: e.op(f"buffer_store_dwordx4 {v(A,4)}, {v(V_LH)}, {s(S_WS,4)}, {s(S_ST2B if g & 1 else S_ST2)} offen offset:{(g >> 2) * 2048 + ((g >> 1) & 1) * 128} sc1", tag="st2"))
            groups.append(ops)
        return groups

    def stage1_stream(self, fill, m0, m1, swap):
        e = self.e
        for m in range(m0, m1):
            st, i = divmod(m, 32)
            j, tt, ks = self.tile_of(i)
            if ("w", st, 2 * j + ks) in e.lg or ("x", st, ks, tt) in e.lg:
                e.wait(lg=[("w", st, 2 * j + 1), ("x", st, 1, tt | 1)])
            acc = v(self.accreg(st // 10, tt, j, swap), 4)
            wf = v(V_FR + 4 * (2 * j + ks), 4)
            xf = r(self.xreg(self.xst(st), ks, tt), 4)
            c = "0" if (st % 10 == 0 and i % 2 == 0) else acc
            if swap: e.op(f"v_mfma_f32_16x16x32_bf16 {acc}, {xf}, {wf}, {c}")
            else: e.op(f"v_mfma_f32_16x16x32_bf16 {acc}, {wf}, {xf}, {c}")
            for fn in fill[m]: fn()

    def ones_init(self):
        e = self.e
        def first():
            e.op(f"s_mov_b32 {s(S_MASK)}, 0x11000000")
            e.op(f"s_mov_b32 {s(S_MASK+1)}, 0x11000000")
            e.op(f"v_mov_b32 {v(VF)}, 0x3f803f80")
        return [first, lambda: e.op(f"v_cndmask_b32 {v(VF)}, 0, {v(VF)}, {s(S_MASK,2)}")] + \
               [lambda i=i: e.op(f"v_mov_b32 {v(VF + i)}, {v(VF)}") for i in range(1, 8)]

    def stage1(self):
        e = self.e
        lead = self.LEAD
        nc, c0, ne = self.o("tnc", 0), self.o("tch0", 2), self.o("tne", 1)
        S_TX, S_TW = 98, 99
        tstr = self.o("tstr", nc)
        def touch_setup():
            e.op(f"s_lshl2_add_u32 {s(S_T0)}, s2, {s(S_WAVE)}")
            nx, nw_ = -(-2048 // 960), 2 * nc
            e.op(f"v_min_u32 {v(30)}, {nx * nc - 1}, {v(V_LANE)}")
            e.op(f"v_mul_u32_u24 {v(31)}, {-(-65536 // nc)}, {v(30)}")
            e.op(f"v_lshrrev_b32 {v(31)}, 16, {v(31)}")
            e.op(f"v_mul_u32_u24 {v(31)}, {10 - nc}, {v(31)}")
            e.op(f"v_add_lshl_u32 {v(30)}, {v(30)}, {v(31)}, 7")
            e.op(f"s_mul_i32 {s(S_TX)}, {s(S_T0)}, {nx * 1280}")
            e.op(f"v_min_u32 {v(31)}, {nw_ - 1}, {v(V_LANE)}")
            e.op(f"v_lshlrev_b32 {v(31)}, 7, {v(31)}")
            e.op(f"s_mul_i32 {s(S_TW)}, {s(S_T0)}, {nw_ * 128}")
            e.op(f"s_add_u32 {s(S_TW)}, {s(S_TW)}, {c0 * 64 * 3840}")
        def touch(k):
            if k == 0: touch_setup()
            e.op(f"buffer_load_dword {v(28)}, {v(30)}, {s(S_X,4)}, {s(S_TX)} offen offset:{(c0 + k * tstr) * 128}")
            if k: e.op(f"s_add_u32 {s(S_TW)}, {s(S_TW)}, {tstr * 64 * 3840}")
            e.op(f"buffer_load_dword {v(29)}, {v(31)}, {s(S_WA,4)}, {s(S_TW)} offen")
        tpos = [self.o("tpos", 0) + k * self.o("tstep", 1) for k in range(ne)] if nc else []
        def touch_at(p):
            for k in range(len(tpos)):
                if tpos[k] == p: touch(k)
        touch_at(-1)
        for f in self.dmas(0): f()
        touch_at(0)
        self.pi_setup(None, True)
        self.common_setup()
        self.stage1_tables()
        d1 = self.dmas(1)
        for f in d1[:4]: f()
        self.rt_tables(L_RT)
        lsu = self.o("lsu", 4)
        if not lsu: self.late_lane_tables()
        for f in d1[4:]: f()
        touch_at(1)
        e.wait(lg="all")
        self.flush_stamp()
        rtp = self.o("rtpos", 1)
        def rt_go():
            e.op(f"s_mul_i32 {s(S_T5)}, {s(S_WAVE)}, 2560")
            self.rt_loads(L_RT, S_RTSRC, S_T5)
        def gw_go():
            e.op(f"s_mov_b64 {s(S_MISC,2)}, {s(S_PG,2)}")
            e.op(f"s_cmp_eq_u32 {s(S_CG)}, 14")
            e.op(f"s_cselect_b32 {s(S_MISC+2)}, 1280, 0")
            e.op(f"s_lshr_b32 {s(S_T5)}, {s(S_WM0)}, 1")
            e.op(f"s_add_u32 m0, {s(S_T5)}, {L_GW}")
            for n in range(2):
                e.op(f"buffer_load_dwordx4 {v(V_L16)}, {s(S_MISC,4)}, 0 offen offset:{n * 1024} lds", tag="gw")
        self.rt_srd()
        if rtp == 1: rt_go()
        if not lsu: self.late_table_use()
        fill, used = self.stage1_fill()
        vfill = {m: [] for m in range(-1, 640)}
        G2 = lambda k, d: 2 * self.o(k, d)
        dq = []
        for st in range(2, 20):
            d = self.dmas(st)
            rel = 32 * (st - (2 if st < 10 else 4)) - lead + 1
            g0 = max(32 * (st - 2) - lead + 1, 0); g1 = 32 * (st - 1) - lead - 2
            dq += [(rel, g0 + i * (g1 - g0) // len(d), 72, f) for i, f in enumerate(d)]
            if st == rtp: dq.append((rel, g1 - 1, 180, rt_go))
            if st == 9: dq.append((rel, g1 - 1, 40, gw_go))
            if st in tpos: dq.append((rel, g1 - 1, 40, lambda st=st: touch_at(st)))
        pA, cA = G2("pollA", 263), G2("chkA", 280)
        assert cA > 32 * 16 - lead
        kv = self.kvq_loads()
        dq += [(cA + 1, cA + 1 + i * (634 - cA) // len(kv), 72, f) for i, f in enumerate(kv)]
        rs0 = G2("rs0", 16 * rtp + 30)
        rr0 = 32 * (rtp + 2) - lead - 6 if rs0 >= 32 * (rtp + 2) - lead else 32 * (rtp + 1) - lead + 4
        assert rs0 > rr0 + 4
        for i, f in enumerate(self.rt_reads()):
            fill[rr0 + i // 2].append(f); used[rr0 + i // 2] += 1
        sq = [(rs0 + 12 * i, rs0 + 12 * i, 128, f) for i, f in enumerate(self.rt_stores())]
        sq.append((rs0 + 28, rs0 + 28, 20, self.nonce_issue))
        pd = (rs0 + 28 + 48 + lead + 31) // 32 * 32 - lead
        pd = max(pd, 32 * self.o("pdst", 0) - lead)
        fill[pd].insert(0, self.nonce_check)
        sq.append((pd + 1, pd + 1, 20, lambda: self.publish(S_RTF)))
        sp, e0 = G2("epi", 4), 321
        epi1 = self.p1_epilogue_ops()
        for g, ops in enumerate(epi1): sq.append((e0 + sp * (g + 1), e0 + sp * (g + 1), self.o("stc", 160), ops[-1]))
        def pub_a():
            e.wait(vm="st1")
            self.publish(S_FLA)
            if self.o("stpub", 0): self.stamp(1)
        pD, cD = G2("pollD", 222), G2("chkD", 240)
        assert cD >= 32 * 15
        sq += sorted([(pD, pD, 20, lambda: self.poll_issue(V_FD)), (G2("pubA", 216), G2("pubA", 216), 20, pub_a)], key=lambda x: x[0])
        vfill[cD].append(lambda: self.poll_check(V_FD, 1)); used[cD] += 3
        sq.append((pA, pA, 30, lambda: self.poll_issue(V_FA)))
        if self.o("pollA2", 0): sq.append((G2("pollA2", 0), G2("pollA2", 0), 30, lambda: self.poll_again(V_FA)))
        vfill[cA].append(lambda: self.poll_check(V_FA, 0)); used[cA] += 3
        vfill[cA].append(lambda: self.stamp(3))
        ew = sum([self.w_loads(n) for n in self.EARLY_W], [])
        wq = [(cD + 1, cA - 4 * (len(ew) - i), 72, f) for i, f in enumerate(ew)]
        self.vm_schedule(fill, used, [dq, sq, wq], 0, 640, self.o("thr", 80))
        if lsu: self.va_place(vfill, used, self.capture(self.late_lane_tables, self.late_table_use), self.o("lsu0", 0) * 32, 32 * lsu)
        for g, ops in enumerate(epi1): self.va_place(vfill, used, ops[:-1], e0 + sp * g, e0 + sp * (g + 1))
        self.va_place(vfill, used, self.ones_init(), e0 + sp * 8 + 8, e0 + sp * 8 + 40)
        epi2 = self.p2_epilogue_ops()
        self.p2_stores_left = [g[-1] for g in epi2]
        va = sum([g[:-1] for g in epi2], [])
        if self.o("qh", 1): self.va_place(vfill, used, self.q_mask_ops(), 604, 626)
        nh = self.o("p2h", 24)
        self.va_place(vfill, used, va[:nh], 626, 640)
        self.p2_valu_left = va[nh:]
        z = self.o("zoom", 0)
        if z in (1, 2):
            for k in range(11):
                m = min(320 * (z - 1) + 32 * k - 1, 639 if z == 2 else 318)
                if z == 2 and k == 0: m = 320
                vfill[m].append(lambda k=k: self.stamp(1 + k, True))
            vfill[319].append(self.flush_stamp)
        for m in fill: fill[m] += vfill[m]
        for fn in fill[-1]: fn()
        if z == 1: self.flush_stamp()
        self.stamp(1)
        e.op(f"s_cmp_ge_u32 {s(S_CG)}, 10")
        e.op("s_cbranch_scc1 L_p1v")
        snap = e.snapshot()
        self.stage1_stream(fill, 0, 320, False)
        e.op("s_branch L_p2")
        after = e.snapshot()
        e.restore(snap)
        e.label("L_p1v")
        self.stage1_stream(fill, 0, 320, True)
        e.op(f"s_cmp_eq_u32 {s(S_CG)}, 14")
        e.op("s_cbranch_scc1 L_gate")
        self.gate_snap = e.snapshot()
        assert after[0] == e.vm and after[1] == e.lg
        e.label("L_p2")
        self.stamp(2)
        self.wv = None
        self.stage1_stream(fill, 320, 640, False)
        self.flush_stamp()

    def side_tail(self, early=True):
        e = self.e
        if early:
            if self.o("go", 1) & 1:
                e.op(f"s_sub_u32 {s(S_T1)}, s2, 240")
                e.op(f"s_lshl4_add_u32 {s(S_T1)}, {s(S_T1)}, {s(S_WAVE)}")
                e.op(f"s_lshl3_add_u32 {s(S_T1)}, {s(S_T1)}, {FL_GO}")
                e.op(f"v_mov_b32 {v(28)}, {s(S_T1)}")
                self.poll_issue(28); self.poll_check(28, 5)
            self.poll_issue(V_FD)
            for f in self.ones_init(): f()
            self.poll_check(V_FD, 1)
            self.wv = None
            ew = sum([self.w_loads(n) for n in self.EARLY_W], [])
            if self.o("go", 1) & 2:
                for f in ew: f()
                e.op(f"v_mov_b32 {v(28)}, {s(S_PFG)}")
                self.poll_issue(28); self.poll_check(28, 5)
                self.poll_issue(V_FA)
            else:
                for f in ew[:12]: f()
                self.poll_issue(V_FA)
                for f in ew[12:]: f()
        self.poll_check(V_FA, 0)
        for f in self.kvq_loads(): f()
        if self.o("qh", 1):
            for f in self.q_mask_ops(): f()
        e.wait(lg="all")
        n = min(len(self.att_vm), 21)
        assert n >= 10 and e.vm[-n:] == self.att_vm[-n:] and all(t[0] == "w" or t == "poll2" for t in self.att_vm[:-n])
        e.op("s_branch L_att")

    def gate(self):
        e = self.e
        T1, T2, T3 = v(V_T1), v(V_T2), v(V_T3)
        e.restore(self.gate_snap)
        e.label("L_gate")
        self.stamp(1)
        self.poll_issue(V_FD)
        if self.o("go", 1) & 1:
            e.op(f"s_lshr_b32 {s(S_T1)}, {s(S_TB1)}, 2")
            e.op(f"s_lshl4_add_u32 {s(S_T1)}, {s(S_T1)}, {s(S_WAVE)}")
            e.op(f"s_lshl3_add_u32 {s(S_T1)}, {s(S_T1)}, {FL_GO}")
            self.publish(S_T1)
        e.op(f"s_lshr_b32 {s(S_T3)}, {s(S_WM0)}, 1")
        e.op(f"s_add_u32 {s(S_T3)}, {s(S_T3)}, {L_GW}")
        e.op(f"v_lshrrev_b32 {T1}, 4, {v(V_LANE)}")
        e.op(f"v_lshl_add_u32 {T1}, {T1}, 4, {s(S_T3)}")
        assert "gw" in e.all_tags
        e.wait(vm="gw", lg="all")
        epi = sum(self.p1_epilogue_ops(), [])
        self.wv = None
        ew = sum([self.w_loads(n) for n in self.EARLY_W], [])
        G = 32
        order = [9, 0, 1, 2, 7, 3, 4, 5, 6, 8]
        def gread(k):
            if k % 2 == 0:
                self.pi_off(S_T4, order[k // 2], 0)
                e.op(f"v_add_u32 {T2}, {s(S_T4)}, {T1}")
            e.op(f"ds_read_b128 {v(G + 4 * (k % 4), 4)}, {T2} offset:{64 * (k % 2)}", tag=("g", k))
        for k in range(4): gread(k)
        for _ in range(13 * self.o("gpre", 4)): epi.pop(0)()
        for k in range(20):
            if k == self.o("gpub", 14):
                assert not epi
                e.wait(vm="st1")
                self.publish(S_FLA)
                self.stamp(2)
                self.poll_check(V_FD, 1)
            if k > max(self.o("gpub", 14), 7): ew.pop(0)()
            xs, ks = order[k // 2], k % 2
            e.wait(lg=[("g", k), ("x", xs, ks, 3)])
            for tt in range(4):
                e.op(f"v_mfma_f32_16x16x32_bf16 {v(48 + 4 * tt, 4)}, {v(G + 4 * (k % 4), 4)}, {r(self.xreg(xs, ks, tt), 4)}, {'0' if k == 0 else v(48 + 4 * tt, 4)}")
                if k in (2, 3, 10, 11): self.x_read(7 if k < 8 else 5, ks, tt)
                if tt == 3 and k + 4 < 20: gread(k + 4)
                for _ in range(2 if tt < 3 else 0):
                    if epi: epi.pop(0)()
        assert not epi
        e.op("s_barrier")
        for f in self.ones_init(): f()
        e.op(f"s_bitcmp1_b32 {s(S_WAVE)}, 0")
        e.op(f"s_cselect_b64 {s(S_MASK,2)}, -1, 0")
        e.op("s_mov_b32 vcc_lo, 0xffff0000")
        e.op("s_mov_b32 vcc_hi, 0xffff0000")
        e.op(f"v_cndmask_b32 v0, v48, v56, {s(S_MASK,2)}")
        e.op(f"v_cndmask_b32 v4, v52, v60, {s(S_MASK,2)}")
        e.op("v_cndmask_b32 v0, v0, v4, vcc")
        e.op(f"v_min_f32 {T1}, {f32(30.0)}, v0")
        e.op(f"v_mul_f32 {T1}, {f32(LOG2E)}, {T1}")
        e.op(f"v_exp_f32 {T1}, {T1}")
        e.op(f"v_add_f32 {T2}, 1.0, {T1}")
        e.op(f"v_rcp_f32 {T2}, {T2}")
        e.op(f"v_cmp_gt_u32 vcc, 32, {v(V_LANE)}")
        e.op(f"v_and_b32 {T3}, 39, {v(V_LANE)}")
        e.op(f"v_bfe_u32 v1, {v(V_LANE)}, 3, 1")
        e.op(f"v_lshl_add_u32 {T3}, v1, 4, {T3}")
        e.op(f"v_bfe_u32 v1, {v(V_LANE)}, 4, 1")
        e.op(f"v_lshl_add_u32 {T3}, v1, 3, {T3}")
        e.op(f"v_lshlrev_b32 {T3}, 2, {T3}")
        e.op(f"s_lshl_b32 {s(S_T1)}, {s(S_TB1)}, 8")
        e.op(f"s_add_u32 {s(S_T1)}, {s(S_T1)}, {WS_G}")
        e.op(f"v_cndmask_b32 {T1}, {T2}, {T1}, vcc")
        e.op(f"buffer_store_dword {T1}, {T3}, {s(S_WS,4)}, {s(S_T1)} offen sc1", tag="gs")
        e.op(f"v_bfe_u32 {T2}, {v(V_LANE)}, 2, 2")
        e.op(f"v_and_b32 {T3}, 3, {v(V_LANE)}")
        e.op(f"v_lshlrev_b32 {T3}, 3, {T3}")
        e.op(f"v_lshl_add_u32 {T2}, {T2}, 7, {T3}")
        e.op(f"v_add_u32 {v(225)}, {FL_D + 60 * 128}, {T2}")
        self.poll_issue(225)
        for f in ew: f()
        self.poll_check(225, 4)
        self.poll_issue(V_FA)
        self.publish(S_FLA, 128)
        self.stamp(3)
        self.flush_stamp()
        self.side_tail(False)

    def spare(self):
        e = self.e
        e.restore(self.spare_snap)
        e.label("L_spare")
        L = v(V_LANE); T0, T1, T2, T3 = v(V_T0), v(V_T1), v(V_T2), v(V_T3)
        if self.o("tlbw", 1):
            e.op(f"s_lshl_b32 {s(S_T0)}, {s(S_WAVE)}, 3")
            e.op(f"s_lshr_b32 {s(S_T0)}, {hex(32 | (40 << 8) | (16 << 16) | (48 << 24))}, {s(S_T0)}")
            e.op(f"s_and_b32 {s(S_T0)}, {s(S_T0)}, 0xff")
            e.op(f"s_load_dwordx2 {s(S_MISC,2)}, s[0:1], {s(S_T0)}")
            e.op(f"s_mov_b32 {s(S_MISC+2)}, {640 * 3456}")
            e.op(f"s_cmp_eq_u32 {s(S_WAVE)}, 2")
            e.op(f"s_cselect_b32 {s(S_MISC+2)}, {640 * 1280}, {s(S_MISC+2)}")
            e.op(f"s_cmp_eq_u32 {s(S_WAVE)}, 3")
            e.op(f"s_cselect_b32 {s(S_MISC+2)}, 1280, {s(S_MISC+2)}")
            e.op(f"s_mov_b32 {s(S_MISC+3)}, 0x20000")
            e.op(f"s_cselect_b32 {s(S_T0)}, 7, 16")
            e.op(f"v_lshlrev_b32 {T0}, {s(S_T0)}, {L}")
            e.wait(lg="all")
            e.op(f"buffer_load_dword {v(224)}, {T0}, {s(S_MISC,4)}, 0 offen")
            self.table_loads()
        self.common_setup()
        e.op(f"v_mov_b32 {v(V_LH)}, 0")
        e.op(f"s_memrealtime {s(S_NONCE,2)}")
        self.rt_tables(0)
        e.op(f"s_sub_u32 {s(S_T1)}, s2, 240")
        e.op(f"s_lshl2_add_u32 {s(S_T1)}, {s(S_T1)}, {s(S_WAVE)}")
        e.op(f"s_lshl_b32 {s(S_T2)}, {s(S_T1)}, 13")
        e.op(f"v_lshl_add_u32 {v(225)}, {L}, 7, {s(S_T2)}")
        def touch(m):
            m = m + self.o("tb4", 1) if m >= 0 else -1 - m
            if self.o("pf2", 1) and m < 5:
                e.op(f"s_mov_b32 {s(S_T2)}, {m * 4096 * 128}")
                e.op(f"buffer_load_dword {v(224)}, {v(225)}, {s(S_WB,4)}, {s(S_T2)} offen")
        for c in range(10 - 2 * self.o("pf1", 0), 10, 2):
            e.op(f"v_lshrrev_b32 {T2}, 8, {v(225)}")
            e.op(f"v_lshl_add_u32 {T2}, {T2}, 10, {v(225)}")
            e.op(f"buffer_load_dword {v(224)}, {T2}, {s(S_X,4)}, 0 offen offset:{c * 128}")
            e.op(f"v_min_u32 {T2}, {3839 * 128}, {v(225)}")
            e.op(f"s_mov_b32 {s(S_T2)}, {c * 64 * 3840}")
            e.op(f"buffer_load_dword {v(224)}, {T2}, {s(S_WA,4)}, {s(S_T2)} offen")
        for m in range(self.o("tb4", 1)): touch(-1 - m)
        e.wait(lg="all")
        self.flush_stamp()
        e.op(f"s_or_b32 {s(S_T2)}, {s(S_NONCE)}, 1")
        e.op(f"v_mov_b32 {v(V_NONCE)}, {s(S_T2)}")
        e.op(f"v_mov_b32 {v(V_NONCE+1)}, {s(S_NONCE+1)}")
        e.op(f"s_cmp_lg_u32 {s(S_T1)}, 0")
        e.op("s_cbranch_scc1 L_nononce")
        e.op("s_mov_b64 exec, 1")
        e.op(f"buffer_store_dwordx2 {v(V_NONCE,2)}, {v(V_ZERO)}, {s(S_DBG,4)}, 0 offen sc1")
        e.op("s_mov_b64 exec, -1")
        e.label("L_nononce")
        e.op(f"s_mul_i32 {s(S_T0)}, {s(S_WAVE)}, 2560")
        for m, src in enumerate((S_RTSRC, S_ST1, S_ST1B, S_SCALE)):
            self.rt_srd(S_TB1, m)
            self.rt_loads(m * 10240, src, S_T0)
        touch(0)
        self.late_lane_tables()
        self.late_table_use()
        e.wait(vm="rl")
        e.op("s_barrier")
        self.stamp(1)
        touch(1)
        for m, so in enumerate((S_RTS, S_ST2, S_ST2B, S_FLA)):
            for f in self.rt_reads(m * 10240, 96 + 12 * m) + self.rt_stores(96 + 12 * m, so): f()
        for so in (S_ST2, S_ST2B, S_FLA): e.op(f"s_mov_b32 {s(so)}, {OOB}")
        self.nonce_issue()
        touch(2)
        self.nonce_check()
        e.op("s_barrier")
        self.publish(S_RTF)
        self.stamp(3)
        touch(3)
        touch(4)
        self.stamp(2)
        self.flush_stamp()
        self.side_tail()

    def k_reads(self, u):
        h, j = divmod(u, 9)
        for ff in range(2):
            self.e.op(f"ds_read_b128 {v(KF + 4 * ff, 4)}, {v(V_KA)} offset:{(h + ff) * 12288 + j * 1024}", tag="k")
    def v_reads(self, u):
        h, j = divmod(u, 9)
        e = self.e
        e.op(f"s_mov_b64 exec, {s(S_VM,2)}")
        for ss in range(2):
            e.op(f"ds_read_b128 {v(VF + 4 * ss, 4)}, {v(V_VA)} offset:{j * 3072 + ss * 1280 + h * 320}", tag="v")
        e.op("s_mov_b64 exec, -1")
    def qk(self, u, part, S, lo=False):
        h, j = divmod(u, 9)
        c = v(S, 16) if part else v(CD, 16) if j == 8 else v(CE, 16) if (j == 0 or lo) else "0"
        self.e.op(f"v_mfma_f32_32x32x16_bf16 {v(S,16)}, {v(KF + 4 * part, 4)}, {v(QM + 8 * h + 4 * part, 4)}, {c}")
    def pv(self, u, part, S, first):
        O = v(OO[u // 9], 16)
        self.e.op(f"v_mfma_f32_32x32x16_bf16 {O}, {v(VF + 4 * part, 4)}, {v(S + 4 * part, 4)}, {'0' if first else O}")

    def q_mask_ops(self):
        e = self.e
        M1, M3, M4 = S_MASK, S_PHI + 2, S_PHI + 4
        def masks():
            e.op(f"s_bitcmp1_b32 {s(S_BITS)}, 0")
            e.op(f"s_cselect_b64 {s(M1,2)}, 0, -1")
            e.op(f"s_cselect_b32 {s(M3+1)}, -1, 0")
            e.op(f"s_cselect_b32 {s(M4)}, -1, 0")
        ops = [masks, lambda: e.op(f"s_mov_b32 {s(M3)}, -1"), lambda: e.op(f"s_mov_b32 {s(M4+1)}, 0"), lambda: e.wait(vm="q")]
        how = {(0, 0, 0): (M1, 1), (0, 0, 1): None, (0, 1, 0): (M3, 1), (0, 1, 1): (M4, 1),
               (1, 0, 0): (M3, 0), (1, 0, 1): (M4, 0), (1, 1, 0): None, (1, 1, 1): (M1, 0)}
        val = {M1: lambda par, hf: par == 0, M3: lambda par, hf: hf == 0 or par == 1, M4: lambda par, hf: par == 1 and hf == 0}
        for (h, ff, slot), hw in how.items():
            for par in range(2):
                for hf in range(2):
                    keep = 0 <= 4 * (h + ff) + 2 * slot + hf - 2 * par - 5 * h < 5
                    assert keep == (True if hw is None else val[hw[0]](par, hf) == bool(hw[1]))
            for d in range(2):
                dst, src = v(QM + 8 * h + 4 * ff + 2 * slot + d), v(VQ + 4 * (h + ff) + 2 * slot + d)
                if hw is None: t = f"v_mov_b32 {dst}, {src}"
                elif hw[1]: t = f"v_cndmask_b32 {dst}, 0, {src}, {s(hw[0],2)}"
                else: t = f"v_cndmask_b32 {dst}, {src}, 0, {s(hw[0],2)}"
                ops.append(lambda t=t: e.op(t))
        return ops

    def attention(self):
        e = self.e
        e.label("L_att")
        self.att_vm = list(e.vm)
        self.stamp(4)
        T0 = v(V_T0)
        stores = list(self.p2_stores_left)
        if not self.o("qh", 1):
            for f in self.q_mask_ops(): f()
        e.wait(vm="kd")
        e.op("s_barrier")
        self.k_reads(0)
        for f in self.p2_valu_left: f()
        for _ in range(self.o("ns1", 1)): stores.pop(0)()
        self.stamp(5)
        side = {(u, k): [] for u in range(18) for k in range(4)}
        wl = sum([self.w_loads(n) for n in range(NWR) if n not in self.EARLY_W], []) + self.wl_dmas()
        slots = [(u, k) for u in range(18) for k in range(4)]
        sst = self.o("sst", 1)
        for i, f in enumerate(stores): side[slots[sst * i]].append(f)
        def pub_c():
            e.wait(vm="st2")
            self.publish(S_FLA, 32)
        pubC, pC, cC = self.o("pubC", 24), self.o("pollC", 50), self.o("chkC", 61)
        side[slots[pubC]].append(pub_c)
        side[slots[pC]].append(lambda: self.poll_issue(V_FC))
        if self.o("pollC2", 0): side[slots[self.o("pollC2", 0)]].append(lambda: self.poll_again(V_FC))
        def chk_c():
            self.poll_check(V_FC, 2); self.stamp(6)
            e.op(f"buffer_load_dword {v(V_R)}, {v(V_R)}, {s(S_WS,4)}, 0 offen sc1", tag="r")
        hl = [(n + k, t) for n in (0, 2) for t in range(4) for k in range(2)]
        taken = {pubC, pC, cC} | {sst * i for i in range(len(stores))}
        skip = self.o("wskip", 0)
        acc, rate = 0, self.o("wrate", 16)
        for i, x in enumerate(slots):
            if i == cC: side[x].append(chk_c)
            if i in taken: continue
            skip -= 1
            if skip >= 0: continue
            acc += rate
            if acc < 16: continue
            acc -= 16
            if wl: side[x].append(wl.pop(0))
            elif i > cC and hl:
                n, t = hl.pop(0)
                side[x].append(lambda n=n, t=t: self.h_load(n, t))
        assert not wl
        self.h_left = hl
        def fill_ce(val):
            for i in range(16): e.op(f"v_mov_b32 {v(CE + i)}, {val}")
        def steps(lo):
            def open_at(jn):
                st, bk = self.L("open"), self.L("open_ok")
                e.op(f"s_cmp_eq_u32 {s(S_TQ)}, {8 - jn}")
                e.op(f"s_cbranch_scc1 {st}")
                e.label(bk)
                def stub():
                    e.label(st, reset=True)
                    e.op("s_nop 7")
                    fill_ce(0)
                    e.op("s_nop 0")
                    e.op(f"s_branch {bk}")
                self.stubs.append(stub)
            if lo: fill_ce(hex(NEGBIG))
            e.wait(lg="k")
            self.qk(0, 0, SB[0], lo); self.qk(0, 1, SB[0], lo)
            self.k_reads(1)
            if lo: open_at(1)
            for u in range(18):
                if self.o("zoom", 0) == 3 and u % 2 == 0: self.stamp(1 + u // 2, True)
                S, Sn, Sp = SB[u % 3], SB[(u + 1) % 3], SB[(u - 1) % 3]
                ex = lambda i: e.op(f"v_exp_f32 {v(S + i)}, {v(S + i)}")
                cv = lambda i: e.op(f"v_cvt_pk_bf16_f32 {v(S + i)}, {v(S + 2 * i)}, {v(S + 2 * i + 1)}")
                if u < 17:
                    e.wait(lg="k")
                    self.qk(u + 1, 0, Sn, lo)
                for f in side[(u, 0)]: f()
                for i in range(0, 4): ex(i)
                if u < 17: self.qk(u + 1, 1, Sn, lo)
                e.wait(lg="v")
                if u < 16: self.k_reads(u + 2)
                for f in side[(u, 1)]: f()
                for i in range(4, 8): ex(i)
                cv(0); cv(1)
                if u > 0: self.pv(u - 1, 0, Sp, (u - 1) % 9 == 0)
                if lo and u + 2 == 9: fill_ce(hex(NEGBIG))
                if lo and u + 2 < 18 and 1 <= (u + 2) % 9 <= 7: open_at((u + 2) % 9)
                for f in side[(u, 2)]: f()
                for i in range(8, 12): ex(i)
                cv(2); cv(3)
                if u > 0:
                    self.pv(u - 1, 1, Sp, False)
                    self.v_reads(u)
                for f in side[(u, 3)]: f()
                for i in range(12, 16): ex(i)
                for i in range(4, 8): cv(i)
                if u == 0:
                    e.wait(vm="vd")
                    e.op("s_barrier")
                    self.v_reads(0)
            e.wait(lg="v")
            self.pv(17, 0, SB[17 % 3], False); self.pv(17, 1, SB[17 % 3], False)
            self.flush_stamp()
        self.flush_stamp()
        e.op(f"s_cmp_lt_u32 {s(S_TQ)}, 8")
        e.op("s_cbranch_scc1 L_att_lo")
        snap0, wv0 = e.snapshot(), self.wv
        steps(False)
        snap1 = e.snapshot()
        def att_lo():
            e.restore(snap0); self.wv = wv0
            e.label("L_att_lo")
            steps(True)
            assert e.vm == snap1[0] and e.lg == snap1[1]
            e.op("s_branch L_att_join")
        self.att_lo = att_lo
        e.label("L_att_join")
        self.stamp(7)
        for h in range(2):
            O = OO[h]
            st, bk = self.L("slow"), self.L("slow_ok")
            e.op(f"v_subrev_u32 {T0}, 0x2f800000, {v(O + 12)}")
            e.op(f"v_cmp_le_u32 vcc, 0x20000000, {T0}")
            if self.o("forceslow", 0): e.op("s_mov_b64 vcc, -1")
            for _ in range(2 - h):
                if self.h_left:
                    n, t = self.h_left.pop(0); self.h_load(n, t)
            e.op(f"s_cbranch_vccnz {st}")
            e.label(bk)
            self.cold.append(lambda st=st, bk=bk, h=h: self.slow_head(h, st, bk))
        OP = 0
        ep = []
        A = lambda t, tag=None: ep.append(lambda: e.op(t, tag=tag))
        for h in range(2): A(f"v_rcp_f32 {v(V_T2 + h)}, {v(OO[h] + 12)}")
        ep.append(lambda: e.wait(vm="r"))
        for h in range(2): A(f"v_mul_f32 {v(V_T2 + h)}, {v(V_T2 + h)}, {v(V_R)}")
        for h in range(2):
            O = OO[h]
            for i in range(8): A(f"v_mul_f32 {v(O + i)}, {v(O + i)}, {v(V_T2 + h)}")
            for i in range(4): A(f"v_cvt_pk_bf16_f32 {v(OP + 4 * h + i)}, {v(O + 2 * i)}, {v(O + 2 * i + 1)}")
            A(f"buffer_store_dwordx4 {v(OP + 4 * h, 4)}, {v(V_L16)}, {s(S_WS,4)}, {s(S_OST)} offen offset:{h * 1024} sc1", "sto")
        for h in range(2):
            O = OO[h]
            for i in range(8, 12): A(f"v_mul_f32 {v(O + i)}, {v(O + i)}, {v(V_T2 + h)}")
            for i in range(2): A(f"v_cvt_pk_bf16_f32 {v(OP + 8 + 2 * h + i)}, {v(O + 8 + 2 * i)}, {v(O + 9 + 2 * i)}")
        A(f"buffer_store_dwordx4 {v(OP + 8, 4)}, {v(V_L16H)}, {s(S_WS,4)}, {s(S_OST2)} offen sc1", "sto")
        self.o_epilogue = ep

    def slow_head(self, h, st, bk):
        e = self.e
        e.label(st, reset=True)
        e.vm, e.lg = [], []
        T0, MX = v(V_T0), v(V_T1)
        O, S = OO[h], SB[0]
        e.op("s_nop 15")
        e.op(f"v_mov_b32 {MX}, {hex(NEGBIG)}")
        for i in range(16): e.op(f"v_mov_b32 {v(O + i)}, 0")
        for ps in range(2):
            for j in range(9):
                u = 9 * h + j
                sk = self.L("sk")
                if j < 8:
                    e.op(f"s_cmp_lt_u32 {s(S_TQ)}, {8 - j}")
                    e.op(f"s_cbranch_scc1 {sk}")
                if ps: self.v_reads(u)
                self.k_reads(u)
                e.wait(lg="all")
                self.qk(u, 0, S); self.qk(u, 1, S)
                if ps == 0:
                    for i in range(8): e.op(f"v_max3_f32 {MX}, {MX}, {v(S + 2 * i)}, {v(S + 2 * i + 1)}")
                else:
                    for i in range(16): e.op(f"v_sub_f32 {v(S + i)}, {v(S + i)}, {MX}")
                    for i in range(16): e.op(f"v_exp_f32 {v(S + i)}, {v(S + i)}")
                    for i in range(8): e.op(f"v_cvt_pk_bf16_f32 {v(S + i)}, {v(S + 2 * i)}, {v(S + 2 * i + 1)}")
                    self.pv(u, 0, S, False); self.pv(u, 1, S, False)
                    e.op("s_nop 7")
                e.label(sk)
            if ps == 0:
                e.op(f"v_mov_b32 {T0}, {MX}")
                e.op(f"v_permlane32_swap_b32 {T0}, {MX}")
                e.op("s_nop 1")
                e.op(f"v_max_f32 {MX}, {T0}, {MX}")
        e.op("s_nop 15")
        e.op(f"s_branch {bk}")

    def stage3(self):
        e = self.e
        L = v(V_LANE); T0, T1, T2, T3 = v(V_T0), v(V_T1), v(V_T2), v(V_T3)
        self.stamp(8)
        e.op(f"s_load_dwordx8 {s(TB,8)}, {s(S_TAB,2)}, 128")
        e.op(f"s_load_dwordx4 {s(TB+8,4)}, {s(S_TAB,2)}, 160")
        e.op(f"s_load_dword {s(S_XM0)}, {s(S_TAB,2)}, 176")
        TM = self.TM; n0 = 19 - TM
        setup = []
        A = lambda t, tag=None: setup.append(lambda: e.op(t, tag=tag))
        setup.append(lambda: e.wait(lg="all"))
        A(f"s_movk_i32 {s(S_C1)}, 4096")
        A(f"s_movk_i32 {s(S_C2)}, 8192")
        for t in range(4): A(f"v_add_u32 {v(V_O + t)}, {s(S_OT + t)}, {v(V_HL)}")
        A(f"v_and_b32 {T0}, 15, {L}")
        A(f"v_lshl_add_u32 {v(V_GW)}, {T0}, 2, {s(S_GW)}")
        A(f"buffer_load_dword {v(V_GW)}, {v(V_GW)}, {s(S_WS,4)}, 0 offen sc1", "g")
        for t in range(3): A(f"v_add_u32 {v(V_RR + t)}, {s(S_RED + t)}, {v(V_L16)}")
        A(f"v_add_u32 {v(V_RW)}, {s(S_RED + 3)}, {v(V_L16)}")
        A(f"v_lshrrev_b32 {T1}, 4, {L}")
        A(f"v_mul_u32_u24 {T0}, 1280, {T0}")
        A(f"v_add_u32 {T0}, {s(S_OUTO)}, {T0}")
        A(f"v_lshl_add_u32 {v(V_OUT)}, {T1}, 4, {T0}")
        A(f"v_lshl_add_u32 {v(V_OUT + 1)}, {T1}, 3, {T0}")
        A(f"v_lshrrev_b32 {T0}, 1, {L}")
        A(f"v_min_u32 {T0}, 3, {T0}")
        A(f"v_and_b32 {T1}, 1, {L}")
        A(f"v_lshl_add_u32 {T1}, {T1}, 3, {s(S_PFB)}")
        A(f"v_lshl_add_u32 {v(V_FB)}, {T0}, 7, {T1}")
        cB = self.o("chkB", 12)
        Q = [(0, lambda n=n, t=t: self.h_load(n, t)) for n, t in self.h_left]
        if self.o("skipw", 0):
            wl0 = self.w_loads
            def dst(i):
                if i == 0:
                    e.op(f"s_lshl2_add_u32 {s(S_T2)}, s2, {s(S_WAVE)}")
                    e.op(f"s_mul_i32 {s(S_T2)}, {s(S_T2)}, 5120")
                    e.op(f"s_add_u32 {s(S_T2)}, {s(S_T2)}, {WS_X}")
                if i == 4: e.op(f"s_add_u32 {s(S_T2)}, {s(S_T2)}, 4096")
                e.op(f"buffer_store_dwordx4 {v(16,4)}, {v(V_L16)}, {s(S_WS,4)}, {s(S_T2)} offen offset:{(i & 3) * 1024} sc1")
            def wl1(n):
                for j in range(5): e.all_tags.add(("w", n, j))
                if n == 18: return wl0(n)
                if n == 17 and self.o("skipw", 0) == 1: return [lambda i=i: dst(i) for i in range(5)]
                return []
            self.w_loads = wl1
        def wl_read(n, j):
            e.wait(vm="wl")
            e.op(f"ds_read_b128 {r(WR + 20 * (n % NWR) + 4 * j, 4)}, {v(V_RW)} offset:{(5 * self.LDS_W.index(n) + j) * 1024}", tag="wlr")
            e.all_tags.add(("w", n, j))
        assert n0 % 2 == 0
        after = lambda n: max((n | 1) + 1, 0)
        R = [(max(after(n - 12), 4), lambda n=n, j=j: wl_read(n, j)) for n in self.LDS_W for j in range(5)]
        for n2 in range(4, n0, 2):
            for n in (n2, n2 + 1):
                if n >= 12 and n not in self.LDS_W: Q += [(max(after(n - 12), 4 if n >= 14 else 0), f) for f in self.w_loads(n)]
            Q += [(max(after(n2 - NH), 2 if n2 >= 6 else 0, cB if n2 >= 14 else 0), lambda n=n2 + k, t=t: self.h_load(n, t)) for t in range(4) for k in range(2)]
        for n in range(n0, 19):
            if n not in self.LDS_W: Q += [(max(after(n - 12), 4), f) for f in self.w_loads(n)]
        for t in range(4):
            for n in range(n0, 19):
                i = TM * t + n - n0
                Q.append((max(after(n0 - NH + i // 4), cB), lambda n=n, t=t: self.h_load(n, t)))
        def issue(step):
            for i, (fr, f) in enumerate(Q):
                if fr <= step:
                    Q.pop(i); f(); return True
            return False
        def need(tags, step, also=()):
            while any(t not in e.all_tags for t in tags): assert issue(step)
            if any(t in e.vm for t in tags): e.wait(vm=list(tags) + [t for t in also if t in e.vm])
        def mfma(n, t, j, first=False):
            acc = v(BA + 20 * t + 4 * j, 4)
            e.op(f"v_mfma_f32_16x16x32_bf16 {acc}, {r(WR + 20 * (n % NWR) + 4 * j, 4)}, {v(self.hreg(n, t), 4)}, {'0' if first else acc}")
        lrate = self.o("lr2", 11)
        cnt = 0
        oep = list(self.o_epilogue)
        for step in range(n0):
            n2 = step & ~1
            if step == 2: assert not oep
            if step == 4: assert not setup
            if step == 12:
                assert not R
                e.wait(lg="wlr")
            if self.o("zoom", 0) == 4 and step < 12: self.stamp(1 + step, True)
            if step == self.o("pubB", 4):
                e.wait(vm="sto"); self.publish(S_FLB)
            if step == self.o("pollB", 10): self.poll_issue(V_FB)
            if step == cB:
                self.poll_check(V_FB, 3); self.stamp(9)
            for i in range(20):
                t, j0, k0 = 2 * (step & 1) + i // 10, (i % 10) >> 1, i & 1
                j, n = (4 - j0 if t & 1 else j0), n2 + (k0 ^ ((i >> 1) & 1))
                need([("w", n, j), ("h", n, t)], step, [("w", n2 + 1, 4), ("h", n2 + 1, t)])
                mfma(n, t, j, n2 == 0 and k0 == 0)
                cnt = min(cnt + lrate, 80)
                if cnt >= 40 and k0 and issue(step):
                    cnt -= 40
                elif oep:
                    oep.pop(0)()
                    if oep: oep.pop(0)()
                elif setup:
                    setup.pop(0)()
                elif R and R[0][0] <= step and not k0: R.pop(0)[1]()
        self.stamp(10)
        assert TM == 3
        RD = (0, 20, BA)
        def wr(t, j): e.op(f"ds_write_b128 {v(V_RW)}, {v(BA + 20 * t + 4 * j, 4)} offset:{t * 5120 + j * 1024}", tag=("red", t))
        def rd(sl, j): e.op(f"ds_read_b128 {v(RD[sl] + 4 * j, 4)}, {v(V_RR + sl)} offset:{j * 1024}", tag=("rd", sl, j))
        def add01(k):
            if k % 4 == 0: e.wait(lg=("rd", 1, k // 4))
            e.op(f"v_add_f32 {v(RD[0] + k)}, {v(RD[0] + k)}, {v(RD[1] + k)}")
        def bar01():
            e.wait(lg=("red", 1))
            e.op("s_barrier")
        F = BA + 60
        for t in range(4):
            q = [None] * 3 + [lambda j=j: wr(t - 1, j) for j in range(5)] if t else []
            if t == 3:
                q = [bar01] + [lambda j=j, sl=sl: rd(sl, j) for j in range(2) for sl in range(2)] + q[3:] + \
                    [lambda j=j, sl=sl: rd(sl, j) for j in range(2, 5) for sl in range(2)]
                adds = [lambda k=k: add01(k) for k in range(20)]
            i = 0
            for j in range(5):
                for n in (range(n0, 19) if j % 2 == 0 else range(18, n0 - 1, -1)):
                    need([("w", n, j), ("h", n, t)], 99)
                    mfma(n, t, j)
                    if Q and i % 4 == 0: issue(99)
                    elif q:
                        f = q.pop(0)
                        if f: f()
                    elif t == 3:
                        for _ in range(2):
                            if adds: adds.pop(0)()
                    i += 1
            for f in q:
                if f: f()
        assert not Q
        self.stamp(11)
        e.wait(lg=("red", 2))
        e.op("s_barrier")
        for j in range(5): rd(2, j)
        for f in adds: f()
        e.wait(vm="g")
        W2 = v(V_GW, 2)
        of = ("", "sc1", "nt", "sc1 nt")[self.o("outf", 1)]
        of2 = ("", "sc1", "nt", "sc1 nt")[self.o("outf2", 0)]
        for i in range(10): e.op(f"v_pk_add_f32 {v(F + 2 * i, 2)}, {v(F + 2 * i, 2)}, {v(RD[0] + 2 * i, 2)}")
        for i in range(10): e.op(f"v_pk_mul_f32 {v(F + 2 * i, 2)}, {v(F + 2 * i, 2)}, {W2} op_sel_hi:[1,0]")
        for grp in ((0, 4), (4, 8), (8, 10)):
            e.wait(lg=("rd", 2, (grp[1] - 1) // 2))
            for i in range(*grp): e.op(f"v_pk_fma_f32 {v(F + 2 * i, 2)}, {v(RD[2] + 2 * i, 2)}, {W2}, {v(F + 2 * i, 2)} op_sel_hi:[1,0,1]")
            for i in range(*grp): e.op(f"v_cvt_pk_bf16_f32 {v(i)}, {v(F + 2 * i)}, {v(F + 2 * i + 1)}")
            if grp[0] < 8: e.op(f"buffer_store_dwordx4 {v(grp[0],4)}, {v(V_OUT)}, {s(S_OUT,4)}, 0 offen offset:{grp[0] * 16} {of}")
            else: e.op(f"buffer_store_dwordx2 {v(8,2)}, {v(V_OUT+1)}, {s(S_OUT,4)}, {s(S_XM0)} offen {of2}")
        self.stamp(12)
        if self.o("skipw", 0): self.w_loads = wl0

    def finish(self):
        e = self.e
        if self.stamps:
            e.wait(vm="all")
            self.stamp(13)
            e.op(f"s_memtime {s(S_VM,2)}")
            self.flush_stamp()
            e.op(f"v_writelane_b32 {v(V_STAMP)}, {s(S_VM)}, {NSTAMP}")
            e.op(f"s_lshl2_add_u32 {s(S_T0)}, s2, {s(S_WAVE)}")
            e.op(f"s_lshl_b32 {s(S_T0)}, {s(S_T0)}, 7")
            e.op(f"s_add_u32 {s(S_T0)}, {s(S_T0)}, {WS_ST}")
            e.op(f"v_lshlrev_b32 {v(V_T0)}, 2, {v(V_LANE)}")
            e.op("s_mov_b32 exec_hi, 0")
            e.op(f"buffer_store_dword {v(V_STAMP)}, {v(V_T0)}, {s(S_WS,4)}, {s(S_T0)} offen")
        e.op("s_endpgm")

    def build(self):
        e = self.e
        self.prologue()
        self.stage1()
        self.attention()
        self.stage3()
        self.finish()
        self.att_lo()
        self.gate()
        self.spare()
        for f in self.stubs:
            e.vm, e.lg = [], []
            f()
        e.label("L_cold")
        for f in self.cold: f()
        e.label("L_end")
        e.op("s_endpgm")
        head = open("head.txt").read().split("\n")
        head = [l for l in head if l.startswith(";") and "@launch" not in l]
        txt = "\n".join(head) + f"\n; @launch grid=(256,1,1) block=(256,1,1) lds={LDS_BYTES}\n" + DOC
        txt += f""".amdgcn_target "amdgcn-amd-amdhsa--gfx950"
.text
.globl {NAME}_kernel
.p2align 8
.type {NAME}_kernel,@function
{NAME}_kernel:
"""
        txt += e.text().replace("\n    ", "\n ")
        txt += f""".section .rodata,"a"
.p2align 6
.amdhsa_kernel {NAME}_kernel
  .amdhsa_next_free_vgpr 512
  .amdhsa_next_free_sgpr 102
  .amdhsa_accum_offset 256
  .amdhsa_group_segment_fixed_size 0
  .amdhsa_kernarg_size 80
  .amdhsa_user_sgpr_count 2
  .amdhsa_user_sgpr_kernarg_segment_ptr 1
  .amdhsa_system_sgpr_workgroup_id_x 1
.end_amdhsa_kernel
.p2align 8
.type wave_table,@object
wave_table:
"""
        for wg in range(256):
            for w in range(4):
                txt += ".long " + ",".join(str(x) for x in table_entry(wg, w, self.o("map3", 0), self.o("umap", 1))) + "\n"
        return txt

if __name__ == "__main__":
    out = sys.argv[1] if len(sys.argv) > 1 else "cdna_kernels/" + NAME + ".s"
    opt = {}
    for x in sys.argv[2:]:
        if "=" in x:
            k, val = x.split("="); opt[k] = int(val)
    g = Gen(stamps="--stamps" in sys.argv, opt=opt)
    txt = g.build()
    open(out, "w").write(txt)
    print("instructions", g.e.count, "pad states", g.e.nops, "autowaits", g.e.autowaits, "bytes", len(txt), file=sys.stderr)
    if "--nops" in sys.argv:
        for n, t in g.e.log_nops: print(n, t, file=sys.stderr)
```

```python
import sys, math, struct
from asmlib import *

NAME = "gated_mix__sliding_block__dense_activation_relu__prompt"

WS_QK = 0
WS_VT = WS_QK + 80 * 64 * 1024
WS_H  = WS_VT + 16 * 64 * 2560
WS_O  = WS_H + 64 * 110592
WS_WT = WS_O + 64 * 40960
WS_G  = WS_WT + 8 * 74 * 5120
WS_FL = WS_G + 16384
FL_A  = WS_FL
FL_B  = FL_A + 256 * 128
FL_D  = FL_B + 256 * 128
FL_GO = FL_D + 64 * 128
WS_ST = FL_GO + 16 * 128
WS_X = WS_ST + 1024 * 128
WS_SIZE = WS_X + 1024 * 5120
OOB = 0x4000000
assert WS_SIZE < OOB

NW, NX = 5, 4
L_W = 0
L_X = NW * 16384
L_RT = L_X + 65536
L_K = L_X
L_V = L_K + 36 * 1024
L_GW = L_V + 12 * 3072
LDS_BYTES = 163840

S_DM, S_HK = 0, 1
S_WAVE = 3
S_X, S_WA, S_WB, S_WS, S_OUT, S_DBG, S_MISC = 4, 8, 12, 16, 20, 24, 28
S_PWO, S_CG, S_XM0, S_PW2, S_PG = 32, 34, 35, 36, 38
S_T0, S_T1, S_T2, S_T3, S_T4, S_T5 = 40, 41, 42, 43, 44, 45
S_TAB = 46
TA = 48
(S_ST1, S_ST1B, S_ST2, S_ST2B, S_SCALE, S_FLA, S_FLB, S_RTS, S_RTF, S_RTSRC, S_BITS, S_TQ, S_QOFF) = range(TA, TA + 13)
S_KADJ, S_VOFF = TA + 13, TA + 16
S_OST, S_OST2 = TA + 19, TA + 20
S_HT = TA + 21
S_WT0, S_PFC, S_PFG, S_PFD, S_PFA, S_ASTEP, S_TB1 = range(TA + 25, TA + 32)
TB = 4
S_OT = TB
S_WT1, S_PFB, S_GW, S_OUTO = TB + 4, TB + 5, TB + 6, TB + 7
S_RED = TB + 8
S_PHI = 80
S_WM0, S_SPIN = 86, 87
S_STMP, S_NONCE, S_MASK, S_VM = 88, 90, 92, 94
S_C1, S_C2 = 96, 97
S_PILO, S_PIHI = 80, 81

V_LANE = 255
V_L16 = 254
V_NONCE = 252
V_T0, V_T1, V_T2, V_T3 = 248, 249, 250, 251
V_POLL = 246
V_FA, V_FD, V_FC, V_WV = 245, 244, 243, 242
V_KA, V_VA, V_HL, V_STAMP, V_ZERO, V_L16H = 241, 240, 239, 238, 237, 236
V_H, V_KT, V_Q, V_R = 232, 228, 231, 227
V_XD = 0
V_WD = 4
V_WD2 = 8
V_XR = 12
V_WR = 16
V_ST1 = 24
V_FR = 32
ACC = (128, 64)
A_X = 256
NXR = 7
V_LH = 226
RT_D, RT_LD, RT_RD, RT_ST = 64, 76, 79, 82
SB = (0, 16, 176)
OO = (32, 48)
VQ, QM, VF, KF, CD, CE = 128, 144, 160, 168, 192, 208
BA = 144
HSLOT = (64, 80, 96, 112, 128, 16, 48, 32)
WR = 256
NH, NWR = 8, 12
V_O, V_FB, V_GW, V_RR, V_RW, V_OUT = 228, 245, 244, 224, 243, 240
NSTAMP = 14

def f32(x): return "0x%08x" % struct.unpack("<I", struct.pack("<f", x))[0]
LOG2E = math.log2(math.e)
QSCALE = LOG2E / math.sqrt(20.0)
NEGBIG = 0xff800000
SPIN_MAX = 0x40000

KS0 = (0, 14, 28, 41)

LATE_KS = sorted({KS0[w] + n for w in range(4) for n in (12, 13) if n < (14, 14, 13, 13)[w]} | {54 + 5 * w + q for w in range(4) for q in (3, 4)})
RT_KS = [k for k in range(74) if k not in LATE_KS] + LATE_KS
assert len(LATE_KS) == 14

def rt_unit(U, w):
    if U >= 296: return OOB, OOB, 0, 0
    ks, kg, u = RT_KS[U >> 2], U & 3, w >> 1
    if ks < 54: row, wo = 32 * ks + 16 * (kg >> 1) + 4 * (kg & 1) + 8 * u, 0
    else:
        a_, p = divmod(ks - 54, 5); wo = 1
        row = 40 * (4 * a_ + p) + 20 * (kg >> 1) + 4 * (kg & 1) + 8 * u if p < 4 else 40 * (4 * a_ + kg) + 16 + 20 * u
    return WS_WT + (148 * w + ks) * 5120 + kg * 256, (FL_D + (U >> 2) * 128 + (U & 3) * 8 if w == 0 else OOB), row * 1280, wo

def table_entry(wg, w, map3, umap):
    xcd, i = wg & 7, wg >> 3
    A = [0] * 32; B = [0] * 16
    def a(reg, val): A[reg - TA] = val & 0xffffffff
    def b(reg, val): B[reg - TB] = val & 0xffffffff
    U = wg if (i >= 30 or not umap) else ((i >> 2) * 8 + xcd) * 4 + (i & 3) if i < 28 else 224 + 2 * xcd + i - 28
    rts, rtf, rtsrc, wo = rt_unit(U, w)
    a(S_RTS, rts); a(S_RTF, rtf); a(S_RTSRC, rtsrc)
    if i < 30:
        u = 30 * (xcd >> 1) + i
        rb, cg = 8 * (xcd & 1) + (u & 7), u >> 3
        tb, tb0, wc = 4 * rb + w, 4 * rb + (w & 2), w & 1
        if cg < 10:
            q0 = WS_QK + ((8 * cg + 4 * wc) * 64 + tb0) * 1024
            a(S_ST1, q0); a(S_ST1B, q0 + 1024)
        else:
            a(S_ST1, WS_VT + tb0 * 2560); a(S_ST1B, WS_VT + (tb0 + 1) * 2560)
        h0 = WS_H + tb0 * 110592 + cg * 8192 + wc * 4096
        a(S_ST2, h0 if 2 * cg + wc < 27 else OOB); a(S_ST2B, h0 + 110592 if 2 * cg + wc < 27 else OOB)
        a(S_SCALE, int(f32(QSCALE if cg < 5 else 1.0), 16))
        a(S_FLA, FL_A + (rb * 16 + cg) * 128 + 8 * w)
        a(S_TB1, tb)
    else:
        for m, reg in ((1, S_ST1), (2, S_ST1B), (3, S_SCALE)): a(reg, rt_unit(wg + 16 * m, w)[2])
        for m, reg in ((1, S_ST2), (2, S_ST2B), (3, S_FLA)): a(reg, rt_unit(wg + 16 * m, w)[0])
        a(S_TB1, sum(rt_unit(wg + 16 * m, w)[3] << m for m in range(4)))
    P, rba = 2 * xcd + (i >> 4), i & 15
    F0, tq = (10 * P) >> 2, 4 * rba + w
    a(S_BITS, (P & 1) | (wo << 1)); a(S_TQ, tq)
    a(S_QOFF, WS_QK + (F0 * 64 + tq) * 1024)
    for k in range(3):
        t = 4 * rba + 3 * w - 8 + k
        a(S_KADJ + k, WS_QK + ((40 + F0) * 64 + t - k) * 1024 if t >= 0 else OOB)
        a(S_VOFF + k, WS_VT + (P * 64 + t) * 2560 if t >= 0 else OOB)
    o0 = WS_O + tq * 40960 + (P >> 2) * 20 * 512
    a(S_OST, o0 + (P & 3) * 2048); a(S_OST2, o0 + (16 + (P & 3)) * 512)
    a(S_FLB, FL_B + (rba * 16 + P) * 128 + 8 * w)
    cq = F0 >> 3
    a(S_PFA, FL_A + cq * 128); a(S_ASTEP, 128 if ((F0 + 2) >> 3) > cq else 0)
    a(S_PFG, FL_A + (rba * 16 + 15) * 128 + 8 * w)
    assert [RT_KS.index(KS0[w] + n) for n in range(12)] == list(range(12 * w, 12 * w + 12))
    assert [RT_KS.index(54 + 5 * w + q) for q in range(3)] == list(range(48 + 3 * w, 51 + 3 * w))
    a(S_PFD, FL_D + 12 * w * 128)
    tb64, ng = (8 * (xcd >> 1) + (i & 7), 4 * (xcd & 1) + (i >> 3)) if not map3 else (4 * xcd + (i & 3), i >> 2)
    for t in range(4):
        T = (w + 1 + t) & 3
        tb = 2 * tb64 + (T >> 1)
        a(S_HT + t, WS_H + tb * 110592 + (T & 1) * 256 + KS0[w] * 2048)
        b(S_OT + t, WS_O + tb * 40960 + (T & 1) * 256 + w * 5 * 2048)
    a(S_WT0, WS_WT + (ng * 74 + KS0[w]) * 5120 + 2048)
    b(S_WT1, WS_WT + (ng * 74 + 54 + 5 * w) * 5120 + 2048)
    a(S_PFC, FL_A + (tb64 >> 1) * 2048 + 32 + 16 * (tb64 & 1) + (KS0[w] >> 2) * 128)
    b(S_PFB, FL_B + ((tb64 >> 1) * 16 + 4 * w) * 128 + 16 * (tb64 & 1))
    A[S_BITS - TA] |= (FL_A + ((tb64 >> 1) * 16 + 15) * 128 + 8 * (2 * (tb64 & 1) + (w >> 1))) << 2
    b(S_GW, WS_G + (2 * tb64 + (w >> 1)) * 256 + 128 + (w & 1) * 64)
    b(S_OUTO, (64 * tb64 + 16 * w) * 1280 + ng * 128)
    B[12] = 1024 - 96 * ng
    for t in range(3): b(S_RED + t, L_W + ((w - 1 - t) & 3) * 20480 + t * 5120)
    b(S_RED + 3, L_W + w * 20480)
    return A + B


DOC = """;
"""

class Gen:
    def __init__(self, stamps=False, opt=None):
        self.e = Emit()
        self.stamps = stamps
        self.uid = 0
        self.opt = opt or {}
        self.stubs = []
        self.cold = []
        self.pending_stamp = None
        self.open_poll = None; self.open_nonce = False
        self.nt = "nt " if self.o("nt", 1) else ""
        self.in_side = False
    def o(self, k, d): return self.opt.get(k, d)
    def L(self, p):
        self.uid += 1
        return f"L_{p}_{self.uid}"
    def stamp(self, idx, z=False):
        if not self.stamps: return
        if self.o("zoom", 0) and not z and 0 < idx < 13: return
        self.flush_stamp()
        self.e.op(f"{'s_memtime' if self.o('cyc', 0) else 's_memrealtime'} {s(S_STMP, 2)}")
        self.pending_stamp = idx
    def flush_stamp(self):
        if self.pending_stamp is None: return
        e = self.e
        if "SMEM" in e.lg: e.wait(lg="all")
        e.op(f"v_writelane_b32 {v(V_STAMP)}, {s(S_STMP)}, {self.pending_stamp}")
        self.pending_stamp = None

    def srd_tail(self, d, nbytes):
        self.e.op(f"s_mov_b32 {s(d+2)}, {nbytes}")
        self.e.op(f"s_mov_b32 {s(d+3)}, 0x20000")
    def nonce_issue(self):
        self.e.op(f"buffer_load_dwordx2 {v(V_NONCE,2)}, {v(V_ZERO)}, {s(S_DBG,4)}, 0 offen sc1", tag="nonce")
        self.open_nonce = True
    def nonce_check(self):
        e = self.e
        st, bk = self.L("nonce"), self.L("nonce_ok")
        assert self.open_nonce
        e.wait(vm="nonce")
        e.op(f"v_readfirstlane_b32 {s(S_NONCE)}, {v(V_NONCE)}")
        e.op(f"v_readfirstlane_b32 {s(S_NONCE+1)}, {v(V_NONCE+1)}")
        e.op(f"s_cmp_eq_u32 {s(S_NONCE)}, 0")
        e.op(f"s_cbranch_scc1 {st}")
        e.label(bk)
        def stub():
            e.label(st, reset=True)
            e.op(f"s_mov_b32 {s(S_SPIN)}, 0")
            e.label(st + "_l")
            e.op("s_sleep 4")
            e.op(f"buffer_load_dwordx2 {v(V_NONCE,2)}, {v(V_ZERO)}, {s(S_DBG,4)}, 0 offen sc1")
            e.op(f"s_add_u32 {s(S_SPIN)}, {s(S_SPIN)}, 1")
            e.wait(vm="all")
            e.op(f"v_readfirstlane_b32 {s(S_NONCE)}, {v(V_NONCE)}")
            e.op(f"v_readfirstlane_b32 {s(S_NONCE+1)}, {v(V_NONCE+1)}")
            e.op(f"s_cmp_gt_u32 {s(S_SPIN)}, {SPIN_MAX}")
            e.op(f"s_cbranch_scc1 {bk}")
            e.op(f"s_cmp_eq_u32 {s(S_NONCE)}, 0")
            e.op(f"s_cbranch_scc1 {st}_l")
            e.op(f"s_branch {bk}")
        self.stubs.append(stub)
    def publish(self, soff, imm=0):
        e = self.e
        e.op("s_mov_b64 exec, 1")
        e.op(f"buffer_store_dwordx2 {v(V_NONCE,2)}, {v(V_ZERO)}, {s(S_WS,4)}, {s(soff)} offen offset:{imm} sc1", tag="flag")
        e.op("s_mov_b64 exec, -1")
    def poll_issue(self, vaddr):
        self.e.op(f"buffer_load_dwordx2 {v(V_POLL,2)}, {v(vaddr)}, {s(S_WS,4)}, 0 offen sc1", tag="poll")
        self.open_poll = vaddr
    def poll_again(self, vaddr):
        self.e.op(f"buffer_load_dwordx2 {v(224,2)}, {v(vaddr)}, {s(S_WS,4)}, 0 offen sc1", tag="poll2")
    def poll_check(self, vaddr, sid=0):
        e = self.e
        n2 = e._left(e.vm, ["poll2"])
        st, bk = self.L("poll"), self.L("poll_ok")
        assert self.open_poll == vaddr; self.open_poll = None
        e.wait(vm="poll")
        e.op(f"v_cmp_ne_u64 vcc, {s(S_NONCE,2)}, {v(V_POLL,2)}")
        e.op(f"s_cbranch_vccnz {st}")
        e.label(bk)
        def stub():
            e.label(st, reset=True)
            if n2 is not None:
                e.op(f"s_waitcnt vmcnt({n2})")
                e.op(f"v_cmp_ne_u64 vcc, {s(S_NONCE,2)}, {v(224,2)}")
                e.op(f"s_cbranch_vccz {bk}")
            e.op(f"s_mov_b32 {s(S_SPIN)}, 0")
            if self.o("retry0", 1): e.op(f"s_branch {st}_f")
            e.label(st + "_l")
            e.op(f"s_sleep {self.o('sleep', 4)}")
            e.label(st + "_f")
            if self.o("miss", 0): e.op("s_mov_b64 exec, vcc")
            e.op(f"buffer_load_dwordx2 {v(V_POLL,2)}, {v(vaddr)}, {s(S_WS,4)}, 0 offen sc1")
            if self.o("miss", 0): e.op("s_mov_b64 exec, -1")
            e.op(f"s_add_u32 {s(S_SPIN)}, {s(S_SPIN)}, 1")
            e.wait(vm="all")
            e.op(f"v_cmp_ne_u64 vcc, {s(S_NONCE,2)}, {v(V_POLL,2)}")
            e.op(f"s_cmp_gt_u32 {s(S_SPIN)}, {SPIN_MAX}")
            e.op(f"s_cbranch_scc1 {bk}")
            e.op(f"s_cbranch_vccnz {st}_l")
            if self.stamps: e.op(f"v_writelane_b32 {v(V_STAMP)}, {s(S_SPIN)}, {16 + sid}")
            e.op(f"s_branch {bk}")
        self.stubs.append(stub)

    def capture(self, *fns):
        e = self.e
        rec = []
        real = e.op
        e.op = lambda text, tag=None: rec.append(text)
        try:
            for f in fns: f()
        finally:
            e.op = real
        atoms = []
        for t in rec:
            if t.startswith(("s_cselect", "s_addc")): atoms[-1].append(t)
            else: atoms.append([t])
        return [lambda a=a_: [e.op(t) for t in a] and None for a_ in atoms]

    PI_A = [0, 2, 1, 4, 3, 6, 5, 8, 7, 9]
    PI_B = [1, -2, 2, -2, 2, -2, 2, -2, 2, -1]
    PI4S = [
        [[0,4,1,2,3,8,5,6,7,9], [1,0,5,2,3,4,9,6,7,8], [2,0,1,6,3,4,5,7,8,9], [3,0,1,2,7,4,5,6,8,9]],
        [[0,2,1,6,3,4,5,7,8,9], [1,3,0,2,7,4,5,6,8,9], [0,4,1,2,3,8,5,6,7,9], [1,5,0,2,3,4,9,6,7,8]],
        [[0,2,6,1,3,4,5,7,8,9], [1,3,7,0,2,4,5,6,8,9], [0,4,8,1,2,3,5,6,7,9], [1,5,9,0,2,3,4,6,7,8]],
        [[0,2,1,6,3,4,5,7,8,9], [1,3,0,7,2,4,5,6,8,9], [0,4,1,8,2,3,5,6,7,9], [1,5,0,9,2,3,4,6,7,8]],
        [[0,1,5,2,3,4,9,6,7,8], [0,2,1,6,3,4,5,7,8,9], [0,3,1,2,7,4,5,6,8,9], [0,4,1,2,3,8,5,6,7,9]],
        [[0,4,8,1,2,3,5,6,7,9], [1,5,9,0,2,3,4,6,7,8], [2,6,0,1,3,4,5,7,8,9], [3,7,0,1,2,4,5,6,8,9]],
    ]
    @property
    def PI4(self): return self.PI4S[self.o("pt", 0)]
    UNIT = (128, 64 * 3840, 64 * 3456)
    def pi_setup(self, sphi, late):
        e = self.e
        mode = self.o("pi", 8)
        if mode == 2:
            if not late:
                e.op(f"s_and_b32 {s(sphi)}, {s(sphi)}, 1")
                for m in range(2): e.op(f"s_mul_i32 {s(S_PHI + 2 * m)}, {s(sphi)}, {self.UNIT[m]}")
            else:
                e.op(f"s_mul_i32 {s(S_PHI + 4)}, {s(S_PHI)}, {self.UNIT[2] // 128}")
                for m in range(3): e.op(f"s_lshl_b32 {s(S_PHI + 2 * m + 1)}, {s(S_PHI + 2 * m)}, 1")
        elif mode >= 4 and not late:
            if mode == 4:
                tabs = self.PI4
                e.op(f"s_and_b32 {s(sphi)}, {s(sphi)}, 3")
            else:
                nph = {5: 1, 8: 2, 16: 4}[mode]
                two = ([self.PI_A, [a_ + b_ for a_, b_ in zip(self.PI_A, self.PI_B)]],
                       [[0,1,2,3,4,5,6,7,8,9], [1,0,3,2,5,4,7,6,9,8]],
                       [[0,2,1,3,4,5,7,6,8,9], [1,3,0,2,4,6,8,5,7,9]],
                       [[0,2,4,1,3,5,7,6,8,9], [1,3,4,0,2,6,8,5,7,9]],
                       [[0,1,3,2,4,5,6,8,7,9], [0,2,4,1,3,5,7,9,6,8]],
                       [[0,2,1,3,4,6,5,8,7,9], [1,3,0,2,5,4,7,6,9,8]])[self.o("p2", 0)]
                base = {1: [list(range(10))], 2: two, 4: self.PI4}[nph]
                rots = ((0, 2, 5, 7), (0, 0, 5, 5), (0, 1, 5, 6), (0, 3, 5, 8))[self.o("rot", 1)]
                tabs = [[(k + ro) % 10 for k in tb] for ro in rots for tb in base]
                e.op(f"s_and_b32 {s(sphi)}, {s(sphi)}, {nph - 1}")
                e.op(f"s_lshr_b32 {s(S_T3)}, s2, 1")
                e.op(f"s_lshl1_add_u32 {s(S_T3)}, s2, {s(S_T3)}")
                e.op(f"s_and_b32 {s(S_T3)}, {s(S_T3)}, 3")
                e.op(f"s_mul_i32 {s(S_T3)}, {s(S_T3)}, {nph}")
                e.op(f"s_add_u32 {s(sphi)}, {s(sphi)}, {s(S_T3)}")
            for i, tb in enumerate(tabs):
                assert sorted(tb) == list(range(10))
                lo = sum(k << (4 * n) for n, k in enumerate(tb[:8])); hi = tb[8] | (tb[9] << 4)
                if i == 0:
                    e.op(f"s_mov_b32 {s(S_PILO)}, {hex(lo)}")
                    e.op(f"s_mov_b32 {s(S_PIHI)}, {hex(hi)}")
                else:
                    e.op(f"s_cmp_eq_u32 {s(sphi)}, {i}")
                    e.op(f"s_cselect_b32 {s(S_PILO)}, {hex(lo)}, {s(S_PILO)}")
                    e.op(f"s_cselect_b32 {s(S_PIHI)}, {hex(hi)}, {s(S_PIHI)}")
    def pi_off(self, dst, st, m):
        e = self.e
        mode = self.o("pi", 8)
        if mode == 1: e.op(f"s_mov_b32 {s(dst)}, {st * self.UNIT[m]}")
        elif mode == 2:
            A, B = self.PI_A[st] * self.UNIT[m], self.PI_B[st]
            e.op(f"s_{'add' if B > 0 else 'sub'}_u32 {s(dst)}, {A}, {s(S_PHI + 2 * m + abs(B) - 1)}")
        else:
            e.op(f"s_bfe_u32 {s(dst)}, {s(S_PILO if st < 8 else S_PIHI)}, {hex((4 << 16) | (4 * (st % 8)))}")
            e.op(f"s_mul_i32 {s(dst)}, {s(dst)}, {self.UNIT[m]}")

    def prologue(self):
        e = self.e
        L = v(V_LANE); T0, T1, T2, T3 = v(V_T0), v(V_T1), v(V_T2), v(V_T3)
        e.op("s_cmp_ge_u32 s2, 256")
        e.op("s_cbranch_scc1 L_end")
        self.stamp(0)
        for d, off in ((S_X, 0), (S_WA, 8), (S_WB, 32), (S_WS, 72), (S_OUT, 56), (S_DBG, 64)):
            e.op(f"s_load_dwordx2 {s(d,2)}, s[0:1], {off}")
        e.op(f"s_getpc_b64 {s(S_TAB,2)}")
        e.label("L_pc")
        e.op("s_cmp_lt_u32 s2, 240")
        e.op("s_cbranch_scc1 L_nopf")
        e.op(f"s_bfe_u32 {s(S_T0)}, s2, 0x10003")
        e.op(f"v_lshl_add_u32 {T0}, v0, 1, {s(S_T0)}")
        e.op(f"v_lshlrev_b32 {T0}, 7, {T0}")
        e.op(f"v_min_u32 {T0}, L_cold-L_pc, {T0}")
        e.op(f"global_load_dword {v(224)}, {T0}, {s(S_TAB,2)}")
        e.vm = []
        e.label("L_nopf")
        if self.stamps: e.op(f"v_mov_b32 {v(V_STAMP)}, 0")
        e.op(f"v_lshrrev_b32 {T0}, 6, v0")
        e.op(f"v_and_b32 {L}, 63, v0")
        e.op(f"v_readfirstlane_b32 {s(S_WAVE)}, {T0}")
        e.op(f"s_bfe_u32 {s(S_T0)}, s2, 0x20001")
        e.op(f"s_mul_i32 {s(S_T0)}, {s(S_T0)}, 30")
        e.op(f"s_lshr_b32 {s(S_T1)}, s2, 3")
        e.op(f"s_add_u32 {s(S_T0)}, {s(S_T0)}, {s(S_T1)}")
        e.op(f"s_lshr_b32 {s(S_CG)}, {s(S_T0)}, 3")
        e.op(f"s_and_b32 {s(S_T0)}, {s(S_T0)}, 7")
        e.op(f"s_and_b32 {s(S_T1)}, s2, 1")
        e.op(f"s_lshl3_add_u32 {s(S_T0)}, {s(S_T1)}, {s(S_T0)}")
        e.op(f"s_add_u32 {s(S_T5)}, {s(S_T0)}, {s(S_CG)}")
        self.pi_setup(S_T5, False)
        e.op(f"s_lshl2_add_u32 {s(S_T0)}, {s(S_T0)}, {s(S_WAVE)}")
        e.op(f"s_mul_i32 {s(S_T0)}, {s(S_T0)}, {32 * 1280}")
        e.op(f"s_lshl_b32 {s(S_T4)}, {s(S_CG)}, 8")
        e.op(f"s_movk_i32 {s(S_T2)}, 1280")
        e.op(f"s_movk_i32 {s(S_T3)}, {2 * (8 * 1280 - 1024)}")
        e.op(f"v_lshrrev_b32 {T1}, 4, {L}")
        e.op(f"v_and_b32 {T2}, 7, {L}")
        e.op(f"v_xor_b32 {T2}, {T2}, {T1}")
        e.op(f"v_lshl_add_u32 {T2}, {T2}, 4, {s(S_T0)}")
        e.op(f"v_lshrrev_b32 {T0}, 3, {L}")
        e.op(f"v_mad_u32_u24 {v(V_XD)}, {T0}, {s(S_T2)}, {T2}")
        e.op(f"v_xad_u32 {v(V_XD+2)}, {v(V_XD)}, 64, {s(S_T3)}")
        e.op(f"v_add_u32 {v(V_XD+1)}, {8 * 1280 - 1024}, {v(V_XD)}")
        e.op(f"v_add_u32 {v(V_XD+3)}, {8 * 1280 - 1024}, {v(V_XD+2)}")
        e.op(f"v_lshlrev_b32 {T2}, 2, {T1}")
        e.op(f"v_and_b32 {T3}, 15, {L}")
        e.op(f"v_xor_b32 {T2}, {T2}, {T3}")
        e.op(f"v_lshl_add_u32 {T2}, {T2}, 4, {s(S_T4)}")
        e.op(f"v_lshl_add_u32 {T1}, {s(S_WAVE)}, 4, {T1}")
        e.op(f"s_movk_i32 {s(S_T2)}, 3840")
        e.op(f"v_mad_u32_u24 {v(V_WD)}, {T1}, {s(S_T2)}, {T2}")
        e.op(f"s_movk_i32 {s(S_T3)}, {2 * (4 * 3840 - 1024)}")
        e.op(f"v_xad_u32 {v(V_WD+2)}, {v(V_WD)}, 16, {s(S_T3)}")
        for n in (1, 3): e.op(f"v_add_u32 {v(V_WD+n)}, {4 * 3840 - 1024}, {v(V_WD+n-1)}")
        e.op(f"s_lshl_b32 {s(S_WM0)}, {s(S_WAVE)}, 12")
        e.op(f"s_lshl2_add_u32 {s(S_XM0)}, {s(S_WM0)}, {L_X}")
        self.srd_tail(S_X, 2048 * 1280)
        self.srd_tail(S_WA, 640 * 3840)
        e.op(f"s_lshl2_add_u32 {s(S_T0)}, s2, {s(S_WAVE)}")
        e.op(f"s_mul_i32 {s(S_T0)}, {s(S_T0)}, 192")
        e.label("L_pc2")
        e.op(f"s_add_u32 {s(S_TAB)}, {s(S_TAB)}, wave_table@rel32@lo+(L_pc2+4-L_pc)")
        e.op(f"s_addc_u32 {s(S_TAB+1)}, {s(S_TAB+1)}, wave_table@rel32@hi+(L_pc2+12-L_pc)")
        e.op(f"s_add_u32 {s(S_TAB)}, {s(S_TAB)}, {s(S_T0)}")
        e.op(f"s_addc_u32 {s(S_TAB+1)}, {s(S_TAB+1)}, 0")
        e.wait(lg="all")
        self.flush_stamp()
        e.op("s_cmp_ge_u32 s2, 240")
        e.op("s_cbranch_scc1 L_spare")
        self.spare_snap = e.snapshot()
        self.table_loads()

    def flag_init(self, spare=False):
        if not self.o("finit", 1) & 1: return
        e = self.e
        e.op(f"s_cmp_eq_u32 {s(S_WAVE)}, 1")
        if spare:
            e.op(f"s_cselect_b32 {s(S_T1)}, {s(S_FLB)}, {OOB}")
        else:
            e.op(f"s_cselect_b32 {s(S_T1)}, {s(S_FLB)}, {s(S_FLA)}")
            e.op(f"s_lshr_b32 {s(S_T2)}, {s(S_TB1)}, 2")
            e.op(f"s_lshl_b32 {s(S_T2)}, {s(S_T2)}, 7")
            e.op(f"s_add_u32 {s(S_T2)}, {s(S_T2)}, {FL_GO}")
            e.op(f"s_add_u32 {s(S_T3)}, {s(S_FLA)}, 128")
            e.op(f"s_cmp_eq_u32 {s(S_WAVE)}, 2")
            e.op(f"s_cselect_b32 {s(S_T2)}, {s(S_T2)}, {s(S_T3)}")
            e.op(f"s_cmp_eq_u32 {s(S_CG)}, 14")
            e.op(f"s_cselect_b32 {s(S_T2)}, {s(S_T2)}, {OOB}")
            e.op(f"s_cmp_lt_u32 {s(S_WAVE)}, 2")
            e.op(f"s_cselect_b32 {s(S_T1)}, {s(S_T1)}, {s(S_T2)}")
        e.op(f"s_andn2_b32 {s(S_T1)}, {s(S_T1)}, 127")
        e.op(f"v_lshl_add_u32 {v(V_T0)}, {v(V_LANE)}, 2, 0")
        e.op("s_mov_b32 exec_hi, 0")
        e.op(f"buffer_store_dword {v(V_ZERO)}, {v(V_T0)}, {s(S_WS,4)}, {s(S_T1)} offen sc1", tag="fi")
        e.op("s_mov_b32 exec_hi, -1")

    def table_loads(self):
        e = self.e
        e.op(f"s_load_dwordx2 {s(S_PWO,2)}, s[0:1], 16")
        e.op(f"s_load_dwordx4 {s(S_PW2,4)}, s[0:1], 40")
        e.op(f"s_load_dwordx16 {s(TA,16)}, {s(S_TAB,2)}, 0")
        e.op(f"s_load_dwordx16 {s(TA+16,16)}, {s(S_TAB,2)}, 64")
        e.op(f"s_load_dword {s(S_SPIN)}, {s(S_TAB,2)}, 128")

    def common_setup(self):
        e = self.e
        L = v(V_LANE)
        self.srd_tail(S_WB, 640 * 3456)
        self.srd_tail(S_WS, WS_SIZE)
        self.srd_tail(S_OUT, 2048 * 1280)
        self.srd_tail(S_DBG, 256)
        e.op(f"s_mov_b32 {s(S_MISC+3)}, 0x20000")
        e.op(f"v_lshlrev_b32 {v(V_L16)}, 4, {L}")
        e.op(f"v_mov_b32 {v(V_ZERO)}, 0")
        e.op(f"v_lshrrev_b32 {v(V_L16H)}, 5, {L}")
        e.op(f"v_lshl_add_u32 {v(V_L16H)}, {v(V_L16H)}, 26, {v(V_L16)}")
        e.op(f"s_mov_b32 {s(S_VM)}, 0xfffff")
        e.op(f"s_mov_b32 {s(S_VM+1)}, 0xfffff")
        e.op(f"s_mov_b32 {s(S_C1)}, 0x10000")
        e.op(f"s_mov_b32 {s(S_C2)}, 0x20000")

    def dma(self, st, m):
        e = self.e
        dm = S_T5 if st < 2 else S_DM
        if m == 0: srd, vd, k, base, lo = S_X, V_XD, st, S_XM0, self.XSLOT[st] * 4096
        elif st < 10: srd, vd, k, base, lo = S_WA, V_WD, st, S_WM0, L_W + (st % NW) * 16384
        else: srd, vd, k, base, lo, m = S_WB, V_WD2, self.xst(st), S_WM0, L_W + (st % NW) * 16384, 2
        def f(n):
            if n == 0:
                e.op(f"s_add_u32 m0, {s(base)}, {lo}")
                self.pi_off(dm, k, m)
            e.op(f"buffer_load_dwordx4 {v(vd+n)}, {s(srd,4)}, {s(dm)} offen offset:{n*1024} {('', 'sc1 ', 'sc0 ', 'sc0 sc1 ')[self.o('dsc', 0)]}lds", tag=("d", st))
        return [lambda n=n: f(n) for n in range(4)]
    def dmas(self, st): return (self.dma(st, 0) if st < 10 else []) + self.dma(st, 1)

    P2X = (9, 0, 1, 5, 2, 7, 3, 4, 6, 8)
    XREG = {0: 0, 1: 1, 2: 2, 3: 3, 4: 4, 6: 5, 8: 6}
    XSLOT = (0, 1, 2, 3, 0, 1, 2, 3, 0, 2)
    def xst(self, st):
        return st if st < 10 else self.P2X[st - 10]

    def stage1_tables(self):
        e = self.e
        L = v(V_LANE); T0, T1, T2, T3 = v(V_T0), v(V_T1), v(V_T2), v(V_T3)
        P0, P1 = v(V_POLL), v(V_POLL + 1)
        e.op(f"s_movk_i32 {s(S_T2)}, 3456")
        e.op(f"v_cmp_le_u32 vcc, 3456, {T2}")
        e.op(f"v_mad_u32_u24 {v(V_WD2)}, {T1}, {s(S_T2)}, {T2}")
        e.op(f"v_mov_b32 {T0}, 0x1000000")
        e.op(f"v_cndmask_b32 {v(V_WD2)}, {v(V_WD2)}, {T0}, vcc")
        e.op(f"s_movk_i32 {s(S_T3)}, {2 * (4 * 3456 - 1024)}")
        e.op(f"v_xad_u32 {v(V_WD2+2)}, {v(V_WD2)}, 16, {s(S_T3)}")
        for n in (1, 3): e.op(f"v_add_u32 {v(V_WD2+n)}, {4 * 3456 - 1024}, {v(V_WD2+n-1)}")
        e.op(f"v_and_b32 {P0}, 8, {L}")
        e.op(f"v_and_b32 {T0}, 15, {L}")
        e.op(f"v_add_u32 {P0}, {P0}, {T0}")
        e.op(f"v_lshrrev_b32 {P1}, 4, {L}")
        e.op(f"s_and_b32 {s(S_T0)}, {s(S_WAVE)}, 2")
        e.op(f"s_lshl_b32 {s(S_T0)}, {s(S_T0)}, 14")
        e.op(f"s_add_u32 {s(S_T0)}, {s(S_T0)}, {L_X}")
        e.op(f"v_bfe_u32 {T1}, {L}, 1, 3")
        e.op(f"v_xor_b32 {T1}, {T1}, {P1}")
        e.op(f"v_lshl_add_u32 {T1}, {T1}, 4, {s(S_T0)}")
        e.op(f"v_lshl_add_u32 {v(V_XR)}, {P0}, 7, {T1}")
        e.op(f"v_xor_b32 {v(V_XR+1)}, 64, {v(V_XR)}")
        e.op(f"s_and_b32 {s(S_T1)}, {s(S_WAVE)}, 1")
        e.op(f"s_lshl_b32 {s(S_T0)}, {s(S_T1)}, 3")
        e.op(f"v_and_b32 {T0}, 14, {L}")
        e.op(f"v_and_or_b32 {T0}, {P1}, 1, {T0}")
        e.op(f"v_xor_b32 {T0}, {s(S_T0)}, {T0}")
        e.op(f"v_and_b32 {T1}, 1, {L}")
        e.op(f"v_lshl_add_u32 {T0}, {T0}, 1, {T1}")
        e.op(f"v_bfe_u32 {T1}, {L}, 2, 2")
        e.op(f"v_lshl_add_u32 {T1}, {P1}, 3, {T1}")
        e.op(f"v_lshlrev_b32 {T1}, 8, {T1}")
        e.op(f"v_lshl_add_u32 {v(V_WR)}, {T0}, 3, {T1}")
        for j in range(1, 4): e.op(f"v_xor_b32 {v(V_WR+j)}, {(j >> 1) * 64 + (j & 1) * 16}, {v(V_WR)}")
        for j in range(4): e.op(f"v_add_u32 {v(V_WR+4+j)}, 0x10000, {v(V_WR+j)}")
        e.op(f"v_lshlrev_b32 {T0}, 4, {P0}")
        e.op(f"v_lshl_add_u32 {v(V_LH)}, {P1}, 9, {T0}")
        lv, ld = self.L("st1v"), self.L("st1d")
        e.op(f"s_cmp_ge_u32 {s(S_CG)}, 10")
        e.op(f"s_cbranch_scc1 {lv}")
        e.op(f"v_lshrrev_b32 {T0}, 5, {L}")
        e.op(f"v_mul_u32_u24 {T0}, {65536 - 1024}, {T0}")
        e.op(f"v_add_u32 {v(V_ST1)}, {T0}, {v(V_LH)}")
        for j in range(1, 4): e.op(f"v_add_u32 {v(V_ST1+j)}, {(j >> 1) * 131072 + (j & 1) * 128}, {v(V_ST1)}")
        e.op(f"s_branch {ld}")
        e.label(lv)
        e.op(f"s_lshl1_add_u32 {s(S_T1)}, {s(S_CG)}, {s(S_T1)}")
        e.op(f"s_lshl_b32 {s(S_T1)}, {s(S_T1)}, 6")
        e.op(f"s_sub_u32 {s(S_T1)}, {s(S_T1)}, 1280")
        e.op(f"v_add_u32 {T0}, {s(S_T1)}, {P0}")
        e.op(f"v_mul_u32_u24 {T2}, 640, {P1}")
        e.op(f"s_mov_b32 {s(S_T2)}, {64 * 2560 - 640}")
        for j in range(4):
            e.op(f"v_mul_u32_u24 {T3}, 1639, {T0}")
            e.op(f"v_lshrrev_b32 {T3}, 16, {T3}")
            e.op(f"v_lshl_add_u32 {T1}, {T0}, 4, {T2}")
            e.op(f"v_mad_u32_u24 {v(V_ST1+j)}, {T3}, {s(S_T2)}, {T1}")
            if j < 3: e.op(f"v_add_u32 {T0}, {24 if j & 1 else 8}, {T0}")
        e.label(ld)

    def late_lane_tables(self):
        e = self.e
        L = v(V_LANE); T0, T1, T2, T3 = v(V_T0), v(V_T1), v(V_T2), v(V_T3)
        e.op(f"v_and_b32 {T0}, 31, {L}")
        e.op(f"v_lshrrev_b32 {T1}, 5, {L}")
        e.op(f"v_lshlrev_b32 {v(V_R)}, 2, {T0}")
        e.op(f"s_lshl_b32 {s(S_T1)}, {s(S_WAVE)}, 10")
        e.op(f"s_add_u32 {s(S_T2)}, {s(S_T1)}, {L_K}")
        e.op(f"v_add_u32 {v(V_KA)}, {s(S_T2)}, {v(V_L16)}")
        e.op(f"s_mul_i32 {s(S_T1)}, {s(S_T1)}, 3")
        e.op(f"s_add_u32 {s(S_T1)}, {s(S_T1)}, {L_V}")
        e.op(f"v_lshl_add_u32 {T2}, {T1}, 7, {v(V_L16)}")
        e.op(f"v_add_u32 {v(V_VA)}, {s(S_T1)}, {T2}")
        e.op(f"v_lshlrev_b32 {T2}, 2, {T1}")
        e.op(f"v_sub_u32 {T2}, {T0}, {T2}")
        e.op(f"v_cvt_f32_i32 {T2}, {T2}")
        e.op(f"v_mov_b32 {T3}, {f32(2.0 ** 100)}")
        for rr in range(16):
            key = 8 * (rr >> 2) + (rr & 3)
            e.op(f"v_fmaak_f32 {v(CE + rr)}, {T2}, {T3}, {f32((0.5 - key) * 2.0 ** 100)}")
            e.op(f"v_min_f32 {v(CD + rr)}, 0, {v(CE + rr)}")
            e.op(f"v_min_f32 {v(CE + rr)}, -{v(CE + rr)}, 0")
        e.op(f"v_lshrrev_b32 {T1}, 4, {L}")
        e.op(f"v_lshl_add_u32 {v(V_HL)}, {T1}, 8, {v(V_L16)}")
    def late_table_use(self):
        e = self.e
        L = v(V_LANE); T0, T1, T2, T3 = v(V_T0), v(V_T1), v(V_T2), v(V_T3)
        for t in range(4): e.op(f"v_add_u32 {v(V_H + t)}, {s(S_HT + t)}, {v(V_HL)}")
        for k in range(3): e.op(f"v_add_u32 {v(V_KT + k)}, {s(S_KADJ + k)}, {v(V_L16)}")
        e.op(f"v_add_u32 {v(V_Q)}, {s(S_QOFF)}, {v(V_L16)}")
        e.op(f"v_lshl_add_u32 {v(V_R)}, {s(S_TQ)}, 8, {v(V_R)}")
        e.op(f"v_add_u32 {v(V_R)}, {WS_G}, {v(V_R)}")
        e.op(f"v_min_u32 {T0}, 59, {L}")
        e.op(f"v_and_b32 {T1}, 3, {T0}")
        e.op(f"v_lshl_add_u32 {T1}, {T1}, 3, {s(S_PFD)}")
        e.op(f"v_lshrrev_b32 {T0}, 2, {T0}")
        e.op(f"v_lshl_add_u32 {T1}, {T0}, 7, {T1}")
        e.op(f"s_mul_i32 {s(S_T0)}, {s(S_WAVE)}, {-9 * 128}")
        e.op(f"s_add_u32 {s(S_T0)}, {s(S_T0)}, {36 * 128}")
        e.op(f"v_cmp_lt_u32 vcc, 47, {L}")
        e.op(f"v_add_u32 {T0}, {s(S_T0)}, {T1}")
        e.op(f"v_cndmask_b32 {v(V_FD)}, {T1}, {T0}, vcc")
        e.op(f"v_lshrrev_b32 {T0}, 1, {L}")
        e.op(f"v_min_u32 {T0}, 3, {T0}")
        e.op(f"v_and_b32 {T1}, 1, {L}")
        e.op(f"v_lshl_add_u32 {T1}, {T1}, 3, {s(S_PFC)}")
        e.op(f"v_lshl_add_u32 {v(V_FC)}, {T0}, 7, {T1}")
        e.op(f"v_writelane_b32 {v(V_FC)}, {s(S_PFG)}, 63")
        e.op(f"s_lshr_b32 {s(S_T0)}, {s(S_BITS)}, 2")
        e.op(f"v_writelane_b32 {v(V_FC)}, {s(S_T0)}, 62")
        e.op(f"s_lshr_b32 {s(S_T0)}, {s(S_TQ)}, 2")
        e.op(f"s_sub_u32 {s(S_T0)}, {s(S_T0)}, 2")
        e.op(f"v_lshrrev_b32 {T0}, 4, {L}")
        e.op(f"v_min_u32 {T0}, 2, {T0}")
        e.op(f"v_add_u32 {T0}, {s(S_T0)}, {T0}")
        e.op(f"v_max_i32 {T0}, 0, {T0}")
        e.op(f"v_and_b32 {T1}, 3, {L}")
        e.op(f"v_lshl_add_u32 {T1}, {T1}, 3, {s(S_PFA)}")
        e.op(f"v_lshl_add_u32 {T0}, {T0}, 11, {T1}")
        e.op(f"v_bfe_u32 {T1}, {L}, 2, 1")
        e.op(f"v_mad_u32_u24 {T0}, {T1}, {s(S_ASTEP)}, {T0}")
        e.op(f"v_cmp_gt_u32 vcc, 48, {L}")
        e.op(f"v_bfe_u32 {T1}, {L}, 3, 1")
        e.op(f"v_add_u32 {T1}, 1, {T1}")
        e.op(f"v_mul_u32_u24 {T1}, 640, {T1}")
        e.op(f"v_cndmask_b32 {T1}, 0, {T1}, vcc")
        e.op(f"v_add_u32 {v(V_FA)}, {T0}, {T1}")

    def rt_tables(self, base):
        e = self.e
        L = v(V_LANE); T0, T1, T2, T3 = v(V_T0), v(V_T1), v(V_T2), v(V_T3)
        P0, P1 = v(V_POLL), v(V_POLL + 1)
        e.op(f"s_and_b32 {s(S_T0)}, {s(S_WAVE)}, 1")
        e.op(f"s_mul_i32 {s(S_T0)}, {s(S_T0)}, 160")
        e.op(f"v_add_u32 {T0}, {s(S_T0)}, {L}")
        for i in range(3):
            e.op(f"v_mul_u32_u24 {T1}, 820, {T0}")
            e.op(f"v_lshrrev_b32 {T1}, 16, {T1}")
            e.op(f"v_lshlrev_b32 {T1}, 2, {T1}")
            e.op(f"v_xor_b32 {T1}, {T0}, {T1}")
            e.op(f"v_lshlrev_b32 {v(RT_LD + i)}, 4, {T1}")
            if i < 2: e.op(f"v_add_u32 {T0}, 64, {T0}")
        e.op(f"v_lshrrev_b32 {T0}, 4, {L}")
        e.op(f"v_and_b32 {T1}, 3, {L}")
        e.op(f"v_bfe_u32 {P1}, {L}, 2, 2")
        e.op(f"v_lshlrev_b32 {T3}, 3, {P1}")
        e.op(f"v_mul_u32_u24 {P1}, 1280, {P1}")
        e.op(f"v_add_u32 {P1}, {base}, {P1}")
        e.op(f"s_lshl_b32 {s(S_T0)}, {s(S_WAVE)}, 5")
        e.op(f"v_and_b32 {P0}, 1, {T0}")
        e.op(f"v_lshl_add_u32 {T2}, {T1}, 1, {P0}")
        e.op(f"v_lshrrev_b32 {v(RT_D)}, 5, {L}")
        e.op(f"v_lshl_add_u32 {T2}, {v(RT_D)}, 3, {T2}")
        e.op(f"v_add_u32 {T2}, {s(S_T0)}, {T2}")
        for i in range(2):
            if i: e.op(f"v_add_u32 {T2}, 16, {T2}")
            e.op(f"v_xor_b32 {v(RT_D)}, {T2}, {T3}")
            e.op(f"v_lshl_add_u32 {v(RT_RD + i)}, {v(RT_D)}, 3, {P1}")
        e.op(f"v_lshl_add_u32 {T2}, {P0}, 2, {T1}")
        e.op(f"s_lshl3_add_u32 {s(S_T0)}, {s(S_WAVE)}, 0x80")
        e.op(f"v_add_u32 {T2}, {s(S_T0)}, {T2}")
        e.op(f"v_xor_b32 {T2}, {T2}, {T3}")
        e.op(f"v_lshl_add_u32 {v(RT_RD + 2)}, {T2}, 3, {P1}")
        e.op(f"v_mul_u32_u24 {T0}, {1024 - 256}, {T0}")
        e.op(f"v_add_u32 {v(RT_ST)}, {T0}, {v(V_L16)}")
        e.op(f"v_add_u32 {v(RT_ST + 1)}, {74 * 5120}, {v(RT_ST)}")
        e.op(f"s_mov_b32 {s(S_T0)}, {74 * 5120 - 256}")
        e.op(f"v_mad_u32_u24 {T0}, {P0}, {s(S_T0)}, {v(V_L16H)}")
        e.op(f"v_add_u32 {v(RT_ST + 2)}, 4096, {T0}")
    def rt_srd(self, reg=S_BITS, bit=1):
        e = self.e
        e.op(f"s_bitcmp1_b32 {s(reg)}, {bit}")
        e.op(f"s_cselect_b64 {s(S_MISC,2)}, {s(S_PWO,2)}, {s(S_PW2,2)}")
        e.op(f"s_mov_b32 {s(S_MISC+2)}, {640 * 1280}")
        e.op(f"s_cselect_b32 {s(S_MISC+2)}, {s(S_MISC+2)}, {1728 * 1280}")
    def rt_loads(self, base, src, sw):
        e = self.e
        for i in range(3):
            e.op(f"s_add_u32 m0, {s(sw)}, {base + i * 1024}")
            if i == 2: e.op("s_mov_b32 exec_hi, 0")
            e.op(f"buffer_load_dwordx4 {v(RT_LD + i)}, {s(S_MISC,4)}, {s(src)} offen {self.nt}lds", tag="rl")
            if i == 2: e.op("s_mov_b32 exec_hi, -1")
    def rt_reads(self, lo_=0, D=RT_D):
        return [lambda i=i, u=u: self.e.op(f"ds_read_b64_tr_b16 {v(D + 4 * i + 2 * u, 2)}, {v(RT_RD + i)} offset:{lo_ + u * 5120}", tag=("rt", i))
                for i in range(3) for u in range(2)]
    def rt_stores(self, D=RT_D, so=S_RTS):
        e = self.e
        def st(i):
            e.wait(lg=("rt", i))
            e.op(f"buffer_store_dwordx4 {v(D + 4 * i, 4)}, {v(RT_ST + i)}, {s(S_WS,4)}, {s(so)} offen sc1", tag="rs")
        return [lambda i=i: st(i) for i in range(3)]

    EARLY_W = (0, 1, 2, 3)
    def w_loads(self, n):
        e = self.e
        def f(j):
            dst = r(WR + 20 * (n % NWR) + 4 * j, 4)
            if n == 13:
                if j in (0, 4):
                    e.op(f"s_add_u32 {s(S_T2)}, {s(S_WT0)}, {n * 5120 - 2048 + (4096 if j else 0)}")
                    e.op(f"s_cmp_lt_u32 {s(S_WAVE)}, 2")
                    e.op(f"s_cselect_b32 {s(S_T2)}, {s(S_T2)}, {OOB}")
                e.op(f"buffer_load_dwordx4 {dst}, {v(V_L16)}, {s(S_WS,4)}, {s(S_T2)} offen offset:{(j & 3) * 1024} sc1", tag=("w", n, j))
                return
            if j == 0:
                base, off = (S_WT0, n * 5120) if n < 14 else (S_WT1, (n - 14) * 5120)
                if self.o("wsame", 0): base, off = S_WT0, (n % 4) * 5120
                if self.wv is None or self.wv[0] != base:
                    e.op(f"v_add_u32 {v(V_WV)}, {s(base)}, {v(V_L16)}")
                    self.wv = (base, 0)
                if off != self.wv[1]: e.op(f"v_add_u32 {v(V_WV)}, {off - self.wv[1]}, {v(V_WV)}")
                self.wv = (base, off)
            e.op(f"global_load_dwordx4 {dst}, {v(V_WV)}, {s(S_WS,2)} offset:{j * 1024 - 2048} sc1", tag=("w", n, j))
        return [lambda j=j: f(j) for j in range(5)]
    @property
    def LDS_W(self):
        return (14, 15, 16)[:self.o("nlds", 2)]
    def wl_dmas(self):
        e = self.e
        def f(i):
            if i == 0:
                e.op(f"s_mul_i32 {s(S_T4)}, {s(S_WAVE)}, 20480")
                e.op(f"s_lshl_b32 {s(S_T2)}, {s(S_WAVE)}, 3")
                e.op(f"s_lshr_b32 {s(S_T2)}, {hex(sum((54 + 5 * w - KS0[w]) << (8 * w) for w in range(4)))}, {s(S_T2)}")
                e.op(f"s_and_b32 {s(S_T2)}, {s(S_T2)}, 0xff")
                e.op(f"s_mul_i32 {s(S_T2)}, {s(S_T2)}, 5120")
                e.op(f"s_add_u32 {s(S_DM)}, {s(S_T2)}, {s(S_WT0)}")
            if i % 4 == 0:
                e.op(f"s_add_u32 m0, {s(S_T4)}, {L_W + i * 1024}")
                e.op(f"s_add_u32 {s(S_DM)}, {s(S_DM)}, {4096 if i else -2048}")
            e.op(f"buffer_load_dwordx4 {v(V_L16)}, {s(S_WS,4)}, {s(S_DM)} offen offset:{(i % 4) * 1024} sc1 lds", tag="wl")
        return [lambda i=i: f(i) for i in range(5 * len(self.LDS_W))]
    @property
    def TM(self): return self.o("tm", 5)
    def hreg(self, n, t):
        n0 = 19 - self.TM
        if n < n0: return HSLOT[n % NH] + 4 * t
        i = self.TM * t + (n - n0)
        return HSLOT[(n0 + i // 4) % NH] + 4 * (i % 4)
    def h_load(self, n, t):
        e = self.e
        dst = v(self.hreg(n, t), 4)
        if n >= 14:
            q = n - 14 if not self.o("hsame", 0) else 0
            so = ("0", s(S_C1), s(S_C2))[q >> 1]
            e.op(f"buffer_load_dwordx4 {dst}, {v(V_O + t)}, {s(S_WS,4)}, {so} offen offset:{(q & 1) * 2048} sc1", tag=("h", n, t))
            return
        if t == 0 and n > 1 and n % 2 == 0:
            e.op(f"s_movk_i32 {s(S_HK)}, {n * 2048 if not self.o('hsame', 0) else 0}")
            self.hk = n
        if t == 0 and n == 13:
            e.op(f"s_cmp_lt_u32 {s(S_WAVE)}, 2")
            e.op(f"s_cselect_b32 {s(S_T5)}, {s(S_HK)}, {OOB}")
        assert n < 2 or self.hk == n & ~1
        e.op(f"buffer_load_dwordx4 {dst}, {v(V_H + t)}, {s(S_WS,4)}, {s(S_T5) if n == 13 else s(S_HK) if n > 1 else 0} offen offset:{(n & 1) * 2048} sc1", tag=("h", n, t))
    def kvq_loads(self):
        e = self.e
        so = ("0", s(S_C1), s(S_C2))
        def q(f): e.op(f"buffer_load_dwordx4 {v(VQ + 4 * f, 4)}, {v(V_Q)}, {s(S_WS,4)}, {so[f]} offen sc1", tag="q")
        def k(f, i):
            if f == 0 and i == 0: e.op(f"s_mul_i32 {s(S_T5)}, {s(S_WAVE)}, 3072")
            if i == 0: e.op(f"s_add_u32 m0, {s(S_T5)}, {L_K + f * 12288}")
            e.op(f"buffer_load_dwordx4 {v(V_KT + i)}, {s(S_WS,4)}, {so[f]} offen offset:{i * 1024} sc1 lds", tag="kd")
        def vv(i, n):
            if i == 0 and n == 0: e.op(f"s_mul_i32 {s(S_T5)}, {s(S_WAVE)}, 9216")
            if n == 0: e.op(f"s_add_u32 m0, {s(S_T5)}, {L_V + i * 3072}")
            e.op(f"buffer_load_dwordx4 {v(V_L16H if n == 2 else V_L16)}, {s(S_WS,4)}, {s(S_VOFF + i)} offen offset:{n * 1024} sc1 lds", tag="vd")
        return [lambda f=f: q(f) for f in range(3)] + [lambda f=f, i=i: k(f, i) for f in range(3) for i in range(3)] + \
               [lambda i=i, n=n: vv(i, n) for i in range(3) for n in range(3)]

    @staticmethod
    def tile_of(i):
        j, t0, k0 = i >> 3, (i >> 1) & 3, i & 1
        return j, (3 - t0 if j & 1 else t0), k0 ^ (t0 & 1)
    def w_read(self, st, f, u):
        j, ks = f >> 1, f & 1
        off = L_W + (st % NW) * 16384 + ks * 8192 + u * 1024
        ad = V_WR + j
        if off >= 65536: off -= 65536; ad += 4
        self.e.op(f"ds_read_b64_tr_b16 {v(V_FR + 4 * f + 2 * u, 2)}, {v(ad)} offset:{off}", tag=("w", st, f))
    def xreg(self, xs, ks, tt): return A_X + 32 * self.XREG.get(xs, NXR) + 16 * ks + 4 * tt
    def x_read(self, st, ks, tt):
        xs = self.xst(st)
        self.e.op(f"ds_read_b128 {r(self.xreg(xs, ks, tt), 4)}, {v(V_XR + ks)} offset:{(tt >> 1) * 16384 + self.XSLOT[xs] * 4096 + (tt & 1) * 1024}", tag=("x", st, ks, tt))
    def accreg(self, ps, tt, j, swap):
        b, p, G, q = tt >> 1, tt & 1, j >> 1, j & 1
        return ACC[ps] + 32 * G + (16 * q + 8 * b + 4 * p if swap else 16 * p + 8 * b + 4 * q)

    @property
    def LEAD(self): return self.o('lead', 11)
    def stage1_fill(self):
        e = self.e
        fill = {m: [] for m in range(-1, 640)}
        used = {m: 0 for m in range(-1, 640)}
        def at(m, f, n=1):
            fill[max(m, -1)].append(f); used[max(m, -1)] += n
        WG = (1, 2, 9, 11, 15, 17, 21, 23)
        for st in range(20):
            b = 32 * st - self.LEAD
            def bar(st=st):
                assert ("d", st) in e.all_tags
                e.wait(vm=("d", st), lg="all")
                e.op("s_barrier")
            at(b, bar, 2)
            for f in range(8):
                for u in range(2): at(b + WG[f], lambda st=st, f=f, u=u: self.w_read(st, f, u))
            for f in range(8):
                rd = lambda st=st, f=f: self.x_read(st, f & 1, f >> 1)
                if st < 10: at(b + 3 + (f >> 1), rd)
                elif st > 10 and self.xst(st) not in self.XREG: at(b - 32 + (13, 13, 19, 19, 25, 25, 27, 27)[f], rd)
            for g in (-1, 3, 7, 15): used[max(32 * st + g, -1)] += 1
        return fill, used

    def vm_schedule(self, fill, used, queues, m0, m1, thr):
        lag = 0
        for m in range(m0, m1):
            lag = max(0, lag - 16)
            heads = [q for q in queues if q and q[0][0] <= m]
            if not heads: continue
            q = min(heads, key=lambda q: q[0][1])
            if (used[m] or m % 2 == 0) and q[0][1] + 3 > m: continue
            if q[0][1] <= m or lag <= thr:
                rel, dl, cost, f = q.pop(0)
                fill[m].append(f); used[m] += 2
                lag = min(lag, 3 * 72) + cost
        assert not any(queues), [len(q) for q in queues]
    def va_place(self, fill, used, ops, m0, m1):
        cap = 2
        while sum(max(0, cap - used[m]) for m in range(m0, m1)) < len(ops): cap += 1
        over = len(ops) - sum(max(0, cap - 1 - used[m]) for m in range(m0, m1)) if cap > 2 else len(ops)
        ops = list(ops)
        for m in range(m0, m1):
            n = max(0, cap - 1 - used[m]) if cap > 2 else 0
            ex = max(0, cap - used[m]) - n
            ex = min(ex, over); over -= ex
            for _ in range(n + ex):
                if ops: fill[m].append(ops.pop(0)); used[m] += 1
        assert not ops

    def p1_epilogue_ops(self):
        e = self.e
        groups = []
        for g in range(8):
            A = ACC[0] + 8 * g
            ops = [lambda A=A, q=q: e.op(f"v_mul_f32 {v(A+q)}, {s(S_SCALE)}, {v(A+q)}") for q in range(8)]
            ops += [lambda A=A, q=q: e.op(f"v_cvt_pk_bf16_f32 {v(A+q)}, {v(A+2*q)}, {v(A+2*q+1)}") for q in range(4)]
            ops.append(lambda A=A, g=g: e.op(f"buffer_store_dwordx4 {v(A,4)}, {v(V_ST1 + (g >> 1))}, {s(S_WS,4)}, {s(S_ST1B if g & 1 else S_ST1)} offen sc1", tag="st1"))
            groups.append(ops)
        return groups
    def p2_epilogue_ops(self):
        e = self.e
        groups = []
        for g in range(8):
            A = ACC[1] + 8 * g
            ops = [lambda A=A, q=q: e.op(f"v_cvt_pk_bf16_f32 {v(A+q)}, {v(A+2*q)}, {v(A+2*q+1)}") for q in range(4)]
            ops += [lambda A=A, q=q: e.op(f"v_pk_max_i16 {v(A+q)}, {v(A+q)}, 0") for q in range(4)]
            ops.append(lambda A=A, g=g: e.op(f"buffer_store_dwordx4 {v(A,4)}, {v(V_LH)}, {s(S_WS,4)}, {s(S_ST2B if g & 1 else S_ST2)} offen offset:{(g >> 2) * 2048 + ((g >> 1) & 1) * 128} sc1", tag="st2"))
            groups.append(ops)
        return groups

    def stage1_stream(self, fill, m0, m1, swap):
        e = self.e
        for m in range(m0, m1):
            st, i = divmod(m, 32)
            j, tt, ks = self.tile_of(i)
            if ("w", st, 2 * j + ks) in e.lg or ("x", st, ks, tt) in e.lg:
                e.wait(lg=[("w", st, 2 * j + 1), ("x", st, 1, tt | 1)])
            acc = v(self.accreg(st // 10, tt, j, swap), 4)
            wf = v(V_FR + 4 * (2 * j + ks), 4)
            xf = r(self.xreg(self.xst(st), ks, tt), 4)
            c = "0" if (st % 10 == 0 and i % 2 == 0) else acc
            if swap: e.op(f"v_mfma_f32_16x16x32_bf16 {acc}, {xf}, {wf}, {c}")
            else: e.op(f"v_mfma_f32_16x16x32_bf16 {acc}, {wf}, {xf}, {c}")
            for fn in fill[m]: fn()

    def ones_init(self):
        e = self.e
        def first():
            e.op(f"s_mov_b32 {s(S_MASK)}, 0x11000000")
            e.op(f"s_mov_b32 {s(S_MASK+1)}, 0x11000000")
            e.op(f"v_mov_b32 {v(VF)}, 0x3f803f80")
        return [first, lambda: e.op(f"v_cndmask_b32 {v(VF)}, 0, {v(VF)}, {s(S_MASK,2)}")] + \
               [lambda i=i: e.op(f"v_mov_b32 {v(VF + i)}, {v(VF)}") for i in range(1, 8)]

    def stage1(self):
        e = self.e
        lead = self.LEAD
        nc, c0, ne = self.o("tnc", 0), self.o("tch0", 2), self.o("tne", 1)
        S_TX, S_TW = 98, 99
        tstr = self.o("tstr", nc)
        def touch_setup():
            e.op(f"s_lshl2_add_u32 {s(S_T0)}, s2, {s(S_WAVE)}")
            nx, nw_ = -(-2048 // 960), 2 * nc
            e.op(f"v_min_u32 {v(30)}, {nx * nc - 1}, {v(V_LANE)}")
            e.op(f"v_mul_u32_u24 {v(31)}, {-(-65536 // nc)}, {v(30)}")
            e.op(f"v_lshrrev_b32 {v(31)}, 16, {v(31)}")
            e.op(f"v_mul_u32_u24 {v(31)}, {10 - nc}, {v(31)}")
            e.op(f"v_add_lshl_u32 {v(30)}, {v(30)}, {v(31)}, 7")
            e.op(f"s_mul_i32 {s(S_TX)}, {s(S_T0)}, {nx * 1280}")
            e.op(f"v_min_u32 {v(31)}, {nw_ - 1}, {v(V_LANE)}")
            e.op(f"v_lshlrev_b32 {v(31)}, 7, {v(31)}")
            e.op(f"s_mul_i32 {s(S_TW)}, {s(S_T0)}, {nw_ * 128}")
            e.op(f"s_add_u32 {s(S_TW)}, {s(S_TW)}, {c0 * 64 * 3840}")
        def touch(k):
            if k == 0: touch_setup()
            e.op(f"buffer_load_dword {v(28)}, {v(30)}, {s(S_X,4)}, {s(S_TX)} offen offset:{(c0 + k * tstr) * 128}")
            if k: e.op(f"s_add_u32 {s(S_TW)}, {s(S_TW)}, {tstr * 64 * 3840}")
            e.op(f"buffer_load_dword {v(29)}, {v(31)}, {s(S_WA,4)}, {s(S_TW)} offen")
        tpos = [self.o("tpos", 0) + k * self.o("tstep", 1) for k in range(ne)] if nc else []
        def touch_at(p):
            for k in range(len(tpos)):
                if tpos[k] == p: touch(k)
        touch_at(-1)
        z5 = self.o("zoom", 0) == 5 and self.stamps
        if z5: e.op("s_memrealtime s[98:99]")
        for f in self.dmas(0): f()
        if z5: e.op("s_memrealtime s[100:101]")
        touch_at(0)
        self.pi_setup(None, True)
        self.common_setup()
        self.stage1_tables()
        d1 = self.dmas(1)
        for f in d1[:4]: f()
        self.rt_tables(L_RT)
        lsu = self.o("lsu", 4)
        if not lsu: self.late_lane_tables()
        for f in d1[4:]: f()
        touch_at(1)
        if z5: self.stamp(3, True)
        e.wait(lg="all")
        if z5:
            e.op(f"v_writelane_b32 {v(V_STAMP)}, s98, 1")
            e.op(f"v_writelane_b32 {v(V_STAMP)}, s100, 2")
            self.stamp(4, True)
        self.flush_stamp()
        rtp = self.o("rtpos", 1)
        def rt_go():
            e.op(f"s_mul_i32 {s(S_T5)}, {s(S_WAVE)}, 2560")
            self.rt_loads(L_RT, S_RTSRC, S_T5)
        def gw_go():
            e.op(f"s_mov_b64 {s(S_MISC,2)}, {s(S_PG,2)}")
            e.op(f"s_cmp_eq_u32 {s(S_CG)}, 14")
            e.op(f"s_cselect_b32 {s(S_MISC+2)}, 1280, 0")
            e.op(f"s_lshr_b32 {s(S_T5)}, {s(S_WM0)}, 1")
            e.op(f"s_add_u32 m0, {s(S_T5)}, {L_GW}")
            for n in range(2):
                e.op(f"buffer_load_dwordx4 {v(V_L16)}, {s(S_MISC,4)}, 0 offen offset:{n * 1024} lds", tag="gw")
        self.rt_srd()
        if rtp == 1: rt_go()
        self.flag_init()
        if not lsu: self.late_table_use()
        fill, used = self.stage1_fill()
        vfill = {m: [] for m in range(-1, 640)}
        G2 = lambda k, d: 2 * self.o(k, d)
        dq = []
        for st in range(2, 20):
            d = self.dmas(st)
            rel = 32 * (st - (2 if st < 10 else 4)) - lead + 1
            g0 = max(32 * (st - 2) - lead + 1, 0); g1 = 32 * (st - 1) - lead - 2
            dq += [(rel, g0 + i * (g1 - g0) // len(d), 72, f) for i, f in enumerate(d)]
            if st == rtp: dq.append((rel, g1 - 1, 180, rt_go))
            if st == 9: dq.append((rel, g1 - 1, 40, gw_go))
            if st in tpos: dq.append((rel, g1 - 1, 40, lambda st=st: touch_at(st)))
        pA, cA = G2("pollA", 263), G2("chkA", 280)
        assert cA > 32 * 16 - lead
        kv = self.kvq_loads()
        dq += [(cA + 1, cA + 1 + i * (634 - cA) // len(kv), 72, f) for i, f in enumerate(kv)]
        rs0 = G2("rs0", 16 * rtp + 30)
        rr0 = 32 * (rtp + 2) - lead - 6 if rs0 >= 32 * (rtp + 2) - lead else 32 * (rtp + 1) - lead + 4
        assert rs0 > rr0 + 4
        for i, f in enumerate(self.rt_reads()):
            fill[rr0 + i // 2].append(f); used[rr0 + i // 2] += 1
        sq = [(rs0 + 12 * i, rs0 + 12 * i, 128, f) for i, f in enumerate(self.rt_stores())]
        sq.append((rs0 + 28, rs0 + 28, 20, self.nonce_issue))
        pd = (rs0 + 28 + 48 + lead + 31) // 32 * 32 - lead
        pd = max(pd, 32 * self.o("pdst", 0) - lead)
        fill[pd].insert(0, self.nonce_check)
        sq.append((pd + 1, pd + 1, 20, lambda: self.publish(S_RTF)))
        sp, e0 = G2("epi", 4), self.o("e0", 321)
        assert e0 >= 306 and e0 + 4 * sp > 321
        epi1 = self.p1_epilogue_ops()
        self.epi1_flat = sum(epi1, [])
        for g, ops in enumerate(epi1): sq.append((e0 + sp * (g + 1), e0 + sp * (g + 1), self.o("stc", 160), ops[-1]))
        def pub_a():
            e.wait(vm="st1")
            self.publish(S_FLA)
            if self.o("stpub", 0): self.stamp(1)
        pD, cD = G2("pollD", 222), G2("chkD", 240)
        assert cD >= 32 * 15
        sq += sorted([(pD, pD, 20, lambda: self.poll_issue(V_FD)), (G2("pubA", 216), G2("pubA", 216), 20, pub_a)], key=lambda x: x[0])
        vfill[cD].append(lambda: self.poll_check(V_FD, 1)); used[cD] += 3
        sq.append((pA, pA, 30, lambda: self.poll_issue(V_FA)))
        if self.o("pollA2", 0): sq.append((G2("pollA2", 0), G2("pollA2", 0), 30, lambda: self.poll_again(V_FA)))
        vfill[cA].append(lambda: self.poll_check(V_FA, 0)); used[cA] += 3
        vfill[cA].append(lambda: self.stamp(3))
        ew = sum([self.w_loads(n) for n in self.EARLY_W], [])
        wq = [(cD + 1, cA - 4 * (len(ew) - i), 72, f) for i, f in enumerate(ew)]
        self.vm_schedule(fill, used, [dq, sq, wq], 0, 640, self.o("thr", 80))
        if lsu: self.va_place(vfill, used, self.capture(self.late_lane_tables, self.late_table_use), self.o("lsu0", 0) * 32, 32 * lsu)
        for g, ops in enumerate(epi1): self.va_place(vfill, used, ops[:-1], e0 + sp * g, e0 + sp * (g + 1))
        self.va_place(vfill, used, self.ones_init(), e0 + sp * 8 + 8, e0 + sp * 8 + 40)
        epi2 = self.p2_epilogue_ops()
        self.p2_stores_left = [g[-1] for g in epi2]
        va = sum([g[:-1] for g in epi2], [])
        if self.o("qh", 1): self.va_place(vfill, used, self.q_mask_ops(), 604, 626)
        nh = self.o("p2h", 24)
        self.va_place(vfill, used, va[:nh], 626, 640)
        self.p2_valu_left = va[nh:]
        z = self.o("zoom", 0)
        if z in (1, 2):
            for k in range(11):
                m = min(320 * (z - 1) + 32 * k - 1, 639 if z == 2 else 318)
                if z == 2 and k == 0: m = 320
                vfill[m].append(lambda k=k: self.stamp(1 + k, True))
            vfill[319].append(self.flush_stamp)
        for m in fill: fill[m] += vfill[m]
        done = [f for m in range(320) for f in fill[m]]
        self.epi1_left = [f for f in self.epi1_flat if f not in done]
        if z5: self.stamp(5, True)
        for fn in fill[-1]: fn()
        if z5:
            self.stamp(6, True); self.flush_stamp()
        if z == 1: self.flush_stamp()
        self.stamp(1)
        e.op(f"s_cmp_ge_u32 {s(S_CG)}, 10")
        e.op("s_cbranch_scc1 L_p1v")
        snap = e.snapshot()
        self.stage1_stream(fill, 0, 320, False)
        e.op("s_branch L_p2")
        after = e.snapshot()
        e.restore(snap)
        e.label("L_p1v")
        self.stage1_stream(fill, 0, 320, True)
        e.op(f"s_cmp_eq_u32 {s(S_CG)}, 14")
        e.op("s_cbranch_scc1 L_gate")
        self.gate_snap = e.snapshot()
        assert after[0] == e.vm and after[1] == e.lg
        e.label("L_p2")
        self.phase = 1
        self.stamp(2)
        self.wv = None
        self.stage1_stream(fill, 320, 640, False)
        self.flush_stamp()

    def side_tail(self, early=True):
        e = self.e
        if early:
            if self.o("go", 1) & 1:
                e.op(f"s_sub_u32 {s(S_T1)}, s2, 240")
                e.op(f"s_lshl4_add_u32 {s(S_T1)}, {s(S_T1)}, {s(S_WAVE)}")
                e.op(f"s_lshl3_add_u32 {s(S_T1)}, {s(S_T1)}, {FL_GO}")
                e.op(f"v_mov_b32 {v(28)}, {s(S_T1)}")
                self.poll_issue(28); self.poll_check(28, 5)
            self.poll_issue(V_FD)
            for f in self.ones_init(): f()
            self.poll_check(V_FD, 1)
            self.wv = None
            ew = sum([self.w_loads(n) for n in self.EARLY_W], [])
            if self.o("go", 1) & 2:
                for f in ew: f()
                e.op(f"v_mov_b32 {v(28)}, {s(S_PFG)}")
                self.poll_issue(28); self.poll_check(28, 5)
                self.poll_issue(V_FA)
            else:
                for f in ew[:12]: f()
                self.poll_issue(V_FA)
                for f in ew[12:]: f()
        self.poll_check(V_FA, 0)
        for f in self.kvq_loads(): f()
        if self.o("qh", 1):
            for f in self.q_mask_ops(): f()
        e.wait(lg="all")
        n = min(len(self.att_vm), 21)
        assert self.o('abl', 0) or n >= 10 and e.vm[-n:] == self.att_vm[-n:] and all(t[0] == "w" or t == "poll2" for t in self.att_vm[:-n])
        e.op("s_branch L_att")

    def gate(self):
        e = self.e
        T1, T2, T3 = v(V_T1), v(V_T2), v(V_T3)
        e.restore(self.gate_snap)
        e.label("L_gate")
        self.phase = 1
        self.stamp(1)
        self.poll_issue(V_FD)
        if self.o("go", 1) & 1:
            e.op(f"s_lshr_b32 {s(S_T1)}, {s(S_TB1)}, 2")
            e.op(f"s_lshl4_add_u32 {s(S_T1)}, {s(S_T1)}, {s(S_WAVE)}")
            e.op(f"s_lshl3_add_u32 {s(S_T1)}, {s(S_T1)}, {FL_GO}")
            self.publish(S_T1)
        e.op(f"s_lshr_b32 {s(S_T3)}, {s(S_WM0)}, 1")
        e.op(f"s_add_u32 {s(S_T3)}, {s(S_T3)}, {L_GW}")
        e.op(f"v_lshrrev_b32 {T1}, 4, {v(V_LANE)}")
        e.op(f"v_lshl_add_u32 {T1}, {T1}, 4, {s(S_T3)}")
        assert "gw" in e.all_tags
        e.wait(vm="gw", lg="all")
        epi = list(self.epi1_left)
        self.wv = None
        ew = sum([self.w_loads(n) for n in self.EARLY_W], [])
        G = 32
        order = [9, 0, 1, 2, 7, 3, 4, 5, 6, 8]
        def gread(k):
            if k % 2 == 0:
                self.pi_off(S_T4, order[k // 2], 0)
                e.op(f"v_add_u32 {T2}, {s(S_T4)}, {T1}")
            e.op(f"ds_read_b128 {v(G + 4 * (k % 4), 4)}, {T2} offset:{64 * (k % 2)}", tag=("g", k))
        for k in range(4): gread(k)
        while len(epi) > 13 * (8 - self.o("gpre", 4)): epi.pop(0)()
        for k in range(20):
            if k == self.o("gpub", 14):
                assert not epi
                e.wait(vm="st1")
                self.publish(S_FLA)
                self.stamp(2)
                self.poll_check(V_FD, 1)
            if k > max(self.o("gpub", 14), 7): ew.pop(0)()
            xs, ks = order[k // 2], k % 2
            e.wait(lg=[("g", k), ("x", xs, ks, 3)])
            for tt in range(4):
                e.op(f"v_mfma_f32_16x16x32_bf16 {v(48 + 4 * tt, 4)}, {v(G + 4 * (k % 4), 4)}, {r(self.xreg(xs, ks, tt), 4)}, {'0' if k == 0 else v(48 + 4 * tt, 4)}")
                if k in (2, 3, 10, 11): self.x_read(7 if k < 8 else 5, ks, tt)
                if tt == 3 and k + 4 < 20: gread(k + 4)
                for _ in range(2 if tt < 3 else 0):
                    if epi: epi.pop(0)()
        assert not epi
        e.op("s_barrier")
        for f in self.ones_init(): f()
        e.op(f"s_bitcmp1_b32 {s(S_WAVE)}, 0")
        e.op(f"s_cselect_b64 {s(S_MASK,2)}, -1, 0")
        e.op("s_mov_b32 vcc_lo, 0xffff0000")
        e.op("s_mov_b32 vcc_hi, 0xffff0000")
        e.op(f"v_cndmask_b32 v0, v48, v56, {s(S_MASK,2)}")
        e.op(f"v_cndmask_b32 v4, v52, v60, {s(S_MASK,2)}")
        e.op("v_cndmask_b32 v0, v0, v4, vcc")
        e.op(f"v_min_f32 {T1}, {f32(30.0)}, v0")
        e.op(f"v_mul_f32 {T1}, {f32(LOG2E)}, {T1}")
        e.op(f"v_exp_f32 {T1}, {T1}")
        e.op(f"v_add_f32 {T2}, 1.0, {T1}")
        e.op(f"v_rcp_f32 {T2}, {T2}")
        e.op(f"v_cmp_gt_u32 vcc, 32, {v(V_LANE)}")
        e.op(f"v_and_b32 {T3}, 39, {v(V_LANE)}")
        e.op(f"v_bfe_u32 v1, {v(V_LANE)}, 3, 1")
        e.op(f"v_lshl_add_u32 {T3}, v1, 4, {T3}")
        e.op(f"v_bfe_u32 v1, {v(V_LANE)}, 4, 1")
        e.op(f"v_lshl_add_u32 {T3}, v1, 3, {T3}")
        e.op(f"v_lshlrev_b32 {T3}, 2, {T3}")
        e.op(f"s_lshl_b32 {s(S_T1)}, {s(S_TB1)}, 8")
        e.op(f"s_add_u32 {s(S_T1)}, {s(S_T1)}, {WS_G}")
        e.op(f"v_cndmask_b32 {T1}, {T2}, {T1}, vcc")
        e.op(f"buffer_store_dword {T1}, {T3}, {s(S_WS,4)}, {s(S_T1)} offen sc1", tag="gs")
        e.op(f"v_bfe_u32 {T2}, {v(V_LANE)}, 2, 2")
        e.op(f"v_and_b32 {T3}, 3, {v(V_LANE)}")
        e.op(f"v_lshlrev_b32 {T3}, 3, {T3}")
        e.op(f"v_lshl_add_u32 {T2}, {T2}, 7, {T3}")
        e.op(f"v_add_u32 {v(225)}, {FL_D + 60 * 128}, {T2}")
        self.poll_issue(225)
        for f in ew: f()
        self.poll_check(225, 4)
        self.poll_issue(V_FA)
        self.publish(S_FLA, 128)
        self.stamp(3)
        self.flush_stamp()
        self.side_tail(False)

    def spare(self):
        e = self.e
        e.restore(self.spare_snap)
        e.label("L_spare")
        L = v(V_LANE); T0, T1, T2, T3 = v(V_T0), v(V_T1), v(V_T2), v(V_T3)
        e.op(f"s_memrealtime {s(S_NONCE,2)}")
        e.op(f"s_lshl_b32 {s(S_T0)}, {s(S_WAVE)}, 3")
        e.op(f"s_lshr_b32 {s(S_T0)}, {hex(32 | (40 << 8) | (16 << 16) | (48 << 24))}, {s(S_T0)}")
        e.op(f"s_and_b32 {s(S_T0)}, {s(S_T0)}, 0xff")
        e.op(f"s_load_dwordx2 {s(S_MISC,2)}, s[0:1], {s(S_T0)}")
        self.common_setup()
        e.op(f"s_mov_b32 {s(S_MISC+2)}, {640 * 3456}")
        e.op(f"s_cmp_eq_u32 {s(S_WAVE)}, 2")
        e.op(f"s_cselect_b32 {s(S_MISC+2)}, {640 * 1280}, {s(S_MISC+2)}")
        e.op(f"s_cmp_eq_u32 {s(S_WAVE)}, 3")
        e.op(f"s_cselect_b32 {s(S_MISC+2)}, 1280, {s(S_MISC+2)}")
        e.op(f"s_cselect_b32 {s(S_T2)}, 7, 16")
        e.op(f"v_lshlrev_b32 {T0}, {s(S_T2)}, {L}")
        e.op(f"s_sub_u32 {s(S_T1)}, s2, 240")
        e.op(f"s_lshl2_add_u32 {s(S_T1)}, {s(S_T1)}, {s(S_WAVE)}")
        e.op(f"s_lshl_b32 {s(S_T2)}, {s(S_T1)}, 13")
        e.op(f"v_lshl_add_u32 {v(225)}, {L}, 7, {s(S_T2)}")
        e.wait(lg="all")
        self.table_loads()
        e.op(f"s_or_b32 {s(S_T2)}, {s(S_NONCE)}, 1")
        e.op(f"v_mov_b32 {v(V_NONCE)}, {s(S_T2)}")
        e.op(f"v_mov_b32 {v(V_NONCE+1)}, {s(S_NONCE+1)}")
        e.op(f"s_cmp_lg_u32 {s(S_T1)}, 0")
        e.op("s_cbranch_scc1 L_nononce")
        e.op("s_mov_b64 exec, 1")
        e.op(f"buffer_store_dwordx2 {v(V_NONCE,2)}, {v(V_ZERO)}, {s(S_DBG,4)}, 0 offen sc1")
        e.op("s_mov_b64 exec, -1")
        e.label("L_nononce")
        e.op(f"buffer_load_dword {v(224)}, {T0}, {s(S_MISC,4)}, 0 offen")
        def touch(m):
            m = m + self.o("tb4", 3) if m >= 0 else -1 - m
            if self.o("pf2", 1) and m < 5:
                e.op(f"s_mov_b32 {s(S_T2)}, {m * 4096 * 128}")
                e.op(f"buffer_load_dword {v(224)}, {v(225)}, {s(S_WB,4)}, {s(S_T2)} offen")
        if self.o("pf49", 0):
            c = self.o("pf49", 0)
            e.op(f"v_lshrrev_b32 {T2}, 8, {v(225)}")
            e.op(f"v_mul_u32_u24 {T2}, 1280, {T2}")
            e.op(f"v_bfe_u32 {T3}, {v(225)}, 7, 1")
            e.op(f"v_mul_u32_u24 {T3}, 640, {T3}")
            e.op(f"v_add_u32 {T2}, {T2}, {T3}")
            e.op(f"buffer_load_dword {v(224)}, {T2}, {s(S_X,4)}, 0 offen offset:{c * 128}")
            e.op(f"v_lshrrev_b32 {T2}, 8, {v(225)}")
            e.op(f"v_min_u32 {T2}, 1919, {T2}")
            e.op(f"v_lshlrev_b32 {T2}, 7, {T2}")
            e.op(f"v_mul_u32_u24 {T3}, {5 * 64 * 3840 // 640}, {T3}")
            e.op(f"v_add_u32 {T2}, {T2}, {T3}")
            e.op(f"s_mov_b32 {s(S_T2)}, {c * 64 * 3840}")
            e.op(f"buffer_load_dword {v(224)}, {T2}, {s(S_WA,4)}, {s(S_T2)} offen")
        for m in range(self.o("tb4", 3)): touch(-1 - m)
        e.op(f"v_mov_b32 {v(V_LH)}, 0")
        self.rt_tables(0)
        e.wait(lg="all")
        e.op(f"s_mul_i32 {s(S_T0)}, {s(S_WAVE)}, 2560")
        for m, src in enumerate((S_RTSRC, S_ST1, S_ST1B, S_SCALE)):
            self.rt_srd(S_TB1, m)
            self.rt_loads(m * 10240, src, S_T0)
        self.flag_init(True)
        touch(0)
        self.late_lane_tables()
        self.late_table_use()
        e.wait(vm="rl")
        e.op("s_barrier")
        self.stamp(1)
        touch(1)
        for m, so in enumerate((S_RTS, S_ST2, S_ST2B, S_FLA)):
            for f in self.rt_reads(m * 10240, 96 + 12 * m) + self.rt_stores(96 + 12 * m, so): f()
        for so in (S_ST2, S_ST2B, S_FLA): e.op(f"s_mov_b32 {s(so)}, {OOB}")
        self.nonce_issue()
        touch(2)
        self.nonce_check()
        e.op("s_barrier")
        self.publish(S_RTF)
        self.stamp(3)
        touch(3)
        touch(4)
        self.stamp(2)
        self.flush_stamp()
        self.side_tail()

    def k_reads(self, u):
        h, j = divmod(u, 9)
        for ff in range(2):
            self.e.op(f"ds_read_b128 {v(KF + 4 * ff, 4)}, {v(V_KA)} offset:{(h + ff) * 12288 + j * 1024}", tag="k")
    def v_reads(self, u):
        h, j = divmod(u, 9)
        e = self.e
        e.op(f"s_mov_b64 exec, {s(S_VM,2)}")
        for ss in range(2):
            e.op(f"ds_read_b128 {v(VF + 4 * ss, 4)}, {v(V_VA)} offset:{j * 3072 + ss * 1280 + h * 320}", tag="v")
        e.op("s_mov_b64 exec, -1")
    def qk(self, u, part, S, lo=False):
        h, j = divmod(u, 9)
        c = v(S, 16) if part else v(CD, 16) if j == 8 else v(CE, 16) if (j == 0 or lo) else "0"
        self.e.op(f"v_mfma_f32_32x32x16_bf16 {v(S,16)}, {v(KF + 4 * part, 4)}, {v(QM + 8 * h + 4 * part, 4)}, {c}")
    def pv(self, u, part, S, first):
        O = v(OO[u // 9], 16)
        self.e.op(f"v_mfma_f32_32x32x16_bf16 {O}, {v(VF + 4 * part, 4)}, {v(S + 4 * part, 4)}, {'0' if first else O}")

    def q_mask_ops(self):
        e = self.e
        M1, M3, M4 = S_MASK, S_PHI + 2, S_PHI + 4
        def masks():
            e.op(f"s_bitcmp1_b32 {s(S_BITS)}, 0")
            e.op(f"s_cselect_b64 {s(M1,2)}, 0, -1")
            e.op(f"s_cselect_b32 {s(M3+1)}, -1, 0")
            e.op(f"s_cselect_b32 {s(M4)}, -1, 0")
        ops = [masks, lambda: e.op(f"s_mov_b32 {s(M3)}, -1"), lambda: e.op(f"s_mov_b32 {s(M4+1)}, 0"), lambda: e.wait(vm="q")]
        how = {(0, 0, 0): (M1, 1), (0, 0, 1): None, (0, 1, 0): (M3, 1), (0, 1, 1): (M4, 1),
               (1, 0, 0): (M3, 0), (1, 0, 1): (M4, 0), (1, 1, 0): None, (1, 1, 1): (M1, 0)}
        val = {M1: lambda par, hf: par == 0, M3: lambda par, hf: hf == 0 or par == 1, M4: lambda par, hf: par == 1 and hf == 0}
        for (h, ff, slot), hw in how.items():
            for par in range(2):
                for hf in range(2):
                    keep = 0 <= 4 * (h + ff) + 2 * slot + hf - 2 * par - 5 * h < 5
                    assert keep == (True if hw is None else val[hw[0]](par, hf) == bool(hw[1]))
            for d in range(2):
                dst, src = v(QM + 8 * h + 4 * ff + 2 * slot + d), v(VQ + 4 * (h + ff) + 2 * slot + d)
                if hw is None: t = f"v_mov_b32 {dst}, {src}"
                elif hw[1]: t = f"v_cndmask_b32 {dst}, 0, {src}, {s(hw[0],2)}"
                else: t = f"v_cndmask_b32 {dst}, {src}, 0, {s(hw[0],2)}"
                ops.append(lambda t=t: e.op(t))
        return ops

    def attention(self):
        e = self.e
        e.label("L_att")
        self.phase = 2
        self.att_vm = list(e.vm)
        self.stamp(4)
        T0 = v(V_T0)
        stores = list(self.p2_stores_left)
        if not self.o("qh", 1):
            for f in self.q_mask_ops(): f()
        e.wait(vm="kd")
        e.op("s_barrier")
        self.k_reads(0)
        for f in self.p2_valu_left: f()
        for _ in range(self.o("ns1", 1)): stores.pop(0)()
        self.stamp(5)
        side = {(u, k): [] for u in range(18) for k in range(4)}
        wl = sum([self.w_loads(n) for n in range(NWR) if n not in self.EARLY_W], []) + self.wl_dmas()
        slots = [(u, k) for u in range(18) for k in range(4)]
        sst = self.o("sst", 1)
        for i, f in enumerate(stores): side[slots[sst * i]].append(f)
        def pub_c():
            e.wait(vm="st2")
            self.publish(S_FLA, 32)
        pubC, pC, cC = self.o("pubC", 24), self.o("pollC", 50), self.o("chkC", 61)
        side[slots[pubC]].append(pub_c)
        side[slots[pC]].append(lambda: self.poll_issue(V_FC))
        if self.o("pollC2", 0): side[slots[self.o("pollC2", 0)]].append(lambda: self.poll_again(V_FC))
        def chk_c():
            self.poll_check(V_FC, 2); self.stamp(6)
            e.op(f"buffer_load_dword {v(V_R)}, {v(V_R)}, {s(S_WS,4)}, 0 offen sc1", tag="r")
        hl = [(n + k, t) for n in (0, 2) for t in range(4) for k in range(2)]
        taken = {pubC, pC, cC} | {sst * i for i in range(len(stores))}
        skip = self.o("wskip", 0)
        acc, rate = 0, self.o("wrate", 16)
        for i, x in enumerate(slots):
            if i == cC: side[x].append(chk_c)
            if i in taken: continue
            skip -= 1
            if skip >= 0: continue
            acc += rate
            if acc < 16: continue
            acc -= 16
            if wl: side[x].append(wl.pop(0))
            elif i > cC and hl:
                n, t = hl.pop(0)
                side[x].append(lambda n=n, t=t: self.h_load(n, t))
        assert not wl
        self.h_left = hl
        def fill_ce(val):
            for i in range(16): e.op(f"v_mov_b32 {v(CE + i)}, {val}")
        def steps(lo):
            def open_at(jn):
                st, bk = self.L("open"), self.L("open_ok")
                e.op(f"s_cmp_eq_u32 {s(S_TQ)}, {8 - jn}")
                e.op(f"s_cbranch_scc1 {st}")
                e.label(bk)
                def stub():
                    e.label(st, reset=True)
                    e.op("s_nop 7")
                    fill_ce(0)
                    e.op("s_nop 0")
                    e.op(f"s_branch {bk}")
                self.stubs.append(stub)
            live = lambda u: 0 <= u < 18 and not (lo and u % 9 == 0 and self.o("losk", 1))
            if lo: fill_ce(hex(NEGBIG))
            e.wait(lg="k")
            if live(0):
                self.qk(0, 0, SB[0], lo); self.qk(0, 1, SB[0], lo)
            self.k_reads(1)
            if lo: open_at(1)
            for u in range(18):
                if self.o("zoom", 0) == 3 and u % 2 == 0: self.stamp(1 + u // 2, True)
                S, Sn, Sp = SB[u % 3], SB[(u + 1) % 3], SB[(u - 1) % 3]
                ex = lambda i: live(u) and e.op(f"v_exp_f32 {v(S + i)}, {v(S + i)}")
                cv = lambda i: live(u) and e.op(f"v_cvt_pk_bf16_f32 {v(S + i)}, {v(S + 2 * i)}, {v(S + 2 * i + 1)}")
                if live(u + 1):
                    e.wait(lg="k")
                    self.qk(u + 1, 0, Sn, lo)
                for f in side[(u, 0)]: f()
                for i in range(0, 4): ex(i)
                if live(u + 1): self.qk(u + 1, 1, Sn, lo)
                e.wait(lg="v")
                if live(u + 2): self.k_reads(u + 2)
                for f in side[(u, 1)]: f()
                for i in range(4, 8): ex(i)
                cv(0); cv(1)
                if live(u - 1): self.pv(u - 1, 0, Sp, (u - 1) % 9 == 0 or not live(u - 2))
                if lo and u + 2 == 9: fill_ce(hex(NEGBIG))
                if lo and u + 2 < 18 and 1 <= (u + 2) % 9 <= 7: open_at((u + 2) % 9)
                for f in side[(u, 2)]: f()
                for i in range(8, 12): ex(i)
                cv(2); cv(3)
                if live(u - 1): self.pv(u - 1, 1, Sp, False)
                if u > 0 and live(u): self.v_reads(u)
                for f in side[(u, 3)]: f()
                for i in range(12, 16): ex(i)
                for i in range(4, 8): cv(i)
                if u == 0:
                    e.wait(vm="vd")
                    e.op("s_barrier")
                    if live(0): self.v_reads(0)
            e.wait(lg="v")
            self.pv(17, 0, SB[17 % 3], False); self.pv(17, 1, SB[17 % 3], False)
            self.flush_stamp()
        self.flush_stamp()
        e.op(f"s_cmp_lt_u32 {s(S_TQ)}, 8")
        e.op("s_cbranch_scc1 L_att_lo")
        snap0, wv0 = e.snapshot(), self.wv
        steps(False)
        snap1 = e.snapshot()
        def att_lo():
            e.restore(snap0); self.wv = wv0
            e.label("L_att_lo")
            self.phase = 2
            steps(True)
            assert e.vm == snap1[0] and e.lg == snap1[1]
            e.op("s_branch L_att_join")
        self.att_lo = att_lo
        e.label("L_att_join")
        self.stamp(7)
        for h in range(2):
            O = OO[h]
            st, bk = self.L("slow"), self.L("slow_ok")
            e.op(f"v_subrev_u32 {T0}, 0x2f800000, {v(O + 12)}")
            e.op(f"v_cmp_le_u32 vcc, 0x20000000, {T0}")
            if self.o("forceslow", 0): e.op("s_mov_b64 vcc, -1")
            if self.o("abl", 0): e.op("s_mov_b64 vcc, 0")
            for _ in range(2 - h):
                if self.h_left:
                    n, t = self.h_left.pop(0); self.h_load(n, t)
            e.op(f"s_cbranch_vccnz {st}")
            e.label(bk)
            self.cold.append(lambda st=st, bk=bk, h=h: self.slow_head(h, st, bk))
        OP = 0
        ep = []
        A = lambda t, tag=None: ep.append(lambda: e.op(t, tag=tag))
        for h in range(2): A(f"v_rcp_f32 {v(V_T2 + h)}, {v(OO[h] + 12)}")
        ep.append(lambda: e.wait(vm="r"))
        for h in range(2): A(f"v_mul_f32 {v(V_T2 + h)}, {v(V_T2 + h)}, {v(V_R)}")
        for h in range(2):
            O = OO[h]
            for i in range(8): A(f"v_mul_f32 {v(O + i)}, {v(O + i)}, {v(V_T2 + h)}")
            for i in range(4): A(f"v_cvt_pk_bf16_f32 {v(OP + 4 * h + i)}, {v(O + 2 * i)}, {v(O + 2 * i + 1)}")
            A(f"buffer_store_dwordx4 {v(OP + 4 * h, 4)}, {v(V_L16)}, {s(S_WS,4)}, {s(S_OST)} offen offset:{h * 1024} sc1", "sto")
        for h in range(2):
            O = OO[h]
            for i in range(8, 12): A(f"v_mul_f32 {v(O + i)}, {v(O + i)}, {v(V_T2 + h)}")
            for i in range(2): A(f"v_cvt_pk_bf16_f32 {v(OP + 8 + 2 * h + i)}, {v(O + 8 + 2 * i)}, {v(O + 9 + 2 * i)}")
        A(f"buffer_store_dwordx4 {v(OP + 8, 4)}, {v(V_L16H)}, {s(S_WS,4)}, {s(S_OST2)} offen sc1", "sto")
        self.o_epilogue = ep

    def slow_head(self, h, st, bk):
        e = self.e
        e.label(st, reset=True)
        e.vm, e.lg = [], []
        T0, MX = v(V_T0), v(V_T1)
        O, S = OO[h], SB[0]
        e.op("s_nop 15")
        e.op(f"v_mov_b32 {MX}, {hex(NEGBIG)}")
        for i in range(16): e.op(f"v_mov_b32 {v(O + i)}, 0")
        for ps in range(2):
            for j in range(9):
                u = 9 * h + j
                sk = self.L("sk")
                if j < 8:
                    e.op(f"s_cmp_lt_u32 {s(S_TQ)}, {8 - j}")
                    e.op(f"s_cbranch_scc1 {sk}")
                if ps: self.v_reads(u)
                self.k_reads(u)
                e.wait(lg="all")
                self.qk(u, 0, S); self.qk(u, 1, S)
                if ps == 0:
                    for i in range(8): e.op(f"v_max3_f32 {MX}, {MX}, {v(S + 2 * i)}, {v(S + 2 * i + 1)}")
                else:
                    for i in range(16): e.op(f"v_sub_f32 {v(S + i)}, {v(S + i)}, {MX}")
                    for i in range(16): e.op(f"v_exp_f32 {v(S + i)}, {v(S + i)}")
                    for i in range(8): e.op(f"v_cvt_pk_bf16_f32 {v(S + i)}, {v(S + 2 * i)}, {v(S + 2 * i + 1)}")
                    self.pv(u, 0, S, False); self.pv(u, 1, S, False)
                    e.op("s_nop 7")
                e.label(sk)
            if ps == 0:
                e.op(f"v_mov_b32 {T0}, {MX}")
                e.op(f"v_permlane32_swap_b32 {T0}, {MX}")
                e.op("s_nop 1")
                e.op(f"v_max_f32 {MX}, {T0}, {MX}")
        e.op("s_nop 15")
        e.op(f"s_branch {bk}")

    def stage3(self):
        e = self.e
        L = v(V_LANE); T0, T1, T2, T3 = v(V_T0), v(V_T1), v(V_T2), v(V_T3)
        self.phase = 3
        self.stamp(8)
        e.op(f"s_load_dwordx8 {s(TB,8)}, {s(S_TAB,2)}, 128")
        e.op(f"s_load_dwordx4 {s(TB+8,4)}, {s(S_TAB,2)}, 160")
        e.op(f"s_load_dword {s(S_XM0)}, {s(S_TAB,2)}, 176")
        TM = self.TM; n0 = 19 - TM
        setup = []
        A = lambda t, tag=None: setup.append(lambda: e.op(t, tag=tag))
        setup.append(lambda: e.wait(lg="all"))
        A(f"s_movk_i32 {s(S_C1)}, 4096")
        A(f"s_movk_i32 {s(S_C2)}, 8192")
        for t in range(4): A(f"v_add_u32 {v(V_O + t)}, {s(S_OT + t)}, {v(V_HL)}")
        A(f"v_and_b32 {T0}, 15, {L}")
        A(f"v_lshl_add_u32 {v(V_GW)}, {T0}, 2, {s(S_GW)}")
        A(f"buffer_load_dword {v(V_GW)}, {v(V_GW)}, {s(S_WS,4)}, 0 offen sc1", "g")
        for t in range(3): A(f"v_add_u32 {v(V_RR + t)}, {s(S_RED + t)}, {v(V_L16)}")
        A(f"v_add_u32 {v(V_RW)}, {s(S_RED + 3)}, {v(V_L16)}")
        A(f"v_lshrrev_b32 {T1}, 4, {L}")
        A(f"v_mul_u32_u24 {T0}, 1280, {T0}")
        A(f"v_add_u32 {T0}, {s(S_OUTO)}, {T0}")
        A(f"v_lshl_add_u32 {v(V_OUT)}, {T1}, 4, {T0}")
        A(f"v_lshl_add_u32 {v(V_OUT + 1)}, {T1}, 3, {T0}")
        A(f"v_lshrrev_b32 {T0}, 1, {L}")
        A(f"v_min_u32 {T0}, 3, {T0}")
        A(f"v_and_b32 {T1}, 1, {L}")
        A(f"v_lshl_add_u32 {T1}, {T1}, 3, {s(S_PFB)}")
        A(f"v_lshl_add_u32 {v(V_FB)}, {T0}, 7, {T1}")
        cB = self.o("chkB", 12)
        Q = [(0, lambda n=n, t=t: self.h_load(n, t)) for n, t in self.h_left]
        if self.o("skipw", 0):
            wl0 = self.w_loads
            def dst(i):
                if i == 0:
                    e.op(f"s_lshl2_add_u32 {s(S_T2)}, s2, {s(S_WAVE)}")
                    e.op(f"s_mul_i32 {s(S_T2)}, {s(S_T2)}, 5120")
                    e.op(f"s_add_u32 {s(S_T2)}, {s(S_T2)}, {WS_X}")
                if i == 4: e.op(f"s_add_u32 {s(S_T2)}, {s(S_T2)}, 4096")
                e.op(f"buffer_store_dwordx4 {v(16,4)}, {v(V_L16)}, {s(S_WS,4)}, {s(S_T2)} offen offset:{(i & 3) * 1024} sc1")
            def wl1(n):
                for j in range(5): e.all_tags.add(("w", n, j))
                if n == 18: return wl0(n)
                if n == 17 and self.o("skipw", 0) == 1: return [lambda i=i: dst(i) for i in range(5)]
                return []
            self.w_loads = wl1
        def wl_read(n, j):
            e.wait(vm="wl")
            e.op(f"ds_read_b128 {r(WR + 20 * (n % NWR) + 4 * j, 4)}, {v(V_RW)} offset:{(5 * self.LDS_W.index(n) + j) * 1024}", tag="wlr")
            e.all_tags.add(("w", n, j))
        assert n0 % 2 == 0
        after = lambda n: max((n | 1) + 1, 0)
        R = [(max(after(n - 12), 4), lambda n=n, j=j: wl_read(n, j)) for n in self.LDS_W for j in range(5)]
        for n2 in range(4, n0, 2):
            for n in (n2, n2 + 1):
                if n >= 12 and n not in self.LDS_W: Q += [(max(after(n - 12), 4 if n >= 14 else 0), f) for f in self.w_loads(n)]
            Q += [(max(after(n2 - NH), 2 if n2 >= 6 else 0, cB if n2 >= 14 else 0), lambda n=n2 + k, t=t: self.h_load(n, t)) for t in range(4) for k in range(2)]
        for n in range(n0, 19):
            if n not in self.LDS_W: Q += [(max(after(n - 12), 4), f) for f in self.w_loads(n)]
        for t in range(4):
            for n in range(n0, 19):
                i = TM * t + n - n0
                Q.append((max(after(n0 - NH + i // 4), cB), lambda n=n, t=t: self.h_load(n, t)))
        def issue(step):
            for i, (fr, f) in enumerate(Q):
                if fr <= step:
                    Q.pop(i); f(); return True
            return False
        def need(tags, step, also=()):
            while any(t not in e.all_tags for t in tags): assert issue(step)
            if any(t in e.vm for t in tags): e.wait(vm=list(tags) + [t for t in also if t in e.vm])
        def mfma(n, t, j, first=False):
            acc = v(BA + 20 * t + 4 * j, 4)
            e.op(f"v_mfma_f32_16x16x32_bf16 {acc}, {r(WR + 20 * (n % NWR) + 4 * j, 4)}, {v(self.hreg(n, t), 4)}, {'0' if first else acc}")
        lrate = self.o("lr2", 11)
        cnt = 0
        oep = list(self.o_epilogue)
        for step in range(n0):
            n2 = step & ~1
            if step == 2: assert not oep
            if step == 4: assert not setup
            if step == 12:
                assert not R
                e.wait(lg="wlr")
            if self.o("zoom", 0) == 4 and step < 12: self.stamp(1 + step, True)
            if step == self.o("pubB", 4):
                e.wait(vm="sto"); self.publish(S_FLB)
            if step == self.o("pollB", 10): self.poll_issue(V_FB)
            if step == cB:
                self.poll_check(V_FB, 3); self.stamp(9)
            for i in range(20):
                t, j0, k0 = 2 * (step & 1) + i // 10, (i % 10) >> 1, i & 1
                j, n = (4 - j0 if t & 1 else j0), n2 + (k0 ^ ((i >> 1) & 1))
                need([("w", n, j), ("h", n, t)], step, [("w", n2 + 1, 4), ("h", n2 + 1, t)])
                mfma(n, t, j, n2 == 0 and k0 == 0)
                cnt = min(cnt + lrate, 80)
                if cnt >= 40 and k0 and issue(step):
                    cnt -= 40
                elif oep:
                    oep.pop(0)()
                    if oep: oep.pop(0)()
                elif setup:
                    setup.pop(0)()
                elif R and R[0][0] <= step and not k0: R.pop(0)[1]()
        self.stamp(10)
        assert all(self.hreg(n, 3) >= 48 for n in range(n0, 19))
        RD = (0, 20, BA)
        def wr(t, j): e.op(f"ds_write_b128 {v(V_RW)}, {v(BA + 20 * t + 4 * j, 4)} offset:{t * 5120 + j * 1024}", tag=("red", t))
        def rd(sl, j): e.op(f"ds_read_b128 {v(RD[sl] + 4 * j, 4)}, {v(V_RR + sl)} offset:{j * 1024}", tag=("rd", sl, j))
        def add01(k):
            if k % 4 == 0: e.wait(lg=("rd", 1, k // 4))
            e.op(f"v_add_f32 {v(RD[0] + k)}, {v(RD[0] + k)}, {v(RD[1] + k)}")
        def bar01():
            e.wait(lg=("red", 1))
            e.op("s_barrier")
        F = BA + 60
        for t in range(4):
            q = [None] * 3 + [lambda j=j: wr(t - 1, j) for j in range(5)] if t else []
            if t == 3:
                q = [bar01] + [lambda j=j, sl=sl: rd(sl, j) for j in range(2) for sl in range(2)] + q[3:] + \
                    [lambda j=j, sl=sl: rd(sl, j) for j in range(2, 5) for sl in range(2)]
                adds = [lambda k=k: add01(k) for k in range(20)]
            i = 0
            for j in range(5):
                for n in (range(n0, 19) if j % 2 == 0 else range(18, n0 - 1, -1)):
                    need([("w", n, j), ("h", n, t)], 99)
                    mfma(n, t, j)
                    if Q and i % 4 == 0: issue(99)
                    elif q:
                        f = q.pop(0)
                        if f: f()
                    elif t == 3:
                        for _ in range(2):
                            if adds: adds.pop(0)()
                    i += 1
            for f in q:
                if f: f()
        assert not Q
        self.stamp(11)
        e.wait(lg=("red", 2))
        e.op("s_barrier")
        for j in range(5): rd(2, j)
        for f in adds: f()
        e.wait(vm="g")
        W2 = v(V_GW, 2)
        of = ("", "sc1", "nt", "sc1 nt")[self.o("outf", 1)]
        of2 = ("", "sc1", "nt", "sc1 nt")[self.o("outf2", 0)]
        for i in range(10): e.op(f"v_pk_add_f32 {v(F + 2 * i, 2)}, {v(F + 2 * i, 2)}, {v(RD[0] + 2 * i, 2)}")
        for i in range(10): e.op(f"v_pk_mul_f32 {v(F + 2 * i, 2)}, {v(F + 2 * i, 2)}, {W2} op_sel_hi:[1,0]")
        for grp in ((0, 4), (4, 8), (8, 10)):
            e.wait(lg=("rd", 2, (grp[1] - 1) // 2))
            for i in range(*grp): e.op(f"v_pk_fma_f32 {v(F + 2 * i, 2)}, {v(RD[2] + 2 * i, 2)}, {W2}, {v(F + 2 * i, 2)} op_sel_hi:[1,0,1]")
            for i in range(*grp): e.op(f"v_cvt_pk_bf16_f32 {v(i)}, {v(F + 2 * i)}, {v(F + 2 * i + 1)}")
            if grp[0] < 8: e.op(f"buffer_store_dwordx4 {v(grp[0],4)}, {v(V_OUT)}, {s(S_OUT,4)}, 0 offen offset:{grp[0] * 16} {of}")
            else: e.op(f"buffer_store_dwordx2 {v(8,2)}, {v(V_OUT+1)}, {s(S_OUT,4)}, {s(S_XM0)} offen {of2}")
        self.stamp(12)
        if self.o("skipw", 0): self.w_loads = wl0

    def finish(self):
        e = self.e
        if self.stamps:
            e.wait(vm="all")
            self.stamp(13)
            e.op(f"s_memtime {s(S_VM,2)}")
            self.flush_stamp()
            e.op(f"v_writelane_b32 {v(V_STAMP)}, {s(S_VM)}, {NSTAMP}")
            e.op(f"s_lshl2_add_u32 {s(S_T0)}, s2, {s(S_WAVE)}")
            e.op(f"s_lshl_b32 {s(S_T0)}, {s(S_T0)}, 7")
            e.op(f"s_add_u32 {s(S_T0)}, {s(S_T0)}, {WS_ST}")
            e.op(f"v_lshlrev_b32 {v(V_T0)}, 2, {v(V_LANE)}")
            e.op("s_mov_b32 exec_hi, 0")
            e.op(f"buffer_store_dword {v(V_STAMP)}, {v(V_T0)}, {s(S_WS,4)}, {s(S_T0)} offen")
        e.op("s_endpgm")

    def build(self):
        e = self.e
        ab = self.o("abl", 0)
        if ab:
            real = e.op
            def op(text, tag=None):
                ph = getattr(self, "phase", 0)
                isld = ("_load_dwordx4" in text) and isinstance(tag, (tuple, str)) and tag[0] in ("w", "h", "d", "k", "v", "q")
                if (ab >> (2 * ph)) & 1 and (text.startswith("v_mfma") or text.startswith("v_exp")): return real("s_nop 0")
                if (ab >> (2 * ph)) & 2 and isld:
                    e.all_tags.add(tag); return None
                return real(text, tag)
            e.op = op
        self.prologue()
        self.stage1()
        self.attention()
        self.stage3()
        self.finish()
        self.att_lo()
        self.gate()
        self.spare()
        for f in self.stubs:
            e.vm, e.lg = [], []
            f()
        e.label("L_cold")
        for f in self.cold: f()
        e.label("L_end")
        e.op("s_endpgm")
        head = open("head.txt").read().split("\n")
        head = [l for l in head if l.startswith(";") and "@launch" not in l]
        txt = "\n".join(head) + f"\n; @launch grid=(256,1,1) block=(256,1,1) lds={LDS_BYTES}\n" + DOC
        txt += f""".amdgcn_target "amdgcn-amd-amdhsa--gfx950"
.text
.globl {NAME}_kernel
.p2align 8
.type {NAME}_kernel,@function
{NAME}_kernel:
"""
        txt += e.text().replace("\n    ", "\n ")
        txt += f""".section .rodata,"a"
.p2align 6
.amdhsa_kernel {NAME}_kernel
  .amdhsa_next_free_vgpr 512
  .amdhsa_next_free_sgpr 102
  .amdhsa_accum_offset 256
  .amdhsa_group_segment_fixed_size 0
  .amdhsa_kernarg_size 80
  .amdhsa_user_sgpr_count 2
  .amdhsa_user_sgpr_kernarg_segment_ptr 1
  .amdhsa_system_sgpr_workgroup_id_x 1
.end_amdhsa_kernel
.p2align 8
.type wave_table,@object
wave_table:
"""
        for wg in range(256):
            for w in range(4):
                txt += ".long " + ",".join(str(x) for x in table_entry(wg, w, self.o("map3", 0), self.o("umap", 1))) + "\n"
        return txt

if __name__ == "__main__":
    out = sys.argv[1] if len(sys.argv) > 1 else "cdna_kernels/" + NAME + ".s"
    opt = {}
    for x in sys.argv[2:]:
        if "=" in x:
            k, val = x.split("="); opt[k] = int(val)
    g = Gen(stamps="--stamps" in sys.argv, opt=opt)
    txt = g.build()
    open(out, "w").write(txt)
    print("instructions", g.e.count, "pad states", g.e.nops, "autowaits", g.e.autowaits, "bytes", len(txt), file=sys.stderr)
    if "--nops" in sys.argv:
        for n, t in g.e.log_nops: print(n, t, file=sys.stderr)
```

```python
import sys, math, struct
from asmlib import *

NAME = "gated_mix__sliding_block__dense_activation_relu__prompt"

WS_QK = 0
WS_VT = WS_QK + 80 * 64 * 1024
WS_H  = WS_VT + 16 * 64 * 2560
WS_O  = WS_H + 64 * 110592
WS_WT = WS_O + 64 * 40960
WS_G  = WS_WT + 8 * 74 * 5120
WS_FL = WS_G + 16384
FL_A  = WS_FL
FL_B  = FL_A + 256 * 128
FL_D  = FL_B + 256 * 128
FL_GO = FL_D + 64 * 128
WS_ST = FL_GO + 16 * 128
WS_X = WS_ST + 1024 * 128
WS_SIZE = WS_X + 1024 * 5120
OOB = 0x4000000
assert WS_SIZE < OOB and FL_A % 2048 == 0

NW, NX = 5, 4
L_W = 0
L_X = NW * 16384
L_RT = L_X + 65536
L_K = L_X
L_V = L_K + 36 * 1024
L_GW = L_V + 12 * 3072
LDS_BYTES = 163840

S_DM, S_HK = 0, 1
S_WAVE = 3
S_X, S_WA, S_WB, S_WS, S_OUT, S_DBG, S_MISC = 4, 8, 12, 16, 20, 24, 28
S_PWO, S_CG, S_XM0, S_PW2, S_PG = 32, 34, 35, 36, 38
S_T0, S_T1, S_T2, S_T3, S_T4, S_T5 = 40, 41, 42, 43, 44, 45
S_TAB = 46
TA = 48
(S_ST1, S_ST1B, S_ST2, S_ST2B, S_SCALE, S_FLA, S_FLB, S_RTS, S_RTF, S_RTSRC, S_BITS, S_TQ, S_QOFF) = range(TA, TA + 13)
S_KADJ, S_VOFF = TA + 13, TA + 16
S_OST, S_OST2 = TA + 19, TA + 20
S_HT = TA + 21
S_WT0, S_PFC, S_PFG, S_PFD, S_PFA, S_ASTEP, S_TB1 = range(TA + 25, TA + 32)
TB = 4
S_OT = TB
S_WT1, S_PFB, S_GW, S_OUTO = TB + 4, TB + 5, TB + 6, TB + 7
S_RED = TB + 8
S_PHI = 80
S_WM0, S_SPIN = 86, 87
S_STMP, S_NONCE, S_MASK, S_VM = 88, 90, 92, 94
S_CG2 = 100
S_C1, S_C2 = 96, 97
S_PILO, S_PIHI = 80, 81

V_LANE = 255
V_L16 = 254
V_NONCE = 252
V_T0, V_T1, V_T2, V_T3 = 248, 249, 250, 251
V_POLL = 246
V_FA, V_FD, V_FC, V_WV = 245, 244, 243, 242
V_KA, V_VA, V_HL, V_STAMP, V_ZERO, V_L16H = 241, 240, 239, 238, 237, 236
V_H, V_KT, V_Q, V_R = 232, 228, 231, 227
V_XD = 0
V_WD = 4
V_WD2 = 8
V_XR = 12
V_WR = 16
V_ST1 = 24
V_FR = 32
ACC = (128, 64)
A_X = 256
NXR = 7
V_LH = 226
RT_D, RT_LD, RT_RD, RT_ST = 64, 76, 79, 82
SB = (0, 16, 176)
OO = (32, 48)
VQ, QM, VF, KF, CD, CE = 128, 144, 160, 168, 192, 208
BA = 144
HSLOT = (64, 80, 96, 112, 128, 16, 48, 32)
WR = 256
NH, NWR = 8, 12
V_O, V_FB, V_GW, V_RR, V_RW, V_OUT = 228, 245, 244, 224, 243, 240
NSTAMP = 14

def f32(x): return "0x%08x" % struct.unpack("<I", struct.pack("<f", x))[0]
LOG2E = math.log2(math.e)
QSCALE = LOG2E / math.sqrt(20.0)
NEGBIG = 0xff800000
SPIN_MAX = 0x40000

KS0 = (0, 14, 28, 41)

LATE_KS = sorted({KS0[w] + n for w in range(4) for n in (12, 13) if n < (14, 14, 13, 13)[w]} | {54 + 5 * w + q for w in range(4) for q in (3, 4)})
RT_KS = [k for k in range(74) if k not in LATE_KS] + LATE_KS
assert len(LATE_KS) == 14

def rt_unit(U, w):
    if U >= 296: return OOB, OOB, 0, 0
    ks, kg, u = RT_KS[U >> 2], U & 3, w >> 1
    if ks < 54: row, wo = 32 * ks + 16 * (kg >> 1) + 4 * (kg & 1) + 8 * u, 0
    else:
        a_, p = divmod(ks - 54, 5); wo = 1
        row = 40 * (4 * a_ + p) + 20 * (kg >> 1) + 4 * (kg & 1) + 8 * u if p < 4 else 40 * (4 * a_ + kg) + 16 + 20 * u
    return WS_WT + (148 * w + ks) * 5120 + kg * 256, (FL_D + (U >> 2) * 128 + (U & 3) * 8 if w == 0 else OOB), row * 1280, wo

def gate_col(rb, bal):
    return 4 * (rb & 3) + 1 if bal else 14

def table_entry(wg, w, map3, umap, bal):
    xcd, i = wg & 7, wg >> 3
    A = [0] * 32; B = [0] * 16
    def a(reg, val): A[reg - TA] = val & 0xffffffff
    def b(reg, val): B[reg - TB] = val & 0xffffffff
    U = wg if (i >= 30 or not umap) else ((i >> 2) * 8 + xcd) * 4 + (i & 3) if i < 28 else 224 + 2 * xcd + i - 28
    rts, rtf, rtsrc, wo = rt_unit(U, w)
    a(S_RTS, rts); a(S_RTF, rtf); a(S_RTSRC, rtsrc)
    if i < 30:
        u = 30 * (xcd >> 1) + i
        rb, cg = 8 * (xcd & 1) + (u & 7), u >> 3
        tb, tb0, wc = 4 * rb + w, 4 * rb + (w & 2), w & 1
        if cg < 10:
            q0 = WS_QK + ((8 * cg + 4 * wc) * 64 + tb0) * 1024
            a(S_ST1, q0); a(S_ST1B, q0 + 1024)
        else:
            a(S_ST1, WS_VT + tb0 * 2560); a(S_ST1B, WS_VT + (tb0 + 1) * 2560)
        cg2 = 14 if cg == gate_col(rb, bal) else cg - (cg > gate_col(rb, bal))
        h0 = WS_H + tb0 * 110592 + cg2 * 8192 + wc * 4096
        a(S_ST2, h0 if 2 * cg2 + wc < 27 else OOB); a(S_ST2B, h0 + 110592 if 2 * cg2 + wc < 27 else OOB)
        a(S_SCALE, int(f32(QSCALE if cg < 5 else 1.0), 16))
        a(S_FLA, FL_A + (rb * 16 + cg) * 128 + 8 * w)
        a(S_TB1, tb)
    else:
        cg2 = 15
        for m, reg in ((1, S_ST1), (2, S_ST1B), (3, S_SCALE)): a(reg, rt_unit(wg + 16 * m, w)[2])
        for m, reg in ((1, S_ST2), (2, S_ST2B), (3, S_FLA)): a(reg, rt_unit(wg + 16 * m, w)[0])
        a(S_TB1, sum(rt_unit(wg + 16 * m, w)[3] << m for m in range(4)))
    P, rba = 2 * xcd + (i >> 4), i & 15
    F0, tq = (10 * P) >> 2, 4 * rba + w
    a(S_BITS, (P & 1) | (wo << 1) | (cg2 << 28)); a(S_TQ, tq)
    a(S_QOFF, WS_QK + (F0 * 64 + tq) * 1024)
    for k in range(3):
        t = 4 * rba + 3 * w - 8 + k
        a(S_KADJ + k, WS_QK + ((40 + F0) * 64 + t - k) * 1024 if t >= 0 else OOB)
        a(S_VOFF + k, WS_VT + (P * 64 + t) * 2560 if t >= 0 else OOB)
    o0 = WS_O + tq * 40960 + (P >> 2) * 20 * 512
    a(S_OST, o0 + (P & 3) * 2048); a(S_OST2, o0 + (16 + (P & 3)) * 512)
    a(S_FLB, FL_B + (rba * 16 + P) * 128 + 8 * w)
    cq = F0 >> 3
    a(S_PFA, FL_A + cq * 128); a(S_ASTEP, 128 if ((F0 + 2) >> 3) > cq else 0)
    a(S_PFG, FL_A + (rba * 16 + 15) * 128 + 8 * w)
    assert [RT_KS.index(KS0[w] + n) for n in range(12)] == list(range(12 * w, 12 * w + 12))
    assert [RT_KS.index(54 + 5 * w + q) for q in range(3)] == list(range(48 + 3 * w, 51 + 3 * w))
    a(S_PFD, FL_D + 12 * w * 128)
    tb64, ng = (8 * (xcd >> 1) + (i & 7), 4 * (xcd & 1) + (i >> 3)) if not map3 else (4 * xcd + (i & 3), i >> 2)
    for t in range(4):
        T = (w + 1 + t) & 3
        tb = 2 * tb64 + (T >> 1)
        a(S_HT + t, WS_H + tb * 110592 + (T & 1) * 256 + KS0[w] * 2048)
        b(S_OT + t, WS_O + tb * 40960 + (T & 1) * 256 + w * 5 * 2048)
    a(S_WT0, WS_WT + (ng * 74 + KS0[w]) * 5120 + 2048)
    b(S_WT1, WS_WT + (ng * 74 + 54 + 5 * w) * 5120 + 2048)
    a(S_PFC, FL_A + (tb64 >> 1) * 2048 + 32 + 16 * (tb64 & 1) + min((KS0[w] >> 2) + ((KS0[w] >> 2) >= gate_col(tb64 >> 1, bal)), 10) * 128)
    b(S_PFB, FL_B + ((tb64 >> 1) * 16 + 4 * w) * 128 + 16 * (tb64 & 1))
    A[S_BITS - TA] |= (FL_A + ((tb64 >> 1) * 16 + 15) * 128 + 8 * (2 * (tb64 & 1) + (w >> 1))) << 2
    b(S_GW, WS_G + (2 * tb64 + (w >> 1)) * 256 + 128 + (w & 1) * 64)
    b(S_OUTO, (64 * tb64 + 16 * w) * 1280 + ng * 128)
    B[12] = 1024 - 96 * ng
    for t in range(3): b(S_RED + t, L_W + ((w - 1 - t) & 3) * 20480 + t * 5120)
    b(S_RED + 3, L_W + w * 20480)
    return A + B


DOC = """;
"""

class Gen:
    def __init__(self, stamps=False, opt=None):
        self.e = Emit()
        self.stamps = stamps
        self.uid = 0
        self.opt = opt or {}
        self.stubs = []
        self.cold = []
        self.pending_stamp = None
        self.open_poll = None; self.open_nonce = False
        self.nt = "nt " if self.o("nt", 1) else ""
        self.in_side = False
    def o(self, k, d): return self.opt.get(k, d)
    def L(self, p):
        self.uid += 1
        return f"L_{p}_{self.uid}"
    def stamp(self, idx, z=False):
        if not self.stamps: return
        if self.o("zoom", 0) and not z and 0 < idx < 13: return
        self.flush_stamp()
        self.e.op(f"{'s_memtime' if self.o('cyc', 0) else 's_memrealtime'} {s(S_STMP, 2)}")
        self.pending_stamp = idx
    def flush_stamp(self):
        if self.pending_stamp is None: return
        e = self.e
        if "SMEM" in e.lg: e.wait(lg="all")
        e.op(f"v_writelane_b32 {v(V_STAMP)}, {s(S_STMP)}, {self.pending_stamp}")
        self.pending_stamp = None

    def srd_tail(self, d, nbytes):
        self.e.op(f"s_mov_b32 {s(d+2)}, {nbytes}")
        self.e.op(f"s_mov_b32 {s(d+3)}, 0x20000")
    def nonce_issue(self):
        self.e.op(f"buffer_load_dwordx2 {v(V_NONCE,2)}, {v(V_ZERO)}, {s(S_DBG,4)}, 0 offen sc1", tag="nonce")
        self.open_nonce = True
    def nonce_check(self):
        e = self.e
        st, bk = self.L("nonce"), self.L("nonce_ok")
        assert self.open_nonce
        e.wait(vm="nonce")
        e.op(f"v_readfirstlane_b32 {s(S_NONCE)}, {v(V_NONCE)}")
        e.op(f"v_readfirstlane_b32 {s(S_NONCE+1)}, {v(V_NONCE+1)}")
        e.op(f"s_cmp_eq_u32 {s(S_NONCE)}, 0")
        e.op(f"s_cbranch_scc1 {st}")
        e.label(bk)
        def stub():
            e.label(st, reset=True)
            e.op(f"s_mov_b32 {s(S_SPIN)}, 0")
            e.label(st + "_l")
            e.op("s_sleep 4")
            e.op(f"buffer_load_dwordx2 {v(V_NONCE,2)}, {v(V_ZERO)}, {s(S_DBG,4)}, 0 offen sc1")
            e.op(f"s_add_u32 {s(S_SPIN)}, {s(S_SPIN)}, 1")
            e.wait(vm="all")
            e.op(f"v_readfirstlane_b32 {s(S_NONCE)}, {v(V_NONCE)}")
            e.op(f"v_readfirstlane_b32 {s(S_NONCE+1)}, {v(V_NONCE+1)}")
            e.op(f"s_cmp_gt_u32 {s(S_SPIN)}, {SPIN_MAX}")
            e.op(f"s_cbranch_scc1 {bk}")
            e.op(f"s_cmp_eq_u32 {s(S_NONCE)}, 0")
            e.op(f"s_cbranch_scc1 {st}_l")
            e.op(f"s_branch {bk}")
        self.stubs.append(stub)
    def publish(self, soff, imm=0):
        e = self.e
        e.op("s_mov_b64 exec, 1")
        e.op(f"buffer_store_dwordx2 {v(V_NONCE,2)}, {v(V_ZERO)}, {s(S_WS,4)}, {s(soff)} offen offset:{imm} sc1", tag="flag")
        e.op("s_mov_b64 exec, -1")
    def poll_issue(self, vaddr):
        self.e.op(f"buffer_load_dwordx2 {v(V_POLL,2)}, {v(vaddr)}, {s(S_WS,4)}, 0 offen sc1", tag="poll")
        self.open_poll = vaddr
    def poll_again(self, vaddr):
        self.e.op(f"buffer_load_dwordx2 {v(224,2)}, {v(vaddr)}, {s(S_WS,4)}, 0 offen sc1", tag="poll2")
    def poll_check(self, vaddr, sid=0):
        e = self.e
        n2 = e._left(e.vm, ["poll2"])
        st, bk = self.L("poll"), self.L("poll_ok")
        assert self.open_poll == vaddr; self.open_poll = None
        e.wait(vm="poll")
        e.op(f"v_cmp_ne_u64 vcc, {s(S_NONCE,2)}, {v(V_POLL,2)}")
        e.op(f"s_cbranch_vccnz {st}")
        e.label(bk)
        def stub():
            e.label(st, reset=True)
            if n2 is not None:
                e.op(f"s_waitcnt vmcnt({n2})")
                e.op(f"v_cmp_ne_u64 vcc, {s(S_NONCE,2)}, {v(224,2)}")
                e.op(f"s_cbranch_vccz {bk}")
            e.op(f"s_mov_b32 {s(S_SPIN)}, 0")
            if self.o("retry0", 1): e.op(f"s_branch {st}_f")
            e.label(st + "_l")
            e.op(f"s_sleep {self.o('sleep', 4)}")
            e.label(st + "_f")
            if self.o("miss", 0): e.op("s_mov_b64 exec, vcc")
            e.op(f"buffer_load_dwordx2 {v(V_POLL,2)}, {v(vaddr)}, {s(S_WS,4)}, 0 offen sc1")
            if self.o("miss", 0): e.op("s_mov_b64 exec, -1")
            e.op(f"s_add_u32 {s(S_SPIN)}, {s(S_SPIN)}, 1")
            e.wait(vm="all")
            e.op(f"v_cmp_ne_u64 vcc, {s(S_NONCE,2)}, {v(V_POLL,2)}")
            e.op(f"s_cmp_gt_u32 {s(S_SPIN)}, {SPIN_MAX}")
            e.op(f"s_cbranch_scc1 {bk}")
            e.op(f"s_cbranch_vccnz {st}_l")
            if self.stamps: e.op(f"v_writelane_b32 {v(V_STAMP)}, {s(S_SPIN)}, {16 + sid}")
            e.op(f"s_branch {bk}")
        self.stubs.append(stub)

    def capture(self, *fns):
        e = self.e
        rec = []
        real = e.op
        e.op = lambda text, tag=None: rec.append(text)
        try:
            for f in fns: f()
        finally:
            e.op = real
        atoms = []
        for t in rec:
            if t.startswith(("s_cselect", "s_addc")): atoms[-1].append(t)
            else: atoms.append([t])
        return [lambda a=a_: [e.op(t) for t in a] and None for a_ in atoms]

    PI_A = [0, 2, 1, 4, 3, 6, 5, 8, 7, 9]
    PI_B = [1, -2, 2, -2, 2, -2, 2, -2, 2, -1]
    PI4S = [
        [[0,4,1,2,3,8,5,6,7,9], [1,0,5,2,3,4,9,6,7,8], [2,0,1,6,3,4,5,7,8,9], [3,0,1,2,7,4,5,6,8,9]],
        [[0,2,1,6,3,4,5,7,8,9], [1,3,0,2,7,4,5,6,8,9], [0,4,1,2,3,8,5,6,7,9], [1,5,0,2,3,4,9,6,7,8]],
        [[0,2,6,1,3,4,5,7,8,9], [1,3,7,0,2,4,5,6,8,9], [0,4,8,1,2,3,5,6,7,9], [1,5,9,0,2,3,4,6,7,8]],
        [[0,2,1,6,3,4,5,7,8,9], [1,3,0,7,2,4,5,6,8,9], [0,4,1,8,2,3,5,6,7,9], [1,5,0,9,2,3,4,6,7,8]],
        [[0,1,5,2,3,4,9,6,7,8], [0,2,1,6,3,4,5,7,8,9], [0,3,1,2,7,4,5,6,8,9], [0,4,1,2,3,8,5,6,7,9]],
        [[0,4,8,1,2,3,5,6,7,9], [1,5,9,0,2,3,4,6,7,8], [2,6,0,1,3,4,5,7,8,9], [3,7,0,1,2,4,5,6,8,9]],
    ]
    @property
    def PI4(self): return self.PI4S[self.o("pt", 0)]
    UNIT = (128, 64 * 3840, 64 * 3456)
    def pi_setup(self, sphi, late):
        e = self.e
        mode = self.o("pi", 8)
        if mode == 2:
            if not late:
                e.op(f"s_and_b32 {s(sphi)}, {s(sphi)}, 1")
                for m in range(2): e.op(f"s_mul_i32 {s(S_PHI + 2 * m)}, {s(sphi)}, {self.UNIT[m]}")
            else:
                e.op(f"s_mul_i32 {s(S_PHI + 4)}, {s(S_PHI)}, {self.UNIT[2] // 128}")
                for m in range(3): e.op(f"s_lshl_b32 {s(S_PHI + 2 * m + 1)}, {s(S_PHI + 2 * m)}, 1")
        elif mode >= 4 and not late:
            if mode == 4:
                tabs = self.PI4
                e.op(f"s_and_b32 {s(sphi)}, {s(sphi)}, 3")
            else:
                nph = {5: 1, 8: 2, 16: 4}[mode]
                two = ([self.PI_A, [a_ + b_ for a_, b_ in zip(self.PI_A, self.PI_B)]],
                       [[0,1,2,3,4,5,6,7,8,9], [1,0,3,2,5,4,7,6,9,8]],
                       [[0,2,1,3,4,5,7,6,8,9], [1,3,0,2,4,6,8,5,7,9]],
                       [[0,2,4,1,3,5,7,6,8,9], [1,3,4,0,2,6,8,5,7,9]],
                       [[0,1,3,2,4,5,6,8,7,9], [0,2,4,1,3,5,7,9,6,8]],
                       [[0,2,1,3,4,6,5,8,7,9], [1,3,0,2,5,4,7,6,9,8]])[self.o("p2", 0)]
                base = {1: [list(range(10))], 2: two, 4: self.PI4}[nph]
                rots = ((0, 2, 5, 7), (0, 0, 5, 5), (0, 1, 5, 6), (0, 3, 5, 8))[self.o("rot", 1)]
                tabs = [[(k + ro) % 10 for k in tb] for ro in rots for tb in base]
                e.op(f"s_and_b32 {s(sphi)}, {s(sphi)}, {nph - 1}")
                e.op(f"s_lshr_b32 {s(S_T3)}, s2, 1")
                e.op(f"s_lshl1_add_u32 {s(S_T3)}, s2, {s(S_T3)}")
                e.op(f"s_and_b32 {s(S_T3)}, {s(S_T3)}, 3")
                e.op(f"s_mul_i32 {s(S_T3)}, {s(S_T3)}, {nph}")
                e.op(f"s_add_u32 {s(sphi)}, {s(sphi)}, {s(S_T3)}")
            for i, tb in enumerate(tabs):
                assert sorted(tb) == list(range(10))
                lo = sum(k << (4 * n) for n, k in enumerate(tb[:8])); hi = tb[8] | (tb[9] << 4)
                if i == 0:
                    e.op(f"s_mov_b32 {s(S_PILO)}, {hex(lo)}")
                    e.op(f"s_mov_b32 {s(S_PIHI)}, {hex(hi)}")
                else:
                    e.op(f"s_cmp_eq_u32 {s(sphi)}, {i}")
                    e.op(f"s_cselect_b32 {s(S_PILO)}, {hex(lo)}, {s(S_PILO)}")
                    e.op(f"s_cselect_b32 {s(S_PIHI)}, {hex(hi)}, {s(S_PIHI)}")
    def pi_off(self, dst, st, m):
        e = self.e
        mode = self.o("pi", 8)
        if mode == 1: e.op(f"s_mov_b32 {s(dst)}, {st * self.UNIT[m]}")
        elif mode == 2:
            A, B = self.PI_A[st] * self.UNIT[m], self.PI_B[st]
            e.op(f"s_{'add' if B > 0 else 'sub'}_u32 {s(dst)}, {A}, {s(S_PHI + 2 * m + abs(B) - 1)}")
        else:
            e.op(f"s_bfe_u32 {s(dst)}, {s(S_PILO if st < 8 else S_PIHI)}, {hex((4 << 16) | (4 * (st % 8)))}")
            e.op(f"s_mul_i32 {s(dst)}, {s(dst)}, {self.UNIT[m]}")

    def prologue(self):
        e = self.e
        L = v(V_LANE); T0, T1, T2, T3 = v(V_T0), v(V_T1), v(V_T2), v(V_T3)
        e.op("s_cmp_ge_u32 s2, 256")
        e.op("s_cbranch_scc1 L_end")
        self.stamp(0)
        for d, off in ((S_X, 0), (S_WA, 8), (S_WB, 32), (S_WS, 72), (S_OUT, 56), (S_DBG, 64)):
            e.op(f"s_load_dwordx2 {s(d,2)}, s[0:1], {off}")
        e.op(f"s_getpc_b64 {s(S_TAB,2)}")
        e.label("L_pc")
        e.op("s_cmp_lt_u32 s2, 240")
        e.op("s_cbranch_scc1 L_nopf")
        e.op(f"s_bfe_u32 {s(S_T0)}, s2, 0x10003")
        e.op(f"v_lshl_add_u32 {T0}, v0, 1, {s(S_T0)}")
        e.op(f"v_lshlrev_b32 {T0}, 7, {T0}")
        e.op(f"v_min_u32 {T0}, L_cold-L_pc, {T0}")
        e.op(f"global_load_dword {v(224)}, {T0}, {s(S_TAB,2)}")
        e.vm = []
        e.label("L_nopf")
        if self.stamps: e.op(f"v_mov_b32 {v(V_STAMP)}, 0")
        e.op(f"v_lshrrev_b32 {T0}, 6, v0")
        e.op(f"v_and_b32 {L}, 63, v0")
        e.op(f"v_readfirstlane_b32 {s(S_WAVE)}, {T0}")
        e.op(f"s_bfe_u32 {s(S_T0)}, s2, 0x20001")
        e.op(f"s_mul_i32 {s(S_T0)}, {s(S_T0)}, 30")
        e.op(f"s_lshr_b32 {s(S_T1)}, s2, 3")
        e.op(f"s_add_u32 {s(S_T0)}, {s(S_T0)}, {s(S_T1)}")
        e.op(f"s_lshr_b32 {s(S_CG)}, {s(S_T0)}, 3")
        e.op(f"s_and_b32 {s(S_T0)}, {s(S_T0)}, 7")
        e.op(f"s_and_b32 {s(S_T1)}, s2, 1")
        e.op(f"s_lshl3_add_u32 {s(S_T0)}, {s(S_T1)}, {s(S_T0)}")
        e.op(f"s_add_u32 {s(S_T5)}, {s(S_T0)}, {s(S_CG)}")
        self.pi_setup(S_T5, False)
        e.op(f"s_lshl2_add_u32 {s(S_T0)}, {s(S_T0)}, {s(S_WAVE)}")
        e.op(f"s_mul_i32 {s(S_T0)}, {s(S_T0)}, {32 * 1280}")
        e.op(f"s_lshl_b32 {s(S_T4)}, {s(S_CG)}, 8")
        e.op(f"s_movk_i32 {s(S_T2)}, 1280")
        e.op(f"s_movk_i32 {s(S_T3)}, {2 * (8 * 1280 - 1024)}")
        e.op(f"v_lshrrev_b32 {T1}, 4, {L}")
        e.op(f"v_and_b32 {T2}, 7, {L}")
        e.op(f"v_xor_b32 {T2}, {T2}, {T1}")
        e.op(f"v_lshl_add_u32 {T2}, {T2}, 4, {s(S_T0)}")
        e.op(f"v_lshrrev_b32 {T0}, 3, {L}")
        e.op(f"v_mad_u32_u24 {v(V_XD)}, {T0}, {s(S_T2)}, {T2}")
        e.op(f"v_xad_u32 {v(V_XD+2)}, {v(V_XD)}, 64, {s(S_T3)}")
        e.op(f"v_add_u32 {v(V_XD+1)}, {8 * 1280 - 1024}, {v(V_XD)}")
        e.op(f"v_add_u32 {v(V_XD+3)}, {8 * 1280 - 1024}, {v(V_XD+2)}")
        e.op(f"v_lshlrev_b32 {T2}, 2, {T1}")
        e.op(f"v_and_b32 {T3}, 15, {L}")
        e.op(f"v_xor_b32 {T2}, {T2}, {T3}")
        e.op(f"v_lshl_add_u32 {T2}, {T2}, 4, {s(S_T4)}")
        e.op(f"v_lshl_add_u32 {T1}, {s(S_WAVE)}, 4, {T1}")
        e.op(f"s_movk_i32 {s(S_T2)}, 3840")
        e.op(f"v_mad_u32_u24 {v(V_WD)}, {T1}, {s(S_T2)}, {T2}")
        e.op(f"s_movk_i32 {s(S_T3)}, {2 * (4 * 3840 - 1024)}")
        e.op(f"v_xad_u32 {v(V_WD+2)}, {v(V_WD)}, 16, {s(S_T3)}")
        for n in (1, 3): e.op(f"v_add_u32 {v(V_WD+n)}, {4 * 3840 - 1024}, {v(V_WD+n-1)}")
        e.op(f"s_lshl_b32 {s(S_WM0)}, {s(S_WAVE)}, 12")
        e.op(f"s_lshl2_add_u32 {s(S_XM0)}, {s(S_WM0)}, {L_X}")
        self.srd_tail(S_X, 2048 * 1280)
        self.srd_tail(S_WA, 640 * 3840)
        e.op(f"s_lshl2_add_u32 {s(S_T0)}, s2, {s(S_WAVE)}")
        e.op(f"s_mul_i32 {s(S_T0)}, {s(S_T0)}, 192")
        e.label("L_pc2")
        e.op(f"s_add_u32 {s(S_TAB)}, {s(S_TAB)}, wave_table@rel32@lo+(L_pc2+4-L_pc)")
        e.op(f"s_addc_u32 {s(S_TAB+1)}, {s(S_TAB+1)}, wave_table@rel32@hi+(L_pc2+12-L_pc)")
        e.op(f"s_add_u32 {s(S_TAB)}, {s(S_TAB)}, {s(S_T0)}")
        e.op(f"s_addc_u32 {s(S_TAB+1)}, {s(S_TAB+1)}, 0")
        e.wait(lg="all")
        self.flush_stamp()
        e.op("s_cmp_ge_u32 s2, 240")
        e.op("s_cbranch_scc1 L_spare")
        self.spare_snap = e.snapshot()
        self.table_loads()

    def flag_init(self, spare=False):
        if not self.o("finit", 1) & 1: return
        e = self.e
        e.op(f"s_cmp_eq_u32 {s(S_WAVE)}, 1")
        if spare:
            e.op(f"s_cselect_b32 {s(S_T1)}, {s(S_FLB)}, {OOB}")
        else:
            e.op(f"s_cselect_b32 {s(S_T1)}, {s(S_FLB)}, {s(S_FLA)}")
            e.op(f"s_lshr_b32 {s(S_T2)}, {s(S_TB1)}, 2")
            e.op(f"s_lshl_b32 {s(S_T2)}, {s(S_T2)}, 7")
            e.op(f"s_add_u32 {s(S_T2)}, {s(S_T2)}, {FL_GO}")
            e.op(f"s_or_b32 {s(S_T3)}, {s(S_FLA)}, {15 * 128}")
            e.op(f"s_cmp_eq_u32 {s(S_WAVE)}, 2")
            e.op(f"s_cselect_b32 {s(S_T2)}, {s(S_T2)}, {s(S_T3)}")
            e.op(f"s_cmp_eq_u32 {s(S_CG2)}, 14")
            e.op(f"s_cselect_b32 {s(S_T2)}, {s(S_T2)}, {OOB}")
            e.op(f"s_cmp_lt_u32 {s(S_WAVE)}, 2")
            e.op(f"s_cselect_b32 {s(S_T1)}, {s(S_T1)}, {s(S_T2)}")
        e.op(f"s_andn2_b32 {s(S_T1)}, {s(S_T1)}, 127")
        e.op(f"v_lshl_add_u32 {v(V_T0)}, {v(V_LANE)}, 2, 0")
        e.op("s_mov_b32 exec_hi, 0")
        e.op(f"buffer_store_dword {v(V_ZERO)}, {v(V_T0)}, {s(S_WS,4)}, {s(S_T1)} offen sc1", tag="fi")
        e.op("s_mov_b32 exec_hi, -1")

    def table_loads(self):
        e = self.e
        e.op(f"s_load_dwordx2 {s(S_PWO,2)}, s[0:1], 16")
        e.op(f"s_load_dwordx4 {s(S_PW2,4)}, s[0:1], 40")
        e.op(f"s_load_dwordx16 {s(TA,16)}, {s(S_TAB,2)}, 0")
        e.op(f"s_load_dwordx16 {s(TA+16,16)}, {s(S_TAB,2)}, 64")
        e.op(f"s_load_dword {s(S_SPIN)}, {s(S_TAB,2)}, 128")

    def common_setup(self):
        e = self.e
        L = v(V_LANE)
        self.srd_tail(S_WB, 640 * 3456)
        self.srd_tail(S_WS, WS_SIZE)
        self.srd_tail(S_OUT, 2048 * 1280)
        self.srd_tail(S_DBG, 256)
        e.op(f"s_mov_b32 {s(S_MISC+3)}, 0x20000")
        e.op(f"v_lshlrev_b32 {v(V_L16)}, 4, {L}")
        e.op(f"v_mov_b32 {v(V_ZERO)}, 0")
        e.op(f"v_lshrrev_b32 {v(V_L16H)}, 5, {L}")
        e.op(f"v_lshl_add_u32 {v(V_L16H)}, {v(V_L16H)}, 26, {v(V_L16)}")
        e.op(f"s_mov_b32 {s(S_VM)}, 0xfffff")
        e.op(f"s_mov_b32 {s(S_VM+1)}, 0xfffff")
        e.op(f"s_mov_b32 {s(S_C1)}, 0x10000")
        e.op(f"s_mov_b32 {s(S_C2)}, 0x20000")

    def dma(self, st, m):
        e = self.e
        dm = S_T5 if st < 2 else S_DM
        if m == 0: srd, vd, k, base, lo = S_X, V_XD, st, S_XM0, self.XSLOT[st] * 4096
        elif st < 10: srd, vd, k, base, lo = S_WA, V_WD, st, S_WM0, L_W + (st % NW) * 16384
        else: srd, vd, k, base, lo, m = S_WB, V_WD2, self.xst(st), S_WM0, L_W + (st % NW) * 16384, 2
        def f(n):
            if n == 0:
                e.op(f"s_add_u32 m0, {s(base)}, {lo}")
                self.pi_off(dm, k, m)
            e.op(f"buffer_load_dwordx4 {v(vd+n)}, {s(srd,4)}, {s(dm)} offen offset:{n*1024} {('', 'sc1 ', 'sc0 ', 'sc0 sc1 ')[self.o('dsc', 0)]}lds", tag=("d", st))
        return [lambda n=n: f(n) for n in range(4)]
    def dmas(self, st): return (self.dma(st, 0) if st < 10 else []) + self.dma(st, 1)

    P2X = (9, 0, 1, 5, 2, 7, 3, 4, 6, 8)
    XREG = {0: 0, 1: 1, 2: 2, 3: 3, 4: 4, 6: 5, 8: 6}
    XSLOT = (0, 1, 2, 3, 0, 1, 2, 3, 0, 2)
    def xst(self, st):
        return st if st < 10 else self.P2X[st - 10]

    def stage1_tables(self):
        e = self.e
        L = v(V_LANE); T0, T1, T2, T3 = v(V_T0), v(V_T1), v(V_T2), v(V_T3)
        P0, P1 = v(V_POLL), v(V_POLL + 1)
        e.op(f"s_movk_i32 {s(S_T2)}, 3456")
        e.op(f"v_and_b32 {v(15)}, 255, {T2}")
        e.op(f"v_mad_u32_u24 {v(V_WD2)}, {T1}, {s(S_T2)}, {v(15)}")
        e.op(f"s_movk_i32 {s(S_T3)}, {2 * (4 * 3456 - 1024)}")
        e.op(f"v_xad_u32 {v(V_WD2+2)}, {v(V_WD2)}, 16, {s(S_T3)}")
        for n in (1, 3): e.op(f"v_add_u32 {v(V_WD2+n)}, {4 * 3456 - 1024}, {v(V_WD2+n-1)}")
        e.op(f"v_and_b32 {P0}, 8, {L}")
        e.op(f"v_and_b32 {T0}, 15, {L}")
        e.op(f"v_add_u32 {P0}, {P0}, {T0}")
        e.op(f"v_lshrrev_b32 {P1}, 4, {L}")
        e.op(f"s_and_b32 {s(S_T0)}, {s(S_WAVE)}, 2")
        e.op(f"s_lshl_b32 {s(S_T0)}, {s(S_T0)}, 14")
        e.op(f"s_add_u32 {s(S_T0)}, {s(S_T0)}, {L_X}")
        e.op(f"v_bfe_u32 {T1}, {L}, 1, 3")
        e.op(f"v_xor_b32 {T1}, {T1}, {P1}")
        e.op(f"v_lshl_add_u32 {T1}, {T1}, 4, {s(S_T0)}")
        e.op(f"v_lshl_add_u32 {v(V_XR)}, {P0}, 7, {T1}")
        e.op(f"v_xor_b32 {v(V_XR+1)}, 64, {v(V_XR)}")
        e.op(f"s_and_b32 {s(S_T1)}, {s(S_WAVE)}, 1")
        e.op(f"s_lshl_b32 {s(S_T0)}, {s(S_T1)}, 3")
        e.op(f"v_and_b32 {T0}, 14, {L}")
        e.op(f"v_and_or_b32 {T0}, {P1}, 1, {T0}")
        e.op(f"v_xor_b32 {T0}, {s(S_T0)}, {T0}")
        e.op(f"v_and_b32 {T1}, 1, {L}")
        e.op(f"v_lshl_add_u32 {T0}, {T0}, 1, {T1}")
        e.op(f"v_bfe_u32 {T1}, {L}, 2, 2")
        e.op(f"v_lshl_add_u32 {T1}, {P1}, 3, {T1}")
        e.op(f"v_lshlrev_b32 {T1}, 8, {T1}")
        e.op(f"v_lshl_add_u32 {v(V_WR)}, {T0}, 3, {T1}")
        for j in range(1, 4): e.op(f"v_xor_b32 {v(V_WR+j)}, {(j >> 1) * 64 + (j & 1) * 16}, {v(V_WR)}")
        for j in range(4): e.op(f"v_add_u32 {v(V_WR+4+j)}, 0x10000, {v(V_WR+j)}")
        e.op(f"v_lshlrev_b32 {T0}, 4, {P0}")
        e.op(f"v_lshl_add_u32 {v(V_LH)}, {P1}, 9, {T0}")
        lv, ld = self.L("st1v"), self.L("st1d")
        e.op(f"s_cmp_ge_u32 {s(S_CG)}, 10")
        e.op(f"s_cbranch_scc1 {lv}")
        e.op(f"v_lshrrev_b32 {T0}, 5, {L}")
        e.op(f"v_mul_u32_u24 {T0}, {65536 - 1024}, {T0}")
        e.op(f"v_add_u32 {v(V_ST1)}, {T0}, {v(V_LH)}")
        for j in range(1, 4): e.op(f"v_add_u32 {v(V_ST1+j)}, {(j >> 1) * 131072 + (j & 1) * 128}, {v(V_ST1)}")
        e.op(f"s_branch {ld}")
        e.label(lv)
        e.op(f"s_lshl1_add_u32 {s(S_T1)}, {s(S_CG)}, {s(S_T1)}")
        e.op(f"s_lshl_b32 {s(S_T1)}, {s(S_T1)}, 6")
        e.op(f"s_sub_u32 {s(S_T1)}, {s(S_T1)}, 1280")
        e.op(f"v_add_u32 {T0}, {s(S_T1)}, {P0}")
        e.op(f"v_mul_u32_u24 {T2}, 640, {P1}")
        e.op(f"s_mov_b32 {s(S_T2)}, {64 * 2560 - 640}")
        for j in range(4):
            e.op(f"v_mul_u32_u24 {T3}, 1639, {T0}")
            e.op(f"v_lshrrev_b32 {T3}, 16, {T3}")
            e.op(f"v_lshl_add_u32 {T1}, {T0}, 4, {T2}")
            e.op(f"v_mad_u32_u24 {v(V_ST1+j)}, {T3}, {s(S_T2)}, {T1}")
            if j < 3: e.op(f"v_add_u32 {T0}, {24 if j & 1 else 8}, {T0}")
        e.label(ld)

    def late_lane_tables(self):
        e = self.e
        L = v(V_LANE); T0, T1, T2, T3 = v(V_T0), v(V_T1), v(V_T2), v(V_T3)
        e.op(f"v_and_b32 {T0}, 31, {L}")
        e.op(f"v_lshrrev_b32 {T1}, 5, {L}")
        e.op(f"v_lshlrev_b32 {v(V_R)}, 2, {T0}")
        e.op(f"s_lshl_b32 {s(S_T1)}, {s(S_WAVE)}, 10")
        e.op(f"s_add_u32 {s(S_T2)}, {s(S_T1)}, {L_K}")
        e.op(f"v_add_u32 {v(V_KA)}, {s(S_T2)}, {v(V_L16)}")
        e.op(f"s_mul_i32 {s(S_T1)}, {s(S_T1)}, 3")
        e.op(f"s_add_u32 {s(S_T1)}, {s(S_T1)}, {L_V}")
        e.op(f"v_lshl_add_u32 {T2}, {T1}, 7, {v(V_L16)}")
        e.op(f"v_add_u32 {v(V_VA)}, {s(S_T1)}, {T2}")
        e.op(f"v_lshlrev_b32 {T2}, 2, {T1}")
        e.op(f"v_sub_u32 {T2}, {T0}, {T2}")
        e.op(f"v_cvt_f32_i32 {T2}, {T2}")
        e.op(f"v_mov_b32 {T3}, {f32(2.0 ** 100)}")
        for rr in range(16):
            key = 8 * (rr >> 2) + (rr & 3)
            e.op(f"v_fmaak_f32 {v(CE + rr)}, {T2}, {T3}, {f32((0.5 - key) * 2.0 ** 100)}")
            e.op(f"v_min_f32 {v(CD + rr)}, 0, {v(CE + rr)}")
            e.op(f"v_min_f32 {v(CE + rr)}, -{v(CE + rr)}, 0")
        e.op(f"v_lshrrev_b32 {T1}, 4, {L}")
        e.op(f"v_lshl_add_u32 {v(V_HL)}, {T1}, 8, {v(V_L16)}")
    def w1_columns(self):
        e = self.e
        T0 = v(V_T0)
        e.op(f"s_lshl_b32 {s(S_T0)}, {s(S_CG2)}, 8")
        e.op(f"v_add_u32 {v(15)}, {s(S_T0)}, {v(15)}")
        e.op(f"v_cmp_le_u32 vcc, 3456, {v(15)}")
        e.op(f"v_mov_b32 {T0}, {s(S_T0)}")
        e.op(f"v_mov_b32 {v(15)}, 0x1000000")
        e.op(f"v_cndmask_b32 {T0}, {T0}, {v(15)}, vcc")
        for n in range(4): e.op(f"v_add_u32 {v(V_WD2+n)}, {T0}, {v(V_WD2+n)}")
    def late_table_use(self):
        e = self.e
        L = v(V_LANE); T0, T1, T2, T3 = v(V_T0), v(V_T1), v(V_T2), v(V_T3)
        for t in range(4): e.op(f"v_add_u32 {v(V_H + t)}, {s(S_HT + t)}, {v(V_HL)}")
        for k in range(3): e.op(f"v_add_u32 {v(V_KT + k)}, {s(S_KADJ + k)}, {v(V_L16)}")
        e.op(f"v_add_u32 {v(V_Q)}, {s(S_QOFF)}, {v(V_L16)}")
        e.op(f"v_lshl_add_u32 {v(V_R)}, {s(S_TQ)}, 8, {v(V_R)}")
        e.op(f"v_add_u32 {v(V_R)}, {WS_G}, {v(V_R)}")
        e.op(f"v_min_u32 {T0}, 59, {L}")
        e.op(f"v_and_b32 {T1}, 3, {T0}")
        e.op(f"v_lshl_add_u32 {T1}, {T1}, 3, {s(S_PFD)}")
        e.op(f"v_lshrrev_b32 {T0}, 2, {T0}")
        e.op(f"v_lshl_add_u32 {T1}, {T0}, 7, {T1}")
        e.op(f"s_mul_i32 {s(S_T0)}, {s(S_WAVE)}, {-9 * 128}")
        e.op(f"s_add_u32 {s(S_T0)}, {s(S_T0)}, {36 * 128}")
        e.op(f"v_cmp_lt_u32 vcc, 47, {L}")
        e.op(f"v_add_u32 {T0}, {s(S_T0)}, {T1}")
        e.op(f"v_cndmask_b32 {v(V_FD)}, {T1}, {T0}, vcc")
        e.op(f"v_lshrrev_b32 {T0}, 1, {L}")
        e.op(f"v_min_u32 {T0}, 4, {T0}")
        e.op(f"v_and_b32 {T1}, 1, {L}")
        e.op(f"v_lshl_add_u32 {T1}, {T1}, 3, {s(S_PFC)}")
        e.op(f"v_lshl_add_u32 {v(V_FC)}, {T0}, 7, {T1}")
        e.op(f"v_writelane_b32 {v(V_FC)}, {s(S_PFG)}, 63")
        e.op(f"s_bfe_u32 {s(S_T0)}, {s(S_BITS)}, {hex((26 << 16) | 2)}")
        e.op(f"v_writelane_b32 {v(V_FC)}, {s(S_T0)}, 62")
        e.op(f"s_lshr_b32 {s(S_T0)}, {s(S_TQ)}, 2")
        e.op(f"s_sub_u32 {s(S_T0)}, {s(S_T0)}, 2")
        e.op(f"v_lshrrev_b32 {T0}, 4, {L}")
        e.op(f"v_min_u32 {T0}, 2, {T0}")
        e.op(f"v_add_u32 {T0}, {s(S_T0)}, {T0}")
        e.op(f"v_max_i32 {T0}, 0, {T0}")
        e.op(f"v_and_b32 {T1}, 3, {L}")
        e.op(f"v_lshl_add_u32 {T1}, {T1}, 3, {s(S_PFA)}")
        e.op(f"v_lshl_add_u32 {T0}, {T0}, 11, {T1}")
        e.op(f"v_bfe_u32 {T1}, {L}, 2, 1")
        e.op(f"v_mad_u32_u24 {T0}, {T1}, {s(S_ASTEP)}, {T0}")
        e.op(f"v_cmp_gt_u32 vcc, 48, {L}")
        e.op(f"v_bfe_u32 {T1}, {L}, 3, 1")
        e.op(f"v_add_u32 {T1}, 1, {T1}")
        e.op(f"v_mul_u32_u24 {T1}, 640, {T1}")
        e.op(f"v_cndmask_b32 {T1}, 0, {T1}, vcc")
        e.op(f"v_add_u32 {v(V_FA)}, {T0}, {T1}")

    def rt_tables(self, base):
        e = self.e
        L = v(V_LANE); T0, T1, T2, T3 = v(V_T0), v(V_T1), v(V_T2), v(V_T3)
        P0, P1 = v(V_POLL), v(V_POLL + 1)
        e.op(f"s_and_b32 {s(S_T0)}, {s(S_WAVE)}, 1")
        e.op(f"s_mul_i32 {s(S_T0)}, {s(S_T0)}, 160")
        e.op(f"v_add_u32 {T0}, {s(S_T0)}, {L}")
        for i in range(3):
            e.op(f"v_mul_u32_u24 {T1}, 820, {T0}")
            e.op(f"v_lshrrev_b32 {T1}, 16, {T1}")
            e.op(f"v_lshlrev_b32 {T1}, 2, {T1}")
            e.op(f"v_xor_b32 {T1}, {T0}, {T1}")
            e.op(f"v_lshlrev_b32 {v(RT_LD + i)}, 4, {T1}")
            if i < 2: e.op(f"v_add_u32 {T0}, 64, {T0}")
        e.op(f"v_lshrrev_b32 {T0}, 4, {L}")
        e.op(f"v_and_b32 {T1}, 3, {L}")
        e.op(f"v_bfe_u32 {P1}, {L}, 2, 2")
        e.op(f"v_lshlrev_b32 {T3}, 3, {P1}")
        e.op(f"v_mul_u32_u24 {P1}, 1280, {P1}")
        e.op(f"v_add_u32 {P1}, {base}, {P1}")
        e.op(f"s_lshl_b32 {s(S_T0)}, {s(S_WAVE)}, 5")
        e.op(f"v_and_b32 {P0}, 1, {T0}")
        e.op(f"v_lshl_add_u32 {T2}, {T1}, 1, {P0}")
        e.op(f"v_lshrrev_b32 {v(RT_D)}, 5, {L}")
        e.op(f"v_lshl_add_u32 {T2}, {v(RT_D)}, 3, {T2}")
        e.op(f"v_add_u32 {T2}, {s(S_T0)}, {T2}")
        for i in range(2):
            if i: e.op(f"v_add_u32 {T2}, 16, {T2}")
            e.op(f"v_xor_b32 {v(RT_D)}, {T2}, {T3}")
            e.op(f"v_lshl_add_u32 {v(RT_RD + i)}, {v(RT_D)}, 3, {P1}")
        e.op(f"v_lshl_add_u32 {T2}, {P0}, 2, {T1}")
        e.op(f"s_lshl3_add_u32 {s(S_T0)}, {s(S_WAVE)}, 0x80")
        e.op(f"v_add_u32 {T2}, {s(S_T0)}, {T2}")
        e.op(f"v_xor_b32 {T2}, {T2}, {T3}")
        e.op(f"v_lshl_add_u32 {v(RT_RD + 2)}, {T2}, 3, {P1}")
        e.op(f"v_mul_u32_u24 {T0}, {1024 - 256}, {T0}")
        e.op(f"v_add_u32 {v(RT_ST)}, {T0}, {v(V_L16)}")
        e.op(f"v_add_u32 {v(RT_ST + 1)}, {74 * 5120}, {v(RT_ST)}")
        e.op(f"s_mov_b32 {s(S_T0)}, {74 * 5120 - 256}")
        e.op(f"v_mad_u32_u24 {T0}, {P0}, {s(S_T0)}, {v(V_L16H)}")
        e.op(f"v_add_u32 {v(RT_ST + 2)}, 4096, {T0}")
    def rt_srd(self, reg=S_BITS, bit=1):
        e = self.e
        e.op(f"s_bitcmp1_b32 {s(reg)}, {bit}")
        e.op(f"s_cselect_b64 {s(S_MISC,2)}, {s(S_PWO,2)}, {s(S_PW2,2)}")
        e.op(f"s_mov_b32 {s(S_MISC+2)}, {640 * 1280}")
        e.op(f"s_cselect_b32 {s(S_MISC+2)}, {s(S_MISC+2)}, {1728 * 1280}")
    def rt_loads(self, base, src, sw):
        e = self.e
        for i in range(3):
            e.op(f"s_add_u32 m0, {s(sw)}, {base + i * 1024}")
            if i == 2: e.op("s_mov_b32 exec_hi, 0")
            e.op(f"buffer_load_dwordx4 {v(RT_LD + i)}, {s(S_MISC,4)}, {s(src)} offen {self.nt}lds", tag="rl")
            if i == 2: e.op("s_mov_b32 exec_hi, -1")
    def rt_reads(self, lo_=0, D=RT_D):
        return [lambda i=i, u=u: self.e.op(f"ds_read_b64_tr_b16 {v(D + 4 * i + 2 * u, 2)}, {v(RT_RD + i)} offset:{lo_ + u * 5120}", tag=("rt", i))
                for i in range(3) for u in range(2)]
    def rt_stores(self, D=RT_D, so=S_RTS):
        e = self.e
        def st(i):
            e.wait(lg=("rt", i))
            e.op(f"buffer_store_dwordx4 {v(D + 4 * i, 4)}, {v(RT_ST + i)}, {s(S_WS,4)}, {s(so)} offen sc1", tag="rs")
        return [lambda i=i: st(i) for i in range(3)]

    EARLY_W = (0, 1, 2, 3)
    def w_loads(self, n):
        e = self.e
        def f(j):
            dst = r(WR + 20 * (n % NWR) + 4 * j, 4)
            if n == 13:
                if j in (0, 4):
                    e.op(f"s_add_u32 {s(S_T2)}, {s(S_WT0)}, {n * 5120 - 2048 + (4096 if j else 0)}")
                    e.op(f"s_cmp_lt_u32 {s(S_WAVE)}, 2")
                    e.op(f"s_cselect_b32 {s(S_T2)}, {s(S_T2)}, {OOB}")
                e.op(f"buffer_load_dwordx4 {dst}, {v(V_L16)}, {s(S_WS,4)}, {s(S_T2)} offen offset:{(j & 3) * 1024} sc1", tag=("w", n, j))
                return
            if j == 0:
                base, off = (S_WT0, n * 5120) if n < 14 else (S_WT1, (n - 14) * 5120)
                if self.o("wsame", 0): base, off = S_WT0, (n % 4) * 5120
                if self.wv is None or self.wv[0] != base:
                    e.op(f"v_add_u32 {v(V_WV)}, {s(base)}, {v(V_L16)}")
                    self.wv = (base, 0)
                if off != self.wv[1]: e.op(f"v_add_u32 {v(V_WV)}, {off - self.wv[1]}, {v(V_WV)}")
                self.wv = (base, off)
            e.op(f"global_load_dwordx4 {dst}, {v(V_WV)}, {s(S_WS,2)} offset:{j * 1024 - 2048} sc1", tag=("w", n, j))
        return [lambda j=j: f(j) for j in range(5)]
    @property
    def LDS_W(self):
        return (14, 15, 16)[:self.o("nlds", 2)]
    def wl_dmas(self):
        e = self.e
        def f(i):
            if i == 0:
                e.op(f"s_mul_i32 {s(S_T4)}, {s(S_WAVE)}, 20480")
                e.op(f"s_lshl_b32 {s(S_T2)}, {s(S_WAVE)}, 3")
                e.op(f"s_lshr_b32 {s(S_T2)}, {hex(sum((54 + 5 * w - KS0[w]) << (8 * w) for w in range(4)))}, {s(S_T2)}")
                e.op(f"s_and_b32 {s(S_T2)}, {s(S_T2)}, 0xff")
                e.op(f"s_mul_i32 {s(S_T2)}, {s(S_T2)}, 5120")
                e.op(f"s_add_u32 {s(S_DM)}, {s(S_T2)}, {s(S_WT0)}")
            if i % 4 == 0:
                e.op(f"s_add_u32 m0, {s(S_T4)}, {L_W + i * 1024}")
                e.op(f"s_add_u32 {s(S_DM)}, {s(S_DM)}, {4096 if i else -2048}")
            e.op(f"buffer_load_dwordx4 {v(V_L16)}, {s(S_WS,4)}, {s(S_DM)} offen offset:{(i % 4) * 1024} sc1 lds", tag="wl")
        return [lambda i=i: f(i) for i in range(5 * len(self.LDS_W))]
    @property
    def TM(self): return self.o("tm", 5)
    def hreg(self, n, t):
        n0 = 19 - self.TM
        if n < n0: return HSLOT[n % NH] + 4 * t
        i = self.TM * t + (n - n0)
        return HSLOT[(n0 + i // 4) % NH] + 4 * (i % 4)
    def h_load(self, n, t):
        e = self.e
        dst = v(self.hreg(n, t), 4)
        if n >= 14:
            q = n - 14 if not self.o("hsame", 0) else 0
            so = ("0", s(S_C1), s(S_C2))[q >> 1]
            e.op(f"buffer_load_dwordx4 {dst}, {v(V_O + t)}, {s(S_WS,4)}, {so} offen offset:{(q & 1) * 2048} sc1", tag=("h", n, t))
            return
        if t == 0 and n > 1 and n % 2 == 0:
            e.op(f"s_movk_i32 {s(S_HK)}, {n * 2048 if not self.o('hsame', 0) else 0}")
            self.hk = n
        if t == 0 and n == 13:
            e.op(f"s_cmp_lt_u32 {s(S_WAVE)}, 2")
            e.op(f"s_cselect_b32 {s(S_T5)}, {s(S_HK)}, {OOB}")
        assert n < 2 or self.hk == n & ~1
        e.op(f"buffer_load_dwordx4 {dst}, {v(V_H + t)}, {s(S_WS,4)}, {s(S_T5) if n == 13 else s(S_HK) if n > 1 else 0} offen offset:{(n & 1) * 2048} sc1", tag=("h", n, t))
    def kvq_loads(self):
        e = self.e
        so = ("0", s(S_C1), s(S_C2))
        def q(f): e.op(f"buffer_load_dwordx4 {v(VQ + 4 * f, 4)}, {v(V_Q)}, {s(S_WS,4)}, {so[f]} offen sc1", tag="q")
        def k(f, i):
            if f == 0 and i == 0: e.op(f"s_mul_i32 {s(S_T5)}, {s(S_WAVE)}, 3072")
            if i == 0: e.op(f"s_add_u32 m0, {s(S_T5)}, {L_K + f * 12288}")
            e.op(f"buffer_load_dwordx4 {v(V_KT + i)}, {s(S_WS,4)}, {so[f]} offen offset:{i * 1024} sc1 lds", tag="kd")
        def vv(i, n):
            if i == 0 and n == 0: e.op(f"s_mul_i32 {s(S_T5)}, {s(S_WAVE)}, 9216")
            if n == 0: e.op(f"s_add_u32 m0, {s(S_T5)}, {L_V + i * 3072}")
            e.op(f"buffer_load_dwordx4 {v(V_L16H if n == 2 else V_L16)}, {s(S_WS,4)}, {s(S_VOFF + i)} offen offset:{n * 1024} sc1 lds", tag="vd")
        return [lambda f=f: q(f) for f in range(3)] + [lambda f=f, i=i: k(f, i) for f in range(3) for i in range(3)] + \
               [lambda i=i, n=n: vv(i, n) for i in range(3) for n in range(3)]

    @staticmethod
    def tile_of(i):
        j, t0, k0 = i >> 3, (i >> 1) & 3, i & 1
        return j, (3 - t0 if j & 1 else t0), k0 ^ (t0 & 1)
    def w_read(self, st, f, u):
        j, ks = f >> 1, f & 1
        off = L_W + (st % NW) * 16384 + ks * 8192 + u * 1024
        ad = V_WR + j
        if off >= 65536: off -= 65536; ad += 4
        self.e.op(f"ds_read_b64_tr_b16 {v(V_FR + 4 * f + 2 * u, 2)}, {v(ad)} offset:{off}", tag=("w", st, f))
    def xreg(self, xs, ks, tt): return A_X + 32 * self.XREG.get(xs, NXR) + 16 * ks + 4 * tt
    def x_read(self, st, ks, tt):
        xs = self.xst(st)
        self.e.op(f"ds_read_b128 {r(self.xreg(xs, ks, tt), 4)}, {v(V_XR + ks)} offset:{(tt >> 1) * 16384 + self.XSLOT[xs] * 4096 + (tt & 1) * 1024}", tag=("x", st, ks, tt))
    def accreg(self, ps, tt, j, swap):
        b, p, G, q = tt >> 1, tt & 1, j >> 1, j & 1
        return ACC[ps] + 32 * G + (16 * q + 8 * b + 4 * p if swap else 16 * p + 8 * b + 4 * q)

    @property
    def LEAD(self): return self.o('lead', 11)
    def stage1_fill(self):
        e = self.e
        fill = {m: [] for m in range(-1, 640)}
        used = {m: 0 for m in range(-1, 640)}
        def at(m, f, n=1):
            fill[max(m, -1)].append(f); used[max(m, -1)] += n
        WG = (1, 2, 9, 11, 15, 17, 21, 23)
        for st in range(20):
            b = 32 * st - self.LEAD
            def bar(st=st):
                assert ("d", st) in e.all_tags
                e.wait(vm=("d", st), lg="all")
                e.op("s_barrier")
            at(b, bar, 2)
            for f in range(8):
                for u in range(2): at(b + WG[f], lambda st=st, f=f, u=u: self.w_read(st, f, u))
            for f in range(8):
                rd = lambda st=st, f=f: self.x_read(st, f & 1, f >> 1)
                if st < 10: at(b + 3 + (f >> 1), rd)
                elif st > 10 and self.xst(st) not in self.XREG: at(b - 32 + (13, 13, 19, 19, 25, 25, 27, 27)[f], rd)
            for g in (-1, 3, 7, 15): used[max(32 * st + g, -1)] += 1
        return fill, used

    def vm_schedule(self, fill, used, queues, m0, m1, thr):
        lag = 0
        for m in range(m0, m1):
            lag = max(0, lag - 16)
            heads = [q for q in queues if q and q[0][0] <= m]
            if not heads: continue
            q = min(heads, key=lambda q: q[0][1])
            if (used[m] or m % 2 == 0) and q[0][1] + 3 > m: continue
            if q[0][1] <= m or lag <= thr:
                rel, dl, cost, f = q.pop(0)
                fill[m].append(f); used[m] += 2
                lag = min(lag, 3 * 72) + cost
        assert not any(queues), [len(q) for q in queues]
    def va_place(self, fill, used, ops, m0, m1):
        cap = 2
        while sum(max(0, cap - used[m]) for m in range(m0, m1)) < len(ops): cap += 1
        over = len(ops) - sum(max(0, cap - 1 - used[m]) for m in range(m0, m1)) if cap > 2 else len(ops)
        ops = list(ops)
        for m in range(m0, m1):
            n = max(0, cap - 1 - used[m]) if cap > 2 else 0
            ex = max(0, cap - used[m]) - n
            ex = min(ex, over); over -= ex
            for _ in range(n + ex):
                if ops: fill[m].append(ops.pop(0)); used[m] += 1
        assert not ops

    def p1_epilogue_ops(self):
        e = self.e
        groups = []
        for g in range(8):
            A = ACC[0] + 8 * g
            ops = [lambda A=A, q=q: e.op(f"v_mul_f32 {v(A+q)}, {s(S_SCALE)}, {v(A+q)}") for q in range(8)]
            ops += [lambda A=A, q=q: e.op(f"v_cvt_pk_bf16_f32 {v(A+q)}, {v(A+2*q)}, {v(A+2*q+1)}") for q in range(4)]
            ops.append(lambda A=A, g=g: e.op(f"buffer_store_dwordx4 {v(A,4)}, {v(V_ST1 + (g >> 1))}, {s(S_WS,4)}, {s(S_ST1B if g & 1 else S_ST1)} offen sc1", tag="st1"))
            groups.append(ops)
        return groups
    def p2_epilogue_ops(self):
        e = self.e
        groups = []
        for g in range(8):
            A = ACC[1] + 8 * g
            ops = [lambda A=A, q=q: e.op(f"v_cvt_pk_bf16_f32 {v(A+q)}, {v(A+2*q)}, {v(A+2*q+1)}") for q in range(4)]
            ops += [lambda A=A, q=q: e.op(f"v_pk_max_i16 {v(A+q)}, {v(A+q)}, 0") for q in range(4)]
            ops.append(lambda A=A, g=g: e.op(f"buffer_store_dwordx4 {v(A,4)}, {v(V_LH)}, {s(S_WS,4)}, {s(S_ST2B if g & 1 else S_ST2)} offen offset:{(g >> 2) * 2048 + ((g >> 1) & 1) * 128} sc1", tag="st2"))
            groups.append(ops)
        return groups

    def stage1_stream(self, fill, m0, m1, swap):
        e = self.e
        for m in range(m0, m1):
            st, i = divmod(m, 32)
            j, tt, ks = self.tile_of(i)
            if ("w", st, 2 * j + ks) in e.lg or ("x", st, ks, tt) in e.lg:
                e.wait(lg=[("w", st, 2 * j + 1), ("x", st, 1, tt | 1)])
            acc = v(self.accreg(st // 10, tt, j, swap), 4)
            wf = v(V_FR + 4 * (2 * j + ks), 4)
            xf = r(self.xreg(self.xst(st), ks, tt), 4)
            c = "0" if (st % 10 == 0 and i % 2 == 0) else acc
            if swap: e.op(f"v_mfma_f32_16x16x32_bf16 {acc}, {xf}, {wf}, {c}")
            else: e.op(f"v_mfma_f32_16x16x32_bf16 {acc}, {wf}, {xf}, {c}")
            for fn in fill[m]: fn()

    def ones_init(self):
        e = self.e
        def first():
            e.op(f"s_mov_b32 {s(S_MASK)}, 0x11000000")
            e.op(f"s_mov_b32 {s(S_MASK+1)}, 0x11000000")
            e.op(f"v_mov_b32 {v(VF)}, 0x3f803f80")
        return [first, lambda: e.op(f"v_cndmask_b32 {v(VF)}, 0, {v(VF)}, {s(S_MASK,2)}")] + \
               [lambda i=i: e.op(f"v_mov_b32 {v(VF + i)}, {v(VF)}") for i in range(1, 8)]

    def stage1(self):
        e = self.e
        lead = self.LEAD
        nc, c0, ne = self.o("tnc", 0), self.o("tch0", 2), self.o("tne", 1)
        S_TX, S_TW = 98, 99
        tstr = self.o("tstr", nc)
        def touch_setup():
            e.op(f"s_lshl2_add_u32 {s(S_T0)}, s2, {s(S_WAVE)}")
            nx, nw_ = -(-2048 // 960), 2 * nc
            e.op(f"v_min_u32 {v(30)}, {nx * nc - 1}, {v(V_LANE)}")
            e.op(f"v_mul_u32_u24 {v(31)}, {-(-65536 // nc)}, {v(30)}")
            e.op(f"v_lshrrev_b32 {v(31)}, 16, {v(31)}")
            e.op(f"v_mul_u32_u24 {v(31)}, {10 - nc}, {v(31)}")
            e.op(f"v_add_lshl_u32 {v(30)}, {v(30)}, {v(31)}, 7")
            e.op(f"s_mul_i32 {s(S_TX)}, {s(S_T0)}, {nx * 1280}")
            e.op(f"v_min_u32 {v(31)}, {nw_ - 1}, {v(V_LANE)}")
            e.op(f"v_lshlrev_b32 {v(31)}, 7, {v(31)}")
            e.op(f"s_mul_i32 {s(S_TW)}, {s(S_T0)}, {nw_ * 128}")
            e.op(f"s_add_u32 {s(S_TW)}, {s(S_TW)}, {c0 * 64 * 3840}")
        def touch(k):
            if k == 0: touch_setup()
            e.op(f"buffer_load_dword {v(28)}, {v(30)}, {s(S_X,4)}, {s(S_TX)} offen offset:{(c0 + k * tstr) * 128}")
            if k: e.op(f"s_add_u32 {s(S_TW)}, {s(S_TW)}, {tstr * 64 * 3840}")
            e.op(f"buffer_load_dword {v(29)}, {v(31)}, {s(S_WA,4)}, {s(S_TW)} offen")
        tpos = [self.o("tpos", 0) + k * self.o("tstep", 1) for k in range(ne)] if nc else []
        def touch_at(p):
            for k in range(len(tpos)):
                if tpos[k] == p: touch(k)
        touch_at(-1)
        z5 = self.o("zoom", 0) == 5 and self.stamps
        if z5: e.op("s_memrealtime s[98:99]")
        for f in self.dmas(0): f()
        if z5: e.op("s_memrealtime s[100:101]")
        touch_at(0)
        self.pi_setup(None, True)
        self.common_setup()
        self.stage1_tables()
        d1 = self.dmas(1)
        for f in d1[:4]: f()
        self.rt_tables(L_RT)
        lsu = self.o("lsu", 4)
        if not lsu: self.late_lane_tables()
        for f in d1[4:]: f()
        touch_at(1)
        if z5: self.stamp(3, True)
        e.wait(lg="all")
        if z5:
            e.op(f"v_writelane_b32 {v(V_STAMP)}, s98, 1")
            e.op(f"v_writelane_b32 {v(V_STAMP)}, s100, 2")
            self.stamp(4, True)
        self.flush_stamp()
        rtp = self.o("rtpos", 1)
        def rt_go():
            e.op(f"s_mul_i32 {s(S_T5)}, {s(S_WAVE)}, 2560")
            self.rt_loads(L_RT, S_RTSRC, S_T5)
        def gw_go():
            e.op(f"s_mov_b64 {s(S_MISC,2)}, {s(S_PG,2)}")
            e.op(f"s_cmp_eq_u32 {s(S_CG2)}, 14")
            e.op(f"s_cselect_b32 {s(S_MISC+2)}, 1280, 0")
            e.op(f"s_lshr_b32 {s(S_T5)}, {s(S_WM0)}, 1")
            e.op(f"s_add_u32 m0, {s(S_T5)}, {L_GW}")
            for n in range(2):
                e.op(f"buffer_load_dwordx4 {v(V_L16)}, {s(S_MISC,4)}, 0 offen offset:{n * 1024} lds", tag="gw")
        e.op(f"s_lshr_b32 {s(S_CG2)}, {s(S_BITS)}, 28")
        self.rt_srd()
        if rtp == 1: rt_go()
        self.flag_init()
        if not lsu:
            self.w1_columns(); self.late_table_use()
        fill, used = self.stage1_fill()
        vfill = {m: [] for m in range(-1, 640)}
        G2 = lambda k, d: 2 * self.o(k, d)
        dq = []
        for st in range(2, 20):
            d = self.dmas(st)
            rel = 32 * (st - (2 if st < 10 else 4)) - lead + 1
            g0 = max(32 * (st - 2) - lead + 1, 0); g1 = 32 * (st - 1) - lead - 2
            dq += [(rel, g0 + i * (g1 - g0) // len(d), 72, f) for i, f in enumerate(d)]
            if st == rtp: dq.append((rel, g1 - 1, 180, rt_go))
            if st == 9: dq.append((rel, g1 - 1, 40, gw_go))
            if st in tpos: dq.append((rel, g1 - 1, 40, lambda st=st: touch_at(st)))
        pA, cA = G2("pollA", 263), G2("chkA", 280)
        assert cA > 32 * 16 - lead
        kv = self.kvq_loads()
        dq += [(cA + 1, cA + 1 + i * (634 - cA) // len(kv), 72, f) for i, f in enumerate(kv)]
        rs0 = G2("rs0", 16 * rtp + 30)
        rr0 = 32 * (rtp + 2) - lead - 6 if rs0 >= 32 * (rtp + 2) - lead else 32 * (rtp + 1) - lead + 4
        assert rs0 > rr0 + 4
        for i, f in enumerate(self.rt_reads()):
            fill[rr0 + i // 2].append(f); used[rr0 + i // 2] += 1
        sq = [(rs0 + 12 * i, rs0 + 12 * i, 128, f) for i, f in enumerate(self.rt_stores())]
        sq.append((rs0 + 28, rs0 + 28, 20, self.nonce_issue))
        pd = (rs0 + 28 + 48 + lead + 31) // 32 * 32 - lead
        pd = max(pd, 32 * self.o("pdst", 0) - lead)
        fill[pd].insert(0, self.nonce_check)
        sq.append((pd + 1, pd + 1, 20, lambda: self.publish(S_RTF)))
        sp, e0 = G2("epi", 4), self.o("e0", 321)
        assert e0 >= 306 and e0 + 4 * sp > 321
        epi1 = self.p1_epilogue_ops()
        self.epi1_flat = sum(epi1, [])
        for g, ops in enumerate(epi1): sq.append((e0 + sp * (g + 1), e0 + sp * (g + 1), self.o("stc", 160), ops[-1]))
        def pub_a():
            e.wait(vm="st1")
            self.publish(S_FLA)
            if self.o("stpub", 0): self.stamp(1)
        pD, cD = G2("pollD", 222), G2("chkD", 240)
        assert cD >= 32 * 15
        sq += sorted([(pD, pD, 20, lambda: self.poll_issue(V_FD)), (G2("pubA", 216), G2("pubA", 216), 20, pub_a)], key=lambda x: x[0])
        vfill[cD].append(lambda: self.poll_check(V_FD, 1)); used[cD] += 3
        sq.append((pA, pA, 30, lambda: self.poll_issue(V_FA)))
        if self.o("pollA2", 0): sq.append((G2("pollA2", 0), G2("pollA2", 0), 30, lambda: self.poll_again(V_FA)))
        vfill[cA].append(lambda: self.poll_check(V_FA, 0)); used[cA] += 3
        vfill[cA].append(lambda: self.stamp(3))
        ew = sum([self.w_loads(n) for n in self.EARLY_W], [])
        wq = [(cD + 1, cA - 4 * (len(ew) - i), 72, f) for i, f in enumerate(ew)]
        self.vm_schedule(fill, used, [dq, sq, wq], 0, 640, self.o("thr", 80))
        if lsu: self.va_place(vfill, used, self.capture(self.w1_columns, self.late_lane_tables, self.late_table_use), self.o("lsu0", 0) * 32, 32 * lsu)
        for g, ops in enumerate(epi1): self.va_place(vfill, used, ops[:-1], e0 + sp * g, e0 + sp * (g + 1))
        self.va_place(vfill, used, self.ones_init(), e0 + sp * 8 + 8, e0 + sp * 8 + 40)
        epi2 = self.p2_epilogue_ops()
        self.p2_stores_left = [g[-1] for g in epi2]
        va = sum([g[:-1] for g in epi2], [])
        if self.o("qh", 1): self.va_place(vfill, used, self.q_mask_ops(), 604, 626)
        nh = self.o("p2h", 24)
        self.va_place(vfill, used, va[:nh], 626, 640)
        self.p2_valu_left = va[nh:]
        z = self.o("zoom", 0)
        if z in (1, 2):
            for k in range(11):
                m = min(320 * (z - 1) + 32 * k - 1, 639 if z == 2 else 318)
                if z == 2 and k == 0: m = 320
                vfill[m].append(lambda k=k: self.stamp(1 + k, True))
            vfill[319].append(self.flush_stamp)
        for m in fill: fill[m] += vfill[m]
        done = [f for m in range(320) for f in fill[m]]
        self.epi1_left = [f for f in self.epi1_flat if f not in done]
        if z5: self.stamp(5, True)
        for fn in fill[-1]: fn()
        if z5:
            self.stamp(6, True); self.flush_stamp()
        if z == 1: self.flush_stamp()
        self.stamp(1)
        e.op(f"s_cmp_ge_u32 {s(S_CG)}, 10")
        e.op("s_cbranch_scc1 L_p1v")
        snap = e.snapshot()
        self.stage1_stream(fill, 0, 320, False)
        e.op("s_branch L_p2")
        after = e.snapshot()
        e.restore(snap)
        e.label("L_p1v")
        self.stage1_stream(fill, 0, 320, True)
        assert after[0] == e.vm and after[1] == e.lg
        e.label("L_p2")
        e.op(f"s_cmp_eq_u32 {s(S_CG2)}, 14")
        e.op("s_cbranch_scc1 L_gate")
        self.gate_snap = e.snapshot()
        self.phase = 1
        self.stamp(2)
        self.wv = None
        self.stage1_stream(fill, 320, 640, False)
        self.flush_stamp()

    def side_tail(self, early=True):
        e = self.e
        if early:
            if self.o("go", 1) & 1:
                e.op(f"s_sub_u32 {s(S_T1)}, s2, 240")
                e.op(f"s_lshl4_add_u32 {s(S_T1)}, {s(S_T1)}, {s(S_WAVE)}")
                e.op(f"s_lshl3_add_u32 {s(S_T1)}, {s(S_T1)}, {FL_GO}")
                e.op(f"v_mov_b32 {v(28)}, {s(S_T1)}")
                self.poll_issue(28); self.poll_check(28, 5)
            self.poll_issue(V_FD)
            for f in self.ones_init(): f()
            self.poll_check(V_FD, 1)
            self.wv = None
            ew = sum([self.w_loads(n) for n in self.EARLY_W], [])
            if self.o("go", 1) & 2:
                for f in ew: f()
                e.op(f"v_mov_b32 {v(28)}, {s(S_PFG)}")
                self.poll_issue(28); self.poll_check(28, 5)
                self.poll_issue(V_FA)
            else:
                for f in ew[:self.o("spa", 20)]: f()
                self.poll_issue(V_FA)
                for f in ew[self.o("spa", 20):]: f()
        self.poll_check(V_FA, 0)
        for f in self.kvq_loads(): f()
        if self.o("qh", 1):
            for f in self.q_mask_ops(): f()
        e.wait(lg="all")
        n = min(len(self.att_vm), 21)
        assert self.o('abl', 0) or n >= 10 and e.vm[-n:] == self.att_vm[-n:] and all(t[0] == "w" or t == "poll2" for t in self.att_vm[:-n])
        e.op("s_branch L_att")

    def gate(self):
        e = self.e
        T1, T2, T3 = v(V_T1), v(V_T2), v(V_T3)
        e.restore(self.gate_snap)
        e.label("L_gate")
        self.phase = 1
        self.stamp(1)
        self.poll_issue(V_FD)
        def go():
            e.op(f"s_lshr_b32 {s(S_T1)}, {s(S_TB1)}, 2")
            e.op(f"s_lshl4_add_u32 {s(S_T1)}, {s(S_T1)}, {s(S_WAVE)}")
            e.op(f"s_lshl3_add_u32 {s(S_T1)}, {s(S_T1)}, {FL_GO}")
            self.publish(S_T1)
        if self.o("gok", 2) < 0: go()
        e.op(f"s_lshr_b32 {s(S_T3)}, {s(S_WM0)}, 1")
        e.op(f"s_add_u32 {s(S_T3)}, {s(S_T3)}, {L_GW}")
        e.op(f"v_lshrrev_b32 {T1}, 4, {v(V_LANE)}")
        e.op(f"v_lshl_add_u32 {T1}, {T1}, 4, {s(S_T3)}")
        assert "gw" in e.all_tags
        e.wait(vm="gw", lg="all")
        epi = list(self.epi1_left)
        self.wv = None
        ew = sum([self.w_loads(n) for n in self.EARLY_W], [])
        G = 32
        order = [9, 0, 1, 2, 7, 3, 4, 5, 6, 8]
        def gread(k):
            if k % 2 == 0:
                self.pi_off(S_T4, order[k // 2], 0)
                e.op(f"v_add_u32 {T2}, {s(S_T4)}, {T1}")
            e.op(f"ds_read_b128 {v(G + 4 * (k % 4), 4)}, {T2} offset:{64 * (k % 2)}", tag=("g", k))
        for k in range(4): gread(k)
        while len(epi) > 13 * (8 - self.o("gpre", 4)): epi.pop(0)()
        for k in range(20):
            if k == self.o("gpub", 14):
                assert not epi
                e.wait(vm="st1")
                self.publish(S_FLA)
                self.stamp(2)
                self.poll_check(V_FD, 1)
            if k == self.o("gok", 2): go()
            if k > max(self.o("gpub", 14), 7): ew.pop(0)()
            xs, ks = order[k // 2], k % 2
            e.wait(lg=[("g", k), ("x", xs, ks, 3)])
            for tt in range(4):
                e.op(f"v_mfma_f32_16x16x32_bf16 {v(48 + 4 * tt, 4)}, {v(G + 4 * (k % 4), 4)}, {r(self.xreg(xs, ks, tt), 4)}, {'0' if k == 0 else v(48 + 4 * tt, 4)}")
                if k in (2, 3, 10, 11): self.x_read(7 if k < 8 else 5, ks, tt)
                if tt == 3 and k + 4 < 20: gread(k + 4)
                for _ in range(2 if tt < 3 else 0):
                    if epi: epi.pop(0)()
        assert not epi
        e.op("s_barrier")
        for f in self.ones_init(): f()
        e.op(f"s_bitcmp1_b32 {s(S_WAVE)}, 0")
        e.op(f"s_cselect_b64 {s(S_MASK,2)}, -1, 0")
        e.op("s_mov_b32 vcc_lo, 0xffff0000")
        e.op("s_mov_b32 vcc_hi, 0xffff0000")
        e.op(f"v_cndmask_b32 v0, v48, v56, {s(S_MASK,2)}")
        e.op(f"v_cndmask_b32 v4, v52, v60, {s(S_MASK,2)}")
        e.op("v_cndmask_b32 v0, v0, v4, vcc")
        e.op(f"v_min_f32 {T1}, {f32(30.0)}, v0")
        e.op(f"v_mul_f32 {T1}, {f32(LOG2E)}, {T1}")
        e.op(f"v_exp_f32 {T1}, {T1}")
        e.op(f"v_add_f32 {T2}, 1.0, {T1}")
        e.op(f"v_rcp_f32 {T2}, {T2}")
        e.op(f"v_cmp_gt_u32 vcc, 32, {v(V_LANE)}")
        e.op(f"v_and_b32 {T3}, 39, {v(V_LANE)}")
        e.op(f"v_bfe_u32 v1, {v(V_LANE)}, 3, 1")
        e.op(f"v_lshl_add_u32 {T3}, v1, 4, {T3}")
        e.op(f"v_bfe_u32 v1, {v(V_LANE)}, 4, 1")
        e.op(f"v_lshl_add_u32 {T3}, v1, 3, {T3}")
        e.op(f"v_lshlrev_b32 {T3}, 2, {T3}")
        e.op(f"s_lshl_b32 {s(S_T1)}, {s(S_TB1)}, 8")
        e.op(f"s_add_u32 {s(S_T1)}, {s(S_T1)}, {WS_G}")
        e.op(f"v_cndmask_b32 {T1}, {T2}, {T1}, vcc")
        e.op(f"buffer_store_dword {T1}, {T3}, {s(S_WS,4)}, {s(S_T1)} offen sc1", tag="gs")
        e.op(f"v_bfe_u32 {T2}, {v(V_LANE)}, 2, 2")
        e.op(f"v_and_b32 {T3}, 3, {v(V_LANE)}")
        e.op(f"v_lshlrev_b32 {T3}, 3, {T3}")
        e.op(f"v_lshl_add_u32 {T2}, {T2}, 7, {T3}")
        e.op(f"v_add_u32 {v(225)}, {FL_D + 60 * 128}, {T2}")
        self.poll_issue(225)
        for f in ew: f()
        self.poll_check(225, 4)
        self.poll_issue(V_FA)
        e.op(f"s_or_b32 {s(S_T1)}, {s(S_FLA)}, {15 * 128}")
        self.publish(S_T1)
        self.stamp(3)
        self.flush_stamp()
        self.side_tail(False)

    def spare(self):
        e = self.e
        e.restore(self.spare_snap)
        e.label("L_spare")
        L = v(V_LANE); T0, T1, T2, T3 = v(V_T0), v(V_T1), v(V_T2), v(V_T3)
        e.op(f"s_memrealtime {s(S_NONCE,2)}")
        e.op(f"s_lshl_b32 {s(S_T0)}, {s(S_WAVE)}, 3")
        e.op(f"s_lshr_b32 {s(S_T0)}, {hex(32 | (40 << 8) | (16 << 16) | (48 << 24))}, {s(S_T0)}")
        e.op(f"s_and_b32 {s(S_T0)}, {s(S_T0)}, 0xff")
        e.op(f"s_load_dwordx2 {s(S_MISC,2)}, s[0:1], {s(S_T0)}")
        self.common_setup()
        e.op(f"s_mov_b32 {s(S_MISC+2)}, {640 * 3456}")
        e.op(f"s_cmp_eq_u32 {s(S_WAVE)}, 2")
        e.op(f"s_cselect_b32 {s(S_MISC+2)}, {640 * 1280}, {s(S_MISC+2)}")
        e.op(f"s_cmp_eq_u32 {s(S_WAVE)}, 3")
        e.op(f"s_cselect_b32 {s(S_MISC+2)}, 1280, {s(S_MISC+2)}")
        e.op(f"s_cselect_b32 {s(S_T2)}, 7, 16")
        e.op(f"v_lshlrev_b32 {T0}, {s(S_T2)}, {L}")
        e.op(f"s_sub_u32 {s(S_T1)}, s2, 240")
        e.op(f"s_lshl2_add_u32 {s(S_T1)}, {s(S_T1)}, {s(S_WAVE)}")
        e.op(f"s_lshl_b32 {s(S_T2)}, {s(S_T1)}, 13")
        e.op(f"v_lshl_add_u32 {v(225)}, {L}, 7, {s(S_T2)}")
        e.wait(lg="all")
        self.table_loads()
        e.op(f"s_or_b32 {s(S_T2)}, {s(S_NONCE)}, 1")
        e.op(f"v_mov_b32 {v(V_NONCE)}, {s(S_T2)}")
        e.op(f"v_mov_b32 {v(V_NONCE+1)}, {s(S_NONCE+1)}")
        e.op(f"s_cmp_lg_u32 {s(S_T1)}, 0")
        e.op("s_cbranch_scc1 L_nononce")
        e.op("s_mov_b64 exec, 1")
        e.op(f"buffer_store_dwordx2 {v(V_NONCE,2)}, {v(V_ZERO)}, {s(S_DBG,4)}, 0 offen sc1")
        e.op("s_mov_b64 exec, -1")
        e.label("L_nononce")
        e.op(f"buffer_load_dword {v(224)}, {T0}, {s(S_MISC,4)}, 0 offen")
        def touch(m):
            m = m + self.o("tb4", 3) if m >= 0 else -1 - m
            if self.o("pf2", 1) and m < 5:
                e.op(f"s_mov_b32 {s(S_T2)}, {m * 4096 * 128}")
                e.op(f"buffer_load_dword {v(224)}, {v(225)}, {s(S_WB,4)}, {s(S_T2)} offen")
        if self.o("pf49", 0):
            c = self.o("pf49", 0)
            e.op(f"v_lshrrev_b32 {T2}, 8, {v(225)}")
            e.op(f"v_mul_u32_u24 {T2}, 1280, {T2}")
            e.op(f"v_bfe_u32 {T3}, {v(225)}, 7, 1")
            e.op(f"v_mul_u32_u24 {T3}, 640, {T3}")
            e.op(f"v_add_u32 {T2}, {T2}, {T3}")
            e.op(f"buffer_load_dword {v(224)}, {T2}, {s(S_X,4)}, 0 offen offset:{c * 128}")
            e.op(f"v_lshrrev_b32 {T2}, 8, {v(225)}")
            e.op(f"v_min_u32 {T2}, 1919, {T2}")
            e.op(f"v_lshlrev_b32 {T2}, 7, {T2}")
            e.op(f"v_mul_u32_u24 {T3}, {5 * 64 * 3840 // 640}, {T3}")
            e.op(f"v_add_u32 {T2}, {T2}, {T3}")
            e.op(f"s_mov_b32 {s(S_T2)}, {c * 64 * 3840}")
            e.op(f"buffer_load_dword {v(224)}, {T2}, {s(S_WA,4)}, {s(S_T2)} offen")
        for m in range(self.o("tb4", 3)): touch(-1 - m)
        e.op(f"v_mov_b32 {v(V_LH)}, 0")
        self.rt_tables(0)
        e.wait(lg="all")
        e.op(f"s_mul_i32 {s(S_T0)}, {s(S_WAVE)}, 2560")
        for m, src in enumerate((S_RTSRC, S_ST1, S_ST1B, S_SCALE)):
            self.rt_srd(S_TB1, m)
            self.rt_loads(m * 10240, src, S_T0)
        self.flag_init(True)
        touch(0)
        self.late_lane_tables()
        self.late_table_use()
        e.wait(vm="rl")
        e.op("s_barrier")
        self.stamp(1)
        touch(1)
        for m, so in enumerate((S_RTS, S_ST2, S_ST2B, S_FLA)):
            for f in self.rt_reads(m * 10240, 96 + 12 * m) + self.rt_stores(96 + 12 * m, so): f()
        for so in (S_ST2, S_ST2B, S_FLA): e.op(f"s_mov_b32 {s(so)}, {OOB}")
        self.nonce_issue()
        touch(2)
        self.nonce_check()
        e.op("s_barrier")
        self.publish(S_RTF)
        self.stamp(3)
        touch(3)
        touch(4)
        self.stamp(2)
        self.flush_stamp()
        self.side_tail()

    def k_reads(self, u):
        h, j = divmod(u, 9)
        for ff in range(2):
            self.e.op(f"ds_read_b128 {v(KF + 4 * ff, 4)}, {v(V_KA)} offset:{(h + ff) * 12288 + j * 1024}", tag="k")
    def v_reads(self, u):
        h, j = divmod(u, 9)
        e = self.e
        e.op(f"s_mov_b64 exec, {s(S_VM,2)}")
        for ss in range(2):
            e.op(f"ds_read_b128 {v(VF + 4 * ss, 4)}, {v(V_VA)} offset:{j * 3072 + ss * 1280 + h * 320}", tag="v")
        e.op("s_mov_b64 exec, -1")
    def qk(self, u, part, S, lo=False):
        h, j = divmod(u, 9)
        c = v(S, 16) if part else v(CD, 16) if j == 8 else v(CE, 16) if (j == 0 or lo) else "0"
        self.e.op(f"v_mfma_f32_32x32x16_bf16 {v(S,16)}, {v(KF + 4 * part, 4)}, {v(QM + 8 * h + 4 * part, 4)}, {c}")
    def pv(self, u, part, S, first):
        O = v(OO[u // 9], 16)
        self.e.op(f"v_mfma_f32_32x32x16_bf16 {O}, {v(VF + 4 * part, 4)}, {v(S + 4 * part, 4)}, {'0' if first else O}")

    def q_mask_ops(self):
        e = self.e
        M1, M3, M4 = S_MASK, S_PHI + 2, S_PHI + 4
        def masks():
            e.op(f"s_bitcmp1_b32 {s(S_BITS)}, 0")
            e.op(f"s_cselect_b64 {s(M1,2)}, 0, -1")
            e.op(f"s_cselect_b32 {s(M3+1)}, -1, 0")
            e.op(f"s_cselect_b32 {s(M4)}, -1, 0")
        ops = [masks, lambda: e.op(f"s_mov_b32 {s(M3)}, -1"), lambda: e.op(f"s_mov_b32 {s(M4+1)}, 0"), lambda: e.wait(vm="q")]
        how = {(0, 0, 0): (M1, 1), (0, 0, 1): None, (0, 1, 0): (M3, 1), (0, 1, 1): (M4, 1),
               (1, 0, 0): (M3, 0), (1, 0, 1): (M4, 0), (1, 1, 0): None, (1, 1, 1): (M1, 0)}
        val = {M1: lambda par, hf: par == 0, M3: lambda par, hf: hf == 0 or par == 1, M4: lambda par, hf: par == 1 and hf == 0}
        for (h, ff, slot), hw in how.items():
            for par in range(2):
                for hf in range(2):
                    keep = 0 <= 4 * (h + ff) + 2 * slot + hf - 2 * par - 5 * h < 5
                    assert keep == (True if hw is None else val[hw[0]](par, hf) == bool(hw[1]))
            for d in range(2):
                dst, src = v(QM + 8 * h + 4 * ff + 2 * slot + d), v(VQ + 4 * (h + ff) + 2 * slot + d)
                if hw is None: t = f"v_mov_b32 {dst}, {src}"
                elif hw[1]: t = f"v_cndmask_b32 {dst}, 0, {src}, {s(hw[0],2)}"
                else: t = f"v_cndmask_b32 {dst}, {src}, 0, {s(hw[0],2)}"
                ops.append(lambda t=t: e.op(t))
        return ops

    def attention(self):
        e = self.e
        e.label("L_att")
        self.phase = 2
        self.att_vm = list(e.vm)
        self.stamp(4)
        T0 = v(V_T0)
        stores = list(self.p2_stores_left)
        if not self.o("qh", 1):
            for f in self.q_mask_ops(): f()
        e.wait(vm="kd")
        e.op("s_barrier")
        self.k_reads(0)
        for f in self.p2_valu_left: f()
        for _ in range(self.o("ns1", 1)): stores.pop(0)()
        self.stamp(5)
        side = {(u, k): [] for u in range(18) for k in range(4)}
        wl = sum([self.w_loads(n) for n in range(NWR) if n not in self.EARLY_W], []) + self.wl_dmas()
        slots = [(u, k) for u in range(18) for k in range(4)]
        sst = self.o("sst", 1)
        for i, f in enumerate(stores): side[slots[sst * i]].append(f)
        def pub_c():
            e.wait(vm="st2")
            self.publish(S_FLA, 32)
        pubC, pC, cC = self.o("pubC", 24), self.o("pollC", 50), self.o("chkC", 61)
        side[slots[pubC]].append(pub_c)
        side[slots[pC]].append(lambda: self.poll_issue(V_FC))
        if self.o("pollC2", 0): side[slots[self.o("pollC2", 0)]].append(lambda: self.poll_again(V_FC))
        def chk_c():
            self.poll_check(V_FC, 2); self.stamp(6)
            e.op(f"buffer_load_dword {v(V_R)}, {v(V_R)}, {s(S_WS,4)}, 0 offen sc1", tag="r")
        hl = [(n + k, t) for n in (0, 2) for t in range(4) for k in range(2)]
        taken = {pubC, pC, cC} | {sst * i for i in range(len(stores))}
        skip = self.o("wskip", 0)
        acc, rate = 0, self.o("wrate", 16)
        for i, x in enumerate(slots):
            if i == cC: side[x].append(chk_c)
            if i in taken: continue
            skip -= 1
            if skip >= 0: continue
            acc += rate
            if acc < 16: continue
            acc -= 16
            if wl: side[x].append(wl.pop(0))
            elif i > cC and hl:
                n, t = hl.pop(0)
                side[x].append(lambda n=n, t=t: self.h_load(n, t))
        assert not wl
        self.h_left = hl
        def fill_ce(val):
            for i in range(16): e.op(f"v_mov_b32 {v(CE + i)}, {val}")
        def steps(lo):
            def open_at(jn):
                st, bk = self.L("open"), self.L("open_ok")
                e.op(f"s_cmp_eq_u32 {s(S_TQ)}, {8 - jn}")
                e.op(f"s_cbranch_scc1 {st}")
                e.label(bk)
                def stub():
                    e.label(st, reset=True)
                    e.op("s_nop 7")
                    fill_ce(0)
                    e.op("s_nop 0")
                    e.op(f"s_branch {bk}")
                self.stubs.append(stub)
            live = lambda u: 0 <= u < 18 and not (lo and u % 9 == 0 and self.o("losk", 1))
            if lo: fill_ce(hex(NEGBIG))
            e.wait(lg="k")
            if live(0):
                self.qk(0, 0, SB[0], lo); self.qk(0, 1, SB[0], lo)
            self.k_reads(1)
            if lo: open_at(1)
            for u in range(18):
                if self.o("zoom", 0) == 3 and u % 2 == 0: self.stamp(1 + u // 2, True)
                S, Sn, Sp = SB[u % 3], SB[(u + 1) % 3], SB[(u - 1) % 3]
                ex = lambda i: live(u) and e.op(f"v_exp_f32 {v(S + i)}, {v(S + i)}")
                cv = lambda i: live(u) and e.op(f"v_cvt_pk_bf16_f32 {v(S + i)}, {v(S + 2 * i)}, {v(S + 2 * i + 1)}")
                if live(u + 1):
                    e.wait(lg="k")
                    self.qk(u + 1, 0, Sn, lo)
                for f in side[(u, 0)]: f()
                for i in range(0, 4): ex(i)
                if live(u + 1): self.qk(u + 1, 1, Sn, lo)
                e.wait(lg="v")
                if live(u + 2): self.k_reads(u + 2)
                for f in side[(u, 1)]: f()
                for i in range(4, 8): ex(i)
                cv(0); cv(1)
                if live(u - 1): self.pv(u - 1, 0, Sp, (u - 1) % 9 == 0 or not live(u - 2))
                if lo and u + 2 == 9: fill_ce(hex(NEGBIG))
                if lo and u + 2 < 18 and 1 <= (u + 2) % 9 <= 7: open_at((u + 2) % 9)
                for f in side[(u, 2)]: f()
                for i in range(8, 12): ex(i)
                cv(2); cv(3)
                if live(u - 1): self.pv(u - 1, 1, Sp, False)
                if u > 0 and live(u): self.v_reads(u)
                for f in side[(u, 3)]: f()
                for i in range(12, 16): ex(i)
                for i in range(4, 8): cv(i)
                if u == 0:
                    e.wait(vm="vd")
                    e.op("s_barrier")
                    if live(0): self.v_reads(0)
            e.wait(lg="v")
            self.pv(17, 0, SB[17 % 3], False); self.pv(17, 1, SB[17 % 3], False)
            self.flush_stamp()
        self.flush_stamp()
        e.op(f"s_cmp_lt_u32 {s(S_TQ)}, 8")
        e.op("s_cbranch_scc1 L_att_lo")
        snap0, wv0 = e.snapshot(), self.wv
        steps(False)
        snap1 = e.snapshot()
        def att_lo():
            e.restore(snap0); self.wv = wv0
            e.label("L_att_lo")
            self.phase = 2
            steps(True)
            assert e.vm == snap1[0] and e.lg == snap1[1]
            e.op("s_branch L_att_join")
        self.att_lo = att_lo
        e.label("L_att_join")
        self.stamp(7)
        for h in range(2):
            O = OO[h]
            st, bk = self.L("slow"), self.L("slow_ok")
            e.op(f"v_subrev_u32 {T0}, 0x2f800000, {v(O + 12)}")
            e.op(f"v_cmp_le_u32 vcc, 0x20000000, {T0}")
            if self.o("forceslow", 0): e.op("s_mov_b64 vcc, -1")
            if self.o("abl", 0): e.op("s_mov_b64 vcc, 0")
            for _ in range(2 - h):
                if self.h_left:
                    n, t = self.h_left.pop(0); self.h_load(n, t)
            e.op(f"s_cbranch_vccnz {st}")
            e.label(bk)
            self.cold.append(lambda st=st, bk=bk, h=h: self.slow_head(h, st, bk))
        OP = 0
        ep = []
        A = lambda t, tag=None: ep.append(lambda: e.op(t, tag=tag))
        for h in range(2): A(f"v_rcp_f32 {v(V_T2 + h)}, {v(OO[h] + 12)}")
        ep.append(lambda: e.wait(vm="r"))
        for h in range(2): A(f"v_mul_f32 {v(V_T2 + h)}, {v(V_T2 + h)}, {v(V_R)}")
        for h in range(2):
            O = OO[h]
            for i in range(8): A(f"v_mul_f32 {v(O + i)}, {v(O + i)}, {v(V_T2 + h)}")
            for i in range(4): A(f"v_cvt_pk_bf16_f32 {v(OP + 4 * h + i)}, {v(O + 2 * i)}, {v(O + 2 * i + 1)}")
            A(f"buffer_store_dwordx4 {v(OP + 4 * h, 4)}, {v(V_L16)}, {s(S_WS,4)}, {s(S_OST)} offen offset:{h * 1024} sc1", "sto")
        for h in range(2):
            O = OO[h]
            for i in range(8, 12): A(f"v_mul_f32 {v(O + i)}, {v(O + i)}, {v(V_T2 + h)}")
            for i in range(2): A(f"v_cvt_pk_bf16_f32 {v(OP + 8 + 2 * h + i)}, {v(O + 8 + 2 * i)}, {v(O + 9 + 2 * i)}")
        A(f"buffer_store_dwordx4 {v(OP + 8, 4)}, {v(V_L16H)}, {s(S_WS,4)}, {s(S_OST2)} offen sc1", "sto")
        self.o_epilogue = ep

    def slow_head(self, h, st, bk):
        e = self.e
        e.label(st, reset=True)
        e.vm, e.lg = [], []
        T0, MX = v(V_T0), v(V_T1)
        O, S = OO[h], SB[0]
        e.op("s_nop 15")
        e.op(f"v_mov_b32 {MX}, {hex(NEGBIG)}")
        for i in range(16): e.op(f"v_mov_b32 {v(O + i)}, 0")
        for ps in range(2):
            for j in range(9):
                u = 9 * h + j
                sk = self.L("sk")
                if j < 8:
                    e.op(f"s_cmp_lt_u32 {s(S_TQ)}, {8 - j}")
                    e.op(f"s_cbranch_scc1 {sk}")
                if ps: self.v_reads(u)
                self.k_reads(u)
                e.wait(lg="all")
                self.qk(u, 0, S); self.qk(u, 1, S)
                if ps == 0:
                    for i in range(8): e.op(f"v_max3_f32 {MX}, {MX}, {v(S + 2 * i)}, {v(S + 2 * i + 1)}")
                else:
                    for i in range(16): e.op(f"v_sub_f32 {v(S + i)}, {v(S + i)}, {MX}")
                    for i in range(16): e.op(f"v_exp_f32 {v(S + i)}, {v(S + i)}")
                    for i in range(8): e.op(f"v_cvt_pk_bf16_f32 {v(S + i)}, {v(S + 2 * i)}, {v(S + 2 * i + 1)}")
                    self.pv(u, 0, S, False); self.pv(u, 1, S, False)
                    e.op("s_nop 7")
                e.label(sk)
            if ps == 0:
                e.op(f"v_mov_b32 {T0}, {MX}")
                e.op(f"v_permlane32_swap_b32 {T0}, {MX}")
                e.op("s_nop 1")
                e.op(f"v_max_f32 {MX}, {T0}, {MX}")
        e.op("s_nop 15")
        e.op(f"s_branch {bk}")

    def stage3(self):
        e = self.e
        L = v(V_LANE); T0, T1, T2, T3 = v(V_T0), v(V_T1), v(V_T2), v(V_T3)
        self.phase = 3
        self.stamp(8)
        e.op(f"s_load_dwordx8 {s(TB,8)}, {s(S_TAB,2)}, 128")
        e.op(f"s_load_dwordx4 {s(TB+8,4)}, {s(S_TAB,2)}, 160")
        e.op(f"s_load_dword {s(S_XM0)}, {s(S_TAB,2)}, 176")
        TM = self.TM; n0 = 19 - TM
        setup = []
        A = lambda t, tag=None: setup.append(lambda: e.op(t, tag=tag))
        setup.append(lambda: e.wait(lg="all"))
        A(f"s_movk_i32 {s(S_C1)}, 4096")
        A(f"s_movk_i32 {s(S_C2)}, 8192")
        for t in range(4): A(f"v_add_u32 {v(V_O + t)}, {s(S_OT + t)}, {v(V_HL)}")
        A(f"v_and_b32 {T0}, 15, {L}")
        A(f"v_lshl_add_u32 {v(V_GW)}, {T0}, 2, {s(S_GW)}")
        A(f"buffer_load_dword {v(V_GW)}, {v(V_GW)}, {s(S_WS,4)}, 0 offen sc1", "g")
        for t in range(3): A(f"v_add_u32 {v(V_RR + t)}, {s(S_RED + t)}, {v(V_L16)}")
        A(f"v_add_u32 {v(V_RW)}, {s(S_RED + 3)}, {v(V_L16)}")
        A(f"v_lshrrev_b32 {T1}, 4, {L}")
        A(f"v_mul_u32_u24 {T0}, 1280, {T0}")
        A(f"v_add_u32 {T0}, {s(S_OUTO)}, {T0}")
        A(f"v_lshl_add_u32 {v(V_OUT)}, {T1}, 4, {T0}")
        A(f"v_lshl_add_u32 {v(V_OUT + 1)}, {T1}, 3, {T0}")
        A(f"v_lshrrev_b32 {T0}, 1, {L}")
        A(f"v_min_u32 {T0}, 3, {T0}")
        A(f"v_and_b32 {T1}, 1, {L}")
        A(f"v_lshl_add_u32 {T1}, {T1}, 3, {s(S_PFB)}")
        A(f"v_lshl_add_u32 {v(V_FB)}, {T0}, 7, {T1}")
        cB = self.o("chkB", 12)
        Q = [(0, lambda n=n, t=t: self.h_load(n, t)) for n, t in self.h_left]
        if self.o("skipw", 0):
            wl0 = self.w_loads
            def dst(i):
                if i == 0:
                    e.op(f"s_lshl2_add_u32 {s(S_T2)}, s2, {s(S_WAVE)}")
                    e.op(f"s_mul_i32 {s(S_T2)}, {s(S_T2)}, 5120")
                    e.op(f"s_add_u32 {s(S_T2)}, {s(S_T2)}, {WS_X}")
                if i == 4: e.op(f"s_add_u32 {s(S_T2)}, {s(S_T2)}, 4096")
                e.op(f"buffer_store_dwordx4 {v(16,4)}, {v(V_L16)}, {s(S_WS,4)}, {s(S_T2)} offen offset:{(i & 3) * 1024} sc1")
            def wl1(n):
                for j in range(5): e.all_tags.add(("w", n, j))
                if n == 18: return wl0(n)
                if n == 17 and self.o("skipw", 0) == 1: return [lambda i=i: dst(i) for i in range(5)]
                return []
            self.w_loads = wl1
        def wl_read(n, j):
            e.wait(vm="wl")
            e.op(f"ds_read_b128 {r(WR + 20 * (n % NWR) + 4 * j, 4)}, {v(V_RW)} offset:{(5 * self.LDS_W.index(n) + j) * 1024}", tag="wlr")
            e.all_tags.add(("w", n, j))
        assert n0 % 2 == 0
        after = lambda n: max((n | 1) + 1, 0)
        R = [(max(after(n - 12), 4), lambda n=n, j=j: wl_read(n, j)) for n in self.LDS_W for j in range(5)]
        for n2 in range(4, n0, 2):
            for n in (n2, n2 + 1):
                if n >= 12 and n not in self.LDS_W: Q += [(max(after(n - 12), 4 if n >= 14 else 0), f) for f in self.w_loads(n)]
            Q += [(max(after(n2 - NH), 2 if n2 >= 6 else 0, cB if n2 >= 14 else 0), lambda n=n2 + k, t=t: self.h_load(n, t)) for t in range(4) for k in range(2)]
        for n in range(n0, 19):
            if n not in self.LDS_W: Q += [(max(after(n - 12), 4), f) for f in self.w_loads(n)]
        for t in range(4):
            for n in range(n0, 19):
                i = TM * t + n - n0
                Q.append((max(after(n0 - NH + i // 4), cB), lambda n=n, t=t: self.h_load(n, t)))
        def issue(step):
            for i, (fr, f) in enumerate(Q):
                if fr <= step:
                    Q.pop(i); f(); return True
            return False
        def need(tags, step, also=()):
            while any(t not in e.all_tags for t in tags): assert issue(step)
            if any(t in e.vm for t in tags): e.wait(vm=list(tags) + [t for t in also if t in e.vm])
        def mfma(n, t, j, first=False):
            acc = v(BA + 20 * t + 4 * j, 4)
            e.op(f"v_mfma_f32_16x16x32_bf16 {acc}, {r(WR + 20 * (n % NWR) + 4 * j, 4)}, {v(self.hreg(n, t), 4)}, {'0' if first else acc}")
        lrate = self.o("lr2", 11)
        cnt = 0
        oep = list(self.o_epilogue)
        for step in range(n0):
            n2 = step & ~1
            if step == 2: assert not oep
            if step == 4: assert not setup
            if step == 12:
                assert not R
                e.wait(lg="wlr")
            if self.o("zoom", 0) == 4 and step < 12: self.stamp(1 + step, True)
            if step == self.o("pubB", 4):
                e.wait(vm="sto"); self.publish(S_FLB)
            if step == self.o("pollB", 10): self.poll_issue(V_FB)
            if step == cB:
                self.poll_check(V_FB, 3); self.stamp(9)
            for i in range(20):
                t, j0, k0 = 2 * (step & 1) + i // 10, (i % 10) >> 1, i & 1
                j, n = (4 - j0 if t & 1 else j0), n2 + (k0 ^ ((i >> 1) & 1))
                need([("w", n, j), ("h", n, t)], step, [("w", n2 + 1, 4), ("h", n2 + 1, t)])
                mfma(n, t, j, n2 == 0 and k0 == 0)
                cnt = min(cnt + lrate, 80)
                if cnt >= 40 and k0 and issue(step):
                    cnt -= 40
                elif oep:
                    oep.pop(0)()
                    if oep: oep.pop(0)()
                elif setup:
                    setup.pop(0)()
                elif R and R[0][0] <= step and not k0: R.pop(0)[1]()
        self.stamp(10)
        assert all(self.hreg(n, 3) >= 48 for n in range(n0, 19))
        RD = (0, 20, BA)
        def wr(t, j): e.op(f"ds_write_b128 {v(V_RW)}, {v(BA + 20 * t + 4 * j, 4)} offset:{t * 5120 + j * 1024}", tag=("red", t))
        def rd(sl, j): e.op(f"ds_read_b128 {v(RD[sl] + 4 * j, 4)}, {v(V_RR + sl)} offset:{j * 1024}", tag=("rd", sl, j))
        def add01(k):
            if k % 4 == 0: e.wait(lg=("rd", 1, k // 4))
            e.op(f"v_add_f32 {v(RD[0] + k)}, {v(RD[0] + k)}, {v(RD[1] + k)}")
        def bar01():
            e.wait(lg=("red", 1))
            e.op("s_barrier")
        F = BA + 60
        for t in range(4):
            q = [None] * 3 + [lambda j=j: wr(t - 1, j) for j in range(5)] if t else []
            if t == 3:
                q = [bar01] + [lambda j=j, sl=sl: rd(sl, j) for j in range(2) for sl in range(2)] + q[3:] + \
                    [lambda j=j, sl=sl: rd(sl, j) for j in range(2, 5) for sl in range(2)]
                adds = [lambda k=k: add01(k) for k in range(20)]
            i = 0
            for j in range(5):
                for n in (range(n0, 19) if j % 2 == 0 else range(18, n0 - 1, -1)):
                    need([("w", n, j), ("h", n, t)], 99)
                    mfma(n, t, j)
                    if Q and i % 4 == 0: issue(99)
                    elif q:
                        f = q.pop(0)
                        if f: f()
                    elif t == 3:
                        for _ in range(2):
                            if adds: adds.pop(0)()
                    i += 1
            for f in q:
                if f: f()
        assert not Q
        self.stamp(11)
        e.wait(lg=("red", 2))
        e.op("s_barrier")
        for j in range(5): rd(2, j)
        for f in adds: f()
        e.wait(vm="g")
        W2 = v(V_GW, 2)
        of = ("", "sc1", "nt", "sc1 nt")[self.o("outf", 1)]
        of2 = ("", "sc1", "nt", "sc1 nt")[self.o("outf2", 0)]
        for i in range(10): e.op(f"v_pk_add_f32 {v(F + 2 * i, 2)}, {v(F + 2 * i, 2)}, {v(RD[0] + 2 * i, 2)}")
        for i in range(10): e.op(f"v_pk_mul_f32 {v(F + 2 * i, 2)}, {v(F + 2 * i, 2)}, {W2} op_sel_hi:[1,0]")
        for grp in ((0, 4), (4, 8), (8, 10)):
            e.wait(lg=("rd", 2, (grp[1] - 1) // 2))
            for i in range(*grp): e.op(f"v_pk_fma_f32 {v(F + 2 * i, 2)}, {v(RD[2] + 2 * i, 2)}, {W2}, {v(F + 2 * i, 2)} op_sel_hi:[1,0,1]")
            for i in range(*grp): e.op(f"v_cvt_pk_bf16_f32 {v(i)}, {v(F + 2 * i)}, {v(F + 2 * i + 1)}")
            if grp[0] < 8: e.op(f"buffer_store_dwordx4 {v(grp[0],4)}, {v(V_OUT)}, {s(S_OUT,4)}, 0 offen offset:{grp[0] * 16} {of}")
            else: e.op(f"buffer_store_dwordx2 {v(8,2)}, {v(V_OUT+1)}, {s(S_OUT,4)}, {s(S_XM0)} offen {of2}")
        self.stamp(12)
        if self.o("skipw", 0): self.w_loads = wl0

    def finish(self):
        e = self.e
        if self.stamps:
            e.wait(vm="all")
            self.stamp(13)
            e.op(f"s_memtime {s(S_VM,2)}")
            self.flush_stamp()
            e.op(f"v_writelane_b32 {v(V_STAMP)}, {s(S_VM)}, {NSTAMP}")
            e.op(f"s_lshl2_add_u32 {s(S_T0)}, s2, {s(S_WAVE)}")
            e.op(f"s_lshl_b32 {s(S_T0)}, {s(S_T0)}, 7")
            e.op(f"s_add_u32 {s(S_T0)}, {s(S_T0)}, {WS_ST}")
            e.op(f"v_lshlrev_b32 {v(V_T0)}, 2, {v(V_LANE)}")
            e.op("s_mov_b32 exec_hi, 0")
            e.op(f"buffer_store_dword {v(V_STAMP)}, {v(V_T0)}, {s(S_WS,4)}, {s(S_T0)} offen")
        e.op("s_endpgm")

    def build(self):
        e = self.e
        ab = self.o("abl", 0)
        if ab:
            real = e.op
            def op(text, tag=None):
                ph = getattr(self, "phase", 0)
                isld = ("_load_dwordx4" in text) and isinstance(tag, (tuple, str)) and tag[0] in ("w", "h", "d", "k", "v", "q")
                if (ab >> (2 * ph)) & 1 and (text.startswith("v_mfma") or text.startswith("v_exp")): return real("s_nop 0")
                if (ab >> (2 * ph)) & 2 and isld:
                    e.all_tags.add(tag); return None
                return real(text, tag)
            e.op = op
        self.prologue()
        self.stage1()
        self.attention()
        self.stage3()
        self.finish()
        self.att_lo()
        self.gate()
        self.spare()
        for f in self.stubs:
            e.vm, e.lg = [], []
            f()
        e.label("L_cold")
        for f in self.cold: f()
        e.label("L_end")
        e.op("s_endpgm")
        head = open("head.txt").read().split("\n")
        head = [l for l in head if l.startswith(";") and "@launch" not in l]
        txt = "\n".join(head) + f"\n; @launch grid=(256,1,1) block=(256,1,1) lds={LDS_BYTES}\n" + DOC
        txt += f""".amdgcn_target "amdgcn-amd-amdhsa--gfx950"
.text
.globl {NAME}_kernel
.p2align 8
.type {NAME}_kernel,@function
{NAME}_kernel:
"""
        txt += e.text().replace("\n    ", "\n ")
        txt += f""".section .rodata,"a"
.p2align 6
.amdhsa_kernel {NAME}_kernel
  .amdhsa_next_free_vgpr 512
  .amdhsa_next_free_sgpr 102
  .amdhsa_accum_offset 256
  .amdhsa_group_segment_fixed_size 0
  .amdhsa_kernarg_size 80
  .amdhsa_user_sgpr_count 2
  .amdhsa_user_sgpr_kernarg_segment_ptr 1
  .amdhsa_system_sgpr_workgroup_id_x 1
.end_amdhsa_kernel
.p2align 8
.type wave_table,@object
wave_table:
"""
        for wg in range(256):
            for w in range(4):
                txt += ".long " + ",".join(str(x) for x in table_entry(wg, w, self.o("map3", 0), self.o("umap", 1), self.o("bal", 1))) + "\n"
        return txt

if __name__ == "__main__":
    out = sys.argv[1] if len(sys.argv) > 1 else "cdna_kernels/" + NAME + ".s"
    opt = {}
    for x in sys.argv[2:]:
        if "=" in x:
            k, val = x.split("="); opt[k] = int(val)
    g = Gen(stamps="--stamps" in sys.argv, opt=opt)
    txt = g.build()
    open(out, "w").write(txt)
    print("instructions", g.e.count, "pad states", g.e.nops, "autowaits", g.e.autowaits, "bytes", len(txt), file=sys.stderr)
    if "--nops" in sys.argv:
        for n, t in g.e.log_nops: print(n, t, file=sys.stderr)
```

```python
import sys, math, struct
from asmlib import *

NAME = "gated_mix__sliding_block__dense_activation_relu__prompt"

WS_QK = 0
WS_VT = WS_QK + 80 * 64 * 1024
WS_H  = WS_VT + 16 * 64 * 2560
WS_O  = WS_H + 64 * 110592
WS_WT = WS_O + 64 * 40960
WS_G  = WS_WT + 8 * 74 * 5120
WS_FL = WS_G + 16384
FL_A  = WS_FL
FL_B  = FL_A + 256 * 128
FL_D  = FL_B + 256 * 128
FL_GO = FL_D + 64 * 128
WS_ST = FL_GO + 16 * 128
WS_X = WS_ST + 1024 * 128
WS_SIZE = WS_X + 1024 * 5120
OOB = 0x4000000
assert WS_SIZE < OOB and FL_A % 2048 == 0

NW, NX = 5, 4
L_W = 0
L_X = NW * 16384
L_RT = L_X + 65536
L_K = L_X
L_V = L_K + 36 * 1024
L_GW = L_V + 12 * 3072
LDS_BYTES = 163840

S_DM, S_HK = 0, 1
S_WAVE = 3
S_X, S_WA, S_WB, S_WS, S_OUT, S_DBG, S_MISC = 4, 8, 12, 16, 20, 24, 28
S_PWO, S_CG, S_XM0, S_PW2, S_PG = 32, 34, 35, 36, 38
S_T0, S_T1, S_T2, S_T3, S_T4, S_T5 = 40, 41, 42, 43, 44, 45
S_TAB = 46
TA = 48
(S_ST1, S_ST1B, S_ST2, S_ST2B, S_SCALE, S_FLA, S_FLB, S_RTS, S_RTF, S_RTSRC, S_BITS, S_TQ, S_QOFF) = range(TA, TA + 13)
S_KADJ, S_VOFF = TA + 13, TA + 16
S_OST, S_OST2 = TA + 19, TA + 20
S_HT = TA + 21
S_WT0, S_PFC, S_PFG, S_PFD, S_PFA, S_ASTEP, S_TB1 = range(TA + 25, TA + 32)
TB = 4
S_OT = TB
S_WT1, S_PFB, S_GW, S_OUTO = TB + 4, TB + 5, TB + 6, TB + 7
S_RED = TB + 8
S_PHI = 80
S_WM0, S_SPIN = 86, 87
S_STMP, S_NONCE, S_MASK, S_VM = 88, 90, 92, 94
S_CG2 = 100
S_C1, S_C2 = 96, 97
S_PILO, S_PIHI = 80, 81

V_LANE = 255
V_L16 = 254
V_NONCE = 252
V_T0, V_T1, V_T2, V_T3 = 248, 249, 250, 251
V_POLL = 246
V_FA, V_FD, V_FC, V_WV = 245, 244, 243, 242
V_KA, V_VA, V_HL, V_STAMP, V_ZERO, V_L16H = 241, 240, 239, 238, 237, 236
V_H, V_KT, V_Q, V_R = 232, 228, 231, 227
V_XD = 0
V_WD = 4
V_WD2 = 8
V_XR = 12
V_WR = 16
V_ST1 = 24
V_FR = 32
ACC = (128, 64)
A_X = 256
NXR = 7
V_LH = 226
RT_D, RT_LD, RT_RD, RT_ST = 64, 76, 79, 82
SB = (0, 16, 176)
OO = (32, 48)
VQ, QM, VF, KF, CD, CE = 128, 144, 160, 168, 192, 208
BA = 144
HSLOT = (64, 80, 96, 112, 128, 16, 48, 32)
WR = 256
NH, NWR = 8, 12
V_O, V_FB, V_GW, V_RR, V_RW, V_OUT = 228, 245, 244, 224, 243, 240
NSTAMP = 14

def f32(x): return "0x%08x" % struct.unpack("<I", struct.pack("<f", x))[0]
LOG2E = math.log2(math.e)
QSCALE = LOG2E / math.sqrt(20.0)
NEGBIG = 0xff800000
SPIN_MAX = 0x40000

KS0 = (0, 14, 28, 41)

LATE_KS = sorted({KS0[w] + n for w in range(4) for n in (12, 13) if n < (14, 14, 13, 13)[w]} | {54 + 5 * w + q for w in range(4) for q in (3, 4)})
RT_KS = [k for k in range(74) if k not in LATE_KS] + LATE_KS
assert len(LATE_KS) == 14

def rt_unit(U, w):
    if U >= 296: return OOB, OOB, 0, 0
    ks, kg, u = RT_KS[U >> 2], U & 3, w >> 1
    if ks < 54: row, wo = 32 * ks + 16 * (kg >> 1) + 4 * (kg & 1) + 8 * u, 0
    else:
        a_, p = divmod(ks - 54, 5); wo = 1
        row = 40 * (4 * a_ + p) + 20 * (kg >> 1) + 4 * (kg & 1) + 8 * u if p < 4 else 40 * (4 * a_ + kg) + 16 + 20 * u
    return WS_WT + (148 * w + ks) * 5120 + kg * 256, (FL_D + (U >> 2) * 128 + (U & 3) * 8 if w == 0 else OOB), row * 1280, wo

def gate_col(rb, bal):
    return 4 * (rb & 3) + 1 if bal else 14

def table_entry(wg, w, map3, umap, bal):
    xcd, i = wg & 7, wg >> 3
    A = [0] * 32; B = [0] * 16
    def a(reg, val): A[reg - TA] = val & 0xffffffff
    def b(reg, val): B[reg - TB] = val & 0xffffffff
    U = wg if (i >= 30 or not umap) else ((i >> 2) * 8 + xcd) * 4 + (i & 3) if i < 28 else 224 + 2 * xcd + i - 28
    rts, rtf, rtsrc, wo = rt_unit(U, w)
    a(S_RTS, rts); a(S_RTF, rtf); a(S_RTSRC, rtsrc)
    if i < 30:
        u = 30 * (xcd >> 1) + i
        rb, cg = 8 * (xcd & 1) + (u & 7), u >> 3
        tb, tb0, wc = 4 * rb + w, 4 * rb + (w & 2), w & 1
        if cg < 10:
            q0 = WS_QK + ((8 * cg + 4 * wc) * 64 + tb0) * 1024
            a(S_ST1, q0); a(S_ST1B, q0 + 1024)
        else:
            a(S_ST1, WS_VT + tb0 * 2560); a(S_ST1B, WS_VT + (tb0 + 1) * 2560)
        cg2 = 14 if cg == gate_col(rb, bal) else cg - (cg > gate_col(rb, bal))
        h0 = WS_H + tb0 * 110592 + cg2 * 8192 + wc * 4096
        a(S_ST2, h0 if 2 * cg2 + wc < 27 else OOB); a(S_ST2B, h0 + 110592 if 2 * cg2 + wc < 27 else OOB)
        a(S_SCALE, int(f32(QSCALE if cg < 5 else 1.0), 16))
        a(S_FLA, FL_A + (rb * 16 + cg) * 128 + 8 * w)
        a(S_TB1, tb)
    else:
        cg2 = 15
        for m, reg in ((1, S_ST1), (2, S_ST1B), (3, S_SCALE)): a(reg, rt_unit(wg + 16 * m, w)[2])
        for m, reg in ((1, S_ST2), (2, S_ST2B), (3, S_FLA)): a(reg, rt_unit(wg + 16 * m, w)[0])
        a(S_TB1, sum(rt_unit(wg + 16 * m, w)[3] << m for m in range(4)))
    P, rba = 2 * xcd + (i >> 4), i & 15
    F0, tq = (10 * P) >> 2, 4 * rba + w
    a(S_BITS, (P & 1) | (wo << 1) | (cg2 << 28)); a(S_TQ, tq)
    a(S_QOFF, WS_QK + (F0 * 64 + tq) * 1024)
    for k in range(3):
        t = 4 * rba + 3 * w - 8 + k
        a(S_KADJ + k, WS_QK + ((40 + F0) * 64 + t - k) * 1024 if t >= 0 else OOB)
        a(S_VOFF + k, WS_VT + (P * 64 + t) * 2560 if t >= 0 else OOB)
    o0 = WS_O + tq * 40960 + (P >> 2) * 20 * 512
    a(S_OST, o0 + (P & 3) * 2048); a(S_OST2, o0 + (16 + (P & 3)) * 512)
    a(S_FLB, FL_B + (rba * 16 + P) * 128 + 8 * w)
    cq = F0 >> 3
    a(S_PFA, FL_A + cq * 128); a(S_ASTEP, 128 if ((F0 + 2) >> 3) > cq else 0)
    a(S_PFG, FL_A + (rba * 16 + 15) * 128 + 8 * w)
    assert [RT_KS.index(KS0[w] + n) for n in range(12)] == list(range(12 * w, 12 * w + 12))
    assert [RT_KS.index(54 + 5 * w + q) for q in range(3)] == list(range(48 + 3 * w, 51 + 3 * w))
    a(S_PFD, FL_D + 12 * w * 128)
    tb64, ng = (8 * (xcd >> 1) + (i & 7), 4 * (xcd & 1) + (i >> 3)) if not map3 else (4 * xcd + (i & 3), i >> 2)
    for t in range(4):
        T = (w + 1 + t) & 3
        tb = 2 * tb64 + (T >> 1)
        a(S_HT + t, WS_H + tb * 110592 + (T & 1) * 256 + KS0[w] * 2048)
        b(S_OT + t, WS_O + tb * 40960 + (T & 1) * 256 + w * 5 * 2048)
    a(S_WT0, WS_WT + (ng * 74 + KS0[w]) * 5120 + 2048)
    b(S_WT1, WS_WT + (ng * 74 + 54 + 5 * w) * 5120 + 2048)
    a(S_PFC, FL_A + (tb64 >> 1) * 2048 + 32 + 16 * (tb64 & 1) + min((KS0[w] >> 2) + ((KS0[w] >> 2) >= gate_col(tb64 >> 1, bal)), 10) * 128)
    b(S_PFB, FL_B + ((tb64 >> 1) * 16 + 4 * w) * 128 + 16 * (tb64 & 1))
    A[S_BITS - TA] |= (FL_A + ((tb64 >> 1) * 16 + 15) * 128 + 8 * (2 * (tb64 & 1) + (w >> 1))) << 2
    b(S_GW, WS_G + (2 * tb64 + (w >> 1)) * 256 + 128 + (w & 1) * 64)
    b(S_OUTO, (64 * tb64 + 16 * w) * 1280 + ng * 128)
    B[12] = 1024 - 96 * ng
    for t in range(3): b(S_RED + t, L_W + ((w - 1 - t) & 3) * 20480 + t * 5120)
    b(S_RED + 3, L_W + w * 20480)
    return A + B


DOC = """;
"""

class Gen:
    def __init__(self, stamps=False, opt=None):
        self.e = Emit()
        self.stamps = stamps
        self.uid = 0
        self.opt = opt or {}
        self.stubs = []
        self.cold = []
        self.pending_stamp = None
        self.open_poll = None; self.open_nonce = False
        self.nt = "nt " if self.o("nt", 1) else ""
        self.in_side = False
    def o(self, k, d): return self.opt.get(k, d)
    def L(self, p):
        self.uid += 1
        return f"L_{p}_{self.uid}"
    def stamp(self, idx, z=False):
        lk = self.o("leak", -1)
        if lk >= 0:
            if not self.in_side and not z and idx in (self.o("leak0", 0), lk):
                self.flush_stamp()
                self.e.op(f"s_memrealtime {s(S_STMP, 2)}")
                self.pending_stamp = idx
            return
        if not self.stamps: return
        if self.o("zoom", 0) and not z and 0 < idx < 13: return
        self.flush_stamp()
        self.e.op(f"{'s_memtime' if self.o('cyc', 0) else 's_memrealtime'} {s(S_STMP, 2)}")
        self.pending_stamp = idx
    def flush_stamp(self):
        if self.pending_stamp is None: return
        e = self.e
        if "SMEM" in e.lg: e.wait(lg="all")
        e.op(f"v_writelane_b32 {v(V_STAMP)}, {s(S_STMP)}, {self.pending_stamp}")
        self.pending_stamp = None

    def srd_tail(self, d, nbytes):
        self.e.op(f"s_mov_b32 {s(d+2)}, {nbytes}")
        self.e.op(f"s_mov_b32 {s(d+3)}, 0x20000")
    def nonce_issue(self):
        self.e.op(f"buffer_load_dwordx2 {v(V_NONCE,2)}, {v(V_ZERO)}, {s(S_DBG,4)}, 0 offen sc1", tag="nonce")
        self.open_nonce = True
    def nonce_check(self):
        e = self.e
        st, bk = self.L("nonce"), self.L("nonce_ok")
        assert self.open_nonce
        e.wait(vm="nonce")
        e.op(f"v_readfirstlane_b32 {s(S_NONCE)}, {v(V_NONCE)}")
        e.op(f"v_readfirstlane_b32 {s(S_NONCE+1)}, {v(V_NONCE+1)}")
        e.op(f"s_cmp_eq_u32 {s(S_NONCE)}, 0")
        e.op(f"s_cbranch_scc1 {st}")
        e.label(bk)
        def stub():
            e.label(st, reset=True)
            e.op(f"s_mov_b32 {s(S_SPIN)}, 0")
            e.label(st + "_l")
            e.op("s_sleep 4")
            e.op(f"buffer_load_dwordx2 {v(V_NONCE,2)}, {v(V_ZERO)}, {s(S_DBG,4)}, 0 offen sc1")
            e.op(f"s_add_u32 {s(S_SPIN)}, {s(S_SPIN)}, 1")
            e.wait(vm="all")
            e.op(f"v_readfirstlane_b32 {s(S_NONCE)}, {v(V_NONCE)}")
            e.op(f"v_readfirstlane_b32 {s(S_NONCE+1)}, {v(V_NONCE+1)}")
            e.op(f"s_cmp_gt_u32 {s(S_SPIN)}, {SPIN_MAX}")
            e.op(f"s_cbranch_scc1 {bk}")
            e.op(f"s_cmp_eq_u32 {s(S_NONCE)}, 0")
            e.op(f"s_cbranch_scc1 {st}_l")
            e.op(f"s_branch {bk}")
        self.stubs.append(stub)
    def publish(self, soff, imm=0):
        e = self.e
        e.op("s_mov_b64 exec, 1")
        e.op(f"buffer_store_dwordx2 {v(V_NONCE,2)}, {v(V_ZERO)}, {s(S_WS,4)}, {s(soff)} offen offset:{imm} sc1", tag="flag")
        e.op("s_mov_b64 exec, -1")
    def poll_issue(self, vaddr):
        self.e.op(f"buffer_load_dwordx2 {v(V_POLL,2)}, {v(vaddr)}, {s(S_WS,4)}, 0 offen sc1", tag="poll")
        self.open_poll = vaddr
    def poll_again(self, vaddr):
        self.e.op(f"buffer_load_dwordx2 {v(224,2)}, {v(vaddr)}, {s(S_WS,4)}, 0 offen sc1", tag="poll2")
    def poll_check(self, vaddr, sid=0):
        e = self.e
        n2 = e._left(e.vm, ["poll2"])
        st, bk = self.L("poll"), self.L("poll_ok")
        assert self.open_poll == vaddr; self.open_poll = None
        e.wait(vm="poll")
        e.op(f"v_cmp_ne_u64 vcc, {s(S_NONCE,2)}, {v(V_POLL,2)}")
        e.op(f"s_cbranch_vccnz {st}")
        e.label(bk)
        def stub():
            e.label(st, reset=True)
            if n2 is not None:
                e.op(f"s_waitcnt vmcnt({n2})")
                e.op(f"v_cmp_ne_u64 vcc, {s(S_NONCE,2)}, {v(224,2)}")
                e.op(f"s_cbranch_vccz {bk}")
            e.op(f"s_mov_b32 {s(S_SPIN)}, 0")
            if self.o("retry0", 1): e.op(f"s_branch {st}_f")
            e.label(st + "_l")
            e.op(f"s_sleep {self.o('sleep', 4)}")
            e.label(st + "_f")
            if self.o("miss", 0): e.op("s_mov_b64 exec, vcc")
            e.op(f"buffer_load_dwordx2 {v(V_POLL,2)}, {v(vaddr)}, {s(S_WS,4)}, 0 offen sc1")
            if self.o("miss", 0): e.op("s_mov_b64 exec, -1")
            e.op(f"s_add_u32 {s(S_SPIN)}, {s(S_SPIN)}, 1")
            e.wait(vm="all")
            e.op(f"v_cmp_ne_u64 vcc, {s(S_NONCE,2)}, {v(V_POLL,2)}")
            e.op(f"s_cmp_gt_u32 {s(S_SPIN)}, {SPIN_MAX}")
            e.op(f"s_cbranch_scc1 {bk}")
            e.op(f"s_cbranch_vccnz {st}_l")
            if self.stamps: e.op(f"v_writelane_b32 {v(V_STAMP)}, {s(S_SPIN)}, {16 + sid}")
            e.op(f"s_branch {bk}")
        self.stubs.append(stub)

    def capture(self, *fns):
        e = self.e
        rec = []
        real = e.op
        e.op = lambda text, tag=None: rec.append(text)
        try:
            for f in fns: f()
        finally:
            e.op = real
        atoms = []
        for t in rec:
            if t.startswith(("s_cselect", "s_addc")): atoms[-1].append(t)
            else: atoms.append([t])
        return [lambda a=a_: [e.op(t) for t in a] and None for a_ in atoms]

    PI_A = [0, 2, 1, 4, 3, 6, 5, 8, 7, 9]
    PI_B = [1, -2, 2, -2, 2, -2, 2, -2, 2, -1]
    PI4S = [
        [[0,4,1,2,3,8,5,6,7,9], [1,0,5,2,3,4,9,6,7,8], [2,0,1,6,3,4,5,7,8,9], [3,0,1,2,7,4,5,6,8,9]],
        [[0,2,1,6,3,4,5,7,8,9], [1,3,0,2,7,4,5,6,8,9], [0,4,1,2,3,8,5,6,7,9], [1,5,0,2,3,4,9,6,7,8]],
        [[0,2,6,1,3,4,5,7,8,9], [1,3,7,0,2,4,5,6,8,9], [0,4,8,1,2,3,5,6,7,9], [1,5,9,0,2,3,4,6,7,8]],
        [[0,2,1,6,3,4,5,7,8,9], [1,3,0,7,2,4,5,6,8,9], [0,4,1,8,2,3,5,6,7,9], [1,5,0,9,2,3,4,6,7,8]],
        [[0,1,5,2,3,4,9,6,7,8], [0,2,1,6,3,4,5,7,8,9], [0,3,1,2,7,4,5,6,8,9], [0,4,1,2,3,8,5,6,7,9]],
        [[0,4,8,1,2,3,5,6,7,9], [1,5,9,0,2,3,4,6,7,8], [2,6,0,1,3,4,5,7,8,9], [3,7,0,1,2,4,5,6,8,9]],
    ]
    @property
    def PI4(self): return self.PI4S[self.o("pt", 0)]
    UNIT = (128, 64 * 3840, 64 * 3456)
    def pi_setup(self, sphi, late):
        e = self.e
        mode = self.o("pi", 8)
        if mode == 2:
            if not late:
                e.op(f"s_and_b32 {s(sphi)}, {s(sphi)}, 1")
                for m in range(2): e.op(f"s_mul_i32 {s(S_PHI + 2 * m)}, {s(sphi)}, {self.UNIT[m]}")
            else:
                e.op(f"s_mul_i32 {s(S_PHI + 4)}, {s(S_PHI)}, {self.UNIT[2] // 128}")
                for m in range(3): e.op(f"s_lshl_b32 {s(S_PHI + 2 * m + 1)}, {s(S_PHI + 2 * m)}, 1")
        elif mode >= 4 and not late:
            if mode == 4:
                tabs = self.PI4
                e.op(f"s_and_b32 {s(sphi)}, {s(sphi)}, 3")
            else:
                nph = {5: 1, 8: 2, 16: 4}[mode]
                two = ([self.PI_A, [a_ + b_ for a_, b_ in zip(self.PI_A, self.PI_B)]],
                       [[0,1,2,3,4,5,6,7,8,9], [1,0,3,2,5,4,7,6,9,8]],
                       [[0,2,1,3,4,5,7,6,8,9], [1,3,0,2,4,6,8,5,7,9]],
                       [[0,2,4,1,3,5,7,6,8,9], [1,3,4,0,2,6,8,5,7,9]],
                       [[0,1,3,2,4,5,6,8,7,9], [0,2,4,1,3,5,7,9,6,8]],
                       [[0,2,1,3,4,6,5,8,7,9], [1,3,0,2,5,4,7,6,9,8]])[self.o("p2", 0)]
                base = {1: [list(range(10))], 2: two, 4: self.PI4}[nph]
                rots = ((0, 2, 5, 7), (0, 0, 5, 5), (0, 1, 5, 6), (0, 3, 5, 8))[self.o("rot", 1)]
                tabs = [[(k + ro) % 10 for k in tb] for ro in rots for tb in base]
                e.op(f"s_and_b32 {s(sphi)}, {s(sphi)}, {nph - 1}")
                e.op(f"s_lshr_b32 {s(S_T3)}, s2, 1")
                e.op(f"s_lshl1_add_u32 {s(S_T3)}, s2, {s(S_T3)}")
                e.op(f"s_and_b32 {s(S_T3)}, {s(S_T3)}, 3")
                e.op(f"s_mul_i32 {s(S_T3)}, {s(S_T3)}, {nph}")
                e.op(f"s_add_u32 {s(sphi)}, {s(sphi)}, {s(S_T3)}")
            for i, tb in enumerate(tabs):
                assert sorted(tb) == list(range(10))
                lo = sum(k << (4 * n) for n, k in enumerate(tb[:8])); hi = tb[8] | (tb[9] << 4)
                if i == 0:
                    e.op(f"s_mov_b32 {s(S_PILO)}, {hex(lo)}")
                    e.op(f"s_mov_b32 {s(S_PIHI)}, {hex(hi)}")
                else:
                    e.op(f"s_cmp_eq_u32 {s(sphi)}, {i}")
                    e.op(f"s_cselect_b32 {s(S_PILO)}, {hex(lo)}, {s(S_PILO)}")
                    e.op(f"s_cselect_b32 {s(S_PIHI)}, {hex(hi)}, {s(S_PIHI)}")
    def pi_off(self, dst, st, m):
        e = self.e
        mode = self.o("pi", 8)
        if mode == 1: e.op(f"s_mov_b32 {s(dst)}, {st * self.UNIT[m]}")
        elif mode == 2:
            A, B = self.PI_A[st] * self.UNIT[m], self.PI_B[st]
            e.op(f"s_{'add' if B > 0 else 'sub'}_u32 {s(dst)}, {A}, {s(S_PHI + 2 * m + abs(B) - 1)}")
        else:
            e.op(f"s_bfe_u32 {s(dst)}, {s(S_PILO if st < 8 else S_PIHI)}, {hex((4 << 16) | (4 * (st % 8)))}")
            e.op(f"s_mul_i32 {s(dst)}, {s(dst)}, {self.UNIT[m]}")

    def prologue(self):
        e = self.e
        L = v(V_LANE); T0, T1, T2, T3 = v(V_T0), v(V_T1), v(V_T2), v(V_T3)
        e.op("s_cmp_ge_u32 s2, 256")
        e.op("s_cbranch_scc1 L_end")
        self.stamp(0)
        for d, off in ((S_X, 0), (S_WA, 8), (S_WB, 32), (S_WS, 72), (S_OUT, 56), (S_DBG, 64)):
            e.op(f"s_load_dwordx2 {s(d,2)}, s[0:1], {off}")
        e.op(f"s_getpc_b64 {s(S_TAB,2)}")
        e.label("L_pc")
        e.op("s_cmp_lt_u32 s2, 240")
        e.op("s_cbranch_scc1 L_nopf")
        e.op(f"s_bfe_u32 {s(S_T0)}, s2, 0x10003")
        e.op(f"v_lshl_add_u32 {T0}, v0, 1, {s(S_T0)}")
        e.op(f"v_lshlrev_b32 {T0}, 7, {T0}")
        e.op(f"v_min_u32 {T0}, L_cold-L_pc, {T0}")
        e.op(f"global_load_dword {v(224)}, {T0}, {s(S_TAB,2)}")
        e.vm = []
        e.label("L_nopf")
        if self.stamps or self.o("leak", -1) >= 0: e.op(f"v_mov_b32 {v(V_STAMP)}, 0")
        e.op(f"v_lshrrev_b32 {T0}, 6, v0")
        e.op(f"v_and_b32 {L}, 63, v0")
        e.op(f"v_readfirstlane_b32 {s(S_WAVE)}, {T0}")
        e.op(f"s_bfe_u32 {s(S_T0)}, s2, 0x20001")
        e.op(f"s_mul_i32 {s(S_T0)}, {s(S_T0)}, 30")
        e.op(f"s_lshr_b32 {s(S_T1)}, s2, 3")
        e.op(f"s_add_u32 {s(S_T0)}, {s(S_T0)}, {s(S_T1)}")
        e.op(f"s_lshr_b32 {s(S_CG)}, {s(S_T0)}, 3")
        e.op(f"s_and_b32 {s(S_T0)}, {s(S_T0)}, 7")
        e.op(f"s_and_b32 {s(S_T1)}, s2, 1")
        e.op(f"s_lshl3_add_u32 {s(S_T0)}, {s(S_T1)}, {s(S_T0)}")
        e.op(f"s_add_u32 {s(S_T5)}, {s(S_T0)}, {s(S_CG)}")
        self.pi_setup(S_T5, False)
        e.op(f"s_lshl2_add_u32 {s(S_T0)}, {s(S_T0)}, {s(S_WAVE)}")
        e.op(f"s_mul_i32 {s(S_T0)}, {s(S_T0)}, {32 * 1280}")
        e.op(f"s_lshl_b32 {s(S_T4)}, {s(S_CG)}, 8")
        e.op(f"s_movk_i32 {s(S_T2)}, 1280")
        e.op(f"s_movk_i32 {s(S_T3)}, {2 * (8 * 1280 - 1024)}")
        e.op(f"v_lshrrev_b32 {T1}, 4, {L}")
        e.op(f"v_and_b32 {T2}, 7, {L}")
        e.op(f"v_xor_b32 {T2}, {T2}, {T1}")
        e.op(f"v_lshl_add_u32 {T2}, {T2}, 4, {s(S_T0)}")
        e.op(f"v_lshrrev_b32 {T0}, 3, {L}")
        e.op(f"v_mad_u32_u24 {v(V_XD)}, {T0}, {s(S_T2)}, {T2}")
        e.op(f"v_xad_u32 {v(V_XD+2)}, {v(V_XD)}, 64, {s(S_T3)}")
        e.op(f"v_add_u32 {v(V_XD+1)}, {8 * 1280 - 1024}, {v(V_XD)}")
        e.op(f"v_add_u32 {v(V_XD+3)}, {8 * 1280 - 1024}, {v(V_XD+2)}")
        e.op(f"v_lshlrev_b32 {T2}, 2, {T1}")
        e.op(f"v_and_b32 {T3}, 15, {L}")
        e.op(f"v_xor_b32 {T2}, {T2}, {T3}")
        e.op(f"v_lshl_add_u32 {T2}, {T2}, 4, {s(S_T4)}")
        e.op(f"v_lshl_add_u32 {T1}, {s(S_WAVE)}, 4, {T1}")
        e.op(f"s_movk_i32 {s(S_T2)}, 3840")
        e.op(f"v_mad_u32_u24 {v(V_WD)}, {T1}, {s(S_T2)}, {T2}")
        e.op(f"s_movk_i32 {s(S_T3)}, {2 * (4 * 3840 - 1024)}")
        e.op(f"v_xad_u32 {v(V_WD+2)}, {v(V_WD)}, 16, {s(S_T3)}")
        for n in (1, 3): e.op(f"v_add_u32 {v(V_WD+n)}, {4 * 3840 - 1024}, {v(V_WD+n-1)}")
        e.op(f"s_lshl_b32 {s(S_WM0)}, {s(S_WAVE)}, 12")
        e.op(f"s_lshl2_add_u32 {s(S_XM0)}, {s(S_WM0)}, {L_X}")
        self.srd_tail(S_X, 2048 * 1280)
        self.srd_tail(S_WA, 640 * 3840)
        e.op(f"s_lshl2_add_u32 {s(S_T0)}, s2, {s(S_WAVE)}")
        e.op(f"s_mul_i32 {s(S_T0)}, {s(S_T0)}, 192")
        e.label("L_pc2")
        e.op(f"s_add_u32 {s(S_TAB)}, {s(S_TAB)}, wave_table@rel32@lo+(L_pc2+4-L_pc)")
        e.op(f"s_addc_u32 {s(S_TAB+1)}, {s(S_TAB+1)}, wave_table@rel32@hi+(L_pc2+12-L_pc)")
        e.op(f"s_add_u32 {s(S_TAB)}, {s(S_TAB)}, {s(S_T0)}")
        e.op(f"s_addc_u32 {s(S_TAB+1)}, {s(S_TAB+1)}, 0")
        e.wait(lg="all")
        self.flush_stamp()
        e.op("s_cmp_ge_u32 s2, 240")
        e.op("s_cbranch_scc1 L_spare")
        self.spare_snap = e.snapshot()
        self.table_loads()

    def flag_init(self, spare=False):
        if not self.o("finit", 1) & 1: return
        e = self.e
        e.op(f"s_cmp_eq_u32 {s(S_WAVE)}, 1")
        if spare:
            e.op(f"s_cselect_b32 {s(S_T1)}, {s(S_FLB)}, {OOB}")
        else:
            e.op(f"s_cselect_b32 {s(S_T1)}, {s(S_FLB)}, {s(S_FLA)}")
            e.op(f"s_lshr_b32 {s(S_T2)}, {s(S_TB1)}, 2")
            e.op(f"s_lshl_b32 {s(S_T2)}, {s(S_T2)}, 7")
            e.op(f"s_add_u32 {s(S_T2)}, {s(S_T2)}, {FL_GO}")
            e.op(f"s_or_b32 {s(S_T3)}, {s(S_FLA)}, {15 * 128}")
            e.op(f"s_cmp_eq_u32 {s(S_WAVE)}, 2")
            e.op(f"s_cselect_b32 {s(S_T2)}, {s(S_T2)}, {s(S_T3)}")
            e.op(f"s_cmp_eq_u32 {s(S_CG2)}, 14")
            e.op(f"s_cselect_b32 {s(S_T2)}, {s(S_T2)}, {OOB}")
            e.op(f"s_cmp_lt_u32 {s(S_WAVE)}, 2")
            e.op(f"s_cselect_b32 {s(S_T1)}, {s(S_T1)}, {s(S_T2)}")
        e.op(f"s_andn2_b32 {s(S_T1)}, {s(S_T1)}, 127")
        e.op(f"v_lshl_add_u32 {v(V_T0)}, {v(V_LANE)}, 2, 0")
        e.op("s_mov_b32 exec_hi, 0")
        e.op(f"buffer_store_dword {v(V_ZERO)}, {v(V_T0)}, {s(S_WS,4)}, {s(S_T1)} offen sc1", tag="fi")
        e.op("s_mov_b32 exec_hi, -1")

    def table_loads(self):
        e = self.e
        e.op(f"s_load_dwordx2 {s(S_PWO,2)}, s[0:1], 16")
        e.op(f"s_load_dwordx4 {s(S_PW2,4)}, s[0:1], 40")
        e.op(f"s_load_dwordx16 {s(TA,16)}, {s(S_TAB,2)}, 0")
        e.op(f"s_load_dwordx16 {s(TA+16,16)}, {s(S_TAB,2)}, 64")
        e.op(f"s_load_dword {s(S_SPIN)}, {s(S_TAB,2)}, 128")

    def common_setup(self):
        e = self.e
        L = v(V_LANE)
        self.srd_tail(S_WB, 640 * 3456)
        self.srd_tail(S_WS, WS_SIZE)
        self.srd_tail(S_OUT, 2048 * 1280)
        self.srd_tail(S_DBG, 256)
        e.op(f"s_mov_b32 {s(S_MISC+3)}, 0x20000")
        e.op(f"v_lshlrev_b32 {v(V_L16)}, 4, {L}")
        e.op(f"v_mov_b32 {v(V_ZERO)}, 0")
        e.op(f"v_lshrrev_b32 {v(V_L16H)}, 5, {L}")
        e.op(f"v_lshl_add_u32 {v(V_L16H)}, {v(V_L16H)}, 26, {v(V_L16)}")
        e.op(f"s_mov_b32 {s(S_VM)}, 0xfffff")
        e.op(f"s_mov_b32 {s(S_VM+1)}, 0xfffff")
        e.op(f"s_mov_b32 {s(S_C1)}, 0x10000")
        e.op(f"s_mov_b32 {s(S_C2)}, 0x20000")

    def dma(self, st, m):
        e = self.e
        dm = S_T5 if st < 2 else S_DM
        if m == 0: srd, vd, k, base, lo = S_X, V_XD, st, S_XM0, self.XSLOT[st] * 4096
        elif st < 10: srd, vd, k, base, lo = S_WA, V_WD, st, S_WM0, L_W + (st % NW) * 16384
        else: srd, vd, k, base, lo, m = S_WB, V_WD2, self.xst(st), S_WM0, L_W + (st % NW) * 16384, 2
        def f(n):
            if n == 0:
                e.op(f"s_add_u32 m0, {s(base)}, {lo}")
                self.pi_off(dm, k, m)
            e.op(f"buffer_load_dwordx4 {v(vd+n)}, {s(srd,4)}, {s(dm)} offen offset:{n*1024} {('', 'sc1 ', 'sc0 ', 'sc0 sc1 ')[self.o('dsc', 0)]}lds", tag=("d", st))
        return [lambda n=n: f(n) for n in range(4)]
    def dmas(self, st): return (self.dma(st, 0) if st < 10 else []) + self.dma(st, 1)

    P2X = (9, 0, 1, 5, 2, 7, 3, 4, 6, 8)
    XREG = {0: 0, 1: 1, 2: 2, 3: 3, 4: 4, 6: 5, 8: 6}
    XSLOT = (0, 1, 2, 3, 0, 1, 2, 3, 0, 2)
    def xst(self, st):
        return st if st < 10 else self.P2X[st - 10]

    def stage1_tables(self):
        e = self.e
        L = v(V_LANE); T0, T1, T2, T3 = v(V_T0), v(V_T1), v(V_T2), v(V_T3)
        P0, P1 = v(V_POLL), v(V_POLL + 1)
        e.op(f"s_movk_i32 {s(S_T2)}, 3456")
        e.op(f"v_and_b32 {v(15)}, 255, {T2}")
        e.op(f"v_mad_u32_u24 {v(V_WD2)}, {T1}, {s(S_T2)}, {v(15)}")
        e.op(f"s_movk_i32 {s(S_T3)}, {2 * (4 * 3456 - 1024)}")
        e.op(f"v_xad_u32 {v(V_WD2+2)}, {v(V_WD2)}, 16, {s(S_T3)}")
        for n in (1, 3): e.op(f"v_add_u32 {v(V_WD2+n)}, {4 * 3456 - 1024}, {v(V_WD2+n-1)}")
        e.op(f"v_and_b32 {P0}, 8, {L}")
        e.op(f"v_and_b32 {T0}, 15, {L}")
        e.op(f"v_add_u32 {P0}, {P0}, {T0}")
        e.op(f"v_lshrrev_b32 {P1}, 4, {L}")
        e.op(f"s_and_b32 {s(S_T0)}, {s(S_WAVE)}, 2")
        e.op(f"s_lshl_b32 {s(S_T0)}, {s(S_T0)}, 14")
        e.op(f"s_add_u32 {s(S_T0)}, {s(S_T0)}, {L_X}")
        e.op(f"v_bfe_u32 {T1}, {L}, 1, 3")
        e.op(f"v_xor_b32 {T1}, {T1}, {P1}")
        e.op(f"v_lshl_add_u32 {T1}, {T1}, 4, {s(S_T0)}")
        e.op(f"v_lshl_add_u32 {v(V_XR)}, {P0}, 7, {T1}")
        e.op(f"v_xor_b32 {v(V_XR+1)}, 64, {v(V_XR)}")
        e.op(f"s_and_b32 {s(S_T1)}, {s(S_WAVE)}, 1")
        e.op(f"s_lshl_b32 {s(S_T0)}, {s(S_T1)}, 3")
        e.op(f"v_and_b32 {T0}, 14, {L}")
        e.op(f"v_and_or_b32 {T0}, {P1}, 1, {T0}")
        e.op(f"v_xor_b32 {T0}, {s(S_T0)}, {T0}")
        e.op(f"v_and_b32 {T1}, 1, {L}")
        e.op(f"v_lshl_add_u32 {T0}, {T0}, 1, {T1}")
        e.op(f"v_bfe_u32 {T1}, {L}, 2, 2")
        e.op(f"v_lshl_add_u32 {T1}, {P1}, 3, {T1}")
        e.op(f"v_lshlrev_b32 {T1}, 8, {T1}")
        e.op(f"v_lshl_add_u32 {v(V_WR)}, {T0}, 3, {T1}")
        for j in range(1, 4): e.op(f"v_xor_b32 {v(V_WR+j)}, {(j >> 1) * 64 + (j & 1) * 16}, {v(V_WR)}")
        for j in range(4): e.op(f"v_add_u32 {v(V_WR+4+j)}, 0x10000, {v(V_WR+j)}")
        e.op(f"v_lshlrev_b32 {T0}, 4, {P0}")
        e.op(f"v_lshl_add_u32 {v(V_LH)}, {P1}, 9, {T0}")
        lv, ld = self.L("st1v"), self.L("st1d")
        e.op(f"s_cmp_ge_u32 {s(S_CG)}, 10")
        e.op(f"s_cbranch_scc1 {lv}")
        e.op(f"v_lshrrev_b32 {T0}, 5, {L}")
        e.op(f"v_mul_u32_u24 {T0}, {65536 - 1024}, {T0}")
        e.op(f"v_add_u32 {v(V_ST1)}, {T0}, {v(V_LH)}")
        for j in range(1, 4): e.op(f"v_add_u32 {v(V_ST1+j)}, {(j >> 1) * 131072 + (j & 1) * 128}, {v(V_ST1)}")
        e.op(f"s_branch {ld}")
        e.label(lv)
        e.op(f"s_lshl1_add_u32 {s(S_T1)}, {s(S_CG)}, {s(S_T1)}")
        e.op(f"s_lshl_b32 {s(S_T1)}, {s(S_T1)}, 6")
        e.op(f"s_sub_u32 {s(S_T1)}, {s(S_T1)}, 1280")
        e.op(f"v_add_u32 {T0}, {s(S_T1)}, {P0}")
        e.op(f"v_mul_u32_u24 {T2}, 640, {P1}")
        e.op(f"s_mov_b32 {s(S_T2)}, {64 * 2560 - 640}")
        for j in range(4):
            e.op(f"v_mul_u32_u24 {T3}, 1639, {T0}")
            e.op(f"v_lshrrev_b32 {T3}, 16, {T3}")
            e.op(f"v_lshl_add_u32 {T1}, {T0}, 4, {T2}")
            e.op(f"v_mad_u32_u24 {v(V_ST1+j)}, {T3}, {s(S_T2)}, {T1}")
            if j < 3: e.op(f"v_add_u32 {T0}, {24 if j & 1 else 8}, {T0}")
        e.label(ld)

    def late_lane_tables(self):
        e = self.e
        L = v(V_LANE); T0, T1, T2, T3 = v(V_T0), v(V_T1), v(V_T2), v(V_T3)
        e.op(f"v_and_b32 {T0}, 31, {L}")
        e.op(f"v_lshrrev_b32 {T1}, 5, {L}")
        e.op(f"v_lshlrev_b32 {v(V_R)}, 2, {T0}")
        e.op(f"s_lshl_b32 {s(S_T1)}, {s(S_WAVE)}, 10")
        e.op(f"s_add_u32 {s(S_T2)}, {s(S_T1)}, {L_K}")
        e.op(f"v_add_u32 {v(V_KA)}, {s(S_T2)}, {v(V_L16)}")
        e.op(f"s_mul_i32 {s(S_T1)}, {s(S_T1)}, 3")
        e.op(f"s_add_u32 {s(S_T1)}, {s(S_T1)}, {L_V}")
        e.op(f"v_lshl_add_u32 {T2}, {T1}, 7, {v(V_L16)}")
        e.op(f"v_add_u32 {v(V_VA)}, {s(S_T1)}, {T2}")
        e.op(f"v_lshlrev_b32 {T2}, 2, {T1}")
        e.op(f"v_sub_u32 {T2}, {T0}, {T2}")
        e.op(f"v_cvt_f32_i32 {T2}, {T2}")
        e.op(f"v_mov_b32 {T3}, {f32(2.0 ** 100)}")
        for rr in range(16):
            key = 8 * (rr >> 2) + (rr & 3)
            e.op(f"v_fmaak_f32 {v(CE + rr)}, {T2}, {T3}, {f32((0.5 - key) * 2.0 ** 100)}")
            e.op(f"v_min_f32 {v(CD + rr)}, 0, {v(CE + rr)}")
            e.op(f"v_min_f32 {v(CE + rr)}, -{v(CE + rr)}, 0")
        e.op(f"v_lshrrev_b32 {T1}, 4, {L}")
        e.op(f"v_lshl_add_u32 {v(V_HL)}, {T1}, 8, {v(V_L16)}")
    def w1_columns(self):
        e = self.e
        T0 = v(V_T0)
        e.op(f"s_lshl_b32 {s(S_T0)}, {s(S_CG2)}, 8")
        e.op(f"v_add_u32 {v(15)}, {s(S_T0)}, {v(15)}")
        e.op(f"v_cmp_le_u32 vcc, 3456, {v(15)}")
        e.op(f"v_mov_b32 {T0}, {s(S_T0)}")
        e.op(f"v_mov_b32 {v(15)}, 0x1000000")
        e.op(f"v_cndmask_b32 {T0}, {T0}, {v(15)}, vcc")
        for n in range(4): e.op(f"v_add_u32 {v(V_WD2+n)}, {T0}, {v(V_WD2+n)}")
    def late_table_use(self):
        e = self.e
        L = v(V_LANE); T0, T1, T2, T3 = v(V_T0), v(V_T1), v(V_T2), v(V_T3)
        for t in range(4): e.op(f"v_add_u32 {v(V_H + t)}, {s(S_HT + t)}, {v(V_HL)}")
        for k in range(3): e.op(f"v_add_u32 {v(V_KT + k)}, {s(S_KADJ + k)}, {v(V_L16)}")
        e.op(f"v_add_u32 {v(V_Q)}, {s(S_QOFF)}, {v(V_L16)}")
        e.op(f"v_lshl_add_u32 {v(V_R)}, {s(S_TQ)}, 8, {v(V_R)}")
        e.op(f"v_add_u32 {v(V_R)}, {WS_G}, {v(V_R)}")
        e.op(f"v_min_u32 {T0}, 59, {L}")
        e.op(f"v_and_b32 {T1}, 3, {T0}")
        e.op(f"v_lshl_add_u32 {T1}, {T1}, 3, {s(S_PFD)}")
        e.op(f"v_lshrrev_b32 {T0}, 2, {T0}")
        e.op(f"v_lshl_add_u32 {T1}, {T0}, 7, {T1}")
        e.op(f"s_mul_i32 {s(S_T0)}, {s(S_WAVE)}, {-9 * 128}")
        e.op(f"s_add_u32 {s(S_T0)}, {s(S_T0)}, {36 * 128}")
        e.op(f"v_cmp_lt_u32 vcc, 47, {L}")
        e.op(f"v_add_u32 {T0}, {s(S_T0)}, {T1}")
        e.op(f"v_cndmask_b32 {v(V_FD)}, {T1}, {T0}, vcc")
        e.op(f"v_lshrrev_b32 {T0}, 1, {L}")
        e.op(f"v_min_u32 {T0}, 4, {T0}")
        e.op(f"v_and_b32 {T1}, 1, {L}")
        e.op(f"v_lshl_add_u32 {T1}, {T1}, 3, {s(S_PFC)}")
        e.op(f"v_lshl_add_u32 {v(V_FC)}, {T0}, 7, {T1}")
        e.op(f"v_writelane_b32 {v(V_FC)}, {s(S_PFG)}, 63")
        e.op(f"s_bfe_u32 {s(S_T0)}, {s(S_BITS)}, {hex((26 << 16) | 2)}")
        e.op(f"v_writelane_b32 {v(V_FC)}, {s(S_T0)}, 62")
        e.op(f"s_lshr_b32 {s(S_T0)}, {s(S_TQ)}, 2")
        e.op(f"s_sub_u32 {s(S_T0)}, {s(S_T0)}, 2")
        e.op(f"v_lshrrev_b32 {T0}, 4, {L}")
        e.op(f"v_min_u32 {T0}, 2, {T0}")
        e.op(f"v_add_u32 {T0}, {s(S_T0)}, {T0}")
        e.op(f"v_max_i32 {T0}, 0, {T0}")
        e.op(f"v_and_b32 {T1}, 3, {L}")
        e.op(f"v_lshl_add_u32 {T1}, {T1}, 3, {s(S_PFA)}")
        e.op(f"v_lshl_add_u32 {T0}, {T0}, 11, {T1}")
        e.op(f"v_bfe_u32 {T1}, {L}, 2, 1")
        e.op(f"v_mad_u32_u24 {T0}, {T1}, {s(S_ASTEP)}, {T0}")
        e.op(f"v_cmp_gt_u32 vcc, 48, {L}")
        e.op(f"v_bfe_u32 {T1}, {L}, 3, 1")
        e.op(f"v_add_u32 {T1}, 1, {T1}")
        e.op(f"v_mul_u32_u24 {T1}, 640, {T1}")
        e.op(f"v_cndmask_b32 {T1}, 0, {T1}, vcc")
        e.op(f"v_add_u32 {v(V_FA)}, {T0}, {T1}")

    def rt_tables(self, base):
        e = self.e
        L = v(V_LANE); T0, T1, T2, T3 = v(V_T0), v(V_T1), v(V_T2), v(V_T3)
        P0, P1 = v(V_POLL), v(V_POLL + 1)
        e.op(f"s_and_b32 {s(S_T0)}, {s(S_WAVE)}, 1")
        e.op(f"s_mul_i32 {s(S_T0)}, {s(S_T0)}, 160")
        e.op(f"v_add_u32 {T0}, {s(S_T0)}, {L}")
        for i in range(3):
            e.op(f"v_mul_u32_u24 {T1}, 820, {T0}")
            e.op(f"v_lshrrev_b32 {T1}, 16, {T1}")
            e.op(f"v_lshlrev_b32 {T1}, 2, {T1}")
            e.op(f"v_xor_b32 {T1}, {T0}, {T1}")
            e.op(f"v_lshlrev_b32 {v(RT_LD + i)}, 4, {T1}")
            if i < 2: e.op(f"v_add_u32 {T0}, 64, {T0}")
        e.op(f"v_lshrrev_b32 {T0}, 4, {L}")
        e.op(f"v_and_b32 {T1}, 3, {L}")
        e.op(f"v_bfe_u32 {P1}, {L}, 2, 2")
        e.op(f"v_lshlrev_b32 {T3}, 3, {P1}")
        e.op(f"v_mul_u32_u24 {P1}, 1280, {P1}")
        e.op(f"v_add_u32 {P1}, {base}, {P1}")
        e.op(f"s_lshl_b32 {s(S_T0)}, {s(S_WAVE)}, 5")
        e.op(f"v_and_b32 {P0}, 1, {T0}")
        e.op(f"v_lshl_add_u32 {T2}, {T1}, 1, {P0}")
        e.op(f"v_lshrrev_b32 {v(RT_D)}, 5, {L}")
        e.op(f"v_lshl_add_u32 {T2}, {v(RT_D)}, 3, {T2}")
        e.op(f"v_add_u32 {T2}, {s(S_T0)}, {T2}")
        for i in range(2):
            if i: e.op(f"v_add_u32 {T2}, 16, {T2}")
            e.op(f"v_xor_b32 {v(RT_D)}, {T2}, {T3}")
            e.op(f"v_lshl_add_u32 {v(RT_RD + i)}, {v(RT_D)}, 3, {P1}")
        e.op(f"v_lshl_add_u32 {T2}, {P0}, 2, {T1}")
        e.op(f"s_lshl3_add_u32 {s(S_T0)}, {s(S_WAVE)}, 0x80")
        e.op(f"v_add_u32 {T2}, {s(S_T0)}, {T2}")
        e.op(f"v_xor_b32 {T2}, {T2}, {T3}")
        e.op(f"v_lshl_add_u32 {v(RT_RD + 2)}, {T2}, 3, {P1}")
        e.op(f"v_mul_u32_u24 {T0}, {1024 - 256}, {T0}")
        e.op(f"v_add_u32 {v(RT_ST)}, {T0}, {v(V_L16)}")
        e.op(f"v_add_u32 {v(RT_ST + 1)}, {74 * 5120}, {v(RT_ST)}")
        e.op(f"s_mov_b32 {s(S_T0)}, {74 * 5120 - 256}")
        e.op(f"v_mad_u32_u24 {T0}, {P0}, {s(S_T0)}, {v(V_L16H)}")
        e.op(f"v_add_u32 {v(RT_ST + 2)}, 4096, {T0}")
    def rt_srd(self, reg=S_BITS, bit=1):
        e = self.e
        e.op(f"s_bitcmp1_b32 {s(reg)}, {bit}")
        e.op(f"s_cselect_b64 {s(S_MISC,2)}, {s(S_PWO,2)}, {s(S_PW2,2)}")
        e.op(f"s_mov_b32 {s(S_MISC+2)}, {640 * 1280}")
        e.op(f"s_cselect_b32 {s(S_MISC+2)}, {s(S_MISC+2)}, {1728 * 1280}")
    def rt_loads(self, base, src, sw):
        e = self.e
        for i in range(3):
            e.op(f"s_add_u32 m0, {s(sw)}, {base + i * 1024}")
            if i == 2: e.op("s_mov_b32 exec_hi, 0")
            e.op(f"buffer_load_dwordx4 {v(RT_LD + i)}, {s(S_MISC,4)}, {s(src)} offen {self.nt}lds", tag="rl")
            if i == 2: e.op("s_mov_b32 exec_hi, -1")
    def rt_reads(self, lo_=0, D=RT_D):
        return [lambda i=i, u=u: self.e.op(f"ds_read_b64_tr_b16 {v(D + 4 * i + 2 * u, 2)}, {v(RT_RD + i)} offset:{lo_ + u * 5120}", tag=("rt", i))
                for i in range(3) for u in range(2)]
    def rt_stores(self, D=RT_D, so=S_RTS):
        e = self.e
        def st(i):
            e.wait(lg=("rt", i))
            e.op(f"buffer_store_dwordx4 {v(D + 4 * i, 4)}, {v(RT_ST + i)}, {s(S_WS,4)}, {s(so)} offen sc1", tag="rs")
        return [lambda i=i: st(i) for i in range(3)]

    EARLY_W = (0, 1, 2, 3)
    def w_loads(self, n):
        e = self.e
        def f(j):
            dst = r(WR + 20 * (n % NWR) + 4 * j, 4)
            if n == 13:
                if j in (0, 4):
                    e.op(f"s_add_u32 {s(S_T2)}, {s(S_WT0)}, {n * 5120 - 2048 + (4096 if j else 0)}")
                    e.op(f"s_cmp_lt_u32 {s(S_WAVE)}, 2")
                    e.op(f"s_cselect_b32 {s(S_T2)}, {s(S_T2)}, {OOB}")
                e.op(f"buffer_load_dwordx4 {dst}, {v(V_L16)}, {s(S_WS,4)}, {s(S_T2)} offen offset:{(j & 3) * 1024} sc1", tag=("w", n, j))
                return
            if j == 0:
                base, off = (S_WT0, n * 5120) if n < 14 else (S_WT1, (n - 14) * 5120)
                if self.o("wsame", 0): base, off = S_WT0, (n % 4) * 5120
                if self.wv is None or self.wv[0] != base:
                    e.op(f"v_add_u32 {v(V_WV)}, {s(base)}, {v(V_L16)}")
                    self.wv = (base, 0)
                if off != self.wv[1]: e.op(f"v_add_u32 {v(V_WV)}, {off - self.wv[1]}, {v(V_WV)}")
                self.wv = (base, off)
            e.op(f"global_load_dwordx4 {dst}, {v(V_WV)}, {s(S_WS,2)} offset:{j * 1024 - 2048} sc1", tag=("w", n, j))
        return [lambda j=j: f(j) for j in range(5)]
    @property
    def LDS_W(self):
        return (14, 15, 16)[:self.o("nlds", 2)]
    def wl_dmas(self):
        e = self.e
        def f(i):
            if i == 0:
                e.op(f"s_mul_i32 {s(S_T4)}, {s(S_WAVE)}, 20480")
                e.op(f"s_lshl_b32 {s(S_T2)}, {s(S_WAVE)}, 3")
                e.op(f"s_lshr_b32 {s(S_T2)}, {hex(sum((54 + 5 * w - KS0[w]) << (8 * w) for w in range(4)))}, {s(S_T2)}")
                e.op(f"s_and_b32 {s(S_T2)}, {s(S_T2)}, 0xff")
                e.op(f"s_mul_i32 {s(S_T2)}, {s(S_T2)}, 5120")
                e.op(f"s_add_u32 {s(S_DM)}, {s(S_T2)}, {s(S_WT0)}")
            if i % 4 == 0:
                e.op(f"s_add_u32 m0, {s(S_T4)}, {L_W + i * 1024}")
                e.op(f"s_add_u32 {s(S_DM)}, {s(S_DM)}, {4096 if i else -2048}")
            e.op(f"buffer_load_dwordx4 {v(V_L16)}, {s(S_WS,4)}, {s(S_DM)} offen offset:{(i % 4) * 1024} sc1 lds", tag="wl")
        return [lambda i=i: f(i) for i in range(5 * len(self.LDS_W))]
    @property
    def TM(self): return self.o("tm", 5)
    def hreg(self, n, t):
        n0 = 19 - self.TM
        if n < n0: return HSLOT[n % NH] + 4 * t
        i = self.TM * t + (n - n0)
        return HSLOT[(n0 + i // 4) % NH] + 4 * (i % 4)
    def h_load(self, n, t):
        e = self.e
        dst = v(self.hreg(n, t), 4)
        if n >= 14:
            q = n - 14 if not self.o("hsame", 0) else 0
            so = ("0", s(S_C1), s(S_C2))[q >> 1]
            e.op(f"buffer_load_dwordx4 {dst}, {v(V_O + t)}, {s(S_WS,4)}, {so} offen offset:{(q & 1) * 2048} sc1", tag=("h", n, t))
            return
        if t == 0 and n > 1 and n % 2 == 0:
            e.op(f"s_movk_i32 {s(S_HK)}, {n * 2048 if not self.o('hsame', 0) else 0}")
            self.hk = n
        if t == 0 and n == 13:
            e.op(f"s_cmp_lt_u32 {s(S_WAVE)}, 2")
            e.op(f"s_cselect_b32 {s(S_T5)}, {s(S_HK)}, {OOB}")
        assert n < 2 or self.hk == n & ~1
        e.op(f"buffer_load_dwordx4 {dst}, {v(V_H + t)}, {s(S_WS,4)}, {s(S_T5) if n == 13 else s(S_HK) if n > 1 else 0} offen offset:{(n & 1) * 2048} sc1", tag=("h", n, t))
    def kvq_loads(self):
        e = self.e
        so = ("0", s(S_C1), s(S_C2))
        def q(f): e.op(f"buffer_load_dwordx4 {v(VQ + 4 * f, 4)}, {v(V_Q)}, {s(S_WS,4)}, {so[f]} offen sc1", tag="q")
        def k(f, i):
            if f == 0 and i == 0: e.op(f"s_mul_i32 {s(S_T5)}, {s(S_WAVE)}, 3072")
            if i == 0: e.op(f"s_add_u32 m0, {s(S_T5)}, {L_K + f * 12288}")
            e.op(f"buffer_load_dwordx4 {v(V_KT + i)}, {s(S_WS,4)}, {so[f]} offen offset:{i * 1024} sc1 lds", tag="kd")
        def vv(i, n):
            if i == 0 and n == 0: e.op(f"s_mul_i32 {s(S_T5)}, {s(S_WAVE)}, 9216")
            if n == 0: e.op(f"s_add_u32 m0, {s(S_T5)}, {L_V + i * 3072}")
            e.op(f"buffer_load_dwordx4 {v(V_L16H if n == 2 else V_L16)}, {s(S_WS,4)}, {s(S_VOFF + i)} offen offset:{n * 1024} sc1 lds", tag="vd")
        return [lambda f=f: q(f) for f in range(3)] + [lambda f=f, i=i: k(f, i) for f in range(3) for i in range(3)] + \
               [lambda i=i, n=n: vv(i, n) for i in range(3) for n in range(3)]

    @staticmethod
    def tile_of(i):
        j, t0, k0 = i >> 3, (i >> 1) & 3, i & 1
        return j, (3 - t0 if j & 1 else t0), k0 ^ (t0 & 1)
    def w_read(self, st, f, u):
        j, ks = f >> 1, f & 1
        off = L_W + (st % NW) * 16384 + ks * 8192 + u * 1024
        ad = V_WR + j
        if off >= 65536: off -= 65536; ad += 4
        self.e.op(f"ds_read_b64_tr_b16 {v(V_FR + 4 * f + 2 * u, 2)}, {v(ad)} offset:{off}", tag=("w", st, f))
    def xreg(self, xs, ks, tt): return A_X + 32 * self.XREG.get(xs, NXR) + 16 * ks + 4 * tt
    def x_read(self, st, ks, tt):
        xs = self.xst(st)
        self.e.op(f"ds_read_b128 {r(self.xreg(xs, ks, tt), 4)}, {v(V_XR + ks)} offset:{(tt >> 1) * 16384 + self.XSLOT[xs] * 4096 + (tt & 1) * 1024}", tag=("x", st, ks, tt))
    def accreg(self, ps, tt, j, swap):
        b, p, G, q = tt >> 1, tt & 1, j >> 1, j & 1
        return ACC[ps] + 32 * G + (16 * q + 8 * b + 4 * p if swap else 16 * p + 8 * b + 4 * q)

    @property
    def LEAD(self): return self.o('lead', 11)
    def stage1_fill(self):
        e = self.e
        fill = {m: [] for m in range(-1, 640)}
        used = {m: 0 for m in range(-1, 640)}
        def at(m, f, n=1):
            fill[max(m, -1)].append(f); used[max(m, -1)] += n
        WG = (1, 2, 9, 11, 15, 17, 21, 23)
        for st in range(20):
            b = 32 * st - self.LEAD
            def bar(st=st):
                assert ("d", st) in e.all_tags
                e.wait(vm=("d", st), lg="all")
                e.op("s_barrier")
            at(b, bar, 2)
            for f in range(8):
                for u in range(2): at(b + WG[f], lambda st=st, f=f, u=u: self.w_read(st, f, u))
            for f in range(8):
                rd = lambda st=st, f=f: self.x_read(st, f & 1, f >> 1)
                if st < 10: at(b + 3 + (f >> 1), rd)
                elif st > 10 and self.xst(st) not in self.XREG: at(b - 32 + (13, 13, 19, 19, 25, 25, 27, 27)[f], rd)
            for g in (-1, 3, 7, 15): used[max(32 * st + g, -1)] += 1
        return fill, used

    def vm_schedule(self, fill, used, queues, m0, m1, thr):
        lag = 0
        for m in range(m0, m1):
            lag = max(0, lag - 16)
            heads = [q for q in queues if q and q[0][0] <= m]
            if not heads: continue
            q = min(heads, key=lambda q: q[0][1])
            if (used[m] or m % 2 == 0) and q[0][1] + 3 > m: continue
            if q[0][1] <= m or lag <= thr:
                rel, dl, cost, f = q.pop(0)
                fill[m].append(f); used[m] += 2
                lag = min(lag, 3 * 72) + cost
        assert not any(queues), [len(q) for q in queues]
    def va_place(self, fill, used, ops, m0, m1):
        cap = 2
        while sum(max(0, cap - used[m]) for m in range(m0, m1)) < len(ops): cap += 1
        over = len(ops) - sum(max(0, cap - 1 - used[m]) for m in range(m0, m1)) if cap > 2 else len(ops)
        ops = list(ops)
        for m in range(m0, m1):
            n = max(0, cap - 1 - used[m]) if cap > 2 else 0
            ex = max(0, cap - used[m]) - n
            ex = min(ex, over); over -= ex
            for _ in range(n + ex):
                if ops: fill[m].append(ops.pop(0)); used[m] += 1
        assert not ops

    def p1_epilogue_ops(self):
        e = self.e
        groups = []
        for g in range(8):
            A = ACC[0] + 8 * g
            ops = [lambda A=A, q=q: e.op(f"v_mul_f32 {v(A+q)}, {s(S_SCALE)}, {v(A+q)}") for q in range(8)]
            ops += [lambda A=A, q=q: e.op(f"v_cvt_pk_bf16_f32 {v(A+q)}, {v(A+2*q)}, {v(A+2*q+1)}") for q in range(4)]
            ops.append(lambda A=A, g=g: e.op(f"buffer_store_dwordx4 {v(A,4)}, {v(V_ST1 + (g >> 1))}, {s(S_WS,4)}, {s(S_ST1B if g & 1 else S_ST1)} offen sc1", tag="st1"))
            groups.append(ops)
        return groups
    def p2_epilogue_ops(self):
        e = self.e
        groups = []
        for g in range(8):
            A = ACC[1] + 8 * g
            ops = [lambda A=A, q=q: e.op(f"v_cvt_pk_bf16_f32 {v(A+q)}, {v(A+2*q)}, {v(A+2*q+1)}") for q in range(4)]
            ops += [lambda A=A, q=q: e.op(f"v_pk_max_i16 {v(A+q)}, {v(A+q)}, 0") for q in range(4)]
            ops.append(lambda A=A, g=g: e.op(f"buffer_store_dwordx4 {v(A,4)}, {v(V_LH)}, {s(S_WS,4)}, {s(S_ST2B if g & 1 else S_ST2)} offen offset:{(g >> 2) * 2048 + ((g >> 1) & 1) * 128} sc1", tag="st2"))
            groups.append(ops)
        return groups

    def stage1_stream(self, fill, m0, m1, swap):
        e = self.e
        for m in range(m0, m1):
            st, i = divmod(m, 32)
            j, tt, ks = self.tile_of(i)
            if ("w", st, 2 * j + ks) in e.lg or ("x", st, ks, tt) in e.lg:
                e.wait(lg=[("w", st, 2 * j + 1), ("x", st, 1, tt | 1)])
            acc = v(self.accreg(st // 10, tt, j, swap), 4)
            wf = v(V_FR + 4 * (2 * j + ks), 4)
            xf = r(self.xreg(self.xst(st), ks, tt), 4)
            c = "0" if (st % 10 == 0 and i % 2 == 0) else acc
            if swap: e.op(f"v_mfma_f32_16x16x32_bf16 {acc}, {xf}, {wf}, {c}")
            else: e.op(f"v_mfma_f32_16x16x32_bf16 {acc}, {wf}, {xf}, {c}")
            for fn in fill[m]: fn()

    def ones_init(self):
        e = self.e
        def first():
            e.op(f"s_mov_b32 {s(S_MASK)}, 0x11000000")
            e.op(f"s_mov_b32 {s(S_MASK+1)}, 0x11000000")
            e.op(f"v_mov_b32 {v(VF)}, 0x3f803f80")
        return [first, lambda: e.op(f"v_cndmask_b32 {v(VF)}, 0, {v(VF)}, {s(S_MASK,2)}")] + \
               [lambda i=i: e.op(f"v_mov_b32 {v(VF + i)}, {v(VF)}") for i in range(1, 8)]

    def stage1(self):
        e = self.e
        lead = self.LEAD
        nc, c0, ne = self.o("tnc", 0), self.o("tch0", 2), self.o("tne", 1)
        S_TX, S_TW = 98, 99
        tstr = self.o("tstr", nc)
        def touch_setup():
            e.op(f"s_lshl2_add_u32 {s(S_T0)}, s2, {s(S_WAVE)}")
            nx, nw_ = -(-2048 // 960), 2 * nc
            e.op(f"v_min_u32 {v(30)}, {nx * nc - 1}, {v(V_LANE)}")
            e.op(f"v_mul_u32_u24 {v(31)}, {-(-65536 // nc)}, {v(30)}")
            e.op(f"v_lshrrev_b32 {v(31)}, 16, {v(31)}")
            e.op(f"v_mul_u32_u24 {v(31)}, {10 - nc}, {v(31)}")
            e.op(f"v_add_lshl_u32 {v(30)}, {v(30)}, {v(31)}, 7")
            e.op(f"s_mul_i32 {s(S_TX)}, {s(S_T0)}, {nx * 1280}")
            e.op(f"v_min_u32 {v(31)}, {nw_ - 1}, {v(V_LANE)}")
            e.op(f"v_lshlrev_b32 {v(31)}, 7, {v(31)}")
            e.op(f"s_mul_i32 {s(S_TW)}, {s(S_T0)}, {nw_ * 128}")
            e.op(f"s_add_u32 {s(S_TW)}, {s(S_TW)}, {c0 * 64 * 3840}")
        def touch(k):
            if k == 0: touch_setup()
            e.op(f"buffer_load_dword {v(28)}, {v(30)}, {s(S_X,4)}, {s(S_TX)} offen offset:{(c0 + k * tstr) * 128}")
            if k: e.op(f"s_add_u32 {s(S_TW)}, {s(S_TW)}, {tstr * 64 * 3840}")
            e.op(f"buffer_load_dword {v(29)}, {v(31)}, {s(S_WA,4)}, {s(S_TW)} offen")
        tpos = [self.o("tpos", 0) + k * self.o("tstep", 1) for k in range(ne)] if nc else []
        def touch_at(p):
            for k in range(len(tpos)):
                if tpos[k] == p: touch(k)
        touch_at(-1)
        z5 = self.o("zoom", 0) == 5 and self.stamps
        if z5: e.op("s_memrealtime s[98:99]")
        for f in self.dmas(0): f()
        if z5: e.op("s_memrealtime s[100:101]")
        touch_at(0)
        self.pi_setup(None, True)
        self.common_setup()
        self.stage1_tables()
        d1 = self.dmas(1)
        for f in d1[:4]: f()
        self.rt_tables(L_RT)
        lsu = self.o("lsu", 4)
        if not lsu: self.late_lane_tables()
        for f in d1[4:]: f()
        touch_at(1)
        if z5: self.stamp(3, True)
        e.wait(lg="all")
        if z5:
            e.op(f"v_writelane_b32 {v(V_STAMP)}, s98, 1")
            e.op(f"v_writelane_b32 {v(V_STAMP)}, s100, 2")
            self.stamp(4, True)
        self.flush_stamp()
        rtp = self.o("rtpos", 1)
        def rt_go():
            e.op(f"s_mul_i32 {s(S_T5)}, {s(S_WAVE)}, 2560")
            self.rt_loads(L_RT, S_RTSRC, S_T5)
        def gw_go():
            e.op(f"s_mov_b64 {s(S_MISC,2)}, {s(S_PG,2)}")
            e.op(f"s_cmp_eq_u32 {s(S_CG2)}, 14")
            e.op(f"s_cselect_b32 {s(S_MISC+2)}, 1280, 0")
            e.op(f"s_lshr_b32 {s(S_T5)}, {s(S_WM0)}, 1")
            e.op(f"s_add_u32 m0, {s(S_T5)}, {L_GW}")
            for n in range(2):
                e.op(f"buffer_load_dwordx4 {v(V_L16)}, {s(S_MISC,4)}, 0 offen offset:{n * 1024} lds", tag="gw")
        e.op(f"s_lshr_b32 {s(S_CG2)}, {s(S_BITS)}, 28")
        self.rt_srd()
        if rtp == 1: rt_go()
        self.flag_init()
        if not lsu:
            self.w1_columns(); self.late_table_use()
        fill, used = self.stage1_fill()
        vfill = {m: [] for m in range(-1, 640)}
        G2 = lambda k, d: 2 * self.o(k, d)
        dq = []
        for st in range(2, 20):
            d = self.dmas(st)
            rel = 32 * (st - (2 if st < 10 else 4)) - lead + 1
            g0 = max(32 * (st - 2) - lead + 1, 0); g1 = 32 * (st - 1) - lead - 2
            dq += [(rel, g0 + i * (g1 - g0) // len(d), 72, f) for i, f in enumerate(d)]
            if st == rtp: dq.append((rel, g1 - 1, 180, rt_go))
            if st == 9: dq.append((rel, g1 - 1, 40, gw_go))
            if st in tpos: dq.append((rel, g1 - 1, 40, lambda st=st: touch_at(st)))
        pA, cA = G2("pollA", 263), G2("chkA", 280)
        assert cA > 32 * 16 - lead
        kv = self.kvq_loads()
        dq += [(cA + 1, cA + 1 + i * (634 - cA) // len(kv), 72, f) for i, f in enumerate(kv)]
        rs0 = G2("rs0", 16 * rtp + 30)
        rr0 = 32 * (rtp + 2) - lead - 6 if rs0 >= 32 * (rtp + 2) - lead else 32 * (rtp + 1) - lead + 4
        assert rs0 > rr0 + 4
        for i, f in enumerate(self.rt_reads()):
            fill[rr0 + i // 2].append(f); used[rr0 + i // 2] += 1
        sq = [(rs0 + 12 * i, rs0 + 12 * i, 128, f) for i, f in enumerate(self.rt_stores())]
        sq.append((rs0 + 28, rs0 + 28, 20, self.nonce_issue))
        pd = (rs0 + 28 + 48 + lead + 31) // 32 * 32 - lead
        pd = max(pd, 32 * self.o("pdst", 0) - lead)
        fill[pd].insert(0, self.nonce_check)
        sq.append((pd + 1, pd + 1, 20, lambda: self.publish(S_RTF)))
        sp, e0 = G2("epi", 4), self.o("e0", 321)
        assert e0 >= 306 and e0 + 4 * sp > 321
        epi1 = self.p1_epilogue_ops()
        self.epi1_flat = sum(epi1, [])
        for g, ops in enumerate(epi1): sq.append((e0 + sp * (g + 1), e0 + sp * (g + 1), self.o("stc", 160), ops[-1]))
        def pub_a():
            e.wait(vm="st1")
            self.publish(S_FLA)
            if self.o("stpub", 0): self.stamp(1)
        pD, cD = G2("pollD", 222), G2("chkD", 240)
        assert cD >= 32 * 15
        sq += sorted([(pD, pD, 20, lambda: self.poll_issue(V_FD)), (G2("pubA", 216), G2("pubA", 216), 20, pub_a)], key=lambda x: x[0])
        vfill[cD].append(lambda: self.poll_check(V_FD, 1)); used[cD] += 3
        sq.append((pA, pA, 30, lambda: self.poll_issue(V_FA)))
        if self.o("pollA2", 0): sq.append((G2("pollA2", 0), G2("pollA2", 0), 30, lambda: self.poll_again(V_FA)))
        vfill[cA].append(lambda: self.poll_check(V_FA, 0)); used[cA] += 3
        vfill[cA].append(lambda: self.stamp(3))
        ew = sum([self.w_loads(n) for n in self.EARLY_W], [])
        wq = [(cD + 1, cA - 4 * (len(ew) - i), 72, f) for i, f in enumerate(ew)]
        self.vm_schedule(fill, used, [dq, sq, wq], 0, 640, self.o("thr", 80))
        if lsu: self.va_place(vfill, used, self.capture(self.w1_columns, self.late_lane_tables, self.late_table_use), self.o("lsu0", 0) * 32, 32 * lsu)
        for g, ops in enumerate(epi1): self.va_place(vfill, used, ops[:-1], e0 + sp * g, e0 + sp * (g + 1))
        self.va_place(vfill, used, self.ones_init(), e0 + sp * 8 + 8, e0 + sp * 8 + 40)
        epi2 = self.p2_epilogue_ops()
        self.p2_stores_left = [g[-1] for g in epi2]
        va = sum([g[:-1] for g in epi2], [])
        if self.o("qh", 1): self.va_place(vfill, used, self.q_mask_ops(), 604, 626)
        nh = self.o("p2h", 24)
        self.va_place(vfill, used, va[:nh], 626, 640)
        self.p2_valu_left = va[nh:]
        z = self.o("zoom", 0)
        if z in (1, 2):
            for k in range(11):
                m = min(320 * (z - 1) + 32 * k - 1, 639 if z == 2 else 318)
                if z == 2 and k == 0: m = 320
                vfill[m].append(lambda k=k: self.stamp(1 + k, True))
            vfill[319].append(self.flush_stamp)
        for m in fill: fill[m] += vfill[m]
        done = [f for m in range(320) for f in fill[m]]
        self.epi1_left = [f for f in self.epi1_flat if f not in done]
        if z5: self.stamp(5, True)
        for fn in fill[-1]: fn()
        if z5:
            self.stamp(6, True); self.flush_stamp()
        if z == 1: self.flush_stamp()
        self.stamp(1)
        e.op(f"s_cmp_ge_u32 {s(S_CG)}, 10")
        e.op("s_cbranch_scc1 L_p1v")
        snap = e.snapshot()
        self.stage1_stream(fill, 0, 320, False)
        e.op("s_branch L_p2")
        after = e.snapshot()
        e.restore(snap)
        e.label("L_p1v")
        self.stage1_stream(fill, 0, 320, True)
        assert after[0] == e.vm and after[1] == e.lg
        e.label("L_p2")
        e.op(f"s_cmp_eq_u32 {s(S_CG2)}, 14")
        e.op("s_cbranch_scc1 L_gate")
        self.gate_snap = e.snapshot()
        self.phase = 1
        self.stamp(2)
        self.wv = None
        self.stage1_stream(fill, 320, 640, False)
        self.flush_stamp()

    def side_tail(self, early=True):
        e = self.e
        if early:
            if self.o("go", 1) & 1:
                e.op(f"s_sub_u32 {s(S_T1)}, s2, 240")
                e.op(f"s_lshl4_add_u32 {s(S_T1)}, {s(S_T1)}, {s(S_WAVE)}")
                e.op(f"s_lshl3_add_u32 {s(S_T1)}, {s(S_T1)}, {FL_GO}")
                e.op(f"v_mov_b32 {v(28)}, {s(S_T1)}")
                self.poll_issue(28); self.poll_check(28, 5)
            self.poll_issue(V_FD)
            for f in self.ones_init(): f()
            self.poll_check(V_FD, 1)
            self.wv = None
            ew = sum([self.w_loads(n) for n in self.EARLY_W], [])
            if self.o("go", 1) & 2:
                for f in ew: f()
                e.op(f"v_mov_b32 {v(28)}, {s(S_PFG)}")
                self.poll_issue(28); self.poll_check(28, 5)
                self.poll_issue(V_FA)
            else:
                for f in ew[:self.o("spa", 20)]: f()
                self.poll_issue(V_FA)
                for f in ew[self.o("spa", 20):]: f()
        self.poll_check(V_FA, 0)
        for f in self.kvq_loads(): f()
        if self.o("qh", 1):
            for f in self.q_mask_ops(): f()
        e.wait(lg="all")
        n = min(len(self.att_vm), 21)
        assert self.o('abl', 0) or n >= 10 and e.vm[-n:] == self.att_vm[-n:] and all(t[0] == "w" or t == "poll2" for t in self.att_vm[:-n])
        e.op("s_branch L_att")

    def gate(self):
        e = self.e
        T1, T2, T3 = v(V_T1), v(V_T2), v(V_T3)
        e.restore(self.gate_snap)
        e.label("L_gate")
        self.phase = 1
        self.stamp(1)
        self.poll_issue(V_FD)
        def go():
            e.op(f"s_lshr_b32 {s(S_T1)}, {s(S_TB1)}, 2")
            e.op(f"s_lshl4_add_u32 {s(S_T1)}, {s(S_T1)}, {s(S_WAVE)}")
            e.op(f"s_lshl3_add_u32 {s(S_T1)}, {s(S_T1)}, {FL_GO}")
            self.publish(S_T1)
        if self.o("gok", 2) < 0: go()
        e.op(f"s_lshr_b32 {s(S_T3)}, {s(S_WM0)}, 1")
        e.op(f"s_add_u32 {s(S_T3)}, {s(S_T3)}, {L_GW}")
        e.op(f"v_lshrrev_b32 {T1}, 4, {v(V_LANE)}")
        e.op(f"v_lshl_add_u32 {T1}, {T1}, 4, {s(S_T3)}")
        assert "gw" in e.all_tags
        e.wait(vm="gw", lg="all")
        epi = list(self.epi1_left)
        self.wv = None
        ew = sum([self.w_loads(n) for n in self.EARLY_W], [])
        G = 32
        order = [9, 0, 1, 2, 7, 3, 4, 5, 6, 8]
        def gread(k):
            if k % 2 == 0:
                self.pi_off(S_T4, order[k // 2], 0)
                e.op(f"v_add_u32 {T2}, {s(S_T4)}, {T1}")
            e.op(f"ds_read_b128 {v(G + 4 * (k % 4), 4)}, {T2} offset:{64 * (k % 2)}", tag=("g", k))
        for k in range(4): gread(k)
        while len(epi) > 13 * (8 - self.o("gpre", 4)): epi.pop(0)()
        for k in range(20):
            if k == self.o("gpub", 14):
                assert not epi
                e.wait(vm="st1")
                self.publish(S_FLA)
                self.stamp(2)
                self.poll_check(V_FD, 1)
            if k == self.o("gok", 2): go()
            if k > max(self.o("gpub", 14), 7): ew.pop(0)()
            xs, ks = order[k // 2], k % 2
            e.wait(lg=[("g", k), ("x", xs, ks, 3)])
            for tt in range(4):
                e.op(f"v_mfma_f32_16x16x32_bf16 {v(48 + 4 * tt, 4)}, {v(G + 4 * (k % 4), 4)}, {r(self.xreg(xs, ks, tt), 4)}, {'0' if k == 0 else v(48 + 4 * tt, 4)}")
                if k in (2, 3, 10, 11): self.x_read(7 if k < 8 else 5, ks, tt)
                if tt == 3 and k + 4 < 20: gread(k + 4)
                for _ in range(2 if tt < 3 else 0):
                    if epi: epi.pop(0)()
        assert not epi
        e.op("s_barrier")
        for f in self.ones_init(): f()
        e.op(f"s_bitcmp1_b32 {s(S_WAVE)}, 0")
        e.op(f"s_cselect_b64 {s(S_MASK,2)}, -1, 0")
        e.op("s_mov_b32 vcc_lo, 0xffff0000")
        e.op("s_mov_b32 vcc_hi, 0xffff0000")
        e.op(f"v_cndmask_b32 v0, v48, v56, {s(S_MASK,2)}")
        e.op(f"v_cndmask_b32 v4, v52, v60, {s(S_MASK,2)}")
        e.op("v_cndmask_b32 v0, v0, v4, vcc")
        e.op(f"v_min_f32 {T1}, {f32(30.0)}, v0")
        e.op(f"v_mul_f32 {T1}, {f32(LOG2E)}, {T1}")
        e.op(f"v_exp_f32 {T1}, {T1}")
        e.op(f"v_add_f32 {T2}, 1.0, {T1}")
        e.op(f"v_rcp_f32 {T2}, {T2}")
        e.op(f"v_cmp_gt_u32 vcc, 32, {v(V_LANE)}")
        e.op(f"v_and_b32 {T3}, 39, {v(V_LANE)}")
        e.op(f"v_bfe_u32 v1, {v(V_LANE)}, 3, 1")
        e.op(f"v_lshl_add_u32 {T3}, v1, 4, {T3}")
        e.op(f"v_bfe_u32 v1, {v(V_LANE)}, 4, 1")
        e.op(f"v_lshl_add_u32 {T3}, v1, 3, {T3}")
        e.op(f"v_lshlrev_b32 {T3}, 2, {T3}")
        e.op(f"s_lshl_b32 {s(S_T1)}, {s(S_TB1)}, 8")
        e.op(f"s_add_u32 {s(S_T1)}, {s(S_T1)}, {WS_G}")
        e.op(f"v_cndmask_b32 {T1}, {T2}, {T1}, vcc")
        e.op(f"buffer_store_dword {T1}, {T3}, {s(S_WS,4)}, {s(S_T1)} offen sc1", tag="gs")
        e.op(f"v_bfe_u32 {T2}, {v(V_LANE)}, 2, 2")
        e.op(f"v_and_b32 {T3}, 3, {v(V_LANE)}")
        e.op(f"v_lshlrev_b32 {T3}, 3, {T3}")
        e.op(f"v_lshl_add_u32 {T2}, {T2}, 7, {T3}")
        e.op(f"v_add_u32 {v(225)}, {FL_D + 60 * 128}, {T2}")
        self.poll_issue(225)
        for f in ew: f()
        self.poll_check(225, 4)
        self.poll_issue(V_FA)
        e.op(f"s_or_b32 {s(S_T1)}, {s(S_FLA)}, {15 * 128}")
        self.publish(S_T1)
        self.stamp(3)
        self.flush_stamp()
        self.side_tail(False)

    def spare(self):
        e = self.e
        e.restore(self.spare_snap)
        e.label("L_spare")
        L = v(V_LANE); T0, T1, T2, T3 = v(V_T0), v(V_T1), v(V_T2), v(V_T3)
        e.op(f"s_memrealtime {s(S_NONCE,2)}")
        e.op(f"s_lshl_b32 {s(S_T0)}, {s(S_WAVE)}, 3")
        e.op(f"s_lshr_b32 {s(S_T0)}, {hex(32 | (40 << 8) | (16 << 16) | (48 << 24))}, {s(S_T0)}")
        e.op(f"s_and_b32 {s(S_T0)}, {s(S_T0)}, 0xff")
        e.op(f"s_load_dwordx2 {s(S_MISC,2)}, s[0:1], {s(S_T0)}")
        self.common_setup()
        e.op(f"s_mov_b32 {s(S_MISC+2)}, {640 * 3456}")
        e.op(f"s_cmp_eq_u32 {s(S_WAVE)}, 2")
        e.op(f"s_cselect_b32 {s(S_MISC+2)}, {640 * 1280}, {s(S_MISC+2)}")
        e.op(f"s_cmp_eq_u32 {s(S_WAVE)}, 3")
        e.op(f"s_cselect_b32 {s(S_MISC+2)}, 1280, {s(S_MISC+2)}")
        e.op(f"s_cselect_b32 {s(S_T2)}, 7, 16")
        e.op(f"v_lshlrev_b32 {T0}, {s(S_T2)}, {L}")
        e.op(f"s_sub_u32 {s(S_T1)}, s2, 240")
        e.op(f"s_lshl2_add_u32 {s(S_T1)}, {s(S_T1)}, {s(S_WAVE)}")
        e.op(f"s_lshl_b32 {s(S_T2)}, {s(S_T1)}, 13")
        e.op(f"v_lshl_add_u32 {v(225)}, {L}, 7, {s(S_T2)}")
        e.wait(lg="all")
        self.table_loads()
        e.op(f"s_or_b32 {s(S_T2)}, {s(S_NONCE)}, 1")
        e.op(f"v_mov_b32 {v(V_NONCE)}, {s(S_T2)}")
        e.op(f"v_mov_b32 {v(V_NONCE+1)}, {s(S_NONCE+1)}")
        e.op(f"s_cmp_lg_u32 {s(S_T1)}, 0")
        e.op("s_cbranch_scc1 L_nononce")
        e.op("s_mov_b64 exec, 1")
        e.op(f"buffer_store_dwordx2 {v(V_NONCE,2)}, {v(V_ZERO)}, {s(S_DBG,4)}, 0 offen sc1")
        e.op("s_mov_b64 exec, -1")
        e.label("L_nononce")
        e.op(f"buffer_load_dword {v(224)}, {T0}, {s(S_MISC,4)}, 0 offen")
        def touch(m):
            m = m + self.o("tb4", 3) if m >= 0 else -1 - m
            if self.o("pf2", 1) and m < 5:
                e.op(f"s_mov_b32 {s(S_T2)}, {m * 4096 * 128}")
                e.op(f"buffer_load_dword {v(224)}, {v(225)}, {s(S_WB,4)}, {s(S_T2)} offen")
        if self.o("pf49", 0):
            c = self.o("pf49", 0)
            e.op(f"v_lshrrev_b32 {T2}, 8, {v(225)}")
            e.op(f"v_mul_u32_u24 {T2}, 1280, {T2}")
            e.op(f"v_bfe_u32 {T3}, {v(225)}, 7, 1")
            e.op(f"v_mul_u32_u24 {T3}, 640, {T3}")
            e.op(f"v_add_u32 {T2}, {T2}, {T3}")
            e.op(f"buffer_load_dword {v(224)}, {T2}, {s(S_X,4)}, 0 offen offset:{c * 128}")
            e.op(f"v_lshrrev_b32 {T2}, 8, {v(225)}")
            e.op(f"v_min_u32 {T2}, 1919, {T2}")
            e.op(f"v_lshlrev_b32 {T2}, 7, {T2}")
            e.op(f"v_mul_u32_u24 {T3}, {5 * 64 * 3840 // 640}, {T3}")
            e.op(f"v_add_u32 {T2}, {T2}, {T3}")
            e.op(f"s_mov_b32 {s(S_T2)}, {c * 64 * 3840}")
            e.op(f"buffer_load_dword {v(224)}, {T2}, {s(S_WA,4)}, {s(S_T2)} offen")
        for m in range(self.o("tb4", 3)): touch(-1 - m)
        e.op(f"v_mov_b32 {v(V_LH)}, 0")
        self.rt_tables(0)
        e.wait(lg="all")
        e.op(f"s_mul_i32 {s(S_T0)}, {s(S_WAVE)}, 2560")
        for m, src in enumerate((S_RTSRC, S_ST1, S_ST1B, S_SCALE)):
            self.rt_srd(S_TB1, m)
            self.rt_loads(m * 10240, src, S_T0)
        self.flag_init(True)
        touch(0)
        self.late_lane_tables()
        self.late_table_use()
        e.wait(vm="rl")
        e.op("s_barrier")
        self.stamp(1)
        touch(1)
        for m, so in enumerate((S_RTS, S_ST2, S_ST2B, S_FLA)):
            for f in self.rt_reads(m * 10240, 96 + 12 * m) + self.rt_stores(96 + 12 * m, so): f()
        for so in (S_ST2, S_ST2B, S_FLA): e.op(f"s_mov_b32 {s(so)}, {OOB}")
        self.nonce_issue()
        touch(2)
        self.nonce_check()
        e.op("s_barrier")
        self.publish(S_RTF)
        self.stamp(3)
        touch(3)
        touch(4)
        self.stamp(2)
        self.flush_stamp()
        self.side_tail()

    def k_reads(self, u):
        h, j = divmod(u, 9)
        for ff in range(2):
            self.e.op(f"ds_read_b128 {v(KF + 4 * ff, 4)}, {v(V_KA)} offset:{(h + ff) * 12288 + j * 1024}", tag="k")
    def v_reads(self, u):
        h, j = divmod(u, 9)
        e = self.e
        e.op(f"s_mov_b64 exec, {s(S_VM,2)}")
        for ss in range(2):
            e.op(f"ds_read_b128 {v(VF + 4 * ss, 4)}, {v(V_VA)} offset:{j * 3072 + ss * 1280 + h * 320}", tag="v")
        e.op("s_mov_b64 exec, -1")
    def qk(self, u, part, S, lo=False):
        h, j = divmod(u, 9)
        c = v(S, 16) if part else v(CD, 16) if j == 8 else v(CE, 16) if (j == 0 or lo) else "0"
        self.e.op(f"v_mfma_f32_32x32x16_bf16 {v(S,16)}, {v(KF + 4 * part, 4)}, {v(QM + 8 * h + 4 * part, 4)}, {c}")
    def pv(self, u, part, S, first):
        O = v(OO[u // 9], 16)
        self.e.op(f"v_mfma_f32_32x32x16_bf16 {O}, {v(VF + 4 * part, 4)}, {v(S + 4 * part, 4)}, {'0' if first else O}")

    def q_mask_ops(self):
        e = self.e
        M1, M3, M4 = S_MASK, S_PHI + 2, S_PHI + 4
        def masks():
            e.op(f"s_bitcmp1_b32 {s(S_BITS)}, 0")
            e.op(f"s_cselect_b64 {s(M1,2)}, 0, -1")
            e.op(f"s_cselect_b32 {s(M3+1)}, -1, 0")
            e.op(f"s_cselect_b32 {s(M4)}, -1, 0")
        ops = [masks, lambda: e.op(f"s_mov_b32 {s(M3)}, -1"), lambda: e.op(f"s_mov_b32 {s(M4+1)}, 0"), lambda: e.wait(vm="q")]
        how = {(0, 0, 0): (M1, 1), (0, 0, 1): None, (0, 1, 0): (M3, 1), (0, 1, 1): (M4, 1),
               (1, 0, 0): (M3, 0), (1, 0, 1): (M4, 0), (1, 1, 0): None, (1, 1, 1): (M1, 0)}
        val = {M1: lambda par, hf: par == 0, M3: lambda par, hf: hf == 0 or par == 1, M4: lambda par, hf: par == 1 and hf == 0}
        for (h, ff, slot), hw in how.items():
            for par in range(2):
                for hf in range(2):
                    keep = 0 <= 4 * (h + ff) + 2 * slot + hf - 2 * par - 5 * h < 5
                    assert keep == (True if hw is None else val[hw[0]](par, hf) == bool(hw[1]))
            for d in range(2):
                dst, src = v(QM + 8 * h + 4 * ff + 2 * slot + d), v(VQ + 4 * (h + ff) + 2 * slot + d)
                if hw is None: t = f"v_mov_b32 {dst}, {src}"
                elif hw[1]: t = f"v_cndmask_b32 {dst}, 0, {src}, {s(hw[0],2)}"
                else: t = f"v_cndmask_b32 {dst}, {src}, 0, {s(hw[0],2)}"
                ops.append(lambda t=t: e.op(t))
        return ops

    def attention(self):
        e = self.e
        e.label("L_att")
        self.phase = 2
        self.att_vm = list(e.vm)
        self.stamp(4)
        T0 = v(V_T0)
        stores = list(self.p2_stores_left)
        if not self.o("qh", 1):
            for f in self.q_mask_ops(): f()
        e.wait(vm="kd")
        e.op("s_barrier")
        self.k_reads(0)
        for f in self.p2_valu_left: f()
        for _ in range(self.o("ns1", 1)): stores.pop(0)()
        self.stamp(5)
        side = {(u, k): [] for u in range(18) for k in range(4)}
        wl = sum([self.w_loads(n) for n in range(NWR) if n not in self.EARLY_W], []) + self.wl_dmas()
        slots = [(u, k) for u in range(18) for k in range(4)]
        sst = self.o("sst", 1)
        for i, f in enumerate(stores): side[slots[sst * i]].append(f)
        def pub_c():
            e.wait(vm="st2")
            self.publish(S_FLA, 32)
        pubC, pC, cC = self.o("pubC", 24), self.o("pollC", 50), self.o("chkC", 61)
        side[slots[pubC]].append(pub_c)
        side[slots[pC]].append(lambda: self.poll_issue(V_FC))
        if self.o("pollC2", 0): side[slots[self.o("pollC2", 0)]].append(lambda: self.poll_again(V_FC))
        def chk_c():
            self.poll_check(V_FC, 2); self.stamp(6)
            e.op(f"buffer_load_dword {v(V_R)}, {v(V_R)}, {s(S_WS,4)}, 0 offen sc1", tag="r")
        hl = [(n + k, t) for n in (0, 2) for t in range(4) for k in range(2)]
        taken = {pubC, pC, cC} | {sst * i for i in range(len(stores))}
        skip = self.o("wskip", 0)
        acc, rate = 0, self.o("wrate", 16)
        for i, x in enumerate(slots):
            if i == cC: side[x].append(chk_c)
            if i in taken: continue
            skip -= 1
            if skip >= 0: continue
            acc += rate
            if acc < 16: continue
            acc -= 16
            if wl: side[x].append(wl.pop(0))
            elif i > cC and hl:
                n, t = hl.pop(0)
                side[x].append(lambda n=n, t=t: self.h_load(n, t))
        assert not wl
        self.h_left = hl
        def fill_ce(val):
            for i in range(16): e.op(f"v_mov_b32 {v(CE + i)}, {val}")
        def steps(lo):
            def open_at(jn):
                st, bk = self.L("open"), self.L("open_ok")
                e.op(f"s_cmp_eq_u32 {s(S_TQ)}, {8 - jn}")
                e.op(f"s_cbranch_scc1 {st}")
                e.label(bk)
                def stub():
                    e.label(st, reset=True)
                    e.op("s_nop 7")
                    fill_ce(0)
                    e.op("s_nop 0")
                    e.op(f"s_branch {bk}")
                self.stubs.append(stub)
            live = lambda u: 0 <= u < 18 and not (lo and u % 9 == 0 and self.o("losk", 1))
            if lo: fill_ce(hex(NEGBIG))
            e.wait(lg="k")
            if live(0):
                self.qk(0, 0, SB[0], lo); self.qk(0, 1, SB[0], lo)
            self.k_reads(1)
            if lo: open_at(1)
            for u in range(18):
                if self.o("zoom", 0) == 3 and u % 2 == 0: self.stamp(1 + u // 2, True)
                S, Sn, Sp = SB[u % 3], SB[(u + 1) % 3], SB[(u - 1) % 3]
                ex = lambda i: live(u) and e.op(f"v_exp_f32 {v(S + i)}, {v(S + i)}")
                cv = lambda i: live(u) and e.op(f"v_cvt_pk_bf16_f32 {v(S + i)}, {v(S + 2 * i)}, {v(S + 2 * i + 1)}")
                if live(u + 1):
                    e.wait(lg="k")
                    self.qk(u + 1, 0, Sn, lo)
                for f in side[(u, 0)]: f()
                for i in range(0, 4): ex(i)
                if live(u + 1): self.qk(u + 1, 1, Sn, lo)
                e.wait(lg="v")
                if live(u + 2): self.k_reads(u + 2)
                for f in side[(u, 1)]: f()
                for i in range(4, 8): ex(i)
                cv(0); cv(1)
                if live(u - 1): self.pv(u - 1, 0, Sp, (u - 1) % 9 == 0 or not live(u - 2))
                if lo and u + 2 == 9: fill_ce(hex(NEGBIG))
                if lo and u + 2 < 18 and 1 <= (u + 2) % 9 <= 7: open_at((u + 2) % 9)
                for f in side[(u, 2)]: f()
                for i in range(8, 12): ex(i)
                cv(2); cv(3)
                if live(u - 1): self.pv(u - 1, 1, Sp, False)
                if u > 0 and live(u): self.v_reads(u)
                for f in side[(u, 3)]: f()
                for i in range(12, 16): ex(i)
                for i in range(4, 8): cv(i)
                if u == 0:
                    e.wait(vm="vd")
                    e.op("s_barrier")
                    if live(0): self.v_reads(0)
            e.wait(lg="v")
            self.pv(17, 0, SB[17 % 3], False); self.pv(17, 1, SB[17 % 3], False)
            self.flush_stamp()
        self.flush_stamp()
        e.op(f"s_cmp_lt_u32 {s(S_TQ)}, 8")
        e.op("s_cbranch_scc1 L_att_lo")
        snap0, wv0 = e.snapshot(), self.wv
        steps(False)
        snap1 = e.snapshot()
        def att_lo():
            e.restore(snap0); self.wv = wv0
            e.label("L_att_lo")
            self.phase = 2
            steps(True)
            assert e.vm == snap1[0] and e.lg == snap1[1]
            e.op("s_branch L_att_join")
        self.att_lo = att_lo
        e.label("L_att_join")
        self.stamp(7)
        for h in range(2):
            O = OO[h]
            st, bk = self.L("slow"), self.L("slow_ok")
            e.op(f"v_subrev_u32 {T0}, 0x2f800000, {v(O + 12)}")
            e.op(f"v_cmp_le_u32 vcc, 0x20000000, {T0}")
            if self.o("forceslow", 0): e.op("s_mov_b64 vcc, -1")
            if self.o("abl", 0): e.op("s_mov_b64 vcc, 0")
            for _ in range(2 - h):
                if self.h_left:
                    n, t = self.h_left.pop(0); self.h_load(n, t)
            e.op(f"s_cbranch_vccnz {st}")
            e.label(bk)
            self.cold.append(lambda st=st, bk=bk, h=h: self.slow_head(h, st, bk))
        OP = 0
        ep = []
        A = lambda t, tag=None: ep.append(lambda: e.op(t, tag=tag))
        for h in range(2): A(f"v_rcp_f32 {v(V_T2 + h)}, {v(OO[h] + 12)}")
        ep.append(lambda: e.wait(vm="r"))
        for h in range(2): A(f"v_mul_f32 {v(V_T2 + h)}, {v(V_T2 + h)}, {v(V_R)}")
        for h in range(2):
            O = OO[h]
            for i in range(8): A(f"v_mul_f32 {v(O + i)}, {v(O + i)}, {v(V_T2 + h)}")
            for i in range(4): A(f"v_cvt_pk_bf16_f32 {v(OP + 4 * h + i)}, {v(O + 2 * i)}, {v(O + 2 * i + 1)}")
            A(f"buffer_store_dwordx4 {v(OP + 4 * h, 4)}, {v(V_L16)}, {s(S_WS,4)}, {s(S_OST)} offen offset:{h * 1024} sc1", "sto")
        for h in range(2):
            O = OO[h]
            for i in range(8, 12): A(f"v_mul_f32 {v(O + i)}, {v(O + i)}, {v(V_T2 + h)}")
            for i in range(2): A(f"v_cvt_pk_bf16_f32 {v(OP + 8 + 2 * h + i)}, {v(O + 8 + 2 * i)}, {v(O + 9 + 2 * i)}")
        A(f"buffer_store_dwordx4 {v(OP + 8, 4)}, {v(V_L16H)}, {s(S_WS,4)}, {s(S_OST2)} offen sc1", "sto")
        self.o_epilogue = ep

    def slow_head(self, h, st, bk):
        e = self.e
        e.label(st, reset=True)
        e.vm, e.lg = [], []
        T0, MX = v(V_T0), v(V_T1)
        O, S = OO[h], SB[0]
        e.op("s_nop 15")
        e.op(f"v_mov_b32 {MX}, {hex(NEGBIG)}")
        for i in range(16): e.op(f"v_mov_b32 {v(O + i)}, 0")
        for ps in range(2):
            for j in range(9):
                u = 9 * h + j
                sk = self.L("sk")
                if j < 8:
                    e.op(f"s_cmp_lt_u32 {s(S_TQ)}, {8 - j}")
                    e.op(f"s_cbranch_scc1 {sk}")
                if ps: self.v_reads(u)
                self.k_reads(u)
                e.wait(lg="all")
                self.qk(u, 0, S); self.qk(u, 1, S)
                if ps == 0:
                    for i in range(8): e.op(f"v_max3_f32 {MX}, {MX}, {v(S + 2 * i)}, {v(S + 2 * i + 1)}")
                else:
                    for i in range(16): e.op(f"v_sub_f32 {v(S + i)}, {v(S + i)}, {MX}")
                    for i in range(16): e.op(f"v_exp_f32 {v(S + i)}, {v(S + i)}")
                    for i in range(8): e.op(f"v_cvt_pk_bf16_f32 {v(S + i)}, {v(S + 2 * i)}, {v(S + 2 * i + 1)}")
                    self.pv(u, 0, S, False); self.pv(u, 1, S, False)
                    e.op("s_nop 7")
                e.label(sk)
            if ps == 0:
                e.op(f"v_mov_b32 {T0}, {MX}")
                e.op(f"v_permlane32_swap_b32 {T0}, {MX}")
                e.op("s_nop 1")
                e.op(f"v_max_f32 {MX}, {T0}, {MX}")
        e.op("s_nop 15")
        e.op(f"s_branch {bk}")

    def stage3(self):
        e = self.e
        L = v(V_LANE); T0, T1, T2, T3 = v(V_T0), v(V_T1), v(V_T2), v(V_T3)
        self.phase = 3
        self.stamp(8)
        e.op(f"s_load_dwordx8 {s(TB,8)}, {s(S_TAB,2)}, 128")
        e.op(f"s_load_dwordx4 {s(TB+8,4)}, {s(S_TAB,2)}, 160")
        e.op(f"s_load_dword {s(S_XM0)}, {s(S_TAB,2)}, 176")
        TM = self.TM; n0 = 19 - TM
        setup = []
        A = lambda t, tag=None: setup.append(lambda: e.op(t, tag=tag))
        setup.append(lambda: e.wait(lg="all"))
        A(f"s_movk_i32 {s(S_C1)}, 4096")
        A(f"s_movk_i32 {s(S_C2)}, 8192")
        for t in range(4): A(f"v_add_u32 {v(V_O + t)}, {s(S_OT + t)}, {v(V_HL)}")
        A(f"v_and_b32 {T0}, 15, {L}")
        A(f"v_lshl_add_u32 {v(V_GW)}, {T0}, 2, {s(S_GW)}")
        A(f"buffer_load_dword {v(V_GW)}, {v(V_GW)}, {s(S_WS,4)}, 0 offen sc1", "g")
        for t in range(3): A(f"v_add_u32 {v(V_RR + t)}, {s(S_RED + t)}, {v(V_L16)}")
        A(f"v_add_u32 {v(V_RW)}, {s(S_RED + 3)}, {v(V_L16)}")
        A(f"v_lshrrev_b32 {T1}, 4, {L}")
        A(f"v_mul_u32_u24 {T0}, 1280, {T0}")
        A(f"v_add_u32 {T0}, {s(S_OUTO)}, {T0}")
        A(f"v_lshl_add_u32 {v(V_OUT)}, {T1}, 4, {T0}")
        A(f"v_lshl_add_u32 {v(V_OUT + 1)}, {T1}, 3, {T0}")
        A(f"v_lshrrev_b32 {T0}, 1, {L}")
        A(f"v_min_u32 {T0}, 3, {T0}")
        A(f"v_and_b32 {T1}, 1, {L}")
        A(f"v_lshl_add_u32 {T1}, {T1}, 3, {s(S_PFB)}")
        A(f"v_lshl_add_u32 {v(V_FB)}, {T0}, 7, {T1}")
        cB = self.o("chkB", 12)
        Q = [(0, lambda n=n, t=t: self.h_load(n, t)) for n, t in self.h_left]
        if self.o("skipw", 0):
            wl0 = self.w_loads
            def dst(i):
                if i == 0:
                    e.op(f"s_lshl2_add_u32 {s(S_T2)}, s2, {s(S_WAVE)}")
                    e.op(f"s_mul_i32 {s(S_T2)}, {s(S_T2)}, 5120")
                    e.op(f"s_add_u32 {s(S_T2)}, {s(S_T2)}, {WS_X}")
                if i == 4: e.op(f"s_add_u32 {s(S_T2)}, {s(S_T2)}, 4096")
                e.op(f"buffer_store_dwordx4 {v(16,4)}, {v(V_L16)}, {s(S_WS,4)}, {s(S_T2)} offen offset:{(i & 3) * 1024} sc1")
            def wl1(n):
                for j in range(5): e.all_tags.add(("w", n, j))
                if n == 18: return wl0(n)
                if n == 17 and self.o("skipw", 0) == 1: return [lambda i=i: dst(i) for i in range(5)]
                return []
            self.w_loads = wl1
        def wl_read(n, j):
            e.wait(vm="wl")
            e.op(f"ds_read_b128 {r(WR + 20 * (n % NWR) + 4 * j, 4)}, {v(V_RW)} offset:{(5 * self.LDS_W.index(n) + j) * 1024}", tag="wlr")
            e.all_tags.add(("w", n, j))
        assert n0 % 2 == 0
        after = lambda n: max((n | 1) + 1, 0)
        R = [(max(after(n - 12), 4), lambda n=n, j=j: wl_read(n, j)) for n in self.LDS_W for j in range(5)]
        for n2 in range(4, n0, 2):
            for n in (n2, n2 + 1):
                if n >= 12 and n not in self.LDS_W: Q += [(max(after(n - 12), 4 if n >= 14 else 0), f) for f in self.w_loads(n)]
            Q += [(max(after(n2 - NH), 2 if n2 >= 6 else 0, cB if n2 >= 14 else 0), lambda n=n2 + k, t=t: self.h_load(n, t)) for t in range(4) for k in range(2)]
        for n in range(n0, 19):
            if n not in self.LDS_W: Q += [(max(after(n - 12), 4), f) for f in self.w_loads(n)]
        for t in range(4):
            for n in range(n0, 19):
                i = TM * t + n - n0
                Q.append((max(after(n0 - NH + i // 4), cB), lambda n=n, t=t: self.h_load(n, t)))
        def issue(step):
            for i, (fr, f) in enumerate(Q):
                if fr <= step:
                    Q.pop(i); f(); return True
            return False
        def need(tags, step, also=()):
            while any(t not in e.all_tags for t in tags): assert issue(step)
            if any(t in e.vm for t in tags): e.wait(vm=list(tags) + [t for t in also if t in e.vm])
        def mfma(n, t, j, first=False):
            acc = v(BA + 20 * t + 4 * j, 4)
            e.op(f"v_mfma_f32_16x16x32_bf16 {acc}, {r(WR + 20 * (n % NWR) + 4 * j, 4)}, {v(self.hreg(n, t), 4)}, {'0' if first else acc}")
        lrate = self.o("lr2", 11)
        cnt = 0
        oep = list(self.o_epilogue)
        for step in range(n0):
            n2 = step & ~1
            if step == 2: assert not oep
            if step == 4: assert not setup
            if step == 12:
                assert not R
                e.wait(lg="wlr")
            if self.o("zoom", 0) == 4 and step < 12: self.stamp(1 + step, True)
            if step == self.o("pubB", 4):
                e.wait(vm="sto"); self.publish(S_FLB)
            if step == self.o("pollB", 10): self.poll_issue(V_FB)
            if step == cB:
                self.poll_check(V_FB, 3); self.stamp(9)
            for i in range(20):
                t, j0, k0 = 2 * (step & 1) + i // 10, (i % 10) >> 1, i & 1
                j, n = (4 - j0 if t & 1 else j0), n2 + (k0 ^ ((i >> 1) & 1))
                need([("w", n, j), ("h", n, t)], step, [("w", n2 + 1, 4), ("h", n2 + 1, t)])
                mfma(n, t, j, n2 == 0 and k0 == 0)
                cnt = min(cnt + lrate, 80)
                if cnt >= 40 and k0 and issue(step):
                    cnt -= 40
                elif oep:
                    oep.pop(0)()
                    if oep: oep.pop(0)()
                elif setup:
                    setup.pop(0)()
                elif R and R[0][0] <= step and not k0: R.pop(0)[1]()
        self.stamp(10)
        assert all(self.hreg(n, 3) >= 48 for n in range(n0, 19))
        RD = (0, 20, BA)
        def wr(t, j): e.op(f"ds_write_b128 {v(V_RW)}, {v(BA + 20 * t + 4 * j, 4)} offset:{t * 5120 + j * 1024}", tag=("red", t))
        def rd(sl, j): e.op(f"ds_read_b128 {v(RD[sl] + 4 * j, 4)}, {v(V_RR + sl)} offset:{j * 1024}", tag=("rd", sl, j))
        def add01(k):
            if k % 4 == 0: e.wait(lg=("rd", 1, k // 4))
            e.op(f"v_add_f32 {v(RD[0] + k)}, {v(RD[0] + k)}, {v(RD[1] + k)}")
        def bar01():
            e.wait(lg=("red", 1))
            e.op("s_barrier")
        F = BA + 60
        for t in range(4):
            q = [None] * 3 + [lambda j=j: wr(t - 1, j) for j in range(5)] if t else []
            if t == 3:
                q = [bar01] + [lambda j=j, sl=sl: rd(sl, j) for j in range(2) for sl in range(2)] + q[3:] + \
                    [lambda j=j, sl=sl: rd(sl, j) for j in range(2, 5) for sl in range(2)]
                adds = [lambda k=k: add01(k) for k in range(20)]
            i = 0
            for j in range(5):
                for n in (range(n0, 19) if j % 2 == 0 else range(18, n0 - 1, -1)):
                    need([("w", n, j), ("h", n, t)], 99)
                    mfma(n, t, j)
                    if Q and i % 4 == 0: issue(99)
                    elif q:
                        f = q.pop(0)
                        if f: f()
                    elif t == 3:
                        for _ in range(2):
                            if adds: adds.pop(0)()
                    i += 1
            for f in q:
                if f: f()
        assert not Q
        self.stamp(11)
        e.wait(lg=("red", 2))
        e.op("s_barrier")
        for j in range(5): rd(2, j)
        for f in adds: f()
        e.wait(vm="g")
        W2 = v(V_GW, 2)
        of = ("", "sc1", "nt", "sc1 nt")[self.o("outf", 1)]
        of2 = ("", "sc1", "nt", "sc1 nt")[self.o("outf2", 0)]
        for i in range(10): e.op(f"v_pk_add_f32 {v(F + 2 * i, 2)}, {v(F + 2 * i, 2)}, {v(RD[0] + 2 * i, 2)}")
        for i in range(10): e.op(f"v_pk_mul_f32 {v(F + 2 * i, 2)}, {v(F + 2 * i, 2)}, {W2} op_sel_hi:[1,0]")
        for grp in ((0, 4), (4, 8), (8, 10)):
            e.wait(lg=("rd", 2, (grp[1] - 1) // 2))
            for i in range(*grp): e.op(f"v_pk_fma_f32 {v(F + 2 * i, 2)}, {v(RD[2] + 2 * i, 2)}, {W2}, {v(F + 2 * i, 2)} op_sel_hi:[1,0,1]")
            for i in range(*grp): e.op(f"v_cvt_pk_bf16_f32 {v(i)}, {v(F + 2 * i)}, {v(F + 2 * i + 1)}")
            if grp[0] < 8: e.op(f"buffer_store_dwordx4 {v(grp[0],4)}, {v(V_OUT)}, {s(S_OUT,4)}, 0 offen offset:{grp[0] * 16} {of}")
            else: e.op(f"buffer_store_dwordx2 {v(8,2)}, {v(V_OUT+1)}, {s(S_OUT,4)}, {s(S_XM0)} offen {of2}")
        self.stamp(12)
        if self.o("skipw", 0): self.w_loads = wl0

    def finish(self):
        e = self.e
        if self.o("leak", -1) >= 0:
            e.wait(vm="all")
            self.stamp(13)
            self.flush_stamp()
            e.op(f"s_memrealtime {s(S_MASK,2)}")
            e.op(f"v_readlane_b32 {s(S_T0)}, {v(V_STAMP)}, {self.o('leak0', 0)}")
            e.op(f"v_readlane_b32 {s(S_T1)}, {v(V_STAMP)}, {self.o('leak', 0)}")
            e.wait(lg="all")
            e.op(f"s_sub_u32 {s(S_T0)}, {s(S_T1)}, {s(S_T0)}")
            e.op(f"s_cmp_gt_u32 {s(S_T0)}, 10000")
            e.op(f"s_cselect_b32 {s(S_T0)}, 0, {s(S_T0)}")
            e.op(f"s_cmp_eq_u32 s2, {self.o('leakwg', 100)}")
            e.op(f"s_cselect_b32 {s(S_T0)}, {s(S_T0)}, 0")
            e.op(f"s_mul_i32 {s(S_T0)}, {s(S_T0)}, 5")
            e.label("L_leak")
            e.op(f"s_memrealtime {s(S_VM,2)}")
            e.wait(lg="all")
            e.op(f"s_sub_u32 {s(S_T1)}, {s(S_VM)}, {s(S_MASK)}")
            e.op(f"s_cmp_lt_u32 {s(S_T1)}, {s(S_T0)}")
            e.op("s_cbranch_scc1 L_leak")
        if self.stamps:
            e.wait(vm="all")
            self.stamp(13)
            e.op(f"s_memtime {s(S_VM,2)}")
            self.flush_stamp()
            e.op(f"v_writelane_b32 {v(V_STAMP)}, {s(S_VM)}, {NSTAMP}")
            e.op(f"s_lshl2_add_u32 {s(S_T0)}, s2, {s(S_WAVE)}")
            e.op(f"s_lshl_b32 {s(S_T0)}, {s(S_T0)}, 7")
            e.op(f"s_add_u32 {s(S_T0)}, {s(S_T0)}, {WS_ST}")
            e.op(f"v_lshlrev_b32 {v(V_T0)}, 2, {v(V_LANE)}")
            e.op("s_mov_b32 exec_hi, 0")
            e.op(f"buffer_store_dword {v(V_STAMP)}, {v(V_T0)}, {s(S_WS,4)}, {s(S_T0)} offen")
        e.op("s_endpgm")

    def build(self):
        e = self.e
        ab = self.o("abl", 0)
        if ab:
            real = e.op
            def op(text, tag=None):
                ph = getattr(self, "phase", 0)
                isld = ("_load_dwordx4" in text) and isinstance(tag, (tuple, str)) and tag[0] in ("w", "h", "d", "k", "v", "q")
                if (ab >> (2 * ph)) & 1 and (text.startswith("v_mfma") or text.startswith("v_exp")): return real("s_nop 0")
                if (ab >> (2 * ph)) & 2 and isld:
                    e.all_tags.add(tag); return None
                return real(text, tag)
            e.op = op
        self.prologue()
        self.stage1()
        self.attention()
        self.stage3()
        self.finish()
        self.att_lo()
        self.in_side = True
        self.gate()
        self.spare()
        for f in self.stubs:
            e.vm, e.lg = [], []
            f()
        e.label("L_cold")
        for f in self.cold: f()
        e.label("L_end")
        e.op("s_endpgm")
        head = open("head.txt").read().split("\n")
        head = [l for l in head if l.startswith(";") and "@launch" not in l]
        txt = "\n".join(head) + f"\n; @launch grid=(256,1,1) block=(256,1,1) lds={LDS_BYTES}\n" + DOC
        txt += f""".amdgcn_target "amdgcn-amd-amdhsa--gfx950"
.text
.globl {NAME}_kernel
.p2align 8
.type {NAME}_kernel,@function
{NAME}_kernel:
"""
        txt += e.text().replace("\n    ", "\n ")
        txt += f""".section .rodata,"a"
.p2align 6
.amdhsa_kernel {NAME}_kernel
  .amdhsa_next_free_vgpr 512
  .amdhsa_next_free_sgpr 102
  .amdhsa_accum_offset 256
  .amdhsa_group_segment_fixed_size 0
  .amdhsa_kernarg_size 80
  .amdhsa_user_sgpr_count 2
  .amdhsa_user_sgpr_kernarg_segment_ptr 1
  .amdhsa_system_sgpr_workgroup_id_x 1
.end_amdhsa_kernel
.p2align 8
.type wave_table,@object
wave_table:
"""
        for wg in range(256):
            for w in range(4):
                txt += ".long " + ",".join(str(x) for x in table_entry(wg, w, self.o("map3", 0), self.o("umap", 1), self.o("bal", 1))) + "\n"
        return txt

if __name__ == "__main__":
    out = sys.argv[1] if len(sys.argv) > 1 else "cdna_kernels/" + NAME + ".s"
    opt = {}
    for x in sys.argv[2:]:
        if "=" in x:
            k, val = x.split("="); opt[k] = int(val)
    g = Gen(stamps="--stamps" in sys.argv, opt=opt)
    txt = g.build()
    open(out, "w").write(txt)
    print("instructions", g.e.count, "pad states", g.e.nops, "autowaits", g.e.autowaits, "bytes", len(txt), file=sys.stderr)
    if "--nops" in sys.argv:
        for n, t in g.e.log_nops: print(n, t, file=sys.stderr)
```

```python
import sys, math, struct
from asmlib import *

NAME = "gated_mix__sliding_block__dense_activation_relu__prompt"

WS_QK = 0
WS_VT = WS_QK + 80 * 64 * 1024
WS_H  = WS_VT + 16 * 64 * 2560
WS_O  = WS_H + 64 * 110592
WS_WT = WS_O + 64 * 40960
WS_G  = WS_WT + 8 * 74 * 5120
WS_FL = WS_G + 16384
FL_A  = WS_FL
FL_B  = FL_A + 256 * 128
FL_D  = FL_B + 256 * 128
FL_GO = FL_D + 64 * 128
WS_ST = FL_GO + 16 * 128
WS_X = WS_ST + 1024 * 128
WS_SIZE = WS_X + 1024 * 5120
OOB = 0x4000000
assert WS_SIZE < OOB and FL_A % 2048 == 0

NW, NX = 5, 4
L_W = 0
L_X = NW * 16384
L_RT = L_X + 65536
L_K = L_X
L_V = L_K + 36 * 1024
L_GW = L_V + 12 * 3072
LDS_BYTES = 163840

S_DM, S_HK = 0, 1
S_WAVE = 3
S_X, S_WA, S_WB, S_WS, S_OUT, S_DBG, S_MISC = 4, 8, 12, 16, 20, 24, 28
S_PWO, S_CG, S_XM0, S_PW2, S_PG = 32, 34, 35, 36, 38
S_T0, S_T1, S_T2, S_T3, S_T4, S_T5 = 40, 41, 42, 43, 44, 45
S_TAB = 46
TA = 48
(S_ST1, S_ST1B, S_ST2, S_ST2B, S_SCALE, S_FLA, S_FLB, S_RTS, S_RTF, S_RTSRC, S_BITS, S_TQ, S_QOFF) = range(TA, TA + 13)
S_KADJ, S_VOFF = TA + 13, TA + 16
S_OST, S_OST2 = TA + 19, TA + 20
S_HT = TA + 21
S_WT0, S_PFC, S_PFG, S_PFD, S_PFA, S_ASTEP, S_TB1 = range(TA + 25, TA + 32)
TB = 4
S_OT = TB
S_WT1, S_PFB, S_GW, S_OUTO = TB + 4, TB + 5, TB + 6, TB + 7
S_RED = TB + 8
S_PHI = 80
S_WM0, S_SPIN = 86, 87
S_STMP, S_NONCE, S_MASK, S_VM = 88, 90, 92, 94
S_CG2 = 100
S_C1, S_C2 = 96, 97
S_PILO, S_PIHI = 80, 81

V_LANE = 255
V_L16 = 254
V_NONCE = 252
V_T0, V_T1, V_T2, V_T3 = 248, 249, 250, 251
V_POLL = 246
V_FA, V_FD, V_FC, V_WV = 245, 244, 243, 242
V_KA, V_VA, V_HL, V_STAMP, V_ZERO, V_L16H = 241, 240, 239, 238, 237, 236
V_H, V_KT, V_Q, V_R = 232, 228, 231, 227
V_XD = 0
V_WD = 4
V_WD2 = 8
V_XR = 12
V_WR = 16
V_ST1 = 24
V_FR = 32
ACC = (128, 64)
A_X = 256
NXR = 7
V_LH = 226
RT_D, RT_LD, RT_RD, RT_ST = 64, 76, 79, 82
SB = (0, 16, 176)
OO = (32, 48)
VQ, QM, VF, KF, CD, CE = 128, 144, 160, 168, 192, 208
BA = 144
HSLOT = (64, 80, 96, 112, 128, 16, 48, 32)
WR = 256
NH, NWR = 8, 12
V_O, V_FB, V_GW, V_RR, V_RW, V_OUT = 228, 245, 244, 224, 243, 240
NSTAMP = 14

def f32(x): return "0x%08x" % struct.unpack("<I", struct.pack("<f", x))[0]
LOG2E = math.log2(math.e)
QSCALE = LOG2E / math.sqrt(20.0)
NEGBIG = 0xff800000
SPIN_MAX = 0x40000

KS0 = (0, 14, 28, 41)

LATE_KS = sorted({KS0[w] + n for w in range(4) for n in (12, 13) if n < (14, 14, 13, 13)[w]} | {54 + 5 * w + q for w in range(4) for q in (3, 4)})
RT_KS = [k for k in range(74) if k not in LATE_KS] + LATE_KS
assert len(LATE_KS) == 14

def rt_unit(U, w):
    if U >= 296: return OOB, OOB, 0, 0
    ks, kg, u = RT_KS[U >> 2], U & 3, w >> 1
    if ks < 54: row, wo = 32 * ks + 16 * (kg >> 1) + 4 * (kg & 1) + 8 * u, 0
    else:
        a_, p = divmod(ks - 54, 5); wo = 1
        row = 40 * (4 * a_ + p) + 20 * (kg >> 1) + 4 * (kg & 1) + 8 * u if p < 4 else 40 * (4 * a_ + kg) + 16 + 20 * u
    return WS_WT + (148 * w + ks) * 5120 + kg * 256, (FL_D + (U >> 2) * 128 + (U & 3) * 8 if w == 0 else OOB), row * 1280, wo

def gate_col(rb, bal):
    return 4 * (rb & 3) + 1 if bal else 14

def table_entry(wg, w, map3, umap, bal):
    xcd, i = wg & 7, wg >> 3
    A = [0] * 32; B = [0] * 16
    def a(reg, val): A[reg - TA] = val & 0xffffffff
    def b(reg, val): B[reg - TB] = val & 0xffffffff
    U = wg if (i >= 30 or not umap) else ((i >> 2) * 8 + xcd) * 4 + (i & 3) if i < 28 else 224 + 2 * xcd + i - 28
    rts, rtf, rtsrc, wo = rt_unit(U, w)
    a(S_RTS, rts); a(S_RTF, rtf); a(S_RTSRC, rtsrc)
    if i < 30:
        u = 30 * (xcd >> 1) + i
        rb, cg = 8 * (xcd & 1) + (u & 7), u >> 3
        tb, tb0, wc = 4 * rb + w, 4 * rb + (w & 2), w & 1
        if cg < 10:
            q0 = WS_QK + ((8 * cg + 4 * wc) * 64 + tb0) * 1024
            a(S_ST1, q0); a(S_ST1B, q0 + 1024)
        else:
            a(S_ST1, WS_VT + tb0 * 2560); a(S_ST1B, WS_VT + (tb0 + 1) * 2560)
        cg2 = 14 if cg == gate_col(rb, bal) else cg - (cg > gate_col(rb, bal))
        h0 = WS_H + tb0 * 110592 + cg2 * 8192 + wc * 4096
        a(S_ST2, h0 if 2 * cg2 + wc < 27 else OOB); a(S_ST2B, h0 + 110592 if 2 * cg2 + wc < 27 else OOB)
        a(S_SCALE, int(f32(QSCALE if cg < 5 else 1.0), 16))
        a(S_FLA, FL_A + (rb * 16 + cg) * 128 + 8 * w)
        a(S_TB1, tb)
    else:
        cg2 = 15
        for m, reg in ((1, S_ST1), (2, S_ST1B), (3, S_SCALE)): a(reg, rt_unit(wg + 16 * m, w)[2])
        for m, reg in ((1, S_ST2), (2, S_ST2B), (3, S_FLA)): a(reg, rt_unit(wg + 16 * m, w)[0])
        a(S_TB1, sum(rt_unit(wg + 16 * m, w)[3] << m for m in range(4)))
    P, rba = 2 * xcd + (i >> 4), i & 15
    F0, tq = (10 * P) >> 2, 4 * rba + w
    a(S_BITS, (P & 1) | (wo << 1) | (cg2 << 28)); a(S_TQ, tq)
    a(S_QOFF, WS_QK + (F0 * 64 + tq) * 1024)
    for k in range(3):
        t = 4 * rba + 3 * w - 8 + k
        a(S_KADJ + k, WS_QK + ((40 + F0) * 64 + t - k) * 1024 if t >= 0 else OOB)
        a(S_VOFF + k, WS_VT + (P * 64 + t) * 2560 if t >= 0 else OOB)
    o0 = WS_O + tq * 40960 + (P >> 2) * 20 * 512
    a(S_OST, o0 + (P & 3) * 2048); a(S_OST2, o0 + (16 + (P & 3)) * 512)
    a(S_FLB, FL_B + (rba * 16 + P) * 128 + 8 * w)
    cq = F0 >> 3
    a(S_PFA, FL_A + cq * 128); a(S_ASTEP, 128 if ((F0 + 2) >> 3) > cq else 0)
    a(S_PFG, FL_A + (rba * 16 + 15) * 128 + 8 * w)
    assert [RT_KS.index(KS0[w] + n) for n in range(12)] == list(range(12 * w, 12 * w + 12))
    assert [RT_KS.index(54 + 5 * w + q) for q in range(3)] == list(range(48 + 3 * w, 51 + 3 * w))
    a(S_PFD, FL_D + 12 * w * 128)
    tb64, ng = (8 * (xcd >> 1) + (i & 7), 4 * (xcd & 1) + (i >> 3)) if not map3 else (4 * xcd + (i & 3), i >> 2)
    for t in range(4):
        T = (w + 1 + t) & 3
        tb = 2 * tb64 + (T >> 1)
        a(S_HT + t, WS_H + tb * 110592 + (T & 1) * 256 + KS0[w] * 2048)
        b(S_OT + t, WS_O + tb * 40960 + (T & 1) * 256 + w * 5 * 2048)
    a(S_WT0, WS_WT + (ng * 74 + KS0[w]) * 5120 + 2048)
    b(S_WT1, WS_WT + (ng * 74 + 54 + 5 * w) * 5120 + 2048)
    a(S_PFC, FL_A + (tb64 >> 1) * 2048 + 32 + 16 * (tb64 & 1) + min((KS0[w] >> 2) + ((KS0[w] >> 2) >= gate_col(tb64 >> 1, bal)), 10) * 128)
    b(S_PFB, FL_B + ((tb64 >> 1) * 16 + 4 * w) * 128 + 16 * (tb64 & 1))
    A[S_BITS - TA] |= (FL_A + ((tb64 >> 1) * 16 + 15) * 128 + 8 * (2 * (tb64 & 1) + (w >> 1))) << 2
    b(S_GW, WS_G + (2 * tb64 + (w >> 1)) * 256 + 128 + (w & 1) * 64)
    b(S_OUTO, (64 * tb64 + 16 * w) * 1280 + ng * 128)
    B[12] = 1024 - 96 * ng
    for t in range(3): b(S_RED + t, L_W + ((w - 1 - t) & 3) * 20480 + t * 5120)
    b(S_RED + 3, L_W + w * 20480)
    return A + B


DOC = """;
"""

class Gen:
    def __init__(self, stamps=False, opt=None):
        self.e = Emit()
        self.stamps = stamps
        self.uid = 0
        self.opt = opt or {}
        self.stubs = []
        self.cold = []
        self.pending_stamp = None
        self.open_poll = None; self.open_nonce = False
        self.nt = "nt " if self.o("nt", 1) else ""
        self.in_side = False
    def o(self, k, d): return self.opt.get(k, d)
    def L(self, p):
        self.uid += 1
        return f"L_{p}_{self.uid}"
    def stamp(self, idx, z=False):
        lk = self.o("leak", -1)
        if lk >= 0:
            if not self.in_side and not z and idx in (self.o("leak0", 0), lk):
                self.flush_stamp()
                self.e.op(f"s_memrealtime {s(S_STMP, 2)}")
                self.pending_stamp = idx
            return
        if not self.stamps: return
        if self.o("zoom", 0) and not z and 0 < idx < 13: return
        self.flush_stamp()
        self.e.op(f"{'s_memtime' if self.o('cyc', 0) else 's_memrealtime'} {s(S_STMP, 2)}")
        self.pending_stamp = idx
    def flush_stamp(self):
        if self.pending_stamp is None: return
        e = self.e
        if "SMEM" in e.lg: e.wait(lg="all")
        e.op(f"v_writelane_b32 {v(V_STAMP)}, {s(S_STMP)}, {self.pending_stamp}")
        self.pending_stamp = None

    def srd_tail(self, d, nbytes):
        self.e.op(f"s_mov_b32 {s(d+2)}, {nbytes}")
        self.e.op(f"s_mov_b32 {s(d+3)}, 0x20000")
    def nonce_issue(self):
        self.e.op(f"buffer_load_dwordx2 {v(V_NONCE,2)}, {v(V_ZERO)}, {s(S_DBG,4)}, 0 offen sc1", tag="nonce")
        self.open_nonce = True
    def nonce_check(self):
        e = self.e
        st, bk = self.L("nonce"), self.L("nonce_ok")
        assert self.open_nonce
        e.wait(vm="nonce")
        e.op(f"v_readfirstlane_b32 {s(S_NONCE)}, {v(V_NONCE)}")
        e.op(f"v_readfirstlane_b32 {s(S_NONCE+1)}, {v(V_NONCE+1)}")
        e.op(f"s_cmp_eq_u32 {s(S_NONCE)}, 0")
        e.op(f"s_cbranch_scc1 {st}")
        e.label(bk)
        def stub():
            e.label(st, reset=True)
            e.op(f"s_mov_b32 {s(S_SPIN)}, 0")
            e.label(st + "_l")
            e.op("s_sleep 4")
            e.op(f"buffer_load_dwordx2 {v(V_NONCE,2)}, {v(V_ZERO)}, {s(S_DBG,4)}, 0 offen sc1")
            e.op(f"s_add_u32 {s(S_SPIN)}, {s(S_SPIN)}, 1")
            e.wait(vm="all")
            e.op(f"v_readfirstlane_b32 {s(S_NONCE)}, {v(V_NONCE)}")
            e.op(f"v_readfirstlane_b32 {s(S_NONCE+1)}, {v(V_NONCE+1)}")
            e.op(f"s_cmp_gt_u32 {s(S_SPIN)}, {SPIN_MAX}")
            e.op(f"s_cbranch_scc1 {bk}")
            e.op(f"s_cmp_eq_u32 {s(S_NONCE)}, 0")
            e.op(f"s_cbranch_scc1 {st}_l")
            e.op(f"s_branch {bk}")
        self.stubs.append(stub)
    def publish(self, soff, imm=0):
        e = self.e
        e.op("s_mov_b64 exec, 1")
        e.op(f"buffer_store_dwordx2 {v(V_NONCE,2)}, {v(V_ZERO)}, {s(S_WS,4)}, {s(soff)} offen offset:{imm} sc1", tag="flag")
        e.op("s_mov_b64 exec, -1")
    def poll_issue(self, vaddr):
        self.e.op(f"buffer_load_dwordx2 {v(V_POLL,2)}, {v(vaddr)}, {s(S_WS,4)}, 0 offen sc1", tag="poll")
        self.open_poll = vaddr
    def poll_again(self, vaddr):
        self.e.op(f"buffer_load_dwordx2 {v(224,2)}, {v(vaddr)}, {s(S_WS,4)}, 0 offen sc1", tag="poll2")
    def poll_check(self, vaddr, sid=0):
        e = self.e
        n2 = e._left(e.vm, ["poll2"])
        st, bk = self.L("poll"), self.L("poll_ok")
        assert self.open_poll == vaddr; self.open_poll = None
        e.wait(vm="poll")
        e.op(f"v_cmp_ne_u64 vcc, {s(S_NONCE,2)}, {v(V_POLL,2)}")
        e.op(f"s_cbranch_vccnz {st}")
        e.label(bk)
        def stub():
            e.label(st, reset=True)
            if n2 is not None:
                e.op(f"s_waitcnt vmcnt({n2})")
                e.op(f"v_cmp_ne_u64 vcc, {s(S_NONCE,2)}, {v(224,2)}")
                e.op(f"s_cbranch_vccz {bk}")
            e.op(f"s_mov_b32 {s(S_SPIN)}, 0")
            if self.o("retry0", 1): e.op(f"s_branch {st}_f")
            e.label(st + "_l")
            e.op(f"s_sleep {self.o('sleep', 4)}")
            e.label(st + "_f")
            if self.o("miss", 0): e.op("s_mov_b64 exec, vcc")
            e.op(f"buffer_load_dwordx2 {v(V_POLL,2)}, {v(vaddr)}, {s(S_WS,4)}, 0 offen sc1")
            if self.o("miss", 0): e.op("s_mov_b64 exec, -1")
            e.op(f"s_add_u32 {s(S_SPIN)}, {s(S_SPIN)}, 1")
            e.wait(vm="all")
            e.op(f"v_cmp_ne_u64 vcc, {s(S_NONCE,2)}, {v(V_POLL,2)}")
            e.op(f"s_cmp_gt_u32 {s(S_SPIN)}, {SPIN_MAX}")
            e.op(f"s_cbranch_scc1 {bk}")
            e.op(f"s_cbranch_vccnz {st}_l")
            if self.stamps: e.op(f"v_writelane_b32 {v(V_STAMP)}, {s(S_SPIN)}, {16 + sid}")
            e.op(f"s_branch {bk}")
        self.stubs.append(stub)

    def capture(self, *fns):
        e = self.e
        rec = []
        real = e.op
        e.op = lambda text, tag=None: rec.append(text)
        try:
            for f in fns: f()
        finally:
            e.op = real
        atoms = []
        for t in rec:
            if t.startswith(("s_cselect", "s_addc")): atoms[-1].append(t)
            else: atoms.append([t])
        return [lambda a=a_: [e.op(t) for t in a] and None for a_ in atoms]

    PI_A = [0, 2, 1, 4, 3, 6, 5, 8, 7, 9]
    PI_B = [1, -2, 2, -2, 2, -2, 2, -2, 2, -1]
    PI4S = [
        [[0,4,1,2,3,8,5,6,7,9], [1,0,5,2,3,4,9,6,7,8], [2,0,1,6,3,4,5,7,8,9], [3,0,1,2,7,4,5,6,8,9]],
        [[0,2,1,6,3,4,5,7,8,9], [1,3,0,2,7,4,5,6,8,9], [0,4,1,2,3,8,5,6,7,9], [1,5,0,2,3,4,9,6,7,8]],
        [[0,2,6,1,3,4,5,7,8,9], [1,3,7,0,2,4,5,6,8,9], [0,4,8,1,2,3,5,6,7,9], [1,5,9,0,2,3,4,6,7,8]],
        [[0,2,1,6,3,4,5,7,8,9], [1,3,0,7,2,4,5,6,8,9], [0,4,1,8,2,3,5,6,7,9], [1,5,0,9,2,3,4,6,7,8]],
        [[0,1,5,2,3,4,9,6,7,8], [0,2,1,6,3,4,5,7,8,9], [0,3,1,2,7,4,5,6,8,9], [0,4,1,2,3,8,5,6,7,9]],
        [[0,4,8,1,2,3,5,6,7,9], [1,5,9,0,2,3,4,6,7,8], [2,6,0,1,3,4,5,7,8,9], [3,7,0,1,2,4,5,6,8,9]],
    ]
    @property
    def PI4(self): return self.PI4S[self.o("pt", 0)]
    UNIT = (128, 64 * 3840, 64 * 3456)
    def pi_setup(self, sphi, late):
        e = self.e
        mode = self.o("pi", 8)
        if mode == 2:
            if not late:
                e.op(f"s_and_b32 {s(sphi)}, {s(sphi)}, 1")
                for m in range(2): e.op(f"s_mul_i32 {s(S_PHI + 2 * m)}, {s(sphi)}, {self.UNIT[m]}")
            else:
                e.op(f"s_mul_i32 {s(S_PHI + 4)}, {s(S_PHI)}, {self.UNIT[2] // 128}")
                for m in range(3): e.op(f"s_lshl_b32 {s(S_PHI + 2 * m + 1)}, {s(S_PHI + 2 * m)}, 1")
        elif mode >= 4 and not late:
            if mode == 4:
                tabs = self.PI4
                e.op(f"s_and_b32 {s(sphi)}, {s(sphi)}, 3")
            else:
                nph = {5: 1, 8: 2, 16: 4}[mode]
                two = ([self.PI_A, [a_ + b_ for a_, b_ in zip(self.PI_A, self.PI_B)]],
                       [[0,1,2,3,4,5,6,7,8,9], [1,0,3,2,5,4,7,6,9,8]],
                       [[0,2,1,3,4,5,7,6,8,9], [1,3,0,2,4,6,8,5,7,9]],
                       [[0,2,4,1,3,5,7,6,8,9], [1,3,4,0,2,6,8,5,7,9]],
                       [[0,1,3,2,4,5,6,8,7,9], [0,2,4,1,3,5,7,9,6,8]],
                       [[0,2,1,3,4,6,5,8,7,9], [1,3,0,2,5,4,7,6,9,8]])[self.o("p2", 0)]
                base = {1: [list(range(10))], 2: two, 4: self.PI4}[nph]
                rots = ((0, 2, 5, 7), (0, 0, 5, 5), (0, 1, 5, 6), (0, 3, 5, 8))[self.o("rot", 1)]
                tabs = [[(k + ro) % 10 for k in tb] for ro in rots for tb in base]
                e.op(f"s_and_b32 {s(sphi)}, {s(sphi)}, {nph - 1}")
                e.op(f"s_lshr_b32 {s(S_T3)}, s2, 1")
                e.op(f"s_lshl1_add_u32 {s(S_T3)}, s2, {s(S_T3)}")
                e.op(f"s_and_b32 {s(S_T3)}, {s(S_T3)}, 3")
                e.op(f"s_mul_i32 {s(S_T3)}, {s(S_T3)}, {nph}")
                e.op(f"s_add_u32 {s(sphi)}, {s(sphi)}, {s(S_T3)}")
            for i, tb in enumerate(tabs):
                assert sorted(tb) == list(range(10))
                lo = sum(k << (4 * n) for n, k in enumerate(tb[:8])); hi = tb[8] | (tb[9] << 4)
                if i == 0:
                    e.op(f"s_mov_b32 {s(S_PILO)}, {hex(lo)}")
                    e.op(f"s_mov_b32 {s(S_PIHI)}, {hex(hi)}")
                else:
                    e.op(f"s_cmp_eq_u32 {s(sphi)}, {i}")
                    e.op(f"s_cselect_b32 {s(S_PILO)}, {hex(lo)}, {s(S_PILO)}")
                    e.op(f"s_cselect_b32 {s(S_PIHI)}, {hex(hi)}, {s(S_PIHI)}")
    def pi_off(self, dst, st, m):
        e = self.e
        mode = self.o("pi", 8)
        if mode == 1: e.op(f"s_mov_b32 {s(dst)}, {st * self.UNIT[m]}")
        elif mode == 2:
            A, B = self.PI_A[st] * self.UNIT[m], self.PI_B[st]
            e.op(f"s_{'add' if B > 0 else 'sub'}_u32 {s(dst)}, {A}, {s(S_PHI + 2 * m + abs(B) - 1)}")
        else:
            e.op(f"s_bfe_u32 {s(dst)}, {s(S_PILO if st < 8 else S_PIHI)}, {hex((4 << 16) | (4 * (st % 8)))}")
            e.op(f"s_mul_i32 {s(dst)}, {s(dst)}, {self.UNIT[m]}")

    def prologue(self):
        e = self.e
        L = v(V_LANE); T0, T1, T2, T3 = v(V_T0), v(V_T1), v(V_T2), v(V_T3)
        e.op("s_cmp_ge_u32 s2, 256")
        e.op("s_cbranch_scc1 L_end")
        self.stamp(0)
        for d, off in ((S_X, 0), (S_WA, 8), (S_WB, 32), (S_WS, 72), (S_OUT, 56), (S_DBG, 64)):
            e.op(f"s_load_dwordx2 {s(d,2)}, s[0:1], {off}")
        e.op(f"s_getpc_b64 {s(S_TAB,2)}")
        e.label("L_pc")
        e.op("s_cmp_lt_u32 s2, 240")
        e.op("s_cbranch_scc1 L_nopf")
        e.op(f"s_bfe_u32 {s(S_T0)}, s2, 0x10003")
        e.op(f"v_lshl_add_u32 {T0}, v0, 1, {s(S_T0)}")
        e.op(f"v_lshlrev_b32 {T0}, 7, {T0}")
        e.op(f"v_min_u32 {T0}, L_cold-L_pc, {T0}")
        e.op(f"global_load_dword {v(224)}, {T0}, {s(S_TAB,2)}")
        e.vm = []
        e.label("L_nopf")
        if self.stamps or self.o("leak", -1) >= 0: e.op(f"v_mov_b32 {v(V_STAMP)}, 0")
        e.op(f"v_lshrrev_b32 {T0}, 6, v0")
        e.op(f"v_and_b32 {L}, 63, v0")
        e.op(f"v_readfirstlane_b32 {s(S_WAVE)}, {T0}")
        e.op(f"s_bfe_u32 {s(S_T0)}, s2, 0x20001")
        e.op(f"s_mul_i32 {s(S_T0)}, {s(S_T0)}, 30")
        e.op(f"s_lshr_b32 {s(S_T1)}, s2, 3")
        e.op(f"s_add_u32 {s(S_T0)}, {s(S_T0)}, {s(S_T1)}")
        e.op(f"s_lshr_b32 {s(S_CG)}, {s(S_T0)}, 3")
        e.op(f"s_and_b32 {s(S_T0)}, {s(S_T0)}, 7")
        e.op(f"s_and_b32 {s(S_T1)}, s2, 1")
        e.op(f"s_lshl3_add_u32 {s(S_T0)}, {s(S_T1)}, {s(S_T0)}")
        e.op(f"s_add_u32 {s(S_T5)}, {s(S_T0)}, {s(S_CG)}")
        self.pi_setup(S_T5, False)
        e.op(f"s_lshl2_add_u32 {s(S_T0)}, {s(S_T0)}, {s(S_WAVE)}")
        e.op(f"s_mul_i32 {s(S_T0)}, {s(S_T0)}, {32 * 1280}")
        e.op(f"s_lshl_b32 {s(S_T4)}, {s(S_CG)}, 8")
        e.op(f"s_movk_i32 {s(S_T2)}, 1280")
        e.op(f"s_movk_i32 {s(S_T3)}, {2 * (8 * 1280 - 1024)}")
        e.op(f"v_lshrrev_b32 {T1}, 4, {L}")
        e.op(f"v_and_b32 {T2}, 7, {L}")
        e.op(f"v_xor_b32 {T2}, {T2}, {T1}")
        e.op(f"v_lshl_add_u32 {T2}, {T2}, 4, {s(S_T0)}")
        e.op(f"v_lshrrev_b32 {T0}, 3, {L}")
        e.op(f"v_mad_u32_u24 {v(V_XD)}, {T0}, {s(S_T2)}, {T2}")
        e.op(f"v_xad_u32 {v(V_XD+2)}, {v(V_XD)}, 64, {s(S_T3)}")
        e.op(f"v_add_u32 {v(V_XD+1)}, {8 * 1280 - 1024}, {v(V_XD)}")
        e.op(f"v_add_u32 {v(V_XD+3)}, {8 * 1280 - 1024}, {v(V_XD+2)}")
        e.op(f"v_lshlrev_b32 {T2}, 2, {T1}")
        e.op(f"v_and_b32 {T3}, 15, {L}")
        e.op(f"v_xor_b32 {T2}, {T2}, {T3}")
        e.op(f"v_lshl_add_u32 {T2}, {T2}, 4, {s(S_T4)}")
        e.op(f"v_lshl_add_u32 {T1}, {s(S_WAVE)}, 4, {T1}")
        e.op(f"s_movk_i32 {s(S_T2)}, 3840")
        e.op(f"v_mad_u32_u24 {v(V_WD)}, {T1}, {s(S_T2)}, {T2}")
        e.op(f"s_movk_i32 {s(S_T3)}, {2 * (4 * 3840 - 1024)}")
        e.op(f"v_xad_u32 {v(V_WD+2)}, {v(V_WD)}, 16, {s(S_T3)}")
        for n in (1, 3): e.op(f"v_add_u32 {v(V_WD+n)}, {4 * 3840 - 1024}, {v(V_WD+n-1)}")
        e.op(f"s_lshl_b32 {s(S_WM0)}, {s(S_WAVE)}, 12")
        e.op(f"s_lshl2_add_u32 {s(S_XM0)}, {s(S_WM0)}, {L_X}")
        self.srd_tail(S_X, 2048 * 1280)
        self.srd_tail(S_WA, 640 * 3840)
        e.op(f"s_lshl2_add_u32 {s(S_T0)}, s2, {s(S_WAVE)}")
        e.op(f"s_mul_i32 {s(S_T0)}, {s(S_T0)}, 192")
        e.label("L_pc2")
        e.op(f"s_add_u32 {s(S_TAB)}, {s(S_TAB)}, wave_table@rel32@lo+(L_pc2+4-L_pc)")
        e.op(f"s_addc_u32 {s(S_TAB+1)}, {s(S_TAB+1)}, wave_table@rel32@hi+(L_pc2+12-L_pc)")
        e.op(f"s_add_u32 {s(S_TAB)}, {s(S_TAB)}, {s(S_T0)}")
        e.op(f"s_addc_u32 {s(S_TAB+1)}, {s(S_TAB+1)}, 0")
        e.wait(lg="all")
        self.flush_stamp()
        e.op("s_cmp_ge_u32 s2, 240")
        e.op("s_cbranch_scc1 L_spare")
        self.spare_snap = e.snapshot()
        self.table_loads()

    def flag_init(self, spare=False):
        if not self.o("finit", 1) & 1: return
        e = self.e
        e.op(f"s_cmp_eq_u32 {s(S_WAVE)}, 1")
        if spare:
            e.op(f"s_cselect_b32 {s(S_T1)}, {s(S_FLB)}, {OOB}")
        else:
            e.op(f"s_cselect_b32 {s(S_T1)}, {s(S_FLB)}, {s(S_FLA)}")
            e.op(f"s_lshr_b32 {s(S_T2)}, {s(S_TB1)}, 2")
            e.op(f"s_lshl_b32 {s(S_T2)}, {s(S_T2)}, 7")
            e.op(f"s_add_u32 {s(S_T2)}, {s(S_T2)}, {FL_GO}")
            e.op(f"s_or_b32 {s(S_T3)}, {s(S_FLA)}, {15 * 128}")
            e.op(f"s_cmp_eq_u32 {s(S_WAVE)}, 2")
            e.op(f"s_cselect_b32 {s(S_T2)}, {s(S_T2)}, {s(S_T3)}")
            e.op(f"s_cmp_eq_u32 {s(S_CG2)}, 14")
            e.op(f"s_cselect_b32 {s(S_T2)}, {s(S_T2)}, {OOB}")
            e.op(f"s_cmp_lt_u32 {s(S_WAVE)}, 2")
            e.op(f"s_cselect_b32 {s(S_T1)}, {s(S_T1)}, {s(S_T2)}")
        e.op(f"s_andn2_b32 {s(S_T1)}, {s(S_T1)}, 127")
        e.op(f"v_lshl_add_u32 {v(V_T0)}, {v(V_LANE)}, 2, 0")
        e.op("s_mov_b32 exec_hi, 0")
        e.op(f"buffer_store_dword {v(V_ZERO)}, {v(V_T0)}, {s(S_WS,4)}, {s(S_T1)} offen sc1", tag="fi")
        e.op("s_mov_b32 exec_hi, -1")

    def table_loads(self):
        e = self.e
        e.op(f"s_load_dwordx2 {s(S_PWO,2)}, s[0:1], 16")
        e.op(f"s_load_dwordx4 {s(S_PW2,4)}, s[0:1], 40")
        e.op(f"s_load_dwordx16 {s(TA,16)}, {s(S_TAB,2)}, 0")
        e.op(f"s_load_dwordx16 {s(TA+16,16)}, {s(S_TAB,2)}, 64")
        e.op(f"s_load_dword {s(S_SPIN)}, {s(S_TAB,2)}, 128")

    def common_setup(self):
        e = self.e
        L = v(V_LANE)
        self.srd_tail(S_WB, 640 * 3456)
        self.srd_tail(S_WS, WS_SIZE)
        self.srd_tail(S_OUT, 2048 * 1280)
        self.srd_tail(S_DBG, 256)
        e.op(f"s_mov_b32 {s(S_MISC+3)}, 0x20000")
        e.op(f"v_lshlrev_b32 {v(V_L16)}, 4, {L}")
        e.op(f"v_mov_b32 {v(V_ZERO)}, 0")
        e.op(f"v_lshrrev_b32 {v(V_L16H)}, 5, {L}")
        e.op(f"v_lshl_add_u32 {v(V_L16H)}, {v(V_L16H)}, 26, {v(V_L16)}")
        e.op(f"s_mov_b32 {s(S_VM)}, 0xfffff")
        e.op(f"s_mov_b32 {s(S_VM+1)}, 0xfffff")
        e.op(f"s_mov_b32 {s(S_C1)}, 0x10000")
        e.op(f"s_mov_b32 {s(S_C2)}, 0x20000")

    def dma(self, st, m):
        e = self.e
        dm = S_T5 if st < 2 else S_DM
        if m == 0: srd, vd, k, base, lo = S_X, V_XD, st, S_XM0, self.XSLOT[st] * 4096
        elif st < 10: srd, vd, k, base, lo = S_WA, V_WD, st, S_WM0, L_W + (st % NW) * 16384
        else: srd, vd, k, base, lo, m = S_WB, V_WD2, self.xst(st), S_WM0, L_W + (st % NW) * 16384, 2
        def f(n):
            if n == 0:
                e.op(f"s_add_u32 m0, {s(base)}, {lo}")
                self.pi_off(dm, k, m)
            e.op(f"buffer_load_dwordx4 {v(vd+n)}, {s(srd,4)}, {s(dm)} offen offset:{n*1024} {('', 'sc1 ', 'sc0 ', 'sc0 sc1 ')[self.o('dsc', 0)]}lds", tag=("d", st))
        return [lambda n=n: f(n) for n in range(4)]
    def dmas(self, st): return (self.dma(st, 0) if st < 10 else []) + self.dma(st, 1)

    @property
    def P2X(self): return ((9, 0, 1, 5, 2, 7, 3, 4, 6, 8), (9, 0, 1, 2, 5, 3, 7, 4, 6, 8), (0, 1, 2, 9, 3, 5, 4, 7, 6, 8))[self.o('p2x', 0)]
    XREG = {0: 0, 1: 1, 2: 2, 3: 3, 4: 4, 6: 5, 8: 6}
    XSLOT = (0, 1, 2, 3, 0, 1, 2, 3, 0, 2)
    def xst(self, st):
        return st if st < 10 else self.P2X[st - 10]

    def stage1_tables(self):
        e = self.e
        L = v(V_LANE); T0, T1, T2, T3 = v(V_T0), v(V_T1), v(V_T2), v(V_T3)
        P0, P1 = v(V_POLL), v(V_POLL + 1)
        e.op(f"s_movk_i32 {s(S_T2)}, 3456")
        e.op(f"v_and_b32 {v(15)}, 255, {T2}")
        e.op(f"v_mad_u32_u24 {v(V_WD2)}, {T1}, {s(S_T2)}, {v(15)}")
        e.op(f"s_movk_i32 {s(S_T3)}, {2 * (4 * 3456 - 1024)}")
        e.op(f"v_xad_u32 {v(V_WD2+2)}, {v(V_WD2)}, 16, {s(S_T3)}")
        for n in (1, 3): e.op(f"v_add_u32 {v(V_WD2+n)}, {4 * 3456 - 1024}, {v(V_WD2+n-1)}")
        e.op(f"v_and_b32 {P0}, 8, {L}")
        e.op(f"v_and_b32 {T0}, 15, {L}")
        e.op(f"v_add_u32 {P0}, {P0}, {T0}")
        e.op(f"v_lshrrev_b32 {P1}, 4, {L}")
        e.op(f"s_and_b32 {s(S_T0)}, {s(S_WAVE)}, 2")
        e.op(f"s_lshl_b32 {s(S_T0)}, {s(S_T0)}, 14")
        e.op(f"s_add_u32 {s(S_T0)}, {s(S_T0)}, {L_X}")
        e.op(f"v_bfe_u32 {T1}, {L}, 1, 3")
        e.op(f"v_xor_b32 {T1}, {T1}, {P1}")
        e.op(f"v_lshl_add_u32 {T1}, {T1}, 4, {s(S_T0)}")
        e.op(f"v_lshl_add_u32 {v(V_XR)}, {P0}, 7, {T1}")
        e.op(f"v_xor_b32 {v(V_XR+1)}, 64, {v(V_XR)}")
        e.op(f"s_and_b32 {s(S_T1)}, {s(S_WAVE)}, 1")
        e.op(f"s_lshl_b32 {s(S_T0)}, {s(S_T1)}, 3")
        e.op(f"v_and_b32 {T0}, 14, {L}")
        e.op(f"v_and_or_b32 {T0}, {P1}, 1, {T0}")
        e.op(f"v_xor_b32 {T0}, {s(S_T0)}, {T0}")
        e.op(f"v_and_b32 {T1}, 1, {L}")
        e.op(f"v_lshl_add_u32 {T0}, {T0}, 1, {T1}")
        e.op(f"v_bfe_u32 {T1}, {L}, 2, 2")
        e.op(f"v_lshl_add_u32 {T1}, {P1}, 3, {T1}")
        e.op(f"v_lshlrev_b32 {T1}, 8, {T1}")
        e.op(f"v_lshl_add_u32 {v(V_WR)}, {T0}, 3, {T1}")
        for j in range(1, 4): e.op(f"v_xor_b32 {v(V_WR+j)}, {(j >> 1) * 64 + (j & 1) * 16}, {v(V_WR)}")
        for j in range(4): e.op(f"v_add_u32 {v(V_WR+4+j)}, 0x10000, {v(V_WR+j)}")
        e.op(f"v_lshlrev_b32 {T0}, 4, {P0}")
        e.op(f"v_lshl_add_u32 {v(V_LH)}, {P1}, 9, {T0}")
        lv, ld = self.L("st1v"), self.L("st1d")
        e.op(f"s_cmp_ge_u32 {s(S_CG)}, 10")
        e.op(f"s_cbranch_scc1 {lv}")
        e.op(f"v_lshrrev_b32 {T0}, 5, {L}")
        e.op(f"v_mul_u32_u24 {T0}, {65536 - 1024}, {T0}")
        e.op(f"v_add_u32 {v(V_ST1)}, {T0}, {v(V_LH)}")
        for j in range(1, 4): e.op(f"v_add_u32 {v(V_ST1+j)}, {(j >> 1) * 131072 + (j & 1) * 128}, {v(V_ST1)}")
        e.op(f"s_branch {ld}")
        e.label(lv)
        e.op(f"s_lshl1_add_u32 {s(S_T1)}, {s(S_CG)}, {s(S_T1)}")
        e.op(f"s_lshl_b32 {s(S_T1)}, {s(S_T1)}, 6")
        e.op(f"s_sub_u32 {s(S_T1)}, {s(S_T1)}, 1280")
        e.op(f"v_add_u32 {T0}, {s(S_T1)}, {P0}")
        e.op(f"v_mul_u32_u24 {T2}, 640, {P1}")
        e.op(f"s_mov_b32 {s(S_T2)}, {64 * 2560 - 640}")
        for j in range(4):
            e.op(f"v_mul_u32_u24 {T3}, 1639, {T0}")
            e.op(f"v_lshrrev_b32 {T3}, 16, {T3}")
            e.op(f"v_lshl_add_u32 {T1}, {T0}, 4, {T2}")
            e.op(f"v_mad_u32_u24 {v(V_ST1+j)}, {T3}, {s(S_T2)}, {T1}")
            if j < 3: e.op(f"v_add_u32 {T0}, {24 if j & 1 else 8}, {T0}")
        e.label(ld)

    def late_lane_tables(self):
        e = self.e
        L = v(V_LANE); T0, T1, T2, T3 = v(V_T0), v(V_T1), v(V_T2), v(V_T3)
        e.op(f"v_and_b32 {T0}, 31, {L}")
        e.op(f"v_lshrrev_b32 {T1}, 5, {L}")
        e.op(f"v_lshlrev_b32 {v(V_R)}, 2, {T0}")
        e.op(f"s_lshl_b32 {s(S_T1)}, {s(S_WAVE)}, 10")
        e.op(f"s_add_u32 {s(S_T2)}, {s(S_T1)}, {L_K}")
        e.op(f"v_add_u32 {v(V_KA)}, {s(S_T2)}, {v(V_L16)}")
        e.op(f"s_mul_i32 {s(S_T1)}, {s(S_T1)}, 3")
        e.op(f"s_add_u32 {s(S_T1)}, {s(S_T1)}, {L_V}")
        e.op(f"v_lshl_add_u32 {T2}, {T1}, 7, {v(V_L16)}")
        e.op(f"v_add_u32 {v(V_VA)}, {s(S_T1)}, {T2}")
        e.op(f"v_lshlrev_b32 {T2}, 2, {T1}")
        e.op(f"v_sub_u32 {T2}, {T0}, {T2}")
        e.op(f"v_cvt_f32_i32 {T2}, {T2}")
        e.op(f"v_mov_b32 {T3}, {f32(2.0 ** 100)}")
        for rr in range(16):
            key = 8 * (rr >> 2) + (rr & 3)
            e.op(f"v_fmaak_f32 {v(CE + rr)}, {T2}, {T3}, {f32((0.5 - key) * 2.0 ** 100)}")
            e.op(f"v_min_f32 {v(CD + rr)}, 0, {v(CE + rr)}")
            e.op(f"v_min_f32 {v(CE + rr)}, -{v(CE + rr)}, 0")
        e.op(f"v_lshrrev_b32 {T1}, 4, {L}")
        e.op(f"v_lshl_add_u32 {v(V_HL)}, {T1}, 8, {v(V_L16)}")
    def w1_columns(self):
        e = self.e
        T0 = v(V_T0)
        e.op(f"s_lshl_b32 {s(S_T0)}, {s(S_CG2)}, 8")
        e.op(f"v_add_u32 {v(15)}, {s(S_T0)}, {v(15)}")
        e.op(f"v_cmp_le_u32 vcc, 3456, {v(15)}")
        e.op(f"v_mov_b32 {T0}, {s(S_T0)}")
        e.op(f"v_mov_b32 {v(15)}, 0x1000000")
        e.op(f"v_cndmask_b32 {T0}, {T0}, {v(15)}, vcc")
        for n in range(4): e.op(f"v_add_u32 {v(V_WD2+n)}, {T0}, {v(V_WD2+n)}")
    def late_table_use(self):
        e = self.e
        L = v(V_LANE); T0, T1, T2, T3 = v(V_T0), v(V_T1), v(V_T2), v(V_T3)
        for t in range(4): e.op(f"v_add_u32 {v(V_H + t)}, {s(S_HT + t)}, {v(V_HL)}")
        for k in range(3): e.op(f"v_add_u32 {v(V_KT + k)}, {s(S_KADJ + k)}, {v(V_L16)}")
        e.op(f"v_add_u32 {v(V_Q)}, {s(S_QOFF)}, {v(V_L16)}")
        e.op(f"v_lshl_add_u32 {v(V_R)}, {s(S_TQ)}, 8, {v(V_R)}")
        e.op(f"v_add_u32 {v(V_R)}, {WS_G}, {v(V_R)}")
        e.op(f"v_min_u32 {T0}, 59, {L}")
        e.op(f"v_and_b32 {T1}, 3, {T0}")
        e.op(f"v_lshl_add_u32 {T1}, {T1}, 3, {s(S_PFD)}")
        e.op(f"v_lshrrev_b32 {T0}, 2, {T0}")
        e.op(f"v_lshl_add_u32 {T1}, {T0}, 7, {T1}")
        e.op(f"s_mul_i32 {s(S_T0)}, {s(S_WAVE)}, {-9 * 128}")
        e.op(f"s_add_u32 {s(S_T0)}, {s(S_T0)}, {36 * 128}")
        e.op(f"v_cmp_lt_u32 vcc, 47, {L}")
        e.op(f"v_add_u32 {T0}, {s(S_T0)}, {T1}")
        e.op(f"v_cndmask_b32 {v(V_FD)}, {T1}, {T0}, vcc")
        e.op(f"v_lshrrev_b32 {T0}, 1, {L}")
        e.op(f"v_min_u32 {T0}, 4, {T0}")
        e.op(f"v_and_b32 {T1}, 1, {L}")
        e.op(f"v_lshl_add_u32 {T1}, {T1}, 3, {s(S_PFC)}")
        e.op(f"v_lshl_add_u32 {v(V_FC)}, {T0}, 7, {T1}")
        e.op(f"v_writelane_b32 {v(V_FC)}, {s(S_PFG)}, 63")
        e.op(f"s_bfe_u32 {s(S_T0)}, {s(S_BITS)}, {hex((26 << 16) | 2)}")
        e.op(f"v_writelane_b32 {v(V_FC)}, {s(S_T0)}, 62")
        e.op(f"s_lshr_b32 {s(S_T0)}, {s(S_TQ)}, 2")
        e.op(f"s_sub_u32 {s(S_T0)}, {s(S_T0)}, 2")
        e.op(f"v_lshrrev_b32 {T0}, 4, {L}")
        e.op(f"v_min_u32 {T0}, 2, {T0}")
        e.op(f"v_add_u32 {T0}, {s(S_T0)}, {T0}")
        e.op(f"v_max_i32 {T0}, 0, {T0}")
        e.op(f"v_and_b32 {T1}, 3, {L}")
        e.op(f"v_lshl_add_u32 {T1}, {T1}, 3, {s(S_PFA)}")
        e.op(f"v_lshl_add_u32 {T0}, {T0}, 11, {T1}")
        e.op(f"v_bfe_u32 {T1}, {L}, 2, 1")
        e.op(f"v_mad_u32_u24 {T0}, {T1}, {s(S_ASTEP)}, {T0}")
        e.op(f"v_cmp_gt_u32 vcc, 48, {L}")
        e.op(f"v_bfe_u32 {T1}, {L}, 3, 1")
        e.op(f"v_add_u32 {T1}, 1, {T1}")
        e.op(f"v_mul_u32_u24 {T1}, 640, {T1}")
        e.op(f"v_cndmask_b32 {T1}, 0, {T1}, vcc")
        e.op(f"v_add_u32 {v(V_FA)}, {T0}, {T1}")

    def rt_tables(self, base):
        e = self.e
        L = v(V_LANE); T0, T1, T2, T3 = v(V_T0), v(V_T1), v(V_T2), v(V_T3)
        P0, P1 = v(V_POLL), v(V_POLL + 1)
        e.op(f"s_and_b32 {s(S_T0)}, {s(S_WAVE)}, 1")
        e.op(f"s_mul_i32 {s(S_T0)}, {s(S_T0)}, 160")
        e.op(f"v_add_u32 {T0}, {s(S_T0)}, {L}")
        for i in range(3):
            e.op(f"v_mul_u32_u24 {T1}, 820, {T0}")
            e.op(f"v_lshrrev_b32 {T1}, 16, {T1}")
            e.op(f"v_lshlrev_b32 {T1}, 2, {T1}")
            e.op(f"v_xor_b32 {T1}, {T0}, {T1}")
            e.op(f"v_lshlrev_b32 {v(RT_LD + i)}, 4, {T1}")
            if i < 2: e.op(f"v_add_u32 {T0}, 64, {T0}")
        e.op(f"v_lshrrev_b32 {T0}, 4, {L}")
        e.op(f"v_and_b32 {T1}, 3, {L}")
        e.op(f"v_bfe_u32 {P1}, {L}, 2, 2")
        e.op(f"v_lshlrev_b32 {T3}, 3, {P1}")
        e.op(f"v_mul_u32_u24 {P1}, 1280, {P1}")
        e.op(f"v_add_u32 {P1}, {base}, {P1}")
        e.op(f"s_lshl_b32 {s(S_T0)}, {s(S_WAVE)}, 5")
        e.op(f"v_and_b32 {P0}, 1, {T0}")
        e.op(f"v_lshl_add_u32 {T2}, {T1}, 1, {P0}")
        e.op(f"v_lshrrev_b32 {v(RT_D)}, 5, {L}")
        e.op(f"v_lshl_add_u32 {T2}, {v(RT_D)}, 3, {T2}")
        e.op(f"v_add_u32 {T2}, {s(S_T0)}, {T2}")
        for i in range(2):
            if i: e.op(f"v_add_u32 {T2}, 16, {T2}")
            e.op(f"v_xor_b32 {v(RT_D)}, {T2}, {T3}")
            e.op(f"v_lshl_add_u32 {v(RT_RD + i)}, {v(RT_D)}, 3, {P1}")
        e.op(f"v_lshl_add_u32 {T2}, {P0}, 2, {T1}")
        e.op(f"s_lshl3_add_u32 {s(S_T0)}, {s(S_WAVE)}, 0x80")
        e.op(f"v_add_u32 {T2}, {s(S_T0)}, {T2}")
        e.op(f"v_xor_b32 {T2}, {T2}, {T3}")
        e.op(f"v_lshl_add_u32 {v(RT_RD + 2)}, {T2}, 3, {P1}")
        e.op(f"v_mul_u32_u24 {T0}, {1024 - 256}, {T0}")
        e.op(f"v_add_u32 {v(RT_ST)}, {T0}, {v(V_L16)}")
        e.op(f"v_add_u32 {v(RT_ST + 1)}, {74 * 5120}, {v(RT_ST)}")
        e.op(f"s_mov_b32 {s(S_T0)}, {74 * 5120 - 256}")
        e.op(f"v_mad_u32_u24 {T0}, {P0}, {s(S_T0)}, {v(V_L16H)}")
        e.op(f"v_add_u32 {v(RT_ST + 2)}, 4096, {T0}")
    def rt_srd(self, reg=S_BITS, bit=1):
        e = self.e
        e.op(f"s_bitcmp1_b32 {s(reg)}, {bit}")
        e.op(f"s_cselect_b64 {s(S_MISC,2)}, {s(S_PWO,2)}, {s(S_PW2,2)}")
        e.op(f"s_mov_b32 {s(S_MISC+2)}, {640 * 1280}")
        e.op(f"s_cselect_b32 {s(S_MISC+2)}, {s(S_MISC+2)}, {1728 * 1280}")
    def rt_loads(self, base, src, sw):
        e = self.e
        for i in range(3):
            e.op(f"s_add_u32 m0, {s(sw)}, {base + i * 1024}")
            if i == 2: e.op("s_mov_b32 exec_hi, 0")
            e.op(f"buffer_load_dwordx4 {v(RT_LD + i)}, {s(S_MISC,4)}, {s(src)} offen {self.nt}lds", tag="rl")
            if i == 2: e.op("s_mov_b32 exec_hi, -1")
    def rt_reads(self, lo_=0, D=RT_D):
        return [lambda i=i, u=u: self.e.op(f"ds_read_b64_tr_b16 {v(D + 4 * i + 2 * u, 2)}, {v(RT_RD + i)} offset:{lo_ + u * 5120}", tag=("rt", i))
                for i in range(3) for u in range(2)]
    def rt_stores(self, D=RT_D, so=S_RTS):
        e = self.e
        def st(i):
            e.wait(lg=("rt", i))
            e.op(f"buffer_store_dwordx4 {v(D + 4 * i, 4)}, {v(RT_ST + i)}, {s(S_WS,4)}, {s(so)} offen sc1", tag="rs")
        return [lambda i=i: st(i) for i in range(3)]

    @property
    def EARLY_W(self): return tuple(range(self.o('new', 4)))
    def w_loads(self, n):
        e = self.e
        def f(j):
            dst = r(WR + 20 * (n % NWR) + 4 * j, 4)
            if n == 13:
                if j in (0, 4):
                    e.op(f"s_add_u32 {s(S_T2)}, {s(S_WT0)}, {n * 5120 - 2048 + (4096 if j else 0)}")
                    e.op(f"s_cmp_lt_u32 {s(S_WAVE)}, 2")
                    e.op(f"s_cselect_b32 {s(S_T2)}, {s(S_T2)}, {OOB}")
                e.op(f"buffer_load_dwordx4 {dst}, {v(V_L16)}, {s(S_WS,4)}, {s(S_T2)} offen offset:{(j & 3) * 1024} sc1", tag=("w", n, j))
                return
            if j == 0:
                base, off = (S_WT0, n * 5120) if n < 14 else (S_WT1, (n - 14) * 5120)
                if self.o("wsame", 0): base, off = S_WT0, (n % 4) * 5120
                if self.wv is None or self.wv[0] != base:
                    e.op(f"v_add_u32 {v(V_WV)}, {s(base)}, {v(V_L16)}")
                    self.wv = (base, 0)
                if off != self.wv[1]: e.op(f"v_add_u32 {v(V_WV)}, {off - self.wv[1]}, {v(V_WV)}")
                self.wv = (base, off)
            e.op(f"global_load_dwordx4 {dst}, {v(V_WV)}, {s(S_WS,2)} offset:{j * 1024 - 2048} sc1", tag=("w", n, j))
        return [lambda j=j: f(j) for j in range(5)]
    @property
    def LDS_W(self):
        return (14, 15, 16)[:self.o("nlds", 2)]
    def wl_dmas(self):
        e = self.e
        def f(i):
            if i == 0:
                e.op(f"s_mul_i32 {s(S_T4)}, {s(S_WAVE)}, 20480")
                e.op(f"s_lshl_b32 {s(S_T2)}, {s(S_WAVE)}, 3")
                e.op(f"s_lshr_b32 {s(S_T2)}, {hex(sum((54 + 5 * w - KS0[w]) << (8 * w) for w in range(4)))}, {s(S_T2)}")
                e.op(f"s_and_b32 {s(S_T2)}, {s(S_T2)}, 0xff")
                e.op(f"s_mul_i32 {s(S_T2)}, {s(S_T2)}, 5120")
                e.op(f"s_add_u32 {s(S_DM)}, {s(S_T2)}, {s(S_WT0)}")
            if i % 4 == 0:
                e.op(f"s_add_u32 m0, {s(S_T4)}, {L_W + i * 1024}")
                e.op(f"s_add_u32 {s(S_DM)}, {s(S_DM)}, {4096 if i else -2048}")
            e.op(f"buffer_load_dwordx4 {v(V_L16)}, {s(S_WS,4)}, {s(S_DM)} offen offset:{(i % 4) * 1024} sc1 lds", tag="wl")
        return [lambda i=i: f(i) for i in range(5 * len(self.LDS_W))]
    @property
    def TM(self): return self.o("tm", 5)
    def hreg(self, n, t):
        n0 = 19 - self.TM
        if n < n0: return HSLOT[n % NH] + 4 * t
        i = self.TM * t + (n - n0)
        return HSLOT[(n0 + i // 4) % NH] + 4 * (i % 4)
    def h_load(self, n, t):
        e = self.e
        dst = v(self.hreg(n, t), 4)
        if n >= 14:
            q = n - 14 if not self.o("hsame", 0) else 0
            so = ("0", s(S_C1), s(S_C2))[q >> 1]
            e.op(f"buffer_load_dwordx4 {dst}, {v(V_O + t)}, {s(S_WS,4)}, {so} offen offset:{(q & 1) * 2048} sc1", tag=("h", n, t))
            return
        if t == 0 and n > 1 and n % 2 == 0:
            e.op(f"s_movk_i32 {s(S_HK)}, {n * 2048 if not self.o('hsame', 0) else 0}")
            self.hk = n
        if t == 0 and n == 13:
            e.op(f"s_cmp_lt_u32 {s(S_WAVE)}, 2")
            e.op(f"s_cselect_b32 {s(S_T5)}, {s(S_HK)}, {OOB}")
        assert n < 2 or self.hk == n & ~1
        e.op(f"buffer_load_dwordx4 {dst}, {v(V_H + t)}, {s(S_WS,4)}, {s(S_T5) if n == 13 else s(S_HK) if n > 1 else 0} offen offset:{(n & 1) * 2048} sc1", tag=("h", n, t))
    def kvq_loads(self):
        e = self.e
        so = ("0", s(S_C1), s(S_C2))
        def q(f): e.op(f"buffer_load_dwordx4 {v(VQ + 4 * f, 4)}, {v(V_Q)}, {s(S_WS,4)}, {so[f]} offen sc1", tag="q")
        def k(f, i):
            if f == 0 and i == 0: e.op(f"s_mul_i32 {s(S_T5)}, {s(S_WAVE)}, 3072")
            if i == 0: e.op(f"s_add_u32 m0, {s(S_T5)}, {L_K + f * 12288}")
            e.op(f"buffer_load_dwordx4 {v(V_KT + i)}, {s(S_WS,4)}, {so[f]} offen offset:{i * 1024} sc1 lds", tag="kd")
        def vv(i, n):
            if i == 0 and n == 0: e.op(f"s_mul_i32 {s(S_T5)}, {s(S_WAVE)}, 9216")
            if n == 0: e.op(f"s_add_u32 m0, {s(S_T5)}, {L_V + i * 3072}")
            e.op(f"buffer_load_dwordx4 {v(V_L16H if n == 2 else V_L16)}, {s(S_WS,4)}, {s(S_VOFF + i)} offen offset:{n * 1024} sc1 lds", tag="vd")
        return [lambda f=f: q(f) for f in range(3)] + [lambda f=f, i=i: k(f, i) for f in range(3) for i in range(3)] + \
               [lambda i=i, n=n: vv(i, n) for i in range(3) for n in range(3)]

    @staticmethod
    def tile_of(i):
        j, t0, k0 = i >> 3, (i >> 1) & 3, i & 1
        return j, (3 - t0 if j & 1 else t0), k0 ^ (t0 & 1)
    def w_read(self, st, f, u):
        j, ks = f >> 1, f & 1
        off = L_W + (st % NW) * 16384 + ks * 8192 + u * 1024
        ad = V_WR + j
        if off >= 65536: off -= 65536; ad += 4
        self.e.op(f"ds_read_b64_tr_b16 {v(V_FR + 4 * f + 2 * u, 2)}, {v(ad)} offset:{off}", tag=("w", st, f))
    def xreg(self, xs, ks, tt): return A_X + 32 * self.XREG.get(xs, NXR) + 16 * ks + 4 * tt
    def x_read(self, st, ks, tt):
        xs = self.xst(st)
        self.e.op(f"ds_read_b128 {r(self.xreg(xs, ks, tt), 4)}, {v(V_XR + ks)} offset:{(tt >> 1) * 16384 + self.XSLOT[xs] * 4096 + (tt & 1) * 1024}", tag=("x", st, ks, tt))
    def accreg(self, ps, tt, j, swap):
        b, p, G, q = tt >> 1, tt & 1, j >> 1, j & 1
        return ACC[ps] + 32 * G + (16 * q + 8 * b + 4 * p if swap else 16 * p + 8 * b + 4 * q)

    @property
    def LEAD(self): return self.o('lead', 11)
    def stage1_fill(self):
        e = self.e
        fill = {m: [] for m in range(-1, 640)}
        used = {m: 0 for m in range(-1, 640)}
        def at(m, f, n=1):
            fill[max(m, -1)].append(f); used[max(m, -1)] += n
        WG = (1, 2, 9, 11, 15, 17, 21, 23)
        for st in range(20):
            b = 32 * st - self.LEAD
            def bar(st=st):
                assert ("d", st) in e.all_tags
                e.wait(vm=("d", st), lg="all")
                e.op("s_barrier")
            at(b, bar, 2)
            for f in range(8):
                for u in range(2): at(b + WG[f], lambda st=st, f=f, u=u: self.w_read(st, f, u))
            for f in range(8):
                rd = lambda st=st, f=f: self.x_read(st, f & 1, f >> 1)
                if st < 10: at(b + 3 + (f >> 1), rd)
                elif self.xst(st) in (5, 7): at(b - 32 + (13, 13, 19, 19, 25, 25, 27, 27)[f], rd)
            for g in (-1, 3, 7, 15): used[max(32 * st + g, -1)] += 1
        return fill, used

    def vm_schedule(self, fill, used, queues, m0, m1, thr):
        lag = 0
        for m in range(m0, m1):
            lag = max(0, lag - 16)
            heads = [q for q in queues if q and q[0][0] <= m]
            if not heads: continue
            q = min(heads, key=lambda q: q[0][1])
            if (used[m] or m % 2 == 0) and q[0][1] + 3 > m: continue
            if q[0][1] <= m or lag <= thr:
                rel, dl, cost, f = q.pop(0)
                fill[m].append(f); used[m] += 2
                lag = min(lag, 3 * 72) + cost
        assert not any(queues), [len(q) for q in queues]
    def va_place(self, fill, used, ops, m0, m1):
        cap = 2
        while sum(max(0, cap - used[m]) for m in range(m0, m1)) < len(ops): cap += 1
        over = len(ops) - sum(max(0, cap - 1 - used[m]) for m in range(m0, m1)) if cap > 2 else len(ops)
        ops = list(ops)
        for m in range(m0, m1):
            n = max(0, cap - 1 - used[m]) if cap > 2 else 0
            ex = max(0, cap - used[m]) - n
            ex = min(ex, over); over -= ex
            for _ in range(n + ex):
                if ops: fill[m].append(ops.pop(0)); used[m] += 1
        assert not ops

    def p1_epilogue_ops(self):
        e = self.e
        groups = []
        for g in range(8):
            A = ACC[0] + 8 * g
            ops = [lambda A=A, q=q: e.op(f"v_mul_f32 {v(A+q)}, {s(S_SCALE)}, {v(A+q)}") for q in range(8)]
            ops += [lambda A=A, q=q: e.op(f"v_cvt_pk_bf16_f32 {v(A+q)}, {v(A+2*q)}, {v(A+2*q+1)}") for q in range(4)]
            ops.append(lambda A=A, g=g: e.op(f"buffer_store_dwordx4 {v(A,4)}, {v(V_ST1 + (g >> 1))}, {s(S_WS,4)}, {s(S_ST1B if g & 1 else S_ST1)} offen sc1", tag="st1"))
            groups.append(ops)
        return groups
    def p2_epilogue_ops(self):
        e = self.e
        groups = []
        for g in range(8):
            A = ACC[1] + 8 * g
            ops = [lambda A=A, q=q: e.op(f"v_cvt_pk_bf16_f32 {v(A+q)}, {v(A+2*q)}, {v(A+2*q+1)}") for q in range(4)]
            ops += [lambda A=A, q=q: e.op(f"v_pk_max_i16 {v(A+q)}, {v(A+q)}, 0") for q in range(4)]
            ops.append(lambda A=A, g=g: e.op(f"buffer_store_dwordx4 {v(A,4)}, {v(V_LH)}, {s(S_WS,4)}, {s(S_ST2B if g & 1 else S_ST2)} offen offset:{(g >> 2) * 2048 + ((g >> 1) & 1) * 128} sc1", tag="st2"))
            groups.append(ops)
        return groups

    def stage1_stream(self, fill, m0, m1, swap):
        e = self.e
        for m in range(m0, m1):
            st, i = divmod(m, 32)
            j, tt, ks = self.tile_of(i)
            if ("w", st, 2 * j + ks) in e.lg or ("x", st, ks, tt) in e.lg:
                e.wait(lg=[("w", st, 2 * j + 1), ("x", st, 1, tt | 1)])
            acc = v(self.accreg(st // 10, tt, j, swap), 4)
            wf = v(V_FR + 4 * (2 * j + ks), 4)
            xf = r(self.xreg(self.xst(st), ks, tt), 4)
            c = "0" if (st % 10 == 0 and i % 2 == 0) else acc
            if swap: e.op(f"v_mfma_f32_16x16x32_bf16 {acc}, {xf}, {wf}, {c}")
            else: e.op(f"v_mfma_f32_16x16x32_bf16 {acc}, {wf}, {xf}, {c}")
            for fn in fill[m]: fn()

    def ones_init(self):
        e = self.e
        def first():
            e.op(f"s_mov_b32 {s(S_MASK)}, 0x11000000")
            e.op(f"s_mov_b32 {s(S_MASK+1)}, 0x11000000")
            e.op(f"v_mov_b32 {v(VF)}, 0x3f803f80")
        return [first, lambda: e.op(f"v_cndmask_b32 {v(VF)}, 0, {v(VF)}, {s(S_MASK,2)}")] + \
               [lambda i=i: e.op(f"v_mov_b32 {v(VF + i)}, {v(VF)}") for i in range(1, 8)]

    def stage1(self):
        e = self.e
        lead = self.LEAD
        nc, c0, ne = self.o("tnc", 0), self.o("tch0", 2), self.o("tne", 1)
        S_TX, S_TW = 98, 99
        tstr = self.o("tstr", nc)
        def touch_setup():
            e.op(f"s_lshl2_add_u32 {s(S_T0)}, s2, {s(S_WAVE)}")
            nx, nw_ = -(-2048 // 960), 2 * nc
            e.op(f"v_min_u32 {v(30)}, {nx * nc - 1}, {v(V_LANE)}")
            e.op(f"v_mul_u32_u24 {v(31)}, {-(-65536 // nc)}, {v(30)}")
            e.op(f"v_lshrrev_b32 {v(31)}, 16, {v(31)}")
            e.op(f"v_mul_u32_u24 {v(31)}, {10 - nc}, {v(31)}")
            e.op(f"v_add_lshl_u32 {v(30)}, {v(30)}, {v(31)}, 7")
            e.op(f"s_mul_i32 {s(S_TX)}, {s(S_T0)}, {nx * 1280}")
            e.op(f"v_min_u32 {v(31)}, {nw_ - 1}, {v(V_LANE)}")
            e.op(f"v_lshlrev_b32 {v(31)}, 7, {v(31)}")
            e.op(f"s_mul_i32 {s(S_TW)}, {s(S_T0)}, {nw_ * 128}")
            e.op(f"s_add_u32 {s(S_TW)}, {s(S_TW)}, {c0 * 64 * 3840}")
        def touch(k):
            if k == 0: touch_setup()
            e.op(f"buffer_load_dword {v(28)}, {v(30)}, {s(S_X,4)}, {s(S_TX)} offen offset:{(c0 + k * tstr) * 128}")
            if k: e.op(f"s_add_u32 {s(S_TW)}, {s(S_TW)}, {tstr * 64 * 3840}")
            e.op(f"buffer_load_dword {v(29)}, {v(31)}, {s(S_WA,4)}, {s(S_TW)} offen")
        tpos = [self.o("tpos", 0) + k * self.o("tstep", 1) for k in range(ne)] if nc else []
        def touch_at(p):
            for k in range(len(tpos)):
                if tpos[k] == p: touch(k)
        touch_at(-1)
        z5 = self.o("zoom", 0) == 5 and self.stamps
        if z5: e.op("s_memrealtime s[98:99]")
        for f in self.dmas(0): f()
        if z5: e.op("s_memrealtime s[100:101]")
        touch_at(0)
        self.pi_setup(None, True)
        self.common_setup()
        self.stage1_tables()
        d1 = self.dmas(1)
        for f in d1[:4]: f()
        self.rt_tables(L_RT)
        lsu = self.o("lsu", 4)
        if not lsu: self.late_lane_tables()
        for f in d1[4:]: f()
        touch_at(1)
        if z5: self.stamp(3, True)
        e.wait(lg="all")
        if z5:
            e.op(f"v_writelane_b32 {v(V_STAMP)}, s98, 1")
            e.op(f"v_writelane_b32 {v(V_STAMP)}, s100, 2")
            self.stamp(4, True)
        self.flush_stamp()
        rtp = self.o("rtpos", 1)
        def rt_go():
            e.op(f"s_mul_i32 {s(S_T5)}, {s(S_WAVE)}, 2560")
            self.rt_loads(L_RT, S_RTSRC, S_T5)
        def gw_go():
            e.op(f"s_mov_b64 {s(S_MISC,2)}, {s(S_PG,2)}")
            e.op(f"s_cmp_eq_u32 {s(S_CG2)}, 14")
            e.op(f"s_cselect_b32 {s(S_MISC+2)}, 1280, 0")
            e.op(f"s_lshr_b32 {s(S_T5)}, {s(S_WM0)}, 1")
            e.op(f"s_add_u32 m0, {s(S_T5)}, {L_GW}")
            for n in range(2):
                e.op(f"buffer_load_dwordx4 {v(V_L16)}, {s(S_MISC,4)}, 0 offen offset:{n * 1024} lds", tag="gw")
        e.op(f"s_lshr_b32 {s(S_CG2)}, {s(S_BITS)}, 28")
        self.rt_srd()
        if rtp == 1: rt_go()
        self.flag_init()
        if not lsu:
            self.w1_columns(); self.late_table_use()
        fill, used = self.stage1_fill()
        vfill = {m: [] for m in range(-1, 640)}
        G2 = lambda k, d: 2 * self.o(k, d)
        dq = []
        for st in range(2, 20):
            d = self.dmas(st)
            rel = 32 * (st - (2 if st < 10 else 4)) - lead + 1
            g0 = max(32 * (st - 2) - lead + 1, 0); g1 = 32 * (st - 1) - lead - 2
            dq += [(rel, g0 + i * (g1 - g0) // len(d), 72, f) for i, f in enumerate(d)]
            if st == rtp: dq.append((rel, g1 - 1, 180, rt_go))
            if st == 9: dq.append((rel, g1 - 1, 40, gw_go))
            if st in tpos: dq.append((rel, g1 - 1, 40, lambda st=st: touch_at(st)))
        pA, cA = G2("pollA", 263), G2("chkA", 280)
        assert cA > 32 * (10 + self.P2X.index(7)) - lead
        kv = self.kvq_loads()
        dq += [(cA + 1, cA + 1 + i * (634 - cA) // len(kv), 72, f) for i, f in enumerate(kv)]
        rs0 = G2("rs0", 16 * rtp + 30)
        rr0 = 32 * (rtp + 2) - lead - 6 if rs0 >= 32 * (rtp + 2) - lead else 32 * (rtp + 1) - lead + 4
        assert rs0 > rr0 + 4
        for i, f in enumerate(self.rt_reads()):
            fill[rr0 + i // 2].append(f); used[rr0 + i // 2] += 1
        sq = [(rs0 + 12 * i, rs0 + 12 * i, 128, f) for i, f in enumerate(self.rt_stores())]
        sq.append((rs0 + 28, rs0 + 28, 20, self.nonce_issue))
        pd = (rs0 + 28 + 48 + lead + 31) // 32 * 32 - lead
        pd = max(pd, 32 * self.o("pdst", 0) - lead)
        fill[pd].insert(0, self.nonce_check)
        sq.append((pd + 1, pd + 1, 20, lambda: self.publish(S_RTF)))
        sp, e0 = G2("epi", 4), self.o("e0", 321)
        assert e0 >= 306 and e0 + 4 * sp > 321
        epi1 = self.p1_epilogue_ops()
        self.epi1_flat = sum(epi1, [])
        for g, ops in enumerate(epi1): sq.append((e0 + sp * (g + 1), e0 + sp * (g + 1), self.o("stc", 160), ops[-1]))
        def pub_a():
            e.wait(vm="st1")
            self.publish(S_FLA)
            if self.o("stpub", 0): self.stamp(1)
        pD, cD = G2("pollD", 222), G2("chkD", 240)
        assert cD >= 322
        sq += [(pD, pD, 20, lambda: self.poll_issue(V_FD)), (G2("pubA", 216), G2("pubA", 216), 20, pub_a)]
        sq.sort(key=lambda x: x[0])
        vfill[cD].append(lambda: self.poll_check(V_FD, 1)); used[cD] += 3
        sq.append((pA, pA, 30, lambda: self.poll_issue(V_FA)))
        if self.o("pollA2", 0): sq.append((G2("pollA2", 0), G2("pollA2", 0), 30, lambda: self.poll_again(V_FA)))
        vfill[cA].append(lambda: self.poll_check(V_FA, 0)); used[cA] += 3
        vfill[cA].append(lambda: self.stamp(3))
        ew = sum([self.w_loads(n) for n in self.EARLY_W], [])
        def w_free(n):
            inv = {b_: a_ for a_, b_ in self.XREG.items()}
            return max(32 * (11 + self.P2X.index(inv[q])) for q in range(20 * n // 32, (20 * n + 19) // 32 + 1))
        wq = [(max(cD + 1, w_free(i // 5)), cA - self.o("ewd", 4) * (len(ew) - i), 72, f) for i, f in enumerate(ew)]
        self.vm_schedule(fill, used, [dq, sq, wq], 0, 640, self.o("thr", 80))
        if lsu: self.va_place(vfill, used, self.capture(self.w1_columns, self.late_lane_tables, self.late_table_use), self.o("lsu0", 0) * 32, 32 * lsu)
        for g, ops in enumerate(epi1): self.va_place(vfill, used, ops[:-1], e0 + sp * g, e0 + sp * (g + 1))
        self.va_place(vfill, used, self.ones_init(), e0 + sp * 8 + 8, e0 + sp * 8 + 40)
        epi2 = self.p2_epilogue_ops()
        self.p2_stores_left = [g[-1] for g in epi2]
        va = sum([g[:-1] for g in epi2], [])
        if self.o("qh", 1): self.va_place(vfill, used, self.q_mask_ops(), 604, 626)
        nh = self.o("p2h", 24)
        self.va_place(vfill, used, va[:nh], 626, 640)
        self.p2_valu_left = va[nh:]
        z = self.o("zoom", 0)
        if z in (1, 2):
            for k in range(11):
                m = min(320 * (z - 1) + 32 * k - 1, 639 if z == 2 else 318)
                if z == 2 and k == 0: m = 320
                vfill[m].append(lambda k=k: self.stamp(1 + k, True))
            vfill[319].append(self.flush_stamp)
        for m in fill: fill[m] += vfill[m]
        done = [f for m in range(320) for f in fill[m]]
        self.epi1_left = [f for f in self.epi1_flat if f not in done]
        if z5: self.stamp(5, True)
        for fn in fill[-1]: fn()
        if z5:
            self.stamp(6, True); self.flush_stamp()
        if z == 1: self.flush_stamp()
        self.stamp(1)
        e.op(f"s_cmp_ge_u32 {s(S_CG)}, 10")
        e.op("s_cbranch_scc1 L_p1v")
        snap = e.snapshot()
        self.stage1_stream(fill, 0, 320, False)
        e.op("s_branch L_p2")
        after = e.snapshot()
        e.restore(snap)
        e.label("L_p1v")
        self.stage1_stream(fill, 0, 320, True)
        assert after[0] == e.vm and after[1] == e.lg
        e.label("L_p2")
        e.op(f"s_cmp_eq_u32 {s(S_CG2)}, 14")
        e.op("s_cbranch_scc1 L_gate")
        self.gate_snap = e.snapshot()
        self.phase = 1
        self.stamp(2)
        self.wv = None
        self.stage1_stream(fill, 320, 640, False)
        self.flush_stamp()

    def side_tail(self, early=True):
        e = self.e
        if early:
            if self.o("go", 1) & 1:
                e.op(f"s_sub_u32 {s(S_T1)}, s2, 240")
                e.op(f"s_lshl4_add_u32 {s(S_T1)}, {s(S_T1)}, {s(S_WAVE)}")
                e.op(f"s_lshl3_add_u32 {s(S_T1)}, {s(S_T1)}, {FL_GO}")
                e.op(f"v_mov_b32 {v(28)}, {s(S_T1)}")
                self.poll_issue(28); self.poll_check(28, 5)
            self.poll_issue(V_FD)
            for f in self.ones_init(): f()
            self.poll_check(V_FD, 1)
            self.wv = None
            ew = sum([self.w_loads(n) for n in self.EARLY_W], [])
            if self.o("go", 1) & 2:
                for f in ew: f()
                e.op(f"v_mov_b32 {v(28)}, {s(S_PFG)}")
                self.poll_issue(28); self.poll_check(28, 5)
                self.poll_issue(V_FA)
            else:
                for f in ew[:self.o("spa", 20)]: f()
                self.poll_issue(V_FA)
                for f in ew[self.o("spa", 20):]: f()
        self.poll_check(V_FA, 0)
        for f in self.kvq_loads(): f()
        if self.o("qh", 1):
            for f in self.q_mask_ops(): f()
        e.wait(lg="all")
        n = min(len(self.att_vm), 21)
        assert self.o('abl', 0) or n >= 10 and e.vm[-n:] == self.att_vm[-n:] and all(t[0] == "w" or t == "poll2" for t in self.att_vm[:-n])
        e.op("s_branch L_att")

    def gate(self):
        e = self.e
        T1, T2, T3 = v(V_T1), v(V_T2), v(V_T3)
        e.restore(self.gate_snap)
        e.label("L_gate")
        self.phase = 1
        self.stamp(1)
        self.poll_issue(V_FD)
        def go():
            e.op(f"s_lshr_b32 {s(S_T1)}, {s(S_TB1)}, 2")
            e.op(f"s_lshl4_add_u32 {s(S_T1)}, {s(S_T1)}, {s(S_WAVE)}")
            e.op(f"s_lshl3_add_u32 {s(S_T1)}, {s(S_T1)}, {FL_GO}")
            self.publish(S_T1)
        if self.o("gok", 2) < 0: go()
        e.op(f"s_lshr_b32 {s(S_T3)}, {s(S_WM0)}, 1")
        e.op(f"s_add_u32 {s(S_T3)}, {s(S_T3)}, {L_GW}")
        e.op(f"v_lshrrev_b32 {T1}, 4, {v(V_LANE)}")
        e.op(f"v_lshl_add_u32 {T1}, {T1}, 4, {s(S_T3)}")
        assert "gw" in e.all_tags
        e.wait(vm="gw", lg="all")
        epi = list(self.epi1_left)
        self.wv = None
        ew = sum([self.w_loads(n) for n in self.EARLY_W], [])
        G = 32
        order = [9, 0, 1, 2, 7, 3, 4, 5, 6, 8]
        def gread(k):
            if k % 2 == 0:
                self.pi_off(S_T4, order[k // 2], 0)
                e.op(f"v_add_u32 {T2}, {s(S_T4)}, {T1}")
            e.op(f"ds_read_b128 {v(G + 4 * (k % 4), 4)}, {T2} offset:{64 * (k % 2)}", tag=("g", k))
        for k in range(4): gread(k)
        while len(epi) > 13 * (8 - self.o("gpre", 4)): epi.pop(0)()
        for k in range(20):
            if k == self.o("gpub", 14):
                assert not epi
                e.wait(vm="st1")
                self.publish(S_FLA)
                self.stamp(2)
                self.poll_check(V_FD, 1)
            if k == self.o("gok", 2): go()
            if k > max(self.o("gpub", 14), 13): ew.pop(0)()
            xs, ks = order[k // 2], k % 2
            e.wait(lg=[("g", k), ("x", xs, ks, 3)])
            for tt in range(4):
                e.op(f"v_mfma_f32_16x16x32_bf16 {v(48 + 4 * tt, 4)}, {v(G + 4 * (k % 4), 4)}, {r(self.xreg(xs, ks, tt), 4)}, {'0' if k == 0 else v(48 + 4 * tt, 4)}")
                if k in (2, 3, 10, 11): self.x_read(7 if k < 8 else 5, ks, tt)
                if tt == 3 and k + 4 < 20: gread(k + 4)
                for _ in range(2 if tt < 3 else 0):
                    if epi: epi.pop(0)()
        assert not epi
        e.op("s_barrier")
        for f in self.ones_init(): f()
        e.op(f"s_bitcmp1_b32 {s(S_WAVE)}, 0")
        e.op(f"s_cselect_b64 {s(S_MASK,2)}, -1, 0")
        e.op("s_mov_b32 vcc_lo, 0xffff0000")
        e.op("s_mov_b32 vcc_hi, 0xffff0000")
        e.op(f"v_cndmask_b32 v0, v48, v56, {s(S_MASK,2)}")
        e.op(f"v_cndmask_b32 v4, v52, v60, {s(S_MASK,2)}")
        e.op("v_cndmask_b32 v0, v0, v4, vcc")
        e.op(f"v_min_f32 {T1}, {f32(30.0)}, v0")
        e.op(f"v_mul_f32 {T1}, {f32(LOG2E)}, {T1}")
        e.op(f"v_exp_f32 {T1}, {T1}")
        e.op(f"v_add_f32 {T2}, 1.0, {T1}")
        e.op(f"v_rcp_f32 {T2}, {T2}")
        e.op(f"v_cmp_gt_u32 vcc, 32, {v(V_LANE)}")
        e.op(f"v_and_b32 {T3}, 39, {v(V_LANE)}")
        e.op(f"v_bfe_u32 v1, {v(V_LANE)}, 3, 1")
        e.op(f"v_lshl_add_u32 {T3}, v1, 4, {T3}")
        e.op(f"v_bfe_u32 v1, {v(V_LANE)}, 4, 1")
        e.op(f"v_lshl_add_u32 {T3}, v1, 3, {T3}")
        e.op(f"v_lshlrev_b32 {T3}, 2, {T3}")
        e.op(f"s_lshl_b32 {s(S_T1)}, {s(S_TB1)}, 8")
        e.op(f"s_add_u32 {s(S_T1)}, {s(S_T1)}, {WS_G}")
        e.op(f"v_cndmask_b32 {T1}, {T2}, {T1}, vcc")
        e.op(f"buffer_store_dword {T1}, {T3}, {s(S_WS,4)}, {s(S_T1)} offen sc1", tag="gs")
        e.op(f"v_bfe_u32 {T2}, {v(V_LANE)}, 2, 2")
        e.op(f"v_and_b32 {T3}, 3, {v(V_LANE)}")
        e.op(f"v_lshlrev_b32 {T3}, 3, {T3}")
        e.op(f"v_lshl_add_u32 {T2}, {T2}, 7, {T3}")
        e.op(f"v_add_u32 {v(225)}, {FL_D + 60 * 128}, {T2}")
        self.poll_issue(225)
        for f in ew: f()
        self.poll_check(225, 4)
        self.poll_issue(V_FA)
        e.op(f"s_or_b32 {s(S_T1)}, {s(S_FLA)}, {15 * 128}")
        self.publish(S_T1)
        self.stamp(3)
        self.flush_stamp()
        self.side_tail(False)

    def spare(self):
        e = self.e
        e.restore(self.spare_snap)
        e.label("L_spare")
        L = v(V_LANE); T0, T1, T2, T3 = v(V_T0), v(V_T1), v(V_T2), v(V_T3)
        e.op(f"s_memrealtime {s(S_NONCE,2)}")
        e.op(f"s_lshl_b32 {s(S_T0)}, {s(S_WAVE)}, 3")
        e.op(f"s_lshr_b32 {s(S_T0)}, {hex(32 | (40 << 8) | (16 << 16) | (48 << 24))}, {s(S_T0)}")
        e.op(f"s_and_b32 {s(S_T0)}, {s(S_T0)}, 0xff")
        e.op(f"s_load_dwordx2 {s(S_MISC,2)}, s[0:1], {s(S_T0)}")
        self.common_setup()
        e.op(f"s_mov_b32 {s(S_MISC+2)}, {640 * 3456}")
        e.op(f"s_cmp_eq_u32 {s(S_WAVE)}, 2")
        e.op(f"s_cselect_b32 {s(S_MISC+2)}, {640 * 1280}, {s(S_MISC+2)}")
        e.op(f"s_cmp_eq_u32 {s(S_WAVE)}, 3")
        e.op(f"s_cselect_b32 {s(S_MISC+2)}, 1280, {s(S_MISC+2)}")
        e.op(f"s_cselect_b32 {s(S_T2)}, 7, 16")
        e.op(f"v_lshlrev_b32 {T0}, {s(S_T2)}, {L}")
        e.op(f"s_sub_u32 {s(S_T1)}, s2, 240")
        e.op(f"s_lshl2_add_u32 {s(S_T1)}, {s(S_T1)}, {s(S_WAVE)}")
        e.op(f"s_lshl_b32 {s(S_T2)}, {s(S_T1)}, 13")
        e.op(f"v_lshl_add_u32 {v(225)}, {L}, 7, {s(S_T2)}")
        e.wait(lg="all")
        self.table_loads()
        e.op(f"s_or_b32 {s(S_T2)}, {s(S_NONCE)}, 1")
        e.op(f"v_mov_b32 {v(V_NONCE)}, {s(S_T2)}")
        e.op(f"v_mov_b32 {v(V_NONCE+1)}, {s(S_NONCE+1)}")
        e.op(f"s_cmp_lg_u32 {s(S_T1)}, 0")
        e.op("s_cbranch_scc1 L_nononce")
        e.op("s_mov_b64 exec, 1")
        e.op(f"buffer_store_dwordx2 {v(V_NONCE,2)}, {v(V_ZERO)}, {s(S_DBG,4)}, 0 offen sc1")
        e.op("s_mov_b64 exec, -1")
        e.label("L_nononce")
        e.op(f"buffer_load_dword {v(224)}, {T0}, {s(S_MISC,4)}, 0 offen")
        def touch(m):
            m = m + self.o("tb4", 3) if m >= 0 else -1 - m
            if self.o("pf2", 1) and m < 5:
                e.op(f"s_mov_b32 {s(S_T2)}, {m * 4096 * 128}")
                e.op(f"buffer_load_dword {v(224)}, {v(225)}, {s(S_WB,4)}, {s(S_T2)} offen")
        if self.o("pf49", 0):
            c = self.o("pf49", 0)
            e.op(f"v_lshrrev_b32 {T2}, 8, {v(225)}")
            e.op(f"v_mul_u32_u24 {T2}, 1280, {T2}")
            e.op(f"v_bfe_u32 {T3}, {v(225)}, 7, 1")
            e.op(f"v_mul_u32_u24 {T3}, 640, {T3}")
            e.op(f"v_add_u32 {T2}, {T2}, {T3}")
            e.op(f"buffer_load_dword {v(224)}, {T2}, {s(S_X,4)}, 0 offen offset:{c * 128}")
            e.op(f"v_lshrrev_b32 {T2}, 8, {v(225)}")
            e.op(f"v_min_u32 {T2}, 1919, {T2}")
            e.op(f"v_lshlrev_b32 {T2}, 7, {T2}")
            e.op(f"v_mul_u32_u24 {T3}, {5 * 64 * 3840 // 640}, {T3}")
            e.op(f"v_add_u32 {T2}, {T2}, {T3}")
            e.op(f"s_mov_b32 {s(S_T2)}, {c * 64 * 3840}")
            e.op(f"buffer_load_dword {v(224)}, {T2}, {s(S_WA,4)}, {s(S_T2)} offen")
        for m in range(self.o("tb4", 3)): touch(-1 - m)
        e.op(f"v_mov_b32 {v(V_LH)}, 0")
        self.rt_tables(0)
        e.wait(lg="all")
        e.op(f"s_mul_i32 {s(S_T0)}, {s(S_WAVE)}, 2560")
        for m, src in enumerate((S_RTSRC, S_ST1, S_ST1B, S_SCALE)):
            self.rt_srd(S_TB1, m)
            self.rt_loads(m * 10240, src, S_T0)
        self.flag_init(True)
        touch(0)
        self.late_lane_tables()
        self.late_table_use()
        e.wait(vm="rl")
        e.op("s_barrier")
        self.stamp(1)
        touch(1)
        for m, so in enumerate((S_RTS, S_ST2, S_ST2B, S_FLA)):
            for f in self.rt_reads(m * 10240, 96 + 12 * m) + self.rt_stores(96 + 12 * m, so): f()
        for so in (S_ST2, S_ST2B, S_FLA): e.op(f"s_mov_b32 {s(so)}, {OOB}")
        self.nonce_issue()
        touch(2)
        self.nonce_check()
        e.op("s_barrier")
        self.publish(S_RTF)
        self.stamp(3)
        touch(3)
        touch(4)
        self.stamp(2)
        self.flush_stamp()
        self.side_tail()

    def k_reads(self, u):
        h, j = divmod(u, 9)
        for ff in range(2):
            self.e.op(f"ds_read_b128 {v(KF + 4 * ff, 4)}, {v(V_KA)} offset:{(h + ff) * 12288 + j * 1024}", tag="k")
    def v_reads(self, u):
        h, j = divmod(u, 9)
        e = self.e
        e.op(f"s_mov_b64 exec, {s(S_VM,2)}")
        for ss in range(2):
            e.op(f"ds_read_b128 {v(VF + 4 * ss, 4)}, {v(V_VA)} offset:{j * 3072 + ss * 1280 + h * 320}", tag="v")
        e.op("s_mov_b64 exec, -1")
    def qk(self, u, part, S, lo=False):
        h, j = divmod(u, 9)
        c = v(S, 16) if part else v(CD, 16) if j == 8 else v(CE, 16) if (j == 0 or lo) else "0"
        self.e.op(f"v_mfma_f32_32x32x16_bf16 {v(S,16)}, {v(KF + 4 * part, 4)}, {v(QM + 8 * h + 4 * part, 4)}, {c}")
    def pv(self, u, part, S, first):
        O = v(OO[u // 9], 16)
        self.e.op(f"v_mfma_f32_32x32x16_bf16 {O}, {v(VF + 4 * part, 4)}, {v(S + 4 * part, 4)}, {'0' if first else O}")

    def q_mask_ops(self):
        e = self.e
        M1, M3, M4 = S_MASK, S_PHI + 2, S_PHI + 4
        def masks():
            e.op(f"s_bitcmp1_b32 {s(S_BITS)}, 0")
            e.op(f"s_cselect_b64 {s(M1,2)}, 0, -1")
            e.op(f"s_cselect_b32 {s(M3+1)}, -1, 0")
            e.op(f"s_cselect_b32 {s(M4)}, -1, 0")
        ops = [masks, lambda: e.op(f"s_mov_b32 {s(M3)}, -1"), lambda: e.op(f"s_mov_b32 {s(M4+1)}, 0"), lambda: e.wait(vm="q")]
        how = {(0, 0, 0): (M1, 1), (0, 0, 1): None, (0, 1, 0): (M3, 1), (0, 1, 1): (M4, 1),
               (1, 0, 0): (M3, 0), (1, 0, 1): (M4, 0), (1, 1, 0): None, (1, 1, 1): (M1, 0)}
        val = {M1: lambda par, hf: par == 0, M3: lambda par, hf: hf == 0 or par == 1, M4: lambda par, hf: par == 1 and hf == 0}
        for (h, ff, slot), hw in how.items():
            for par in range(2):
                for hf in range(2):
                    keep = 0 <= 4 * (h + ff) + 2 * slot + hf - 2 * par - 5 * h < 5
                    assert keep == (True if hw is None else val[hw[0]](par, hf) == bool(hw[1]))
            for d in range(2):
                dst, src = v(QM + 8 * h + 4 * ff + 2 * slot + d), v(VQ + 4 * (h + ff) + 2 * slot + d)
                if hw is None: t = f"v_mov_b32 {dst}, {src}"
                elif hw[1]: t = f"v_cndmask_b32 {dst}, 0, {src}, {s(hw[0],2)}"
                else: t = f"v_cndmask_b32 {dst}, {src}, 0, {s(hw[0],2)}"
                ops.append(lambda t=t: e.op(t))
        return ops

    def attention(self):
        e = self.e
        e.label("L_att")
        self.phase = 2
        self.att_vm = list(e.vm)
        self.stamp(4)
        T0 = v(V_T0)
        stores = list(self.p2_stores_left)
        if not self.o("qh", 1):
            for f in self.q_mask_ops(): f()
        e.wait(vm="kd")
        e.op("s_barrier")
        self.k_reads(0)
        for f in self.p2_valu_left: f()
        for _ in range(self.o("ns1", 1)): stores.pop(0)()
        self.stamp(5)
        side = {(u, k): [] for u in range(18) for k in range(4)}
        wl = sum([self.w_loads(n) for n in range(NWR) if n not in self.EARLY_W], []) + self.wl_dmas()
        slots = [(u, k) for u in range(18) for k in range(4)]
        sst = self.o("sst", 1)
        for i, f in enumerate(stores): side[slots[sst * i]].append(f)
        def pub_c():
            e.wait(vm="st2")
            self.publish(S_FLA, 32)
        pubC, pC, cC = self.o("pubC", 24), self.o("pollC", 50), self.o("chkC", 61)
        side[slots[pubC]].append(pub_c)
        side[slots[pC]].append(lambda: self.poll_issue(V_FC))
        if self.o("pollC2", 0): side[slots[self.o("pollC2", 0)]].append(lambda: self.poll_again(V_FC))
        def chk_c():
            self.poll_check(V_FC, 2); self.stamp(6)
            e.op(f"buffer_load_dword {v(V_R)}, {v(V_R)}, {s(S_WS,4)}, 0 offen sc1", tag="r")
        hl = [(n + k, t) for n in (0, 2) for t in range(4) for k in range(2)]
        taken = {pubC, pC, cC} | {sst * i for i in range(len(stores))}
        skip = self.o("wskip", 0)
        acc, rate = 0, self.o("wrate", 16)
        for i, x in enumerate(slots):
            if i == cC: side[x].append(chk_c)
            if i in taken: continue
            skip -= 1
            if skip >= 0: continue
            acc += rate
            if acc < 16: continue
            acc -= 16
            if wl: side[x].append(wl.pop(0))
            elif i > cC and hl:
                n, t = hl.pop(0)
                side[x].append(lambda n=n, t=t: self.h_load(n, t))
        assert not wl
        self.h_left = hl
        def fill_ce(val):
            for i in range(16): e.op(f"v_mov_b32 {v(CE + i)}, {val}")
        def steps(lo):
            def open_at(jn):
                st, bk = self.L("open"), self.L("open_ok")
                e.op(f"s_cmp_eq_u32 {s(S_TQ)}, {8 - jn}")
                e.op(f"s_cbranch_scc1 {st}")
                e.label(bk)
                def stub():
                    e.label(st, reset=True)
                    e.op("s_nop 7")
                    fill_ce(0)
                    e.op("s_nop 0")
                    e.op(f"s_branch {bk}")
                self.stubs.append(stub)
            live = lambda u: 0 <= u < 18 and not (lo and u % 9 == 0 and self.o("losk", 1))
            if lo: fill_ce(hex(NEGBIG))
            e.wait(lg="k")
            if live(0):
                self.qk(0, 0, SB[0], lo); self.qk(0, 1, SB[0], lo)
            self.k_reads(1)
            if lo: open_at(1)
            for u in range(18):
                if self.o("zoom", 0) == 3 and u % 2 == 0: self.stamp(1 + u // 2, True)
                S, Sn, Sp = SB[u % 3], SB[(u + 1) % 3], SB[(u - 1) % 3]
                ex = lambda i: live(u) and e.op(f"v_exp_f32 {v(S + i)}, {v(S + i)}")
                cv = lambda i: live(u) and e.op(f"v_cvt_pk_bf16_f32 {v(S + i)}, {v(S + 2 * i)}, {v(S + 2 * i + 1)}")
                if live(u + 1):
                    e.wait(lg="k")
                    self.qk(u + 1, 0, Sn, lo)
                for f in side[(u, 0)]: f()
                for i in range(0, 4): ex(i)
                if live(u + 1): self.qk(u + 1, 1, Sn, lo)
                e.wait(lg="v")
                if live(u + 2): self.k_reads(u + 2)
                for f in side[(u, 1)]: f()
                for i in range(4, 8): ex(i)
                cv(0); cv(1)
                if live(u - 1): self.pv(u - 1, 0, Sp, (u - 1) % 9 == 0 or not live(u - 2))
                if lo and u + 2 == 9: fill_ce(hex(NEGBIG))
                if lo and u + 2 < 18 and 1 <= (u + 2) % 9 <= 7: open_at((u + 2) % 9)
                for f in side[(u, 2)]: f()
                for i in range(8, 12): ex(i)
                cv(2); cv(3)
                if live(u - 1): self.pv(u - 1, 1, Sp, False)
                if u > 0 and live(u): self.v_reads(u)
                for f in side[(u, 3)]: f()
                for i in range(12, 16): ex(i)
                for i in range(4, 8): cv(i)
                if u == 0:
                    e.wait(vm="vd")
                    e.op("s_barrier")
                    if live(0): self.v_reads(0)
            e.wait(lg="v")
            self.pv(17, 0, SB[17 % 3], False); self.pv(17, 1, SB[17 % 3], False)
            self.flush_stamp()
        self.flush_stamp()
        e.op(f"s_cmp_lt_u32 {s(S_TQ)}, 8")
        e.op("s_cbranch_scc1 L_att_lo")
        snap0, wv0 = e.snapshot(), self.wv
        steps(False)
        snap1 = e.snapshot()
        def att_lo():
            e.restore(snap0); self.wv = wv0
            e.label("L_att_lo")
            self.phase = 2
            steps(True)
            assert e.vm == snap1[0] and e.lg == snap1[1]
            e.op("s_branch L_att_join")
        self.att_lo = att_lo
        e.label("L_att_join")
        self.stamp(7)
        for h in range(2):
            O = OO[h]
            st, bk = self.L("slow"), self.L("slow_ok")
            e.op(f"v_subrev_u32 {T0}, 0x2f800000, {v(O + 12)}")
            e.op(f"v_cmp_le_u32 vcc, 0x20000000, {T0}")
            if self.o("forceslow", 0): e.op("s_mov_b64 vcc, -1")
            if self.o("abl", 0): e.op("s_mov_b64 vcc, 0")
            for _ in range(2 - h):
                if self.h_left:
                    n, t = self.h_left.pop(0); self.h_load(n, t)
            e.op(f"s_cbranch_vccnz {st}")
            e.label(bk)
            self.cold.append(lambda st=st, bk=bk, h=h: self.slow_head(h, st, bk))
        OP = 0
        ep = []
        A = lambda t, tag=None: ep.append(lambda: e.op(t, tag=tag))
        for h in range(2): A(f"v_rcp_f32 {v(V_T2 + h)}, {v(OO[h] + 12)}")
        ep.append(lambda: e.wait(vm="r"))
        for h in range(2): A(f"v_mul_f32 {v(V_T2 + h)}, {v(V_T2 + h)}, {v(V_R)}")
        for h in range(2):
            O = OO[h]
            for i in range(8): A(f"v_mul_f32 {v(O + i)}, {v(O + i)}, {v(V_T2 + h)}")
            for i in range(4): A(f"v_cvt_pk_bf16_f32 {v(OP + 4 * h + i)}, {v(O + 2 * i)}, {v(O + 2 * i + 1)}")
            A(f"buffer_store_dwordx4 {v(OP + 4 * h, 4)}, {v(V_L16)}, {s(S_WS,4)}, {s(S_OST)} offen offset:{h * 1024} sc1", "sto")
        for h in range(2):
            O = OO[h]
            for i in range(8, 12): A(f"v_mul_f32 {v(O + i)}, {v(O + i)}, {v(V_T2 + h)}")
            for i in range(2): A(f"v_cvt_pk_bf16_f32 {v(OP + 8 + 2 * h + i)}, {v(O + 8 + 2 * i)}, {v(O + 9 + 2 * i)}")
        A(f"buffer_store_dwordx4 {v(OP + 8, 4)}, {v(V_L16H)}, {s(S_WS,4)}, {s(S_OST2)} offen sc1", "sto")
        self.o_epilogue = ep

    def slow_head(self, h, st, bk):
        e = self.e
        e.label(st, reset=True)
        e.vm, e.lg = [], []
        T0, MX = v(V_T0), v(V_T1)
        O, S = OO[h], SB[0]
        e.op("s_nop 15")
        e.op(f"v_mov_b32 {MX}, {hex(NEGBIG)}")
        for i in range(16): e.op(f"v_mov_b32 {v(O + i)}, 0")
        for ps in range(2):
            for j in range(9):
                u = 9 * h + j
                sk = self.L("sk")
                if j < 8:
                    e.op(f"s_cmp_lt_u32 {s(S_TQ)}, {8 - j}")
                    e.op(f"s_cbranch_scc1 {sk}")
                if ps: self.v_reads(u)
                self.k_reads(u)
                e.wait(lg="all")
                self.qk(u, 0, S); self.qk(u, 1, S)
                if ps == 0:
                    for i in range(8): e.op(f"v_max3_f32 {MX}, {MX}, {v(S + 2 * i)}, {v(S + 2 * i + 1)}")
                else:
                    for i in range(16): e.op(f"v_sub_f32 {v(S + i)}, {v(S + i)}, {MX}")
                    for i in range(16): e.op(f"v_exp_f32 {v(S + i)}, {v(S + i)}")
                    for i in range(8): e.op(f"v_cvt_pk_bf16_f32 {v(S + i)}, {v(S + 2 * i)}, {v(S + 2 * i + 1)}")
                    self.pv(u, 0, S, False); self.pv(u, 1, S, False)
                    e.op("s_nop 7")
                e.label(sk)
            if ps == 0:
                e.op(f"v_mov_b32 {T0}, {MX}")
                e.op(f"v_permlane32_swap_b32 {T0}, {MX}")
                e.op("s_nop 1")
                e.op(f"v_max_f32 {MX}, {T0}, {MX}")
        e.op("s_nop 15")
        e.op(f"s_branch {bk}")

    def stage3(self):
        e = self.e
        L = v(V_LANE); T0, T1, T2, T3 = v(V_T0), v(V_T1), v(V_T2), v(V_T3)
        self.phase = 3
        self.stamp(8)
        e.op(f"s_load_dwordx8 {s(TB,8)}, {s(S_TAB,2)}, 128")
        e.op(f"s_load_dwordx4 {s(TB+8,4)}, {s(S_TAB,2)}, 160")
        e.op(f"s_load_dword {s(S_XM0)}, {s(S_TAB,2)}, 176")
        TM = self.TM; n0 = 19 - TM
        setup = []
        A = lambda t, tag=None: setup.append(lambda: e.op(t, tag=tag))
        setup.append(lambda: e.wait(lg="all"))
        A(f"s_movk_i32 {s(S_C1)}, 4096")
        A(f"s_movk_i32 {s(S_C2)}, 8192")
        for t in range(4): A(f"v_add_u32 {v(V_O + t)}, {s(S_OT + t)}, {v(V_HL)}")
        A(f"v_and_b32 {T0}, 15, {L}")
        A(f"v_lshl_add_u32 {v(V_GW)}, {T0}, 2, {s(S_GW)}")
        A(f"buffer_load_dword {v(V_GW)}, {v(V_GW)}, {s(S_WS,4)}, 0 offen sc1", "g")
        for t in range(3): A(f"v_add_u32 {v(V_RR + t)}, {s(S_RED + t)}, {v(V_L16)}")
        A(f"v_add_u32 {v(V_RW)}, {s(S_RED + 3)}, {v(V_L16)}")
        A(f"v_lshrrev_b32 {T1}, 4, {L}")
        A(f"v_mul_u32_u24 {T0}, 1280, {T0}")
        A(f"v_add_u32 {T0}, {s(S_OUTO)}, {T0}")
        A(f"v_lshl_add_u32 {v(V_OUT)}, {T1}, 4, {T0}")
        A(f"v_lshl_add_u32 {v(V_OUT + 1)}, {T1}, 3, {T0}")
        A(f"v_lshrrev_b32 {T0}, 1, {L}")
        A(f"v_min_u32 {T0}, 3, {T0}")
        A(f"v_and_b32 {T1}, 1, {L}")
        A(f"v_lshl_add_u32 {T1}, {T1}, 3, {s(S_PFB)}")
        A(f"v_lshl_add_u32 {v(V_FB)}, {T0}, 7, {T1}")
        cB = self.o("chkB", 12)
        Q = [(0, lambda n=n, t=t: self.h_load(n, t)) for n, t in self.h_left]
        if self.o("skipw", 0):
            wl0 = self.w_loads
            def dst(i):
                if i == 0:
                    e.op(f"s_lshl2_add_u32 {s(S_T2)}, s2, {s(S_WAVE)}")
                    e.op(f"s_mul_i32 {s(S_T2)}, {s(S_T2)}, 5120")
                    e.op(f"s_add_u32 {s(S_T2)}, {s(S_T2)}, {WS_X}")
                if i == 4: e.op(f"s_add_u32 {s(S_T2)}, {s(S_T2)}, 4096")
                e.op(f"buffer_store_dwordx4 {v(16,4)}, {v(V_L16)}, {s(S_WS,4)}, {s(S_T2)} offen offset:{(i & 3) * 1024} sc1")
            def wl1(n):
                for j in range(5): e.all_tags.add(("w", n, j))
                if n == 18: return wl0(n)
                if n == 17 and self.o("skipw", 0) == 1: return [lambda i=i: dst(i) for i in range(5)]
                return []
            self.w_loads = wl1
        def wl_read(n, j):
            e.wait(vm="wl")
            e.op(f"ds_read_b128 {r(WR + 20 * (n % NWR) + 4 * j, 4)}, {v(V_RW)} offset:{(5 * self.LDS_W.index(n) + j) * 1024}", tag="wlr")
            e.all_tags.add(("w", n, j))
        assert n0 % 2 == 0
        after = lambda n: max((n | 1) + 1, 0)
        R = [(max(after(n - 12), 4), lambda n=n, j=j: wl_read(n, j)) for n in self.LDS_W for j in range(5)]
        for n2 in range(4, n0, 2):
            for n in (n2, n2 + 1):
                if n >= 12 and n not in self.LDS_W: Q += [(max(after(n - 12), 4 if n >= 14 else 0), f) for f in self.w_loads(n)]
            Q += [(max(after(n2 - NH), 2 if n2 >= 6 else 0, cB if n2 >= 14 else 0), lambda n=n2 + k, t=t: self.h_load(n, t)) for t in range(4) for k in range(2)]
        for n in range(n0, 19):
            if n not in self.LDS_W: Q += [(max(after(n - 12), 4), f) for f in self.w_loads(n)]
        for t in range(4):
            for n in range(n0, 19):
                i = TM * t + n - n0
                Q.append((max(after(n0 - NH + i // 4), cB), lambda n=n, t=t: self.h_load(n, t)))
        def issue(step):
            for i, (fr, f) in enumerate(Q):
                if fr <= step:
                    Q.pop(i); f(); return True
            return False
        def need(tags, step, also=()):
            while any(t not in e.all_tags for t in tags): assert issue(step)
            if any(t in e.vm for t in tags): e.wait(vm=list(tags) + [t for t in also if t in e.vm])
        def mfma(n, t, j, first=False):
            acc = v(BA + 20 * t + 4 * j, 4)
            e.op(f"v_mfma_f32_16x16x32_bf16 {acc}, {r(WR + 20 * (n % NWR) + 4 * j, 4)}, {v(self.hreg(n, t), 4)}, {'0' if first else acc}")
        lrate = self.o("lr2", 11)
        cnt = 0
        oep = list(self.o_epilogue)
        for step in range(n0):
            n2 = step & ~1
            if step == 2: assert not oep
            if step == 4: assert not setup
            if step == 12:
                assert not R
                e.wait(lg="wlr")
            if self.o("zoom", 0) == 4 and step < 12: self.stamp(1 + step, True)
            if step == self.o("pubB", 4):
                e.wait(vm="sto"); self.publish(S_FLB)
            if step == self.o("pollB", 10): self.poll_issue(V_FB)
            if step == cB:
                self.poll_check(V_FB, 3); self.stamp(9)
            for i in range(20):
                t, j0, k0 = 2 * (step & 1) + i // 10, (i % 10) >> 1, i & 1
                j, n = (4 - j0 if t & 1 else j0), n2 + (k0 ^ ((i >> 1) & 1))
                need([("w", n, j), ("h", n, t)], step, [("w", n2 + 1, 4), ("h", n2 + 1, t)])
                mfma(n, t, j, n2 == 0 and k0 == 0)
                cnt = min(cnt + lrate, 80)
                if cnt >= 40 and k0 and issue(step):
                    cnt -= 40
                elif oep:
                    oep.pop(0)()
                    if oep: oep.pop(0)()
                elif setup:
                    setup.pop(0)()
                elif R and R[0][0] <= step and not k0: R.pop(0)[1]()
        self.stamp(10)
        assert all(self.hreg(n, 3) >= 48 for n in range(n0, 19))
        RD = (0, 20, BA)
        def wr(t, j): e.op(f"ds_write_b128 {v(V_RW)}, {v(BA + 20 * t + 4 * j, 4)} offset:{t * 5120 + j * 1024}", tag=("red", t))
        def rd(sl, j): e.op(f"ds_read_b128 {v(RD[sl] + 4 * j, 4)}, {v(V_RR + sl)} offset:{j * 1024}", tag=("rd", sl, j))
        def add01(k):
            if k % 4 == 0: e.wait(lg=("rd", 1, k // 4))
            e.op(f"v_add_f32 {v(RD[0] + k)}, {v(RD[0] + k)}, {v(RD[1] + k)}")
        def bar01():
            e.wait(lg=("red", 1))
            e.op("s_barrier")
        F = BA + 60
        for t in range(4):
            q = [None] * 3 + [lambda j=j: wr(t - 1, j) for j in range(5)] if t else []
            if t == 3:
                q = [bar01] + [lambda j=j, sl=sl: rd(sl, j) for j in range(2) for sl in range(2)] + q[3:] + \
                    [lambda j=j, sl=sl: rd(sl, j) for j in range(2, 5) for sl in range(2)]
                adds = [lambda k=k: add01(k) for k in range(20)]
            i = 0
            for j in range(5):
                for n in (range(n0, 19) if j % 2 == 0 else range(18, n0 - 1, -1)):
                    need([("w", n, j), ("h", n, t)], 99)
                    mfma(n, t, j)
                    if Q and i % 4 == 0: issue(99)
                    elif q:
                        f = q.pop(0)
                        if f: f()
                    elif t == 3:
                        for _ in range(2):
                            if adds: adds.pop(0)()
                    i += 1
            for f in q:
                if f: f()
        assert not Q
        self.stamp(11)
        e.wait(lg=("red", 2))
        e.op("s_barrier")
        for j in range(5): rd(2, j)
        for f in adds: f()
        e.wait(vm="g")
        W2 = v(V_GW, 2)
        of = ("", "sc1", "nt", "sc1 nt")[self.o("outf", 1)]
        of2 = ("", "sc1", "nt", "sc1 nt")[self.o("outf2", 0)]
        for i in range(10): e.op(f"v_pk_add_f32 {v(F + 2 * i, 2)}, {v(F + 2 * i, 2)}, {v(RD[0] + 2 * i, 2)}")
        for i in range(10): e.op(f"v_pk_mul_f32 {v(F + 2 * i, 2)}, {v(F + 2 * i, 2)}, {W2} op_sel_hi:[1,0]")
        for grp in ((0, 4), (4, 8), (8, 10)):
            e.wait(lg=("rd", 2, (grp[1] - 1) // 2))
            for i in range(*grp): e.op(f"v_pk_fma_f32 {v(F + 2 * i, 2)}, {v(RD[2] + 2 * i, 2)}, {W2}, {v(F + 2 * i, 2)} op_sel_hi:[1,0,1]")
            for i in range(*grp): e.op(f"v_cvt_pk_bf16_f32 {v(i)}, {v(F + 2 * i)}, {v(F + 2 * i + 1)}")
            if grp[0] < 8: e.op(f"buffer_store_dwordx4 {v(grp[0],4)}, {v(V_OUT)}, {s(S_OUT,4)}, 0 offen offset:{grp[0] * 16} {of}")
            else: e.op(f"buffer_store_dwordx2 {v(8,2)}, {v(V_OUT+1)}, {s(S_OUT,4)}, {s(S_XM0)} offen {of2}")
        self.stamp(12)
        if self.o("skipw", 0): self.w_loads = wl0

    def finish(self):
        e = self.e
        if self.o("leak", -1) >= 0:
            e.wait(vm="all")
            self.stamp(13)
            self.flush_stamp()
            e.op(f"s_memrealtime {s(S_MASK,2)}")
            e.op(f"v_readlane_b32 {s(S_T0)}, {v(V_STAMP)}, {self.o('leak0', 0)}")
            e.op(f"v_readlane_b32 {s(S_T1)}, {v(V_STAMP)}, {self.o('leak', 0)}")
            e.wait(lg="all")
            e.op(f"s_sub_u32 {s(S_T0)}, {s(S_T1)}, {s(S_T0)}")
            e.op(f"s_cmp_gt_u32 {s(S_T0)}, 10000")
            e.op(f"s_cselect_b32 {s(S_T0)}, 0, {s(S_T0)}")
            e.op(f"s_cmp_eq_u32 s2, {self.o('leakwg', 100)}")
            e.op(f"s_cselect_b32 {s(S_T0)}, {s(S_T0)}, 0")
            e.op(f"s_mul_i32 {s(S_T0)}, {s(S_T0)}, {self.o('lmul', 5)}")
            e.label("L_leak")
            e.op(f"s_memrealtime {s(S_VM,2)}")
            e.wait(lg="all")
            e.op(f"s_sub_u32 {s(S_T1)}, {s(S_VM)}, {s(S_MASK)}")
            e.op(f"s_cmp_lt_u32 {s(S_T1)}, {s(S_T0)}")
            e.op("s_cbranch_scc1 L_leak")
        if self.stamps:
            e.wait(vm="all")
            self.stamp(13)
            e.op(f"s_memtime {s(S_VM,2)}")
            self.flush_stamp()
            e.op(f"v_writelane_b32 {v(V_STAMP)}, {s(S_VM)}, {NSTAMP}")
            e.op(f"s_lshl2_add_u32 {s(S_T0)}, s2, {s(S_WAVE)}")
            e.op(f"s_lshl_b32 {s(S_T0)}, {s(S_T0)}, 7")
            e.op(f"s_add_u32 {s(S_T0)}, {s(S_T0)}, {WS_ST}")
            e.op(f"v_lshlrev_b32 {v(V_T0)}, 2, {v(V_LANE)}")
            e.op("s_mov_b32 exec_hi, 0")
            e.op(f"buffer_store_dword {v(V_STAMP)}, {v(V_T0)}, {s(S_WS,4)}, {s(S_T0)} offen")
        e.op("s_endpgm")

    def build(self):
        e = self.e
        ab = self.o("abl", 0)
        if ab:
            real = e.op
            def op(text, tag=None):
                ph = getattr(self, "phase", 0)
                isld = ("_load_dwordx4" in text) and isinstance(tag, (tuple, str)) and tag[0] in ("w", "h", "d", "k", "v", "q")
                if (ab >> (2 * ph)) & 1 and (text.startswith("v_mfma") or text.startswith("v_exp")): return real("s_nop 0")
                if (ab >> (2 * ph)) & 2 and isld:
                    e.all_tags.add(tag); return None
                return real(text, tag)
            e.op = op
        self.prologue()
        self.stage1()
        self.attention()
        self.stage3()
        self.finish()
        self.att_lo()
        self.in_side = True
        self.gate()
        self.spare()
        for f in self.stubs:
            e.vm, e.lg = [], []
            f()
        e.label("L_cold")
        for f in self.cold: f()
        e.label("L_end")
        e.op("s_endpgm")
        head = open("head.txt").read().split("\n")
        head = [l for l in head if l.startswith(";") and "@launch" not in l]
        txt = "\n".join(head) + f"\n; @launch grid=(256,1,1) block=(256,1,1) lds={LDS_BYTES}\n" + DOC
        txt += f""".amdgcn_target "amdgcn-amd-amdhsa--gfx950"
.text
.globl {NAME}_kernel
.p2align 8
.type {NAME}_kernel,@function
{NAME}_kernel:
"""
        txt += e.text().replace("\n    ", "\n ")
        txt += f""".section .rodata,"a"
.p2align 6
.amdhsa_kernel {NAME}_kernel
  .amdhsa_next_free_vgpr 512
  .amdhsa_next_free_sgpr 102
  .amdhsa_accum_offset 256
  .amdhsa_group_segment_fixed_size 0
  .amdhsa_kernarg_size 80
  .amdhsa_user_sgpr_count 2
  .amdhsa_user_sgpr_kernarg_segment_ptr 1
  .amdhsa_system_sgpr_workgroup_id_x 1
.end_amdhsa_kernel
.p2align 8
.type wave_table,@object
wave_table:
"""
        for wg in range(256):
            for w in range(4):
                txt += ".long " + ",".join(str(x) for x in table_entry(wg, w, self.o("map3", 0), self.o("umap", 1), self.o("bal", 1))) + "\n"
        return txt

if __name__ == "__main__":
    out = sys.argv[1] if len(sys.argv) > 1 else "cdna_kernels/" + NAME + ".s"
    opt = {}
    for x in sys.argv[2:]:
        if "=" in x:
            k, val = x.split("="); opt[k] = int(val)
    g = Gen(stamps="--stamps" in sys.argv, opt=opt)
    txt = g.build()
    open(out, "w").write(txt)
    print("instructions", g.e.count, "pad states", g.e.nops, "autowaits", g.e.autowaits, "bytes", len(txt), file=sys.stderr)
    if "--nops" in sys.argv:
        for n, t in g.e.log_nops: print(n, t, file=sys.stderr)
```
